```python
import torch

def _softmax(x, axis=-1):
    return torch.softmax(x, dim=axis)
def _gelu(x):
    return torch.nn.functional.gelu(x, approximate="tanh")
def _silu(x):
    return torch.nn.functional.silu(x)
def _sigmoid(x):
    return torch.sigmoid(x)
def _layernorm(x, axis=-1, eps=1e-5):
    m = x.mean(dim=axis, keepdim=True)
    v = x.var(dim=axis, keepdim=True, unbiased=False)
    return (x - m) / torch.sqrt(v + eps)
def _scatter_add(tgt, idx, src, axis=0):
    return tgt.clone().index_add_(axis, idx, src)
def _segment_sum(src, seg, n):
    out = torch.zeros((n,) + src.shape[1:], dtype=src.dtype)
    return out.index_add_(0, seg, src)
def _pad(x, pw):
    flat = tuple(v for pair in reversed(pw) for v in pair)
    return torch.nn.functional.pad(x, flat)

kernel_name = 'recurrent_scan__mha_block__glu_gated_geglu__prompt'

def setup_inputs():

    _w = (lambda a: (lambda t: t.to(torch.bfloat16) if t.is_floating_point() else t)(torch.as_tensor(a)))
    def _A_setup():
        B, S, D, H = 1, 2048, 512, 32
        return {
            "x": _w((lambda *s: torch.randn(*s, dtype=torch.bfloat16) * 0.05)(B, S, D)),
            "wqkv": _w((lambda *s: torch.randn(*s, dtype=torch.bfloat16) * 0.2)(D, 3 * D)),
            "wo": _w((lambda *s: torch.randn(*s, dtype=torch.bfloat16) * 0.2)(D, D)),
        }
    _A_in = _A_setup()

    def _B_setup():
        B, S, Dm, Df = 1, 2048, 512, 1792
        return {
            "x": _w((lambda *s: torch.randn(*s, dtype=torch.bfloat16) * 0.05)(B, S, Dm)),
            "w_gate": _w((lambda *s: torch.randn(*s, dtype=torch.bfloat16) * 0.1)(Dm, Df) * (Dm ** -0.5)),
            "w_up": _w((lambda *s: torch.randn(*s, dtype=torch.bfloat16) * 0.1)(Dm, Df) * (Dm ** -0.5)),
            "w_down": _w((lambda *s: torch.randn(*s, dtype=torch.bfloat16) * 0.1)(Df, Dm) * (Df ** -0.5)),
        }
    _B_in = _B_setup()

    return {
        "A_x": _A_in["x"],
        "A_wqkv": _A_in["wqkv"],
        "A_wo": _A_in["wo"],
        "B_x": _B_in["x"],
        "B_w_gate": _B_in["w_gate"],
        "B_w_up": _B_in["w_up"],
        "B_w_down": _B_in["w_down"],
    }

def reference(A_x, A_wqkv, A_wo, B_x, B_w_gate, B_w_up, B_w_down):
    def _A_ref(x, wqkv, wo):
        B, S, D = x.shape
        H = 32
        Dh = D // H
        qkv = (lambda x, *d: x.permute(*d))((x @ wqkv).reshape(B, S, 3, H, Dh), 2, 0, 3, 1, 4)
        q, k, v = qkv[0], qkv[1], qkv[2]
        scores = torch.einsum("bhqd,bhkd->bhqk", q, k) * (Dh ** -0.5)
        p = _softmax(scores, axis=-1)
        o = torch.einsum("bhqk,bhkd->bhqd", p, v)
        return (lambda x, *d: x.permute(*d))(o, 0, 2, 1, 3).reshape(B, S, D) @ wo

    def _B_ref(x, w_gate, w_up, w_down):
        g = torch.einsum("bsd,df->bsf", x, w_gate)
        u = torch.einsum("bsd,df->bsf", x, w_up)
        h = _gelu(g) * u
        return torch.einsum("bsf,fd->bsd", h, w_down)

    x = A_x
    xn = _layernorm(x, axis=-1)
    s = _A_ref(xn, A_wqkv, A_wo)
    g = _silu(_B_ref(xn, B_w_gate, B_w_up, B_w_down))
    return x + s * g
```

```python
import sys, struct, math

NAME = "recurrent_scan__mha_block__glu_gated_geglu__prompt"

WS_QKV = 0
WS_H = 6 << 20
WS_O = 14 << 20
WS_CNT = 16 << 20
WS_SIZE = (16 << 20) + 65536

LOG2E = 1.4426950408889634
QSCALE = 0.25 * LOG2E
GC1 = -2.0 * LOG2E * math.sqrt(2.0 / math.pi)
GC2 = GC1 * 0.044715
MAXOFF = 80.0


def f2u(x):
    return struct.unpack("<I", struct.pack("<f", x))[0]


def hx(x):
    return "0x%08x" % (x & 0xffffffff)


class Asm:
    def __init__(self):
        self.l = []

    def __call__(self, s):
        for line in s.split("\n"):
            line = line.strip()
            if not line:
                continue
            if line.endswith(":") or line.startswith("."):
                self.l.append(line)
            else:
                self.l.append("    " + line)

    def text(self):
        return "\n".join(self.l) + "\n"


def vr(b, n):
    return f"v[{b}:{b + n - 1}]"


def mfma(d, a, b, c=None):
    cs = vr(d, 16) if c is None else (c if isinstance(c, str) else vr(c, 16))
    return f"v_mfma_f32_32x32x16_bf16 {vr(d, 16)}, {vr(a, 4)}, {vr(b, 4)}, {cs}"


def interleave(heads, fill):
    res = []
    n, k = len(fill), len(heads)
    for j in range(k):
        res += heads[j]
        res += fill[j * n // k:(j + 1) * n // k]
    return res


def srd(a, s, ptr, size):
    a(f"s_mov_b32 s{s}, s{ptr}")
    a(f"s_mov_b32 s{s + 1}, s{ptr + 1}")
    a(f"s_mov_b32 s{s + 2}, {size}")
    a(f"s_mov_b32 s{s + 3}, 0x00020000")


X0, XB = 0, 16384
W0, WB = 32768, 40960
P1_STAT = W0 + 2 * WB
P1_XS = P1_STAT + 10240
P1_RS = P1_XS + 4096

XREL, WREL, XC, WC = 8, 12, 17, 21
VXS, VW0, VW1, VW3 = 26, 27, 28, 29
CS, SX, SXX, TMP, MASK, L16 = 30, 35, 36, 38, 46, 47
FA, FB = 64, 88
ACC = 128
S_X, S_W0, S_W1, S_W3, S_WS = 8, 12, 16, 20, 24
sW, sTT, sHF, sRB, sCB, sROT, sISC, sISV, sSTR = 28, 29, 30, 31, 32, 33, 34, 35, 36
sCOL = 37
sXROW, sLW, sST = 42, 43, 44
sXB, sWBR, sWBI = 45, 46, 47
sT0, sT1, sT2, sT3 = 48, 49, 50, 51
sU0 = 52


def p1_issue_x(stage_expr_sgpr, add, buf_sgpr):
    r = []
    r.append(f"s_add_u32 s{sT0}, s{stage_expr_sgpr}, {add}")
    r.append(f"s_and_b32 s{sT0}, s{sT0}, 7")
    r.append(f"s_lshl_b32 s{sT0}, s{sT0}, 7")
    r.append(f"s_add_u32 m0, s{buf_sgpr}, s{sLW}")
    r.append(f"s_add_u32 s{sT0}, s{sT0}, s{sXROW}")
    r.append(f"buffer_load_dwordx4 v{VXS}, s[{S_X}:{S_X + 3}], s{sT0} offen lds")
    r.append(f"s_add_u32 m0, m0, 8192")
    r.append(f"s_add_u32 s{sT0}, s{sT0}, 0x10000")
    r.append(f"buffer_load_dwordx4 v{VXS}, s[{S_X}:{S_X + 3}], s{sT0} offen lds")
    return r


def p1_issue_w(stage_expr_sgpr, add, buf_sgpr):
    r = []
    r.append(f"s_add_u32 s{sT0}, s{stage_expr_sgpr}, {add}")
    r.append(f"s_and_b32 s{sT0}, s{sT0}, 7")
    r.append(f"s_lshl_b32 s{sT0}, s{sT0}, 6")
    r.append(f"s_mul_i32 s{sT1}, s{sT0}, s{sSTR}")
    r.append(f"s_mul_i32 s{sT0}, s{sT0}, 3072")
    r.append(f"s_add_u32 m0, s{buf_sgpr}, s{sLW}")
    r.append(f"s_add_u32 s{sT0}, s{sT0}, s{sCOL}")
    r.append(f"buffer_load_dwordx4 v{VW0}, s[{S_W0}:{S_W0 + 3}], s{sT0} offen lds")
    for j in range(1, 5):
        sr = S_W1 if j < 3 else S_W3
        vv = VW1 if j < 3 else VW3
        r.append(f"s_add_u32 m0, m0, 8192")
        r.append(f"s_add_u32 s{sT0}, s{sT1}, s{sCOL + j}")
        r.append(f"buffer_load_dwordx4 v{vv}, s[{sr}:{sr + 3}], s{sT0} offen lds")
    return r


def p1_reads(ks, F):
    r = [f"ds_read_b128 {vr(F, 4)}, v{XC + ks}"]
    for s in range(5):
        for t2 in range(2):
            r.append(f"ds_read_b64_tr_b16 {vr(F + 4 + 4 * s + 2 * t2, 2)}, v{WC + s} offset:{ks * 2048 + t2 * 512}")
    return r


def p1_valu(F, v):
    r = []
    items = [("c", F + 4 + 4 * s + v, CS + s) for s in range(5)]
    xs = [("x", F + (v & 2) + i, None) for i in range(2)]
    order = [items[0], xs[0], items[1], items[2], xs[1], items[3], items[4]]
    pend = []
    for n, (kind, reg, acc) in enumerate(order):
        t0, t1 = TMP + (n % 3) * 2, TMP + (n % 3) * 2 + 1
        r.append(f"v_and_b32 v{t0}, v{MASK}, v{reg}")
        r.append(f"v_lshlrev_b32 v{t1}, 16, v{reg}")
        r += pend
        if kind == "c":
            pend = [f"v_add_f32 v{acc}, v{t0}, v{acc}", f"v_add_f32 v{acc}, v{t1}, v{acc}"]
        else:
            pend = [f"v_add_f32 v{SX}, v{t0}, v{SX}", f"v_fmac_f32 v{SXX}, v{t0}, v{t0}",
                    f"v_add_f32 v{SX}, v{t1}, v{SX}", f"v_fmac_f32 v{SXX}, v{t1}, v{t1}"]
    r += pend
    return r


def p1_mfmas(F, isv):
    r = []
    for s in range(5):
        w = F + 4 + 4 * s
        if s == 0 and isv:
            r.append(mfma(ACC, F, w))
        else:
            r.append(mfma(ACC + 16 * s, w, F))
    return r


def p1_kstep(F, v, isv, reads, extra_blocks=None):
    m = p1_mfmas(F, isv)
    val = p1_valu(F, v)
    res = []
    rsplit = [4, 4, 3, 0, 0]
    vsplit = [5, 6, 6, 8, 7]
    ri = vi = 0
    for j in range(5):
        res.append(m[j])
        if reads:
            res += reads[ri:ri + rsplit[j]]
            ri += rsplit[j]
        if extra_blocks and j in extra_blocks:
            res += extra_blocks[j]
        res += val[vi:vi + vsplit[j]]
        vi += vsplit[j]
    assert vi == len(val), (vi, len(val))
    return res


def gen_p1(a, kname):
    a(f".globl {kname}\n.p2align 8\n.type {kname},@function\n{kname}:")
    a("s_cmp_ge_u32 s2, 256")
    a("s_cbranch_scc1 P1_exit")
    a("s_load_dwordx4 s[56:59], s[0:1], 0")
    a("s_load_dwordx4 s[60:63], s[0:1], 32")
    a("s_load_dwordx2 s[64:65], s[0:1], 72")
    a("v_lshrrev_b32 v1, 6, v0")
    a("v_and_b32 v0, 63, v0")
    a(f"v_readfirstlane_b32 s{sW}, v1")
    a(f"s_and_b32 s{sT0}, s2, 7")
    a(f"s_lshr_b32 s{sT1}, s2, 3")
    a(f"s_and_b32 s{sRB}, s{sT0}, 1")
    a(f"s_lshl_b32 s{sRB}, s{sRB}, 3")
    a(f"s_and_b32 s{sT2}, s{sT1}, 7")
    a(f"s_add_u32 s{sRB}, s{sRB}, s{sT2}")
    a(f"s_lshr_b32 s{sCB}, s{sT0}, 1")
    a(f"s_lshl_b32 s{sCB}, s{sCB}, 2")
    a(f"s_lshr_b32 s{sT3}, s{sT1}, 3")
    a(f"s_add_u32 s{sCB}, s{sCB}, s{sT3}")
    a(f"s_lshl_b32 s{sT3}, s{sT3}, 1")
    a(f"s_add_u32 s{sROT}, s{sT2}, s{sT3}")
    a(f"s_and_b32 s{sTT}, s{sW}, 3")
    a(f"s_lshr_b32 s{sHF}, s{sW}, 2")
    a(f"s_lshl_b32 s{sLW}, s{sW}, 10")
    a(f"s_cmp_ge_u32 s{sCB}, 6")
    a(f"s_cselect_b32 s{sISV}, 1, 0")
    a(f"s_sub_u32 s{sT0}, s{sCB}, 14")
    a(f"s_mul_i32 s{sT0}, s{sT0}, 5")
    a(f"s_add_u32 s{sT1}, s{sCB}, 10")
    a(f"s_lshl_b32 s{sT2}, s{sCB}, 1")
    a(f"s_cmp_ge_u32 s{sCB}, 14")
    a(f"s_cselect_b32 s{sISC}, 1, 0")
    a(f"s_cselect_b32 s{sISV}, 0, s{sISV}")
    a(f"s_cselect_b32 s{sU0}, s{sT0}, s{sT1}")
    a(f"s_movk_i32 s{sSTR}, 3584")
    a(f"s_cselect_b32 s{sSTR}, 3072, s{sSTR}")
    a(f"s_add_u32 s{sT0}, s{sU0}, 1")
    a(f"s_add_u32 s{sT1}, s{sU0}, 3")
    a(f"s_cmp_eq_u32 s{sISC}, 1")
    a(f"s_cselect_b32 s{sT0}, s{sT0}, s{sT2}")
    a(f"s_cselect_b32 s{sT1}, s{sT1}, s{sT2}")
    a(f"s_lshl_b32 s{sCOL}, s{sU0}, 7")
    a(f"s_lshl_b32 s{sCOL + 1}, s{sT0}, 7")
    a(f"s_lshl_b32 s{sCOL + 3}, s{sT1}, 7")
    a(f"s_lshl_b32 s{sT2}, s{sW}, 3")
    a(f"s_mul_i32 s{sT3}, s{sT2}, 3072")
    a(f"s_add_u32 s{sCOL}, s{sCOL}, s{sT3}")
    a(f"s_mul_i32 s{sT3}, s{sT2}, s{sSTR}")
    a(f"s_add_u32 s{sCOL + 1}, s{sCOL + 1}, s{sT3}")
    a(f"s_add_u32 s{sCOL + 3}, s{sCOL + 3}, s{sT3}")
    a(f"s_add_u32 s{sCOL + 2}, s{sCOL + 1}, 128")
    a(f"s_add_u32 s{sCOL + 4}, s{sCOL + 3}, 128")
    a(f"s_lshl_b32 s{sXROW}, s{sRB}, 7")
    a(f"s_add_u32 s{sXROW}, s{sXROW}, s{sT2}")
    a(f"s_lshl_b32 s{sXROW}, s{sXROW}, 10")
    a("v_lshrrev_b32 v1, 3, v0")
    a("v_and_b32 v2, 7, v0")
    a(f"v_add_u32 v3, s{sT2}, v1")
    a("v_bfe_u32 v3, v3, 1, 3")
    a("v_xor_b32 v3, v3, v2")
    a("v_lshlrev_b32 v3, 4, v3")
    a(f"v_lshl_add_u32 v{VXS}, v1, 10, v3")
    a("v_and_b32 v3, 2, v1")
    a("v_lshlrev_b32 v3, 1, v3")
    a("v_xor_b32 v3, v3, v2")
    a("v_lshlrev_b32 v3, 4, v3")
    a("v_mul_u32_u24 v4, 3072, v1")
    a(f"v_add_u32 v{VW0}, v4, v3")
    a(f"v_mul_u32_u24 v4, s{sSTR}, v1")
    a(f"v_add_u32 v{VW1}, v4, v3")
    a("v_xor_b32 v3, 32, v3")
    a(f"v_add_u32 v{VW3}, v4, v3")
    a("s_waitcnt lgkmcnt(0)")
    srd(a, S_X, 56, 2097152)
    srd(a, S_W0, 58, 1572864)
    a(f"s_cmp_eq_u32 s{sISC}, 1")
    a(f"s_cselect_b32 s{S_W1}, s58, s60")
    a(f"s_cselect_b32 s{S_W1 + 1}, s59, s61")
    a(f"s_mov_b32 s{S_W1 + 2}, 1835008")
    a(f"s_cselect_b32 s{S_W1 + 2}, 1572864, s{S_W1 + 2}")
    a(f"s_mov_b32 s{S_W1 + 3}, 0x00020000")
    a(f"s_cselect_b32 s{S_W3}, s58, s62")
    a(f"s_cselect_b32 s{S_W3 + 1}, s59, s63")
    a(f"s_mov_b32 s{S_W3 + 2}, s{S_W1 + 2}")
    a(f"s_mov_b32 s{S_W3 + 3}, 0x00020000")
    srd(a, S_WS, 64, WS_SIZE)
    a(f"s_mov_b32 s{sXB}, {X0}")
    a(f"s_mov_b32 s{sWBI}, {W0}")
    for l in p1_issue_x(sROT, 0, sXB): a(l)
    for l in p1_issue_w(sROT, 0, sWBI): a(l)
    a(f"s_mov_b32 s{sXB}, {X0 + XB}")
    a(f"s_mov_b32 s{sWBI}, {W0 + WB}")
    for l in p1_issue_x(sROT, 1, sXB): a(l)
    for l in p1_issue_w(sROT, 1, sWBI): a(l)
    a(f"s_mov_b32 s{sWBI}, {W0 + 2 * WB}")
    for l in p1_issue_w(sROT, 2, sWBI): a(l)
    a(f"v_lshlrev_b32 v{L16}, 4, v0")
    a(f"s_or_b32 s{sT0}, s2, s{sW}")
    a(f"s_cmp_lg_u32 s{sT0}, 0")
    a("s_cbranch_scc1 P1_nozero")
    a("v_mov_b32 v1, 0")
    a("v_lshlrev_b32 v2, 8, v0")
    a(f"s_mov_b32 s{sT0}, {WS_CNT}")
    a(f"buffer_store_dword v1, v2, s[{S_WS}:{S_WS + 3}], s{sT0} offen")
    a("s_waitcnt vmcnt(0)")
    a("P1_nozero:")
    a("v_and_b32 v1, 31, v0")
    a("v_lshrrev_b32 v2, 5, v0")
    a("v_bfe_u32 v3, v0, 1, 3")
    a("v_xor_b32 v3, v3, v2")
    a("v_lshlrev_b32 v3, 4, v3")
    a("v_lshl_add_u32 v3, v1, 7, v3")
    a(f"s_lshl_b32 s{sT0}, s{sTT}, 12")
    a(f"v_add_u32 v{XREL}, s{sT0}, v3")
    for i in range(1, 4):
        a(f"v_xor_b32 v{XREL + i}, {32 * i}, v{XREL}")
    a("v_bfe_u32 v3, v0, 2, 2")
    a("v_lshl_add_u32 v4, v2, 3, v3")
    a("v_lshlrev_b32 v4, 7, v4")
    a("v_and_b32 v5, 3, v0")
    a("v_lshl_add_u32 v4, v5, 3, v4")
    a("v_and_b32 v3, 2, v3")
    a("v_bfe_u32 v5, v0, 4, 1")
    a("v_xor_b32 v3, v3, v5")
    a(f"s_lshl_b32 s{sT0}, s{sHF}, 1")
    a(f"v_xor_b32 v6, s{sT0}, v3")
    a(f"v_lshl_add_u32 v{WREL}, v6, 5, v4")
    a("v_lshl_add_u32 v4, v5, 14, v4")
    a(f"s_add_u32 s{sT0}, s{sHF}, 1")
    a(f"s_lshl_b32 s{sT0}, s{sT0}, 13")
    a(f"v_add_u32 v4, s{sT0}, v4")
    for c in range(4):
        a(f"v_xor_b32 v6, {c}, v3")
        a(f"v_lshl_add_u32 v{WREL + 1 + c}, v6, 5, v4")
    for i in range(4):
        a(f"v_mov_b32 v{XC + i}, v{XREL + i}")
    for i in range(5):
        a(f"v_add_u32 v{WC + i}, {W0}, v{WREL + i}")
    a(f"v_mov_b32 v{MASK}, 0xffff0000")
    for i in range(CS, SXX + 1):
        a(f"v_mov_b32 v{i}, 0")
    for i in range(0, 80, 2):
        a(f"v_mov_b64 v[{ACC + i}:{ACC + i + 1}], 0")
    a(f"s_mov_b32 s{sST}, 0")
    a(f"s_mov_b32 s{sXB}, {X0}")
    a(f"s_mov_b32 s{sWBR}, {W0}")
    a(f"s_lshl_b32 s{sT0}, s{sHF}, 1")
    a(f"s_add_u32 s{sT0}, s{sT0}, s{sTT}")
    a(f"s_and_b32 s{sT0}, s{sT0}, 3")
    a(f"s_lshl_b32 s{sT1}, s{sISV}, 2")
    a(f"s_add_u32 s{sT3}, s{sT0}, s{sT1}")
    a("s_waitcnt vmcnt(12)")
    a("s_barrier")
    for l in p1_reads(0, FA): a(l)
    for var in range(1, 8):
        a(f"s_cmp_eq_u32 s{sT3}, {var}")
        a(f"s_cbranch_scc1 P1_loop{var}")
    for var in range(8):
        v, isv = var & 3, var >> 2
        a(f"P1_loop{var}:")
        a("s_waitcnt lgkmcnt(0)")
        for l in p1_kstep(FA, v, isv, p1_reads(1, FB)): a(l)
        a("s_waitcnt lgkmcnt(0)")
        for l in p1_kstep(FB, v, isv, p1_reads(2, FA)): a(l)
        a("s_waitcnt lgkmcnt(0)")
        for l in p1_kstep(FA, v, isv, p1_reads(3, FB)): a(l)
        a(f"s_cmp_eq_u32 s{sST}, 7")
        a(f"s_cbranch_scc1 P1_tail{var}")
        a(f"s_mov_b32 s{sWBI}, s{sWBR}")
        a(f"s_add_u32 s{sWBR}, s{sWBR}, {WB}")
        a(f"s_cmp_eq_u32 s{sWBR}, {W0 + 3 * WB}")
        a(f"s_cselect_b32 s{sWBR}, {W0}, s{sWBR}")
        a(f"s_xor_b32 s{sT2}, s{sXB}, {XB}")
        for i in range(4):
            a(f"v_add_u32 v{XC + i}, s{sT2}, v{XREL + i}")
        for i in range(5):
            a(f"v_add_u32 v{WC + i}, s{sWBR}, v{WREL + i}")
        a(f"s_cmp_le_u32 s{sST}, 5")
        a(f"s_cbranch_scc1 P1_w5_{var}")
        a("s_waitcnt vmcnt(0)")
        a(f"P1_w5_{var}:")
        a("s_waitcnt vmcnt(5) lgkmcnt(0)")
        a("s_barrier")
        a(f"s_add_u32 s{sT3}, s{sST}, s{sROT}")
        bx = [f"s_cmp_gt_u32 s{sST}, 5", f"s_cbranch_scc1 P1_nx_{var}"] + p1_issue_x(sT3, 2, sXB) + [f"P1_nx_{var}:"]
        bw = [f"s_cmp_gt_u32 s{sST}, 4", f"s_cbranch_scc1 P1_nw_{var}"] + p1_issue_w(sT3, 3, sWBI) + [f"P1_nw_{var}:"]
        for l in p1_kstep(FB, v, isv, p1_reads(0, FA), {2: bx, 3: bw}): a(l)
        a(f"s_xor_b32 s{sXB}, s{sXB}, {XB}")
        a(f"s_add_u32 s{sST}, s{sST}, 1")
        a(f"s_branch P1_loop{var}")
        a(f"P1_tail{var}:")
        a("s_waitcnt lgkmcnt(0)")
        for l in p1_kstep(FB, v, isv, None): a(l)
        if var != 7:
            a("s_branch P1_epi")
    a("P1_epi:")
    a(f"s_mul_i32 s{sT0}, s{sHF}, 5120")
    a(f"s_add_u32 s{sT0}, s{sT0}, {P1_STAT}")
    a(f"v_add_u32 v1, s{sT0}, v{L16}")
    a(f"s_lshl_b32 s{sT1}, s{sTT}, 2")
    a(f"v_add_u32 v2, s{sT1}, v1")
    for s in range(5):
        a(f"ds_write_b32 v2, v{CS + s} offset:{s * 1024}")
    a("v_and_b32 v3, 31, v0")
    a("v_lshlrev_b32 v3, 5, v3")
    a(f"s_lshl_b32 s{sT1}, s{sTT}, 10")
    a(f"s_add_u32 s{sT1}, s{sT1}, {P1_XS}")
    a(f"v_add_u32 v3, s{sT1}, v3")
    a("v_lshrrev_b32 v4, 5, v0")
    a("v_lshl_add_u32 v4, v4, 3, v3")
    a(f"s_lshl_b32 s{sT1}, s{sHF}, 4")
    a(f"v_add_u32 v4, s{sT1}, v4")
    a(f"v_mov_b32 v6, v{SX}")
    a(f"v_mov_b32 v7, v{SXX}")
    a("ds_write_b64 v4, v[6:7]")
    a("s_waitcnt lgkmcnt(0)")
    a("s_barrier")
    a("ds_read_b128 v[8:11], v3")
    a("ds_read_b128 v[12:15], v3 offset:16")
    for s in range(5):
        a(f"ds_read_b128 {vr(FA + 4 + 4 * s, 4)}, v1 offset:{s * 1024}")
    a("s_waitcnt lgkmcnt(5)")
    a("v_add_f32 v8, v8, v10")
    a("v_add_f32 v9, v9, v11")
    a("v_add_f32 v12, v12, v14")
    a("v_add_f32 v13, v13, v15")
    a("v_add_f32 v8, v8, v12")
    a("v_add_f32 v9, v9, v13")
    a(f"v_mul_f32 v8, {hx(f2u(1.0 / 512))}, v8")
    a(f"v_mul_f32 v9, {hx(f2u(1.0 / 512))}, v9")
    a("v_fma_f32 v9, -v8, v8, v9")
    a("v_max_f32 v9, 0, v9")
    a("v_cvt_pk_bf16_f32 v10, v9, v8")
    a("v_lshlrev_b32 v9, 16, v10")
    a(f"v_add_f32 v9, {hx(f2u(1e-5))}, v9")
    a("v_cvt_pk_bf16_f32 v9, v9, v9")
    a(f"v_and_b32 v9, v{MASK}, v9")
    a("v_sqrt_f32 v9, v9")
    a(f"v_and_b32 v10, v{MASK}, v10")
    a("v_cvt_pk_bf16_f32 v9, v9, v9")
    a("v_xor_b32 v10, 0x80000000, v10")
    SD, RS = 18, 16
    a(f"v_and_b32 v{SD}, v{MASK}, v9")
    a(f"v_rcp_f32 v{RS}, v{SD}")
    a(f"v_mov_b32 v{FA}, v10")
    a(f"v_mov_b32 v{FA + 1}, v10")
    a(f"v_mov_b32 v{FA + 2}, v10")
    a(f"v_mov_b32 v{FA + 3}, 0")
    a("s_waitcnt lgkmcnt(0)")
    for s in range(5):
        w = FA + 4 + 4 * s
        a(f"v_add_f32 v{w}, v{w}, v{w + 1}")
        a(f"v_add_f32 v{w + 2}, v{w + 2}, v{w + 3}")
        a(f"v_add_f32 v{w + 2}, v{w}, v{w + 2}")
        a(f"v_and_b32 v{w}, v{MASK}, v{w + 2}")
        a(f"v_sub_f32 v{w + 2}, v{w + 2}, v{w}")
        a(f"v_and_b32 v{w + 1}, v{MASK}, v{w + 2}")
        a(f"v_sub_f32 v{w + 2}, v{w + 2}, v{w + 1}")
        a(f"v_mov_b32 v{w + 3}, 0")
    sT = sST
    a(f"s_lshl_b32 s{sT}, s{sRB}, 2")
    a(f"s_add_u32 s{sT}, s{sT}, s{sTT}")
    a("s_nop 1")
    for s in range(1, 5):
        a(mfma(ACC + 16 * s, FA + 4 + 4 * s, FA))
    sG = sXB
    a(f"s_lshl_b32 s{sG}, s{sU0}, 2")
    a(f"s_lshl_b32 s{sT0}, s{sHF}, 1")
    a(f"s_add_u32 s{sG}, s{sG}, s{sT0}")
    a(f"s_cmp_eq_u32 s{sISV}, 1")
    a("s_cbranch_scc1 P1_epiV")

    def qk_half(accb, gsgpr, tmpb):
        a(f"s_cmp_lt_u32 s{gsgpr}, 32")
        a(f"s_cselect_b32 s{sT0}, {hx(f2u(QSCALE))}, 1.0")
        a(f"v_mul_f32 v20, s{sT0}, v{RS}")
        a(f"s_lshl_b32 s{sT1}, s{gsgpr}, 16")
        a(f"s_lshl_b32 s{sT2}, s{sT}, 10")
        a(f"s_add_u32 s{sT1}, s{sT1}, s{sT2}")
        for i in range(4):
            a(f"v_pk_mul_f32 {vr(accb + 2 * i, 2)}, {vr(accb + 2 * i, 2)}, v[20:21] op_sel_hi:[1,0]")
        for i in range(4):
            a(f"v_cvt_pk_bf16_f32 v{tmpb + i}, v{accb + 2 * i}, v{accb + 2 * i + 1}")
        a(f"buffer_store_dwordx4 {vr(tmpb, 4)}, v{L16}, s[{S_WS}:{S_WS + 3}], s{sT1} offen")

    a(mfma(ACC, FA + 4, FA))
    a("s_nop 15")
    qk_half(ACC, sG, 96)
    a(f"s_add_u32 s{sG}, s{sG}, 1")
    qk_half(ACC + 8, sG, 100)
    a("s_branch P1_epi2")
    a("P1_epiV:")
    a(mfma(ACC, FA, FA + 4))
    a(f"s_lshl_b32 s{sT0}, s{sW}, 8")
    a(f"s_add_u32 s{sT0}, s{sT0}, {P1_RS}")
    a("v_lshlrev_b32 v1, 2, v0")
    a(f"v_add_u32 v1, s{sT0}, v1")
    a(f"ds_write_b32 v1, v{RS}")
    a("v_lshrrev_b32 v2, 5, v0")
    a("v_lshlrev_b32 v2, 4, v2")
    a(f"v_add_u32 v2, s{sT0}, v2")
    a("s_waitcnt lgkmcnt(0)")
    for g in range(4):
        a(f"ds_read_b128 {vr(96 + 4 * g, 4)}, v2 offset:{g * 32}")
    a("v_bfe_u32 v3, v0, 4, 1")
    a("v_lshlrev_b32 v3, 16, v3")
    a("v_lshrrev_b32 v4, 5, v0")
    a("v_lshl_add_u32 v3, v4, 8, v3")
    a("v_and_b32 v4, 15, v0")
    a("v_lshl_add_u32 v3, v4, 4, v3")
    a(f"s_lshl_b32 s{sT1}, s{sG}, 16")
    a(f"s_lshl_b32 s{sT2}, s{sT}, 10")
    a(f"s_add_u32 s{sT1}, s{sT1}, s{sT2}")
    a("s_waitcnt lgkmcnt(0)")
    a("s_nop 7")
    for i in range(8):
        a(f"v_pk_mul_f32 {vr(ACC + 2 * i, 2)}, {vr(ACC + 2 * i, 2)}, {vr(96 + 2 * i, 2)}")
    for i in range(8):
        a(f"v_cvt_pk_bf16_f32 v{112 + i}, v{ACC + 2 * i}, v{ACC + 2 * i + 1}")
    a(f"buffer_store_dwordx4 v[112:115], v3, s[{S_WS}:{S_WS + 3}], s{sT1} offen")
    a(f"buffer_store_dwordx4 v[116:119], v3, s[{S_WS}:{S_WS + 3}], s{sT1} offen offset:512")
    a("P1_epi2:")
    a(f"s_cmp_eq_u32 s{sISC}, 1")
    a("s_cbranch_scc1 P1_epiC")
    a(f"s_mul_i32 s{sT1}, s{sT}, 112")
    a(f"s_lshl_b32 s{sT0}, s{sCB}, 1")
    a(f"s_add_u32 s{sT0}, s{sT0}, s{sHF}")
    a(f"s_lshl_b32 s{sT0}, s{sT0}, 2")
    a(f"s_add_u32 s{sT1}, s{sT1}, s{sT0}")
    a(f"s_lshl_b32 s{sT1}, s{sT1}, 10")
    a(f"s_add_u32 s{sT1}, s{sT1}, {WS_H}")
    a(f"v_mov_b32 v20, {hx(f2u(GC2))}")
    a(f"v_mov_b32 v21, {hx(f2u(GC1))}")
    for c in range(4):
        g = ACC + 16 * (1 + c)
        u = g + 8
        q = 64 + (c & 1) * 16
        o = 96 + c * 4
        for i in range(4):
            a(f"v_pk_mul_f32 {vr(g + 2 * i, 2)}, {vr(g + 2 * i, 2)}, {vr(RS, 2)} op_sel_hi:[1,0]")
        for i in range(4):
            a(f"v_pk_mul_f32 {vr(q + 2 * i, 2)}, {vr(g + 2 * i, 2)}, {vr(g + 2 * i, 2)}")
        for i in range(4):
            a(f"v_pk_fma_f32 {vr(q + 2 * i, 2)}, {vr(q + 2 * i, 2)}, v[20:21], v[20:21] op_sel:[0,0,1] op_sel_hi:[1,0,1]")
        for i in range(4):
            a(f"v_pk_mul_f32 {vr(q + 2 * i, 2)}, {vr(q + 2 * i, 2)}, {vr(g + 2 * i, 2)}")
        for i in range(8):
            a(f"v_exp_f32 v{q + i}, v{q + i}")
        for i in range(4):
            a(f"v_pk_mul_f32 {vr(g + 2 * i, 2)}, {vr(g + 2 * i, 2)}, {vr(u + 2 * i, 2)}")
        for i in range(4):
            a(f"v_pk_fma_f32 {vr(q + 2 * i, 2)}, {vr(q + 2 * i, 2)}, {vr(SD, 2)}, {vr(SD, 2)} op_sel_hi:[1,0,0]")
        for i in range(8):
            a(f"v_rcp_f32 v{q + i}, v{q + i}")
        a("s_nop 0")
        for i in range(4):
            a(f"v_pk_mul_f32 {vr(g + 2 * i, 2)}, {vr(g + 2 * i, 2)}, {vr(q + 2 * i, 2)}")
        for i in range(4):
            a(f"v_cvt_pk_bf16_f32 v{o + i}, v{g + 2 * i}, v{g + 2 * i + 1}")
        a(f"buffer_store_dwordx4 {vr(o, 4)}, v{L16}, s[{S_WS}:{S_WS + 3}], s{sT1} offen offset:{c * 1024}")
    a("s_endpgm")
    a("P1_epiC:")
    a(f"s_add_u32 s{sG}, s{sU0}, s{sHF}")
    a(f"s_add_u32 s{sG}, s{sG}, 1")
    a(f"s_lshl_b32 s{sG}, s{sG}, 2")
    for c in range(4):
        qk_half(ACC + 16 * (1 + c), sG, 64 + 8 * c)
        a(f"s_add_u32 s{sG}, s{sG}, 8")
        qk_half(ACC + 16 * (1 + c) + 8, sG, 68 + 8 * c)
        if c != 3:
            a(f"s_sub_u32 s{sG}, s{sG}, 7")
    a("P1_exit:")
    a("s_endpgm")


STG = 131072
Q_, NM, S0, S1, P_, O_, K_, V_ = 8, 16, 32, 48, 64, 80, 72, 96
H_ = 112
G_ = 128
WF = 192
AK, AV, A16, ASRC, ATR = 200, 201, 202, 203, 204
XV = 208
AOUT = 206
R_WS, R_WD, R_WO, R_X, R_OUT = 8, 12, 16, 20, 24
tW, tHEAD, tQB, tTP, tP, tIT, tHO, tWD, tSTG = 28, 29, 30, 31, 32, 33, 34, 35, 36
t0, t1, t2, t3 = 40, 41, 42, 43
tVM = 44
tBM = 46


def att_tile(i, gem=None, extra=None, first=False):
    Sc = S0 if i % 2 == 0 else S1
    Sn = S1 if i % 2 == 0 else S0
    Vc = V_ + 8 * (i % 2)
    Vp = V_ + 8 * ((i + 1) % 2)
    e = lambda k: f"v_exp_f32 v{Sc + k}, v{Sc + k}"
    c = lambda k: f"v_cvt_pk_bf16_f32 v{P_ + k}, v{Sc + 2 * k}, v{Sc + 2 * k + 1}"
    ex = extra or {}
    r = []
    r.append("s_waitcnt lgkmcnt(0)")
    r += ex.get("pre", [])
    r.append(mfma(Sn, K_, Q_, NM))
    r.append(f"ds_read_b128 {vr(K_, 4)}, v{AK} offset:{(i + 2) * 2048}")
    r += ex.get(0, [])
    r += [e(0), e(1), e(2), e(3)]
    if not first:
        r.append(mfma(O_, Vp + 4, P_ + 4))
    r.append(f"s_mov_b64 exec, s[{tVM}:{tVM + 1}]")
    r.append(f"ds_read_b128 {vr(Vp, 4)}, v{AV} offset:{(i + 1) * 2048}")
    r.append(f"ds_read_b128 {vr(Vp + 4, 4)}, v{AV} offset:{(i + 1) * 2048 + 512}")
    r.append("s_mov_b64 exec, -1")
    r += [c(0), e(4), e(5), c(1), e(6), e(7)]
    r += ex.get(1, [])
    if gem:
        r.append(gem)
    r += [e(8), c(2), c(3), e(9), e(10), e(11)]
    r.append(mfma(O_, Vc, P_))
    r += ex.get(2, [])
    r += [c(4), e(12), e(13), c(5), e(14), e(15), c(6), c(7)]
    r += ex.get(3, [])
    return r


def gemm_loads_wd(par):
    return [f"s_add_u32 m0, s{tSTG}, {par * 2048}",
            f"s_add_u32 s{t0}, s{tWD}, 8192",
            f"buffer_load_dwordx4 v{ASRC}, s[{R_WD}:{R_WD + 3}], s{tWD} offen lds",
            f"s_add_u32 m0, m0, 1024",
            f"s_add_u32 s{tWD}, s{tWD}, 16384",
            f"buffer_load_dwordx4 v{ASRC}, s[{R_WD}:{R_WD + 3}], s{t0} offen lds"]


def gemm_loads_h(par):
    return [f"s_add_u32 s{t0}, s{tHO}, {112 * 1024}",
            f"buffer_load_dwordx4 {vr(H_ + 8 * par, 4)}, v{A16}, s[{R_WS}:{R_WS + 3}], s{tHO} offen",
            f"buffer_load_dwordx4 {vr(H_ + 8 * par + 4, 4)}, v{A16}, s[{R_WS}:{R_WS + 3}], s{t0} offen",
            f"s_add_u32 s{tHO}, s{tHO}, 1024"]


def tr_reads(dst, off):
    r = []
    for ap in range(2):
        for t in range(2):
            r.append(f"ds_read_b64_tr_b16 {vr(dst + 4 * ap + 2 * t, 2)}, v{ATR + ap} offset:{off + t * 1024}")
    return r


def gen_p2(a, kname):
    a(f".globl {kname}\n.p2align 8\n.type {kname},@function\n{kname}:")
    a("s_cmp_ge_u32 s2, 256")
    a("s_cbranch_scc1 P2_exit")
    a("s_load_dwordx2 s[56:57], s[0:1], 0")
    a("s_load_dwordx2 s[58:59], s[0:1], 16")
    a("s_load_dwordx4 s[60:63], s[0:1], 48")
    a("s_load_dwordx2 s[64:65], s[0:1], 72")
    a("v_lshrrev_b32 v1, 6, v0")
    a("v_and_b32 v0, 63, v0")
    a(f"v_readfirstlane_b32 s{tW}, v1")
    a(f"s_and_b32 s{t0}, s2, 7")
    a(f"s_lshr_b32 s{t1}, s2, 3")
    a(f"s_and_b32 s{t2}, s{t1}, 3")
    a(f"s_lshl2_add_u32 s{tHEAD}, s{t0}, s{t2}")
    a(f"s_lshr_b32 s{tQB}, s{t1}, 2")
    a(f"s_mov_b32 s{tTP}, s{tHEAD}")
    a(f"s_mov_b32 s{tP}, s{tQB}")
    a(f"v_lshlrev_b32 v{A16}, 4, v0")
    a("s_waitcnt lgkmcnt(0)")
    srd(a, R_WS, 64, WS_SIZE)
    a(f"s_lshl_b32 s{t0}, s{tHEAD}, 16")
    a(f"s_lshl_b32 s{t1}, s{tQB}, 13")
    a(f"s_lshl_b32 s{t2}, s{tW}, 10")
    a(f"s_add_u32 s{t1}, s{t1}, s{t2}")
    a(f"s_add_u32 s{t1}, s{t1}, s{t0}")
    a(f"buffer_load_dwordx4 {vr(Q_, 4)}, v{A16}, s[{R_WS}:{R_WS + 3}], s{t1} offen")
    a(f"s_add_u32 s{t0}, s{t0}, s{t2}")
    a(f"s_add_u32 s{t0}, s{t0}, {32 << 16}")
    a(f"s_lshl_b32 s{t2}, s{tW}, 11")
    for i in range(8):
        a(f"s_add_u32 m0, s{t2}, {i * 16384}")
        a(f"s_add_u32 s{t1}, s{t0}, {32 << 16}")
        a(f"buffer_load_dwordx4 v{A16}, s[{R_WS}:{R_WS + 3}], s{t0} offen lds")
        a(f"s_add_u32 m0, m0, 1024")
        a(f"s_add_u32 s{t0}, s{t0}, 8192")
        a(f"buffer_load_dwordx4 v{A16}, s[{R_WS}:{R_WS + 3}], s{t1} offen lds")
    srd(a, R_WD, 60, 1835008)
    srd(a, R_WO, 58, 524288)
    srd(a, R_X, 56, 2097152)
    srd(a, R_OUT, 62, 2097152)
    a(f"v_mov_b32 v{AK}, v{A16}")
    a("v_lshrrev_b32 v2, 5, v0")
    a("v_and_b32 v3, 15, v0")
    a("v_lshlrev_b32 v3, 4, v3")
    a("v_lshl_add_u32 v3, v2, 8, v3")
    a(f"v_add_u32 v{AV}, 1024, v3")
    a("v_lshrrev_b32 v3, 3, v0")
    a("v_and_b32 v4, 7, v0")
    a("v_and_b32 v5, 2, v3")
    a("v_xor_b32 v4, v4, v5")
    a("v_lshlrev_b32 v4, 4, v4")
    a(f"v_lshl_add_u32 v{ASRC}, v3, 10, v4")
    a("v_bfe_u32 v3, v0, 2, 2")
    a("v_lshl_add_u32 v4, v2, 2, v3")
    a("v_lshlrev_b32 v4, 7, v4")
    a("v_and_b32 v5, 1, v0")
    a("v_lshl_add_u32 v4, v5, 6, v4")
    a("v_bfe_u32 v5, v0, 4, 1")
    a("v_lshl_add_u32 v4, v5, 4, v4")
    a("v_bfe_u32 v5, v0, 1, 1")
    a("v_lshl_add_u32 v4, v5, 3, v4")
    a("v_lshrrev_b32 v3, 1, v3")
    a("v_lshl_add_u32 v4, v3, 5, v4")
    a(f"s_lshl_b32 s{tSTG}, s{tW}, 12")
    a(f"s_add_u32 s{tSTG}, s{tSTG}, {STG}")
    a(f"v_add_u32 v{ATR}, s{tSTG}, v4")
    a(f"v_xor_b32 v{ATR + 1}, 32, v{ATR}")
    a(f"s_mul_i32 s{t0}, s{tW}, 14")
    a(f"s_mul_i32 s{tHO}, s{tTP}, 224")
    a(f"s_add_u32 s{tHO}, s{tHO}, s{t0}")
    a(f"s_lshl_b32 s{tHO}, s{tHO}, 10")
    a(f"s_add_u32 s{tHO}, s{tHO}, {WS_H}")
    a(f"s_lshl_b32 s{tWD}, s{t0}, 14")
    a(f"s_lshl_b32 s{t1}, s{tP}, 7")
    a(f"s_add_u32 s{tWD}, s{tWD}, s{t1}")
    a(f"s_mov_b32 s{tVM}, 0x0000ffff")
    a(f"s_mov_b32 s{tVM + 1}, 0x0000ffff")
    a("v_and_b32 v3, 27, v0")
    a("v_cmp_eq_u32 vcc, 16, v3")
    a("v_mov_b32 v4, 0x3f803f80")
    a("v_mov_b32 v5, 0")
    a("v_cndmask_b32 v3, v5, v4, vcc")
    for i in range(16):
        a(f"v_mov_b32 v{V_ + i}, v3")
    for i in range(0, 64, 2):
        a(f"v_mov_b64 v[{G_ + i}:{G_ + i + 1}], 0")
    for i in range(0, 16, 2):
        a(f"v_mov_b64 v[{O_ + i}:{O_ + i + 1}], 0")
    a(f"s_mov_b32 s{tBM}, {(1 << 1) | (1 << 4) | (1 << 6)}")
    a("s_waitcnt vmcnt(12)")
    a("s_barrier")
    a(f"ds_read_b128 {vr(K_, 4)}, v{AK}")
    a(f"ds_read_b128 {vr(P_, 4)}, v{AK} offset:2048")
    a(f"s_mov_b64 exec, s[{tVM}:{tVM + 1}]")
    a(f"ds_read_b128 {vr(V_, 4)}, v{AV}")
    a(f"ds_read_b128 {vr(V_ + 4, 4)}, v{AV} offset:512")
    a("s_mov_b64 exec, -1")
    a("s_waitcnt lgkmcnt(2)")
    a(mfma(S0, K_, Q_, "0"))
    a(mfma(S1, P_, Q_, "0"))
    a("s_nop 11")
    a(f"v_max3_f32 v1, v{S0}, v{S0 + 1}, v{S0 + 2}")
    for i in range(3, 15, 2):
        a(f"v_max3_f32 v1, v1, v{S0 + i}, v{S0 + i + 1}")
    a(f"v_max3_f32 v1, v1, v{S0 + 15}, v{S1}")
    for i in range(1, 15, 2):
        a(f"v_max3_f32 v1, v1, v{S1 + i}, v{S1 + i + 1}")
    a(f"v_max_f32 v1, v1, v{S1 + 15}")
    a("v_mov_b32 v2, v1")
    a("s_nop 1")
    a("v_permlane32_swap_b32 v1, v2")
    a("v_max_f32 v1, v1, v2")
    a(f"v_sub_f32 v1, {hx(f2u(-MAXOFF))}, v1")
    for i in range(16):
        a(f"v_mov_b32 v{NM + i}, v1")
    a("s_nop 1")
    a(mfma(S0, K_, Q_, NM))
    a(f"v_mov_b32 v{K_}, v{P_}")
    a(f"v_mov_b32 v{K_ + 1}, v{P_ + 1}")
    a(f"v_mov_b32 v{K_ + 2}, v{P_ + 2}")
    a(f"v_mov_b32 v{K_ + 3}, v{P_ + 3}")
    a("s_nop 7")
    for i in range(8):
        ex = {}
        if i == 1: ex[2] = gemm_loads_wd(0)
        if i == 3: ex[3] = gemm_loads_h(0)
        if i == 5: ex[2] = gemm_loads_wd(1)
        if i == 7: ex[3] = gemm_loads_h(1)
        for l in att_tile(i, None, ex, first=(i == 0)): a(l)
    a(f"s_mov_b32 s{tIT}, 1")
    a("P2_loop:")
    a(f"v_add_u32 v{AK}, 0x4000, v{AK}")
    a(f"v_add_u32 v{AV}, 0x4000, v{AV}")
    a("s_waitcnt vmcnt(4)")
    a(f"s_bitcmp1_b32 s{tBM}, s{tIT}")
    a("s_cbranch_scc0 P2_nobar")
    a("s_waitcnt lgkmcnt(0)")
    a("s_barrier")
    a(f"s_cmp_lg_u32 s{tIT}, 4")
    a("s_cbranch_scc1 P2_nobar")
    a(f"s_lshl_b32 s{t0}, s{tW}, 16")
    a(f"s_lshl_b32 s{t1}, s{tP}, 7")
    a(f"s_add_u32 s{t0}, s{t0}, s{t1}")
    a(f"s_lshl_b32 m0, s{tW}, 13")
    for i in range(8):
        if i:
            a("s_add_u32 m0, m0, 1024")
            a(f"s_add_u32 s{t0}, s{t0}, 8192")
        else:
            a("s_nop 0")
        a(f"buffer_load_dwordx4 v{ASRC}, s[{R_WO}:{R_WO + 3}], s{t0} offen lds")
    a("P2_nobar:")
    for i in range(8):
        par = i // 4
        q = i % 4
        ex = {}
        gem = None
        if q == 0:
            if par == 1:
                ex["pre"] = ["s_waitcnt vmcnt(4)"]
            ex[0] = tr_reads(WF, par * 2048)
        if q == 1:
            ex[2] = gemm_loads_wd(par)
            gem = mfma(G_, WF, H_ + 8 * par)
            ex[3] = [mfma(G_ + 16, WF + 4, H_ + 8 * par)]
        if q == 2:
            gem = mfma(G_ + 32, WF, H_ + 8 * par + 4)
        if q == 3:
            gem = mfma(G_ + 48, WF + 4, H_ + 8 * par + 4)
            ex[3] = gemm_loads_h(par)
        for l in att_tile(i, gem, ex): a(l)
    a(f"s_add_u32 s{tIT}, s{tIT}, 1")
    a(f"s_cmp_lt_u32 s{tIT}, 8")
    a("s_cbranch_scc1 P2_loop")
    a("s_nop 0")
    a(mfma(O_, V_ + 8 + 4, P_ + 4))
    a(f"s_lshr_b32 s{t0}, s{tW}, 2")
    a(f"s_lshl_b32 s{t1}, s{tTP}, 1")
    a(f"s_add_u32 s{t3}, s{t0}, s{t1}")
    a(f"s_lshl_b32 s{t0}, s{t3}, 15")
    a(f"s_lshl_b32 s{t1}, s{tP}, 7")
    a(f"s_add_u32 s{t0}, s{t0}, s{t1}")
    a(f"s_and_b32 s{t1}, s{tW}, 3")
    a(f"s_lshl_b32 s{t1}, s{t1}, 4")
    a(f"s_add_u32 s{t0}, s{t0}, s{t1}")
    a("v_and_b32 v1, 31, v0")
    a("v_lshrrev_b32 v2, 5, v0")
    a("v_lshlrev_b32 v1, 10, v1")
    a("v_lshl_add_u32 v1, v2, 6, v1")
    a(f"v_add_u32 v{AOUT}, s{t0}, v1")
    a(f"buffer_load_dwordx4 {vr(XV, 4)}, v{AOUT}, s[{R_X}:{R_X + 3}], 0 offen")
    a("s_waitcnt lgkmcnt(0)")
    a("s_nop 3")
    a("P2_check:")
    a(f"v_add_f32 v1, |v{O_}|, |v{O_ + 1}|")
    for i in range(2, 8):
        a(f"v_add_f32 v1, v1, |v{O_ + i}|")
    a(f"v_mov_b32 v2, {hx(f2u(2.0 ** 120))}")
    a(f"v_mov_b32 v3, {hx(f2u(2.0 ** -90))}")
    a(f"v_cmp_lt_f32 s[48:49], v{O_ + 8}, v2")
    a("v_cmp_lt_f32 s[50:51], v1, v2")
    a(f"v_cmp_le_f32 s[52:53], 0.5, v{O_ + 8}")
    a("v_cmp_le_f32 vcc, v3, v1")
    a("s_or_b64 s[52:53], s[52:53], vcc")
    a("s_and_b64 s[48:49], s[48:49], s[50:51]")
    a("s_and_b64 s[48:49], s[48:49], s[52:53]")
    a("s_cmp_eq_u64 s[48:49], -1")
    a("s_cbranch_scc0 P2_fallback")
    a("P2_norm:")
    a(f"v_rcp_f32 v2, v{O_ + 8}")
    a(f"s_lshl_b32 s{t0}, s{tQB}, 3")
    a(f"s_add_u32 s{t0}, s{t0}, s{tW}")
    a(f"s_lshl_b32 s{t0}, s{t0}, 5")
    a(f"s_add_u32 s{t0}, s{t0}, s{tHEAD}")
    a(f"s_lshl_b32 s{t0}, s{t0}, 10")
    a(f"s_add_u32 s{t0}, s{t0}, {WS_O}")
    for i in range(4):
        a(f"v_pk_mul_f32 {vr(O_ + 2 * i, 2)}, {vr(O_ + 2 * i, 2)}, v[2:3] op_sel_hi:[1,0]")
    for i in range(4):
        a(f"v_cvt_pk_bf16_f32 v{4 + i}, v{O_ + 2 * i}, v{O_ + 2 * i + 1}")
    a(f"buffer_store_dwordx4 v[4:7], v{A16}, s[{R_WS}:{R_WS + 3}], s{t0} offen sc1")
    WO_ = 8
    a(f"s_and_b32 s{t1}, s{tW}, 3")
    a(f"s_lshl_b32 s{t1}, s{t1}, 14")
    a(f"s_sub_u32 s{t1}, s{t1}, s{tSTG}")
    a(f"v_add_u32 v{ATR}, s{t1}, v{ATR}")
    a(f"v_add_u32 v{ATR + 1}, s{t1}, v{ATR + 1}")
    for j in range(8):
        for l in tr_reads(WO_ + 8 * j, j * 2048): a(l)
        if j % 2 == 1 and j != 7:
            a("s_waitcnt lgkmcnt(4)")
    a("s_waitcnt vmcnt(0) lgkmcnt(0)")
    a("s_barrier")
    a(f"s_cmp_lg_u32 s{tW}, 0")
    a("s_cbranch_scc1 P2_nosig")
    a(f"s_lshl_b32 s{t0}, s{tQB}, 8")
    a(f"s_add_u32 s{t0}, s{t0}, {WS_CNT}")
    a("v_mov_b32 v1, 1")
    a("s_mov_b64 exec, 1")
    a(f"buffer_atomic_add v1, off, s[{R_WS}:{R_WS + 3}], s{t0} sc1")
    a("s_mov_b64 exec, -1")
    a("P2_nosig:")
    a(f"s_lshl_b32 s{t0}, s{tW}, 11")
    a(f"v_add_u32 v1, s{t0}, v{A16}")
    a("v_add_u32 v2, 0x10000, v1")
    for o in range(8):
        for i in range(2):
            base = "v1" if o < 4 else "v2"
            a(f"ds_write_b128 {base}, {vr(G_ + 8 * o + 4 * i, 4)} offset:{(o % 4) * 16384 + i * 1024}")
    a(f"s_lshl_b32 s{t0}, s{tW}, 14")
    a(f"v_add_u32 v3, s{t0}, v{A16}")
    a("s_waitcnt lgkmcnt(0)")
    a("s_barrier")
    for s in range(8):
        for i in range(2):
            a(f"ds_read_b128 {vr(G_ + 8 * s + 4 * i, 4)}, v3 offset:{(s * 2 + i) * 1024}")
        if s == 6:
            a("s_waitcnt lgkmcnt(10)")
    for s in range(1, 8):
        a(f"s_waitcnt lgkmcnt({2 * (7 - s)})")
        for i in range(4):
            a(f"v_pk_add_f32 {vr(G_ + 2 * i, 2)}, {vr(G_ + 2 * i, 2)}, {vr(G_ + 8 * s + 2 * i, 2)}")
    T_ = G_ + 8
    a(f"v_mov_b32 v4, {hx(f2u(-LOG2E))}")
    for i in range(4):
        a(f"v_pk_mul_f32 {vr(T_ + 2 * i, 2)}, {vr(G_ + 2 * i, 2)}, v[4:5] op_sel_hi:[1,0]")
    for i in range(8):
        a(f"v_exp_f32 v{T_ + i}, v{T_ + i}")
    a("s_nop 0")
    for i in range(4):
        a(f"v_pk_add_f32 {vr(T_ + 2 * i, 2)}, {vr(T_ + 2 * i, 2)}, 1.0 op_sel_hi:[1,0]")
    for i in range(8):
        a(f"v_rcp_f32 v{T_ + i}, v{T_ + i}")
    a("s_nop 0")
    for i in range(4):
        a(f"v_pk_mul_f32 {vr(G_ + 2 * i, 2)}, {vr(G_ + 2 * i, 2)}, {vr(T_ + 2 * i, 2)}")
    a(f"s_cmp_lg_u32 s{tW}, 0")
    a("s_cbranch_scc1 P2_nopoll")
    a(f"s_lshr_b32 s{t0}, s{tTP}, 2")
    a(f"s_lshl_b32 s{t0}, s{t0}, 8")
    a(f"s_add_u32 s{t0}, s{t0}, {WS_CNT}")
    a(f"s_mov_b32 s{t1}, 0x40000")
    a("P2_poll:")
    a(f"buffer_load_dword v4, off, s[{R_WS}:{R_WS + 3}], s{t0} sc1")
    a("s_waitcnt vmcnt(0)")
    a(f"v_readfirstlane_b32 s{t2}, v4")
    a(f"s_cmp_ge_u32 s{t2}, 32")
    a("s_cbranch_scc1 P2_nopoll")
    a("s_sleep 1")
    a(f"s_sub_u32 s{t1}, s{t1}, 1")
    a(f"s_cmp_lg_u32 s{t1}, 0")
    a("s_cbranch_scc1 P2_poll")
    a("P2_nopoll:")
    a("s_barrier")
    OF = 72
    SA = 144
    a(f"s_lshl_b32 s{t0}, s{t3}, 5")
    a(f"s_and_b32 s{t1}, s{tW}, 3")
    a(f"s_lshl_b32 s{t1}, s{t1}, 3")
    a(f"s_add_u32 s{t0}, s{t0}, s{t1}")
    a(f"s_lshl_b32 s{t0}, s{t0}, 10")
    a(f"s_add_u32 s{t0}, s{t0}, {WS_O}")
    a(f"s_add_u32 s{t1}, s{t0}, 4096")
    for j in range(8):
        so = t0 if j < 4 else t1
        a(f"buffer_load_dwordx4 {vr(OF + 4 * j, 4)}, v{A16}, s[{R_WS}:{R_WS + 3}], s{so} offen offset:{(j % 4) * 1024} sc1")
    for j in range(8):
        a(f"s_waitcnt vmcnt({7 - j})")
        for ap in range(2):
            a(mfma(SA + 16 * ap, WO_ + 8 * j + 4 * ap, OF + 4 * j, "0" if j == 0 else None))
    a(f"s_lshr_b32 s{t0}, s{tW}, 2")
    a(f"s_lshl_b32 s{t0}, s{t0}, 15")
    a(f"s_and_b32 s{t1}, s{tW}, 3")
    a(f"s_lshl_b32 s{t1}, s{t1}, 11")
    a(f"s_add_u32 s{t0}, s{t0}, s{t1}")
    a(f"v_add_u32 v1, s{t0}, v{A16}")
    a(f"s_lshl_b32 s{t0}, s{tW}, 13")
    a(f"v_add_u32 v3, s{t0}, v{A16}")
    a("s_nop 7")
    for o in range(4):
        for i in range(2):
            a(f"ds_write_b128 v1, {vr(SA + 8 * o + 4 * i, 4)} offset:{o * 8192 + i * 1024}")
    a("s_waitcnt lgkmcnt(0)")
    a("s_barrier")
    for s in range(4):
        for i in range(2):
            a(f"ds_read_b128 {vr(SA + 8 * s + 4 * i, 4)}, v3 offset:{(s * 2 + i) * 1024}")
    XU = 8
    for i in range(4):
        a(f"v_lshlrev_b32 v{XU + 2 * i}, 16, v{XV + i}")
        a(f"v_and_b32 v{XU + 2 * i + 1}, 0xffff0000, v{XV + i}")
    for s in range(1, 4):
        a(f"s_waitcnt lgkmcnt({2 * (3 - s)})")
        for i in range(4):
            a(f"v_pk_add_f32 {vr(SA + 2 * i, 2)}, {vr(SA + 2 * i, 2)}, {vr(SA + 8 * s + 2 * i, 2)}")
    for i in range(4):
        a(f"v_pk_fma_f32 {vr(XU + 2 * i, 2)}, {vr(SA + 2 * i, 2)}, {vr(G_ + 2 * i, 2)}, {vr(XU + 2 * i, 2)}")
    for i in range(4):
        a(f"v_cvt_pk_bf16_f32 v{4 + i}, v{XU + 2 * i}, v{XU + 2 * i + 1}")
    a(f"buffer_store_dwordx4 v[4:7], v{AOUT}, s[{R_OUT}:{R_OUT + 3}], 0 offen")
    a("P2_exit:")
    a("s_endpgm")
    a("P2_fallback:")
    a(f"s_lshl_b32 s{t0}, s{tHEAD}, 16")
    a(f"s_add_u32 s{t0}, s{t0}, {32 << 16}")
    a(f"s_mov_b32 s{t1}, 0")
    a("v_mov_b32 v1, 0xff800000")
    a("P2_fb1:")
    a(f"s_add_u32 s{t2}, s{t0}, s{t1}")
    a(f"buffer_load_dwordx4 {vr(K_, 4)}, v{A16}, s[{R_WS}:{R_WS + 3}], s{t2} offen")
    a("s_waitcnt vmcnt(0)")
    a(mfma(S0, K_, Q_, "0"))
    a("s_nop 15")
    for i in range(0, 16, 2):
        a(f"v_max3_f32 v1, v1, v{S0 + i}, v{S0 + i + 1}")
    a(f"s_add_u32 s{t1}, s{t1}, 1024")
    a(f"s_cmp_lt_u32 s{t1}, 65536")
    a("s_cbranch_scc1 P2_fb1")
    a("v_mov_b32 v2, v1")
    a("s_nop 1")
    a("v_permlane32_swap_b32 v1, v2")
    a("v_max_f32 v1, v1, v2")
    a("v_sub_f32 v1, 0, v1")
    for i in range(16):
        a(f"v_mov_b32 v{NM + i}, v1")
    for i in range(16):
        a(f"v_mov_b32 v{O_ + i}, 0")
    a("v_lshrrev_b32 v2, 5, v0")
    a("v_and_b32 v3, 15, v0")
    a("v_lshlrev_b32 v3, 4, v3")
    a("v_lshl_add_u32 v3, v2, 8, v3")
    a(f"s_mov_b32 s{t1}, 0")
    a("P2_fb2:")
    a(f"s_add_u32 s{t2}, s{t0}, s{t1}")
    a(f"buffer_load_dwordx4 {vr(K_, 4)}, v{A16}, s[{R_WS}:{R_WS + 3}], s{t2} offen")
    a(f"s_add_u32 s{t2}, s{t2}, {32 << 16}")
    a(f"s_mov_b64 exec, s[{tVM}:{tVM + 1}]")
    a(f"buffer_load_dwordx4 {vr(V_, 4)}, v3, s[{R_WS}:{R_WS + 3}], s{t2} offen")
    a(f"buffer_load_dwordx4 {vr(V_ + 4, 4)}, v3, s[{R_WS}:{R_WS + 3}], s{t2} offen offset:512")
    a("s_mov_b64 exec, -1")
    a("s_waitcnt vmcnt(0)")
    a(mfma(S0, K_, Q_, NM))
    a("s_nop 15")
    for i in range(16):
        a(f"v_exp_f32 v{S0 + i}, v{S0 + i}")
    a("s_nop 0")
    for i in range(8):
        a(f"v_cvt_pk_bf16_f32 v{P_ + i}, v{S0 + 2 * i}, v{S0 + 2 * i + 1}")
    a("s_nop 1")
    a(mfma(O_, V_, P_))
    a(mfma(O_, V_ + 4, P_ + 4))
    a(f"s_add_u32 s{t1}, s{t1}, 1024")
    a(f"s_cmp_lt_u32 s{t1}, 65536")
    a("s_cbranch_scc1 P2_fb2")
    a("s_nop 15")
    a("s_branch P2_norm")


def kd(a, kname, vg, sg):
    a(f".amdhsa_kernel {kname}")
    a(f".amdhsa_next_free_vgpr {vg}")
    a(f".amdhsa_next_free_sgpr {sg}")
    a(f".amdhsa_accum_offset {(vg + 3) // 4 * 4}")
    a(".amdhsa_group_segment_fixed_size 0")
    a(".amdhsa_kernarg_size 80")
    a(".amdhsa_user_sgpr_count 2")
    a(".amdhsa_user_sgpr_kernarg_segment_ptr 1")
    a(".amdhsa_system_sgpr_workgroup_id_x 1")
    a(".end_amdhsa_kernel")


def main(out):
    a = Asm()
    hdr = ["; LN + MHA + GEGLU block, generated by gen.py (hand-scheduled gfx950 assembly)",
           "; @launch kernel=p1_kernel grid=(256,1,1) block=(512,1,1) lds=155648",
           "; @launch kernel=p2_kernel grid=(256,1,1) block=(512,1,1) lds=163840"]
    a('.amdgcn_target "amdgcn-amd-amdhsa--gfx950"')
    a(".text")
    gen_p1(a, "p1_kernel")
    gen_p2(a, "p2_kernel")
    a('.section .rodata,"a"')
    a(".p2align 6")
    kd(a, "p1_kernel", 208, 72)
    a(".p2align 6")
    kd(a, "p2_kernel", 212, 72)
    open(out, "w").write("\n".join(hdr) + "\n" + a.text())


if __name__ == "__main__":
    main(sys.argv[1] if len(sys.argv) > 1 else f"cdna_kernels/{NAME}.s")
```

```python
import sys, struct, math

NAME = "recurrent_scan__mha_block__glu_gated_geglu__prompt"

WS_QKV = 0
WS_H = 6 << 20
WS_O = 14 << 20
WS_CNT = 16 << 20
WS_SIZE = (17 << 20)

LOG2E = 1.4426950408889634
QSCALE = 0.25 * LOG2E
GC1 = -2.0 * LOG2E * math.sqrt(2.0 / math.pi)
GC2 = GC1 * 0.044715
MAXOFF = 80.0


def f2u(x):
    return struct.unpack("<I", struct.pack("<f", x))[0]


def hx(x):
    return "0x%08x" % (x & 0xffffffff)


class Asm:
    def __init__(self):
        self.l = []

    def __call__(self, s):
        for line in s.split("\n"):
            line = line.strip()
            if not line:
                continue
            if line.endswith(":") or line.startswith("."):
                self.l.append(line)
            else:
                self.l.append("    " + line)

    def text(self):
        return "\n".join(self.l) + "\n"


def vr(b, n):
    return f"v[{b}:{b + n - 1}]"


def mfma(d, a, b, c=None):
    cs = vr(d, 16) if c is None else (c if isinstance(c, str) else vr(c, 16))
    return f"v_mfma_f32_32x32x16_bf16 {vr(d, 16)}, {vr(a, 4)}, {vr(b, 4)}, {cs}"


def interleave(heads, fill):
    res = []
    n, k = len(fill), len(heads)
    for j in range(k):
        res += heads[j]
        res += fill[j * n // k:(j + 1) * n // k]
    return res


STAMPS = False
ABL = set()
WS_STAMP = (16 << 20) + 65536


def stamp(a, n):
    if not STAMPS:
        return
    a("s_memtime s[68:69]" if STAMPS == 2 else "s_memrealtime s[68:69]")
    a("s_waitcnt lgkmcnt(0)")
    a(f"s_mov_b32 s{72 + n}, s68")


def stamp_flush(a, srdreg, wave_sgpr, kidx):
    if not STAMPS:
        return
    stamp(a, 15)
    a("v_mov_b32 v1, 0")
    for n in range(16):
        a(f"v_writelane_b32 v1, s{72 + n}, {n}")
    a("s_lshl_b32 s68, s2, 3")
    a(f"s_add_u32 s68, s68, s{wave_sgpr}")
    a("s_lshl_b32 s68, s68, 6")
    a(f"s_add_u32 s68, s68, {WS_STAMP + kidx * 131072}")
    a("v_lshlrev_b32 v2, 2, v0")
    a("s_mov_b64 exec, 0xffff")
    a(f"buffer_store_dword v1, v2, s[{srdreg}:{srdreg + 3}], s68 offen")


def srd(a, s, ptr, size):
    a(f"s_mov_b32 s{s}, s{ptr}")
    a(f"s_mov_b32 s{s + 1}, s{ptr + 1}")
    a(f"s_mov_b32 s{s + 2}, {size}")
    a(f"s_mov_b32 s{s + 3}, 0x00020000")


X0, XB = 0, 16384
W0, WB = 32768, 40960
P1_STAT = W0 + 2 * WB
P1_XS = P1_STAT + 10240
P1_RS = P1_XS + 4096

XREL, WREL, XC, WC = 8, 12, 17, 21
VXS, VW0, VW1, VW3 = 26, 27, 28, 29
CS, SX, SXX, TMP, MASK, L16 = 30, 35, 36, 38, 46, 47
FA, FB = 64, 88
ACC = 128
S_X, S_W0, S_W1, S_W3, S_WS = 8, 12, 16, 20, 24
sW, sTT, sHF, sRB, sCB, sROT, sISC, sISV, sSTR = 28, 29, 30, 31, 32, 33, 34, 35, 36
sCOL = 37
sXROW, sLW, sST = 42, 43, 44
sXB, sWBR, sWBI = 45, 46, 47
sT0, sT1, sT2, sT3 = 48, 49, 50, 51
sU0 = 52


def p1_issue_x(stage_expr_sgpr, add, buf_sgpr):
    r = []
    r.append(f"s_add_u32 s{sT0}, s{stage_expr_sgpr}, {add}")
    r.append(f"s_and_b32 s{sT0}, s{sT0}, 7")
    r.append(f"s_lshl_b32 s{sT0}, s{sT0}, 7")
    r.append(f"s_add_u32 m0, s{buf_sgpr}, s{sLW}")
    r.append(f"s_add_u32 s{sT0}, s{sT0}, s{sXROW}")
    r.append(f"buffer_load_dwordx4 v{VXS}, s[{S_X}:{S_X + 3}], s{sT0} offen lds")
    r.append(f"s_add_u32 m0, m0, 8192")
    r.append(f"s_add_u32 s{sT0}, s{sT0}, 0x10000")
    r.append(f"buffer_load_dwordx4 v{VXS}, s[{S_X}:{S_X + 3}], s{sT0} offen lds")
    return r


def p1_issue_w(stage_expr_sgpr, add, buf_sgpr):
    r = []
    r.append(f"s_add_u32 s{sT0}, s{stage_expr_sgpr}, {add}")
    r.append(f"s_and_b32 s{sT0}, s{sT0}, 7")
    r.append(f"s_lshl_b32 s{sT0}, s{sT0}, 6")
    r.append(f"s_mul_i32 s{sT1}, s{sT0}, s{sSTR}")
    r.append(f"s_mul_i32 s{sT0}, s{sT0}, 3072")
    r.append(f"s_add_u32 m0, s{buf_sgpr}, s{sLW}")
    r.append(f"s_add_u32 s{sT0}, s{sT0}, s{sCOL}")
    r.append(f"buffer_load_dwordx4 v{VW0}, s[{S_W0}:{S_W0 + 3}], s{sT0} offen lds")
    for j in range(1, 5):
        sr = S_W1 if j < 3 else S_W3
        vv = VW1 if j < 3 else VW3
        r.append(f"s_add_u32 m0, m0, 8192")
        r.append(f"s_add_u32 s{sT0}, s{sT1}, s{sCOL + j}")
        r.append(f"buffer_load_dwordx4 v{vv}, s[{sr}:{sr + 3}], s{sT0} offen lds")
    return r


def p1_reads(ks, F):
    r = [f"ds_read_b128 {vr(F, 4)}, v{XC + ks}"]
    for s in range(5):
        for t2 in range(2):
            r.append(f"ds_read_b64_tr_b16 {vr(F + 4 + 4 * s + 2 * t2, 2)}, v{WC + s} offset:{ks * 2048 + t2 * 512}")
    return r


def p1_valu(F, v):
    r = []
    items = [("c", F + 4 + 4 * s + v, CS + s) for s in range(5)]
    xs = [("x", F + (v & 2) + i, None) for i in range(2)]
    order = [items[0], xs[0], items[1], items[2], xs[1], items[3], items[4]]
    pend = []
    for n, (kind, reg, acc) in enumerate(order):
        t0, t1 = TMP + (n % 3) * 2, TMP + (n % 3) * 2 + 1
        r.append(f"v_and_b32 v{t0}, v{MASK}, v{reg}")
        r.append(f"v_lshlrev_b32 v{t1}, 16, v{reg}")
        r += pend
        if kind == "c":
            pend = [f"v_add_f32 v{acc}, v{t0}, v{acc}", f"v_add_f32 v{acc}, v{t1}, v{acc}"]
        else:
            pend = [f"v_add_f32 v{SX}, v{t0}, v{SX}", f"v_fmac_f32 v{SXX}, v{t0}, v{t0}",
                    f"v_add_f32 v{SX}, v{t1}, v{SX}", f"v_fmac_f32 v{SXX}, v{t1}, v{t1}"]
    r += pend
    return r


def p1_mfmas(F, isv):
    r = []
    for s in range(5):
        w = F + 4 + 4 * s
        if s == 0 and isv:
            r.append(mfma(ACC, F, w))
        else:
            r.append(mfma(ACC + 16 * s, w, F))
    return r


def p1_kstep(F, v, isv, reads, extra_blocks=None):
    m = p1_mfmas(F, isv)
    val = p1_valu(F, v)
    res = []
    rsplit = [4, 4, 3, 0, 0]
    vsplit = [5, 6, 6, 8, 7]
    ri = vi = 0
    for j in range(5):
        res.append(m[j])
        if reads:
            res += reads[ri:ri + rsplit[j]]
            ri += rsplit[j]
        if extra_blocks and j in extra_blocks:
            res += extra_blocks[j]
        res += val[vi:vi + vsplit[j]]
        vi += vsplit[j]
    assert vi == len(val), (vi, len(val))
    if "p1valu" in ABL:
        res = [l for l in res if l not in val]
    if "p1read" in ABL and reads:
        res = [l for l in res if l not in reads]
    if "p1tr" in ABL and reads:
        res = [l for l in res if not l.startswith("ds_read_b64_tr")]
    if "p1dma" in ABL:
        res = [l for l in res if not l.startswith("buffer_load")]
    if "p1mfma" in ABL:
        res = [l for l in res if not l.startswith("v_mfma")]
    return res


def gen_p1(a, kname):
    a(f".globl {kname}\n.p2align 8\n.type {kname},@function\n{kname}:")
    a("s_cmp_ge_u32 s2, 256")
    a("s_cbranch_scc1 P1_exit")
    stamp(a, 0)
    a("s_load_dwordx4 s[56:59], s[0:1], 0")
    a("s_load_dwordx4 s[60:63], s[0:1], 32")
    a("s_load_dwordx2 s[64:65], s[0:1], 72")
    a("v_lshrrev_b32 v1, 6, v0")
    a("v_and_b32 v0, 63, v0")
    a(f"v_readfirstlane_b32 s{sW}, v1")
    a(f"s_and_b32 s{sT0}, s2, 7")
    a(f"s_lshr_b32 s{sT1}, s2, 3")
    a(f"s_and_b32 s{sRB}, s{sT0}, 1")
    a(f"s_lshl_b32 s{sRB}, s{sRB}, 3")
    a(f"s_and_b32 s{sT2}, s{sT1}, 7")
    a(f"s_add_u32 s{sRB}, s{sRB}, s{sT2}")
    a(f"s_lshr_b32 s{sCB}, s{sT0}, 1")
    a(f"s_lshl_b32 s{sCB}, s{sCB}, 2")
    a(f"s_lshr_b32 s{sT3}, s{sT1}, 3")
    a(f"s_add_u32 s{sCB}, s{sCB}, s{sT3}")
    a(f"s_lshl_b32 s{sT3}, s{sT3}, 1")
    a(f"s_add_u32 s{sROT}, s{sT2}, s{sT3}")
    a(f"s_and_b32 s{sTT}, s{sW}, 3")
    a(f"s_lshr_b32 s{sHF}, s{sW}, 2")
    a(f"s_lshl_b32 s{sLW}, s{sW}, 10")
    a(f"s_cmp_ge_u32 s{sCB}, 6")
    a(f"s_cselect_b32 s{sISV}, 1, 0")
    a(f"s_sub_u32 s{sT0}, s{sCB}, 14")
    a(f"s_mul_i32 s{sT0}, s{sT0}, 5")
    a(f"s_add_u32 s{sT1}, s{sCB}, 10")
    a(f"s_lshl_b32 s{sT2}, s{sCB}, 1")
    a(f"s_cmp_ge_u32 s{sCB}, 14")
    a(f"s_cselect_b32 s{sISC}, 1, 0")
    a(f"s_cselect_b32 s{sISV}, 0, s{sISV}")
    a(f"s_cselect_b32 s{sU0}, s{sT0}, s{sT1}")
    a(f"s_movk_i32 s{sSTR}, 3584")
    a(f"s_cselect_b32 s{sSTR}, 3072, s{sSTR}")
    a(f"s_add_u32 s{sT0}, s{sU0}, 1")
    a(f"s_add_u32 s{sT1}, s{sU0}, 3")
    a(f"s_cmp_eq_u32 s{sISC}, 1")
    a(f"s_cselect_b32 s{sT0}, s{sT0}, s{sT2}")
    a(f"s_cselect_b32 s{sT1}, s{sT1}, s{sT2}")
    a(f"s_lshl_b32 s{sCOL}, s{sU0}, 7")
    a(f"s_lshl_b32 s{sCOL + 1}, s{sT0}, 7")
    a(f"s_lshl_b32 s{sCOL + 3}, s{sT1}, 7")
    a(f"s_lshl_b32 s{sT2}, s{sW}, 3")
    a(f"s_mul_i32 s{sT3}, s{sT2}, 3072")
    a(f"s_add_u32 s{sCOL}, s{sCOL}, s{sT3}")
    a(f"s_mul_i32 s{sT3}, s{sT2}, s{sSTR}")
    a(f"s_add_u32 s{sCOL + 1}, s{sCOL + 1}, s{sT3}")
    a(f"s_add_u32 s{sCOL + 3}, s{sCOL + 3}, s{sT3}")
    a(f"s_add_u32 s{sCOL + 2}, s{sCOL + 1}, 128")
    a(f"s_add_u32 s{sCOL + 4}, s{sCOL + 3}, 128")
    a(f"s_lshl_b32 s{sXROW}, s{sRB}, 7")
    a(f"s_add_u32 s{sXROW}, s{sXROW}, s{sT2}")
    a(f"s_lshl_b32 s{sXROW}, s{sXROW}, 10")
    a("v_lshrrev_b32 v1, 3, v0")
    a("v_and_b32 v2, 7, v0")
    a(f"v_add_u32 v3, s{sT2}, v1")
    a("v_bfe_u32 v3, v3, 1, 3")
    a("v_xor_b32 v3, v3, v2")
    a("v_lshlrev_b32 v3, 4, v3")
    a(f"v_lshl_add_u32 v{VXS}, v1, 10, v3")
    a("v_and_b32 v3, 2, v1")
    a("v_lshlrev_b32 v3, 1, v3")
    a("v_xor_b32 v3, v3, v2")
    a("v_lshlrev_b32 v3, 4, v3")
    a("v_mul_u32_u24 v4, 3072, v1")
    a(f"v_add_u32 v{VW0}, v4, v3")
    a(f"v_mul_u32_u24 v4, s{sSTR}, v1")
    a(f"v_add_u32 v{VW1}, v4, v3")
    a("v_xor_b32 v3, 32, v3")
    a(f"v_add_u32 v{VW3}, v4, v3")
    a("s_waitcnt lgkmcnt(0)")
    srd(a, S_X, 56, 2097152)
    srd(a, S_W0, 58, 1572864)
    a(f"s_cmp_eq_u32 s{sISC}, 1")
    a(f"s_cselect_b32 s{S_W1}, s58, s60")
    a(f"s_cselect_b32 s{S_W1 + 1}, s59, s61")
    a(f"s_mov_b32 s{S_W1 + 2}, 1835008")
    a(f"s_cselect_b32 s{S_W1 + 2}, 1572864, s{S_W1 + 2}")
    a(f"s_mov_b32 s{S_W1 + 3}, 0x00020000")
    a(f"s_cselect_b32 s{S_W3}, s58, s62")
    a(f"s_cselect_b32 s{S_W3 + 1}, s59, s63")
    a(f"s_mov_b32 s{S_W3 + 2}, s{S_W1 + 2}")
    a(f"s_mov_b32 s{S_W3 + 3}, 0x00020000")
    srd(a, S_WS, 64, WS_SIZE)
    a(f"s_mov_b32 s{sXB}, {X0}")
    a(f"s_mov_b32 s{sWBI}, {W0}")
    for l in p1_issue_x(sROT, 0, sXB): a(l)
    for l in p1_issue_w(sROT, 0, sWBI): a(l)
    a(f"s_mov_b32 s{sXB}, {X0 + XB}")
    a(f"s_mov_b32 s{sWBI}, {W0 + WB}")
    for l in p1_issue_x(sROT, 1, sXB): a(l)
    for l in p1_issue_w(sROT, 1, sWBI): a(l)
    a(f"s_mov_b32 s{sWBI}, {W0 + 2 * WB}")
    for l in p1_issue_w(sROT, 2, sWBI): a(l)
    a(f"v_lshlrev_b32 v{L16}, 4, v0")
    a(f"s_or_b32 s{sT0}, s2, s{sW}")
    a(f"s_cmp_lg_u32 s{sT0}, 0")
    a("s_cbranch_scc1 P1_nozero")
    a("v_mov_b32 v1, 0")
    a("v_lshlrev_b32 v2, 8, v0")
    a(f"s_mov_b32 s{sT0}, {WS_CNT}")
    a(f"buffer_store_dword v1, v2, s[{S_WS}:{S_WS + 3}], s{sT0} offen")
    a("s_waitcnt vmcnt(0)")
    a("P1_nozero:")
    a("v_and_b32 v1, 31, v0")
    a("v_lshrrev_b32 v2, 5, v0")
    a("v_bfe_u32 v3, v0, 1, 3")
    a("v_xor_b32 v3, v3, v2")
    a("v_lshlrev_b32 v3, 4, v3")
    a("v_lshl_add_u32 v3, v1, 7, v3")
    a(f"s_lshl_b32 s{sT0}, s{sTT}, 12")
    a(f"v_add_u32 v{XREL}, s{sT0}, v3")
    for i in range(1, 4):
        a(f"v_xor_b32 v{XREL + i}, {32 * i}, v{XREL}")
    a("v_bfe_u32 v3, v0, 2, 2")
    a("v_lshl_add_u32 v4, v2, 3, v3")
    a("v_lshlrev_b32 v4, 7, v4")
    a("v_and_b32 v5, 3, v0")
    a("v_lshl_add_u32 v4, v5, 3, v4")
    a("v_and_b32 v3, 2, v3")
    a("v_bfe_u32 v5, v0, 4, 1")
    a("v_xor_b32 v3, v3, v5")
    a(f"s_lshl_b32 s{sT0}, s{sHF}, 1")
    a(f"v_xor_b32 v6, s{sT0}, v3")
    a(f"v_lshl_add_u32 v{WREL}, v6, 5, v4")
    a("v_lshl_add_u32 v4, v5, 14, v4")
    a(f"s_add_u32 s{sT0}, s{sHF}, 1")
    a(f"s_lshl_b32 s{sT0}, s{sT0}, 13")
    a(f"v_add_u32 v4, s{sT0}, v4")
    for c in range(4):
        a(f"v_xor_b32 v6, {c}, v3")
        a(f"v_lshl_add_u32 v{WREL + 1 + c}, v6, 5, v4")
    for i in range(4):
        a(f"v_mov_b32 v{XC + i}, v{XREL + i}")
    for i in range(5):
        a(f"v_add_u32 v{WC + i}, {W0}, v{WREL + i}")
    a(f"v_mov_b32 v{MASK}, 0xffff0000")
    for i in range(CS, SXX + 1):
        a(f"v_mov_b32 v{i}, 0")
    for i in range(0, 80, 2):
        a(f"v_mov_b64 v[{ACC + i}:{ACC + i + 1}], 0")
    a(f"s_mov_b32 s{sST}, 0")
    a(f"s_mov_b32 s{sXB}, {X0}")
    a(f"s_mov_b32 s{sWBR}, {W0}")
    a(f"s_lshl_b32 s{sT0}, s{sHF}, 1")
    a(f"s_add_u32 s{sT0}, s{sT0}, s{sTT}")
    a(f"s_and_b32 s{sT0}, s{sT0}, 3")
    a(f"s_lshl_b32 s{sT1}, s{sISV}, 2")
    a(f"s_add_u32 s{sT3}, s{sT0}, s{sT1}")
    stamp(a, 1)
    a("s_waitcnt vmcnt(12)")
    a("s_barrier")
    stamp(a, 2)
    for l in p1_reads(0, FA): a(l)
    for var in range(1, 8):
        a(f"s_cmp_eq_u32 s{sT3}, {var}")
        a(f"s_cbranch_scc1 P1_loop{var}")
    for var in range(8):
        v, isv = var & 3, var >> 2
        a(f"P1_loop{var}:")
        a("s_waitcnt lgkmcnt(0)")
        for l in p1_kstep(FA, v, isv, p1_reads(1, FB)): a(l)
        a("s_waitcnt lgkmcnt(0)")
        for l in p1_kstep(FB, v, isv, p1_reads(2, FA)): a(l)
        a("s_waitcnt lgkmcnt(0)")
        for l in p1_kstep(FA, v, isv, p1_reads(3, FB)): a(l)
        a(f"s_cmp_eq_u32 s{sST}, 7")
        a(f"s_cbranch_scc1 P1_tail{var}")
        a(f"s_mov_b32 s{sWBI}, s{sWBR}")
        a(f"s_add_u32 s{sWBR}, s{sWBR}, {WB}")
        a(f"s_cmp_eq_u32 s{sWBR}, {W0 + 3 * WB}")
        a(f"s_cselect_b32 s{sWBR}, {W0}, s{sWBR}")
        a(f"s_xor_b32 s{sT2}, s{sXB}, {XB}")
        for i in range(4):
            a(f"v_add_u32 v{XC + i}, s{sT2}, v{XREL + i}")
        for i in range(5):
            a(f"v_add_u32 v{WC + i}, s{sWBR}, v{WREL + i}")
        a(f"s_cmp_le_u32 s{sST}, 5")
        a(f"s_cbranch_scc1 P1_w5_{var}")
        a("s_waitcnt vmcnt(0)")
        a(f"P1_w5_{var}:")
        a("s_waitcnt vmcnt(5) lgkmcnt(0)")
        a("s_barrier")
        a(f"s_add_u32 s{sT3}, s{sST}, s{sROT}")
        bx = [f"s_cmp_gt_u32 s{sST}, 5", f"s_cbranch_scc1 P1_nx_{var}"] + p1_issue_x(sT3, 2, sXB) + [f"P1_nx_{var}:"]
        bw = [f"s_cmp_gt_u32 s{sST}, 4", f"s_cbranch_scc1 P1_nw_{var}"] + p1_issue_w(sT3, 3, sWBI) + [f"P1_nw_{var}:"]
        for l in p1_kstep(FB, v, isv, p1_reads(0, FA), {2: bx, 3: bw}): a(l)
        a(f"s_xor_b32 s{sXB}, s{sXB}, {XB}")
        a(f"s_add_u32 s{sST}, s{sST}, 1")
        a(f"s_branch P1_loop{var}")
        a(f"P1_tail{var}:")
        a("s_waitcnt lgkmcnt(0)")
        for l in p1_kstep(FB, v, isv, None): a(l)
        if var != 7:
            a("s_branch P1_epi")
    a("P1_epi:")
    stamp(a, 3)
    a(f"s_mul_i32 s{sT0}, s{sHF}, 5120")
    a(f"s_add_u32 s{sT0}, s{sT0}, {P1_STAT}")
    a(f"v_add_u32 v1, s{sT0}, v{L16}")
    a(f"s_lshl_b32 s{sT1}, s{sTT}, 2")
    a(f"v_add_u32 v2, s{sT1}, v1")
    for s in range(5):
        a(f"ds_write_b32 v2, v{CS + s} offset:{s * 1024}")
    a("v_and_b32 v3, 31, v0")
    a("v_lshlrev_b32 v3, 5, v3")
    a(f"s_lshl_b32 s{sT1}, s{sTT}, 10")
    a(f"s_add_u32 s{sT1}, s{sT1}, {P1_XS}")
    a(f"v_add_u32 v3, s{sT1}, v3")
    a("v_lshrrev_b32 v4, 5, v0")
    a("v_lshl_add_u32 v4, v4, 3, v3")
    a(f"s_lshl_b32 s{sT1}, s{sHF}, 4")
    a(f"v_add_u32 v4, s{sT1}, v4")
    a(f"v_mov_b32 v6, v{SX}")
    a(f"v_mov_b32 v7, v{SXX}")
    a("ds_write_b64 v4, v[6:7]")
    a("s_waitcnt lgkmcnt(0)")
    a("s_barrier")
    a("ds_read_b128 v[8:11], v3")
    a("ds_read_b128 v[12:15], v3 offset:16")
    for s in range(5):
        a(f"ds_read_b128 {vr(FA + 4 + 4 * s, 4)}, v1 offset:{s * 1024}")
    a("s_waitcnt lgkmcnt(5)")
    a("v_add_f32 v8, v8, v10")
    a("v_add_f32 v9, v9, v11")
    a("v_add_f32 v12, v12, v14")
    a("v_add_f32 v13, v13, v15")
    a("v_add_f32 v8, v8, v12")
    a("v_add_f32 v9, v9, v13")
    a(f"v_mul_f32 v8, {hx(f2u(1.0 / 512))}, v8")
    a(f"v_mul_f32 v9, {hx(f2u(1.0 / 512))}, v9")
    a("v_fma_f32 v9, -v8, v8, v9")
    a("v_max_f32 v9, 0, v9")
    a("v_cvt_pk_bf16_f32 v10, v9, v8")
    a("v_lshlrev_b32 v9, 16, v10")
    a(f"v_add_f32 v9, {hx(f2u(1e-5))}, v9")
    a("v_cvt_pk_bf16_f32 v9, v9, v9")
    a(f"v_and_b32 v9, v{MASK}, v9")
    a("v_sqrt_f32 v9, v9")
    a(f"v_and_b32 v10, v{MASK}, v10")
    a("v_cvt_pk_bf16_f32 v9, v9, v9")
    a("v_xor_b32 v10, 0x80000000, v10")
    SD, RS = 18, 16
    a(f"v_and_b32 v{SD}, v{MASK}, v9")
    a(f"v_rcp_f32 v{RS}, v{SD}")
    a(f"v_mov_b32 v{FA}, v10")
    a(f"v_mov_b32 v{FA + 1}, v10")
    a(f"v_mov_b32 v{FA + 2}, v10")
    a(f"v_mov_b32 v{FA + 3}, 0")
    a("s_waitcnt lgkmcnt(0)")
    for s in range(5):
        w = FA + 4 + 4 * s
        a(f"v_add_f32 v{w}, v{w}, v{w + 1}")
        a(f"v_add_f32 v{w + 2}, v{w + 2}, v{w + 3}")
        a(f"v_add_f32 v{w + 2}, v{w}, v{w + 2}")
        a(f"v_and_b32 v{w}, v{MASK}, v{w + 2}")
        a(f"v_sub_f32 v{w + 2}, v{w + 2}, v{w}")
        a(f"v_and_b32 v{w + 1}, v{MASK}, v{w + 2}")
        a(f"v_sub_f32 v{w + 2}, v{w + 2}, v{w + 1}")
        a(f"v_mov_b32 v{w + 3}, 0")
    sT = sST
    a(f"s_lshl_b32 s{sT}, s{sRB}, 2")
    a(f"s_add_u32 s{sT}, s{sT}, s{sTT}")
    a("s_nop 1")
    for s in range(1, 5):
        a(mfma(ACC + 16 * s, FA + 4 + 4 * s, FA))
    sG = sXB
    a(f"s_lshl_b32 s{sG}, s{sU0}, 2")
    a(f"s_lshl_b32 s{sT0}, s{sHF}, 1")
    a(f"s_add_u32 s{sG}, s{sG}, s{sT0}")
    a(f"s_cmp_eq_u32 s{sISV}, 1")
    a("s_cbranch_scc1 P1_epiV")

    def qk_half(accb, gsgpr, tmpb):
        a(f"s_cmp_lt_u32 s{gsgpr}, 32")
        a(f"s_cselect_b32 s{sT0}, {hx(f2u(QSCALE))}, 1.0")
        a(f"v_mul_f32 v20, s{sT0}, v{RS}")
        a(f"s_lshl_b32 s{sT1}, s{gsgpr}, 16")
        a(f"s_lshl_b32 s{sT2}, s{sT}, 10")
        a(f"s_add_u32 s{sT1}, s{sT1}, s{sT2}")
        for i in range(4):
            a(f"v_pk_mul_f32 {vr(accb + 2 * i, 2)}, {vr(accb + 2 * i, 2)}, v[20:21] op_sel_hi:[1,0]")
        for i in range(4):
            a(f"v_cvt_pk_bf16_f32 v{tmpb + i}, v{accb + 2 * i}, v{accb + 2 * i + 1}")
        a(f"buffer_store_dwordx4 {vr(tmpb, 4)}, v{L16}, s[{S_WS}:{S_WS + 3}], s{sT1} offen")

    a(mfma(ACC, FA + 4, FA))
    a("s_nop 15")
    qk_half(ACC, sG, 96)
    a(f"s_add_u32 s{sG}, s{sG}, 1")
    qk_half(ACC + 8, sG, 100)
    a("s_branch P1_epi2")
    a("P1_epiV:")
    a(mfma(ACC, FA, FA + 4))
    a(f"s_lshl_b32 s{sT0}, s{sW}, 8")
    a(f"s_add_u32 s{sT0}, s{sT0}, {P1_RS}")
    a("v_lshlrev_b32 v1, 2, v0")
    a(f"v_add_u32 v1, s{sT0}, v1")
    a(f"ds_write_b32 v1, v{RS}")
    a("v_lshrrev_b32 v2, 5, v0")
    a("v_lshlrev_b32 v2, 4, v2")
    a(f"v_add_u32 v2, s{sT0}, v2")
    a("s_waitcnt lgkmcnt(0)")
    for g in range(4):
        a(f"ds_read_b128 {vr(96 + 4 * g, 4)}, v2 offset:{g * 32}")
    a("v_bfe_u32 v3, v0, 4, 1")
    a("v_lshlrev_b32 v3, 16, v3")
    a("v_lshrrev_b32 v4, 5, v0")
    a("v_lshl_add_u32 v3, v4, 8, v3")
    a("v_and_b32 v4, 15, v0")
    a("v_lshl_add_u32 v3, v4, 4, v3")
    a(f"s_lshl_b32 s{sT1}, s{sG}, 16")
    a(f"s_lshl_b32 s{sT2}, s{sT}, 10")
    a(f"s_add_u32 s{sT1}, s{sT1}, s{sT2}")
    a("s_waitcnt lgkmcnt(0)")
    a("s_nop 7")
    for i in range(8):
        a(f"v_pk_mul_f32 {vr(ACC + 2 * i, 2)}, {vr(ACC + 2 * i, 2)}, {vr(96 + 2 * i, 2)}")
    for i in range(8):
        a(f"v_cvt_pk_bf16_f32 v{112 + i}, v{ACC + 2 * i}, v{ACC + 2 * i + 1}")
    a(f"buffer_store_dwordx4 v[112:115], v3, s[{S_WS}:{S_WS + 3}], s{sT1} offen")
    a(f"buffer_store_dwordx4 v[116:119], v3, s[{S_WS}:{S_WS + 3}], s{sT1} offen offset:512")
    a("P1_epi2:")
    stamp(a, 4)
    a(f"s_cmp_eq_u32 s{sISC}, 1")
    a("s_cbranch_scc1 P1_epiC")
    a(f"s_mul_i32 s{sT1}, s{sT}, 112")
    a(f"s_lshl_b32 s{sT0}, s{sCB}, 1")
    a(f"s_add_u32 s{sT0}, s{sT0}, s{sHF}")
    a(f"s_lshl_b32 s{sT0}, s{sT0}, 2")
    a(f"s_add_u32 s{sT1}, s{sT1}, s{sT0}")
    a(f"s_lshl_b32 s{sT1}, s{sT1}, 10")
    a(f"s_add_u32 s{sT1}, s{sT1}, {WS_H}")
    a(f"v_mov_b32 v20, {hx(f2u(GC2))}")
    a(f"v_mov_b32 v21, {hx(f2u(GC1))}")
    for c in range(4):
        g = ACC + 16 * (1 + c)
        u = g + 8
        q = 64 + (c & 1) * 16
        o = 96 + c * 4
        for i in range(4):
            a(f"v_pk_mul_f32 {vr(g + 2 * i, 2)}, {vr(g + 2 * i, 2)}, {vr(RS, 2)} op_sel_hi:[1,0]")
        for i in range(4):
            a(f"v_pk_mul_f32 {vr(q + 2 * i, 2)}, {vr(g + 2 * i, 2)}, {vr(g + 2 * i, 2)}")
        for i in range(4):
            a(f"v_pk_fma_f32 {vr(q + 2 * i, 2)}, {vr(q + 2 * i, 2)}, v[20:21], v[20:21] op_sel:[0,0,1] op_sel_hi:[1,0,1]")
        for i in range(4):
            a(f"v_pk_mul_f32 {vr(q + 2 * i, 2)}, {vr(q + 2 * i, 2)}, {vr(g + 2 * i, 2)}")
        for i in range(8):
            a(f"v_exp_f32 v{q + i}, v{q + i}")
        for i in range(4):
            a(f"v_pk_mul_f32 {vr(g + 2 * i, 2)}, {vr(g + 2 * i, 2)}, {vr(u + 2 * i, 2)}")
        for i in range(4):
            a(f"v_pk_fma_f32 {vr(q + 2 * i, 2)}, {vr(q + 2 * i, 2)}, {vr(SD, 2)}, {vr(SD, 2)} op_sel_hi:[1,0,0]")
        for i in range(8):
            a(f"v_rcp_f32 v{q + i}, v{q + i}")
        a("s_nop 0")
        for i in range(4):
            a(f"v_pk_mul_f32 {vr(g + 2 * i, 2)}, {vr(g + 2 * i, 2)}, {vr(q + 2 * i, 2)}")
        for i in range(4):
            a(f"v_cvt_pk_bf16_f32 v{o + i}, v{g + 2 * i}, v{g + 2 * i + 1}")
        a(f"buffer_store_dwordx4 {vr(o, 4)}, v{L16}, s[{S_WS}:{S_WS + 3}], s{sT1} offen offset:{c * 1024}")
    stamp(a, 5)
    if STAMPS: a("s_waitcnt vmcnt(0)")
    stamp_flush(a, S_WS, sW, 0)
    a("s_endpgm")
    a("P1_epiC:")
    a(f"s_add_u32 s{sG}, s{sU0}, s{sHF}")
    a(f"s_add_u32 s{sG}, s{sG}, 1")
    a(f"s_lshl_b32 s{sG}, s{sG}, 2")
    for c in range(4):
        qk_half(ACC + 16 * (1 + c), sG, 64 + 8 * c)
        a(f"s_add_u32 s{sG}, s{sG}, 8")
        qk_half(ACC + 16 * (1 + c) + 8, sG, 68 + 8 * c)
        if c != 3:
            a(f"s_sub_u32 s{sG}, s{sG}, 7")
    stamp(a, 5)
    if STAMPS: a("s_waitcnt vmcnt(0)")
    stamp_flush(a, S_WS, sW, 0)
    a("P1_exit:")
    a("s_endpgm")


STG = 131072
Q_, NM, S0, S1, P_, O_, K_, V_ = 8, 16, 32, 48, 64, 80, 72, 96
H_ = 112
G_ = 128
WF = 192
AK, AV, A16, ASRC, ATR = 200, 201, 202, 203, 204
XV = 208
AOUT = 206
R_WS, R_WD, R_WO, R_X, R_OUT = 8, 12, 16, 20, 24
tW, tHEAD, tQB, tTP, tP, tIT, tHO, tWD, tSTG = 28, 29, 30, 31, 32, 33, 34, 35, 36
t0, t1, t2, t3 = 40, 41, 42, 43
tVM = 44
tBM = 46


def att_tile(i, gem=None, extra=None, first=False):
    Sc = S0 if i % 2 == 0 else S1
    Sn = S1 if i % 2 == 0 else S0
    Vc = V_ + 8 * (i % 2)
    Vp = V_ + 8 * ((i + 1) % 2)
    e = lambda k: f"v_exp_f32 v{Sc + k}, v{Sc + k}"
    c = lambda k: f"v_cvt_pk_bf16_f32 v{P_ + k}, v{Sc + 2 * k}, v{Sc + 2 * k + 1}"
    ex = extra or {}
    r = []
    r.append("s_waitcnt lgkmcnt(0)")
    r += ex.get("pre", [])
    r.append(mfma(Sn, K_, Q_, NM))
    r.append(f"ds_read_b128 {vr(K_, 4)}, v{AK} offset:{(i + 2) * 2048}")
    r += ex.get(0, [])
    r += [e(0), e(1), e(2), e(3)]
    if not first:
        r.append(mfma(O_, Vp + 4, P_ + 4))
    r.append(f"s_mov_b64 exec, s[{tVM}:{tVM + 1}]")
    r.append(f"ds_read_b128 {vr(Vp, 4)}, v{AV} offset:{(i + 1) * 2048}")
    r.append(f"ds_read_b128 {vr(Vp + 4, 4)}, v{AV} offset:{(i + 1) * 2048 + 512}")
    r.append("s_mov_b64 exec, -1")
    r += [c(0), e(4), e(5), c(1), e(6), e(7)]
    r += ex.get(1, [])
    if gem:
        r.append(gem)
    r += [e(8), c(2), c(3), e(9), e(10), e(11)]
    r.append(mfma(O_, Vc, P_))
    r += ex.get(2, [])
    r += [c(4), e(12), e(13), c(5), e(14), e(15), c(6), c(7)]
    r += ex.get(3, [])
    if "p2vmem" in ABL:
        r = [l for l in r if not l.startswith("buffer_load")]
    if "p2dma" in ABL:
        r = [l for l in r if not (l.startswith("buffer_load") and l.endswith("lds"))]
    if "p2h" in ABL:
        r = [l for l in r if not (l.startswith("buffer_load") and not l.endswith("lds"))]
    if "p2tr" in ABL:
        r = [l for l in r if not l.startswith("ds_read_b64_tr")]
    if "p2gm" in ABL:
        r = [l for l in r if not (l.startswith("v_mfma") and int(l.split("v[")[1].split(":")[0]) >= G_)]
    if "p2kv" in ABL:
        r = [l for l in r if not l.startswith("ds_read_b128")]
    if "p2exec" in ABL:
        r = [l for l in r if not l.startswith("s_mov_b64 exec")]
    if "p2mfma" in ABL:
        r = [l for l in r if not l.startswith("v_mfma")]
    return r


def gemm_loads_wd(par):
    return [f"s_add_u32 m0, s{tSTG}, {par * 2048}",
            f"s_add_u32 s{t0}, s{tWD}, 8192",
            f"buffer_load_dwordx4 v{ASRC}, s[{R_WD}:{R_WD + 3}], s{tWD} offen lds",
            f"s_add_u32 m0, m0, 1024",
            f"s_add_u32 s{tWD}, s{tWD}, 16384",
            f"buffer_load_dwordx4 v{ASRC}, s[{R_WD}:{R_WD + 3}], s{t0} offen lds"]


def gemm_loads_h(par):
    return [f"s_add_u32 s{t0}, s{tHO}, {112 * 1024}",
            f"buffer_load_dwordx4 {vr(H_ + 8 * par, 4)}, v{A16}, s[{R_WS}:{R_WS + 3}], s{tHO} offen",
            f"buffer_load_dwordx4 {vr(H_ + 8 * par + 4, 4)}, v{A16}, s[{R_WS}:{R_WS + 3}], s{t0} offen",
            f"s_add_u32 s{tHO}, s{tHO}, 1024"]


def tr_reads(dst, off):
    r = []
    for ap in range(2):
        for t in range(2):
            r.append(f"ds_read_b64_tr_b16 {vr(dst + 4 * ap + 2 * t, 2)}, v{ATR + ap} offset:{off + t * 1024}")
    return r


def gen_p2(a, kname):
    a(f".globl {kname}\n.p2align 8\n.type {kname},@function\n{kname}:")
    a("s_cmp_ge_u32 s2, 256")
    a("s_cbranch_scc1 P2_exit")
    stamp(a, 0)
    a("s_load_dwordx2 s[56:57], s[0:1], 0")
    a("s_load_dwordx2 s[58:59], s[0:1], 16")
    a("s_load_dwordx4 s[60:63], s[0:1], 48")
    a("s_load_dwordx2 s[64:65], s[0:1], 72")
    a("v_lshrrev_b32 v1, 6, v0")
    a("v_and_b32 v0, 63, v0")
    a(f"v_readfirstlane_b32 s{tW}, v1")
    a(f"s_and_b32 s{t0}, s2, 7")
    a(f"s_lshr_b32 s{t1}, s2, 3")
    a(f"s_and_b32 s{t2}, s{t1}, 3")
    a(f"s_lshl2_add_u32 s{tHEAD}, s{t0}, s{t2}")
    a(f"s_lshr_b32 s{tQB}, s{t1}, 2")
    a(f"s_mov_b32 s{tTP}, s{tHEAD}")
    a(f"s_mov_b32 s{tP}, s{tQB}")
    a(f"v_lshlrev_b32 v{A16}, 4, v0")
    a("s_waitcnt lgkmcnt(0)")
    srd(a, R_WS, 64, WS_SIZE)
    a(f"s_lshl_b32 s{t0}, s{tHEAD}, 16")
    a(f"s_lshl_b32 s{t1}, s{tQB}, 13")
    a(f"s_lshl_b32 s{t2}, s{tW}, 10")
    a(f"s_add_u32 s{t1}, s{t1}, s{t2}")
    a(f"s_add_u32 s{t1}, s{t1}, s{t0}")
    a(f"buffer_load_dwordx4 {vr(Q_, 4)}, v{A16}, s[{R_WS}:{R_WS + 3}], s{t1} offen")
    a(f"s_add_u32 s{t0}, s{t0}, s{t2}")
    a(f"s_add_u32 s{t0}, s{t0}, {32 << 16}")
    a(f"s_lshl_b32 s{t2}, s{tW}, 11")
    for i in range(8):
        a(f"s_add_u32 m0, s{t2}, {i * 16384}")
        a(f"s_add_u32 s{t1}, s{t0}, {32 << 16}")
        a(f"buffer_load_dwordx4 v{A16}, s[{R_WS}:{R_WS + 3}], s{t0} offen lds")
        a(f"s_add_u32 m0, m0, 1024")
        a(f"s_add_u32 s{t0}, s{t0}, 8192")
        a(f"buffer_load_dwordx4 v{A16}, s[{R_WS}:{R_WS + 3}], s{t1} offen lds")
    srd(a, R_WD, 60, 1835008)
    srd(a, R_WO, 58, 524288)
    srd(a, R_X, 56, 2097152)
    srd(a, R_OUT, 62, 2097152)
    a(f"v_mov_b32 v{AK}, v{A16}")
    a("v_lshrrev_b32 v2, 5, v0")
    a("v_and_b32 v3, 15, v0")
    a("v_lshlrev_b32 v3, 4, v3")
    a("v_lshl_add_u32 v3, v2, 8, v3")
    a(f"v_add_u32 v{AV}, 1024, v3")
    a("v_lshrrev_b32 v3, 3, v0")
    a("v_and_b32 v4, 7, v0")
    a("v_and_b32 v5, 2, v3")
    a("v_xor_b32 v4, v4, v5")
    a("v_lshlrev_b32 v4, 4, v4")
    a(f"v_lshl_add_u32 v{ASRC}, v3, 10, v4")
    a("v_bfe_u32 v3, v0, 2, 2")
    a("v_lshl_add_u32 v4, v2, 2, v3")
    a("v_lshlrev_b32 v4, 7, v4")
    a("v_and_b32 v5, 1, v0")
    a("v_lshl_add_u32 v4, v5, 6, v4")
    a("v_bfe_u32 v5, v0, 4, 1")
    a("v_lshl_add_u32 v4, v5, 4, v4")
    a("v_bfe_u32 v5, v0, 1, 1")
    a("v_lshl_add_u32 v4, v5, 3, v4")
    a("v_lshrrev_b32 v3, 1, v3")
    a("v_lshl_add_u32 v4, v3, 5, v4")
    a(f"s_lshl_b32 s{tSTG}, s{tW}, 12")
    a(f"s_add_u32 s{tSTG}, s{tSTG}, {STG}")
    a(f"v_add_u32 v{ATR}, s{tSTG}, v4")
    a(f"v_xor_b32 v{ATR + 1}, 32, v{ATR}")
    a(f"s_mul_i32 s{t0}, s{tW}, 14")
    a(f"s_mul_i32 s{tHO}, s{tTP}, 224")
    a(f"s_add_u32 s{tHO}, s{tHO}, s{t0}")
    a(f"s_lshl_b32 s{tHO}, s{tHO}, 10")
    a(f"s_add_u32 s{tHO}, s{tHO}, {WS_H}")
    a(f"s_lshl_b32 s{tWD}, s{t0}, 14")
    a(f"s_lshl_b32 s{t1}, s{tP}, 7")
    a(f"s_add_u32 s{tWD}, s{tWD}, s{t1}")
    a(f"s_mov_b32 s{tVM}, 0x0000ffff")
    a(f"s_mov_b32 s{tVM + 1}, 0x0000ffff")
    a("v_and_b32 v3, 27, v0")
    a("v_cmp_eq_u32 vcc, 16, v3")
    a("v_mov_b32 v4, 0x3f803f80")
    a("v_mov_b32 v5, 0")
    a("v_cndmask_b32 v3, v5, v4, vcc")
    for i in range(16):
        a(f"v_mov_b32 v{V_ + i}, v3")
    for i in range(0, 64, 2):
        a(f"v_mov_b64 v[{G_ + i}:{G_ + i + 1}], 0")
    for i in range(0, 16, 2):
        a(f"v_mov_b64 v[{O_ + i}:{O_ + i + 1}], 0")
    a(f"s_mov_b32 s{tBM}, {(1 << 1) | (1 << 4) | (1 << 6)}")
    stamp(a, 1)
    a("s_waitcnt vmcnt(12)")
    a("s_barrier")
    stamp(a, 2)
    a(f"ds_read_b128 {vr(K_, 4)}, v{AK}")
    a(f"ds_read_b128 {vr(P_, 4)}, v{AK} offset:2048")
    a(f"s_mov_b64 exec, s[{tVM}:{tVM + 1}]")
    a(f"ds_read_b128 {vr(V_, 4)}, v{AV}")
    a(f"ds_read_b128 {vr(V_ + 4, 4)}, v{AV} offset:512")
    a("s_mov_b64 exec, -1")
    a("s_waitcnt lgkmcnt(2)")
    a(mfma(S0, K_, Q_, "0"))
    a(mfma(S1, P_, Q_, "0"))
    a("s_nop 11")
    a(f"v_max3_f32 v1, v{S0}, v{S0 + 1}, v{S0 + 2}")
    for i in range(3, 15, 2):
        a(f"v_max3_f32 v1, v1, v{S0 + i}, v{S0 + i + 1}")
    a(f"v_max3_f32 v1, v1, v{S0 + 15}, v{S1}")
    for i in range(1, 15, 2):
        a(f"v_max3_f32 v1, v1, v{S1 + i}, v{S1 + i + 1}")
    a(f"v_max_f32 v1, v1, v{S1 + 15}")
    a("v_mov_b32 v2, v1")
    a("s_nop 1")
    a("v_permlane32_swap_b32 v1, v2")
    a("v_max_f32 v1, v1, v2")
    a(f"v_sub_f32 v1, {hx(f2u(-MAXOFF))}, v1")
    for i in range(16):
        a(f"v_mov_b32 v{NM + i}, v1")
    a("s_nop 1")
    a(mfma(S0, K_, Q_, NM))
    a(f"v_mov_b32 v{K_}, v{P_}")
    a(f"v_mov_b32 v{K_ + 1}, v{P_ + 1}")
    a(f"v_mov_b32 v{K_ + 2}, v{P_ + 2}")
    a(f"v_mov_b32 v{K_ + 3}, v{P_ + 3}")
    a("s_nop 7")
    for i in range(8):
        ex = {}
        if i == 1: ex[2] = gemm_loads_wd(0)
        if i == 3: ex[3] = gemm_loads_h(0)
        if i == 5: ex[2] = gemm_loads_wd(1)
        if i == 7: ex[3] = gemm_loads_h(1)
        for l in att_tile(i, None, ex, first=(i == 0)): a(l)
    stamp(a, 3)
    a(f"s_mov_b32 s{tIT}, 1")
    a("P2_loop:")
    a(f"v_add_u32 v{AK}, 0x4000, v{AK}")
    a(f"v_add_u32 v{AV}, 0x4000, v{AV}")
    a("s_waitcnt vmcnt(4)")
    a(f"s_bitcmp1_b32 s{tBM}, s{tIT}")
    a("s_cbranch_scc0 P2_nobar")
    a("s_waitcnt lgkmcnt(0)")
    a("s_barrier")
    a(f"s_cmp_lg_u32 s{tIT}, 4")
    a("s_cbranch_scc1 P2_nobar")
    a(f"s_lshl_b32 s{t0}, s{tW}, 16")
    a(f"s_lshl_b32 s{t1}, s{tP}, 7")
    a(f"s_add_u32 s{t0}, s{t0}, s{t1}")
    a(f"s_lshl_b32 m0, s{tW}, 13")
    for i in range(8):
        if i:
            a("s_add_u32 m0, m0, 1024")
            a(f"s_add_u32 s{t0}, s{t0}, 8192")
        else:
            a("s_nop 0")
        a(f"buffer_load_dwordx4 v{ASRC}, s[{R_WO}:{R_WO + 3}], s{t0} offen lds")
    a("P2_nobar:")
    for i in range(8):
        par = i // 4
        q = i % 4
        ex = {}
        gem = None
        if q == 0:
            if par == 1:
                ex["pre"] = ["s_waitcnt vmcnt(4)"]
            ex[0] = tr_reads(WF, par * 2048)
        if q == 1:
            ex[2] = gemm_loads_wd(par)
            gem = mfma(G_, WF, H_ + 8 * par)
            ex[3] = [mfma(G_ + 16, WF + 4, H_ + 8 * par)]
        if q == 2:
            gem = mfma(G_ + 32, WF, H_ + 8 * par + 4)
        if q == 3:
            gem = mfma(G_ + 48, WF + 4, H_ + 8 * par + 4)
            ex[3] = gemm_loads_h(par)
        for l in att_tile(i, gem, ex): a(l)
    a(f"s_add_u32 s{tIT}, s{tIT}, 1")
    a(f"s_cmp_lt_u32 s{tIT}, 8")
    a("s_cbranch_scc1 P2_loop")
    a("s_nop 0")
    a(mfma(O_, V_ + 8 + 4, P_ + 4))
    a(f"s_lshr_b32 s{t0}, s{tW}, 2")
    a(f"s_lshl_b32 s{t1}, s{tTP}, 1")
    a(f"s_add_u32 s{t3}, s{t0}, s{t1}")
    a(f"s_lshl_b32 s{t0}, s{t3}, 15")
    a(f"s_lshl_b32 s{t1}, s{tP}, 7")
    a(f"s_add_u32 s{t0}, s{t0}, s{t1}")
    a(f"s_and_b32 s{t1}, s{tW}, 3")
    a(f"s_lshl_b32 s{t1}, s{t1}, 4")
    a(f"s_add_u32 s{t0}, s{t0}, s{t1}")
    a("v_and_b32 v1, 31, v0")
    a("v_lshrrev_b32 v2, 5, v0")
    a("v_lshlrev_b32 v1, 10, v1")
    a("v_lshl_add_u32 v1, v2, 6, v1")
    a(f"v_add_u32 v{AOUT}, s{t0}, v1")
    a(f"buffer_load_dwordx4 {vr(XV, 4)}, v{AOUT}, s[{R_X}:{R_X + 3}], 0 offen")
    a("s_waitcnt lgkmcnt(0)")
    a("s_nop 3")
    a("P2_check:")
    stamp(a, 4)
    a(f"v_add_f32 v1, |v{O_}|, |v{O_ + 1}|")
    for i in range(2, 8):
        a(f"v_add_f32 v1, v1, |v{O_ + i}|")
    a(f"v_mov_b32 v2, {hx(f2u(2.0 ** 120))}")
    a(f"v_mov_b32 v3, {hx(f2u(2.0 ** -90))}")
    a(f"v_cmp_lt_f32 s[48:49], v{O_ + 8}, v2")
    a("v_cmp_lt_f32 s[50:51], v1, v2")
    a(f"v_cmp_le_f32 s[52:53], 0.5, v{O_ + 8}")
    a("v_cmp_le_f32 vcc, v3, v1")
    a("s_or_b64 s[52:53], s[52:53], vcc")
    a("s_and_b64 s[48:49], s[48:49], s[50:51]")
    a("s_and_b64 s[48:49], s[48:49], s[52:53]")
    a("s_cmp_eq_u64 s[48:49], -1")
    if not ABL: a("s_cbranch_scc0 P2_fallback")
    a("P2_norm:")
    a(f"v_rcp_f32 v2, v{O_ + 8}")
    a(f"s_lshl_b32 s{t0}, s{tQB}, 3")
    a(f"s_add_u32 s{t0}, s{t0}, s{tW}")
    a(f"s_lshl_b32 s{t0}, s{t0}, 5")
    a(f"s_add_u32 s{t0}, s{t0}, s{tHEAD}")
    a(f"s_lshl_b32 s{t0}, s{t0}, 10")
    a(f"s_add_u32 s{t0}, s{t0}, {WS_O}")
    for i in range(4):
        a(f"v_pk_mul_f32 {vr(O_ + 2 * i, 2)}, {vr(O_ + 2 * i, 2)}, v[2:3] op_sel_hi:[1,0]")
    for i in range(4):
        a(f"v_cvt_pk_bf16_f32 v{4 + i}, v{O_ + 2 * i}, v{O_ + 2 * i + 1}")
    a(f"buffer_store_dwordx4 v[4:7], v{A16}, s[{R_WS}:{R_WS + 3}], s{t0} offen sc1")
    WO_ = 8
    a(f"s_and_b32 s{t1}, s{tW}, 3")
    a(f"s_lshl_b32 s{t1}, s{t1}, 14")
    a(f"s_sub_u32 s{t1}, s{t1}, s{tSTG}")
    a(f"v_add_u32 v{ATR}, s{t1}, v{ATR}")
    a(f"v_add_u32 v{ATR + 1}, s{t1}, v{ATR + 1}")
    for j in range(8):
        for l in tr_reads(WO_ + 8 * j, j * 2048): a(l)
        if j % 2 == 1 and j != 7:
            a("s_waitcnt lgkmcnt(4)")
    a("s_waitcnt vmcnt(0) lgkmcnt(0)")
    a("s_barrier")
    stamp(a, 5)
    a(f"s_cmp_lg_u32 s{tW}, 0")
    a("s_cbranch_scc1 P2_nosig")
    a(f"s_lshl_b32 s{t0}, s{tQB}, 8")
    a(f"s_add_u32 s{t0}, s{t0}, {WS_CNT}")
    a("v_mov_b32 v1, 1")
    a("s_mov_b64 exec, 1")
    a(f"buffer_atomic_add v1, off, s[{R_WS}:{R_WS + 3}], s{t0} sc1")
    a("s_mov_b64 exec, -1")
    a("P2_nosig:")
    a(f"s_lshl_b32 s{t0}, s{tW}, 11")
    a(f"v_add_u32 v1, s{t0}, v{A16}")
    a("v_add_u32 v2, 0x10000, v1")
    for o in range(8):
        for i in range(2):
            base = "v1" if o < 4 else "v2"
            a(f"ds_write_b128 {base}, {vr(G_ + 8 * o + 4 * i, 4)} offset:{(o % 4) * 16384 + i * 1024}")
    a(f"s_lshl_b32 s{t0}, s{tW}, 14")
    a(f"v_add_u32 v3, s{t0}, v{A16}")
    a("s_waitcnt lgkmcnt(0)")
    a("s_barrier")
    for s in range(8):
        for i in range(2):
            a(f"ds_read_b128 {vr(G_ + 8 * s + 4 * i, 4)}, v3 offset:{(s * 2 + i) * 1024}")
        if s == 6:
            a("s_waitcnt lgkmcnt(10)")
    for s in range(1, 8):
        a(f"s_waitcnt lgkmcnt({2 * (7 - s)})")
        for i in range(4):
            a(f"v_pk_add_f32 {vr(G_ + 2 * i, 2)}, {vr(G_ + 2 * i, 2)}, {vr(G_ + 8 * s + 2 * i, 2)}")
    T_ = G_ + 8
    a(f"v_mov_b32 v4, {hx(f2u(-LOG2E))}")
    for i in range(4):
        a(f"v_pk_mul_f32 {vr(T_ + 2 * i, 2)}, {vr(G_ + 2 * i, 2)}, v[4:5] op_sel_hi:[1,0]")
    for i in range(8):
        a(f"v_exp_f32 v{T_ + i}, v{T_ + i}")
    a("s_nop 0")
    for i in range(4):
        a(f"v_pk_add_f32 {vr(T_ + 2 * i, 2)}, {vr(T_ + 2 * i, 2)}, 1.0 op_sel_hi:[1,0]")
    for i in range(8):
        a(f"v_rcp_f32 v{T_ + i}, v{T_ + i}")
    a("s_nop 0")
    for i in range(4):
        a(f"v_pk_mul_f32 {vr(G_ + 2 * i, 2)}, {vr(G_ + 2 * i, 2)}, {vr(T_ + 2 * i, 2)}")
    stamp(a, 6)
    a(f"s_cmp_lg_u32 s{tW}, 0")
    a("s_cbranch_scc1 P2_nopoll")
    a(f"s_lshr_b32 s{t0}, s{tTP}, 2")
    a(f"s_lshl_b32 s{t0}, s{t0}, 8")
    a(f"s_add_u32 s{t0}, s{t0}, {WS_CNT}")
    a(f"s_mov_b32 s{t1}, 0x40000")
    a("P2_poll:")
    a(f"buffer_load_dword v4, off, s[{R_WS}:{R_WS + 3}], s{t0} sc1")
    a("s_waitcnt vmcnt(0)")
    a(f"v_readfirstlane_b32 s{t2}, v4")
    a(f"s_cmp_ge_u32 s{t2}, 32")
    a("s_cbranch_scc1 P2_nopoll")
    a("s_sleep 1")
    a(f"s_sub_u32 s{t1}, s{t1}, 1")
    a(f"s_cmp_lg_u32 s{t1}, 0")
    a("s_cbranch_scc1 P2_poll")
    a("P2_nopoll:")
    a("s_barrier")
    stamp(a, 7)
    OF = 72
    SA = 144
    a(f"s_lshl_b32 s{t0}, s{t3}, 5")
    a(f"s_and_b32 s{t1}, s{tW}, 3")
    a(f"s_lshl_b32 s{t1}, s{t1}, 3")
    a(f"s_add_u32 s{t0}, s{t0}, s{t1}")
    a(f"s_lshl_b32 s{t0}, s{t0}, 10")
    a(f"s_add_u32 s{t0}, s{t0}, {WS_O}")
    a(f"s_add_u32 s{t1}, s{t0}, 4096")
    for j in range(8):
        so = t0 if j < 4 else t1
        a(f"buffer_load_dwordx4 {vr(OF + 4 * j, 4)}, v{A16}, s[{R_WS}:{R_WS + 3}], s{so} offen offset:{(j % 4) * 1024} sc1")
    for j in range(8):
        a(f"s_waitcnt vmcnt({7 - j})")
        for ap in range(2):
            a(mfma(SA + 16 * ap, WO_ + 8 * j + 4 * ap, OF + 4 * j, "0" if j == 0 else None))
    stamp(a, 8)
    a(f"s_lshr_b32 s{t0}, s{tW}, 2")
    a(f"s_lshl_b32 s{t0}, s{t0}, 15")
    a(f"s_and_b32 s{t1}, s{tW}, 3")
    a(f"s_lshl_b32 s{t1}, s{t1}, 11")
    a(f"s_add_u32 s{t0}, s{t0}, s{t1}")
    a(f"v_add_u32 v1, s{t0}, v{A16}")
    a(f"s_lshl_b32 s{t0}, s{tW}, 13")
    a(f"v_add_u32 v3, s{t0}, v{A16}")
    a("s_nop 7")
    for o in range(4):
        for i in range(2):
            a(f"ds_write_b128 v1, {vr(SA + 8 * o + 4 * i, 4)} offset:{o * 8192 + i * 1024}")
    a("s_waitcnt lgkmcnt(0)")
    a("s_barrier")
    for s in range(4):
        for i in range(2):
            a(f"ds_read_b128 {vr(SA + 8 * s + 4 * i, 4)}, v3 offset:{(s * 2 + i) * 1024}")
    XU = 8
    for i in range(4):
        a(f"v_lshlrev_b32 v{XU + 2 * i}, 16, v{XV + i}")
        a(f"v_and_b32 v{XU + 2 * i + 1}, 0xffff0000, v{XV + i}")
    for s in range(1, 4):
        a(f"s_waitcnt lgkmcnt({2 * (3 - s)})")
        for i in range(4):
            a(f"v_pk_add_f32 {vr(SA + 2 * i, 2)}, {vr(SA + 2 * i, 2)}, {vr(SA + 8 * s + 2 * i, 2)}")
    for i in range(4):
        a(f"v_pk_fma_f32 {vr(XU + 2 * i, 2)}, {vr(SA + 2 * i, 2)}, {vr(G_ + 2 * i, 2)}, {vr(XU + 2 * i, 2)}")
    for i in range(4):
        a(f"v_cvt_pk_bf16_f32 v{4 + i}, v{XU + 2 * i}, v{XU + 2 * i + 1}")
    a(f"buffer_store_dwordx4 v[4:7], v{AOUT}, s[{R_OUT}:{R_OUT + 3}], 0 offen")
    stamp(a, 9)
    if STAMPS: a("s_waitcnt vmcnt(0)")
    stamp_flush(a, R_WS, tW, 1)
    a("P2_exit:")
    a("s_endpgm")
    a("P2_fallback:")
    a(f"s_lshl_b32 s{t0}, s{tHEAD}, 16")
    a(f"s_add_u32 s{t0}, s{t0}, {32 << 16}")
    a(f"s_mov_b32 s{t1}, 0")
    a("v_mov_b32 v1, 0xff800000")
    a("P2_fb1:")
    a(f"s_add_u32 s{t2}, s{t0}, s{t1}")
    a(f"buffer_load_dwordx4 {vr(K_, 4)}, v{A16}, s[{R_WS}:{R_WS + 3}], s{t2} offen")
    a("s_waitcnt vmcnt(0)")
    a(mfma(S0, K_, Q_, "0"))
    a("s_nop 15")
    for i in range(0, 16, 2):
        a(f"v_max3_f32 v1, v1, v{S0 + i}, v{S0 + i + 1}")
    a(f"s_add_u32 s{t1}, s{t1}, 1024")
    a(f"s_cmp_lt_u32 s{t1}, 65536")
    a("s_cbranch_scc1 P2_fb1")
    a("v_mov_b32 v2, v1")
    a("s_nop 1")
    a("v_permlane32_swap_b32 v1, v2")
    a("v_max_f32 v1, v1, v2")
    a("v_sub_f32 v1, 0, v1")
    for i in range(16):
        a(f"v_mov_b32 v{NM + i}, v1")
    for i in range(16):
        a(f"v_mov_b32 v{O_ + i}, 0")
    a("v_lshrrev_b32 v2, 5, v0")
    a("v_and_b32 v3, 15, v0")
    a("v_lshlrev_b32 v3, 4, v3")
    a("v_lshl_add_u32 v3, v2, 8, v3")
    a(f"s_mov_b32 s{t1}, 0")
    a("P2_fb2:")
    a(f"s_add_u32 s{t2}, s{t0}, s{t1}")
    a(f"buffer_load_dwordx4 {vr(K_, 4)}, v{A16}, s[{R_WS}:{R_WS + 3}], s{t2} offen")
    a(f"s_add_u32 s{t2}, s{t2}, {32 << 16}")
    a(f"s_mov_b64 exec, s[{tVM}:{tVM + 1}]")
    a(f"buffer_load_dwordx4 {vr(V_, 4)}, v3, s[{R_WS}:{R_WS + 3}], s{t2} offen")
    a(f"buffer_load_dwordx4 {vr(V_ + 4, 4)}, v3, s[{R_WS}:{R_WS + 3}], s{t2} offen offset:512")
    a("s_mov_b64 exec, -1")
    a("s_waitcnt vmcnt(0)")
    a(mfma(S0, K_, Q_, NM))
    a("s_nop 15")
    for i in range(16):
        a(f"v_exp_f32 v{S0 + i}, v{S0 + i}")
    a("s_nop 0")
    for i in range(8):
        a(f"v_cvt_pk_bf16_f32 v{P_ + i}, v{S0 + 2 * i}, v{S0 + 2 * i + 1}")
    a("s_nop 1")
    a(mfma(O_, V_, P_))
    a(mfma(O_, V_ + 4, P_ + 4))
    a(f"s_add_u32 s{t1}, s{t1}, 1024")
    a(f"s_cmp_lt_u32 s{t1}, 65536")
    a("s_cbranch_scc1 P2_fb2")
    a("s_nop 15")
    a("s_branch P2_norm")


def kd(a, kname, vg, sg):
    a(f".amdhsa_kernel {kname}")
    a(f".amdhsa_next_free_vgpr {vg}")
    a(f".amdhsa_next_free_sgpr {sg}")
    a(f".amdhsa_accum_offset {(vg + 3) // 4 * 4}")
    a(".amdhsa_group_segment_fixed_size 0")
    a(".amdhsa_kernarg_size 80")
    a(".amdhsa_user_sgpr_count 2")
    a(".amdhsa_user_sgpr_kernarg_segment_ptr 1")
    a(".amdhsa_system_sgpr_workgroup_id_x 1")
    a(".end_amdhsa_kernel")


def main(out):
    a = Asm()
    hdr = ["; LN + MHA + GEGLU block, generated by gen.py (hand-scheduled gfx950 assembly)",
           "; @launch kernel=p1_kernel grid=(256,1,1) block=(512,1,1) lds=155648",
           "; @launch kernel=p2_kernel grid=(256,1,1) block=(512,1,1) lds=163840"]
    a('.amdgcn_target "amdgcn-amd-amdhsa--gfx950"')
    a(".text")
    gen_p1(a, "p1_kernel")
    gen_p2(a, "p2_kernel")
    a('.section .rodata,"a"')
    a(".p2align 6")
    kd(a, "p1_kernel", 208, 96 if STAMPS else 72)
    a(".p2align 6")
    kd(a, "p2_kernel", 212, 96 if STAMPS else 72)
    open(out, "w").write("\n".join(hdr) + "\n" + a.text())


if __name__ == "__main__":
    for x in list(sys.argv):
        if x.startswith("--abl="):
            ABL = set(x[6:].split(","))
            sys.argv.remove(x)
    if "--cyc" in sys.argv:
        STAMPS = 2
        sys.argv.remove("--cyc")
    if "--stamps" in sys.argv:
        STAMPS = True
        sys.argv.remove("--stamps")
    main(sys.argv[1] if len(sys.argv) > 1 else f"cdna_kernels/{NAME}.s")
```

```python
import sys, struct, math

NAME = "recurrent_scan__mha_block__glu_gated_geglu__prompt"

WS_QKV = 0
WS_H = 6 << 20
WS_O = 14 << 20
WS_CNT = 16 << 20
WS_STAMP = (16 << 20) + 65536
WS_ST = (16 << 20) + 0x80000
WS_CS = (16 << 20) + 0x90000
WS_WT = 17 << 20
WS_SIZE = 20 << 20
OOB = 0x7f000000

LOG2E = 1.4426950408889634
QSCALE = 0.25 * LOG2E
GC1 = -2.0 * LOG2E * math.sqrt(2.0 / math.pi)
GC2 = GC1 * 0.044715
MAXOFF = 80.0
SPIN = 0x40000

STAMPS = False
OPT = set()
NOSTAMP = False


def f2u(x):
    return struct.unpack("<I", struct.pack("<f", x))[0]


def hx(x):
    return "0x%08x" % (x & 0xffffffff)


class Asm:
    def __init__(self):
        self.l = []

    def __call__(self, s):
        if isinstance(s, (list, tuple)):
            for x in s:
                self(x)
            return
        for line in s.split("\n"):
            line = line.strip()
            if not line:
                continue
            if line.endswith(":") or line.startswith("."):
                self.l.append(line)
            else:
                self.l.append("    " + line)

    def text(self):
        return "\n".join(self.l) + "\n"


def vr(b, n):
    return f"v[{b}:{b + n - 1}]"


def sr(b):
    return f"s[{b}:{b + 3}]"


def mfma(d, a, b, c=None):
    cs = vr(d, 16) if c is None else (c if isinstance(c, str) else vr(c, 16))
    return f"v_mfma_f32_32x32x16_bf16 {vr(d, 16)}, {vr(a, 4)}, {vr(b, 4)}, {cs}"


def stamp(a, n):
    if not STAMPS or (NOSTAMP and n != 15):
        return
    a("s_memtime s[76:77]" if STAMPS == 2 else "s_memrealtime s[76:77]")
    a("s_waitcnt lgkmcnt(0)")
    a(f"s_mov_b32 s{80 + n}, s76")


def stamp_flush(a):
    if not STAMPS:
        return
    a("s_waitcnt vmcnt(0)")
    stamp(a, 15)
    a("v_mov_b32 v1, 0")
    for n in range(16):
        a(f"v_writelane_b32 v1, s{80 + n}, {n}")
    a("s_lshl_b32 s76, s2, 3")
    a(f"s_add_u32 s76, s76, s{sW}")
    a("s_lshl_b32 s76, s76, 6")
    a(f"s_add_u32 s76, s76, {WS_STAMP}")
    a("v_lshlrev_b32 v2, 2, v0")
    a("s_mov_b64 exec, 0xffff")
    a(f"buffer_store_dword v1, v2, {sr(S_WS)}, s76 offen")


def srd(a, s, ptr, size):
    a(f"s_mov_b32 s{s}, s{ptr}")
    a(f"s_mov_b32 s{s + 1}, s{ptr + 1}")
    a(f"s_mov_b32 s{s + 2}, {size}")
    a(f"s_mov_b32 s{s + 3}, 0x00020000")


pX, pWQKV, pWO, pG, pU, pWD, pOUT, pDBG, pWS = 56, 58, 60, 64, 66, 68, 70, 72, 74
S_T, S_X, S_W0, S_W1, S_W3, S_WS = 4, 8, 12, 16, 20, 24
R_OUT, R_H0, R_H1, R_WT = 4, 12, 16, 20
sW, sTT, sHF, sRB, sCB, sROT, sISC, sISV, sSTR = 28, 29, 30, 31, 32, 33, 34, 35, 36
sCOL = 37
sXROW, sLW = 42, 43
T0, T1, T2, T3 = 44, 45, 46, 47
sU0, sXCD, sKW0, sKW1, sT, sG = 48, 49, 50, 51, 52, 53
tHEAD, tQB, tIT, tFH, tFW, tTT = 29, 30, 33, 36, 37, 38
tVM = 54

X0, XB = 0, 16384
W0, WB = 32768, 40960
CSL = W0 + 2 * WB
RSL = W0 + 3 * WB
XA, WA, WA2 = 8, 12, 17
VXS, VW0, VW1, VW3, L16, MASK, ASRC, STV, POLL = 22, 23, 24, 25, 26, 27, 28, 30, 31
FA, FB = 64, 88
ACC = 128


def x_issue(st):
    buf = X0 + (st & 1) * XB
    return [[f"s_add_u32 s{T0}, s{sROT}, {st}",
             f"s_and_b32 s{T0}, s{T0}, 7",
             f"s_lshl_b32 s{T0}, s{T0}, 7",
             f"s_add_u32 m0, s{sLW}, {buf}",
             f"s_add_u32 s{T0}, s{T0}, s{sXROW}",
             f"buffer_load_dwordx4 v{VXS}, {sr(S_X)}, s{T0} offen lds"],
            [f"s_add_u32 m0, s{sLW}, {buf + 8192}",
             f"s_add_u32 s{T0}, s{T0}, 0x10000",
             f"buffer_load_dwordx4 v{VXS}, {sr(S_X)}, s{T0} offen lds"]]


def w_issue(st):
    buf = W0 + (st % 3) * WB
    r = []
    for j in range(5):
        g = []
        if j == 0:
            g += [f"s_add_u32 s{T1}, s{sROT}, {st}",
                  f"s_and_b32 s{T1}, s{T1}, 7",
                  f"s_lshl_b32 s{T1}, s{T1}, 6",
                  f"s_mul_i32 s{sKW1}, s{T1}, s{sSTR}",
                  f"s_mul_i32 s{sKW0}, s{T1}, 3072"]
        srx = S_W0 if j == 0 else (S_W1 if j < 3 else S_W3)
        vv = VW0 if j == 0 else (VW1 if j < 3 else VW3)
        g += [f"s_add_u32 m0, s{sLW}, {buf + j * 8192}",
              f"s_add_u32 s{T1}, s{sKW0 if j == 0 else sKW1}, s{sCOL + j}",
              f"buffer_load_dwordx4 v{vv}, {sr(srx)}, s{T1} offen lds"]
        r.append(g)
    return r


def p1_reads(st, ks, F):
    r = [f"ds_read_b128 {vr(F, 4)}, v{XA + ks} offset:{(st & 1) * XB}"]
    b = st % 3
    base, off = (WA, b * WB) if b < 2 else (WA2, 0)
    for s in range(5):
        for t2 in range(2):
            r.append(f"ds_read_b64_tr_b16 {vr(F + 4 + 4 * s + 2 * t2, 2)}, v{base + s} offset:{off + ks * 2048 + t2 * 512}")
    return r


def p1_kstep(F, isv, reads, blocks, first=False):
    res = []
    rsplit = [3, 3, 3, 2, 0]
    ri = 0
    for s in range(5):
        w = F + 4 + 4 * s
        c = "0" if first else None
        res.append(mfma(ACC, F, w, c) if (s == 0 and isv) else mfma(ACC + 16 * s, w, F, c))
        if reads:
            res += reads[ri:ri + rsplit[s]]
            ri += rsplit[s]
        res += blocks.get(s, [])
    return res


def reduce64(v, t):
    r = []
    for m in ["quad_perm:[1,0,3,2]", "quad_perm:[2,3,0,1]", "row_ror:4", "row_ror:8"]:
        r += ["s_nop 1", f"v_add_f32_dpp v{v}, v{v}, v{v} {m} row_mask:0xf bank_mask:0xf"]
    for p in ["v_permlane16_swap_b32", "v_permlane32_swap_b32"]:
        r += [f"v_mov_b32 v{t}, v{v}", "s_nop 1", f"{p} v{v}, v{t}", f"v_add_f32 v{v}, v{v}, v{t}"]
    return r


def tr_addr(a, dst, t_a, t_b):
    a(f"v_lshrrev_b32 v{t_a}, 5, v0")
    a(f"v_bfe_u32 v{t_b}, v0, 2, 2")
    a(f"v_lshl_add_u32 v{dst}, v{t_a}, 2, v{t_b}")
    a(f"v_lshlrev_b32 v{dst}, 7, v{dst}")
    a(f"v_and_b32 v{t_a}, 1, v0")
    a(f"v_lshl_add_u32 v{dst}, v{t_a}, 6, v{dst}")
    a(f"v_bfe_u32 v{t_a}, v0, 4, 1")
    a(f"v_lshl_add_u32 v{dst}, v{t_a}, 4, v{dst}")
    a(f"v_bfe_u32 v{t_a}, v0, 1, 1")
    a(f"v_lshl_add_u32 v{dst}, v{t_a}, 3, v{dst}")
    a(f"v_lshrrev_b32 v{t_b}, 1, v{t_b}")
    a(f"v_lshl_add_u32 v{dst}, v{t_b}, 5, v{dst}")


def gen_p1(a):
    a("s_cmp_ge_u32 s2, 256")
    a("s_cbranch_scc1 L_exit")
    stamp(a, 0)
    a(f"s_load_dwordx4 s[{pX}:{pX + 3}], s[0:1], 0")
    a(f"s_load_dwordx2 s[{pWO}:{pWO + 1}], s[0:1], 16")
    a(f"s_load_dwordx4 s[{pG}:{pG + 3}], s[0:1], 32")
    a(f"s_load_dwordx4 s[{pWD}:{pWD + 3}], s[0:1], 48")
    a(f"s_load_dwordx4 s[{pDBG}:{pDBG + 3}], s[0:1], 64")
    a("v_lshrrev_b32 v1, 6, v0")
    a("v_and_b32 v0, 63, v0")
    a(f"v_readfirstlane_b32 s{sW}, v1")
    a(f"s_and_b32 s{sXCD}, s2, 7")
    a(f"s_lshr_b32 s{T1}, s2, 3")
    a(f"s_and_b32 s{sRB}, s{sXCD}, 1")
    a(f"s_lshl_b32 s{sRB}, s{sRB}, 3")
    a(f"s_and_b32 s{T2}, s{T1}, 7")
    a(f"s_add_u32 s{sRB}, s{sRB}, s{T2}")
    a(f"s_lshr_b32 s{sCB}, s{sXCD}, 1")
    a(f"s_lshl_b32 s{sCB}, s{sCB}, 2")
    a(f"s_lshr_b32 s{T3}, s{T1}, 3")
    a(f"s_add_u32 s{sCB}, s{sCB}, s{T3}")
    a(f"s_lshl_b32 s{T3}, s{T3}, 1")
    a(f"s_add_u32 s{sROT}, s{T2}, s{T3}")
    a(f"s_and_b32 s{sROT}, s{sROT}, 7")
    a(f"s_and_b32 s{sTT}, s{sW}, 3")
    a(f"s_lshr_b32 s{sHF}, s{sW}, 2")
    a(f"s_lshl_b32 s{sLW}, s{sW}, 10")
    a(f"s_cmp_ge_u32 s{sCB}, 6")
    a(f"s_cselect_b32 s{sISV}, 1, 0")
    a(f"s_sub_u32 s{T0}, s{sCB}, 14")
    a(f"s_mul_i32 s{T0}, s{T0}, 5")
    a(f"s_add_u32 s{T1}, s{sCB}, 10")
    a(f"s_lshl_b32 s{T2}, s{sCB}, 1")
    a(f"s_cmp_ge_u32 s{sCB}, 14")
    a(f"s_cselect_b32 s{sISC}, 1, 0")
    a(f"s_cselect_b32 s{sISV}, 0, s{sISV}")
    a(f"s_cselect_b32 s{sU0}, s{T0}, s{T1}")
    a(f"s_movk_i32 s{sSTR}, 3584")
    a(f"s_cselect_b32 s{sSTR}, 3072, s{sSTR}")
    a(f"s_add_u32 s{T0}, s{sU0}, 1")
    a(f"s_add_u32 s{T1}, s{sU0}, 3")
    a(f"s_cmp_eq_u32 s{sISC}, 1")
    a(f"s_cselect_b32 s{T0}, s{T0}, s{T2}")
    a(f"s_cselect_b32 s{T1}, s{T1}, s{T2}")
    a(f"s_lshl_b32 s{sCOL}, s{sU0}, 7")
    a(f"s_lshl_b32 s{sCOL + 1}, s{T0}, 7")
    a(f"s_lshl_b32 s{sCOL + 3}, s{T1}, 7")
    a(f"s_add_u32 s{sCOL + 2}, s{sCOL + 1}, 128")
    a(f"s_add_u32 s{sCOL + 4}, s{sCOL + 3}, 128")
    a(f"s_mov_b32 s{sKW0}, {OOB}")
    for j in range(5):
        a(f"s_cmp_eq_u32 s{sW}, {j}")
        a(f"s_cmov_b32 s{sKW0}, s{sCOL + j}")
    a(f"s_cmp_eq_u32 s{sW}, 0")
    a(f"s_cselect_b32 s{sKW1}, 3072, s{sSTR}")
    a(f"s_and_b32 s{sG}, s{sXCD}, 1")
    a(f"s_lshl1_add_u32 s{sG}, s{sROT}, s{sG}")
    a(f"s_lshl_b32 s{T0}, s{sG}, 5")
    a(f"s_mul_i32 s{T0}, s{T0}, s{sKW1}")
    a(f"s_add_u32 s{sKW0}, s{sKW0}, s{T0}")
    if "norot" in OPT:
        a(f"s_mov_b32 s{sROT}, 0")
    if "rot2" in OPT:
        a(f"s_and_b32 s{sROT}, s{sROT}, 4")
    if "rot4" in OPT:
        a(f"s_and_b32 s{sROT}, s{sROT}, 6")
    a(f"s_lshl_b32 s{T2}, s{sW}, 3")
    a(f"s_mul_i32 s{T3}, s{T2}, 3072")
    a(f"s_add_u32 s{sCOL}, s{sCOL}, s{T3}")
    a(f"s_mul_i32 s{T3}, s{T2}, s{sSTR}")
    for j in range(1, 5):
        a(f"s_add_u32 s{sCOL + j}, s{sCOL + j}, s{T3}")
    a(f"s_lshl_b32 s{sXROW}, s{sRB}, 7")
    a(f"s_add_u32 s{sXROW}, s{sXROW}, s{T2}")
    a(f"s_lshl_b32 s{sXROW}, s{sXROW}, 10")
    a(f"v_lshlrev_b32 v{L16}, 4, v0")
    a("v_lshrrev_b32 v1, 3, v0")
    a("v_and_b32 v2, 7, v0")
    a(f"v_mul_u32_u24 v5, s{sKW1}, v1")
    a("v_lshl_add_u32 v5, v2, 4, v5")
    a(f"v_add_u32 v3, s{T2}, v1")
    a("v_bfe_u32 v3, v3, 1, 3")
    a("v_xor_b32 v3, v3, v2")
    a("v_lshlrev_b32 v3, 4, v3")
    a(f"v_lshl_add_u32 v{VXS}, v1, 10, v3")
    a("v_and_b32 v3, 2, v1")
    a("v_xor_b32 v6, v3, v2")
    a("v_lshlrev_b32 v6, 4, v6")
    a(f"v_lshl_add_u32 v{ASRC}, v1, 10, v6")
    a("v_lshlrev_b32 v3, 1, v3")
    a("v_xor_b32 v3, v3, v2")
    a("v_lshlrev_b32 v3, 4, v3")
    a("v_mul_u32_u24 v4, 3072, v1")
    a(f"v_add_u32 v{VW0}, v4, v3")
    a(f"v_mul_u32_u24 v4, s{sSTR}, v1")
    a(f"v_add_u32 v{VW1}, v4, v3")
    a("v_xor_b32 v3, 32, v3")
    a(f"v_add_u32 v{VW3}, v4, v3")
    a("s_waitcnt lgkmcnt(0)")
    srd(a, S_X, pX, 2097152)
    srd(a, S_W0, pWQKV, 1572864)
    a(f"s_cmp_eq_u32 s{sISC}, 1")
    a(f"s_cselect_b32 s{S_W1}, s{pWQKV}, s{pG}")
    a(f"s_cselect_b32 s{S_W1 + 1}, s{pWQKV + 1}, s{pG + 1}")
    a(f"s_mov_b32 s{S_W1 + 2}, 1835008")
    a(f"s_cselect_b32 s{S_W1 + 2}, 1572864, s{S_W1 + 2}")
    a(f"s_mov_b32 s{S_W1 + 3}, 0x00020000")
    a(f"s_cselect_b32 s{S_W3}, s{pWQKV}, s{pU}")
    a(f"s_cselect_b32 s{S_W3 + 1}, s{pWQKV + 1}, s{pU + 1}")
    a(f"s_mov_b32 s{S_W3 + 2}, s{S_W1 + 2}")
    a(f"s_mov_b32 s{S_W3 + 3}, 0x00020000")
    srd(a, S_WS, pWS, WS_SIZE)
    a(f"s_cmp_lt_u32 s{sW}, 3")
    a(f"s_cselect_b32 s{S_T}, s{S_W1}, s{S_W3}")
    a(f"s_cselect_b32 s{S_T + 1}, s{S_W1 + 1}, s{S_W3 + 1}")
    a(f"s_cmp_eq_u32 s{sW}, 0")
    a(f"s_cselect_b32 s{S_T}, s{S_W0}, s{S_T}")
    a(f"s_cselect_b32 s{S_T + 1}, s{S_W0 + 1}, s{S_T + 1}")
    a(f"s_cselect_b32 s{S_T + 2}, s{S_W0 + 2}, s{S_W1 + 2}")
    a(f"s_mov_b32 s{S_T + 3}, 0x00020000")
    if "probe" in OPT: stamp(a, 3)
    a(f"s_or_b32 s{T0}, s2, s{sW}")
    a(f"s_cmp_lg_u32 s{T0}, 0")
    a("s_cbranch_scc1 L_nozero")
    a("v_mov_b32 v1, 0")
    a("v_lshlrev_b32 v2, 8, v0")
    a(f"s_mov_b32 s{T0}, {WS_CNT}")
    a(f"buffer_store_dword v1, v2, {sr(S_WS)}, s{T0} offen sc1")
    a("L_nozero:")
    RW, CW = 32, 40
    a(f"s_lshl_b32 s{sT}, s2, 3")
    a(f"s_add_u32 s{sT}, s{sT}, s{sW}")
    a(f"s_lshl_b32 s{T0}, s{sT}, 10")
    a(f"buffer_load_dwordx4 {vr(RW, 4)}, v{L16}, {sr(S_X)}, s{T0} offen")
    if "probe" in OPT:
        a("s_waitcnt vmcnt(0)")
        stamp(a, 4)
    a(f"s_lshl_b32 s{T1}, s{sKW1}, 3")
    for q in range(4):
        a(f"buffer_load_dwordx4 {vr(CW + 4 * q, 4)}, v5, {sr(S_T)}, s{sKW0} offen")
        if q != 3:
            a(f"s_add_u32 s{sKW0}, s{sKW0}, s{T1}")
    if "probe" in OPT:
        a("s_waitcnt vmcnt(0)")
        stamp(a, 5)
        for g in x_issue(0): a(g)
        a("s_waitcnt vmcnt(0)")
        stamp(a, 6)
        for g in w_issue(0): a(g)
        a("s_waitcnt vmcnt(0)")
        stamp(a, 7)
    else:
        for g in x_issue(0) + w_issue(0): a(g)
    a(f"s_mul_i32 s{T0}, s2, 5")
    a(f"s_add_u32 s{T0}, s{T0}, s{sW}")
    a(f"s_sub_u32 s{T0}, s{T0}, 3")
    a(f"s_and_b32 s{T1}, s{T0}, 7")
    a(f"s_lshr_b32 s{T2}, s{T0}, 3")
    a(f"s_mul_i32 s{T3}, s{T1}, 144")
    a(f"s_add_u32 s{T3}, s{T3}, s{T2}")
    a(f"s_lshl_b32 s{T3}, s{T3}, 11")
    a(f"s_add_u32 s{T3}, s{T3}, {WS_WT}")
    a(f"s_cmp_lt_u32 s{T0}, 1152")
    a(f"s_cselect_b32 s{T3}, s{T3}, {OOB}")
    a(f"s_cmp_ge_u32 s{sW}, 3")
    a(f"s_cselect_b32 s{tVM}, s{T3}, {OOB}")
    a(f"s_cmp_lt_u32 s{T2}, 112")
    a(f"s_cselect_b32 s{S_T}, s{pWD}, s{pWO}")
    a(f"s_cselect_b32 s{S_T + 1}, s{pWD + 1}, s{pWO + 1}")
    a(f"s_mov_b32 s{S_T + 2}, 1835008")
    a(f"s_cselect_b32 s{S_T + 2}, s{S_T + 2}, 524288")
    a(f"s_cselect_b32 s{T0}, 0, 112")
    a(f"s_sub_u32 s{T2}, s{T2}, s{T0}")
    a(f"s_lshl_b32 s{T2}, s{T2}, 14")
    a(f"s_lshl_b32 s{T1}, s{T1}, 7")
    a(f"s_add_u32 s{T2}, s{T2}, s{T1}")
    a(f"s_cmp_eq_u32 s{tVM}, {OOB}")
    a(f"s_cselect_b32 s{T2}, {OOB}, s{T2}")
    a(f"s_add_u32 m0, s{sLW}, {CSL}")
    a(f"s_add_u32 s{T1}, s{T2}, 8192")
    a(f"buffer_load_dwordx4 v{ASRC}, {sr(S_T)}, s{T2} offen lds")
    a(f"s_add_u32 m0, s{sLW}, {CSL + 8192}")
    a("s_nop 0")
    a(f"buffer_load_dwordx4 v{ASRC}, {sr(S_T)}, s{T1} offen lds")
    if "probe" in OPT:
        a("s_waitcnt vmcnt(0)")
        stamp(a, 8)
    a("v_and_b32 v1, 31, v0")
    a("v_lshrrev_b32 v2, 5, v0")
    a("v_bfe_u32 v3, v0, 1, 3")
    a("v_xor_b32 v3, v3, v2")
    a("v_lshlrev_b32 v3, 4, v3")
    a("v_lshl_add_u32 v3, v1, 7, v3")
    a(f"s_lshl_b32 s{T0}, s{sTT}, 12")
    a(f"v_add_u32 v{XA}, s{T0}, v3")
    for i in range(1, 4):
        a(f"v_xor_b32 v{XA + i}, {32 * i}, v{XA}")
    a("v_bfe_u32 v3, v0, 2, 2")
    a("v_lshl_add_u32 v4, v2, 3, v3")
    a("v_lshlrev_b32 v4, 7, v4")
    a("v_and_b32 v5, 3, v0")
    a("v_lshl_add_u32 v4, v5, 3, v4")
    a(f"v_add_u32 v4, {W0}, v4")
    a("v_and_b32 v3, 2, v3")
    a("v_bfe_u32 v5, v0, 4, 1")
    a("v_xor_b32 v3, v3, v5")
    a(f"s_lshl_b32 s{T0}, s{sHF}, 1")
    a(f"v_xor_b32 v6, s{T0}, v3")
    a(f"v_lshl_add_u32 v{WA}, v6, 5, v4")
    a("v_lshl_add_u32 v4, v5, 14, v4")
    a(f"s_add_u32 s{T0}, s{sHF}, 1")
    a(f"s_lshl_b32 s{T0}, s{T0}, 13")
    a(f"v_add_u32 v4, s{T0}, v4")
    for c in range(4):
        a(f"v_xor_b32 v6, {c}, v3")
        a(f"v_lshl_add_u32 v{WA + 1 + c}, v6, 5, v4")
    for i in range(5):
        a(f"v_add_u32 v{WA2 + i}, {2 * WB}, v{WA + i}")
    a(f"v_mov_b32 v{MASK}, 0xffff0000")
    tr_addr(a, 7, 1, 2)
    a(f"s_add_u32 s{T0}, s{sLW}, {CSL}")
    a(f"v_add_u32 v7, s{T0}, v7")
    a("v_xor_b32 v6, 32, v7")
    if "probe" in OPT: stamp(a, 9)
    for g in x_issue(1) + w_issue(1): a(g)
    stamp(a, 1)
    if "probe" in OPT:
        a("s_waitcnt vmcnt(0)")
        stamp(a, 10)
    a("s_waitcnt vmcnt(20)")
    RU = 112
    for i in range(4):
        a(f"v_lshlrev_b32 v{RU + 2 * i}, 16, v{RW + i}")
        a(f"v_and_b32 v{RU + 2 * i + 1}, v{MASK}, v{RW + i}")
    a(f"v_add_f32 v1, v{RU}, v{RU + 1}")
    for i in range(2, 8):
        a(f"v_add_f32 v1, v1, v{RU + i}")
    a(reduce64(1, 2))
    a(f"v_mul_f32 v1, {hx(f2u(1.0 / 512))}, v1")
    for i in range(8):
        a(f"v_sub_f32 v{RU + i}, v{RU + i}, v1")
    a(f"v_mul_f32 v3, v{RU}, v{RU}")
    for i in range(1, 8):
        a(f"v_fmac_f32 v3, v{RU + i}, v{RU + i}")
    a(reduce64(3, 2))
    a(f"v_mul_f32 v3, {hx(f2u(1.0 / 512))}, v3")
    a("v_cvt_pk_bf16_f32 v3, v3, v3")
    a(f"v_and_b32 v3, v{MASK}, v3")
    a(f"v_add_f32 v3, {hx(f2u(1e-5))}, v3")
    a("v_cvt_pk_bf16_f32 v3, v3, v3")
    a(f"v_and_b32 v3, v{MASK}, v3")
    a("v_sqrt_f32 v3, v3")
    a("v_sub_f32 v1, 0, v1")
    a("v_cvt_pk_bf16_f32 v1, v3, v1")
    a(f"s_lshl_b32 s{T0}, s{sT}, 2")
    a(f"s_add_u32 s{T0}, s{T0}, {WS_ST}")
    a("s_mov_b64 exec, 1")
    a(f"buffer_store_dword v1, off, {sr(S_WS)}, s{T0} sc1")
    a("s_mov_b64 exec, -1")
    a("s_waitcnt vmcnt(17)")
    for i in range(4):
        a(f"v_lshlrev_b32 v{RU + 2 * i}, 16, v{CW + i}")
        a(f"v_and_b32 v{RU + 2 * i + 1}, v{MASK}, v{CW + i}")
    for q in range(1, 4):
        for i in range(4):
            a(f"v_lshlrev_b32 v2, 16, v{CW + 4 * q + i}")
            a(f"v_and_b32 v3, v{MASK}, v{CW + 4 * q + i}")
            a(f"v_add_f32 v{RU + 2 * i}, v{RU + 2 * i}, v2")
            a(f"v_add_f32 v{RU + 2 * i + 1}, v{RU + 2 * i + 1}, v3")
    a("s_nop 1")
    for i in range(4):
        a(f"v_permlane16_swap_b32 v{RU + 2 * i}, v{RU + 2 * i + 1}")
    for i in range(4):
        a(f"v_add_f32 v{RU + 2 * i}, v{RU + 2 * i}, v{RU + 2 * i + 1}")
    a("s_nop 1")
    a(f"v_permlane32_swap_b32 v{RU}, v{RU + 2}")
    a(f"v_permlane32_swap_b32 v{RU + 4}, v{RU + 6}")
    a(f"v_add_f32 v{RU}, v{RU}, v{RU + 2}")
    a(f"v_add_f32 v{RU + 4}, v{RU + 4}, v{RU + 6}")
    a("v_and_b32 v2, 8, v0")
    a("v_cmp_eq_u32 vcc, 0, v2")
    a(f"v_add_f32_dpp v{RU}, v{RU}, v{RU} row_ror:8 row_mask:0xf bank_mask:0xf")
    a(f"v_add_f32_dpp v{RU + 4}, v{RU + 4}, v{RU + 4} row_ror:8 row_mask:0xf bank_mask:0xf")
    a("v_and_b32 v3, 7, v0")
    a("v_lshlrev_b32 v3, 3, v3")
    a("v_lshrrev_b32 v4, 4, v0")
    a("v_add_u32 v3, v3, v4")
    a("v_lshrrev_b32 v2, 1, v2")
    a("v_add_u32 v3, v3, v2")
    a("v_lshlrev_b32 v3, 6, v3")
    a(f"v_cndmask_b32 v1, v{RU + 4}, v{RU}, vcc")
    a(f"s_mul_i32 s{T0}, s{sCB}, 5")
    a(f"s_add_u32 s{T0}, s{T0}, s{sW}")
    a(f"s_lshl_b32 s{T0}, s{T0}, 12")
    a(f"s_add_u32 s{sT}, s{T0}, {WS_CS}")
    a(f"s_cmp_lt_u32 s{sW}, 5")
    a(f"s_cselect_b32 s{sT}, s{sT}, {OOB}")
    a(f"s_lshl2_add_u32 s{T0}, s{sG}, s{sT}")
    a(f"buffer_store_dword v1, v3, {sr(S_WS)}, s{T0} offen sc1")
    a("s_waitcnt vmcnt(9)")
    for ap in range(2):
        for t in range(2):
            a(f"ds_read_b64_tr_b16 {vr(CW + 4 * ap + 2 * t, 2)}, v{7 - ap} offset:{t * 8192}")
    a("s_waitcnt lgkmcnt(0)")
    a(f"buffer_store_dwordx4 {vr(CW, 4)}, v{L16}, {sr(S_WS)}, s{tVM} offen sc1")
    a(f"buffer_store_dwordx4 {vr(CW + 4, 4)}, v{L16}, {sr(S_WS)}, s{tVM} offen offset:1024 sc1")
    if "probe" in OPT:
        stamp(a, 11)
        a("s_waitcnt vmcnt(0)")
        stamp(a, 12)
    a("s_barrier")
    stamp(a, 2)
    if "probe" in OPT:
        global NOSTAMP
        NOSTAMP = True
    a(p1_reads(0, 0, FA))
    a(f"s_cmp_eq_u32 s{sISV}, 1")
    a("s_cbranch_scc1 L_main1")
    for isv in range(2):
        a(f"L_main{isv}:")
        for st in range(8):
            wi = w_issue(st + 2) if st + 2 < 8 else [[]] * 5
            for ks in range(3):
                F, Fn = (FA, FB) if ks % 2 == 0 else (FB, FA)
                blocks = {}
                if ks < 2:
                    blocks = {3: wi[2 * ks], 4: wi[2 * ks + 1]}
                else:
                    blocks = {4: wi[4]}
                a("s_waitcnt lgkmcnt(0)")
                a(p1_kstep(F, isv, p1_reads(st, ks + 1, Fn), blocks, first=(st == 0 and ks == 0)))
            if st == 7:
                a("s_waitcnt lgkmcnt(0)")
                a(p1_kstep(FB, isv, None, {}))
                break
            n = 9 if st == 0 else (5 if st <= 5 else 0)
            a(f"s_waitcnt vmcnt({n}) lgkmcnt(0)")
            if st == 6:
                a(f"s_cmp_lg_u32 s{sW}, 0")
                a(f"s_cbranch_scc1 L_g_ok{isv}")
                a(f"s_mov_b32 s{T1}, {SPIN}")
                a(f"L_g_poll{isv}:")
                a(f"v_readfirstlane_b32 s{T0}, v{POLL}")
                a(f"s_cmp_ge_u32 s{T0}, 256")
                a(f"s_cbranch_scc1 L_g_ok{isv}")
                a("s_sleep 1")
                a(f"global_load_dword v{POLL}, v1, s[{pDBG}:{pDBG + 1}] sc1")
                a("s_waitcnt vmcnt(0)")
                a(f"s_sub_u32 s{T1}, s{T1}, 1")
                a(f"s_cmp_lg_u32 s{T1}, 0")
                a(f"s_cbranch_scc1 L_g_poll{isv}")
                a(f"L_g_ok{isv}:")
            a("s_barrier")
            blocks = {}
            if st + 2 < 8:
                xi = x_issue(st + 2)
                blocks = {3: xi[0], 4: xi[1]}
            if st == 1:
                blocks[2] = [f"s_cmp_lg_u32 s{sW}, 0", f"s_cbranch_scc1 L_nosig{isv}",
                             "v_mov_b32 v1, 0", "v_mov_b32 v2, 1", "s_mov_b64 exec, 1",
                             f"global_atomic_add v1, v2, s[{pDBG}:{pDBG + 1}] sc1",
                             "s_mov_b64 exec, -1", f"L_nosig{isv}:"]
            if st == 5:
                blocks[2] = [f"s_cmp_lg_u32 s{sW}, 0", f"s_cbranch_scc1 L_nopl{isv}",
                             f"global_load_dword v{POLL}, v1, s[{pDBG}:{pDBG + 1}] sc1", f"L_nopl{isv}:"]
            if st == 6:
                b = [f"s_lshl_b32 s{T0}, s{sW}, 12", f"s_add_u32 m0, s{T0}, {CSL}", "s_nop 0"]
                for q in range(4):
                    b.append(f"buffer_load_dwordx4 v{L16}, {sr(S_WS)}, s{sT} offen offset:{q * 1024} sc1 lds")
                blocks[3] = b
                blocks[4] = [f"s_lshl_b32 s{T0}, s{sRB}, 2", f"s_add_u32 s{sT}, s{T0}, s{sTT}",
                             f"s_lshl_b32 s{T0}, s{sT}, 7", f"s_add_u32 s{T0}, s{T0}, {WS_ST}",
                             "v_and_b32 v2, 31, v0", "v_lshlrev_b32 v2, 2, v2",
                             f"buffer_load_dword v{STV}, v2, {sr(S_WS)}, s{T0} offen sc1"]
            a(p1_kstep(FB, isv, p1_reads(st + 1, 0, FA), blocks))
        if isv == 0:
            a("s_branch L_epi")
    a("L_epi:")
    stamp(a, 3)
    a("v_and_b32 v1, 31, v0")
    a("v_lshrrev_b32 v2, 5, v0")
    a("v_lshlrev_b32 v2, 5, v2")
    a("v_lshl_add_u32 v3, v1, 6, v2")
    a(f"s_lshl_b32 s{T0}, s{sHF}, 11")
    a(f"s_add_u32 s{T0}, s{T0}, {CSL}")
    a(f"v_add_u32 v3, s{T0}, v3")
    a("v_and_b32 v4, 15, v0")
    a("v_lshl_add_u32 v4, v4, 6, v2")
    a("v_bfe_u32 v5, v0, 4, 1")
    a("v_lshl_add_u32 v4, v5, 13, v4")
    a(f"s_lshl_b32 s{T0}, s{sHF}, 12")
    a(f"s_add_u32 s{T0}, s{T0}, {CSL + 4096}")
    a(f"v_add_u32 v4, s{T0}, v4")
    a("s_waitcnt vmcnt(0)")
    a("s_barrier")
    CP = 68
    for s in range(5):
        ad, off = ("v3", 0) if s == 0 else ("v4", (s - 1) * 1024)
        a(f"ds_read_b128 {vr(CP + 8 * s, 4)}, {ad} offset:{off}")
        a(f"ds_read_b128 {vr(CP + 8 * s + 4, 4)}, {ad} offset:{off + 16}")
    SD, RS = 18, 16
    a(f"v_lshlrev_b32 v{SD}, 16, v{STV}")
    a(f"v_rcp_f32 v{RS}, v{SD}")
    a(f"v_and_b32 v{FA}, v{MASK}, v{STV}")
    a(f"v_mov_b32 v{FA + 1}, v{FA}")
    a(f"v_mov_b32 v{FA + 2}, v{FA}")
    a(f"v_mov_b32 v{FA + 3}, 0")
    a(f"s_lshl_b32 s{sG}, s{sU0}, 2")
    a(f"s_lshl1_add_u32 s{sG}, s{sHF}, s{sG}")
    for s in range(5):
        w = CP + 8 * s
        a(f"s_waitcnt lgkmcnt({8 - 2 * s})")
        a(f"v_add_f32 v{w}, v{w}, v{w + 1}")
        a(f"v_add_f32 v{w + 2}, v{w + 2}, v{w + 3}")
        a(f"v_add_f32 v{w + 4}, v{w + 4}, v{w + 5}")
        a(f"v_add_f32 v{w + 6}, v{w + 6}, v{w + 7}")
        a(f"v_add_f32 v{w}, v{w}, v{w + 2}")
        a(f"v_add_f32 v{w + 4}, v{w + 4}, v{w + 6}")
        a(f"v_add_f32 v{w + 2}, v{w}, v{w + 4}")
        a(f"v_and_b32 v{w}, v{MASK}, v{w + 2}")
        a(f"v_sub_f32 v{w + 2}, v{w + 2}, v{w}")
        a(f"v_and_b32 v{w + 1}, v{MASK}, v{w + 2}")
        a(f"v_sub_f32 v{w + 2}, v{w + 2}, v{w + 1}")
        a(f"v_mov_b32 v{w + 3}, 0")
        if s == 0:
            a(f"s_cmp_eq_u32 s{sISV}, 1")
            a("s_cbranch_scc1 L_c0v")
            a(mfma(ACC, w, FA))
            a("s_branch L_c0e")
            a("L_c0v:")
            a(mfma(ACC, FA, w))
            a("L_c0e:")
        else:
            a("s_nop 1")
            a(mfma(ACC + 16 * s, w, FA))
    a(f"s_cmp_eq_u32 s{sISV}, 1")
    a("s_cbranch_scc1 L_epiV")

    def qk_half(accb, tmpb):
        a(f"s_cmp_lt_u32 s{sG}, 32")
        a(f"s_cselect_b32 s{T0}, {hx(f2u(QSCALE))}, 1.0")
        a(f"v_mul_f32 v20, s{T0}, v{RS}")
        a(f"s_lshl_b32 s{T1}, s{sG}, 16")
        a(f"s_lshl_b32 s{T2}, s{sT}, 10")
        a(f"s_add_u32 s{T1}, s{T1}, s{T2}")
        for i in range(4):
            a(f"v_pk_mul_f32 {vr(accb + 2 * i, 2)}, {vr(accb + 2 * i, 2)}, v[20:21] op_sel_hi:[1,0]")
        for i in range(4):
            a(f"v_cvt_pk_bf16_f32 v{tmpb + i}, v{accb + 2 * i}, v{accb + 2 * i + 1}")
        a(f"buffer_store_dwordx4 {vr(tmpb, 4)}, v{L16}, {sr(S_WS)}, s{T1} offen sc1")

    qk_half(ACC, 112)
    a(f"s_add_u32 s{sG}, s{sG}, 1")
    qk_half(ACC + 8, 116)
    a("s_branch L_epi2")
    a("L_epiV:")
    a(f"s_lshl_b32 s{T0}, s{sW}, 8")
    a(f"s_add_u32 s{T0}, s{T0}, {RSL}")
    a("v_lshlrev_b32 v1, 2, v0")
    a(f"v_add_u32 v1, s{T0}, v1")
    a(f"ds_write_b32 v1, v{RS}")
    a("v_lshrrev_b32 v2, 5, v0")
    a("v_lshlrev_b32 v2, 4, v2")
    a(f"v_add_u32 v2, s{T0}, v2")
    a("s_waitcnt lgkmcnt(0)")
    for g in range(4):
        a(f"ds_read_b128 {vr(32 + 4 * g, 4)}, v2 offset:{g * 32}")
    a("v_bfe_u32 v3, v0, 4, 1")
    a("v_lshlrev_b32 v3, 16, v3")
    a("v_lshrrev_b32 v4, 5, v0")
    a("v_lshl_add_u32 v3, v4, 8, v3")
    a("v_and_b32 v4, 15, v0")
    a("v_lshl_add_u32 v3, v4, 4, v3")
    a(f"s_lshl_b32 s{T1}, s{sG}, 16")
    a(f"s_lshl_b32 s{T2}, s{sT}, 10")
    a(f"s_add_u32 s{T1}, s{T1}, s{T2}")
    a("s_waitcnt lgkmcnt(0)")
    for i in range(8):
        a(f"v_pk_mul_f32 {vr(ACC + 2 * i, 2)}, {vr(ACC + 2 * i, 2)}, {vr(32 + 2 * i, 2)}")
    for i in range(8):
        a(f"v_cvt_pk_bf16_f32 v{112 + i}, v{ACC + 2 * i}, v{ACC + 2 * i + 1}")
    a(f"buffer_store_dwordx4 v[112:115], v3, {sr(S_WS)}, s{T1} offen sc1")
    a(f"buffer_store_dwordx4 v[116:119], v3, {sr(S_WS)}, s{T1} offen offset:512 sc1")
    a("L_epi2:")
    stamp(a, 4)

    def sig_qkv(lbl, mask):
        a("s_barrier")
        a(f"s_cmp_lg_u32 s{sW}, 0")
        a(f"s_cbranch_scc1 {lbl}")
        a(f"s_lshl_b32 s{T0}, s{sU0}, 8")
        a(f"s_add_u32 s{T0}, s{T0}, {WS_CNT}")
        a("v_lshlrev_b32 v1, 8, v0")
        a("v_mov_b32 v2, 1")
        a(f"s_mov_b64 exec, {mask}")
        a(f"buffer_atomic_add v2, v1, {sr(S_WS)}, s{T0} offen sc1")
        a("s_mov_b64 exec, -1")
        a(f"{lbl}:")

    a(f"s_cmp_eq_u32 s{sISC}, 1")
    a("s_cbranch_scc1 L_epiC")
    a(f"s_mul_i32 s{T3}, s{sT}, 112")
    a(f"s_lshl1_add_u32 s{T0}, s{sCB}, s{sHF}")
    a(f"s_lshl2_add_u32 s{T3}, s{T0}, s{T3}")
    a(f"s_lshl_b32 s{T3}, s{T3}, 10")
    a(f"s_add_u32 s{T3}, s{T3}, {WS_H}")
    a(f"v_mov_b32 v20, {hx(f2u(GC2))}")
    a(f"v_mov_b32 v21, {hx(f2u(GC1))}")
    for c in range(4):
        g = ACC + 16 * (1 + c)
        u = g + 8
        q = 32 + (c & 1) * 8
        o = 48 + c * 4
        for i in range(4):
            a(f"v_pk_mul_f32 {vr(g + 2 * i, 2)}, {vr(g + 2 * i, 2)}, {vr(RS, 2)} op_sel_hi:[1,0]")
        for i in range(4):
            a(f"v_pk_mul_f32 {vr(q + 2 * i, 2)}, {vr(g + 2 * i, 2)}, {vr(g + 2 * i, 2)}")
        for i in range(4):
            a(f"v_pk_fma_f32 {vr(q + 2 * i, 2)}, {vr(q + 2 * i, 2)}, v[20:21], v[20:21] op_sel:[0,0,1] op_sel_hi:[1,0,1]")
        for i in range(4):
            a(f"v_pk_mul_f32 {vr(q + 2 * i, 2)}, {vr(q + 2 * i, 2)}, {vr(g + 2 * i, 2)}")
        for i in range(8):
            a(f"v_exp_f32 v{q + i}, v{q + i}")
        for i in range(4):
            a(f"v_pk_mul_f32 {vr(g + 2 * i, 2)}, {vr(g + 2 * i, 2)}, {vr(u + 2 * i, 2)}")
        for i in range(4):
            a(f"v_pk_fma_f32 {vr(q + 2 * i, 2)}, {vr(q + 2 * i, 2)}, {vr(SD, 2)}, {vr(SD, 2)} op_sel_hi:[1,0,0]")
        for i in range(8):
            a(f"v_rcp_f32 v{q + i}, v{q + i}")
        a("s_nop 0")
        for i in range(4):
            a(f"v_pk_mul_f32 {vr(g + 2 * i, 2)}, {vr(g + 2 * i, 2)}, {vr(q + 2 * i, 2)}")
        for i in range(4):
            a(f"v_cvt_pk_bf16_f32 v{o + i}, v{g + 2 * i}, v{g + 2 * i + 1}")
        a(f"buffer_store_dwordx4 {vr(o, 4)}, v{L16}, {sr(S_WS)}, s{T3} offen offset:{c * 1024} sc1")
        if c == SIGPOS:
            a(f"s_waitcnt vmcnt({c + 1})")
            sig_qkv("L_sq_a", 1)
    a("s_branch L_p2")
    a("L_epiC:")
    a(f"s_add_u32 s{sG}, s{sU0}, s{sHF}")
    a(f"s_add_u32 s{sG}, s{sG}, 1")
    a(f"s_lshl_b32 s{sG}, s{sG}, 2")
    for c in range(4):
        qk_half(ACC + 16 * (1 + c), 32 + 8 * c)
        a(f"s_add_u32 s{sG}, s{sG}, 8")
        qk_half(ACC + 16 * (1 + c) + 8, 36 + 8 * c)
        if c != 3:
            a(f"s_sub_u32 s{sG}, s{sG}, 7")
    a("s_waitcnt vmcnt(0)")
    sig_qkv("L_sq_c", 31)


SIGPOS = 1

Q_, K_, NM, S0, S1, P_, O_, V_, G_, RING = 8, 12, 20, 36, 52, 68, 76, 92, 124, 188
AK, AV, A16, AOUT, AW = 236, 237, 238, 239, 240
NVGPR = 244


def att_step(i, ex=None, first=False):
    ex = ex or {}
    Sc, Sn = (S0, S1) if i % 2 == 0 else (S1, S0)
    Kn = K_ + 4 * ((i + 1) % 2)
    Vc = V_ + 8 * (i % 4)
    Vp = V_ + 8 * ((i - 1) % 4)
    e = lambda k: f"v_exp_f32 v{Sc + k}, v{Sc + k}"
    c = lambda k: f"v_cvt_pk_bf16_f32 v{P_ + k}, v{Sc + 2 * k}, v{Sc + 2 * k + 1}"
    r = [mfma(Sn, Kn, Q_, NM),
         f"ds_read_b128 {vr(Kn, 4)}, v{AK} offset:{(i + 3) * 2048}"]
    r += ex.get("qk", [])
    r += [e(0), e(1), e(2), e(3)]
    if not first:
        r.append(mfma(O_, Vp + 4, P_ + 4))
    if i % 2 == 0:
        r.append(f"s_mov_b64 exec, s[{tVM}:{tVM + 1}]")
        for d in (2, 3):
            vb = V_ + 8 * ((i + d) % 4)
            r.append(f"ds_read_b128 {vr(vb, 4)}, v{AV} offset:{(i + d) * 2048}")
            r.append(f"ds_read_b128 {vr(vb + 4, 4)}, v{AV} offset:{(i + d) * 2048 + 512}")
        r.append("s_mov_b64 exec, -1")
    r += ex.get("pv1", [])
    if "G2" in ex:
        r += [c(0), e(4), e(5), c(1)]
        r += [ex["G1"]] + ex.get("g1", [])
        r += [e(6), e(7), e(8), c(2), c(3), e(9)]
        r += ["s_nop 0", mfma(O_, Vc, P_)]
        if i % 2 == 1: r.append("s_waitcnt lgkmcnt(0)")
        r += ex.get("pv0", [])
        r += [e(10), e(11), c(4), e(12), c(5)]
        r += [ex["G2"]] + ex.get("g2", [])
        r += [e(13), e(14), e(15), c(6), c(7)]
    else:
        r += [c(0), e(4), e(5), c(1), e(6), e(7)]
        if "G1" in ex:
            r += [ex["G1"]]
        r += ex.get("g1", [])
        r += [e(8), c(2), c(3), e(9), e(10), e(11)]
        r.append(mfma(O_, Vc, P_))
        if i % 2 == 1: r.append("s_waitcnt lgkmcnt(0)")
        r += ex.get("pv0", [])
        r += [c(4), e(12), e(13), c(5), e(14), e(15), c(6), c(7)]
    r += ex.get("end", [])
    return r


def ring_loads(r):
    b = RING + 16 * r
    return [f"buffer_load_dwordx4 {vr(b, 4)}, v{A16}, {sr(R_H0)}, s{tFH} offen sc1",
            f"buffer_load_dwordx4 {vr(b + 4, 4)}, v{A16}, {sr(R_H1)}, s{tFH} offen sc1",
            f"buffer_load_dwordx4 {vr(b + 8, 4)}, v{A16}, {sr(R_WT)}, s{tFW} offen sc1",
            f"buffer_load_dwordx4 {vr(b + 12, 4)}, v{A16}, {sr(R_WT)}, s{tFW} offen offset:1024 sc1",
            f"s_add_u32 s{tFH}, s{tFH}, 1024",
            f"s_add_u32 s{tFW}, s{tFW}, 2048"]


def gm(r, n):
    b = RING + 16 * r
    return mfma(G_ + 16 * n, b + 8 + 4 * (n & 1), b + 4 * (n >> 1))


def adv(a):
    a(f"v_add_u32 v{AK}, 0x4000, v{AK}")
    a(f"v_add_u32 v{AV}, 0x4000, v{AV}")


def gen_p2(a):
    a("L_p2:")
    stamp(a, 5)
    a(f"v_mov_b32 v{A16}, v{L16}")
    a(f"s_lshr_b32 s{T1}, s2, 3")
    a(f"s_and_b32 s{T2}, s{T1}, 3")
    a(f"s_lshl2_add_u32 s{tHEAD}, s{sXCD}, s{T2}")
    a(f"s_lshr_b32 s{tQB}, s{T1}, 2")
    a(f"s_lshl_b32 s{T3}, s{sXCD}, 8")
    a(f"s_add_u32 s{T3}, s{T3}, {WS_CNT}")
    a("v_lshlrev_b32 v6, 11, v0")
    a(f"s_cmp_lg_u32 s{sW}, 0")
    a("s_cbranch_scc1 L_q_np")
    a("s_mov_b64 exec, 7")
    a(f"buffer_load_dword v7, v6, {sr(S_WS)}, s{T3} offen sc1")
    a("s_mov_b64 exec, -1")
    a("L_q_np:")
    a(f"s_mul_i32 s{T0}, s{tHEAD}, {224 * 1024}")
    a(f"s_add_u32 s{T0}, s{T0}, {WS_H}")
    a(f"s_add_u32 s{R_H0}, s{pWS}, s{T0}")
    a(f"s_addc_u32 s{R_H0 + 1}, s{pWS + 1}, 0")
    a(f"s_add_u32 s{R_H1}, s{R_H0}, {112 * 1024}")
    a(f"s_addc_u32 s{R_H1 + 1}, s{R_H0 + 1}, 0")
    a(f"s_mul_i32 s{tFH}, s{sW}, {14 * 1024}")
    a(f"s_add_u32 s{R_H0 + 2}, s{tFH}, {14 * 1024}")
    a(f"s_mov_b32 s{R_H1 + 2}, s{R_H0 + 2}")
    a(f"s_mul_i32 s{T0}, s{tQB}, {144 * 2048}")
    a(f"s_add_u32 s{T0}, s{T0}, {WS_WT}")
    a(f"s_add_u32 s{R_WT}, s{pWS}, s{T0}")
    a(f"s_addc_u32 s{R_WT + 1}, s{pWS + 1}, 0")
    a(f"s_lshl_b32 s{tFW}, s{tFH}, 1")
    a(f"s_lshl_b32 s{R_WT + 2}, s{R_H0 + 2}, 1")
    srd(a, R_OUT, pOUT, 2097152)
    a(f"v_mov_b32 v{AK}, v{A16}")
    a("v_lshrrev_b32 v2, 5, v0")
    a("v_and_b32 v3, 15, v0")
    a("v_lshlrev_b32 v3, 4, v3")
    a("v_lshl_add_u32 v3, v2, 8, v3")
    a(f"v_add_u32 v{AV}, 1024, v3")
    a(f"s_lshl_b32 s{T0}, s{sW}, 11")
    a(f"v_add_u32 v{AW}, s{T0}, v{A16}")
    a(f"v_add_u32 v{AW + 1}, 0x10000, v{AW}")
    a(f"v_add_u32 v{AW + 2}, 0x20000, v{AW}")
    a(f"s_lshr_b32 s{T0}, s{sW}, 2")
    a(f"s_lshl1_add_u32 s{tTT}, s{tHEAD}, s{T0}")
    a(f"s_lshl_b32 s{T0}, s{tTT}, 15")
    a(f"s_lshl_b32 s{T1}, s{tQB}, 7")
    a(f"s_add_u32 s{T0}, s{T0}, s{T1}")
    a(f"s_and_b32 s{T1}, s{sW}, 3")
    a(f"s_lshl_b32 s{T1}, s{T1}, 4")
    a(f"s_add_u32 s{T0}, s{T0}, s{T1}")
    a("v_and_b32 v1, 31, v0")
    a("v_lshlrev_b32 v1, 10, v1")
    a("v_lshl_add_u32 v1, v2, 6, v1")
    a(f"v_add_u32 v{AOUT}, s{T0}, v1")
    a(f"s_mov_b32 s{tVM}, 0x0000ffff")
    a(f"s_mov_b32 s{tVM + 1}, 0x0000ffff")
    a("v_and_b32 v3, 27, v0")
    a("v_cmp_eq_u32 vcc, 16, v3")
    a("v_mov_b32 v4, 0x3f803f80")
    a("v_mov_b32 v5, 0")
    a("v_cndmask_b32 v2, v5, v4, vcc")
    a("v_mov_b32 v3, v2")
    for i in range(0, 32, 2):
        a(f"v_mov_b64 v[{V_ + i}:{V_ + i + 1}], v[2:3]")
    for i in range(0, 64, 2):
        a(f"v_mov_b64 v[{G_ + i}:{G_ + i + 1}], 0")
    for i in range(0, 16, 2):
        a(f"v_mov_b64 v[{O_ + i}:{O_ + i + 1}], 0")
    a("s_waitcnt vmcnt(0)")
    a(f"s_cmp_lg_u32 s{sW}, 0")
    a("s_cbranch_scc1 L_q_ok")
    a(f"s_mov_b32 s{T1}, {SPIN}")
    a("s_mov_b64 exec, 7")
    a("L_q_poll:")
    a("v_cmp_gt_u32 vcc, 16, v7")
    a("s_cmp_eq_u64 vcc, 0")
    a("s_cbranch_scc1 L_q_done")
    a(f"buffer_load_dword v7, v6, {sr(S_WS)}, s{T3} offen sc1")
    a("s_waitcnt vmcnt(0)")
    a(f"s_sub_u32 s{T1}, s{T1}, 1")
    a(f"s_cmp_lg_u32 s{T1}, 0")
    a("s_cbranch_scc1 L_q_poll")
    a("L_q_done:")
    a("s_mov_b64 exec, -1")
    a("L_q_ok:")
    a("s_barrier")
    stamp(a, 6)
    a(f"s_or_b32 s{T0}, s{sW}, s{sISC}")
    a(f"s_cmp_lg_u32 s{T0}, 0")
    a("s_cbranch_scc1 L_h_ns")
    a(f"s_lshl_b32 s{T0}, s{sRB}, 8")
    a(f"s_add_u32 s{T0}, s{T0}, {WS_CNT + 24 * 256}")
    a("v_mov_b32 v2, 1")
    a("s_mov_b64 exec, 1")
    a(f"buffer_atomic_add v2, off, {sr(S_WS)}, s{T0} sc1")
    a("s_mov_b64 exec, -1")
    a("L_h_ns:")
    a(f"s_lshl_b32 s{T0}, s{tHEAD}, 16")
    a(f"s_add_u32 s{T0}, s{T0}, s{sLW}")
    a(f"s_lshl_b32 s{T1}, s{tQB}, 13")
    a(f"s_add_u32 s{T1}, s{T1}, s{T0}")
    a(f"buffer_load_dwordx4 {vr(Q_, 4)}, v{A16}, {sr(S_WS)}, s{T1} offen sc1")
    a(f"s_add_u32 s{T0}, s{T0}, {32 << 16}")
    a(f"s_lshl_b32 s{T2}, s{sW}, 11")

    def kv(i):
        return [f"s_add_u32 m0, s{T2}, {i * 16384}",
                f"s_add_u32 s{T1}, s{T0}, {32 << 16}",
                f"buffer_load_dwordx4 v{A16}, {sr(S_WS)}, s{T0} offen sc1 lds",
                f"s_add_u32 m0, m0, 1024",
                f"s_add_u32 s{T0}, s{T0}, 8192",
                f"buffer_load_dwordx4 v{A16}, {sr(S_WS)}, s{T1} offen sc1 lds"]
    for i in range(2):
        a(kv(i))
    a("s_waitcnt vmcnt(2)")
    a("s_barrier")
    for i in range(2, 8):
        a(kv(i))
    stamp(a, 7)
    a(f"ds_read_b128 {vr(K_, 4)}, v{AK}")
    a(f"ds_read_b128 {vr(K_ + 4, 4)}, v{AK} offset:2048")
    a(f"s_mov_b64 exec, s[{tVM}:{tVM + 1}]")
    for d in range(2):
        a(f"ds_read_b128 {vr(V_ + 8 * d, 4)}, v{AV} offset:{d * 2048}")
        a(f"ds_read_b128 {vr(V_ + 8 * d + 4, 4)}, v{AV} offset:{d * 2048 + 512}")
    a("s_mov_b64 exec, -1")
    a("s_waitcnt lgkmcnt(4)")
    a(mfma(S0, K_, Q_, "0"))
    a(mfma(S1, K_ + 4, Q_, "0"))
    a("s_nop 11")
    a(f"v_max3_f32 v1, v{S0}, v{S0 + 1}, v{S0 + 2}")
    for i in range(3, 31, 2):
        a(f"v_max3_f32 v1, v1, v{S0 + i}, v{S0 + i + 1}")
    a(f"v_max_f32 v1, v1, v{S0 + 31}")
    a("v_mov_b32 v2, v1")
    a("s_nop 1")
    a("v_permlane32_swap_b32 v1, v2")
    a("v_max_f32 v1, v1, v2")
    a(f"v_sub_f32 v2, {hx(f2u(-MAXOFF))}, v1")
    a("v_mov_b32 v3, v2")
    for i in range(0, 16, 2):
        a(f"v_mov_b64 v[{NM + i}:{NM + i + 1}], v[2:3]")
    a("s_nop 1")
    a(mfma(S0, K_, Q_, NM))
    a(f"ds_read_b128 {vr(K_, 4)}, v{AK} offset:4096")
    a("s_nop 7")
    a("s_waitcnt lgkmcnt(0)")
    a("s_nop 1")
    a(f"s_lshr_b32 s{T3}, s{tHEAD}, 1")
    a(f"s_lshl_b32 s{T3}, s{T3}, 8")
    a(f"s_add_u32 s{T3}, s{T3}, {WS_CNT + 24 * 256}")
    for i in range(8):
        ex = {}
        if i == 3:
            ex["pv0"] = [f"s_cmp_lg_u32 s{sW}, 0", "s_cbranch_scc1 L_h_np",
                         f"buffer_load_dword v7, off, {sr(S_WS)}, s{T3} sc1", "L_h_np:"]
        if i == 4:
            ex["end"] = ["s_waitcnt vmcnt(0)",
                         f"s_cmp_lg_u32 s{sW}, 0", "s_cbranch_scc1 L_h_ok",
                         f"s_mov_b32 s{T1}, {SPIN}",
                         "L_h_poll:",
                         f"v_readfirstlane_b32 s{T0}, v7",
                         f"s_cmp_ge_u32 s{T0}, 14", "s_cbranch_scc1 L_h_ok",
                         f"buffer_load_dword v7, off, {sr(S_WS)}, s{T3} sc1",
                         "s_waitcnt vmcnt(0)",
                         f"s_sub_u32 s{T1}, s{T1}, 1", f"s_cmp_lg_u32 s{T1}, 0", "s_cbranch_scc1 L_h_poll",
                         "L_h_ok:", "s_barrier"]
        if i in (5, 6, 7):
            l = ring_loads(i - 5)
            ex["qk"] = l[0:1]
            ex["pv1"] = l[1:3]
            ex["pv0"] = l[3:6]
        a(att_step(i, ex, first=(i == 0)))
    stamp(a, 8)
    a(f"s_mov_b32 s{tIT}, 5")
    a("L_loop:")
    adv(a)
    plan = [[(0, 0)], [(0, 1), (0, 2)], [(0, 3)], [(1, 0), (1, 1)], [(1, 2)], [(1, 3), (2, 0)], [(2, 1)], [(2, 2), (2, 3)]]
    for i in range(8):
        ex = {}
        ex["G1"] = gm(*plan[i][0])
        if len(plan[i]) > 1:
            ex["G2"] = gm(*plan[i][1])
        if i == 0: ex["qk"] = ["s_waitcnt vmcnt(8)"]
        if i == 2:
            l = ring_loads(0)
            ex["g1"] = l[0:2]
            ex["pv0"] = l[2:6]
        if i == 3: ex["pv1"] = ["s_waitcnt vmcnt(8)"]
        if i == 5:
            l = ring_loads(1)
            ex["g1"] = l[0:2]
            ex["pv0"] = l[2:6] + ["s_waitcnt vmcnt(8)"]
        if i == 7:
            ex["g2"] = ring_loads(2)
        a(att_step(i, ex))
    a(f"s_sub_u32 s{tIT}, s{tIT}, 1")
    a(f"s_cmp_lg_u32 s{tIT}, 0")
    a("s_cbranch_scc1 L_loop")
    adv(a)
    a("s_barrier")
    for i in range(8):
        base, off = (AW, i * 16384) if i < 4 else ((AW + 1, (i - 4) * 16384) if i < 6 else (AW + 2, (i - 6) * 16384))
        w0 = f"ds_write_b128 v{base}, {vr(G_ + 8 * i, 4)} offset:{off}"
        w1 = f"ds_write_b128 v{base}, {vr(G_ + 8 * i + 4, 4)} offset:{off + 1024}"
        ex = {"pv1": [w0, w1]} if i % 2 == 1 else {"pv0": [w0, w1]}
        a(att_step(i, ex))
    adv(a)
    a(f"s_and_b32 s{T0}, s{sW}, 3")
    a(f"s_lshl_b32 s{T0}, s{T0}, 14")
    a(f"s_add_u32 s{T0}, s{T0}, {112 * 2048}")
    a(f"s_mov_b32 s{R_WT + 2}, {144 * 2048}")
    for i in range(8):
        ex = {}
        if i < 4:
            l = [f"buffer_load_dwordx4 {vr(G_ + 16 * i + 4 * q, 4)}, v{A16}, {sr(R_WT)}, s{T0} offen offset:{q * 1024} sc1" for q in range(4)]
            ex["qk"] = l[0:1]
            ex["pv1"] = l[1:2]
            ex["pv0"] = l[2:4] + [f"s_add_u32 s{T0}, s{T0}, 4096"]
        if i == 4:
            ex["pv0"] = [f"buffer_load_dwordx4 {vr(RING, 4)}, v{AOUT}, {sr(S_X)}, 0 offen"]
        a(att_step(i, ex))
    a("s_nop 1")
    a(mfma(O_, V_ + 24 + 4, P_ + 4))
    a(f"s_lshl_b32 s{T0}, s{tQB}, 3")
    a(f"s_add_u32 s{T0}, s{T0}, s{sW}")
    a(f"s_lshl_b32 s{T0}, s{T0}, 5")
    a(f"s_add_u32 s{T0}, s{T0}, s{tHEAD}")
    a(f"s_lshl_b32 s{T0}, s{T0}, 10")
    a(f"s_add_u32 s{T3}, s{T0}, {WS_O}")
    a(f"v_mov_b32 v2, {hx(f2u(2.0 ** 120))}")
    a(f"v_mov_b32 v3, {hx(f2u(2.0 ** -90))}")
    a("s_waitcnt lgkmcnt(0)")
    a("s_nop 3")
    stamp(a, 9)
    a(f"v_add_f32 v1, |v{O_}|, |v{O_ + 1}|")
    for i in range(2, 8):
        a(f"v_add_f32 v1, v1, |v{O_ + i}|")
    a(f"v_cmp_lt_f32 s[40:41], v{O_ + 8}, v2")
    a("v_cmp_lt_f32 s[42:43], v1, v2")
    a(f"v_cmp_le_f32 s[50:51], 0.5, v{O_ + 8}")
    a("v_cmp_le_f32 vcc, v3, v1")
    a("s_or_b64 s[50:51], s[50:51], vcc")
    a("s_and_b64 s[40:41], s[40:41], s[42:43]")
    a("s_and_b64 s[40:41], s[40:41], s[50:51]")
    a("s_cmp_eq_u64 s[40:41], -1")
    a("s_cbranch_scc0 L_fallback")
    a("L_norm:")
    a(f"v_rcp_f32 v2, v{O_ + 8}")
    a("s_nop 0")
    for i in range(4):
        a(f"v_pk_mul_f32 {vr(O_ + 2 * i, 2)}, {vr(O_ + 2 * i, 2)}, v[2:3] op_sel_hi:[1,0]")
    for i in range(4):
        a(f"v_cvt_pk_bf16_f32 v{4 + i}, v{O_ + 2 * i}, v{O_ + 2 * i + 1}")
    a(f"buffer_store_dwordx4 v[4:7], v{A16}, {sr(S_WS)}, s{T3} offen sc1")
    a(f"s_lshl_b32 s{T0}, s{sW}, 14")
    a(f"s_add_u32 s{T1}, s{T0}, 0x8000")
    a(f"s_cmp_lt_u32 s{sW}, 6")
    a(f"s_cselect_b32 s{T0}, s{T0}, s{T1}")
    a(f"v_add_u32 v3, s{T0}, v{A16}")
    a("s_waitcnt vmcnt(0)")
    a("s_barrier")
    stamp(a, 10)
    a(f"s_cmp_lg_u32 s{sW}, 0")
    a("s_cbranch_scc1 L_o_ns")
    a(f"s_lshl_b32 s{T0}, s{tQB}, 8")
    a(f"s_add_u32 s{T0}, s{T0}, {WS_CNT + 40 * 256}")
    a("v_mov_b32 v1, 1")
    a("s_mov_b64 exec, 1")
    a(f"buffer_atomic_add v1, off, {sr(S_WS)}, s{T0} sc1")
    a("s_mov_b64 exec, -1")
    a("L_o_ns:")
    F_ = 8
    for s in range(8):
        for i in range(2):
            a(f"ds_read_b128 {vr(F_ + 8 * s + 4 * i, 4)}, v3 offset:{(s * 2 + i) * 1024}")
        if s == 6:
            a("s_waitcnt lgkmcnt(10)")
    for s in range(1, 8):
        a(f"s_waitcnt lgkmcnt({2 * (7 - s)})")
        for i in range(4):
            a(f"v_pk_add_f32 {vr(F_ + 2 * i, 2)}, {vr(F_ + 2 * i, 2)}, {vr(F_ + 8 * s + 2 * i, 2)}")
    T_ = F_ + 8
    a(f"v_mov_b32 v4, {hx(f2u(-LOG2E))}")
    for i in range(4):
        a(f"v_pk_mul_f32 {vr(T_ + 2 * i, 2)}, {vr(F_ + 2 * i, 2)}, v[4:5] op_sel_hi:[1,0]")
    for i in range(8):
        a(f"v_exp_f32 v{T_ + i}, v{T_ + i}")
    a("s_nop 0")
    for i in range(4):
        a(f"v_pk_add_f32 {vr(T_ + 2 * i, 2)}, {vr(T_ + 2 * i, 2)}, 1.0 op_sel_hi:[1,0]")
    for i in range(8):
        a(f"v_rcp_f32 v{T_ + i}, v{T_ + i}")
    a("s_nop 0")
    for i in range(4):
        a(f"v_pk_mul_f32 {vr(F_ + 2 * i, 2)}, {vr(F_ + 2 * i, 2)}, {vr(T_ + 2 * i, 2)}")
    XU = 24
    for i in range(4):
        a(f"v_lshlrev_b32 v{XU + 2 * i}, 16, v{RING + i}")
        a(f"v_and_b32 v{XU + 2 * i + 1}, 0xffff0000, v{RING + i}")
    a(f"s_lshr_b32 s{T0}, s{sW}, 2")
    a(f"s_lshl_b32 s{T0}, s{T0}, 15")
    a(f"s_and_b32 s{T1}, s{sW}, 3")
    a(f"s_lshl_b32 s{T2}, s{T1}, 11")
    a(f"s_add_u32 s{T0}, s{T0}, s{T2}")
    a(f"v_add_u32 v1, s{T0}, v{A16}")
    a(f"s_lshl_b32 s{T0}, s{sW}, 13")
    a(f"v_add_u32 v3, s{T0}, v{A16}")
    a(f"s_lshl_b32 s{T0}, s{tTT}, 5")
    a(f"s_lshl_b32 s{T1}, s{T1}, 3")
    a(f"s_add_u32 s{T0}, s{T0}, s{T1}")
    a(f"s_lshl_b32 s{T0}, s{T0}, 10")
    a(f"s_add_u32 s{T2}, s{T0}, {WS_O}")
    a(f"s_add_u32 s{T3}, s{T2}, 4096")
    stamp(a, 11)
    a(f"s_cmp_lg_u32 s{sW}, 0")
    a("s_cbranch_scc1 L_o_ok")
    a(f"s_lshl_b32 s{T0}, s{sXCD}, 8")
    a(f"s_add_u32 s{T0}, s{T0}, {WS_CNT + 40 * 256}")
    a(f"s_mov_b32 s{T1}, {SPIN}")
    a("L_o_poll:")
    a(f"buffer_load_dword v4, off, {sr(S_WS)}, s{T0} sc1")
    a("s_waitcnt vmcnt(0)")
    a("v_readfirstlane_b32 s40, v4")
    a("s_cmp_ge_u32 s40, 32")
    a("s_cbranch_scc1 L_o_ok")
    a(f"s_sub_u32 s{T1}, s{T1}, 1")
    a(f"s_cmp_lg_u32 s{T1}, 0")
    a("s_cbranch_scc1 L_o_poll")
    a("L_o_ok:")
    a("s_barrier")
    stamp(a, 12)
    OF = RING + 8
    SA = V_
    for j in range(8):
        so = T2 if j < 4 else T3
        a(f"buffer_load_dwordx4 {vr(OF + 4 * j, 4)}, v{A16}, {sr(S_WS)}, s{so} offen offset:{(j % 4) * 1024} sc1")
    for j in range(8):
        a(f"s_waitcnt vmcnt({7 - j})")
        for ap in range(2):
            a(mfma(SA + 16 * ap, G_ + 8 * j + 4 * ap, OF + 4 * j, "0" if j == 0 else None))
    stamp(a, 13)
    a("s_nop 11")
    for o in range(4):
        for i in range(2):
            a(f"ds_write_b128 v1, {vr(SA + 8 * o + 4 * i, 4)} offset:{o * 8192 + i * 1024}")
    a("s_waitcnt lgkmcnt(0)")
    a("s_barrier")
    for s in range(4):
        for i in range(2):
            a(f"ds_read_b128 {vr(SA + 8 * s + 4 * i, 4)}, v3 offset:{(s * 2 + i) * 1024}")
    for s in range(1, 4):
        a(f"s_waitcnt lgkmcnt({2 * (3 - s)})")
        for i in range(4):
            a(f"v_pk_add_f32 {vr(SA + 2 * i, 2)}, {vr(SA + 2 * i, 2)}, {vr(SA + 8 * s + 2 * i, 2)}")
    for i in range(4):
        a(f"v_pk_fma_f32 {vr(XU + 2 * i, 2)}, {vr(SA + 2 * i, 2)}, {vr(F_ + 2 * i, 2)}, {vr(XU + 2 * i, 2)}")
    for i in range(4):
        a(f"v_cvt_pk_bf16_f32 v{4 + i}, v{XU + 2 * i}, v{XU + 2 * i + 1}")
    a(f"buffer_store_dwordx4 v[4:7], v{AOUT}, {sr(R_OUT)}, 0 offen")
    stamp(a, 14)
    stamp_flush(a)
    a("L_exit:")
    a("s_endpgm")
    a("L_fallback:")
    a(f"s_lshl_b32 s{T0}, s{tHEAD}, 16")
    a(f"s_add_u32 s{T0}, s{T0}, {32 << 16}")
    a(f"s_mov_b32 s{T1}, 0")
    a("v_mov_b32 v1, 0xff800000")
    a("L_fb1:")
    a(f"s_add_u32 s{T2}, s{T0}, s{T1}")
    a(f"buffer_load_dwordx4 {vr(K_, 4)}, v{A16}, {sr(S_WS)}, s{T2} offen sc1")
    a("s_waitcnt vmcnt(0)")
    a(mfma(S0, K_, Q_, "0"))
    a("s_nop 15")
    for i in range(0, 16, 2):
        a(f"v_max3_f32 v1, v1, v{S0 + i}, v{S0 + i + 1}")
    a(f"s_add_u32 s{T1}, s{T1}, 1024")
    a(f"s_cmp_lt_u32 s{T1}, 65536")
    a("s_cbranch_scc1 L_fb1")
    a("v_mov_b32 v2, v1")
    a("s_nop 1")
    a("v_permlane32_swap_b32 v1, v2")
    a("v_max_f32 v1, v1, v2")
    a("v_sub_f32 v1, 0, v1")
    for i in range(16):
        a(f"v_mov_b32 v{NM + i}, v1")
    for i in range(16):
        a(f"v_mov_b32 v{O_ + i}, 0")
    a("v_lshrrev_b32 v2, 5, v0")
    a("v_and_b32 v3, 15, v0")
    a("v_lshlrev_b32 v3, 4, v3")
    a("v_lshl_add_u32 v3, v2, 8, v3")
    a(f"s_mov_b32 s{T1}, 0")
    a("L_fb2:")
    a(f"s_add_u32 s{T2}, s{T0}, s{T1}")
    a(f"buffer_load_dwordx4 {vr(K_, 4)}, v{A16}, {sr(S_WS)}, s{T2} offen sc1")
    a(f"s_add_u32 s{T2}, s{T2}, {32 << 16}")
    a(f"s_mov_b64 exec, s[{tVM}:{tVM + 1}]")
    a(f"buffer_load_dwordx4 {vr(V_, 4)}, v3, {sr(S_WS)}, s{T2} offen sc1")
    a(f"buffer_load_dwordx4 {vr(V_ + 4, 4)}, v3, {sr(S_WS)}, s{T2} offen offset:512 sc1")
    a("s_mov_b64 exec, -1")
    a("s_waitcnt vmcnt(0)")
    a(mfma(S0, K_, Q_, NM))
    a("s_nop 15")
    for i in range(16):
        a(f"v_exp_f32 v{S0 + i}, v{S0 + i}")
    a("s_nop 0")
    for i in range(8):
        a(f"v_cvt_pk_bf16_f32 v{P_ + i}, v{S0 + 2 * i}, v{S0 + 2 * i + 1}")
    a("s_nop 1")
    a(mfma(O_, V_, P_))
    a(mfma(O_, V_ + 4, P_ + 4))
    a(f"s_add_u32 s{T1}, s{T1}, 1024")
    a(f"s_cmp_lt_u32 s{T1}, 65536")
    a("s_cbranch_scc1 L_fb2")
    a("s_nop 15")
    a("s_branch L_norm")


def main(out):
    a = Asm()
    k = NAME + "_kernel"
    hdr = ["; LN + MHA + GEGLU block, one persistent launch; generated by gen2.py (hand-scheduled gfx950 assembly)",
           "; @launch grid=(256,1,1) block=(512,1,1) lds=163840"]
    a('.amdgcn_target "amdgcn-amd-amdhsa--gfx950"')
    a(".text")
    a(f".globl {k}\n.p2align 8\n.type {k},@function\n{k}:")
    gen_p1(a)
    gen_p2(a)
    a('.section .rodata,"a"')
    a(".p2align 6")
    a(f".amdhsa_kernel {k}")
    a(f".amdhsa_next_free_vgpr {NVGPR}")
    a(f".amdhsa_next_free_sgpr {96 if STAMPS else 80}")
    a(f".amdhsa_accum_offset {(NVGPR + 3) // 4 * 4}")
    a(".amdhsa_group_segment_fixed_size 0")
    a(".amdhsa_kernarg_size 80")
    a(".amdhsa_user_sgpr_count 2")
    a(".amdhsa_user_sgpr_kernarg_segment_ptr 1")
    a(".amdhsa_system_sgpr_workgroup_id_x 1")
    a(".end_amdhsa_kernel")
    open(out, "w").write("\n".join(hdr) + "\n" + a.text())


if __name__ == "__main__":
    for x in list(sys.argv):
        if x.startswith("--opt="):
            OPT = set(x[6:].split(","))
            sys.argv.remove(x)
    if "--cyc" in sys.argv:
        STAMPS = 2
        sys.argv.remove("--cyc")
    if "--stamps" in sys.argv:
        STAMPS = True
        sys.argv.remove("--stamps")
    main(sys.argv[1] if len(sys.argv) > 1 else f"cdna_kernels/{NAME}.s")
```

```python
import sys, struct, math

NAME = "recurrent_scan__mha_block__glu_gated_geglu__prompt"

WS_QKV = 0
WS_H = 6 << 20
WS_O = 14 << 20
WS_CNT = 16 << 20
WS_STAMP = (16 << 20) + 65536
WS_ST = (16 << 20) + 0x80000
WS_CS = (16 << 20) + 0x90000
WS_WT = 17 << 20
WS_SIZE = 20 << 20
OOB = 0x7f000000

LOG2E = 1.4426950408889634
QSCALE = 0.25 * LOG2E
GC1 = -2.0 * LOG2E * math.sqrt(2.0 / math.pi)
GC2 = GC1 * 0.044715
MAXOFF = 80.0
SPIN = 0x40000

STAMPS = False
OPT = set()
NOSTAMP = False


def f2u(x):
    return struct.unpack("<I", struct.pack("<f", x))[0]


def hx(x):
    return "0x%08x" % (x & 0xffffffff)


class Asm:
    def __init__(self):
        self.l = []

    def __call__(self, s):
        if isinstance(s, (list, tuple)):
            for x in s:
                self(x)
            return
        for line in s.split("\n"):
            line = line.strip()
            if not line:
                continue
            if line.endswith(":") or line.startswith("."):
                self.l.append(line)
            else:
                self.l.append("    " + line)

    def text(self):
        return "\n".join(self.l) + "\n"


def vr(b, n):
    return f"v[{b}:{b + n - 1}]"


def sr(b):
    return f"s[{b}:{b + 3}]"


def mfma(d, a, b, c=None):
    cs = vr(d, 16) if c is None else (c if isinstance(c, str) else vr(c, 16))
    return f"v_mfma_f32_32x32x16_bf16 {vr(d, 16)}, {vr(a, 4)}, {vr(b, 4)}, {cs}"


def stamp(a, n):
    if not STAMPS or (NOSTAMP and n != 15):
        return
    a("s_memtime s[76:77]" if STAMPS == 2 else "s_memrealtime s[76:77]")
    a("s_waitcnt lgkmcnt(0)")
    a(f"s_mov_b32 s{80 + n}, s76")


def stamp_flush(a):
    if not STAMPS:
        return
    a("s_waitcnt vmcnt(0)")
    stamp(a, 15)
    a("v_mov_b32 v1, 0")
    for n in range(16):
        a(f"v_writelane_b32 v1, s{80 + n}, {n}")
    a("s_lshl_b32 s76, s2, 3")
    a(f"s_add_u32 s76, s76, s{sW}")
    a("s_lshl_b32 s76, s76, 6")
    a(f"s_add_u32 s76, s76, {WS_STAMP}")
    a("v_lshlrev_b32 v2, 2, v0")
    a("s_mov_b64 exec, 0xffff")
    a(f"buffer_store_dword v1, v2, {sr(S_WS)}, s76 offen")


def srd(a, s, ptr, size):
    a(f"s_mov_b32 s{s}, s{ptr}")
    a(f"s_mov_b32 s{s + 1}, s{ptr + 1}")
    a(f"s_mov_b32 s{s + 2}, {size}")
    a(f"s_mov_b32 s{s + 3}, 0x00020000")


pX, pWQKV, pWO, pG, pU, pWD, pOUT, pDBG, pWS = 56, 58, 60, 64, 66, 68, 70, 72, 74
S_T, S_X, S_W0, S_W1, S_W3, S_WS = 4, 8, 12, 16, 20, 24
R_OUT, R_H0, R_H1, R_WT = 4, 12, 16, 20
sW, sTT, sHF, sRB, sCB, sROT, sISC, sISV, sSTR = 28, 29, 30, 31, 32, 33, 34, 35, 36
sCOL = 37
sXROW, sLW = 42, 43
T0, T1, T2, T3 = 44, 45, 46, 47
sU0, sXCD, sKW0, sKW1, sT, sG = 48, 49, 50, 51, 52, 53
tHEAD, tQB, tIT, tFH, tFW, tTT = 29, 30, 33, 36, 37, 38
tVM = 54

X0, XB = 0, 16384
W0, WB = 32768, 40960
CSL = W0 + 2 * WB
TRS = CSL + 32768
XA, WA, WA2 = 8, 12, 17
VXS, VW0, VW1, VW3, L16, MASK, ASRC, STV, POLL = 22, 23, 24, 25, 26, 27, 28, 30, 31
FA, FB = 64, 88
ACC = 128


def x_issue(st):
    buf = X0 + (st & 1) * XB
    return [[f"s_add_u32 s{T0}, s{sROT}, {st}",
             f"s_and_b32 s{T0}, s{T0}, 7",
             f"s_lshl_b32 s{T0}, s{T0}, 7",
             f"s_add_u32 m0, s{sLW}, {buf}",
             f"s_add_u32 s{T0}, s{T0}, s{sXROW}",
             f"buffer_load_dwordx4 v{VXS}, {sr(S_X)}, s{T0} offen lds"],
            [f"s_add_u32 m0, s{sLW}, {buf + 8192}",
             f"s_add_u32 s{T0}, s{T0}, 0x10000",
             f"buffer_load_dwordx4 v{VXS}, {sr(S_X)}, s{T0} offen lds"]]


def w_issue(st):
    buf = W0 + (st % 3) * WB
    r = []
    for j in range(5):
        g = []
        if j == 0:
            g += [f"s_add_u32 s{T1}, s{sROT}, {st}",
                  f"s_and_b32 s{T1}, s{T1}, 7",
                  f"s_lshl_b32 s{T1}, s{T1}, 6",
                  f"s_mul_i32 s{sKW1}, s{T1}, s{sSTR}",
                  f"s_mul_i32 s{sKW0}, s{T1}, 3072"]
        srx = S_W0 if j == 0 else (S_W1 if j < 3 else S_W3)
        vv = VW0 if j == 0 else (VW1 if j < 3 else VW3)
        g += [f"s_add_u32 m0, s{sLW}, {buf + j * 8192}",
              f"s_add_u32 s{T1}, s{sKW0 if j == 0 else sKW1}, s{sCOL + j}",
              f"buffer_load_dwordx4 v{vv}, {sr(srx)}, s{T1} offen lds"]
        r.append(g)
    return r


def p1_reads(st, ks, F):
    r = [f"ds_read_b128 {vr(F, 4)}, v{XA + ks} offset:{(st & 1) * XB}"]
    b = st % 3
    base, off = (WA, b * WB) if b < 2 else (WA2, 0)
    for s in range(5):
        for t2 in range(2):
            r.append(f"ds_read_b64_tr_b16 {vr(F + 4 + 4 * s + 2 * t2, 2)}, v{base + s} offset:{off + ks * 2048 + t2 * 512}")
    return r


def p1_kstep(F, isv, reads, blocks, first=False, bg=None, nbg=5):
    res = []
    rsplit = [3, 3, 3, 2, 0]
    ri = 0
    for s in range(5):
        w = F + 4 + 4 * s
        c = "0" if first else None
        res.append(mfma(ACC, F, w, c) if (s == 0 and isv) else mfma(ACC + 16 * s, w, F, c))
        if reads:
            res += reads[ri:ri + rsplit[s]]
            ri += rsplit[s]
        res += blocks.get(s, [])
        n = 0
        while bg and n < nbg:
            if bg[0] == "KSTEP":
                break
            if bg[0] == "LATE":
                if s < 4:
                    break
                bg.pop(0)
                res.append("s_waitcnt lgkmcnt(8)")
                n = 0
                continue
            at = bg.pop(0)
            at = [at] if isinstance(at, str) else at
            res += at
            n += len(at)
    if bg and bg[0] == "KSTEP":
        bg.pop(0)
    return res


def reduce64(v, t):
    r = []
    for m in ["quad_perm:[1,0,3,2]", "quad_perm:[2,3,0,1]", "row_ror:4", "row_ror:8"]:
        r += ["s_nop 1", f"v_add_f32_dpp v{v}, v{v}, v{v} {m} row_mask:0xf bank_mask:0xf"]
    for p in ["v_permlane16_swap_b32", "v_permlane32_swap_b32"]:
        r += [f"v_mov_b32 v{t}, v{v}", "s_nop 1", f"{p} v{v}, v{t}", f"v_add_f32 v{v}, v{v}, v{t}"]
    return r


def tr_addr(a, dst, t_a, t_b):
    a(f"v_lshrrev_b32 v{t_a}, 5, v0")
    a(f"v_bfe_u32 v{t_b}, v0, 2, 2")
    a(f"v_lshl_add_u32 v{dst}, v{t_a}, 2, v{t_b}")
    a(f"v_lshlrev_b32 v{dst}, 7, v{dst}")
    a(f"v_and_b32 v{t_a}, 1, v0")
    a(f"v_lshl_add_u32 v{dst}, v{t_a}, 6, v{dst}")
    a(f"v_bfe_u32 v{t_a}, v0, 4, 1")
    a(f"v_lshl_add_u32 v{dst}, v{t_a}, 4, v{dst}")
    a(f"v_bfe_u32 v{t_a}, v0, 1, 1")
    a(f"v_lshl_add_u32 v{dst}, v{t_a}, 3, v{dst}")
    a(f"v_lshrrev_b32 v{t_b}, 1, v{t_b}")
    a(f"v_lshl_add_u32 v{dst}, v{t_b}, 5, v{dst}")


def gen_p1(a):
    a("s_cmp_ge_u32 s2, 256")
    a("s_cbranch_scc1 L_exit")
    stamp(a, 0)
    a(f"s_load_dwordx4 s[{pX}:{pX + 3}], s[0:1], 0")
    a(f"s_load_dwordx2 s[{pWO}:{pWO + 1}], s[0:1], 16")
    a(f"s_load_dwordx4 s[{pG}:{pG + 3}], s[0:1], 32")
    a(f"s_load_dwordx4 s[{pWD}:{pWD + 3}], s[0:1], 48")
    a(f"s_load_dwordx4 s[{pDBG}:{pDBG + 3}], s[0:1], 64")
    a("v_lshrrev_b32 v1, 6, v0")
    a("v_and_b32 v0, 63, v0")
    a(f"v_readfirstlane_b32 s{sW}, v1")
    a(f"s_and_b32 s{sXCD}, s2, 7")
    a(f"s_lshr_b32 s{T1}, s2, 3")
    a(f"s_and_b32 s{sRB}, s{sXCD}, 1")
    a(f"s_lshl_b32 s{sRB}, s{sRB}, 3")
    a(f"s_and_b32 s{T2}, s{T1}, 7")
    a(f"s_add_u32 s{sRB}, s{sRB}, s{T2}")
    a(f"s_lshr_b32 s{sCB}, s{sXCD}, 1")
    a(f"s_lshl_b32 s{sCB}, s{sCB}, 2")
    a(f"s_lshr_b32 s{T3}, s{T1}, 3")
    a(f"s_add_u32 s{sCB}, s{sCB}, s{T3}")
    a(f"s_lshl_b32 s{T3}, s{T3}, 1")
    a(f"s_add_u32 s{sROT}, s{T2}, s{T3}")
    a(f"s_and_b32 s{sROT}, s{sROT}, 7")
    a(f"s_and_b32 s{sTT}, s{sW}, 3")
    a(f"s_lshr_b32 s{sHF}, s{sW}, 2")
    a(f"s_lshl_b32 s{sLW}, s{sW}, 10")
    a(f"s_cmp_ge_u32 s{sCB}, 6")
    a(f"s_cselect_b32 s{sISV}, 1, 0")
    a(f"s_sub_u32 s{T0}, s{sCB}, 14")
    a(f"s_mul_i32 s{T0}, s{T0}, 5")
    a(f"s_add_u32 s{T1}, s{sCB}, 10")
    a(f"s_lshl_b32 s{T2}, s{sCB}, 1")
    a(f"s_cmp_ge_u32 s{sCB}, 14")
    a(f"s_cselect_b32 s{sISC}, 1, 0")
    a(f"s_cselect_b32 s{sISV}, 0, s{sISV}")
    a(f"s_cselect_b32 s{sU0}, s{T0}, s{T1}")
    a(f"s_movk_i32 s{sSTR}, 3584")
    a(f"s_cselect_b32 s{sSTR}, 3072, s{sSTR}")
    a(f"s_add_u32 s{T0}, s{sU0}, 1")
    a(f"s_add_u32 s{T1}, s{sU0}, 3")
    a(f"s_cmp_eq_u32 s{sISC}, 1")
    a(f"s_cselect_b32 s{T0}, s{T0}, s{T2}")
    a(f"s_cselect_b32 s{T1}, s{T1}, s{T2}")
    a(f"s_lshl_b32 s{sCOL}, s{sU0}, 7")
    a(f"s_lshl_b32 s{sCOL + 1}, s{T0}, 7")
    a(f"s_lshl_b32 s{sCOL + 3}, s{T1}, 7")
    a(f"s_add_u32 s{sCOL + 2}, s{sCOL + 1}, 128")
    a(f"s_add_u32 s{sCOL + 4}, s{sCOL + 3}, 128")
    a(f"s_mov_b32 s{sKW0}, {OOB}")
    for j in range(5):
        a(f"s_cmp_eq_u32 s{sW}, {j}")
        a(f"s_cmov_b32 s{sKW0}, s{sCOL + j}")
    a(f"s_cmp_eq_u32 s{sW}, 0")
    a(f"s_cselect_b32 s{sKW1}, 3072, s{sSTR}")
    a(f"s_and_b32 s{sG}, s{sXCD}, 1")
    a(f"s_lshl1_add_u32 s{sG}, s{sROT}, s{sG}")
    a(f"s_lshl_b32 s{T0}, s{sG}, 5")
    a(f"s_mul_i32 s{T0}, s{T0}, s{sKW1}")
    a(f"s_add_u32 s{sKW0}, s{sKW0}, s{T0}")
    if "norot" in OPT:
        a(f"s_mov_b32 s{sROT}, 0")
    if "rot2" in OPT:
        a(f"s_and_b32 s{sROT}, s{sROT}, 4")
    if "rot4" in OPT:
        a(f"s_and_b32 s{sROT}, s{sROT}, 6")
    a(f"s_lshl_b32 s{T2}, s{sW}, 3")
    a(f"s_mul_i32 s{T3}, s{T2}, 3072")
    a(f"s_add_u32 s{sCOL}, s{sCOL}, s{T3}")
    a(f"s_mul_i32 s{T3}, s{T2}, s{sSTR}")
    for j in range(1, 5):
        a(f"s_add_u32 s{sCOL + j}, s{sCOL + j}, s{T3}")
    a(f"s_lshl_b32 s{sXROW}, s{sRB}, 7")
    a(f"s_add_u32 s{sXROW}, s{sXROW}, s{T2}")
    a(f"s_lshl_b32 s{sXROW}, s{sXROW}, 10")
    a(f"v_lshlrev_b32 v{L16}, 4, v0")
    a("v_lshrrev_b32 v1, 3, v0")
    a("v_and_b32 v2, 7, v0")
    a(f"v_mul_u32_u24 v5, s{sKW1}, v1")
    a("v_lshl_add_u32 v5, v2, 4, v5")
    a(f"v_add_u32 v3, s{T2}, v1")
    a("v_bfe_u32 v3, v3, 1, 3")
    a("v_xor_b32 v3, v3, v2")
    a("v_lshlrev_b32 v3, 4, v3")
    a(f"v_lshl_add_u32 v{VXS}, v1, 10, v3")
    a("v_and_b32 v3, 2, v1")
    a("v_xor_b32 v6, v3, v2")
    a("v_lshlrev_b32 v6, 4, v6")
    a(f"v_lshl_add_u32 v{ASRC}, v1, 10, v6")
    a("v_lshlrev_b32 v3, 1, v3")
    a("v_xor_b32 v3, v3, v2")
    a("v_lshlrev_b32 v3, 4, v3")
    a("v_mul_u32_u24 v4, 3072, v1")
    a(f"v_add_u32 v{VW0}, v4, v3")
    a(f"v_mul_u32_u24 v4, s{sSTR}, v1")
    a(f"v_add_u32 v{VW1}, v4, v3")
    a("v_xor_b32 v3, 32, v3")
    a(f"v_add_u32 v{VW3}, v4, v3")
    a("s_waitcnt lgkmcnt(0)")
    srd(a, S_X, pX, 2097152)
    srd(a, S_W0, pWQKV, 1572864)
    a(f"s_cmp_eq_u32 s{sISC}, 1")
    a(f"s_cselect_b32 s{S_W1}, s{pWQKV}, s{pG}")
    a(f"s_cselect_b32 s{S_W1 + 1}, s{pWQKV + 1}, s{pG + 1}")
    a(f"s_mov_b32 s{S_W1 + 2}, 1835008")
    a(f"s_cselect_b32 s{S_W1 + 2}, 1572864, s{S_W1 + 2}")
    a(f"s_mov_b32 s{S_W1 + 3}, 0x00020000")
    a(f"s_cselect_b32 s{S_W3}, s{pWQKV}, s{pU}")
    a(f"s_cselect_b32 s{S_W3 + 1}, s{pWQKV + 1}, s{pU + 1}")
    a(f"s_mov_b32 s{S_W3 + 2}, s{S_W1 + 2}")
    a(f"s_mov_b32 s{S_W3 + 3}, 0x00020000")
    srd(a, S_WS, pWS, WS_SIZE)
    a(f"s_cmp_lt_u32 s{sW}, 3")
    a(f"s_cselect_b32 s{S_T}, s{S_W1}, s{S_W3}")
    a(f"s_cselect_b32 s{S_T + 1}, s{S_W1 + 1}, s{S_W3 + 1}")
    a(f"s_cmp_eq_u32 s{sW}, 0")
    a(f"s_cselect_b32 s{S_T}, s{S_W0}, s{S_T}")
    a(f"s_cselect_b32 s{S_T + 1}, s{S_W0 + 1}, s{S_T + 1}")
    a(f"s_cselect_b32 s{S_T + 2}, s{S_W0 + 2}, s{S_W1 + 2}")
    a(f"s_mov_b32 s{S_T + 3}, 0x00020000")
    a(f"s_or_b32 s{T0}, s2, s{sW}")
    a(f"s_cmp_lg_u32 s{T0}, 0")
    a("s_cbranch_scc1 L_nozero")
    a("v_mov_b32 v1, 0")
    a("v_lshlrev_b32 v2, 8, v0")
    a(f"s_mov_b32 s{T0}, {WS_CNT}")
    a(f"buffer_store_dword v1, v2, {sr(S_WS)}, s{T0} offen sc1")
    a("L_nozero:")
    a(f"s_mov_b32 s{T2}, s{sKW0}")
    a(f"s_lshl_b32 s{T3}, s{sKW1}, 3")
    for g in x_issue(0) + w_issue(0): a(g)
    a("v_and_b32 v1, 31, v0")
    a("v_lshrrev_b32 v2, 5, v0")
    a("v_bfe_u32 v3, v0, 1, 3")
    a("v_xor_b32 v3, v3, v2")
    a("v_lshlrev_b32 v3, 4, v3")
    a("v_lshl_add_u32 v3, v1, 7, v3")
    a(f"s_lshl_b32 s{T0}, s{sTT}, 12")
    a(f"v_add_u32 v{XA}, s{T0}, v3")
    for i in range(1, 4):
        a(f"v_xor_b32 v{XA + i}, {32 * i}, v{XA}")
    a("v_bfe_u32 v3, v0, 2, 2")
    a("v_lshl_add_u32 v4, v2, 3, v3")
    a("v_lshlrev_b32 v4, 7, v4")
    a("v_and_b32 v7, 3, v0")
    a("v_lshl_add_u32 v4, v7, 3, v4")
    a(f"v_add_u32 v4, {W0}, v4")
    a("v_and_b32 v3, 2, v3")
    a("v_bfe_u32 v7, v0, 4, 1")
    a("v_xor_b32 v3, v3, v7")
    a(f"s_lshl_b32 s{T0}, s{sHF}, 1")
    a(f"v_xor_b32 v6, s{T0}, v3")
    a(f"v_lshl_add_u32 v{WA}, v6, 5, v4")
    a("v_lshl_add_u32 v4, v7, 14, v4")
    a(f"s_add_u32 s{T0}, s{sHF}, 1")
    a(f"s_lshl_b32 s{T0}, s{T0}, 13")
    a(f"v_add_u32 v4, s{T0}, v4")
    for c in range(4):
        a(f"v_xor_b32 v6, {c}, v3")
        a(f"v_lshl_add_u32 v{WA + 1 + c}, v6, 5, v4")
    for i in range(5):
        a(f"v_add_u32 v{WA2 + i}, {2 * WB}, v{WA + i}")
    a(f"v_mov_b32 v{MASK}, 0xffff0000")
    for g in x_issue(1) + w_issue(1): a(g)
    RW, CW, RU = 32, 40, 112
    a(f"s_lshl_b32 s{sT}, s2, 3")
    a(f"s_add_u32 s{sT}, s{sT}, s{sW}")
    a(f"s_lshl_b32 s{T0}, s{sT}, 10")
    a(f"buffer_load_dwordx4 {vr(RW, 4)}, v{L16}, {sr(S_X)}, s{T0} offen")
    for q in range(4):
        a(f"buffer_load_dwordx4 {vr(CW + 4 * q, 4)}, v5, {sr(S_T)}, s{T2} offen")
        if q != 3:
            a(f"s_add_u32 s{T2}, s{T2}, s{T3}")
    stamp(a, 1)
    a("s_waitcnt vmcnt(12)")
    a("s_barrier")
    stamp(a, 2)

    def bg_prepass():
        b = []
        for i in range(4):
            b += [f"v_lshlrev_b32 v{RU + 2 * i}, 16, v{RW + i}", f"v_and_b32 v{RU + 2 * i + 1}, v{MASK}, v{RW + i}"]
        b.append(f"v_add_f32 v1, v{RU}, v{RU + 1}")
        b += [f"v_add_f32 v1, v1, v{RU + i}" for i in range(2, 8)]
        b += reduce64(1, 2)
        b.append(f"v_mul_f32 v1, {hx(f2u(1.0 / 512))}, v1")
        b += [f"v_sub_f32 v{RU + i}, v{RU + i}, v1" for i in range(8)]
        b.append(f"v_mul_f32 v3, v{RU}, v{RU}")
        b += [f"v_fmac_f32 v3, v{RU + i}, v{RU + i}" for i in range(1, 8)]
        b += reduce64(3, 2)
        b += [f"v_mul_f32 v3, {hx(f2u(1.0 / 512))}, v3",
              "v_cvt_pk_bf16_f32 v3, v3, v3", f"v_and_b32 v3, v{MASK}, v3",
              f"v_add_f32 v3, {hx(f2u(1e-5))}, v3",
              "v_cvt_pk_bf16_f32 v3, v3, v3", f"v_and_b32 v3, v{MASK}, v3",
              "v_sqrt_f32 v3, v3", "v_sub_f32 v1, 0, v1",
              "v_cvt_pk_bf16_f32 v6, v3, v1"]
        for i in range(4):
            b += [f"v_lshlrev_b32 v{RU + 2 * i}, 16, v{CW + i}", f"v_and_b32 v{RU + 2 * i + 1}, v{MASK}, v{CW + i}"]
        for q in range(1, 4):
            for i in range(4):
                b += [f"v_lshlrev_b32 v2, 16, v{CW + 4 * q + i}", f"v_and_b32 v3, v{MASK}, v{CW + 4 * q + i}",
                      f"v_add_f32 v{RU + 2 * i}, v{RU + 2 * i}, v2", f"v_add_f32 v{RU + 2 * i + 1}, v{RU + 2 * i + 1}, v3"]
        b.append("s_nop 1")
        b += [f"v_permlane16_swap_b32 v{RU + 2 * i}, v{RU + 2 * i + 1}" for i in range(4)]
        b += [f"v_add_f32 v{RU + 2 * i}, v{RU + 2 * i}, v{RU + 2 * i + 1}" for i in range(4)]
        b += ["s_nop 1", f"v_permlane32_swap_b32 v{RU}, v{RU + 2}", f"v_permlane32_swap_b32 v{RU + 4}, v{RU + 6}",
              f"v_add_f32 v{RU}, v{RU}, v{RU + 2}", f"v_add_f32 v{RU + 4}, v{RU + 4}, v{RU + 6}",
              "v_and_b32 v2, 8, v0", "v_cmp_eq_u32 vcc, 0, v2",
              f"v_add_f32_dpp v{RU}, v{RU}, v{RU} row_ror:8 row_mask:0xf bank_mask:0xf",
              f"v_add_f32_dpp v{RU + 4}, v{RU + 4}, v{RU + 4} row_ror:8 row_mask:0xf bank_mask:0xf",
              "v_and_b32 v3, 7, v0", "v_lshlrev_b32 v3, 3, v3", "v_lshrrev_b32 v4, 4, v0", "v_add_u32 v3, v3, v4",
              "v_lshrrev_b32 v2, 1, v2", "v_add_u32 v3, v3, v2", "v_lshlrev_b32 v3, 2, v3",
              f"v_cndmask_b32 v1, v{RU + 4}, v{RU}, vcc"]
        return b

    pre_stores = [f"s_lshl_b32 s{T2}, s2, 7",
                  f"s_lshl2_add_u32 s{T2}, s{sW}, s{T2}",
                  f"s_add_u32 s{T2}, s{T2}, {WS_ST}",
                  "s_mov_b64 exec, 1",
                  f"buffer_store_dword v6, off, {sr(S_WS)}, s{T2} sc1",
                  "s_mov_b64 exec, -1",
                  f"s_mul_i32 s{T2}, s{sCB}, 5",
                  f"s_add_u32 s{T2}, s{T2}, s{sW}",
                  f"s_lshl_b32 s{T2}, s{T2}, 12",
                  f"s_add_u32 s{sT}, s{T2}, {WS_CS}",
                  f"s_cmp_lt_u32 s{sW}, 5",
                  f"s_cselect_b32 s{sT}, s{sT}, {OOB}",
                  f"s_lshl_b32 s{T2}, s{sG}, 8",
                  f"s_add_u32 s{T2}, s{T2}, s{sT}",
                  f"buffer_store_dword v1, v3, {sr(S_WS)}, s{T2} offen sc1"]

    TRD = 208

    def bg_trsetup():
        A, B, C, D = T2, T3, sG, tVM + 1
        b = [[f"s_mul_i32 s{A}, s2, 5", f"s_add_u32 s{A}, s{A}, s{sW}", f"s_sub_u32 s{A}, s{A}, 3",
              f"s_and_b32 s{B}, s{A}, 7", f"s_lshr_b32 s{C}, s{A}, 3"],
             [f"s_mul_i32 s{D}, s{B}, 144", f"s_add_u32 s{D}, s{D}, s{C}", f"s_lshl_b32 s{D}, s{D}, 11",
              f"s_add_u32 s{D}, s{D}, {WS_WT}"],
             [f"s_cmp_lt_u32 s{A}, 1152", f"s_cselect_b32 s{D}, s{D}, {OOB}",
              f"s_cmp_ge_u32 s{sW}, 3", f"s_cselect_b32 s{tVM}, s{D}, {OOB}"],
             [f"s_cmp_lt_u32 s{C}, 112", f"s_cselect_b32 s{S_T}, s{pWD}, s{pWO}",
              f"s_cselect_b32 s{S_T + 1}, s{pWD + 1}, s{pWO + 1}", f"s_mov_b32 s{S_T + 2}, 1835008",
              f"s_cselect_b32 s{S_T + 2}, s{S_T + 2}, 524288", f"s_cselect_b32 s{A}, 0, 112"],
             [f"s_sub_u32 s{C}, s{C}, s{A}", f"s_lshl_b32 s{C}, s{C}, 14", f"s_lshl_b32 s{B}, s{B}, 7",
              f"s_add_u32 s{C}, s{C}, s{B}"],
             [f"s_cmp_eq_u32 s{tVM}, {OOB}", f"s_cselect_b32 s{C}, {OOB}, s{C}"]]
        t = Asm()
        tr_addr(t, 7, 1, 2)
        b += [x.strip() for x in t.l]
        b += [[f"s_lshl_b32 s{A}, s{sW}, 11", f"s_add_u32 s{A}, s{A}, {TRS}", f"v_add_u32 v7, s{A}, v7"],
              "v_xor_b32 v6, 32, v7"]
        b += ["v_and_b32 v1, 31, v0", "v_lshrrev_b32 v2, 5, v0", "v_lshlrev_b32 v2, 11, v2", "v_lshl_add_u32 v3, v1, 2, v2",
              [f"s_lshl_b32 s{A}, s{sHF}, 7", f"s_add_u32 s{A}, s{A}, {CSL}", f"v_add_u32 v3, s{A}, v3"],
              "v_lshrrev_b32 v5, 3, v1", "v_lshlrev_b32 v5, 7, v5", "v_and_b32 v4, 7, v0", "v_lshl_add_u32 v5, v4, 2, v5",
              "v_and_b32 v4, 15, v0", "v_lshl_add_u32 v4, v4, 2, v2", "v_bfe_u32 v1, v0, 4, 1", "v_lshl_add_u32 v4, v1, 13, v4",
              [f"s_lshl_b32 s{A}, s{sHF}, 12", f"s_add_u32 s{A}, s{A}, {CSL + 4096}", f"v_add_u32 v4, s{A}, v4"],
              "v_add_u32 v29, 64, v4", f"v_add_u32 v{TRD + 8}, 128, v4", f"v_add_u32 v{TRD + 9}, 192, v4"]
        return b

    CPR = [32, 40, 48, 56, 112]
    XOP = 120
    RSV = 220
    SD, RS = 124, 126

    def bg_last(isv):
        b = []
        for ap in range(2):
            for t in range(2):
                b.append(f"ds_read_b64_tr_b16 {vr(TRD + 4 * ap + 2 * t, 2)}, v{7 - ap} offset:{t * 1024}")
        b += [f"v_lshlrev_b32 v{SD}, 16, v{STV}", f"v_rcp_f32 v{RS}, v{SD}", f"v_and_b32 v{XOP}, v{MASK}, v{STV}",
              f"v_mov_b32 v{XOP + 1}, v{XOP}", f"v_mov_b32 v{XOP + 2}, v{XOP}", f"v_mov_b32 v{XOP + 3}, 0",
              [f"s_lshl_b32 s{sG}, s{sU0}, 2", f"s_lshl1_add_u32 s{sG}, s{sHF}, s{sG}"]]
        b.append("KSTEP")

        def rd(s):
            ad = ["v3", "v4", "v29", f"v{TRD + 8}", f"v{TRD + 9}"][s]
            return [f"ds_read2st64_b32 {vr(CPR[s] + 2 * q, 2)}, {ad} offset0:{2 * q} offset1:{2 * q + 1}" for q in range(4)]

        def red(s):
            w = CPR[s]
            return [f"v_add_f32 v{w}, v{w}, v{w + 1}", f"v_add_f32 v{w + 2}, v{w + 2}, v{w + 3}",
                    f"v_add_f32 v{w + 4}, v{w + 4}, v{w + 5}", f"v_add_f32 v{w + 6}, v{w + 6}, v{w + 7}",
                    f"v_add_f32 v{w}, v{w}, v{w + 2}", f"v_add_f32 v{w + 4}, v{w + 4}, v{w + 6}",
                    f"v_add_f32 v{w + 2}, v{w}, v{w + 4}", f"v_and_b32 v{w}, v{MASK}, v{w + 2}",
                    f"v_sub_f32 v{w + 2}, v{w + 2}, v{w}", f"v_and_b32 v{w + 1}, v{MASK}, v{w + 2}",
                    f"v_sub_f32 v{w + 2}, v{w + 2}, v{w + 1}", f"v_mov_b32 v{w + 3}, 0"]
        b += rd(0)
        b += [f"buffer_store_dwordx4 {vr(TRD, 4)}, v{L16}, {sr(S_WS)}, s{tVM} offen sc1",
              f"buffer_store_dwordx4 {vr(TRD + 4, 4)}, v{L16}, {sr(S_WS)}, s{tVM} offen offset:1024 sc1"]
        if isv:
            b += [[f"s_lshl_b32 s{T2}, s{sW}, 11", f"s_add_u32 s{T2}, s{T2}, {TRS}"],
                  "v_lshlrev_b32 v1, 2, v0", f"v_add_u32 v1, s{T2}, v1",
                  "v_lshrrev_b32 v2, 5, v0", "v_lshlrev_b32 v2, 4, v2", f"v_add_u32 v2, s{T2}, v2"]
        b += ["LATE"] + rd(1)
        b.append("KSTEP")
        b += rd(2) + red(0) + red(1)[:6] + ["LATE"] + rd(3)
        b.append("KSTEP")
        b += rd(4)
        b += red(1)[6:] + red(2)
        if isv:
            b += ["LATE", f"ds_write_b32 v1, v{RS}"]
        b.append("KSTEP")
        if isv:
            for g in range(4):
                b.append(f"ds_read_b128 {vr(RSV + 4 * g, 4)}, v2 offset:{g * 32}")
        b += red(3) + red(4)
        if isv:
            b += [["v_bfe_u32 v3, v0, 4, 1", "v_lshlrev_b32 v3, 16, v3", "v_lshrrev_b32 v4, 5, v0",
                  "v_lshl_add_u32 v3, v4, 8, v3", "v_and_b32 v4, 15, v0", "v_lshl_add_u32 v3, v4, 4, v3"]]
        return b

    a(p1_reads(0, 0, FA))
    a(f"s_cmp_eq_u32 s{sISV}, 1")
    a("s_cbranch_scc1 L_main1")
    for isv in range(2):
        a(f"L_main{isv}:")
        bg = []
        for st in range(8):
            wi = w_issue(st + 2) if st + 2 < 8 else [[]] * 5
            for ks in range(3):
                F, Fn = (FA, FB) if ks % 2 == 0 else (FB, FA)
                blocks = {3: wi[2 * ks], 4: wi[2 * ks + 1]} if ks < 2 else {4: wi[4]}
                a("s_waitcnt lgkmcnt(0)")
                a(p1_kstep(F, isv, p1_reads(st, ks + 1, Fn), blocks, first=(st == 0 and ks == 0), bg=bg, nbg=6 if st == 7 else 5))
            if st == 7:
                a("s_waitcnt lgkmcnt(0)")
                a(p1_kstep(FB, isv, None, {}, bg=bg, nbg=6))
                assert not bg
                break
            if st == 2:
                assert not bg, len(bg)
            n = 5 if st <= 5 else 0
            if "p1a" in OPT: stamp(a, 4 + st)
            if st == 4:
                a(f"s_cmp_eq_u32 s{sW}, 0")
                a(f"s_cbranch_scc1 L_w6_{isv}")
                a("s_waitcnt vmcnt(5)")
                a(f"L_w6_{isv}:")
                n = 6
            a(f"s_waitcnt vmcnt({n}) lgkmcnt(0)")
            if st == 5:
                a(f"s_cmp_lg_u32 s{sW}, 0")
                a(f"s_cbranch_scc1 L_g_ok{isv}")
                a(f"s_mov_b32 s{T1}, {SPIN}")
                a("s_mov_b64 exec, 0xffff")
                a(f"L_g_poll{isv}:")
                a(f"v_cmp_gt_u32 vcc, 16, v{POLL}")
                a("s_cmp_eq_u64 vcc, 0")
                a(f"s_cbranch_scc1 L_g_done{isv}")
                a("s_sleep 8")
                a(f"global_load_dword v{POLL}, v{L16}, s[{pDBG}:{pDBG + 1}] sc1")
                a("s_waitcnt vmcnt(0)")
                a(f"s_sub_u32 s{T1}, s{T1}, 1")
                a(f"s_cmp_lg_u32 s{T1}, 0")
                a(f"s_cbranch_scc1 L_g_poll{isv}")
                a(f"L_g_done{isv}:")
                a("s_mov_b64 exec, -1")
                a(f"L_g_ok{isv}:")
            a("s_barrier")
            if "p1b" in OPT: stamp(a, 4 + st)
            blocks = {}
            if st + 2 < 8:
                xi = x_issue(st + 2)
                blocks = {3: xi[0], 4: xi[1]}
            if st == 0:
                bg += bg_prepass()
            if st == 2:
                blocks[2] = pre_stores
                bg += ["KSTEP"] + bg_trsetup()
            if st == 3:
                blocks[1], blocks[2] = blocks[3], blocks[4]
                blocks[4] = []
                blocks[3] = [f"s_cmp_lg_u32 s{sW}, 0", f"s_cbranch_scc1 L_nosig{isv}",
                             f"s_and_b32 s{T0}, s2, 15", f"s_lshl_b32 s{T0}, s{T0}, 4",
                             f"v_mov_b32 v{POLL}, s{T0}", f"v_mov_b32 v{STV}, 1", "s_mov_b64 exec, 1",
                             f"global_atomic_add v{POLL}, v{STV}, s[{pDBG}:{pDBG + 1}] sc1",
                             "s_mov_b64 exec, -1", f"L_nosig{isv}:"]
            if st == 4:
                blocks[4] = blocks[4] + [f"s_cmp_lg_u32 s{sW}, 0", f"s_cbranch_scc1 L_nopl{isv}", "s_mov_b64 exec, 0xffff",
                                         f"global_load_dword v{POLL}, v{L16}, s[{pDBG}:{pDBG + 1}] sc1",
                                         "s_mov_b64 exec, -1", f"L_nopl{isv}:"]
            if st == 5:
                assert not bg
                b = [f"s_lshl_b32 s{T2}, s{sW}, 12", f"s_add_u32 m0, s{T2}, {CSL}", "s_nop 0"]
                for q in range(4):
                    b.append(f"buffer_load_dwordx4 v{L16}, {sr(S_WS)}, s{sT} offen offset:{q * 1024} sc1 lds")
                bg += [b,
                       [f"s_lshl_b32 s{T2}, s{sRB}, 2", f"s_add_u32 s{sT}, s{T2}, s{sTT}",
                        f"s_lshl_b32 s{T2}, s{sT}, 9", f"s_add_u32 s{T2}, s{T2}, {WS_ST}",
                        f"buffer_load_dword v{STV}, v5, {sr(S_WS)}, s{T2} offen sc1"],
                       [f"s_lshl_b32 s{T2}, s{sW}, 11", f"s_add_u32 m0, s{T2}, {TRS}", f"s_add_u32 s{T3}, s{sG}, 8192",
                        f"buffer_load_dwordx4 v{ASRC}, {sr(S_T)}, s{sG} offen lds",
                        "s_add_u32 m0, m0, 1024", "s_nop 0",
                        f"buffer_load_dwordx4 v{ASRC}, {sr(S_T)}, s{T3} offen lds"]]
            if st == 6:
                assert not bg
                bg += bg_last(isv)
            a(p1_kstep(FB, isv, p1_reads(st + 1, 0, FA), blocks, bg=bg))
        a("s_nop 1")
        a(mfma(ACC, XOP, CPR[0]) if isv else mfma(ACC, CPR[0], XOP))
        for sl in range(1, 5):
            a(mfma(ACC + 16 * sl, CPR[sl], XOP))
        stamp(a, 3)
        if isv == 0:
            a("s_branch L_epiQK")
    if "p1a" in OPT or "p1b" in OPT:
        global NOSTAMP
        NOSTAMP = True
    a(f"s_lshl_b32 s{T1}, s{sG}, 16")
    a(f"s_lshl_b32 s{T2}, s{sT}, 10")
    a(f"s_add_u32 s{T1}, s{T1}, s{T2}")
    a("s_waitcnt lgkmcnt(0)")
    a("s_nop 3")
    for i in range(8):
        a(f"v_pk_mul_f32 {vr(ACC + 2 * i, 2)}, {vr(ACC + 2 * i, 2)}, {vr(RSV + 2 * i, 2)}")
    for i in range(8):
        a(f"v_cvt_pk_bf16_f32 v{64 + i}, v{ACC + 2 * i}, v{ACC + 2 * i + 1}")
    a(f"buffer_store_dwordx4 v[64:67], v3, {sr(S_WS)}, s{T1} offen sc1")
    a(f"buffer_store_dwordx4 v[68:71], v3, {sr(S_WS)}, s{T1} offen offset:512 sc1")
    a("s_branch L_epi2")

    def qk_half(accb, tmpb):
        a(f"s_cmp_lt_u32 s{sG}, 32")
        a(f"s_cselect_b32 s{T0}, {hx(f2u(QSCALE))}, 1.0")
        a(f"v_mul_f32 v20, s{T0}, v{RS}")
        a(f"s_lshl_b32 s{T1}, s{sG}, 16")
        a(f"s_lshl_b32 s{T2}, s{sT}, 10")
        a(f"s_add_u32 s{T1}, s{T1}, s{T2}")
        for i in range(4):
            a(f"v_pk_mul_f32 {vr(accb + 2 * i, 2)}, {vr(accb + 2 * i, 2)}, v[20:21] op_sel_hi:[1,0]")
        for i in range(4):
            a(f"v_cvt_pk_bf16_f32 v{tmpb + i}, v{accb + 2 * i}, v{accb + 2 * i + 1}")
        a(f"buffer_store_dwordx4 {vr(tmpb, 4)}, v{L16}, {sr(S_WS)}, s{T1} offen sc1")

    a("L_epiQK:")
    a("s_nop 1")
    qk_half(ACC, 64)
    a(f"s_add_u32 s{sG}, s{sG}, 1")
    qk_half(ACC + 8, 68)
    a("L_epi2:")
    stamp(a, 4)

    def sig_qkv(lbl, mask):
        a("s_barrier")
        a(f"s_cmp_lg_u32 s{sW}, 0")
        a(f"s_cbranch_scc1 {lbl}")
        a(f"s_lshl_b32 s{T0}, s{sU0}, 8")
        a(f"s_add_u32 s{T0}, s{T0}, {WS_CNT}")
        a("v_lshlrev_b32 v1, 8, v0")
        a("v_mov_b32 v2, 1")
        a(f"s_mov_b64 exec, {mask}")
        a(f"buffer_atomic_add v2, v1, {sr(S_WS)}, s{T0} offen sc1")
        a("s_mov_b64 exec, -1")
        a(f"{lbl}:")

    a(f"s_cmp_eq_u32 s{sISC}, 1")
    a("s_cbranch_scc1 L_epiC")
    a(f"s_mul_i32 s{T3}, s{sT}, 112")
    a(f"s_lshl1_add_u32 s{T0}, s{sCB}, s{sHF}")
    a(f"s_lshl2_add_u32 s{T3}, s{T0}, s{T3}")
    a(f"s_lshl_b32 s{T3}, s{T3}, 10")
    a(f"s_add_u32 s{T3}, s{T3}, {WS_H}")
    a(f"v_mov_b32 v20, {hx(f2u(GC2))}")
    a(f"v_mov_b32 v21, {hx(f2u(GC1))}")
    for c in range(4):
        g = ACC + 16 * (1 + c)
        u = g + 8
        q = 32 + (c & 1) * 8
        o = 48 + c * 4
        for i in range(4):
            a(f"v_pk_mul_f32 {vr(g + 2 * i, 2)}, {vr(g + 2 * i, 2)}, {vr(RS, 2)} op_sel_hi:[1,0]")
        for i in range(4):
            a(f"v_pk_mul_f32 {vr(q + 2 * i, 2)}, {vr(g + 2 * i, 2)}, {vr(g + 2 * i, 2)}")
        for i in range(4):
            a(f"v_pk_fma_f32 {vr(q + 2 * i, 2)}, {vr(q + 2 * i, 2)}, v[20:21], v[20:21] op_sel:[0,0,1] op_sel_hi:[1,0,1]")
        for i in range(4):
            a(f"v_pk_mul_f32 {vr(q + 2 * i, 2)}, {vr(q + 2 * i, 2)}, {vr(g + 2 * i, 2)}")
        for i in range(8):
            a(f"v_exp_f32 v{q + i}, v{q + i}")
        for i in range(4):
            a(f"v_pk_mul_f32 {vr(g + 2 * i, 2)}, {vr(g + 2 * i, 2)}, {vr(u + 2 * i, 2)}")
        for i in range(4):
            a(f"v_pk_fma_f32 {vr(q + 2 * i, 2)}, {vr(q + 2 * i, 2)}, {vr(SD, 2)}, {vr(SD, 2)} op_sel_hi:[1,0,0]")
        for i in range(8):
            a(f"v_rcp_f32 v{q + i}, v{q + i}")
        a("s_nop 0")
        for i in range(4):
            a(f"v_pk_mul_f32 {vr(g + 2 * i, 2)}, {vr(g + 2 * i, 2)}, {vr(q + 2 * i, 2)}")
        for i in range(4):
            a(f"v_cvt_pk_bf16_f32 v{o + i}, v{g + 2 * i}, v{g + 2 * i + 1}")
        a(f"buffer_store_dwordx4 {vr(o, 4)}, v{L16}, {sr(S_WS)}, s{T3} offen offset:{c * 1024} sc1")
        if c == SIGPOS:
            a(f"s_waitcnt vmcnt({c + 1})")
            sig_qkv("L_sq_a", 1)
    a("s_branch L_p2")
    a("L_epiC:")
    a(f"s_add_u32 s{sG}, s{sU0}, s{sHF}")
    a(f"s_add_u32 s{sG}, s{sG}, 1")
    a(f"s_lshl_b32 s{sG}, s{sG}, 2")
    for c in range(4):
        qk_half(ACC + 16 * (1 + c), 32 + 8 * c)
        a(f"s_add_u32 s{sG}, s{sG}, 8")
        qk_half(ACC + 16 * (1 + c) + 8, 36 + 8 * c)
        if c != 3:
            a(f"s_sub_u32 s{sG}, s{sG}, 7")
    a("s_waitcnt vmcnt(0)")
    sig_qkv("L_sq_c", 31)


SIGPOS = 1

Q_, K_, NM, S0, S1, P_, O_, V_, G_, RING = 8, 12, 20, 36, 52, 68, 76, 92, 124, 188
AK, AV, A16, AOUT, AW = 236, 237, 238, 239, 240
NVGPR = 244


def att_step(i, ex=None, first=False):
    ex = ex or {}
    Sc, Sn = (S0, S1) if i % 2 == 0 else (S1, S0)
    Kn = K_ + 4 * ((i + 1) % 2)
    Vc = V_ + 8 * (i % 4)
    Vp = V_ + 8 * ((i - 1) % 4)
    e = lambda k: f"v_exp_f32 v{Sc + k}, v{Sc + k}"
    c = lambda k: f"v_cvt_pk_bf16_f32 v{P_ + k}, v{Sc + 2 * k}, v{Sc + 2 * k + 1}"
    r = [mfma(Sn, Kn, Q_, NM),
         f"ds_read_b128 {vr(Kn, 4)}, v{AK} offset:{(i + 3) * 2048}"]
    r += ex.get("qk", [])
    r += [e(0), e(1), e(2), e(3)]
    if not first:
        r.append(mfma(O_, Vp + 4, P_ + 4))
    if i % 2 == 0:
        r.append(f"s_mov_b64 exec, s[{tVM}:{tVM + 1}]")
        for d in (2, 3):
            vb = V_ + 8 * ((i + d) % 4)
            r.append(f"ds_read_b128 {vr(vb, 4)}, v{AV} offset:{(i + d) * 2048}")
            r.append(f"ds_read_b128 {vr(vb + 4, 4)}, v{AV} offset:{(i + d) * 2048 + 512}")
        r.append("s_mov_b64 exec, -1")
    r += ex.get("pv1", [])
    if "G2" in ex:
        r += [c(0), e(4), e(5), c(1)]
        r += [ex["G1"]] + ex.get("g1", [])
        r += [e(6), e(7), e(8), c(2), c(3), e(9)]
        r += ["s_nop 0", mfma(O_, Vc, P_)]
        if i % 2 == 1: r.append("s_waitcnt lgkmcnt(0)")
        r += ex.get("pv0", [])
        r += [e(10), e(11), c(4), e(12), c(5)]
        r += [ex["G2"]] + ex.get("g2", [])
        r += [e(13), e(14), e(15), c(6), c(7)]
    else:
        r += [c(0), e(4), e(5), c(1), e(6), e(7)]
        if "G1" in ex:
            r += [ex["G1"]]
        r += ex.get("g1", [])
        r += [e(8), c(2), c(3), e(9), e(10), e(11)]
        r.append(mfma(O_, Vc, P_))
        if i % 2 == 1: r.append("s_waitcnt lgkmcnt(0)")
        r += ex.get("pv0", [])
        r += [c(4), e(12), e(13), c(5), e(14), e(15), c(6), c(7)]
    r += ex.get("end", [])
    return r


def ring_loads(r):
    b = RING + 16 * r
    return [f"buffer_load_dwordx4 {vr(b, 4)}, v{A16}, {sr(R_H0)}, s{tFH} offen sc1",
            f"buffer_load_dwordx4 {vr(b + 4, 4)}, v{A16}, {sr(R_H1)}, s{tFH} offen sc1",
            f"buffer_load_dwordx4 {vr(b + 8, 4)}, v{A16}, {sr(R_WT)}, s{tFW} offen sc1",
            f"buffer_load_dwordx4 {vr(b + 12, 4)}, v{A16}, {sr(R_WT)}, s{tFW} offen offset:1024 sc1",
            f"s_add_u32 s{tFH}, s{tFH}, 1024",
            f"s_add_u32 s{tFW}, s{tFW}, 2048"]


def gm(r, n):
    b = RING + 16 * r
    return mfma(G_ + 16 * n, b + 8 + 4 * (n & 1), b + 4 * (n >> 1))


def adv(a):
    a(f"v_add_u32 v{AK}, 0x4000, v{AK}")
    a(f"v_add_u32 v{AV}, 0x4000, v{AV}")


def gen_p2(a):
    a("L_p2:")
    stamp(a, 5)
    a(f"v_mov_b32 v{A16}, v{L16}")
    a(f"s_lshr_b32 s{T1}, s2, 3")
    a(f"s_and_b32 s{T2}, s{T1}, 3")
    a(f"s_lshl2_add_u32 s{tHEAD}, s{sXCD}, s{T2}")
    a(f"s_lshr_b32 s{tQB}, s{T1}, 2")
    a(f"s_lshl_b32 s{T3}, s{sXCD}, 8")
    a(f"s_add_u32 s{T3}, s{T3}, {WS_CNT}")
    a("v_lshlrev_b32 v6, 11, v0")
    a(f"s_cmp_lg_u32 s{sW}, 0")
    a("s_cbranch_scc1 L_q_np")
    a("s_mov_b64 exec, 7")
    a(f"buffer_load_dword v7, v6, {sr(S_WS)}, s{T3} offen sc1")
    a("s_mov_b64 exec, -1")
    a("L_q_np:")
    a(f"s_mul_i32 s{T0}, s{tHEAD}, {224 * 1024}")
    a(f"s_add_u32 s{T0}, s{T0}, {WS_H}")
    a(f"s_add_u32 s{R_H0}, s{pWS}, s{T0}")
    a(f"s_addc_u32 s{R_H0 + 1}, s{pWS + 1}, 0")
    a(f"s_add_u32 s{R_H1}, s{R_H0}, {112 * 1024}")
    a(f"s_addc_u32 s{R_H1 + 1}, s{R_H0 + 1}, 0")
    a(f"s_mul_i32 s{tFH}, s{sW}, {14 * 1024}")
    a(f"s_add_u32 s{R_H0 + 2}, s{tFH}, {14 * 1024}")
    a(f"s_mov_b32 s{R_H1 + 2}, s{R_H0 + 2}")
    a(f"s_mul_i32 s{T0}, s{tQB}, {144 * 2048}")
    a(f"s_add_u32 s{T0}, s{T0}, {WS_WT}")
    a(f"s_add_u32 s{R_WT}, s{pWS}, s{T0}")
    a(f"s_addc_u32 s{R_WT + 1}, s{pWS + 1}, 0")
    a(f"s_lshl_b32 s{tFW}, s{tFH}, 1")
    a(f"s_lshl_b32 s{R_WT + 2}, s{R_H0 + 2}, 1")
    srd(a, R_OUT, pOUT, 2097152)
    a(f"v_mov_b32 v{AK}, v{A16}")
    a("v_lshrrev_b32 v2, 5, v0")
    a("v_and_b32 v3, 15, v0")
    a("v_lshlrev_b32 v3, 4, v3")
    a("v_lshl_add_u32 v3, v2, 8, v3")
    a(f"v_add_u32 v{AV}, 1024, v3")
    a(f"s_lshl_b32 s{T0}, s{sW}, 11")
    a(f"v_add_u32 v{AW}, s{T0}, v{A16}")
    a(f"v_add_u32 v{AW + 1}, 0x10000, v{AW}")
    a(f"v_add_u32 v{AW + 2}, 0x20000, v{AW}")
    a(f"s_lshr_b32 s{T0}, s{sW}, 2")
    a(f"s_lshl1_add_u32 s{tTT}, s{tHEAD}, s{T0}")
    a(f"s_lshl_b32 s{T0}, s{tTT}, 15")
    a(f"s_lshl_b32 s{T1}, s{tQB}, 7")
    a(f"s_add_u32 s{T0}, s{T0}, s{T1}")
    a(f"s_and_b32 s{T1}, s{sW}, 3")
    a(f"s_lshl_b32 s{T1}, s{T1}, 4")
    a(f"s_add_u32 s{T0}, s{T0}, s{T1}")
    a("v_and_b32 v1, 31, v0")
    a("v_lshlrev_b32 v1, 10, v1")
    a("v_lshl_add_u32 v1, v2, 6, v1")
    a(f"v_add_u32 v{AOUT}, s{T0}, v1")
    a(f"s_mov_b32 s{tVM}, 0x0000ffff")
    a(f"s_mov_b32 s{tVM + 1}, 0x0000ffff")
    a("v_and_b32 v3, 27, v0")
    a("v_cmp_eq_u32 vcc, 16, v3")
    a("v_mov_b32 v4, 0x3f803f80")
    a("v_mov_b32 v5, 0")
    a("v_cndmask_b32 v2, v5, v4, vcc")
    a("v_mov_b32 v3, v2")
    for i in range(0, 32, 2):
        a(f"v_mov_b64 v[{V_ + i}:{V_ + i + 1}], v[2:3]")
    for i in range(0, 64, 2):
        a(f"v_mov_b64 v[{G_ + i}:{G_ + i + 1}], 0")
    for i in range(0, 16, 2):
        a(f"v_mov_b64 v[{O_ + i}:{O_ + i + 1}], 0")
    a("s_waitcnt vmcnt(0)")
    a(f"s_cmp_lg_u32 s{sW}, 0")
    a("s_cbranch_scc1 L_q_ok")
    a(f"s_mov_b32 s{T1}, {SPIN}")
    a("s_mov_b64 exec, 7")
    a("L_q_poll:")
    a("v_cmp_gt_u32 vcc, 16, v7")
    a("s_cmp_eq_u64 vcc, 0")
    a("s_cbranch_scc1 L_q_done")
    a(f"buffer_load_dword v7, v6, {sr(S_WS)}, s{T3} offen sc1")
    a("s_waitcnt vmcnt(0)")
    a(f"s_sub_u32 s{T1}, s{T1}, 1")
    a(f"s_cmp_lg_u32 s{T1}, 0")
    a("s_cbranch_scc1 L_q_poll")
    a("L_q_done:")
    a("s_mov_b64 exec, -1")
    a("L_q_ok:")
    a("s_barrier")
    stamp(a, 6)
    a(f"s_cmp_lg_u32 s{sW}, 0")
    a("s_cbranch_scc1 L_h_ns")
    a(f"s_lshl_b32 s{T0}, s{sRB}, 8")
    a(f"s_add_u32 s{T0}, s{T0}, {WS_CNT + 24 * 256}")
    a("v_mov_b32 v2, 1")
    a("s_mov_b64 exec, 1")
    a(f"buffer_atomic_add v2, off, {sr(S_WS)}, s{T0} sc1")
    a("s_mov_b64 exec, -1")
    a("L_h_ns:")
    a(f"s_lshl_b32 s{T0}, s{tHEAD}, 16")
    a(f"s_add_u32 s{T0}, s{T0}, s{sLW}")
    a(f"s_lshl_b32 s{T1}, s{tQB}, 13")
    a(f"s_add_u32 s{T1}, s{T1}, s{T0}")
    a(f"buffer_load_dwordx4 {vr(Q_, 4)}, v{A16}, {sr(S_WS)}, s{T1} offen sc1")
    a(f"s_add_u32 s{T0}, s{T0}, {32 << 16}")
    a(f"s_lshl_b32 s{T2}, s{sW}, 11")

    def kv(i):
        return [f"s_add_u32 m0, s{T2}, {i * 16384}",
                f"s_add_u32 s{T1}, s{T0}, {32 << 16}",
                f"buffer_load_dwordx4 v{A16}, {sr(S_WS)}, s{T0} offen sc1 lds",
                f"s_add_u32 m0, m0, 1024",
                f"s_add_u32 s{T0}, s{T0}, 8192",
                f"buffer_load_dwordx4 v{A16}, {sr(S_WS)}, s{T1} offen sc1 lds"]
    for i in range(2):
        a(kv(i))
    a("s_waitcnt vmcnt(2)")
    a("s_barrier")
    for i in range(2, 8):
        a(kv(i))
    stamp(a, 7)
    a(f"ds_read_b128 {vr(K_, 4)}, v{AK}")
    a(f"ds_read_b128 {vr(K_ + 4, 4)}, v{AK} offset:2048")
    a(f"s_mov_b64 exec, s[{tVM}:{tVM + 1}]")
    for d in range(2):
        a(f"ds_read_b128 {vr(V_ + 8 * d, 4)}, v{AV} offset:{d * 2048}")
        a(f"ds_read_b128 {vr(V_ + 8 * d + 4, 4)}, v{AV} offset:{d * 2048 + 512}")
    a("s_mov_b64 exec, -1")
    a("s_waitcnt lgkmcnt(4)")
    a(mfma(S0, K_, Q_, "0"))
    a(mfma(S1, K_ + 4, Q_, "0"))
    a("s_nop 11")
    a(f"v_max3_f32 v1, v{S0}, v{S0 + 1}, v{S0 + 2}")
    for i in range(3, 31, 2):
        a(f"v_max3_f32 v1, v1, v{S0 + i}, v{S0 + i + 1}")
    a(f"v_max_f32 v1, v1, v{S0 + 31}")
    a("v_mov_b32 v2, v1")
    a("s_nop 1")
    a("v_permlane32_swap_b32 v1, v2")
    a("v_max_f32 v1, v1, v2")
    a(f"v_sub_f32 v2, {hx(f2u(-MAXOFF))}, v1")
    a("v_mov_b32 v3, v2")
    for i in range(0, 16, 2):
        a(f"v_mov_b64 v[{NM + i}:{NM + i + 1}], v[2:3]")
    a("s_nop 1")
    a(mfma(S0, K_, Q_, NM))
    a(f"ds_read_b128 {vr(K_, 4)}, v{AK} offset:4096")
    a("s_nop 7")
    a("s_waitcnt lgkmcnt(0)")
    a("s_nop 1")
    a(f"s_mov_b32 s{T3}, {WS_CNT + 24 * 256}")
    a("v_lshlrev_b32 v6, 8, v0")
    for i in range(8):
        ex = {}
        if i == 3:
            ex["pv0"] = [f"s_cmp_lg_u32 s{sW}, 0", "s_cbranch_scc1 L_h_np",
                         "s_mov_b64 exec, 0xffff",
                         f"buffer_load_dword v7, v6, {sr(S_WS)}, s{T3} offen sc1", "s_mov_b64 exec, -1", "L_h_np:"]
        if i == 4:
            ex["end"] = ["s_waitcnt vmcnt(0)",
                         f"s_cmp_lg_u32 s{sW}, 0", "s_cbranch_scc1 L_h_ok",
                         f"s_mov_b32 s{T1}, {SPIN}",
                         "s_mov_b64 exec, 0xffff",
                         "L_h_poll:",
                         "v_cmp_gt_u32 vcc, 16, v7",
                         "s_cmp_eq_u64 vcc, 0", "s_cbranch_scc1 L_h_done",
                         f"buffer_load_dword v7, v6, {sr(S_WS)}, s{T3} offen sc1",
                         "s_waitcnt vmcnt(0)",
                         f"s_sub_u32 s{T1}, s{T1}, 1", f"s_cmp_lg_u32 s{T1}, 0", "s_cbranch_scc1 L_h_poll",
                         "L_h_done:", "s_mov_b64 exec, -1",
                         "L_h_ok:", "s_barrier"]
        if i in (5, 6, 7):
            l = ring_loads(i - 5)
            ex["qk"] = l[0:1]
            ex["pv1"] = l[1:3]
            ex["pv0"] = l[3:6]
        a(att_step(i, ex, first=(i == 0)))
    stamp(a, 8)
    a(f"s_mov_b32 s{tIT}, 5")
    a("L_loop:")
    adv(a)
    plan = [[(0, 0)], [(0, 1), (0, 2)], [(0, 3)], [(1, 0), (1, 1)], [(1, 2)], [(1, 3), (2, 0)], [(2, 1)], [(2, 2), (2, 3)]]
    for i in range(8):
        ex = {}
        ex["G1"] = gm(*plan[i][0])
        if len(plan[i]) > 1:
            ex["G2"] = gm(*plan[i][1])
        if i == 0: ex["qk"] = ["s_waitcnt vmcnt(8)"]
        if i == 2:
            l = ring_loads(0)
            ex["g1"] = l[0:2]
            ex["pv0"] = l[2:6]
        if i == 3: ex["pv1"] = ["s_waitcnt vmcnt(8)"]
        if i == 5:
            l = ring_loads(1)
            ex["g1"] = l[0:2]
            ex["pv0"] = l[2:6] + ["s_waitcnt vmcnt(8)"]
        if i == 7:
            ex["g2"] = ring_loads(2)
        a(att_step(i, ex))
    a(f"s_sub_u32 s{tIT}, s{tIT}, 1")
    a(f"s_cmp_lg_u32 s{tIT}, 0")
    a("s_cbranch_scc1 L_loop")
    adv(a)
    a("s_barrier")
    for i in range(8):
        base, off = (AW, i * 16384) if i < 4 else ((AW + 1, (i - 4) * 16384) if i < 6 else (AW + 2, (i - 6) * 16384))
        w0 = f"ds_write_b128 v{base}, {vr(G_ + 8 * i, 4)} offset:{off}"
        w1 = f"ds_write_b128 v{base}, {vr(G_ + 8 * i + 4, 4)} offset:{off + 1024}"
        ex = {"pv1": [w0, w1]} if i % 2 == 1 else {"pv0": [w0, w1]}
        a(att_step(i, ex))
    adv(a)
    a(f"s_and_b32 s{T0}, s{sW}, 3")
    a(f"s_lshl_b32 s{T0}, s{T0}, 14")
    a(f"s_add_u32 s{T0}, s{T0}, {112 * 2048}")
    a(f"s_mov_b32 s{R_WT + 2}, {144 * 2048}")
    for i in range(8):
        ex = {}
        if i < 4:
            l = [f"buffer_load_dwordx4 {vr(G_ + 16 * i + 4 * q, 4)}, v{A16}, {sr(R_WT)}, s{T0} offen offset:{q * 1024} sc1" for q in range(4)]
            ex["qk"] = l[0:1]
            ex["pv1"] = l[1:2]
            ex["pv0"] = l[2:4] + [f"s_add_u32 s{T0}, s{T0}, 4096"]
        if i == 4:
            ex["pv0"] = [f"buffer_load_dwordx4 {vr(RING, 4)}, v{AOUT}, {sr(S_X)}, 0 offen"]
        a(att_step(i, ex))
    a("s_nop 1")
    a(mfma(O_, V_ + 24 + 4, P_ + 4))
    a(f"s_lshl_b32 s{T0}, s{tQB}, 3")
    a(f"s_add_u32 s{T0}, s{T0}, s{sW}")
    a(f"s_lshl_b32 s{T0}, s{T0}, 5")
    a(f"s_add_u32 s{T0}, s{T0}, s{tHEAD}")
    a(f"s_lshl_b32 s{T0}, s{T0}, 10")
    a(f"s_add_u32 s{T3}, s{T0}, {WS_O}")
    a(f"v_mov_b32 v2, {hx(f2u(2.0 ** 120))}")
    a(f"v_mov_b32 v3, {hx(f2u(2.0 ** -90))}")
    a("s_waitcnt lgkmcnt(0)")
    a("s_nop 3")
    stamp(a, 9)
    a(f"v_add_f32 v1, |v{O_}|, |v{O_ + 1}|")
    for i in range(2, 8):
        a(f"v_add_f32 v1, v1, |v{O_ + i}|")
    a(f"v_cmp_lt_f32 s[40:41], v{O_ + 8}, v2")
    a("v_cmp_lt_f32 s[42:43], v1, v2")
    a(f"v_cmp_le_f32 s[50:51], 0.5, v{O_ + 8}")
    a("v_cmp_le_f32 vcc, v3, v1")
    a("s_or_b64 s[50:51], s[50:51], vcc")
    a("s_and_b64 s[40:41], s[40:41], s[42:43]")
    a("s_and_b64 s[40:41], s[40:41], s[50:51]")
    a("s_cmp_eq_u64 s[40:41], -1")
    a("s_cbranch_scc0 L_fallback")
    a("L_norm:")
    a(f"v_rcp_f32 v2, v{O_ + 8}")
    a("s_nop 0")
    for i in range(4):
        a(f"v_pk_mul_f32 {vr(O_ + 2 * i, 2)}, {vr(O_ + 2 * i, 2)}, v[2:3] op_sel_hi:[1,0]")
    for i in range(4):
        a(f"v_cvt_pk_bf16_f32 v{4 + i}, v{O_ + 2 * i}, v{O_ + 2 * i + 1}")
    a(f"buffer_store_dwordx4 v[4:7], v{A16}, {sr(S_WS)}, s{T3} offen sc1")
    a(f"s_lshl_b32 s{T0}, s{sW}, 14")
    a(f"s_add_u32 s{T1}, s{T0}, 0x8000")
    a(f"s_cmp_lt_u32 s{sW}, 6")
    a(f"s_cselect_b32 s{T0}, s{T0}, s{T1}")
    a(f"v_add_u32 v3, s{T0}, v{A16}")
    a("s_waitcnt vmcnt(0)")
    a("s_barrier")
    stamp(a, 10)
    a(f"s_cmp_lg_u32 s{sW}, 0")
    a("s_cbranch_scc1 L_o_ns")
    a(f"s_lshl_b32 s{T0}, s{tQB}, 8")
    a(f"s_add_u32 s{T0}, s{T0}, {WS_CNT + 40 * 256}")
    a("v_mov_b32 v1, 1")
    a("s_mov_b64 exec, 1")
    a(f"buffer_atomic_add v1, off, {sr(S_WS)}, s{T0} sc1")
    a("s_mov_b64 exec, -1")
    a("L_o_ns:")
    F_ = 8
    for s in range(8):
        for i in range(2):
            a(f"ds_read_b128 {vr(F_ + 8 * s + 4 * i, 4)}, v3 offset:{(s * 2 + i) * 1024}")
        if s == 6:
            a("s_waitcnt lgkmcnt(10)")
    for s in range(1, 8):
        a(f"s_waitcnt lgkmcnt({2 * (7 - s)})")
        for i in range(4):
            a(f"v_pk_add_f32 {vr(F_ + 2 * i, 2)}, {vr(F_ + 2 * i, 2)}, {vr(F_ + 8 * s + 2 * i, 2)}")
    T_ = F_ + 8
    a(f"v_mov_b32 v4, {hx(f2u(-LOG2E))}")
    for i in range(4):
        a(f"v_pk_mul_f32 {vr(T_ + 2 * i, 2)}, {vr(F_ + 2 * i, 2)}, v[4:5] op_sel_hi:[1,0]")
    for i in range(8):
        a(f"v_exp_f32 v{T_ + i}, v{T_ + i}")
    a("s_nop 0")
    for i in range(4):
        a(f"v_pk_add_f32 {vr(T_ + 2 * i, 2)}, {vr(T_ + 2 * i, 2)}, 1.0 op_sel_hi:[1,0]")
    for i in range(8):
        a(f"v_rcp_f32 v{T_ + i}, v{T_ + i}")
    a("s_nop 0")
    for i in range(4):
        a(f"v_pk_mul_f32 {vr(F_ + 2 * i, 2)}, {vr(F_ + 2 * i, 2)}, {vr(T_ + 2 * i, 2)}")
    XU = 24
    for i in range(4):
        a(f"v_lshlrev_b32 v{XU + 2 * i}, 16, v{RING + i}")
        a(f"v_and_b32 v{XU + 2 * i + 1}, 0xffff0000, v{RING + i}")
    a(f"s_lshr_b32 s{T0}, s{sW}, 2")
    a(f"s_lshl_b32 s{T0}, s{T0}, 15")
    a(f"s_and_b32 s{T1}, s{sW}, 3")
    a(f"s_lshl_b32 s{T2}, s{T1}, 11")
    a(f"s_add_u32 s{T0}, s{T0}, s{T2}")
    a(f"v_add_u32 v1, s{T0}, v{A16}")
    a(f"s_lshl_b32 s{T0}, s{sW}, 13")
    a(f"v_add_u32 v3, s{T0}, v{A16}")
    a(f"s_lshl_b32 s{T0}, s{tTT}, 5")
    a(f"s_lshl_b32 s{T1}, s{T1}, 3")
    a(f"s_add_u32 s{T0}, s{T0}, s{T1}")
    a(f"s_lshl_b32 s{T0}, s{T0}, 10")
    a(f"s_add_u32 s{T2}, s{T0}, {WS_O}")
    a(f"s_add_u32 s{T3}, s{T2}, 4096")
    stamp(a, 11)
    a(f"s_cmp_lg_u32 s{sW}, 0")
    a("s_cbranch_scc1 L_o_ok")
    a(f"s_lshl_b32 s{T0}, s{sXCD}, 8")
    a(f"s_add_u32 s{T0}, s{T0}, {WS_CNT + 40 * 256}")
    a(f"s_mov_b32 s{T1}, {SPIN}")
    a("L_o_poll:")
    a(f"buffer_load_dword v4, off, {sr(S_WS)}, s{T0} sc1")
    a("s_waitcnt vmcnt(0)")
    a("v_readfirstlane_b32 s40, v4")
    a("s_cmp_ge_u32 s40, 32")
    a("s_cbranch_scc1 L_o_ok")
    a(f"s_sub_u32 s{T1}, s{T1}, 1")
    a(f"s_cmp_lg_u32 s{T1}, 0")
    a("s_cbranch_scc1 L_o_poll")
    a("L_o_ok:")
    a("s_barrier")
    stamp(a, 12)
    OF = RING + 8
    SA = V_
    for j in range(8):
        so = T2 if j < 4 else T3
        a(f"buffer_load_dwordx4 {vr(OF + 4 * j, 4)}, v{A16}, {sr(S_WS)}, s{so} offen offset:{(j % 4) * 1024} sc1")
    for j in range(8):
        a(f"s_waitcnt vmcnt({7 - j})")
        for ap in range(2):
            a(mfma(SA + 16 * ap, G_ + 8 * j + 4 * ap, OF + 4 * j, "0" if j == 0 else None))
    stamp(a, 13)
    a("s_nop 11")
    for o in range(4):
        for i in range(2):
            a(f"ds_write_b128 v1, {vr(SA + 8 * o + 4 * i, 4)} offset:{o * 8192 + i * 1024}")
    a("s_waitcnt lgkmcnt(0)")
    a("s_barrier")
    for s in range(4):
        for i in range(2):
            a(f"ds_read_b128 {vr(SA + 8 * s + 4 * i, 4)}, v3 offset:{(s * 2 + i) * 1024}")
    for s in range(1, 4):
        a(f"s_waitcnt lgkmcnt({2 * (3 - s)})")
        for i in range(4):
            a(f"v_pk_add_f32 {vr(SA + 2 * i, 2)}, {vr(SA + 2 * i, 2)}, {vr(SA + 8 * s + 2 * i, 2)}")
    for i in range(4):
        a(f"v_pk_fma_f32 {vr(XU + 2 * i, 2)}, {vr(SA + 2 * i, 2)}, {vr(F_ + 2 * i, 2)}, {vr(XU + 2 * i, 2)}")
    for i in range(4):
        a(f"v_cvt_pk_bf16_f32 v{4 + i}, v{XU + 2 * i}, v{XU + 2 * i + 1}")
    a(f"buffer_store_dwordx4 v[4:7], v{AOUT}, {sr(R_OUT)}, 0 offen")
    stamp(a, 14)
    stamp_flush(a)
    a("L_exit:")
    a("s_endpgm")
    a("L_fallback:")
    a(f"s_lshl_b32 s{T0}, s{tHEAD}, 16")
    a(f"s_add_u32 s{T0}, s{T0}, {32 << 16}")
    a(f"s_mov_b32 s{T1}, 0")
    a("v_mov_b32 v1, 0xff800000")
    a("L_fb1:")
    a(f"s_add_u32 s{T2}, s{T0}, s{T1}")
    a(f"buffer_load_dwordx4 {vr(K_, 4)}, v{A16}, {sr(S_WS)}, s{T2} offen sc1")
    a("s_waitcnt vmcnt(0)")
    a(mfma(S0, K_, Q_, "0"))
    a("s_nop 15")
    for i in range(0, 16, 2):
        a(f"v_max3_f32 v1, v1, v{S0 + i}, v{S0 + i + 1}")
    a(f"s_add_u32 s{T1}, s{T1}, 1024")
    a(f"s_cmp_lt_u32 s{T1}, 65536")
    a("s_cbranch_scc1 L_fb1")
    a("v_mov_b32 v2, v1")
    a("s_nop 1")
    a("v_permlane32_swap_b32 v1, v2")
    a("v_max_f32 v1, v1, v2")
    a("v_sub_f32 v1, 0, v1")
    for i in range(16):
        a(f"v_mov_b32 v{NM + i}, v1")
    for i in range(16):
        a(f"v_mov_b32 v{O_ + i}, 0")
    a("v_lshrrev_b32 v2, 5, v0")
    a("v_and_b32 v3, 15, v0")
    a("v_lshlrev_b32 v3, 4, v3")
    a("v_lshl_add_u32 v3, v2, 8, v3")
    a(f"s_mov_b32 s{T1}, 0")
    a("L_fb2:")
    a(f"s_add_u32 s{T2}, s{T0}, s{T1}")
    a(f"buffer_load_dwordx4 {vr(K_, 4)}, v{A16}, {sr(S_WS)}, s{T2} offen sc1")
    a(f"s_add_u32 s{T2}, s{T2}, {32 << 16}")
    a(f"s_mov_b64 exec, s[{tVM}:{tVM + 1}]")
    a(f"buffer_load_dwordx4 {vr(V_, 4)}, v3, {sr(S_WS)}, s{T2} offen sc1")
    a(f"buffer_load_dwordx4 {vr(V_ + 4, 4)}, v3, {sr(S_WS)}, s{T2} offen offset:512 sc1")
    a("s_mov_b64 exec, -1")
    a("s_waitcnt vmcnt(0)")
    a(mfma(S0, K_, Q_, NM))
    a("s_nop 15")
    for i in range(16):
        a(f"v_exp_f32 v{S0 + i}, v{S0 + i}")
    a("s_nop 0")
    for i in range(8):
        a(f"v_cvt_pk_bf16_f32 v{P_ + i}, v{S0 + 2 * i}, v{S0 + 2 * i + 1}")
    a("s_nop 1")
    a(mfma(O_, V_, P_))
    a(mfma(O_, V_ + 4, P_ + 4))
    a(f"s_add_u32 s{T1}, s{T1}, 1024")
    a(f"s_cmp_lt_u32 s{T1}, 65536")
    a("s_cbranch_scc1 L_fb2")
    a("s_nop 15")
    a("s_branch L_norm")


def main(out):
    a = Asm()
    k = NAME + "_kernel"
    hdr = ["; LN + MHA + GEGLU block, one persistent launch; generated by gen2.py (hand-scheduled gfx950 assembly)",
           "; @launch grid=(256,1,1) block=(512,1,1) lds=163840"]
    a('.amdgcn_target "amdgcn-amd-amdhsa--gfx950"')
    a(".text")
    a(f".globl {k}\n.p2align 8\n.type {k},@function\n{k}:")
    gen_p1(a)
    gen_p2(a)
    a('.section .rodata,"a"')
    a(".p2align 6")
    a(f".amdhsa_kernel {k}")
    a(f".amdhsa_next_free_vgpr {NVGPR}")
    a(f".amdhsa_next_free_sgpr {96 if STAMPS else 80}")
    a(f".amdhsa_accum_offset {(NVGPR + 3) // 4 * 4}")
    a(".amdhsa_group_segment_fixed_size 0")
    a(".amdhsa_kernarg_size 80")
    a(".amdhsa_user_sgpr_count 2")
    a(".amdhsa_user_sgpr_kernarg_segment_ptr 1")
    a(".amdhsa_system_sgpr_workgroup_id_x 1")
    a(".end_amdhsa_kernel")
    open(out, "w").write("\n".join(hdr) + "\n" + a.text())


if __name__ == "__main__":
    for x in list(sys.argv):
        if x.startswith("--opt="):
            OPT = set(x[6:].split(","))
            sys.argv.remove(x)
    if "--cyc" in sys.argv:
        STAMPS = 2
        sys.argv.remove("--cyc")
    if "--stamps" in sys.argv:
        STAMPS = True
        sys.argv.remove("--stamps")
    main(sys.argv[1] if len(sys.argv) > 1 else f"cdna_kernels/{NAME}.s")
```

```python
import sys, struct, math

NAME = "recurrent_scan__mha_block__glu_gated_geglu__prompt"

WS_QKV = 0
WS_H = 6 << 20
WS_O = 14 << 20
WS_CNT = 16 << 20
WS_STAMP = (16 << 20) + 65536
WS_CS = (16 << 20) + 0x90000
WS_WT = 17 << 20
WS_SIZE = 20 << 20
OOB = 0x7f000000

LOG2E = 1.4426950408889634
QSCALE = 0.25 * LOG2E
GC1 = -2.0 * LOG2E * math.sqrt(2.0 / math.pi)
GC2 = GC1 * 0.044715
MAXOFF = 80.0
SPIN = 0x40000

STAMPS = False
OPT = set()
NOSTAMP = False


def f2u(x):
    return struct.unpack("<I", struct.pack("<f", x))[0]


def hx(x):
    return "0x%08x" % (x & 0xffffffff)


class Asm:
    def __init__(self):
        self.l = []

    def __call__(self, s):
        if isinstance(s, (list, tuple)):
            for x in s:
                self(x)
            return
        for line in s.split("\n"):
            line = line.strip()
            if not line:
                continue
            if line.endswith(":") or line.startswith("."):
                self.l.append(line)
            else:
                self.l.append("    " + line)

    def text(self):
        return "\n".join(self.l) + "\n"


def vr(b, n):
    return f"v[{b}:{b + n - 1}]"


def sr(b):
    return f"s[{b}:{b + 3}]"


def mfma(d, a, b, c=None):
    cs = vr(d, 16) if c is None else (c if isinstance(c, str) else vr(c, 16))
    return f"v_mfma_f32_32x32x16_bf16 {vr(d, 16)}, {vr(a, 4)}, {vr(b, 4)}, {cs}"


def stamp(a, n):
    if not STAMPS or (NOSTAMP and n != 15):
        return
    a("s_memtime s[76:77]" if STAMPS == 2 else "s_memrealtime s[76:77]")
    a("s_waitcnt lgkmcnt(0)")
    a(f"s_mov_b32 s{80 + n}, s76")


def stamp_flush(a):
    if not STAMPS:
        return
    a("s_waitcnt vmcnt(0)")
    stamp(a, 15)
    a("v_mov_b32 v1, 0")
    for n in range(16):
        a(f"v_writelane_b32 v1, s{80 + n}, {n}")
    a("s_lshl_b32 s76, s2, 3")
    a(f"s_add_u32 s76, s76, s{sW}")
    a("s_lshl_b32 s76, s76, 6")
    a(f"s_add_u32 s76, s76, {WS_STAMP}")
    a("v_lshlrev_b32 v2, 2, v0")
    a("s_mov_b64 exec, 0xffff")
    a(f"buffer_store_dword v1, v2, {sr(S_WS)}, s76 offen")


def srd(a, s, ptr, size):
    a(f"s_mov_b32 s{s}, s{ptr}")
    a(f"s_mov_b32 s{s + 1}, s{ptr + 1}")
    a(f"s_mov_b32 s{s + 2}, {size}")
    a(f"s_mov_b32 s{s + 3}, 0x00020000")


pX, pWQKV, pWO, pG, pU, pWD, pOUT, pDBG, pWS = 56, 58, 60, 64, 66, 68, 70, 72, 74
S_T, S_X, S_W0, S_W1, S_W3, S_WS = 4, 8, 12, 16, 20, 24
R_OUT, R_H0, R_H1, R_WT = 4, 12, 16, 20
sW, sTT, sHF, sRB, sCB, sROT, sISS, sVAR = 28, 29, 30, 31, 32, 33, 34, 35
sCQ, sCG, sXROW, sLW = 36, 37, 42, 43
T0, T1, T2, T3 = 44, 45, 46, 47
sXCD, sT, sG, sKV = 49, 52, 53, 50
tHEAD, tQB, tIT, tFH, tFW, tTT = 38, 39, 33, 36, 37, 48
tVM = 54

AR, BR, SL = 65536, 114688, 16384
SCR = 0
XA, WA1, WA2 = 12, 16, 18
VXS, VW0, VW1, VW3, L16, MASK, ONES, STV, POLL = 22, 23, 24, 25, 26, 27, 28, 30, 31
WF = 32
ACC = 64
STA, STB, CSA = 96, 100, 104
XF = 128
Q_, K_, P_, NM, S0, S1, RING = 8, 12, 20, 28, 44, 60, 76
AK, AV, A16, AOUT = 124, 125, 126, 127
G_, V_, O_, AW = 128, 192, 224, 240
NVGPR = 256
C_H, C_CS, C_O = 24, 40, 48
sCF, sCNT = 51, 62


def tiny(d, a_, b_, first=False):
    return f"v_mfma_f32_4x4x4_16b_bf16 {vr(d, 4)}, {vr(a_, 2)}, {vr(b_, 2)}, {'0' if first else vr(d, 4)}"


def dma(S):
    sl = (S % 3) * SL
    pre = [f"s_add_u32 s{T1}, s{sROT}, {S & 7}", f"s_and_b32 s{T1}, s{T1}, 7"]
    if S < 8:
        return [pre + [f"s_lshl_b32 s{T0}, s{T1}, 7", f"s_add_u32 m0, s{sLW}, {AR + sl}", f"s_add_u32 s{T0}, s{T0}, s{sXROW}",
                       f"buffer_load_dwordx4 v{VXS}, {sr(S_X)}, s{T0} offen lds"],
                [f"s_mul_i32 s{T1}, s{T1}, {64 * 3072}", f"s_add_u32 m0, s{sLW}, {BR + sl}", f"s_add_u32 s{T1}, s{T1}, s{sCQ}",
                 f"buffer_load_dwordx4 v{VW0}, {sr(S_W0)}, s{T1} offen lds"],
                [f"s_add_u32 m0, s{sLW}, {AR + sl + 8192}", f"s_add_u32 s{T0}, s{T0}, 0x10000",
                 f"buffer_load_dwordx4 v{VXS}, {sr(S_X)}, s{T0} offen lds"],
                [f"s_add_u32 m0, s{sLW}, {BR + sl + 8192 - 128}", "s_nop 0",
                 f"buffer_load_dwordx4 v{VW0}, {sr(S_W0)}, s{T1} offen offset:128 lds"]]
    return [pre + [f"s_mul_i32 s{T1}, s{T1}, {64 * 3584}", f"s_add_u32 m0, s{sLW}, {AR + sl}", f"s_add_u32 s{T1}, s{T1}, s{sCG}",
                   f"buffer_load_dwordx4 v{VW1}, {sr(S_W1)}, s{T1} offen lds"],
            [f"s_add_u32 m0, s{sLW}, {BR + sl}", "s_nop 0",
             f"buffer_load_dwordx4 v{VW3}, {sr(S_W3)}, s{T1} offen lds"],
            [f"s_add_u32 m0, s{sLW}, {AR + sl + 8192 - 128}", "s_nop 0",
             f"buffer_load_dwordx4 v{VW1}, {sr(S_W1)}, s{T1} offen offset:128 lds"],
            [f"s_add_u32 m0, s{sLW}, {BR + sl + 8192 - 128}", "s_nop 0",
             f"buffer_load_dwordx4 v{VW3}, {sr(S_W3)}, s{T1} offen offset:128 lds"]]


def rd1(h, nt):
    S, k0 = h >> 1, (h & 1) * 2
    sl = (S % 3) * SL
    F = WF + 16 * (h & 1)
    r = []
    for q in range(2):
        ks = k0 + q
        r.append(f"ds_read_b128 {vr(XF + 4 * (4 * S + ks), 4)}, v{XA + ks} offset:{sl}")
        for t in range(nt):
            for t2 in range(2):
                r.append(f"ds_read_b64_tr_b16 {vr(F + 8 * q + 4 * t + 2 * t2, 2)}, v{WA1 + t} offset:{sl + ks * 2048 + t2 * 512}")
    return r


def rd2(k):
    S, ks = 8 + (k >> 2), k & 3
    sl = (S % 3) * SL
    F = WF + 16 * (k & 1)
    return [f"ds_read_b64_tr_b16 {vr(F + 4 * c + 2 * t2, 2)}, v{WA2 + c} offset:{sl + ks * 2048 + t2 * 512}"
            for c in range(4) for t2 in range(2)]


def weave(heads, fills):
    res = []
    per = -(-len(fills) // len(heads)) if fills else 0
    i = 0
    for hd in heads:
        res.append(hd)
        for at in fills[i:i + per]:
            res += [at] if isinstance(at, str) else at
        i += per
    return res


def tr_addr(dst, t_a, t_b):
    return [f"v_lshrrev_b32 v{t_a}, 5, v0", f"v_bfe_u32 v{t_b}, v0, 2, 2", f"v_lshl_add_u32 v{dst}, v{t_a}, 2, v{t_b}",
            f"v_lshlrev_b32 v{dst}, 7, v{dst}", f"v_and_b32 v{t_a}, 1, v0", f"v_lshl_add_u32 v{dst}, v{t_a}, 6, v{dst}",
            f"v_bfe_u32 v{t_a}, v0, 4, 1", f"v_lshl_add_u32 v{dst}, v{t_a}, 4, v{dst}", f"v_bfe_u32 v{t_a}, v0, 1, 1",
            f"v_lshl_add_u32 v{dst}, v{t_a}, 3, v{dst}", f"v_lshrrev_b32 v{t_b}, 1, v{t_b}", f"v_lshl_add_u32 v{dst}, v{t_b}, 5, v{dst}"]


def split3(w, src):
    return [f"v_and_b32 v{w}, v{MASK}, v{src}", f"v_sub_f32 v{w + 2}, v{src}, v{w}",
            f"v_and_b32 v{w + 1}, v{MASK}, v{w + 2}", f"v_sub_f32 v{w + 2}, v{w + 2}, v{w + 1}", f"v_mov_b32 v{w + 3}, 0"]


def poll_issue(lbl, mask_instrs, reg=POLL):
    return ([f"s_cmp_lg_u32 s{sW}, 0", f"s_cbranch_scc1 {lbl}", "v_lshlrev_b32 v1, 8, v0"] + mask_instrs +
            ["s_mov_b64 exec, s[40:41]",
             f"buffer_load_dword v{reg}, v1, {sr(S_WS)}, s{sCNT} offen sc1", "s_mov_b64 exec, -1", f"{lbl}:"])


def poll_check(lbl, thr, reg=POLL, sleep=8):
    return [f"s_cmp_lg_u32 s{sW}, 0", f"s_cbranch_scc1 {lbl}_ok",
            f"s_mov_b32 s{T3}, {SPIN}", "s_mov_b64 exec, s[40:41]", f"{lbl}_spin:",
            f"v_cmp_gt_u32 vcc, {thr}, v{reg}", "s_cmp_eq_u64 vcc, 0", f"s_cbranch_scc1 {lbl}_done",
            f"s_sleep {sleep}",
            f"buffer_load_dword v{reg}, v1, {sr(S_WS)}, s{sCNT} offen sc1", "s_waitcnt vmcnt(0)",
            f"s_sub_u32 s{T3}, s{T3}, 1", f"s_cmp_lg_u32 s{T3}, 0", f"s_cbranch_scc1 {lbl}_spin",
            f"{lbl}_done:", "s_mov_b64 exec, -1", f"{lbl}_ok:"]


QKV_MASK = [f"s_lshl_b32 s40, 0x10101, s{sXCD}", "s_mov_b32 s41, 0"]
CS_MASK = ["s_mov_b32 s40, 0", "s_mov_b32 s41, 0xf00"]
QC_MASK = [f"s_lshl_b32 s40, 0x10101, s{sXCD}", "s_mov_b32 s41, 0xf00",
           "v_lshrrev_b32 v6, 5, v0", "v_lshlrev_b32 v6, 1, v6", "v_lshrrev_b32 v6, v6, 32"]
H_MASK = ["s_mov_b32 s40, 0xff000000", "s_mov_b32 s41, 0xff"]


def sig_qkv(lbl):
    return [f"s_cmp_lg_u32 s{sW}, 0", f"s_cbranch_scc1 {lbl}",
            f"s_mov_b32 s{T3}, {SPIN}", f"{lbl}_spin:",
            f"v_readfirstlane_b32 s{T2}, v{POLL}", f"s_cmp_lg_u32 s{T2}, 0", f"s_cbranch_scc1 {lbl}_go",
            "s_sleep 8", "v_mov_b32 v2, 0",
            f"global_load_dword v{POLL}, v2, s[{pDBG}:{pDBG + 1}] sc1", "s_waitcnt vmcnt(0)",
            f"s_sub_u32 s{T3}, s{T3}, 1", f"s_cmp_lg_u32 s{T3}, 0", f"s_cbranch_scc1 {lbl}_spin", f"{lbl}_go:",
            f"s_mul_i32 s{T2}, s{sCB}, 3", f"s_lshr_b32 s{T2}, s{T2}, 1", f"s_and_b32 s{T3}, s{sCB}, 1",
            f"v_add_u32 v2, s{T2}, v0", "v_lshlrev_b32 v2, 8, v2",
            f"v_xor_b32 v3, s{T3}, v0", "v_sub_u32 v3, 2, v3",
            "s_mov_b64 exec, 3", f"buffer_atomic_add v3, v2, {sr(S_WS)}, s{sCNT} offen sc1", "s_mov_b64 exec, -1", f"{lbl}:"]


def sig_one(lbl, idx_instrs):
    return ([f"s_cmp_lg_u32 s{sW}, 0", f"s_cbranch_scc1 {lbl}"] + idx_instrs +
            [f"s_lshl_b32 s{T0}, s{T0}, 8", f"s_add_u32 s{T0}, s{T0}, s{sCNT}", "v_mov_b32 v3, 1", "s_mov_b64 exec, 1",
             f"buffer_atomic_add v3, off, {sr(S_WS)}, s{T0} sc1", "s_mov_b64 exec, -1", f"{lbl}:"])


def kv(i):
    return [[f"s_lshl1_add_u32 m0, s{sLW}, {i * 16384}" if i else f"s_lshl_b32 m0, s{sLW}, 1",
             f"s_add_u32 s{T2}, s{sKV}, {i * 8192}",
             f"buffer_load_dwordx4 v{L16}, {sr(S_WS)}, s{T2} offen sc1 lds"],
            [f"s_lshl1_add_u32 m0, s{sLW}, {i * 16384 + 1024}", f"s_add_u32 s{T2}, s{sKV}, {i * 8192 + (32 << 16)}",
             f"buffer_load_dwordx4 v{L16}, {sr(S_WS)}, s{T2} offen sc1 lds"]]


def q_load():
    return [f"s_lshl_b32 s{T2}, s{tQB}, 13", f"s_add_u32 s{T2}, s{T2}, s{sKV}", f"s_sub_u32 s{T2}, s{T2}, {32 << 16}",
            f"buffer_load_dwordx4 {vr(Q_, 4)}, v{L16}, {sr(S_WS)}, s{T2} offen sc1"]


def p2_init_regs():
    b = [f"v_mov_b64 v[{G_ + i}:{G_ + i + 1}], 0" for i in range(0, 64, 2)]
    return b


def p2_init_v():
    return ([["v_and_b32 v3, 27, v0", "v_cmp_eq_u32 vcc, 16, v3", "v_mov_b32 v4, 0x3f803f80", "v_mov_b32 v5, 0",
              "v_cndmask_b32 v2, v5, v4, vcc", "v_mov_b32 v3, v2"]] +
            [f"v_mov_b64 v[{V_ + i}:{V_ + i + 1}], v[2:3]" for i in range(0, 32, 2)])


KVBAR = 0
TRS = 8192
TRD = XF


def tr_setup():
    A, B, C, D = T2, T3, sG, tVM + 1
    return [[f"s_sub_u32 s{C}, s2, 32", f"s_mul_i32 s{D}, s{sW}, 144", f"s_add_u32 s{D}, s{D}, s{C}", f"s_lshl_b32 s{D}, s{D}, 11",
             f"s_add_u32 s{D}, s{D}, {WS_WT}", f"s_cmp_lt_u32 s{C}, 144", f"s_cselect_b32 s{tVM}, s{D}, {OOB}"],
            [f"s_cmp_lt_u32 s{C}, 112", f"s_cselect_b32 s{S_T}, s{pWD}, s{pWO}",
             f"s_cselect_b32 s{S_T + 1}, s{pWD + 1}, s{pWO + 1}", f"s_mov_b32 s{S_T + 2}, 1835008",
             f"s_cselect_b32 s{S_T + 2}, s{S_T + 2}, 524288", f"s_cselect_b32 s{A}, 0, 112", f"s_mov_b32 s{S_T + 3}, 0x00020000",
             f"s_sub_u32 s{C}, s{C}, s{A}", f"s_lshl_b32 s{C}, s{C}, 14", f"s_lshl_b32 s{B}, s{sW}, 7", f"s_add_u32 s{C}, s{C}, s{B}"],
            ["v_lshrrev_b32 v4, 3, v0", "v_and_b32 v5, 7, v0", "v_and_b32 v6, 2, v4", "v_xor_b32 v5, v5, v6"],
            ["v_lshlrev_b32 v5, 4, v5", "v_lshl_add_u32 v5, v4, 10, v5",
             f"s_lshl1_add_u32 m0, s{sLW}, {TRS}", f"s_add_u32 s{B}, s{C}, 8192",
             f"buffer_load_dwordx4 v5, {sr(S_T)}, s{C} offen lds"],
            [f"s_lshl1_add_u32 m0, s{sLW}, {TRS + 1024}", "s_nop 0",
             f"buffer_load_dwordx4 v5, {sr(S_T)}, s{B} offen lds"],
            tr_addr(XA, 4, 5)[:6], tr_addr(XA, 4, 5)[6:],
            [f"s_lshl1_add_u32 s{A}, s{sLW}, {TRS}", f"v_add_u32 v{XA}, s{A}, v{XA}", f"v_xor_b32 v{XA + 1}, 32, v{XA}"]]


def tr_reads():
    return [f"ds_read_b64_tr_b16 {vr(TRD + 4 * ap + 2 * t, 2)}, v{XA + ap} offset:{t * 1024}" for ap in range(2) for t in range(2)]


def tr_stores():
    return [f"buffer_store_dwordx4 {vr(TRD, 4)}, v{L16}, {sr(S_WS)}, s{tVM} offen sc1",
            f"buffer_store_dwordx4 {vr(TRD + 4, 4)}, v{L16}, {sr(S_WS)}, s{tVM} offen offset:1024 sc1"]


def gen_p1(a):
    global NOSTAMP
    a("s_cmp_ge_u32 s2, 256")
    a("s_cbranch_scc1 L_exit")
    stamp(a, 0)
    a(f"s_load_dwordx4 s[{pX}:{pX + 3}], s[0:1], 0")
    a(f"s_load_dwordx4 s[{pG}:{pG + 3}], s[0:1], 32")
    a(f"s_load_dwordx2 s[{pWO}:{pWO + 1}], s[0:1], 16")
    a(f"s_load_dwordx4 s[{pWD}:{pWD + 3}], s[0:1], 48")
    a(f"s_load_dwordx4 s[{pDBG}:{pDBG + 3}], s[0:1], 64")
    a("v_lshrrev_b32 v1, 6, v0")
    a("v_and_b32 v0, 63, v0")
    a(f"v_readfirstlane_b32 s{sW}, v1")
    a(f"s_and_b32 s{sXCD}, s2, 7")
    a(f"s_lshr_b32 s{T1}, s2, 3")
    a(f"s_and_b32 s{sRB}, s{sXCD}, 3")
    a(f"s_and_b32 s{T2}, s{T1}, 3")
    a(f"s_lshl2_add_u32 s{sRB}, s{sRB}, s{T2}")
    a(f"s_lshr_b32 s{sCF}, s{sXCD}, 2")
    a(f"s_lshr_b32 s{sISS}, s{T1}, 2")
    a(f"s_lshl3_add_u32 s{sCB}, s{sCF}, s{sISS}")
    if "rot" in OPT:
        a(f"s_lshl1_add_u32 s{sROT}, s{T2}, s{sISS}")
    elif "rotj" in OPT:
        a(f"s_mov_b32 s{sROT}, s{sISS}")
    elif "rotj2" in OPT:
        a(f"s_and_b32 s{T2}, s{T2}, 1")
        a(f"s_lshl2_add_u32 s{sROT}, s{T2}, s{sISS}")
    else:
        a(f"s_mov_b32 s{sROT}, 0")
    a(f"s_lshl_b32 s{sLW}, s{sW}, 10")
    a(f"s_lshl_b32 s{T2}, s{sW}, 3")
    a(f"s_lshl_b32 s{sXROW}, s{sRB}, 7")
    a(f"s_add_u32 s{sXROW}, s{sXROW}, s{T2}")
    a(f"s_lshl_b32 s{sXROW}, s{sXROW}, 10")
    a(f"s_mul_i32 s{sCQ}, s{sCB}, 3")
    a(f"s_lshr_b32 s{sCQ}, s{sCQ}, 1")
    a(f"s_lshl_b32 s{sCQ}, s{sCQ}, 7")
    a(f"s_mul_i32 s{T3}, s{T2}, 3072")
    a(f"s_add_u32 s{sCQ}, s{sCQ}, s{T3}")
    a("v_lshrrev_b32 v1, 3, v0")
    a("v_and_b32 v2, 7, v0")
    a(f"v_add_u32 v3, s{T2}, v1")
    a("v_bfe_u32 v3, v3, 1, 3")
    a("v_xor_b32 v3, v3, v2")
    a("v_lshlrev_b32 v3, 4, v3")
    a(f"v_lshl_add_u32 v{VXS}, v1, 10, v3")
    a("v_and_b32 v3, 2, v1")
    a("v_lshlrev_b32 v3, 1, v3")
    a("v_xor_b32 v3, v3, v2")
    a("v_lshlrev_b32 v3, 4, v3")
    a("v_mul_u32_u24 v4, 3072, v1")
    a(f"v_add_u32 v{VW0}, v4, v3")
    a(f"s_mov_b32 s{S_X + 2}, 2097152")
    a(f"s_mov_b32 s{S_X + 3}, 0x00020000")
    a(f"s_mov_b32 s{S_W0 + 2}, 1572864")
    a(f"s_mov_b32 s{S_W0 + 3}, 0x00020000")
    a("s_waitcnt lgkmcnt(0)")
    a(f"s_mov_b64 s[{S_X}:{S_X + 1}], s[{pX}:{pX + 1}]")
    a(f"s_mov_b64 s[{S_W0}:{S_W0 + 1}], s[{pWQKV}:{pWQKV + 1}]")
    a(dma(0))
    a("v_mul_u32_u24 v4, 3584, v1")
    a(f"v_add_u32 v{VW1}, v4, v3")
    a("v_xor_b32 v3, 32, v3")
    a(f"v_add_u32 v{VW3}, v4, v3")
    a(f"v_lshlrev_b32 v{L16}, 4, v0")
    a(f"s_and_b32 s{sTT}, s{sW}, 3")
    a(f"s_lshr_b32 s{sHF}, s{sW}, 2")
    a(f"s_mul_i32 s{T3}, s{T2}, 3584")
    a(f"s_sub_u32 s{sCF}, s{sCB}, s{sCF}")
    a(f"s_sub_u32 s{sCF}, s{sCF}, 1")
    a(f"s_lshl_b32 s{sCG}, s{sCF}, 8")
    a(f"s_add_u32 s{sCG}, s{sCG}, s{T3}")
    a(f"s_cmp_eq_u32 s{sISS}, 0")
    a(f"s_cselect_b32 s{sISS}, 1, 0")
    a(f"s_cselect_b32 s{sCG}, {OOB}, s{sCG}")
    a(f"s_mov_b32 s{sCNT}, {WS_CNT}")
    srd(a, S_W1, pG, 1835008)
    srd(a, S_W3, pU, 1835008)
    srd(a, S_WS, pWS, WS_SIZE)
    a(f"s_lshl_b32 s{T0}, s{sW}, 8")
    a(f"s_or_b32 s{T0}, s2, s{T0}")
    a(f"s_cmp_lg_u32 s{T0}, 32")
    a("s_cbranch_scc1 L_nozero")
    a("v_mov_b32 v5, 0")
    a("v_lshlrev_b32 v6, 8, v0")
    a(f"buffer_store_dword v5, v6, {sr(S_WS)}, s{sCNT} offen sc1")
    a("L_nozero:")
    a(dma(1))
    a(f"s_lshl2_add_u32 s{sT}, s{sRB}, s{sTT}")
    a(f"s_mul_i32 s{sG}, s{sCB}, 3")
    a(f"s_lshl1_add_u32 s{sG}, s{sHF}, s{sG}")
    a(f"s_cmp_ge_u32 s{sG}, 32")
    a(f"s_cselect_b32 s{sVAR}, 2, 0")
    a(f"s_add_u32 s{sVAR}, s{sVAR}, s{sHF}")
    a(f"s_lshl_b32 s{sG}, s{sG}, 1")
    a(f"s_lshr_b32 s{T1}, s2, 3")
    a(f"s_and_b32 s{T2}, s{T1}, 3")
    a(f"s_lshl2_add_u32 s{tHEAD}, s{sXCD}, s{T2}")
    a(f"s_lshr_b32 s{tQB}, s{T1}, 2")
    a(f"s_lshl_b32 s{sKV}, s{tHEAD}, 16")
    a(f"s_add_u32 s{sKV}, s{sKV}, s{sLW}")
    a(f"s_add_u32 s{sKV}, s{sKV}, {32 << 16}")
    a("v_and_b32 v1, 31, v0")
    a("v_lshrrev_b32 v2, 5, v0")
    a("v_bfe_u32 v3, v0, 1, 3")
    a("v_xor_b32 v3, v3, v2")
    a("v_lshlrev_b32 v3, 4, v3")
    a("v_lshl_add_u32 v3, v1, 7, v3")
    a(f"s_lshl_b32 s{T0}, s{sTT}, 12")
    a(f"s_add_u32 s{T0}, s{T0}, {AR}")
    a(f"v_add_u32 v{XA}, s{T0}, v3")
    for i in range(1, 4):
        a(f"v_xor_b32 v{XA + i}, {32 * i}, v{XA}")
    a("v_bfe_u32 v3, v0, 2, 2")
    a("v_lshl_add_u32 v4, v2, 3, v3")
    a("v_lshlrev_b32 v4, 7, v4")
    a("v_and_b32 v7, 3, v0")
    a("v_lshl_add_u32 v4, v7, 3, v4")
    a("v_and_b32 v3, 2, v3")
    a("v_bfe_u32 v7, v0, 4, 1")
    a("v_xor_b32 v3, v3, v7")
    a(f"s_and_b32 s{T0}, s{sCB}, 1")
    a(f"s_lshl1_add_u32 s{T0}, s{sHF}, s{T0}")
    for t in range(2):
        a(f"s_and_b32 s{T1}, s{T0}, 1")
        a(f"s_lshl_b32 s{T1}, s{T1}, 1")
        a(f"s_lshr_b32 s{T2}, s{T0}, 1")
        a(f"s_lshl_b32 s{T2}, s{T2}, 13")
        a(f"s_add_u32 s{T2}, s{T2}, {BR}")
        a(f"v_xor_b32 v6, s{T1}, v3")
        a("v_lshl_add_u32 v6, v6, 5, v4")
        a(f"v_add_u32 v{WA1 + t}, s{T2}, v6")
        if t == 0:
            a(f"s_add_u32 s{T0}, s{T0}, 1")
    a(f"v_mul_u32_u24 v6, {BR - AR}, v7")
    a("v_add_u32 v4, v4, v6")
    a(f"s_lshl_b32 s{T0}, s{sHF}, 13")
    a(f"s_add_u32 s{T0}, s{T0}, {AR}")
    a(f"v_add_u32 v4, s{T0}, v4")
    for c in range(4):
        a(f"v_xor_b32 v6, {c}, v3")
        a(f"v_lshl_add_u32 v{WA2 + c}, v6, 5, v4")
    a(f"v_mov_b32 v{MASK}, 0xffff0000")
    a(f"v_mov_b32 v{ONES}, 0x3f803f80")
    a(f"v_mov_b32 v{ONES + 1}, 0x3f803f80")
    for i in range(0, 8, 2):
        a(f"v_mov_b64 v[{CSA + i}:{CSA + i + 1}], 0")
    stamp(a, 1)
    a(f"s_cmp_eq_u32 s{sISS}, 1")
    a("s_cbranch_scc1 L_side1")
    a("L_p1:")
    for v in range(1, 4):
        a(f"s_cmp_eq_u32 s{sVAR}, {v}")
        a(f"s_cbranch_scc1 L_p1_{v}")
    RS, SD, XOP = 112, 114, 116
    for var in range(4):
        hf, isv = var & 1, var >> 1
        nt = 2 - hf
        a(f"L_p1_{var}:")
        a("s_waitcnt vmcnt(4)")
        a("s_barrier")
        stamp(a, 2)
        a(rd1(0, nt))
        if var == 0:
            a(f"s_lshl_b32 s{T0}, s{sW}, 8")
            a(f"s_or_b32 s{T0}, s2, s{T0}")
            a(f"s_cmp_lg_u32 s{T0}, 32")
            a("s_cbranch_scc1 L_noflag")
            a("v_mov_b32 v5, 0")
            a("v_mov_b32 v6, 1")
            a("s_mov_b64 exec, 1")
            a(f"global_store_dword v5, v6, s[{pDBG}:{pDBG + 1}] sc1")
            a("s_mov_b64 exec, -1")
            a("L_noflag:")
        for h in range(16):
            S = h >> 1
            F = WF + 16 * (h & 1)
            first = h == 0
            big, tn = [], []
            for q in range(2):
                x = XF + 4 * (2 * h + q)
                for t in range(nt):
                    w = F + 8 * q + 4 * t
                    c = "0" if (first and q == 0) else None
                    big.append(mfma(ACC + 16 * t, x, w, c) if isv else mfma(ACC + 16 * t, w, x, c))
            cs = []
            for q in range(2):
                x = XF + 4 * (2 * h + q)
                if hf:
                    for p in range(2):
                        f0 = first and q == 0 and p == 0
                        tn += [tiny(STA, ONES, x + 2 * p, f0), tiny(STB, x + 2 * p, x + 2 * p, f0), "s_nop 0"]
                lb = f"L_cs{var}_{h}_{q}"
                cs += [f"s_cmp_lg_u32 s{sTT}, {(2 * h + q) & 3}", f"s_cbranch_scc1 {lb}"]
                if hf:
                    cs += [tiny(CSA, ONES, F + 8 * q), tiny(CSA + 4, ONES, F + 8 * q + 2)]
                else:
                    cs += [tiny(CSA, ONES, F + 8 * q), tiny(CSA + 4, ONES, F + 8 * q + 4), "s_nop 0",
                           tiny(CSA, ONES, F + 8 * q + 2), tiny(CSA + 4, ONES, F + 8 * q + 6)]
                cs.append(f"{lb}:")
            if h == 15:
                break
            if h & 1:
                a("s_waitcnt vmcnt(4) lgkmcnt(0)")
                a("s_barrier")
                if "p1b" in OPT: stamp(a, 4 + S)
                d = dma(S + 3)[:2]
                if S == 5 and not hf:
                    d = [[f"s_cmp_lg_u32 s{sW}, 0", f"s_cbranch_scc1 L_nofl{var}", "v_mov_b32 v5, 0",
                          f"global_load_dword v{POLL}, v5, s[{pDBG}:{pDBG + 1}] sc1", f"L_nofl{var}:"]] + d
            else:
                a("s_waitcnt lgkmcnt(0)")
                d = dma(S + 2)[2:] if h else dma(2)
            if h == 13:
                d = d + [["v_and_b32 v1, 31, v0", f"s_lshl_b32 s{T2}, s{sTT}, 8", "v_lshlrev_b32 v1, 2, v1", f"v_add_u32 v1, s{T2}, v1",
                          f"s_lshl_b32 s{T3}, s{sTT}, 2", f"v_add_u32 v5, s{T3}, v{L16}", f"v_mov_b32 v{XOP + 3}, 0"]]
                if isv:
                    d = d + [["v_lshrrev_b32 v4, 5, v0", "v_lshlrev_b32 v6, 4, v4", f"v_add_u32 v6, s{T2}, v6",
                              "v_bfe_u32 v7, v0, 4, 1", "v_lshlrev_b32 v7, 16, v7", "v_lshl_add_u32 v7, v4, 8, v7",
                              "v_and_b32 v4, 15, v0", "v_lshl_add_u32 v7, v4, 4, v7"]]
            nxt = rd1(h + 1, nt)
            if hf:
                a(weave(big, nxt) + weave(tn, d) + cs)
            else:
                a(weave(big, nxt + d) + cs)
        a("s_waitcnt lgkmcnt(0)")
        csw = [f"ds_write_b32 v5, v{CSA + 4 * t} offset:{SCR + 1024 * (1 + 2 * hf + t)}" for t in range(nt)]
        if hf:
            a(tn + cs + big[:1])
            a("s_nop 1")
            for i, m in ((1, "0x22222222"), (2, "0x44444444"), (3, "0x88888888")):
                a(f"s_mov_b32 s40, {m}")
                a(f"s_mov_b32 s41, {m}")
                a(f"v_cndmask_b32 v{STB}, v{STB}, v{STB + i}, s[40:41]")
            a(f"v_mov_b32 v{STB + 1}, v{STB}")
            a(f"v_add_f32 v{CSA}, v{CSA}, v{CSA + 4}")
            a(csw)
            a(f"v_permlane32_swap_b32 v{STA}, v{STA + 1}")
            a(f"v_permlane32_swap_b32 v{STB}, v{STB + 1}")
            a(f"v_add_f32 v2, v{STA}, v{STA + 1}")
            a(f"v_add_f32 v3, v{STB}, v{STB + 1}")
            a(f"v_mul_f32 v2, {hx(f2u(-1.0 / 512))}, v2")
            a(f"v_mul_f32 v3, {hx(f2u(1.0 / 512))}, v3")
            a("v_fma_f32 v3, -v2, v2, v3")
            a("v_max_f32 v3, 0, v3")
            a("v_cvt_pk_bf16_f32 v3, v3, v3")
            a(f"v_and_b32 v3, v{MASK}, v3")
            a(f"v_add_f32 v3, {hx(f2u(1e-5))}, v3")
            a("v_cvt_pk_bf16_f32 v3, v3, v3")
            a(f"v_and_b32 v3, v{MASK}, v3")
            a("v_sqrt_f32 v3, v3")
            a("s_nop 0")
            a(f"v_cvt_pk_bf16_f32 v{STV}, v3, v2")
            a(f"v_lshlrev_b32 v{SD}, 16, v{STV}")
            a(f"v_rcp_f32 v{RS}, v{SD}")
            a(f"ds_write_b32 v1, v{STV} offset:{SCR}")
            a(f"ds_write_b32 v1, v{RS} offset:{SCR + 128}")
            a(big[1:])
        else:
            a(cs + big)
            a("s_nop 0")
            a(csw)
        a("s_waitcnt vmcnt(4) lgkmcnt(0)")
        a("s_barrier")
        stamp(a, 3)
        RSV = WF + 16
        cop = [STA, STB]
        for t in range(nt):
            a(f"ds_read_b128 {vr(CSA + 4 * t, 4)}, v{L16} offset:{SCR + 1024 * (1 + 2 * hf + t)}")
        if not hf:
            a(f"ds_read_b32 v{STV}, v1 offset:{SCR}")
            a(f"ds_read_b32 v{RS}, v1 offset:{SCR + 128}")
        if isv:
            for g in range(4):
                a(f"ds_read_b128 {vr(RSV + 4 * g, 4)}, v6 offset:{SCR + 128 + g * 32}")
        d10 = dma(10)
        a(d10[0])
        a(f"s_waitcnt lgkmcnt({4 if isv else 0})")
        a(rd2(0))
        a(f"v_and_b32 v{XOP}, v{MASK}, v{STV}")
        a(f"v_mov_b32 v{XOP + 1}, v{XOP}")
        a(f"v_mov_b32 v{XOP + 2}, v{XOP}")
        for t in range(nt):
            w = CSA + 4 * t
            a(f"v_add_f32 v{w}, v{w}, v{w + 1}")
            a(f"v_add_f32 v{w + 2}, v{w + 2}, v{w + 3}")
            a(f"v_add_f32 v{w}, v{w}, v{w + 2}")
            a(split3(cop[t], w))
            a("s_nop 1")
            a(mfma(ACC + 16 * t, XOP, cop[t]) if isv else mfma(ACC + 16 * t, cop[t], XOP))
        a(d10[1:])
        a(f"s_lshl_b32 s{T1}, s{sG}, 16")
        a(f"s_lshl_b32 s{T2}, s{sT}, 10")
        a(f"s_add_u32 s{T1}, s{T1}, s{T2}")
        if isv:
            a("s_waitcnt lgkmcnt(8)")
        for t in range(nt):
            ac = ACC + 16 * t
            o = 120 if t == 0 else 96
            if isv:
                for i in range(8):
                    a(f"v_pk_mul_f32 {vr(ac + 2 * i, 2)}, {vr(ac + 2 * i, 2)}, {vr(RSV + 2 * i, 2)}")
            else:
                a(f"s_cmp_lt_u32 s{sG}, {32 - 2 * t}")
                a(f"s_cselect_b32 s{T0}, {hx(f2u(QSCALE))}, 1.0")
                a(f"v_mul_f32 v2, s{T0}, v{RS}")
                a(f"v_mul_f32 v3, s{T0}, v{RS}")
                for i in range(8):
                    a(f"v_pk_mul_f32 {vr(ac + 2 * i, 2)}, {vr(ac + 2 * i, 2)}, v[2:3]")
            for i in range(8):
                a(f"v_cvt_pk_bf16_f32 v{o + i}, v{ac + 2 * i}, v{ac + 2 * i + 1}")
            if isv:
                a(f"buffer_store_dwordx4 {vr(o, 4)}, v7, {sr(S_WS)}, s{T1} offen sc1")
                a(f"buffer_store_dwordx4 {vr(o + 4, 4)}, v7, {sr(S_WS)}, s{T1} offen offset:512 sc1")
                if t + 1 < nt:
                    a(f"s_add_u32 s{T1}, s{T1}, 0x20000")
            else:
                a(f"buffer_store_dwordx4 {vr(o, 4)}, v{L16}, {sr(S_WS)}, s{T1} offen sc1")
                a(f"s_add_u32 s{T1}, s{T1}, 0x10000")
                a(f"buffer_store_dwordx4 {vr(o + 4, 4)}, v{L16}, {sr(S_WS)}, s{T1} offen sc1")
                if t + 1 < nt:
                    a(f"s_add_u32 s{T1}, s{T1}, 0x10000")
        if var != 3:
            a("s_branch L_pass2")
    a("L_pass2:")
    if "p1b" in OPT: NOSTAMP = True
    stamp(a, 4)
    a(f"s_cmp_eq_u32 s{sISS}, 1")
    a("s_cbranch_scc1 L_side")
    CO = O_
    bgq = []
    for k in range(32):
        S, ks = 8 + (k >> 2), k & 3
        F = WF + 16 * (k & 1)
        big = [mfma(ACC + 16 * c, F + 4 * c, XF + 4 * k, "0" if k == 0 else None) for c in range(4)]
        extra = []
        if ks == 3:
            n = {8: 6, 9: 6, 11: 6, 14: 0, 15: 63}.get(S, 4)
            a(f"s_waitcnt vmcnt({n}) lgkmcnt(0)" if n != 63 else "s_waitcnt lgkmcnt(0)")
            if S == 14: a(poll_check("L_cq", "v6"))
            a("s_barrier")
            if "p2b" in OPT: stamp(a, S - 3)
            if S == 9: bgq.append(sig_qkv("L_sq"))
            if S + 3 < 16: bgq += dma(S + 3)
            if S == 8: bgq += tr_setup()
            if S == 10: bgq = [tr_reads()] + bgq + [tr_stores()]
            if S == 13: bgq += [[], [], poll_issue("L_pq", QC_MASK)]
            if S == 14:
                bgq += [["v_bfe_u32 v2, v0, 4, 1", "v_mul_u32_u24 v2, 28672, v2", "v_lshrrev_b32 v3, 5, v0",
                         "v_lshl_add_u32 v2, v3, 9, v2", "v_and_b32 v3, 15, v0", "v_lshl_add_u32 v2, v3, 2, v2",
                         f"s_lshl1_add_u32 s{T3}, s{sCF}, s{sHF}", f"s_lshl_b32 s{T3}, s{T3}, 10", f"s_add_u32 s{T3}, s{T3}, {WS_CS}"]]
                for c in range(4):
                    bgq.append([f"buffer_load_dword v{CO + 4 * c + q}, v2, {sr(S_WS)}, s{T3} offen offset:{c * 64 + q * 256} sc1" for q in range(2)])
                bgq += kv(0) + [q_load()] + kv(1) + kv(2)
            if S == 15: bgq += kv(3)
        else:
            a("s_waitcnt lgkmcnt(0)")
        left = 4 if ks == 3 else 3 - ks
        if S == 15 and ks == 3: left = 1
        take = -(-len(bgq) // left)
        extra, bgq = bgq[:take], bgq[take:]
        val = []
        if k in (17, 18): val = p2_init_regs()[16 * (k - 17):16 * (k - 16)]
        if k == 25: val = p2_init_v()
        nxt = rd2(k + 1) if k < 31 else []
        body = weave(big[:3], nxt) + [big[3]]
        res, idx = [], 0
        ex_at = extra + val
        per = -(-len(ex_at) // 4) if ex_at else 0
        segs, cur = [], []
        for ins in body:
            if ins.startswith("v_mfma") and cur:
                segs.append(cur); cur = []
            cur.append(ins)
        segs.append(cur)
        for sg in segs:
            res += sg
            for at in ex_at[idx:idx + per]:
                res += [at] if isinstance(at, str) else at
            idx += per
        a(res)
    assert not bgq
    if "p2b" in OPT: NOSTAMP = True
    stamp(a, 5)
    RS, SD, XOP = 240, 242, 244
    a(f"v_lshlrev_b32 v{SD}, 16, v{STV}")
    a(f"v_rcp_f32 v{RS}, v{SD}")
    a(f"v_and_b32 v{XOP}, v{MASK}, v{STV}")
    a(f"v_mov_b32 v{XOP + 1}, v{XOP}")
    a(f"v_mov_b32 v{XOP + 2}, v{XOP}")
    a(f"v_mov_b32 v{XOP + 3}, 0")
    a(f"s_mul_i32 s{T3}, s{sT}, 112")
    a(f"s_lshl1_add_u32 s{T0}, s{sCF}, s{sHF}")
    a(f"s_lshl2_add_u32 s{T3}, s{T0}, s{T3}")
    a(f"s_lshl_b32 s{T3}, s{T3}, 10")
    a(f"s_add_u32 s{T3}, s{T3}, {WS_H}")
    a(f"v_mov_b32 v248, {hx(f2u(GC2))}")
    a("v_mov_b32 v249, v248")
    a(f"v_mov_b32 v250, {hx(f2u(GC1))}")
    a("v_mov_b32 v251, v250")
    a(f"v_mov_b32 v{RS + 1}, v{RS}")
    a(f"v_mov_b32 v{SD + 1}, v{SD}")
    a("s_waitcnt vmcnt(9)")
    for c in range(4):
        w = CO + 4 * c
        a(f"v_add_f32 v{w + 3}, v{w}, v{w + 1}")
        a(split3(w, w + 3))
        a("s_nop 1")
        a(mfma(ACC + 16 * c, w, XOP))
    for c in range(4):
        g = ACC + 16 * c
        u = g + 8
        q = 32 + (c & 1) * 8
        o = 48 + c * 4
        for i in range(4):
            a(f"v_pk_mul_f32 {vr(g + 2 * i, 2)}, {vr(g + 2 * i, 2)}, {vr(RS, 2)}")
        for i in range(4):
            a(f"v_pk_mul_f32 {vr(q + 2 * i, 2)}, {vr(g + 2 * i, 2)}, {vr(g + 2 * i, 2)}")
        for i in range(4):
            a(f"v_pk_fma_f32 {vr(q + 2 * i, 2)}, {vr(q + 2 * i, 2)}, v[248:249], v[250:251]")
        for i in range(4):
            a(f"v_pk_mul_f32 {vr(q + 2 * i, 2)}, {vr(q + 2 * i, 2)}, {vr(g + 2 * i, 2)}")
        for i in range(8):
            a(f"v_exp_f32 v{q + i}, v{q + i}")
        for i in range(4):
            a(f"v_pk_mul_f32 {vr(g + 2 * i, 2)}, {vr(g + 2 * i, 2)}, {vr(u + 2 * i, 2)}")
        for i in range(4):
            a(f"v_pk_fma_f32 {vr(q + 2 * i, 2)}, {vr(q + 2 * i, 2)}, {vr(SD, 2)}, {vr(SD, 2)}")
        for i in range(8):
            a(f"v_rcp_f32 v{q + i}, v{q + i}")
        a("s_nop 0")
        for i in range(4):
            a(f"v_pk_mul_f32 {vr(g + 2 * i, 2)}, {vr(g + 2 * i, 2)}, {vr(q + 2 * i, 2)}")
        for i in range(4):
            a(f"v_cvt_pk_bf16_f32 v{o + i}, v{g + 2 * i}, v{g + 2 * i + 1}")
        a(f"buffer_store_dwordx4 {vr(o, 4)}, v{L16}, {sr(S_WS)}, s{T3} offen offset:{c * 1024} sc1")
        a(kv(4 + c))
        if c == KVBAR:
            a(f"s_waitcnt vmcnt({4 + 3 * (c + 1)})")
            a("s_barrier")


def gen_side(a):
    a("L_side:")
    global NOSTAMP
    NOSTAMP = "side" not in OPT
    gs = sCQ
    a("s_waitcnt vmcnt(0)")
    a("s_barrier")
    a(sig_qkv("L_sq2"))
    a(sig_one("L_scs", [f"s_and_b32 s{T0}, s{sRB}, 3", f"s_add_u32 s{T0}, s{T0}, {C_CS}"]))
    a(poll_issue("L_pq2", QKV_MASK))
    a(p2_init_regs())
    a(p2_init_v())
    a("s_waitcnt vmcnt(0)")
    stamp(a, 13)
    a(poll_check("L_cq2", 32))
    a("s_barrier")
    a(q_load())
    for i in range(8):
        a(kv(i))
    a("s_waitcnt vmcnt(12)")
    a("s_barrier")
    a("s_branch L_p2")
    a("L_side1:")
    a(f"s_and_b32 s{T0}, s{sRB}, 3")
    a(f"s_lshl3_add_u32 s{T0}, s{T0}, s{sW}")
    a(f"s_cmp_lt_u32 s{T0}, 14")
    a(f"s_cselect_b32 s{S_T}, s{pG}, s{pU}")
    a(f"s_cselect_b32 s{S_T + 1}, s{pG + 1}, s{pU + 1}")
    a(f"s_mov_b32 s{S_T + 2}, 1835008")
    a(f"s_mov_b32 s{S_T + 3}, 0x00020000")
    a(f"s_cselect_b32 s{T2}, 0, 14")
    a(f"s_lshr_b32 s{T1}, s{sXCD}, 2")
    a(f"s_mul_i32 s{T1}, s{T1}, 14")
    a(f"s_add_u32 s{T1}, s{T1}, s{T0}")
    a(f"s_sub_u32 s{T3}, s{T1}, s{T2}")
    a(f"s_add_u32 s{T1}, s{T1}, s{T2}")
    a(f"s_and_b32 s{T2}, s{sXCD}, 3")
    a(f"s_lshl2_add_u32 s{tVM}, s{T1}, s{T2}")
    a(f"s_lshl_b32 s{tVM}, s{tVM}, 8")
    a(f"s_add_u32 s{tVM}, s{tVM}, {WS_CS}")
    a(f"s_lshl_b32 s{T3}, s{T3}, 7")
    a(f"s_mul_i32 s{T2}, s{T2}, {128 * 3584}")
    a(f"s_add_u32 s{T3}, s{T3}, s{T2}")
    a(f"s_cmp_lt_u32 s{T0}, 28")
    a(f"s_cselect_b32 s{T0}, s{T3}, {OOB}")
    a(f"s_cselect_b32 s{tVM}, s{tVM}, {OOB}")
    a("v_lshrrev_b32 v1, 3, v0")
    a("v_and_b32 v2, 7, v0")
    a("v_mul_u32_u24 v5, 3584, v1")
    a("v_lshl_add_u32 v5, v2, 4, v5")
    CW = 128
    for q in range(16):
        a(f"buffer_load_dwordx4 {vr(CW + 4 * q, 4)}, v5, {sr(S_T)}, s{T0} offen")
        if q != 15:
            a(f"s_add_u32 s{T0}, s{T0}, {8 * 3584}")
    stamp(a, 8)
    RU = 64
    for q in range(16):
        a(f"s_waitcnt vmcnt({15 - q})")
        for i in range(4):
            if q == 0:
                a(f"v_lshlrev_b32 v{RU + 2 * i}, 16, v{CW + i}")
                a(f"v_and_b32 v{RU + 2 * i + 1}, v{MASK}, v{CW + i}")
            else:
                a(f"v_lshlrev_b32 v2, 16, v{CW + 4 * q + i}")
                a(f"v_and_b32 v3, v{MASK}, v{CW + 4 * q + i}")
                a(f"v_add_f32 v{RU + 2 * i}, v{RU + 2 * i}, v2")
                a(f"v_add_f32 v{RU + 2 * i + 1}, v{RU + 2 * i + 1}, v3")
    a("s_nop 1")
    for i in range(4):
        a(f"v_permlane16_swap_b32 v{RU + 2 * i}, v{RU + 2 * i + 1}")
    for i in range(4):
        a(f"v_add_f32 v{RU + 2 * i}, v{RU + 2 * i}, v{RU + 2 * i + 1}")
    a(["s_nop 1", f"v_permlane32_swap_b32 v{RU}, v{RU + 2}", f"v_permlane32_swap_b32 v{RU + 4}, v{RU + 6}",
       f"v_add_f32 v{RU}, v{RU}, v{RU + 2}", f"v_add_f32 v{RU + 4}, v{RU + 4}, v{RU + 6}",
       "v_and_b32 v2, 8, v0", "v_cmp_eq_u32 vcc, 0, v2",
       f"v_add_f32_dpp v{RU}, v{RU}, v{RU} row_ror:8 row_mask:0xf bank_mask:0xf",
       f"v_add_f32_dpp v{RU + 4}, v{RU + 4}, v{RU + 4} row_ror:8 row_mask:0xf bank_mask:0xf",
       "v_and_b32 v3, 7, v0", "v_lshlrev_b32 v3, 3, v3", "v_lshrrev_b32 v4, 4, v0", "v_add_u32 v3, v3, v4",
       "v_lshrrev_b32 v2, 1, v2", "v_add_u32 v3, v3, v2", "v_lshlrev_b32 v3, 2, v3",
       f"v_cndmask_b32 v1, v{RU + 4}, v{RU}, vcc"])
    a(f"buffer_store_dword v1, v3, {sr(S_WS)}, s{tVM} offen sc1")
    stamp(a, 9)
    a("s_branch L_p1")


def att_step(i, ex=None, first=False):
    ex = ex or {}
    Sc, Sn = (S0, S1) if i % 2 == 0 else (S1, S0)
    Kn = K_ + 4 * ((i + 1) % 2)
    Vc = V_ + 8 * (i % 4)
    Vp = V_ + 8 * ((i - 1) % 4)
    e = lambda k: f"v_exp_f32 v{Sc + k}, v{Sc + k}"
    c = lambda k: f"v_cvt_pk_bf16_f32 v{P_ + k}, v{Sc + 2 * k}, v{Sc + 2 * k + 1}"
    r = [mfma(Sn, Kn, Q_, NM),
         f"ds_read_b128 {vr(Kn, 4)}, v{AK} offset:{(i + 3) * 2048}"]
    r += ex.get("qk", [])
    r += [e(0), e(1), e(2), e(3)]
    if not first:
        r.append(mfma(O_, Vp + 4, P_ + 4))
    if i % 2 == 0:
        r.append(f"s_mov_b64 exec, s[{tVM}:{tVM + 1}]")
        for d in (2, 3):
            vb = V_ + 8 * ((i + d) % 4)
            r.append(f"ds_read_b128 {vr(vb, 4)}, v{AV} offset:{(i + d) * 2048}")
            r.append(f"ds_read_b128 {vr(vb + 4, 4)}, v{AV} offset:{(i + d) * 2048 + 512}")
        r.append("s_mov_b64 exec, -1")
    r += ex.get("pv1", [])
    if "G2" in ex:
        r += [c(0), e(4), e(5), c(1)]
        r += [ex["G1"]] + ex.get("g1", [])
        r += [e(6), e(7), e(8), c(2), c(3), e(9)]
        r += ["s_nop 0", mfma(O_, Vc, P_)]
        if i % 2 == 1: r.append("s_waitcnt lgkmcnt(0)")
        r += ex.get("pv0", [])
        r += [e(10), e(11), c(4), e(12), c(5)]
        r += [ex["G2"]] + ex.get("g2", [])
        r += [e(13), e(14), e(15), c(6), c(7)]
    else:
        r += [c(0), e(4), e(5), c(1), e(6), e(7)]
        if "G1" in ex:
            r += [ex["G1"]]
        r += ex.get("g1", [])
        r += [e(8), c(2), c(3), e(9), e(10), e(11)]
        r.append(mfma(O_, Vc, P_, "0" if first else None))
        if i % 2 == 1: r.append("s_waitcnt lgkmcnt(0)")
        r += ex.get("pv0", [])
        r += [c(4), e(12), e(13), c(5), e(14), e(15), c(6), c(7)]
    r += ex.get("end", [])
    return r


def ring_loads(r):
    b = RING + 16 * r
    return [f"buffer_load_dwordx4 {vr(b, 4)}, v{A16}, {sr(R_H0)}, s{tFH} offen sc1",
            f"buffer_load_dwordx4 {vr(b + 4, 4)}, v{A16}, {sr(R_H1)}, s{tFH} offen sc1",
            f"buffer_load_dwordx4 {vr(b + 8, 4)}, v{A16}, {sr(R_WT)}, s{tFW} offen sc1",
            f"buffer_load_dwordx4 {vr(b + 12, 4)}, v{A16}, {sr(R_WT)}, s{tFW} offen offset:1024 sc1",
            f"s_add_u32 s{tFH}, s{tFH}, 1024",
            f"s_add_u32 s{tFW}, s{tFW}, 2048"]


def gm(r, n):
    b = RING + 16 * r
    return mfma(G_ + 16 * n, b + 8 + 4 * (n & 1), b + 4 * (n >> 1))


def adv(a):
    a(f"v_add_u32 v{AK}, 0x4000, v{AK}")
    a(f"v_add_u32 v{AV}, 0x4000, v{AV}")


def gen_p2(a):
    a("L_p2:")
    stamp(a, 6)
    a(f"v_mov_b32 v{A16}, v{L16}")
    a(f"v_mov_b32 v{AK}, v{L16}")
    a("v_lshrrev_b32 v2, 5, v0")
    a("v_and_b32 v3, 15, v0")
    a("v_lshlrev_b32 v3, 4, v3")
    a("v_lshl_add_u32 v3, v2, 8, v3")
    a(f"v_add_u32 v{AV}, 1024, v3")
    a(f"s_mov_b32 s{tVM}, 0x0000ffff")
    a(f"s_mov_b32 s{tVM + 1}, 0x0000ffff")
    a(f"ds_read_b128 {vr(K_, 4)}, v{AK}")
    a(f"ds_read_b128 {vr(K_ + 4, 4)}, v{AK} offset:2048")
    a(f"s_mov_b64 exec, s[{tVM}:{tVM + 1}]")
    for d in range(2):
        a(f"ds_read_b128 {vr(V_ + 8 * d, 4)}, v{AV} offset:{d * 2048}")
        a(f"ds_read_b128 {vr(V_ + 8 * d + 4, 4)}, v{AV} offset:{d * 2048 + 512}")
    a("s_mov_b64 exec, -1")
    a(f"s_lshr_b32 s{T0}, s{sW}, 2")
    a(f"s_lshl1_add_u32 s{tTT}, s{tHEAD}, s{T0}")
    a(f"s_lshl_b32 s{T0}, s{tTT}, 15")
    a(f"s_lshl_b32 s{T1}, s{tQB}, 7")
    a(f"s_add_u32 s{T0}, s{T0}, s{T1}")
    a(f"s_and_b32 s{T1}, s{sW}, 3")
    a(f"s_lshl4_add_u32 s{T0}, s{T1}, s{T0}")
    a("v_and_b32 v1, 31, v0")
    a("v_lshlrev_b32 v1, 10, v1")
    a("v_lshl_add_u32 v1, v2, 6, v1")
    a(f"v_add_u32 v{AOUT}, s{T0}, v1")
    a("s_waitcnt lgkmcnt(4)")
    a(mfma(S0, K_, Q_, "0"))
    a(mfma(S1, K_ + 4, Q_, "0"))
    a(f"s_mul_i32 s{T0}, s{tHEAD}, {224 * 1024}")
    a(f"s_add_u32 s{T0}, s{T0}, {WS_H}")
    a(f"s_add_u32 s{R_H0}, s{pWS}, s{T0}")
    a(f"s_addc_u32 s{R_H0 + 1}, s{pWS + 1}, 0")
    a(f"s_add_u32 s{R_H1}, s{R_H0}, {112 * 1024}")
    a(f"s_addc_u32 s{R_H1 + 1}, s{R_H0 + 1}, 0")
    a(f"s_mul_i32 s{tFH}, s{sW}, {14 * 1024}")
    a(f"s_add_u32 s{R_H0 + 2}, s{tFH}, {14 * 1024}")
    a(f"s_mov_b32 s{R_H1 + 2}, s{R_H0 + 2}")
    a(f"s_mul_i32 s{T0}, s{tQB}, {144 * 2048}")
    a(f"s_add_u32 s{T0}, s{T0}, {WS_WT}")
    a(f"s_add_u32 s{R_WT}, s{pWS}, s{T0}")
    a(f"s_addc_u32 s{R_WT + 1}, s{pWS + 1}, 0")
    a(f"s_lshl_b32 s{tFW}, s{tFH}, 1")
    a(f"s_lshl_b32 s{R_WT + 2}, s{R_H0 + 2}, 1")
    a(f"v_max3_f32 v1, v{S0}, v{S0 + 1}, v{S0 + 2}")
    for i in range(3, 31, 2):
        a(f"v_max3_f32 v1, v1, v{S0 + i}, v{S0 + i + 1}")
    a(f"v_max_f32 v1, v1, v{S0 + 31}")
    a("v_mov_b32 v2, v1")
    a("s_nop 1")
    a("v_permlane32_swap_b32 v1, v2")
    a("v_max_f32 v1, v1, v2")
    a(f"v_sub_f32 v2, {hx(f2u(-MAXOFF))}, v1")
    a("v_mov_b32 v3, v2")
    for i in range(0, 16, 2):
        a(f"v_mov_b64 v[{NM + i}:{NM + i + 1}], v[2:3]")
    a("s_nop 1")
    a(mfma(S0, K_, Q_, NM))
    a(f"ds_read_b128 {vr(K_, 4)}, v{AK} offset:4096")
    srd(a, R_OUT, pOUT, 2097152)
    a(f"s_lshl_b32 s{T0}, s{sW}, 11")
    a(f"v_add_u32 v{AW}, s{T0}, v{A16}")
    a(f"v_add_u32 v{AW + 1}, 0x10000, v{AW}")
    a(f"v_add_u32 v{AW + 2}, 0x20000, v{AW}")
    a("s_waitcnt lgkmcnt(0)")
    a("s_nop 1")
    stamp(a, 7)
    global NOSTAMP
    if "side" in OPT: NOSTAMP = True
    for i in range(8):
        ex = {}
        if i == 4:
            ex["end"] = ["s_waitcnt vmcnt(0)", "s_barrier"] + sig_one("L_h_ns", [f"s_add_u32 s{T0}, s{sRB}, {C_H}"])
        a(att_step(i, ex, first=(i == 0)))
    adv(a)
    for i in range(8):
        ex = {}
        if i == 3:
            ex["pv0"] = poll_issue("L_h_np", H_MASK, 7)
        if i == 4:
            ex["end"] = ["s_waitcnt vmcnt(0)"] + poll_check("L_ch", 16, 7, 16) + ["s_barrier"]
        if i in (5, 6, 7):
            l = ring_loads(i - 5)
            ex["qk"] = l[0:1]
            ex["pv1"] = l[1:3]
            ex["pv0"] = l[3:6]
        a(att_step(i, ex))
    stamp(a, 8)
    a(f"s_mov_b32 s{tIT}, 5")
    a("L_loop:")
    adv(a)
    plan = [[(0, 0)], [(0, 1), (0, 2)], [(0, 3)], [(1, 0), (1, 1)], [(1, 2)], [(1, 3), (2, 0)], [(2, 1)], [(2, 2), (2, 3)]]
    for i in range(8):
        ex = {}
        ex["G1"] = gm(*plan[i][0])
        if len(plan[i]) > 1:
            ex["G2"] = gm(*plan[i][1])
        if i == 0: ex["qk"] = ["s_waitcnt vmcnt(8)"]
        if i == 2:
            l = ring_loads(0)
            ex["g1"] = l[0:2]
            ex["pv0"] = l[2:6]
        if i == 3: ex["pv1"] = ["s_waitcnt vmcnt(8)"]
        if i == 5:
            l = ring_loads(1)
            ex["g1"] = l[0:2]
            ex["pv0"] = l[2:6] + ["s_waitcnt vmcnt(8)"]
        if i == 7:
            ex["g2"] = ring_loads(2)
        a(att_step(i, ex))
    a(f"s_sub_u32 s{tIT}, s{tIT}, 1")
    a(f"s_cmp_lg_u32 s{tIT}, 0")
    a("s_cbranch_scc1 L_loop")
    adv(a)
    a(f"s_and_b32 s{T0}, s{sW}, 3")
    a(f"s_lshl_b32 s{T0}, s{T0}, 14")
    a(f"s_add_u32 s{T0}, s{T0}, {112 * 2048}")
    a(f"s_mov_b32 s{R_WT + 2}, {144 * 2048}")
    a("s_barrier")

    def pw(o):
        base, off = (AW, o * 16384) if o < 4 else ((AW + 1, (o - 4) * 16384) if o < 6 else (AW + 2, (o - 6) * 16384))
        return [f"ds_write_b128 v{base}, {vr(G_ + 8 * o, 4)} offset:{off}",
                f"ds_write_b128 v{base}, {vr(G_ + 8 * o + 4, 4)} offset:{off + 1024}"]

    def wol(g):
        return [f"buffer_load_dwordx4 {vr(G_ + 16 * g + 4 * q, 4)}, v{A16}, {sr(R_WT)}, s{T0} offen offset:{q * 1024} sc1" for q in range(4)] + \
               [f"s_add_u32 s{T0}, s{T0}, 4096"]
    for i in range(8):
        ex = {}
        if i == 0: ex["qk"], ex["pv0"] = [f"buffer_load_dwordx4 {vr(RING, 4)}, v{AOUT}, {sr(S_X)}, 0 offen"], pw(0) + pw(1)[:1]
        if i == 1: ex["qk"], ex["pv1"] = pw(1)[1:], pw(2)
        if i == 2: ex["qk"], ex["pv0"] = pw(3)[:1], pw(3)[1:] + pw(4)
        if i == 3: ex["qk"], ex["pv1"] = pw(5)[:1], pw(5)[1:] + pw(6)[:1]
        if i == 4: ex["qk"], ex["pv0"], ex["g1"] = pw(6)[1:], pw(7), wol(0)[:2]
        if i == 5: ex["qk"], ex["pv1"], ex["pv0"] = wol(0)[2:3], wol(0)[3:] + wol(1)[:1], wol(1)[1:3]
        if i == 6: ex["qk"], ex["g1"], ex["pv0"] = wol(1)[3:], wol(2)[:2], wol(2)[2:]
        if i == 7: ex["qk"], ex["pv1"], ex["pv0"] = wol(3)[:1], wol(3)[1:3], wol(3)[3:]
        a(att_step(i, ex))
    a("s_nop 1")
    a(mfma(O_, V_ + 24 + 4, P_ + 4))
    a(f"s_lshl_b32 s{T0}, s{tQB}, 3")
    a(f"s_add_u32 s{T0}, s{T0}, s{sW}")
    a(f"s_lshl_b32 s{T0}, s{T0}, 5")
    a(f"s_add_u32 s{T0}, s{T0}, s{tHEAD}")
    a(f"s_lshl_b32 s{T0}, s{T0}, 10")
    a(f"s_add_u32 s{T3}, s{T0}, {WS_O}")
    a(f"v_mov_b32 v2, {hx(f2u(2.0 ** 120))}")
    a(f"v_mov_b32 v3, {hx(f2u(2.0 ** -90))}")
    a("s_waitcnt lgkmcnt(0)")
    a("s_nop 3")
    stamp(a, 9)
    a(f"v_add_f32 v1, |v{O_}|, |v{O_ + 1}|")
    for i in range(2, 8):
        a(f"v_add_f32 v1, v1, |v{O_ + i}|")
    a(f"v_cmp_lt_f32 s[40:41], v{O_ + 8}, v2")
    a("v_cmp_lt_f32 s[42:43], v1, v2")
    a(f"v_cmp_le_f32 s[50:51], 0.5, v{O_ + 8}")
    a("v_cmp_le_f32 vcc, v3, v1")
    a("s_or_b64 s[50:51], s[50:51], vcc")
    a("s_and_b64 s[40:41], s[40:41], s[42:43]")
    a("s_and_b64 s[40:41], s[40:41], s[50:51]")
    a("s_cmp_eq_u64 s[40:41], -1")
    a("s_cbranch_scc0 L_fallback")
    a("L_norm:")
    a(f"v_rcp_f32 v2, v{O_ + 8}")
    a("s_nop 0")
    for i in range(8):
        a(f"v_mul_f32 v{O_ + i}, v{O_ + i}, v2")
    for i in range(4):
        a(f"v_cvt_pk_bf16_f32 v{4 + i}, v{O_ + 2 * i}, v{O_ + 2 * i + 1}")
    a(f"buffer_store_dwordx4 v[4:7], v{A16}, {sr(S_WS)}, s{T3} offen sc1")
    a(f"s_lshl_b32 s{T0}, s{sW}, 14")
    a(f"s_add_u32 s{T1}, s{T0}, 0x8000")
    a(f"s_cmp_lt_u32 s{sW}, 6")
    a(f"s_cselect_b32 s{T0}, s{T0}, s{T1}")
    a(f"v_add_u32 v3, s{T0}, v{A16}")
    a("s_waitcnt vmcnt(0)")
    a("s_barrier")
    stamp(a, 10)
    a(f"s_cmp_lg_u32 s{sW}, 0")
    a("s_cbranch_scc1 L_o_ns")
    a(f"s_lshl_b32 s{T0}, s{tQB}, 8")
    a(f"s_add_u32 s{T0}, s{T0}, {WS_CNT + C_O * 256}")
    a("v_mov_b32 v1, 1")
    a("s_mov_b64 exec, 1")
    a(f"buffer_atomic_add v1, off, {sr(S_WS)}, s{T0} sc1")
    a("s_mov_b64 exec, -1")
    a("L_o_ns:")
    F_ = 8
    for s in range(8):
        for i in range(2):
            a(f"ds_read_b128 {vr(F_ + 8 * s + 4 * i, 4)}, v3 offset:{(s * 2 + i) * 1024}")
        if s == 6:
            a("s_waitcnt lgkmcnt(10)")
    for s in range(1, 8):
        a(f"s_waitcnt lgkmcnt({2 * (7 - s)})")
        for i in range(4):
            a(f"v_pk_add_f32 {vr(F_ + 2 * i, 2)}, {vr(F_ + 2 * i, 2)}, {vr(F_ + 8 * s + 2 * i, 2)}")
    T_ = F_ + 8
    a(f"v_mov_b32 v4, {hx(f2u(-LOG2E))}")
    for i in range(8):
        a(f"v_mul_f32 v{T_ + i}, v{F_ + i}, v4")
    for i in range(8):
        a(f"v_exp_f32 v{T_ + i}, v{T_ + i}")
    a("s_nop 0")
    for i in range(8):
        a(f"v_add_f32 v{T_ + i}, 1.0, v{T_ + i}")
    for i in range(8):
        a(f"v_rcp_f32 v{T_ + i}, v{T_ + i}")
    a("s_nop 0")
    for i in range(4):
        a(f"v_pk_mul_f32 {vr(F_ + 2 * i, 2)}, {vr(F_ + 2 * i, 2)}, {vr(T_ + 2 * i, 2)}")
    XU = 24
    for i in range(4):
        a(f"v_lshlrev_b32 v{XU + 2 * i}, 16, v{RING + i}")
        a(f"v_and_b32 v{XU + 2 * i + 1}, 0xffff0000, v{RING + i}")
    a(f"s_lshr_b32 s{T0}, s{sW}, 2")
    a(f"s_lshl_b32 s{T0}, s{T0}, 15")
    a(f"s_and_b32 s{T1}, s{sW}, 3")
    a(f"s_lshl_b32 s{T2}, s{T1}, 11")
    a(f"s_add_u32 s{T0}, s{T0}, s{T2}")
    a(f"v_add_u32 v1, s{T0}, v{A16}")
    a(f"s_lshl_b32 s{T0}, s{sW}, 13")
    a(f"v_add_u32 v3, s{T0}, v{A16}")
    a(f"s_lshl_b32 s{T0}, s{tTT}, 5")
    a(f"s_lshl_b32 s{T1}, s{T1}, 3")
    a(f"s_add_u32 s{T0}, s{T0}, s{T1}")
    a(f"s_lshl_b32 s{T0}, s{T0}, 10")
    a(f"s_add_u32 s{T2}, s{T0}, {WS_O}")
    a(f"s_add_u32 s{T3}, s{T2}, 4096")
    stamp(a, 11)
    a(f"s_cmp_lg_u32 s{sW}, 0")
    a("s_cbranch_scc1 L_o_ok")
    a(f"s_lshl_b32 s{T0}, s{sXCD}, 8")
    a(f"s_add_u32 s{T0}, s{T0}, {WS_CNT + C_O * 256}")
    a(f"s_mov_b32 s{T1}, {SPIN}")
    a("L_o_poll:")
    a(f"buffer_load_dword v4, off, {sr(S_WS)}, s{T0} sc1")
    a("s_waitcnt vmcnt(0)")
    a("v_readfirstlane_b32 s40, v4")
    a("s_cmp_ge_u32 s40, 32")
    a("s_cbranch_scc1 L_o_ok")
    a(f"s_sub_u32 s{T1}, s{T1}, 1")
    a(f"s_cmp_lg_u32 s{T1}, 0")
    a("s_cbranch_scc1 L_o_poll")
    a("L_o_ok:")
    a("s_barrier")
    stamp(a, 12)
    OF = RING + 8
    SA = V_
    for j in range(8):
        so = T2 if j < 4 else T3
        a(f"buffer_load_dwordx4 {vr(OF + 4 * j, 4)}, v{A16}, {sr(S_WS)}, s{so} offen offset:{(j % 4) * 1024} sc1")
    for j in range(8):
        a(f"s_waitcnt vmcnt({7 - j})")
        for ap in range(2):
            a(mfma(SA + 16 * ap, G_ + 8 * j + 4 * ap, OF + 4 * j, "0" if j == 0 else None))
    stamp(a, 13)
    a("s_nop 11")
    for o in range(4):
        for i in range(2):
            a(f"ds_write_b128 v1, {vr(SA + 8 * o + 4 * i, 4)} offset:{o * 8192 + i * 1024}")
    a("s_waitcnt lgkmcnt(0)")
    a("s_barrier")
    for s in range(4):
        for i in range(2):
            a(f"ds_read_b128 {vr(SA + 8 * s + 4 * i, 4)}, v3 offset:{(s * 2 + i) * 1024}")
    for s in range(1, 4):
        a(f"s_waitcnt lgkmcnt({2 * (3 - s)})")
        for i in range(4):
            a(f"v_pk_add_f32 {vr(SA + 2 * i, 2)}, {vr(SA + 2 * i, 2)}, {vr(SA + 8 * s + 2 * i, 2)}")
    for i in range(4):
        a(f"v_pk_fma_f32 {vr(XU + 2 * i, 2)}, {vr(SA + 2 * i, 2)}, {vr(F_ + 2 * i, 2)}, {vr(XU + 2 * i, 2)}")
    for i in range(4):
        a(f"v_cvt_pk_bf16_f32 v{4 + i}, v{XU + 2 * i}, v{XU + 2 * i + 1}")
    a(f"buffer_store_dwordx4 v[4:7], v{AOUT}, {sr(R_OUT)}, 0 offen")
    stamp(a, 14)
    stamp_flush(a)
    a("L_exit:")
    a("s_endpgm")
    a("L_fallback:")
    a(f"s_lshl_b32 s{T0}, s{tHEAD}, 16")
    a(f"s_add_u32 s{T0}, s{T0}, {32 << 16}")
    a(f"s_mov_b32 s{T1}, 0")
    a("v_mov_b32 v1, 0xff800000")
    a("L_fb1:")
    a(f"s_add_u32 s{T2}, s{T0}, s{T1}")
    a(f"buffer_load_dwordx4 {vr(K_, 4)}, v{A16}, {sr(S_WS)}, s{T2} offen sc1")
    a("s_waitcnt vmcnt(0)")
    a(mfma(S0, K_, Q_, "0"))
    a("s_nop 15")
    for i in range(0, 16, 2):
        a(f"v_max3_f32 v1, v1, v{S0 + i}, v{S0 + i + 1}")
    a(f"s_add_u32 s{T1}, s{T1}, 1024")
    a(f"s_cmp_lt_u32 s{T1}, 65536")
    a("s_cbranch_scc1 L_fb1")
    a("v_mov_b32 v2, v1")
    a("s_nop 1")
    a("v_permlane32_swap_b32 v1, v2")
    a("v_max_f32 v1, v1, v2")
    a("v_sub_f32 v1, 0, v1")
    for i in range(16):
        a(f"v_mov_b32 v{NM + i}, v1")
    for i in range(16):
        a(f"v_mov_b32 v{O_ + i}, 0")
    a("v_lshrrev_b32 v2, 5, v0")
    a("v_and_b32 v3, 15, v0")
    a("v_lshlrev_b32 v3, 4, v3")
    a("v_lshl_add_u32 v3, v2, 8, v3")
    a(f"s_mov_b32 s{T1}, 0")
    a("L_fb2:")
    a(f"s_add_u32 s{T2}, s{T0}, s{T1}")
    a(f"buffer_load_dwordx4 {vr(K_, 4)}, v{A16}, {sr(S_WS)}, s{T2} offen sc1")
    a(f"s_add_u32 s{T2}, s{T2}, {32 << 16}")
    a(f"s_mov_b64 exec, s[{tVM}:{tVM + 1}]")
    a(f"buffer_load_dwordx4 {vr(V_, 4)}, v3, {sr(S_WS)}, s{T2} offen sc1")
    a(f"buffer_load_dwordx4 {vr(V_ + 4, 4)}, v3, {sr(S_WS)}, s{T2} offen offset:512 sc1")
    a("s_mov_b64 exec, -1")
    a("s_waitcnt vmcnt(0)")
    a(mfma(S0, K_, Q_, NM))
    a("s_nop 15")
    for i in range(16):
        a(f"v_exp_f32 v{S0 + i}, v{S0 + i}")
    a("s_nop 0")
    for i in range(8):
        a(f"v_cvt_pk_bf16_f32 v{P_ + i}, v{S0 + 2 * i}, v{S0 + 2 * i + 1}")
    a("s_nop 1")
    a(mfma(O_, V_, P_))
    a(mfma(O_, V_ + 4, P_ + 4))
    a(f"s_add_u32 s{T1}, s{T1}, 1024")
    a(f"s_cmp_lt_u32 s{T1}, 65536")
    a("s_cbranch_scc1 L_fb2")
    a("s_nop 15")
    a("s_branch L_norm")


def main(out):
    a = Asm()
    k = NAME + "_kernel"
    hdr = ["; LN + MHA + GEGLU block, one persistent launch; generated by gen3.py (hand-scheduled gfx950 assembly)",
           "; @launch grid=(256,1,1) block=(512,1,1) lds=163840"]
    a('.amdgcn_target "amdgcn-amd-amdhsa--gfx950"')
    a(".text")
    a(f".globl {k}\n.p2align 8\n.type {k},@function\n{k}:")
    gen_p1(a)
    gen_p2(a)
    gen_side(a)
    a('.section .rodata,"a"')
    a(".p2align 6")
    a(f".amdhsa_kernel {k}")
    a(f".amdhsa_next_free_vgpr {NVGPR}")
    a(f".amdhsa_next_free_sgpr {96 if STAMPS else 80}")
    a(f".amdhsa_accum_offset {(NVGPR + 3) // 4 * 4}")
    a(".amdhsa_group_segment_fixed_size 0")
    a(".amdhsa_kernarg_size 80")
    a(".amdhsa_user_sgpr_count 2")
    a(".amdhsa_user_sgpr_kernarg_segment_ptr 1")
    a(".amdhsa_system_sgpr_workgroup_id_x 1")
    a(".end_amdhsa_kernel")
    open(out, "w").write("\n".join(hdr) + "\n" + a.text())


if __name__ == "__main__":
    for x in list(sys.argv):
        if x.startswith("--opt="):
            OPT = set(x[6:].split(","))
            sys.argv.remove(x)
    if "--cyc" in sys.argv:
        STAMPS = 2
        sys.argv.remove("--cyc")
    if "--stamps" in sys.argv:
        STAMPS = True
        sys.argv.remove("--stamps")
    main(sys.argv[1] if len(sys.argv) > 1 else f"cdna_kernels/{NAME}.s")
```

```python
import sys, struct, math

NAME = "recurrent_scan__mha_block__glu_gated_geglu__prompt"

WS_QKV = 0
WS_H = 6 << 20
WS_O = 14 << 20
WS_CNT = 16 << 20
WS_STAMP = (16 << 20) + 65536
WS_CS = (16 << 20) + 0x90000
WS_WT = 17 << 20
WS_SIZE = 20 << 20
OOB = 0x7f000000

LOG2E = 1.4426950408889634
QSCALE = 0.25 * LOG2E
GC1 = -2.0 * LOG2E * math.sqrt(2.0 / math.pi)
GC2 = GC1 * 0.044715
MAXOFF = 80.0
SPIN = 0x40000

STAMPS = False
OPT = set()
NOSTAMP = False


def f2u(x):
    return struct.unpack("<I", struct.pack("<f", x))[0]


def hx(x):
    return "0x%08x" % (x & 0xffffffff)


class Asm:
    def __init__(self):
        self.l = []

    def __call__(self, s):
        if isinstance(s, (list, tuple)):
            for x in s:
                self(x)
            return
        for line in s.split("\n"):
            line = line.strip()
            if not line:
                continue
            if line.endswith(":") or line.startswith("."):
                self.l.append(line)
            else:
                self.l.append("    " + line)

    def text(self):
        return "\n".join(self.l) + "\n"


def vr(b, n):
    return f"v[{b}:{b + n - 1}]"


def sr(b):
    return f"s[{b}:{b + 3}]"


def mfma(d, a, b, c=None):
    cs = vr(d, 16) if c is None else (c if isinstance(c, str) else vr(c, 16))
    return f"v_mfma_f32_32x32x16_bf16 {vr(d, 16)}, {vr(a, 4)}, {vr(b, 4)}, {cs}"


def stamp(a, n):
    if not STAMPS or (NOSTAMP and n != 15):
        return
    a("s_memtime s[76:77]" if STAMPS == 2 else "s_memrealtime s[76:77]")
    a("s_waitcnt lgkmcnt(0)")
    a(f"s_mov_b32 s{80 + n}, s76")


def stamp_flush(a):
    if not STAMPS:
        return
    a("s_waitcnt vmcnt(0)")
    stamp(a, 15)
    a("v_mov_b32 v1, 0")
    for n in range(16):
        a(f"v_writelane_b32 v1, s{80 + n}, {n}")
    a("s_lshl_b32 s76, s2, 3")
    a(f"s_add_u32 s76, s76, s{sW}")
    a("s_lshl_b32 s76, s76, 6")
    a(f"s_add_u32 s76, s76, {WS_STAMP}")
    a("v_lshlrev_b32 v2, 2, v0")
    a("s_mov_b64 exec, 0xffff")
    a(f"buffer_store_dword v1, v2, {sr(S_WS)}, s76 offen")


def srd(a, s, ptr, size):
    a(f"s_mov_b32 s{s}, s{ptr}")
    a(f"s_mov_b32 s{s + 1}, s{ptr + 1}")
    a(f"s_mov_b32 s{s + 2}, {size}")
    a(f"s_mov_b32 s{s + 3}, 0x00020000")


pX, pWQKV, pWO, pG, pU, pWD, pOUT, pDBG, pWS = 56, 58, 60, 64, 66, 68, 70, 72, 74
S_T, S_X, S_W0, S_W1, S_W3, S_WS = 4, 8, 12, 16, 20, 24
R_OUT, R_H0, R_H1, R_WT = 4, 12, 16, 20
sW, sTT, sHF, sRB, sCB, sROT, sISS, sVAR = 28, 29, 30, 31, 32, 33, 34, 35
sCQ, sCG, sXROW, sLW = 36, 37, 42, 43
T0, T1, T2, T3 = 44, 45, 46, 47
sXCD, sT, sG, sKV = 49, 52, 53, 50
tHEAD, tQB, tIT, tFH, tFW, tTT = 38, 39, 33, 36, 37, 48
tVM = 54

AR, BR, SL = 65536, 114688, 16384
SCR = 0
XA, WA1, WA2 = 12, 16, 18
VXS, VW0, VW1, VW3, L16, MASK, ONES, STV, POLL = 22, 23, 24, 25, 26, 27, 28, 30, 31
WF = 32
ACC = 64
STA, STB, CSA = 96, 100, 104
XF = 128
Q_, K_, P_, NM, S0, S1, RING = 8, 12, 20, 28, 44, 60, 76
AK, AV, A16, AOUT = 124, 125, 126, 127
G_, V_, O_, AW = 128, 192, 224, 240
NVGPR = 256
C_H, C_CS, C_O = 24, 40, 56
sCF, sCNT = 51, 62


def tiny(d, a_, b_, first=False):
    return f"v_mfma_f32_4x4x4_16b_bf16 {vr(d, 4)}, {vr(a_, 2)}, {vr(b_, 2)}, {'0' if first else vr(d, 4)}"


def dma(S):
    sl = (S % 3) * SL
    pre = [f"s_add_u32 s{T1}, s{sROT}, {S & 7}", f"s_and_b32 s{T1}, s{T1}, 7"]
    if S < 8:
        return [pre + [f"s_lshl_b32 s{T0}, s{T1}, 7", f"s_add_u32 m0, s{sLW}, {AR + sl}", f"s_add_u32 s{T0}, s{T0}, s{sXROW}",
                       f"buffer_load_dwordx4 v{VXS}, {sr(S_X)}, s{T0} offen lds"],
                [f"s_mul_i32 s{T1}, s{T1}, {64 * 3072}", f"s_add_u32 m0, s{sLW}, {BR + sl}", f"s_add_u32 s{T1}, s{T1}, s{sCQ}",
                 f"buffer_load_dwordx4 v{VW0}, {sr(S_W0)}, s{T1} offen lds"],
                [f"s_add_u32 m0, s{sLW}, {AR + sl + 8192}", f"s_add_u32 s{T0}, s{T0}, 0x10000",
                 f"buffer_load_dwordx4 v{VXS}, {sr(S_X)}, s{T0} offen lds"],
                [f"s_add_u32 m0, s{sLW}, {BR + sl + 8192 - 128}", "s_nop 0",
                 f"buffer_load_dwordx4 v{VW0}, {sr(S_W0)}, s{T1} offen offset:128 lds"]]
    return [pre + [f"s_mul_i32 s{T1}, s{T1}, {64 * 3584}", f"s_add_u32 m0, s{sLW}, {AR + sl}", f"s_add_u32 s{T1}, s{T1}, s{sCG}",
                   f"buffer_load_dwordx4 v{VW1}, {sr(S_W1)}, s{T1} offen lds"],
            [f"s_add_u32 m0, s{sLW}, {BR + sl}", "s_nop 0",
             f"buffer_load_dwordx4 v{VW3}, {sr(S_W3)}, s{T1} offen lds"],
            [f"s_add_u32 m0, s{sLW}, {AR + sl + 8192 - 128}", "s_nop 0",
             f"buffer_load_dwordx4 v{VW1}, {sr(S_W1)}, s{T1} offen offset:128 lds"],
            [f"s_add_u32 m0, s{sLW}, {BR + sl + 8192 - 128}", "s_nop 0",
             f"buffer_load_dwordx4 v{VW3}, {sr(S_W3)}, s{T1} offen offset:128 lds"]]


def rd1(h, nt):
    S, k0 = h >> 1, (h & 1) * 2
    sl = (S % 3) * SL
    F = WF + 16 * (h & 1)
    r = []
    for q in range(2):
        ks = k0 + q
        r.append(f"ds_read_b128 {vr(XF + 4 * (4 * S + ks), 4)}, v{XA + ks} offset:{sl}")
        for t in range(nt):
            for t2 in range(2):
                r.append(f"ds_read_b64_tr_b16 {vr(F + 8 * q + 4 * t + 2 * t2, 2)}, v{WA1 + t} offset:{sl + ks * 2048 + t2 * 512}")
    return r


def rd2(k):
    S, ks = 8 + (k >> 2), k & 3
    sl = (S % 3) * SL
    F = WF + 16 * (k & 1)
    return [f"ds_read_b64_tr_b16 {vr(F + 4 * c + 2 * t2, 2)}, v{WA2 + c} offset:{sl + ks * 2048 + t2 * 512}"
            for c in range(4) for t2 in range(2)]


def weave(heads, fills):
    res = []
    per = -(-len(fills) // len(heads)) if fills else 0
    i = 0
    for hd in heads:
        res.append(hd)
        for at in fills[i:i + per]:
            res += [at] if isinstance(at, str) else at
        i += per
    return res


def tr_addr(dst, t_a, t_b):
    return [f"v_lshrrev_b32 v{t_a}, 5, v0", f"v_bfe_u32 v{t_b}, v0, 2, 2", f"v_lshl_add_u32 v{dst}, v{t_a}, 2, v{t_b}",
            f"v_lshlrev_b32 v{dst}, 7, v{dst}", f"v_and_b32 v{t_a}, 1, v0", f"v_lshl_add_u32 v{dst}, v{t_a}, 6, v{dst}",
            f"v_bfe_u32 v{t_a}, v0, 4, 1", f"v_lshl_add_u32 v{dst}, v{t_a}, 4, v{dst}", f"v_bfe_u32 v{t_a}, v0, 1, 1",
            f"v_lshl_add_u32 v{dst}, v{t_a}, 3, v{dst}", f"v_lshrrev_b32 v{t_b}, 1, v{t_b}", f"v_lshl_add_u32 v{dst}, v{t_b}, 5, v{dst}"]


def split3(w, src):
    return [f"v_and_b32 v{w}, v{MASK}, v{src}", f"v_sub_f32 v{w + 2}, v{src}, v{w}",
            f"v_and_b32 v{w + 1}, v{MASK}, v{w + 2}", f"v_sub_f32 v{w + 2}, v{w + 2}, v{w + 1}", f"v_mov_b32 v{w + 3}, 0"]


def poll_issue(lbl, mask_instrs, reg=POLL):
    return ([f"s_cmp_lg_u32 s{sW}, 0", f"s_cbranch_scc1 {lbl}", "v_lshlrev_b32 v1, 8, v0"] + mask_instrs +
            ["s_mov_b64 exec, s[40:41]",
             f"buffer_load_dword v{reg}, v1, {sr(S_WS)}, s{sCNT} offen sc1", "s_mov_b64 exec, -1", f"{lbl}:"])


def poll_check(lbl, thr, reg=POLL, sleep=8):
    return [f"s_cmp_lg_u32 s{sW}, 0", f"s_cbranch_scc1 {lbl}_ok",
            f"s_mov_b32 s{T3}, {SPIN}", "s_mov_b64 exec, s[40:41]", f"{lbl}_spin:",
            f"v_cmp_gt_u32 vcc, {thr}, v{reg}", "s_cmp_eq_u64 vcc, 0", f"s_cbranch_scc1 {lbl}_done",
            f"s_sleep {sleep}",
            f"buffer_load_dword v{reg}, v1, {sr(S_WS)}, s{sCNT} offen sc1", "s_waitcnt vmcnt(0)",
            f"s_sub_u32 s{T3}, s{T3}, 1", f"s_cmp_lg_u32 s{T3}, 0", f"s_cbranch_scc1 {lbl}_spin",
            f"{lbl}_done:", "s_mov_b64 exec, -1", f"{lbl}_ok:"]


QKV_MASK = [f"s_lshl_b32 s40, 0x10101, s{sXCD}", "s_mov_b32 s41, 0"]
CS_MASK = ["s_mov_b32 s40, 0", f"s_lshl_b32 s41, 0x100, s{sCF}"]
QC_MASK = [f"s_lshl_b32 s40, 0x10101, s{sXCD}", f"s_lshl_b32 s41, 0x100, s{sCF}",
           "v_lshrrev_b32 v6, 5, v0", "v_lshrrev_b32 v6, v6, 32"]
H_MASK = ["s_mov_b32 s40, 0xff000000", "s_mov_b32 s41, 0xff"]


def sig_qkv(lbl):
    return [f"s_cmp_lg_u32 s{sW}, 0", f"s_cbranch_scc1 {lbl}",
            f"s_mov_b32 s{T3}, {SPIN}", f"{lbl}_spin:",
            f"v_readfirstlane_b32 s{T2}, v{POLL}", f"s_cmp_lg_u32 s{T2}, 0", f"s_cbranch_scc1 {lbl}_go",
            "s_sleep 8", "v_mov_b32 v2, 0",
            f"global_load_dword v{POLL}, v2, s[{pDBG}:{pDBG + 1}] sc1", "s_waitcnt vmcnt(0)",
            f"s_sub_u32 s{T3}, s{T3}, 1", f"s_cmp_lg_u32 s{T3}, 0", f"s_cbranch_scc1 {lbl}_spin", f"{lbl}_go:",
            f"s_mul_i32 s{T2}, s{sCB}, 3", f"s_lshr_b32 s{T2}, s{T2}, 1", f"s_and_b32 s{T3}, s{sCB}, 1",
            f"v_add_u32 v2, s{T2}, v0", "v_lshlrev_b32 v2, 8, v2",
            f"v_xor_b32 v3, s{T3}, v0", "v_sub_u32 v3, 2, v3",
            "s_mov_b64 exec, 3", f"buffer_atomic_add v3, v2, {sr(S_WS)}, s{sCNT} offen sc1", "s_mov_b64 exec, -1", f"{lbl}:"]


def sig_one(lbl, idx_instrs):
    return ([f"s_cmp_lg_u32 s{sW}, 0", f"s_cbranch_scc1 {lbl}"] + idx_instrs +
            [f"s_lshl_b32 s{T0}, s{T0}, 8", f"s_add_u32 s{T0}, s{T0}, s{sCNT}", "v_mov_b32 v3, 1", "s_mov_b64 exec, 1",
             f"buffer_atomic_add v3, off, {sr(S_WS)}, s{T0} sc1", "s_mov_b64 exec, -1", f"{lbl}:"])


def kv(i, r=L16):
    return [[f"s_lshl1_add_u32 m0, s{sLW}, {i * 16384}" if i else f"s_lshl_b32 m0, s{sLW}, 1",
             f"s_add_u32 s{T2}, s{sKV}, {i * 8192}",
             f"buffer_load_dwordx4 v{r}, {sr(S_WS)}, s{T2} offen sc1 lds"],
            [f"s_lshl1_add_u32 m0, s{sLW}, {i * 16384 + 1024}", f"s_add_u32 s{T2}, s{sKV}, {i * 8192 + (32 << 16)}",
             f"buffer_load_dwordx4 v{r}, {sr(S_WS)}, s{T2} offen sc1 lds"]]


def q_load():
    return [f"s_lshl_b32 s{T2}, s{tQB}, 13", f"s_add_u32 s{T2}, s{T2}, s{sKV}", f"s_sub_u32 s{T2}, s{T2}, {32 << 16}",
            f"buffer_load_dwordx4 {vr(Q_, 4)}, v{L16}, {sr(S_WS)}, s{T2} offen sc1"]


def p2_init_regs():
    b = [f"v_mov_b64 v[{G_ + i}:{G_ + i + 1}], 0" for i in range(0, 64, 2)]
    return b


def p2_init_v():
    return ([["v_and_b32 v3, 27, v0", "v_cmp_eq_u32 vcc, 16, v3", "v_mov_b32 v4, 0x3f803f80", "v_mov_b32 v5, 0",
              "v_cndmask_b32 v2, v5, v4, vcc", "v_mov_b32 v3, v2"]] +
            [f"v_mov_b64 v[{V_ + i}:{V_ + i + 1}], v[2:3]" for i in range(0, 32, 2)])


def gen_p1(a):
    global NOSTAMP
    a("s_cmp_ge_u32 s2, 256")
    a("s_cbranch_scc1 L_exit")
    stamp(a, 0)
    a(f"s_load_dwordx4 s[{pX}:{pX + 3}], s[0:1], 0")
    a(f"s_load_dwordx4 s[{pG}:{pG + 3}], s[0:1], 32")
    a(f"s_load_dwordx2 s[{pWO}:{pWO + 1}], s[0:1], 16")
    a(f"s_load_dwordx4 s[{pWD}:{pWD + 3}], s[0:1], 48")
    a(f"s_load_dwordx4 s[{pDBG}:{pDBG + 3}], s[0:1], 64")
    a("v_lshrrev_b32 v1, 6, v0")
    a("v_and_b32 v0, 63, v0")
    a(f"v_readfirstlane_b32 s{sW}, v1")
    a(f"s_and_b32 s{sXCD}, s2, 7")
    a(f"s_lshr_b32 s{T1}, s2, 3")
    a(f"s_and_b32 s{sRB}, s{sXCD}, 3")
    a(f"s_and_b32 s{T2}, s{T1}, 3")
    a(f"s_lshl2_add_u32 s{sRB}, s{sRB}, s{T2}")
    a(f"s_lshr_b32 s{sCF}, s{sXCD}, 2")
    a(f"s_lshr_b32 s{sISS}, s{T1}, 2")
    a(f"s_lshl3_add_u32 s{sCB}, s{sCF}, s{sISS}")
    a(f"s_lshl1_add_u32 s{sROT}, s{sXCD}, s{sISS}")
    a(f"s_lshl_b32 s{sLW}, s{sW}, 10")
    a(f"s_lshl_b32 s{T2}, s{sW}, 3")
    a(f"s_lshl_b32 s{sXROW}, s{sRB}, 7")
    a(f"s_add_u32 s{sXROW}, s{sXROW}, s{T2}")
    a(f"s_lshl_b32 s{sXROW}, s{sXROW}, 10")
    a(f"s_mul_i32 s{sCQ}, s{sCB}, 3")
    a(f"s_lshr_b32 s{sCQ}, s{sCQ}, 1")
    a(f"s_lshl_b32 s{sCQ}, s{sCQ}, 7")
    a(f"s_mul_i32 s{T3}, s{T2}, 3072")
    a(f"s_add_u32 s{sCQ}, s{sCQ}, s{T3}")
    a("v_lshrrev_b32 v1, 3, v0")
    a("v_and_b32 v2, 7, v0")
    a(f"v_add_u32 v3, s{T2}, v1")
    a("v_bfe_u32 v3, v3, 1, 3")
    a("v_xor_b32 v3, v3, v2")
    a("v_lshlrev_b32 v3, 4, v3")
    a(f"v_lshl_add_u32 v{VXS}, v1, 10, v3")
    a("v_and_b32 v3, 2, v1")
    a("v_lshlrev_b32 v3, 1, v3")
    a("v_xor_b32 v3, v3, v2")
    a("v_lshlrev_b32 v3, 4, v3")
    a("v_mul_u32_u24 v4, 3072, v1")
    a(f"v_add_u32 v{VW0}, v4, v3")
    a(f"s_mov_b32 s{S_X + 2}, 2097152")
    a(f"s_mov_b32 s{S_X + 3}, 0x00020000")
    a(f"s_mov_b32 s{S_W0 + 2}, 1572864")
    a(f"s_mov_b32 s{S_W0 + 3}, 0x00020000")
    a("s_waitcnt lgkmcnt(0)")
    a(f"s_mov_b64 s[{S_X}:{S_X + 1}], s[{pX}:{pX + 1}]")
    a(f"s_mov_b64 s[{S_W0}:{S_W0 + 1}], s[{pWQKV}:{pWQKV + 1}]")
    a(dma(0))
    a("v_mul_u32_u24 v4, 3584, v1")
    a(f"v_add_u32 v{VW1}, v4, v3")
    a("v_xor_b32 v3, 32, v3")
    a(f"v_add_u32 v{VW3}, v4, v3")
    a(f"v_lshlrev_b32 v{L16}, 4, v0")
    a(f"s_and_b32 s{sTT}, s{sW}, 3")
    a(f"s_lshr_b32 s{sHF}, s{sW}, 2")
    a(f"s_mul_i32 s{T3}, s{T2}, 3584")
    a(f"s_sub_u32 s{sCF}, s{sCB}, s{sCF}")
    a(f"s_sub_u32 s{sCF}, s{sCF}, 1")
    a(f"s_lshl_b32 s{sCG}, s{sCF}, 8")
    a(f"s_add_u32 s{sCG}, s{sCG}, s{T3}")
    a(f"s_cmp_eq_u32 s{sISS}, 0")
    a(f"s_cselect_b32 s{sISS}, 1, 0")
    a(f"s_cselect_b32 s{sCG}, {OOB}, s{sCG}")
    a(f"s_mov_b32 s{sCNT}, {WS_CNT}")
    srd(a, S_W1, pG, 1835008)
    srd(a, S_W3, pU, 1835008)
    srd(a, S_WS, pWS, WS_SIZE)
    a(f"s_lshl_b32 s{T0}, s{sW}, 8")
    a(f"s_or_b32 s{T0}, s2, s{T0}")
    a(f"s_cmp_lg_u32 s{T0}, 32")
    a("s_cbranch_scc1 L_nozero")
    a("v_mov_b32 v5, 0")
    a("v_lshlrev_b32 v6, 8, v0")
    a(f"buffer_store_dword v5, v6, {sr(S_WS)}, s{sCNT} offen sc1")
    a("L_nozero:")
    a(dma(1))
    a(f"s_lshl2_add_u32 s{sT}, s{sRB}, s{sTT}")
    a(f"s_mul_i32 s{sG}, s{sCB}, 3")
    a(f"s_lshl1_add_u32 s{sG}, s{sHF}, s{sG}")
    a(f"s_cmp_ge_u32 s{sG}, 32")
    a(f"s_cselect_b32 s{sVAR}, 2, 0")
    a(f"s_add_u32 s{sVAR}, s{sVAR}, s{sHF}")
    a(f"s_lshl_b32 s{sG}, s{sG}, 1")
    a(f"s_lshr_b32 s{T1}, s2, 3")
    a(f"s_and_b32 s{T2}, s{T1}, 3")
    a(f"s_lshl2_add_u32 s{tHEAD}, s{sXCD}, s{T2}")
    a(f"s_lshr_b32 s{tQB}, s{T1}, 2")
    a(f"s_lshl_b32 s{sKV}, s{tHEAD}, 16")
    a(f"s_add_u32 s{sKV}, s{sKV}, s{sLW}")
    a(f"s_add_u32 s{sKV}, s{sKV}, {32 << 16}")
    a("v_and_b32 v1, 31, v0")
    a("v_lshrrev_b32 v2, 5, v0")
    a("v_bfe_u32 v3, v0, 1, 3")
    a("v_xor_b32 v3, v3, v2")
    a("v_lshlrev_b32 v3, 4, v3")
    a("v_lshl_add_u32 v3, v1, 7, v3")
    a(f"s_lshl_b32 s{T0}, s{sTT}, 12")
    a(f"s_add_u32 s{T0}, s{T0}, {AR}")
    a(f"v_add_u32 v{XA}, s{T0}, v3")
    for i in range(1, 4):
        a(f"v_xor_b32 v{XA + i}, {32 * i}, v{XA}")
    a("v_bfe_u32 v3, v0, 2, 2")
    a("v_lshl_add_u32 v4, v2, 3, v3")
    a("v_lshlrev_b32 v4, 7, v4")
    a("v_and_b32 v7, 3, v0")
    a("v_lshl_add_u32 v4, v7, 3, v4")
    a("v_and_b32 v3, 2, v3")
    a("v_bfe_u32 v7, v0, 4, 1")
    a("v_xor_b32 v3, v3, v7")
    a(f"s_and_b32 s{T0}, s{sCB}, 1")
    a(f"s_lshl1_add_u32 s{T0}, s{sHF}, s{T0}")
    for t in range(2):
        a(f"s_and_b32 s{T1}, s{T0}, 1")
        a(f"s_lshl_b32 s{T1}, s{T1}, 1")
        a(f"s_lshr_b32 s{T2}, s{T0}, 1")
        a(f"s_lshl_b32 s{T2}, s{T2}, 13")
        a(f"s_add_u32 s{T2}, s{T2}, {BR}")
        a(f"v_xor_b32 v6, s{T1}, v3")
        a("v_lshl_add_u32 v6, v6, 5, v4")
        a(f"v_add_u32 v{WA1 + t}, s{T2}, v6")
        if t == 0:
            a(f"s_add_u32 s{T0}, s{T0}, 1")
    a(f"v_mul_u32_u24 v6, {BR - AR}, v7")
    a("v_add_u32 v4, v4, v6")
    a(f"s_lshl_b32 s{T0}, s{sHF}, 13")
    a(f"s_add_u32 s{T0}, s{T0}, {AR}")
    a(f"v_add_u32 v4, s{T0}, v4")
    for c in range(4):
        a(f"v_xor_b32 v6, {c}, v3")
        a(f"v_lshl_add_u32 v{WA2 + c}, v6, 5, v4")
    a(f"v_mov_b32 v{MASK}, 0xffff0000")
    a(f"v_mov_b32 v{ONES}, 0x3f803f80")
    a(f"v_mov_b32 v{ONES + 1}, 0x3f803f80")
    for i in range(0, 8, 2):
        a(f"v_mov_b64 v[{CSA + i}:{CSA + i + 1}], 0")
    if "notouch" not in OPT:
        a(f"s_cmp_eq_u32 s{sISS}, 0")
        a("s_cbranch_scc1 L_notouch")
        a(f"s_and_b32 s{T0}, s{sRB}, 3")
        a(f"s_lshl3_add_u32 s{T0}, s{T0}, s{sW}")
        a(f"s_lshl_b32 s{T0}, s{T0}, 2")
        a("v_bfe_u32 v1, v0, 1, 2")
        a(f"v_add_u32 v1, s{T0}, v1")
        a("v_lshrrev_b32 v2, 3, v0")
        a(f"s_add_u32 s{T1}, s{sROT}, 1")
        a(f"v_add_u32 v3, s{T1}, v2")
        a("v_lshl_add_u32 v1, v3, 6, v1")
        a("v_and_b32 v1, 511, v1")
        a("v_mul_u32_u24 v1, 3584, v1")
        a("v_lshl_add_u32 v1, v2, 8, v1")
        a("v_and_b32 v2, 1, v0")
        a("v_lshl_add_u32 v1, v2, 7, v1")
        a(f"s_lshr_b32 s{T0}, s{sXCD}, 2")
        a(f"s_mul_i32 s{T0}, s{T0}, 1792")
        a("s_mov_b64 exec, 0x00ffffffffffffff" if False else "s_mov_b32 exec_hi, 0x00ffffff")
        a(f"buffer_load_dword v2, v1, {sr(S_W1)}, s{T0} offen")
        a(f"buffer_load_dword v3, v1, {sr(S_W3)}, s{T0} offen")
        a("s_mov_b64 exec, -1")
        a("L_notouch:")
    stamp(a, 1)
    for v in range(1, 4):
        a(f"s_cmp_eq_u32 s{sVAR}, {v}")
        a(f"s_cbranch_scc1 L_p1_{v}")
    RS, SD, XOP = 112, 114, 116
    for var in range(4):
        hf, isv = var & 1, var >> 1
        nt = 2 - hf
        a(f"L_p1_{var}:")
        a("s_waitcnt vmcnt(4)")
        a("s_barrier")
        stamp(a, 2)
        a(rd1(0, nt))
        if var == 0:
            a(f"s_lshl_b32 s{T0}, s{sW}, 8")
            a(f"s_or_b32 s{T0}, s2, s{T0}")
            a(f"s_cmp_lg_u32 s{T0}, 32")
            a("s_cbranch_scc1 L_noflag")
            a("v_mov_b32 v5, 0")
            a("v_mov_b32 v6, 1")
            a("s_mov_b64 exec, 1")
            a(f"global_store_dword v5, v6, s[{pDBG}:{pDBG + 1}] sc1")
            a("s_mov_b64 exec, -1")
            a("L_noflag:")
        for h in range(16):
            S = h >> 1
            F = WF + 16 * (h & 1)
            first = h == 0
            big, tn = [], []
            for q in range(2):
                x = XF + 4 * (2 * h + q)
                for t in range(nt):
                    w = F + 8 * q + 4 * t
                    c = "0" if (first and q == 0) else None
                    big.append(mfma(ACC + 16 * t, x, w, c) if isv else mfma(ACC + 16 * t, w, x, c))
            cs = []
            for q in range(2):
                x = XF + 4 * (2 * h + q)
                if hf:
                    for p in range(2):
                        f0 = first and q == 0 and p == 0
                        tn += [tiny(STA, ONES, x + 2 * p, f0), tiny(STB, x + 2 * p, x + 2 * p, f0), "s_nop 0"]
                lb = f"L_cs{var}_{h}_{q}"
                cs += [f"s_cmp_lg_u32 s{sTT}, {(2 * h + q) & 3}", f"s_cbranch_scc1 {lb}"]
                if hf:
                    cs += [tiny(CSA, ONES, F + 8 * q), tiny(CSA + 4, ONES, F + 8 * q + 2)]
                else:
                    cs += [tiny(CSA, ONES, F + 8 * q), tiny(CSA + 4, ONES, F + 8 * q + 4), "s_nop 0",
                           tiny(CSA, ONES, F + 8 * q + 2), tiny(CSA + 4, ONES, F + 8 * q + 6)]
                cs.append(f"{lb}:")
            if h == 15:
                break
            if h & 1:
                a("s_waitcnt vmcnt(4) lgkmcnt(0)")
                a("s_barrier")
                if "p1b" in OPT: stamp(a, 4 + S)
                d = dma(S + 3)[:2]
                if S == 5 and not hf:
                    d = [[f"s_cmp_lg_u32 s{sW}, 0", f"s_cbranch_scc1 L_nofl{var}", "v_mov_b32 v5, 0",
                          f"global_load_dword v{POLL}, v5, s[{pDBG}:{pDBG + 1}] sc1", f"L_nofl{var}:"]] + d
            else:
                a("s_waitcnt lgkmcnt(0)")
                d = dma(S + 2)[2:] if h else dma(2)
            if h == 13:
                d = d + [["v_and_b32 v1, 31, v0", f"s_lshl_b32 s{T2}, s{sTT}, 8", "v_lshlrev_b32 v1, 2, v1", f"v_add_u32 v1, s{T2}, v1",
                          f"s_lshl_b32 s{T3}, s{sTT}, 2", f"v_add_u32 v5, s{T3}, v{L16}", f"v_mov_b32 v{XOP + 3}, 0"]]
                if isv:
                    d = d + [["v_lshrrev_b32 v4, 5, v0", "v_lshlrev_b32 v6, 4, v4", f"v_add_u32 v6, s{T2}, v6",
                              "v_bfe_u32 v7, v0, 4, 1", "v_lshlrev_b32 v7, 16, v7", "v_lshl_add_u32 v7, v4, 8, v7",
                              "v_and_b32 v4, 15, v0", "v_lshl_add_u32 v7, v4, 4, v7"]]
            nxt = rd1(h + 1, nt)
            if hf:
                a(weave(big, nxt) + weave(tn, d) + cs)
            else:
                a(weave(big, nxt + d) + cs)
        a("s_waitcnt lgkmcnt(0)")
        csw = [f"ds_write_b32 v5, v{CSA + 4 * t} offset:{SCR + 1024 * (1 + 2 * hf + t)}" for t in range(nt)]
        if hf:
            a(tn + cs + big[:1])
            a("s_nop 1")
            for i, m in ((1, "0x22222222"), (2, "0x44444444"), (3, "0x88888888")):
                a(f"s_mov_b32 s40, {m}")
                a(f"s_mov_b32 s41, {m}")
                a(f"v_cndmask_b32 v{STB}, v{STB}, v{STB + i}, s[40:41]")
            a(f"v_mov_b32 v{STB + 1}, v{STB}")
            a(f"v_add_f32 v{CSA}, v{CSA}, v{CSA + 4}")
            a(csw)
            a(f"v_permlane32_swap_b32 v{STA}, v{STA + 1}")
            a(f"v_permlane32_swap_b32 v{STB}, v{STB + 1}")
            a(f"v_add_f32 v2, v{STA}, v{STA + 1}")
            a(f"v_add_f32 v3, v{STB}, v{STB + 1}")
            a(f"v_mul_f32 v2, {hx(f2u(-1.0 / 512))}, v2")
            a(f"v_mul_f32 v3, {hx(f2u(1.0 / 512))}, v3")
            a("v_fma_f32 v3, -v2, v2, v3")
            a("v_max_f32 v3, 0, v3")
            a("v_cvt_pk_bf16_f32 v3, v3, v3")
            a(f"v_and_b32 v3, v{MASK}, v3")
            a(f"v_add_f32 v3, {hx(f2u(1e-5))}, v3")
            a("v_cvt_pk_bf16_f32 v3, v3, v3")
            a(f"v_and_b32 v3, v{MASK}, v3")
            a("v_sqrt_f32 v3, v3")
            a("s_nop 0")
            a(f"v_cvt_pk_bf16_f32 v{STV}, v3, v2")
            a(f"v_lshlrev_b32 v{SD}, 16, v{STV}")
            a(f"v_rcp_f32 v{RS}, v{SD}")
            a(f"ds_write_b32 v1, v{STV} offset:{SCR}")
            a(f"ds_write_b32 v1, v{RS} offset:{SCR + 128}")
            a(big[1:])
        else:
            a(cs + big)
            a("s_nop 0")
            a(csw)
        a("s_waitcnt vmcnt(4) lgkmcnt(0)")
        a("s_barrier")
        stamp(a, 3)
        RSV = WF + 16
        cop = [STA, STB]
        for t in range(nt):
            a(f"ds_read_b128 {vr(CSA + 4 * t, 4)}, v{L16} offset:{SCR + 1024 * (1 + 2 * hf + t)}")
        if not hf:
            a(f"ds_read_b32 v{STV}, v1 offset:{SCR}")
            a(f"ds_read_b32 v{RS}, v1 offset:{SCR + 128}")
        if isv:
            for g in range(4):
                a(f"ds_read_b128 {vr(RSV + 4 * g, 4)}, v6 offset:{SCR + 128 + g * 32}")
        a(f"s_lshl_b32 s{T3}, s{sG}, 16")
        a(f"s_lshl_b32 s{T2}, s{sT}, 10")
        a(f"s_add_u32 s{T3}, s{T3}, s{T2}")
        a(f"s_waitcnt lgkmcnt({4 if isv else 0})")
        a(f"v_and_b32 v{XOP}, v{MASK}, v{STV}")
        a(f"v_mov_b32 v{XOP + 1}, v{XOP}")
        a(f"v_mov_b32 v{XOP + 2}, v{XOP}")
        for t in range(nt):
            w = CSA + 4 * t
            a(f"v_add_f32 v{w}, v{w}, v{w + 1}")
            a(f"v_add_f32 v{w + 2}, v{w + 2}, v{w + 3}")
            a(f"v_add_f32 v{w}, v{w}, v{w + 2}")
            a(split3(cop[t], w))
            a("s_nop 1")
            a(mfma(ACC + 16 * t, XOP, cop[t]) if isv else mfma(ACC + 16 * t, cop[t], XOP))
        a(rd2(0))
        if nt == 1:
            a("s_nop 3")
        if isv:
            a("s_waitcnt lgkmcnt(8)")
        for t in range(nt):
            ac = ACC + 16 * t
            o = 120 if t == 0 else 96
            if isv:
                for i in range(8):
                    a(f"v_pk_mul_f32 {vr(ac + 2 * i, 2)}, {vr(ac + 2 * i, 2)}, {vr(RSV + 2 * i, 2)}")
            else:
                a(f"s_cmp_lt_u32 s{sG}, {32 - 2 * t}")
                a(f"s_cselect_b32 s{T0}, {hx(f2u(QSCALE))}, 1.0")
                a(f"v_mul_f32 v2, s{T0}, v{RS}")
                a(f"v_mul_f32 v3, s{T0}, v{RS}")
                for i in range(8):
                    a(f"v_pk_mul_f32 {vr(ac + 2 * i, 2)}, {vr(ac + 2 * i, 2)}, v[2:3]")
            for i in range(8):
                a(f"v_cvt_pk_bf16_f32 v{o + i}, v{ac + 2 * i}, v{ac + 2 * i + 1}")
        a(dma(10))
        for t in range(nt):
            o = 120 if t == 0 else 96
            if isv:
                a(f"buffer_store_dwordx4 {vr(o, 4)}, v7, {sr(S_WS)}, s{T3} offen sc1")
                a(f"buffer_store_dwordx4 {vr(o + 4, 4)}, v7, {sr(S_WS)}, s{T3} offen offset:512 sc1")
                if t + 1 < nt:
                    a(f"s_add_u32 s{T3}, s{T3}, 0x20000")
            else:
                a(f"buffer_store_dwordx4 {vr(o, 4)}, v{L16}, {sr(S_WS)}, s{T3} offen sc1")
                a(f"s_add_u32 s{T3}, s{T3}, 0x10000")
                a(f"buffer_store_dwordx4 {vr(o + 4, 4)}, v{L16}, {sr(S_WS)}, s{T3} offen sc1")
                if t + 1 < nt:
                    a(f"s_add_u32 s{T3}, s{T3}, 0x10000")
        if var != 3:
            a("s_branch L_pass2")
    a("L_pass2:")
    if "p1b" in OPT: NOSTAMP = True
    stamp(a, 4)
    a(f"s_cmp_eq_u32 s{sISS}, 1")
    a("s_cbranch_scc1 L_side")
    CO = O_
    sU = sVAR
    a(f"s_and_b32 s{sU}, s{sRB}, 3")
    a(f"s_lshr_b32 s40, s{sRB}, 2")
    a(f"s_lshl2_add_u32 s{sU}, s{sU}, s40")
    CSS, RU = 4096, 136
    w1 = []
    for i in range(4):
        w1 += [f"v_lshlrev_b32 v{RU + 2 * i}, 16, v{8 + i}", f"v_and_b32 v{RU + 2 * i + 1}, v{MASK}, v{8 + i}"]
    for i in range(4):
        w1 += [f"v_lshlrev_b32 v14, 16, v{128 + i}", f"v_and_b32 v15, v{MASK}, v{128 + i}",
               f"v_add_f32 v{RU + 2 * i}, v{RU + 2 * i}, v14", f"v_add_f32 v{RU + 2 * i + 1}, v{RU + 2 * i + 1}, v15"]
    w1 += ["v_and_b32 v14, 8, v0", "v_cmp_eq_u32 vcc, 0, v14"]
    w1 += [f"v_permlane16_swap_b32 v{RU + 2 * i}, v{RU + 2 * i + 1}" for i in range(4)]
    w1 += [f"v_add_f32 v{RU + 2 * i}, v{RU + 2 * i}, v{RU + 2 * i + 1}" for i in range(4)]
    w1 += ["v_and_b32 v15, 7, v0", "v_lshlrev_b32 v15, 3, v15",
           f"v_permlane32_swap_b32 v{RU}, v{RU + 2}", f"v_permlane32_swap_b32 v{RU + 4}, v{RU + 6}",
           f"v_add_f32 v{RU}, v{RU}, v{RU + 2}", f"v_add_f32 v{RU + 4}, v{RU + 4}, v{RU + 6}",
           "v_lshrrev_b32 v16, 4, v0", "v_add_u32 v15, v15, v16",
           f"v_add_f32_dpp v{RU}, v{RU}, v{RU} row_ror:8 row_mask:0xf bank_mask:0xf",
           f"v_add_f32_dpp v{RU + 4}, v{RU + 4}, v{RU + 4} row_ror:8 row_mask:0xf bank_mask:0xf",
           "v_lshrrev_b32 v14, 1, v14", "v_add_u32 v15, v15, v14", "v_lshlrev_b32 v15, 2, v15",
           [f"s_lshl_b32 s40, s{sW}, 8", "v_add_u32 v15, s40, v15"],
           f"v_cndmask_b32 v14, v{RU + 4}, v{RU}, vcc",
           f"ds_write_b32 v15, v14 offset:{CSS}", "v_lshlrev_b32 v16, 2, v0"]
    q4 = -(-(len(w1) - 8) // 5)
    csv = {0: [[f"s_lshr_b32 s40, s{sU}, 3", f"s_mul_i32 s41, s40, {BR - AR}", "s_lshl_b32 s40, s40, 1"],
               "v_lshrrev_b32 v14, 3, v0", "v_and_b32 v15, 2, v14", "v_lshlrev_b32 v15, 1, v15", "v_xor_b32 v15, s40, v15",
               "v_and_b32 v16, 7, v0", "v_xor_b32 v15, v15, v16", "v_lshlrev_b32 v15, 4, v15", "v_lshl_add_u32 v15, v14, 7, v15",
               [f"s_bfe_u32 s40, s{sU}, 0x10002", "s_lshl_b32 s40, s40, 13", "s_add_u32 s41, s41, s40",
                f"s_add_u32 s41, s41, s{sLW}", f"s_add_u32 s41, s41, {AR}", "v_add_u32 v17, s41, v15"]],
           1: [f"ds_read_b128 v[8:11], v17 offset:{2 * SL}"],
           5: ["ds_read_b128 v[128:131], v17"],
           4: w1[:8], 6: w1[8:8 + q4], 7: w1[8 + q4:8 + 2 * q4], 8: w1[8 + 2 * q4:8 + 3 * q4],
           9: w1[8 + 3 * q4:8 + 4 * q4], 10: w1[8 + 4 * q4:],
           12: [f"ds_read2st64_b32 {vr(RU + 2 * i, 2)}, v16 offset0:{CSS // 256 + 2 * i} offset1:{CSS // 256 + 2 * i + 1}" for i in range(4)],
           13: [f"v_add_f32 v{RU + 2 * i}, v{RU + 2 * i}, v{RU + 2 * i + 1}" for i in range(4)] +
               [f"v_add_f32 v{RU}, v{RU}, v{RU + 2}", f"v_add_f32 v{RU + 4}, v{RU + 4}, v{RU + 6}", f"v_add_f32 v{RU}, v{RU}, v{RU + 4}",
                [f"s_lshr_b32 s40, s{sU}, 3", "s_mul_i32 s40, s40, 28", f"s_bfe_u32 s41, s{sU}, 0x10002", "s_add_u32 s40, s40, s41",
                 f"s_lshl1_add_u32 s40, s{sCF}, s40", f"s_and_b32 s41, s{sU}, 3", "s_lshl2_add_u32 s40, s40, s41",
                 "s_lshl_b32 s40, s40, 8", f"s_add_u32 s40, s40, {WS_CS}", f"s_cmp_eq_u32 s{sW}, 0", f"s_cselect_b32 s40, s40, {OOB}",
                 f"buffer_store_dword v{RU}, v16, {sr(S_WS)}, s40 offen sc1"]]}
    bgq = []
    for k in range(32):
        S, ks = 8 + (k >> 2), k & 3
        F = WF + 16 * (k & 1)
        big = [mfma(ACC + 16 * c, F + 4 * c, XF + 4 * k, "0" if k == 0 else None) for c in range(4)]
        extra = []
        if ks == 3:
            n = {8: 8, 9: 8, 11: 5, 13: 7, 14: 2, 15: 63}.get(S, 4)
            if S in (8, 9):
                a([f"s_cmp_eq_u32 s{sHF}, 0", f"s_cbranch_scc1 L_w{S}", f"s_waitcnt vmcnt({n - 2})", f"L_w{S}:"])
            a(f"s_waitcnt vmcnt({n}) lgkmcnt(0)" if n != 63 else "s_waitcnt lgkmcnt(0)")
            if S == 12: a(poll_check("L_cq", 32))
            if S == 14: a(poll_check("L_cc", 16))
            if S != 15: a("s_barrier")
            if "p2b" in OPT: stamp(a, S - 3)
            if S == 11: bgq.append(poll_issue("L_pq", QKV_MASK))
            if S == 12: bgq.append(sig_one("L_scs", [f"s_add_u32 s{T0}, s{sCF}, {C_CS}"]))
            if S + 3 < 16: bgq += dma(S + 3)
            if S == 10: bgq = [sig_qkv("L_sq")] + bgq
            if S == 12: bgq += kv(0) + [q_load()]
            if S == 13: bgq += kv(1) + [poll_issue("L_pc", CS_MASK)] + kv(2)
            if S == 14:
                bgq += [["v_bfe_u32 v2, v0, 4, 1", "v_mul_u32_u24 v2, 28672, v2", "v_lshrrev_b32 v3, 5, v0",
                         "v_lshl_add_u32 v2, v3, 9, v2", "v_and_b32 v3, 15, v0", "v_lshl_add_u32 v2, v3, 2, v2",
                         f"s_lshl1_add_u32 s{T3}, s{sCF}, s{sHF}", f"s_lshl_b32 s{T3}, s{T3}, 10", f"s_add_u32 s{T3}, s{T3}, {WS_CS}"]]
                for c in range(4):
                    bgq.append([f"buffer_load_dword v{CO + 4 * c + q}, v2, {sr(S_WS)}, s{T3} offen offset:{c * 64 + q * 256} sc1" for q in range(2)])
                bgq += kv(3)
            if S == 15:
                if "prio" in OPT:
                    a("s_setprio 1")
                    a(lead(2))
        else:
            a("s_waitcnt lgkmcnt(0)")
        left = 4 if ks == 3 else 3 - ks
        if S == 15 and ks == 3: left = 1
        take = -(-len(bgq) // left)
        extra, bgq = bgq[:take], bgq[take:]
        val = []
        if 16 <= k < 24: val = p2_init_regs()[4 * (k - 16):4 * (k - 15)]
        if k in (24, 25, 26): val = p2_init_v()[[0, 5, 11][k - 24]:[5, 11, 17][k - 24]]
        if k in csv: val = csv[k]
        nxt = rd2(k + 1) if k < 31 else []
        body = weave(big[:3], nxt) + [big[3]]
        res, idx = [], 0
        ex_at = extra + val
        if "a_val" in OPT: ex_at = extra
        if "a_vm" in OPT:
            ex_at = [[x for x in ([at] if isinstance(at, str) else at) if not (x.startswith("buffer_") and ("sc1" in x or "s[4:7]" in x) and "atomic" not in x and "s62" not in x)] for at in ex_at]
        if "a_dma" in OPT:
            ex_at = [[x for x in ([at] if isinstance(at, str) else at) if not (x.startswith("buffer_") and "atomic" not in x and "s62" not in x)] for at in ex_at]
        per = -(-len(ex_at) // 4) if ex_at else 0
        segs, cur = [], []
        for ins in body:
            if ins.startswith("v_mfma") and cur:
                segs.append(cur); cur = []
            cur.append(ins)
        segs.append(cur)
        for sg in segs:
            res += sg
            for at in ex_at[idx:idx + per]:
                res += [at] if isinstance(at, str) else at
            idx += per
        a(res)
    assert not bgq
    if "p2b" in OPT: NOSTAMP = True
    stamp(a, 5)
    RS, SD, XOP = 240, 242, 244
    a(f"v_lshlrev_b32 v{SD}, 16, v{STV}")
    a(f"v_rcp_f32 v{RS}, v{SD}")
    a(f"v_and_b32 v{XOP}, v{MASK}, v{STV}")
    a(f"v_mov_b32 v{XOP + 1}, v{XOP}")
    a(f"v_mov_b32 v{XOP + 2}, v{XOP}")
    a(f"v_mov_b32 v{XOP + 3}, 0")
    a(f"s_mul_i32 s{T3}, s{sT}, 112")
    a(f"s_lshl1_add_u32 s{T0}, s{sCF}, s{sHF}")
    a(f"s_lshl2_add_u32 s{T3}, s{T0}, s{T3}")
    a(f"s_lshl_b32 s{T3}, s{T3}, 10")
    a(f"s_add_u32 s{T3}, s{T3}, {WS_H}")
    a(f"v_mov_b32 v248, {hx(f2u(GC2))}")
    a("v_mov_b32 v249, v248")
    a(f"v_mov_b32 v250, {hx(f2u(GC1))}")
    a("v_mov_b32 v251, v250")
    a(f"v_mov_b32 v{RS + 1}, v{RS}")
    a(f"v_mov_b32 v{SD + 1}, v{SD}")
    a("s_waitcnt vmcnt(2)")
    for c in range(4):
        w = CO + 4 * c
        a(f"v_add_f32 v{w + 3}, v{w}, v{w + 1}")
        a(split3(w, w + 3))
        a("s_nop 1")
        a(mfma(ACC + 16 * c, w, XOP))
    for c in range(4):
        g = ACC + 16 * c
        u = g + 8
        q = 32 + (c & 1) * 8
        o = 48 + c * 4
        for i in range(4):
            a(f"v_pk_mul_f32 {vr(g + 2 * i, 2)}, {vr(g + 2 * i, 2)}, {vr(RS, 2)}")
        for i in range(4):
            a(f"v_pk_mul_f32 {vr(q + 2 * i, 2)}, {vr(g + 2 * i, 2)}, {vr(g + 2 * i, 2)}")
        for i in range(4):
            a(f"v_pk_fma_f32 {vr(q + 2 * i, 2)}, {vr(q + 2 * i, 2)}, v[248:249], v[250:251]")
        for i in range(4):
            a(f"v_pk_mul_f32 {vr(q + 2 * i, 2)}, {vr(q + 2 * i, 2)}, {vr(g + 2 * i, 2)}")
        for i in range(8):
            a(f"v_exp_f32 v{q + i}, v{q + i}")
        for i in range(4):
            a(f"v_pk_mul_f32 {vr(g + 2 * i, 2)}, {vr(g + 2 * i, 2)}, {vr(u + 2 * i, 2)}")
        for i in range(4):
            a(f"v_pk_fma_f32 {vr(q + 2 * i, 2)}, {vr(q + 2 * i, 2)}, {vr(SD, 2)}, {vr(SD, 2)}")
        for i in range(8):
            a(f"v_rcp_f32 v{q + i}, v{q + i}")
        a("s_nop 0")
        for i in range(4):
            a(f"v_pk_mul_f32 {vr(g + 2 * i, 2)}, {vr(g + 2 * i, 2)}, {vr(q + 2 * i, 2)}")
        for i in range(4):
            a(f"v_cvt_pk_bf16_f32 v{o + i}, v{g + 2 * i}, v{g + 2 * i + 1}")
        a(f"buffer_store_dwordx4 {vr(o, 4)}, v{L16}, {sr(S_WS)}, s{T3} offen offset:{c * 1024} sc1")


def gen_side(a):
    a("L_side:")
    global NOSTAMP
    NOSTAMP = "side" not in OPT
    gs = sCQ
    a("s_waitcnt vmcnt(0)")
    a("s_barrier")
    a(sig_qkv("L_sq2"))
    a(f"s_lshl3_add_u32 s{gs}, s2, s{sW}")
    a("v_lshrrev_b32 v1, 3, v0")
    a("v_and_b32 v2, 7, v0")
    a("v_and_b32 v3, 2, v1")
    a("v_xor_b32 v6, v3, v2")
    a("v_lshlrev_b32 v6, 4, v6")
    ASRC = 12
    a(f"v_lshl_add_u32 v{ASRC}, v1, 10, v6")
    a(f"s_mul_i32 s{tVM + 1}, s{sW}, 10240")
    a(f"s_add_u32 s{tVM + 1}, s{tVM + 1}, {AR}")
    a(f"s_mov_b32 s{S_T + 3}, 0x00020000")
    stamp(a, 10)
    for r in range(5):
        a(f"s_add_u32 s{T0}, s{gs}, {256 * r}")
        a(f"s_and_b32 s{T1}, s{T0}, 7")
        a(f"s_lshr_b32 s{T2}, s{T0}, 3")
        a(f"s_cmp_lt_u32 s{T2}, 112")
        a(f"s_cselect_b32 s{S_T}, s{pWD}, s{pWO}")
        a(f"s_cselect_b32 s{S_T + 1}, s{pWD + 1}, s{pWO + 1}")
        a(f"s_mov_b32 s{S_T + 2}, 1835008")
        a(f"s_cselect_b32 s{S_T + 2}, s{S_T + 2}, 524288")
        a(f"s_cselect_b32 s{T3}, 0, 112")
        a(f"s_sub_u32 s{T2}, s{T2}, s{T3}")
        a(f"s_lshl_b32 s{T2}, s{T2}, 14")
        a(f"s_lshl_b32 s{T1}, s{T1}, 7")
        a(f"s_add_u32 s{T2}, s{T2}, s{T1}")
        a(f"s_add_u32 m0, s{tVM + 1}, {r * 2048}")
        a(f"s_add_u32 s{T1}, s{T2}, 8192")
        a(f"buffer_load_dwordx4 v{ASRC}, {sr(S_T)}, s{T2} offen lds")
        a("s_add_u32 m0, m0, 1024")
        a("s_nop 0")
        a(f"buffer_load_dwordx4 v{ASRC}, {sr(S_T)}, s{T1} offen lds")
    a(tr_addr(13, 1, 2))
    a(f"v_add_u32 v13, s{tVM + 1}, v13")
    a("v_xor_b32 v14, 32, v13")
    a(p2_init_regs())
    a(p2_init_v())
    stamp(a, 11)
    a("s_waitcnt vmcnt(0)")
    a(poll_issue("L_pq2", QKV_MASK))
    for r in range(5):
        for ap in range(2):
            for t in range(2):
                a(f"ds_read_b64_tr_b16 {vr(64 + 8 * r + 4 * ap + 2 * t, 2)}, v{13 + ap} offset:{r * 2048 + t * 1024}")
        if r == 2:
            a("s_waitcnt lgkmcnt(4)")
    a("s_waitcnt lgkmcnt(0)")
    for r in range(5):
        a(f"s_add_u32 s{T0}, s{gs}, {256 * r}")
        a(f"s_and_b32 s{T1}, s{T0}, 7")
        a(f"s_lshr_b32 s{T2}, s{T0}, 3")
        a(f"s_mul_i32 s{T1}, s{T1}, 144")
        a(f"s_add_u32 s{T1}, s{T1}, s{T2}")
        a(f"s_lshl_b32 s{T1}, s{T1}, 11")
        a(f"s_add_u32 s{T1}, s{T1}, {WS_WT}")
        if r == 4:
            a(f"s_cmp_lt_u32 s{T0}, 1152")
            a(f"s_cselect_b32 s{T1}, s{T1}, {OOB}")
        a(f"buffer_store_dwordx4 {vr(64 + 8 * r, 4)}, v{L16}, {sr(S_WS)}, s{T1} offen sc1")
        a(f"buffer_store_dwordx4 {vr(64 + 8 * r + 4, 4)}, v{L16}, {sr(S_WS)}, s{T1} offen offset:1024 sc1")
    a("s_waitcnt vmcnt(10)")
    stamp(a, 13)
    a(poll_check("L_cq2", 32))
    a("s_barrier")
    a(q_load())
    for i in range(4):
        a(kv(i))
    a("s_waitcnt vmcnt(6)")
    a("s_barrier")
    if "prio" in OPT:
        a("s_setprio 1")
        a(lead(2))
    a("s_branch L_p2")


def att_step(i, ex=None, first=False):
    ex = ex or {}
    Sc, Sn = (S0, S1) if i % 2 == 0 else (S1, S0)
    Kn = K_ + 4 * ((i + 1) % 2)
    Vc = V_ + 8 * (i % 4)
    Vp = V_ + 8 * ((i - 1) % 4)
    e = lambda k: f"v_exp_f32 v{Sc + k}, v{Sc + k}"
    c = lambda k: f"v_cvt_pk_bf16_f32 v{P_ + k}, v{Sc + 2 * k}, v{Sc + 2 * k + 1}"
    r = [mfma(Sn, Kn, Q_, NM),
         f"ds_read_b128 {vr(Kn, 4)}, v{AK} offset:{(i + 3) * 2048}"]
    r += ex.get("qk", [])
    r += [e(0), e(1), e(2), e(3)]
    if not first:
        r.append(mfma(O_, Vp + 4, P_ + 4))
    if i % 2 == 0:
        r.append(f"s_mov_b64 exec, s[{tVM}:{tVM + 1}]")
        for d in (2, 3):
            vb = V_ + 8 * ((i + d) % 4)
            r.append(f"ds_read_b128 {vr(vb, 4)}, v{AV} offset:{(i + d) * 2048}")
            r.append(f"ds_read_b128 {vr(vb + 4, 4)}, v{AV} offset:{(i + d) * 2048 + 512}")
        r.append("s_mov_b64 exec, -1")
    r += ex.get("pv1", [])
    if "G2" in ex:
        r += [c(0), e(4), e(5), c(1)]
        r += [ex["G1"]] + ex.get("g1", [])
        r += [e(6), e(7), e(8), c(2), c(3), e(9)]
        r += ["s_nop 0", mfma(O_, Vc, P_)]
        if i % 2 == 1: r.append("s_waitcnt lgkmcnt(0)")
        r += ex.get("pv0", [])
        r += [e(10), e(11), c(4), e(12), c(5)]
        r += [ex["G2"]] + ex.get("g2", [])
        r += [e(13), e(14), e(15), c(6), c(7)]
    else:
        r += [c(0), e(4), e(5), c(1), e(6), e(7)]
        if "G1" in ex:
            r += [ex["G1"]]
        r += ex.get("g1", [])
        r += [e(8), c(2), c(3), e(9), e(10), e(11)]
        r.append(mfma(O_, Vc, P_, "0" if first else None))
        if i % 2 == 1: r.append("s_waitcnt lgkmcnt(0)")
        r += ex.get("pv0", [])
        r += [c(4), e(12), e(13), c(5), e(14), e(15), c(6), c(7)]
    r += ex.get("end", [])
    return r


def ring_loads(r):
    b = RING + 16 * r
    return [f"buffer_load_dwordx4 {vr(b, 4)}, v{A16}, {sr(R_H0)}, s{tFH} offen sc1",
            f"buffer_load_dwordx4 {vr(b + 4, 4)}, v{A16}, {sr(R_H1)}, s{tFH} offen sc1",
            f"buffer_load_dwordx4 {vr(b + 8, 4)}, v{A16}, {sr(R_WT)}, s{tFW} offen sc1",
            f"buffer_load_dwordx4 {vr(b + 12, 4)}, v{A16}, {sr(R_WT)}, s{tFW} offen offset:1024 sc1",
            f"s_add_u32 s{tFH}, s{tFH}, 1024",
            f"s_add_u32 s{tFW}, s{tFW}, 2048"]


def gm(r, n):
    b = RING + 16 * r
    return mfma(G_ + 16 * n, b + 8 + 4 * (n & 1), b + 4 * (n >> 1))


_pl = [0]


def lead(p, cond=None):
    if "prio" not in OPT:
        return []
    _pl[0] += 1
    lb = f"L_pr{_pl[0]}"
    c = [f"s_cmp_lt_u32 s{sW}, 4"] if cond is None else cond
    return c + [f"s_cbranch_scc0 {lb}", f"s_setprio {p}", f"{lb}:"]


def adv(a):
    a(f"v_add_u32 v{AK}, 0x4000, v{AK}")
    a(f"v_add_u32 v{AV}, 0x4000, v{AV}")


def gen_p2(a):
    a("L_p2:")
    stamp(a, 6)
    a(f"v_mov_b32 v{A16}, v{L16}")
    a(f"v_mov_b32 v{AK}, v{L16}")
    a("v_lshrrev_b32 v2, 5, v0")
    a("v_and_b32 v3, 15, v0")
    a("v_lshlrev_b32 v3, 4, v3")
    a("v_lshl_add_u32 v3, v2, 8, v3")
    a(f"v_add_u32 v{AV}, 1024, v3")
    a(f"s_mov_b32 s{tVM}, 0x0000ffff")
    a(f"s_mov_b32 s{tVM + 1}, 0x0000ffff")
    a(f"ds_read_b128 {vr(K_, 4)}, v{AK}")
    a(f"ds_read_b128 {vr(K_ + 4, 4)}, v{AK} offset:2048")
    a(f"s_mov_b64 exec, s[{tVM}:{tVM + 1}]")
    for d in range(2):
        a(f"ds_read_b128 {vr(V_ + 8 * d, 4)}, v{AV} offset:{d * 2048}")
        a(f"ds_read_b128 {vr(V_ + 8 * d + 4, 4)}, v{AV} offset:{d * 2048 + 512}")
    a("s_mov_b64 exec, -1")
    a(f"s_lshr_b32 s{T0}, s{sW}, 2")
    a(f"s_lshl1_add_u32 s{tTT}, s{tHEAD}, s{T0}")
    a(f"s_lshl_b32 s{T0}, s{tTT}, 15")
    a(f"s_lshl_b32 s{T1}, s{tQB}, 7")
    a(f"s_add_u32 s{T0}, s{T0}, s{T1}")
    a(f"s_and_b32 s{T1}, s{sW}, 3")
    a(f"s_lshl4_add_u32 s{T0}, s{T1}, s{T0}")
    a("v_and_b32 v1, 31, v0")
    a("v_lshlrev_b32 v1, 10, v1")
    a("v_lshl_add_u32 v1, v2, 6, v1")
    a(f"v_add_u32 v{AOUT}, s{T0}, v1")
    a("s_waitcnt lgkmcnt(4)")
    a(mfma(S0, K_, Q_, "0"))
    a(mfma(S1, K_ + 4, Q_, "0"))
    a(f"s_mul_i32 s{T0}, s{tHEAD}, {224 * 1024}")
    a(f"s_add_u32 s{T0}, s{T0}, {WS_H}")
    a(f"s_add_u32 s{R_H0}, s{pWS}, s{T0}")
    a(f"s_addc_u32 s{R_H0 + 1}, s{pWS + 1}, 0")
    a(f"s_add_u32 s{R_H1}, s{R_H0}, {112 * 1024}")
    a(f"s_addc_u32 s{R_H1 + 1}, s{R_H0 + 1}, 0")
    a(f"s_mul_i32 s{tFH}, s{sW}, {14 * 1024}")
    a(f"s_add_u32 s{R_H0 + 2}, s{tFH}, {14 * 1024}")
    a(f"s_mov_b32 s{R_H1 + 2}, s{R_H0 + 2}")
    a(f"s_mul_i32 s{T0}, s{tQB}, {144 * 2048}")
    a(f"s_add_u32 s{T0}, s{T0}, {WS_WT}")
    a(f"s_add_u32 s{R_WT}, s{pWS}, s{T0}")
    a(f"s_addc_u32 s{R_WT + 1}, s{pWS + 1}, 0")
    a(f"s_lshl_b32 s{tFW}, s{tFH}, 1")
    a(f"s_lshl_b32 s{R_WT + 2}, s{R_H0 + 2}, 1")
    a(f"v_max3_f32 v1, v{S0}, v{S0 + 1}, v{S0 + 2}")
    for i in range(3, 31, 2):
        a(f"v_max3_f32 v1, v1, v{S0 + i}, v{S0 + i + 1}")
    a(f"v_max_f32 v1, v1, v{S0 + 31}")
    a("v_mov_b32 v2, v1")
    a("s_nop 1")
    a("v_permlane32_swap_b32 v1, v2")
    a("v_max_f32 v1, v1, v2")
    a(f"v_sub_f32 v2, {hx(f2u(-MAXOFF))}, v1")
    a("v_mov_b32 v3, v2")
    for i in range(0, 16, 2):
        a(f"v_mov_b64 v[{NM + i}:{NM + i + 1}], v[2:3]")
    a("s_nop 1")
    a(mfma(S0, K_, Q_, NM))
    a(f"ds_read_b128 {vr(K_, 4)}, v{AK} offset:4096")
    srd(a, R_OUT, pOUT, 2097152)
    a(f"s_lshl_b32 s{T0}, s{sW}, 11")
    a(f"v_add_u32 v{AW}, s{T0}, v{A16}")
    a(f"v_add_u32 v{AW + 1}, 0x10000, v{AW}")
    a(f"v_add_u32 v{AW + 2}, 0x20000, v{AW}")
    a("s_waitcnt lgkmcnt(0)")
    a("s_nop 1")
    stamp(a, 7)
    global NOSTAMP
    if "side" in OPT: NOSTAMP = True
    for i in range(8):
        ex = {}
        if i == 4:
            ex["end"] = ["s_waitcnt vmcnt(0)", "s_barrier"] + sig_one("L_h_ns", [f"s_add_u32 s{T0}, s{sRB}, {C_H}"]) + lead(2)
        if i == 3:
            ex["pv0"] = lead(0)
        if i >= 5:
            ex["pv1"], ex["pv0"] = kv(i - 1, A16)
        a(att_step(i, ex, first=(i == 0)))
    adv(a)
    for i in range(8):
        ex = {}
        if i == 0:
            ex["pv1"], ex["pv0"] = kv(7, A16)
        if i == 3:
            ex["pv0"] = poll_issue("L_h_np", H_MASK, 7) + lead(0)
        if i == 4:
            ex["end"] = ["s_waitcnt vmcnt(0)"] + poll_check("L_ch", 16, 7, 16) + ["s_barrier"] + lead(2)
        if i in (5, 6, 7):
            l = ring_loads(i - 5)
            ex["qk"] = l[0:1]
            ex["pv1"] = l[1:3]
            ex["pv0"] = l[3:6]
        a(att_step(i, ex))
    stamp(a, 8)
    a(f"s_mov_b32 s{tIT}, 5")
    a(f"s_lshr_b32 s{sG}, s{sW}, 2")
    a(f"s_lshl_b32 s{sG}, s{sG}, 4")
    a(f"s_add_u32 s{sG}, s{sG}, 1")
    a("L_loop:")
    adv(a)
    plan = [[(0, 0)], [(0, 1), (0, 2)], [(0, 3)], [(1, 0), (1, 1)], [(1, 2)], [(1, 3), (2, 0)], [(2, 1)], [(2, 2), (2, 3)]]
    for i in range(8):
        ex = {}
        ex["G1"] = gm(*plan[i][0])
        if len(plan[i]) > 1:
            ex["G2"] = gm(*plan[i][1])
        if i == 0: ex["qk"] = ["s_waitcnt vmcnt(8)"]
        if i == 0: ex["pv0"] = lead(0, [f"s_cmp_eq_u32 s{tIT}, s{sG}"])
        if i == 2:
            l = ring_loads(0)
            ex["g1"] = l[0:2]
            ex["pv0"] = l[2:6]
        if i == 3: ex["pv1"] = ["s_waitcnt vmcnt(8)"]
        if i == 5:
            l = ring_loads(1)
            ex["g1"] = l[0:2]
            ex["pv0"] = l[2:6] + ["s_waitcnt vmcnt(8)"]
        if i == 7:
            ex["g2"] = ring_loads(2)
        a(att_step(i, ex))
    a(f"s_sub_u32 s{tIT}, s{tIT}, 1")
    a(f"s_cmp_lg_u32 s{tIT}, 0")
    a("s_cbranch_scc1 L_loop")
    adv(a)
    a(f"s_and_b32 s{T0}, s{sW}, 3")
    a(f"s_lshl_b32 s{T0}, s{T0}, 14")
    a(f"s_add_u32 s{T0}, s{T0}, {112 * 2048}")
    a(f"s_mov_b32 s{R_WT + 2}, {144 * 2048}")
    a("s_barrier")
    a(lead(2))

    def pw(o):
        base, off = (AW, o * 16384) if o < 4 else ((AW + 1, (o - 4) * 16384) if o < 6 else (AW + 2, (o - 6) * 16384))
        return [f"ds_write_b128 v{base}, {vr(G_ + 8 * o, 4)} offset:{off}",
                f"ds_write_b128 v{base}, {vr(G_ + 8 * o + 4, 4)} offset:{off + 1024}"]

    def wol(g):
        return [f"buffer_load_dwordx4 {vr(G_ + 16 * g + 4 * q, 4)}, v{A16}, {sr(R_WT)}, s{T0} offen offset:{q * 1024} sc1" for q in range(4)] + \
               [f"s_add_u32 s{T0}, s{T0}, 4096"]
    for i in range(8):
        ex = {}
        if i == 0: ex["qk"], ex["pv0"] = [f"buffer_load_dwordx4 {vr(RING, 4)}, v{AOUT}, {sr(S_X)}, 0 offen"], pw(0) + pw(1)[:1]
        if i == 1: ex["qk"], ex["pv1"] = pw(1)[1:], pw(2)
        if i == 2: ex["qk"], ex["pv0"] = pw(3)[:1], pw(3)[1:] + pw(4)
        if i == 3: ex["qk"], ex["pv1"] = pw(5)[:1], pw(5)[1:] + pw(6)[:1]
        if i == 4: ex["qk"], ex["pv0"], ex["g1"] = pw(6)[1:], pw(7), wol(0)[:2]
        if i == 5: ex["qk"], ex["pv1"], ex["pv0"] = wol(0)[2:3], wol(0)[3:] + wol(1)[:1], wol(1)[1:3]
        if i == 6: ex["qk"], ex["g1"], ex["pv0"] = wol(1)[3:], wol(2)[:2], wol(2)[2:] + lead(0)
        if i == 7: ex["qk"], ex["pv1"], ex["pv0"] = wol(3)[:1], wol(3)[1:3], wol(3)[3:]
        a(att_step(i, ex))
    a("s_nop 1")
    a(mfma(O_, V_ + 24 + 4, P_ + 4))
    a(f"s_lshl_b32 s{T0}, s{tQB}, 3")
    a(f"s_add_u32 s{T0}, s{T0}, s{sW}")
    a(f"s_lshl_b32 s{T0}, s{T0}, 5")
    a(f"s_add_u32 s{T0}, s{T0}, s{tHEAD}")
    a(f"s_lshl_b32 s{T0}, s{T0}, 10")
    a(f"s_add_u32 s{T3}, s{T0}, {WS_O}")
    a(f"v_mov_b32 v2, {hx(f2u(2.0 ** 120))}")
    a(f"v_mov_b32 v3, {hx(f2u(2.0 ** -90))}")
    a("s_waitcnt lgkmcnt(0)")
    a("s_nop 3")
    stamp(a, 9)
    a(f"v_add_f32 v1, |v{O_}|, |v{O_ + 1}|")
    for i in range(2, 8):
        a(f"v_add_f32 v1, v1, |v{O_ + i}|")
    a(f"v_cmp_lt_f32 s[40:41], v{O_ + 8}, v2")
    a("v_cmp_lt_f32 s[42:43], v1, v2")
    a(f"v_cmp_le_f32 s[50:51], 0.5, v{O_ + 8}")
    a("v_cmp_le_f32 vcc, v3, v1")
    a("s_or_b64 s[50:51], s[50:51], vcc")
    a("s_and_b64 s[40:41], s[40:41], s[42:43]")
    a("s_and_b64 s[40:41], s[40:41], s[50:51]")
    a("s_cmp_eq_u64 s[40:41], -1")
    a("s_cbranch_scc0 L_fallback")
    a("L_norm:")
    a(f"v_rcp_f32 v2, v{O_ + 8}")
    a("s_nop 0")
    for i in range(8):
        a(f"v_mul_f32 v{O_ + i}, v{O_ + i}, v2")
    for i in range(4):
        a(f"v_cvt_pk_bf16_f32 v{4 + i}, v{O_ + 2 * i}, v{O_ + 2 * i + 1}")
    a(f"buffer_store_dwordx4 v[4:7], v{A16}, {sr(S_WS)}, s{T3} offen sc1")
    a(f"s_lshl_b32 s{T0}, s{sW}, 14")
    a(f"s_add_u32 s{T1}, s{T0}, 0x8000")
    a(f"s_cmp_lt_u32 s{sW}, 6")
    a(f"s_cselect_b32 s{T0}, s{T0}, s{T1}")
    a(f"v_add_u32 v3, s{T0}, v{A16}")
    a("s_waitcnt vmcnt(0)")
    a("s_barrier")
    stamp(a, 10)
    a(f"s_cmp_lg_u32 s{sW}, 0")
    a("s_cbranch_scc1 L_o_ns")
    a(f"s_lshl_b32 s{T0}, s{tQB}, 8")
    a(f"s_add_u32 s{T0}, s{T0}, {WS_CNT + C_O * 256}")
    a("v_mov_b32 v1, 1")
    a("s_mov_b64 exec, 1")
    a(f"buffer_atomic_add v1, off, {sr(S_WS)}, s{T0} sc1")
    a("s_mov_b64 exec, -1")
    a("L_o_ns:")
    F_ = 8
    for s in range(8):
        for i in range(2):
            a(f"ds_read_b128 {vr(F_ + 8 * s + 4 * i, 4)}, v3 offset:{(s * 2 + i) * 1024}")
        if s == 6:
            a("s_waitcnt lgkmcnt(10)")
    for s in range(1, 8):
        a(f"s_waitcnt lgkmcnt({2 * (7 - s)})")
        for i in range(4):
            a(f"v_pk_add_f32 {vr(F_ + 2 * i, 2)}, {vr(F_ + 2 * i, 2)}, {vr(F_ + 8 * s + 2 * i, 2)}")
    T_ = F_ + 8
    a(f"v_mov_b32 v4, {hx(f2u(-LOG2E))}")
    for i in range(8):
        a(f"v_mul_f32 v{T_ + i}, v{F_ + i}, v4")
    for i in range(8):
        a(f"v_exp_f32 v{T_ + i}, v{T_ + i}")
    a("s_nop 0")
    for i in range(8):
        a(f"v_add_f32 v{T_ + i}, 1.0, v{T_ + i}")
    for i in range(8):
        a(f"v_rcp_f32 v{T_ + i}, v{T_ + i}")
    a("s_nop 0")
    for i in range(4):
        a(f"v_pk_mul_f32 {vr(F_ + 2 * i, 2)}, {vr(F_ + 2 * i, 2)}, {vr(T_ + 2 * i, 2)}")
    XU = 24
    for i in range(4):
        a(f"v_lshlrev_b32 v{XU + 2 * i}, 16, v{RING + i}")
        a(f"v_and_b32 v{XU + 2 * i + 1}, 0xffff0000, v{RING + i}")
    a(f"s_lshr_b32 s{T0}, s{sW}, 2")
    a(f"s_lshl_b32 s{T0}, s{T0}, 15")
    a(f"s_and_b32 s{T1}, s{sW}, 3")
    a(f"s_lshl_b32 s{T2}, s{T1}, 11")
    a(f"s_add_u32 s{T0}, s{T0}, s{T2}")
    a(f"v_add_u32 v1, s{T0}, v{A16}")
    a(f"s_lshl_b32 s{T0}, s{sW}, 13")
    a(f"v_add_u32 v3, s{T0}, v{A16}")
    a(f"s_lshl_b32 s{T0}, s{tTT}, 5")
    a(f"s_lshl_b32 s{T1}, s{T1}, 3")
    a(f"s_add_u32 s{T0}, s{T0}, s{T1}")
    a(f"s_lshl_b32 s{T0}, s{T0}, 10")
    a(f"s_add_u32 s{T2}, s{T0}, {WS_O}")
    a(f"s_add_u32 s{T3}, s{T2}, 4096")
    stamp(a, 11)
    a(f"s_cmp_lg_u32 s{sW}, 0")
    a("s_cbranch_scc1 L_o_ok")
    a(f"s_lshl_b32 s{T0}, s{sXCD}, 8")
    a(f"s_add_u32 s{T0}, s{T0}, {WS_CNT + C_O * 256}")
    a(f"s_mov_b32 s{T1}, {SPIN}")
    a("L_o_poll:")
    a(f"buffer_load_dword v4, off, {sr(S_WS)}, s{T0} sc1")
    a("s_waitcnt vmcnt(0)")
    a("v_readfirstlane_b32 s40, v4")
    a("s_cmp_ge_u32 s40, 32")
    a("s_cbranch_scc1 L_o_ok")
    a(f"s_sub_u32 s{T1}, s{T1}, 1")
    a(f"s_cmp_lg_u32 s{T1}, 0")
    a("s_cbranch_scc1 L_o_poll")
    a("L_o_ok:")
    a("s_barrier")
    stamp(a, 12)
    OF = RING + 8
    SA = V_
    for j in range(8):
        so = T2 if j < 4 else T3
        a(f"buffer_load_dwordx4 {vr(OF + 4 * j, 4)}, v{A16}, {sr(S_WS)}, s{so} offen offset:{(j % 4) * 1024} sc1")
    for j in range(8):
        a(f"s_waitcnt vmcnt({7 - j})")
        for ap in range(2):
            a(mfma(SA + 16 * ap, G_ + 8 * j + 4 * ap, OF + 4 * j, "0" if j == 0 else None))
    stamp(a, 13)
    a("s_nop 11")
    for o in range(4):
        for i in range(2):
            a(f"ds_write_b128 v1, {vr(SA + 8 * o + 4 * i, 4)} offset:{o * 8192 + i * 1024}")
    a("s_waitcnt lgkmcnt(0)")
    a("s_barrier")
    for s in range(4):
        for i in range(2):
            a(f"ds_read_b128 {vr(SA + 8 * s + 4 * i, 4)}, v3 offset:{(s * 2 + i) * 1024}")
    for s in range(1, 4):
        a(f"s_waitcnt lgkmcnt({2 * (3 - s)})")
        for i in range(4):
            a(f"v_pk_add_f32 {vr(SA + 2 * i, 2)}, {vr(SA + 2 * i, 2)}, {vr(SA + 8 * s + 2 * i, 2)}")
    for i in range(4):
        a(f"v_pk_fma_f32 {vr(XU + 2 * i, 2)}, {vr(SA + 2 * i, 2)}, {vr(F_ + 2 * i, 2)}, {vr(XU + 2 * i, 2)}")
    for i in range(4):
        a(f"v_cvt_pk_bf16_f32 v{4 + i}, v{XU + 2 * i}, v{XU + 2 * i + 1}")
    fl = " sc1" if "osc1" in OPT else (" nt" if "ont" in OPT else (" sc0 sc1" if "osc01" in OPT else ""))
    a(f"buffer_store_dwordx4 v[4:7], v{AOUT}, {sr(R_OUT)}, 0 offen{fl}")
    stamp(a, 14)
    stamp_flush(a)
    a("L_exit:")
    a("s_endpgm")
    a("L_fallback:")
    a(f"s_lshl_b32 s{T0}, s{tHEAD}, 16")
    a(f"s_add_u32 s{T0}, s{T0}, {32 << 16}")
    a(f"s_mov_b32 s{T1}, 0")
    a("v_mov_b32 v1, 0xff800000")
    a("L_fb1:")
    a(f"s_add_u32 s{T2}, s{T0}, s{T1}")
    a(f"buffer_load_dwordx4 {vr(K_, 4)}, v{A16}, {sr(S_WS)}, s{T2} offen sc1")
    a("s_waitcnt vmcnt(0)")
    a(mfma(S0, K_, Q_, "0"))
    a("s_nop 15")
    for i in range(0, 16, 2):
        a(f"v_max3_f32 v1, v1, v{S0 + i}, v{S0 + i + 1}")
    a(f"s_add_u32 s{T1}, s{T1}, 1024")
    a(f"s_cmp_lt_u32 s{T1}, 65536")
    a("s_cbranch_scc1 L_fb1")
    a("v_mov_b32 v2, v1")
    a("s_nop 1")
    a("v_permlane32_swap_b32 v1, v2")
    a("v_max_f32 v1, v1, v2")
    a("v_sub_f32 v1, 0, v1")
    for i in range(16):
        a(f"v_mov_b32 v{NM + i}, v1")
    for i in range(16):
        a(f"v_mov_b32 v{O_ + i}, 0")
    a("v_lshrrev_b32 v2, 5, v0")
    a("v_and_b32 v3, 15, v0")
    a("v_lshlrev_b32 v3, 4, v3")
    a("v_lshl_add_u32 v3, v2, 8, v3")
    a(f"s_mov_b32 s{T1}, 0")
    a("L_fb2:")
    a(f"s_add_u32 s{T2}, s{T0}, s{T1}")
    a(f"buffer_load_dwordx4 {vr(K_, 4)}, v{A16}, {sr(S_WS)}, s{T2} offen sc1")
    a(f"s_add_u32 s{T2}, s{T2}, {32 << 16}")
    a(f"s_mov_b64 exec, s[{tVM}:{tVM + 1}]")
    a(f"buffer_load_dwordx4 {vr(V_, 4)}, v3, {sr(S_WS)}, s{T2} offen sc1")
    a(f"buffer_load_dwordx4 {vr(V_ + 4, 4)}, v3, {sr(S_WS)}, s{T2} offen offset:512 sc1")
    a("s_mov_b64 exec, -1")
    a("s_waitcnt vmcnt(0)")
    a(mfma(S0, K_, Q_, NM))
    a("s_nop 15")
    for i in range(16):
        a(f"v_exp_f32 v{S0 + i}, v{S0 + i}")
    a("s_nop 0")
    for i in range(8):
        a(f"v_cvt_pk_bf16_f32 v{P_ + i}, v{S0 + 2 * i}, v{S0 + 2 * i + 1}")
    a("s_nop 1")
    a(mfma(O_, V_, P_))
    a(mfma(O_, V_ + 4, P_ + 4))
    a(f"s_add_u32 s{T1}, s{T1}, 1024")
    a(f"s_cmp_lt_u32 s{T1}, 65536")
    a("s_cbranch_scc1 L_fb2")
    a("s_nop 15")
    a("s_branch L_norm")


def main(out):
    a = Asm()
    k = NAME + "_kernel"
    hdr = ["; LN + MHA + GEGLU block, one persistent launch; generated by gen3.py (hand-scheduled gfx950 assembly)",
           "; @launch grid=(256,1,1) block=(512,1,1) lds=163840"]
    a('.amdgcn_target "amdgcn-amd-amdhsa--gfx950"')
    a(".text")
    a(f".globl {k}\n.p2align 8\n.type {k},@function\n{k}:")
    gen_p1(a)
    gen_p2(a)
    gen_side(a)
    a('.section .rodata,"a"')
    a(".p2align 6")
    a(f".amdhsa_kernel {k}")
    a(f".amdhsa_next_free_vgpr {NVGPR}")
    a(f".amdhsa_next_free_sgpr {96 if STAMPS else 80}")
    a(f".amdhsa_accum_offset {(NVGPR + 3) // 4 * 4}")
    a(".amdhsa_group_segment_fixed_size 0")
    a(".amdhsa_kernarg_size 80")
    a(".amdhsa_user_sgpr_count 2")
    a(".amdhsa_user_sgpr_kernarg_segment_ptr 1")
    a(".amdhsa_system_sgpr_workgroup_id_x 1")
    a(".end_amdhsa_kernel")
    open(out, "w").write("\n".join(hdr) + "\n" + a.text())


if __name__ == "__main__":
    for x in list(sys.argv):
        if x.startswith("--opt="):
            OPT = set(x[6:].split(","))
            sys.argv.remove(x)
    if "--cyc" in sys.argv:
        STAMPS = 2
        sys.argv.remove("--cyc")
    if "--stamps" in sys.argv:
        STAMPS = True
        sys.argv.remove("--stamps")
    main(sys.argv[1] if len(sys.argv) > 1 else f"cdna_kernels/{NAME}.s")
```

```python
import sys, struct, math

NAME = "recurrent_scan__mha_block__glu_gated_geglu__prompt"

WS_QKV = 0
WS_H = 6 << 20
WS_O = 14 << 20
WS_CNT = 16 << 20
WS_STAMP = (16 << 20) + 65536
WS_CS = (16 << 20) + 0x90000
WS_WT = 17 << 20
WS_SIZE = 20 << 20
OOB = 0x7f000000

LOG2E = 1.4426950408889634
QSCALE = 0.25 * LOG2E
GC1 = -2.0 * LOG2E * math.sqrt(2.0 / math.pi)
GC2 = GC1 * 0.044715
MAXOFF = 80.0
SPIN = 0x40000

STAMPS = False
OPT = set()
NOSTAMP = False


def f2u(x):
    return struct.unpack("<I", struct.pack("<f", x))[0]


def hx(x):
    return "0x%08x" % (x & 0xffffffff)


class Asm:
    def __init__(self):
        self.l = []

    def __call__(self, s):
        if isinstance(s, (list, tuple)):
            for x in s:
                self(x)
            return
        for line in s.split("\n"):
            line = line.strip()
            if not line:
                continue
            if line.endswith(":") or line.startswith("."):
                self.l.append(line)
            else:
                self.l.append("    " + line)

    def text(self):
        return "\n".join(self.l) + "\n"


def vr(b, n):
    return f"v[{b}:{b + n - 1}]"


def sr(b):
    return f"s[{b}:{b + 3}]"


def mfma(d, a, b, c=None):
    cs = vr(d, 16) if c is None else (c if isinstance(c, str) else vr(c, 16))
    return f"v_mfma_f32_32x32x16_bf16 {vr(d, 16)}, {vr(a, 4)}, {vr(b, 4)}, {cs}"


def stamp(a, n):
    if not STAMPS or (NOSTAMP and n != 15):
        return
    a("s_memtime s[76:77]" if STAMPS == 2 else "s_memrealtime s[76:77]")
    a("s_waitcnt lgkmcnt(0)")
    a(f"s_mov_b32 s{80 + n}, s76")


def stamp_flush(a):
    if not STAMPS:
        return
    a("s_waitcnt vmcnt(0)")
    stamp(a, 15)
    a("v_mov_b32 v1, 0")
    for n in range(16):
        a(f"v_writelane_b32 v1, s{80 + n}, {n}")
    a("s_lshl_b32 s76, s2, 3")
    a(f"s_add_u32 s76, s76, s{sW}")
    a("s_lshl_b32 s76, s76, 6")
    a(f"s_add_u32 s76, s76, {WS_STAMP}")
    a("v_lshlrev_b32 v2, 2, v0")
    a("s_mov_b64 exec, 0xffff")
    a(f"buffer_store_dword v1, v2, {sr(S_WS)}, s76 offen")


def srd(a, s, ptr, size):
    a(f"s_mov_b32 s{s}, s{ptr}")
    a(f"s_mov_b32 s{s + 1}, s{ptr + 1}")
    a(f"s_mov_b32 s{s + 2}, {size}")
    a(f"s_mov_b32 s{s + 3}, 0x00020000")


pX, pWQKV, pWO, pG, pU, pWD, pOUT, pDBG, pWS = 56, 58, 60, 64, 66, 68, 70, 72, 74
S_T, S_X, S_W0, S_W1, S_W3, S_WS = 4, 8, 12, 16, 20, 24
R_OUT, R_H0, R_H1, R_WT = 4, 12, 16, 20
sW, sTT, sHF, sRB, sCB, sROT, sISS, sVAR = 28, 29, 30, 31, 32, 33, 34, 35
sCQ, sCG, sXROW, sLW = 36, 37, 42, 43
T0, T1, T2, T3 = 44, 45, 46, 47
sXCD, sT, sG, sKV = 49, 52, 53, 50
tHEAD, tQB, tIT, tFH, tFW, tTT = 38, 39, 33, 36, 37, 48
tVM = 54

AR, BR, SL = 65536, 114688, 16384
SCR = 0
XA, WA1, WA2 = 12, 16, 18
VXS, VW0, VW1, VW3, L16, MASK, ONES, STV, POLL = 22, 23, 24, 25, 26, 27, 28, 30, 31
WF = 32
ACC = 64
STA, STB, CSA = 96, 100, 104
XF = 128
Q_, K_, P_, NM, S0, S1, RING = 8, 12, 20, 28, 44, 60, 76
AK, AV, A16, AOUT = 124, 125, 126, 127
G_, V_, O_, AW = 128, 192, 224, 240
NVGPR = 256
C_H, C_CS, C_O = 24, 40, 56
sCF, sCNT = 51, 62


def tiny(d, a_, b_, first=False):
    return f"v_mfma_f32_4x4x4_16b_bf16 {vr(d, 4)}, {vr(a_, 2)}, {vr(b_, 2)}, {'0' if first else vr(d, 4)}"


def dma(S):
    sl = (S % 3) * SL
    pre = [f"s_add_u32 s{T1}, s{sROT}, {S & 7}", f"s_and_b32 s{T1}, s{T1}, 7"]
    if S < 8:
        return [pre + [f"s_lshl_b32 s{T0}, s{T1}, 7", f"s_add_u32 m0, s{sLW}, {AR + sl}", f"s_add_u32 s{T0}, s{T0}, s{sXROW}",
                       f"buffer_load_dwordx4 v{VXS}, {sr(S_X)}, s{T0} offen lds"],
                [f"s_mul_i32 s{T1}, s{T1}, {64 * 3072}", f"s_add_u32 m0, s{sLW}, {BR + sl}", f"s_add_u32 s{T1}, s{T1}, s{sCQ}",
                 f"buffer_load_dwordx4 v{VW0}, {sr(S_W0)}, s{T1} offen lds"],
                [f"s_add_u32 m0, s{sLW}, {AR + sl + 8192}", f"s_add_u32 s{T0}, s{T0}, 0x10000",
                 f"buffer_load_dwordx4 v{VXS}, {sr(S_X)}, s{T0} offen lds"],
                [f"s_add_u32 m0, s{sLW}, {BR + sl + 8192 - 128}", "s_nop 0",
                 f"buffer_load_dwordx4 v{VW0}, {sr(S_W0)}, s{T1} offen offset:128 lds"]]
    return [pre + [f"s_mul_i32 s{T1}, s{T1}, {64 * 3584}", f"s_add_u32 m0, s{sLW}, {AR + sl}", f"s_add_u32 s{T1}, s{T1}, s{sCG}",
                   f"buffer_load_dwordx4 v{VW1}, {sr(S_W1)}, s{T1} offen lds"],
            [f"s_add_u32 m0, s{sLW}, {BR + sl}", "s_nop 0",
             f"buffer_load_dwordx4 v{VW3}, {sr(S_W3)}, s{T1} offen lds"],
            [f"s_add_u32 m0, s{sLW}, {AR + sl + 8192 - 128}", "s_nop 0",
             f"buffer_load_dwordx4 v{VW1}, {sr(S_W1)}, s{T1} offen offset:128 lds"],
            [f"s_add_u32 m0, s{sLW}, {BR + sl + 8192 - 128}", "s_nop 0",
             f"buffer_load_dwordx4 v{VW3}, {sr(S_W3)}, s{T1} offen offset:128 lds"]]


def rd1(h, nt):
    S, k0 = h >> 1, (h & 1) * 2
    sl = (S % 3) * SL
    F = WF + 16 * (h & 1)
    r = []
    for q in range(2):
        ks = k0 + q
        r.append(f"ds_read_b128 {vr(XF + 4 * (4 * S + ks), 4)}, v{XA + ks} offset:{sl}")
        for t in range(nt):
            for t2 in range(2):
                r.append(f"ds_read_b64_tr_b16 {vr(F + 8 * q + 4 * t + 2 * t2, 2)}, v{WA1 + t} offset:{sl + ks * 2048 + t2 * 512}")
    return r


def rd2(k):
    S, ks = 8 + (k >> 2), k & 3
    sl = (S % 3) * SL
    F = WF + 16 * (k & 1)
    return [f"ds_read_b64_tr_b16 {vr(F + 4 * c + 2 * t2, 2)}, v{WA2 + c} offset:{sl + ks * 2048 + t2 * 512}"
            for c in range(4) for t2 in range(2)]


def weave(heads, fills):
    res = []
    per = -(-len(fills) // len(heads)) if fills else 0
    i = 0
    for hd in heads:
        res.append(hd)
        for at in fills[i:i + per]:
            res += [at] if isinstance(at, str) else at
        i += per
    return res


def tr_addr(dst, t_a, t_b):
    return [f"v_lshrrev_b32 v{t_a}, 5, v0", f"v_bfe_u32 v{t_b}, v0, 2, 2", f"v_lshl_add_u32 v{dst}, v{t_a}, 2, v{t_b}",
            f"v_lshlrev_b32 v{dst}, 7, v{dst}", f"v_and_b32 v{t_a}, 1, v0", f"v_lshl_add_u32 v{dst}, v{t_a}, 6, v{dst}",
            f"v_bfe_u32 v{t_a}, v0, 4, 1", f"v_lshl_add_u32 v{dst}, v{t_a}, 4, v{dst}", f"v_bfe_u32 v{t_a}, v0, 1, 1",
            f"v_lshl_add_u32 v{dst}, v{t_a}, 3, v{dst}", f"v_lshrrev_b32 v{t_b}, 1, v{t_b}", f"v_lshl_add_u32 v{dst}, v{t_b}, 5, v{dst}"]


def split3(w, src):
    return [f"v_and_b32 v{w}, v{MASK}, v{src}", f"v_sub_f32 v{w + 2}, v{src}, v{w}",
            f"v_and_b32 v{w + 1}, v{MASK}, v{w + 2}", f"v_sub_f32 v{w + 2}, v{w + 2}, v{w + 1}", f"v_mov_b32 v{w + 3}, 0"]


def poll_issue(lbl, mask_instrs, reg=POLL):
    return ([f"s_cmp_lg_u32 s{sW}, 0", f"s_cbranch_scc1 {lbl}", "v_lshlrev_b32 v1, 8, v0"] + mask_instrs +
            ["s_mov_b64 exec, s[40:41]",
             f"buffer_load_dword v{reg}, v1, {sr(S_WS)}, s{sCNT} offen sc1", "s_mov_b64 exec, -1", f"{lbl}:"])


def poll_check(lbl, thr, reg=POLL, sleep=8):
    return [f"s_cmp_lg_u32 s{sW}, 0", f"s_cbranch_scc1 {lbl}_ok",
            f"s_mov_b32 s{T3}, {SPIN}", "s_mov_b64 exec, s[40:41]", f"{lbl}_spin:",
            f"v_cmp_gt_u32 vcc, {thr}, v{reg}", "s_cmp_eq_u64 vcc, 0", f"s_cbranch_scc1 {lbl}_done",
            f"s_sleep {sleep}",
            f"buffer_load_dword v{reg}, v1, {sr(S_WS)}, s{sCNT} offen sc1", "s_waitcnt vmcnt(0)",
            f"s_sub_u32 s{T3}, s{T3}, 1", f"s_cmp_lg_u32 s{T3}, 0", f"s_cbranch_scc1 {lbl}_spin",
            f"{lbl}_done:", "s_mov_b64 exec, -1", f"{lbl}_ok:"]


QKV_MASK = [f"s_lshl_b32 s40, 0x10101, s{sXCD}", "s_mov_b32 s41, 0"]
CS_MASK = ["s_mov_b32 s40, 0", f"s_lshl_b32 s41, 0x100, s{sCF}"]
QC_MASK = [f"s_lshl_b32 s40, 0x10101, s{sXCD}", f"s_lshl_b32 s41, 0x100, s{sCF}",
           "v_lshrrev_b32 v6, 5, v0", "v_lshrrev_b32 v6, v6, 32"]
H_MASK = ["s_mov_b32 s40, 0xff000000", "s_mov_b32 s41, 0xff"]


def sig_qkv(lbl):
    return [f"s_cmp_lg_u32 s{sW}, 0", f"s_cbranch_scc1 {lbl}",
            f"s_mov_b32 s{T3}, {SPIN}", f"{lbl}_spin:",
            f"v_readfirstlane_b32 s{T2}, v{POLL}", f"s_cmp_lg_u32 s{T2}, 0", f"s_cbranch_scc1 {lbl}_go",
            "s_sleep 8", "v_mov_b32 v2, 0",
            f"global_load_dword v{POLL}, v2, s[{pDBG}:{pDBG + 1}] sc1", "s_waitcnt vmcnt(0)",
            f"s_sub_u32 s{T3}, s{T3}, 1", f"s_cmp_lg_u32 s{T3}, 0", f"s_cbranch_scc1 {lbl}_spin", f"{lbl}_go:",
            f"s_mul_i32 s{T2}, s{sCB}, 3", f"s_lshr_b32 s{T2}, s{T2}, 1", f"s_and_b32 s{T3}, s{sCB}, 1",
            f"v_add_u32 v2, s{T2}, v0", "v_lshlrev_b32 v2, 8, v2",
            f"v_xor_b32 v3, s{T3}, v0", "v_sub_u32 v3, 2, v3",
            "s_mov_b64 exec, 3", f"buffer_atomic_add v3, v2, {sr(S_WS)}, s{sCNT} offen sc1", "s_mov_b64 exec, -1", f"{lbl}:"]


def sig_one(lbl, idx_instrs, skip_side=False):
    c = [f"s_or_b32 s{T0}, s{sW}, s{sISS}"] if skip_side else [f"s_cmp_lg_u32 s{sW}, 0"]
    return (c + [f"s_cbranch_scc1 {lbl}"] + idx_instrs +
            [f"s_lshl_b32 s{T0}, s{T0}, 8", f"s_add_u32 s{T0}, s{T0}, s{sCNT}", "v_mov_b32 v3, 1", "s_mov_b64 exec, 1",
             f"buffer_atomic_add v3, off, {sr(S_WS)}, s{T0} sc1", "s_mov_b64 exec, -1", f"{lbl}:"])


def kv(i, r=L16):
    return [[f"s_lshl1_add_u32 m0, s{sLW}, {i * 16384}" if i else f"s_lshl_b32 m0, s{sLW}, 1",
             f"s_add_u32 s{T2}, s{sKV}, {i * 8192}",
             f"buffer_load_dwordx4 v{r}, {sr(S_WS)}, s{T2} offen sc1 lds"],
            [f"s_lshl1_add_u32 m0, s{sLW}, {i * 16384 + 1024}", f"s_add_u32 s{T2}, s{sKV}, {i * 8192 + (32 << 16)}",
             f"buffer_load_dwordx4 v{r}, {sr(S_WS)}, s{T2} offen sc1 lds"]]


def q_load():
    return [f"s_lshl_b32 s{T2}, s{tQB}, 13", f"s_add_u32 s{T2}, s{T2}, s{sKV}", f"s_sub_u32 s{T2}, s{T2}, {32 << 16}",
            f"buffer_load_dwordx4 {vr(Q_, 4)}, v{L16}, {sr(S_WS)}, s{T2} offen sc1"]


def p2_init_regs():
    b = [f"v_mov_b64 v[{G_ + i}:{G_ + i + 1}], 0" for i in range(0, 64, 2)]
    return b


def p2_init_v():
    return ([["v_and_b32 v3, 27, v0", "v_cmp_eq_u32 vcc, 16, v3", "v_mov_b32 v4, 0x3f803f80", "v_mov_b32 v5, 0",
              "v_cndmask_b32 v2, v5, v4, vcc", "v_mov_b32 v3, v2"]] +
            [f"v_mov_b64 v[{V_ + i}:{V_ + i + 1}], v[2:3]" for i in range(0, 32, 2)])


def gen_p1(a):
    global NOSTAMP
    a("s_cmp_ge_u32 s2, 256")
    a("s_cbranch_scc1 L_exit")
    stamp(a, 0)
    a(f"s_load_dwordx4 s[{pX}:{pX + 3}], s[0:1], 0")
    a(f"s_load_dwordx4 s[{pG}:{pG + 3}], s[0:1], 32")
    a(f"s_load_dwordx2 s[{pWO}:{pWO + 1}], s[0:1], 16")
    a(f"s_load_dwordx4 s[{pWD}:{pWD + 3}], s[0:1], 48")
    a(f"s_load_dwordx4 s[{pDBG}:{pDBG + 3}], s[0:1], 64")
    a("v_lshrrev_b32 v1, 6, v0")
    a("v_and_b32 v0, 63, v0")
    a(f"v_readfirstlane_b32 s{sW}, v1")
    if "code" in OPT:
        a("s_cmp_ge_u32 s2, 32")
        a("s_cbranch_scc1 L_nocode")
        a("s_getpc_b64 s[40:41]")
        a("L_here:")
        a("v_lshlrev_b32 v2, 13, v1")
        a("v_lshl_add_u32 v2, v0, 7, v2")
        a("v_min_u32 v2, L_end-L_here-4, v2")
        a("v_mov_b32 v3, s41")
        a("v_add_co_u32 v2, vcc, s40, v2")
        a("s_nop 1")
        a("v_addc_co_u32 v3, vcc, 0, v3, vcc")
        a(f"global_load_dword v{STV}, v[2:3], off")
        a("L_nocode:")
    a(f"s_and_b32 s{sXCD}, s2, 7")
    a(f"s_lshr_b32 s{T1}, s2, 3")
    a(f"s_and_b32 s{sRB}, s{sXCD}, 3")
    a(f"s_and_b32 s{T2}, s{T1}, 3")
    a(f"s_lshl2_add_u32 s{sRB}, s{sRB}, s{T2}")
    a(f"s_lshr_b32 s{sCF}, s{sXCD}, 2")
    a(f"s_lshr_b32 s{sISS}, s{T1}, 2")
    a(f"s_lshl3_add_u32 s{sCB}, s{sCF}, s{sISS}")
    a(f"s_lshl1_add_u32 s{sROT}, s{sXCD}, s{sISS}")
    a(f"s_lshl_b32 s{sLW}, s{sW}, 10")
    a(f"s_lshl_b32 s{T2}, s{sW}, 3")
    a(f"s_lshl_b32 s{sXROW}, s{sRB}, 7")
    a(f"s_add_u32 s{sXROW}, s{sXROW}, s{T2}")
    a(f"s_lshl_b32 s{sXROW}, s{sXROW}, 10")
    a(f"s_mul_i32 s{sCQ}, s{sCB}, 3")
    a(f"s_lshr_b32 s{sCQ}, s{sCQ}, 1")
    a(f"s_lshl_b32 s{sCQ}, s{sCQ}, 7")
    a(f"s_mul_i32 s{T3}, s{T2}, 3072")
    a(f"s_add_u32 s{sCQ}, s{sCQ}, s{T3}")
    a("v_lshrrev_b32 v1, 3, v0")
    a("v_and_b32 v2, 7, v0")
    a(f"v_add_u32 v3, s{T2}, v1")
    a("v_bfe_u32 v3, v3, 1, 3")
    a("v_xor_b32 v3, v3, v2")
    a("v_lshlrev_b32 v3, 4, v3")
    a(f"v_lshl_add_u32 v{VXS}, v1, 10, v3")
    a("v_and_b32 v3, 2, v1")
    a("v_lshlrev_b32 v3, 1, v3")
    a("v_xor_b32 v3, v3, v2")
    a("v_lshlrev_b32 v3, 4, v3")
    a("v_mul_u32_u24 v4, 3072, v1")
    a(f"v_add_u32 v{VW0}, v4, v3")
    a(f"s_mov_b32 s{S_X + 2}, 2097152")
    a(f"s_mov_b32 s{S_X + 3}, 0x00020000")
    a(f"s_mov_b32 s{S_W0 + 2}, 1572864")
    a(f"s_mov_b32 s{S_W0 + 3}, 0x00020000")
    a("s_waitcnt lgkmcnt(0)")
    a(f"s_mov_b64 s[{S_X}:{S_X + 1}], s[{pX}:{pX + 1}]")
    a(f"s_mov_b64 s[{S_W0}:{S_W0 + 1}], s[{pWQKV}:{pWQKV + 1}]")
    a(dma(0))
    a("v_mul_u32_u24 v4, 3584, v1")
    a(f"v_add_u32 v{VW1}, v4, v3")
    a("v_xor_b32 v3, 32, v3")
    a(f"v_add_u32 v{VW3}, v4, v3")
    a(f"v_lshlrev_b32 v{L16}, 4, v0")
    a(f"s_and_b32 s{sTT}, s{sW}, 3")
    a(f"s_lshr_b32 s{sHF}, s{sW}, 2")
    a(f"s_mul_i32 s{T3}, s{T2}, 3584")
    a(f"s_sub_u32 s{sCF}, s{sCB}, s{sCF}")
    a(f"s_sub_u32 s{sCF}, s{sCF}, 1")
    a(f"s_lshl_b32 s{sCG}, s{sCF}, 8")
    a(f"s_add_u32 s{sCG}, s{sCG}, s{T3}")
    a(f"s_cmp_eq_u32 s{sISS}, 0")
    a(f"s_cselect_b32 s{sISS}, 1, 0")
    a(f"s_cselect_b32 s{sCG}, {OOB}, s{sCG}")
    a(f"s_mov_b32 s{sCNT}, {WS_CNT}")
    srd(a, S_W1, pG, 1835008)
    srd(a, S_W3, pU, 1835008)
    srd(a, S_WS, pWS, WS_SIZE)
    a(f"s_lshl_b32 s{T0}, s{sW}, 8")
    a(f"s_or_b32 s{T0}, s2, s{T0}")
    a(f"s_cmp_lg_u32 s{T0}, 32")
    a("s_cbranch_scc1 L_nozero")
    a("v_mov_b32 v5, 0")
    a("v_lshlrev_b32 v6, 8, v0")
    a(f"buffer_store_dword v5, v6, {sr(S_WS)}, s{sCNT} offen sc1")
    a("L_nozero:")
    a(dma(1))
    a(f"s_lshl2_add_u32 s{sT}, s{sRB}, s{sTT}")
    a(f"s_mul_i32 s{sG}, s{sCB}, 3")
    a(f"s_lshl1_add_u32 s{sG}, s{sHF}, s{sG}")
    a(f"s_cmp_ge_u32 s{sG}, 32")
    a(f"s_cselect_b32 s{sVAR}, 2, 0")
    a(f"s_add_u32 s{sVAR}, s{sVAR}, s{sHF}")
    a(f"s_lshl_b32 s{sG}, s{sG}, 1")
    a(f"s_lshr_b32 s{T1}, s2, 3")
    a(f"s_and_b32 s{T2}, s{T1}, 3")
    a(f"s_lshl2_add_u32 s{tHEAD}, s{sXCD}, s{T2}")
    a(f"s_lshr_b32 s{tQB}, s{T1}, 2")
    a(f"s_lshl_b32 s{sKV}, s{tHEAD}, 16")
    a(f"s_add_u32 s{sKV}, s{sKV}, s{sLW}")
    a(f"s_add_u32 s{sKV}, s{sKV}, {32 << 16}")
    a("v_and_b32 v1, 31, v0")
    a("v_lshrrev_b32 v2, 5, v0")
    a("v_bfe_u32 v3, v0, 1, 3")
    a("v_xor_b32 v3, v3, v2")
    a("v_lshlrev_b32 v3, 4, v3")
    a("v_lshl_add_u32 v3, v1, 7, v3")
    a(f"s_lshl_b32 s{T0}, s{sTT}, 12")
    a(f"s_add_u32 s{T0}, s{T0}, {AR}")
    a(f"v_add_u32 v{XA}, s{T0}, v3")
    for i in range(1, 4):
        a(f"v_xor_b32 v{XA + i}, {32 * i}, v{XA}")
    a("v_bfe_u32 v3, v0, 2, 2")
    a("v_lshl_add_u32 v4, v2, 3, v3")
    a("v_lshlrev_b32 v4, 7, v4")
    a("v_and_b32 v7, 3, v0")
    a("v_lshl_add_u32 v4, v7, 3, v4")
    a("v_and_b32 v3, 2, v3")
    a("v_bfe_u32 v7, v0, 4, 1")
    a("v_xor_b32 v3, v3, v7")
    a(f"s_and_b32 s{T0}, s{sCB}, 1")
    a(f"s_lshl1_add_u32 s{T0}, s{sHF}, s{T0}")
    for t in range(2):
        a(f"s_and_b32 s{T1}, s{T0}, 1")
        a(f"s_lshl_b32 s{T1}, s{T1}, 1")
        a(f"s_lshr_b32 s{T2}, s{T0}, 1")
        a(f"s_lshl_b32 s{T2}, s{T2}, 13")
        a(f"s_add_u32 s{T2}, s{T2}, {BR}")
        a(f"v_xor_b32 v6, s{T1}, v3")
        a("v_lshl_add_u32 v6, v6, 5, v4")
        a(f"v_add_u32 v{WA1 + t}, s{T2}, v6")
        if t == 0:
            a(f"s_add_u32 s{T0}, s{T0}, 1")
    a(f"v_mul_u32_u24 v6, {BR - AR}, v7")
    a("v_add_u32 v4, v4, v6")
    a(f"s_lshl_b32 s{T0}, s{sHF}, 13")
    a(f"s_add_u32 s{T0}, s{T0}, {AR}")
    a(f"v_add_u32 v4, s{T0}, v4")
    for c in range(4):
        a(f"v_xor_b32 v6, {c}, v3")
        a(f"v_lshl_add_u32 v{WA2 + c}, v6, 5, v4")
    a(f"v_mov_b32 v{MASK}, 0xffff0000")
    a(f"v_mov_b32 v{ONES}, 0x3f803f80")
    a(f"v_mov_b32 v{ONES + 1}, 0x3f803f80")
    for i in range(0, 8, 2):
        a(f"v_mov_b64 v[{CSA + i}:{CSA + i + 1}], 0")
    if "notouch" not in OPT:
        a(f"s_cmp_eq_u32 s{sISS}, 0")
        a("s_cbranch_scc1 L_notouch")
        a(f"s_and_b32 s{T0}, s{sRB}, 3")
        a(f"s_lshl3_add_u32 s{T0}, s{T0}, s{sW}")
        a(f"s_lshl_b32 s{T0}, s{T0}, 2")
        a("v_bfe_u32 v1, v0, 1, 2")
        a(f"v_add_u32 v1, s{T0}, v1")
        a("v_lshrrev_b32 v2, 3, v0")
        a(f"s_add_u32 s{T1}, s{sROT}, 1")
        a(f"v_add_u32 v3, s{T1}, v2")
        a("v_lshl_add_u32 v1, v3, 6, v1")
        a("v_and_b32 v1, 511, v1")
        a("v_mul_u32_u24 v1, 3584, v1")
        a("v_lshl_add_u32 v1, v2, 8, v1")
        a("v_and_b32 v2, 1, v0")
        a("v_lshl_add_u32 v1, v2, 7, v1")
        a(f"s_lshr_b32 s{T0}, s{sXCD}, 2")
        a(f"s_mul_i32 s{T0}, s{T0}, 1792")
        a("s_mov_b64 exec, 0x00ffffffffffffff" if False else "s_mov_b32 exec_hi, 0x00ffffff")
        a(f"buffer_load_dword v2, v1, {sr(S_W1)}, s{T0} offen")
        a(f"buffer_load_dword v3, v1, {sr(S_W3)}, s{T0} offen")
        a("s_mov_b64 exec, -1")
        a("L_notouch:")
    stamp(a, 1)
    for v in range(1, 4):
        a(f"s_cmp_eq_u32 s{sVAR}, {v}")
        a(f"s_cbranch_scc1 L_p1_{v}")
    RS, SD, XOP = 112, 114, 116
    for var in range(4):
        hf, isv = var & 1, var >> 1
        nt = 2 - hf
        a(f"L_p1_{var}:")
        a("s_waitcnt vmcnt(4)")
        a("s_barrier")
        stamp(a, 2)
        a(rd1(0, nt))
        if var == 0:
            a(f"s_lshl_b32 s{T0}, s{sW}, 8")
            a(f"s_or_b32 s{T0}, s2, s{T0}")
            a(f"s_cmp_lg_u32 s{T0}, 32")
            a("s_cbranch_scc1 L_noflag")
            a("v_mov_b32 v5, 0")
            a("v_mov_b32 v6, 1")
            a("s_mov_b64 exec, 1")
            a(f"global_store_dword v5, v6, s[{pDBG}:{pDBG + 1}] sc1")
            a("s_mov_b64 exec, -1")
            a("L_noflag:")
        for h in range(16):
            S = h >> 1
            F = WF + 16 * (h & 1)
            first = h == 0
            big, tn = [], []
            for q in range(2):
                x = XF + 4 * (2 * h + q)
                for t in range(nt):
                    w = F + 8 * q + 4 * t
                    c = "0" if (first and q == 0) else None
                    big.append(mfma(ACC + 16 * t, x, w, c) if isv else mfma(ACC + 16 * t, w, x, c))
            cs = []
            for q in range(2):
                x = XF + 4 * (2 * h + q)
                if hf:
                    for p in range(2):
                        f0 = first and q == 0 and p == 0
                        tn += [tiny(STA, ONES, x + 2 * p, f0), tiny(STB, x + 2 * p, x + 2 * p, f0), "s_nop 0"]
                lb = f"L_cs{var}_{h}_{q}"
                cs += [f"s_cmp_lg_u32 s{sTT}, {(2 * h + q) & 3}", f"s_cbranch_scc1 {lb}"]
                if hf:
                    cs += [tiny(CSA, ONES, F + 8 * q), tiny(CSA + 4, ONES, F + 8 * q + 2)]
                else:
                    cs += [tiny(CSA, ONES, F + 8 * q), tiny(CSA + 4, ONES, F + 8 * q + 4), "s_nop 0",
                           tiny(CSA, ONES, F + 8 * q + 2), tiny(CSA + 4, ONES, F + 8 * q + 6)]
                cs.append(f"{lb}:")
            if h == 15:
                break
            if h & 1:
                a("s_waitcnt vmcnt(4) lgkmcnt(0)")
                a("s_barrier")
                if "p1b" in OPT: stamp(a, 4 + S)
                d = dma(S + 3)[:2]
                if S == 5 and not hf:
                    d = [[f"s_cmp_lg_u32 s{sW}, 0", f"s_cbranch_scc1 L_nofl{var}", "v_mov_b32 v5, 0",
                          f"global_load_dword v{POLL}, v5, s[{pDBG}:{pDBG + 1}] sc1", f"L_nofl{var}:"]] + d
            else:
                a("s_waitcnt lgkmcnt(0)")
                d = dma(S + 2)[2:] if h else dma(2)
            if h == 13:
                d = d + [["v_and_b32 v1, 31, v0", f"s_lshl_b32 s{T2}, s{sTT}, 8", "v_lshlrev_b32 v1, 2, v1", f"v_add_u32 v1, s{T2}, v1",
                          f"s_lshl_b32 s{T3}, s{sTT}, 2", f"v_add_u32 v5, s{T3}, v{L16}", f"v_mov_b32 v{XOP + 3}, 0"]]
                if isv:
                    d = d + [["v_lshrrev_b32 v4, 5, v0", "v_lshlrev_b32 v6, 4, v4", f"v_add_u32 v6, s{T2}, v6",
                              "v_bfe_u32 v7, v0, 4, 1", "v_lshlrev_b32 v7, 16, v7", "v_lshl_add_u32 v7, v4, 8, v7",
                              "v_and_b32 v4, 15, v0", "v_lshl_add_u32 v7, v4, 4, v7"]]
            nxt = rd1(h + 1, nt)
            if hf:
                a(weave(big, nxt) + weave(tn, d) + cs)
            else:
                a(weave(big, nxt + d) + cs)
        a("s_waitcnt lgkmcnt(0)")
        csw = [f"ds_write_b32 v5, v{CSA + 4 * t} offset:{SCR + 1024 * (1 + 2 * hf + t)}" for t in range(nt)]
        if hf:
            a(tn + cs + big[:1])
            a("s_nop 1")
            for i, m in ((1, "0x22222222"), (2, "0x44444444"), (3, "0x88888888")):
                a(f"s_mov_b32 s40, {m}")
                a(f"s_mov_b32 s41, {m}")
                a(f"v_cndmask_b32 v{STB}, v{STB}, v{STB + i}, s[40:41]")
            a(f"v_mov_b32 v{STB + 1}, v{STB}")
            a(f"v_add_f32 v{CSA}, v{CSA}, v{CSA + 4}")
            a(csw)
            a(f"v_permlane32_swap_b32 v{STA}, v{STA + 1}")
            a(f"v_permlane32_swap_b32 v{STB}, v{STB + 1}")
            a(f"v_add_f32 v2, v{STA}, v{STA + 1}")
            a(f"v_add_f32 v3, v{STB}, v{STB + 1}")
            a(f"v_mul_f32 v2, {hx(f2u(-1.0 / 512))}, v2")
            a(f"v_mul_f32 v3, {hx(f2u(1.0 / 512))}, v3")
            a("v_fma_f32 v3, -v2, v2, v3")
            a("v_max_f32 v3, 0, v3")
            a("v_cvt_pk_bf16_f32 v3, v3, v3")
            a(f"v_and_b32 v3, v{MASK}, v3")
            a(f"v_add_f32 v3, {hx(f2u(1e-5))}, v3")
            a("v_cvt_pk_bf16_f32 v3, v3, v3")
            a(f"v_and_b32 v3, v{MASK}, v3")
            a("v_sqrt_f32 v3, v3")
            a("s_nop 0")
            a(f"v_cvt_pk_bf16_f32 v{STV}, v3, v2")
            a(f"v_lshlrev_b32 v{SD}, 16, v{STV}")
            a(f"v_rcp_f32 v{RS}, v{SD}")
            a(f"ds_write_b32 v1, v{STV} offset:{SCR}")
            a(f"ds_write_b32 v1, v{RS} offset:{SCR + 128}")
            a(big[1:])
        else:
            a(cs + big)
            a("s_nop 0")
            a(csw)
        a("s_waitcnt vmcnt(4) lgkmcnt(0)")
        a("s_barrier")
        stamp(a, 3)
        RSV = WF + 16
        cop = [STA, STB]
        for t in range(nt):
            a(f"ds_read_b128 {vr(CSA + 4 * t, 4)}, v{L16} offset:{SCR + 1024 * (1 + 2 * hf + t)}")
        if not hf:
            a(f"ds_read_b32 v{STV}, v1 offset:{SCR}")
            a(f"ds_read_b32 v{RS}, v1 offset:{SCR + 128}")
        if isv:
            for g in range(4):
                a(f"ds_read_b128 {vr(RSV + 4 * g, 4)}, v6 offset:{SCR + 128 + g * 32}")
        a(f"s_lshl_b32 s{T3}, s{sG}, 16")
        a(f"s_lshl_b32 s{T2}, s{sT}, 10")
        a(f"s_add_u32 s{T3}, s{T3}, s{T2}")
        a(f"s_waitcnt lgkmcnt({4 if isv else 0})")
        a(f"v_and_b32 v{XOP}, v{MASK}, v{STV}")
        a(f"v_mov_b32 v{XOP + 1}, v{XOP}")
        a(f"v_mov_b32 v{XOP + 2}, v{XOP}")
        for t in range(nt):
            w = CSA + 4 * t
            a(f"v_add_f32 v{w}, v{w}, v{w + 1}")
            a(f"v_add_f32 v{w + 2}, v{w + 2}, v{w + 3}")
            a(f"v_add_f32 v{w}, v{w}, v{w + 2}")
            a(split3(cop[t], w))
            a("s_nop 1")
            a(mfma(ACC + 16 * t, XOP, cop[t]) if isv else mfma(ACC + 16 * t, cop[t], XOP))
        a(rd2(0))
        if nt == 1:
            a("s_nop 3")
        if isv:
            a("s_waitcnt lgkmcnt(8)")
        for t in range(nt):
            ac = ACC + 16 * t
            o = 120 if t == 0 else 96
            if isv:
                for i in range(8):
                    a(f"v_pk_mul_f32 {vr(ac + 2 * i, 2)}, {vr(ac + 2 * i, 2)}, {vr(RSV + 2 * i, 2)}")
            else:
                a(f"s_cmp_lt_u32 s{sG}, {32 - 2 * t}")
                a(f"s_cselect_b32 s{T0}, {hx(f2u(QSCALE))}, 1.0")
                a(f"v_mul_f32 v2, s{T0}, v{RS}")
                a(f"v_mul_f32 v3, s{T0}, v{RS}")
                for i in range(8):
                    a(f"v_pk_mul_f32 {vr(ac + 2 * i, 2)}, {vr(ac + 2 * i, 2)}, v[2:3]")
            for i in range(8):
                a(f"v_cvt_pk_bf16_f32 v{o + i}, v{ac + 2 * i}, v{ac + 2 * i + 1}")
        a(dma(10))
        for t in range(nt):
            o = 120 if t == 0 else 96
            if isv:
                a(f"buffer_store_dwordx4 {vr(o, 4)}, v7, {sr(S_WS)}, s{T3} offen sc1")
                a(f"buffer_store_dwordx4 {vr(o + 4, 4)}, v7, {sr(S_WS)}, s{T3} offen offset:512 sc1")
                if t + 1 < nt:
                    a(f"s_add_u32 s{T3}, s{T3}, 0x20000")
            else:
                a(f"buffer_store_dwordx4 {vr(o, 4)}, v{L16}, {sr(S_WS)}, s{T3} offen sc1")
                a(f"s_add_u32 s{T3}, s{T3}, 0x10000")
                a(f"buffer_store_dwordx4 {vr(o + 4, 4)}, v{L16}, {sr(S_WS)}, s{T3} offen sc1")
                if t + 1 < nt:
                    a(f"s_add_u32 s{T3}, s{T3}, 0x10000")
        if var != 3:
            a("s_branch L_pass2")
    a("L_pass2:")
    if "p1b" in OPT: NOSTAMP = True
    stamp(a, 4)
    a(f"s_cmp_eq_u32 s{sISS}, 1")
    a("s_cbranch_scc1 L_side")
    CO = O_
    sU = sVAR
    a(f"s_and_b32 s{sU}, s{sRB}, 3")
    a(f"s_lshr_b32 s40, s{sRB}, 2")
    a(f"s_lshl2_add_u32 s{sU}, s{sU}, s40")
    CSS, RU = 4096, 136
    w1 = []
    for i in range(4):
        w1 += [f"v_lshlrev_b32 v{RU + 2 * i}, 16, v{8 + i}", f"v_and_b32 v{RU + 2 * i + 1}, v{MASK}, v{8 + i}"]
    for i in range(4):
        w1 += [f"v_lshlrev_b32 v14, 16, v{128 + i}", f"v_and_b32 v15, v{MASK}, v{128 + i}",
               f"v_add_f32 v{RU + 2 * i}, v{RU + 2 * i}, v14", f"v_add_f32 v{RU + 2 * i + 1}, v{RU + 2 * i + 1}, v15"]
    w1 += ["v_and_b32 v14, 8, v0", "v_cmp_eq_u32 vcc, 0, v14"]
    w1 += [f"v_permlane16_swap_b32 v{RU + 2 * i}, v{RU + 2 * i + 1}" for i in range(4)]
    w1 += [f"v_add_f32 v{RU + 2 * i}, v{RU + 2 * i}, v{RU + 2 * i + 1}" for i in range(4)]
    w1 += ["v_and_b32 v15, 7, v0", "v_lshlrev_b32 v15, 3, v15",
           f"v_permlane32_swap_b32 v{RU}, v{RU + 2}", f"v_permlane32_swap_b32 v{RU + 4}, v{RU + 6}",
           f"v_add_f32 v{RU}, v{RU}, v{RU + 2}", f"v_add_f32 v{RU + 4}, v{RU + 4}, v{RU + 6}",
           "v_lshrrev_b32 v16, 4, v0", "v_add_u32 v15, v15, v16",
           f"v_add_f32_dpp v{RU}, v{RU}, v{RU} row_ror:8 row_mask:0xf bank_mask:0xf",
           f"v_add_f32_dpp v{RU + 4}, v{RU + 4}, v{RU + 4} row_ror:8 row_mask:0xf bank_mask:0xf",
           "v_lshrrev_b32 v14, 1, v14", "v_add_u32 v15, v15, v14", "v_lshlrev_b32 v15, 2, v15",
           [f"s_lshl_b32 s40, s{sW}, 8", "v_add_u32 v15, s40, v15"],
           f"v_cndmask_b32 v14, v{RU + 4}, v{RU}, vcc",
           f"ds_write_b32 v15, v14 offset:{CSS}", "v_lshlrev_b32 v16, 2, v0"]
    q4 = -(-(len(w1) - 8) // 5)
    csv = {0: [[f"s_lshr_b32 s40, s{sU}, 3", f"s_mul_i32 s41, s40, {BR - AR}", "s_lshl_b32 s40, s40, 1"],
               "v_lshrrev_b32 v14, 3, v0", "v_and_b32 v15, 2, v14", "v_lshlrev_b32 v15, 1, v15", "v_xor_b32 v15, s40, v15",
               "v_and_b32 v16, 7, v0", "v_xor_b32 v15, v15, v16", "v_lshlrev_b32 v15, 4, v15", "v_lshl_add_u32 v15, v14, 7, v15",
               [f"s_bfe_u32 s40, s{sU}, 0x10002", "s_lshl_b32 s40, s40, 13", "s_add_u32 s41, s41, s40",
                f"s_add_u32 s41, s41, s{sLW}", f"s_add_u32 s41, s41, {AR}", "v_add_u32 v17, s41, v15"]],
           1: [f"ds_read_b128 v[8:11], v17 offset:{2 * SL}"],
           5: ["ds_read_b128 v[128:131], v17"],
           4: w1[:8], 6: w1[8:8 + q4], 7: w1[8 + q4:8 + 2 * q4], 8: w1[8 + 2 * q4:8 + 3 * q4],
           9: w1[8 + 3 * q4:8 + 4 * q4], 10: w1[8 + 4 * q4:],
           12: [f"ds_read2st64_b32 {vr(RU + 2 * i, 2)}, v16 offset0:{CSS // 256 + 2 * i} offset1:{CSS // 256 + 2 * i + 1}" for i in range(4)],
           13: [f"v_add_f32 v{RU + 2 * i}, v{RU + 2 * i}, v{RU + 2 * i + 1}" for i in range(4)] +
               [f"v_add_f32 v{RU}, v{RU}, v{RU + 2}", f"v_add_f32 v{RU + 4}, v{RU + 4}, v{RU + 6}", f"v_add_f32 v{RU}, v{RU}, v{RU + 4}",
                [f"s_lshr_b32 s40, s{sU}, 3", "s_mul_i32 s40, s40, 28", f"s_bfe_u32 s41, s{sU}, 0x10002", "s_add_u32 s40, s40, s41",
                 f"s_lshl1_add_u32 s40, s{sCF}, s40", f"s_and_b32 s41, s{sU}, 3", "s_lshl2_add_u32 s40, s40, s41",
                 "s_lshl_b32 s40, s40, 8", f"s_add_u32 s40, s40, {WS_CS}", f"s_cmp_eq_u32 s{sW}, 0", f"s_cselect_b32 s40, s40, {OOB}",
                 f"buffer_store_dword v{RU}, v16, {sr(S_WS)}, s40 offen sc1"]]}
    bgq = []
    for k in range(32):
        S, ks = 8 + (k >> 2), k & 3
        F = WF + 16 * (k & 1)
        big = [mfma(ACC + 16 * c, F + 4 * c, XF + 4 * k, "0" if k == 0 else None) for c in range(4)]
        extra = []
        if ks == 3:
            n = {8: 8, 9: 8, 11: 5, 14: 2, 15: 63}.get(S, 4)
            if S in (8, 9):
                a([f"s_cmp_eq_u32 s{sHF}, 0", f"s_cbranch_scc1 L_w{S}", f"s_waitcnt vmcnt({n - 2})", f"L_w{S}:"])
            a(f"s_waitcnt vmcnt({n}) lgkmcnt(0)" if n != 63 else "s_waitcnt lgkmcnt(0)")
            if S == 13: a(poll_check("L_cq", 32))
            if S == 14: a(poll_check("L_cc", 16))
            if S != 15: a("s_barrier")
            if "p2b" in OPT: stamp(a, S - 3)
            if S == 12: bgq += [sig_one("L_scs", [f"s_add_u32 s{T0}, s{sCF}, {C_CS}"]), poll_issue("L_pq", QKV_MASK)]
            if S + 3 < 16: bgq += dma(S + 3)
            if S == 10: bgq = [sig_qkv("L_sq")] + bgq
            if S == 13: bgq += kv(0) + [q_load(), poll_issue("L_pc", CS_MASK)] + kv(1)
            if S == 14:
                bgq += [["v_bfe_u32 v2, v0, 4, 1", "v_mul_u32_u24 v2, 28672, v2", "v_lshrrev_b32 v3, 5, v0",
                         "v_lshl_add_u32 v2, v3, 9, v2", "v_and_b32 v3, 15, v0", "v_lshl_add_u32 v2, v3, 2, v2",
                         f"s_lshl1_add_u32 s{T3}, s{sCF}, s{sHF}", f"s_lshl_b32 s{T3}, s{T3}, 10", f"s_add_u32 s{T3}, s{T3}, {WS_CS}"]]
                for c in range(4):
                    bgq.append([f"buffer_load_dword v{CO + 4 * c + q}, v2, {sr(S_WS)}, s{T3} offen offset:{c * 64 + q * 256} sc1" for q in range(2)])
                bgq += kv(2) + kv(3)
            if S == 15:
                if "prio" in OPT:
                    a("s_setprio 1")
                    a(lead(2))
        else:
            a("s_waitcnt lgkmcnt(0)")
        left = 4 if ks == 3 else 3 - ks
        if S == 15 and ks == 3: left = 1
        take = -(-len(bgq) // left)
        extra, bgq = bgq[:take], bgq[take:]
        val = []
        if 16 <= k < 24: val = p2_init_regs()[4 * (k - 16):4 * (k - 15)]
        if k in (24, 25, 26): val = p2_init_v()[[0, 5, 11][k - 24]:[5, 11, 17][k - 24]]
        if k in csv: val = csv[k]
        nxt = rd2(k + 1) if k < 31 else []
        body = weave(big[:3], nxt) + [big[3]]
        res, idx = [], 0
        ex_at = extra + val
        if "a_val" in OPT: ex_at = extra
        if "a_vm" in OPT:
            ex_at = [[x for x in ([at] if isinstance(at, str) else at) if not (x.startswith("buffer_") and ("sc1" in x or "s[4:7]" in x) and "atomic" not in x and "s62" not in x)] for at in ex_at]
        if "a_dma" in OPT:
            ex_at = [[x for x in ([at] if isinstance(at, str) else at) if not (x.startswith("buffer_") and "atomic" not in x and "s62" not in x)] for at in ex_at]
        per = -(-len(ex_at) // 4) if ex_at else 0
        segs, cur = [], []
        for ins in body:
            if ins.startswith("v_mfma") and cur:
                segs.append(cur); cur = []
            cur.append(ins)
        segs.append(cur)
        for sg in segs:
            res += sg
            for at in ex_at[idx:idx + per]:
                res += [at] if isinstance(at, str) else at
            idx += per
        a(res)
    assert not bgq
    if "p2b" in OPT: NOSTAMP = True
    stamp(a, 5)
    RS, SD, XOP = 240, 242, 244
    a(f"v_lshlrev_b32 v{SD}, 16, v{STV}")
    a(f"v_rcp_f32 v{RS}, v{SD}")
    a(f"v_and_b32 v{XOP}, v{MASK}, v{STV}")
    a(f"v_mov_b32 v{XOP + 1}, v{XOP}")
    a(f"v_mov_b32 v{XOP + 2}, v{XOP}")
    a(f"v_mov_b32 v{XOP + 3}, 0")
    a(f"s_mul_i32 s{T3}, s{sT}, 112")
    a(f"s_lshl1_add_u32 s{T0}, s{sCF}, s{sHF}")
    a(f"s_lshl2_add_u32 s{T3}, s{T0}, s{T3}")
    a(f"s_lshl_b32 s{T3}, s{T3}, 10")
    a(f"s_add_u32 s{T3}, s{T3}, {WS_H}")
    a(f"v_mov_b32 v248, {hx(f2u(GC2))}")
    a("v_mov_b32 v249, v248")
    a(f"v_mov_b32 v250, {hx(f2u(GC1))}")
    a("v_mov_b32 v251, v250")
    a(f"v_mov_b32 v{RS + 1}, v{RS}")
    a(f"v_mov_b32 v{SD + 1}, v{SD}")
    a("s_waitcnt vmcnt(4)")
    for c in range(4):
        w = CO + 4 * c
        a(f"v_add_f32 v{w + 3}, v{w}, v{w + 1}")
        a(split3(w, w + 3))
        a("s_nop 1")
        a(mfma(ACC + 16 * c, w, XOP))
    for c in range(4):
        g = ACC + 16 * c
        u = g + 8
        q = 32 + (c & 1) * 8
        o = 48 + c * 4
        for i in range(4):
            a(f"v_pk_mul_f32 {vr(g + 2 * i, 2)}, {vr(g + 2 * i, 2)}, {vr(RS, 2)}")
        for i in range(4):
            a(f"v_pk_mul_f32 {vr(q + 2 * i, 2)}, {vr(g + 2 * i, 2)}, {vr(g + 2 * i, 2)}")
        for i in range(4):
            a(f"v_pk_fma_f32 {vr(q + 2 * i, 2)}, {vr(q + 2 * i, 2)}, v[248:249], v[250:251]")
        for i in range(4):
            a(f"v_pk_mul_f32 {vr(q + 2 * i, 2)}, {vr(q + 2 * i, 2)}, {vr(g + 2 * i, 2)}")
        for i in range(8):
            a(f"v_exp_f32 v{q + i}, v{q + i}")
        for i in range(4):
            a(f"v_pk_mul_f32 {vr(g + 2 * i, 2)}, {vr(g + 2 * i, 2)}, {vr(u + 2 * i, 2)}")
        for i in range(4):
            a(f"v_pk_fma_f32 {vr(q + 2 * i, 2)}, {vr(q + 2 * i, 2)}, {vr(SD, 2)}, {vr(SD, 2)}")
        for i in range(8):
            a(f"v_rcp_f32 v{q + i}, v{q + i}")
        a("s_nop 0")
        for i in range(4):
            a(f"v_pk_mul_f32 {vr(g + 2 * i, 2)}, {vr(g + 2 * i, 2)}, {vr(q + 2 * i, 2)}")
        for i in range(4):
            a(f"v_cvt_pk_bf16_f32 v{o + i}, v{g + 2 * i}, v{g + 2 * i + 1}")
        a(f"buffer_store_dwordx4 {vr(o, 4)}, v{L16}, {sr(S_WS)}, s{T3} offen offset:{c * 1024} sc1")


def gen_side(a):
    a("L_side:")
    global NOSTAMP
    NOSTAMP = "side" not in OPT
    gs = sCQ
    a("s_waitcnt vmcnt(0)")
    a("s_barrier")
    a(sig_qkv("L_sq2"))
    a(f"s_lshl3_add_u32 s{gs}, s2, s{sW}")
    a("v_lshrrev_b32 v1, 3, v0")
    a("v_and_b32 v2, 7, v0")
    a("v_and_b32 v3, 2, v1")
    a("v_xor_b32 v6, v3, v2")
    a("v_lshlrev_b32 v6, 4, v6")
    ASRC = 12
    a(f"v_lshl_add_u32 v{ASRC}, v1, 10, v6")
    a(f"s_mul_i32 s{tVM + 1}, s{sW}, 10240")
    a(f"s_add_u32 s{tVM + 1}, s{tVM + 1}, {AR}")
    a(f"s_mov_b32 s{S_T + 3}, 0x00020000")
    stamp(a, 10)
    for r in range(5):
        a(f"s_add_u32 s{T0}, s{gs}, {256 * r}")
        a(f"s_and_b32 s{T1}, s{T0}, 7")
        a(f"s_lshr_b32 s{T2}, s{T0}, 3")
        a(f"s_cmp_lt_u32 s{T2}, 112")
        a(f"s_cselect_b32 s{S_T}, s{pWD}, s{pWO}")
        a(f"s_cselect_b32 s{S_T + 1}, s{pWD + 1}, s{pWO + 1}")
        a(f"s_mov_b32 s{S_T + 2}, 1835008")
        a(f"s_cselect_b32 s{S_T + 2}, s{S_T + 2}, 524288")
        a(f"s_cselect_b32 s{T3}, 0, 112")
        a(f"s_sub_u32 s{T2}, s{T2}, s{T3}")
        a(f"s_lshl_b32 s{T2}, s{T2}, 14")
        a(f"s_lshl_b32 s{T1}, s{T1}, 7")
        a(f"s_add_u32 s{T2}, s{T2}, s{T1}")
        a(f"s_add_u32 m0, s{tVM + 1}, {r * 2048}")
        a(f"s_add_u32 s{T1}, s{T2}, 8192")
        a(f"buffer_load_dwordx4 v{ASRC}, {sr(S_T)}, s{T2} offen lds")
        a("s_add_u32 m0, m0, 1024")
        a("s_nop 0")
        a(f"buffer_load_dwordx4 v{ASRC}, {sr(S_T)}, s{T1} offen lds")
    a(tr_addr(13, 1, 2))
    a(f"v_add_u32 v13, s{tVM + 1}, v13")
    a("v_xor_b32 v14, 32, v13")
    a(p2_init_regs())
    a(p2_init_v())
    stamp(a, 11)
    a("s_waitcnt vmcnt(0)")
    a(poll_issue("L_pq2", QKV_MASK))
    for r in range(5):
        for ap in range(2):
            for t in range(2):
                a(f"ds_read_b64_tr_b16 {vr(64 + 8 * r + 4 * ap + 2 * t, 2)}, v{13 + ap} offset:{r * 2048 + t * 1024}")
        if r == 2:
            a("s_waitcnt lgkmcnt(4)")
    a("s_waitcnt lgkmcnt(0)")
    for r in range(5):
        a(f"s_add_u32 s{T0}, s{gs}, {256 * r}")
        a(f"s_and_b32 s{T1}, s{T0}, 7")
        a(f"s_lshr_b32 s{T2}, s{T0}, 3")
        a(f"s_mul_i32 s{T1}, s{T1}, 144")
        a(f"s_add_u32 s{T1}, s{T1}, s{T2}")
        a(f"s_lshl_b32 s{T1}, s{T1}, 11")
        a(f"s_add_u32 s{T1}, s{T1}, {WS_WT}")
        if r == 4:
            a(f"s_cmp_lt_u32 s{T0}, 1152")
            a(f"s_cselect_b32 s{T1}, s{T1}, {OOB}")
        a(f"buffer_store_dwordx4 {vr(64 + 8 * r, 4)}, v{L16}, {sr(S_WS)}, s{T1} offen sc1")
        a(f"buffer_store_dwordx4 {vr(64 + 8 * r + 4, 4)}, v{L16}, {sr(S_WS)}, s{T1} offen offset:1024 sc1")
    a("s_waitcnt vmcnt(10)")
    stamp(a, 13)
    a(poll_check("L_cq2", 32))
    a("s_barrier")
    a(q_load())
    for i in range(4):
        a(kv(i))
    a("s_waitcnt vmcnt(6)")
    a("s_barrier")
    a(sig_one("L_h_ns2", [f"s_add_u32 s{T0}, s{sRB}, {C_H}"]))
    if "prio" in OPT:
        a("s_setprio 1")
        a(lead(2))
    a("s_branch L_p2")


def att_step(i, ex=None, first=False):
    ex = ex or {}
    Sc, Sn = (S0, S1) if i % 2 == 0 else (S1, S0)
    Kn = K_ + 4 * ((i + 1) % 2)
    Vc = V_ + 8 * (i % 4)
    Vp = V_ + 8 * ((i - 1) % 4)
    e = lambda k: f"v_exp_f32 v{Sc + k}, v{Sc + k}"
    c = lambda k: f"v_cvt_pk_bf16_f32 v{P_ + k}, v{Sc + 2 * k}, v{Sc + 2 * k + 1}"
    r = [mfma(Sn, Kn, Q_, NM),
         f"ds_read_b128 {vr(Kn, 4)}, v{AK} offset:{(i + 3) * 2048}"]
    r += ex.get("qk", [])
    r += [e(0), e(1), e(2), e(3)]
    if not first:
        r.append(mfma(O_, Vp + 4, P_ + 4))
    if i % 2 == 0:
        r.append(f"s_mov_b64 exec, s[{tVM}:{tVM + 1}]")
        for d in (2, 3):
            vb = V_ + 8 * ((i + d) % 4)
            r.append(f"ds_read_b128 {vr(vb, 4)}, v{AV} offset:{(i + d) * 2048}")
            r.append(f"ds_read_b128 {vr(vb + 4, 4)}, v{AV} offset:{(i + d) * 2048 + 512}")
        r.append("s_mov_b64 exec, -1")
    r += ex.get("pv1", [])
    if "G2" in ex:
        r += [c(0), e(4), e(5), c(1)]
        r += [ex["G1"]] + ex.get("g1", [])
        r += [e(6), e(7), e(8), c(2), c(3), e(9)]
        r += ["s_nop 0", mfma(O_, Vc, P_)]
        if i % 2 == 1: r.append("s_waitcnt lgkmcnt(0)")
        r += ex.get("pv0", [])
        r += [e(10), e(11), c(4), e(12), c(5)]
        r += [ex["G2"]] + ex.get("g2", [])
        r += [e(13), e(14), e(15), c(6), c(7)]
    else:
        r += [c(0), e(4), e(5), c(1), e(6), e(7)]
        if "G1" in ex:
            r += [ex["G1"]]
        r += ex.get("g1", [])
        r += [e(8), c(2), c(3), e(9), e(10), e(11)]
        r.append(mfma(O_, Vc, P_, "0" if first else None))
        if i % 2 == 1: r.append("s_waitcnt lgkmcnt(0)")
        r += ex.get("pv0", [])
        r += [c(4), e(12), e(13), c(5), e(14), e(15), c(6), c(7)]
    r += ex.get("end", [])
    return r


def ring_loads(r):
    b = RING + 16 * r
    return [f"buffer_load_dwordx4 {vr(b, 4)}, v{A16}, {sr(R_H0)}, s{tFH} offen sc1",
            f"buffer_load_dwordx4 {vr(b + 4, 4)}, v{A16}, {sr(R_H1)}, s{tFH} offen sc1",
            f"buffer_load_dwordx4 {vr(b + 8, 4)}, v{A16}, {sr(R_WT)}, s{tFW} offen sc1",
            f"buffer_load_dwordx4 {vr(b + 12, 4)}, v{A16}, {sr(R_WT)}, s{tFW} offen offset:1024 sc1",
            f"s_add_u32 s{tFH}, s{tFH}, 1024",
            f"s_add_u32 s{tFW}, s{tFW}, 2048"]


def gm(r, n):
    b = RING + 16 * r
    return mfma(G_ + 16 * n, b + 8 + 4 * (n & 1), b + 4 * (n >> 1))


_pl = [0]


def lead(p, cond=None):
    if "prio" not in OPT:
        return []
    _pl[0] += 1
    lb = f"L_pr{_pl[0]}"
    c = [f"s_cmp_lt_u32 s{sW}, 4"] if cond is None else cond
    return c + [f"s_cbranch_scc0 {lb}", f"s_setprio {p}", f"{lb}:"]


def adv(a):
    a(f"v_add_u32 v{AK}, 0x4000, v{AK}")
    a(f"v_add_u32 v{AV}, 0x4000, v{AV}")


def gen_p2(a):
    a("L_p2:")
    stamp(a, 6)
    a(f"v_mov_b32 v{A16}, v{L16}")
    a(f"v_mov_b32 v{AK}, v{L16}")
    a("v_lshrrev_b32 v2, 5, v0")
    a("v_and_b32 v3, 15, v0")
    a("v_lshlrev_b32 v3, 4, v3")
    a("v_lshl_add_u32 v3, v2, 8, v3")
    a(f"v_add_u32 v{AV}, 1024, v3")
    a(f"s_mov_b32 s{tVM}, 0x0000ffff")
    a(f"s_mov_b32 s{tVM + 1}, 0x0000ffff")
    a(f"ds_read_b128 {vr(K_, 4)}, v{AK}")
    a(f"ds_read_b128 {vr(K_ + 4, 4)}, v{AK} offset:2048")
    a(f"s_mov_b64 exec, s[{tVM}:{tVM + 1}]")
    for d in range(2):
        a(f"ds_read_b128 {vr(V_ + 8 * d, 4)}, v{AV} offset:{d * 2048}")
        a(f"ds_read_b128 {vr(V_ + 8 * d + 4, 4)}, v{AV} offset:{d * 2048 + 512}")
    a("s_mov_b64 exec, -1")
    a(f"s_lshr_b32 s{T0}, s{sW}, 2")
    a(f"s_lshl1_add_u32 s{tTT}, s{tHEAD}, s{T0}")
    a(f"s_lshl_b32 s{T0}, s{tTT}, 15")
    a(f"s_lshl_b32 s{T1}, s{tQB}, 7")
    a(f"s_add_u32 s{T0}, s{T0}, s{T1}")
    a(f"s_and_b32 s{T1}, s{sW}, 3")
    a(f"s_lshl4_add_u32 s{T0}, s{T1}, s{T0}")
    a("v_and_b32 v1, 31, v0")
    a("v_lshlrev_b32 v1, 10, v1")
    a("v_lshl_add_u32 v1, v2, 6, v1")
    a(f"v_add_u32 v{AOUT}, s{T0}, v1")
    a("s_waitcnt lgkmcnt(4)")
    a(mfma(S0, K_, Q_, "0"))
    a(mfma(S1, K_ + 4, Q_, "0"))
    a(f"s_mul_i32 s{T0}, s{tHEAD}, {224 * 1024}")
    a(f"s_add_u32 s{T0}, s{T0}, {WS_H}")
    a(f"s_add_u32 s{R_H0}, s{pWS}, s{T0}")
    a(f"s_addc_u32 s{R_H0 + 1}, s{pWS + 1}, 0")
    a(f"s_add_u32 s{R_H1}, s{R_H0}, {112 * 1024}")
    a(f"s_addc_u32 s{R_H1 + 1}, s{R_H0 + 1}, 0")
    a(f"s_mul_i32 s{tFH}, s{sW}, {14 * 1024}")
    a(f"s_add_u32 s{R_H0 + 2}, s{tFH}, {14 * 1024}")
    a(f"s_mov_b32 s{R_H1 + 2}, s{R_H0 + 2}")
    a(f"s_mul_i32 s{T0}, s{tQB}, {144 * 2048}")
    a(f"s_add_u32 s{T0}, s{T0}, {WS_WT}")
    a(f"s_add_u32 s{R_WT}, s{pWS}, s{T0}")
    a(f"s_addc_u32 s{R_WT + 1}, s{pWS + 1}, 0")
    a(f"s_lshl_b32 s{tFW}, s{tFH}, 1")
    a(f"s_lshl_b32 s{R_WT + 2}, s{R_H0 + 2}, 1")
    a(f"v_max3_f32 v1, v{S0}, v{S0 + 1}, v{S0 + 2}")
    for i in range(3, 31, 2):
        a(f"v_max3_f32 v1, v1, v{S0 + i}, v{S0 + i + 1}")
    a(f"v_max_f32 v1, v1, v{S0 + 31}")
    a("v_mov_b32 v2, v1")
    a("s_nop 1")
    a("v_permlane32_swap_b32 v1, v2")
    a("v_max_f32 v1, v1, v2")
    a(f"v_sub_f32 v2, {hx(f2u(-MAXOFF))}, v1")
    a("v_mov_b32 v3, v2")
    for i in range(0, 16, 2):
        a(f"v_mov_b64 v[{NM + i}:{NM + i + 1}], v[2:3]")
    a("s_nop 1")
    a(mfma(S0, K_, Q_, NM))
    a(f"ds_read_b128 {vr(K_, 4)}, v{AK} offset:4096")
    srd(a, R_OUT, pOUT, 2097152)
    a(f"s_lshl_b32 s{T0}, s{sW}, 11")
    a(f"v_add_u32 v{AW}, s{T0}, v{A16}")
    a(f"v_add_u32 v{AW + 1}, 0x10000, v{AW}")
    a(f"v_add_u32 v{AW + 2}, 0x20000, v{AW}")
    a("s_waitcnt lgkmcnt(0)")
    a("s_nop 1")
    stamp(a, 7)
    global NOSTAMP
    if "side" in OPT: NOSTAMP = True
    for i in range(8):
        ex = {}
        if i == 4:
            ex["end"] = ["s_waitcnt vmcnt(0)", "s_barrier"] + sig_one("L_h_ns", [f"s_add_u32 s{T0}, s{sRB}, {C_H}"], True) + lead(2)
        if i == 3:
            ex["pv0"] = lead(0)
        if i >= 5:
            ex["pv1"], ex["pv0"] = kv(i - 1, A16)
        a(att_step(i, ex, first=(i == 0)))
    adv(a)
    for i in range(8):
        ex = {}
        if i == 0:
            ex["pv1"], ex["pv0"] = kv(7, A16)
        if i == 3:
            ex["pv0"] = poll_issue("L_h_np", H_MASK, 7) + lead(0)
        if i == 4:
            ex["end"] = ["s_waitcnt vmcnt(0)"] + poll_check("L_ch", 16, 7, 16) + ["s_barrier"] + lead(2)
        if i in (5, 6, 7):
            l = ring_loads(i - 5)
            ex["qk"] = l[0:1]
            ex["pv1"] = l[1:3]
            ex["pv0"] = l[3:6]
        a(att_step(i, ex))
    stamp(a, 8)
    a(f"s_mov_b32 s{tIT}, 5")
    a(f"s_lshr_b32 s{sG}, s{sW}, 2")
    a(f"s_lshl_b32 s{sG}, s{sG}, 4")
    a(f"s_add_u32 s{sG}, s{sG}, 1")
    a("L_loop:")
    adv(a)
    plan = [[(0, 0)], [(0, 1), (0, 2)], [(0, 3)], [(1, 0), (1, 1)], [(1, 2)], [(1, 3), (2, 0)], [(2, 1)], [(2, 2), (2, 3)]]
    for i in range(8):
        ex = {}
        ex["G1"] = gm(*plan[i][0])
        if len(plan[i]) > 1:
            ex["G2"] = gm(*plan[i][1])
        if i == 0: ex["qk"] = ["s_waitcnt vmcnt(8)"]
        if i == 0: ex["pv0"] = lead(0, [f"s_cmp_eq_u32 s{tIT}, s{sG}"])
        if i == 2:
            l = ring_loads(0)
            ex["g1"] = l[0:2]
            ex["pv0"] = l[2:6]
        if i == 3: ex["pv1"] = ["s_waitcnt vmcnt(8)"]
        if i == 5:
            l = ring_loads(1)
            ex["g1"] = l[0:2]
            ex["pv0"] = l[2:6] + ["s_waitcnt vmcnt(8)"]
        if i == 7:
            ex["g2"] = ring_loads(2)
        a(att_step(i, ex))
    a(f"s_sub_u32 s{tIT}, s{tIT}, 1")
    a(f"s_cmp_lg_u32 s{tIT}, 0")
    a("s_cbranch_scc1 L_loop")
    adv(a)
    a(f"s_and_b32 s{T0}, s{sW}, 3")
    a(f"s_lshl_b32 s{T0}, s{T0}, 14")
    a(f"s_add_u32 s{T0}, s{T0}, {112 * 2048}")
    a(f"s_mov_b32 s{R_WT + 2}, {144 * 2048}")
    a("s_barrier")
    a(lead(2))

    def pw(o):
        base, off = (AW, o * 16384) if o < 4 else ((AW + 1, (o - 4) * 16384) if o < 6 else (AW + 2, (o - 6) * 16384))
        return [f"ds_write_b128 v{base}, {vr(G_ + 8 * o, 4)} offset:{off}",
                f"ds_write_b128 v{base}, {vr(G_ + 8 * o + 4, 4)} offset:{off + 1024}"]

    def wol(g):
        return [f"buffer_load_dwordx4 {vr(G_ + 16 * g + 4 * q, 4)}, v{A16}, {sr(R_WT)}, s{T0} offen offset:{q * 1024} sc1" for q in range(4)] + \
               [f"s_add_u32 s{T0}, s{T0}, 4096"]
    for i in range(8):
        ex = {}
        if i == 0: ex["qk"], ex["pv0"] = [f"buffer_load_dwordx4 {vr(RING, 4)}, v{AOUT}, {sr(S_X)}, 0 offen"], pw(0) + pw(1)[:1]
        if i == 1: ex["qk"], ex["pv1"] = pw(1)[1:], pw(2)
        if i == 2: ex["qk"], ex["pv0"] = pw(3)[:1], pw(3)[1:] + pw(4)
        if i == 3: ex["qk"], ex["pv1"] = pw(5)[:1], pw(5)[1:] + pw(6)[:1]
        if i == 4: ex["qk"], ex["pv0"], ex["g1"] = pw(6)[1:], pw(7), wol(0)[:2]
        if i == 5: ex["qk"], ex["pv1"], ex["pv0"] = wol(0)[2:3], wol(0)[3:] + wol(1)[:1], wol(1)[1:3]
        if i == 6: ex["qk"], ex["g1"], ex["pv0"] = wol(1)[3:], wol(2)[:2], wol(2)[2:] + lead(0)
        if i == 7: ex["qk"], ex["pv1"], ex["pv0"] = wol(3)[:1], wol(3)[1:3], wol(3)[3:]
        a(att_step(i, ex))
    a("s_nop 1")
    a(mfma(O_, V_ + 24 + 4, P_ + 4))
    a(f"s_lshl_b32 s{T0}, s{tQB}, 3")
    a(f"s_add_u32 s{T0}, s{T0}, s{sW}")
    a(f"s_lshl_b32 s{T0}, s{T0}, 5")
    a(f"s_add_u32 s{T0}, s{T0}, s{tHEAD}")
    a(f"s_lshl_b32 s{T0}, s{T0}, 10")
    a(f"s_add_u32 s{T3}, s{T0}, {WS_O}")
    a(f"v_mov_b32 v2, {hx(f2u(2.0 ** 120))}")
    a(f"v_mov_b32 v3, {hx(f2u(2.0 ** -90))}")
    a("s_waitcnt lgkmcnt(0)")
    a("s_nop 3")
    stamp(a, 9)
    a(f"v_add_f32 v1, |v{O_}|, |v{O_ + 1}|")
    for i in range(2, 8):
        a(f"v_add_f32 v1, v1, |v{O_ + i}|")
    a(f"v_cmp_lt_f32 s[40:41], v{O_ + 8}, v2")
    a("v_cmp_lt_f32 s[42:43], v1, v2")
    a(f"v_cmp_le_f32 s[50:51], 0.5, v{O_ + 8}")
    a("v_cmp_le_f32 vcc, v3, v1")
    a("s_or_b64 s[50:51], s[50:51], vcc")
    a("s_and_b64 s[40:41], s[40:41], s[42:43]")
    a("s_and_b64 s[40:41], s[40:41], s[50:51]")
    a("s_cmp_eq_u64 s[40:41], -1")
    a("s_cbranch_scc0 L_fallback")
    a("L_norm:")
    a(f"v_rcp_f32 v2, v{O_ + 8}")
    a("s_nop 0")
    for i in range(8):
        a(f"v_mul_f32 v{O_ + i}, v{O_ + i}, v2")
    for i in range(4):
        a(f"v_cvt_pk_bf16_f32 v{4 + i}, v{O_ + 2 * i}, v{O_ + 2 * i + 1}")
    a(f"buffer_store_dwordx4 v[4:7], v{A16}, {sr(S_WS)}, s{T3} offen sc1")
    a(f"s_lshl_b32 s{T0}, s{sW}, 14")
    a(f"s_add_u32 s{T1}, s{T0}, 0x8000")
    a(f"s_cmp_lt_u32 s{sW}, 6")
    a(f"s_cselect_b32 s{T0}, s{T0}, s{T1}")
    a(f"v_add_u32 v3, s{T0}, v{A16}")
    a("s_waitcnt vmcnt(0)")
    a("s_barrier")
    stamp(a, 10)
    a(f"s_cmp_lg_u32 s{sW}, 0")
    a("s_cbranch_scc1 L_o_ns")
    a(f"s_lshl_b32 s{T0}, s{tQB}, 8")
    a(f"s_add_u32 s{T0}, s{T0}, {WS_CNT + C_O * 256}")
    a("v_mov_b32 v1, 1")
    a("s_mov_b64 exec, 1")
    a(f"buffer_atomic_add v1, off, {sr(S_WS)}, s{T0} sc1")
    a("s_mov_b64 exec, -1")
    a("L_o_ns:")
    F_ = 8
    for s in range(8):
        for i in range(2):
            a(f"ds_read_b128 {vr(F_ + 8 * s + 4 * i, 4)}, v3 offset:{(s * 2 + i) * 1024}")
        if s == 6:
            a("s_waitcnt lgkmcnt(10)")
    for s in range(1, 8):
        a(f"s_waitcnt lgkmcnt({2 * (7 - s)})")
        for i in range(4):
            a(f"v_pk_add_f32 {vr(F_ + 2 * i, 2)}, {vr(F_ + 2 * i, 2)}, {vr(F_ + 8 * s + 2 * i, 2)}")
    T_ = F_ + 8
    a(f"v_mov_b32 v4, {hx(f2u(-LOG2E))}")
    for i in range(8):
        a(f"v_mul_f32 v{T_ + i}, v{F_ + i}, v4")
    for i in range(8):
        a(f"v_exp_f32 v{T_ + i}, v{T_ + i}")
    a("s_nop 0")
    for i in range(8):
        a(f"v_add_f32 v{T_ + i}, 1.0, v{T_ + i}")
    for i in range(8):
        a(f"v_rcp_f32 v{T_ + i}, v{T_ + i}")
    a("s_nop 0")
    for i in range(4):
        a(f"v_pk_mul_f32 {vr(F_ + 2 * i, 2)}, {vr(F_ + 2 * i, 2)}, {vr(T_ + 2 * i, 2)}")
    XU = 24
    for i in range(4):
        a(f"v_lshlrev_b32 v{XU + 2 * i}, 16, v{RING + i}")
        a(f"v_and_b32 v{XU + 2 * i + 1}, 0xffff0000, v{RING + i}")
    a(f"s_lshr_b32 s{T0}, s{sW}, 2")
    a(f"s_lshl_b32 s{T0}, s{T0}, 15")
    a(f"s_and_b32 s{T1}, s{sW}, 3")
    a(f"s_lshl_b32 s{T2}, s{T1}, 11")
    a(f"s_add_u32 s{T0}, s{T0}, s{T2}")
    a(f"v_add_u32 v1, s{T0}, v{A16}")
    a(f"s_lshl_b32 s{T0}, s{sW}, 13")
    a(f"v_add_u32 v3, s{T0}, v{A16}")
    a(f"s_lshl_b32 s{T0}, s{tTT}, 5")
    a(f"s_lshl_b32 s{T1}, s{T1}, 3")
    a(f"s_add_u32 s{T0}, s{T0}, s{T1}")
    a(f"s_lshl_b32 s{T0}, s{T0}, 10")
    a(f"s_add_u32 s{T2}, s{T0}, {WS_O}")
    a(f"s_add_u32 s{T3}, s{T2}, 4096")
    stamp(a, 11)
    a(f"s_cmp_lg_u32 s{sW}, 0")
    a("s_cbranch_scc1 L_o_ok")
    a(f"s_lshl_b32 s{T0}, s{sXCD}, 8")
    a(f"s_add_u32 s{T0}, s{T0}, {WS_CNT + C_O * 256}")
    a(f"s_mov_b32 s{T1}, {SPIN}")
    a("L_o_poll:")
    a(f"buffer_load_dword v4, off, {sr(S_WS)}, s{T0} sc1")
    a("s_waitcnt vmcnt(0)")
    a("v_readfirstlane_b32 s40, v4")
    a("s_cmp_ge_u32 s40, 32")
    a("s_cbranch_scc1 L_o_ok")
    a(f"s_sub_u32 s{T1}, s{T1}, 1")
    a(f"s_cmp_lg_u32 s{T1}, 0")
    a("s_cbranch_scc1 L_o_poll")
    a("L_o_ok:")
    a("s_barrier")
    stamp(a, 12)
    OF = RING + 8
    SA = V_
    for j in range(8):
        so = T2 if j < 4 else T3
        a(f"buffer_load_dwordx4 {vr(OF + 4 * j, 4)}, v{A16}, {sr(S_WS)}, s{so} offen offset:{(j % 4) * 1024} sc1")
    for j in range(8):
        a(f"s_waitcnt vmcnt({7 - j})")
        for ap in range(2):
            a(mfma(SA + 16 * ap, G_ + 8 * j + 4 * ap, OF + 4 * j, "0" if j == 0 else None))
    stamp(a, 13)
    a("s_nop 11")
    for o in range(4):
        for i in range(2):
            a(f"ds_write_b128 v1, {vr(SA + 8 * o + 4 * i, 4)} offset:{o * 8192 + i * 1024}")
    a("s_waitcnt lgkmcnt(0)")
    a("s_barrier")
    for s in range(4):
        for i in range(2):
            a(f"ds_read_b128 {vr(SA + 8 * s + 4 * i, 4)}, v3 offset:{(s * 2 + i) * 1024}")
    for s in range(1, 4):
        a(f"s_waitcnt lgkmcnt({2 * (3 - s)})")
        for i in range(4):
            a(f"v_pk_add_f32 {vr(SA + 2 * i, 2)}, {vr(SA + 2 * i, 2)}, {vr(SA + 8 * s + 2 * i, 2)}")
    for i in range(4):
        a(f"v_pk_fma_f32 {vr(XU + 2 * i, 2)}, {vr(SA + 2 * i, 2)}, {vr(F_ + 2 * i, 2)}, {vr(XU + 2 * i, 2)}")
    for i in range(4):
        a(f"v_cvt_pk_bf16_f32 v{4 + i}, v{XU + 2 * i}, v{XU + 2 * i + 1}")
    fl = " sc1" if "osc1" in OPT else (" nt" if "ont" in OPT else (" sc0 sc1" if "osc01" in OPT else ""))
    a(f"buffer_store_dwordx4 v[4:7], v{AOUT}, {sr(R_OUT)}, 0 offen{fl}")
    stamp(a, 14)
    stamp_flush(a)
    a("L_exit:")
    a("s_endpgm")
    a("L_fallback:")
    a(f"s_lshl_b32 s{T0}, s{tHEAD}, 16")
    a(f"s_add_u32 s{T0}, s{T0}, {32 << 16}")
    a(f"s_mov_b32 s{T1}, 0")
    a("v_mov_b32 v1, 0xff800000")
    a("L_fb1:")
    a(f"s_add_u32 s{T2}, s{T0}, s{T1}")
    a(f"buffer_load_dwordx4 {vr(K_, 4)}, v{A16}, {sr(S_WS)}, s{T2} offen sc1")
    a("s_waitcnt vmcnt(0)")
    a(mfma(S0, K_, Q_, "0"))
    a("s_nop 15")
    for i in range(0, 16, 2):
        a(f"v_max3_f32 v1, v1, v{S0 + i}, v{S0 + i + 1}")
    a(f"s_add_u32 s{T1}, s{T1}, 1024")
    a(f"s_cmp_lt_u32 s{T1}, 65536")
    a("s_cbranch_scc1 L_fb1")
    a("v_mov_b32 v2, v1")
    a("s_nop 1")
    a("v_permlane32_swap_b32 v1, v2")
    a("v_max_f32 v1, v1, v2")
    a("v_sub_f32 v1, 0, v1")
    for i in range(16):
        a(f"v_mov_b32 v{NM + i}, v1")
    for i in range(16):
        a(f"v_mov_b32 v{O_ + i}, 0")
    a("v_lshrrev_b32 v2, 5, v0")
    a("v_and_b32 v3, 15, v0")
    a("v_lshlrev_b32 v3, 4, v3")
    a("v_lshl_add_u32 v3, v2, 8, v3")
    a(f"s_mov_b32 s{T1}, 0")
    a("L_fb2:")
    a(f"s_add_u32 s{T2}, s{T0}, s{T1}")
    a(f"buffer_load_dwordx4 {vr(K_, 4)}, v{A16}, {sr(S_WS)}, s{T2} offen sc1")
    a(f"s_add_u32 s{T2}, s{T2}, {32 << 16}")
    a(f"s_mov_b64 exec, s[{tVM}:{tVM + 1}]")
    a(f"buffer_load_dwordx4 {vr(V_, 4)}, v3, {sr(S_WS)}, s{T2} offen sc1")
    a(f"buffer_load_dwordx4 {vr(V_ + 4, 4)}, v3, {sr(S_WS)}, s{T2} offen offset:512 sc1")
    a("s_mov_b64 exec, -1")
    a("s_waitcnt vmcnt(0)")
    a(mfma(S0, K_, Q_, NM))
    a("s_nop 15")
    for i in range(16):
        a(f"v_exp_f32 v{S0 + i}, v{S0 + i}")
    a("s_nop 0")
    for i in range(8):
        a(f"v_cvt_pk_bf16_f32 v{P_ + i}, v{S0 + 2 * i}, v{S0 + 2 * i + 1}")
    a("s_nop 1")
    a(mfma(O_, V_, P_))
    a(mfma(O_, V_ + 4, P_ + 4))
    a(f"s_add_u32 s{T1}, s{T1}, 1024")
    a(f"s_cmp_lt_u32 s{T1}, 65536")
    a("s_cbranch_scc1 L_fb2")
    a("s_nop 15")
    a("s_branch L_norm")


def main(out):
    a = Asm()
    k = NAME + "_kernel"
    hdr = ["; LN + MHA + GEGLU block, one persistent launch; generated by gen3.py (hand-scheduled gfx950 assembly)",
           "; @launch grid=(256,1,1) block=(512,1,1) lds=163840"]
    a('.amdgcn_target "amdgcn-amd-amdhsa--gfx950"')
    a(".text")
    a(f".globl {k}\n.p2align 8\n.type {k},@function\n{k}:")
    gen_p1(a)
    gen_p2(a)
    gen_side(a)
    a("L_end:")
    a('.section .rodata,"a"')
    a(".p2align 6")
    a(f".amdhsa_kernel {k}")
    a(f".amdhsa_next_free_vgpr {NVGPR}")
    a(f".amdhsa_next_free_sgpr {96 if STAMPS else 80}")
    a(f".amdhsa_accum_offset {(NVGPR + 3) // 4 * 4}")
    a(".amdhsa_group_segment_fixed_size 0")
    a(".amdhsa_kernarg_size 80")
    a(".amdhsa_user_sgpr_count 2")
    a(".amdhsa_user_sgpr_kernarg_segment_ptr 1")
    a(".amdhsa_system_sgpr_workgroup_id_x 1")
    a(".end_amdhsa_kernel")
    open(out, "w").write("\n".join(hdr) + "\n" + a.text())


if __name__ == "__main__":
    for x in list(sys.argv):
        if x.startswith("--opt="):
            OPT = set(x[6:].split(","))
            sys.argv.remove(x)
    if "--cyc" in sys.argv:
        STAMPS = 2
        sys.argv.remove("--cyc")
    if "--stamps" in sys.argv:
        STAMPS = True
        sys.argv.remove("--stamps")
    main(sys.argv[1] if len(sys.argv) > 1 else f"cdna_kernels/{NAME}.s")
```

```python
import sys, struct, math

NAME = "recurrent_scan__mha_block__glu_gated_geglu__prompt"

WS_QKV = 0
WS_H = 6 << 20
WS_O = 14 << 20
WS_CNT = 16 << 20
WS_STAMP = (16 << 20) + 65536
WS_CS = (16 << 20) + 0x90000
WS_WT = 17 << 20
WS_SIZE = 20 << 20
OOB = 0x7f000000

LOG2E = 1.4426950408889634
QSCALE = 0.25 * LOG2E
GC1 = -2.0 * LOG2E * math.sqrt(2.0 / math.pi)
GC2 = GC1 * 0.044715
MAXOFF = 80.0
SPIN = 0x40000

STAMPS = False
OPT = set()
NOSTAMP = False
ENC = None


def f2u(x):
    return struct.unpack("<I", struct.pack("<f", x))[0]


def hx(x):
    return "0x%08x" % (x & 0xffffffff)


class Asm:
    def __init__(self):
        self.l = []

    def __call__(self, s):
        if isinstance(s, (list, tuple)):
            for x in s:
                self(x)
            return
        for line in s.split("\n"):
            line = line.strip()
            if not line:
                continue
            if line.endswith(":") or line.startswith("."):
                self.l.append(line)
            else:
                self.l.append("    " + line)

    def text(self):
        return "\n".join(self.l) + "\n"


def vr(b, n):
    return f"v[{b}:{b + n - 1}]"


def sr(b):
    return f"s[{b}:{b + 3}]"


def mfma(d, a, b, c=None):
    cs = vr(d, 16) if c is None else (c if isinstance(c, str) else vr(c, 16))
    return f"v_mfma_f32_32x32x16_bf16 {vr(d, 16)}, {vr(a, 4)}, {vr(b, 4)}, {cs}"


def stamp(a, n):
    if ENC is not None:
        if n in (0, ENC) and not NOSTAMP:
            a("s_memrealtime s[76:77]")
            a("s_waitcnt lgkmcnt(0)")
            a(f"s_mov_b32 s{80 if n == 0 else 81}, s76")
            if n == 0:
                a("s_mov_b32 s81, s76")
        return
    if not STAMPS or (NOSTAMP and n != 15):
        return
    a("s_memtime s[76:77]" if STAMPS == 2 else "s_memrealtime s[76:77]")
    a("s_waitcnt lgkmcnt(0)")
    a(f"s_mov_b32 s{80 + n}, s76")


def stamp_flush(a):
    if ENC is not None:
        a("s_waitcnt vmcnt(0)")
        a("s_memrealtime s[76:77]")
        a("s_waitcnt lgkmcnt(0)")
        if ENC == 15:
            a("s_mov_b32 s81, s76")
        a("s_sub_u32 s81, s81, s80")
        a("s_mov_b32 s80, s76")
        a("L_enc:")
        a("s_memrealtime s[76:77]")
        a("s_waitcnt lgkmcnt(0)")
        a("s_sub_u32 s76, s76, s80")
        a("s_cmp_lt_u32 s76, s81")
        a("s_cbranch_scc1 L_enc")
        return
    if not STAMPS:
        return
    a("s_waitcnt vmcnt(0)")
    stamp(a, 15)
    a("v_mov_b32 v1, 0")
    for n in range(16):
        a(f"v_writelane_b32 v1, s{80 + n}, {n}")
    a("s_lshl_b32 s76, s2, 3")
    a(f"s_add_u32 s76, s76, s{sW}")
    a("s_lshl_b32 s76, s76, 6")
    a(f"s_add_u32 s76, s76, {WS_STAMP}")
    a("v_lshlrev_b32 v2, 2, v0")
    a("s_mov_b64 exec, 0xffff")
    a(f"buffer_store_dword v1, v2, {sr(S_WS)}, s76 offen")


def srd(a, s, ptr, size):
    a(f"s_mov_b32 s{s}, s{ptr}")
    a(f"s_mov_b32 s{s + 1}, s{ptr + 1}")
    a(f"s_mov_b32 s{s + 2}, {size}")
    a(f"s_mov_b32 s{s + 3}, 0x00020000")


pX, pWQKV, pWO, pG, pU, pWD, pOUT, pDBG, pWS = 56, 58, 60, 64, 66, 68, 70, 72, 74
S_T, S_X, S_W0, S_W1, S_W3, S_WS = 4, 8, 12, 16, 20, 24
R_OUT, R_H0, R_H1, R_WT = 4, 12, 16, 20
sW, sTT, sHF, sRB, sCB, sROT, sISS, sVAR = 28, 29, 30, 31, 32, 33, 34, 35
sCQ, sCG, sXROW, sLW = 36, 37, 42, 43
T0, T1, T2, T3 = 44, 45, 46, 47
sXCD, sT, sG, sKV = 49, 52, 53, 50
tHEAD, tQB, tIT, tFH, tFW, tTT = 38, 39, 33, 36, 37, 48
tVM = 54

AR, BR, SL = 65536, 114688, 16384
SCR = 0
XA, WA1, WA2 = 12, 16, 18
VXS, VW0, VW1, VW3, L16, MASK, ONES, STV, POLL = 22, 23, 24, 25, 26, 27, 28, 30, 31
WF = 32
ACC = 64
STA, STB, CSA = 96, 100, 104
XF = 128
Q_, K_, P_, NM, S0, S1, RING = 8, 12, 20, 28, 44, 60, 76
AK, AV, A16, AOUT = 124, 125, 126, 127
G_, V_, O_, AW = 128, 192, 224, 240
NVGPR = 256
C_H, C_CS, C_O = 24, 40, 56
sCF, sCNT = 51, 62


def tiny(d, a_, b_, first=False):
    return f"v_mfma_f32_4x4x4_16b_bf16 {vr(d, 4)}, {vr(a_, 2)}, {vr(b_, 2)}, {'0' if first else vr(d, 4)}"


def dma(S):
    sl = (S % 3) * SL
    pre = [f"s_add_u32 s{T1}, s{sROT}, {S & 7}", f"s_and_b32 s{T1}, s{T1}, 7"]
    if S < 8:
        return [pre + [f"s_lshl_b32 s{T0}, s{T1}, 7", f"s_add_u32 m0, s{sLW}, {AR + sl}", f"s_add_u32 s{T0}, s{T0}, s{sXROW}",
                       f"buffer_load_dwordx4 v{VXS}, {sr(S_X)}, s{T0} offen lds"],
                [f"s_mul_i32 s{T1}, s{T1}, {64 * 3072}", f"s_add_u32 m0, s{sLW}, {BR + sl}", f"s_add_u32 s{T1}, s{T1}, s{sCQ}",
                 f"buffer_load_dwordx4 v{VW0}, {sr(S_W0)}, s{T1} offen lds"],
                [f"s_add_u32 m0, s{sLW}, {AR + sl + 8192}", f"s_add_u32 s{T0}, s{T0}, 0x10000",
                 f"buffer_load_dwordx4 v{VXS}, {sr(S_X)}, s{T0} offen lds"],
                [f"s_add_u32 m0, s{sLW}, {BR + sl + 8192 - 128}", "s_nop 0",
                 f"buffer_load_dwordx4 v{VW0}, {sr(S_W0)}, s{T1} offen offset:128 lds"]]
    return [pre + [f"s_mul_i32 s{T1}, s{T1}, {64 * 3584}", f"s_add_u32 m0, s{sLW}, {AR + sl}", f"s_add_u32 s{T1}, s{T1}, s{sCG}",
                   f"buffer_load_dwordx4 v{VW1}, {sr(S_W1)}, s{T1} offen lds"],
            [f"s_add_u32 m0, s{sLW}, {BR + sl}", "s_nop 0",
             f"buffer_load_dwordx4 v{VW3}, {sr(S_W3)}, s{T1} offen lds"],
            [f"s_add_u32 m0, s{sLW}, {AR + sl + 8192 - 128}", "s_nop 0",
             f"buffer_load_dwordx4 v{VW1}, {sr(S_W1)}, s{T1} offen offset:128 lds"],
            [f"s_add_u32 m0, s{sLW}, {BR + sl + 8192 - 128}", "s_nop 0",
             f"buffer_load_dwordx4 v{VW3}, {sr(S_W3)}, s{T1} offen offset:128 lds"]]


def rd1(h, nt):
    S, k0 = h >> 1, (h & 1) * 2
    sl = (S % 3) * SL
    F = WF + 16 * (h & 1)
    r = []
    for q in range(2):
        ks = k0 + q
        r.append(f"ds_read_b128 {vr(XF + 4 * (4 * S + ks), 4)}, v{XA + ks} offset:{sl}")
        for t in range(nt):
            for t2 in range(2):
                r.append(f"ds_read_b64_tr_b16 {vr(F + 8 * q + 4 * t + 2 * t2, 2)}, v{WA1 + t} offset:{sl + ks * 2048 + t2 * 512}")
    return r


def rd2(k):
    S, ks = 8 + (k >> 2), k & 3
    sl = (S % 3) * SL
    F = WF + 16 * (k & 1)
    return [f"ds_read_b64_tr_b16 {vr(F + 4 * c + 2 * t2, 2)}, v{WA2 + c} offset:{sl + ks * 2048 + t2 * 512}"
            for c in range(4) for t2 in range(2)]


def weave(heads, fills):
    res = []
    per = -(-len(fills) // len(heads)) if fills else 0
    i = 0
    for hd in heads:
        res.append(hd)
        for at in fills[i:i + per]:
            res += [at] if isinstance(at, str) else at
        i += per
    return res


def tr_addr(dst, t_a, t_b):
    return [f"v_lshrrev_b32 v{t_a}, 5, v0", f"v_bfe_u32 v{t_b}, v0, 2, 2", f"v_lshl_add_u32 v{dst}, v{t_a}, 2, v{t_b}",
            f"v_lshlrev_b32 v{dst}, 7, v{dst}", f"v_and_b32 v{t_a}, 1, v0", f"v_lshl_add_u32 v{dst}, v{t_a}, 6, v{dst}",
            f"v_bfe_u32 v{t_a}, v0, 4, 1", f"v_lshl_add_u32 v{dst}, v{t_a}, 4, v{dst}", f"v_bfe_u32 v{t_a}, v0, 1, 1",
            f"v_lshl_add_u32 v{dst}, v{t_a}, 3, v{dst}", f"v_lshrrev_b32 v{t_b}, 1, v{t_b}", f"v_lshl_add_u32 v{dst}, v{t_b}, 5, v{dst}"]


def split3(w, src):
    return [f"v_and_b32 v{w}, v{MASK}, v{src}", f"v_sub_f32 v{w + 2}, v{src}, v{w}",
            f"v_and_b32 v{w + 1}, v{MASK}, v{w + 2}", f"v_sub_f32 v{w + 2}, v{w + 2}, v{w + 1}", f"v_mov_b32 v{w + 3}, 0"]


def poll_issue(lbl, mask_instrs, reg=POLL):
    return ([f"s_cmp_lg_u32 s{sW}, 0", f"s_cbranch_scc1 {lbl}", "v_lshlrev_b32 v1, 8, v0"] + mask_instrs +
            ["s_mov_b64 exec, s[40:41]",
             f"buffer_load_dword v{reg}, v1, {sr(S_WS)}, s{sCNT} offen sc1", "s_mov_b64 exec, -1", f"{lbl}:"])


def poll_check(lbl, thr, reg=POLL, sleep=8):
    return [f"s_cmp_lg_u32 s{sW}, 0", f"s_cbranch_scc1 {lbl}_ok",
            f"s_mov_b32 s{T3}, {SPIN}", "s_mov_b64 exec, s[40:41]", f"{lbl}_spin:",
            f"v_cmp_gt_u32 vcc, {thr}, v{reg}", "s_cmp_eq_u64 vcc, 0", f"s_cbranch_scc1 {lbl}_done",
            f"s_sleep {sleep}",
            f"buffer_load_dword v{reg}, v1, {sr(S_WS)}, s{sCNT} offen sc1", "s_waitcnt vmcnt(0)",
            f"s_sub_u32 s{T3}, s{T3}, 1", f"s_cmp_lg_u32 s{T3}, 0", f"s_cbranch_scc1 {lbl}_spin",
            f"{lbl}_done:", "s_mov_b64 exec, -1", f"{lbl}_ok:"]


QKV_MASK = [f"s_lshl_b32 s40, 0x10101, s{sXCD}", "s_mov_b32 s41, 0"]
CS_MASK = ["s_mov_b32 s40, 0", f"s_lshl_b32 s41, 0x100, s{sCF}"]
QC_MASK = [f"s_lshl_b32 s40, 0x10101, s{sXCD}", f"s_lshl_b32 s41, 0x100, s{sCF}",
           "v_lshrrev_b32 v6, 5, v0", "v_lshrrev_b32 v6, v6, 32"]
H_MASK = ["s_mov_b32 s40, 0xff000000", "s_mov_b32 s41, 0xff"]


def sig_qkv(lbl):
    return [f"s_cmp_lg_u32 s{sW}, 0", f"s_cbranch_scc1 {lbl}",
            f"s_mov_b32 s{T3}, {SPIN}", f"{lbl}_spin:",
            f"v_readfirstlane_b32 s{T2}, v{POLL}", f"s_cmp_lg_u32 s{T2}, 0", f"s_cbranch_scc1 {lbl}_go",
            "s_sleep 8", "v_mov_b32 v2, 0",
            f"global_load_dword v{POLL}, v2, s[{pDBG}:{pDBG + 1}] sc1", "s_waitcnt vmcnt(0)",
            f"s_sub_u32 s{T3}, s{T3}, 1", f"s_cmp_lg_u32 s{T3}, 0", f"s_cbranch_scc1 {lbl}_spin", f"{lbl}_go:",
            f"s_mul_i32 s{T2}, s{sCB}, 3", f"s_lshr_b32 s{T2}, s{T2}, 1", f"s_and_b32 s{T3}, s{sCB}, 1",
            f"v_add_u32 v2, s{T2}, v0", "v_lshlrev_b32 v2, 8, v2",
            f"v_xor_b32 v3, s{T3}, v0", "v_sub_u32 v3, 2, v3",
            "s_mov_b64 exec, 3", f"buffer_atomic_add v3, v2, {sr(S_WS)}, s{sCNT} offen sc1", "s_mov_b64 exec, -1", f"{lbl}:"]


def sig_one(lbl, idx_instrs, skip_side=False):
    c = [f"s_or_b32 s{T0}, s{sW}, s{sISS}"] if skip_side else [f"s_cmp_lg_u32 s{sW}, 0"]
    return (c + [f"s_cbranch_scc1 {lbl}"] + idx_instrs +
            [f"s_lshl_b32 s{T0}, s{T0}, 8", f"s_add_u32 s{T0}, s{T0}, s{sCNT}", "v_mov_b32 v3, 1", "s_mov_b64 exec, 1",
             f"buffer_atomic_add v3, off, {sr(S_WS)}, s{T0} sc1", "s_mov_b64 exec, -1", f"{lbl}:"])


def kv(i, r=L16):
    return [[f"s_lshl1_add_u32 m0, s{sLW}, {i * 16384}" if i else f"s_lshl_b32 m0, s{sLW}, 1",
             f"s_add_u32 s{T2}, s{sKV}, {i * 8192}",
             f"buffer_load_dwordx4 v{r}, {sr(S_WS)}, s{T2} offen sc1 lds"],
            [f"s_lshl1_add_u32 m0, s{sLW}, {i * 16384 + 1024}", f"s_add_u32 s{T2}, s{sKV}, {i * 8192 + (32 << 16)}",
             f"buffer_load_dwordx4 v{r}, {sr(S_WS)}, s{T2} offen sc1 lds"]]


def q_load():
    return [f"s_lshl_b32 s{T2}, s{tQB}, 13", f"s_add_u32 s{T2}, s{T2}, s{sKV}", f"s_sub_u32 s{T2}, s{T2}, {32 << 16}",
            f"buffer_load_dwordx4 {vr(Q_, 4)}, v{L16}, {sr(S_WS)}, s{T2} offen sc1"]


def p2_init_regs():
    b = [f"v_mov_b64 v[{G_ + i}:{G_ + i + 1}], 0" for i in range(0, 64, 2)]
    return b


def p2_init_v():
    return ([["v_and_b32 v3, 27, v0", "v_cmp_eq_u32 vcc, 16, v3", "v_mov_b32 v4, 0x3f803f80", "v_mov_b32 v5, 0",
              "v_cndmask_b32 v2, v5, v4, vcc", "v_mov_b32 v3, v2"]] +
            [f"v_mov_b64 v[{V_ + i}:{V_ + i + 1}], v[2:3]" for i in range(0, 32, 2)])


def gen_p1(a):
    global NOSTAMP
    a("s_cmp_ge_u32 s2, 256")
    a("s_cbranch_scc1 L_exit")
    stamp(a, 0)
    a(f"s_load_dwordx4 s[{pX}:{pX + 3}], s[0:1], 0")
    a(f"s_load_dwordx4 s[{pG}:{pG + 3}], s[0:1], 32")
    a(f"s_load_dwordx2 s[{pWO}:{pWO + 1}], s[0:1], 16")
    a(f"s_load_dwordx4 s[{pWD}:{pWD + 3}], s[0:1], 48")
    a(f"s_load_dwordx4 s[{pDBG}:{pDBG + 3}], s[0:1], 64")
    a("v_lshrrev_b32 v1, 6, v0")
    a("v_and_b32 v0, 63, v0")
    a(f"v_readfirstlane_b32 s{sW}, v1")
    if "code" in OPT:
        a("s_cmp_ge_u32 s2, 32")
        a("s_cbranch_scc1 L_nocode")
        a("s_getpc_b64 s[40:41]")
        a("L_here:")
        a("v_lshlrev_b32 v2, 13, v1")
        a("v_lshl_add_u32 v2, v0, 7, v2")
        a("v_min_u32 v2, L_end-L_here-4, v2")
        a("v_mov_b32 v3, s41")
        a("v_add_co_u32 v2, vcc, s40, v2")
        a("s_nop 1")
        a("v_addc_co_u32 v3, vcc, 0, v3, vcc")
        a(f"global_load_dword v{STV}, v[2:3], off")
        a("L_nocode:")
    a(f"s_and_b32 s{sXCD}, s2, 7")
    a(f"s_lshr_b32 s{T1}, s2, 3")
    a(f"s_and_b32 s{sRB}, s{sXCD}, 3")
    a(f"s_and_b32 s{T2}, s{T1}, 3")
    a(f"s_lshl2_add_u32 s{sRB}, s{sRB}, s{T2}")
    a(f"s_lshr_b32 s{sCF}, s{sXCD}, 2")
    a(f"s_lshr_b32 s{sISS}, s{T1}, 2")
    a(f"s_lshl3_add_u32 s{sCB}, s{sCF}, s{sISS}")
    a(f"s_lshl1_add_u32 s{sROT}, s{sXCD}, s{sISS}")
    a(f"s_lshl_b32 s{sLW}, s{sW}, 10")
    a(f"s_lshl_b32 s{T2}, s{sW}, 3")
    a(f"s_lshl_b32 s{sXROW}, s{sRB}, 7")
    a(f"s_add_u32 s{sXROW}, s{sXROW}, s{T2}")
    a(f"s_lshl_b32 s{sXROW}, s{sXROW}, 10")
    a(f"s_mul_i32 s{sCQ}, s{sCB}, 3")
    a(f"s_lshr_b32 s{sCQ}, s{sCQ}, 1")
    a(f"s_lshl_b32 s{sCQ}, s{sCQ}, 7")
    a(f"s_mul_i32 s{T3}, s{T2}, 3072")
    a(f"s_add_u32 s{sCQ}, s{sCQ}, s{T3}")
    a("v_lshrrev_b32 v1, 3, v0")
    a("v_and_b32 v2, 7, v0")
    a(f"v_add_u32 v3, s{T2}, v1")
    a("v_bfe_u32 v3, v3, 1, 3")
    a("v_xor_b32 v3, v3, v2")
    a("v_lshlrev_b32 v3, 4, v3")
    a(f"v_lshl_add_u32 v{VXS}, v1, 10, v3")
    a("v_and_b32 v3, 2, v1")
    a("v_lshlrev_b32 v3, 1, v3")
    a("v_xor_b32 v3, v3, v2")
    a("v_lshlrev_b32 v3, 4, v3")
    a("v_mul_u32_u24 v4, 3072, v1")
    a(f"v_add_u32 v{VW0}, v4, v3")
    a(f"s_mov_b32 s{S_X + 2}, 2097152")
    a(f"s_mov_b32 s{S_X + 3}, 0x00020000")
    a(f"s_mov_b32 s{S_W0 + 2}, 1572864")
    a(f"s_mov_b32 s{S_W0 + 3}, 0x00020000")
    a("s_waitcnt lgkmcnt(0)")
    a(f"s_mov_b64 s[{S_X}:{S_X + 1}], s[{pX}:{pX + 1}]")
    a(f"s_mov_b64 s[{S_W0}:{S_W0 + 1}], s[{pWQKV}:{pWQKV + 1}]")
    a(dma(0))
    a("v_mul_u32_u24 v4, 3584, v1")
    a(f"v_add_u32 v{VW1}, v4, v3")
    a("v_xor_b32 v3, 32, v3")
    a(f"v_add_u32 v{VW3}, v4, v3")
    a(f"v_lshlrev_b32 v{L16}, 4, v0")
    a(f"s_and_b32 s{sTT}, s{sW}, 3")
    a(f"s_lshr_b32 s{sHF}, s{sW}, 2")
    a(f"s_mul_i32 s{T3}, s{T2}, 3584")
    a(f"s_sub_u32 s{sCF}, s{sCB}, s{sCF}")
    a(f"s_sub_u32 s{sCF}, s{sCF}, 1")
    a(f"s_lshl_b32 s{sCG}, s{sCF}, 8")
    a(f"s_add_u32 s{sCG}, s{sCG}, s{T3}")
    a(f"s_cmp_eq_u32 s{sISS}, 0")
    a(f"s_cselect_b32 s{sISS}, 1, 0")
    a(f"s_cselect_b32 s{sCG}, {OOB}, s{sCG}")
    a(f"s_mov_b32 s{sCNT}, {WS_CNT}")
    srd(a, S_W1, pG, 1835008)
    srd(a, S_W3, pU, 1835008)
    srd(a, S_WS, pWS, WS_SIZE)
    a(f"s_lshl_b32 s{T0}, s{sW}, 8")
    a(f"s_or_b32 s{T0}, s2, s{T0}")
    a(f"s_cmp_lg_u32 s{T0}, 32")
    a("s_cbranch_scc1 L_nozero")
    a("v_mov_b32 v5, 0")
    a("v_lshlrev_b32 v6, 8, v0")
    a(f"buffer_store_dword v5, v6, {sr(S_WS)}, s{sCNT} offen sc1")
    a("L_nozero:")
    a(dma(1))
    a(f"s_lshl2_add_u32 s{sT}, s{sRB}, s{sTT}")
    a(f"s_mul_i32 s{sG}, s{sCB}, 3")
    a(f"s_lshl1_add_u32 s{sG}, s{sHF}, s{sG}")
    a(f"s_cmp_ge_u32 s{sG}, 32")
    a(f"s_cselect_b32 s{sVAR}, 2, 0")
    a(f"s_add_u32 s{sVAR}, s{sVAR}, s{sHF}")
    a(f"s_lshl_b32 s{sG}, s{sG}, 1")
    a(f"s_lshr_b32 s{T1}, s2, 3")
    a(f"s_and_b32 s{T2}, s{T1}, 3")
    a(f"s_lshl2_add_u32 s{tHEAD}, s{sXCD}, s{T2}")
    a(f"s_lshr_b32 s{tQB}, s{T1}, 2")
    a(f"s_lshl_b32 s{sKV}, s{tHEAD}, 16")
    a(f"s_add_u32 s{sKV}, s{sKV}, s{sLW}")
    a(f"s_add_u32 s{sKV}, s{sKV}, {32 << 16}")
    a("v_and_b32 v1, 31, v0")
    a("v_lshrrev_b32 v2, 5, v0")
    a("v_bfe_u32 v3, v0, 1, 3")
    a("v_xor_b32 v3, v3, v2")
    a("v_lshlrev_b32 v3, 4, v3")
    a("v_lshl_add_u32 v3, v1, 7, v3")
    a(f"s_lshl_b32 s{T0}, s{sTT}, 12")
    a(f"s_add_u32 s{T0}, s{T0}, {AR}")
    a(f"v_add_u32 v{XA}, s{T0}, v3")
    for i in range(1, 4):
        a(f"v_xor_b32 v{XA + i}, {32 * i}, v{XA}")
    a("v_bfe_u32 v3, v0, 2, 2")
    a("v_lshl_add_u32 v4, v2, 3, v3")
    a("v_lshlrev_b32 v4, 7, v4")
    a("v_and_b32 v7, 3, v0")
    a("v_lshl_add_u32 v4, v7, 3, v4")
    a("v_and_b32 v3, 2, v3")
    a("v_bfe_u32 v7, v0, 4, 1")
    a("v_xor_b32 v3, v3, v7")
    a(f"s_and_b32 s{T0}, s{sCB}, 1")
    a(f"s_lshl1_add_u32 s{T0}, s{sHF}, s{T0}")
    for t in range(2):
        a(f"s_and_b32 s{T1}, s{T0}, 1")
        a(f"s_lshl_b32 s{T1}, s{T1}, 1")
        a(f"s_lshr_b32 s{T2}, s{T0}, 1")
        a(f"s_lshl_b32 s{T2}, s{T2}, 13")
        a(f"s_add_u32 s{T2}, s{T2}, {BR}")
        a(f"v_xor_b32 v6, s{T1}, v3")
        a("v_lshl_add_u32 v6, v6, 5, v4")
        a(f"v_add_u32 v{WA1 + t}, s{T2}, v6")
        if t == 0:
            a(f"s_add_u32 s{T0}, s{T0}, 1")
    a(f"v_mul_u32_u24 v6, {BR - AR}, v7")
    a("v_add_u32 v4, v4, v6")
    a(f"s_lshl_b32 s{T0}, s{sHF}, 13")
    a(f"s_add_u32 s{T0}, s{T0}, {AR}")
    a(f"v_add_u32 v4, s{T0}, v4")
    for c in range(4):
        a(f"v_xor_b32 v6, {c}, v3")
        a(f"v_lshl_add_u32 v{WA2 + c}, v6, 5, v4")
    a(f"v_mov_b32 v{MASK}, 0xffff0000")
    a(f"v_mov_b32 v{ONES}, 0x3f803f80")
    a(f"v_mov_b32 v{ONES + 1}, 0x3f803f80")
    for i in range(0, 8, 2):
        a(f"v_mov_b64 v[{CSA + i}:{CSA + i + 1}], 0")
    if "notouch" not in OPT:
        a(f"s_cmp_eq_u32 s{sISS}, 0")
        a("s_cbranch_scc1 L_notouch")
        a(f"s_and_b32 s{T0}, s{sRB}, 3")
        a(f"s_lshl3_add_u32 s{T0}, s{T0}, s{sW}")
        a(f"s_lshl_b32 s{T0}, s{T0}, 2")
        a("v_bfe_u32 v1, v0, 1, 2")
        a(f"v_add_u32 v1, s{T0}, v1")
        a("v_lshrrev_b32 v2, 3, v0")
        a(f"s_add_u32 s{T1}, s{sROT}, 1")
        a(f"v_add_u32 v3, s{T1}, v2")
        a("v_lshl_add_u32 v1, v3, 6, v1")
        a("v_and_b32 v1, 511, v1")
        a("v_mul_u32_u24 v1, 3584, v1")
        a("v_lshl_add_u32 v1, v2, 8, v1")
        a("v_and_b32 v2, 1, v0")
        a("v_lshl_add_u32 v1, v2, 7, v1")
        a(f"s_lshr_b32 s{T0}, s{sXCD}, 2")
        a(f"s_mul_i32 s{T0}, s{T0}, 1792")
        a("s_mov_b64 exec, 0x00ffffffffffffff" if False else "s_mov_b32 exec_hi, 0x00ffffff")
        a(f"buffer_load_dword v2, v1, {sr(S_W1)}, s{T0} offen")
        a(f"buffer_load_dword v3, v1, {sr(S_W3)}, s{T0} offen")
        a("s_mov_b64 exec, -1")
        a("L_notouch:")
    stamp(a, 1)
    for v in range(1, 4):
        a(f"s_cmp_eq_u32 s{sVAR}, {v}")
        a(f"s_cbranch_scc1 L_p1_{v}")
    RS, SD, XOP = 112, 114, 116
    for var in range(4):
        hf, isv = var & 1, var >> 1
        nt = 2 - hf
        a(f"L_p1_{var}:")
        a("s_waitcnt vmcnt(4)")
        a("s_barrier")
        stamp(a, 2)
        a(rd1(0, nt))
        if var == 0:
            a(f"s_lshl_b32 s{T0}, s{sW}, 8")
            a(f"s_or_b32 s{T0}, s2, s{T0}")
            a(f"s_cmp_lg_u32 s{T0}, 32")
            a("s_cbranch_scc1 L_noflag")
            a("v_mov_b32 v5, 0")
            a("v_mov_b32 v6, 1")
            a("s_mov_b64 exec, 1")
            a(f"global_store_dword v5, v6, s[{pDBG}:{pDBG + 1}] sc1")
            a("s_mov_b64 exec, -1")
            a("L_noflag:")
        for h in range(16):
            S = h >> 1
            F = WF + 16 * (h & 1)
            first = h == 0
            big, tn = [], []
            for q in range(2):
                x = XF + 4 * (2 * h + q)
                for t in range(nt):
                    w = F + 8 * q + 4 * t
                    c = "0" if (first and q == 0) else None
                    big.append(mfma(ACC + 16 * t, x, w, c) if isv else mfma(ACC + 16 * t, w, x, c))
            cs = []
            for q in range(2):
                x = XF + 4 * (2 * h + q)
                if hf:
                    for p in range(2):
                        f0 = first and q == 0 and p == 0
                        tn += [tiny(STA, ONES, x + 2 * p, f0), tiny(STB, x + 2 * p, x + 2 * p, f0), "s_nop 0"]
                lb = f"L_cs{var}_{h}_{q}"
                cs += [f"s_cmp_lg_u32 s{sTT}, {(2 * h + q) & 3}", f"s_cbranch_scc1 {lb}"]
                if hf:
                    cs += [tiny(CSA, ONES, F + 8 * q), tiny(CSA + 4, ONES, F + 8 * q + 2)]
                else:
                    cs += [tiny(CSA, ONES, F + 8 * q), tiny(CSA + 4, ONES, F + 8 * q + 4), "s_nop 0",
                           tiny(CSA, ONES, F + 8 * q + 2), tiny(CSA + 4, ONES, F + 8 * q + 6)]
                cs.append(f"{lb}:")
            if h == 15:
                break
            if h & 1:
                a("s_waitcnt vmcnt(4) lgkmcnt(0)")
                a("s_barrier")
                if "p1b" in OPT: stamp(a, 4 + S)
                d = dma(S + 3)[:2]
                if S == 5 and not hf:
                    d = [[f"s_cmp_lg_u32 s{sW}, 0", f"s_cbranch_scc1 L_nofl{var}", "v_mov_b32 v5, 0",
                          f"global_load_dword v{POLL}, v5, s[{pDBG}:{pDBG + 1}] sc1", f"L_nofl{var}:"]] + d
            else:
                a("s_waitcnt lgkmcnt(0)")
                d = dma(S + 2)[2:] if h else dma(2)
            if h == 13:
                d = d + [["v_and_b32 v1, 31, v0", f"s_lshl_b32 s{T2}, s{sTT}, 8", "v_lshlrev_b32 v1, 2, v1", f"v_add_u32 v1, s{T2}, v1",
                          f"s_lshl_b32 s{T3}, s{sTT}, 2", f"v_add_u32 v5, s{T3}, v{L16}", f"v_mov_b32 v{XOP + 3}, 0"]]
                if isv:
                    d = d + [["v_lshrrev_b32 v4, 5, v0", "v_lshlrev_b32 v6, 4, v4", f"v_add_u32 v6, s{T2}, v6",
                              "v_bfe_u32 v7, v0, 4, 1", "v_lshlrev_b32 v7, 16, v7", "v_lshl_add_u32 v7, v4, 8, v7",
                              "v_and_b32 v4, 15, v0", "v_lshl_add_u32 v7, v4, 4, v7"]]
            nxt = rd1(h + 1, nt)
            if hf:
                a(weave(big, nxt) + weave(tn, d) + cs)
            else:
                a(weave(big, nxt + d) + cs)
        a("s_waitcnt lgkmcnt(0)")
        csw = [f"ds_write_b32 v5, v{CSA + 4 * t} offset:{SCR + 1024 * (1 + 2 * hf + t)}" for t in range(nt)]
        if hf:
            a(tn + cs + big[:1])
            a("s_nop 1")
            for i, m in ((1, "0x22222222"), (2, "0x44444444"), (3, "0x88888888")):
                a(f"s_mov_b32 s40, {m}")
                a(f"s_mov_b32 s41, {m}")
                a(f"v_cndmask_b32 v{STB}, v{STB}, v{STB + i}, s[40:41]")
            a(f"v_mov_b32 v{STB + 1}, v{STB}")
            a(f"v_add_f32 v{CSA}, v{CSA}, v{CSA + 4}")
            a(csw)
            a(f"v_permlane32_swap_b32 v{STA}, v{STA + 1}")
            a(f"v_permlane32_swap_b32 v{STB}, v{STB + 1}")
            a(f"v_add_f32 v2, v{STA}, v{STA + 1}")
            a(f"v_add_f32 v3, v{STB}, v{STB + 1}")
            a(f"v_mul_f32 v2, {hx(f2u(-1.0 / 512))}, v2")
            a(f"v_mul_f32 v3, {hx(f2u(1.0 / 512))}, v3")
            a("v_fma_f32 v3, -v2, v2, v3")
            a("v_max_f32 v3, 0, v3")
            a("v_cvt_pk_bf16_f32 v3, v3, v3")
            a(f"v_and_b32 v3, v{MASK}, v3")
            a(f"v_add_f32 v3, {hx(f2u(1e-5))}, v3")
            a("v_cvt_pk_bf16_f32 v3, v3, v3")
            a(f"v_and_b32 v3, v{MASK}, v3")
            a("v_sqrt_f32 v3, v3")
            a("s_nop 0")
            a(f"v_cvt_pk_bf16_f32 v{STV}, v3, v2")
            a(f"v_lshlrev_b32 v{SD}, 16, v{STV}")
            a(f"v_rcp_f32 v{RS}, v{SD}")
            a(f"ds_write_b32 v1, v{STV} offset:{SCR}")
            a(f"ds_write_b32 v1, v{RS} offset:{SCR + 128}")
            a(big[1:])
        else:
            a(cs + big)
            a("s_nop 0")
            a(csw)
        a("s_waitcnt vmcnt(4) lgkmcnt(0)")
        a("s_barrier")
        stamp(a, 3)
        RSV = WF + 16
        cop = [STA, STB]
        for t in range(nt):
            a(f"ds_read_b128 {vr(CSA + 4 * t, 4)}, v{L16} offset:{SCR + 1024 * (1 + 2 * hf + t)}")
        if not hf:
            a(f"ds_read_b32 v{STV}, v1 offset:{SCR}")
            a(f"ds_read_b32 v{RS}, v1 offset:{SCR + 128}")
        if isv:
            for g in range(4):
                a(f"ds_read_b128 {vr(RSV + 4 * g, 4)}, v6 offset:{SCR + 128 + g * 32}")
        a(f"s_lshl_b32 s{T3}, s{sG}, 16")
        a(f"s_lshl_b32 s{T2}, s{sT}, 10")
        a(f"s_add_u32 s{T3}, s{T3}, s{T2}")
        a(f"s_waitcnt lgkmcnt({4 if isv else 0})")
        a(f"v_and_b32 v{XOP}, v{MASK}, v{STV}")
        a(f"v_mov_b32 v{XOP + 1}, v{XOP}")
        a(f"v_mov_b32 v{XOP + 2}, v{XOP}")
        for t in range(nt):
            w = CSA + 4 * t
            a(f"v_add_f32 v{w}, v{w}, v{w + 1}")
            a(f"v_add_f32 v{w + 2}, v{w + 2}, v{w + 3}")
            a(f"v_add_f32 v{w}, v{w}, v{w + 2}")
            a(split3(cop[t], w))
            a("s_nop 1")
            a(mfma(ACC + 16 * t, XOP, cop[t]) if isv else mfma(ACC + 16 * t, cop[t], XOP))
        a(rd2(0))
        if nt == 1:
            a("s_nop 3")
        if isv:
            a("s_waitcnt lgkmcnt(8)")
        for t in range(nt):
            ac = ACC + 16 * t
            o = 120 if t == 0 else 96
            if isv:
                for i in range(8):
                    a(f"v_pk_mul_f32 {vr(ac + 2 * i, 2)}, {vr(ac + 2 * i, 2)}, {vr(RSV + 2 * i, 2)}")
            else:
                a(f"s_cmp_lt_u32 s{sG}, {32 - 2 * t}")
                a(f"s_cselect_b32 s{T0}, {hx(f2u(QSCALE))}, 1.0")
                a(f"v_mul_f32 v2, s{T0}, v{RS}")
                a(f"v_mul_f32 v3, s{T0}, v{RS}")
                for i in range(8):
                    a(f"v_pk_mul_f32 {vr(ac + 2 * i, 2)}, {vr(ac + 2 * i, 2)}, v[2:3]")
            for i in range(8):
                a(f"v_cvt_pk_bf16_f32 v{o + i}, v{ac + 2 * i}, v{ac + 2 * i + 1}")
        a(dma(10))
        for t in range(nt):
            o = 120 if t == 0 else 96
            if isv:
                a(f"buffer_store_dwordx4 {vr(o, 4)}, v7, {sr(S_WS)}, s{T3} offen sc1")
                a(f"buffer_store_dwordx4 {vr(o + 4, 4)}, v7, {sr(S_WS)}, s{T3} offen offset:512 sc1")
                if t + 1 < nt:
                    a(f"s_add_u32 s{T3}, s{T3}, 0x20000")
            else:
                a(f"buffer_store_dwordx4 {vr(o, 4)}, v{L16}, {sr(S_WS)}, s{T3} offen sc1")
                a(f"s_add_u32 s{T3}, s{T3}, 0x10000")
                a(f"buffer_store_dwordx4 {vr(o + 4, 4)}, v{L16}, {sr(S_WS)}, s{T3} offen sc1")
                if t + 1 < nt:
                    a(f"s_add_u32 s{T3}, s{T3}, 0x10000")
        if var != 3:
            a("s_branch L_pass2")
    a("L_pass2:")
    if "p1b" in OPT: NOSTAMP = True
    stamp(a, 4)
    a(f"s_cmp_eq_u32 s{sISS}, 1")
    a("s_cbranch_scc1 L_side")
    CO = O_
    sU = sVAR
    a(f"s_and_b32 s{sU}, s{sRB}, 3")
    a(f"s_lshr_b32 s40, s{sRB}, 2")
    a(f"s_lshl2_add_u32 s{sU}, s{sU}, s40")
    CSS, RU = 4096, 136
    w1 = []
    for i in range(4):
        w1 += [f"v_lshlrev_b32 v{RU + 2 * i}, 16, v{8 + i}", f"v_and_b32 v{RU + 2 * i + 1}, v{MASK}, v{8 + i}"]
    for i in range(4):
        w1 += [f"v_lshlrev_b32 v14, 16, v{128 + i}", f"v_and_b32 v15, v{MASK}, v{128 + i}",
               f"v_add_f32 v{RU + 2 * i}, v{RU + 2 * i}, v14", f"v_add_f32 v{RU + 2 * i + 1}, v{RU + 2 * i + 1}, v15"]
    w1 += ["v_and_b32 v14, 8, v0", "v_cmp_eq_u32 vcc, 0, v14"]
    w1 += [f"v_permlane16_swap_b32 v{RU + 2 * i}, v{RU + 2 * i + 1}" for i in range(4)]
    w1 += [f"v_add_f32 v{RU + 2 * i}, v{RU + 2 * i}, v{RU + 2 * i + 1}" for i in range(4)]
    w1 += ["v_and_b32 v15, 7, v0", "v_lshlrev_b32 v15, 3, v15",
           f"v_permlane32_swap_b32 v{RU}, v{RU + 2}", f"v_permlane32_swap_b32 v{RU + 4}, v{RU + 6}",
           f"v_add_f32 v{RU}, v{RU}, v{RU + 2}", f"v_add_f32 v{RU + 4}, v{RU + 4}, v{RU + 6}",
           "v_lshrrev_b32 v16, 4, v0", "v_add_u32 v15, v15, v16",
           f"v_add_f32_dpp v{RU}, v{RU}, v{RU} row_ror:8 row_mask:0xf bank_mask:0xf",
           f"v_add_f32_dpp v{RU + 4}, v{RU + 4}, v{RU + 4} row_ror:8 row_mask:0xf bank_mask:0xf",
           "v_lshrrev_b32 v14, 1, v14", "v_add_u32 v15, v15, v14", "v_lshlrev_b32 v15, 2, v15",
           [f"s_lshl_b32 s40, s{sW}, 8", "v_add_u32 v15, s40, v15"],
           f"v_cndmask_b32 v14, v{RU + 4}, v{RU}, vcc",
           f"ds_write_b32 v15, v14 offset:{CSS}", "v_lshlrev_b32 v16, 2, v0"]
    q4 = -(-(len(w1) - 8) // 5)
    csv = {0: [[f"s_lshr_b32 s40, s{sU}, 3", f"s_mul_i32 s41, s40, {BR - AR}", "s_lshl_b32 s40, s40, 1"],
               "v_lshrrev_b32 v14, 3, v0", "v_and_b32 v15, 2, v14", "v_lshlrev_b32 v15, 1, v15", "v_xor_b32 v15, s40, v15",
               "v_and_b32 v16, 7, v0", "v_xor_b32 v15, v15, v16", "v_lshlrev_b32 v15, 4, v15", "v_lshl_add_u32 v15, v14, 7, v15",
               [f"s_bfe_u32 s40, s{sU}, 0x10002", "s_lshl_b32 s40, s40, 13", "s_add_u32 s41, s41, s40",
                f"s_add_u32 s41, s41, s{sLW}", f"s_add_u32 s41, s41, {AR}", "v_add_u32 v17, s41, v15"]],
           1: [f"ds_read_b128 v[8:11], v17 offset:{2 * SL}"],
           5: ["ds_read_b128 v[128:131], v17"],
           4: w1[:8], 6: w1[8:8 + q4], 7: w1[8 + q4:8 + 2 * q4], 8: w1[8 + 2 * q4:8 + 3 * q4],
           9: w1[8 + 3 * q4:8 + 4 * q4], 10: w1[8 + 4 * q4:],
           12: [f"ds_read2st64_b32 {vr(RU + 2 * i, 2)}, v16 offset0:{CSS // 256 + 2 * i} offset1:{CSS // 256 + 2 * i + 1}" for i in range(4)],
           13: [f"v_add_f32 v{RU + 2 * i}, v{RU + 2 * i}, v{RU + 2 * i + 1}" for i in range(4)] +
               [f"v_add_f32 v{RU}, v{RU}, v{RU + 2}", f"v_add_f32 v{RU + 4}, v{RU + 4}, v{RU + 6}", f"v_add_f32 v{RU}, v{RU}, v{RU + 4}",
                [f"s_lshr_b32 s40, s{sU}, 3", "s_mul_i32 s40, s40, 28", f"s_bfe_u32 s41, s{sU}, 0x10002", "s_add_u32 s40, s40, s41",
                 f"s_lshl1_add_u32 s40, s{sCF}, s40", f"s_and_b32 s41, s{sU}, 3", "s_lshl2_add_u32 s40, s40, s41",
                 "s_lshl_b32 s40, s40, 8", f"s_add_u32 s40, s40, {WS_CS}", f"s_cmp_eq_u32 s{sW}, 0", f"s_cselect_b32 s40, s40, {OOB}",
                 f"buffer_store_dword v{RU}, v16, {sr(S_WS)}, s40 offen sc1"]]}
    bgq = []
    for k in range(32):
        S, ks = 8 + (k >> 2), k & 3
        F = WF + 16 * (k & 1)
        big = [mfma(ACC + 16 * c, F + 4 * c, XF + 4 * k, "0" if k == 0 else None) for c in range(4)]
        extra = []
        if ks == 3:
            n = {8: 8, 9: 8, 11: 5, 14: 2, 15: 63}.get(S, 4)
            if S in (8, 9):
                a([f"s_cmp_eq_u32 s{sHF}, 0", f"s_cbranch_scc1 L_w{S}", f"s_waitcnt vmcnt({n - 2})", f"L_w{S}:"])
            a(f"s_waitcnt vmcnt({n}) lgkmcnt(0)" if n != 63 else "s_waitcnt lgkmcnt(0)")
            if S == 13: a(poll_check("L_cq", 32))
            if S == 14: a(poll_check("L_cc", 16))
            if S != 15: a("s_barrier")
            if "p2b" in OPT: stamp(a, S - 3)
            if S == 12: bgq += [sig_one("L_scs", [f"s_add_u32 s{T0}, s{sCF}, {C_CS}"]), poll_issue("L_pq", QKV_MASK)]
            if S + 3 < 16: bgq += dma(S + 3)
            if S == 10: bgq = [sig_qkv("L_sq")] + bgq
            if S == 13: bgq += kv(0) + [q_load(), poll_issue("L_pc", CS_MASK)] + kv(1)
            if S == 14:
                bgq += [["v_bfe_u32 v2, v0, 4, 1", "v_mul_u32_u24 v2, 28672, v2", "v_lshrrev_b32 v3, 5, v0",
                         "v_lshl_add_u32 v2, v3, 9, v2", "v_and_b32 v3, 15, v0", "v_lshl_add_u32 v2, v3, 2, v2",
                         f"s_lshl1_add_u32 s{T3}, s{sCF}, s{sHF}", f"s_lshl_b32 s{T3}, s{T3}, 10", f"s_add_u32 s{T3}, s{T3}, {WS_CS}"]]
                for c in range(4):
                    bgq.append([f"buffer_load_dword v{CO + 4 * c + q}, v2, {sr(S_WS)}, s{T3} offen offset:{c * 64 + q * 256} sc1" for q in range(2)])
                bgq += kv(2) + kv(3)
            if S == 15:
                if "prio" in OPT:
                    a("s_setprio 1")
                    a(lead(2))
        else:
            a("s_waitcnt lgkmcnt(0)")
        left = 4 if ks == 3 else 3 - ks
        if S == 15 and ks == 3: left = 1
        take = -(-len(bgq) // left)
        extra, bgq = bgq[:take], bgq[take:]
        val = []
        if 16 <= k < 24: val = p2_init_regs()[4 * (k - 16):4 * (k - 15)]
        if k in (24, 25, 26): val = p2_init_v()[[0, 5, 11][k - 24]:[5, 11, 17][k - 24]]
        if k in csv: val = csv[k]
        nxt = rd2(k + 1) if k < 31 else []
        body = weave(big[:3], nxt) + [big[3]]
        res, idx = [], 0
        ex_at = extra + val
        if "a_val" in OPT: ex_at = extra
        if "a_vm" in OPT:
            ex_at = [[x for x in ([at] if isinstance(at, str) else at) if not (x.startswith("buffer_") and ("sc1" in x or "s[4:7]" in x) and "atomic" not in x and "s62" not in x)] for at in ex_at]
        if "a_dma" in OPT:
            ex_at = [[x for x in ([at] if isinstance(at, str) else at) if not (x.startswith("buffer_") and "atomic" not in x and "s62" not in x)] for at in ex_at]
        per = -(-len(ex_at) // 4) if ex_at else 0
        segs, cur = [], []
        for ins in body:
            if ins.startswith("v_mfma") and cur:
                segs.append(cur); cur = []
            cur.append(ins)
        segs.append(cur)
        for sg in segs:
            res += sg
            for at in ex_at[idx:idx + per]:
                res += [at] if isinstance(at, str) else at
            idx += per
        a(res)
    assert not bgq
    if "p2b" in OPT: NOSTAMP = True
    stamp(a, 5)
    RS, SD, XOP = 240, 242, 244
    a(f"v_lshlrev_b32 v{SD}, 16, v{STV}")
    a(f"v_rcp_f32 v{RS}, v{SD}")
    a(f"v_and_b32 v{XOP}, v{MASK}, v{STV}")
    a(f"v_mov_b32 v{XOP + 1}, v{XOP}")
    a(f"v_mov_b32 v{XOP + 2}, v{XOP}")
    a(f"v_mov_b32 v{XOP + 3}, 0")
    a(f"s_mul_i32 s{T3}, s{sT}, 112")
    a(f"s_lshl1_add_u32 s{T0}, s{sCF}, s{sHF}")
    a(f"s_lshl2_add_u32 s{T3}, s{T0}, s{T3}")
    a(f"s_lshl_b32 s{T3}, s{T3}, 10")
    a(f"s_add_u32 s{T3}, s{T3}, {WS_H}")
    a(f"v_mov_b32 v248, {hx(f2u(GC2))}")
    a("v_mov_b32 v249, v248")
    a(f"v_mov_b32 v250, {hx(f2u(GC1))}")
    a("v_mov_b32 v251, v250")
    a(f"v_mov_b32 v{RS + 1}, v{RS}")
    a(f"v_mov_b32 v{SD + 1}, v{SD}")
    a("s_waitcnt vmcnt(4)")
    for c in range(4):
        w = CO + 4 * c
        a(f"v_add_f32 v{w + 3}, v{w}, v{w + 1}")
        a(split3(w, w + 3))
        a("s_nop 1")
        a(mfma(ACC + 16 * c, w, XOP))
    for c in range(4):
        g = ACC + 16 * c
        u = g + 8
        q = 32 + (c & 1) * 8
        o = 48 + c * 4
        for i in range(4):
            a(f"v_pk_mul_f32 {vr(g + 2 * i, 2)}, {vr(g + 2 * i, 2)}, {vr(RS, 2)}")
        for i in range(4):
            a(f"v_pk_mul_f32 {vr(q + 2 * i, 2)}, {vr(g + 2 * i, 2)}, {vr(g + 2 * i, 2)}")
        for i in range(4):
            a(f"v_pk_fma_f32 {vr(q + 2 * i, 2)}, {vr(q + 2 * i, 2)}, v[248:249], v[250:251]")
        for i in range(4):
            a(f"v_pk_mul_f32 {vr(q + 2 * i, 2)}, {vr(q + 2 * i, 2)}, {vr(g + 2 * i, 2)}")
        for i in range(8):
            a(f"v_exp_f32 v{q + i}, v{q + i}")
        for i in range(4):
            a(f"v_pk_mul_f32 {vr(g + 2 * i, 2)}, {vr(g + 2 * i, 2)}, {vr(u + 2 * i, 2)}")
        for i in range(4):
            a(f"v_pk_fma_f32 {vr(q + 2 * i, 2)}, {vr(q + 2 * i, 2)}, {vr(SD, 2)}, {vr(SD, 2)}")
        for i in range(8):
            a(f"v_rcp_f32 v{q + i}, v{q + i}")
        a("s_nop 0")
        for i in range(4):
            a(f"v_pk_mul_f32 {vr(g + 2 * i, 2)}, {vr(g + 2 * i, 2)}, {vr(q + 2 * i, 2)}")
        for i in range(4):
            a(f"v_cvt_pk_bf16_f32 v{o + i}, v{g + 2 * i}, v{g + 2 * i + 1}")
        a(f"buffer_store_dwordx4 {vr(o, 4)}, v{L16}, {sr(S_WS)}, s{T3} offen offset:{c * 1024} sc1")


def gen_side(a):
    a("L_side:")
    global NOSTAMP
    NOSTAMP = "side" not in OPT
    gs = sCQ
    a("s_waitcnt vmcnt(0)")
    a("s_barrier")
    a(sig_qkv("L_sq2"))
    a(f"s_lshl3_add_u32 s{gs}, s2, s{sW}")
    a("v_lshrrev_b32 v1, 3, v0")
    a("v_and_b32 v2, 7, v0")
    a("v_and_b32 v3, 2, v1")
    a("v_xor_b32 v6, v3, v2")
    a("v_lshlrev_b32 v6, 4, v6")
    ASRC = 12
    a(f"v_lshl_add_u32 v{ASRC}, v1, 10, v6")
    a(f"s_mul_i32 s{tVM + 1}, s{sW}, 10240")
    a(f"s_add_u32 s{tVM + 1}, s{tVM + 1}, {AR}")
    a(f"s_mov_b32 s{S_T + 3}, 0x00020000")
    stamp(a, 10)
    for r in range(5):
        a(f"s_add_u32 s{T0}, s{gs}, {256 * r}")
        a(f"s_and_b32 s{T1}, s{T0}, 7")
        a(f"s_lshr_b32 s{T2}, s{T0}, 3")
        a(f"s_cmp_lt_u32 s{T2}, 112")
        a(f"s_cselect_b32 s{S_T}, s{pWD}, s{pWO}")
        a(f"s_cselect_b32 s{S_T + 1}, s{pWD + 1}, s{pWO + 1}")
        a(f"s_mov_b32 s{S_T + 2}, 1835008")
        a(f"s_cselect_b32 s{S_T + 2}, s{S_T + 2}, 524288")
        a(f"s_cselect_b32 s{T3}, 0, 112")
        a(f"s_sub_u32 s{T2}, s{T2}, s{T3}")
        a(f"s_lshl_b32 s{T2}, s{T2}, 14")
        a(f"s_lshl_b32 s{T1}, s{T1}, 7")
        a(f"s_add_u32 s{T2}, s{T2}, s{T1}")
        a(f"s_add_u32 m0, s{tVM + 1}, {r * 2048}")
        a(f"s_add_u32 s{T1}, s{T2}, 8192")
        a(f"buffer_load_dwordx4 v{ASRC}, {sr(S_T)}, s{T2} offen lds")
        a("s_add_u32 m0, m0, 1024")
        a("s_nop 0")
        a(f"buffer_load_dwordx4 v{ASRC}, {sr(S_T)}, s{T1} offen lds")
    a(tr_addr(13, 1, 2))
    a(f"v_add_u32 v13, s{tVM + 1}, v13")
    a("v_xor_b32 v14, 32, v13")
    a(p2_init_regs())
    a(p2_init_v())
    stamp(a, 11)
    a("s_waitcnt vmcnt(0)")
    a(poll_issue("L_pq2", QKV_MASK))
    for r in range(5):
        for ap in range(2):
            for t in range(2):
                a(f"ds_read_b64_tr_b16 {vr(64 + 8 * r + 4 * ap + 2 * t, 2)}, v{13 + ap} offset:{r * 2048 + t * 1024}")
        if r == 2:
            a("s_waitcnt lgkmcnt(4)")
    a("s_waitcnt lgkmcnt(0)")
    for r in range(5):
        a(f"s_add_u32 s{T0}, s{gs}, {256 * r}")
        a(f"s_and_b32 s{T1}, s{T0}, 7")
        a(f"s_lshr_b32 s{T2}, s{T0}, 3")
        a(f"s_mul_i32 s{T1}, s{T1}, 144")
        a(f"s_add_u32 s{T1}, s{T1}, s{T2}")
        a(f"s_lshl_b32 s{T1}, s{T1}, 11")
        a(f"s_add_u32 s{T1}, s{T1}, {WS_WT}")
        if r == 4:
            a(f"s_cmp_lt_u32 s{T0}, 1152")
            a(f"s_cselect_b32 s{T1}, s{T1}, {OOB}")
        a(f"buffer_store_dwordx4 {vr(64 + 8 * r, 4)}, v{L16}, {sr(S_WS)}, s{T1} offen sc1")
        a(f"buffer_store_dwordx4 {vr(64 + 8 * r + 4, 4)}, v{L16}, {sr(S_WS)}, s{T1} offen offset:1024 sc1")
    a("s_waitcnt vmcnt(10)")
    stamp(a, 13)
    a(poll_check("L_cq2", 32))
    a("s_barrier")
    a(q_load())
    for i in range(4):
        a(kv(i))
    a("s_waitcnt vmcnt(6)")
    a("s_barrier")
    a(sig_one("L_h_ns2", [f"s_add_u32 s{T0}, s{sRB}, {C_H}"]))
    if "prio" in OPT:
        a("s_setprio 1")
        a(lead(2))
    a("s_branch L_p2")


def att_step(i, ex=None, first=False):
    ex = ex or {}
    Sc, Sn = (S0, S1) if i % 2 == 0 else (S1, S0)
    Kn = K_ + 4 * ((i + 1) % 2)
    Vc = V_ + 8 * (i % 4)
    Vp = V_ + 8 * ((i - 1) % 4)
    e = lambda k: f"v_exp_f32 v{Sc + k}, v{Sc + k}"
    c = lambda k: f"v_cvt_pk_bf16_f32 v{P_ + k}, v{Sc + 2 * k}, v{Sc + 2 * k + 1}"
    r = [mfma(Sn, Kn, Q_, NM),
         f"ds_read_b128 {vr(Kn, 4)}, v{AK} offset:{(i + 3) * 2048}"]
    r += ex.get("qk", [])
    r += [e(0), e(1), e(2), e(3)]
    if not first:
        r.append(mfma(O_, Vp + 4, P_ + 4))
    if i % 2 == 0:
        r.append(f"s_mov_b64 exec, s[{tVM}:{tVM + 1}]")
        for d in (2, 3):
            vb = V_ + 8 * ((i + d) % 4)
            r.append(f"ds_read_b128 {vr(vb, 4)}, v{AV} offset:{(i + d) * 2048}")
            r.append(f"ds_read_b128 {vr(vb + 4, 4)}, v{AV} offset:{(i + d) * 2048 + 512}")
        r.append("s_mov_b64 exec, -1")
    r += ex.get("pv1", [])
    if "G2" in ex:
        r += [c(0), e(4), e(5), c(1)]
        r += [ex["G1"]] + ex.get("g1", [])
        r += [e(6), e(7), e(8), c(2), c(3), e(9)]
        r += ["s_nop 0", mfma(O_, Vc, P_)]
        if i % 2 == 1: r.append("s_waitcnt lgkmcnt(0)")
        r += ex.get("pv0", [])
        r += [e(10), e(11), c(4), e(12), c(5)]
        r += [ex["G2"]] + ex.get("g2", [])
        r += [e(13), e(14), e(15), c(6), c(7)]
    else:
        r += [c(0), e(4), e(5), c(1), e(6), e(7)]
        if "G1" in ex:
            r += [ex["G1"]]
        r += ex.get("g1", [])
        r += [e(8), c(2), c(3), e(9), e(10), e(11)]
        r.append(mfma(O_, Vc, P_, "0" if first else None))
        if i % 2 == 1: r.append("s_waitcnt lgkmcnt(0)")
        r += ex.get("pv0", [])
        r += [c(4), e(12), e(13), c(5), e(14), e(15), c(6), c(7)]
    r += ex.get("end", [])
    return r


def ring_loads(r):
    b = RING + 16 * r
    return [f"buffer_load_dwordx4 {vr(b, 4)}, v{A16}, {sr(R_H0)}, s{tFH} offen sc1",
            f"buffer_load_dwordx4 {vr(b + 4, 4)}, v{A16}, {sr(R_H1)}, s{tFH} offen sc1",
            f"buffer_load_dwordx4 {vr(b + 8, 4)}, v{A16}, {sr(R_WT)}, s{tFW} offen sc1",
            f"buffer_load_dwordx4 {vr(b + 12, 4)}, v{A16}, {sr(R_WT)}, s{tFW} offen offset:1024 sc1",
            f"s_add_u32 s{tFH}, s{tFH}, 1024",
            f"s_add_u32 s{tFW}, s{tFW}, 2048"]


def gm(r, n):
    b = RING + 16 * r
    return mfma(G_ + 16 * n, b + 8 + 4 * (n & 1), b + 4 * (n >> 1))


_pl = [0]


def lead(p, cond=None):
    if "prio" not in OPT:
        return []
    _pl[0] += 1
    lb = f"L_pr{_pl[0]}"
    c = [f"s_cmp_lt_u32 s{sW}, 4"] if cond is None else cond
    return c + [f"s_cbranch_scc0 {lb}", f"s_setprio {p}", f"{lb}:"]


def adv(a):
    a(f"v_add_u32 v{AK}, 0x4000, v{AK}")
    a(f"v_add_u32 v{AV}, 0x4000, v{AV}")


def gen_p2(a):
    a("L_p2:")
    stamp(a, 6)
    a(f"v_mov_b32 v{A16}, v{L16}")
    a(f"v_mov_b32 v{AK}, v{L16}")
    a("v_lshrrev_b32 v2, 5, v0")
    a("v_and_b32 v3, 15, v0")
    a("v_lshlrev_b32 v3, 4, v3")
    a("v_lshl_add_u32 v3, v2, 8, v3")
    a(f"v_add_u32 v{AV}, 1024, v3")
    a(f"s_mov_b32 s{tVM}, 0x0000ffff")
    a(f"s_mov_b32 s{tVM + 1}, 0x0000ffff")
    a(f"ds_read_b128 {vr(K_, 4)}, v{AK}")
    a(f"ds_read_b128 {vr(K_ + 4, 4)}, v{AK} offset:2048")
    a(f"s_mov_b64 exec, s[{tVM}:{tVM + 1}]")
    for d in range(2):
        a(f"ds_read_b128 {vr(V_ + 8 * d, 4)}, v{AV} offset:{d * 2048}")
        a(f"ds_read_b128 {vr(V_ + 8 * d + 4, 4)}, v{AV} offset:{d * 2048 + 512}")
    a("s_mov_b64 exec, -1")
    a(f"s_lshr_b32 s{T0}, s{sW}, 2")
    a(f"s_lshl1_add_u32 s{tTT}, s{tHEAD}, s{T0}")
    a(f"s_lshl_b32 s{T0}, s{tTT}, 15")
    a(f"s_lshl_b32 s{T1}, s{tQB}, 7")
    a(f"s_add_u32 s{T0}, s{T0}, s{T1}")
    a(f"s_and_b32 s{T1}, s{sW}, 3")
    a(f"s_lshl4_add_u32 s{T0}, s{T1}, s{T0}")
    a("v_and_b32 v1, 31, v0")
    a("v_lshlrev_b32 v1, 10, v1")
    a("v_lshl_add_u32 v1, v2, 6, v1")
    a(f"v_add_u32 v{AOUT}, s{T0}, v1")
    a("s_waitcnt lgkmcnt(4)")
    a(mfma(S0, K_, Q_, "0"))
    a(mfma(S1, K_ + 4, Q_, "0"))
    a(f"s_mul_i32 s{T0}, s{tHEAD}, {224 * 1024}")
    a(f"s_add_u32 s{T0}, s{T0}, {WS_H}")
    a(f"s_add_u32 s{R_H0}, s{pWS}, s{T0}")
    a(f"s_addc_u32 s{R_H0 + 1}, s{pWS + 1}, 0")
    a(f"s_add_u32 s{R_H1}, s{R_H0}, {112 * 1024}")
    a(f"s_addc_u32 s{R_H1 + 1}, s{R_H0 + 1}, 0")
    a(f"s_mul_i32 s{tFH}, s{sW}, {14 * 1024}")
    a(f"s_add_u32 s{R_H0 + 2}, s{tFH}, {14 * 1024}")
    a(f"s_mov_b32 s{R_H1 + 2}, s{R_H0 + 2}")
    a(f"s_mul_i32 s{T0}, s{tQB}, {144 * 2048}")
    a(f"s_add_u32 s{T0}, s{T0}, {WS_WT}")
    a(f"s_add_u32 s{R_WT}, s{pWS}, s{T0}")
    a(f"s_addc_u32 s{R_WT + 1}, s{pWS + 1}, 0")
    a(f"s_lshl_b32 s{tFW}, s{tFH}, 1")
    a(f"s_lshl_b32 s{R_WT + 2}, s{R_H0 + 2}, 1")
    a(f"v_max3_f32 v1, v{S0}, v{S0 + 1}, v{S0 + 2}")
    for i in range(3, 31, 2):
        a(f"v_max3_f32 v1, v1, v{S0 + i}, v{S0 + i + 1}")
    a(f"v_max_f32 v1, v1, v{S0 + 31}")
    a("v_mov_b32 v2, v1")
    a("s_nop 1")
    a("v_permlane32_swap_b32 v1, v2")
    a("v_max_f32 v1, v1, v2")
    a(f"v_sub_f32 v2, {hx(f2u(-MAXOFF))}, v1")
    a("v_mov_b32 v3, v2")
    for i in range(0, 16, 2):
        a(f"v_mov_b64 v[{NM + i}:{NM + i + 1}], v[2:3]")
    a("s_nop 1")
    a(mfma(S0, K_, Q_, NM))
    a(f"ds_read_b128 {vr(K_, 4)}, v{AK} offset:4096")
    srd(a, R_OUT, pOUT, 2097152)
    a(f"s_lshl_b32 s{T0}, s{sW}, 11")
    a(f"v_add_u32 v{AW}, s{T0}, v{A16}")
    a(f"v_add_u32 v{AW + 1}, 0x10000, v{AW}")
    a(f"v_add_u32 v{AW + 2}, 0x20000, v{AW}")
    a("s_waitcnt lgkmcnt(0)")
    a("s_nop 1")
    stamp(a, 7)
    global NOSTAMP
    if "side" in OPT: NOSTAMP = True
    for i in range(8):
        ex = {}
        if i == 4:
            ex["end"] = ["s_waitcnt vmcnt(0)", "s_barrier"] + sig_one("L_h_ns", [f"s_add_u32 s{T0}, s{sRB}, {C_H}"], True) + lead(2)
        if i == 3:
            ex["pv0"] = lead(0)
        if i >= 5:
            ex["pv1"], ex["pv0"] = kv(i - 1, A16)
        a(att_step(i, ex, first=(i == 0)))
    adv(a)
    for i in range(8):
        ex = {}
        if i == 0:
            ex["pv1"], ex["pv0"] = kv(7, A16)
        if i == 3:
            ex["pv0"] = poll_issue("L_h_np", H_MASK, 7) + lead(0)
        if i == 4:
            ex["end"] = ["s_waitcnt vmcnt(0)"] + poll_check("L_ch", 16, 7, 16) + ["s_barrier"] + lead(2)
        if i in (5, 6, 7):
            l = ring_loads(i - 5)
            ex["qk"] = l[0:1]
            ex["pv1"] = l[1:3]
            ex["pv0"] = l[3:6]
        a(att_step(i, ex))
    stamp(a, 8)
    a(f"s_mov_b32 s{tIT}, 5")
    a(f"s_lshr_b32 s{sG}, s{sW}, 2")
    a(f"s_lshl_b32 s{sG}, s{sG}, 4")
    a(f"s_add_u32 s{sG}, s{sG}, 1")
    a("L_loop:")
    adv(a)
    plan = [[(0, 0)], [(0, 1), (0, 2)], [(0, 3)], [(1, 0), (1, 1)], [(1, 2)], [(1, 3), (2, 0)], [(2, 1)], [(2, 2), (2, 3)]]
    for i in range(8):
        ex = {}
        ex["G1"] = gm(*plan[i][0])
        if len(plan[i]) > 1:
            ex["G2"] = gm(*plan[i][1])
        if i == 0: ex["qk"] = ["s_waitcnt vmcnt(8)"]
        if i == 0: ex["pv0"] = lead(0, [f"s_cmp_eq_u32 s{tIT}, s{sG}"])
        if i == 2:
            l = ring_loads(0)
            ex["g1"] = l[0:2]
            ex["pv0"] = l[2:6]
        if i == 3: ex["pv1"] = ["s_waitcnt vmcnt(8)"]
        if i == 5:
            l = ring_loads(1)
            ex["g1"] = l[0:2]
            ex["pv0"] = l[2:6] + ["s_waitcnt vmcnt(8)"]
        if i == 7:
            ex["g2"] = ring_loads(2)
        a(att_step(i, ex))
    a(f"s_sub_u32 s{tIT}, s{tIT}, 1")
    a(f"s_cmp_lg_u32 s{tIT}, 0")
    a("s_cbranch_scc1 L_loop")
    adv(a)
    a(f"s_and_b32 s{T0}, s{sW}, 3")
    a(f"s_lshl_b32 s{T0}, s{T0}, 14")
    a(f"s_add_u32 s{T0}, s{T0}, {112 * 2048}")
    a(f"s_mov_b32 s{R_WT + 2}, {144 * 2048}")
    a("s_barrier")
    a(lead(2))

    def pw(o):
        base, off = (AW, o * 16384) if o < 4 else ((AW + 1, (o - 4) * 16384) if o < 6 else (AW + 2, (o - 6) * 16384))
        return [f"ds_write_b128 v{base}, {vr(G_ + 8 * o, 4)} offset:{off}",
                f"ds_write_b128 v{base}, {vr(G_ + 8 * o + 4, 4)} offset:{off + 1024}"]

    def wol(g):
        return [f"buffer_load_dwordx4 {vr(G_ + 16 * g + 4 * q, 4)}, v{A16}, {sr(R_WT)}, s{T0} offen offset:{q * 1024} sc1" for q in range(4)] + \
               [f"s_add_u32 s{T0}, s{T0}, 4096"]
    for i in range(8):
        ex = {}
        if i == 0: ex["qk"], ex["pv0"] = [f"buffer_load_dwordx4 {vr(RING, 4)}, v{AOUT}, {sr(S_X)}, 0 offen"], pw(0) + pw(1)[:1]
        if i == 1: ex["qk"], ex["pv1"] = pw(1)[1:], pw(2)
        if i == 2: ex["qk"], ex["pv0"] = pw(3)[:1], pw(3)[1:] + pw(4)
        if i == 3: ex["qk"], ex["pv1"] = pw(5)[:1], pw(5)[1:] + pw(6)[:1]
        if i == 4: ex["qk"], ex["pv0"], ex["g1"] = pw(6)[1:], pw(7), wol(0)[:2]
        if i == 5: ex["qk"], ex["pv1"], ex["pv0"] = wol(0)[2:3], wol(0)[3:] + wol(1)[:1], wol(1)[1:3]
        if i == 6: ex["qk"], ex["g1"], ex["pv0"] = wol(1)[3:], wol(2)[:2], wol(2)[2:] + lead(0)
        if i == 7: ex["qk"], ex["pv1"], ex["pv0"] = wol(3)[:1], wol(3)[1:3], wol(3)[3:]
        a(att_step(i, ex))
    a("s_nop 1")
    a(mfma(O_, V_ + 24 + 4, P_ + 4))
    a(f"s_lshl_b32 s{T0}, s{tQB}, 3")
    a(f"s_add_u32 s{T0}, s{T0}, s{sW}")
    a(f"s_lshl_b32 s{T0}, s{T0}, 5")
    a(f"s_add_u32 s{T0}, s{T0}, s{tHEAD}")
    a(f"s_lshl_b32 s{T0}, s{T0}, 10")
    a(f"s_add_u32 s{T3}, s{T0}, {WS_O}")
    a(f"v_mov_b32 v2, {hx(f2u(2.0 ** 120))}")
    a(f"v_mov_b32 v3, {hx(f2u(2.0 ** -90))}")
    a("s_waitcnt lgkmcnt(0)")
    a("s_nop 3")
    stamp(a, 9)
    a(f"v_add_f32 v1, |v{O_}|, |v{O_ + 1}|")
    for i in range(2, 8):
        a(f"v_add_f32 v1, v1, |v{O_ + i}|")
    a(f"v_cmp_lt_f32 s[40:41], v{O_ + 8}, v2")
    a("v_cmp_lt_f32 s[42:43], v1, v2")
    a(f"v_cmp_le_f32 s[50:51], 0.5, v{O_ + 8}")
    a("v_cmp_le_f32 vcc, v3, v1")
    a("s_or_b64 s[50:51], s[50:51], vcc")
    a("s_and_b64 s[40:41], s[40:41], s[42:43]")
    a("s_and_b64 s[40:41], s[40:41], s[50:51]")
    a("s_cmp_eq_u64 s[40:41], -1")
    a("s_cbranch_scc0 L_fallback")
    a("L_norm:")
    a(f"v_rcp_f32 v2, v{O_ + 8}")
    a("s_nop 0")
    for i in range(8):
        a(f"v_mul_f32 v{O_ + i}, v{O_ + i}, v2")
    for i in range(4):
        a(f"v_cvt_pk_bf16_f32 v{4 + i}, v{O_ + 2 * i}, v{O_ + 2 * i + 1}")
    a(f"buffer_store_dwordx4 v[4:7], v{A16}, {sr(S_WS)}, s{T3} offen sc1")
    a(f"s_lshl_b32 s{T0}, s{sW}, 14")
    a(f"s_add_u32 s{T1}, s{T0}, 0x8000")
    a(f"s_cmp_lt_u32 s{sW}, 6")
    a(f"s_cselect_b32 s{T0}, s{T0}, s{T1}")
    a(f"v_add_u32 v3, s{T0}, v{A16}")
    a("s_waitcnt vmcnt(0)")
    a("s_barrier")
    stamp(a, 10)
    a(f"s_cmp_lg_u32 s{sW}, 0")
    a("s_cbranch_scc1 L_o_ns")
    a(f"s_lshl_b32 s{T0}, s{tQB}, 8")
    a(f"s_add_u32 s{T0}, s{T0}, {WS_CNT + C_O * 256}")
    a("v_mov_b32 v1, 1")
    a("s_mov_b64 exec, 1")
    a(f"buffer_atomic_add v1, off, {sr(S_WS)}, s{T0} sc1")
    a("s_mov_b64 exec, -1")
    a("L_o_ns:")
    F_ = 8
    for s in range(8):
        for i in range(2):
            a(f"ds_read_b128 {vr(F_ + 8 * s + 4 * i, 4)}, v3 offset:{(s * 2 + i) * 1024}")
        if s == 6:
            a("s_waitcnt lgkmcnt(10)")
    for s in range(1, 8):
        a(f"s_waitcnt lgkmcnt({2 * (7 - s)})")
        for i in range(4):
            a(f"v_pk_add_f32 {vr(F_ + 2 * i, 2)}, {vr(F_ + 2 * i, 2)}, {vr(F_ + 8 * s + 2 * i, 2)}")
    T_ = F_ + 8
    a(f"v_mov_b32 v4, {hx(f2u(-LOG2E))}")
    for i in range(8):
        a(f"v_mul_f32 v{T_ + i}, v{F_ + i}, v4")
    for i in range(8):
        a(f"v_exp_f32 v{T_ + i}, v{T_ + i}")
    a("s_nop 0")
    for i in range(8):
        a(f"v_add_f32 v{T_ + i}, 1.0, v{T_ + i}")
    for i in range(8):
        a(f"v_rcp_f32 v{T_ + i}, v{T_ + i}")
    a("s_nop 0")
    for i in range(4):
        a(f"v_pk_mul_f32 {vr(F_ + 2 * i, 2)}, {vr(F_ + 2 * i, 2)}, {vr(T_ + 2 * i, 2)}")
    XU = 24
    for i in range(4):
        a(f"v_lshlrev_b32 v{XU + 2 * i}, 16, v{RING + i}")
        a(f"v_and_b32 v{XU + 2 * i + 1}, 0xffff0000, v{RING + i}")
    a(f"s_lshr_b32 s{T0}, s{sW}, 2")
    a(f"s_lshl_b32 s{T0}, s{T0}, 15")
    a(f"s_and_b32 s{T1}, s{sW}, 3")
    a(f"s_lshl_b32 s{T2}, s{T1}, 11")
    a(f"s_add_u32 s{T0}, s{T0}, s{T2}")
    a(f"v_add_u32 v1, s{T0}, v{A16}")
    a(f"s_lshl_b32 s{T0}, s{sW}, 13")
    a(f"v_add_u32 v3, s{T0}, v{A16}")
    a(f"s_lshl_b32 s{T0}, s{tTT}, 5")
    a(f"s_lshl_b32 s{T1}, s{T1}, 3")
    a(f"s_add_u32 s{T0}, s{T0}, s{T1}")
    a(f"s_lshl_b32 s{T0}, s{T0}, 10")
    a(f"s_add_u32 s{T2}, s{T0}, {WS_O}")
    a(f"s_add_u32 s{T3}, s{T2}, 4096")
    stamp(a, 11)
    a(f"s_cmp_lg_u32 s{sW}, 0")
    a("s_cbranch_scc1 L_o_ok")
    a(f"s_lshl_b32 s{T0}, s{sXCD}, 8")
    a(f"s_add_u32 s{T0}, s{T0}, {WS_CNT + C_O * 256}")
    a(f"s_mov_b32 s{T1}, {SPIN}")
    a("L_o_poll:")
    a(f"buffer_load_dword v4, off, {sr(S_WS)}, s{T0} sc1")
    a("s_waitcnt vmcnt(0)")
    a("v_readfirstlane_b32 s40, v4")
    a("s_cmp_ge_u32 s40, 32")
    a("s_cbranch_scc1 L_o_ok")
    a(f"s_sub_u32 s{T1}, s{T1}, 1")
    a(f"s_cmp_lg_u32 s{T1}, 0")
    a("s_cbranch_scc1 L_o_poll")
    a("L_o_ok:")
    a("s_barrier")
    stamp(a, 12)
    OF = RING + 8
    SA = V_
    for j in range(8):
        so = T2 if j < 4 else T3
        a(f"buffer_load_dwordx4 {vr(OF + 4 * j, 4)}, v{A16}, {sr(S_WS)}, s{so} offen offset:{(j % 4) * 1024} sc1")
    for j in range(8):
        a(f"s_waitcnt vmcnt({7 - j})")
        for ap in range(2):
            a(mfma(SA + 16 * ap, G_ + 8 * j + 4 * ap, OF + 4 * j, "0" if j == 0 else None))
    stamp(a, 13)
    a("s_nop 11")
    for o in range(4):
        for i in range(2):
            a(f"ds_write_b128 v1, {vr(SA + 8 * o + 4 * i, 4)} offset:{o * 8192 + i * 1024}")
    a("s_waitcnt lgkmcnt(0)")
    a("s_barrier")
    for s in range(4):
        for i in range(2):
            a(f"ds_read_b128 {vr(SA + 8 * s + 4 * i, 4)}, v3 offset:{(s * 2 + i) * 1024}")
    for s in range(1, 4):
        a(f"s_waitcnt lgkmcnt({2 * (3 - s)})")
        for i in range(4):
            a(f"v_pk_add_f32 {vr(SA + 2 * i, 2)}, {vr(SA + 2 * i, 2)}, {vr(SA + 8 * s + 2 * i, 2)}")
    for i in range(4):
        a(f"v_pk_fma_f32 {vr(XU + 2 * i, 2)}, {vr(SA + 2 * i, 2)}, {vr(F_ + 2 * i, 2)}, {vr(XU + 2 * i, 2)}")
    for i in range(4):
        a(f"v_cvt_pk_bf16_f32 v{4 + i}, v{XU + 2 * i}, v{XU + 2 * i + 1}")
    fl = " sc1" if "osc1" in OPT else (" nt" if "ont" in OPT else (" sc0 sc1" if "osc01" in OPT else ""))
    a(f"buffer_store_dwordx4 v[4:7], v{AOUT}, {sr(R_OUT)}, 0 offen{fl}")
    stamp(a, 14)
    stamp_flush(a)
    a("L_exit:")
    a("s_endpgm")
    a("L_fallback:")
    a(f"s_lshl_b32 s{T0}, s{tHEAD}, 16")
    a(f"s_add_u32 s{T0}, s{T0}, {32 << 16}")
    a(f"s_mov_b32 s{T1}, 0")
    a("v_mov_b32 v1, 0xff800000")
    a("L_fb1:")
    a(f"s_add_u32 s{T2}, s{T0}, s{T1}")
    a(f"buffer_load_dwordx4 {vr(K_, 4)}, v{A16}, {sr(S_WS)}, s{T2} offen sc1")
    a("s_waitcnt vmcnt(0)")
    a(mfma(S0, K_, Q_, "0"))
    a("s_nop 15")
    for i in range(0, 16, 2):
        a(f"v_max3_f32 v1, v1, v{S0 + i}, v{S0 + i + 1}")
    a(f"s_add_u32 s{T1}, s{T1}, 1024")
    a(f"s_cmp_lt_u32 s{T1}, 65536")
    a("s_cbranch_scc1 L_fb1")
    a("v_mov_b32 v2, v1")
    a("s_nop 1")
    a("v_permlane32_swap_b32 v1, v2")
    a("v_max_f32 v1, v1, v2")
    a("v_sub_f32 v1, 0, v1")
    for i in range(16):
        a(f"v_mov_b32 v{NM + i}, v1")
    for i in range(16):
        a(f"v_mov_b32 v{O_ + i}, 0")
    a("v_lshrrev_b32 v2, 5, v0")
    a("v_and_b32 v3, 15, v0")
    a("v_lshlrev_b32 v3, 4, v3")
    a("v_lshl_add_u32 v3, v2, 8, v3")
    a(f"s_mov_b32 s{T1}, 0")
    a("L_fb2:")
    a(f"s_add_u32 s{T2}, s{T0}, s{T1}")
    a(f"buffer_load_dwordx4 {vr(K_, 4)}, v{A16}, {sr(S_WS)}, s{T2} offen sc1")
    a(f"s_add_u32 s{T2}, s{T2}, {32 << 16}")
    a(f"s_mov_b64 exec, s[{tVM}:{tVM + 1}]")
    a(f"buffer_load_dwordx4 {vr(V_, 4)}, v3, {sr(S_WS)}, s{T2} offen sc1")
    a(f"buffer_load_dwordx4 {vr(V_ + 4, 4)}, v3, {sr(S_WS)}, s{T2} offen offset:512 sc1")
    a("s_mov_b64 exec, -1")
    a("s_waitcnt vmcnt(0)")
    a(mfma(S0, K_, Q_, NM))
    a("s_nop 15")
    for i in range(16):
        a(f"v_exp_f32 v{S0 + i}, v{S0 + i}")
    a("s_nop 0")
    for i in range(8):
        a(f"v_cvt_pk_bf16_f32 v{P_ + i}, v{S0 + 2 * i}, v{S0 + 2 * i + 1}")
    a("s_nop 1")
    a(mfma(O_, V_, P_))
    a(mfma(O_, V_ + 4, P_ + 4))
    a(f"s_add_u32 s{T1}, s{T1}, 1024")
    a(f"s_cmp_lt_u32 s{T1}, 65536")
    a("s_cbranch_scc1 L_fb2")
    a("s_nop 15")
    a("s_branch L_norm")


def main(out):
    a = Asm()
    k = NAME + "_kernel"
    hdr = ["; LN + MHA + GEGLU block, one persistent launch; generated by gen3.py (hand-scheduled gfx950 assembly)",
           "; @launch grid=(256,1,1) block=(512,1,1) lds=163840"]
    a('.amdgcn_target "amdgcn-amd-amdhsa--gfx950"')
    a(".text")
    a(f".globl {k}\n.p2align 8\n.type {k},@function\n{k}:")
    gen_p1(a)
    gen_p2(a)
    gen_side(a)
    a("L_end:")
    a('.section .rodata,"a"')
    a(".p2align 6")
    a(f".amdhsa_kernel {k}")
    a(f".amdhsa_next_free_vgpr {NVGPR}")
    a(f".amdhsa_next_free_sgpr {96 if (STAMPS or ENC is not None) else 80}")
    a(f".amdhsa_accum_offset {(NVGPR + 3) // 4 * 4}")
    a(".amdhsa_group_segment_fixed_size 0")
    a(".amdhsa_kernarg_size 80")
    a(".amdhsa_user_sgpr_count 2")
    a(".amdhsa_user_sgpr_kernarg_segment_ptr 1")
    a(".amdhsa_system_sgpr_workgroup_id_x 1")
    a(".end_amdhsa_kernel")
    open(out, "w").write("\n".join(hdr) + "\n" + a.text())


if __name__ == "__main__":
    for x in list(sys.argv):
        if x.startswith("--opt="):
            OPT = set(x[6:].split(","))
            sys.argv.remove(x)
    for x in list(sys.argv):
        if x.startswith("--enc="):
            ENC = int(x[6:])
            sys.argv.remove(x)
    if "--cyc" in sys.argv:
        STAMPS = 2
        sys.argv.remove("--cyc")
    if "--stamps" in sys.argv:
        STAMPS = True
        sys.argv.remove("--stamps")
    main(sys.argv[1] if len(sys.argv) > 1 else f"cdna_kernels/{NAME}.s")
```

```python
import sys, struct, math

NAME = "recurrent_scan__mha_block__glu_gated_geglu__prompt"

WS_QKV = 0
WS_H = 6 << 20
WS_O = 14 << 20
WS_CNT = 16 << 20
WS_STAMP = (16 << 20) + 65536
WS_CS = (16 << 20) + 0x90000
WS_WT = 17 << 20
WS_SIZE = 20 << 20
OOB = 0x7f000000

LOG2E = 1.4426950408889634
QSCALE = 0.25 * LOG2E
GC1 = -2.0 * LOG2E * math.sqrt(2.0 / math.pi)
GC2 = GC1 * 0.044715
MAXOFF = 80.0
SPIN = 0x40000

STAMPS = False
OPT = set()
NOSTAMP = False
ENC = None


def f2u(x):
    return struct.unpack("<I", struct.pack("<f", x))[0]


def hx(x):
    return "0x%08x" % (x & 0xffffffff)


class Asm:
    def __init__(self):
        self.l = []

    def __call__(self, s):
        if isinstance(s, (list, tuple)):
            for x in s:
                self(x)
            return
        for line in s.split("\n"):
            line = line.strip()
            if not line:
                continue
            if line.endswith(":") or line.startswith("."):
                self.l.append(line)
            else:
                self.l.append("    " + line)

    def text(self):
        return "\n".join(self.l) + "\n"


def vr(b, n):
    return f"v[{b}:{b + n - 1}]"


def sr(b):
    return f"s[{b}:{b + 3}]"


def mfma(d, a, b, c=None):
    cs = vr(d, 16) if c is None else (c if isinstance(c, str) else vr(c, 16))
    return f"v_mfma_f32_32x32x16_bf16 {vr(d, 16)}, {vr(a, 4)}, {vr(b, 4)}, {cs}"


def stamp(a, n):
    if ENC is not None:
        if n in (0, ENC) and not NOSTAMP:
            a("s_memrealtime s[76:77]")
            a("s_waitcnt lgkmcnt(0)")
            a(f"s_mov_b32 s{80 if n == 0 else 81}, s76")
            if n == 0:
                a("s_mov_b32 s81, s76")
        return
    if not STAMPS or (NOSTAMP and n != 15) or ("min" in OPT and n not in (0, 15)):
        return
    a("s_memtime s[76:77]" if STAMPS == 2 else "s_memrealtime s[76:77]")
    a("s_waitcnt lgkmcnt(0)")
    a(f"s_mov_b32 s{80 + n}, s76")


def stampl(n):
    t = Asm()
    stamp(t, n)
    return [x.strip() for x in t.l]


def stamp_flush(a):
    if ENC is not None:
        a("s_waitcnt vmcnt(0)")
        a("s_memrealtime s[76:77]")
        a("s_waitcnt lgkmcnt(0)")
        if ENC == 15:
            a("s_mov_b32 s81, s76")
        a("s_sub_u32 s81, s81, s80")
        a("s_mov_b32 s80, s76")
        a("L_enc:")
        a("s_memrealtime s[76:77]")
        a("s_waitcnt lgkmcnt(0)")
        a("s_sub_u32 s76, s76, s80")
        a("s_cmp_lt_u32 s76, s81")
        a("s_cbranch_scc1 L_enc")
        return
    if not STAMPS:
        return
    a("s_waitcnt vmcnt(0)")
    stamp(a, 15)
    a("v_mov_b32 v1, 0")
    for n in range(16):
        a(f"v_writelane_b32 v1, s{80 + n}, {n}")
    a("s_lshl_b32 s76, s2, 3")
    a(f"s_add_u32 s76, s76, s{sW}")
    a("s_lshl_b32 s76, s76, 6")
    a(f"s_add_u32 s76, s76, {WS_STAMP}")
    a("v_lshlrev_b32 v2, 2, v0")
    a("s_mov_b64 exec, 0xffff")
    a(f"buffer_store_dword v1, v2, {sr(S_WS)}, s76 offen")


def srd(a, s, ptr, size):
    a(f"s_mov_b32 s{s}, s{ptr}")
    a(f"s_mov_b32 s{s + 1}, s{ptr + 1}")
    a(f"s_mov_b32 s{s + 2}, {size}")
    a(f"s_mov_b32 s{s + 3}, 0x00020000")


pX, pWQKV, pWO, pG, pU, pWD, pOUT, pDBG, pWS = 56, 58, 60, 64, 66, 68, 70, 72, 74
S_T, S_X, S_W0, S_W1, S_W3, S_WS = 4, 8, 12, 16, 20, 24
R_OUT, R_H0, R_H1, R_WT = 4, 12, 16, 20
sW, sTT, sHF, sRB, sCB, sROT, sISS, sVAR = 28, 29, 30, 31, 32, 33, 34, 35
sCQ, sCG, sXROW, sLW = 36, 37, 42, 43
T0, T1, T2, T3 = 44, 45, 46, 47
sXCD, sT, sG, sKV = 49, 52, 53, 50
tHEAD, tQB, tIT, tFH, tFW, tTT = 38, 39, 33, 36, 37, 48
tVM = 54

AR, BR, SL = 65536, 114688, 16384
SCR = 0
XA, WA1, WA2 = 12, 16, 18
VXS, VW0, VW1, VW3, L16, MASK, ONES, STV, POLL = 22, 23, 24, 25, 26, 27, 28, 30, 31
WF = 32
ACC = 64
STA, STB, CSA = 96, 100, 104
XF = 128
Q_, K_, P_, NM, S0, S1, RING = 8, 12, 20, 28, 44, 60, 76
AK, AV, A16, AOUT = 124, 125, 126, 127
G_, V_, O_, AW = 128, 192, 224, 240
NVGPR = 256
C_H, C_CS, C_O = 24, 40, 56
sCF, sCNT = 51, 62


def tiny(d, a_, b_, first=False):
    return f"v_mfma_f32_4x4x4_16b_bf16 {vr(d, 4)}, {vr(a_, 2)}, {vr(b_, 2)}, {'0' if first else vr(d, 4)}"


def dma(S):
    sl = (S % 3) * SL
    pre = [f"s_add_u32 s{T1}, s{sROT}, {S & 7}", f"s_and_b32 s{T1}, s{T1}, 7"]
    if S < 8:
        return [pre + [f"s_lshl_b32 s{T0}, s{T1}, 7", f"s_add_u32 m0, s{sLW}, {AR + sl}", f"s_add_u32 s{T0}, s{T0}, s{sXROW}",
                       f"buffer_load_dwordx4 v{VXS}, {sr(S_X)}, s{T0} offen lds"],
                [f"s_mul_i32 s{T1}, s{T1}, {64 * 3072}", f"s_add_u32 m0, s{sLW}, {BR + sl}", f"s_add_u32 s{T1}, s{T1}, s{sCQ}",
                 f"buffer_load_dwordx4 v{VW0}, {sr(S_W0)}, s{T1} offen lds"],
                [f"s_add_u32 m0, s{sLW}, {AR + sl + 8192}", f"s_add_u32 s{T0}, s{T0}, 0x10000",
                 f"buffer_load_dwordx4 v{VXS}, {sr(S_X)}, s{T0} offen lds"],
                [f"s_add_u32 m0, s{sLW}, {BR + sl + 8192 - 128}", "s_nop 0",
                 f"buffer_load_dwordx4 v{VW0}, {sr(S_W0)}, s{T1} offen offset:128 lds"]]
    return [pre + [f"s_mul_i32 s{T1}, s{T1}, {64 * 3584}", f"s_add_u32 m0, s{sLW}, {AR + sl}", f"s_add_u32 s{T1}, s{T1}, s{sCG}",
                   f"buffer_load_dwordx4 v{VW1}, {sr(S_W1)}, s{T1} offen lds"],
            [f"s_add_u32 m0, s{sLW}, {BR + sl}", "s_nop 0",
             f"buffer_load_dwordx4 v{VW3}, {sr(S_W3)}, s{T1} offen lds"],
            [f"s_add_u32 m0, s{sLW}, {AR + sl + 8192 - 128}", "s_nop 0",
             f"buffer_load_dwordx4 v{VW1}, {sr(S_W1)}, s{T1} offen offset:128 lds"],
            [f"s_add_u32 m0, s{sLW}, {BR + sl + 8192 - 128}", "s_nop 0",
             f"buffer_load_dwordx4 v{VW3}, {sr(S_W3)}, s{T1} offen offset:128 lds"]]


def rd1(h, nt):
    S, k0 = h >> 1, (h & 1) * 2
    sl = (S % 3) * SL
    F = WF + 16 * (h & 1)
    r = []
    for q in range(2):
        ks = k0 + q
        r.append(f"ds_read_b128 {vr(XF + 4 * (4 * S + ks), 4)}, v{XA + ks} offset:{sl}")
        for t in range(nt):
            for t2 in range(2):
                r.append(f"ds_read_b64_tr_b16 {vr(F + 8 * q + 4 * t + 2 * t2, 2)}, v{WA1 + t} offset:{sl + ks * 2048 + t2 * 512}")
    return r


def rd2(k):
    S, ks = 8 + (k >> 2), k & 3
    sl = (S % 3) * SL
    F = WF + 16 * (k & 1)
    return [f"ds_read_b64_tr_b16 {vr(F + 4 * c + 2 * t2, 2)}, v{WA2 + c} offset:{sl + ks * 2048 + t2 * 512}"
            for c in range(4) for t2 in range(2)]


def weave(heads, fills):
    res = []
    per = -(-len(fills) // len(heads)) if fills else 0
    i = 0
    for hd in heads:
        res.append(hd)
        for at in fills[i:i + per]:
            res += [at] if isinstance(at, str) else at
        i += per
    return res


def tr_addr(dst, t_a, t_b):
    return [f"v_lshrrev_b32 v{t_a}, 5, v0", f"v_bfe_u32 v{t_b}, v0, 2, 2", f"v_lshl_add_u32 v{dst}, v{t_a}, 2, v{t_b}",
            f"v_lshlrev_b32 v{dst}, 7, v{dst}", f"v_and_b32 v{t_a}, 1, v0", f"v_lshl_add_u32 v{dst}, v{t_a}, 6, v{dst}",
            f"v_bfe_u32 v{t_a}, v0, 4, 1", f"v_lshl_add_u32 v{dst}, v{t_a}, 4, v{dst}", f"v_bfe_u32 v{t_a}, v0, 1, 1",
            f"v_lshl_add_u32 v{dst}, v{t_a}, 3, v{dst}", f"v_lshrrev_b32 v{t_b}, 1, v{t_b}", f"v_lshl_add_u32 v{dst}, v{t_b}, 5, v{dst}"]


def split3(w, src):
    return [f"v_and_b32 v{w}, v{MASK}, v{src}", f"v_sub_f32 v{w + 2}, v{src}, v{w}",
            f"v_and_b32 v{w + 1}, v{MASK}, v{w + 2}", f"v_sub_f32 v{w + 2}, v{w + 2}, v{w + 1}", f"v_mov_b32 v{w + 3}, 0"]


def poll_issue(lbl, mask_instrs, reg=POLL):
    return ([f"s_cmp_lg_u32 s{sW}, 0", f"s_cbranch_scc1 {lbl}", "v_lshlrev_b32 v1, 8, v0"] + mask_instrs +
            ["s_mov_b64 exec, s[40:41]",
             f"buffer_load_dword v{reg}, v1, {sr(S_WS)}, s{sCNT} offen sc1", "s_mov_b64 exec, -1", f"{lbl}:"])


def poll_check(lbl, thr, reg=POLL, sleep=8):
    return [f"s_cmp_lg_u32 s{sW}, 0", f"s_cbranch_scc1 {lbl}_ok",
            f"s_mov_b32 s{T3}, {SPIN}", "s_mov_b64 exec, s[40:41]", f"{lbl}_spin:",
            f"v_cmp_gt_u32 vcc, {thr}, v{reg}", "s_cmp_eq_u64 vcc, 0", f"s_cbranch_scc1 {lbl}_done",
            f"s_sleep {sleep}",
            f"buffer_load_dword v{reg}, v1, {sr(S_WS)}, s{sCNT} offen sc1", "s_waitcnt vmcnt(0)",
            f"s_sub_u32 s{T3}, s{T3}, 1", f"s_cmp_lg_u32 s{T3}, 0", f"s_cbranch_scc1 {lbl}_spin",
            f"{lbl}_done:", "s_mov_b64 exec, -1", f"{lbl}_ok:"]


QKV_MASK = [f"s_lshl_b32 s40, 0x10101, s{sXCD}", "s_mov_b32 s41, 0"]
CS_MASK = ["s_mov_b32 s40, 0", f"s_lshl_b32 s41, 0x100, s{sCF}"]
QC_MASK = [f"s_lshl_b32 s40, 0x10101, s{sXCD}", f"s_lshl_b32 s41, 0x100, s{sCF}",
           "v_lshrrev_b32 v6, 5, v0", "v_lshrrev_b32 v6, v6, 32"]
H_MASK = ["s_mov_b32 s40, 0xff000000", "s_mov_b32 s41, 0xff"]


def sig_qkv(lbl):
    return [f"s_cmp_lg_u32 s{sW}, 0", f"s_cbranch_scc1 {lbl}",
            f"s_mov_b32 s{T3}, {SPIN}", f"{lbl}_spin:",
            f"v_readfirstlane_b32 s{T2}, v{POLL}", f"s_cmp_lg_u32 s{T2}, 0", f"s_cbranch_scc1 {lbl}_go",
            "s_sleep 8", "v_mov_b32 v2, 0",
            f"global_load_dword v{POLL}, v2, s[{pDBG}:{pDBG + 1}] sc1", "s_waitcnt vmcnt(0)",
            f"s_sub_u32 s{T3}, s{T3}, 1", f"s_cmp_lg_u32 s{T3}, 0", f"s_cbranch_scc1 {lbl}_spin", f"{lbl}_go:",
            f"s_mul_i32 s{T2}, s{sCB}, 3", f"s_lshr_b32 s{T2}, s{T2}, 1", f"s_and_b32 s{T3}, s{sCB}, 1",
            f"v_add_u32 v2, s{T2}, v0", "v_lshlrev_b32 v2, 8, v2",
            f"v_xor_b32 v3, s{T3}, v0", "v_sub_u32 v3, 2, v3",
            "s_mov_b64 exec, 3", f"buffer_atomic_add v3, v2, {sr(S_WS)}, s{sCNT} offen sc1", "s_mov_b64 exec, -1", f"{lbl}:"]


def sig_one(lbl, idx_instrs, skip_side=False):
    c = [f"s_or_b32 s{T0}, s{sW}, s{sISS}"] if skip_side else [f"s_cmp_lg_u32 s{sW}, 0"]
    return (c + [f"s_cbranch_scc1 {lbl}"] + idx_instrs +
            [f"s_lshl_b32 s{T0}, s{T0}, 8", f"s_add_u32 s{T0}, s{T0}, s{sCNT}", "v_mov_b32 v3, 1", "s_mov_b64 exec, 1",
             f"buffer_atomic_add v3, off, {sr(S_WS)}, s{T0} sc1", "s_mov_b64 exec, -1", f"{lbl}:"])


def kv(i, r=L16):
    return [[f"s_lshl1_add_u32 m0, s{sLW}, {i * 16384}" if i else f"s_lshl_b32 m0, s{sLW}, 1",
             f"s_add_u32 s{T2}, s{sKV}, {i * 8192}",
             f"buffer_load_dwordx4 v{r}, {sr(S_WS)}, s{T2} offen sc1 lds"],
            [f"s_lshl1_add_u32 m0, s{sLW}, {i * 16384 + 1024}", f"s_add_u32 s{T2}, s{sKV}, {i * 8192 + (32 << 16)}",
             f"buffer_load_dwordx4 v{r}, {sr(S_WS)}, s{T2} offen sc1 lds"]]


def q_load():
    return [f"s_lshl_b32 s{T2}, s{tQB}, 13", f"s_add_u32 s{T2}, s{T2}, s{sKV}", f"s_sub_u32 s{T2}, s{T2}, {32 << 16}",
            f"buffer_load_dwordx4 {vr(Q_, 4)}, v{L16}, {sr(S_WS)}, s{T2} offen sc1"]


def p2_init_regs():
    b = [f"v_mov_b64 v[{G_ + i}:{G_ + i + 1}], 0" for i in range(0, 64, 2)]
    return b


def p2_init_v():
    return ([["v_and_b32 v3, 27, v0", "v_cmp_eq_u32 vcc, 16, v3", "v_mov_b32 v4, 0x3f803f80", "v_mov_b32 v5, 0",
              "v_cndmask_b32 v2, v5, v4, vcc", "v_mov_b32 v3, v2"]] +
            [f"v_mov_b64 v[{V_ + i}:{V_ + i + 1}], v[2:3]" for i in range(0, 32, 2)])


def gen_p1(a):
    global NOSTAMP
    a("s_cmp_ge_u32 s2, 256")
    a("s_cbranch_scc1 L_exit")
    stamp(a, 0)
    a(f"s_load_dwordx4 s[{pX}:{pX + 3}], s[0:1], 0")
    a(f"s_load_dwordx4 s[{pG}:{pG + 3}], s[0:1], 32")
    a(f"s_load_dwordx2 s[{pWO}:{pWO + 1}], s[0:1], 16")
    a(f"s_load_dwordx4 s[{pWD}:{pWD + 3}], s[0:1], 48")
    a(f"s_load_dwordx4 s[{pDBG}:{pDBG + 3}], s[0:1], 64")
    a("v_lshrrev_b32 v1, 6, v0")
    a("v_and_b32 v0, 63, v0")
    a(f"v_readfirstlane_b32 s{sW}, v1")
    if "code" in OPT:
        a("s_cmp_ge_u32 s2, 32")
        a("s_cbranch_scc1 L_nocode")
        a("s_getpc_b64 s[40:41]")
        a("L_here:")
        a("v_lshlrev_b32 v2, 13, v1")
        a("v_lshl_add_u32 v2, v0, 7, v2")
        a("v_min_u32 v2, L_end-L_here-4, v2")
        a("v_mov_b32 v3, s41")
        a("v_add_co_u32 v2, vcc, s40, v2")
        a("s_nop 1")
        a("v_addc_co_u32 v3, vcc, 0, v3, vcc")
        a(f"global_load_dword v{STV}, v[2:3], off")
        a("L_nocode:")
    a(f"s_and_b32 s{sXCD}, s2, 7")
    a(f"s_lshr_b32 s{T1}, s2, 3")
    a(f"s_and_b32 s{sRB}, s{sXCD}, 3")
    a(f"s_and_b32 s{T2}, s{T1}, 3")
    a(f"s_lshl2_add_u32 s{sRB}, s{sRB}, s{T2}")
    a(f"s_lshr_b32 s{sCF}, s{sXCD}, 2")
    a(f"s_lshr_b32 s{sISS}, s{T1}, 2")
    a(f"s_lshl3_add_u32 s{sCB}, s{sCF}, s{sISS}")
    a(f"s_lshl1_add_u32 s{sROT}, s{sXCD}, s{sISS}")
    a(f"s_lshl_b32 s{sLW}, s{sW}, 10")
    a(f"s_lshl_b32 s{T2}, s{sW}, 3")
    a(f"s_lshl_b32 s{sXROW}, s{sRB}, 7")
    a(f"s_add_u32 s{sXROW}, s{sXROW}, s{T2}")
    a(f"s_lshl_b32 s{sXROW}, s{sXROW}, 10")
    a(f"s_mul_i32 s{sCQ}, s{sCB}, 3")
    a(f"s_lshr_b32 s{sCQ}, s{sCQ}, 1")
    a(f"s_lshl_b32 s{sCQ}, s{sCQ}, 7")
    a(f"s_mul_i32 s{T3}, s{T2}, 3072")
    a(f"s_add_u32 s{sCQ}, s{sCQ}, s{T3}")
    a("v_lshrrev_b32 v1, 3, v0")
    a("v_and_b32 v2, 7, v0")
    a(f"v_add_u32 v3, s{T2}, v1")
    a("v_bfe_u32 v3, v3, 1, 3")
    a("v_xor_b32 v3, v3, v2")
    a("v_lshlrev_b32 v3, 4, v3")
    a(f"v_lshl_add_u32 v{VXS}, v1, 10, v3")
    a("v_and_b32 v3, 2, v1")
    a("v_lshlrev_b32 v3, 1, v3")
    a("v_xor_b32 v3, v3, v2")
    a("v_lshlrev_b32 v3, 4, v3")
    a("v_mul_u32_u24 v4, 3072, v1")
    a(f"v_add_u32 v{VW0}, v4, v3")
    a(f"s_mov_b32 s{S_X + 2}, 2097152")
    a(f"s_mov_b32 s{S_X + 3}, 0x00020000")
    a(f"s_mov_b32 s{S_W0 + 2}, 1572864")
    a(f"s_mov_b32 s{S_W0 + 3}, 0x00020000")
    a("s_waitcnt lgkmcnt(0)")
    a(f"s_mov_b64 s[{S_X}:{S_X + 1}], s[{pX}:{pX + 1}]")
    a(f"s_mov_b64 s[{S_W0}:{S_W0 + 1}], s[{pWQKV}:{pWQKV + 1}]")
    a(dma(0))
    a("v_mul_u32_u24 v4, 3584, v1")
    a(f"v_add_u32 v{VW1}, v4, v3")
    a("v_xor_b32 v3, 32, v3")
    a(f"v_add_u32 v{VW3}, v4, v3")
    a(f"v_lshlrev_b32 v{L16}, 4, v0")
    a(f"s_and_b32 s{sTT}, s{sW}, 3")
    a(f"s_lshr_b32 s{sHF}, s{sW}, 2")
    a(f"s_mul_i32 s{T3}, s{T2}, 3584")
    a(f"s_sub_u32 s{sCF}, s{sCB}, s{sCF}")
    a(f"s_sub_u32 s{sCF}, s{sCF}, 1")
    a(f"s_lshl_b32 s{sCG}, s{sCF}, 8")
    a(f"s_add_u32 s{sCG}, s{sCG}, s{T3}")
    a(f"s_cmp_eq_u32 s{sISS}, 0")
    a(f"s_cselect_b32 s{sISS}, 1, 0")
    a(f"s_cselect_b32 s{sCG}, {OOB}, s{sCG}")
    a(f"s_mov_b32 s{sCNT}, {WS_CNT}")
    srd(a, S_W1, pG, 1835008)
    srd(a, S_W3, pU, 1835008)
    srd(a, S_WS, pWS, WS_SIZE)
    a(f"s_lshl_b32 s{T0}, s{sW}, 8")
    a(f"s_or_b32 s{T0}, s2, s{T0}")
    a(f"s_cmp_lg_u32 s{T0}, 32")
    a("s_cbranch_scc1 L_nozero")
    a("v_mov_b32 v5, 0")
    a("v_lshlrev_b32 v6, 8, v0")
    a(f"buffer_store_dword v5, v6, {sr(S_WS)}, s{sCNT} offen sc1")
    a("L_nozero:")
    a(dma(1))
    a(f"s_lshl2_add_u32 s{sT}, s{sRB}, s{sTT}")
    a(f"s_mul_i32 s{sG}, s{sCB}, 3")
    a(f"s_lshl1_add_u32 s{sG}, s{sHF}, s{sG}")
    a(f"s_cmp_ge_u32 s{sG}, 32")
    a(f"s_cselect_b32 s{sVAR}, 2, 0")
    a(f"s_add_u32 s{sVAR}, s{sVAR}, s{sHF}")
    a(f"s_lshl_b32 s{sG}, s{sG}, 1")
    a(f"s_lshr_b32 s{T1}, s2, 3")
    a(f"s_and_b32 s{T2}, s{T1}, 3")
    a(f"s_lshl2_add_u32 s{tHEAD}, s{sXCD}, s{T2}")
    a(f"s_lshr_b32 s{tQB}, s{T1}, 2")
    a(f"s_lshl_b32 s{sKV}, s{tHEAD}, 16")
    a(f"s_add_u32 s{sKV}, s{sKV}, s{sLW}")
    a(f"s_add_u32 s{sKV}, s{sKV}, {32 << 16}")
    a("v_and_b32 v1, 31, v0")
    a("v_lshrrev_b32 v2, 5, v0")
    a("v_bfe_u32 v3, v0, 1, 3")
    a("v_xor_b32 v3, v3, v2")
    a("v_lshlrev_b32 v3, 4, v3")
    a("v_lshl_add_u32 v3, v1, 7, v3")
    a(f"s_lshl_b32 s{T0}, s{sTT}, 12")
    a(f"s_add_u32 s{T0}, s{T0}, {AR}")
    a(f"v_add_u32 v{XA}, s{T0}, v3")
    for i in range(1, 4):
        a(f"v_xor_b32 v{XA + i}, {32 * i}, v{XA}")
    a("v_bfe_u32 v3, v0, 2, 2")
    a("v_lshl_add_u32 v4, v2, 3, v3")
    a("v_lshlrev_b32 v4, 7, v4")
    a("v_and_b32 v7, 3, v0")
    a("v_lshl_add_u32 v4, v7, 3, v4")
    a("v_and_b32 v3, 2, v3")
    a("v_bfe_u32 v7, v0, 4, 1")
    a("v_xor_b32 v3, v3, v7")
    a(f"s_and_b32 s{T0}, s{sCB}, 1")
    a(f"s_lshl1_add_u32 s{T0}, s{sHF}, s{T0}")
    for t in range(2):
        a(f"s_and_b32 s{T1}, s{T0}, 1")
        a(f"s_lshl_b32 s{T1}, s{T1}, 1")
        a(f"s_lshr_b32 s{T2}, s{T0}, 1")
        a(f"s_lshl_b32 s{T2}, s{T2}, 13")
        a(f"s_add_u32 s{T2}, s{T2}, {BR}")
        a(f"v_xor_b32 v6, s{T1}, v3")
        a("v_lshl_add_u32 v6, v6, 5, v4")
        a(f"v_add_u32 v{WA1 + t}, s{T2}, v6")
        if t == 0:
            a(f"s_add_u32 s{T0}, s{T0}, 1")
    a(f"v_mul_u32_u24 v6, {BR - AR}, v7")
    a("v_add_u32 v4, v4, v6")
    a(f"s_lshl_b32 s{T0}, s{sHF}, 13")
    a(f"s_add_u32 s{T0}, s{T0}, {AR}")
    a(f"v_add_u32 v4, s{T0}, v4")
    for c in range(4):
        a(f"v_xor_b32 v6, {c}, v3")
        a(f"v_lshl_add_u32 v{WA2 + c}, v6, 5, v4")
    a(f"v_mov_b32 v{MASK}, 0xffff0000")
    a(f"v_mov_b32 v{ONES}, 0x3f803f80")
    a(f"v_mov_b32 v{ONES + 1}, 0x3f803f80")
    for i in range(0, 8, 2):
        a(f"v_mov_b64 v[{CSA + i}:{CSA + i + 1}], 0")
    if "notouch" not in OPT:
        a(f"s_cmp_eq_u32 s{sISS}, 0")
        a("s_cbranch_scc1 L_notouch")
        a(f"s_and_b32 s{T0}, s{sRB}, 3")
        a(f"s_lshl3_add_u32 s{T0}, s{T0}, s{sW}")
        a(f"s_lshl_b32 s{T0}, s{T0}, 2")
        a("v_bfe_u32 v1, v0, 1, 2")
        a(f"v_add_u32 v1, s{T0}, v1")
        a("v_lshrrev_b32 v2, 3, v0")
        a(f"s_add_u32 s{T1}, s{sROT}, 1")
        a(f"v_add_u32 v3, s{T1}, v2")
        a("v_lshl_add_u32 v1, v3, 6, v1")
        a("v_and_b32 v1, 511, v1")
        a("v_mul_u32_u24 v1, 3584, v1")
        a("v_lshl_add_u32 v1, v2, 8, v1")
        a("v_and_b32 v2, 1, v0")
        a("v_lshl_add_u32 v1, v2, 7, v1")
        a(f"s_lshr_b32 s{T0}, s{sXCD}, 2")
        a(f"s_mul_i32 s{T0}, s{T0}, 1792")
        a("s_mov_b64 exec, 0x00ffffffffffffff" if False else "s_mov_b32 exec_hi, 0x00ffffff")
        a(f"buffer_load_dword v2, v1, {sr(S_W1)}, s{T0} offen")
        a(f"buffer_load_dword v3, v1, {sr(S_W3)}, s{T0} offen")
        a("s_mov_b64 exec, -1")
        a("L_notouch:")
    stamp(a, 1)
    for v in range(1, 4):
        a(f"s_cmp_eq_u32 s{sVAR}, {v}")
        a(f"s_cbranch_scc1 L_p1_{v}")
    RS, SD, XOP = 112, 114, 116
    for var in range(4):
        hf, isv = var & 1, var >> 1
        nt = 2 - hf
        a(f"L_p1_{var}:")
        a("s_waitcnt vmcnt(4)")
        a("s_barrier")
        stamp(a, 2)
        a(rd1(0, nt))
        if var == 0:
            a(f"s_lshl_b32 s{T0}, s{sW}, 8")
            a(f"s_or_b32 s{T0}, s2, s{T0}")
            a(f"s_cmp_lg_u32 s{T0}, 32")
            a("s_cbranch_scc1 L_noflag")
            a("v_mov_b32 v5, 0")
            a("v_mov_b32 v6, 1")
            a("s_mov_b64 exec, 1")
            a(f"global_store_dword v5, v6, s[{pDBG}:{pDBG + 1}] sc1")
            a("s_mov_b64 exec, -1")
            a("L_noflag:")
        for h in range(16):
            S = h >> 1
            F = WF + 16 * (h & 1)
            first = h == 0
            big, tn = [], []
            for q in range(2):
                x = XF + 4 * (2 * h + q)
                for t in range(nt):
                    w = F + 8 * q + 4 * t
                    c = "0" if (first and q == 0) else None
                    big.append(mfma(ACC + 16 * t, x, w, c) if isv else mfma(ACC + 16 * t, w, x, c))
            cs = []
            for q in range(2):
                x = XF + 4 * (2 * h + q)
                if hf:
                    for p in range(2):
                        f0 = first and q == 0 and p == 0
                        tn += [tiny(STA, ONES, x + 2 * p, f0), tiny(STB, x + 2 * p, x + 2 * p, f0), "s_nop 0"]
                lb = f"L_cs{var}_{h}_{q}"
                cs += [f"s_cmp_lg_u32 s{sTT}, {(2 * h + q) & 3}", f"s_cbranch_scc1 {lb}"]
                if hf:
                    cs += [tiny(CSA, ONES, F + 8 * q), tiny(CSA + 4, ONES, F + 8 * q + 2)]
                else:
                    cs += [tiny(CSA, ONES, F + 8 * q), tiny(CSA + 4, ONES, F + 8 * q + 4), "s_nop 0",
                           tiny(CSA, ONES, F + 8 * q + 2), tiny(CSA + 4, ONES, F + 8 * q + 6)]
                cs.append(f"{lb}:")
            if h == 15:
                break
            if h & 1:
                a("s_waitcnt vmcnt(4) lgkmcnt(0)")
                a("s_barrier")
                if "p1b" in OPT: stamp(a, 4 + S)
                d = dma(S + 3)[:2]
                if S == 5 and not hf:
                    d = [[f"s_cmp_lg_u32 s{sW}, 0", f"s_cbranch_scc1 L_nofl{var}", "v_mov_b32 v5, 0",
                          f"global_load_dword v{POLL}, v5, s[{pDBG}:{pDBG + 1}] sc1", f"L_nofl{var}:"]] + d
            else:
                a("s_waitcnt lgkmcnt(0)")
                d = dma(S + 2)[2:] if h else dma(2)
            if h == 13:
                d = d + [["v_and_b32 v1, 31, v0", f"s_lshl_b32 s{T2}, s{sTT}, 8", "v_lshlrev_b32 v1, 2, v1", f"v_add_u32 v1, s{T2}, v1",
                          f"s_lshl_b32 s{T3}, s{sTT}, 2", f"v_add_u32 v5, s{T3}, v{L16}", f"v_mov_b32 v{XOP + 3}, 0"]]
                if isv:
                    d = d + [["v_lshrrev_b32 v4, 5, v0", "v_lshlrev_b32 v6, 4, v4", f"v_add_u32 v6, s{T2}, v6",
                              "v_bfe_u32 v7, v0, 4, 1", "v_lshlrev_b32 v7, 16, v7", "v_lshl_add_u32 v7, v4, 8, v7",
                              "v_and_b32 v4, 15, v0", "v_lshl_add_u32 v7, v4, 4, v7"]]
            nxt = rd1(h + 1, nt)
            if hf:
                a(weave(big, nxt) + weave(tn, d) + cs)
            else:
                a(weave(big, nxt + d) + cs)
        a("s_waitcnt lgkmcnt(0)")
        csw = [f"ds_write_b32 v5, v{CSA + 4 * t} offset:{SCR + 1024 * (1 + 2 * hf + t)}" for t in range(nt)]
        if hf:
            a(tn + cs + big[:1])
            a("s_nop 1")
            for i, m in ((1, "0x22222222"), (2, "0x44444444"), (3, "0x88888888")):
                a(f"s_mov_b32 s40, {m}")
                a(f"s_mov_b32 s41, {m}")
                a(f"v_cndmask_b32 v{STB}, v{STB}, v{STB + i}, s[40:41]")
            a(f"v_mov_b32 v{STB + 1}, v{STB}")
            a(f"v_add_f32 v{CSA}, v{CSA}, v{CSA + 4}")
            a(csw)
            a(f"v_permlane32_swap_b32 v{STA}, v{STA + 1}")
            a(f"v_permlane32_swap_b32 v{STB}, v{STB + 1}")
            a(f"v_add_f32 v2, v{STA}, v{STA + 1}")
            a(f"v_add_f32 v3, v{STB}, v{STB + 1}")
            a(f"v_mul_f32 v2, {hx(f2u(-1.0 / 512))}, v2")
            a(f"v_mul_f32 v3, {hx(f2u(1.0 / 512))}, v3")
            a("v_fma_f32 v3, -v2, v2, v3")
            a("v_max_f32 v3, 0, v3")
            a("v_cvt_pk_bf16_f32 v3, v3, v3")
            a(f"v_and_b32 v3, v{MASK}, v3")
            a(f"v_add_f32 v3, {hx(f2u(1e-5))}, v3")
            a("v_cvt_pk_bf16_f32 v3, v3, v3")
            a(f"v_and_b32 v3, v{MASK}, v3")
            a("v_sqrt_f32 v3, v3")
            a("s_nop 0")
            a(f"v_cvt_pk_bf16_f32 v{STV}, v3, v2")
            a(f"v_lshlrev_b32 v{SD}, 16, v{STV}")
            a(f"v_rcp_f32 v{RS}, v{SD}")
            a(f"ds_write_b32 v1, v{STV} offset:{SCR}")
            a(f"ds_write_b32 v1, v{RS} offset:{SCR + 128}")
            a(big[1:])
        else:
            a(cs + big)
            a("s_nop 0")
            a(csw)
        a("s_waitcnt vmcnt(4) lgkmcnt(0)")
        a("s_barrier")
        stamp(a, 3)
        RSV = WF + 16
        cop = [STA, STB]
        for t in range(nt):
            a(f"ds_read_b128 {vr(CSA + 4 * t, 4)}, v{L16} offset:{SCR + 1024 * (1 + 2 * hf + t)}")
        if not hf:
            a(f"ds_read_b32 v{STV}, v1 offset:{SCR}")
            a(f"ds_read_b32 v{RS}, v1 offset:{SCR + 128}")
        if isv:
            for g in range(4):
                a(f"ds_read_b128 {vr(RSV + 4 * g, 4)}, v6 offset:{SCR + 128 + g * 32}")
        a(f"s_lshl_b32 s{T3}, s{sG}, 16")
        a(f"s_lshl_b32 s{T2}, s{sT}, 10")
        a(f"s_add_u32 s{T3}, s{T3}, s{T2}")
        a(f"s_waitcnt lgkmcnt({4 if isv else 0})")
        a(f"v_and_b32 v{XOP}, v{MASK}, v{STV}")
        a(f"v_mov_b32 v{XOP + 1}, v{XOP}")
        a(f"v_mov_b32 v{XOP + 2}, v{XOP}")
        for t in range(nt):
            w = CSA + 4 * t
            a(f"v_add_f32 v{w}, v{w}, v{w + 1}")
            a(f"v_add_f32 v{w + 2}, v{w + 2}, v{w + 3}")
            a(f"v_add_f32 v{w}, v{w}, v{w + 2}")
            a(split3(cop[t], w))
            a("s_nop 1")
            a(mfma(ACC + 16 * t, XOP, cop[t]) if isv else mfma(ACC + 16 * t, cop[t], XOP))
        a(rd2(0))
        if nt == 1:
            a("s_nop 3")
        if isv:
            a("s_waitcnt lgkmcnt(8)")
        for t in range(nt):
            ac = ACC + 16 * t
            o = 120 if t == 0 else 96
            if isv:
                for i in range(8):
                    a(f"v_pk_mul_f32 {vr(ac + 2 * i, 2)}, {vr(ac + 2 * i, 2)}, {vr(RSV + 2 * i, 2)}")
            else:
                a(f"s_cmp_lt_u32 s{sG}, {32 - 2 * t}")
                a(f"s_cselect_b32 s{T0}, {hx(f2u(QSCALE))}, 1.0")
                a(f"v_mul_f32 v2, s{T0}, v{RS}")
                a(f"v_mul_f32 v3, s{T0}, v{RS}")
                for i in range(8):
                    a(f"v_pk_mul_f32 {vr(ac + 2 * i, 2)}, {vr(ac + 2 * i, 2)}, v[2:3]")
            for i in range(8):
                a(f"v_cvt_pk_bf16_f32 v{o + i}, v{ac + 2 * i}, v{ac + 2 * i + 1}")
        a(dma(10))
        for t in range(nt):
            o = 120 if t == 0 else 96
            if isv:
                a(f"buffer_store_dwordx4 {vr(o, 4)}, v7, {sr(S_WS)}, s{T3} offen sc1")
                a(f"buffer_store_dwordx4 {vr(o + 4, 4)}, v7, {sr(S_WS)}, s{T3} offen offset:512 sc1")
                if t + 1 < nt:
                    a(f"s_add_u32 s{T3}, s{T3}, 0x20000")
            else:
                a(f"buffer_store_dwordx4 {vr(o, 4)}, v{L16}, {sr(S_WS)}, s{T3} offen sc1")
                a(f"s_add_u32 s{T3}, s{T3}, 0x10000")
                a(f"buffer_store_dwordx4 {vr(o + 4, 4)}, v{L16}, {sr(S_WS)}, s{T3} offen sc1")
                if t + 1 < nt:
                    a(f"s_add_u32 s{T3}, s{T3}, 0x10000")
        if var != 3:
            a("s_branch L_pass2")
    a("L_pass2:")
    if "p1b" in OPT: NOSTAMP = True
    stamp(a, 4)
    a(f"s_cmp_eq_u32 s{sISS}, 1")
    a("s_cbranch_scc1 L_side")
    CO = O_
    sU = sVAR
    a(f"s_and_b32 s{sU}, s{sRB}, 3")
    a(f"s_lshr_b32 s40, s{sRB}, 2")
    a(f"s_lshl2_add_u32 s{sU}, s{sU}, s40")
    CSS, RU = 4096, 136
    w1 = []
    for i in range(4):
        w1 += [f"v_lshlrev_b32 v{RU + 2 * i}, 16, v{8 + i}", f"v_and_b32 v{RU + 2 * i + 1}, v{MASK}, v{8 + i}"]
    for i in range(4):
        w1 += [f"v_lshlrev_b32 v14, 16, v{128 + i}", f"v_and_b32 v15, v{MASK}, v{128 + i}",
               f"v_add_f32 v{RU + 2 * i}, v{RU + 2 * i}, v14", f"v_add_f32 v{RU + 2 * i + 1}, v{RU + 2 * i + 1}, v15"]
    w1 += ["v_and_b32 v14, 8, v0", "v_cmp_eq_u32 vcc, 0, v14"]
    w1 += [f"v_permlane16_swap_b32 v{RU + 2 * i}, v{RU + 2 * i + 1}" for i in range(4)]
    w1 += [f"v_add_f32 v{RU + 2 * i}, v{RU + 2 * i}, v{RU + 2 * i + 1}" for i in range(4)]
    w1 += ["v_and_b32 v15, 7, v0", "v_lshlrev_b32 v15, 3, v15",
           f"v_permlane32_swap_b32 v{RU}, v{RU + 2}", f"v_permlane32_swap_b32 v{RU + 4}, v{RU + 6}",
           f"v_add_f32 v{RU}, v{RU}, v{RU + 2}", f"v_add_f32 v{RU + 4}, v{RU + 4}, v{RU + 6}",
           "v_lshrrev_b32 v16, 4, v0", "v_add_u32 v15, v15, v16",
           f"v_add_f32_dpp v{RU}, v{RU}, v{RU} row_ror:8 row_mask:0xf bank_mask:0xf",
           f"v_add_f32_dpp v{RU + 4}, v{RU + 4}, v{RU + 4} row_ror:8 row_mask:0xf bank_mask:0xf",
           "v_lshrrev_b32 v14, 1, v14", "v_add_u32 v15, v15, v14", "v_lshlrev_b32 v15, 2, v15",
           [f"s_lshl_b32 s40, s{sW}, 8", "v_add_u32 v15, s40, v15"],
           f"v_cndmask_b32 v14, v{RU + 4}, v{RU}, vcc",
           f"ds_write_b32 v15, v14 offset:{CSS}", "v_lshlrev_b32 v16, 2, v0"]
    q4 = -(-(len(w1) - 8) // 5)
    csv = {0: [[f"s_lshr_b32 s40, s{sU}, 3", f"s_mul_i32 s41, s40, {BR - AR}", "s_lshl_b32 s40, s40, 1"],
               "v_lshrrev_b32 v14, 3, v0", "v_and_b32 v15, 2, v14", "v_lshlrev_b32 v15, 1, v15", "v_xor_b32 v15, s40, v15",
               "v_and_b32 v16, 7, v0", "v_xor_b32 v15, v15, v16", "v_lshlrev_b32 v15, 4, v15", "v_lshl_add_u32 v15, v14, 7, v15",
               [f"s_bfe_u32 s40, s{sU}, 0x10002", "s_lshl_b32 s40, s40, 13", "s_add_u32 s41, s41, s40",
                f"s_add_u32 s41, s41, s{sLW}", f"s_add_u32 s41, s41, {AR}", "v_add_u32 v17, s41, v15"]],
           1: [f"ds_read_b128 v[8:11], v17 offset:{2 * SL}"],
           5: ["ds_read_b128 v[128:131], v17"],
           4: w1[:8], 6: w1[8:8 + q4], 7: w1[8 + q4:8 + 2 * q4], 8: w1[8 + 2 * q4:8 + 3 * q4],
           9: w1[8 + 3 * q4:8 + 4 * q4], 10: w1[8 + 4 * q4:],
           12: [f"ds_read2st64_b32 {vr(RU + 2 * i, 2)}, v16 offset0:{CSS // 256 + 2 * i} offset1:{CSS // 256 + 2 * i + 1}" for i in range(4)],
           13: [f"v_add_f32 v{RU + 2 * i}, v{RU + 2 * i}, v{RU + 2 * i + 1}" for i in range(4)] +
               [f"v_add_f32 v{RU}, v{RU}, v{RU + 2}", f"v_add_f32 v{RU + 4}, v{RU + 4}, v{RU + 6}", f"v_add_f32 v{RU}, v{RU}, v{RU + 4}",
                [f"s_lshr_b32 s40, s{sU}, 3", "s_mul_i32 s40, s40, 28", f"s_bfe_u32 s41, s{sU}, 0x10002", "s_add_u32 s40, s40, s41",
                 f"s_lshl1_add_u32 s40, s{sCF}, s40", f"s_and_b32 s41, s{sU}, 3", "s_lshl2_add_u32 s40, s40, s41",
                 "s_lshl_b32 s40, s40, 8", f"s_add_u32 s40, s40, {WS_CS}", f"s_cmp_eq_u32 s{sW}, 0", f"s_cselect_b32 s40, s40, {OOB}",
                 f"buffer_store_dword v{RU}, v16, {sr(S_WS)}, s40 offen sc1"]]}
    bgq = []
    for k in range(32):
        S, ks = 8 + (k >> 2), k & 3
        F = WF + 16 * (k & 1)
        big = [mfma(ACC + 16 * c, F + 4 * c, XF + 4 * k, "0" if k == 0 else None) for c in range(4)]
        extra = []
        if ks == 3:
            n = {8: 8, 9: 8, 11: 5, 14: 2, 15: 63}.get(S, 4)
            if S in (8, 9):
                a([f"s_cmp_eq_u32 s{sHF}, 0", f"s_cbranch_scc1 L_w{S}", f"s_waitcnt vmcnt({n - 2})", f"L_w{S}:"])
            a(f"s_waitcnt vmcnt({n}) lgkmcnt(0)" if n != 63 else "s_waitcnt lgkmcnt(0)")
            if S == 13: a(poll_check("L_cq", 32))
            if S == 14: a(poll_check("L_cc", 16))
            if S != 15: a("s_barrier")
            if "p2b" in OPT: stamp(a, S - 3)
            if S == 12: bgq += [sig_one("L_scs", [f"s_add_u32 s{T0}, s{sCF}, {C_CS}"]), poll_issue("L_pq", QKV_MASK)]
            if S + 3 < 16: bgq += dma(S + 3)
            if S == 10: bgq = [sig_qkv("L_sq")] + bgq
            if S == 13: bgq += kv(0) + [q_load(), poll_issue("L_pc", CS_MASK)] + kv(1)
            if S == 14:
                bgq += [["v_bfe_u32 v2, v0, 4, 1", "v_mul_u32_u24 v2, 28672, v2", "v_lshrrev_b32 v3, 5, v0",
                         "v_lshl_add_u32 v2, v3, 9, v2", "v_and_b32 v3, 15, v0", "v_lshl_add_u32 v2, v3, 2, v2",
                         f"s_lshl1_add_u32 s{T3}, s{sCF}, s{sHF}", f"s_lshl_b32 s{T3}, s{T3}, 10", f"s_add_u32 s{T3}, s{T3}, {WS_CS}"]]
                for c in range(4):
                    bgq.append([f"buffer_load_dword v{CO + 4 * c + q}, v2, {sr(S_WS)}, s{T3} offen offset:{c * 64 + q * 256} sc1" for q in range(2)])
                bgq += kv(2) + kv(3)
            if S == 15:
                if "prio" in OPT:
                    a("s_setprio 1")
                    a(lead(2))
        else:
            a("s_waitcnt lgkmcnt(0)")
        left = 4 if ks == 3 else 3 - ks
        if S == 15 and ks == 3: left = 1
        take = -(-len(bgq) // left)
        extra, bgq = bgq[:take], bgq[take:]
        val = []
        if 16 <= k < 24: val = p2_init_regs()[4 * (k - 16):4 * (k - 15)]
        if k in (24, 25, 26): val = p2_init_v()[[0, 5, 11][k - 24]:[5, 11, 17][k - 24]]
        if k in csv: val = csv[k]
        nxt = rd2(k + 1) if k < 31 else []
        body = weave(big[:3], nxt) + [big[3]]
        res, idx = [], 0
        ex_at = extra + val
        if "a_val" in OPT: ex_at = extra
        if "a_vm" in OPT:
            ex_at = [[x for x in ([at] if isinstance(at, str) else at) if not (x.startswith("buffer_") and ("sc1" in x or "s[4:7]" in x) and "atomic" not in x and "s62" not in x)] for at in ex_at]
        if "a_dma" in OPT:
            ex_at = [[x for x in ([at] if isinstance(at, str) else at) if not (x.startswith("buffer_") and "atomic" not in x and "s62" not in x)] for at in ex_at]
        per = -(-len(ex_at) // 4) if ex_at else 0
        segs, cur = [], []
        for ins in body:
            if ins.startswith("v_mfma") and cur:
                segs.append(cur); cur = []
            cur.append(ins)
        segs.append(cur)
        for sg in segs:
            res += sg
            for at in ex_at[idx:idx + per]:
                res += [at] if isinstance(at, str) else at
            idx += per
        a(res)
    assert not bgq
    if "p2b" in OPT: NOSTAMP = True
    stamp(a, 5)
    RS, SD, XOP = 240, 242, 244
    a(f"v_lshlrev_b32 v{SD}, 16, v{STV}")
    a(f"v_rcp_f32 v{RS}, v{SD}")
    a(f"v_and_b32 v{XOP}, v{MASK}, v{STV}")
    a(f"v_mov_b32 v{XOP + 1}, v{XOP}")
    a(f"v_mov_b32 v{XOP + 2}, v{XOP}")
    a(f"v_mov_b32 v{XOP + 3}, 0")
    a(f"s_mul_i32 s{T3}, s{sT}, 112")
    a(f"s_lshl1_add_u32 s{T0}, s{sCF}, s{sHF}")
    a(f"s_lshl2_add_u32 s{T3}, s{T0}, s{T3}")
    a(f"s_lshl_b32 s{T3}, s{T3}, 10")
    a(f"s_add_u32 s{T3}, s{T3}, {WS_H}")
    a(f"v_mov_b32 v248, {hx(f2u(GC2))}")
    a("v_mov_b32 v249, v248")
    a(f"v_mov_b32 v250, {hx(f2u(GC1))}")
    a("v_mov_b32 v251, v250")
    a(f"v_mov_b32 v{RS + 1}, v{RS}")
    a(f"v_mov_b32 v{SD + 1}, v{SD}")
    a("s_waitcnt vmcnt(4)")
    for c in range(4):
        w = CO + 4 * c
        a(f"v_add_f32 v{w + 3}, v{w}, v{w + 1}")
        a(split3(w, w + 3))
        a("s_nop 1")
        a(mfma(ACC + 16 * c, w, XOP))
    for c in range(4):
        g = ACC + 16 * c
        u = g + 8
        q = 32 + (c & 1) * 8
        o = 48 + c * 4
        for i in range(4):
            a(f"v_pk_mul_f32 {vr(g + 2 * i, 2)}, {vr(g + 2 * i, 2)}, {vr(RS, 2)}")
        for i in range(4):
            a(f"v_pk_mul_f32 {vr(q + 2 * i, 2)}, {vr(g + 2 * i, 2)}, {vr(g + 2 * i, 2)}")
        for i in range(4):
            a(f"v_pk_fma_f32 {vr(q + 2 * i, 2)}, {vr(q + 2 * i, 2)}, v[248:249], v[250:251]")
        for i in range(4):
            a(f"v_pk_mul_f32 {vr(q + 2 * i, 2)}, {vr(q + 2 * i, 2)}, {vr(g + 2 * i, 2)}")
        for i in range(8):
            a(f"v_exp_f32 v{q + i}, v{q + i}")
        for i in range(4):
            a(f"v_pk_mul_f32 {vr(g + 2 * i, 2)}, {vr(g + 2 * i, 2)}, {vr(u + 2 * i, 2)}")
        for i in range(4):
            a(f"v_pk_fma_f32 {vr(q + 2 * i, 2)}, {vr(q + 2 * i, 2)}, {vr(SD, 2)}, {vr(SD, 2)}")
        for i in range(8):
            a(f"v_rcp_f32 v{q + i}, v{q + i}")
        a("s_nop 0")
        for i in range(4):
            a(f"v_pk_mul_f32 {vr(g + 2 * i, 2)}, {vr(g + 2 * i, 2)}, {vr(q + 2 * i, 2)}")
        for i in range(4):
            a(f"v_cvt_pk_bf16_f32 v{o + i}, v{g + 2 * i}, v{g + 2 * i + 1}")
        a(f"buffer_store_dwordx4 {vr(o, 4)}, v{L16}, {sr(S_WS)}, s{T3} offen offset:{c * 1024} sc1")
        if c == PG:
            a(lead(0))


def gen_side(a):
    a("L_side:")
    global NOSTAMP
    NOSTAMP = "side" not in OPT
    gs = sCQ
    a("s_waitcnt vmcnt(0)")
    a("s_barrier")
    a(sig_qkv("L_sq2"))
    a(f"s_lshl3_add_u32 s{gs}, s2, s{sW}")
    a("v_lshrrev_b32 v1, 3, v0")
    a("v_and_b32 v2, 7, v0")
    a("v_and_b32 v3, 2, v1")
    a("v_xor_b32 v6, v3, v2")
    a("v_lshlrev_b32 v6, 4, v6")
    ASRC = 12
    a(f"v_lshl_add_u32 v{ASRC}, v1, 10, v6")
    a(f"s_mul_i32 s{tVM + 1}, s{sW}, 10240")
    a(f"s_add_u32 s{tVM + 1}, s{tVM + 1}, {AR}")
    a(f"s_mov_b32 s{S_T + 3}, 0x00020000")
    stamp(a, 10)
    for r in range(5):
        a(f"s_add_u32 s{T0}, s{gs}, {256 * r}")
        a(f"s_and_b32 s{T1}, s{T0}, 7")
        a(f"s_lshr_b32 s{T2}, s{T0}, 3")
        a(f"s_cmp_lt_u32 s{T2}, 112")
        a(f"s_cselect_b32 s{S_T}, s{pWD}, s{pWO}")
        a(f"s_cselect_b32 s{S_T + 1}, s{pWD + 1}, s{pWO + 1}")
        a(f"s_mov_b32 s{S_T + 2}, 1835008")
        a(f"s_cselect_b32 s{S_T + 2}, s{S_T + 2}, 524288")
        a(f"s_cselect_b32 s{T3}, 0, 112")
        a(f"s_sub_u32 s{T2}, s{T2}, s{T3}")
        a(f"s_lshl_b32 s{T2}, s{T2}, 14")
        a(f"s_lshl_b32 s{T1}, s{T1}, 7")
        a(f"s_add_u32 s{T2}, s{T2}, s{T1}")
        a(f"s_add_u32 m0, s{tVM + 1}, {r * 2048}")
        a(f"s_add_u32 s{T1}, s{T2}, 8192")
        a(f"buffer_load_dwordx4 v{ASRC}, {sr(S_T)}, s{T2} offen lds")
        a("s_add_u32 m0, m0, 1024")
        a("s_nop 0")
        a(f"buffer_load_dwordx4 v{ASRC}, {sr(S_T)}, s{T1} offen lds")
    a(tr_addr(13, 1, 2))
    a(f"v_add_u32 v13, s{tVM + 1}, v13")
    a("v_xor_b32 v14, 32, v13")
    a(p2_init_regs())
    a(p2_init_v())
    stamp(a, 11)
    a("s_waitcnt vmcnt(0)")
    a(poll_issue("L_pq2", QKV_MASK))
    for r in range(5):
        for ap in range(2):
            for t in range(2):
                a(f"ds_read_b64_tr_b16 {vr(64 + 8 * r + 4 * ap + 2 * t, 2)}, v{13 + ap} offset:{r * 2048 + t * 1024}")
        if r == 2:
            a("s_waitcnt lgkmcnt(4)")
    a("s_waitcnt lgkmcnt(0)")
    for r in range(5):
        a(f"s_add_u32 s{T0}, s{gs}, {256 * r}")
        a(f"s_and_b32 s{T1}, s{T0}, 7")
        a(f"s_lshr_b32 s{T2}, s{T0}, 3")
        a(f"s_mul_i32 s{T1}, s{T1}, 144")
        a(f"s_add_u32 s{T1}, s{T1}, s{T2}")
        a(f"s_lshl_b32 s{T1}, s{T1}, 11")
        a(f"s_add_u32 s{T1}, s{T1}, {WS_WT}")
        if r == 4:
            a(f"s_cmp_lt_u32 s{T0}, 1152")
            a(f"s_cselect_b32 s{T1}, s{T1}, {OOB}")
        a(f"buffer_store_dwordx4 {vr(64 + 8 * r, 4)}, v{L16}, {sr(S_WS)}, s{T1} offen sc1")
        a(f"buffer_store_dwordx4 {vr(64 + 8 * r + 4, 4)}, v{L16}, {sr(S_WS)}, s{T1} offen offset:1024 sc1")
    a("s_waitcnt vmcnt(10)")
    stamp(a, 13)
    a(poll_check("L_cq2", 32))
    a("s_barrier")
    a(q_load())
    for i in range(4):
        a(kv(i))
    a("s_waitcnt vmcnt(6)")
    a("s_barrier")
    a(sig_one("L_h_ns2", [f"s_add_u32 s{T0}, s{sRB}, {C_H}"]))
    if "prio" in OPT:
        a("s_setprio 1")
        a(lead(2))
    a("s_branch L_p2")


def att_step(i, ex=None, first=False):
    ex = ex or {}
    Sc, Sn = (S0, S1) if i % 2 == 0 else (S1, S0)
    Kn = K_ + 4 * ((i + 1) % 2)
    Vc = V_ + 8 * (i % 4)
    Vp = V_ + 8 * ((i - 1) % 4)
    e = lambda k: f"v_exp_f32 v{Sc + k}, v{Sc + k}"
    c = lambda k: f"v_cvt_pk_bf16_f32 v{P_ + k}, v{Sc + 2 * k}, v{Sc + 2 * k + 1}"
    r = [mfma(Sn, Kn, Q_, NM),
         f"ds_read_b128 {vr(Kn, 4)}, v{AK} offset:{(i + 3) * 2048}"]
    r += ex.get("qk", [])
    r += [e(0), e(1), e(2), e(3)]
    if not first:
        r.append(mfma(O_, Vp + 4, P_ + 4))
    if i % 2 == 0:
        r.append(f"s_mov_b64 exec, s[{tVM}:{tVM + 1}]")
        for d in (2, 3):
            vb = V_ + 8 * ((i + d) % 4)
            r.append(f"ds_read_b128 {vr(vb, 4)}, v{AV} offset:{(i + d) * 2048}")
            r.append(f"ds_read_b128 {vr(vb + 4, 4)}, v{AV} offset:{(i + d) * 2048 + 512}")
        r.append("s_mov_b64 exec, -1")
    r += ex.get("pv1", [])
    if "G2" in ex:
        r += [c(0), e(4), e(5), c(1)]
        r += [ex["G1"]] + ex.get("g1", [])
        r += [e(6), e(7), e(8), c(2), c(3), e(9)]
        r += ["s_nop 0", mfma(O_, Vc, P_)]
        if i % 2 == 1: r.append("s_waitcnt lgkmcnt(0)")
        r += ex.get("pv0", [])
        r += [e(10), e(11), c(4), e(12), c(5)]
        r += [ex["G2"]] + ex.get("g2", [])
        r += [e(13), e(14), e(15), c(6), c(7)]
    else:
        r += [c(0), e(4), e(5), c(1), e(6), e(7)]
        if "G1" in ex:
            r += [ex["G1"]]
        r += ex.get("g1", [])
        r += [e(8), c(2), c(3), e(9), e(10), e(11)]
        r.append(mfma(O_, Vc, P_, "0" if first else None))
        if i % 2 == 1: r.append("s_waitcnt lgkmcnt(0)")
        r += ex.get("pv0", [])
        r += [c(4), e(12), e(13), c(5), e(14), e(15), c(6), c(7)]
    r += ex.get("end", [])
    return r


def ring_loads(r):
    b = RING + 16 * r
    return [f"buffer_load_dwordx4 {vr(b, 4)}, v{A16}, {sr(R_H0)}, s{tFH} offen sc1",
            f"buffer_load_dwordx4 {vr(b + 4, 4)}, v{A16}, {sr(R_H1)}, s{tFH} offen sc1",
            f"buffer_load_dwordx4 {vr(b + 8, 4)}, v{A16}, {sr(R_WT)}, s{tFW} offen sc1",
            f"buffer_load_dwordx4 {vr(b + 12, 4)}, v{A16}, {sr(R_WT)}, s{tFW} offen offset:1024 sc1",
            f"s_add_u32 s{tFH}, s{tFH}, 1024",
            f"s_add_u32 s{tFW}, s{tFW}, 2048"]


def gm(r, n):
    b = RING + 16 * r
    return mfma(G_ + 16 * n, b + 8 + 4 * (n & 1), b + 4 * (n >> 1))


_pl = [0]
PC = (2, 6)
PD = 7
PG = 2


def lead(p, cond=None):
    if "prio" not in OPT:
        return []
    _pl[0] += 1
    lb = f"L_pr{_pl[0]}"
    c = [f"s_cmp_lt_u32 s{sW}, 4"] if cond is None else cond
    return c + [f"s_cbranch_scc0 {lb}", f"s_setprio {p}", f"{lb}:"]


def adv(a):
    a(f"v_add_u32 v{AK}, 0x4000, v{AK}")
    a(f"v_add_u32 v{AV}, 0x4000, v{AV}")


def gen_p2(a):
    a("L_p2:")
    stamp(a, 6)
    a(f"v_mov_b32 v{A16}, v{L16}")
    a(f"v_mov_b32 v{AK}, v{L16}")
    a("v_lshrrev_b32 v2, 5, v0")
    a("v_and_b32 v3, 15, v0")
    a("v_lshlrev_b32 v3, 4, v3")
    a("v_lshl_add_u32 v3, v2, 8, v3")
    a(f"v_add_u32 v{AV}, 1024, v3")
    a(f"s_mov_b32 s{tVM}, 0x0000ffff")
    a(f"s_mov_b32 s{tVM + 1}, 0x0000ffff")
    a(f"ds_read_b128 {vr(K_, 4)}, v{AK}")
    a(f"ds_read_b128 {vr(K_ + 4, 4)}, v{AK} offset:2048")
    a(f"s_mov_b64 exec, s[{tVM}:{tVM + 1}]")
    for d in range(2):
        a(f"ds_read_b128 {vr(V_ + 8 * d, 4)}, v{AV} offset:{d * 2048}")
        a(f"ds_read_b128 {vr(V_ + 8 * d + 4, 4)}, v{AV} offset:{d * 2048 + 512}")
    a("s_mov_b64 exec, -1")
    a(f"s_lshr_b32 s{T0}, s{sW}, 2")
    a(f"s_lshl1_add_u32 s{tTT}, s{tHEAD}, s{T0}")
    a(f"s_lshl_b32 s{T0}, s{tTT}, 15")
    a(f"s_lshl_b32 s{T1}, s{tQB}, 7")
    a(f"s_add_u32 s{T0}, s{T0}, s{T1}")
    a(f"s_and_b32 s{T1}, s{sW}, 3")
    a(f"s_lshl4_add_u32 s{T0}, s{T1}, s{T0}")
    a("v_and_b32 v1, 31, v0")
    a("v_lshlrev_b32 v1, 10, v1")
    a("v_lshl_add_u32 v1, v2, 6, v1")
    a(f"v_add_u32 v{AOUT}, s{T0}, v1")
    a("s_waitcnt lgkmcnt(4)")
    a(mfma(S0, K_, Q_, "0"))
    a(mfma(S1, K_ + 4, Q_, "0"))
    a(f"s_mul_i32 s{T0}, s{tHEAD}, {224 * 1024}")
    a(f"s_add_u32 s{T0}, s{T0}, {WS_H}")
    a(f"s_add_u32 s{R_H0}, s{pWS}, s{T0}")
    a(f"s_addc_u32 s{R_H0 + 1}, s{pWS + 1}, 0")
    a(f"s_add_u32 s{R_H1}, s{R_H0}, {112 * 1024}")
    a(f"s_addc_u32 s{R_H1 + 1}, s{R_H0 + 1}, 0")
    a(f"s_mul_i32 s{tFH}, s{sW}, {14 * 1024}")
    a(f"s_add_u32 s{R_H0 + 2}, s{tFH}, {14 * 1024}")
    a(f"s_mov_b32 s{R_H1 + 2}, s{R_H0 + 2}")
    a(f"s_mul_i32 s{T0}, s{tQB}, {144 * 2048}")
    a(f"s_add_u32 s{T0}, s{T0}, {WS_WT}")
    a(f"s_add_u32 s{R_WT}, s{pWS}, s{T0}")
    a(f"s_addc_u32 s{R_WT + 1}, s{pWS + 1}, 0")
    a(f"s_lshl_b32 s{tFW}, s{tFH}, 1")
    a(f"s_lshl_b32 s{R_WT + 2}, s{R_H0 + 2}, 1")
    a(f"v_max3_f32 v1, v{S0}, v{S0 + 1}, v{S0 + 2}")
    for i in range(3, 31, 2):
        a(f"v_max3_f32 v1, v1, v{S0 + i}, v{S0 + i + 1}")
    a(f"v_max_f32 v1, v1, v{S0 + 31}")
    a("v_mov_b32 v2, v1")
    a("s_nop 1")
    a("v_permlane32_swap_b32 v1, v2")
    a("v_max_f32 v1, v1, v2")
    a(f"v_sub_f32 v2, {hx(f2u(-MAXOFF))}, v1")
    a("v_mov_b32 v3, v2")
    for i in range(0, 16, 2):
        a(f"v_mov_b64 v[{NM + i}:{NM + i + 1}], v[2:3]")
    a("s_nop 1")
    a(mfma(S0, K_, Q_, NM))
    a(f"ds_read_b128 {vr(K_, 4)}, v{AK} offset:4096")
    srd(a, R_OUT, pOUT, 2097152)
    a(f"s_lshl_b32 s{T0}, s{sW}, 11")
    a(f"v_add_u32 v{AW}, s{T0}, v{A16}")
    a(f"v_add_u32 v{AW + 1}, 0x10000, v{AW}")
    a(f"v_add_u32 v{AW + 2}, 0x20000, v{AW}")
    a("s_waitcnt lgkmcnt(0)")
    a("s_nop 1")
    a(lead(2))
    stamp(a, 7)
    global NOSTAMP
    if "side" in OPT: NOSTAMP = True
    for i in range(8):
        ex = {}
        if i == 4:
            d1, d2 = (stampl(1), stampl(2)) if "p3b" in OPT else ([], [])
            ex["end"] = d1 + ["s_waitcnt vmcnt(0)", "s_barrier"] + d2 + sig_one("L_h_ns", [f"s_add_u32 s{T0}, s{sRB}, {C_H}"], True) + lead(2)
        if i == 3:
            ex["pv0"] = lead(0)
        if i >= 5:
            ex["pv1"], ex["pv0"] = kv(i - 1, A16)
        a(att_step(i, ex, first=(i == 0)))
    adv(a)
    for i in range(8):
        ex = {}
        if i == 0:
            ex["pv1"], ex["pv0"] = kv(7, A16)
        if i == 3:
            ex["pv0"] = poll_issue("L_h_np", H_MASK, 7) + lead(0)
        if i == 4:
            d1, d2 = (stampl(3), stampl(4)) if "p3b" in OPT else ([], [])
            ex["end"] = d1 + ["s_waitcnt vmcnt(0)"] + poll_check("L_ch", 16, 7, 16) + ["s_barrier"] + d2 + lead(2)
        if i in (5, 6, 7):
            l = ring_loads(i - 5)
            ex["qk"] = l[0:1]
            ex["pv1"] = l[1:3]
            ex["pv0"] = l[3:6]
        a(att_step(i, ex))
    stamp(a, 8)
    a(f"s_mov_b32 s{tIT}, 5")
    a(f"s_lshr_b32 s{sG}, s{sW}, 2")
    a(f"s_lshl_b32 s{sG}, s{sG}, 4")
    a(f"s_add_u32 s{sG}, s{sG}, {PC[0]}")
    a("L_loop:")
    adv(a)
    plan = [[(0, 0)], [(0, 1), (0, 2)], [(0, 3)], [(1, 0), (1, 1)], [(1, 2)], [(1, 3), (2, 0)], [(2, 1)], [(2, 2), (2, 3)]]
    for i in range(8):
        ex = {}
        ex["G1"] = gm(*plan[i][0])
        if len(plan[i]) > 1:
            ex["G2"] = gm(*plan[i][1])
        if i == 0: ex["qk"] = ["s_waitcnt vmcnt(8)"]
        if i == PC[1]: ex["end"] = lead(0, [f"s_cmp_eq_u32 s{tIT}, s{sG}"])
        if i == 2:
            l = ring_loads(0)
            ex["g1"] = l[0:2]
            ex["pv0"] = l[2:6]
        if i == 3: ex["pv1"] = ["s_waitcnt vmcnt(8)"]
        if i == 5:
            l = ring_loads(1)
            ex["g1"] = l[0:2]
            ex["pv0"] = l[2:6] + ["s_waitcnt vmcnt(8)"]
        if i == 7:
            ex["g2"] = ring_loads(2)
        a(att_step(i, ex))
    a(f"s_sub_u32 s{tIT}, s{tIT}, 1")
    a(f"s_cmp_lg_u32 s{tIT}, 0")
    a("s_cbranch_scc1 L_loop")
    adv(a)
    a(f"s_and_b32 s{tFW}, s{sW}, 3")
    a(f"s_lshl_b32 s{tFW}, s{tFW}, 14")
    a(f"s_add_u32 s{tFW}, s{tFW}, {112 * 2048}")
    a(f"s_mov_b32 s{R_WT + 2}, {144 * 2048}")
    if "p3b" in OPT: stamp(a, 5)
    a("s_barrier")
    if "p3b" in OPT: stamp(a, 6)
    a(lead(2))

    def pw(o):
        base, off = (AW, o * 16384) if o < 4 else ((AW + 1, (o - 4) * 16384) if o < 6 else (AW + 2, (o - 6) * 16384))
        return [f"ds_write_b128 v{base}, {vr(G_ + 8 * o, 4)} offset:{off}",
                f"ds_write_b128 v{base}, {vr(G_ + 8 * o + 4, 4)} offset:{off + 1024}"]

    XV = 244
    wreg = lambda i: RING + 4 * i if i < 12 else NM + 4 * (i - 12)

    def wol(g):
        return [f"buffer_load_dwordx4 {vr(wreg(4 * g + q), 4)}, v{A16}, {sr(R_WT)}, s{tFW} offen offset:{q * 1024} sc1" for q in range(4)] + \
               [f"s_add_u32 s{tFW}, s{tFW}, 4096"]
    for i in range(8):
        ex = {}
        if i == 0: ex["pv0"] = [f"buffer_load_dwordx4 {vr(XV, 4)}, v{AOUT}, {sr(S_X)}, 0 offen"]
        if i in (1, 3, 5): ex["pv1"], ex["g1"] = wol(i // 2)[:1], wol(i // 2)[1:2]
        if i in (2, 4, 6): ex["g1"], ex["pv0"] = wol(i // 2 - 1)[2:3], wol(i // 2 - 1)[3:]
        if i == PD: ex["end"] = lead(0)
        a(att_step(i, ex))
    a("s_nop 1")
    a(mfma(O_, V_ + 24 + 4, P_ + 4))
    a(f"s_lshl_b32 s{T0}, s{tQB}, 3")
    a(f"s_add_u32 s{T0}, s{T0}, s{sW}")
    a(f"s_lshl_b32 s{T0}, s{T0}, 5")
    a(f"s_add_u32 s{T0}, s{T0}, s{tHEAD}")
    a(f"s_lshl_b32 s{T0}, s{T0}, 10")
    a(f"s_add_u32 s{T3}, s{T0}, {WS_O}")
    a(f"v_mov_b32 v2, {hx(f2u(2.0 ** 120))}")
    a(f"v_mov_b32 v3, {hx(f2u(2.0 ** -90))}")
    a("s_waitcnt lgkmcnt(0)")
    a("s_nop 3")
    stamp(a, 9)
    a(f"v_add_f32 v1, |v{O_}|, |v{O_ + 1}|")
    for i in range(2, 8):
        a(f"v_add_f32 v1, v1, |v{O_ + i}|")
    a(f"v_cmp_lt_f32 s[40:41], v{O_ + 8}, v2")
    a("v_cmp_lt_f32 s[42:43], v1, v2")
    a(f"v_cmp_le_f32 s[50:51], 0.5, v{O_ + 8}")
    a("v_cmp_le_f32 vcc, v3, v1")
    a("s_or_b64 s[50:51], s[50:51], vcc")
    a("s_and_b64 s[40:41], s[40:41], s[42:43]")
    a("s_and_b64 s[40:41], s[40:41], s[50:51]")
    a("s_cmp_eq_u64 s[40:41], -1")
    a("s_cbranch_scc0 L_fallback")
    a("L_norm:")
    a(f"v_rcp_f32 v2, v{O_ + 8}")
    a("s_nop 0")
    for i in range(8):
        a(f"v_mul_f32 v{O_ + i}, v{O_ + i}, v2")
    for i in range(4):
        a(f"v_cvt_pk_bf16_f32 v{4 + i}, v{O_ + 2 * i}, v{O_ + 2 * i + 1}")
    a(f"buffer_store_dwordx4 v[4:7], v{A16}, {sr(S_WS)}, s{T3} offen sc1")
    a(wol(3)[:4])
    for o in range(8):
        a(pw(o))
    a(f"s_lshl_b32 s{T0}, s{sW}, 14")
    a(f"s_add_u32 s{T1}, s{T0}, 0x8000")
    a(f"s_cmp_lt_u32 s{sW}, 6")
    a(f"s_cselect_b32 s{T0}, s{T0}, s{T1}")
    a(f"v_add_u32 v3, s{T0}, v{A16}")
    a("s_waitcnt vmcnt(4) lgkmcnt(0)")
    a("s_barrier")
    stamp(a, 10)
    a(f"s_cmp_lg_u32 s{sW}, 0")
    a("s_cbranch_scc1 L_o_ns")
    a(f"s_lshl_b32 s{T0}, s{tQB}, 8")
    a(f"s_add_u32 s{T0}, s{T0}, {WS_CNT + C_O * 256}")
    a("v_mov_b32 v1, 1")
    a("s_mov_b64 exec, 1")
    a(f"buffer_atomic_add v1, off, {sr(S_WS)}, s{T0} sc1")
    a("s_mov_b64 exec, -1")
    a("L_o_ns:")
    F_ = G_
    for s in range(8):
        for i in range(2):
            a(f"ds_read_b128 {vr(F_ + 8 * s + 4 * i, 4)}, v3 offset:{(s * 2 + i) * 1024}")
        if s == 6:
            a("s_waitcnt lgkmcnt(10)")
    for s in range(1, 8):
        a(f"s_waitcnt lgkmcnt({2 * (7 - s)})")
        for i in range(4):
            a(f"v_pk_add_f32 {vr(F_ + 2 * i, 2)}, {vr(F_ + 2 * i, 2)}, {vr(F_ + 8 * s + 2 * i, 2)}")
    T_ = F_ + 8
    a(f"v_mov_b32 v4, {hx(f2u(-LOG2E))}")
    for i in range(8):
        a(f"v_mul_f32 v{T_ + i}, v{F_ + i}, v4")
    for i in range(8):
        a(f"v_exp_f32 v{T_ + i}, v{T_ + i}")
    a("s_nop 0")
    for i in range(8):
        a(f"v_add_f32 v{T_ + i}, 1.0, v{T_ + i}")
    for i in range(8):
        a(f"v_rcp_f32 v{T_ + i}, v{T_ + i}")
    a("s_nop 0")
    for i in range(4):
        a(f"v_pk_mul_f32 {vr(F_ + 2 * i, 2)}, {vr(F_ + 2 * i, 2)}, {vr(T_ + 2 * i, 2)}")
    XU = G_ + 16
    for i in range(4):
        a(f"v_lshlrev_b32 v{XU + 2 * i}, 16, v{XV + i}")
        a(f"v_and_b32 v{XU + 2 * i + 1}, 0xffff0000, v{XV + i}")
    a(f"s_lshr_b32 s{T0}, s{sW}, 2")
    a(f"s_lshl_b32 s{T0}, s{T0}, 15")
    a(f"s_and_b32 s{T1}, s{sW}, 3")
    a(f"s_lshl_b32 s{T2}, s{T1}, 11")
    a(f"s_add_u32 s{T0}, s{T0}, s{T2}")
    a(f"v_add_u32 v1, s{T0}, v{A16}")
    a(f"s_lshl_b32 s{T0}, s{sW}, 13")
    a(f"v_add_u32 v3, s{T0}, v{A16}")
    a(f"s_lshl_b32 s{T0}, s{tTT}, 5")
    a(f"s_lshl_b32 s{T1}, s{T1}, 3")
    a(f"s_add_u32 s{T0}, s{T0}, s{T1}")
    a(f"s_lshl_b32 s{T0}, s{T0}, 10")
    a(f"s_add_u32 s{T2}, s{T0}, {WS_O}")
    a(f"s_add_u32 s{T3}, s{T2}, 4096")
    stamp(a, 11)
    a(f"s_cmp_lg_u32 s{sW}, 0")
    a("s_cbranch_scc1 L_o_ok")
    a(f"s_lshl_b32 s{T0}, s{sXCD}, 8")
    a(f"s_add_u32 s{T0}, s{T0}, {WS_CNT + C_O * 256}")
    a(f"s_mov_b32 s{T1}, {SPIN}")
    a("L_o_poll:")
    a(f"buffer_load_dword v4, off, {sr(S_WS)}, s{T0} sc1")
    a("s_waitcnt vmcnt(0)")
    a("v_readfirstlane_b32 s40, v4")
    a("s_cmp_ge_u32 s40, 32")
    a("s_cbranch_scc1 L_o_ok")
    a(f"s_sub_u32 s{T1}, s{T1}, 1")
    a(f"s_cmp_lg_u32 s{T1}, 0")
    a("s_cbranch_scc1 L_o_poll")
    a("L_o_ok:")
    a("s_barrier")
    stamp(a, 12)
    OF = S0
    SA = V_
    for j in range(8):
        so = T2 if j < 4 else T3
        a(f"buffer_load_dwordx4 {vr(OF + 4 * j, 4)}, v{A16}, {sr(S_WS)}, s{so} offen offset:{(j % 4) * 1024} sc1")
    for j in range(8):
        a(f"s_waitcnt vmcnt({7 - j})")
        for ap in range(2):
            a(mfma(SA + 16 * ap, wreg(2 * j + ap), OF + 4 * j, "0" if j == 0 else None))
    stamp(a, 13)
    a("s_nop 11")
    for o in range(4):
        for i in range(2):
            a(f"ds_write_b128 v1, {vr(SA + 8 * o + 4 * i, 4)} offset:{o * 8192 + i * 1024}")
    a("s_waitcnt lgkmcnt(0)")
    a("s_barrier")
    for s in range(4):
        for i in range(2):
            a(f"ds_read_b128 {vr(SA + 8 * s + 4 * i, 4)}, v3 offset:{(s * 2 + i) * 1024}")
    for s in range(1, 4):
        a(f"s_waitcnt lgkmcnt({2 * (3 - s)})")
        for i in range(4):
            a(f"v_pk_add_f32 {vr(SA + 2 * i, 2)}, {vr(SA + 2 * i, 2)}, {vr(SA + 8 * s + 2 * i, 2)}")
    for i in range(4):
        a(f"v_pk_fma_f32 {vr(XU + 2 * i, 2)}, {vr(SA + 2 * i, 2)}, {vr(F_ + 2 * i, 2)}, {vr(XU + 2 * i, 2)}")
    for i in range(4):
        a(f"v_cvt_pk_bf16_f32 v{4 + i}, v{XU + 2 * i}, v{XU + 2 * i + 1}")
    fl = " sc1" if "osc1" in OPT else (" nt" if "ont" in OPT else (" sc0 sc1" if "osc01" in OPT else ""))
    a(f"buffer_store_dwordx4 v[4:7], v{AOUT}, {sr(R_OUT)}, 0 offen{fl}")
    stamp(a, 14)
    stamp_flush(a)
    a("L_exit:")
    a("s_endpgm")
    a("L_fallback:")
    a(f"s_lshl_b32 s{T0}, s{tHEAD}, 16")
    a(f"s_add_u32 s{T0}, s{T0}, {32 << 16}")
    a(f"s_mov_b32 s{T1}, 0")
    a("v_mov_b32 v1, 0xff800000")
    a("L_fb1:")
    a(f"s_add_u32 s{T2}, s{T0}, s{T1}")
    a(f"buffer_load_dwordx4 {vr(K_, 4)}, v{A16}, {sr(S_WS)}, s{T2} offen sc1")
    a("s_waitcnt vmcnt(0)")
    a(mfma(S0, K_, Q_, "0"))
    a("s_nop 15")
    for i in range(0, 16, 2):
        a(f"v_max3_f32 v1, v1, v{S0 + i}, v{S0 + i + 1}")
    a(f"s_add_u32 s{T1}, s{T1}, 1024")
    a(f"s_cmp_lt_u32 s{T1}, 65536")
    a("s_cbranch_scc1 L_fb1")
    a("v_mov_b32 v2, v1")
    a("s_nop 1")
    a("v_permlane32_swap_b32 v1, v2")
    a("v_max_f32 v1, v1, v2")
    a("v_sub_f32 v1, 0, v1")
    for i in range(16):
        a(f"v_mov_b32 v{NM + i}, v1")
    for i in range(16):
        a(f"v_mov_b32 v{O_ + i}, 0")
    a("v_lshrrev_b32 v2, 5, v0")
    a("v_and_b32 v3, 15, v0")
    a("v_lshlrev_b32 v3, 4, v3")
    a("v_lshl_add_u32 v3, v2, 8, v3")
    a(f"s_mov_b32 s{T1}, 0")
    a("L_fb2:")
    a(f"s_add_u32 s{T2}, s{T0}, s{T1}")
    a(f"buffer_load_dwordx4 {vr(K_, 4)}, v{A16}, {sr(S_WS)}, s{T2} offen sc1")
    a(f"s_add_u32 s{T2}, s{T2}, {32 << 16}")
    a(f"s_mov_b64 exec, s[{tVM}:{tVM + 1}]")
    a(f"buffer_load_dwordx4 {vr(V_, 4)}, v3, {sr(S_WS)}, s{T2} offen sc1")
    a(f"buffer_load_dwordx4 {vr(V_ + 4, 4)}, v3, {sr(S_WS)}, s{T2} offen offset:512 sc1")
    a("s_mov_b64 exec, -1")
    a("s_waitcnt vmcnt(0)")
    a(mfma(S0, K_, Q_, NM))
    a("s_nop 15")
    for i in range(16):
        a(f"v_exp_f32 v{S0 + i}, v{S0 + i}")
    a("s_nop 0")
    for i in range(8):
        a(f"v_cvt_pk_bf16_f32 v{P_ + i}, v{S0 + 2 * i}, v{S0 + 2 * i + 1}")
    a("s_nop 1")
    a(mfma(O_, V_, P_))
    a(mfma(O_, V_ + 4, P_ + 4))
    a(f"s_add_u32 s{T1}, s{T1}, 1024")
    a(f"s_cmp_lt_u32 s{T1}, 65536")
    a("s_cbranch_scc1 L_fb2")
    a("s_nop 15")
    a("s_branch L_norm")


def main(out):
    a = Asm()
    k = NAME + "_kernel"
    hdr = ["; LN + MHA + GEGLU block, one persistent launch; generated by gen3.py (hand-scheduled gfx950 assembly)",
           "; @launch grid=(256,1,1) block=(512,1,1) lds=163840"]
    a('.amdgcn_target "amdgcn-amd-amdhsa--gfx950"')
    a(".text")
    a(f".globl {k}\n.p2align 8\n.type {k},@function\n{k}:")
    gen_p1(a)
    gen_p2(a)
    gen_side(a)
    a("L_end:")
    a('.section .rodata,"a"')
    a(".p2align 6")
    a(f".amdhsa_kernel {k}")
    a(f".amdhsa_next_free_vgpr {NVGPR}")
    a(f".amdhsa_next_free_sgpr {96 if (STAMPS or ENC is not None) else 80}")
    a(f".amdhsa_accum_offset {(NVGPR + 3) // 4 * 4}")
    a(".amdhsa_group_segment_fixed_size 0")
    a(".amdhsa_kernarg_size 80")
    a(".amdhsa_user_sgpr_count 2")
    a(".amdhsa_user_sgpr_kernarg_segment_ptr 1")
    a(".amdhsa_system_sgpr_workgroup_id_x 1")
    a(".end_amdhsa_kernel")
    open(out, "w").write("\n".join(hdr) + "\n" + a.text())


if __name__ == "__main__":
    for x in list(sys.argv):
        if x.startswith("--opt="):
            OPT = set(x[6:].split(","))
            sys.argv.remove(x)
    for x in list(sys.argv):
        if x.startswith("--enc="):
            ENC = int(x[6:])
            sys.argv.remove(x)
    for o in OPT:
        if o.startswith("pc"): PC = (int(o[2]), int(o[3]))
        if o.startswith("pd"): PD = int(o[2])
        if o.startswith("pg"): PG = int(o[2])
    if "--cyc" in sys.argv:
        STAMPS = 2
        sys.argv.remove("--cyc")
    if "--stamps" in sys.argv:
        STAMPS = True
        sys.argv.remove("--stamps")
    main(sys.argv[1] if len(sys.argv) > 1 else f"cdna_kernels/{NAME}.s")
```

```python
import sys, struct, math

NAME = "recurrent_scan__mha_block__glu_gated_geglu__prompt"

WS_QKV = 0
WS_H = 6 << 20
WS_O = 14 << 20
WS_CNT = 16 << 20
WS_STAMP = (16 << 20) + 65536
WS_CS = (16 << 20) + 0xb0000
WS_ST = (16 << 20) + 0x80000
WS_CQ = (16 << 20) + 0xa0000
WS_RS = (16 << 20) + 0x84000
WS_CP = (19 << 20) + 0x80000
WS_WT = 17 << 20
WS_SIZE = 21 << 20
OOB = 0x7f000000

LOG2E = 1.4426950408889634
QSCALE = 0.25 * LOG2E
GC1 = -2.0 * LOG2E * math.sqrt(2.0 / math.pi)
GC2 = GC1 * 0.044715
MAXOFF = 80.0
SPIN = 0x40000

STAMPS = False
OPT = set()
NOSTAMP = False
ENC = None


def f2u(x):
    return struct.unpack("<I", struct.pack("<f", x))[0]


def hx(x):
    return "0x%08x" % (x & 0xffffffff)


class Asm:
    def __init__(self):
        self.l = []

    def __call__(self, s):
        if isinstance(s, (list, tuple)):
            for x in s:
                self(x)
            return
        for line in s.split("\n"):
            line = line.strip()
            if not line:
                continue
            if line.endswith(":") or line.startswith("."):
                self.l.append(line)
            else:
                self.l.append("    " + line)

    def text(self):
        return "\n".join(self.l) + "\n"


def vr(b, n):
    return f"v[{b}:{b + n - 1}]"


def sr(b):
    return f"s[{b}:{b + 3}]"


def mfma(d, a, b, c=None):
    cs = vr(d, 16) if c is None else (c if isinstance(c, str) else vr(c, 16))
    return f"v_mfma_f32_32x32x16_bf16 {vr(d, 16)}, {vr(a, 4)}, {vr(b, 4)}, {cs}"


def stamp(a, n):
    if ENC is not None:
        if n in (0, ENC) and not NOSTAMP:
            a("s_memrealtime s[76:77]")
            a("s_waitcnt lgkmcnt(0)")
            a(f"s_mov_b32 s{80 if n == 0 else 81}, s76")
            if n == 0:
                a("s_mov_b32 s81, s76")
        return
    if not STAMPS or (NOSTAMP and n != 15) or ("min" in OPT and n not in (0, 15)):
        return
    a("s_memtime s[76:77]" if STAMPS == 2 else "s_memrealtime s[76:77]")
    a("s_waitcnt lgkmcnt(0)")
    a(f"s_mov_b32 s{80 + n}, s76")


def stampl(n):
    t = Asm()
    stamp(t, n)
    return [x.strip() for x in t.l]


def stamp_flush(a):
    if ENC is not None:
        a("s_waitcnt vmcnt(0)")
        a("s_memrealtime s[76:77]")
        a("s_waitcnt lgkmcnt(0)")
        if ENC == 15:
            a("s_mov_b32 s81, s76")
        if ENC == 99:
            a(["v_mov_b32 v1, 0", f"global_load_dword v2, v1, s[{pDBG}:{pDBG + 1}] offset:240 sc1", "s_waitcnt vmcnt(0)",
               "v_readfirstlane_b32 s80, v2", "s_not_b32 s80, s80"])
        a("s_sub_u32 s81, s81, s80")
        a("s_mov_b32 s80, s76")
        a("L_enc:")
        a("s_memrealtime s[76:77]")
        a("s_waitcnt lgkmcnt(0)")
        a("s_sub_u32 s76, s76, s80")
        a("s_cmp_lt_u32 s76, s81")
        a("s_cbranch_scc1 L_enc")
        return
    if not STAMPS:
        return
    a("s_waitcnt vmcnt(0)")
    stamp(a, 15)
    a("v_mov_b32 v1, 0")
    for n in range(16):
        a(f"v_writelane_b32 v1, s{80 + n}, {n}")
    a("s_lshl_b32 s76, s2, 3")
    a(f"s_add_u32 s76, s76, s{sW}")
    a("s_lshl_b32 s76, s76, 6")
    a(f"s_add_u32 s76, s76, {WS_STAMP}")
    a("v_lshlrev_b32 v2, 2, v0")
    a("s_mov_b64 exec, 0xffff")
    a(f"buffer_store_dword v1, v2, {sr(S_WS)}, s76 offen")


def srd(a, s, ptr, size):
    a(f"s_mov_b32 s{s}, s{ptr}")
    a(f"s_mov_b32 s{s + 1}, s{ptr + 1}")
    a(f"s_mov_b32 s{s + 2}, {size}")
    a(f"s_mov_b32 s{s + 3}, 0x00020000")


pX, pWQKV, pWO, pG, pU, pWD, pOUT, pDBG, pWS = 56, 58, 60, 64, 66, 68, 70, 72, 74
S_T, S_X, S_W0, S_W1, S_W3, S_WS = 4, 8, 12, 16, 20, 24
R_OUT, R_H0, R_H1, R_WT = 4, 12, 16, 20
sW, sTT, sHF, sRB, sCB, sROT, sISS, sVAR = 28, 29, 30, 31, 32, 33, 34, 35
sCQ, sCG, sXROW, sLW = 36, 37, 42, 43
T0, T1, T2, T3 = 44, 45, 46, 47
sXCD, sT, sG, sKV = 49, 52, 53, 50
tHEAD, tQB, tIT, tFH, tFW, tTT = 38, 39, 33, 36, 37, 48
tVM = 54

AR, BR, CR, SL = 0, 49152, 98304, 16384
SCR = 147456
XA, VXS, VW0, WQ, WC = 4, 8, 9, 10, 12
VW1, VW3, L16, MASK, ONES, STV, POLL = 14, 15, 16, 17, 18, 20, 21
CSA = 24
WF = 32
ACF, ACQ = 64, 96
XF = 128
Q_, K_, P_, NM, S0, S1, RING = 8, 12, 20, 28, 44, 60, 76
AK, AV, A16, AOUT = 124, 125, 126, 127
G_, V_, O_, AW = 128, 192, 224, 240
NVGPR = 256
C_H, C_CS, C_O = 24, 40, 56
T4 = 63
sCF, sCNT = 51, 62


def tiny(d, a_, b_, first=False):
    return f"v_mfma_f32_4x4x4_16b_bf16 {vr(d, 4)}, {vr(a_, 2)}, {vr(b_, 2)}, {'0' if first else vr(d, 4)}"


def dma(S, ffn=True):
    sl = (S % 3) * SL
    if S < 8:
        r = [[f"s_add_u32 s{T1}, s{sROT}, {S}", f"s_and_b32 s{T1}, s{T1}, 7",
              f"s_lshl_b32 s{T0}, s{T1}, 7", f"s_add_u32 m0, s{sLW}, {AR + sl}", f"s_add_u32 s{T0}, s{T0}, s{sXROW}",
              f"buffer_load_dwordx4 v{VXS}, {sr(S_X)}, s{T0} offen lds"],
             [f"s_mul_i32 s{T4}, s{T1}, {64 * 3584}",
              f"s_mul_i32 s{T1}, s{T1}, {64 * 3072}", f"s_add_u32 m0, s{sLW}, {BR + sl}", f"s_add_u32 s{T1}, s{T1}, s{sCQ}",
              f"buffer_load_dwordx4 v{VW0}, {sr(S_W0)}, s{T1} offen lds"],
             [f"s_add_u32 m0, s{sLW}, {AR + sl + 8192}", f"s_add_u32 s{T0}, s{T0}, 0x10000",
              f"buffer_load_dwordx4 v{VXS}, {sr(S_X)}, s{T0} offen lds"],
             [f"s_add_u32 m0, s{sLW}, {BR + sl + 8192 - 128}", "s_nop 0",
              f"buffer_load_dwordx4 v{VW0}, {sr(S_W0)}, s{T1} offen offset:128 lds"]]
        if ffn:
            r += [[f"s_add_u32 m0, s{sLW}, {CR + sl}", f"s_add_u32 s{T4}, s{T4}, s{sCG}",
                   f"buffer_load_dwordx4 v{VW1}, {sr(S_W1)}, s{T4} offen lds"],
                  [f"s_add_u32 m0, s{sLW}, {CR + sl + 8192}", "s_nop 0",
                   f"buffer_load_dwordx4 v{VW3}, {sr(S_W3)}, s{T4} offen lds"]]
        return r
    if not ffn:
        return []
    r = []
    for hb, base in enumerate((BR, CR)):
        r += [[f"s_add_u32 s{T1}, s{sROT}, {2 * (S - 8) + hb}", f"s_and_b32 s{T1}, s{T1}, 7",
               f"s_mul_i32 s{T1}, s{T1}, {64 * 3584}", f"s_add_u32 m0, s{sLW}, {base + sl - 128}", f"s_add_u32 s{T1}, s{T1}, s{sCG}",
               f"buffer_load_dwordx4 v{VW1}, {sr(S_W1)}, s{T1} offen offset:128 lds"],
              [f"s_add_u32 m0, s{sLW}, {base + sl + 8192 - 128}", "s_nop 0",
               f"buffer_load_dwordx4 v{VW3}, {sr(S_W3)}, s{T1} offen offset:128 lds"]]
    return r


def fset(k, ffn):
    return WF + 16 * (k & 1) if ffn else WF + 8 * (k & 3)


def rd1(k, nt, ffn):
    S, ks = k >> 2, k & 3
    sl = (S % 3) * SL
    F = fset(k, ffn)
    r = [f"ds_read_b128 {vr(XF + 4 * k, 4)}, v{XA + ks} offset:{sl}"]
    for t in range(nt):
        for t2 in range(2):
            r.append(f"ds_read_b64_tr_b16 {vr(F + 4 * t + 2 * t2, 2)}, v{WQ + t} offset:{sl + ks * 2048 + t2 * 512}")
    if ffn:
        for c in range(2):
            for t2 in range(2):
                r.append(f"ds_read_b64_tr_b16 {vr(F + 8 + 4 * c + 2 * t2, 2)}, v{WC + c} offset:{sl + ks * 2048 + t2 * 512}")
    return r


def rd2(u):
    S = 8 + (u >> 2)
    sl = (S % 3) * SL
    base = WQ if (u & 3) < 2 else WC
    F = WF + 16 * (u & 1)
    return [f"ds_read_b64_tr_b16 {vr(F + 8 * q + 4 * c + 2 * t2, 2)}, v{base + c} offset:{sl + ((2 * u + q) & 3) * 2048 + t2 * 512}"
            for q in range(2) for c in range(2) for t2 in range(2)]


def flat(L):
    return [x for at in L for x in ([at] if isinstance(at, str) else at)]


def spread(heads, first, rest):
    n = len(heads)
    pf = -(-len(first) // max(1, n - 1)) if first else 0
    res = []
    for j, hd in enumerate(heads):
        res.append(hd)
        res += flat(first[j * pf:(j + 1) * pf])
        res += flat(rest[j * len(rest) // n:(j + 1) * len(rest) // n])
    return res


def nvm(lines):
    return sum(1 for l in lines if l.startswith("buffer_") or l.startswith("global_"))


def weave(heads, fills):
    res = []
    per = -(-len(fills) // len(heads)) if fills else 0
    i = 0
    for hd in heads:
        res.append(hd)
        for at in fills[i:i + per]:
            res += [at] if isinstance(at, str) else at
        i += per
    return res


def tr_addr(dst, t_a, t_b):
    return [f"v_lshrrev_b32 v{t_a}, 5, v0", f"v_bfe_u32 v{t_b}, v0, 2, 2", f"v_lshl_add_u32 v{dst}, v{t_a}, 2, v{t_b}",
            f"v_lshlrev_b32 v{dst}, 7, v{dst}", f"v_and_b32 v{t_a}, 1, v0", f"v_lshl_add_u32 v{dst}, v{t_a}, 6, v{dst}",
            f"v_bfe_u32 v{t_a}, v0, 4, 1", f"v_lshl_add_u32 v{dst}, v{t_a}, 4, v{dst}", f"v_bfe_u32 v{t_a}, v0, 1, 1",
            f"v_lshl_add_u32 v{dst}, v{t_a}, 3, v{dst}", f"v_lshrrev_b32 v{t_b}, 1, v{t_b}", f"v_lshl_add_u32 v{dst}, v{t_b}, 5, v{dst}"]


def split3(w, src):
    return [f"v_and_b32 v{w}, v{MASK}, v{src}", f"v_sub_f32 v{w + 2}, v{src}, v{w}",
            f"v_and_b32 v{w + 1}, v{MASK}, v{w + 2}", f"v_sub_f32 v{w + 2}, v{w + 2}, v{w + 1}", f"v_mov_b32 v{w + 3}, 0"]


def poll_issue(lbl, mask_instrs, reg=POLL):
    return ([f"s_cmp_lg_u32 s{sW}, 0", f"s_cbranch_scc1 {lbl}", "v_lshlrev_b32 v1, 8, v0"] + mask_instrs +
            ["s_mov_b64 exec, s[40:41]",
             f"buffer_load_dword v{reg}, v1, {sr(S_WS)}, s{sCNT} offen sc1", "s_mov_b64 exec, -1", f"{lbl}:"])


def poll_check(lbl, thr, reg=POLL, sleep=8):
    return [f"s_cmp_lg_u32 s{sW}, 0", f"s_cbranch_scc1 {lbl}_ok",
            f"s_mov_b32 s{T3}, {SPIN}", "s_mov_b64 exec, s[40:41]", f"{lbl}_spin:",
            f"v_cmp_gt_u32 vcc, {thr}, v{reg}", "s_cmp_eq_u64 vcc, 0", f"s_cbranch_scc1 {lbl}_done",
            f"s_sleep {sleep}",
            f"buffer_load_dword v{reg}, v1, {sr(S_WS)}, s{sCNT} offen sc1", "s_waitcnt vmcnt(0)",
            f"s_sub_u32 s{T3}, s{T3}, 1", f"s_cmp_lg_u32 s{T3}, 0", f"s_cbranch_scc1 {lbl}_spin",
            f"{lbl}_done:", "s_mov_b64 exec, -1", f"{lbl}_ok:"]


QKV_MASK = [f"s_lshl_b32 s40, 0x10101, s{sXCD}", "s_mov_b32 s41, 0"]
CS_MASK = ["s_mov_b32 s40, 0", f"s_lshl_b32 s41, 0x100, s{sCF}"]
H_MASK = ["s_mov_b32 s40, 0xff000000", "s_mov_b32 s41, 0xff"]


def cs_issue(lbl, n):
    return [f"s_cmp_lg_u32 s{sW}, 0", f"s_cbranch_scc1 {lbl}", "v_lshlrev_b32 v1, 6, v0", "s_mov_b64 exec, 15",
            f"global_load_dword v{POLL}, v1, s[{pDBG}:{pDBG + 1}] offset:{4 * n} sc1", "s_mov_b64 exec, -1", f"{lbl}:"]


def cs_signal(lbl, n):
    return [f"s_cmp_lg_u32 s{sW}, 0", f"s_cbranch_scc1 {lbl}", f"s_and_b32 s{T2}, s{sRB}, 3", f"s_lshl_b32 s{T2}, s{T2}, 6",
            f"v_mov_b32 v2, s{T2}", "v_mov_b32 v3, 1", "s_mov_b64 exec, 1",
            f"global_atomic_add v2, v3, s[{pDBG}:{pDBG + 1}] offset:{4 * n} sc1", "s_mov_b64 exec, -1", f"{lbl}:"]


def cs_check(lbl, n):
    return [f"s_cmp_lg_u32 s{sW}, 0", f"s_cbranch_scc1 {lbl}_ok",
            f"s_mov_b32 s{T3}, {SPIN}", "s_mov_b64 exec, 15", f"{lbl}_spin:",
            f"v_cmp_gt_u32 vcc, 8, v{POLL}", "s_cmp_eq_u64 vcc, 0", f"s_cbranch_scc1 {lbl}_done",
            "s_sleep 8",
            f"global_load_dword v{POLL}, v1, s[{pDBG}:{pDBG + 1}] offset:{4 * n} sc1", "s_waitcnt vmcnt(0)",
            f"s_sub_u32 s{T3}, s{T3}, 1", f"s_cmp_lg_u32 s{T3}, 0", f"s_cbranch_scc1 {lbl}_spin",
            f"{lbl}_done:", "s_mov_b64 exec, -1", f"{lbl}_ok:"]


def flag_check(lbl):
    return [f"s_cmp_lg_u32 s{sW}, 0", f"s_cbranch_scc1 {lbl}",
            f"s_mov_b32 s{T3}, {SPIN}", f"{lbl}_spin:",
            f"v_readfirstlane_b32 s{T2}, v{POLL}", f"s_cmp_lg_u32 s{T2}, 0", f"s_cbranch_scc1 {lbl}",
            "s_sleep 8", "v_mov_b32 v2, 0",
            f"global_load_dword v{POLL}, v2, s[{pDBG}:{pDBG + 1}] offset:32 sc1", "s_waitcnt vmcnt(0)",
            f"s_sub_u32 s{T3}, s{T3}, 1", f"s_cmp_lg_u32 s{T3}, 0", f"s_cbranch_scc1 {lbl}_spin", f"{lbl}:"]


def sig_qkv(lbl):
    return [f"s_cmp_lg_u32 s{sW}, 0", f"s_cbranch_scc1 {lbl}",
            f"s_mul_i32 s{T2}, s{sCB}, 3", f"s_lshr_b32 s{T2}, s{T2}, 1", f"s_and_b32 s{T3}, s{sCB}, 1",
            f"v_add_u32 v2, s{T2}, v0", "v_lshlrev_b32 v2, 8, v2",
            f"v_xor_b32 v3, s{T3}, v0", "v_sub_u32 v3, 2, v3",
            "s_mov_b64 exec, 3", f"buffer_atomic_add v3, v2, {sr(S_WS)}, s{sCNT} offen sc1", "s_mov_b64 exec, -1", f"{lbl}:"]


def sig_one(lbl, idx_instrs, skip_side=False):
    c = [f"s_or_b32 s{T0}, s{sW}, s{sISS}"] if skip_side else [f"s_cmp_lg_u32 s{sW}, 0"]
    return (c + [f"s_cbranch_scc1 {lbl}"] + idx_instrs +
            [f"s_lshl_b32 s{T0}, s{T0}, 8", f"s_add_u32 s{T0}, s{T0}, s{sCNT}", "v_mov_b32 v3, 1", "s_mov_b64 exec, 1",
             f"buffer_atomic_add v3, off, {sr(S_WS)}, s{T0} sc1", "s_mov_b64 exec, -1", f"{lbl}:"])


def kv(i, r=L16):
    return [[f"s_lshl1_add_u32 m0, s{sLW}, {i * 16384}" if i else f"s_lshl_b32 m0, s{sLW}, 1",
             f"s_add_u32 s{T2}, s{sKV}, {i * 8192}",
             f"buffer_load_dwordx4 v{r}, {sr(S_WS)}, s{T2} offen sc1 lds"],
            [f"s_lshl1_add_u32 m0, s{sLW}, {i * 16384 + 1024}", f"s_add_u32 s{T2}, s{sKV}, {i * 8192 + (32 << 16)}",
             f"buffer_load_dwordx4 v{r}, {sr(S_WS)}, s{T2} offen sc1 lds"]]


def q_load():
    return [f"s_lshl_b32 s{T2}, s{tQB}, 13", f"s_add_u32 s{T2}, s{T2}, s{sKV}", f"s_sub_u32 s{T2}, s{T2}, {32 << 16}",
            f"buffer_load_dwordx4 {vr(Q_, 4)}, v{L16}, {sr(S_WS)}, s{T2} offen sc1"]


def p2_init_v():
    return ([["v_and_b32 v3, 27, v0", "v_cmp_eq_u32 vcc, 16, v3", f"v_mov_b32 v{V_ + 1}, 0x3f803f80", "v_mov_b32 v3, 0",
              f"v_cndmask_b32 v{V_}, v3, v{V_ + 1}, vcc", f"v_mov_b32 v{V_ + 1}, v{V_}"]] +
            [f"v_mov_b64 v[{V_ + i}:{V_ + i + 1}], v[{V_}:{V_ + 1}]" for i in range(2, 32, 2)])


def gen_p1(a):
    global NOSTAMP
    a("s_cmp_ge_u32 s2, 256")
    a("s_cbranch_scc1 L_exit")
    stamp(a, 0)
    a(f"s_load_dwordx4 s[{pX}:{pX + 3}], s[0:1], 0")
    a(f"s_load_dwordx4 s[{pG}:{pG + 3}], s[0:1], 32")
    a(f"s_load_dwordx2 s[{pWO}:{pWO + 1}], s[0:1], 16")
    a(f"s_load_dwordx4 s[{pWD}:{pWD + 3}], s[0:1], 48")
    a(f"s_load_dwordx4 s[{pDBG}:{pDBG + 3}], s[0:1], 64")
    a("v_lshrrev_b32 v1, 6, v0")
    a("v_and_b32 v0, 63, v0")
    a(f"v_readfirstlane_b32 s{sW}, v1")
    a("s_cmp_ge_u32 s2, 32")
    a("s_cbranch_scc1 L_nocode")
    a("s_getpc_b64 s[40:41]")
    a("L_here:")
    a("v_lshlrev_b32 v2, 13, v1")
    a("v_lshl_add_u32 v2, v0, 7, v2")
    a("v_min_u32 v2, L_end-L_here-4, v2")
    a("v_mov_b32 v3, s41")
    a("v_add_co_u32 v2, vcc, s40, v2")
    a("s_nop 1")
    a("v_addc_co_u32 v3, vcc, 0, v3, vcc")
    a(f"global_load_dword v{STV}, v[2:3], off")
    a("L_nocode:")
    a(f"s_and_b32 s{sXCD}, s2, 7")
    a(f"s_lshr_b32 s{T1}, s2, 3")
    a(f"s_and_b32 s{sRB}, s{sXCD}, 3")
    a(f"s_and_b32 s{T2}, s{T1}, 3")
    a(f"s_lshl2_add_u32 s{sRB}, s{sRB}, s{T2}")
    a(f"s_lshr_b32 s{sCF}, s{sXCD}, 2")
    a(f"s_lshr_b32 s{sISS}, s{T1}, 2")
    a(f"s_lshl3_add_u32 s{sCB}, s{sCF}, s{sISS}")
    if "norot" in OPT:
        a(f"s_mov_b32 s{sROT}, 0")
    else:
        a(f"s_lshl1_add_u32 s{sROT}, s{sXCD}, s{sISS}")
    a(f"s_lshl_b32 s{sLW}, s{sW}, 10")
    a(f"s_lshl_b32 s{T2}, s{sW}, 3")
    a(f"s_lshl_b32 s{sXROW}, s{sRB}, 7")
    a(f"s_add_u32 s{sXROW}, s{sXROW}, s{T2}")
    a(f"s_lshl_b32 s{sXROW}, s{sXROW}, 10")
    a(f"s_mul_i32 s{sCQ}, s{sCB}, 3")
    a(f"s_lshr_b32 s{sCQ}, s{sCQ}, 1")
    a(f"s_lshl_b32 s{sCQ}, s{sCQ}, 7")
    a(f"s_mul_i32 s{T3}, s{T2}, 3072")
    a(f"s_add_u32 s{sCQ}, s{sCQ}, s{T3}")
    a(f"s_mul_i32 s{T3}, s{T2}, 3584")
    a(f"s_sub_u32 s{sCF}, s{sCB}, s{sCF}")
    a(f"s_sub_u32 s{sCF}, s{sCF}, 1")
    a(f"s_lshl_b32 s{sCG}, s{sCF}, 8")
    a(f"s_add_u32 s{sCG}, s{sCG}, s{T3}")
    a(f"s_cmp_eq_u32 s{sISS}, 0")
    a(f"s_cselect_b32 s{sISS}, 1, 0")
    a(f"s_cselect_b32 s{sCG}, {OOB}, s{sCG}")
    a("v_lshrrev_b32 v1, 3, v0")
    a("v_and_b32 v2, 7, v0")
    a(f"v_add_u32 v3, s{T2}, v1")
    a("v_bfe_u32 v3, v3, 1, 3")
    a("v_xor_b32 v3, v3, v2")
    a("v_lshlrev_b32 v3, 4, v3")
    a(f"v_lshl_add_u32 v{VXS}, v1, 10, v3")
    a("v_and_b32 v3, 2, v1")
    a("v_lshlrev_b32 v3, 1, v3")
    a("v_xor_b32 v3, v3, v2")
    a("v_lshlrev_b32 v3, 4, v3")
    a("v_mul_u32_u24 v4, 3072, v1")
    a(f"v_add_u32 v{VW0}, v4, v3")
    a("v_mul_u32_u24 v4, 3584, v1")
    a(f"v_add_u32 v{VW1}, v4, v3")
    a(f"v_xor_b32 v{VW3}, 32, v{VW1}")
    for r_, sz in ((S_X, 2097152), (S_W0, 1572864), (S_W1, 1835008), (S_W3, 1835008)):
        a(f"s_mov_b32 s{r_ + 2}, {sz}")
        a(f"s_mov_b32 s{r_ + 3}, 0x00020000")
    a("s_waitcnt lgkmcnt(0)")
    for r_, p_ in ((S_X, pX), (S_W0, pWQKV), (S_W1, pG), (S_W3, pU)):
        a(f"s_mov_b64 s[{r_}:{r_ + 1}], s[{p_}:{p_ + 1}]")
    a(f"s_cmp_eq_u32 s{sISS}, 1")
    a("s_cbranch_scc1 L_nod0")
    a(dma(0))
    a("L_nod0:")
    a(f"v_lshlrev_b32 v{L16}, 4, v0")
    a(f"s_and_b32 s{sTT}, s{sW}, 3")
    a(f"s_lshr_b32 s{sHF}, s{sW}, 2")
    a(f"s_mov_b32 s{sCNT}, {WS_CNT}")
    srd(a, S_WS, pWS, WS_SIZE)
    a(f"s_lshl2_add_u32 s{sT}, s{sRB}, s{sTT}")
    a(f"s_mul_i32 s{sG}, s{sCB}, 3")
    a(f"s_lshl1_add_u32 s{sG}, s{sHF}, s{sG}")
    a(f"s_cmp_ge_u32 s{sG}, 32")
    a(f"s_cselect_b32 s{sVAR}, 2, 0")
    a(f"s_add_u32 s{sVAR}, s{sVAR}, s{sHF}")
    a(f"s_lshl_b32 s{sG}, s{sG}, 1")
    a(f"s_lshr_b32 s{T1}, s2, 3")
    a(f"s_and_b32 s{T2}, s{T1}, 3")
    a(f"s_lshl2_add_u32 s{tHEAD}, s{sXCD}, s{T2}")
    a(f"s_lshr_b32 s{tQB}, s{T1}, 2")
    a(f"s_lshl_b32 s{sKV}, s{tHEAD}, 16")
    a(f"s_add_u32 s{sKV}, s{sKV}, s{sLW}")
    a(f"s_add_u32 s{sKV}, s{sKV}, {32 << 16}")
    t4, t6, t7 = WF, WF + 1, WF + 2
    a("v_and_b32 v1, 31, v0")
    a("v_lshrrev_b32 v2, 5, v0")
    a("v_bfe_u32 v3, v0, 1, 3")
    a("v_xor_b32 v3, v3, v2")
    a("v_lshlrev_b32 v3, 4, v3")
    a("v_lshl_add_u32 v3, v1, 7, v3")
    a(f"s_lshl_b32 s{T0}, s{sTT}, 12")
    a(f"v_add_u32 v{XA}, s{T0}, v3")
    for i in range(1, 4):
        a(f"v_xor_b32 v{XA + i}, {32 * i}, v{XA}")
    a("v_bfe_u32 v3, v0, 2, 2")
    a(f"v_lshl_add_u32 v{t4}, v2, 3, v3")
    a(f"v_lshlrev_b32 v{t4}, 7, v{t4}")
    a(f"v_and_b32 v{t7}, 3, v0")
    a(f"v_lshl_add_u32 v{t4}, v{t7}, 3, v{t4}")
    a("v_and_b32 v3, 2, v3")
    a(f"v_bfe_u32 v{t7}, v0, 4, 1")
    a(f"v_xor_b32 v3, v3, v{t7}")
    a(f"s_and_b32 s{T0}, s{sCB}, 1")
    a(f"s_lshl1_add_u32 s{T0}, s{sHF}, s{T0}")
    for t in range(2):
        a(f"s_and_b32 s{T1}, s{T0}, 1")
        a(f"s_lshl_b32 s{T1}, s{T1}, 1")
        a(f"s_lshr_b32 s{T2}, s{T0}, 1")
        a(f"s_lshl_b32 s{T2}, s{T2}, 13")
        a(f"s_add_u32 s{T2}, s{T2}, {BR}")
        a(f"v_xor_b32 v{t6}, s{T1}, v3")
        a(f"v_lshl_add_u32 v{t6}, v{t6}, 5, v{t4}")
        a(f"v_add_u32 v{WQ + t}, s{T2}, v{t6}")
        if t == 0:
            a(f"s_add_u32 s{T0}, s{T0}, 1")
    a(f"v_lshl_add_u32 v{t4}, v{t7}, 13, v{t4}")
    a(f"v_add_u32 v{t4}, {CR}, v{t4}")
    a(f"s_lshl_b32 s{T0}, s{sHF}, 1")
    a(f"v_xor_b32 v{t6}, s{T0}, v3")
    a(f"v_lshl_add_u32 v{WC}, v{t6}, 5, v{t4}")
    a(f"v_xor_b32 v{WC + 1}, 32, v{WC}")
    a(f"v_mov_b32 v{MASK}, 0xffff0000")
    a(f"v_mov_b32 v{ONES}, 0x3f80")
    a(f"s_cmp_eq_u32 s{sISS}, 1")
    a("s_cbranch_scc1 L_side1")
    a([f"s_lshl_b32 s{T0}, s{sW}, 8", f"s_or_b32 s{T0}, s2, s{T0}", f"s_cmp_lg_u32 s{T0}, 32", "s_cbranch_scc1 L_nozero",
       "v_mov_b32 v1, 0", "v_lshlrev_b32 v2, 8, v0", f"buffer_store_dword v1, v2, {sr(S_WS)}, s{sCNT} offen sc1", "L_nozero:"])
    a(dma(1))
    stamp(a, 1)
    for v in range(1, 4):
        a(f"s_cmp_eq_u32 s{sVAR}, {v}")
        a(f"s_cbranch_scc1 L_p1_{v}")
    XOP, RS = XA, 22
    CL, RU, ta, tb, tc = 224, 232, 240, 241, 242
    cs_loads = [[f"s_bitcmp1_b32 s{sRB}, 1", f"s_cselect_b32 s{S_T}, s{pU}, s{pG}", f"s_cselect_b32 s{S_T + 1}, s{pU + 1}, s{pG + 1}",
                 f"s_mov_b32 s{S_T + 2}, 1835008", f"s_mov_b32 s{S_T + 3}, 0x00020000",
                 f"s_lshr_b32 s{T2}, s{sRB}, 2", f"s_lshl3_add_u32 s{T2}, s{T2}, s{sW}", f"s_mul_i32 s{T2}, s{T2}, {16 * 3584}",
                 f"s_and_b32 s{T3}, s{sRB}, 1", f"s_lshl1_add_u32 s{T3}, s{sCF}, s{T3}", f"s_lshl_b32 s{T3}, s{T3}, 7", f"s_add_u32 s{T2}, s{T2}, s{T3}",
                 f"v_lshrrev_b32 v{ta}, 3, v0", f"v_mul_u32_u24 v{ta}, 3584, v{ta}", f"v_and_b32 v{tb}, 7, v0", f"v_lshl_add_u32 v{ta}, v{tb}, 4, v{ta}",
                 f"buffer_load_dwordx4 {vr(CL, 4)}, v{ta}, {sr(S_T)}, s{T2} offen"],
                [f"s_add_u32 s{T2}, s{T2}, {8 * 3584}", f"buffer_load_dwordx4 {vr(CL + 4, 4)}, v{ta}, {sr(S_T)}, s{T2} offen"]]
    SE, DD, RV = 244, 248, 208
    sel = [f"v_and_b32 v{tb}, 15, v0", f"v_and_b32 v{tc}, 1, v0", f"v_lshlrev_b32 v{tc}, 4, v{tc}", f"v_lshlrev_b32 v{tc}, v{tc}, v{ONES}",
           f"v_lshrrev_b32 v{tb}, 1, v{tb}"]
    for i in range(4):
        sel += [[f"v_cmp_eq_u32 vcc, {i}, v{tb}", "s_nop 1", f"v_cndmask_b32 v{SE + i}, 0, v{tc}, vcc"]]
    m16 = lambda c, b_: f"v_mfma_f32_16x16x32_bf16 {vr(DD, 4)}, {vr(SE, 4)}, {vr(b_, 4)}, {c}"
    csv = {4: sel[:5], 5: sel[5:],
           6: [f"v_and_b32 v{tb}, 15, v0", f"v_lshlrev_b32 v{tb}, 5, v{tb}", f"v_lshrrev_b32 v{tc}, 4, v0", f"v_lshl_add_u32 v{tb}, v{tc}, 4, v{tb}",
               [f"s_lshl_b32 s40, s2, 12", f"s_add_u32 s40, s40, {WS_CP}", f"s_lshl_b32 s41, s{sW}, 9", "s_add_u32 s41, s41, s40"]]}
    cs_mm = [m16("0", CL), m16(vr(DD, 4), CL + 4)]
    cs_st = ["s_mov_b32 exec_hi, 0", f"buffer_store_dwordx4 {vr(DD, 4)}, v{tb}, {sr(S_WS)}, s41 offen", "s_mov_b32 exec_hi, -1"]
    cs_l2 = lambda lb: ([f"s_cmp_lg_u32 s{sW}, 0", f"s_cbranch_scc1 {lb}"] +
                        [f"buffer_load_dwordx4 {vr(RV + 4 * i, 4)}, v{L16}, {sr(S_WS)}, s40 offen offset:{1024 * i} sc1" for i in range(4)] + [f"{lb}:"])
    cs_r2 = lambda lb: ([f"s_cmp_lg_u32 s{sW}, 0", f"s_cbranch_scc1 {lb}"] +
                        [f"v_add_f32 v{RV + i}, v{RV + i}, v{RV + 8 + i}" for i in range(8)] +
                        [f"v_add_f32 v{RV + i}, v{RV + i}, v{RV + 4 + i}" for i in range(4)] +
                        [f"v_and_b32 v{ta}, 15, v0", f"v_lshrrev_b32 v{tc}, 4, v0",
                         f"v_permlane16_swap_b32 v{RV}, v{RV + 1}", f"v_permlane16_swap_b32 v{RV + 2}, v{RV + 3}",
                         f"v_add_f32 v{RV}, v{RV}, v{RV + 1}", f"v_add_f32 v{RV + 2}, v{RV + 2}, v{RV + 3}",
                         f"v_lshl_add_u32 v{ta}, v{ta}, 2, v{tc}", f"v_lshlrev_b32 v{ta}, 2, v{ta}",
                         f"v_permlane32_swap_b32 v{RV}, v{RV + 2}", f"v_add_f32 v{RV}, v{RV}, v{RV + 2}",
                         f"s_bfe_u32 s40, s{sRB}, 0x10001", "s_mul_i32 s40, s40, 28", f"s_and_b32 s41, s{sRB}, 1", "s_add_u32 s40, s40, s41",
                         f"s_lshl1_add_u32 s40, s{sCF}, s40", f"s_lshr_b32 s41, s{sRB}, 2", "s_lshl2_add_u32 s40, s40, s41",
                         "s_lshl_b32 s40, s40, 8", f"s_add_u32 s40, s40, {WS_CS}",
                         f"buffer_store_dword v{RV}, v{ta}, {sr(S_WS)}, s40 offen sc1", f"{lb}:"])
    for var in VARS:
        hf, isv, ffn = var & 1, (var >> 1) & 1, var < 4
        nt = 2 - hf
        cnt = lambda S: len(dma(S, ffn))
        a(f"L_p1_{var}:")
        a(f"s_waitcnt vmcnt({cnt(1)})")
        a("s_barrier")
        stamp(a, 2)
        if var == 4:
            a(cs_signal("L_scs0", 0))
        if var == 0:
            a([f"s_lshl_b32 s{T0}, s{sW}, 8", f"s_or_b32 s{T0}, s2, s{T0}", f"s_cmp_lg_u32 s{T0}, 32", "s_cbranch_scc1 L_noflag",
               "v_mov_b32 v2, 0", "v_mov_b32 v3, 1", "s_mov_b64 exec, 1",
               f"global_store_dword v2, v3, s[{pDBG}:{pDBG + 1}] offset:32 sc1", "s_mov_b64 exec, -1", "L_noflag:"])
        a(rd1(0, nt, ffn))
        if not ffn:
            a(rd1(1, nt, ffn))
        bgq = dma(2, ffn) + (cs_loads if ffn else [])
        if "a_l" in OPT and ffn:
            bgq = dma(2, ffn) + [[x.replace(f"s{T2} offen", "s62 offen") for x in g] for g in cs_loads]
        held = []
        sl7 = (7 % 3) * SL
        qrd = lambda h: [f"ds_read_b64_tr_b16 {vr(WF + 16 * h + 8 * q + 4 * t + 2 * t2, 2)}, v{WQ + t} offset:{sl7 + (2 * h + q) * 2048 + t2 * 512}"
                         for q in range(2) for t in range(nt) for t2 in range(2)]
        frd = lambda h: [f"ds_read_b64_tr_b16 {vr(WF + 16 * h + 8 * q + 4 * c + 2 * t2, 2)}, v{WC + c} offset:{sl7 + (2 * h + q) * 2048 + t2 * 512}"
                         for q in range(2) for c in range(2) for t2 in range(2)]
        CK = 5 if ffn else 6
        prep = [f"v_lshlrev_b32 v2, 16, v{STV}", f"v_rcp_f32 v{RS}, v2"]
        for t in range(nt):
            w = CSA + 4 * t
            prep += [f"v_add_f32 v{w}, v{w}, v{w + 1}", f"v_add_f32 v{w + 2}, v{w + 2}, v{w + 3}", f"v_add_f32 v{w + 3}, v{w}, v{w + 2}"] + split3(w, w + 3)
        for k in range(28 if ffn else 32):
            S, ks = k >> 2, k & 3
            F = fset(k, ffn)
            x = XF + 4 * k
            c0 = "0" if k == 0 else None
            big = [mfma(ACQ + 16 * t, x, F + 4 * t, c0) if isv else mfma(ACQ + 16 * t, F + 4 * t, x, c0) for t in range(nt)]
            if ffn:
                big += [mfma(ACF + 16 * c, F + 8 + 4 * c, x, c0) for c in range(2)]
            if not ffn and k % 2 == 0 and k < 30:
                held = big
                continue
            big, held = held + big, []
            val = []
            if ks == 3:
                n = cnt(S + 2) + ({0: 2}.get(S, 0) if ffn else 0)
                a(f"s_waitcnt vmcnt({n}) lgkmcnt(0)")
                if S == CK and not hf: a(cs_check(f"L_c1{var}", 0))
                if S < 7: a("s_barrier")
                if "p1b" in OPT: stamp(a, 4 + S)
                if ffn and S == 1:
                    big = cs_mm + big
                    bgq.append(cs_st)
                if ffn and S == 2 and not hf: bgq.append(cs_l2(f"L_l2{var}"))
                if ffn and S == 3 and not hf: bgq.append(cs_r2(f"L_r2{var}"))
                if S == 3 and not hf:
                    bgq.append([f"s_cmp_lg_u32 s{sW}, 0", f"s_cbranch_scc1 L_nofl{var}", "v_mov_b32 v2, 0",
                                f"global_load_dword v{POLL}, v2, s[{pDBG}:{pDBG + 1}] offset:32 sc1", f"L_nofl{var}:"])
                if S == CK - 1 and not hf:
                    bgq.append(flag_check(f"L_fc{var}") + (sig_one(f"L_sc{var}", [f"s_add_u32 s{T0}, s{sCF}, {C_CS}"]) if ffn else []) +
                               cs_issue(f"L_i1{var}", 0))
                if S == 5:
                    ad = [f"v_and_b32 v{VXS}, 31, v0", f"v_lshlrev_b32 v{VXS}, 2, v{VXS}", "v_lshrrev_b32 v3, 5, v0",
                          f"v_lshl_add_u32 v{VW0}, v3, 10, v{VXS}", f"s_lshl_b32 s{T2}, s{sT}, 7", f"s_add_u32 s{T2}, s{T2}, {WS_ST}"]
                    for t in range(nt):
                        ad += [f"s_add_u32 s{T3}, s{sG}, {2 * t}", f"s_lshr_b32 s{40 + t}, s{T3}, 2", f"s_lshl_b32 s{40 + t}, s{40 + t}, 11",
                               f"s_and_b32 s{T3}, s{T3}, 2", f"s_lshl_b32 s{T3}, s{T3}, 6", f"s_add_u32 s{40 + t}, s{40 + t}, s{T3}",
                               f"s_add_u32 s{40 + t}, s{40 + t}, {WS_CQ}"]
                    bgq.append(ad)
                if S == CK:
                    ld = [f"buffer_load_dword v{STV}, v{VXS}, {sr(S_WS)}, s{T2} offen sc1"]
                    for t in range(nt):
                        ld += [f"buffer_load_dword v{CSA + 4 * t + i}, v{VW0}, {sr(S_WS)}, s{40 + t} offen offset:{256 * i} sc1" for i in range(4)]
                    if isv:
                        ld += [f"s_lshl_b32 s{T3}, s{sW}, 8", f"s_add_u32 m0, s{T3}, {SCR}", f"s_add_u32 s{T2}, s{T2}, {WS_RS - WS_ST}",
                               f"buffer_load_dword v{VXS}, {sr(S_WS)}, s{T2} offen sc1 lds"]
                    bgq += [ld[:5], ld[5:]]
                if S == 6 and ffn:
                    if not hf: bgq.append(poll_issue(f"L_i2{var}", CS_MASK))
                    val = prep
                if S < 7: bgq += dma(S + 3, ffn)
                if S == 5 and isv:
                    bgq.append([f"s_lshl_b32 s{T3}, s{sW}, 8", f"s_add_u32 s{T3}, s{T3}, {SCR}",
                                "v_lshrrev_b32 v3, 5, v0", "v_lshlrev_b32 v18, 4, v3", f"v_add_u32 v18, s{T3}, v18",
                                "v_bfe_u32 v23, v0, 4, 1", "v_lshlrev_b32 v23, 16, v23", "v_lshl_add_u32 v23, v3, 8, v23",
                                "v_and_b32 v3, 15, v0", "v_lshl_add_u32 v23, v3, 4, v23"])
            elif k == 30:
                a("s_waitcnt vmcnt(0) lgkmcnt(0)")
                val = prep
            else:
                a("s_waitcnt lgkmcnt(0)")
            if k == 31:
                break
            if ffn and k in csv: val = csv[k]
            if "a_m" in OPT and k == 7: val = []
            if "a_s" in OPT and k in (4, 5, 6): val = []
            left = 4 if ks == 3 else 3 - ks
            if "front" in OPT and ffn and S * 4 + 3 != 27: left = {3: 3, 0: 2}.get(ks, 1)
            if k == 27: left = 3
            if not ffn: left = 2 if (ks == 3 and S < 6) else 1
            take = -(-len(bgq) // left)
            extra, bgq = bgq[:take], bgq[take:]
            if ffn:
                nxt = rd1(k + 1, nt, ffn) if k < 27 else \
                    [f"ds_read_b128 {vr(XF + 4 * (28 + j), 4)}, v{XA + j} offset:{sl7}" for j in range(4)] + qrd(0)
            else:
                nxt = [] if k == 30 else rd1(k + 1, nt, ffn) + rd1(k + 2, nt, ffn)
            body = spread(big, nxt, val + [[]] * len(extra) + extra)
            a(body)
        pre = [f"v_and_b32 v{XOP}, v{MASK}, v{STV}", f"v_mov_b32 v{XOP + 3}, 0", f"v_mov_b32 v{XOP + 1}, v{XOP}", f"v_mov_b32 v{XOP + 2}, v{XOP}"]
        corr = [mfma(ACQ + 16 * t, XOP, CSA + 4 * t) if isv else mfma(ACQ + 16 * t, CSA + 4 * t, XOP) for t in range(nt)]
        post = [f"s_lshl_b32 s{T4}, s{sG}, 16", f"s_lshl_b32 s{T2}, s{sT}, 10", f"s_add_u32 s{T4}, s{T4}, s{T2}"]

        def stores(t):
            o = ACQ + 16 * t
            if isv:
                return [[f"buffer_store_dwordx4 {vr(o, 4)}, v23, {sr(S_WS)}, s{T4} offen sc1"],
                        [f"buffer_store_dwordx4 {vr(o + 4, 4)}, v23, {sr(S_WS)}, s{T4} offen offset:512 sc1", f"s_add_u32 s{T4}, s{T4}, 0x20000"]]
            return [[f"buffer_store_dwordx4 {vr(o, 4)}, v{L16}, {sr(S_WS)}, s{T4} offen sc1", f"s_add_u32 s{T4}, s{T4}, 0x10000"],
                    [f"buffer_store_dwordx4 {vr(o + 4, 4)}, v{L16}, {sr(S_WS)}, s{T4} offen sc1", f"s_add_u32 s{T4}, s{T4}, 0x10000"]]
        if not ffn:
            assert not bgq
            stamp(a, 3)
            a(big[:1] + pre + ["s_nop 1"] + big[1:nt] + corr + post + ["s_nop 7"])
            for t in range(nt):
                ac = ACQ + 16 * t
                a(f"s_cmp_lt_u32 s{sG}, {32 - 2 * t}")
                a(f"s_cselect_b32 s{T0}, {hx(f2u(QSCALE))}, 1.0")
                a(f"v_mul_f32 v2, s{T0}, v{RS}")
                a(f"v_mul_f32 v3, s{T0}, v{RS}")
                for i in range(8):
                    a(f"v_pk_mul_f32 {vr(ac + 2 * i, 2)}, {vr(ac + 2 * i, 2)}, v[2:3]")
                for i in range(8):
                    a(f"v_cvt_pk_bf16_f32 v{ac + i}, v{ac + 2 * i}, v{ac + 2 * i + 1}")
                a(stores(t))
            stamp(a, 4)
            a("s_branch L_side")
            continue
        qm = lambda h: [mfma(ACQ + 16 * t, XF + 4 * (28 + 2 * h + q), WF + 16 * h + 8 * q + 4 * t) if isv else
                        mfma(ACQ + 16 * t, WF + 16 * h + 8 * q + 4 * t, XF + 4 * (28 + 2 * h + q)) for q in range(2) for t in range(nt)]
        fm = lambda h: [mfma(ACF + 16 * c, WF + 16 * h + 8 * q + 4 * c, XF + 4 * (28 + 2 * h + q)) for q in range(2) for c in range(2)]
        half = -(-len(bgq) // 2)
        a("s_waitcnt lgkmcnt(0)")
        a(spread(qm(0), qrd(1), pre + bgq[:half]))
        a("s_waitcnt lgkmcnt(0)")
        rsv = lambda g: [f"ds_read_b128 {vr(CSA + 4 * j, 4)}, v18 offset:{(2 * g + j) * 32}" for j in range(2)]
        a(corr + (rsv(0) if isv else []))
        a(spread(qm(1), frd(0), [f"v_subrev_u32 v{WQ + c}, {CR - BR}, v{WC + c}" for c in range(2)] + bgq[half:]))
        adr = [["v_bfe_u32 v2, v0, 4, 1", "v_mul_u32_u24 v2, 28672, v2", "v_lshrrev_b32 v3, 5, v0",
                "v_lshl_add_u32 v2, v3, 9, v2", "v_and_b32 v3, 15, v0", f"v_lshl_add_u32 v{VXS}, v3, 2, v2",
                f"s_lshl_b32 s{sVAR}, s{sCF}, 11", f"s_add_u32 s{sVAR}, s{sVAR}, {WS_CS + 128 * hf}"] + post]
        if isv:
            e1, e2 = [], []
            for t in range(nt):
                ac = ACQ + 16 * t
                e1 += [f"v_mul_f32 v{ac + i}, v{ac + i}, v{CSA + i}" for i in range(8)]
                e2 += [f"v_mul_f32 v{ac + 8 + i}, v{ac + 8 + i}, v{CSA + i}" for i in range(8)]
                e2 += [f"v_cvt_pk_bf16_f32 v{ac + i}, v{ac + 2 * i}, v{ac + 2 * i + 1}" for i in range(4, 8)]
            e1 += rsv(1)
            for t in range(nt):
                ac = ACQ + 16 * t
                e1 += [f"v_cvt_pk_bf16_f32 v{ac + i}, v{ac + 2 * i}, v{ac + 2 * i + 1}" for i in range(4)]
        else:
            e = []
            for t in range(nt):
                ac = ACQ + 16 * t
                e += [[f"s_cmp_lt_u32 s{sG}, {32 - 2 * t}", f"s_cselect_b32 s{T0}, {hx(f2u(QSCALE))}, 1.0", f"v_mul_f32 v2, s{T0}, v{RS}"]]
                e += [f"v_mul_f32 v{ac + i}, v{ac + i}, v2" for i in range(16)]
                e += [f"v_cvt_pk_bf16_f32 v{ac + i}, v{ac + 2 * i}, v{ac + 2 * i + 1}" for i in range(8)]
            e1, e2 = e[:len(e) * 5 // 8], e[len(e) * 5 // 8:]
        a("s_waitcnt lgkmcnt(0)")
        u3 = spread(fm(0), frd(1), adr + e1)
        a(u3)
        a(f"s_waitcnt vmcnt({4 + nvm(u3)}) lgkmcnt(0)")
        if not hf: a(poll_check(f"L_c2{var}", 16))
        a("s_barrier")
        stamp(a, 3)
        c0l = [[f"buffer_load_dword v{r_}, v{VXS}, {sr(S_WS)}, s{sVAR} offen offset:{(i >> 1) * 64 + (i & 1) * 256} sc1"
                for i, r_ in enumerate(C0R)]]
        mix, vm = [], c0l + dma(10)
        for j in range(len(vm)):
            mix += e2[j * len(e2) // len(vm):(j + 1) * len(e2) // len(vm)] + [vm[j]]
        a(spread(fm(1), rd2(0), mix))
        for t in range(nt):
            a(stores(t))
        if var != 3:
            a("s_branch L_pass2")
    a("L_pass2:")
    if "p1b" in OPT: NOSTAMP = True
    stamp(a, 4)
    sH = sG
    a(f"s_mul_i32 s{sH}, s{sT}, 112")
    a(f"s_lshl2_add_u32 s{T0}, s{sCF}, s{sHF}")
    a(f"s_lshl1_add_u32 s{sH}, s{T0}, s{sH}")
    a(f"s_lshl_b32 s{sH}, s{sH}, 10")
    a(f"s_add_u32 s{sH}, s{sH}, {WS_H}")
    cRS, cSD, cC2, CO, QP = 128, 129, 130, 132, 140
    q = CSA

    def gelu_plain(g, off):
        u = g + 8
        R = range(8)
        return ([f"v_mul_f32 v{g + i}, v{g + i}, v{cRS}" for i in R] + [f"v_mul_f32 v{q + i}, v{g + i}, v{g + i}" for i in R] +
                [f"v_fmaak_f32 v{q + i}, v{q + i}, v{cC2}, {hx(f2u(GC1))}" for i in R] + [f"v_mul_f32 v{q + i}, v{q + i}, v{g + i}" for i in R] +
                [f"v_exp_f32 v{q + i}, v{q + i}" for i in R] + [f"v_mul_f32 v{g + i}, v{g + i}, v{u + i}" for i in R] +
                [f"v_fma_f32 v{q + i}, v{q + i}, v{cSD}, v{cSD}" for i in R] + [f"v_rcp_f32 v{q + i}, v{q + i}" for i in R] +
                [f"v_mul_f32 v{g + i}, v{g + i}, v{q + i}" for i in R] +
                [f"v_cvt_pk_bf16_f32 v{g + i}, v{g + 2 * i}, v{g + 2 * i + 1}" for i in range(4)] +
                [f"buffer_store_dwordx4 {vr(g, 4)}, v{L16}, {sr(S_WS)}, s{sH} offen offset:{off} sc1"])
    vq = []
    wt = lambda at: sum(2 if (x.startswith("v_exp") or x.startswith("v_rcp")) else 1 for x in ([at] if isinstance(at, str) else at))
    cs_ld = lambda dst, pr: [[f"buffer_load_dword v{dst + 4 * c + i}, v{VXS}, {sr(S_WS)}, s{sVAR} offen offset:{1024 * pr + c * 64 + i * 256} sc1"
                              for c in range(2) for i in range(2)]]
    bgq, hist = [], []
    after = lambda key: nvm([l for l in hist[len(hist) - hist[::-1].index(key):] if "s62" not in l])
    for u in range(16):
        S, us = 8 + (u >> 2), u & 3
        F = WF + 16 * (u & 1)
        big = [mfma(ACQ + 16 * c, F + 8 * qq + 4 * c, XF + 4 * (2 * u + qq), "0" if (u == 0 and qq == 0) else None)
               for qq in range(2) for c in range(2)]
        allv = nvm([l for l in hist if "s62" not in l])
        if us == 3 or u == SIGU:
            if u == 3:
                a([f"s_cmp_eq_u32 s{sHF}, 0", "s_cbranch_scc1 L_w8", "s_waitcnt vmcnt(6)", "L_w8:", "s_waitcnt vmcnt(8) lgkmcnt(0)"])
            elif u <= 7:
                a(f"s_waitcnt vmcnt({allv}) lgkmcnt(0)")
            elif S == 10:
                a(f"s_waitcnt vmcnt({after(dma(11)[-1][0]) - 1}) lgkmcnt(0)")
            elif CHK == 10:
                a(f"s_waitcnt vmcnt({after(kv(0)[1][1]) - 1}) lgkmcnt(0)")
            else:
                a("s_waitcnt lgkmcnt(0)")
            if us == 3 and S == CHK:
                a([f"s_cmp_lg_u32 s{sW}, 0", "s_cbranch_scc1 L_w10", f"s_waitcnt vmcnt({after('L_pq:')})", "L_w10:"])
                a(poll_check("L_cq", 32, QP, 4))
            a("s_barrier")
            if "p2b" in OPT and us == 3: stamp(a, S - 2)
            if u == SIGU:
                bgq = [sig_qkv("L_sq")] + bgq
            if u == 3:
                bgq += cs_ld(CO, 1) + dma(11)
                vq += [f"v_lshlrev_b32 v{cSD}, 16, v{STV}", f"v_mov_b32 v{cC2}, {hx(f2u(GC2))}", f"v_rcp_f32 v{cRS}, v{cSD}"]
                for c in range(2):
                    w = CSA + 4 * c
                    vq += [f"v_add_f32 v{w + 3}, v{C0R[2 * c]}, v{C0R[2 * c + 1]}"] + split3(w, w + 3)
                vq += ["UNIT", mfma(ACF, CSA, XOP), mfma(ACF + 16, CSA + 4, XOP), "UNIT"]
                vq += gelu_plain(ACF, 0) + gelu_plain(ACF + 16, 1024)
            if us == 3 and S == CHK - 1:
                bgq += [[]] * (2 - len(bgq)) + [poll_issue("L_pq", QKV_MASK, QP)]
            if us == 3 and S == 10 and CHK == 10:
                bgq += kv(0) + kv(1) + [q_load()] + kv(2)
            if S == 11:
                bgq += kv(3) if CHK == 10 else kv(0) + [q_load()] + kv(1)
                if "prio" in OPT:
                    a("s_setprio 1")
                    a(lead(2))
        else:
            a("s_waitcnt lgkmcnt(0)")
        if u == 12:
            for c in range(2):
                w = CO + 4 * c
                vq += [f"v_add_f32 v{w + 3}, v{w}, v{w + 1}"] + split3(w, w + 3) + [["s_nop 1", mfma(ACQ + 16 * c, w, XOP)]]
            vq += p2_init_v()
        left = 1 if u == 15 else (4 if us == 3 else 3 - us)
        take = -(-len(bgq) // left)
        extra, bgq = bgq[:take], bgq[take:]
        val, budget = [], (1000 if u == 15 else VBUD)
        while vq and vq[0] != "UNIT" and budget > 0:
            budget -= wt(vq[0])
            val.append(vq.pop(0))
        if vq and vq[0] == "UNIT":
            vq.pop(0)
        body = spread(big, rd2(u + 1) if u < 15 else [], val[:len(val) // 2] + extra + val[len(val) // 2:])
        hist += body
        a(body)
    assert not bgq and not vq
    if "p2b" in OPT: NOSTAMP = True
    stamp(a, 5)
    RS2, SD2 = 240, 242
    a(f"v_mov_b32 v{RS2}, v{cRS}")
    a(f"v_mov_b32 v{RS2 + 1}, v{cRS}")
    a(f"v_mov_b32 v{SD2}, v{cSD}")
    a(f"v_mov_b32 v{SD2 + 1}, v{cSD}")
    a(f"v_mov_b32 v248, v{cC2}")
    a(f"v_mov_b32 v249, v{cC2}")
    a(f"v_mov_b32 v250, {hx(f2u(GC1))}")
    a("v_mov_b32 v251, v250")
    a(f"s_add_u32 s{sH}, s{sH}, 4096")
    a("s_nop 3")
    for c in range(2):
        g = ACQ + 16 * c
        u = g + 8
        q = 32 + c * 8
        o = 48 + c * 4
        for i in range(4):
            a(f"v_pk_mul_f32 {vr(g + 2 * i, 2)}, {vr(g + 2 * i, 2)}, {vr(RS2, 2)}")
        for i in range(4):
            a(f"v_pk_mul_f32 {vr(q + 2 * i, 2)}, {vr(g + 2 * i, 2)}, {vr(g + 2 * i, 2)}")
        for i in range(4):
            a(f"v_pk_fma_f32 {vr(q + 2 * i, 2)}, {vr(q + 2 * i, 2)}, v[248:249], v[250:251]")
        for i in range(4):
            a(f"v_pk_mul_f32 {vr(q + 2 * i, 2)}, {vr(q + 2 * i, 2)}, {vr(g + 2 * i, 2)}")
        for i in range(8):
            a(f"v_exp_f32 v{q + i}, v{q + i}")
        for i in range(4):
            a(f"v_pk_mul_f32 {vr(g + 2 * i, 2)}, {vr(g + 2 * i, 2)}, {vr(u + 2 * i, 2)}")
        for i in range(4):
            a(f"v_pk_fma_f32 {vr(q + 2 * i, 2)}, {vr(q + 2 * i, 2)}, {vr(SD2, 2)}, {vr(SD2, 2)}")
        for i in range(8):
            a(f"v_rcp_f32 v{q + i}, v{q + i}")
        a("s_nop 0")
        for i in range(4):
            a(f"v_pk_mul_f32 {vr(g + 2 * i, 2)}, {vr(g + 2 * i, 2)}, {vr(q + 2 * i, 2)}")
        for i in range(4):
            a(f"v_cvt_pk_bf16_f32 v{o + i}, v{g + 2 * i}, v{g + 2 * i + 1}")
        a(f"buffer_store_dwordx4 {vr(o, 4)}, v{L16}, {sr(S_WS)}, s{sH} offen offset:{c * 1024} sc1")
        if CHK == 11:
            a(kv(2 + c))
        if c == 0:
            a(lead(0))
    a(f"s_waitcnt vmcnt({after(q_load()[-1]) + (2 if CHK == 10 else 6)})")
    if CHK == 11:
        a("s_barrier")


VARS = (0, 4, 5, 1, 2, 3)
VBUD = 20
WK = 8
C0R = (9, 19, 21, 1)
SIGU, CHK = 7, 11


def gen_side(a):
    a("L_side:")
    global NOSTAMP
    NOSTAMP = "side" not in OPT
    gs = sCQ
    a("s_waitcnt vmcnt(0)")
    a("s_barrier")
    a(sig_qkv("L_sq2"))
    a(f"s_lshl3_add_u32 s{gs}, s2, s{sW}")
    a("v_lshrrev_b32 v1, 3, v0")
    a("v_and_b32 v2, 7, v0")
    a("v_and_b32 v3, 2, v1")
    a("v_xor_b32 v6, v3, v2")
    a("v_lshlrev_b32 v6, 4, v6")
    ASRC = 12
    a(f"v_lshl_add_u32 v{ASRC}, v1, 10, v6")
    a(f"s_mul_i32 s{tVM + 1}, s{sW}, 10240")
    a(f"s_add_u32 s{tVM + 1}, s{tVM + 1}, 65536")
    a(f"s_mov_b32 s{S_T + 3}, 0x00020000")
    stamp(a, 10)
    for r in range(5):
        a(f"s_add_u32 s{T0}, s{gs}, {256 * r}")
        a(f"s_and_b32 s{T1}, s{T0}, 7")
        a(f"s_lshr_b32 s{T2}, s{T0}, 3")
        a(f"s_cmp_lt_u32 s{T2}, 112")
        a(f"s_cselect_b32 s{S_T}, s{pWD}, s{pWO}")
        a(f"s_cselect_b32 s{S_T + 1}, s{pWD + 1}, s{pWO + 1}")
        a(f"s_mov_b32 s{S_T + 2}, 1835008")
        a(f"s_cselect_b32 s{S_T + 2}, s{S_T + 2}, 524288")
        a(f"s_cselect_b32 s{T3}, 0, 112")
        a(f"s_sub_u32 s{T2}, s{T2}, s{T3}")
        a(f"s_lshl_b32 s{T2}, s{T2}, 14")
        a(f"s_lshl_b32 s{T1}, s{T1}, 7")
        a(f"s_add_u32 s{T2}, s{T2}, s{T1}")
        a(f"s_add_u32 m0, s{tVM + 1}, {r * 2048}")
        a(f"s_add_u32 s{T1}, s{T2}, 8192")
        a(f"buffer_load_dwordx4 v{ASRC}, {sr(S_T)}, s{T2} offen lds")
        a("s_add_u32 m0, m0, 1024")
        a("s_nop 0")
        a(f"buffer_load_dwordx4 v{ASRC}, {sr(S_T)}, s{T1} offen lds")
    a(tr_addr(13, 1, 2))
    a(f"v_add_u32 v13, s{tVM + 1}, v13")
    a("v_xor_b32 v14, 32, v13")
    a(p2_init_v())
    stamp(a, 11)
    a("s_waitcnt vmcnt(0)")
    a(poll_issue("L_pq2", QKV_MASK))
    for r in range(5):
        for ap in range(2):
            for t in range(2):
                a(f"ds_read_b64_tr_b16 {vr(64 + 8 * r + 4 * ap + 2 * t, 2)}, v{13 + ap} offset:{r * 2048 + t * 1024}")
        if r == 2:
            a("s_waitcnt lgkmcnt(4)")
    a("s_waitcnt lgkmcnt(0)")
    for r in range(5):
        a(f"s_add_u32 s{T0}, s{gs}, {256 * r}")
        a(f"s_and_b32 s{T1}, s{T0}, 7")
        a(f"s_lshr_b32 s{T2}, s{T0}, 3")
        a(f"s_mul_i32 s{T1}, s{T1}, 144")
        a(f"s_add_u32 s{T1}, s{T1}, s{T2}")
        a(f"s_lshl_b32 s{T1}, s{T1}, 11")
        a(f"s_add_u32 s{T1}, s{T1}, {WS_WT}")
        if r == 4:
            a(f"s_cmp_lt_u32 s{T0}, 1152")
            a(f"s_cselect_b32 s{T1}, s{T1}, {OOB}")
        a(f"buffer_store_dwordx4 {vr(64 + 8 * r, 4)}, v{L16}, {sr(S_WS)}, s{T1} offen sc1")
        a(f"buffer_store_dwordx4 {vr(64 + 8 * r + 4, 4)}, v{L16}, {sr(S_WS)}, s{T1} offen offset:1024 sc1")
    a("s_waitcnt vmcnt(10)")
    stamp(a, 13)
    a(poll_check("L_cq2", 32))
    a("s_barrier")
    a(q_load())
    for i in range(4):
        a(kv(i))
    a("s_waitcnt vmcnt(6)")
    a("s_barrier")
    a(sig_one("L_h_ns2", [f"s_add_u32 s{T0}, s{sRB}, {C_H}"]))
    if "prio" in OPT:
        a("s_setprio 1")
        a(lead(2))
    a("s_branch L_p2")
    a("L_side1:")
    XW, QW, CW = 32, 64, 128
    LO, HI, ON = 18, 19, 22
    a("v_lshrrev_b32 v1, 3, v0")
    a("v_and_b32 v2, 7, v0")
    a("v_lshlrev_b32 v2, 4, v2")
    a("v_lshl_add_u32 v3, v1, 10, v2")
    a(f"s_lshl3_add_u32 s{tVM + 1}, s2, s{sW}")
    a(f"s_lshl_b32 s{T0}, s{tVM + 1}, 13")
    for q in range(8):
        a(f"buffer_load_dwordx4 {vr(XW + 4 * q, 4)}, v3, {sr(S_X)}, s{T0} offen offset:{128 * q}")
    sU = sVAR
    a(f"s_and_b32 s{sU}, s{sRB}, 3")
    a(f"s_lshl3_add_u32 s{sU}, s{sU}, s{sW}")
    a(f"s_sub_u32 s{T1}, 31, s{sU}")
    a(f"s_lshl3_add_u32 s41, s{T1}, s{sXCD}")
    a("s_lshl_b32 s41, s41, 8")
    a(f"s_add_u32 s41, s41, {WS_CQ}")
    a(f"s_lshl_b32 s{T0}, s{T1}, 7")
    a(f"s_mul_i32 s{T2}, s{sXCD}, {64 * 3072}")
    a(f"s_add_u32 s{T0}, s{T0}, s{T2}")
    a(f"s_cmp_lt_u32 s{T1}, 24")
    a(f"s_cselect_b32 s{T0}, s{T0}, {OOB}")
    a(f"s_cselect_b32 s41, s41, {OOB}")
    a("v_mul_u32_u24 v3, 3072, v1")
    a("v_add_u32 v3, v3, v2")
    for q in range(8):
        a(f"buffer_load_dwordx4 {vr(QW + 4 * q, 4)}, v3, {sr(S_W0)}, s{T0} offen")
        if q != 7:
            a(f"s_add_u32 s{T0}, s{T0}, {8 * 3072}")
    a(f"v_mov_b32 v{LO}, 0x00003f80")
    a(f"v_mov_b32 v{HI}, 0x3f800000")
    a(f"v_mov_b32 v{ON}, 0x3f803f80")
    RU = 96
    for i in range(0, 28, 2):
        a(f"v_mov_b64 v[{RU + i}:{RU + i + 1}], 0")
    a(["v_and_b32 v2, 8, v0", "v_cmp_eq_u32 vcc, 0, v2", f"v_and_b32 v{POLL}, 7, v0", f"v_lshlrev_b32 v{POLL}, 3, v{POLL}",
       "v_lshrrev_b32 v3, 4, v0", f"v_add_u32 v{POLL}, v{POLL}, v3", "v_lshrrev_b32 v2, 1, v2", f"v_add_u32 v{POLL}, v{POLL}, v2",
       f"v_lshlrev_b32 v{POLL}, 2, v{POLL}"])
    stamp(a, 8)
    m, v_ = RU + 24, RU + 25
    for q in range(8):
        a(f"s_waitcnt vmcnt({15 - q})")
        for i in range(4):
            a(f"v_dot2c_f32_bf16 v{m + 2 * (i & 1)}, v{XW + 4 * q + i}, v{ON}")
            a(f"v_dot2c_f32_bf16 v{v_ + 2 * (i & 1)}, v{XW + 4 * q + i}, v{XW + 4 * q + i}")
    a("s_nop 2")
    a(f"v_add_f32 v{m}, v{m}, v{m + 2}")
    a(f"v_add_f32 v{v_}, v{v_}, v{v_ + 2}")
    for md in ("quad_perm:[1,0,3,2]", "quad_perm:[2,3,0,1]", "row_half_mirror"):
        a("s_nop 0")
        a(f"v_add_f32_dpp v{m}, v{m}, v{m} {md} row_mask:0xf bank_mask:0xf")
        a(f"v_add_f32_dpp v{v_}, v{v_}, v{v_} {md} row_mask:0xf bank_mask:0xf")
    a([f"v_mul_f32 v{m}, {hx(f2u(-1.0 / 512))}, v{m}", f"v_mul_f32 v{v_}, {hx(f2u(1.0 / 512))}, v{v_}",
       f"v_fma_f32 v{v_}, -v{m}, v{m}, v{v_}", f"v_max_f32 v{v_}, 0, v{v_}",
       f"v_cvt_pk_bf16_f32 v{v_}, v{v_}, v{v_}", f"v_and_b32 v{v_}, v{MASK}, v{v_}",
       f"v_add_f32 v{v_}, {hx(f2u(1e-5))}, v{v_}",
       f"v_cvt_pk_bf16_f32 v{v_}, v{v_}, v{v_}", f"v_and_b32 v{v_}, v{MASK}, v{v_}",
       f"v_sqrt_f32 v{v_}, v{v_}", "v_lshlrev_b32 v1, 2, v1",
       f"v_cvt_pk_bf16_f32 v{m}, v{v_}, v{m}",
       f"v_lshlrev_b32 v{v_}, 16, v{m}", f"v_rcp_f32 v{v_}, v{v_}",
       f"s_lshl_b32 s{T0}, s{tVM + 1}, 5", f"s_add_u32 s{T0}, s{T0}, {WS_ST}", f"s_add_u32 s{T1}, s{T0}, {WS_RS - WS_ST}",
       f"s_mov_b32 exec_lo, 0x01010101", "s_mov_b32 exec_hi, 0x01010101",
       f"buffer_store_dword v{m}, v1, {sr(S_WS)}, s{T0} offen sc1",
       f"buffer_store_dword v{v_}, v1, {sr(S_WS)}, s{T1} offen sc1", "s_mov_b64 exec, -1"])

    def colsum(src, n, acc, behind):
        for q in range(n):
            a(f"s_waitcnt vmcnt({n - 1 - q + behind})")
            for i in range(4):
                a(f"v_dot2c_f32_bf16 v{acc + 2 * i}, v{src + 4 * q + i}, v{LO}")
                a(f"v_dot2c_f32_bf16 v{acc + 2 * i + 1}, v{src + 4 * q + i}, v{HI}")
        a("s_nop 2")
        for i in range(4):
            a(f"v_permlane16_swap_b32 v{acc + 2 * i}, v{acc + 2 * i + 1}")
        for i in range(4):
            a(f"v_add_f32 v{acc + 2 * i}, v{acc + 2 * i}, v{acc + 2 * i + 1}")
        a(["s_nop 1", f"v_permlane32_swap_b32 v{acc}, v{acc + 2}", f"v_permlane32_swap_b32 v{acc + 4}, v{acc + 6}",
           f"v_add_f32 v{acc}, v{acc}, v{acc + 2}", f"v_add_f32 v{acc + 4}, v{acc + 4}, v{acc + 6}", "s_nop 1",
           f"v_add_f32_dpp v{acc}, v{acc}, v{acc} row_ror:8 row_mask:0xf bank_mask:0xf",
           f"v_add_f32_dpp v{acc + 4}, v{acc + 4}, v{acc + 4} row_ror:8 row_mask:0xf bank_mask:0xf",
           f"v_cndmask_b32 v{acc + 1}, v{acc + 4}, v{acc}, vcc"])
    colsum(QW, 8, RU, 2)
    a(f"buffer_store_dword v{RU + 1}, v{POLL}, {sr(S_WS)}, s41 offen sc1")
    a(dma(0, False))
    a(dma(1, False))
    stamp(a, 9)
    a(f"s_cmp_eq_u32 s{sHF}, 0")
    a("s_cbranch_scc1 L_p1_4")
    a("s_branch L_p1_5")


def att_step(i, ex=None, first=False):
    ex = ex or {}
    Sc, Sn = (S0, S1) if i % 2 == 0 else (S1, S0)
    Kn = K_ + 4 * ((i + 1) % 2)
    Vc = V_ + 8 * (i % 4)
    Vp = V_ + 8 * ((i - 1) % 4)
    e = lambda k: f"v_exp_f32 v{Sc + k}, v{Sc + k}"
    c = lambda k: f"v_cvt_pk_bf16_f32 v{P_ + k}, v{Sc + 2 * k}, v{Sc + 2 * k + 1}"
    r = [mfma(Sn, Kn, Q_, NM),
         f"ds_read_b128 {vr(Kn, 4)}, v{AK} offset:{(i + 3) * 2048}"]
    r += ex.get("qk", [])
    r += [e(0), e(1), e(2), e(3)]
    if not first:
        r.append(mfma(O_, Vp + 4, P_ + 4))
    if i % 2 == 0:
        r.append(f"s_mov_b64 exec, s[{tVM}:{tVM + 1}]")
        for d in (2, 3):
            vb = V_ + 8 * ((i + d) % 4)
            r.append(f"ds_read_b128 {vr(vb, 4)}, v{AV} offset:{(i + d) * 2048}")
            r.append(f"ds_read_b128 {vr(vb + 4, 4)}, v{AV} offset:{(i + d) * 2048 + 512}")
        r.append("s_mov_b64 exec, -1")
    r += ex.get("pv1", [])
    if "G2" in ex:
        r += [c(0), e(4), e(5), c(1)]
        r += [ex["G1"]] + ex.get("g1", [])
        r += [e(6), e(7), e(8), c(2), c(3), e(9)]
        r += ["s_nop 0", mfma(O_, Vc, P_)]
        if i % 2 == 1: r.append("s_waitcnt lgkmcnt(0)")
        r += ex.get("pv0", [])
        r += [e(10), e(11), c(4), e(12), c(5)]
        r += [ex["G2"]] + ex.get("g2", [])
        r += [e(13), e(14), e(15), c(6), c(7)]
    else:
        r += [c(0), e(4), e(5), c(1), e(6), e(7)]
        if "G1" in ex:
            r += [ex["G1"]]
        r += ex.get("g1", [])
        r += [e(8), c(2), c(3), e(9), e(10), e(11)]
        r.append(mfma(O_, Vc, P_, "0" if first else None))
        if i % 2 == 1: r.append("s_waitcnt lgkmcnt(0)")
        r += ex.get("pv0", [])
        r += [c(4), e(12), e(13), c(5), e(14), e(15), c(6), c(7)]
    r += ex.get("end", [])
    return r


def ring_loads(r):
    b = RING + 16 * r
    return [f"buffer_load_dwordx4 {vr(b, 4)}, v{A16}, {sr(R_H0)}, s{tFH} offen sc1",
            f"buffer_load_dwordx4 {vr(b + 4, 4)}, v{A16}, {sr(R_H1)}, s{tFH} offen sc1",
            f"buffer_load_dwordx4 {vr(b + 8, 4)}, v{A16}, {sr(R_WT)}, s{tFW} offen sc1",
            f"buffer_load_dwordx4 {vr(b + 12, 4)}, v{A16}, {sr(R_WT)}, s{tFW} offen offset:1024 sc1",
            f"s_add_u32 s{tFH}, s{tFH}, 1024",
            f"s_add_u32 s{tFW}, s{tFW}, 2048"]


def gm(r, n):
    b = RING + 16 * r
    return mfma(G_ + 16 * n, b + 8 + 4 * (n & 1), b + 4 * (n >> 1))


_pl = [0]
PC = (2, 6)
PD = 7
PG = 2


def lead(p, cond=None):
    if "prio" not in OPT:
        return []
    _pl[0] += 1
    lb = f"L_pr{_pl[0]}"
    c = [f"s_cmp_lt_u32 s{sW}, 4"] if cond is None else cond
    return c + [f"s_cbranch_scc0 {lb}", f"s_setprio {p}", f"{lb}:"]


def adv(a):
    a(f"v_add_u32 v{AK}, 0x4000, v{AK}")
    a(f"v_add_u32 v{AV}, 0x4000, v{AV}")


def gen_p2(a):
    a("L_p2:")
    if ENC == 99:
        a(["s_not_b32 s76, s80", "v_mov_b32 v1, 0", "v_mov_b32 v2, s76", "s_mov_b64 exec, 1",
           f"global_atomic_umax v1, v2, s[{pDBG}:{pDBG + 1}] offset:240 sc1", "s_mov_b64 exec, -1"])
    stamp(a, 6)
    a(f"v_mov_b32 v{A16}, v{L16}")
    a(f"v_mov_b32 v{AK}, v{L16}")
    a("v_lshrrev_b32 v2, 5, v0")
    a("v_and_b32 v3, 15, v0")
    a("v_lshlrev_b32 v3, 4, v3")
    a("v_lshl_add_u32 v3, v2, 8, v3")
    a(f"v_add_u32 v{AV}, 1024, v3")
    a(f"s_mov_b32 s{tVM}, 0x0000ffff")
    a(f"s_mov_b32 s{tVM + 1}, 0x0000ffff")
    a(f"ds_read_b128 {vr(K_, 4)}, v{AK}")
    a(f"ds_read_b128 {vr(K_ + 4, 4)}, v{AK} offset:2048")
    a(f"s_mov_b64 exec, s[{tVM}:{tVM + 1}]")
    for d in range(2):
        a(f"ds_read_b128 {vr(V_ + 8 * d, 4)}, v{AV} offset:{d * 2048}")
        a(f"ds_read_b128 {vr(V_ + 8 * d + 4, 4)}, v{AV} offset:{d * 2048 + 512}")
    a("s_mov_b64 exec, -1")
    a(f"s_lshr_b32 s{T0}, s{sW}, 2")
    a(f"s_lshl1_add_u32 s{tTT}, s{tHEAD}, s{T0}")
    a(f"s_lshl_b32 s{T0}, s{tTT}, 15")
    a(f"s_lshl_b32 s{T1}, s{tQB}, 7")
    a(f"s_add_u32 s{T0}, s{T0}, s{T1}")
    a(f"s_and_b32 s{T1}, s{sW}, 3")
    a(f"s_lshl4_add_u32 s{T0}, s{T1}, s{T0}")
    a("v_and_b32 v1, 31, v0")
    a("v_lshlrev_b32 v1, 10, v1")
    a("v_lshl_add_u32 v1, v2, 6, v1")
    a(f"v_add_u32 v{AOUT}, s{T0}, v1")
    a("s_waitcnt lgkmcnt(4)")
    a(mfma(S0, K_, Q_, "0"))
    a(mfma(S1, K_ + 4, Q_, "0"))
    a(f"s_mul_i32 s{T0}, s{tHEAD}, {224 * 1024}")
    a(f"s_add_u32 s{T0}, s{T0}, {WS_H}")
    a(f"s_add_u32 s{R_H0}, s{pWS}, s{T0}")
    a(f"s_addc_u32 s{R_H0 + 1}, s{pWS + 1}, 0")
    a(f"s_add_u32 s{R_H1}, s{R_H0}, {112 * 1024}")
    a(f"s_addc_u32 s{R_H1 + 1}, s{R_H0 + 1}, 0")
    a(f"s_mul_i32 s{tFH}, s{sW}, {14 * 1024}")
    a(f"s_add_u32 s{R_H0 + 2}, s{tFH}, {14 * 1024}")
    a(f"s_mov_b32 s{R_H1 + 2}, s{R_H0 + 2}")
    a(f"s_mul_i32 s{T0}, s{tQB}, {144 * 2048}")
    a(f"s_add_u32 s{T0}, s{T0}, {WS_WT}")
    a(f"s_add_u32 s{R_WT}, s{pWS}, s{T0}")
    a(f"s_addc_u32 s{R_WT + 1}, s{pWS + 1}, 0")
    a(f"s_lshl_b32 s{tFW}, s{tFH}, 1")
    a(f"s_lshl_b32 s{R_WT + 2}, s{R_H0 + 2}, 1")
    a(f"v_max3_f32 v1, v{S0}, v{S0 + 1}, v{S0 + 2}")
    for i in range(3, 31, 2):
        a(f"v_max3_f32 v1, v1, v{S0 + i}, v{S0 + i + 1}")
    a(f"v_max_f32 v1, v1, v{S0 + 31}")
    a("v_mov_b32 v2, v1")
    a("s_nop 1")
    a("v_permlane32_swap_b32 v1, v2")
    a("v_max_f32 v1, v1, v2")
    a(f"v_sub_f32 v2, {hx(f2u(-MAXOFF))}, v1")
    a("v_mov_b32 v3, v2")
    for i in range(0, 16, 2):
        a(f"v_mov_b64 v[{NM + i}:{NM + i + 1}], v[2:3]")
    a("s_nop 1")
    a(mfma(S0, K_, Q_, NM))
    a(f"ds_read_b128 {vr(K_, 4)}, v{AK} offset:4096")
    srd(a, R_OUT, pOUT, 2097152)
    a(f"s_lshl_b32 s{T0}, s{sW}, 11")
    a(f"v_add_u32 v{AW}, s{T0}, v{A16}")
    a(f"v_add_u32 v{AW + 1}, 0x10000, v{AW}")
    a(f"v_add_u32 v{AW + 2}, 0x20000, v{AW}")
    a("s_waitcnt lgkmcnt(0)")
    a("s_nop 1")
    a(lead(2))
    stamp(a, 7)
    global NOSTAMP
    if "side" in OPT: NOSTAMP = True
    for i in range(8):
        ex = {}
        if i == 4:
            d1, d2 = (stampl(1), stampl(2)) if "p3b" in OPT else ([], [])
            ex["end"] = d1 + ["s_waitcnt vmcnt(0)", "s_barrier"] + d2 + sig_one("L_h_ns", [f"s_add_u32 s{T0}, s{sRB}, {C_H}"], True) + lead(2)
        if i == 3:
            ex["pv0"] = lead(0)
        if i >= 5:
            ex["pv1"], ex["pv0"] = kv(i - 1, A16)
        a(att_step(i, ex, first=(i == 0)))
    adv(a)
    for i in range(8):
        ex = {}
        if i == 0:
            ex["pv1"], ex["pv0"] = kv(7, A16)
            ex["qk"] = [f"v_mov_b64 v[{RING}:{RING + 1}], 0", f"v_mov_b64 v[{RING + 2}:{RING + 3}], 0"]
        if i < 4:
            ex["G1"] = mfma(G_ + 16 * i, RING, RING, "0")
        if i == 3:
            ex["pv0"] = poll_issue("L_h_np", H_MASK, 7) + lead(0)
        if i == 4:
            d1, d2 = (stampl(3), stampl(4)) if "p3b" in OPT else ([], [])
            ex["end"] = d1 + ["s_waitcnt vmcnt(0)"] + poll_check("L_ch", 16, 7, 16) + ["s_barrier"] + d2 + lead(2)
        if i in (5, 6, 7):
            l = ring_loads(i - 5)
            ex["qk"] = l[0:1]
            ex["pv1"] = l[1:3]
            ex["pv0"] = l[3:6]
        a(att_step(i, ex))
    stamp(a, 8)
    a(f"s_mov_b32 s{tIT}, 5")
    a(f"s_lshr_b32 s{sG}, s{sW}, 2")
    a(f"s_lshl_b32 s{sG}, s{sG}, 4")
    a(f"s_add_u32 s{sG}, s{sG}, {PC[0]}")
    a("L_loop:")
    adv(a)
    plan = [[(0, 0)], [(0, 1), (0, 2)], [(0, 3)], [(1, 0), (1, 1)], [(1, 2)], [(1, 3), (2, 0)], [(2, 1)], [(2, 2), (2, 3)]]
    for i in range(8):
        ex = {}
        ex["G1"] = gm(*plan[i][0])
        if len(plan[i]) > 1:
            ex["G2"] = gm(*plan[i][1])
        if i == 0: ex["qk"] = ["s_waitcnt vmcnt(8)"]
        if i == PC[1]: ex["end"] = lead(0, [f"s_cmp_eq_u32 s{tIT}, s{sG}"])
        if i == 2:
            l = ring_loads(0)
            ex["g1"] = l[0:2]
            ex["pv0"] = l[2:6]
        if i == 3: ex["pv1"] = ["s_waitcnt vmcnt(8)"]
        if i == 5:
            l = ring_loads(1)
            ex["g1"] = l[0:2]
            ex["pv0"] = l[2:6] + ["s_waitcnt vmcnt(8)"]
        if i == 7:
            ex["g2"] = ring_loads(2)
        a(att_step(i, ex))
    a(f"s_sub_u32 s{tIT}, s{tIT}, 1")
    a(f"s_cmp_lg_u32 s{tIT}, 0")
    a("s_cbranch_scc1 L_loop")
    adv(a)
    a(f"s_and_b32 s{tFW}, s{sW}, 3")
    a(f"s_lshl_b32 s{tFW}, s{tFW}, 14")
    a(f"s_add_u32 s{tFW}, s{tFW}, {112 * 2048}")
    a(f"s_mov_b32 s{R_WT + 2}, {144 * 2048}")
    if "p3b" in OPT: stamp(a, 5)
    a("s_barrier")
    if "p3b" in OPT: stamp(a, 6)
    a(lead(2))

    def pw(o):
        base, off = (AW, o * 16384) if o < 4 else ((AW + 1, (o - 4) * 16384) if o < 6 else (AW + 2, (o - 6) * 16384))
        return [f"ds_write_b128 v{base}, {vr(G_ + 8 * o, 4)} offset:{off}",
                f"ds_write_b128 v{base}, {vr(G_ + 8 * o + 4, 4)} offset:{off + 1024}"]

    XV = 244
    wreg = lambda i: RING + 4 * i if i < 12 else NM + 4 * (i - 12)

    def wol(g):
        return [f"buffer_load_dwordx4 {vr(wreg(4 * g + q), 4)}, v{A16}, {sr(R_WT)}, s{tFW} offen offset:{q * 1024} sc1" for q in range(4)] + \
               [f"s_add_u32 s{tFW}, s{tFW}, 4096"]
    for i in range(8):
        ex = {}
        if i == 0: ex["pv0"] = [f"buffer_load_dwordx4 {vr(XV, 4)}, v{AOUT}, {sr(S_X)}, 0 offen"]
        if i in (1, 3, 5): ex["pv1"], ex["g1"] = wol(i // 2)[:1], wol(i // 2)[1:2]
        if i in (2, 4, 6): ex["g1"], ex["pv0"] = wol(i // 2 - 1)[2:3], wol(i // 2 - 1)[3:]
        if i == PD: ex["end"] = lead(0)
        a(att_step(i, ex))
    a("s_nop 1")
    a(mfma(O_, V_ + 24 + 4, P_ + 4))
    a(f"s_lshl_b32 s{T0}, s{tQB}, 3")
    a(f"s_add_u32 s{T0}, s{T0}, s{sW}")
    a(f"s_lshl_b32 s{T0}, s{T0}, 5")
    a(f"s_add_u32 s{T0}, s{T0}, s{tHEAD}")
    a(f"s_lshl_b32 s{T0}, s{T0}, 10")
    a(f"s_add_u32 s{T3}, s{T0}, {WS_O}")
    a(f"v_mov_b32 v2, {hx(f2u(2.0 ** 120))}")
    a(f"v_mov_b32 v3, {hx(f2u(2.0 ** -90))}")
    a("s_waitcnt lgkmcnt(0)")
    a("s_nop 3")
    stamp(a, 9)
    a(f"v_add_f32 v1, |v{O_}|, |v{O_ + 1}|")
    for i in range(2, 8):
        a(f"v_add_f32 v1, v1, |v{O_ + i}|")
    a(f"v_cmp_lt_f32 s[40:41], v{O_ + 8}, v2")
    a("v_cmp_lt_f32 s[42:43], v1, v2")
    a(f"v_cmp_le_f32 s[50:51], 0.5, v{O_ + 8}")
    a("v_cmp_le_f32 vcc, v3, v1")
    a("s_or_b64 s[50:51], s[50:51], vcc")
    a("s_and_b64 s[40:41], s[40:41], s[42:43]")
    a("s_and_b64 s[40:41], s[40:41], s[50:51]")
    a("s_cmp_eq_u64 s[40:41], -1")
    a("s_cbranch_scc0 L_fallback")
    a("L_norm:")
    a(f"v_rcp_f32 v2, v{O_ + 8}")
    a("s_nop 0")
    for i in range(8):
        a(f"v_mul_f32 v{O_ + i}, v{O_ + i}, v2")
    for i in range(4):
        a(f"v_cvt_pk_bf16_f32 v{4 + i}, v{O_ + 2 * i}, v{O_ + 2 * i + 1}")
    a(f"buffer_store_dwordx4 v[4:7], v{A16}, {sr(S_WS)}, s{T3} offen sc1")
    a(wol(3)[:4])
    for o in range(8):
        a(pw(o))
    a(f"s_lshl_b32 s{T0}, s{sW}, 14")
    a(f"s_add_u32 s{T1}, s{T0}, 0x8000")
    a(f"s_cmp_lt_u32 s{sW}, 6")
    a(f"s_cselect_b32 s{T0}, s{T0}, s{T1}")
    a(f"v_add_u32 v3, s{T0}, v{A16}")
    a("s_waitcnt vmcnt(4) lgkmcnt(0)")
    a("s_barrier")
    stamp(a, 10)
    a(f"s_cmp_lg_u32 s{sW}, 0")
    a("s_cbranch_scc1 L_o_ns")
    a(f"s_lshl_b32 s{T0}, s{tQB}, 8")
    a(f"s_add_u32 s{T0}, s{T0}, {WS_CNT + C_O * 256}")
    a("v_mov_b32 v1, 1")
    a("s_mov_b64 exec, 1")
    a(f"buffer_atomic_add v1, off, {sr(S_WS)}, s{T0} sc1")
    a("s_mov_b64 exec, -1")
    a("L_o_ns:")
    F_ = G_
    for s in range(8):
        for i in range(2):
            a(f"ds_read_b128 {vr(F_ + 8 * s + 4 * i, 4)}, v3 offset:{(s * 2 + i) * 1024}")
        if s == 6:
            a("s_waitcnt lgkmcnt(10)")
    for s in range(1, 8):
        a(f"s_waitcnt lgkmcnt({2 * (7 - s)})")
        for i in range(4):
            a(f"v_pk_add_f32 {vr(F_ + 2 * i, 2)}, {vr(F_ + 2 * i, 2)}, {vr(F_ + 8 * s + 2 * i, 2)}")
    T_ = F_ + 8
    a(f"v_mov_b32 v4, {hx(f2u(-LOG2E))}")
    for i in range(8):
        a(f"v_mul_f32 v{T_ + i}, v{F_ + i}, v4")
    for i in range(8):
        a(f"v_exp_f32 v{T_ + i}, v{T_ + i}")
    a("s_nop 0")
    for i in range(8):
        a(f"v_add_f32 v{T_ + i}, 1.0, v{T_ + i}")
    for i in range(8):
        a(f"v_rcp_f32 v{T_ + i}, v{T_ + i}")
    a("s_nop 0")
    for i in range(4):
        a(f"v_pk_mul_f32 {vr(F_ + 2 * i, 2)}, {vr(F_ + 2 * i, 2)}, {vr(T_ + 2 * i, 2)}")
    XU = G_ + 16
    for i in range(4):
        a(f"v_lshlrev_b32 v{XU + 2 * i}, 16, v{XV + i}")
        a(f"v_and_b32 v{XU + 2 * i + 1}, 0xffff0000, v{XV + i}")
    a(f"s_lshr_b32 s{T0}, s{sW}, 2")
    a(f"s_lshl_b32 s{T0}, s{T0}, 15")
    a(f"s_and_b32 s{T1}, s{sW}, 3")
    a(f"s_lshl_b32 s{T2}, s{T1}, 11")
    a(f"s_add_u32 s{T0}, s{T0}, s{T2}")
    a(f"v_add_u32 v1, s{T0}, v{A16}")
    a(f"s_lshl_b32 s{T0}, s{sW}, 13")
    a(f"v_add_u32 v3, s{T0}, v{A16}")
    a(f"s_lshl_b32 s{T0}, s{tTT}, 5")
    a(f"s_lshl_b32 s{T1}, s{T1}, 3")
    a(f"s_add_u32 s{T0}, s{T0}, s{T1}")
    a(f"s_lshl_b32 s{T0}, s{T0}, 10")
    a(f"s_add_u32 s{T2}, s{T0}, {WS_O}")
    a(f"s_add_u32 s{T3}, s{T2}, 4096")
    stamp(a, 11)
    a(f"s_cmp_lg_u32 s{sW}, 0")
    a("s_cbranch_scc1 L_o_ok")
    a(f"s_lshl_b32 s{T0}, s{sXCD}, 8")
    a(f"s_add_u32 s{T0}, s{T0}, {WS_CNT + C_O * 256}")
    a(f"s_mov_b32 s{T1}, {SPIN}")
    a("L_o_poll:")
    a(f"buffer_load_dword v4, off, {sr(S_WS)}, s{T0} sc1")
    a("s_waitcnt vmcnt(0)")
    a("v_readfirstlane_b32 s40, v4")
    a("s_cmp_ge_u32 s40, 32")
    a("s_cbranch_scc1 L_o_ok")
    a(f"s_sub_u32 s{T1}, s{T1}, 1")
    a(f"s_cmp_lg_u32 s{T1}, 0")
    a("s_cbranch_scc1 L_o_poll")
    a("L_o_ok:")
    a("s_barrier")
    stamp(a, 12)
    OF = S0
    SA = V_
    for j in range(8):
        so = T2 if j < 4 else T3
        a(f"buffer_load_dwordx4 {vr(OF + 4 * j, 4)}, v{A16}, {sr(S_WS)}, s{so} offen offset:{(j % 4) * 1024} sc1")
    for j in range(8):
        a(f"s_waitcnt vmcnt({7 - j})")
        for ap in range(2):
            a(mfma(SA + 16 * ap, wreg(2 * j + ap), OF + 4 * j, "0" if j == 0 else None))
    stamp(a, 13)
    a("s_nop 11")
    for o in range(4):
        for i in range(2):
            a(f"ds_write_b128 v1, {vr(SA + 8 * o + 4 * i, 4)} offset:{o * 8192 + i * 1024}")
    a("s_waitcnt lgkmcnt(0)")
    a("s_barrier")
    for s in range(4):
        for i in range(2):
            a(f"ds_read_b128 {vr(SA + 8 * s + 4 * i, 4)}, v3 offset:{(s * 2 + i) * 1024}")
    for s in range(1, 4):
        a(f"s_waitcnt lgkmcnt({2 * (3 - s)})")
        for i in range(4):
            a(f"v_pk_add_f32 {vr(SA + 2 * i, 2)}, {vr(SA + 2 * i, 2)}, {vr(SA + 8 * s + 2 * i, 2)}")
    for i in range(4):
        a(f"v_pk_fma_f32 {vr(XU + 2 * i, 2)}, {vr(SA + 2 * i, 2)}, {vr(F_ + 2 * i, 2)}, {vr(XU + 2 * i, 2)}")
    for i in range(4):
        a(f"v_cvt_pk_bf16_f32 v{4 + i}, v{XU + 2 * i}, v{XU + 2 * i + 1}")
    fl = " sc1" if "osc1" in OPT else (" nt" if "ont" in OPT else (" sc0 sc1" if "osc01" in OPT else ""))
    a(f"buffer_store_dwordx4 v[4:7], v{AOUT}, {sr(R_OUT)}, 0 offen{fl}")
    stamp(a, 14)
    stamp_flush(a)
    a("L_exit:")
    a("s_endpgm")
    a("L_fallback:")
    a(f"s_lshl_b32 s{T0}, s{tHEAD}, 16")
    a(f"s_add_u32 s{T0}, s{T0}, {32 << 16}")
    a(f"s_mov_b32 s{T1}, 0")
    a("v_mov_b32 v1, 0xff800000")
    a("L_fb1:")
    a(f"s_add_u32 s{T2}, s{T0}, s{T1}")
    a(f"buffer_load_dwordx4 {vr(K_, 4)}, v{A16}, {sr(S_WS)}, s{T2} offen sc1")
    a("s_waitcnt vmcnt(0)")
    a(mfma(S0, K_, Q_, "0"))
    a("s_nop 15")
    for i in range(0, 16, 2):
        a(f"v_max3_f32 v1, v1, v{S0 + i}, v{S0 + i + 1}")
    a(f"s_add_u32 s{T1}, s{T1}, 1024")
    a(f"s_cmp_lt_u32 s{T1}, 65536")
    a("s_cbranch_scc1 L_fb1")
    a("v_mov_b32 v2, v1")
    a("s_nop 1")
    a("v_permlane32_swap_b32 v1, v2")
    a("v_max_f32 v1, v1, v2")
    a("v_sub_f32 v1, 0, v1")
    for i in range(16):
        a(f"v_mov_b32 v{NM + i}, v1")
    for i in range(16):
        a(f"v_mov_b32 v{O_ + i}, 0")
    a("v_lshrrev_b32 v2, 5, v0")
    a("v_and_b32 v3, 15, v0")
    a("v_lshlrev_b32 v3, 4, v3")
    a("v_lshl_add_u32 v3, v2, 8, v3")
    a(f"s_mov_b32 s{T1}, 0")
    a("L_fb2:")
    a(f"s_add_u32 s{T2}, s{T0}, s{T1}")
    a(f"buffer_load_dwordx4 {vr(K_, 4)}, v{A16}, {sr(S_WS)}, s{T2} offen sc1")
    a(f"s_add_u32 s{T2}, s{T2}, {32 << 16}")
    a(f"s_mov_b64 exec, s[{tVM}:{tVM + 1}]")
    a(f"buffer_load_dwordx4 {vr(V_, 4)}, v3, {sr(S_WS)}, s{T2} offen sc1")
    a(f"buffer_load_dwordx4 {vr(V_ + 4, 4)}, v3, {sr(S_WS)}, s{T2} offen offset:512 sc1")
    a("s_mov_b64 exec, -1")
    a("s_waitcnt vmcnt(0)")
    a(mfma(S0, K_, Q_, NM))
    a("s_nop 15")
    for i in range(16):
        a(f"v_exp_f32 v{S0 + i}, v{S0 + i}")
    a("s_nop 0")
    for i in range(8):
        a(f"v_cvt_pk_bf16_f32 v{P_ + i}, v{S0 + 2 * i}, v{S0 + 2 * i + 1}")
    a("s_nop 1")
    a(mfma(O_, V_, P_))
    a(mfma(O_, V_ + 4, P_ + 4))
    a(f"s_add_u32 s{T1}, s{T1}, 1024")
    a(f"s_cmp_lt_u32 s{T1}, 65536")
    a("s_cbranch_scc1 L_fb2")
    a("s_nop 15")
    a("s_branch L_norm")


def main(out):
    a = Asm()
    k = NAME + "_kernel"
    hdr = ["; LN + MHA + GEGLU block, one persistent launch; generated by gen4.py (hand-scheduled gfx950 assembly)",
           "; @launch grid=(256,1,1) block=(512,1,1) lds=163840"]
    a('.amdgcn_target "amdgcn-amd-amdhsa--gfx950"')
    a(".text")
    a(f".globl {k}\n.p2align 8\n.type {k},@function\n{k}:")
    gen_p1(a)
    gen_p2(a)
    gen_side(a)
    a("L_end:")
    a('.section .rodata,"a"')
    a(".p2align 6")
    a(f".amdhsa_kernel {k}")
    a(f".amdhsa_next_free_vgpr {NVGPR}")
    a(f".amdhsa_next_free_sgpr {96 if (STAMPS or ENC is not None) else 80}")
    a(f".amdhsa_accum_offset {(NVGPR + 3) // 4 * 4}")
    a(".amdhsa_group_segment_fixed_size 0")
    a(".amdhsa_kernarg_size 80")
    a(".amdhsa_user_sgpr_count 2")
    a(".amdhsa_user_sgpr_kernarg_segment_ptr 1")
    a(".amdhsa_system_sgpr_workgroup_id_x 1")
    a(".end_amdhsa_kernel")
    open(out, "w").write("\n".join(hdr) + "\n" + a.text())


if __name__ == "__main__":
    for x in list(sys.argv):
        if x.startswith("--opt="):
            OPT = set(x[6:].split(","))
            sys.argv.remove(x)
    for x in list(sys.argv):
        if x.startswith("--enc="):
            ENC = int(x[6:])
            sys.argv.remove(x)
    for o in OPT:
        if o.startswith("sig"): SIGU = int(o[3:])
        if o.startswith("chk"): CHK = int(o[3:])
        if o.startswith("wk"): WK = int(o[2:])
        if o.startswith("vb"): VBUD = int(o[2:])
        if o.startswith("pc"): PC = (int(o[2]), int(o[3]))
        if o.startswith("pd"): PD = int(o[2])
        if o.startswith("pg"): PG = int(o[2])
    if "--cyc" in sys.argv:
        STAMPS = 2
        sys.argv.remove("--cyc")
    if "--stamps" in sys.argv:
        STAMPS = True
        sys.argv.remove("--stamps")
    main(sys.argv[1] if len(sys.argv) > 1 else f"cdna_kernels/{NAME}.s")
```

```python
import sys, struct, math

NAME = "recurrent_scan__mha_block__glu_gated_geglu__prompt"

WS_QKV = 0
WS_H = 6 << 20
WS_O = 14 << 20
WS_CNT = 16 << 20
WS_STAMP = (16 << 20) + 65536
WS_CS = (16 << 20) + 0xb0000
WS_ST = (16 << 20) + 0x80000
WS_CQ = (16 << 20) + 0xa0000
WS_RS = (16 << 20) + 0x84000
WS_CP = (19 << 20) + 0x80000
WS_WT = 17 << 20
WS_SIZE = 21 << 20
OOB = 0x7f000000

LOG2E = 1.4426950408889634
QSCALE = 0.25 * LOG2E
GC1 = -2.0 * LOG2E * math.sqrt(2.0 / math.pi)
GC2 = GC1 * 0.044715
MAXOFF = 80.0
SPIN = 0x40000

STAMPS = False
OPT = set()
NOSTAMP = False
ENC = None


def f2u(x):
    return struct.unpack("<I", struct.pack("<f", x))[0]


def hx(x):
    return "0x%08x" % (x & 0xffffffff)


class Asm:
    def __init__(self):
        self.l = []

    def __call__(self, s):
        if isinstance(s, (list, tuple)):
            for x in s:
                self(x)
            return
        for line in s.split("\n"):
            line = line.strip()
            if not line:
                continue
            if line.endswith(":") or line.startswith("."):
                self.l.append(line)
            else:
                self.l.append("    " + line)

    def text(self):
        return "\n".join(self.l) + "\n"


def vr(b, n):
    return f"v[{b}:{b + n - 1}]"


def sr(b):
    return f"s[{b}:{b + 3}]"


def mfma(d, a, b, c=None):
    cs = vr(d, 16) if c is None else (c if isinstance(c, str) else vr(c, 16))
    return f"v_mfma_f32_32x32x16_bf16 {vr(d, 16)}, {vr(a, 4)}, {vr(b, 4)}, {cs}"


def stamp(a, n):
    if ENC is not None:
        if n in (0, ENC) and not NOSTAMP:
            a("s_memrealtime s[76:77]")
            a("s_waitcnt lgkmcnt(0)")
            a(f"s_mov_b32 s{80 if n == 0 else 81}, s76")
            if n == 0:
                a("s_mov_b32 s81, s76")
        return
    if not STAMPS or (NOSTAMP and n != 15) or ("min" in OPT and n not in (0, 15)):
        return
    a("s_memtime s[76:77]" if STAMPS == 2 else "s_memrealtime s[76:77]")
    a("s_waitcnt lgkmcnt(0)")
    a(f"s_mov_b32 s{80 + n}, s76")


def stampl(n):
    t = Asm()
    stamp(t, n)
    return [x.strip() for x in t.l]


def stamp_flush(a):
    if ENC is not None:
        a("s_waitcnt vmcnt(0)")
        a("s_memrealtime s[76:77]")
        a("s_waitcnt lgkmcnt(0)")
        if ENC == 15:
            a("s_mov_b32 s81, s76")
        if ENC == 99:
            a(["v_mov_b32 v1, 0", f"global_load_dword v2, v1, s[{pDBG}:{pDBG + 1}] offset:240 sc1", "s_waitcnt vmcnt(0)",
               "v_readfirstlane_b32 s80, v2", "s_not_b32 s80, s80"])
        a("s_sub_u32 s81, s81, s80")
        a("s_cmp_lt_u32 s2, 32" if "encs" not in OPT else "s_cmp_ge_u32 s2, 32")
        a("s_cselect_b32 s81, 0, s81")
        a("s_mov_b32 s80, s76")
        a("L_enc:")
        a("s_memrealtime s[76:77]")
        a("s_waitcnt lgkmcnt(0)")
        a("s_sub_u32 s76, s76, s80")
        a("s_cmp_lt_u32 s76, s81")
        a("s_cbranch_scc1 L_enc")
        return
    if not STAMPS:
        return
    a("s_waitcnt vmcnt(0)")
    stamp(a, 15)
    a("v_mov_b32 v1, 0")
    for n in range(16):
        a(f"v_writelane_b32 v1, s{80 + n}, {n}")
    a("s_lshl_b32 s76, s2, 3")
    a(f"s_add_u32 s76, s76, s{sW}")
    a("s_lshl_b32 s76, s76, 6")
    a(f"s_add_u32 s76, s76, {WS_STAMP}")
    a("v_lshlrev_b32 v2, 2, v0")
    a("s_mov_b64 exec, 0xffff")
    a(f"buffer_store_dword v1, v2, {sr(S_WS)}, s76 offen")


def srd(a, s, ptr, size):
    a(f"s_mov_b32 s{s}, s{ptr}")
    a(f"s_mov_b32 s{s + 1}, s{ptr + 1}")
    a(f"s_mov_b32 s{s + 2}, {size}")
    a(f"s_mov_b32 s{s + 3}, 0x00020000")


pX, pWQKV, pWO, pG, pU, pWD, pOUT, pDBG, pWS = 56, 58, 60, 64, 66, 68, 70, 72, 74
S_T, S_X, S_W0, S_W1, S_W3, S_WS = 4, 8, 12, 16, 20, 24
R_OUT, R_H0, R_H1, R_WT = 4, 12, 16, 20
sW, sTT, sHF, sRB, sCB, sROT, sISS, sVAR = 28, 29, 30, 31, 32, 33, 34, 35
sCQ, sCG, sXROW, sLW = 36, 37, 42, 43
T0, T1, T2, T3 = 44, 45, 46, 47
sXCD, sT, sG, sKV = 49, 52, 53, 50
tHEAD, tQB, tIT, tFH, tFW, tTT = 38, 39, 33, 36, 37, 48
tVM = 54

AR, BR, CR, SL = 0, 49152, 98304, 16384
SCR = 147456
XA, VXS, VW0, WQ, WC = 4, 8, 9, 10, 12
VW1, VW3, L16, MASK, ONES, STV, POLL = 14, 15, 16, 17, 18, 20, 21
CSA = 24
WF = 32
ACF, ACQ = 64, 96
XF = 128
Q_, K_, P_, NM, S0, S1, RING = 8, 12, 20, 28, 44, 60, 76
AK, AV, A16, AOUT = 124, 125, 126, 127
G_, V_, O_, AW = 128, 192, 224, 240
NVGPR = 256
C_H, C_CS, C_O = 24, 40, 56
T4 = 63
sCF, sCNT = 51, 62


def tiny(d, a_, b_, first=False):
    return f"v_mfma_f32_4x4x4_16b_bf16 {vr(d, 4)}, {vr(a_, 2)}, {vr(b_, 2)}, {'0' if first else vr(d, 4)}"


def dma(S, ffn=True):
    sl = (S % 3) * SL
    if S < 8:
        r = [[f"s_add_u32 s{T1}, s{sROT}, {S}", f"s_and_b32 s{T1}, s{T1}, 7",
              f"s_lshl_b32 s{T0}, s{T1}, 7", f"s_add_u32 m0, s{sLW}, {AR + sl}", f"s_add_u32 s{T0}, s{T0}, s{sXROW}",
              f"buffer_load_dwordx4 v{VXS}, {sr(S_X)}, s{T0} offen lds"],
             [f"s_mul_i32 s{T4}, s{T1}, {64 * 3584}",
              f"s_mul_i32 s{T1}, s{T1}, {64 * 3072}", f"s_add_u32 m0, s{sLW}, {BR + sl}", f"s_add_u32 s{T1}, s{T1}, s{sCQ}",
              f"buffer_load_dwordx4 v{VW0}, {sr(S_W0)}, s{T1} offen lds"],
             [f"s_add_u32 m0, s{sLW}, {AR + sl + 8192}", f"s_add_u32 s{T0}, s{T0}, 0x10000",
              f"buffer_load_dwordx4 v{VXS}, {sr(S_X)}, s{T0} offen lds"],
             [f"s_add_u32 m0, s{sLW}, {BR + sl + 8192 - 128}", "s_nop 0",
              f"buffer_load_dwordx4 v{VW0}, {sr(S_W0)}, s{T1} offen offset:128 lds"]]
        if ffn:
            r += [[f"s_add_u32 m0, s{sLW}, {CR + sl}", f"s_add_u32 s{T4}, s{T4}, s{sCG}",
                   f"buffer_load_dwordx4 v{VW1}, {sr(S_W1)}, s{T4} offen lds"],
                  [f"s_add_u32 m0, s{sLW}, {CR + sl + 8192}", "s_nop 0",
                   f"buffer_load_dwordx4 v{VW3}, {sr(S_W3)}, s{T4} offen lds"]]
        return r
    if not ffn:
        return []
    r = []
    for hb, base in enumerate((BR, CR)):
        r += [[f"s_add_u32 s{T1}, s{sROT}, {2 * (S - 8) + hb}", f"s_and_b32 s{T1}, s{T1}, 7",
               f"s_mul_i32 s{T1}, s{T1}, {64 * 3584}", f"s_add_u32 m0, s{sLW}, {base + sl - 128}", f"s_add_u32 s{T1}, s{T1}, s{sCG}",
               f"buffer_load_dwordx4 v{VW1}, {sr(S_W1)}, s{T1} offen offset:128 lds"],
              [f"s_add_u32 m0, s{sLW}, {base + sl + 8192 - 128}", "s_nop 0",
               f"buffer_load_dwordx4 v{VW3}, {sr(S_W3)}, s{T1} offen offset:128 lds"]]
    return r


def fset(k, ffn):
    return WF + 16 * (k & 1) if ffn else WF + 8 * (k & 3)


def rd1(k, nt, ffn):
    S, ks = k >> 2, k & 3
    sl = (S % 3) * SL
    F = fset(k, ffn)
    r = [f"ds_read_b128 {vr(XF + 4 * k, 4)}, v{XA + ks} offset:{sl}"]
    for t in range(nt):
        for t2 in range(2):
            r.append(f"ds_read_b64_tr_b16 {vr(F + 4 * t + 2 * t2, 2)}, v{WQ + t} offset:{sl + ks * 2048 + t2 * 512}")
    if ffn:
        for c in range(2):
            for t2 in range(2):
                r.append(f"ds_read_b64_tr_b16 {vr(F + 8 + 4 * c + 2 * t2, 2)}, v{WC + c} offset:{sl + ks * 2048 + t2 * 512}")
    return r


def rd2(u):
    S = 8 + (u >> 2)
    sl = (S % 3) * SL
    base = WQ if (u & 3) < 2 else WC
    F = WF + 16 * (u & 1)
    return [f"ds_read_b64_tr_b16 {vr(F + 8 * q + 4 * c + 2 * t2, 2)}, v{base + c} offset:{sl + ((2 * u + q) & 3) * 2048 + t2 * 512}"
            for q in range(2) for c in range(2) for t2 in range(2)]


def flat(L):
    return [x for at in L for x in ([at] if isinstance(at, str) else at)]


def spread(heads, first, rest):
    n = len(heads)
    pf = -(-len(first) // max(1, n - 1)) if first else 0
    res = []
    for j, hd in enumerate(heads):
        res.append(hd)
        res += flat(first[j * pf:(j + 1) * pf])
        res += flat(rest[j * len(rest) // n:(j + 1) * len(rest) // n])
    return res


def nvm(lines):
    return sum(1 for l in lines if l.startswith("buffer_") or l.startswith("global_"))


def weave(heads, fills):
    res = []
    per = -(-len(fills) // len(heads)) if fills else 0
    i = 0
    for hd in heads:
        res.append(hd)
        for at in fills[i:i + per]:
            res += [at] if isinstance(at, str) else at
        i += per
    return res


def tr_addr(dst, t_a, t_b):
    return [f"v_lshrrev_b32 v{t_a}, 5, v0", f"v_bfe_u32 v{t_b}, v0, 2, 2", f"v_lshl_add_u32 v{dst}, v{t_a}, 2, v{t_b}",
            f"v_lshlrev_b32 v{dst}, 7, v{dst}", f"v_and_b32 v{t_a}, 1, v0", f"v_lshl_add_u32 v{dst}, v{t_a}, 6, v{dst}",
            f"v_bfe_u32 v{t_a}, v0, 4, 1", f"v_lshl_add_u32 v{dst}, v{t_a}, 4, v{dst}", f"v_bfe_u32 v{t_a}, v0, 1, 1",
            f"v_lshl_add_u32 v{dst}, v{t_a}, 3, v{dst}", f"v_lshrrev_b32 v{t_b}, 1, v{t_b}", f"v_lshl_add_u32 v{dst}, v{t_b}, 5, v{dst}"]


def split3(w, src):
    return [f"v_and_b32 v{w}, v{MASK}, v{src}", f"v_sub_f32 v{w + 2}, v{src}, v{w}",
            f"v_and_b32 v{w + 1}, v{MASK}, v{w + 2}", f"v_sub_f32 v{w + 2}, v{w + 2}, v{w + 1}", f"v_mov_b32 v{w + 3}, 0"]


def poll_issue(lbl, mask_instrs, reg=POLL):
    return ([f"s_cmp_lg_u32 s{sW}, 0", f"s_cbranch_scc1 {lbl}", "v_lshlrev_b32 v1, 8, v0"] + mask_instrs +
            ["s_mov_b64 exec, s[40:41]",
             f"buffer_load_dword v{reg}, v1, {sr(S_WS)}, s{sCNT} offen sc1", "s_mov_b64 exec, -1", f"{lbl}:"])


def poll_check(lbl, thr, reg=POLL, sleep=8):
    return [f"s_cmp_lg_u32 s{sW}, 0", f"s_cbranch_scc1 {lbl}_ok",
            f"s_mov_b32 s{T3}, {SPIN}", "s_mov_b64 exec, s[40:41]", f"{lbl}_spin:",
            f"v_cmp_gt_u32 vcc, {thr}, v{reg}", "s_cmp_eq_u64 vcc, 0", f"s_cbranch_scc1 {lbl}_done",
            f"s_sleep {sleep}",
            f"buffer_load_dword v{reg}, v1, {sr(S_WS)}, s{sCNT} offen sc1", "s_waitcnt vmcnt(0)",
            f"s_sub_u32 s{T3}, s{T3}, 1", f"s_cmp_lg_u32 s{T3}, 0", f"s_cbranch_scc1 {lbl}_spin",
            f"{lbl}_done:", "s_mov_b64 exec, -1", f"{lbl}_ok:"]


QKV_MASK = [f"s_lshl_b32 s40, 0x10101, s{sXCD}", "s_mov_b32 s41, 0"]
CS_MASK = ["s_mov_b32 s40, 0", f"s_lshl_b32 s41, 0x100, s{sCF}"]
H_MASK = ["s_mov_b32 s40, 0xff000000", "s_mov_b32 s41, 0xff"]


def cs_issue(lbl, n):
    return [f"s_cmp_lg_u32 s{sW}, 0", f"s_cbranch_scc1 {lbl}", "v_lshlrev_b32 v1, 6, v0", "s_mov_b64 exec, 15",
            f"global_load_dword v{POLL}, v1, s[{pDBG}:{pDBG + 1}] offset:{4 * n} sc1", "s_mov_b64 exec, -1", f"{lbl}:"]


def cs_signal(lbl, n):
    return [f"s_cmp_lg_u32 s{sW}, 0", f"s_cbranch_scc1 {lbl}", f"s_and_b32 s{T2}, s{sRB}, 3", f"s_lshl_b32 s{T2}, s{T2}, 6",
            f"v_mov_b32 v2, s{T2}", "v_mov_b32 v3, 1", "s_mov_b64 exec, 1",
            f"global_atomic_add v2, v3, s[{pDBG}:{pDBG + 1}] offset:{4 * n} sc1", "s_mov_b64 exec, -1", f"{lbl}:"]


def cs_check(lbl, n):
    return [f"s_cmp_lg_u32 s{sW}, 0", f"s_cbranch_scc1 {lbl}_ok",
            f"s_mov_b32 s{T3}, {SPIN}", "s_mov_b64 exec, 15", f"{lbl}_spin:",
            f"v_cmp_gt_u32 vcc, 8, v{POLL}", "s_cmp_eq_u64 vcc, 0", f"s_cbranch_scc1 {lbl}_done",
            "s_sleep 8",
            f"global_load_dword v{POLL}, v1, s[{pDBG}:{pDBG + 1}] offset:{4 * n} sc1", "s_waitcnt vmcnt(0)",
            f"s_sub_u32 s{T3}, s{T3}, 1", f"s_cmp_lg_u32 s{T3}, 0", f"s_cbranch_scc1 {lbl}_spin",
            f"{lbl}_done:", "s_mov_b64 exec, -1", f"{lbl}_ok:"]


def flag_check(lbl):
    return [f"s_cmp_lg_u32 s{sW}, 0", f"s_cbranch_scc1 {lbl}",
            f"s_mov_b32 s{T3}, {SPIN}", f"{lbl}_spin:",
            f"v_readfirstlane_b32 s{T2}, v{POLL}", f"s_cmp_lg_u32 s{T2}, 0", f"s_cbranch_scc1 {lbl}",
            "s_sleep 8", "v_mov_b32 v2, 0",
            f"global_load_dword v{POLL}, v2, s[{pDBG}:{pDBG + 1}] offset:32 sc1", "s_waitcnt vmcnt(0)",
            f"s_sub_u32 s{T3}, s{T3}, 1", f"s_cmp_lg_u32 s{T3}, 0", f"s_cbranch_scc1 {lbl}_spin", f"{lbl}:"]


def sig_qkv(lbl):
    return [f"s_cmp_lg_u32 s{sW}, 0", f"s_cbranch_scc1 {lbl}",
            f"s_mul_i32 s{T2}, s{sCB}, 3", f"s_lshr_b32 s{T2}, s{T2}, 1", f"s_and_b32 s{T3}, s{sCB}, 1",
            f"v_add_u32 v2, s{T2}, v0", "v_lshlrev_b32 v2, 8, v2",
            f"v_xor_b32 v3, s{T3}, v0", "v_sub_u32 v3, 2, v3",
            "s_mov_b64 exec, 3", f"buffer_atomic_add v3, v2, {sr(S_WS)}, s{sCNT} offen sc1", "s_mov_b64 exec, -1", f"{lbl}:"]


def sig_one(lbl, idx_instrs, skip_side=False):
    c = [f"s_or_b32 s{T0}, s{sW}, s{sISS}"] if skip_side else [f"s_cmp_lg_u32 s{sW}, 0"]
    return (c + [f"s_cbranch_scc1 {lbl}"] + idx_instrs +
            [f"s_lshl_b32 s{T0}, s{T0}, 8", f"s_add_u32 s{T0}, s{T0}, s{sCNT}", "v_mov_b32 v3, 1", "s_mov_b64 exec, 1",
             f"buffer_atomic_add v3, off, {sr(S_WS)}, s{T0} sc1", "s_mov_b64 exec, -1", f"{lbl}:"])


def kv(i, r=L16):
    return [[f"s_lshl1_add_u32 m0, s{sLW}, {i * 16384}" if i else f"s_lshl_b32 m0, s{sLW}, 1",
             f"s_add_u32 s{T2}, s{sKV}, {i * 8192}",
             f"buffer_load_dwordx4 v{r}, {sr(S_WS)}, s{T2} offen sc1 lds"],
            [f"s_lshl1_add_u32 m0, s{sLW}, {i * 16384 + 1024}", f"s_add_u32 s{T2}, s{sKV}, {i * 8192 + (32 << 16)}",
             f"buffer_load_dwordx4 v{r}, {sr(S_WS)}, s{T2} offen sc1 lds"]]


def q_load():
    return [f"s_lshl_b32 s{T2}, s{tQB}, 13", f"s_add_u32 s{T2}, s{T2}, s{sKV}", f"s_sub_u32 s{T2}, s{T2}, {32 << 16}",
            f"buffer_load_dwordx4 {vr(Q_, 4)}, v{L16}, {sr(S_WS)}, s{T2} offen sc1"]


def p2_init_v():
    return ([["v_and_b32 v3, 27, v0", "v_cmp_eq_u32 vcc, 16, v3", f"v_mov_b32 v{V_ + 1}, 0x3f803f80", "v_mov_b32 v3, 0",
              f"v_cndmask_b32 v{V_}, v3, v{V_ + 1}, vcc", f"v_mov_b32 v{V_ + 1}, v{V_}"]] +
            [f"v_mov_b64 v[{V_ + i}:{V_ + i + 1}], v[{V_}:{V_ + 1}]" for i in range(2, 32, 2)])


TRA, TRD = 142, 144


def tr_setup():
    A, B, C, D = T2, T3, tVM + 1, tVM
    return [[f"s_sub_u32 s{C}, s2, 32", f"s_mul_i32 s{D}, s{sW}, 144", f"s_add_u32 s{D}, s{D}, s{C}", f"s_lshl_b32 s{D}, s{D}, 11",
             f"s_add_u32 s{D}, s{D}, {WS_WT}", f"s_cmp_lt_u32 s{C}, 144", f"s_cselect_b32 s{D}, s{D}, {OOB}",
             f"s_cmp_lt_u32 s{C}, 112", f"s_cselect_b32 s{S_T}, s{pWD}, s{pWO}",
             f"s_cselect_b32 s{S_T + 1}, s{pWD + 1}, s{pWO + 1}", f"s_mov_b32 s{S_T + 2}, 1835008",
             f"s_cselect_b32 s{S_T + 2}, s{S_T + 2}, 524288", f"s_cselect_b32 s{A}, 0, 112", f"s_mov_b32 s{S_T + 3}, 0x00020000",
             f"s_sub_u32 s{C}, s{C}, s{A}", f"s_lshl_b32 s{C}, s{C}, 14", f"s_lshl_b32 s{B}, s{sW}, 7", f"s_add_u32 s{C}, s{C}, s{B}"],
            ["v_lshrrev_b32 v2, 3, v0", "v_and_b32 v3, 2, v2", "v_and_b32 v18, 7, v0", "v_xor_b32 v18, v3, v18",
             "v_lshlrev_b32 v18, 4, v18", "v_lshl_add_u32 v18, v2, 10, v18"]]


def tr_dma():
    C = tVM + 1
    return [[f"s_lshl_b32 m0, s{sLW}, 1", f"s_add_u32 s{T3}, s{C}, 8192", f"buffer_load_dwordx4 v18, {sr(S_T)}, s{C} offen lds",
             "s_add_u32 m0, m0, 1024", "s_nop 0", f"buffer_load_dwordx4 v18, {sr(S_T)}, s{T3} offen lds"]]


def tr_rd():
    return [f"ds_read_b64_tr_b16 {vr(TRD + 4 * ap + 2 * t, 2)}, v{TRA + ap} offset:{t * 1024}" for ap in range(2) for t in range(2)]


def tr_st():
    return [f"buffer_store_dwordx4 {vr(TRD, 4)}, v{L16}, {sr(S_WS)}, s{tVM} offen sc1",
            f"buffer_store_dwordx4 {vr(TRD + 4, 4)}, v{L16}, {sr(S_WS)}, s{tVM} offen offset:1024 sc1"]


def gen_p1(a):
    global NOSTAMP
    a("s_cmp_ge_u32 s2, 256")
    a("s_cbranch_scc1 L_exit")
    stamp(a, 0)
    a(f"s_load_dwordx4 s[{pX}:{pX + 3}], s[0:1], 0")
    a(f"s_load_dwordx4 s[{pG}:{pG + 3}], s[0:1], 32")
    a(f"s_load_dwordx2 s[{pWO}:{pWO + 1}], s[0:1], 16")
    a(f"s_load_dwordx4 s[{pWD}:{pWD + 3}], s[0:1], 48")
    a(f"s_load_dwordx4 s[{pDBG}:{pDBG + 3}], s[0:1], 64")
    a("v_lshrrev_b32 v1, 6, v0")
    a("v_and_b32 v0, 63, v0")
    a(f"v_readfirstlane_b32 s{sW}, v1")
    a("s_cmp_ge_u32 s2, 32")
    a("s_cbranch_scc1 L_nocode")
    a("s_getpc_b64 s[40:41]")
    a("L_here:")
    a("v_lshlrev_b32 v2, 13, v1")
    a("v_lshl_add_u32 v2, v0, 7, v2")
    a("v_min_u32 v2, L_end-L_here-4, v2")
    a("v_mov_b32 v3, s41")
    a("v_add_co_u32 v2, vcc, s40, v2")
    a("s_nop 1")
    a("v_addc_co_u32 v3, vcc, 0, v3, vcc")
    a(f"global_load_dword v{STV}, v[2:3], off")
    a("L_nocode:")
    a(f"s_and_b32 s{sXCD}, s2, 7")
    a(f"s_lshr_b32 s{T1}, s2, 3")
    a(f"s_and_b32 s{sRB}, s{sXCD}, 3")
    a(f"s_and_b32 s{T2}, s{T1}, 3")
    a(f"s_lshl2_add_u32 s{sRB}, s{sRB}, s{T2}")
    a(f"s_lshr_b32 s{sCF}, s{sXCD}, 2")
    a(f"s_lshr_b32 s{sISS}, s{T1}, 2")
    a(f"s_lshl3_add_u32 s{sCB}, s{sCF}, s{sISS}")
    if "norot" in OPT:
        a(f"s_mov_b32 s{sROT}, 0")
    else:
        a(f"s_lshl1_add_u32 s{sROT}, s{sXCD}, s{sISS}")
    a(f"s_lshl_b32 s{sLW}, s{sW}, 10")
    a(f"s_lshl_b32 s{T2}, s{sW}, 3")
    a(f"s_lshl_b32 s{sXROW}, s{sRB}, 7")
    a(f"s_add_u32 s{sXROW}, s{sXROW}, s{T2}")
    a(f"s_lshl_b32 s{sXROW}, s{sXROW}, 10")
    a(f"s_mul_i32 s{sCQ}, s{sCB}, 3")
    a(f"s_lshr_b32 s{sCQ}, s{sCQ}, 1")
    a(f"s_lshl_b32 s{sCQ}, s{sCQ}, 7")
    a(f"s_mul_i32 s{T3}, s{T2}, 3072")
    a(f"s_add_u32 s{sCQ}, s{sCQ}, s{T3}")
    a(f"s_mul_i32 s{T3}, s{T2}, 3584")
    a(f"s_sub_u32 s{sCF}, s{sCB}, s{sCF}")
    a(f"s_sub_u32 s{sCF}, s{sCF}, 1")
    a(f"s_lshl_b32 s{sCG}, s{sCF}, 8")
    a(f"s_add_u32 s{sCG}, s{sCG}, s{T3}")
    a(f"s_cmp_eq_u32 s{sISS}, 0")
    a(f"s_cselect_b32 s{sISS}, 1, 0")
    a(f"s_cselect_b32 s{sCG}, {OOB}, s{sCG}")
    a("v_lshrrev_b32 v1, 3, v0")
    a("v_and_b32 v2, 7, v0")
    a(f"v_add_u32 v3, s{T2}, v1")
    a("v_bfe_u32 v3, v3, 1, 3")
    a("v_xor_b32 v3, v3, v2")
    a("v_lshlrev_b32 v3, 4, v3")
    a(f"v_lshl_add_u32 v{VXS}, v1, 10, v3")
    a("v_and_b32 v3, 2, v1")
    a("v_lshlrev_b32 v3, 1, v3")
    a("v_xor_b32 v3, v3, v2")
    a("v_lshlrev_b32 v3, 4, v3")
    a("v_mul_u32_u24 v4, 3072, v1")
    a(f"v_add_u32 v{VW0}, v4, v3")
    a("v_mul_u32_u24 v4, 3584, v1")
    a(f"v_add_u32 v{VW1}, v4, v3")
    a(f"v_xor_b32 v{VW3}, 32, v{VW1}")
    for r_, sz in ((S_X, 2097152), (S_W0, 1572864), (S_W1, 1835008), (S_W3, 1835008)):
        a(f"s_mov_b32 s{r_ + 2}, {sz}")
        a(f"s_mov_b32 s{r_ + 3}, 0x00020000")
    a("s_waitcnt lgkmcnt(0)")
    for r_, p_ in ((S_X, pX), (S_W0, pWQKV), (S_W1, pG), (S_W3, pU)):
        a(f"s_mov_b64 s[{r_}:{r_ + 1}], s[{p_}:{p_ + 1}]")
    a(f"s_cmp_eq_u32 s{sISS}, 1")
    a("s_cbranch_scc1 L_nod0")
    a(dma(0))
    a("L_nod0:")
    a(f"v_lshlrev_b32 v{L16}, 4, v0")
    a(f"s_and_b32 s{sTT}, s{sW}, 3")
    a(f"s_lshr_b32 s{sHF}, s{sW}, 2")
    a(f"s_mov_b32 s{sCNT}, {WS_CNT}")
    srd(a, S_WS, pWS, WS_SIZE)
    a(f"s_lshl2_add_u32 s{sT}, s{sRB}, s{sTT}")
    a(f"s_mul_i32 s{sG}, s{sCB}, 3")
    a(f"s_lshl1_add_u32 s{sG}, s{sHF}, s{sG}")
    a(f"s_cmp_ge_u32 s{sG}, 32")
    a(f"s_cselect_b32 s{sVAR}, 2, 0")
    a(f"s_add_u32 s{sVAR}, s{sVAR}, s{sHF}")
    a(f"s_lshl_b32 s{sG}, s{sG}, 1")
    a(f"s_lshr_b32 s{T1}, s2, 3")
    a(f"s_and_b32 s{T2}, s{T1}, 3")
    a(f"s_lshl2_add_u32 s{tHEAD}, s{sXCD}, s{T2}")
    a(f"s_lshr_b32 s{tQB}, s{T1}, 2")
    a(f"s_lshl_b32 s{sKV}, s{tHEAD}, 16")
    a(f"s_add_u32 s{sKV}, s{sKV}, s{sLW}")
    a(f"s_add_u32 s{sKV}, s{sKV}, {32 << 16}")
    t4, t6, t7 = WF, WF + 1, WF + 2
    a("v_and_b32 v1, 31, v0")
    a("v_lshrrev_b32 v2, 5, v0")
    a("v_bfe_u32 v3, v0, 1, 3")
    a("v_xor_b32 v3, v3, v2")
    a("v_lshlrev_b32 v3, 4, v3")
    a("v_lshl_add_u32 v3, v1, 7, v3")
    a(f"s_lshl_b32 s{T0}, s{sTT}, 12")
    a(f"v_add_u32 v{XA}, s{T0}, v3")
    for i in range(1, 4):
        a(f"v_xor_b32 v{XA + i}, {32 * i}, v{XA}")
    a("v_bfe_u32 v3, v0, 2, 2")
    a(f"v_lshl_add_u32 v{t4}, v2, 3, v3")
    a(f"v_lshlrev_b32 v{t4}, 7, v{t4}")
    a(f"v_and_b32 v{t7}, 3, v0")
    a(f"v_lshl_add_u32 v{t4}, v{t7}, 3, v{t4}")
    a("v_and_b32 v3, 2, v3")
    a(f"v_bfe_u32 v{t7}, v0, 4, 1")
    a(f"v_xor_b32 v3, v3, v{t7}")
    a(f"s_and_b32 s{T0}, s{sCB}, 1")
    a(f"s_lshl1_add_u32 s{T0}, s{sHF}, s{T0}")
    for t in range(2):
        a(f"s_and_b32 s{T1}, s{T0}, 1")
        a(f"s_lshl_b32 s{T1}, s{T1}, 1")
        a(f"s_lshr_b32 s{T2}, s{T0}, 1")
        a(f"s_lshl_b32 s{T2}, s{T2}, 13")
        a(f"s_add_u32 s{T2}, s{T2}, {BR}")
        a(f"v_xor_b32 v{t6}, s{T1}, v3")
        a(f"v_lshl_add_u32 v{t6}, v{t6}, 5, v{t4}")
        a(f"v_add_u32 v{WQ + t}, s{T2}, v{t6}")
        if t == 0:
            a(f"s_add_u32 s{T0}, s{T0}, 1")
    a(f"v_lshl_add_u32 v{t4}, v{t7}, 13, v{t4}")
    a(f"v_add_u32 v{t4}, {CR}, v{t4}")
    a(f"s_lshl_b32 s{T0}, s{sHF}, 1")
    a(f"v_xor_b32 v{t6}, s{T0}, v3")
    a(f"v_lshl_add_u32 v{WC}, v{t6}, 5, v{t4}")
    a(f"v_xor_b32 v{WC + 1}, 32, v{WC}")
    a(f"v_mov_b32 v{MASK}, 0xffff0000")
    a(f"v_mov_b32 v{ONES}, 0x3f80")
    a(f"s_cmp_eq_u32 s{sISS}, 1")
    a("s_cbranch_scc1 L_side1")
    a([f"s_lshl_b32 s{T0}, s{sW}, 8", f"s_or_b32 s{T0}, s2, s{T0}", f"s_cmp_lg_u32 s{T0}, 32", "s_cbranch_scc1 L_nozero",
       "v_mov_b32 v1, 0", "v_lshlrev_b32 v2, 8, v0", f"buffer_store_dword v1, v2, {sr(S_WS)}, s{sCNT} offen sc1", "L_nozero:"])
    a(dma(1))
    stamp(a, 1)
    for v in range(1, 4):
        a(f"s_cmp_eq_u32 s{sVAR}, {v}")
        a(f"s_cbranch_scc1 L_p1_{v}")
    XOP, RS = XA, 22
    CL, RU, ta, tb, tc = 224, 232, 240, 241, 242
    cs_loads = [[f"s_bitcmp1_b32 s{sRB}, 1", f"s_cselect_b32 s{S_T}, s{pU}, s{pG}", f"s_cselect_b32 s{S_T + 1}, s{pU + 1}, s{pG + 1}",
                 f"s_mov_b32 s{S_T + 2}, 1835008", f"s_mov_b32 s{S_T + 3}, 0x00020000",
                 f"s_lshr_b32 s{T2}, s{sRB}, 2", f"s_lshl3_add_u32 s{T2}, s{T2}, s{sW}", f"s_mul_i32 s{T2}, s{T2}, {16 * 3584}",
                 f"s_and_b32 s{T3}, s{sRB}, 1", f"s_lshl1_add_u32 s{T3}, s{sCF}, s{T3}", f"s_lshl_b32 s{T3}, s{T3}, 7", f"s_add_u32 s{T2}, s{T2}, s{T3}",
                 f"v_lshrrev_b32 v{ta}, 3, v0", f"v_mul_u32_u24 v{ta}, 3584, v{ta}", f"v_and_b32 v{tb}, 7, v0", f"v_lshl_add_u32 v{ta}, v{tb}, 4, v{ta}",
                 f"buffer_load_dwordx4 {vr(CL, 4)}, v{ta}, {sr(S_T)}, s{T2} offen"],
                [f"s_add_u32 s{T2}, s{T2}, {8 * 3584}", f"buffer_load_dwordx4 {vr(CL + 4, 4)}, v{ta}, {sr(S_T)}, s{T2} offen"]]
    SE, DD, RV = 244, 248, 208
    sel = [f"v_and_b32 v{tb}, 15, v0", f"v_and_b32 v{tc}, 1, v0", f"v_lshlrev_b32 v{tc}, 4, v{tc}", f"v_lshlrev_b32 v{tc}, v{tc}, v{ONES}",
           f"v_lshrrev_b32 v{tb}, 1, v{tb}"]
    for i in range(4):
        sel += [[f"v_cmp_eq_u32 vcc, {i}, v{tb}", "s_nop 1", f"v_cndmask_b32 v{SE + i}, 0, v{tc}, vcc"]]
    m16 = lambda c, b_: f"v_mfma_f32_16x16x32_bf16 {vr(DD, 4)}, {vr(SE, 4)}, {vr(b_, 4)}, {c}"
    csv = {4: sel[:5], 5: sel[5:],
           6: [f"v_and_b32 v{tb}, 15, v0", f"v_lshlrev_b32 v{tb}, 5, v{tb}", f"v_lshrrev_b32 v{tc}, 4, v0", f"v_lshl_add_u32 v{tb}, v{tc}, 4, v{tb}",
               [f"s_lshl_b32 s40, s2, 12", f"s_add_u32 s40, s40, {WS_CP}", f"s_lshl_b32 s41, s{sW}, 9", "s_add_u32 s41, s41, s40"]]}
    cs_mm = [m16("0", CL), m16(vr(DD, 4), CL + 4)]
    cs_st = ["s_mov_b32 exec_hi, 0", f"buffer_store_dwordx4 {vr(DD, 4)}, v{tb}, {sr(S_WS)}, s41 offen", "s_mov_b32 exec_hi, -1"]
    cs_l2 = lambda lb: ([f"s_cmp_lg_u32 s{sW}, 0", f"s_cbranch_scc1 {lb}"] +
                        [f"buffer_load_dwordx4 {vr(RV + 4 * i, 4)}, v{L16}, {sr(S_WS)}, s40 offen offset:{1024 * i} sc1" for i in range(4)] + [f"{lb}:"])
    cs_r2 = lambda lb: ([f"s_cmp_lg_u32 s{sW}, 0", f"s_cbranch_scc1 {lb}"] +
                        [f"v_add_f32 v{RV + i}, v{RV + i}, v{RV + 8 + i}" for i in range(8)] +
                        [f"v_add_f32 v{RV + i}, v{RV + i}, v{RV + 4 + i}" for i in range(4)] +
                        [f"v_and_b32 v{ta}, 15, v0", f"v_lshrrev_b32 v{tc}, 4, v0",
                         f"v_permlane16_swap_b32 v{RV}, v{RV + 1}", f"v_permlane16_swap_b32 v{RV + 2}, v{RV + 3}",
                         f"v_add_f32 v{RV}, v{RV}, v{RV + 1}", f"v_add_f32 v{RV + 2}, v{RV + 2}, v{RV + 3}",
                         f"v_lshl_add_u32 v{ta}, v{ta}, 2, v{tc}", f"v_lshlrev_b32 v{ta}, 2, v{ta}",
                         f"v_permlane32_swap_b32 v{RV}, v{RV + 2}", f"v_add_f32 v{RV}, v{RV}, v{RV + 2}",
                         f"s_bfe_u32 s40, s{sRB}, 0x10001", "s_mul_i32 s40, s40, 28", f"s_and_b32 s41, s{sRB}, 1", "s_add_u32 s40, s40, s41",
                         f"s_lshl1_add_u32 s40, s{sCF}, s40", f"s_lshr_b32 s41, s{sRB}, 2", "s_lshl2_add_u32 s40, s40, s41",
                         "s_lshl_b32 s40, s40, 8", f"s_add_u32 s40, s40, {WS_CS}",
                         f"buffer_store_dword v{RV}, v{ta}, {sr(S_WS)}, s40 offen sc1", f"{lb}:"])
    for var in VARS:
        hf, isv, ffn = var & 1, (var >> 1) & 1, var < 4
        nt = 2 - hf
        cnt = lambda S: len(dma(S, ffn))
        a(f"L_p1_{var}:")
        a(f"s_waitcnt vmcnt({cnt(1)})")
        a("s_barrier")
        stamp(a, 2)
        if var == 0:
            a([f"s_lshl_b32 s{T0}, s{sW}, 8", f"s_or_b32 s{T0}, s2, s{T0}", f"s_cmp_lg_u32 s{T0}, 32", "s_cbranch_scc1 L_noflag",
               "v_mov_b32 v2, 0", "v_mov_b32 v3, 1", "s_mov_b64 exec, 1",
               f"global_store_dword v2, v3, s[{pDBG}:{pDBG + 1}] offset:32 sc1", "s_mov_b64 exec, -1", "L_noflag:"])
        a(rd1(0, nt, ffn))
        if not ffn:
            a(rd1(1, nt, ffn))
        bgq = dma(2, ffn) + (cs_loads if ffn else [])
        if "a_l" in OPT and ffn:
            bgq = dma(2, ffn) + [[x.replace(f"s{T2} offen", "s62 offen") for x in g] for g in cs_loads]
        held = []
        sl7 = (7 % 3) * SL
        qrd = lambda h: [f"ds_read_b64_tr_b16 {vr(WF + 16 * h + 8 * q + 4 * t + 2 * t2, 2)}, v{WQ + t} offset:{sl7 + (2 * h + q) * 2048 + t2 * 512}"
                         for q in range(2) for t in range(nt) for t2 in range(2)]
        frd = lambda h: [f"ds_read_b64_tr_b16 {vr(WF + 16 * h + 8 * q + 4 * c + 2 * t2, 2)}, v{WC + c} offset:{sl7 + (2 * h + q) * 2048 + t2 * 512}"
                         for q in range(2) for c in range(2) for t2 in range(2)]
        CK = 5 if ffn else 6
        prep = [f"v_lshlrev_b32 v2, 16, v{STV}", f"v_rcp_f32 v{RS}, v2"]
        for t in range(nt):
            w = CSA + 4 * t
            prep += [f"v_add_f32 v{w}, v{w}, v{w + 1}", f"v_add_f32 v{w + 2}, v{w + 2}, v{w + 3}", f"v_add_f32 v{w + 3}, v{w}, v{w + 2}"] + split3(w, w + 3)
        for k in range(28 if ffn else 32):
            S, ks = k >> 2, k & 3
            F = fset(k, ffn)
            x = XF + 4 * k
            c0 = "0" if k == 0 else None
            big = [mfma(ACQ + 16 * t, x, F + 4 * t, c0) if isv else mfma(ACQ + 16 * t, F + 4 * t, x, c0) for t in range(nt)]
            if ffn:
                big += [mfma(ACF + 16 * c, F + 8 + 4 * c, x, c0) for c in range(2)]
            if not ffn and k % 2 == 0 and k < 30:
                held = big
                continue
            big, held = held + big, []
            val = []
            if ks == 3:
                n = cnt(S + 2) + ({0: 2}.get(S, 0) if ffn else 0)
                a(f"s_waitcnt vmcnt({n}) lgkmcnt(0)")
                if S == CK and not hf: a(cs_check(f"L_c1{var}", 0))
                if S < 7: a("s_barrier")
                if "p1b" in OPT: stamp(a, 4 + S)
                if ffn and S == 1:
                    big = cs_mm + big
                    bgq.append(cs_st)
                if ffn and S == 2 and not hf: bgq.append(cs_l2(f"L_l2{var}"))
                if ffn and S == 3 and not hf: bgq.append(cs_r2(f"L_r2{var}"))
                if S == 3 and not hf:
                    bgq.append([f"s_cmp_lg_u32 s{sW}, 0", f"s_cbranch_scc1 L_nofl{var}", "v_mov_b32 v2, 0",
                                f"global_load_dword v{POLL}, v2, s[{pDBG}:{pDBG + 1}] offset:32 sc1", f"L_nofl{var}:"])
                if S == CK - 1 and not hf:
                    bgq.append(flag_check(f"L_fc{var}") + (sig_one(f"L_sc{var}", [f"s_add_u32 s{T0}, s{sCF}, {C_CS}"]) if ffn else []) +
                               cs_issue(f"L_i1{var}", 0))
                if S == 5:
                    ad = [f"v_and_b32 v{VXS}, 31, v0", f"v_lshlrev_b32 v{VXS}, 2, v{VXS}", "v_lshrrev_b32 v3, 5, v0",
                          f"v_lshl_add_u32 v{VW0}, v3, 10, v{VXS}", f"s_lshl_b32 s{T2}, s{sT}, 7", f"s_add_u32 s{T2}, s{T2}, {WS_ST}"]
                    for t in range(nt):
                        ad += [f"s_add_u32 s{T3}, s{sG}, {2 * t}", f"s_lshr_b32 s{40 + t}, s{T3}, 2", f"s_lshl_b32 s{40 + t}, s{40 + t}, 11",
                               f"s_and_b32 s{T3}, s{T3}, 2", f"s_lshl_b32 s{T3}, s{T3}, 6", f"s_add_u32 s{40 + t}, s{40 + t}, s{T3}",
                               f"s_add_u32 s{40 + t}, s{40 + t}, {WS_CQ}"]
                    bgq.append(ad)
                if S == CK:
                    ld = [f"buffer_load_dword v{STV}, v{VXS}, {sr(S_WS)}, s{T2} offen sc1"]
                    for t in range(nt):
                        ld += [f"buffer_load_dword v{CSA + 4 * t + i}, v{VW0}, {sr(S_WS)}, s{40 + t} offen offset:{256 * i} sc1" for i in range(4)]
                    if isv:
                        ld += [f"s_lshl_b32 s{T3}, s{sW}, 8", f"s_add_u32 m0, s{T3}, {SCR}", f"s_add_u32 s{T2}, s{T2}, {WS_RS - WS_ST}",
                               f"buffer_load_dword v{VXS}, {sr(S_WS)}, s{T2} offen sc1 lds"]
                    bgq += [ld[:5], ld[5:]]
                if S == 6 and ffn:
                    if not hf: bgq.append(poll_issue(f"L_i2{var}", CS_MASK))
                    val = prep
                if S < 7: bgq += dma(S + 3, ffn)
                if S == 5 and isv:
                    bgq.append([f"s_lshl_b32 s{T3}, s{sW}, 8", f"s_add_u32 s{T3}, s{T3}, {SCR}",
                                "v_lshrrev_b32 v3, 5, v0", "v_lshlrev_b32 v18, 4, v3", f"v_add_u32 v18, s{T3}, v18",
                                "v_bfe_u32 v23, v0, 4, 1", "v_lshlrev_b32 v23, 16, v23", "v_lshl_add_u32 v23, v3, 8, v23",
                                "v_and_b32 v3, 15, v0", "v_lshl_add_u32 v23, v3, 4, v23"])
            elif k == 30:
                a("s_waitcnt vmcnt(0) lgkmcnt(0)")
                val = prep
            else:
                a("s_waitcnt lgkmcnt(0)")
            if k == 31:
                break
            if ffn and k in csv: val = csv[k]
            if "a_m" in OPT and k == 7: val = []
            if "a_s" in OPT and k in (4, 5, 6): val = []
            left = 4 if ks == 3 else 3 - ks
            if "front" in OPT and ffn and S * 4 + 3 != 27: left = {3: 3, 0: 2}.get(ks, 1)
            if k == 27: left = 3
            if not ffn: left = 2 if (ks == 3 and S < 6) else 1
            take = -(-len(bgq) // left)
            extra, bgq = bgq[:take], bgq[take:]
            if ffn:
                nxt = rd1(k + 1, nt, ffn) if k < 27 else \
                    [f"ds_read_b128 {vr(XF + 4 * (28 + j), 4)}, v{XA + j} offset:{sl7}" for j in range(4)] + qrd(0)
            else:
                nxt = [] if k == 30 else rd1(k + 1, nt, ffn) + rd1(k + 2, nt, ffn)
            body = spread(big, nxt, val + [[]] * len(extra) + extra)
            a(body)
        pre = [f"v_and_b32 v{XOP}, v{MASK}, v{STV}", f"v_mov_b32 v{XOP + 3}, 0", f"v_mov_b32 v{XOP + 1}, v{XOP}", f"v_mov_b32 v{XOP + 2}, v{XOP}"]
        corr = [mfma(ACQ + 16 * t, XOP, CSA + 4 * t) if isv else mfma(ACQ + 16 * t, CSA + 4 * t, XOP) for t in range(nt)]
        post = [f"s_lshl_b32 s{T4}, s{sG}, 16", f"s_lshl_b32 s{T2}, s{sT}, 10", f"s_add_u32 s{T4}, s{T4}, s{T2}"]

        def stores(t):
            o = ACQ + 16 * t
            if isv:
                return [[f"buffer_store_dwordx4 {vr(o, 4)}, v23, {sr(S_WS)}, s{T4} offen sc1"],
                        [f"buffer_store_dwordx4 {vr(o + 4, 4)}, v23, {sr(S_WS)}, s{T4} offen offset:512 sc1", f"s_add_u32 s{T4}, s{T4}, 0x20000"]]
            return [[f"buffer_store_dwordx4 {vr(o, 4)}, v{L16}, {sr(S_WS)}, s{T4} offen sc1", f"s_add_u32 s{T4}, s{T4}, 0x10000"],
                    [f"buffer_store_dwordx4 {vr(o + 4, 4)}, v{L16}, {sr(S_WS)}, s{T4} offen sc1", f"s_add_u32 s{T4}, s{T4}, 0x10000"]]
        if not ffn:
            assert not bgq
            stamp(a, 3)
            a(big[:1] + pre + ["s_nop 1"] + big[1:nt] + corr + post + ["s_nop 7"])
            for t in range(nt):
                ac = ACQ + 16 * t
                a(f"s_cmp_lt_u32 s{sG}, {32 - 2 * t}")
                a(f"s_cselect_b32 s{T0}, {hx(f2u(QSCALE))}, 1.0")
                a(f"v_mul_f32 v2, s{T0}, v{RS}")
                a(f"v_mul_f32 v3, s{T0}, v{RS}")
                for i in range(8):
                    a(f"v_pk_mul_f32 {vr(ac + 2 * i, 2)}, {vr(ac + 2 * i, 2)}, v[2:3]")
                for i in range(8):
                    a(f"v_cvt_pk_bf16_f32 v{ac + i}, v{ac + 2 * i}, v{ac + 2 * i + 1}")
                a(stores(t))
            stamp(a, 4)
            a("s_branch L_side")
            continue
        qm = lambda h: [mfma(ACQ + 16 * t, XF + 4 * (28 + 2 * h + q), WF + 16 * h + 8 * q + 4 * t) if isv else
                        mfma(ACQ + 16 * t, WF + 16 * h + 8 * q + 4 * t, XF + 4 * (28 + 2 * h + q)) for q in range(2) for t in range(nt)]
        fm = lambda h: [mfma(ACF + 16 * c, WF + 16 * h + 8 * q + 4 * c, XF + 4 * (28 + 2 * h + q)) for q in range(2) for c in range(2)]
        half = -(-len(bgq) // 2)
        a("s_waitcnt lgkmcnt(0)")
        a(spread(qm(0), qrd(1), pre + bgq[:half]))
        a("s_waitcnt lgkmcnt(0)")
        rsv = lambda g: [f"ds_read_b128 {vr(CSA + 4 * j, 4)}, v18 offset:{(2 * g + j) * 32}" for j in range(2)]
        a(corr + (rsv(0) if isv else []))
        a(spread(qm(1), frd(0), [f"v_subrev_u32 v{WQ + c}, {CR - BR}, v{WC + c}" for c in range(2)] + bgq[half:]))
        adr = [["v_bfe_u32 v2, v0, 4, 1", "v_mul_u32_u24 v2, 28672, v2", "v_lshrrev_b32 v3, 5, v0",
                "v_lshl_add_u32 v2, v3, 9, v2", "v_and_b32 v3, 15, v0", f"v_lshl_add_u32 v{VXS}, v3, 2, v2",
                f"s_lshl_b32 s{sVAR}, s{sCF}, 11", f"s_add_u32 s{sVAR}, s{sVAR}, {WS_CS + 128 * hf}"] + post]
        if isv:
            e1, e2 = [], []
            for t in range(nt):
                ac = ACQ + 16 * t
                e1 += [f"v_mul_f32 v{ac + i}, v{ac + i}, v{CSA + i}" for i in range(8)]
                e2 += [f"v_mul_f32 v{ac + 8 + i}, v{ac + 8 + i}, v{CSA + i}" for i in range(8)]
                e2 += [f"v_cvt_pk_bf16_f32 v{ac + i}, v{ac + 2 * i}, v{ac + 2 * i + 1}" for i in range(4, 8)] + (stores(t) if "sp2" in OPT else [])
            e1 += rsv(1)
            for t in range(nt):
                ac = ACQ + 16 * t
                e1 += [f"v_cvt_pk_bf16_f32 v{ac + i}, v{ac + 2 * i}, v{ac + 2 * i + 1}" for i in range(4)]
        else:
            e = []
            for t in range(nt):
                ac = ACQ + 16 * t
                e += [[f"s_cmp_lt_u32 s{sG}, {32 - 2 * t}", f"s_cselect_b32 s{T0}, {hx(f2u(QSCALE))}, 1.0", f"v_mul_f32 v2, s{T0}, v{RS}"]]
                e += [f"v_mul_f32 v{ac + i}, v{ac + i}, v2" for i in range(16)]
                e += [f"v_cvt_pk_bf16_f32 v{ac + i}, v{ac + 2 * i}, v{ac + 2 * i + 1}" for i in range(8)] + (stores(t) if "sp2" in OPT else [])
            e1, e2 = e[:len(e) * 5 // 8], e[len(e) * 5 // 8:]
        a("s_waitcnt lgkmcnt(0)")
        u3 = spread(fm(0), frd(1), adr + e1)
        a(u3)
        a(f"s_waitcnt vmcnt({4 + nvm(u3)}) lgkmcnt(0)")
        if not hf: a(poll_check(f"L_c2{var}", 16))
        a("s_barrier")
        stamp(a, 3)
        c0l = [[f"buffer_load_dword v{r_}, v{VXS}, {sr(S_WS)}, s{sVAR} offen offset:{(i >> 1) * 64 + (i & 1) * 256} sc1"
                for i, r_ in enumerate(C0R)]]
        mix, vm = [], c0l + dma(10)
        for j in range(len(vm)):
            mix += e2[j * len(e2) // len(vm):(j + 1) * len(e2) // len(vm)] + [vm[j]]
        if "sp1" in OPT or "sp2" in OPT:
            mix = c0l + e2
        a(spread(fm(1), rd2(0), mix))
        if "sp2" in OPT:
            assert nvm(flat(e2)) >= 2
        else:
            for t in range(nt):
                a(stores(t))
        if var != 3:
            a("s_branch L_pass2")
    a("L_pass2:")
    if "p1b" in OPT: NOSTAMP = True
    stamp(a, 4)
    sH = sG
    a(f"s_mul_i32 s{sH}, s{sT}, 112")
    a(f"s_lshl2_add_u32 s{T0}, s{sCF}, s{sHF}")
    a(f"s_lshl1_add_u32 s{sH}, s{T0}, s{sH}")
    a(f"s_lshl_b32 s{sH}, s{sH}, 10")
    a(f"s_add_u32 s{sH}, s{sH}, {WS_H}")
    cRS, cSD, cC2, CO, QP = 128, 129, 130, 132, 140
    q = CSA

    def gelu_plain(g, off):
        u = g + 8
        R = range(8)
        return ([f"v_mul_f32 v{g + i}, v{g + i}, v{cRS}" for i in R] + [f"v_mul_f32 v{q + i}, v{g + i}, v{g + i}" for i in R] +
                [f"v_fmaak_f32 v{q + i}, v{q + i}, v{cC2}, {hx(f2u(GC1))}" for i in R] + [f"v_mul_f32 v{q + i}, v{q + i}, v{g + i}" for i in R] +
                [f"v_exp_f32 v{q + i}, v{q + i}" for i in R] + [f"v_mul_f32 v{g + i}, v{g + i}, v{u + i}" for i in R] +
                [f"v_fma_f32 v{q + i}, v{q + i}, v{cSD}, v{cSD}" for i in R] + [f"v_rcp_f32 v{q + i}, v{q + i}" for i in R] +
                [f"v_mul_f32 v{g + i}, v{g + i}, v{q + i}" for i in R] +
                [f"v_cvt_pk_bf16_f32 v{g + i}, v{g + 2 * i}, v{g + 2 * i + 1}" for i in range(4)] +
                [f"buffer_store_dwordx4 {vr(g, 4)}, v{L16}, {sr(S_WS)}, s{sH} offen offset:{off} sc1"])
    vq = []
    wt = lambda at: sum(2 if (x.startswith("v_exp") or x.startswith("v_rcp")) else 1 for x in ([at] if isinstance(at, str) else at))
    cs_ld = lambda dst, pr: [[f"buffer_load_dword v{dst + 4 * c + i}, v{VXS}, {sr(S_WS)}, s{sVAR} offen offset:{1024 * pr + c * 64 + i * 256} sc1"
                              for c in range(2) for i in range(2)]]
    ta = tr_addr(TRA, 2, 3)
    bgq, hist = tr_setup() + [ta + [f"s_lshl_b32 s{T2}, s{sLW}, 1", f"v_add_u32 v{TRA}, s{T2}, v{TRA}", f"v_xor_b32 v{TRA + 1}, 32, v{TRA}"]], []
    if "sp1" in OPT or "sp2" in OPT:
        d = dma(10)
        bgq = [bgq[0], d[0], bgq[1], d[1], d[2], d[3] + bgq[2]]
    after = lambda key: nvm([l for l in hist[len(hist) - hist[::-1].index(key):] if "s62" not in l])
    for u in range(16):
        S, us = 8 + (u >> 2), u & 3
        F = WF + 16 * (u & 1)
        big = [mfma(ACQ + 16 * c, F + 8 * qq + 4 * c, XF + 4 * (2 * u + qq), "0" if (u == 0 and qq == 0) else None)
               for qq in range(2) for c in range(2)]
        allv = nvm([l for l in hist if "s62" not in l])
        if us == 3 or u == SIGU:
            if u == 3 and "sp2" in OPT:
                a("s_waitcnt vmcnt(6) lgkmcnt(0)")
            elif u == 7 and ("sp1" in OPT or "sp2" in OPT):
                a(f"s_waitcnt vmcnt({allv - 4}) lgkmcnt(0)")
            elif u == 3:
                a([f"s_cmp_eq_u32 s{sHF}, 0", "s_cbranch_scc1 L_w8", "s_waitcnt vmcnt(6)", "L_w8:", "s_waitcnt vmcnt(8) lgkmcnt(0)"])
            elif u <= 7:
                a(f"s_waitcnt vmcnt({allv}) lgkmcnt(0)")
            elif S == 10:
                a(f"s_waitcnt vmcnt({after(dma(11)[-1][0]) - 1}) lgkmcnt(0)")
            elif CHK == 10:
                a(f"s_waitcnt vmcnt({after(kv(0)[1][1]) - 1}) lgkmcnt(0)")
            else:
                a("s_waitcnt lgkmcnt(0)")
            if us == 3 and S == CHK:
                a([f"s_cmp_lg_u32 s{sW}, 0", "s_cbranch_scc1 L_w10", f"s_waitcnt vmcnt({after('L_pq:')})", "L_w10:"])
                a(poll_check("L_cq", 32, QP, 4))
            a("s_barrier")
            if "p2b" in OPT and us == 3: stamp(a, S - 2)
            if u == SIGU:
                bgq = [sig_qkv("L_sq")] + bgq
            if u == 3:
                bgq += cs_ld(CO, 1) + tr_dma() + dma(11)
                vq += [f"v_lshlrev_b32 v{cSD}, 16, v{STV}", f"v_mov_b32 v{cC2}, {hx(f2u(GC2))}", f"v_rcp_f32 v{cRS}, v{cSD}"]
                for c in range(2):
                    w = CSA + 4 * c
                    vq += [f"v_add_f32 v{w + 3}, v{C0R[2 * c]}, v{C0R[2 * c + 1]}"] + split3(w, w + 3)
                vq += ["UNIT", mfma(ACF, CSA, XOP), mfma(ACF + 16, CSA + 4, XOP), "UNIT"]
                vq += gelu_plain(ACF, 0) + ([] if "g1" in OPT else gelu_plain(ACF + 16, 1024))
            if us == 3 and S == 10:
                bgq += [tr_rd()]
            if us == 3 and S == CHK - 1:
                bgq += [[]] * (2 - len(bgq)) + [poll_issue("L_pq", QKV_MASK, QP)]
            if us == 3 and S == 10 and CHK == 10:
                bgq += kv(0) + kv(1) + [q_load()] + kv(2)
            if S == 11:
                bgq += kv(3) if CHK == 10 else kv(0) + [q_load()] + kv(1)
                if "prio" in OPT:
                    a("s_setprio 1")
                    a(lead(2))
        else:
            a("s_waitcnt lgkmcnt(0)")
        if u == 12:
            for c in range(2):
                w = CO + 4 * c
                vq += [f"v_add_f32 v{w + 3}, v{w}, v{w + 1}"] + split3(w, w + 3) + [["s_nop 1", mfma(ACQ + 16 * c, w, XOP)]]
            vq += p2_init_v()
        left = 1 if u == 15 else (4 if us == 3 else 3 - us)
        take = -(-len(bgq) // left)
        extra, bgq = bgq[:take], bgq[take:]
        val, budget = [], (1000 if u == 15 else VBUD)
        while vq and vq[0] != "UNIT" and budget > 0:
            budget -= wt(vq[0])
            val.append(vq.pop(0))
        if vq and vq[0] == "UNIT":
            vq.pop(0)
        body = spread(big, rd2(u + 1) if u < 15 else [], val[:len(val) // 2] + extra + val[len(val) // 2:])
        hist += body
        a(body)
    assert not bgq and not vq
    if "p2b" in OPT: NOSTAMP = True
    stamp(a, 5)
    RS2, SD2 = 240, 242
    a(f"v_mov_b32 v{RS2}, v{cRS}")
    a(f"v_mov_b32 v{RS2 + 1}, v{cRS}")
    a(f"v_mov_b32 v{SD2}, v{cSD}")
    a(f"v_mov_b32 v{SD2 + 1}, v{cSD}")
    a(f"v_mov_b32 v248, v{cC2}")
    a(f"v_mov_b32 v249, v{cC2}")
    a(f"v_mov_b32 v250, {hx(f2u(GC1))}")
    a("v_mov_b32 v251, v250")
    if "g1" not in OPT:
        a(f"s_add_u32 s{sH}, s{sH}, 4096")
    a("s_nop 4")
    for c in ((-1, 0, 1) if "g1" in OPT else (0, 1)):
        g = ACQ + 16 * c
        u = g + 8
        q = 32 + (c & 1) * 8
        o = 52 + c * 4
        for i in range(4):
            a(f"v_pk_mul_f32 {vr(g + 2 * i, 2)}, {vr(g + 2 * i, 2)}, {vr(RS2, 2)}")
        for i in range(4):
            a(f"v_pk_mul_f32 {vr(q + 2 * i, 2)}, {vr(g + 2 * i, 2)}, {vr(g + 2 * i, 2)}")
        for i in range(4):
            a(f"v_pk_fma_f32 {vr(q + 2 * i, 2)}, {vr(q + 2 * i, 2)}, v[248:249], v[250:251]")
        for i in range(4):
            a(f"v_pk_mul_f32 {vr(q + 2 * i, 2)}, {vr(q + 2 * i, 2)}, {vr(g + 2 * i, 2)}")
        for i in range(8):
            a(f"v_exp_f32 v{q + i}, v{q + i}")
        for i in range(4):
            a(f"v_pk_mul_f32 {vr(g + 2 * i, 2)}, {vr(g + 2 * i, 2)}, {vr(u + 2 * i, 2)}")
        for i in range(4):
            a(f"v_pk_fma_f32 {vr(q + 2 * i, 2)}, {vr(q + 2 * i, 2)}, {vr(SD2, 2)}, {vr(SD2, 2)}")
        for i in range(8):
            a(f"v_rcp_f32 v{q + i}, v{q + i}")
        a("s_nop 0")
        for i in range(4):
            a(f"v_pk_mul_f32 {vr(g + 2 * i, 2)}, {vr(g + 2 * i, 2)}, {vr(q + 2 * i, 2)}")
        for i in range(4):
            a(f"v_cvt_pk_bf16_f32 v{o + i}, v{g + 2 * i}, v{g + 2 * i + 1}")
        a(f"buffer_store_dwordx4 {vr(o, 4)}, v{L16}, {sr(S_WS)}, s{sH} offen offset:{(c & 1) * 1024} sc1")
        if c < 0:
            a(f"s_add_u32 s{sH}, s{sH}, 4096")
            continue
        if CHK == 11:
            a(kv(2 + c))
        if c == 0:
            a(lead(0))
    a(tr_st())
    a(f"s_waitcnt vmcnt({after(q_load()[-1]) + (4 if CHK == 10 else 8) + (1 if 'g1' in OPT else 0)})")
    if CHK == 11:
        a("s_barrier")


VARS = (0, 4, 5, 1, 2, 3)
VBUD = 20
WK = 8
C0R = (9, 19, 21, 1)
SIGU, CHK = 7, 11


def gen_side(a):
    a("L_side:")
    global NOSTAMP
    NOSTAMP = "side" not in OPT
    a(p2_init_v())
    a("s_waitcnt vmcnt(0)")
    a("s_barrier")
    a(sig_qkv("L_sq2"))
    stamp(a, 10)
    a(sig_one("L_h_ns2", [f"s_add_u32 s{T0}, s{sRB}, {C_H}"]))
    a(poll_issue("L_pq2", QKV_MASK))
    a("s_waitcnt vmcnt(0)")
    a(poll_check("L_cq2", 32, POLL, 6))
    a("s_barrier")
    a(kv(0))
    a(q_load())
    a(kv(1))
    a("s_waitcnt vmcnt(2)")
    a("s_barrier")
    a(kv(2))
    a(kv(3))
    if "prio" in OPT:
        a("s_setprio 1")
        a(lead(2))
    a("s_branch L_p2")
    a("L_side1:")
    XW, QW, CW = 32, 64, 128
    LO, HI, ON = 18, 19, 22
    a("v_lshrrev_b32 v1, 3, v0")
    a("v_and_b32 v2, 7, v0")
    a("v_lshlrev_b32 v2, 4, v2")
    a("v_lshl_add_u32 v3, v1, 10, v2")
    a(f"s_lshl3_add_u32 s{tVM + 1}, s2, s{sW}")
    a(f"s_lshl_b32 s{T0}, s{tVM + 1}, 13")
    for q in range(8):
        a(f"buffer_load_dwordx4 {vr(XW + 4 * q, 4)}, v3, {sr(S_X)}, s{T0} offen offset:{128 * q}")
    sU = sVAR
    a(f"s_and_b32 s{sU}, s{sRB}, 3")
    a(f"s_lshl3_add_u32 s{sU}, s{sU}, s{sW}")
    a(f"s_sub_u32 s{T1}, 31, s{sU}")
    a(f"s_lshl3_add_u32 s41, s{T1}, s{sXCD}")
    a("s_lshl_b32 s41, s41, 8")
    a(f"s_add_u32 s41, s41, {WS_CQ}")
    a(f"s_lshl_b32 s{T0}, s{T1}, 7")
    a(f"s_mul_i32 s{T2}, s{sXCD}, {64 * 3072}")
    a(f"s_add_u32 s{T0}, s{T0}, s{T2}")
    a(f"s_cmp_lt_u32 s{T1}, 24")
    a(f"s_cselect_b32 s{T0}, s{T0}, {OOB}")
    a(f"s_cselect_b32 s41, s41, {OOB}")
    a("v_mul_u32_u24 v3, 3072, v1")
    a("v_add_u32 v3, v3, v2")
    for q in range(8):
        a(f"buffer_load_dwordx4 {vr(QW + 4 * q, 4)}, v3, {sr(S_W0)}, s{T0} offen")
        if q != 7:
            a(f"s_add_u32 s{T0}, s{T0}, {8 * 3072}")
    a(f"v_mov_b32 v{LO}, 0x00003f80")
    a(f"v_mov_b32 v{HI}, 0x3f800000")
    a(f"v_mov_b32 v{ON}, 0x3f803f80")
    RU = 96
    for i in range(0, 28, 2):
        a(f"v_mov_b64 v[{RU + i}:{RU + i + 1}], 0")
    a(["v_and_b32 v2, 8, v0", "v_cmp_eq_u32 vcc, 0, v2", f"v_and_b32 v{POLL}, 7, v0", f"v_lshlrev_b32 v{POLL}, 3, v{POLL}",
       "v_lshrrev_b32 v3, 4, v0", f"v_add_u32 v{POLL}, v{POLL}, v3", "v_lshrrev_b32 v2, 1, v2", f"v_add_u32 v{POLL}, v{POLL}, v2",
       f"v_lshlrev_b32 v{POLL}, 2, v{POLL}"])
    stamp(a, 8)
    m, v_ = RU + 24, RU + 25
    for q in range(8):
        a(f"s_waitcnt vmcnt({15 - q})")
        for i in range(4):
            a(f"v_dot2c_f32_bf16 v{m + 2 * (i & 1)}, v{XW + 4 * q + i}, v{ON}")
            a(f"v_dot2c_f32_bf16 v{v_ + 2 * (i & 1)}, v{XW + 4 * q + i}, v{XW + 4 * q + i}")
    a("s_nop 2")
    a(f"v_add_f32 v{m}, v{m}, v{m + 2}")
    a(f"v_add_f32 v{v_}, v{v_}, v{v_ + 2}")
    for md in ("quad_perm:[1,0,3,2]", "quad_perm:[2,3,0,1]", "row_half_mirror"):
        a("s_nop 0")
        a(f"v_add_f32_dpp v{m}, v{m}, v{m} {md} row_mask:0xf bank_mask:0xf")
        a(f"v_add_f32_dpp v{v_}, v{v_}, v{v_} {md} row_mask:0xf bank_mask:0xf")
    a([f"v_mul_f32 v{m}, {hx(f2u(-1.0 / 512))}, v{m}", f"v_mul_f32 v{v_}, {hx(f2u(1.0 / 512))}, v{v_}",
       f"v_fma_f32 v{v_}, -v{m}, v{m}, v{v_}", f"v_max_f32 v{v_}, 0, v{v_}",
       f"v_cvt_pk_bf16_f32 v{v_}, v{v_}, v{v_}", f"v_and_b32 v{v_}, v{MASK}, v{v_}",
       f"v_add_f32 v{v_}, {hx(f2u(1e-5))}, v{v_}",
       f"v_cvt_pk_bf16_f32 v{v_}, v{v_}, v{v_}", f"v_and_b32 v{v_}, v{MASK}, v{v_}",
       f"v_sqrt_f32 v{v_}, v{v_}", "v_lshlrev_b32 v1, 2, v1",
       f"v_cvt_pk_bf16_f32 v{m}, v{v_}, v{m}",
       f"v_lshlrev_b32 v{v_}, 16, v{m}", f"v_rcp_f32 v{v_}, v{v_}",
       f"s_lshl_b32 s{T0}, s{tVM + 1}, 5", f"s_add_u32 s{T0}, s{T0}, {WS_ST}", f"s_add_u32 s{T1}, s{T0}, {WS_RS - WS_ST}",
       f"s_mov_b32 exec_lo, 0x01010101", "s_mov_b32 exec_hi, 0x01010101",
       f"buffer_store_dword v{m}, v1, {sr(S_WS)}, s{T0} offen sc1",
       f"buffer_store_dword v{v_}, v1, {sr(S_WS)}, s{T1} offen sc1", "s_mov_b64 exec, -1"])

    def colsum(src, n, acc, behind):
        for q in range(n):
            a(f"s_waitcnt vmcnt({n - 1 - q + behind})")
            for i in range(4):
                a(f"v_dot2c_f32_bf16 v{acc + 2 * i}, v{src + 4 * q + i}, v{LO}")
                a(f"v_dot2c_f32_bf16 v{acc + 2 * i + 1}, v{src + 4 * q + i}, v{HI}")
        a("s_nop 2")
        for i in range(4):
            a(f"v_permlane16_swap_b32 v{acc + 2 * i}, v{acc + 2 * i + 1}")
        for i in range(4):
            a(f"v_add_f32 v{acc + 2 * i}, v{acc + 2 * i}, v{acc + 2 * i + 1}")
        a(["s_nop 1", f"v_permlane32_swap_b32 v{acc}, v{acc + 2}", f"v_permlane32_swap_b32 v{acc + 4}, v{acc + 6}",
           f"v_add_f32 v{acc}, v{acc}, v{acc + 2}", f"v_add_f32 v{acc + 4}, v{acc + 4}, v{acc + 6}", "s_nop 1",
           f"v_add_f32_dpp v{acc}, v{acc}, v{acc} row_ror:8 row_mask:0xf bank_mask:0xf",
           f"v_add_f32_dpp v{acc + 4}, v{acc + 4}, v{acc + 4} row_ror:8 row_mask:0xf bank_mask:0xf",
           f"v_cndmask_b32 v{acc + 1}, v{acc + 4}, v{acc}, vcc"])
    colsum(QW, 8, RU, 2)
    a(f"buffer_store_dword v{RU + 1}, v{POLL}, {sr(S_WS)}, s41 offen sc1")
    a(dma(0, False))
    a("s_waitcnt vmcnt(4)")
    a("s_barrier")
    a(cs_signal("L_scs0", 0))
    stamp(a, 12)
    a(dma(1, False))
    stamp(a, 9)
    a(f"s_cmp_eq_u32 s{sHF}, 0")
    a("s_cbranch_scc1 L_p1_4")
    a("s_branch L_p1_5")


def att_step(i, ex=None, first=False):
    ex = ex or {}
    Sc, Sn = (S0, S1) if i % 2 == 0 else (S1, S0)
    Kn = K_ + 4 * ((i + 1) % 2)
    Vc = V_ + 8 * (i % 4)
    Vp = V_ + 8 * ((i - 1) % 4)
    e = lambda k: f"v_exp_f32 v{Sc + k}, v{Sc + k}"
    c = lambda k: f"v_cvt_pk_bf16_f32 v{P_ + k}, v{Sc + 2 * k}, v{Sc + 2 * k + 1}"
    r = [mfma(Sn, Kn, Q_, NM),
         f"ds_read_b128 {vr(Kn, 4)}, v{AK} offset:{(i + 3) * 2048}"]
    r += ex.get("qk", [])
    r += [e(0), e(1), e(2), e(3)]
    if not first:
        r.append(mfma(O_, Vp + 4, P_ + 4))
    if i % 2 == 0:
        r.append(f"s_mov_b64 exec, s[{tVM}:{tVM + 1}]")
        for d in (2, 3):
            vb = V_ + 8 * ((i + d) % 4)
            r.append(f"ds_read_b128 {vr(vb, 4)}, v{AV} offset:{(i + d) * 2048}")
            r.append(f"ds_read_b128 {vr(vb + 4, 4)}, v{AV} offset:{(i + d) * 2048 + 512}")
        r.append("s_mov_b64 exec, -1")
    r += ex.get("pv1", [])
    if "G2" in ex:
        r += [c(0), e(4), e(5), c(1)]
        r += [ex["G1"]] + ex.get("g1", [])
        r += [e(6), e(7), e(8), c(2), c(3), e(9)]
        r += ["s_nop 0", mfma(O_, Vc, P_)]
        if i % 2 == 1: r.append("s_waitcnt lgkmcnt(0)")
        r += ex.get("pv0", [])
        r += [e(10), e(11), c(4), e(12), c(5)]
        r += [ex["G2"]] + ex.get("g2", [])
        r += [e(13), e(14), e(15), c(6), c(7)]
    else:
        r += [c(0), e(4), e(5), c(1), e(6), e(7)]
        if "G1" in ex:
            r += [ex["G1"]]
        r += ex.get("g1", [])
        r += [e(8), c(2), c(3), e(9), e(10), e(11)]
        r.append(mfma(O_, Vc, P_, "0" if first else None))
        if i % 2 == 1: r.append("s_waitcnt lgkmcnt(0)")
        r += ex.get("pv0", [])
        r += [c(4), e(12), e(13), c(5), e(14), e(15), c(6), c(7)]
    r += ex.get("end", [])
    return r


def ring_loads(r):
    b = RING + 16 * r
    return [f"buffer_load_dwordx4 {vr(b, 4)}, v{A16}, {sr(R_H0)}, s{tFH} offen sc1",
            f"buffer_load_dwordx4 {vr(b + 4, 4)}, v{A16}, {sr(R_H1)}, s{tFH} offen sc1",
            f"buffer_load_dwordx4 {vr(b + 8, 4)}, v{A16}, {sr(R_WT)}, s{tFW} offen sc1",
            f"buffer_load_dwordx4 {vr(b + 12, 4)}, v{A16}, {sr(R_WT)}, s{tFW} offen offset:1024 sc1",
            f"s_add_u32 s{tFH}, s{tFH}, 1024",
            f"s_add_u32 s{tFW}, s{tFW}, 2048"]


def gm(r, n):
    b = RING + 16 * r
    return mfma(G_ + 16 * n, b + 8 + 4 * (n & 1), b + 4 * (n >> 1))


_pl = [0]
PC = (2, 6)
PD = 7
PG = 2


def lead(p, cond=None):
    if "prio" not in OPT:
        return []
    _pl[0] += 1
    lb = f"L_pr{_pl[0]}"
    c = [f"s_cmp_lt_u32 s{sW}, 4"] if cond is None else cond
    return c + [f"s_cbranch_scc0 {lb}", f"s_setprio {p}", f"{lb}:"]


def adv(a):
    a(f"v_add_u32 v{AK}, 0x4000, v{AK}")
    a(f"v_add_u32 v{AV}, 0x4000, v{AV}")


def gen_p2(a):
    a("L_p2:")
    if ENC == 99:
        a(["s_not_b32 s76, s80", "v_mov_b32 v1, 0", "v_mov_b32 v2, s76", "s_mov_b64 exec, 1",
           f"global_atomic_umax v1, v2, s[{pDBG}:{pDBG + 1}] offset:240 sc1", "s_mov_b64 exec, -1"])
    stamp(a, 6)
    a(f"v_mov_b32 v{A16}, v{L16}")
    a(f"v_mov_b32 v{AK}, v{L16}")
    a("v_lshrrev_b32 v2, 5, v0")
    a("v_and_b32 v3, 15, v0")
    a("v_lshlrev_b32 v3, 4, v3")
    a("v_lshl_add_u32 v3, v2, 8, v3")
    a(f"v_add_u32 v{AV}, 1024, v3")
    a(f"s_mov_b32 s{tVM}, 0x0000ffff")
    a(f"s_mov_b32 s{tVM + 1}, 0x0000ffff")
    a(f"ds_read_b128 {vr(K_, 4)}, v{AK}")
    a(f"ds_read_b128 {vr(K_ + 4, 4)}, v{AK} offset:2048")
    a(f"s_mov_b64 exec, s[{tVM}:{tVM + 1}]")
    for d in range(2):
        a(f"ds_read_b128 {vr(V_ + 8 * d, 4)}, v{AV} offset:{d * 2048}")
        a(f"ds_read_b128 {vr(V_ + 8 * d + 4, 4)}, v{AV} offset:{d * 2048 + 512}")
    a("s_mov_b64 exec, -1")
    a(f"s_lshr_b32 s{T0}, s{sW}, 2")
    a(f"s_lshl1_add_u32 s{tTT}, s{tHEAD}, s{T0}")
    a(f"s_lshl_b32 s{T0}, s{tTT}, 15")
    a(f"s_lshl_b32 s{T1}, s{tQB}, 7")
    a(f"s_add_u32 s{T0}, s{T0}, s{T1}")
    a(f"s_and_b32 s{T1}, s{sW}, 3")
    a(f"s_lshl4_add_u32 s{T0}, s{T1}, s{T0}")
    a("v_and_b32 v1, 31, v0")
    a("v_lshlrev_b32 v1, 10, v1")
    a("v_lshl_add_u32 v1, v2, 6, v1")
    a(f"v_add_u32 v{AOUT}, s{T0}, v1")
    a("s_waitcnt lgkmcnt(4)")
    a(mfma(S0, K_, Q_, "0"))
    a(mfma(S1, K_ + 4, Q_, "0"))
    a(f"s_mul_i32 s{T0}, s{tHEAD}, {224 * 1024}")
    a(f"s_add_u32 s{T0}, s{T0}, {WS_H}")
    a(f"s_add_u32 s{R_H0}, s{pWS}, s{T0}")
    a(f"s_addc_u32 s{R_H0 + 1}, s{pWS + 1}, 0")
    a(f"s_add_u32 s{R_H1}, s{R_H0}, {112 * 1024}")
    a(f"s_addc_u32 s{R_H1 + 1}, s{R_H0 + 1}, 0")
    a(f"s_mul_i32 s{tFH}, s{sW}, {14 * 1024}")
    a(f"s_add_u32 s{R_H0 + 2}, s{tFH}, {14 * 1024}")
    a(f"s_mov_b32 s{R_H1 + 2}, s{R_H0 + 2}")
    a(f"s_mul_i32 s{T0}, s{tQB}, {144 * 2048}")
    a(f"s_add_u32 s{T0}, s{T0}, {WS_WT}")
    a(f"s_add_u32 s{R_WT}, s{pWS}, s{T0}")
    a(f"s_addc_u32 s{R_WT + 1}, s{pWS + 1}, 0")
    a(f"s_lshl_b32 s{tFW}, s{tFH}, 1")
    a(f"s_lshl_b32 s{R_WT + 2}, s{R_H0 + 2}, 1")
    a(f"v_max3_f32 v1, v{S0}, v{S0 + 1}, v{S0 + 2}")
    for i in range(3, 31, 2):
        a(f"v_max3_f32 v1, v1, v{S0 + i}, v{S0 + i + 1}")
    a(f"v_max_f32 v1, v1, v{S0 + 31}")
    a("v_mov_b32 v2, v1")
    a("s_nop 1")
    a("v_permlane32_swap_b32 v1, v2")
    a("v_max_f32 v1, v1, v2")
    a(f"v_sub_f32 v2, {hx(f2u(-MAXOFF))}, v1")
    a("v_mov_b32 v3, v2")
    for i in range(0, 16, 2):
        a(f"v_mov_b64 v[{NM + i}:{NM + i + 1}], v[2:3]")
    a("s_nop 1")
    a(mfma(S0, K_, Q_, NM))
    a(f"ds_read_b128 {vr(K_, 4)}, v{AK} offset:4096")
    srd(a, R_OUT, pOUT, 2097152)
    a(f"s_lshl_b32 s{T0}, s{sW}, 11")
    a(f"v_add_u32 v{AW}, s{T0}, v{A16}")
    a(f"v_add_u32 v{AW + 1}, 0x10000, v{AW}")
    a(f"v_add_u32 v{AW + 2}, 0x20000, v{AW}")
    a("s_waitcnt lgkmcnt(0)")
    a("s_nop 1")
    a(lead(2))
    stamp(a, 7)
    global NOSTAMP
    if "side" in OPT: NOSTAMP = True
    for i in range(8):
        ex = {}
        if i == 4:
            d1, d2 = (stampl(1), stampl(2)) if "p3b" in OPT else ([], [])
            ex["end"] = d1 + ["s_waitcnt vmcnt(0)", "s_barrier"] + d2 + sig_one("L_h_ns", [f"s_add_u32 s{T0}, s{sRB}, {C_H}"], True) + lead(2)
        if i == 3:
            ex["pv0"] = lead(0)
        if i >= 5:
            ex["pv1"], ex["pv0"] = kv(i - 1, A16)
        a(att_step(i, ex, first=(i == 0)))
    adv(a)
    for i in range(8):
        ex = {}
        if i == 0:
            ex["pv1"], ex["pv0"] = kv(7, A16)
            ex["qk"] = [f"v_mov_b64 v[{RING}:{RING + 1}], 0", f"v_mov_b64 v[{RING + 2}:{RING + 3}], 0"]
        if i < 4:
            ex["G1"] = mfma(G_ + 16 * i, RING, RING, "0")
        if i == 3:
            ex["pv0"] = poll_issue("L_h_np", H_MASK, 7) + lead(0)
        if i == 4:
            d1, d2 = (stampl(3), stampl(4)) if "p3b" in OPT else ([], [])
            ex["end"] = d1 + ["s_waitcnt vmcnt(0)"] + poll_check("L_ch", 16, 7, 16) + ["s_barrier"] + d2 + lead(2)
        if i in (5, 6, 7):
            l = ring_loads(i - 5)
            ex["qk"] = l[0:1]
            ex["pv1"] = l[1:3]
            ex["pv0"] = l[3:6]
        a(att_step(i, ex))
    stamp(a, 8)
    a(f"s_mov_b32 s{tIT}, 5")
    a(f"s_lshr_b32 s{sG}, s{sW}, 2")
    a(f"s_lshl_b32 s{sG}, s{sG}, 4")
    a(f"s_add_u32 s{sG}, s{sG}, {PC[0]}")
    a("L_loop:")
    adv(a)
    plan = [[(0, 0)], [(0, 1), (0, 2)], [(0, 3)], [(1, 0), (1, 1)], [(1, 2)], [(1, 3), (2, 0)], [(2, 1)], [(2, 2), (2, 3)]]
    for i in range(8):
        ex = {}
        ex["G1"] = gm(*plan[i][0])
        if len(plan[i]) > 1:
            ex["G2"] = gm(*plan[i][1])
        if i == 0: ex["qk"] = ["s_waitcnt vmcnt(8)"]
        if i == PC[1]: ex["end"] = lead(0, [f"s_cmp_eq_u32 s{tIT}, s{sG}"])
        if i == 2:
            l = ring_loads(0)
            ex["g1"] = l[0:2]
            ex["pv0"] = l[2:6]
        if i == 3: ex["pv1"] = ["s_waitcnt vmcnt(8)"]
        if i == 5:
            l = ring_loads(1)
            ex["g1"] = l[0:2]
            ex["pv0"] = l[2:6] + ["s_waitcnt vmcnt(8)"]
        if i == 7:
            ex["g2"] = ring_loads(2)
        a(att_step(i, ex))
    a(f"s_sub_u32 s{tIT}, s{tIT}, 1")
    a(f"s_cmp_lg_u32 s{tIT}, 0")
    a("s_cbranch_scc1 L_loop")
    adv(a)
    a(f"s_and_b32 s{tFW}, s{sW}, 3")
    a(f"s_lshl_b32 s{tFW}, s{tFW}, 14")
    a(f"s_add_u32 s{tFW}, s{tFW}, {112 * 2048}")
    a(f"s_mov_b32 s{R_WT + 2}, {144 * 2048}")
    if "p3b" in OPT: stamp(a, 5)
    a("s_barrier")
    if "p3b" in OPT: stamp(a, 6)
    a(lead(2))

    def pw(o):
        base, off = (AW, o * 16384) if o < 4 else ((AW + 1, (o - 4) * 16384) if o < 6 else (AW + 2, (o - 6) * 16384))
        return [f"ds_write_b128 v{base}, {vr(G_ + 8 * o, 4)} offset:{off}",
                f"ds_write_b128 v{base}, {vr(G_ + 8 * o + 4, 4)} offset:{off + 1024}"]

    XV = 244
    wreg = lambda i: RING + 4 * i if i < 12 else NM + 4 * (i - 12)

    def wol(g):
        return [f"buffer_load_dwordx4 {vr(wreg(4 * g + q), 4)}, v{A16}, {sr(R_WT)}, s{tFW} offen offset:{q * 1024} sc1" for q in range(4)] + \
               [f"s_add_u32 s{tFW}, s{tFW}, 4096"]
    for i in range(8):
        ex = {}
        if i == 0: ex["pv0"] = [f"buffer_load_dwordx4 {vr(XV, 4)}, v{AOUT}, {sr(S_X)}, 0 offen"]
        if i in (1, 3, 5): ex["pv1"], ex["g1"] = wol(i // 2)[:1], wol(i // 2)[1:2]
        if i in (2, 4, 6): ex["g1"], ex["pv0"] = wol(i // 2 - 1)[2:3], wol(i // 2 - 1)[3:]
        if i == PD: ex["end"] = lead(0)
        a(att_step(i, ex))
    a("s_nop 1")
    a(mfma(O_, V_ + 24 + 4, P_ + 4))
    a(f"s_lshl_b32 s{T0}, s{tQB}, 3")
    a(f"s_add_u32 s{T0}, s{T0}, s{sW}")
    a(f"s_lshl_b32 s{T0}, s{T0}, 5")
    a(f"s_add_u32 s{T0}, s{T0}, s{tHEAD}")
    a(f"s_lshl_b32 s{T0}, s{T0}, 10")
    a(f"s_add_u32 s{T3}, s{T0}, {WS_O}")
    a(f"v_mov_b32 v2, {hx(f2u(2.0 ** 120))}")
    a(f"v_mov_b32 v3, {hx(f2u(2.0 ** -90))}")
    a("s_waitcnt lgkmcnt(0)")
    a("s_nop 3")
    stamp(a, 9)
    a(f"v_add_f32 v1, |v{O_}|, |v{O_ + 1}|")
    for i in range(2, 8):
        a(f"v_add_f32 v1, v1, |v{O_ + i}|")
    a(f"v_cmp_lt_f32 s[40:41], v{O_ + 8}, v2")
    a("v_cmp_lt_f32 s[42:43], v1, v2")
    a(f"v_cmp_le_f32 s[50:51], 0.5, v{O_ + 8}")
    a("v_cmp_le_f32 vcc, v3, v1")
    a("s_or_b64 s[50:51], s[50:51], vcc")
    a("s_and_b64 s[40:41], s[40:41], s[42:43]")
    a("s_and_b64 s[40:41], s[40:41], s[50:51]")
    a("s_cmp_eq_u64 s[40:41], -1")
    a("s_cbranch_scc0 L_fallback")
    a("L_norm:")
    a(f"v_rcp_f32 v2, v{O_ + 8}")
    a("s_nop 0")
    for i in range(8):
        a(f"v_mul_f32 v{O_ + i}, v{O_ + i}, v2")
    for i in range(4):
        a(f"v_cvt_pk_bf16_f32 v{4 + i}, v{O_ + 2 * i}, v{O_ + 2 * i + 1}")
    a(f"buffer_store_dwordx4 v[4:7], v{A16}, {sr(S_WS)}, s{T3} offen sc1")
    a(wol(3)[:4])
    for o in range(8):
        a(pw(o))
    a(f"s_lshl_b32 s{T0}, s{sW}, 14")
    a(f"s_add_u32 s{T1}, s{T0}, 0x8000")
    a(f"s_cmp_lt_u32 s{sW}, 6")
    a(f"s_cselect_b32 s{T0}, s{T0}, s{T1}")
    a(f"v_add_u32 v3, s{T0}, v{A16}")
    a("s_waitcnt vmcnt(4) lgkmcnt(0)")
    a("s_barrier")
    stamp(a, 10)
    a(f"s_cmp_lg_u32 s{sW}, 0")
    a("s_cbranch_scc1 L_o_ns")
    a(f"s_lshl_b32 s{T0}, s{tQB}, 8")
    a(f"s_add_u32 s{T0}, s{T0}, {WS_CNT + C_O * 256}")
    a("v_mov_b32 v1, 1")
    a("s_mov_b64 exec, 1")
    a(f"buffer_atomic_add v1, off, {sr(S_WS)}, s{T0} sc1")
    a("s_mov_b64 exec, -1")
    a("L_o_ns:")
    F_ = G_
    for s in range(8):
        for i in range(2):
            a(f"ds_read_b128 {vr(F_ + 8 * s + 4 * i, 4)}, v3 offset:{(s * 2 + i) * 1024}")
        if s == 6:
            a("s_waitcnt lgkmcnt(10)")
    for s in range(1, 8):
        a(f"s_waitcnt lgkmcnt({2 * (7 - s)})")
        for i in range(4):
            a(f"v_pk_add_f32 {vr(F_ + 2 * i, 2)}, {vr(F_ + 2 * i, 2)}, {vr(F_ + 8 * s + 2 * i, 2)}")
    T_ = F_ + 8
    a(f"v_mov_b32 v4, {hx(f2u(-LOG2E))}")
    for i in range(8):
        a(f"v_mul_f32 v{T_ + i}, v{F_ + i}, v4")
    for i in range(8):
        a(f"v_exp_f32 v{T_ + i}, v{T_ + i}")
    a("s_nop 0")
    for i in range(8):
        a(f"v_add_f32 v{T_ + i}, 1.0, v{T_ + i}")
    for i in range(8):
        a(f"v_rcp_f32 v{T_ + i}, v{T_ + i}")
    a("s_nop 0")
    for i in range(4):
        a(f"v_pk_mul_f32 {vr(F_ + 2 * i, 2)}, {vr(F_ + 2 * i, 2)}, {vr(T_ + 2 * i, 2)}")
    XU = G_ + 16
    for i in range(4):
        a(f"v_lshlrev_b32 v{XU + 2 * i}, 16, v{XV + i}")
        a(f"v_and_b32 v{XU + 2 * i + 1}, 0xffff0000, v{XV + i}")
    a(f"s_lshr_b32 s{T0}, s{sW}, 2")
    a(f"s_lshl_b32 s{T0}, s{T0}, 15")
    a(f"s_and_b32 s{T1}, s{sW}, 3")
    a(f"s_lshl_b32 s{T2}, s{T1}, 11")
    a(f"s_add_u32 s{T0}, s{T0}, s{T2}")
    a(f"v_add_u32 v1, s{T0}, v{A16}")
    a(f"s_lshl_b32 s{T0}, s{sW}, 13")
    a(f"v_add_u32 v3, s{T0}, v{A16}")
    a(f"s_lshl_b32 s{T0}, s{tTT}, 5")
    a(f"s_lshl_b32 s{T1}, s{T1}, 3")
    a(f"s_add_u32 s{T0}, s{T0}, s{T1}")
    a(f"s_lshl_b32 s{T0}, s{T0}, 10")
    a(f"s_add_u32 s{T2}, s{T0}, {WS_O}")
    a(f"s_add_u32 s{T3}, s{T2}, 4096")
    stamp(a, 11)
    a(f"s_cmp_lg_u32 s{sW}, 0")
    a("s_cbranch_scc1 L_o_ok")
    a(f"s_lshl_b32 s{T0}, s{sXCD}, 8")
    a(f"s_add_u32 s{T0}, s{T0}, {WS_CNT + C_O * 256}")
    a(f"s_mov_b32 s{T1}, {SPIN}")
    a("L_o_poll:")
    a(f"buffer_load_dword v4, off, {sr(S_WS)}, s{T0} sc1")
    a("s_waitcnt vmcnt(0)")
    a("v_readfirstlane_b32 s40, v4")
    a("s_cmp_ge_u32 s40, 32")
    a("s_cbranch_scc1 L_o_ok")
    a(f"s_sub_u32 s{T1}, s{T1}, 1")
    a(f"s_cmp_lg_u32 s{T1}, 0")
    a("s_cbranch_scc1 L_o_poll")
    a("L_o_ok:")
    a("s_barrier")
    stamp(a, 12)
    OF = S0
    SA = V_
    for j in range(8):
        so = T2 if j < 4 else T3
        a(f"buffer_load_dwordx4 {vr(OF + 4 * j, 4)}, v{A16}, {sr(S_WS)}, s{so} offen offset:{(j % 4) * 1024} sc1")
    for j in range(8):
        a(f"s_waitcnt vmcnt({7 - j})")
        for ap in range(2):
            a(mfma(SA + 16 * ap, wreg(2 * j + ap), OF + 4 * j, "0" if j == 0 else None))
    stamp(a, 13)
    a("s_nop 11")
    for o in range(4):
        for i in range(2):
            a(f"ds_write_b128 v1, {vr(SA + 8 * o + 4 * i, 4)} offset:{o * 8192 + i * 1024}")
    a("s_waitcnt lgkmcnt(0)")
    a("s_barrier")
    for s in range(4):
        for i in range(2):
            a(f"ds_read_b128 {vr(SA + 8 * s + 4 * i, 4)}, v3 offset:{(s * 2 + i) * 1024}")
    for s in range(1, 4):
        a(f"s_waitcnt lgkmcnt({2 * (3 - s)})")
        for i in range(4):
            a(f"v_pk_add_f32 {vr(SA + 2 * i, 2)}, {vr(SA + 2 * i, 2)}, {vr(SA + 8 * s + 2 * i, 2)}")
    for i in range(4):
        a(f"v_pk_fma_f32 {vr(XU + 2 * i, 2)}, {vr(SA + 2 * i, 2)}, {vr(F_ + 2 * i, 2)}, {vr(XU + 2 * i, 2)}")
    for i in range(4):
        a(f"v_cvt_pk_bf16_f32 v{4 + i}, v{XU + 2 * i}, v{XU + 2 * i + 1}")
    fl = " sc1" if "osc1" in OPT else (" nt" if "ont" in OPT else (" sc0 sc1" if "osc01" in OPT else ""))
    a(f"buffer_store_dwordx4 v[4:7], v{AOUT}, {sr(R_OUT)}, 0 offen{fl}")
    stamp(a, 14)
    stamp_flush(a)
    a("L_exit:")
    a("s_endpgm")
    a("L_fallback:")
    a(f"s_lshl_b32 s{T0}, s{tHEAD}, 16")
    a(f"s_add_u32 s{T0}, s{T0}, {32 << 16}")
    a(f"s_mov_b32 s{T1}, 0")
    a("v_mov_b32 v1, 0xff800000")
    a("L_fb1:")
    a(f"s_add_u32 s{T2}, s{T0}, s{T1}")
    a(f"buffer_load_dwordx4 {vr(K_, 4)}, v{A16}, {sr(S_WS)}, s{T2} offen sc1")
    a("s_waitcnt vmcnt(0)")
    a(mfma(S0, K_, Q_, "0"))
    a("s_nop 15")
    for i in range(0, 16, 2):
        a(f"v_max3_f32 v1, v1, v{S0 + i}, v{S0 + i + 1}")
    a(f"s_add_u32 s{T1}, s{T1}, 1024")
    a(f"s_cmp_lt_u32 s{T1}, 65536")
    a("s_cbranch_scc1 L_fb1")
    a("v_mov_b32 v2, v1")
    a("s_nop 1")
    a("v_permlane32_swap_b32 v1, v2")
    a("v_max_f32 v1, v1, v2")
    a("v_sub_f32 v1, 0, v1")
    for i in range(16):
        a(f"v_mov_b32 v{NM + i}, v1")
    for i in range(16):
        a(f"v_mov_b32 v{O_ + i}, 0")
    a("v_lshrrev_b32 v2, 5, v0")
    a("v_and_b32 v3, 15, v0")
    a("v_lshlrev_b32 v3, 4, v3")
    a("v_lshl_add_u32 v3, v2, 8, v3")
    a(f"s_mov_b32 s{T1}, 0")
    a("L_fb2:")
    a(f"s_add_u32 s{T2}, s{T0}, s{T1}")
    a(f"buffer_load_dwordx4 {vr(K_, 4)}, v{A16}, {sr(S_WS)}, s{T2} offen sc1")
    a(f"s_add_u32 s{T2}, s{T2}, {32 << 16}")
    a(f"s_mov_b64 exec, s[{tVM}:{tVM + 1}]")
    a(f"buffer_load_dwordx4 {vr(V_, 4)}, v3, {sr(S_WS)}, s{T2} offen sc1")
    a(f"buffer_load_dwordx4 {vr(V_ + 4, 4)}, v3, {sr(S_WS)}, s{T2} offen offset:512 sc1")
    a("s_mov_b64 exec, -1")
    a("s_waitcnt vmcnt(0)")
    a(mfma(S0, K_, Q_, NM))
    a("s_nop 15")
    for i in range(16):
        a(f"v_exp_f32 v{S0 + i}, v{S0 + i}")
    a("s_nop 0")
    for i in range(8):
        a(f"v_cvt_pk_bf16_f32 v{P_ + i}, v{S0 + 2 * i}, v{S0 + 2 * i + 1}")
    a("s_nop 1")
    a(mfma(O_, V_, P_))
    a(mfma(O_, V_ + 4, P_ + 4))
    a(f"s_add_u32 s{T1}, s{T1}, 1024")
    a(f"s_cmp_lt_u32 s{T1}, 65536")
    a("s_cbranch_scc1 L_fb2")
    a("s_nop 15")
    a("s_branch L_norm")


def main(out):
    a = Asm()
    k = NAME + "_kernel"
    hdr = ["; LN + MHA + GEGLU block, one persistent launch; generated by gen4.py (hand-scheduled gfx950 assembly)",
           "; @launch grid=(256,1,1) block=(512,1,1) lds=163840"]
    a('.amdgcn_target "amdgcn-amd-amdhsa--gfx950"')
    a(".text")
    a(f".globl {k}\n.p2align 8\n.type {k},@function\n{k}:")
    gen_p1(a)
    gen_p2(a)
    gen_side(a)
    a("L_end:")
    a('.section .rodata,"a"')
    a(".p2align 6")
    a(f".amdhsa_kernel {k}")
    a(f".amdhsa_next_free_vgpr {NVGPR}")
    a(f".amdhsa_next_free_sgpr {96 if (STAMPS or ENC is not None) else 80}")
    a(f".amdhsa_accum_offset {(NVGPR + 3) // 4 * 4}")
    a(".amdhsa_group_segment_fixed_size 0")
    a(".amdhsa_kernarg_size 80")
    a(".amdhsa_user_sgpr_count 2")
    a(".amdhsa_user_sgpr_kernarg_segment_ptr 1")
    a(".amdhsa_system_sgpr_workgroup_id_x 1")
    a(".end_amdhsa_kernel")
    open(out, "w").write("\n".join(hdr) + "\n" + a.text())


if __name__ == "__main__":
    for x in list(sys.argv):
        if x.startswith("--opt="):
            OPT = set(x[6:].split(","))
            sys.argv.remove(x)
    for x in list(sys.argv):
        if x.startswith("--enc="):
            ENC = int(x[6:])
            sys.argv.remove(x)
    for o in OPT:
        if o.startswith("sig"): SIGU = int(o[3:])
        if o.startswith("chk"): CHK = int(o[3:])
        if o.startswith("wk"): WK = int(o[2:])
        if o.startswith("vb"): VBUD = int(o[2:])
        if o.startswith("pc"): PC = (int(o[2]), int(o[3]))
        if o.startswith("pd"): PD = int(o[2])
        if o.startswith("pg"): PG = int(o[2])
    if "--cyc" in sys.argv:
        STAMPS = 2
        sys.argv.remove("--cyc")
    if "--stamps" in sys.argv:
        STAMPS = True
        sys.argv.remove("--stamps")
    main(sys.argv[1] if len(sys.argv) > 1 else f"cdna_kernels/{NAME}.s")
```

```python
import sys, struct, math

NAME = "recurrent_scan__mha_block__glu_gated_geglu__prompt"

WS_QKV = 0
WS_H = 6 << 20
WS_O = 14 << 20
WS_CNT = 16 << 20
WS_STAMP = (16 << 20) + 65536
WS_CS = (16 << 20) + 0xb0000
WS_ST = (16 << 20) + 0x80000
WS_CQ = (16 << 20) + 0xa0000
WS_RS = (16 << 20) + 0x84000
WS_CP = (19 << 20) + 0x80000
WS_WT = 17 << 20
WS_SIZE = 21 << 20
OOB = 0x7f000000

LOG2E = 1.4426950408889634
QSCALE = 0.25 * LOG2E
GC1 = -2.0 * LOG2E * math.sqrt(2.0 / math.pi)
GC2 = GC1 * 0.044715
MAXOFF = 80.0
SPIN = 0x40000

STAMPS = False
OPT = set()
NOSTAMP = False
ENC = None


def f2u(x):
    return struct.unpack("<I", struct.pack("<f", x))[0]


def hx(x):
    return "0x%08x" % (x & 0xffffffff)


class Asm:
    def __init__(self):
        self.l = []

    def __call__(self, s):
        if isinstance(s, (list, tuple)):
            for x in s:
                self(x)
            return
        for line in s.split("\n"):
            line = line.strip()
            if not line:
                continue
            if line.endswith(":") or line.startswith("."):
                self.l.append(line)
            else:
                self.l.append("    " + line)

    def text(self):
        return "\n".join(self.l) + "\n"


def vr(b, n):
    return f"v[{b}:{b + n - 1}]"


def sr(b):
    return f"s[{b}:{b + 3}]"


def mfma(d, a, b, c=None):
    cs = vr(d, 16) if c is None else (c if isinstance(c, str) else vr(c, 16))
    return f"v_mfma_f32_32x32x16_bf16 {vr(d, 16)}, {vr(a, 4)}, {vr(b, 4)}, {cs}"


def stamp(a, n):
    if ENC is not None:
        if n in (0, ENC) and not NOSTAMP:
            a("s_memrealtime s[76:77]")
            a("s_waitcnt lgkmcnt(0)")
            a(f"s_mov_b32 s{80 if n == 0 else 81}, s76")
            if n == 0:
                a("s_mov_b32 s81, s76")
        return
    if not STAMPS or (NOSTAMP and n != 15) or ("min" in OPT and n not in (0, 15)):
        return
    a("s_memtime s[76:77]" if STAMPS == 2 else "s_memrealtime s[76:77]")
    a("s_waitcnt lgkmcnt(0)")
    a(f"s_mov_b32 s{80 + n}, s76")


def stampl(n):
    t = Asm()
    stamp(t, n)
    return [x.strip() for x in t.l]


def stamp_flush(a):
    if ENC is not None:
        a("s_waitcnt vmcnt(0)")
        a("s_memrealtime s[76:77]")
        a("s_waitcnt lgkmcnt(0)")
        if ENC == 15:
            a("s_mov_b32 s81, s76")
        if ENC == 99:
            a(["v_mov_b32 v1, 0", f"global_load_dword v2, v1, s[{pDBG}:{pDBG + 1}] offset:240 sc1", "s_waitcnt vmcnt(0)",
               "v_readfirstlane_b32 s80, v2", "s_not_b32 s80, s80", "s_sub_u32 s80, s80, 100"])
        a("s_sub_u32 s81, s81, s80")
        a("s_cmp_lt_u32 s2, 32" if "encs" not in OPT else "s_cmp_ge_u32 s2, 32")
        a("s_cselect_b32 s81, 0, s81")
        a("s_mov_b32 s80, s76")
        a("L_enc:")
        a("s_memrealtime s[76:77]")
        a("s_waitcnt lgkmcnt(0)")
        a("s_sub_u32 s76, s76, s80")
        a("s_cmp_lt_u32 s76, s81")
        a("s_cbranch_scc1 L_enc")
        return
    if not STAMPS:
        return
    a("s_waitcnt vmcnt(0)")
    stamp(a, 15)
    a("v_mov_b32 v1, 0")
    for n in range(16):
        a(f"v_writelane_b32 v1, s{80 + n}, {n}")
    a("s_lshl_b32 s76, s2, 3")
    a(f"s_add_u32 s76, s76, s{sW}")
    a("s_lshl_b32 s76, s76, 6")
    a(f"s_add_u32 s76, s76, {WS_STAMP}")
    a("v_lshlrev_b32 v2, 2, v0")
    a("s_mov_b64 exec, 0xffff")
    a(f"buffer_store_dword v1, v2, {sr(S_WS)}, s76 offen")


def srd(a, s, ptr, size):
    a(f"s_mov_b32 s{s}, s{ptr}")
    a(f"s_mov_b32 s{s + 1}, s{ptr + 1}")
    a(f"s_mov_b32 s{s + 2}, {size}")
    a(f"s_mov_b32 s{s + 3}, 0x00020000")


pX, pWQKV, pWO, pG, pU, pWD, pOUT, pDBG, pWS = 56, 58, 60, 64, 66, 68, 70, 72, 74
S_T, S_X, S_W0, S_W1, S_W3, S_WS = 4, 8, 12, 16, 20, 24
R_OUT, R_H0, R_H1, R_WT = 4, 12, 16, 20
sW, sTT, sHF, sRB, sCB, sROT, sISS, sVAR = 28, 29, 30, 31, 32, 33, 34, 35
sCQ, sCG, sXROW, sLW = 36, 37, 42, 43
T0, T1, T2, T3 = 44, 45, 46, 47
sXCD, sT, sG, sKV = 49, 52, 53, 50
tHEAD, tQB, tIT, tFH, tFW, tTT = 38, 39, 33, 36, 37, 48
tVM = 54

AR, BR, CR, SL = 0, 49152, 98304, 16384
SCR = 147456
XA, VXS, VW0, WQ, WC = 4, 8, 9, 10, 12
VW1, VW3, L16, MASK, ONES, STV, POLL = 14, 15, 16, 17, 18, 20, 21
CSA = 24
WF = 32
ACF, ACQ = 64, 96
XF = 128
Q_, K_, P_, NM, S0, S1, RING = 8, 12, 20, 28, 44, 60, 76
AK, AV, A16, AOUT = 124, 125, 126, 127
G_, V_, O_, AW = 128, 192, 224, 240
NVGPR = 256
C_H, C_CS, C_O = 24, 40, 56
T4 = 63
sCF, sCNT = 51, 62


def tiny(d, a_, b_, first=False):
    return f"v_mfma_f32_4x4x4_16b_bf16 {vr(d, 4)}, {vr(a_, 2)}, {vr(b_, 2)}, {'0' if first else vr(d, 4)}"


def dma(S, ffn=True):
    sl = (S % 3) * SL
    if S < 8:
        r = [[f"s_add_u32 s{T1}, s{sROT}, {S}", f"s_and_b32 s{T1}, s{T1}, 7",
              f"s_lshl_b32 s{T0}, s{T1}, 7", f"s_add_u32 m0, s{sLW}, {AR + sl}", f"s_add_u32 s{T0}, s{T0}, s{sXROW}",
              f"buffer_load_dwordx4 v{VXS}, {sr(S_X)}, s{T0} offen lds"],
             [f"s_mul_i32 s{T4}, s{T1}, {64 * 3584}",
              f"s_mul_i32 s{T1}, s{T1}, {64 * 3072}", f"s_add_u32 m0, s{sLW}, {BR + sl}", f"s_add_u32 s{T1}, s{T1}, s{sCQ}",
              f"buffer_load_dwordx4 v{VW0}, {sr(S_W0)}, s{T1} offen lds"],
             [f"s_add_u32 m0, s{sLW}, {AR + sl + 8192}", f"s_add_u32 s{T0}, s{T0}, 0x10000",
              f"buffer_load_dwordx4 v{VXS}, {sr(S_X)}, s{T0} offen lds"],
             [f"s_add_u32 m0, s{sLW}, {BR + sl + 8192 - 128}", "s_nop 0",
              f"buffer_load_dwordx4 v{VW0}, {sr(S_W0)}, s{T1} offen offset:128 lds"]]
        if ffn:
            r += [[f"s_add_u32 m0, s{sLW}, {CR + sl}", f"s_add_u32 s{T4}, s{T4}, s{sCG}",
                   f"buffer_load_dwordx4 v{VW1}, {sr(S_W1)}, s{T4} offen lds"],
                  [f"s_add_u32 m0, s{sLW}, {CR + sl + 8192}", "s_nop 0",
                   f"buffer_load_dwordx4 v{VW3}, {sr(S_W3)}, s{T4} offen lds"]]
        return r
    if not ffn:
        return []
    r = []
    for hb, base in enumerate((BR, CR)):
        r += [[f"s_add_u32 s{T1}, s{sROT}, {2 * (S - 8) + hb}", f"s_and_b32 s{T1}, s{T1}, 7",
               f"s_mul_i32 s{T1}, s{T1}, {64 * 3584}", f"s_add_u32 m0, s{sLW}, {base + sl - 128}", f"s_add_u32 s{T1}, s{T1}, s{sCG}",
               f"buffer_load_dwordx4 v{VW1}, {sr(S_W1)}, s{T1} offen offset:128 lds"],
              [f"s_add_u32 m0, s{sLW}, {base + sl + 8192 - 128}", "s_nop 0",
               f"buffer_load_dwordx4 v{VW3}, {sr(S_W3)}, s{T1} offen offset:128 lds"]]
    return r


def fset(k, ffn):
    return WF + 16 * (k & 1) if ffn else WF + 8 * (k & 3)


def rd1(k, nt, ffn):
    S, ks = k >> 2, k & 3
    sl = (S % 3) * SL
    F = fset(k, ffn)
    r = [f"ds_read_b128 {vr(XF + 4 * k, 4)}, v{XA + ks} offset:{sl}"]
    for t in range(nt):
        for t2 in range(2):
            r.append(f"ds_read_b64_tr_b16 {vr(F + 4 * t + 2 * t2, 2)}, v{WQ + t} offset:{sl + ks * 2048 + t2 * 512}")
    if ffn:
        for c in range(2):
            for t2 in range(2):
                r.append(f"ds_read_b64_tr_b16 {vr(F + 8 + 4 * c + 2 * t2, 2)}, v{WC + c} offset:{sl + ks * 2048 + t2 * 512}")
    return r


def rd2(u):
    S = 8 + (u >> 2)
    sl = (S % 3) * SL
    base = WQ if (u & 3) < 2 else WC
    F = WF + 16 * (u & 1)
    return [f"ds_read_b64_tr_b16 {vr(F + 8 * q + 4 * c + 2 * t2, 2)}, v{base + c} offset:{sl + ((2 * u + q) & 3) * 2048 + t2 * 512}"
            for q in range(2) for c in range(2) for t2 in range(2)]


def flat(L):
    return [x for at in L for x in ([at] if isinstance(at, str) else at)]


def spread(heads, first, rest):
    n = len(heads)
    pf = -(-len(first) // max(1, n - 1)) if first else 0
    res = []
    for j, hd in enumerate(heads):
        res.append(hd)
        res += flat(first[j * pf:(j + 1) * pf])
        res += flat(rest[j * len(rest) // n:(j + 1) * len(rest) // n])
    return res


def nvm(lines):
    return sum(1 for l in lines if l.startswith("buffer_") or l.startswith("global_"))


def weave(heads, fills):
    res = []
    per = -(-len(fills) // len(heads)) if fills else 0
    i = 0
    for hd in heads:
        res.append(hd)
        for at in fills[i:i + per]:
            res += [at] if isinstance(at, str) else at
        i += per
    return res


def tr_addr(dst, t_a, t_b):
    return [f"v_lshrrev_b32 v{t_a}, 5, v0", f"v_bfe_u32 v{t_b}, v0, 2, 2", f"v_lshl_add_u32 v{dst}, v{t_a}, 2, v{t_b}",
            f"v_lshlrev_b32 v{dst}, 7, v{dst}", f"v_and_b32 v{t_a}, 1, v0", f"v_lshl_add_u32 v{dst}, v{t_a}, 6, v{dst}",
            f"v_bfe_u32 v{t_a}, v0, 4, 1", f"v_lshl_add_u32 v{dst}, v{t_a}, 4, v{dst}", f"v_bfe_u32 v{t_a}, v0, 1, 1",
            f"v_lshl_add_u32 v{dst}, v{t_a}, 3, v{dst}", f"v_lshrrev_b32 v{t_b}, 1, v{t_b}", f"v_lshl_add_u32 v{dst}, v{t_b}, 5, v{dst}"]


def split3(w, src):
    return [f"v_and_b32 v{w}, v{MASK}, v{src}", f"v_sub_f32 v{w + 2}, v{src}, v{w}",
            f"v_and_b32 v{w + 1}, v{MASK}, v{w + 2}", f"v_sub_f32 v{w + 2}, v{w + 2}, v{w + 1}", f"v_mov_b32 v{w + 3}, 0"]


def poll_issue(lbl, mask_instrs, reg=POLL):
    return ([f"s_cmp_lg_u32 s{sW}, 0", f"s_cbranch_scc1 {lbl}", "v_lshlrev_b32 v1, 8, v0"] + mask_instrs +
            ["s_mov_b64 exec, s[40:41]",
             f"buffer_load_dword v{reg}, v1, {sr(S_WS)}, s{sCNT} offen sc1", "s_mov_b64 exec, -1", f"{lbl}:"])


def poll_check(lbl, thr, reg=POLL, sleep=8):
    return [f"s_cmp_lg_u32 s{sW}, 0", f"s_cbranch_scc1 {lbl}_ok",
            f"s_mov_b32 s{T3}, {SPIN}", "s_mov_b64 exec, s[40:41]", f"{lbl}_spin:",
            f"v_cmp_gt_u32 vcc, {thr}, v{reg}", "s_cmp_eq_u64 vcc, 0", f"s_cbranch_scc1 {lbl}_done",
            f"s_sleep {sleep}",
            f"buffer_load_dword v{reg}, v1, {sr(S_WS)}, s{sCNT} offen sc1", "s_waitcnt vmcnt(0)",
            f"s_sub_u32 s{T3}, s{T3}, 1", f"s_cmp_lg_u32 s{T3}, 0", f"s_cbranch_scc1 {lbl}_spin",
            f"{lbl}_done:", "s_mov_b64 exec, -1", f"{lbl}_ok:"]


QKV_MASK = [f"s_lshl_b32 s40, 0x10101, s{sXCD}", "s_mov_b32 s41, 0"]
CS_MASK = ["s_mov_b32 s40, 0", f"s_lshl_b32 s41, 0x100, s{sCF}"]
H_MASK = ["s_mov_b32 s40, 0xff000000", "s_mov_b32 s41, 0xff"]


def cs_issue(lbl, n):
    return [f"s_cmp_lg_u32 s{sW}, 0", f"s_cbranch_scc1 {lbl}", "v_lshlrev_b32 v1, 6, v0", "s_mov_b64 exec, 15",
            f"global_load_dword v{POLL}, v1, s[{pDBG}:{pDBG + 1}] offset:{4 * n} sc1", "s_mov_b64 exec, -1", f"{lbl}:"]


def cs_signal(lbl, n):
    return [f"s_cmp_lg_u32 s{sW}, 0", f"s_cbranch_scc1 {lbl}", f"s_and_b32 s{T2}, s{sRB}, 3", f"s_lshl_b32 s{T2}, s{T2}, 6",
            f"v_mov_b32 v2, s{T2}", "v_mov_b32 v3, 1", "s_mov_b64 exec, 1",
            f"global_atomic_add v2, v3, s[{pDBG}:{pDBG + 1}] offset:{4 * n} sc1", "s_mov_b64 exec, -1", f"{lbl}:"]


def cs_check(lbl, n):
    return [f"s_cmp_lg_u32 s{sW}, 0", f"s_cbranch_scc1 {lbl}_ok",
            f"s_mov_b32 s{T3}, {SPIN}", "s_mov_b64 exec, 15", f"{lbl}_spin:",
            f"v_cmp_gt_u32 vcc, 8, v{POLL}", "s_cmp_eq_u64 vcc, 0", f"s_cbranch_scc1 {lbl}_done",
            "s_sleep 8",
            f"global_load_dword v{POLL}, v1, s[{pDBG}:{pDBG + 1}] offset:{4 * n} sc1", "s_waitcnt vmcnt(0)",
            f"s_sub_u32 s{T3}, s{T3}, 1", f"s_cmp_lg_u32 s{T3}, 0", f"s_cbranch_scc1 {lbl}_spin",
            f"{lbl}_done:", "s_mov_b64 exec, -1", f"{lbl}_ok:"]


def flag_check(lbl):
    return [f"s_cmp_lg_u32 s{sW}, 0", f"s_cbranch_scc1 {lbl}",
            f"s_mov_b32 s{T3}, {SPIN}", f"{lbl}_spin:",
            f"v_readfirstlane_b32 s{T2}, v{POLL}", f"s_cmp_lg_u32 s{T2}, 0", f"s_cbranch_scc1 {lbl}",
            "s_sleep 8", "v_mov_b32 v2, 0",
            f"global_load_dword v{POLL}, v2, s[{pDBG}:{pDBG + 1}] offset:32 sc1", "s_waitcnt vmcnt(0)",
            f"s_sub_u32 s{T3}, s{T3}, 1", f"s_cmp_lg_u32 s{T3}, 0", f"s_cbranch_scc1 {lbl}_spin", f"{lbl}:"]


def sig_qkv(lbl):
    return [f"s_cmp_lg_u32 s{sW}, 0", f"s_cbranch_scc1 {lbl}",
            f"s_mul_i32 s{T2}, s{sCB}, 3", f"s_lshr_b32 s{T2}, s{T2}, 1", f"s_and_b32 s{T3}, s{sCB}, 1",
            f"v_add_u32 v2, s{T2}, v0", "v_lshlrev_b32 v2, 8, v2",
            f"v_xor_b32 v3, s{T3}, v0", "v_sub_u32 v3, 2, v3",
            "s_mov_b64 exec, 3", f"buffer_atomic_add v3, v2, {sr(S_WS)}, s{sCNT} offen sc1", "s_mov_b64 exec, -1", f"{lbl}:"]


def sig_one(lbl, idx_instrs, skip_side=False):
    c = [f"s_or_b32 s{T0}, s{sW}, s{sISS}"] if skip_side else [f"s_cmp_lg_u32 s{sW}, 0"]
    return (c + [f"s_cbranch_scc1 {lbl}"] + idx_instrs +
            [f"s_lshl_b32 s{T0}, s{T0}, 8", f"s_add_u32 s{T0}, s{T0}, s{sCNT}", "v_mov_b32 v3, 1", "s_mov_b64 exec, 1",
             f"buffer_atomic_add v3, off, {sr(S_WS)}, s{T0} sc1", "s_mov_b64 exec, -1", f"{lbl}:"])


def kv(i, r=L16):
    return [[f"s_lshl1_add_u32 m0, s{sLW}, {i * 16384}" if i else f"s_lshl_b32 m0, s{sLW}, 1",
             f"s_add_u32 s{T2}, s{sKV}, {i * 8192}",
             f"buffer_load_dwordx4 v{r}, {sr(S_WS)}, s{T2} offen sc1 lds"],
            [f"s_lshl1_add_u32 m0, s{sLW}, {i * 16384 + 1024}", f"s_add_u32 s{T2}, s{sKV}, {i * 8192 + (32 << 16)}",
             f"buffer_load_dwordx4 v{r}, {sr(S_WS)}, s{T2} offen sc1 lds"]]


def q_load():
    return [f"s_lshl_b32 s{T2}, s{tQB}, 13", f"s_add_u32 s{T2}, s{T2}, s{sKV}", f"s_sub_u32 s{T2}, s{T2}, {32 << 16}",
            f"buffer_load_dwordx4 {vr(Q_, 4)}, v{L16}, {sr(S_WS)}, s{T2} offen sc1"]


def p2_init_v():
    return ([["v_and_b32 v3, 27, v0", "v_cmp_eq_u32 vcc, 16, v3", f"v_mov_b32 v{V_ + 1}, 0x3f803f80", "v_mov_b32 v3, 0",
              f"v_cndmask_b32 v{V_}, v3, v{V_ + 1}, vcc", f"v_mov_b32 v{V_ + 1}, v{V_}"]] +
            [f"v_mov_b64 v[{V_ + i}:{V_ + i + 1}], v[{V_}:{V_ + 1}]" for i in range(2, 32, 2)])


TRA, TRD = 142, 144


def tr_setup():
    A, B, C, D = T2, T3, tVM + 1, tVM
    return [[f"s_sub_u32 s{C}, s2, 32", f"s_mul_i32 s{D}, s{sW}, 144", f"s_add_u32 s{D}, s{D}, s{C}", f"s_lshl_b32 s{D}, s{D}, 11",
             f"s_add_u32 s{D}, s{D}, {WS_WT}", f"s_cmp_lt_u32 s{C}, 144", f"s_cselect_b32 s{D}, s{D}, {OOB}",
             f"s_cmp_lt_u32 s{C}, 112", f"s_cselect_b32 s{S_T}, s{pWD}, s{pWO}",
             f"s_cselect_b32 s{S_T + 1}, s{pWD + 1}, s{pWO + 1}", f"s_mov_b32 s{S_T + 2}, 1835008",
             f"s_cselect_b32 s{S_T + 2}, s{S_T + 2}, 524288", f"s_cselect_b32 s{A}, 0, 112", f"s_mov_b32 s{S_T + 3}, 0x00020000",
             f"s_sub_u32 s{C}, s{C}, s{A}", f"s_lshl_b32 s{C}, s{C}, 14", f"s_lshl_b32 s{B}, s{sW}, 7", f"s_add_u32 s{C}, s{C}, s{B}"],
            ["v_lshrrev_b32 v2, 3, v0", "v_and_b32 v3, 2, v2", "v_and_b32 v18, 7, v0", "v_xor_b32 v18, v3, v18",
             "v_lshlrev_b32 v18, 4, v18", "v_lshl_add_u32 v18, v2, 10, v18"]]


def tr_dma():
    C = tVM + 1
    return [[f"s_lshl_b32 m0, s{sLW}, 1", f"s_add_u32 s{T3}, s{C}, 8192", f"buffer_load_dwordx4 v18, {sr(S_T)}, s{C} offen lds",
             "s_add_u32 m0, m0, 1024", "s_nop 0", f"buffer_load_dwordx4 v18, {sr(S_T)}, s{T3} offen lds"]]


def tr_rd():
    return [f"ds_read_b64_tr_b16 {vr(TRD + 4 * ap + 2 * t, 2)}, v{TRA + ap} offset:{t * 1024}" for ap in range(2) for t in range(2)]


def tr_st():
    return [f"buffer_store_dwordx4 {vr(TRD, 4)}, v{L16}, {sr(S_WS)}, s{tVM} offen sc1",
            f"buffer_store_dwordx4 {vr(TRD + 4, 4)}, v{L16}, {sr(S_WS)}, s{tVM} offen offset:1024 sc1"]


def gen_p1(a):
    global NOSTAMP
    a("s_cmp_ge_u32 s2, 256")
    a("s_cbranch_scc1 L_exit")
    stamp(a, 0)
    a(f"s_load_dwordx4 s[{pX}:{pX + 3}], s[0:1], 0")
    a(f"s_load_dwordx4 s[{pG}:{pG + 3}], s[0:1], 32")
    a(f"s_load_dwordx2 s[{pWO}:{pWO + 1}], s[0:1], 16")
    a(f"s_load_dwordx4 s[{pWD}:{pWD + 3}], s[0:1], 48")
    a(f"s_load_dwordx4 s[{pDBG}:{pDBG + 3}], s[0:1], 64")
    a("v_lshrrev_b32 v1, 6, v0")
    a("v_and_b32 v0, 63, v0")
    a(f"v_readfirstlane_b32 s{sW}, v1")
    a("s_cmp_ge_u32 s2, 32")
    a("s_cbranch_scc1 L_nocode")
    a("s_getpc_b64 s[40:41]")
    a("L_here:")
    a("v_lshlrev_b32 v2, 13, v1")
    a("v_lshl_add_u32 v2, v0, 7, v2")
    a("v_min_u32 v2, L_end-L_here-4, v2")
    a("v_mov_b32 v3, s41")
    a("v_add_co_u32 v2, vcc, s40, v2")
    a("s_nop 1")
    a("v_addc_co_u32 v3, vcc, 0, v3, vcc")
    a(f"global_load_dword v{STV}, v[2:3], off")
    a("L_nocode:")
    a(f"s_and_b32 s{sXCD}, s2, 7")
    a(f"s_lshr_b32 s{T1}, s2, 3")
    a(f"s_and_b32 s{sRB}, s{sXCD}, 3")
    a(f"s_and_b32 s{T2}, s{T1}, 3")
    a(f"s_lshl2_add_u32 s{sRB}, s{sRB}, s{T2}")
    a(f"s_lshr_b32 s{sCF}, s{sXCD}, 2")
    a(f"s_lshr_b32 s{sISS}, s{T1}, 2")
    a(f"s_lshl3_add_u32 s{sCB}, s{sCF}, s{sISS}")
    if "norot" in OPT:
        a(f"s_mov_b32 s{sROT}, 0")
    else:
        a(f"s_lshl1_add_u32 s{sROT}, s{sXCD}, s{sISS}")
    a(f"s_lshl_b32 s{sLW}, s{sW}, 10")
    a(f"s_lshl_b32 s{T2}, s{sW}, 3")
    a(f"s_lshl_b32 s{sXROW}, s{sRB}, 7")
    a(f"s_add_u32 s{sXROW}, s{sXROW}, s{T2}")
    a(f"s_lshl_b32 s{sXROW}, s{sXROW}, 10")
    a(f"s_mul_i32 s{sCQ}, s{sCB}, 3")
    a(f"s_lshr_b32 s{sCQ}, s{sCQ}, 1")
    a(f"s_lshl_b32 s{sCQ}, s{sCQ}, 7")
    a(f"s_mul_i32 s{T3}, s{T2}, 3072")
    a(f"s_add_u32 s{sCQ}, s{sCQ}, s{T3}")
    a(f"s_mul_i32 s{T3}, s{T2}, 3584")
    a(f"s_sub_u32 s{sCF}, s{sCB}, s{sCF}")
    a(f"s_sub_u32 s{sCF}, s{sCF}, 1")
    a(f"s_lshl_b32 s{sCG}, s{sCF}, 8")
    a(f"s_add_u32 s{sCG}, s{sCG}, s{T3}")
    a(f"s_cmp_eq_u32 s{sISS}, 0")
    a(f"s_cselect_b32 s{sISS}, 1, 0")
    a(f"s_cselect_b32 s{sCG}, {OOB}, s{sCG}")
    a("v_lshrrev_b32 v1, 3, v0")
    a("v_and_b32 v2, 7, v0")
    a(f"v_add_u32 v3, s{T2}, v1")
    a("v_bfe_u32 v3, v3, 1, 3")
    a("v_xor_b32 v3, v3, v2")
    a("v_lshlrev_b32 v3, 4, v3")
    a(f"v_lshl_add_u32 v{VXS}, v1, 10, v3")
    a("v_and_b32 v3, 2, v1")
    a("v_lshlrev_b32 v3, 1, v3")
    a("v_xor_b32 v3, v3, v2")
    a("v_lshlrev_b32 v3, 4, v3")
    a("v_mul_u32_u24 v4, 3072, v1")
    a(f"v_add_u32 v{VW0}, v4, v3")
    a("v_mul_u32_u24 v4, 3584, v1")
    a(f"v_add_u32 v{VW1}, v4, v3")
    a(f"v_xor_b32 v{VW3}, 32, v{VW1}")
    for r_, sz in ((S_X, 2097152), (S_W0, 1572864), (S_W1, 1835008), (S_W3, 1835008)):
        a(f"s_mov_b32 s{r_ + 2}, {sz}")
        a(f"s_mov_b32 s{r_ + 3}, 0x00020000")
    a("s_waitcnt lgkmcnt(0)")
    for r_, p_ in ((S_X, pX), (S_W0, pWQKV), (S_W1, pG), (S_W3, pU)):
        a(f"s_mov_b64 s[{r_}:{r_ + 1}], s[{p_}:{p_ + 1}]")
    a(f"s_cmp_eq_u32 s{sISS}, 1")
    a("s_cbranch_scc1 L_nod0")
    a(dma(0))
    a("L_nod0:")
    a(f"v_lshlrev_b32 v{L16}, 4, v0")
    a(f"s_and_b32 s{sTT}, s{sW}, 3")
    a(f"s_lshr_b32 s{sHF}, s{sW}, 2")
    a(f"s_mov_b32 s{sCNT}, {WS_CNT}")
    srd(a, S_WS, pWS, WS_SIZE)
    a(f"s_lshl2_add_u32 s{sT}, s{sRB}, s{sTT}")
    a(f"s_mul_i32 s{sG}, s{sCB}, 3")
    a(f"s_lshl1_add_u32 s{sG}, s{sHF}, s{sG}")
    a(f"s_cmp_ge_u32 s{sG}, 32")
    a(f"s_cselect_b32 s{sVAR}, 2, 0")
    a(f"s_add_u32 s{sVAR}, s{sVAR}, s{sHF}")
    a(f"s_lshl_b32 s{sG}, s{sG}, 1")
    a(f"s_lshr_b32 s{T1}, s2, 3")
    a(f"s_and_b32 s{T2}, s{T1}, 3")
    a(f"s_lshl2_add_u32 s{tHEAD}, s{sXCD}, s{T2}")
    a(f"s_lshr_b32 s{tQB}, s{T1}, 2")
    a(f"s_lshl_b32 s{sKV}, s{tHEAD}, 16")
    a(f"s_add_u32 s{sKV}, s{sKV}, s{sLW}")
    a(f"s_add_u32 s{sKV}, s{sKV}, {32 << 16}")
    t4, t6, t7 = WF, WF + 1, WF + 2
    a("v_and_b32 v1, 31, v0")
    a("v_lshrrev_b32 v2, 5, v0")
    a("v_bfe_u32 v3, v0, 1, 3")
    a("v_xor_b32 v3, v3, v2")
    a("v_lshlrev_b32 v3, 4, v3")
    a("v_lshl_add_u32 v3, v1, 7, v3")
    a(f"s_lshl_b32 s{T0}, s{sTT}, 12")
    a(f"v_add_u32 v{XA}, s{T0}, v3")
    for i in range(1, 4):
        a(f"v_xor_b32 v{XA + i}, {32 * i}, v{XA}")
    a("v_bfe_u32 v3, v0, 2, 2")
    a(f"v_lshl_add_u32 v{t4}, v2, 3, v3")
    a(f"v_lshlrev_b32 v{t4}, 7, v{t4}")
    a(f"v_and_b32 v{t7}, 3, v0")
    a(f"v_lshl_add_u32 v{t4}, v{t7}, 3, v{t4}")
    a("v_and_b32 v3, 2, v3")
    a(f"v_bfe_u32 v{t7}, v0, 4, 1")
    a(f"v_xor_b32 v3, v3, v{t7}")
    a(f"s_and_b32 s{T0}, s{sCB}, 1")
    a(f"s_lshl1_add_u32 s{T0}, s{sHF}, s{T0}")
    for t in range(2):
        a(f"s_and_b32 s{T1}, s{T0}, 1")
        a(f"s_lshl_b32 s{T1}, s{T1}, 1")
        a(f"s_lshr_b32 s{T2}, s{T0}, 1")
        a(f"s_lshl_b32 s{T2}, s{T2}, 13")
        a(f"s_add_u32 s{T2}, s{T2}, {BR}")
        a(f"v_xor_b32 v{t6}, s{T1}, v3")
        a(f"v_lshl_add_u32 v{t6}, v{t6}, 5, v{t4}")
        a(f"v_add_u32 v{WQ + t}, s{T2}, v{t6}")
        if t == 0:
            a(f"s_add_u32 s{T0}, s{T0}, 1")
    a(f"v_lshl_add_u32 v{t4}, v{t7}, 13, v{t4}")
    a(f"v_add_u32 v{t4}, {CR}, v{t4}")
    a(f"s_lshl_b32 s{T0}, s{sHF}, 1")
    a(f"v_xor_b32 v{t6}, s{T0}, v3")
    a(f"v_lshl_add_u32 v{WC}, v{t6}, 5, v{t4}")
    a(f"v_xor_b32 v{WC + 1}, 32, v{WC}")
    a(f"v_mov_b32 v{MASK}, 0xffff0000")
    a(f"v_mov_b32 v{ONES}, 0x3f80")
    a(f"s_cmp_eq_u32 s{sISS}, 1")
    a("s_cbranch_scc1 L_side1")
    a([f"s_lshl_b32 s{T0}, s{sW}, 8", f"s_or_b32 s{T0}, s2, s{T0}", f"s_cmp_lg_u32 s{T0}, 32", "s_cbranch_scc1 L_nozero",
       "v_mov_b32 v1, 0", "v_lshlrev_b32 v2, 8, v0", f"buffer_store_dword v1, v2, {sr(S_WS)}, s{sCNT} offen sc1", "L_nozero:"])
    a(dma(1))
    stamp(a, 1)
    for v in range(1, 4):
        a(f"s_cmp_eq_u32 s{sVAR}, {v}")
        a(f"s_cbranch_scc1 L_p1_{v}")
    XOP, RS = XA, 22
    CL, RU, ta, tb, tc = 224, 232, 240, 241, 242
    cs_loads = [[f"s_bitcmp1_b32 s{sRB}, 1", f"s_cselect_b32 s{S_T}, s{pU}, s{pG}", f"s_cselect_b32 s{S_T + 1}, s{pU + 1}, s{pG + 1}",
                 f"s_mov_b32 s{S_T + 2}, 1835008", f"s_mov_b32 s{S_T + 3}, 0x00020000",
                 f"s_lshr_b32 s{T2}, s{sRB}, 2", f"s_lshl3_add_u32 s{T2}, s{T2}, s{sW}", f"s_mul_i32 s{T2}, s{T2}, {16 * 3584}",
                 f"s_and_b32 s{T3}, s{sRB}, 1", f"s_lshl1_add_u32 s{T3}, s{sCF}, s{T3}", f"s_lshl_b32 s{T3}, s{T3}, 7", f"s_add_u32 s{T2}, s{T2}, s{T3}",
                 f"v_lshrrev_b32 v{ta}, 3, v0", f"v_mul_u32_u24 v{ta}, 3584, v{ta}", f"v_and_b32 v{tb}, 7, v0", f"v_lshl_add_u32 v{ta}, v{tb}, 4, v{ta}",
                 f"buffer_load_dwordx4 {vr(CL, 4)}, v{ta}, {sr(S_T)}, s{T2} offen"],
                [f"s_add_u32 s{T2}, s{T2}, {8 * 3584}", f"buffer_load_dwordx4 {vr(CL + 4, 4)}, v{ta}, {sr(S_T)}, s{T2} offen"]]
    SE, DD, RV = 244, 248, 208
    sel = [f"v_and_b32 v{tb}, 15, v0", f"v_and_b32 v{tc}, 1, v0", f"v_lshlrev_b32 v{tc}, 4, v{tc}", f"v_lshlrev_b32 v{tc}, v{tc}, v{ONES}",
           f"v_lshrrev_b32 v{tb}, 1, v{tb}"]
    for i in range(4):
        sel += [[f"v_cmp_eq_u32 vcc, {i}, v{tb}", "s_nop 1", f"v_cndmask_b32 v{SE + i}, 0, v{tc}, vcc"]]
    m16 = lambda c, b_: f"v_mfma_f32_16x16x32_bf16 {vr(DD, 4)}, {vr(SE, 4)}, {vr(b_, 4)}, {c}"
    csv = {4: sel[:5], 5: sel[5:],
           6: [f"v_and_b32 v{tb}, 15, v0", f"v_lshlrev_b32 v{tb}, 5, v{tb}", f"v_lshrrev_b32 v{tc}, 4, v0", f"v_lshl_add_u32 v{tb}, v{tc}, 4, v{tb}",
               [f"s_lshl_b32 s40, s2, 12", f"s_add_u32 s40, s40, {WS_CP}", f"s_lshl_b32 s41, s{sW}, 9", "s_add_u32 s41, s41, s40"]]}
    cs_mm = [m16("0", CL), m16(vr(DD, 4), CL + 4)]
    cs_st = ["s_mov_b32 exec_hi, 0", f"buffer_store_dwordx4 {vr(DD, 4)}, v{tb}, {sr(S_WS)}, s41 offen", "s_mov_b32 exec_hi, -1"]
    cs_l2 = lambda lb: ([f"s_cmp_lg_u32 s{sW}, 0", f"s_cbranch_scc1 {lb}"] +
                        [f"buffer_load_dwordx4 {vr(RV + 4 * i, 4)}, v{L16}, {sr(S_WS)}, s40 offen offset:{1024 * i} sc1" for i in range(4)] + [f"{lb}:"])
    cs_r2 = lambda lb: ([f"s_cmp_lg_u32 s{sW}, 0", f"s_cbranch_scc1 {lb}"] +
                        [f"v_add_f32 v{RV + i}, v{RV + i}, v{RV + 8 + i}" for i in range(8)] +
                        [f"v_add_f32 v{RV + i}, v{RV + i}, v{RV + 4 + i}" for i in range(4)] +
                        [f"v_and_b32 v{ta}, 15, v0", f"v_lshrrev_b32 v{tc}, 4, v0",
                         f"v_permlane16_swap_b32 v{RV}, v{RV + 1}", f"v_permlane16_swap_b32 v{RV + 2}, v{RV + 3}",
                         f"v_add_f32 v{RV}, v{RV}, v{RV + 1}", f"v_add_f32 v{RV + 2}, v{RV + 2}, v{RV + 3}",
                         f"v_lshl_add_u32 v{ta}, v{ta}, 2, v{tc}", f"v_lshlrev_b32 v{ta}, 2, v{ta}",
                         f"v_permlane32_swap_b32 v{RV}, v{RV + 2}", f"v_add_f32 v{RV}, v{RV}, v{RV + 2}",
                         f"s_bfe_u32 s40, s{sRB}, 0x10001", "s_mul_i32 s40, s40, 28", f"s_and_b32 s41, s{sRB}, 1", "s_add_u32 s40, s40, s41",
                         f"s_lshl1_add_u32 s40, s{sCF}, s40", f"s_lshr_b32 s41, s{sRB}, 2", "s_lshl2_add_u32 s40, s40, s41",
                         "s_lshl_b32 s40, s40, 8", f"s_add_u32 s40, s40, {WS_CS}",
                         f"buffer_store_dword v{RV}, v{ta}, {sr(S_WS)}, s40 offen sc1", f"{lb}:"])
    for var in VARS:
        hf, isv, ffn = var & 1, (var >> 1) & 1, var < 4
        nt = 2 - hf
        cnt = lambda S: len(dma(S, ffn))
        a(f"L_p1_{var}:")
        a(f"s_waitcnt vmcnt({cnt(1)})")
        a("s_barrier")
        stamp(a, 2)
        if var == 0:
            a([f"s_lshl_b32 s{T0}, s{sW}, 8", f"s_or_b32 s{T0}, s2, s{T0}", f"s_cmp_lg_u32 s{T0}, 32", "s_cbranch_scc1 L_noflag",
               "v_mov_b32 v2, 0", "v_mov_b32 v3, 1", "s_mov_b64 exec, 1",
               f"global_store_dword v2, v3, s[{pDBG}:{pDBG + 1}] offset:32 sc1", "s_mov_b64 exec, -1", "L_noflag:"])
        a(rd1(0, nt, ffn))
        if not ffn:
            a(rd1(1, nt, ffn))
        bgq = dma(2, ffn) + (cs_loads if ffn else [])
        if "a_l" in OPT and ffn:
            bgq = dma(2, ffn) + [[x.replace(f"s{T2} offen", "s62 offen") for x in g] for g in cs_loads]
        held = []
        sl7 = (7 % 3) * SL
        qrd = lambda h: [f"ds_read_b64_tr_b16 {vr(WF + 16 * h + 8 * q + 4 * t + 2 * t2, 2)}, v{WQ + t} offset:{sl7 + (2 * h + q) * 2048 + t2 * 512}"
                         for q in range(2) for t in range(nt) for t2 in range(2)]
        frd = lambda h: [f"ds_read_b64_tr_b16 {vr(WF + 16 * h + 8 * q + 4 * c + 2 * t2, 2)}, v{WC + c} offset:{sl7 + (2 * h + q) * 2048 + t2 * 512}"
                         for q in range(2) for c in range(2) for t2 in range(2)]
        CK = 5 if ffn else 6
        prep = [f"v_lshlrev_b32 v2, 16, v{STV}", f"v_rcp_f32 v{RS}, v2"]
        for t in range(nt):
            w = CSA + 4 * t
            prep += [f"v_add_f32 v{w}, v{w}, v{w + 1}", f"v_add_f32 v{w + 2}, v{w + 2}, v{w + 3}", f"v_add_f32 v{w + 3}, v{w}, v{w + 2}"] + split3(w, w + 3)
        for k in range(28 if ffn else 32):
            S, ks = k >> 2, k & 3
            F = fset(k, ffn)
            x = XF + 4 * k
            c0 = "0" if k == 0 else None
            big = [mfma(ACQ + 16 * t, x, F + 4 * t, c0) if isv else mfma(ACQ + 16 * t, F + 4 * t, x, c0) for t in range(nt)]
            if ffn:
                big += [mfma(ACF + 16 * c, F + 8 + 4 * c, x, c0) for c in range(2)]
            if not ffn and k % 2 == 0 and k < 30:
                held = big
                continue
            big, held = held + big, []
            val = []
            if ks == 3:
                n = cnt(S + 2) + ({0: 2}.get(S, 0) if ffn else 0)
                a(f"s_waitcnt vmcnt({n}) lgkmcnt(0)")
                if S == CK and not hf: a(cs_check(f"L_c1{var}", 0))
                if S < 7: a("s_barrier")
                if "p1b" in OPT: stamp(a, 4 + S)
                if ffn and S == 1:
                    big = cs_mm + big
                    bgq.append(cs_st)
                if ffn and S == 2 and not hf: bgq.append(cs_l2(f"L_l2{var}"))
                if ffn and S == 3 and not hf: bgq.append(cs_r2(f"L_r2{var}"))
                if S == 3 and not hf:
                    bgq.append([f"s_cmp_lg_u32 s{sW}, 0", f"s_cbranch_scc1 L_nofl{var}", "v_mov_b32 v2, 0",
                                f"global_load_dword v{POLL}, v2, s[{pDBG}:{pDBG + 1}] offset:32 sc1", f"L_nofl{var}:"])
                if S == CK - 1 and not hf:
                    bgq.append(flag_check(f"L_fc{var}") + (sig_one(f"L_sc{var}", [f"s_add_u32 s{T0}, s{sCF}, {C_CS}"]) if ffn else []) +
                               cs_issue(f"L_i1{var}", 0))
                if S == 5:
                    ad = [f"v_and_b32 v{VXS}, 31, v0", f"v_lshlrev_b32 v{VXS}, 2, v{VXS}", "v_lshrrev_b32 v3, 5, v0",
                          f"v_lshl_add_u32 v{VW0}, v3, 10, v{VXS}", f"s_lshl_b32 s{T2}, s{sT}, 7", f"s_add_u32 s{T2}, s{T2}, {WS_ST}"]
                    for t in range(nt):
                        ad += [f"s_add_u32 s{T3}, s{sG}, {2 * t}", f"s_lshr_b32 s{40 + t}, s{T3}, 2", f"s_lshl_b32 s{40 + t}, s{40 + t}, 11",
                               f"s_and_b32 s{T3}, s{T3}, 2", f"s_lshl_b32 s{T3}, s{T3}, 6", f"s_add_u32 s{40 + t}, s{40 + t}, s{T3}",
                               f"s_add_u32 s{40 + t}, s{40 + t}, {WS_CQ}"]
                    bgq.append(ad)
                if S == CK:
                    ld = [f"buffer_load_dword v{STV}, v{VXS}, {sr(S_WS)}, s{T2} offen sc1"]
                    for t in range(nt):
                        ld += [f"buffer_load_dword v{CSA + 4 * t + i}, v{VW0}, {sr(S_WS)}, s{40 + t} offen offset:{256 * i} sc1" for i in range(4)]
                    if isv:
                        ld += [f"s_lshl_b32 s{T3}, s{sW}, 8", f"s_add_u32 m0, s{T3}, {SCR}", f"s_add_u32 s{T2}, s{T2}, {WS_RS - WS_ST}",
                               f"buffer_load_dword v{VXS}, {sr(S_WS)}, s{T2} offen sc1 lds"]
                    bgq += [ld[:5], ld[5:]]
                if S == 6 and ffn:
                    if not hf: bgq.append(poll_issue(f"L_i2{var}", CS_MASK))
                    val = prep
                if S < 7: bgq += dma(S + 3, ffn)
                if S == 5 and isv:
                    bgq.append([f"s_lshl_b32 s{T3}, s{sW}, 8", f"s_add_u32 s{T3}, s{T3}, {SCR}",
                                "v_lshrrev_b32 v3, 5, v0", "v_lshlrev_b32 v18, 4, v3", f"v_add_u32 v18, s{T3}, v18",
                                "v_bfe_u32 v23, v0, 4, 1", "v_lshlrev_b32 v23, 16, v23", "v_lshl_add_u32 v23, v3, 8, v23",
                                "v_and_b32 v3, 15, v0", "v_lshl_add_u32 v23, v3, 4, v23"])
            elif k == 30:
                a("s_waitcnt vmcnt(0) lgkmcnt(0)")
                val = prep
            else:
                a("s_waitcnt lgkmcnt(0)")
            if k == 31:
                break
            if ffn and k in csv: val = csv[k]
            if "a_m" in OPT and k == 7: val = []
            if "a_s" in OPT and k in (4, 5, 6): val = []
            left = 4 if ks == 3 else 3 - ks
            if "front" in OPT and ffn and S * 4 + 3 != 27: left = {3: 3, 0: 2}.get(ks, 1)
            if k == 27: left = 3
            if not ffn: left = 2 if (ks == 3 and S < 6) else 1
            take = -(-len(bgq) // left)
            extra, bgq = bgq[:take], bgq[take:]
            if ffn:
                nxt = rd1(k + 1, nt, ffn) if k < 27 else \
                    [f"ds_read_b128 {vr(XF + 4 * (28 + j), 4)}, v{XA + j} offset:{sl7}" for j in range(4)] + qrd(0)
            else:
                nxt = [] if k == 30 else rd1(k + 1, nt, ffn) + rd1(k + 2, nt, ffn)
            body = spread(big, nxt, val + [[]] * len(extra) + extra)
            a(body)
        pre = [f"v_and_b32 v{XOP}, v{MASK}, v{STV}", f"v_mov_b32 v{XOP + 3}, 0", f"v_mov_b32 v{XOP + 1}, v{XOP}", f"v_mov_b32 v{XOP + 2}, v{XOP}"]
        corr = [mfma(ACQ + 16 * t, XOP, CSA + 4 * t) if isv else mfma(ACQ + 16 * t, CSA + 4 * t, XOP) for t in range(nt)]
        post = [f"s_lshl_b32 s{T4}, s{sG}, 16", f"s_lshl_b32 s{T2}, s{sT}, 10", f"s_add_u32 s{T4}, s{T4}, s{T2}"]

        def stores(t):
            o = ACQ + 16 * t
            if isv:
                return [[f"buffer_store_dwordx4 {vr(o, 4)}, v23, {sr(S_WS)}, s{T4} offen sc1"],
                        [f"buffer_store_dwordx4 {vr(o + 4, 4)}, v23, {sr(S_WS)}, s{T4} offen offset:512 sc1", f"s_add_u32 s{T4}, s{T4}, 0x20000"]]
            return [[f"buffer_store_dwordx4 {vr(o, 4)}, v{L16}, {sr(S_WS)}, s{T4} offen sc1", f"s_add_u32 s{T4}, s{T4}, 0x10000"],
                    [f"buffer_store_dwordx4 {vr(o + 4, 4)}, v{L16}, {sr(S_WS)}, s{T4} offen sc1", f"s_add_u32 s{T4}, s{T4}, 0x10000"]]
        if not ffn:
            assert not bgq
            stamp(a, 3)
            a(big[:1] + pre + ["s_nop 1"] + big[1:nt] + corr + post + ["s_nop 7"])
            for t in range(nt):
                ac = ACQ + 16 * t
                a(f"s_cmp_lt_u32 s{sG}, {32 - 2 * t}")
                a(f"s_cselect_b32 s{T0}, {hx(f2u(QSCALE))}, 1.0")
                a(f"v_mul_f32 v2, s{T0}, v{RS}")
                a(f"v_mul_f32 v3, s{T0}, v{RS}")
                for i in range(8):
                    a(f"v_pk_mul_f32 {vr(ac + 2 * i, 2)}, {vr(ac + 2 * i, 2)}, v[2:3]")
                for i in range(8):
                    a(f"v_cvt_pk_bf16_f32 v{ac + i}, v{ac + 2 * i}, v{ac + 2 * i + 1}")
                a(stores(t))
            stamp(a, 4)
            a("s_branch L_side")
            continue
        qm = lambda h: [mfma(ACQ + 16 * t, XF + 4 * (28 + 2 * h + q), WF + 16 * h + 8 * q + 4 * t) if isv else
                        mfma(ACQ + 16 * t, WF + 16 * h + 8 * q + 4 * t, XF + 4 * (28 + 2 * h + q)) for q in range(2) for t in range(nt)]
        fm = lambda h: [mfma(ACF + 16 * c, WF + 16 * h + 8 * q + 4 * c, XF + 4 * (28 + 2 * h + q)) for q in range(2) for c in range(2)]
        half = -(-len(bgq) // 2)
        a("s_waitcnt lgkmcnt(0)")
        a(spread(qm(0), qrd(1), pre + bgq[:half]))
        a("s_waitcnt lgkmcnt(0)")
        rsv = lambda g: [f"ds_read_b128 {vr(CSA + 4 * j, 4)}, v18 offset:{(2 * g + j) * 32}" for j in range(2)]
        a(corr + (rsv(0) if isv else []))
        a(spread(qm(1), frd(0), [f"v_subrev_u32 v{WQ + c}, {CR - BR}, v{WC + c}" for c in range(2)] + bgq[half:]))
        adr = [["v_bfe_u32 v2, v0, 4, 1", "v_mul_u32_u24 v2, 28672, v2", "v_lshrrev_b32 v3, 5, v0",
                "v_lshl_add_u32 v2, v3, 9, v2", "v_and_b32 v3, 15, v0", f"v_lshl_add_u32 v{VXS}, v3, 2, v2",
                f"s_lshl_b32 s{sVAR}, s{sCF}, 11", f"s_add_u32 s{sVAR}, s{sVAR}, {WS_CS + 128 * hf}"] + post]
        if isv:
            e1, e2 = [], []
            for t in range(nt):
                ac = ACQ + 16 * t
                e1 += [f"v_mul_f32 v{ac + i}, v{ac + i}, v{CSA + i}" for i in range(8)]
                e2 += [f"v_mul_f32 v{ac + 8 + i}, v{ac + 8 + i}, v{CSA + i}" for i in range(8)]
                e2 += [f"v_cvt_pk_bf16_f32 v{ac + i}, v{ac + 2 * i}, v{ac + 2 * i + 1}" for i in range(4, 8)] + (stores(t) if "sp2" in OPT else [])
            e1 += rsv(1)
            for t in range(nt):
                ac = ACQ + 16 * t
                e1 += [f"v_cvt_pk_bf16_f32 v{ac + i}, v{ac + 2 * i}, v{ac + 2 * i + 1}" for i in range(4)]
        else:
            e = []
            for t in range(nt):
                ac = ACQ + 16 * t
                e += [[f"s_cmp_lt_u32 s{sG}, {32 - 2 * t}", f"s_cselect_b32 s{T0}, {hx(f2u(QSCALE))}, 1.0", f"v_mul_f32 v2, s{T0}, v{RS}"]]
                e += [f"v_mul_f32 v{ac + i}, v{ac + i}, v2" for i in range(16)]
                e += [f"v_cvt_pk_bf16_f32 v{ac + i}, v{ac + 2 * i}, v{ac + 2 * i + 1}" for i in range(8)] + (stores(t) if "sp2" in OPT else [])
            e1, e2 = e[:len(e) * 5 // 8], e[len(e) * 5 // 8:]
        a("s_waitcnt lgkmcnt(0)")
        u3 = spread(fm(0), frd(1), adr + e1)
        a(u3)
        a(f"s_waitcnt vmcnt({4 + nvm(u3)}) lgkmcnt(0)")
        if not hf: a(poll_check(f"L_c2{var}", 16))
        a("s_barrier")
        stamp(a, 3)
        c0l = [[f"buffer_load_dword v{r_}, v{VXS}, {sr(S_WS)}, s{sVAR} offen offset:{(i >> 1) * 64 + (i & 1) * 256} sc1"
                for i, r_ in enumerate(C0R)]]
        mix, vm = [], c0l + dma(10)
        for j in range(len(vm)):
            mix += e2[j * len(e2) // len(vm):(j + 1) * len(e2) // len(vm)] + [vm[j]]
        if "sp1" in OPT or "sp2" in OPT:
            mix = c0l + e2
        a(spread(fm(1), rd2(0), mix))
        if "sp2" in OPT:
            assert nvm(flat(e2)) >= 2
        else:
            for t in range(nt):
                a(stores(t))
        if var != 3:
            a("s_branch L_pass2")
    a("L_pass2:")
    if "p1b" in OPT: NOSTAMP = True
    stamp(a, 4)
    sH = sG
    a(f"s_mul_i32 s{sH}, s{sT}, 112")
    a(f"s_lshl2_add_u32 s{T0}, s{sCF}, s{sHF}")
    a(f"s_lshl1_add_u32 s{sH}, s{T0}, s{sH}")
    a(f"s_lshl_b32 s{sH}, s{sH}, 10")
    a(f"s_add_u32 s{sH}, s{sH}, {WS_H}")
    cRS, cSD, cC2, CO, QP = 128, 129, 130, 132, 140
    q = CSA

    def gelu_plain(g, off):
        u = g + 8
        R = range(8)
        return ([f"v_mul_f32 v{g + i}, v{g + i}, v{cRS}" for i in R] + [f"v_mul_f32 v{q + i}, v{g + i}, v{g + i}" for i in R] +
                [f"v_fmaak_f32 v{q + i}, v{q + i}, v{cC2}, {hx(f2u(GC1))}" for i in R] + [f"v_mul_f32 v{q + i}, v{q + i}, v{g + i}" for i in R] +
                [f"v_exp_f32 v{q + i}, v{q + i}" for i in R] + [f"v_mul_f32 v{g + i}, v{g + i}, v{u + i}" for i in R] +
                [f"v_fma_f32 v{q + i}, v{q + i}, v{cSD}, v{cSD}" for i in R] + [f"v_rcp_f32 v{q + i}, v{q + i}" for i in R] +
                [f"v_mul_f32 v{g + i}, v{g + i}, v{q + i}" for i in R] +
                [f"v_cvt_pk_bf16_f32 v{g + i}, v{g + 2 * i}, v{g + 2 * i + 1}" for i in range(4)] +
                [f"buffer_store_dwordx4 {vr(g, 4)}, v{L16}, {sr(S_WS)}, s{sH} offen offset:{off} sc1"])
    vq = []
    wt = lambda at: sum(2 if (x.startswith("v_exp") or x.startswith("v_rcp")) else 1 for x in ([at] if isinstance(at, str) else at))
    cs_ld = lambda dst, pr: [[f"buffer_load_dword v{dst + 4 * c + i}, v{VXS}, {sr(S_WS)}, s{sVAR} offen offset:{1024 * pr + c * 64 + i * 256} sc1"
                              for c in range(2) for i in range(2)]]
    ta = tr_addr(TRA, 2, 3)
    bgq, hist = tr_setup() + [ta + [f"s_lshl_b32 s{T2}, s{sLW}, 1", f"v_add_u32 v{TRA}, s{T2}, v{TRA}", f"v_xor_b32 v{TRA + 1}, 32, v{TRA}"]], []
    if "sp1" in OPT or "sp2" in OPT:
        d = dma(10)
        bgq = [bgq[0], d[0], bgq[1], d[1], d[2], d[3] + bgq[2]]
    after = lambda key: nvm([l for l in hist[len(hist) - hist[::-1].index(key):] if "s62" not in l])
    for u in range(16):
        S, us = 8 + (u >> 2), u & 3
        F = WF + 16 * (u & 1)
        big = [mfma(ACQ + 16 * c, F + 8 * qq + 4 * c, XF + 4 * (2 * u + qq), "0" if (u == 0 and qq == 0) else None)
               for qq in range(2) for c in range(2)]
        allv = nvm([l for l in hist if "s62" not in l])
        if us == 3 or u == SIGU:
            if u == 3 and "sp2" in OPT:
                a("s_waitcnt vmcnt(6) lgkmcnt(0)")
            elif u == 7 and ("sp1" in OPT or "sp2" in OPT):
                a(f"s_waitcnt vmcnt({allv - 4}) lgkmcnt(0)")
            elif u == 3:
                a([f"s_cmp_eq_u32 s{sHF}, 0", "s_cbranch_scc1 L_w8", "s_waitcnt vmcnt(6)", "L_w8:", "s_waitcnt vmcnt(8) lgkmcnt(0)"])
            elif u <= 7:
                a(f"s_waitcnt vmcnt({allv}) lgkmcnt(0)")
            elif S == 10:
                a(f"s_waitcnt vmcnt({after(dma(11)[-1][0]) - 1}) lgkmcnt(0)")
            elif CHK == 10:
                a(f"s_waitcnt vmcnt({after(kv(0)[1][1]) - 1}) lgkmcnt(0)")
            else:
                a("s_waitcnt lgkmcnt(0)")
            if us == 3 and S == CHK:
                a([f"s_cmp_lg_u32 s{sW}, 0", "s_cbranch_scc1 L_w10", f"s_waitcnt vmcnt({after('L_pq:')})", "L_w10:"])
                a(poll_check("L_cq", 32, QP, 4))
            a("s_barrier")
            if "p2b" in OPT and us == 3: stamp(a, S - 2)
            if u == SIGU:
                bgq = [sig_qkv("L_sq")] + bgq
            if u == 3:
                bgq += cs_ld(CO, 1) + tr_dma() + dma(11)
                vq += [f"v_lshlrev_b32 v{cSD}, 16, v{STV}", f"v_mov_b32 v{cC2}, {hx(f2u(GC2))}", f"v_rcp_f32 v{cRS}, v{cSD}"]
                for c in range(2):
                    w = CSA + 4 * c
                    vq += [f"v_add_f32 v{w + 3}, v{C0R[2 * c]}, v{C0R[2 * c + 1]}"] + split3(w, w + 3)
                vq += ["UNIT", mfma(ACF, CSA, XOP), mfma(ACF + 16, CSA + 4, XOP), "UNIT"]
                vq += gelu_plain(ACF, 0) + ([] if "g1" in OPT else gelu_plain(ACF + 16, 1024))
            if us == 3 and S == 10:
                bgq += [tr_rd()]
            if us == 3 and S == CHK - 1:
                bgq += [[]] * (2 - len(bgq)) + [poll_issue("L_pq", QKV_MASK, QP)]
            if us == 3 and S == 10 and CHK == 10:
                bgq += kv(0) + kv(1) + [q_load()] + kv(2)
            if S == 11:
                bgq += kv(3) if CHK == 10 else kv(0) + [q_load()] + kv(1)
                if "prio" in OPT:
                    a("s_setprio 1")
                    a(lead(2))
        else:
            a("s_waitcnt lgkmcnt(0)")
        if u == 12:
            for c in range(2):
                w = CO + 4 * c
                vq += [f"v_add_f32 v{w + 3}, v{w}, v{w + 1}"] + split3(w, w + 3) + [["s_nop 1", mfma(ACQ + 16 * c, w, XOP)]]
            vq += p2_init_v()
        left = 1 if u == 15 else (4 if us == 3 else 3 - us)
        take = -(-len(bgq) // left)
        extra, bgq = bgq[:take], bgq[take:]
        val, budget = [], (1000 if u == 15 else VBUD)
        while vq and vq[0] != "UNIT" and budget > 0:
            budget -= wt(vq[0])
            val.append(vq.pop(0))
        if vq and vq[0] == "UNIT":
            vq.pop(0)
        body = spread(big, rd2(u + 1) if u < 15 else [], val[:len(val) // 2] + extra + val[len(val) // 2:])
        hist += body
        a(body)
    assert not bgq and not vq
    if "p2b" in OPT: NOSTAMP = True
    stamp(a, 5)
    RS2, SD2 = 240, 242
    a(f"v_mov_b32 v{RS2}, v{cRS}")
    a(f"v_mov_b32 v{RS2 + 1}, v{cRS}")
    a(f"v_mov_b32 v{SD2}, v{cSD}")
    a(f"v_mov_b32 v{SD2 + 1}, v{cSD}")
    a(f"v_mov_b32 v248, v{cC2}")
    a(f"v_mov_b32 v249, v{cC2}")
    a(f"v_mov_b32 v250, {hx(f2u(GC1))}")
    a("v_mov_b32 v251, v250")
    if "g1" not in OPT:
        a(f"s_add_u32 s{sH}, s{sH}, 4096")
    a("s_nop 4")
    for c in ((-1, 0, 1) if "g1" in OPT else (0, 1)):
        g = ACQ + 16 * c
        u = g + 8
        q = 32 + (c & 1) * 8
        o = 52 + c * 4
        for i in range(4):
            a(f"v_pk_mul_f32 {vr(g + 2 * i, 2)}, {vr(g + 2 * i, 2)}, {vr(RS2, 2)}")
        for i in range(4):
            a(f"v_pk_mul_f32 {vr(q + 2 * i, 2)}, {vr(g + 2 * i, 2)}, {vr(g + 2 * i, 2)}")
        for i in range(4):
            a(f"v_pk_fma_f32 {vr(q + 2 * i, 2)}, {vr(q + 2 * i, 2)}, v[248:249], v[250:251]")
        for i in range(4):
            a(f"v_pk_mul_f32 {vr(q + 2 * i, 2)}, {vr(q + 2 * i, 2)}, {vr(g + 2 * i, 2)}")
        for i in range(8):
            a(f"v_exp_f32 v{q + i}, v{q + i}")
        for i in range(4):
            a(f"v_pk_mul_f32 {vr(g + 2 * i, 2)}, {vr(g + 2 * i, 2)}, {vr(u + 2 * i, 2)}")
        for i in range(4):
            a(f"v_pk_fma_f32 {vr(q + 2 * i, 2)}, {vr(q + 2 * i, 2)}, {vr(SD2, 2)}, {vr(SD2, 2)}")
        for i in range(8):
            a(f"v_rcp_f32 v{q + i}, v{q + i}")
        a("s_nop 0")
        for i in range(4):
            a(f"v_pk_mul_f32 {vr(g + 2 * i, 2)}, {vr(g + 2 * i, 2)}, {vr(q + 2 * i, 2)}")
        for i in range(4):
            a(f"v_cvt_pk_bf16_f32 v{o + i}, v{g + 2 * i}, v{g + 2 * i + 1}")
        a(f"buffer_store_dwordx4 {vr(o, 4)}, v{L16}, {sr(S_WS)}, s{sH} offen offset:{(c & 1) * 1024} sc1")
        if c < 0:
            a(f"s_add_u32 s{sH}, s{sH}, 4096")
            continue
        if CHK == 11:
            a(kv(2 + c))
        if c == 0:
            a(lead(0))
    a(tr_st())
    a(f"s_waitcnt vmcnt({after(q_load()[-1]) + (4 if CHK == 10 else 8) + (1 if 'g1' in OPT else 0)})")
    if CHK == 11:
        a("s_barrier")


VARS = (0, 4, 5, 1, 2, 3)
VBUD = 20
WK = 8
C0R = (9, 19, 21, 1)
SIGU, CHK = 7, 11


def gen_side(a):
    a("L_side:")
    global NOSTAMP
    NOSTAMP = "side" not in OPT
    a(p2_init_v())
    a("s_waitcnt vmcnt(0)")
    a("s_barrier")
    a(sig_qkv("L_sq2"))
    stamp(a, 10)
    a(sig_one("L_h_ns2", [f"s_add_u32 s{T0}, s{sRB}, {C_H}"]))
    a(poll_issue("L_pq2", QKV_MASK))
    a("s_waitcnt vmcnt(0)")
    a(poll_check("L_cq2", 32, POLL, 6))
    a("s_barrier")
    a(kv(0))
    a(q_load())
    a(kv(1))
    a("s_waitcnt vmcnt(2)")
    a("s_barrier")
    a(kv(2))
    a(kv(3))
    if "prio" in OPT:
        a("s_setprio 1")
        a(lead(2))
    a("s_branch L_p2")
    a("L_side1:")
    XW, QW, CW = 32, 64, 128
    LO, HI, ON = 18, 19, 22
    a("v_lshrrev_b32 v1, 3, v0")
    a("v_and_b32 v2, 7, v0")
    a("v_lshlrev_b32 v2, 4, v2")
    a("v_lshl_add_u32 v3, v1, 10, v2")
    a(f"s_lshl3_add_u32 s{tVM + 1}, s2, s{sW}")
    a(f"s_lshl_b32 s{T0}, s{tVM + 1}, 13")
    for q in range(8):
        a(f"buffer_load_dwordx4 {vr(XW + 4 * q, 4)}, v3, {sr(S_X)}, s{T0} offen offset:{128 * q}")
    sU = sVAR
    a(f"s_and_b32 s{sU}, s{sRB}, 3")
    a(f"s_lshl3_add_u32 s{sU}, s{sU}, s{sW}")
    a(f"s_sub_u32 s{T1}, 31, s{sU}")
    a(f"s_lshl3_add_u32 s41, s{T1}, s{sXCD}")
    a("s_lshl_b32 s41, s41, 8")
    a(f"s_add_u32 s41, s41, {WS_CQ}")
    a(f"s_lshl_b32 s{T0}, s{T1}, 7")
    a(f"s_mul_i32 s{T2}, s{sXCD}, {64 * 3072}")
    a(f"s_add_u32 s{T0}, s{T0}, s{T2}")
    a(f"s_cmp_lt_u32 s{T1}, 24")
    a(f"s_cselect_b32 s{T0}, s{T0}, {OOB}")
    a(f"s_cselect_b32 s41, s41, {OOB}")
    a("v_mul_u32_u24 v3, 3072, v1")
    a("v_add_u32 v3, v3, v2")
    for q in range(8):
        a(f"buffer_load_dwordx4 {vr(QW + 4 * q, 4)}, v3, {sr(S_W0)}, s{T0} offen")
        if q != 7:
            a(f"s_add_u32 s{T0}, s{T0}, {8 * 3072}")
    a(f"v_mov_b32 v{LO}, 0x00003f80")
    a(f"v_mov_b32 v{HI}, 0x3f800000")
    a(f"v_mov_b32 v{ON}, 0x3f803f80")
    RU = 96
    for i in range(0, 28, 2):
        a(f"v_mov_b64 v[{RU + i}:{RU + i + 1}], 0")
    a(["v_and_b32 v2, 8, v0", "v_cmp_eq_u32 vcc, 0, v2", f"v_and_b32 v{POLL}, 7, v0", f"v_lshlrev_b32 v{POLL}, 3, v{POLL}",
       "v_lshrrev_b32 v3, 4, v0", f"v_add_u32 v{POLL}, v{POLL}, v3", "v_lshrrev_b32 v2, 1, v2", f"v_add_u32 v{POLL}, v{POLL}, v2",
       f"v_lshlrev_b32 v{POLL}, 2, v{POLL}"])
    stamp(a, 8)
    m, v_ = RU + 24, RU + 25
    for q in range(8):
        a(f"s_waitcnt vmcnt({15 - q})")
        for i in range(4):
            a(f"v_dot2c_f32_bf16 v{m + 2 * (i & 1)}, v{XW + 4 * q + i}, v{ON}")
            a(f"v_dot2c_f32_bf16 v{v_ + 2 * (i & 1)}, v{XW + 4 * q + i}, v{XW + 4 * q + i}")
    a("s_nop 2")
    a(f"v_add_f32 v{m}, v{m}, v{m + 2}")
    a(f"v_add_f32 v{v_}, v{v_}, v{v_ + 2}")
    for md in ("quad_perm:[1,0,3,2]", "quad_perm:[2,3,0,1]", "row_half_mirror"):
        a("s_nop 0")
        a(f"v_add_f32_dpp v{m}, v{m}, v{m} {md} row_mask:0xf bank_mask:0xf")
        a(f"v_add_f32_dpp v{v_}, v{v_}, v{v_} {md} row_mask:0xf bank_mask:0xf")
    a([f"v_mul_f32 v{m}, {hx(f2u(-1.0 / 512))}, v{m}", f"v_mul_f32 v{v_}, {hx(f2u(1.0 / 512))}, v{v_}",
       f"v_fma_f32 v{v_}, -v{m}, v{m}, v{v_}", f"v_max_f32 v{v_}, 0, v{v_}",
       f"v_cvt_pk_bf16_f32 v{v_}, v{v_}, v{v_}", f"v_and_b32 v{v_}, v{MASK}, v{v_}",
       f"v_add_f32 v{v_}, {hx(f2u(1e-5))}, v{v_}",
       f"v_cvt_pk_bf16_f32 v{v_}, v{v_}, v{v_}", f"v_and_b32 v{v_}, v{MASK}, v{v_}",
       f"v_sqrt_f32 v{v_}, v{v_}", "v_lshlrev_b32 v1, 2, v1",
       f"v_cvt_pk_bf16_f32 v{m}, v{v_}, v{m}",
       f"v_lshlrev_b32 v{v_}, 16, v{m}", f"v_rcp_f32 v{v_}, v{v_}",
       f"s_lshl_b32 s{T0}, s{tVM + 1}, 5", f"s_add_u32 s{T0}, s{T0}, {WS_ST}", f"s_add_u32 s{T1}, s{T0}, {WS_RS - WS_ST}",
       f"s_mov_b32 exec_lo, 0x01010101", "s_mov_b32 exec_hi, 0x01010101",
       f"buffer_store_dword v{m}, v1, {sr(S_WS)}, s{T0} offen sc1",
       f"buffer_store_dword v{v_}, v1, {sr(S_WS)}, s{T1} offen sc1", "s_mov_b64 exec, -1"])

    def colsum(src, n, acc, behind):
        for q in range(n):
            a(f"s_waitcnt vmcnt({n - 1 - q + behind})")
            for i in range(4):
                a(f"v_dot2c_f32_bf16 v{acc + 2 * i}, v{src + 4 * q + i}, v{LO}")
                a(f"v_dot2c_f32_bf16 v{acc + 2 * i + 1}, v{src + 4 * q + i}, v{HI}")
        a("s_nop 2")
        for i in range(4):
            a(f"v_permlane16_swap_b32 v{acc + 2 * i}, v{acc + 2 * i + 1}")
        for i in range(4):
            a(f"v_add_f32 v{acc + 2 * i}, v{acc + 2 * i}, v{acc + 2 * i + 1}")
        a(["s_nop 1", f"v_permlane32_swap_b32 v{acc}, v{acc + 2}", f"v_permlane32_swap_b32 v{acc + 4}, v{acc + 6}",
           f"v_add_f32 v{acc}, v{acc}, v{acc + 2}", f"v_add_f32 v{acc + 4}, v{acc + 4}, v{acc + 6}", "s_nop 1",
           f"v_add_f32_dpp v{acc}, v{acc}, v{acc} row_ror:8 row_mask:0xf bank_mask:0xf",
           f"v_add_f32_dpp v{acc + 4}, v{acc + 4}, v{acc + 4} row_ror:8 row_mask:0xf bank_mask:0xf",
           f"v_cndmask_b32 v{acc + 1}, v{acc + 4}, v{acc}, vcc"])
    colsum(QW, 8, RU, 2)
    a(f"buffer_store_dword v{RU + 1}, v{POLL}, {sr(S_WS)}, s41 offen sc1")
    a(dma(0, False))
    a("s_waitcnt vmcnt(4)")
    a("s_barrier")
    a(cs_signal("L_scs0", 0))
    stamp(a, 12)
    a(dma(1, False))
    stamp(a, 9)
    a(f"s_cmp_eq_u32 s{sHF}, 0")
    a("s_cbranch_scc1 L_p1_4")
    a("s_branch L_p1_5")


def att_step(i, ex=None, first=False):
    ex = ex or {}
    Sc, Sn = (S0, S1) if i % 2 == 0 else (S1, S0)
    Kn = K_ + 4 * ((i + 1) % 2)
    Vc = V_ + 8 * (i % 4)
    Vp = V_ + 8 * ((i - 1) % 4)
    e = lambda k: f"v_exp_f32 v{Sc + k}, v{Sc + k}"
    c = lambda k: f"v_cvt_pk_bf16_f32 v{P_ + k}, v{Sc + 2 * k}, v{Sc + 2 * k + 1}"
    r = [mfma(Sn, Kn, Q_, NM),
         f"ds_read_b128 {vr(Kn, 4)}, v{AK} offset:{(i + 3) * 2048}"]
    r += ex.get("qk", [])
    r += [e(0), e(1), e(2), e(3)]
    if not first:
        r.append(mfma(O_, Vp + 4, P_ + 4))
    if i % 2 == 0:
        r.append(f"s_mov_b64 exec, s[{tVM}:{tVM + 1}]")
        for d in (2, 3):
            vb = V_ + 8 * ((i + d) % 4)
            r.append(f"ds_read_b128 {vr(vb, 4)}, v{AV} offset:{(i + d) * 2048}")
            r.append(f"ds_read_b128 {vr(vb + 4, 4)}, v{AV} offset:{(i + d) * 2048 + 512}")
        r.append("s_mov_b64 exec, -1")
    r += ex.get("pv1", [])
    if "G2" in ex:
        r += [c(0), e(4), e(5), c(1)]
        r += [ex["G1"]] + ex.get("g1", [])
        r += [e(6), e(7), e(8), c(2), c(3), e(9)]
        r += ["s_nop 0", mfma(O_, Vc, P_)]
        if i % 2 == 1: r.append("s_waitcnt lgkmcnt(0)")
        r += ex.get("pv0", [])
        r += [e(10), e(11), c(4), e(12), c(5)]
        r += [ex["G2"]] + ex.get("g2", [])
        r += [e(13), e(14), e(15), c(6), c(7)]
    else:
        r += [c(0), e(4), e(5), c(1), e(6), e(7)]
        if "G1" in ex:
            r += [ex["G1"]]
        r += ex.get("g1", [])
        r += [e(8), c(2), c(3), e(9), e(10), e(11)]
        r.append(mfma(O_, Vc, P_, "0" if first else None))
        if i % 2 == 1: r.append("s_waitcnt lgkmcnt(0)")
        r += ex.get("pv0", [])
        r += [c(4), e(12), e(13), c(5), e(14), e(15), c(6), c(7)]
    r += ex.get("end", [])
    return r


def ring_loads(r):
    b = RING + 16 * r
    return [f"buffer_load_dwordx4 {vr(b, 4)}, v{A16}, {sr(R_H0)}, s{tFH} offen sc1",
            f"buffer_load_dwordx4 {vr(b + 4, 4)}, v{A16}, {sr(R_H1)}, s{tFH} offen sc1",
            f"buffer_load_dwordx4 {vr(b + 8, 4)}, v{A16}, {sr(R_WT)}, s{tFW} offen sc1",
            f"buffer_load_dwordx4 {vr(b + 12, 4)}, v{A16}, {sr(R_WT)}, s{tFW} offen offset:1024 sc1",
            f"s_add_u32 s{tFH}, s{tFH}, 1024",
            f"s_add_u32 s{tFW}, s{tFW}, 2048"]


def gm(r, n):
    b = RING + 16 * r
    return mfma(G_ + 16 * n, b + 8 + 4 * (n & 1), b + 4 * (n >> 1))


_pl = [0]
PC = (2, 6)
PD = 7
PG = 2


def lead(p, cond=None):
    if "prio" not in OPT:
        return []
    _pl[0] += 1
    lb = f"L_pr{_pl[0]}"
    c = [f"s_cmp_lt_u32 s{sW}, 4"] if cond is None else cond
    return c + [f"s_cbranch_scc0 {lb}", f"s_setprio {p}", f"{lb}:"]


def adv(a):
    a(f"v_add_u32 v{AK}, 0x4000, v{AK}")
    a(f"v_add_u32 v{AV}, 0x4000, v{AV}")


def gen_p2(a):
    a("L_p2:")
    if ENC == 99:
        a(["s_lshr_b32 s76, s2, 3", f"s_lshl3_add_u32 s76, s76, s{sW}", "s_cmp_lg_u32 s76, 32", "s_cbranch_scc1 L_nosk",
           "s_not_b32 s76, s80", "v_mov_b32 v1, 0", "v_mov_b32 v2, s76", "s_mov_b64 exec, 1",
           f"global_atomic_umax v1, v2, s[{pDBG}:{pDBG + 1}] offset:240 sc1", "s_mov_b64 exec, -1", "L_nosk:"])
    stamp(a, 6)
    a(f"v_mov_b32 v{A16}, v{L16}")
    a(f"v_mov_b32 v{AK}, v{L16}")
    a("v_lshrrev_b32 v2, 5, v0")
    a("v_and_b32 v3, 15, v0")
    a("v_lshlrev_b32 v3, 4, v3")
    a("v_lshl_add_u32 v3, v2, 8, v3")
    a(f"v_add_u32 v{AV}, 1024, v3")
    a(f"s_mov_b32 s{tVM}, 0x0000ffff")
    a(f"s_mov_b32 s{tVM + 1}, 0x0000ffff")
    a(f"ds_read_b128 {vr(K_, 4)}, v{AK}")
    a(f"ds_read_b128 {vr(K_ + 4, 4)}, v{AK} offset:2048")
    a(f"s_mov_b64 exec, s[{tVM}:{tVM + 1}]")
    for d in range(2):
        a(f"ds_read_b128 {vr(V_ + 8 * d, 4)}, v{AV} offset:{d * 2048}")
        a(f"ds_read_b128 {vr(V_ + 8 * d + 4, 4)}, v{AV} offset:{d * 2048 + 512}")
    a("s_mov_b64 exec, -1")
    a(f"s_lshr_b32 s{T0}, s{sW}, 2")
    a(f"s_lshl1_add_u32 s{tTT}, s{tHEAD}, s{T0}")
    a(f"s_lshl_b32 s{T0}, s{tTT}, 15")
    a(f"s_lshl_b32 s{T1}, s{tQB}, 7")
    a(f"s_add_u32 s{T0}, s{T0}, s{T1}")
    a(f"s_and_b32 s{T1}, s{sW}, 3")
    a(f"s_lshl4_add_u32 s{T0}, s{T1}, s{T0}")
    a("v_and_b32 v1, 31, v0")
    a("v_lshlrev_b32 v1, 10, v1")
    a("v_lshl_add_u32 v1, v2, 6, v1")
    a(f"v_add_u32 v{AOUT}, s{T0}, v1")
    a("s_waitcnt lgkmcnt(4)")
    a(mfma(S0, K_, Q_, "0"))
    a(mfma(S1, K_ + 4, Q_, "0"))
    a(f"s_mul_i32 s{T0}, s{tHEAD}, {224 * 1024}")
    a(f"s_add_u32 s{T0}, s{T0}, {WS_H}")
    a(f"s_add_u32 s{R_H0}, s{pWS}, s{T0}")
    a(f"s_addc_u32 s{R_H0 + 1}, s{pWS + 1}, 0")
    a(f"s_add_u32 s{R_H1}, s{R_H0}, {112 * 1024}")
    a(f"s_addc_u32 s{R_H1 + 1}, s{R_H0 + 1}, 0")
    a(f"s_mul_i32 s{tFH}, s{sW}, {14 * 1024}")
    a(f"s_add_u32 s{R_H0 + 2}, s{tFH}, {14 * 1024}")
    a(f"s_mov_b32 s{R_H1 + 2}, s{R_H0 + 2}")
    a(f"s_mul_i32 s{T0}, s{tQB}, {144 * 2048}")
    a(f"s_add_u32 s{T0}, s{T0}, {WS_WT}")
    a(f"s_add_u32 s{R_WT}, s{pWS}, s{T0}")
    a(f"s_addc_u32 s{R_WT + 1}, s{pWS + 1}, 0")
    a(f"s_lshl_b32 s{tFW}, s{tFH}, 1")
    a(f"s_lshl_b32 s{R_WT + 2}, s{R_H0 + 2}, 1")
    a(f"v_max3_f32 v1, v{S0}, v{S0 + 1}, v{S0 + 2}")
    for i in range(3, 31, 2):
        a(f"v_max3_f32 v1, v1, v{S0 + i}, v{S0 + i + 1}")
    a(f"v_max_f32 v1, v1, v{S0 + 31}")
    a("v_mov_b32 v2, v1")
    a("s_nop 1")
    a("v_permlane32_swap_b32 v1, v2")
    a("v_max_f32 v1, v1, v2")
    a(f"v_sub_f32 v2, {hx(f2u(-MAXOFF))}, v1")
    a("v_mov_b32 v3, v2")
    for i in range(0, 16, 2):
        a(f"v_mov_b64 v[{NM + i}:{NM + i + 1}], v[2:3]")
    a("s_nop 1")
    a(mfma(S0, K_, Q_, NM))
    a(f"ds_read_b128 {vr(K_, 4)}, v{AK} offset:4096")
    srd(a, R_OUT, pOUT, 2097152)
    a(f"s_lshl_b32 s{T0}, s{sW}, 11")
    a(f"v_add_u32 v{AW}, s{T0}, v{A16}")
    a(f"v_add_u32 v{AW + 1}, 0x10000, v{AW}")
    a(f"v_add_u32 v{AW + 2}, 0x20000, v{AW}")
    a("s_waitcnt lgkmcnt(0)")
    a("s_nop 1")
    a(lead(2))
    stamp(a, 7)
    global NOSTAMP
    if "side" in OPT: NOSTAMP = True
    for i in range(8):
        ex = {}
        if i == 4:
            d1, d2 = (stampl(1), stampl(2)) if "p3b" in OPT else ([], [])
            ex["end"] = d1 + ["s_waitcnt vmcnt(0)", "s_barrier"] + d2 + sig_one("L_h_ns", [f"s_add_u32 s{T0}, s{sRB}, {C_H}"], True) + lead(2)
        if i == 3:
            ex["pv0"] = lead(0)
        if i >= 5:
            ex["pv1"], ex["pv0"] = kv(i - 1, A16)
        a(att_step(i, ex, first=(i == 0)))
    adv(a)
    for i in range(8):
        ex = {}
        if i == 0:
            ex["pv1"], ex["pv0"] = kv(7, A16)
            ex["qk"] = [f"v_mov_b64 v[{RING}:{RING + 1}], 0", f"v_mov_b64 v[{RING + 2}:{RING + 3}], 0"]
        if i < 4:
            ex["G1"] = mfma(G_ + 16 * i, RING, RING, "0")
        if i == 3:
            ex["pv0"] = poll_issue("L_h_np", H_MASK, 7) + lead(0)
        if i == 4:
            d1, d2 = (stampl(3), stampl(4)) if "p3b" in OPT else ([], [])
            ex["end"] = d1 + ["s_waitcnt vmcnt(0)"] + poll_check("L_ch", 16, 7, 16) + ["s_barrier"] + d2 + lead(2)
        if i in (5, 6, 7):
            l = ring_loads(i - 5)
            ex["qk"] = l[0:1]
            ex["pv1"] = l[1:3]
            ex["pv0"] = l[3:6]
        a(att_step(i, ex))
    stamp(a, 8)
    a(f"s_mov_b32 s{tIT}, 5")
    a(f"s_lshr_b32 s{sG}, s{sW}, 2")
    a(f"s_lshl_b32 s{sG}, s{sG}, 4")
    a(f"s_add_u32 s{sG}, s{sG}, {PC[0]}")
    a("L_loop:")
    adv(a)
    plan = [[(0, 0)], [(0, 1), (0, 2)], [(0, 3)], [(1, 0), (1, 1)], [(1, 2)], [(1, 3), (2, 0)], [(2, 1)], [(2, 2), (2, 3)]]
    for i in range(8):
        ex = {}
        ex["G1"] = gm(*plan[i][0])
        if len(plan[i]) > 1:
            ex["G2"] = gm(*plan[i][1])
        if i == 0: ex["qk"] = ["s_waitcnt vmcnt(8)"]
        if i == PC[1]: ex["end"] = lead(0, [f"s_cmp_eq_u32 s{tIT}, s{sG}"])
        if i == 2:
            l = ring_loads(0)
            ex["g1"] = l[0:2]
            ex["pv0"] = l[2:6]
        if i == 3: ex["pv1"] = ["s_waitcnt vmcnt(8)"]
        if i == 5:
            l = ring_loads(1)
            ex["g1"] = l[0:2]
            ex["pv0"] = l[2:6] + ["s_waitcnt vmcnt(8)"]
        if i == 7:
            ex["g2"] = ring_loads(2)
        a(att_step(i, ex))
    a(f"s_sub_u32 s{tIT}, s{tIT}, 1")
    a(f"s_cmp_lg_u32 s{tIT}, 0")
    a("s_cbranch_scc1 L_loop")
    adv(a)
    a(f"s_and_b32 s{tFW}, s{sW}, 3")
    a(f"s_lshl_b32 s{tFW}, s{tFW}, 14")
    a(f"s_add_u32 s{tFW}, s{tFW}, {112 * 2048}")
    a(f"s_mov_b32 s{R_WT + 2}, {144 * 2048}")
    if "p3b" in OPT: stamp(a, 5)
    a("s_barrier")
    if "p3b" in OPT: stamp(a, 6)
    a(lead(2))

    def pw(o):
        base, off = (AW, o * 16384) if o < 4 else ((AW + 1, (o - 4) * 16384) if o < 6 else (AW + 2, (o - 6) * 16384))
        return [f"ds_write_b128 v{base}, {vr(G_ + 8 * o, 4)} offset:{off}",
                f"ds_write_b128 v{base}, {vr(G_ + 8 * o + 4, 4)} offset:{off + 1024}"]

    XV = 244
    wreg = lambda i: RING + 4 * i if i < 12 else NM + 4 * (i - 12)

    def wol(g):
        return [f"buffer_load_dwordx4 {vr(wreg(4 * g + q), 4)}, v{A16}, {sr(R_WT)}, s{tFW} offen offset:{q * 1024} sc1" for q in range(4)] + \
               [f"s_add_u32 s{tFW}, s{tFW}, 4096"]
    for i in range(8):
        ex = {}
        if i == 0: ex["pv0"] = [f"buffer_load_dwordx4 {vr(XV, 4)}, v{AOUT}, {sr(S_X)}, 0 offen"]
        if i in (1, 3, 5): ex["pv1"], ex["g1"] = wol(i // 2)[:1], wol(i // 2)[1:2]
        if i in (2, 4, 6): ex["g1"], ex["pv0"] = wol(i // 2 - 1)[2:3], wol(i // 2 - 1)[3:]
        if i == PD: ex["end"] = lead(0)
        a(att_step(i, ex))
    a("s_nop 1")
    a(mfma(O_, V_ + 24 + 4, P_ + 4))
    a(f"s_lshl_b32 s{T0}, s{tQB}, 3")
    a(f"s_add_u32 s{T0}, s{T0}, s{sW}")
    a(f"s_lshl_b32 s{T0}, s{T0}, 5")
    a(f"s_add_u32 s{T0}, s{T0}, s{tHEAD}")
    a(f"s_lshl_b32 s{T0}, s{T0}, 10")
    a(f"s_add_u32 s{T3}, s{T0}, {WS_O}")
    a(f"v_mov_b32 v2, {hx(f2u(2.0 ** 120))}")
    a(f"v_mov_b32 v3, {hx(f2u(2.0 ** -90))}")
    a("s_waitcnt lgkmcnt(0)")
    a("s_nop 3")
    stamp(a, 9)
    a(f"v_add_f32 v1, |v{O_}|, |v{O_ + 1}|")
    for i in range(2, 8):
        a(f"v_add_f32 v1, v1, |v{O_ + i}|")
    a(f"v_cmp_lt_f32 s[40:41], v{O_ + 8}, v2")
    a("v_cmp_lt_f32 s[42:43], v1, v2")
    a(f"v_cmp_le_f32 s[50:51], 0.5, v{O_ + 8}")
    a("v_cmp_le_f32 vcc, v3, v1")
    a("s_or_b64 s[50:51], s[50:51], vcc")
    a("s_and_b64 s[40:41], s[40:41], s[42:43]")
    a("s_and_b64 s[40:41], s[40:41], s[50:51]")
    a("s_cmp_eq_u64 s[40:41], -1")
    a("s_cbranch_scc0 L_fallback")
    a("L_norm:")
    a(f"v_rcp_f32 v2, v{O_ + 8}")
    a("s_nop 0")
    for i in range(8):
        a(f"v_mul_f32 v{O_ + i}, v{O_ + i}, v2")
    for i in range(4):
        a(f"v_cvt_pk_bf16_f32 v{4 + i}, v{O_ + 2 * i}, v{O_ + 2 * i + 1}")
    a(f"buffer_store_dwordx4 v[4:7], v{A16}, {sr(S_WS)}, s{T3} offen sc1")
    a(wol(3)[:4])
    for o in range(8):
        a(pw(o))
    a(f"s_lshl_b32 s{T0}, s{sW}, 14")
    a(f"s_add_u32 s{T1}, s{T0}, 0x8000")
    a(f"s_cmp_lt_u32 s{sW}, 6")
    a(f"s_cselect_b32 s{T0}, s{T0}, s{T1}")
    a(f"v_add_u32 v3, s{T0}, v{A16}")
    a("s_waitcnt vmcnt(4) lgkmcnt(0)")
    a("s_barrier")
    stamp(a, 10)
    a(f"s_cmp_lg_u32 s{sW}, 0")
    a("s_cbranch_scc1 L_o_ns")
    a(f"s_lshl_b32 s{T0}, s{tQB}, 8")
    a(f"s_add_u32 s{T0}, s{T0}, {WS_CNT + C_O * 256}")
    a("v_mov_b32 v1, 1")
    a("s_mov_b64 exec, 1")
    a(f"buffer_atomic_add v1, off, {sr(S_WS)}, s{T0} sc1")
    a("s_mov_b64 exec, -1")
    a("L_o_ns:")
    F_ = G_
    for s in range(8):
        for i in range(2):
            a(f"ds_read_b128 {vr(F_ + 8 * s + 4 * i, 4)}, v3 offset:{(s * 2 + i) * 1024}")
        if s == 6:
            a("s_waitcnt lgkmcnt(10)")
    for s in range(1, 8):
        a(f"s_waitcnt lgkmcnt({2 * (7 - s)})")
        for i in range(4):
            a(f"v_pk_add_f32 {vr(F_ + 2 * i, 2)}, {vr(F_ + 2 * i, 2)}, {vr(F_ + 8 * s + 2 * i, 2)}")
    T_ = F_ + 8
    a(f"v_mov_b32 v4, {hx(f2u(-LOG2E))}")
    for i in range(8):
        a(f"v_mul_f32 v{T_ + i}, v{F_ + i}, v4")
    for i in range(8):
        a(f"v_exp_f32 v{T_ + i}, v{T_ + i}")
    a("s_nop 0")
    for i in range(8):
        a(f"v_add_f32 v{T_ + i}, 1.0, v{T_ + i}")
    for i in range(8):
        a(f"v_rcp_f32 v{T_ + i}, v{T_ + i}")
    a("s_nop 0")
    for i in range(4):
        a(f"v_pk_mul_f32 {vr(F_ + 2 * i, 2)}, {vr(F_ + 2 * i, 2)}, {vr(T_ + 2 * i, 2)}")
    XU = G_ + 16
    for i in range(4):
        a(f"v_lshlrev_b32 v{XU + 2 * i}, 16, v{XV + i}")
        a(f"v_and_b32 v{XU + 2 * i + 1}, 0xffff0000, v{XV + i}")
    a(f"s_lshr_b32 s{T0}, s{sW}, 2")
    a(f"s_lshl_b32 s{T0}, s{T0}, 15")
    a(f"s_and_b32 s{T1}, s{sW}, 3")
    a(f"s_lshl_b32 s{T2}, s{T1}, 11")
    a(f"s_add_u32 s{T0}, s{T0}, s{T2}")
    a(f"v_add_u32 v1, s{T0}, v{A16}")
    a(f"s_lshl_b32 s{T0}, s{sW}, 13")
    a(f"v_add_u32 v3, s{T0}, v{A16}")
    a(f"s_lshl_b32 s{T0}, s{tTT}, 5")
    a(f"s_lshl_b32 s{T1}, s{T1}, 3")
    a(f"s_add_u32 s{T0}, s{T0}, s{T1}")
    a(f"s_lshl_b32 s{T0}, s{T0}, 10")
    a(f"s_add_u32 s{T2}, s{T0}, {WS_O}")
    a(f"s_add_u32 s{T3}, s{T2}, 4096")
    stamp(a, 11)
    a(f"s_cmp_lg_u32 s{sW}, 0")
    a("s_cbranch_scc1 L_o_ok")
    a(f"s_lshl_b32 s{T0}, s{sXCD}, 8")
    a(f"s_add_u32 s{T0}, s{T0}, {WS_CNT + C_O * 256}")
    a(f"s_mov_b32 s{T1}, {SPIN}")
    a("L_o_poll:")
    a(f"buffer_load_dword v4, off, {sr(S_WS)}, s{T0} sc1")
    a("s_waitcnt vmcnt(0)")
    a("v_readfirstlane_b32 s40, v4")
    a("s_cmp_ge_u32 s40, 32")
    a("s_cbranch_scc1 L_o_ok")
    a(f"s_sub_u32 s{T1}, s{T1}, 1")
    a(f"s_cmp_lg_u32 s{T1}, 0")
    a("s_cbranch_scc1 L_o_poll")
    a("L_o_ok:")
    a("s_barrier")
    stamp(a, 12)
    OF = S0
    SA = V_
    for j in range(8):
        so = T2 if j < 4 else T3
        a(f"buffer_load_dwordx4 {vr(OF + 4 * j, 4)}, v{A16}, {sr(S_WS)}, s{so} offen offset:{(j % 4) * 1024} sc1")
    for j in range(8):
        a(f"s_waitcnt vmcnt({7 - j})")
        for ap in range(2):
            a(mfma(SA + 16 * ap, wreg(2 * j + ap), OF + 4 * j, "0" if j == 0 else None))
    stamp(a, 13)
    a("s_nop 11")
    for o in range(4):
        for i in range(2):
            a(f"ds_write_b128 v1, {vr(SA + 8 * o + 4 * i, 4)} offset:{o * 8192 + i * 1024}")
    a("s_waitcnt lgkmcnt(0)")
    a("s_barrier")
    for s in range(4):
        for i in range(2):
            a(f"ds_read_b128 {vr(SA + 8 * s + 4 * i, 4)}, v3 offset:{(s * 2 + i) * 1024}")
    for s in range(1, 4):
        a(f"s_waitcnt lgkmcnt({2 * (3 - s)})")
        for i in range(4):
            a(f"v_pk_add_f32 {vr(SA + 2 * i, 2)}, {vr(SA + 2 * i, 2)}, {vr(SA + 8 * s + 2 * i, 2)}")
    for i in range(4):
        a(f"v_pk_fma_f32 {vr(XU + 2 * i, 2)}, {vr(SA + 2 * i, 2)}, {vr(F_ + 2 * i, 2)}, {vr(XU + 2 * i, 2)}")
    for i in range(4):
        a(f"v_cvt_pk_bf16_f32 v{4 + i}, v{XU + 2 * i}, v{XU + 2 * i + 1}")
    fl = " sc1" if "osc1" in OPT else (" nt" if "ont" in OPT else (" sc0 sc1" if "osc01" in OPT else ""))
    a(f"buffer_store_dwordx4 v[4:7], v{AOUT}, {sr(R_OUT)}, 0 offen{fl}")
    stamp(a, 14)
    stamp_flush(a)
    a("L_exit:")
    a("s_endpgm")
    a("L_fallback:")
    a(f"s_lshl_b32 s{T0}, s{tHEAD}, 16")
    a(f"s_add_u32 s{T0}, s{T0}, {32 << 16}")
    a(f"s_mov_b32 s{T1}, 0")
    a("v_mov_b32 v1, 0xff800000")
    a("L_fb1:")
    a(f"s_add_u32 s{T2}, s{T0}, s{T1}")
    a(f"buffer_load_dwordx4 {vr(K_, 4)}, v{A16}, {sr(S_WS)}, s{T2} offen sc1")
    a("s_waitcnt vmcnt(0)")
    a(mfma(S0, K_, Q_, "0"))
    a("s_nop 15")
    for i in range(0, 16, 2):
        a(f"v_max3_f32 v1, v1, v{S0 + i}, v{S0 + i + 1}")
    a(f"s_add_u32 s{T1}, s{T1}, 1024")
    a(f"s_cmp_lt_u32 s{T1}, 65536")
    a("s_cbranch_scc1 L_fb1")
    a("v_mov_b32 v2, v1")
    a("s_nop 1")
    a("v_permlane32_swap_b32 v1, v2")
    a("v_max_f32 v1, v1, v2")
    a("v_sub_f32 v1, 0, v1")
    for i in range(16):
        a(f"v_mov_b32 v{NM + i}, v1")
    for i in range(16):
        a(f"v_mov_b32 v{O_ + i}, 0")
    a("v_lshrrev_b32 v2, 5, v0")
    a("v_and_b32 v3, 15, v0")
    a("v_lshlrev_b32 v3, 4, v3")
    a("v_lshl_add_u32 v3, v2, 8, v3")
    a(f"s_mov_b32 s{T1}, 0")
    a("L_fb2:")
    a(f"s_add_u32 s{T2}, s{T0}, s{T1}")
    a(f"buffer_load_dwordx4 {vr(K_, 4)}, v{A16}, {sr(S_WS)}, s{T2} offen sc1")
    a(f"s_add_u32 s{T2}, s{T2}, {32 << 16}")
    a(f"s_mov_b64 exec, s[{tVM}:{tVM + 1}]")
    a(f"buffer_load_dwordx4 {vr(V_, 4)}, v3, {sr(S_WS)}, s{T2} offen sc1")
    a(f"buffer_load_dwordx4 {vr(V_ + 4, 4)}, v3, {sr(S_WS)}, s{T2} offen offset:512 sc1")
    a("s_mov_b64 exec, -1")
    a("s_waitcnt vmcnt(0)")
    a(mfma(S0, K_, Q_, NM))
    a("s_nop 15")
    for i in range(16):
        a(f"v_exp_f32 v{S0 + i}, v{S0 + i}")
    a("s_nop 0")
    for i in range(8):
        a(f"v_cvt_pk_bf16_f32 v{P_ + i}, v{S0 + 2 * i}, v{S0 + 2 * i + 1}")
    a("s_nop 1")
    a(mfma(O_, V_, P_))
    a(mfma(O_, V_ + 4, P_ + 4))
    a(f"s_add_u32 s{T1}, s{T1}, 1024")
    a(f"s_cmp_lt_u32 s{T1}, 65536")
    a("s_cbranch_scc1 L_fb2")
    a("s_nop 15")
    a("s_branch L_norm")


def main(out):
    a = Asm()
    k = NAME + "_kernel"
    hdr = ["; LN + MHA + GEGLU block, one persistent launch; generated by gen4.py (hand-scheduled gfx950 assembly)",
           "; @launch grid=(256,1,1) block=(512,1,1) lds=163840"]
    a('.amdgcn_target "amdgcn-amd-amdhsa--gfx950"')
    a(".text")
    a(f".globl {k}\n.p2align 8\n.type {k},@function\n{k}:")
    gen_p1(a)
    gen_p2(a)
    gen_side(a)
    a("L_end:")
    a('.section .rodata,"a"')
    a(".p2align 6")
    a(f".amdhsa_kernel {k}")
    a(f".amdhsa_next_free_vgpr {NVGPR}")
    a(f".amdhsa_next_free_sgpr {96 if (STAMPS or ENC is not None) else 80}")
    a(f".amdhsa_accum_offset {(NVGPR + 3) // 4 * 4}")
    a(".amdhsa_group_segment_fixed_size 0")
    a(".amdhsa_kernarg_size 80")
    a(".amdhsa_user_sgpr_count 2")
    a(".amdhsa_user_sgpr_kernarg_segment_ptr 1")
    a(".amdhsa_system_sgpr_workgroup_id_x 1")
    a(".end_amdhsa_kernel")
    open(out, "w").write("\n".join(hdr) + "\n" + a.text())


if __name__ == "__main__":
    for x in list(sys.argv):
        if x.startswith("--opt="):
            OPT = set(x[6:].split(","))
            sys.argv.remove(x)
    for x in list(sys.argv):
        if x.startswith("--enc="):
            ENC = int(x[6:])
            sys.argv.remove(x)
    for o in OPT:
        if o.startswith("sig"): SIGU = int(o[3:])
        if o.startswith("chk"): CHK = int(o[3:])
        if o.startswith("wk"): WK = int(o[2:])
        if o.startswith("vb"): VBUD = int(o[2:])
        if o.startswith("pc"): PC = (int(o[2]), int(o[3]))
        if o.startswith("pd"): PD = int(o[2])
        if o.startswith("pg"): PG = int(o[2])
    if "--cyc" in sys.argv:
        STAMPS = 2
        sys.argv.remove("--cyc")
    if "--stamps" in sys.argv:
        STAMPS = True
        sys.argv.remove("--stamps")
    main(sys.argv[1] if len(sys.argv) > 1 else f"cdna_kernels/{NAME}.s")
```

```python
import sys, struct, math

NAME = "recurrent_scan__mha_block__glu_gated_geglu__prompt"

WS_QKV = 0
WS_H = 6 << 20
WS_O = 14 << 20
WS_CNT = 16 << 20
WS_STAMP = (16 << 20) + 65536
WS_CS = (16 << 20) + 0xb0000
WS_ST = (16 << 20) + 0x80000
WS_CQ = (16 << 20) + 0xa0000
WS_RS = (16 << 20) + 0x84000
WS_CP = (19 << 20) + 0x80000
WS_WT = 17 << 20
WS_SIZE = 21 << 20
OOB = 0x7f000000

LOG2E = 1.4426950408889634
QSCALE = 0.25 * LOG2E
GC1 = -2.0 * LOG2E * math.sqrt(2.0 / math.pi)
GC2 = GC1 * 0.044715
MAXOFF = 80.0
SPIN = 0x40000

STAMPS = False
OPT = set()
NOSTAMP = False
ENC = None


def f2u(x):
    return struct.unpack("<I", struct.pack("<f", x))[0]


def hx(x):
    return "0x%08x" % (x & 0xffffffff)


class Asm:
    def __init__(self):
        self.l = []

    def __call__(self, s):
        if isinstance(s, (list, tuple)):
            for x in s:
                self(x)
            return
        for line in s.split("\n"):
            line = line.strip()
            if not line:
                continue
            if line.endswith(":") or line.startswith("."):
                self.l.append(line)
            else:
                self.l.append("    " + line)

    def text(self):
        return "\n".join(self.l) + "\n"


def vr(b, n):
    return f"v[{b}:{b + n - 1}]"


def sr(b):
    return f"s[{b}:{b + 3}]"


def mfma(d, a, b, c=None):
    cs = vr(d, 16) if c is None else (c if isinstance(c, str) else vr(c, 16))
    return f"v_mfma_f32_32x32x16_bf16 {vr(d, 16)}, {vr(a, 4)}, {vr(b, 4)}, {cs}"


def stamp(a, n):
    if ENC is not None:
        if n in (0, ENC) and not NOSTAMP:
            a("s_memrealtime s[76:77]")
            a("s_waitcnt lgkmcnt(0)")
            a(f"s_mov_b32 s{80 if n == 0 else 81}, s76")
            if n == 0:
                a("s_mov_b32 s81, s76")
        return
    if not STAMPS or (NOSTAMP and n != 15) or ("min" in OPT and n not in (0, 15)):
        return
    a("s_memtime s[76:77]" if STAMPS == 2 else "s_memrealtime s[76:77]")
    a("s_waitcnt lgkmcnt(0)")
    a(f"s_mov_b32 s{80 + n}, s76")


def stampl(n):
    t = Asm()
    stamp(t, n)
    return [x.strip() for x in t.l]


def stamp_flush(a):
    if ENC is not None:
        a("s_waitcnt vmcnt(0)")
        a("s_memrealtime s[76:77]")
        a("s_waitcnt lgkmcnt(0)")
        if ENC == 15:
            a("s_mov_b32 s81, s76")
        if ENC == 99:
            a(["v_mov_b32 v1, 0", f"global_load_dword v2, v1, s[{pDBG}:{pDBG + 1}] offset:240 sc1", "s_waitcnt vmcnt(0)",
               "v_readfirstlane_b32 s80, v2", "s_not_b32 s80, s80", "s_sub_u32 s80, s80, 100"])
        a("s_sub_u32 s81, s81, s80")
        a("s_cmp_lt_u32 s2, 32" if "encs" not in OPT else "s_cmp_ge_u32 s2, 32")
        a("s_cselect_b32 s81, 0, s81")
        a("s_mov_b32 s80, s76")
        a("L_enc:")
        a("s_memrealtime s[76:77]")
        a("s_waitcnt lgkmcnt(0)")
        a("s_sub_u32 s76, s76, s80")
        a("s_cmp_lt_u32 s76, s81")
        a("s_cbranch_scc1 L_enc")
        return
    if not STAMPS:
        return
    a("s_waitcnt vmcnt(0)")
    stamp(a, 15)
    a("v_mov_b32 v1, 0")
    for n in range(16):
        a(f"v_writelane_b32 v1, s{80 + n}, {n}")
    a("s_lshl_b32 s76, s2, 3")
    a(f"s_add_u32 s76, s76, s{sW}")
    a("s_lshl_b32 s76, s76, 6")
    a(f"s_add_u32 s76, s76, {WS_STAMP}")
    a("v_lshlrev_b32 v2, 2, v0")
    a("s_mov_b64 exec, 0xffff")
    a(f"buffer_store_dword v1, v2, {sr(S_WS)}, s76 offen")


def srd(a, s, ptr, size):
    a(f"s_mov_b32 s{s}, s{ptr}")
    a(f"s_mov_b32 s{s + 1}, s{ptr + 1}")
    a(f"s_mov_b32 s{s + 2}, {size}")
    a(f"s_mov_b32 s{s + 3}, 0x00020000")


pX, pWQKV, pWO, pG, pU, pWD, pOUT, pDBG, pWS = 56, 58, 60, 64, 66, 68, 70, 72, 74
S_T, S_X, S_W0, S_W1, S_W3, S_WS = 4, 8, 12, 16, 20, 24
R_OUT, R_H0, R_H1, R_WT = 4, 12, 16, 20
sW, sTT, sHF, sRB, sCB, sROT, sISS, sVAR = 28, 29, 30, 31, 32, 33, 34, 35
sCQ, sCG, sXROW, sLW = 36, 37, 42, 43
T0, T1, T2, T3 = 44, 45, 46, 47
sXCD, sT, sG, sKV = 49, 52, 53, 50
tHEAD, tQB, tIT, tFH, tFW, tTT = 38, 39, 33, 36, 37, 48
tVM = 54

AR, BR, CR, SL = 0, 49152, 98304, 16384
SCR = 147456
XA, VXS, VW0, WQ, WC = 4, 8, 9, 10, 12
VW1, VW3, L16, MASK, ONES, STV, POLL = 14, 15, 16, 17, 18, 20, 21
CSA = 24
WF = 32
ACF, ACQ = 64, 96
XF = 128
Q_, K_, P_, NM, S0, S1, RING = 8, 12, 20, 28, 44, 60, 76
AK, AV, A16, AOUT = 124, 125, 126, 127
G_, V_, O_, AW = 128, 192, 224, 240
NVGPR = 256
C_H, C_CS, C_O = 24, 40, 56
T4 = 63
sCF, sCNT = 51, 62


def tiny(d, a_, b_, first=False):
    return f"v_mfma_f32_4x4x4_16b_bf16 {vr(d, 4)}, {vr(a_, 2)}, {vr(b_, 2)}, {'0' if first else vr(d, 4)}"


def dma(S, ffn=True):
    sl = (S % 3) * SL
    if S < 8:
        r = [[f"s_add_u32 s{T1}, s{sROT}, {S}", f"s_and_b32 s{T1}, s{T1}, 7",
              f"s_lshl_b32 s{T0}, s{T1}, 7", f"s_add_u32 m0, s{sLW}, {AR + sl}", f"s_add_u32 s{T0}, s{T0}, s{sXROW}",
              f"buffer_load_dwordx4 v{VXS}, {sr(S_X)}, s{T0} offen lds"],
             [f"s_mul_i32 s{T4}, s{T1}, {64 * 3584}",
              f"s_mul_i32 s{T1}, s{T1}, {64 * 3072}", f"s_add_u32 m0, s{sLW}, {BR + sl}", f"s_add_u32 s{T1}, s{T1}, s{sCQ}",
              f"buffer_load_dwordx4 v{VW0}, {sr(S_W0)}, s{T1} offen lds"],
             [f"s_add_u32 m0, s{sLW}, {AR + sl + 8192}", f"s_add_u32 s{T0}, s{T0}, 0x10000",
              f"buffer_load_dwordx4 v{VXS}, {sr(S_X)}, s{T0} offen lds"],
             [f"s_add_u32 m0, s{sLW}, {BR + sl + 8192 - 128}", "s_nop 0",
              f"buffer_load_dwordx4 v{VW0}, {sr(S_W0)}, s{T1} offen offset:128 lds"]]
        if ffn:
            r += [[f"s_add_u32 m0, s{sLW}, {CR + sl}", f"s_add_u32 s{T4}, s{T4}, s{sCG}",
                   f"buffer_load_dwordx4 v{VW1}, {sr(S_W1)}, s{T4} offen lds"],
                  [f"s_add_u32 m0, s{sLW}, {CR + sl + 8192}", "s_nop 0",
                   f"buffer_load_dwordx4 v{VW3}, {sr(S_W3)}, s{T4} offen lds"]]
        return r
    if not ffn:
        return []
    r = []
    for hb, base in enumerate((BR, CR)):
        r += [[f"s_add_u32 s{T1}, s{sROT}, {2 * (S - 8) + hb}", f"s_and_b32 s{T1}, s{T1}, 7",
               f"s_mul_i32 s{T1}, s{T1}, {64 * 3584}", f"s_add_u32 m0, s{sLW}, {base + sl - 128}", f"s_add_u32 s{T1}, s{T1}, s{sCG}",
               f"buffer_load_dwordx4 v{VW1}, {sr(S_W1)}, s{T1} offen offset:128 lds"],
              [f"s_add_u32 m0, s{sLW}, {base + sl + 8192 - 128}", "s_nop 0",
               f"buffer_load_dwordx4 v{VW3}, {sr(S_W3)}, s{T1} offen offset:128 lds"]]
    return r


def fset(k, ffn):
    return WF + 16 * (k & 1) if ffn else WF + 8 * (k & 3)


def rd1(k, nt, ffn):
    S, ks = k >> 2, k & 3
    sl = (S % 3) * SL
    F = fset(k, ffn)
    r = [f"ds_read_b128 {vr(XF + 4 * k, 4)}, v{XA + ks} offset:{sl}"]
    for t in range(nt):
        for t2 in range(2):
            r.append(f"ds_read_b64_tr_b16 {vr(F + 4 * t + 2 * t2, 2)}, v{WQ + t} offset:{sl + ks * 2048 + t2 * 512}")
    if ffn:
        for c in range(2):
            for t2 in range(2):
                r.append(f"ds_read_b64_tr_b16 {vr(F + 8 + 4 * c + 2 * t2, 2)}, v{WC + c} offset:{sl + ks * 2048 + t2 * 512}")
    return r


def rd2(u):
    S = 8 + (u >> 2)
    sl = (S % 3) * SL
    base = WQ if (u & 3) < 2 else WC
    F = WF + 16 * (u & 1)
    return [f"ds_read_b64_tr_b16 {vr(F + 8 * q + 4 * c + 2 * t2, 2)}, v{base + c} offset:{sl + ((2 * u + q) & 3) * 2048 + t2 * 512}"
            for q in range(2) for c in range(2) for t2 in range(2)]


def flat(L):
    return [x for at in L for x in ([at] if isinstance(at, str) else at)]


def spread(heads, first, rest):
    n = len(heads)
    pf = -(-len(first) // max(1, n - 1)) if first else 0
    res = []
    for j, hd in enumerate(heads):
        res.append(hd)
        res += flat(first[j * pf:(j + 1) * pf])
        res += flat(rest[j * len(rest) // n:(j + 1) * len(rest) // n])
    return res


def nvm(lines):
    return sum(1 for l in lines if l.startswith("buffer_") or l.startswith("global_"))


def weave(heads, fills):
    res = []
    per = -(-len(fills) // len(heads)) if fills else 0
    i = 0
    for hd in heads:
        res.append(hd)
        for at in fills[i:i + per]:
            res += [at] if isinstance(at, str) else at
        i += per
    return res


def tr_addr(dst, t_a, t_b):
    return [f"v_lshrrev_b32 v{t_a}, 5, v0", f"v_bfe_u32 v{t_b}, v0, 2, 2", f"v_lshl_add_u32 v{dst}, v{t_a}, 2, v{t_b}",
            f"v_lshlrev_b32 v{dst}, 7, v{dst}", f"v_and_b32 v{t_a}, 1, v0", f"v_lshl_add_u32 v{dst}, v{t_a}, 6, v{dst}",
            f"v_bfe_u32 v{t_a}, v0, 4, 1", f"v_lshl_add_u32 v{dst}, v{t_a}, 4, v{dst}", f"v_bfe_u32 v{t_a}, v0, 1, 1",
            f"v_lshl_add_u32 v{dst}, v{t_a}, 3, v{dst}", f"v_lshrrev_b32 v{t_b}, 1, v{t_b}", f"v_lshl_add_u32 v{dst}, v{t_b}, 5, v{dst}"]


def split3(w, src):
    return [f"v_and_b32 v{w}, v{MASK}, v{src}", f"v_sub_f32 v{w + 2}, v{src}, v{w}",
            f"v_and_b32 v{w + 1}, v{MASK}, v{w + 2}", f"v_sub_f32 v{w + 2}, v{w + 2}, v{w + 1}", f"v_mov_b32 v{w + 3}, 0"]


def poll_issue(lbl, mask_instrs, reg=POLL):
    return ([f"s_cmp_lg_u32 s{sW}, 0", f"s_cbranch_scc1 {lbl}", "v_lshlrev_b32 v1, 8, v0"] + mask_instrs +
            ["s_mov_b64 exec, s[40:41]",
             f"buffer_load_dword v{reg}, v1, {sr(S_WS)}, s{sCNT} offen sc1", "s_mov_b64 exec, -1", f"{lbl}:"])


def poll_check(lbl, thr, reg=POLL, sleep=8):
    return [f"s_cmp_lg_u32 s{sW}, 0", f"s_cbranch_scc1 {lbl}_ok",
            f"s_mov_b32 s{T3}, {SPIN}", "s_mov_b64 exec, s[40:41]", f"{lbl}_spin:",
            f"v_cmp_gt_u32 vcc, {thr}, v{reg}", "s_cmp_eq_u64 vcc, 0", f"s_cbranch_scc1 {lbl}_done",
            f"s_sleep {sleep}",
            f"buffer_load_dword v{reg}, v1, {sr(S_WS)}, s{sCNT} offen sc1", "s_waitcnt vmcnt(0)",
            f"s_sub_u32 s{T3}, s{T3}, 1", f"s_cmp_lg_u32 s{T3}, 0", f"s_cbranch_scc1 {lbl}_spin",
            f"{lbl}_done:", "s_mov_b64 exec, -1", f"{lbl}_ok:"]


QKV_MASK = [f"s_lshl_b32 s40, 0x10101, s{sXCD}", "s_mov_b32 s41, 0"]
CS_MASK = ["s_mov_b32 s40, 0", f"s_lshl_b32 s41, 0x100, s{sCF}"]
H_MASK = ["s_mov_b32 s40, 0xff000000", "s_mov_b32 s41, 0xff"]


def cs_issue(lbl, n):
    return [f"s_cmp_lg_u32 s{sW}, 0", f"s_cbranch_scc1 {lbl}", "v_lshlrev_b32 v1, 6, v0", "s_mov_b64 exec, 15",
            f"global_load_dword v{POLL}, v1, s[{pDBG}:{pDBG + 1}] offset:{4 * n} sc1", "s_mov_b64 exec, -1", f"{lbl}:"]


def cs_signal(lbl, n):
    return [f"s_cmp_lg_u32 s{sW}, 0", f"s_cbranch_scc1 {lbl}", f"s_and_b32 s{T2}, s{sRB}, 3", f"s_lshl_b32 s{T2}, s{T2}, 6",
            f"v_mov_b32 v2, s{T2}", "v_mov_b32 v3, 1", "s_mov_b64 exec, 1",
            f"global_atomic_add v2, v3, s[{pDBG}:{pDBG + 1}] offset:{4 * n} sc1", "s_mov_b64 exec, -1", f"{lbl}:"]


def cs_check(lbl, n):
    return [f"s_cmp_lg_u32 s{sW}, 0", f"s_cbranch_scc1 {lbl}_ok",
            f"s_mov_b32 s{T3}, {SPIN}", "s_mov_b64 exec, 15", f"{lbl}_spin:",
            f"v_cmp_gt_u32 vcc, 8, v{POLL}", "s_cmp_eq_u64 vcc, 0", f"s_cbranch_scc1 {lbl}_done",
            "s_sleep 8",
            f"global_load_dword v{POLL}, v1, s[{pDBG}:{pDBG + 1}] offset:{4 * n} sc1", "s_waitcnt vmcnt(0)",
            f"s_sub_u32 s{T3}, s{T3}, 1", f"s_cmp_lg_u32 s{T3}, 0", f"s_cbranch_scc1 {lbl}_spin",
            f"{lbl}_done:", "s_mov_b64 exec, -1", f"{lbl}_ok:"]


def flag_check(lbl):
    return [f"s_cmp_lg_u32 s{sW}, 0", f"s_cbranch_scc1 {lbl}",
            f"s_mov_b32 s{T3}, {SPIN}", f"{lbl}_spin:",
            f"v_readfirstlane_b32 s{T2}, v{POLL}", f"s_cmp_lg_u32 s{T2}, 0", f"s_cbranch_scc1 {lbl}",
            "s_sleep 8", "v_mov_b32 v2, 0",
            f"global_load_dword v{POLL}, v2, s[{pDBG}:{pDBG + 1}] offset:32 sc1", "s_waitcnt vmcnt(0)",
            f"s_sub_u32 s{T3}, s{T3}, 1", f"s_cmp_lg_u32 s{T3}, 0", f"s_cbranch_scc1 {lbl}_spin", f"{lbl}:"]


def sig_qkv(lbl):
    return [f"s_cmp_lg_u32 s{sW}, 0", f"s_cbranch_scc1 {lbl}",
            f"s_mul_i32 s{T2}, s{sCB}, 3", f"s_lshr_b32 s{T2}, s{T2}, 1", f"s_and_b32 s{T3}, s{sCB}, 1",
            f"v_add_u32 v2, s{T2}, v0", "v_lshlrev_b32 v2, 8, v2",
            f"v_xor_b32 v3, s{T3}, v0", "v_sub_u32 v3, 2, v3",
            "s_mov_b64 exec, 3", f"buffer_atomic_add v3, v2, {sr(S_WS)}, s{sCNT} offen sc1", "s_mov_b64 exec, -1", f"{lbl}:"]


def sig_one(lbl, idx_instrs, skip_side=False):
    c = [f"s_or_b32 s{T0}, s{sW}, s{sISS}"] if skip_side else [f"s_cmp_lg_u32 s{sW}, 0"]
    return (c + [f"s_cbranch_scc1 {lbl}"] + idx_instrs +
            [f"s_lshl_b32 s{T0}, s{T0}, 8", f"s_add_u32 s{T0}, s{T0}, s{sCNT}", "v_mov_b32 v3, 1", "s_mov_b64 exec, 1",
             f"buffer_atomic_add v3, off, {sr(S_WS)}, s{T0} sc1", "s_mov_b64 exec, -1", f"{lbl}:"])


def kv(i, r=L16):
    return [[f"s_lshl1_add_u32 m0, s{sLW}, {i * 16384}" if i else f"s_lshl_b32 m0, s{sLW}, 1",
             f"s_add_u32 s{T2}, s{sKV}, {i * 8192}",
             f"buffer_load_dwordx4 v{r}, {sr(S_WS)}, s{T2} offen sc1 lds"],
            [f"s_lshl1_add_u32 m0, s{sLW}, {i * 16384 + 1024}", f"s_add_u32 s{T2}, s{sKV}, {i * 8192 + (32 << 16)}",
             f"buffer_load_dwordx4 v{r}, {sr(S_WS)}, s{T2} offen sc1 lds"]]


def q_load():
    return [f"s_lshl_b32 s{T2}, s{tQB}, 13", f"s_add_u32 s{T2}, s{T2}, s{sKV}", f"s_sub_u32 s{T2}, s{T2}, {32 << 16}",
            f"buffer_load_dwordx4 {vr(Q_, 4)}, v{L16}, {sr(S_WS)}, s{T2} offen sc1"]


def p2_init_v():
    return ([["v_and_b32 v3, 27, v0", "v_cmp_eq_u32 vcc, 16, v3", f"v_mov_b32 v{V_ + 1}, 0x3f803f80", "v_mov_b32 v3, 0",
              f"v_cndmask_b32 v{V_}, v3, v{V_ + 1}, vcc", f"v_mov_b32 v{V_ + 1}, v{V_}"]] +
            [f"v_mov_b64 v[{V_ + i}:{V_ + i + 1}], v[{V_}:{V_ + 1}]" for i in range(2, 32, 2)])


TRA, TRD = 142, 144


def tr_setup():
    A, B, C, D = T2, T3, tVM + 1, tVM
    return [[f"s_sub_u32 s{C}, s2, 32", f"s_mul_i32 s{D}, s{sW}, 144", f"s_add_u32 s{D}, s{D}, s{C}", f"s_lshl_b32 s{D}, s{D}, 11",
             f"s_add_u32 s{D}, s{D}, {WS_WT}", f"s_cmp_lt_u32 s{C}, 144", f"s_cselect_b32 s{D}, s{D}, {OOB}",
             f"s_cmp_lt_u32 s{C}, 112", f"s_cselect_b32 s{S_T}, s{pWD}, s{pWO}",
             f"s_cselect_b32 s{S_T + 1}, s{pWD + 1}, s{pWO + 1}", f"s_mov_b32 s{S_T + 2}, 1835008",
             f"s_cselect_b32 s{S_T + 2}, s{S_T + 2}, 524288", f"s_cselect_b32 s{A}, 0, 112", f"s_mov_b32 s{S_T + 3}, 0x00020000",
             f"s_sub_u32 s{C}, s{C}, s{A}", f"s_lshl_b32 s{C}, s{C}, 14", f"s_lshl_b32 s{B}, s{sW}, 7", f"s_add_u32 s{C}, s{C}, s{B}"],
            ["v_lshrrev_b32 v2, 3, v0", "v_and_b32 v3, 2, v2", "v_and_b32 v18, 7, v0", "v_xor_b32 v18, v3, v18",
             "v_lshlrev_b32 v18, 4, v18", "v_lshl_add_u32 v18, v2, 10, v18"]]


def tr_dma():
    C = tVM + 1
    return [[f"s_lshl_b32 m0, s{sLW}, 1", f"s_add_u32 s{T3}, s{C}, 8192", f"buffer_load_dwordx4 v18, {sr(S_T)}, s{C} offen lds",
             "s_add_u32 m0, m0, 1024", "s_nop 0", f"buffer_load_dwordx4 v18, {sr(S_T)}, s{T3} offen lds"]]


def tr_rd():
    return [f"ds_read_b64_tr_b16 {vr(TRD + 4 * ap + 2 * t, 2)}, v{TRA + ap} offset:{t * 1024}" for ap in range(2) for t in range(2)]


def tr_st():
    return [f"buffer_store_dwordx4 {vr(TRD, 4)}, v{L16}, {sr(S_WS)}, s{tVM} offen sc1",
            f"buffer_store_dwordx4 {vr(TRD + 4, 4)}, v{L16}, {sr(S_WS)}, s{tVM} offen offset:1024 sc1"]


def gen_p1(a):
    global NOSTAMP
    a("s_cmp_ge_u32 s2, 256")
    a("s_cbranch_scc1 L_exit")
    stamp(a, 0)
    a(f"s_load_dwordx4 s[{pX}:{pX + 3}], s[0:1], 0")
    a(f"s_load_dwordx4 s[{pG}:{pG + 3}], s[0:1], 32")
    a(f"s_load_dwordx2 s[{pWO}:{pWO + 1}], s[0:1], 16")
    a(f"s_load_dwordx4 s[{pWD}:{pWD + 3}], s[0:1], 48")
    a(f"s_load_dwordx4 s[{pDBG}:{pDBG + 3}], s[0:1], 64")
    a("v_lshrrev_b32 v1, 6, v0")
    a("v_and_b32 v0, 63, v0")
    a(f"v_readfirstlane_b32 s{sW}, v1")
    a("s_cmp_ge_u32 s2, 32")
    a("s_cbranch_scc1 L_nocode")
    a("s_getpc_b64 s[40:41]")
    a("L_here:")
    a("v_lshlrev_b32 v2, 13, v1")
    a("v_lshl_add_u32 v2, v0, 7, v2")
    a("v_min_u32 v2, L_end-L_here-4, v2")
    a("v_mov_b32 v3, s41")
    a("v_add_co_u32 v2, vcc, s40, v2")
    a("s_nop 1")
    a("v_addc_co_u32 v3, vcc, 0, v3, vcc")
    a(f"global_load_dword v{STV}, v[2:3], off")
    a("L_nocode:")
    a(f"s_and_b32 s{sXCD}, s2, 7")
    a(f"s_lshr_b32 s{T1}, s2, 3")
    a(f"s_and_b32 s{sRB}, s{sXCD}, 3")
    a(f"s_and_b32 s{T2}, s{T1}, 3")
    a(f"s_lshl2_add_u32 s{sRB}, s{sRB}, s{T2}")
    a(f"s_lshr_b32 s{sCF}, s{sXCD}, 2")
    a(f"s_lshr_b32 s{sISS}, s{T1}, 2")
    a(f"s_lshl3_add_u32 s{sCB}, s{sCF}, s{sISS}")
    if "norot" in OPT:
        a(f"s_mov_b32 s{sROT}, 0")
    else:
        a(f"s_lshl1_add_u32 s{sROT}, s{sXCD}, s{sISS}")
    a(f"s_lshl_b32 s{sLW}, s{sW}, 10")
    a(f"s_lshl_b32 s{T2}, s{sW}, 3")
    a(f"s_lshl_b32 s{sXROW}, s{sRB}, 7")
    a(f"s_add_u32 s{sXROW}, s{sXROW}, s{T2}")
    a(f"s_lshl_b32 s{sXROW}, s{sXROW}, 10")
    a(f"s_mul_i32 s{sCQ}, s{sCB}, 3")
    a(f"s_lshr_b32 s{sCQ}, s{sCQ}, 1")
    a(f"s_lshl_b32 s{sCQ}, s{sCQ}, 7")
    a(f"s_mul_i32 s{T3}, s{T2}, 3072")
    a(f"s_add_u32 s{sCQ}, s{sCQ}, s{T3}")
    a(f"s_mul_i32 s{T3}, s{T2}, 3584")
    a(f"s_sub_u32 s{sCF}, s{sCB}, s{sCF}")
    a(f"s_sub_u32 s{sCF}, s{sCF}, 1")
    a(f"s_lshl_b32 s{sCG}, s{sCF}, 8")
    a(f"s_add_u32 s{sCG}, s{sCG}, s{T3}")
    a(f"s_cmp_eq_u32 s{sISS}, 0")
    a(f"s_cselect_b32 s{sISS}, 1, 0")
    a(f"s_cselect_b32 s{sCG}, {OOB}, s{sCG}")
    a("v_lshrrev_b32 v1, 3, v0")
    a("v_and_b32 v2, 7, v0")
    a(f"v_add_u32 v3, s{T2}, v1")
    a("v_bfe_u32 v3, v3, 1, 3")
    a("v_xor_b32 v3, v3, v2")
    a("v_lshlrev_b32 v3, 4, v3")
    a(f"v_lshl_add_u32 v{VXS}, v1, 10, v3")
    a("v_and_b32 v3, 2, v1")
    a("v_lshlrev_b32 v3, 1, v3")
    a("v_xor_b32 v3, v3, v2")
    a("v_lshlrev_b32 v3, 4, v3")
    a("v_mul_u32_u24 v4, 3072, v1")
    a(f"v_add_u32 v{VW0}, v4, v3")
    a("v_mul_u32_u24 v4, 3584, v1")
    a(f"v_add_u32 v{VW1}, v4, v3")
    a(f"v_xor_b32 v{VW3}, 32, v{VW1}")
    for r_, sz in ((S_X, 2097152), (S_W0, 1572864), (S_W1, 1835008), (S_W3, 1835008)):
        a(f"s_mov_b32 s{r_ + 2}, {sz}")
        a(f"s_mov_b32 s{r_ + 3}, 0x00020000")
    a("s_waitcnt lgkmcnt(0)")
    for r_, p_ in ((S_X, pX), (S_W0, pWQKV), (S_W1, pG), (S_W3, pU)):
        a(f"s_mov_b64 s[{r_}:{r_ + 1}], s[{p_}:{p_ + 1}]")
    a(f"s_cmp_eq_u32 s{sISS}, 1")
    a("s_cbranch_scc1 L_nod0")
    a(dma(0))
    if "tlb" in OPT:
        a("s_branch L_nod1")
    a("L_nod0:")
    if "tlb" in OPT:
        a(f"s_and_b32 s{T0}, s{sRB}, 3")
        a(f"s_lshl2_add_u32 s{T0}, s{sW}, s{T0}")
        a(f"s_sub_u32 s{T1}, s{T0}, 4")
        a(f"s_min_u32 s{T1}, s{T1}, 10")
        a(f"s_lshl_b32 s{T1}, s{T1}, 21")
        a(f"s_add_u32 s40, s{pWS}, s{T1}")
        a(f"s_addc_u32 s41, s{pWS + 1}, 0")
        for i, p_ in ((0, pG), (1, pU), (2, pWQKV), (3, pDBG), (15, pWD), (16, pWO), (17, pOUT)):
            a(f"s_cmp_eq_u32 s{T0}, {i}")
            a(f"s_cselect_b64 s[40:41], s[{p_}:{p_ + 1}], s[40:41]")
        a("v_mov_b32 v3, 0")
        a("s_mov_b64 exec, 1")
        a(f"global_load_dword v{STV}, v3, s[40:41] offset:192 sc1")
        a("s_mov_b64 exec, -1")
        a("L_nod1:")
    a(f"v_lshlrev_b32 v{L16}, 4, v0")
    a(f"s_and_b32 s{sTT}, s{sW}, 3")
    a(f"s_lshr_b32 s{sHF}, s{sW}, 2")
    a(f"s_mov_b32 s{sCNT}, {WS_CNT}")
    srd(a, S_WS, pWS, WS_SIZE)
    a(f"s_lshl2_add_u32 s{sT}, s{sRB}, s{sTT}")
    a(f"s_mul_i32 s{sG}, s{sCB}, 3")
    a(f"s_lshl1_add_u32 s{sG}, s{sHF}, s{sG}")
    a(f"s_cmp_ge_u32 s{sG}, 32")
    a(f"s_cselect_b32 s{sVAR}, 2, 0")
    a(f"s_add_u32 s{sVAR}, s{sVAR}, s{sHF}")
    a(f"s_lshl_b32 s{sG}, s{sG}, 1")
    a(f"s_lshr_b32 s{T1}, s2, 3")
    a(f"s_and_b32 s{T2}, s{T1}, 3")
    a(f"s_lshl2_add_u32 s{tHEAD}, s{sXCD}, s{T2}")
    a(f"s_lshr_b32 s{tQB}, s{T1}, 2")
    a(f"s_lshl_b32 s{sKV}, s{tHEAD}, 16")
    a(f"s_add_u32 s{sKV}, s{sKV}, s{sLW}")
    a(f"s_add_u32 s{sKV}, s{sKV}, {32 << 16}")
    t4, t6, t7 = WF, WF + 1, WF + 2
    a("v_and_b32 v1, 31, v0")
    a("v_lshrrev_b32 v2, 5, v0")
    a("v_bfe_u32 v3, v0, 1, 3")
    a("v_xor_b32 v3, v3, v2")
    a("v_lshlrev_b32 v3, 4, v3")
    a("v_lshl_add_u32 v3, v1, 7, v3")
    a(f"s_lshl_b32 s{T0}, s{sTT}, 12")
    a(f"v_add_u32 v{XA}, s{T0}, v3")
    for i in range(1, 4):
        a(f"v_xor_b32 v{XA + i}, {32 * i}, v{XA}")
    a("v_bfe_u32 v3, v0, 2, 2")
    a(f"v_lshl_add_u32 v{t4}, v2, 3, v3")
    a(f"v_lshlrev_b32 v{t4}, 7, v{t4}")
    a(f"v_and_b32 v{t7}, 3, v0")
    a(f"v_lshl_add_u32 v{t4}, v{t7}, 3, v{t4}")
    a("v_and_b32 v3, 2, v3")
    a(f"v_bfe_u32 v{t7}, v0, 4, 1")
    a(f"v_xor_b32 v3, v3, v{t7}")
    a(f"s_and_b32 s{T0}, s{sCB}, 1")
    a(f"s_lshl1_add_u32 s{T0}, s{sHF}, s{T0}")
    for t in range(2):
        a(f"s_and_b32 s{T1}, s{T0}, 1")
        a(f"s_lshl_b32 s{T1}, s{T1}, 1")
        a(f"s_lshr_b32 s{T2}, s{T0}, 1")
        a(f"s_lshl_b32 s{T2}, s{T2}, 13")
        a(f"s_add_u32 s{T2}, s{T2}, {BR}")
        a(f"v_xor_b32 v{t6}, s{T1}, v3")
        a(f"v_lshl_add_u32 v{t6}, v{t6}, 5, v{t4}")
        a(f"v_add_u32 v{WQ + t}, s{T2}, v{t6}")
        if t == 0:
            a(f"s_add_u32 s{T0}, s{T0}, 1")
    a(f"v_lshl_add_u32 v{t4}, v{t7}, 13, v{t4}")
    a(f"v_add_u32 v{t4}, {CR}, v{t4}")
    a(f"s_lshl_b32 s{T0}, s{sHF}, 1")
    a(f"v_xor_b32 v{t6}, s{T0}, v3")
    a(f"v_lshl_add_u32 v{WC}, v{t6}, 5, v{t4}")
    a(f"v_xor_b32 v{WC + 1}, 32, v{WC}")
    a(f"v_mov_b32 v{MASK}, 0xffff0000")
    a(f"v_mov_b32 v{ONES}, 0x3f80")
    a(f"s_cmp_eq_u32 s{sISS}, 1")
    a("s_cbranch_scc1 L_side1")
    a([f"s_lshl_b32 s{T0}, s{sW}, 8", f"s_or_b32 s{T0}, s2, s{T0}", f"s_cmp_lg_u32 s{T0}, 32", "s_cbranch_scc1 L_nozero",
       "v_mov_b32 v1, 0", "v_lshlrev_b32 v2, 8, v0", f"buffer_store_dword v1, v2, {sr(S_WS)}, s{sCNT} offen sc1", "L_nozero:"])
    a(dma(1))
    stamp(a, 1)
    for v in range(1, 4):
        a(f"s_cmp_eq_u32 s{sVAR}, {v}")
        a(f"s_cbranch_scc1 L_p1_{v}")
    XOP, RS = XA, 22
    CL, RU, ta, tb, tc = 224, 232, 240, 241, 242
    cs_loads = [[f"s_bitcmp1_b32 s{sRB}, 1", f"s_cselect_b32 s{S_T}, s{pU}, s{pG}", f"s_cselect_b32 s{S_T + 1}, s{pU + 1}, s{pG + 1}",
                 f"s_mov_b32 s{S_T + 2}, 1835008", f"s_mov_b32 s{S_T + 3}, 0x00020000",
                 f"s_lshr_b32 s{T2}, s{sRB}, 2", f"s_lshl3_add_u32 s{T2}, s{T2}, s{sW}", f"s_mul_i32 s{T2}, s{T2}, {16 * 3584}",
                 f"s_and_b32 s{T3}, s{sRB}, 1", f"s_lshl1_add_u32 s{T3}, s{sCF}, s{T3}", f"s_lshl_b32 s{T3}, s{T3}, 7", f"s_add_u32 s{T2}, s{T2}, s{T3}",
                 f"v_lshrrev_b32 v{ta}, 3, v0", f"v_mul_u32_u24 v{ta}, 3584, v{ta}", f"v_and_b32 v{tb}, 7, v0", f"v_lshl_add_u32 v{ta}, v{tb}, 4, v{ta}",
                 f"buffer_load_dwordx4 {vr(CL, 4)}, v{ta}, {sr(S_T)}, s{T2} offen"],
                [f"s_add_u32 s{T2}, s{T2}, {8 * 3584}", f"buffer_load_dwordx4 {vr(CL + 4, 4)}, v{ta}, {sr(S_T)}, s{T2} offen"]]
    SE, DD, RV = 244, 248, 208
    sel = [f"v_and_b32 v{tb}, 15, v0", f"v_and_b32 v{tc}, 1, v0", f"v_lshlrev_b32 v{tc}, 4, v{tc}", f"v_lshlrev_b32 v{tc}, v{tc}, v{ONES}",
           f"v_lshrrev_b32 v{tb}, 1, v{tb}"]
    for i in range(4):
        sel += [[f"v_cmp_eq_u32 vcc, {i}, v{tb}", "s_nop 1", f"v_cndmask_b32 v{SE + i}, 0, v{tc}, vcc"]]
    m16 = lambda c, b_: f"v_mfma_f32_16x16x32_bf16 {vr(DD, 4)}, {vr(SE, 4)}, {vr(b_, 4)}, {c}"
    csv = {4: sel[:5], 5: sel[5:],
           6: [f"v_and_b32 v{tb}, 15, v0", f"v_lshlrev_b32 v{tb}, 5, v{tb}", f"v_lshrrev_b32 v{tc}, 4, v0", f"v_lshl_add_u32 v{tb}, v{tc}, 4, v{tb}",
               [f"s_lshl_b32 s40, s2, 12", f"s_add_u32 s40, s40, {WS_CP}", f"s_lshl_b32 s41, s{sW}, 9", "s_add_u32 s41, s41, s40"]]}
    cs_mm = [m16("0", CL), m16(vr(DD, 4), CL + 4)]
    cs_st = ["s_mov_b32 exec_hi, 0", f"buffer_store_dwordx4 {vr(DD, 4)}, v{tb}, {sr(S_WS)}, s41 offen", "s_mov_b32 exec_hi, -1"]
    cs_l2 = lambda lb: ([f"s_cmp_lg_u32 s{sW}, 0", f"s_cbranch_scc1 {lb}"] +
                        [f"buffer_load_dwordx4 {vr(RV + 4 * i, 4)}, v{L16}, {sr(S_WS)}, s40 offen offset:{1024 * i} sc1" for i in range(4)] + [f"{lb}:"])
    cs_r2 = lambda lb: ([f"s_cmp_lg_u32 s{sW}, 0", f"s_cbranch_scc1 {lb}"] +
                        [f"v_add_f32 v{RV + i}, v{RV + i}, v{RV + 8 + i}" for i in range(8)] +
                        [f"v_add_f32 v{RV + i}, v{RV + i}, v{RV + 4 + i}" for i in range(4)] +
                        [f"v_and_b32 v{ta}, 15, v0", f"v_lshrrev_b32 v{tc}, 4, v0",
                         f"v_permlane16_swap_b32 v{RV}, v{RV + 1}", f"v_permlane16_swap_b32 v{RV + 2}, v{RV + 3}",
                         f"v_add_f32 v{RV}, v{RV}, v{RV + 1}", f"v_add_f32 v{RV + 2}, v{RV + 2}, v{RV + 3}",
                         f"v_lshl_add_u32 v{ta}, v{ta}, 2, v{tc}", f"v_lshlrev_b32 v{ta}, 2, v{ta}",
                         f"v_permlane32_swap_b32 v{RV}, v{RV + 2}", f"v_add_f32 v{RV}, v{RV}, v{RV + 2}",
                         f"s_bfe_u32 s40, s{sRB}, 0x10001", "s_mul_i32 s40, s40, 28", f"s_and_b32 s41, s{sRB}, 1", "s_add_u32 s40, s40, s41",
                         f"s_lshl1_add_u32 s40, s{sCF}, s40", f"s_lshr_b32 s41, s{sRB}, 2", "s_lshl2_add_u32 s40, s40, s41",
                         "s_lshl_b32 s40, s40, 8", f"s_add_u32 s40, s40, {WS_CS}",
                         f"buffer_store_dword v{RV}, v{ta}, {sr(S_WS)}, s40 offen sc1", f"{lb}:"])
    for var in VARS:
        hf, isv, ffn = var & 1, (var >> 1) & 1, var < 4
        nt = 2 - hf
        cnt = lambda S: len(dma(S, ffn))
        a(f"L_p1_{var}:")
        a(f"s_waitcnt vmcnt({cnt(1)})")
        a("s_barrier")
        stamp(a, 2)
        if var == 0:
            a([f"s_lshl_b32 s{T0}, s{sW}, 8", f"s_or_b32 s{T0}, s2, s{T0}", f"s_cmp_lg_u32 s{T0}, 32", "s_cbranch_scc1 L_noflag",
               "v_mov_b32 v2, 0", "v_mov_b32 v3, 1", "s_mov_b64 exec, 1",
               f"global_store_dword v2, v3, s[{pDBG}:{pDBG + 1}] offset:32 sc1", "s_mov_b64 exec, -1", "L_noflag:"])
        a(rd1(0, nt, ffn))
        if not ffn:
            a(rd1(1, nt, ffn))
        bgq = dma(2, ffn) + (cs_loads if ffn else [])
        if "a_l" in OPT and ffn:
            bgq = dma(2, ffn) + [[x.replace(f"s{T2} offen", "s62 offen") for x in g] for g in cs_loads]
        held = []
        sl7 = (7 % 3) * SL
        qrd = lambda h: [f"ds_read_b64_tr_b16 {vr(WF + 16 * h + 8 * q + 4 * t + 2 * t2, 2)}, v{WQ + t} offset:{sl7 + (2 * h + q) * 2048 + t2 * 512}"
                         for q in range(2) for t in range(nt) for t2 in range(2)]
        frd = lambda h: [f"ds_read_b64_tr_b16 {vr(WF + 16 * h + 8 * q + 4 * c + 2 * t2, 2)}, v{WC + c} offset:{sl7 + (2 * h + q) * 2048 + t2 * 512}"
                         for q in range(2) for c in range(2) for t2 in range(2)]
        CK = 5 if ffn else 6
        prep = [f"v_lshlrev_b32 v2, 16, v{STV}", f"v_rcp_f32 v{RS}, v2"]
        for t in range(nt):
            w = CSA + 4 * t
            prep += [f"v_add_f32 v{w}, v{w}, v{w + 1}", f"v_add_f32 v{w + 2}, v{w + 2}, v{w + 3}", f"v_add_f32 v{w + 3}, v{w}, v{w + 2}"] + split3(w, w + 3)
        for k in range(28 if ffn else 32):
            S, ks = k >> 2, k & 3
            F = fset(k, ffn)
            x = XF + 4 * k
            c0 = "0" if k == 0 else None
            big = [mfma(ACQ + 16 * t, x, F + 4 * t, c0) if isv else mfma(ACQ + 16 * t, F + 4 * t, x, c0) for t in range(nt)]
            if ffn:
                big += [mfma(ACF + 16 * c, F + 8 + 4 * c, x, c0) for c in range(2)]
            if not ffn and k % 2 == 0 and k < 30:
                held = big
                continue
            big, held = held + big, []
            val = []
            if ks == 3:
                n = cnt(S + 2) + ({0: 2}.get(S, 0) if ffn else 0)
                a(f"s_waitcnt vmcnt({n}) lgkmcnt(0)")
                if S == CK and not hf: a(cs_check(f"L_c1{var}", 0))
                if S < 7: a("s_barrier")
                if "p1b" in OPT: stamp(a, 4 + S)
                if ffn and S == 1:
                    big = cs_mm + big
                    bgq.append(cs_st)
                if ffn and S == 2 and not hf: bgq.append(cs_l2(f"L_l2{var}"))
                if ffn and S == 3 and not hf: bgq.append(cs_r2(f"L_r2{var}"))
                if S == 3 and not hf:
                    bgq.append([f"s_cmp_lg_u32 s{sW}, 0", f"s_cbranch_scc1 L_nofl{var}", "v_mov_b32 v2, 0",
                                f"global_load_dword v{POLL}, v2, s[{pDBG}:{pDBG + 1}] offset:32 sc1", f"L_nofl{var}:"])
                if S == CK - 1 and not hf:
                    bgq.append(flag_check(f"L_fc{var}") + (sig_one(f"L_sc{var}", [f"s_add_u32 s{T0}, s{sCF}, {C_CS}"]) if ffn else []) +
                               cs_issue(f"L_i1{var}", 0))
                if S == 5:
                    ad = [f"v_and_b32 v{VXS}, 31, v0", f"v_lshlrev_b32 v{VXS}, 2, v{VXS}", "v_lshrrev_b32 v3, 5, v0",
                          f"v_lshl_add_u32 v{VW0}, v3, 10, v{VXS}", f"s_lshl_b32 s{T2}, s{sT}, 7", f"s_add_u32 s{T2}, s{T2}, {WS_ST}"]
                    for t in range(nt):
                        ad += [f"s_add_u32 s{T3}, s{sG}, {2 * t}", f"s_lshr_b32 s{40 + t}, s{T3}, 2", f"s_lshl_b32 s{40 + t}, s{40 + t}, 11",
                               f"s_and_b32 s{T3}, s{T3}, 2", f"s_lshl_b32 s{T3}, s{T3}, 6", f"s_add_u32 s{40 + t}, s{40 + t}, s{T3}",
                               f"s_add_u32 s{40 + t}, s{40 + t}, {WS_CQ}"]
                    bgq.append(ad)
                if S == CK:
                    ld = [f"buffer_load_dword v{STV}, v{VXS}, {sr(S_WS)}, s{T2} offen sc1"]
                    for t in range(nt):
                        ld += [f"buffer_load_dword v{CSA + 4 * t + i}, v{VW0}, {sr(S_WS)}, s{40 + t} offen offset:{256 * i} sc1" for i in range(4)]
                    if isv:
                        ld += [f"s_lshl_b32 s{T3}, s{sW}, 8", f"s_add_u32 m0, s{T3}, {SCR}", f"s_add_u32 s{T2}, s{T2}, {WS_RS - WS_ST}",
                               f"buffer_load_dword v{VXS}, {sr(S_WS)}, s{T2} offen sc1 lds"]
                    bgq += [ld[:5], ld[5:]]
                if S == 6 and ffn:
                    if not hf: bgq.append(poll_issue(f"L_i2{var}", CS_MASK))
                    val = prep
                if S < 7: bgq += dma(S + 3, ffn)
                if S == 5 and isv:
                    bgq.append([f"s_lshl_b32 s{T3}, s{sW}, 8", f"s_add_u32 s{T3}, s{T3}, {SCR}",
                                "v_lshrrev_b32 v3, 5, v0", "v_lshlrev_b32 v18, 4, v3", f"v_add_u32 v18, s{T3}, v18",
                                "v_bfe_u32 v23, v0, 4, 1", "v_lshlrev_b32 v23, 16, v23", "v_lshl_add_u32 v23, v3, 8, v23",
                                "v_and_b32 v3, 15, v0", "v_lshl_add_u32 v23, v3, 4, v23"])
            elif k == 30:
                a("s_waitcnt vmcnt(0) lgkmcnt(0)")
                val = prep
            else:
                a("s_waitcnt lgkmcnt(0)")
            if k == 31:
                break
            if ffn and k in csv: val = csv[k]
            if "a_m" in OPT and k == 7: val = []
            if "a_s" in OPT and k in (4, 5, 6): val = []
            left = 4 if ks == 3 else 3 - ks
            if "front" in OPT and ffn and S * 4 + 3 != 27: left = {3: 3, 0: 2}.get(ks, 1)
            if k == 27: left = 3
            if not ffn: left = 2 if (ks == 3 and S < 6) else 1
            take = -(-len(bgq) // left)
            extra, bgq = bgq[:take], bgq[take:]
            if ffn:
                nxt = rd1(k + 1, nt, ffn) if k < 27 else \
                    [f"ds_read_b128 {vr(XF + 4 * (28 + j), 4)}, v{XA + j} offset:{sl7}" for j in range(4)] + qrd(0)
            else:
                nxt = [] if k == 30 else rd1(k + 1, nt, ffn) + rd1(k + 2, nt, ffn)
            body = spread(big, nxt, val + [[]] * len(extra) + extra)
            a(body)
        pre = [f"v_and_b32 v{XOP}, v{MASK}, v{STV}", f"v_mov_b32 v{XOP + 3}, 0", f"v_mov_b32 v{XOP + 1}, v{XOP}", f"v_mov_b32 v{XOP + 2}, v{XOP}"]
        corr = [mfma(ACQ + 16 * t, XOP, CSA + 4 * t) if isv else mfma(ACQ + 16 * t, CSA + 4 * t, XOP) for t in range(nt)]
        post = [f"s_lshl_b32 s{T4}, s{sG}, 16", f"s_lshl_b32 s{T2}, s{sT}, 10", f"s_add_u32 s{T4}, s{T4}, s{T2}"]

        def stores(t):
            o = ACQ + 16 * t
            if isv:
                return [[f"buffer_store_dwordx4 {vr(o, 4)}, v23, {sr(S_WS)}, s{T4} offen sc1"],
                        [f"buffer_store_dwordx4 {vr(o + 4, 4)}, v23, {sr(S_WS)}, s{T4} offen offset:512 sc1", f"s_add_u32 s{T4}, s{T4}, 0x20000"]]
            return [[f"buffer_store_dwordx4 {vr(o, 4)}, v{L16}, {sr(S_WS)}, s{T4} offen sc1", f"s_add_u32 s{T4}, s{T4}, 0x10000"],
                    [f"buffer_store_dwordx4 {vr(o + 4, 4)}, v{L16}, {sr(S_WS)}, s{T4} offen sc1", f"s_add_u32 s{T4}, s{T4}, 0x10000"]]
        if not ffn:
            assert not bgq
            stamp(a, 3)
            a(big[:1] + pre + ["s_nop 1"] + big[1:nt] + corr + post + ["s_nop 7"])
            for t in range(nt):
                ac = ACQ + 16 * t
                a(f"s_cmp_lt_u32 s{sG}, {32 - 2 * t}")
                a(f"s_cselect_b32 s{T0}, {hx(f2u(QSCALE))}, 1.0")
                a(f"v_mul_f32 v2, s{T0}, v{RS}")
                a(f"v_mul_f32 v3, s{T0}, v{RS}")
                for i in range(8):
                    a(f"v_pk_mul_f32 {vr(ac + 2 * i, 2)}, {vr(ac + 2 * i, 2)}, v[2:3]")
                for i in range(8):
                    a(f"v_cvt_pk_bf16_f32 v{ac + i}, v{ac + 2 * i}, v{ac + 2 * i + 1}")
                a(stores(t))
            stamp(a, 4)
            a("s_branch L_side")
            continue
        qm = lambda h: [mfma(ACQ + 16 * t, XF + 4 * (28 + 2 * h + q), WF + 16 * h + 8 * q + 4 * t) if isv else
                        mfma(ACQ + 16 * t, WF + 16 * h + 8 * q + 4 * t, XF + 4 * (28 + 2 * h + q)) for q in range(2) for t in range(nt)]
        fm = lambda h: [mfma(ACF + 16 * c, WF + 16 * h + 8 * q + 4 * c, XF + 4 * (28 + 2 * h + q)) for q in range(2) for c in range(2)]
        half = -(-len(bgq) // 2)
        a("s_waitcnt lgkmcnt(0)")
        a(spread(qm(0), qrd(1), pre + bgq[:half]))
        a("s_waitcnt lgkmcnt(0)")
        rsv = lambda g: [f"ds_read_b128 {vr(CSA + 4 * j, 4)}, v18 offset:{(2 * g + j) * 32}" for j in range(2)]
        a(corr + (rsv(0) if isv else []))
        a(spread(qm(1), frd(0), [f"v_subrev_u32 v{WQ + c}, {CR - BR}, v{WC + c}" for c in range(2)] + bgq[half:]))
        adr = [["v_bfe_u32 v2, v0, 4, 1", "v_mul_u32_u24 v2, 28672, v2", "v_lshrrev_b32 v3, 5, v0",
                "v_lshl_add_u32 v2, v3, 9, v2", "v_and_b32 v3, 15, v0", f"v_lshl_add_u32 v{VXS}, v3, 2, v2",
                f"s_lshl_b32 s{sVAR}, s{sCF}, 11", f"s_add_u32 s{sVAR}, s{sVAR}, {WS_CS + 128 * hf}"] + post]
        if isv:
            e1, e2 = [], []
            for t in range(nt):
                ac = ACQ + 16 * t
                e1 += [f"v_mul_f32 v{ac + i}, v{ac + i}, v{CSA + i}" for i in range(8)]
                e2 += [f"v_mul_f32 v{ac + 8 + i}, v{ac + 8 + i}, v{CSA + i}" for i in range(8)]
                e2 += [f"v_cvt_pk_bf16_f32 v{ac + i}, v{ac + 2 * i}, v{ac + 2 * i + 1}" for i in range(4, 8)] + (stores(t) if "sp2" in OPT else [])
            e1 += rsv(1)
            for t in range(nt):
                ac = ACQ + 16 * t
                e1 += [f"v_cvt_pk_bf16_f32 v{ac + i}, v{ac + 2 * i}, v{ac + 2 * i + 1}" for i in range(4)]
        else:
            e = []
            for t in range(nt):
                ac = ACQ + 16 * t
                e += [[f"s_cmp_lt_u32 s{sG}, {32 - 2 * t}", f"s_cselect_b32 s{T0}, {hx(f2u(QSCALE))}, 1.0", f"v_mul_f32 v2, s{T0}, v{RS}"]]
                e += [f"v_mul_f32 v{ac + i}, v{ac + i}, v2" for i in range(16)]
                e += [f"v_cvt_pk_bf16_f32 v{ac + i}, v{ac + 2 * i}, v{ac + 2 * i + 1}" for i in range(8)] + (stores(t) if "sp2" in OPT else [])
            e1, e2 = e[:len(e) * 5 // 8], e[len(e) * 5 // 8:]
        a("s_waitcnt lgkmcnt(0)")
        u3 = spread(fm(0), frd(1), adr + e1)
        a(u3)
        a(f"s_waitcnt vmcnt({4 + nvm(u3)}) lgkmcnt(0)")
        if not hf: a(poll_check(f"L_c2{var}", 16))
        a("s_barrier")
        stamp(a, 3)
        c0l = [[f"buffer_load_dword v{r_}, v{VXS}, {sr(S_WS)}, s{sVAR} offen offset:{(i >> 1) * 64 + (i & 1) * 256} sc1"
                for i, r_ in enumerate(C0R)]]
        mix, vm = [], c0l + dma(10)
        for j in range(len(vm)):
            mix += e2[j * len(e2) // len(vm):(j + 1) * len(e2) // len(vm)] + [vm[j]]
        if "sp1" in OPT or "sp2" in OPT:
            mix = c0l + e2
        a(spread(fm(1), rd2(0), mix))
        if "sp2" in OPT:
            assert nvm(flat(e2)) >= 2
        else:
            for t in range(nt):
                a(stores(t))
        if var != 3:
            a("s_branch L_pass2")
    a("L_pass2:")
    if "p1b" in OPT: NOSTAMP = True
    stamp(a, 4)
    sH = sG
    a(f"s_mul_i32 s{sH}, s{sT}, 112")
    a(f"s_lshl2_add_u32 s{T0}, s{sCF}, s{sHF}")
    a(f"s_lshl1_add_u32 s{sH}, s{T0}, s{sH}")
    a(f"s_lshl_b32 s{sH}, s{sH}, 10")
    a(f"s_add_u32 s{sH}, s{sH}, {WS_H}")
    cRS, cSD, cC2, CO, QP = 128, 129, 130, 132, 140
    q = CSA

    def gelu_plain(g, off):
        u = g + 8
        R = range(8)
        return ([f"v_mul_f32 v{g + i}, v{g + i}, v{cRS}" for i in R] + [f"v_mul_f32 v{q + i}, v{g + i}, v{g + i}" for i in R] +
                [f"v_fmaak_f32 v{q + i}, v{q + i}, v{cC2}, {hx(f2u(GC1))}" for i in R] + [f"v_mul_f32 v{q + i}, v{q + i}, v{g + i}" for i in R] +
                [f"v_exp_f32 v{q + i}, v{q + i}" for i in R] + [f"v_mul_f32 v{g + i}, v{g + i}, v{u + i}" for i in R] +
                [f"v_fma_f32 v{q + i}, v{q + i}, v{cSD}, v{cSD}" for i in R] + [f"v_rcp_f32 v{q + i}, v{q + i}" for i in R] +
                [f"v_mul_f32 v{g + i}, v{g + i}, v{q + i}" for i in R] +
                [f"v_cvt_pk_bf16_f32 v{g + i}, v{g + 2 * i}, v{g + 2 * i + 1}" for i in range(4)] +
                [f"buffer_store_dwordx4 {vr(g, 4)}, v{L16}, {sr(S_WS)}, s{sH} offen offset:{off} sc1"])
    vq = []
    wt = lambda at: sum(2 if (x.startswith("v_exp") or x.startswith("v_rcp")) else 1 for x in ([at] if isinstance(at, str) else at))
    cs_ld = lambda dst, pr: [[f"buffer_load_dword v{dst + 4 * c + i}, v{VXS}, {sr(S_WS)}, s{sVAR} offen offset:{1024 * pr + c * 64 + i * 256} sc1"
                              for c in range(2) for i in range(2)]]
    ta = tr_addr(TRA, 2, 3)
    bgq, hist = tr_setup() + [ta + [f"s_lshl_b32 s{T2}, s{sLW}, 1", f"v_add_u32 v{TRA}, s{T2}, v{TRA}", f"v_xor_b32 v{TRA + 1}, 32, v{TRA}"]], []
    if "sp1" in OPT or "sp2" in OPT:
        d = dma(10)
        bgq = [bgq[0], d[0], bgq[1], d[1], d[2], d[3] + bgq[2]]
    after = lambda key: nvm([l for l in hist[len(hist) - hist[::-1].index(key):] if "s62" not in l])
    for u in range(16):
        S, us = 8 + (u >> 2), u & 3
        F = WF + 16 * (u & 1)
        big = [mfma(ACQ + 16 * c, F + 8 * qq + 4 * c, XF + 4 * (2 * u + qq), "0" if (u == 0 and qq == 0) else None)
               for qq in range(2) for c in range(2)]
        allv = nvm([l for l in hist if "s62" not in l])
        if us == 3 or u == SIGU:
            if u == 3 and "sp2" in OPT:
                a("s_waitcnt vmcnt(6) lgkmcnt(0)")
            elif u == 7 and ("sp1" in OPT or "sp2" in OPT):
                a(f"s_waitcnt vmcnt({allv - 4}) lgkmcnt(0)")
            elif u == 3:
                a([f"s_cmp_eq_u32 s{sHF}, 0", "s_cbranch_scc1 L_w8", "s_waitcnt vmcnt(6)", "L_w8:", "s_waitcnt vmcnt(8) lgkmcnt(0)"])
            elif u <= 7:
                a(f"s_waitcnt vmcnt({allv}) lgkmcnt(0)")
            elif S == 10:
                a(f"s_waitcnt vmcnt({after(dma(11)[-1][0]) - 1}) lgkmcnt(0)")
            elif CHK == 10:
                a(f"s_waitcnt vmcnt({after(kv(0)[1][1]) - 1}) lgkmcnt(0)")
            else:
                a("s_waitcnt lgkmcnt(0)")
            if us == 3 and S == CHK:
                a([f"s_cmp_lg_u32 s{sW}, 0", "s_cbranch_scc1 L_w10", f"s_waitcnt vmcnt({after('L_pq:')})", "L_w10:"])
                a(poll_check("L_cq", 32, QP, 4))
            a("s_barrier")
            if "p2b" in OPT and us == 3: stamp(a, S - 2)
            if u == SIGU:
                bgq = [sig_qkv("L_sq")] + bgq
            if u == 3:
                bgq += cs_ld(CO, 1) + tr_dma() + dma(11)
                vq += [f"v_lshlrev_b32 v{cSD}, 16, v{STV}", f"v_mov_b32 v{cC2}, {hx(f2u(GC2))}", f"v_rcp_f32 v{cRS}, v{cSD}"]
                for c in range(2):
                    w = CSA + 4 * c
                    vq += [f"v_add_f32 v{w + 3}, v{C0R[2 * c]}, v{C0R[2 * c + 1]}"] + split3(w, w + 3)
                vq += ["UNIT", mfma(ACF, CSA, XOP), mfma(ACF + 16, CSA + 4, XOP), "UNIT"]
                vq += gelu_plain(ACF, 0) + ([] if "g1" in OPT else gelu_plain(ACF + 16, 1024))
            if us == 3 and S == 10:
                bgq += [tr_rd()]
            if us == 3 and S == CHK - 1:
                bgq += [[]] * (2 - len(bgq)) + [poll_issue("L_pq", QKV_MASK, QP)]
            if us == 3 and S == 10 and CHK == 10:
                bgq += kv(0) + kv(1) + [q_load()] + kv(2)
            if S == 11:
                bgq += kv(3) if CHK == 10 else kv(0) + [q_load()] + kv(1)
                if "prio" in OPT:
                    a("s_setprio 1")
                    a(lead(2))
        else:
            a("s_waitcnt lgkmcnt(0)")
        if u == 12:
            for c in range(2):
                w = CO + 4 * c
                vq += [f"v_add_f32 v{w + 3}, v{w}, v{w + 1}"] + split3(w, w + 3) + [["s_nop 1", mfma(ACQ + 16 * c, w, XOP)]]
            vq += p2_init_v()
        left = 1 if u == 15 else (4 if us == 3 else 3 - us)
        take = -(-len(bgq) // left)
        extra, bgq = bgq[:take], bgq[take:]
        val, budget = [], (1000 if u == 15 else VBUD)
        while vq and vq[0] != "UNIT" and budget > 0:
            budget -= wt(vq[0])
            val.append(vq.pop(0))
        if vq and vq[0] == "UNIT":
            vq.pop(0)
        body = spread(big, rd2(u + 1) if u < 15 else [], val[:len(val) // 2] + extra + val[len(val) // 2:])
        hist += body
        a(body)
    assert not bgq and not vq
    if "p2b" in OPT: NOSTAMP = True
    stamp(a, 5)
    RS2, SD2 = 240, 242
    a(f"v_mov_b32 v{RS2}, v{cRS}")
    a(f"v_mov_b32 v{RS2 + 1}, v{cRS}")
    a(f"v_mov_b32 v{SD2}, v{cSD}")
    a(f"v_mov_b32 v{SD2 + 1}, v{cSD}")
    a(f"v_mov_b32 v248, v{cC2}")
    a(f"v_mov_b32 v249, v{cC2}")
    a(f"v_mov_b32 v250, {hx(f2u(GC1))}")
    a("v_mov_b32 v251, v250")
    if "g1" not in OPT:
        a(f"s_add_u32 s{sH}, s{sH}, 4096")
    a("s_nop 4")
    for c in ((-1, 0, 1) if "g1" in OPT else (0, 1)):
        g = ACQ + 16 * c
        u = g + 8
        q = 32 + (c & 1) * 8
        o = 52 + c * 4
        for i in range(4):
            a(f"v_pk_mul_f32 {vr(g + 2 * i, 2)}, {vr(g + 2 * i, 2)}, {vr(RS2, 2)}")
        for i in range(4):
            a(f"v_pk_mul_f32 {vr(q + 2 * i, 2)}, {vr(g + 2 * i, 2)}, {vr(g + 2 * i, 2)}")
        for i in range(4):
            a(f"v_pk_fma_f32 {vr(q + 2 * i, 2)}, {vr(q + 2 * i, 2)}, v[248:249], v[250:251]")
        for i in range(4):
            a(f"v_pk_mul_f32 {vr(q + 2 * i, 2)}, {vr(q + 2 * i, 2)}, {vr(g + 2 * i, 2)}")
        for i in range(8):
            a(f"v_exp_f32 v{q + i}, v{q + i}")
        for i in range(4):
            a(f"v_pk_mul_f32 {vr(g + 2 * i, 2)}, {vr(g + 2 * i, 2)}, {vr(u + 2 * i, 2)}")
        for i in range(4):
            a(f"v_pk_fma_f32 {vr(q + 2 * i, 2)}, {vr(q + 2 * i, 2)}, {vr(SD2, 2)}, {vr(SD2, 2)}")
        for i in range(8):
            a(f"v_rcp_f32 v{q + i}, v{q + i}")
        a("s_nop 0")
        for i in range(4):
            a(f"v_pk_mul_f32 {vr(g + 2 * i, 2)}, {vr(g + 2 * i, 2)}, {vr(q + 2 * i, 2)}")
        for i in range(4):
            a(f"v_cvt_pk_bf16_f32 v{o + i}, v{g + 2 * i}, v{g + 2 * i + 1}")
        a(f"buffer_store_dwordx4 {vr(o, 4)}, v{L16}, {sr(S_WS)}, s{sH} offen offset:{(c & 1) * 1024} sc1")
        if c < 0:
            a(f"s_add_u32 s{sH}, s{sH}, 4096")
            continue
        if CHK == 11:
            a(kv(2 + c))
        if c == 0:
            a(lead(0))
    a(tr_st())
    a(f"s_waitcnt vmcnt({after(q_load()[-1]) + (4 if CHK == 10 else 8) + (1 if 'g1' in OPT else 0)})")
    if CHK == 11:
        a("s_barrier")


VARS = (0, 4, 5, 1, 2, 3)
VBUD = 20
WK = 8
C0R = (9, 19, 21, 1)
SIGU, CHK = 7, 11


def gen_side(a):
    a("L_side:")
    global NOSTAMP
    NOSTAMP = "side" not in OPT
    a(p2_init_v())
    a("s_waitcnt vmcnt(0)")
    a("s_barrier")
    a(sig_qkv("L_sq2"))
    stamp(a, 10)
    a(sig_one("L_h_ns2", [f"s_add_u32 s{T0}, s{sRB}, {C_H}"]))
    a(poll_issue("L_pq2", QKV_MASK))
    a("s_waitcnt vmcnt(0)")
    a(poll_check("L_cq2", 32, POLL, 6))
    a("s_barrier")
    a(kv(0))
    a(q_load())
    a(kv(1))
    a("s_waitcnt vmcnt(2)")
    a("s_barrier")
    a(kv(2))
    a(kv(3))
    if "prio" in OPT:
        a("s_setprio 1")
        a(lead(2))
    a("s_branch L_p2")
    a("L_side1:")
    XW, QW, CW = 32, 64, 128
    LO, HI, ON = 18, 19, 22
    a("v_lshrrev_b32 v1, 3, v0")
    a("v_and_b32 v2, 7, v0")
    a("v_lshlrev_b32 v2, 4, v2")
    a("v_lshl_add_u32 v3, v1, 10, v2")
    a(f"s_lshl3_add_u32 s{tVM + 1}, s2, s{sW}")
    a(f"s_lshl_b32 s{T0}, s{tVM + 1}, 13")
    for q in range(8):
        a(f"buffer_load_dwordx4 {vr(XW + 4 * q, 4)}, v3, {sr(S_X)}, s{T0} offen offset:{128 * q}")
    sU = sVAR
    a(f"s_and_b32 s{sU}, s{sRB}, 3")
    a(f"s_lshl3_add_u32 s{sU}, s{sU}, s{sW}")
    a(f"s_sub_u32 s{T1}, 31, s{sU}")
    a(f"s_lshl3_add_u32 s41, s{T1}, s{sXCD}")
    a("s_lshl_b32 s41, s41, 8")
    a(f"s_add_u32 s41, s41, {WS_CQ}")
    a(f"s_lshl_b32 s{T0}, s{T1}, 7")
    a(f"s_mul_i32 s{T2}, s{sXCD}, {64 * 3072}")
    a(f"s_add_u32 s{T0}, s{T0}, s{T2}")
    a(f"s_cmp_lt_u32 s{T1}, 24")
    a(f"s_cselect_b32 s{T0}, s{T0}, {OOB}")
    a(f"s_cselect_b32 s41, s41, {OOB}")
    a("v_mul_u32_u24 v3, 3072, v1")
    a("v_add_u32 v3, v3, v2")
    for q in range(8):
        a(f"buffer_load_dwordx4 {vr(QW + 4 * q, 4)}, v3, {sr(S_W0)}, s{T0} offen")
        if q != 7:
            a(f"s_add_u32 s{T0}, s{T0}, {8 * 3072}")
    a(f"v_mov_b32 v{LO}, 0x00003f80")
    a(f"v_mov_b32 v{HI}, 0x3f800000")
    a(f"v_mov_b32 v{ON}, 0x3f803f80")
    RU = 96
    for i in range(0, 28, 2):
        a(f"v_mov_b64 v[{RU + i}:{RU + i + 1}], 0")
    a(["v_and_b32 v2, 8, v0", "v_cmp_eq_u32 vcc, 0, v2", f"v_and_b32 v{POLL}, 7, v0", f"v_lshlrev_b32 v{POLL}, 3, v{POLL}",
       "v_lshrrev_b32 v3, 4, v0", f"v_add_u32 v{POLL}, v{POLL}, v3", "v_lshrrev_b32 v2, 1, v2", f"v_add_u32 v{POLL}, v{POLL}, v2",
       f"v_lshlrev_b32 v{POLL}, 2, v{POLL}"])
    stamp(a, 8)
    m, v_ = RU + 24, RU + 25
    for q in range(8):
        a(f"s_waitcnt vmcnt({15 - q})")
        for i in range(4):
            a(f"v_dot2c_f32_bf16 v{m + 2 * (i & 1)}, v{XW + 4 * q + i}, v{ON}")
            a(f"v_dot2c_f32_bf16 v{v_ + 2 * (i & 1)}, v{XW + 4 * q + i}, v{XW + 4 * q + i}")
    a("s_nop 2")
    a(f"v_add_f32 v{m}, v{m}, v{m + 2}")
    a(f"v_add_f32 v{v_}, v{v_}, v{v_ + 2}")
    for md in ("quad_perm:[1,0,3,2]", "quad_perm:[2,3,0,1]", "row_half_mirror"):
        a("s_nop 0")
        a(f"v_add_f32_dpp v{m}, v{m}, v{m} {md} row_mask:0xf bank_mask:0xf")
        a(f"v_add_f32_dpp v{v_}, v{v_}, v{v_} {md} row_mask:0xf bank_mask:0xf")
    a([f"v_mul_f32 v{m}, {hx(f2u(-1.0 / 512))}, v{m}", f"v_mul_f32 v{v_}, {hx(f2u(1.0 / 512))}, v{v_}",
       f"v_fma_f32 v{v_}, -v{m}, v{m}, v{v_}", f"v_max_f32 v{v_}, 0, v{v_}",
       f"v_cvt_pk_bf16_f32 v{v_}, v{v_}, v{v_}", f"v_and_b32 v{v_}, v{MASK}, v{v_}",
       f"v_add_f32 v{v_}, {hx(f2u(1e-5))}, v{v_}",
       f"v_cvt_pk_bf16_f32 v{v_}, v{v_}, v{v_}", f"v_and_b32 v{v_}, v{MASK}, v{v_}",
       f"v_sqrt_f32 v{v_}, v{v_}", "v_lshlrev_b32 v1, 2, v1",
       f"v_cvt_pk_bf16_f32 v{m}, v{v_}, v{m}",
       f"v_lshlrev_b32 v{v_}, 16, v{m}", f"v_rcp_f32 v{v_}, v{v_}",
       f"s_lshl_b32 s{T0}, s{tVM + 1}, 5", f"s_add_u32 s{T0}, s{T0}, {WS_ST}", f"s_add_u32 s{T1}, s{T0}, {WS_RS - WS_ST}",
       f"s_mov_b32 exec_lo, 0x01010101", "s_mov_b32 exec_hi, 0x01010101",
       f"buffer_store_dword v{m}, v1, {sr(S_WS)}, s{T0} offen sc1",
       f"buffer_store_dword v{v_}, v1, {sr(S_WS)}, s{T1} offen sc1", "s_mov_b64 exec, -1"])

    def colsum(src, n, acc, behind):
        for q in range(n):
            a(f"s_waitcnt vmcnt({n - 1 - q + behind})")
            for i in range(4):
                a(f"v_dot2c_f32_bf16 v{acc + 2 * i}, v{src + 4 * q + i}, v{LO}")
                a(f"v_dot2c_f32_bf16 v{acc + 2 * i + 1}, v{src + 4 * q + i}, v{HI}")
        a("s_nop 2")
        for i in range(4):
            a(f"v_permlane16_swap_b32 v{acc + 2 * i}, v{acc + 2 * i + 1}")
        for i in range(4):
            a(f"v_add_f32 v{acc + 2 * i}, v{acc + 2 * i}, v{acc + 2 * i + 1}")
        a(["s_nop 1", f"v_permlane32_swap_b32 v{acc}, v{acc + 2}", f"v_permlane32_swap_b32 v{acc + 4}, v{acc + 6}",
           f"v_add_f32 v{acc}, v{acc}, v{acc + 2}", f"v_add_f32 v{acc + 4}, v{acc + 4}, v{acc + 6}", "s_nop 1",
           f"v_add_f32_dpp v{acc}, v{acc}, v{acc} row_ror:8 row_mask:0xf bank_mask:0xf",
           f"v_add_f32_dpp v{acc + 4}, v{acc + 4}, v{acc + 4} row_ror:8 row_mask:0xf bank_mask:0xf",
           f"v_cndmask_b32 v{acc + 1}, v{acc + 4}, v{acc}, vcc"])
    colsum(QW, 8, RU, 2)
    a(f"buffer_store_dword v{RU + 1}, v{POLL}, {sr(S_WS)}, s41 offen sc1")
    a(dma(0, False))
    a("s_waitcnt vmcnt(4)")
    a("s_barrier")
    a(cs_signal("L_scs0", 0))
    stamp(a, 12)
    a(dma(1, False))
    stamp(a, 9)
    a(f"s_cmp_eq_u32 s{sHF}, 0")
    a("s_cbranch_scc1 L_p1_4")
    a("s_branch L_p1_5")


def att_step(i, ex=None, first=False):
    ex = ex or {}
    Sc, Sn = (S0, S1) if i % 2 == 0 else (S1, S0)
    Kn = K_ + 4 * ((i + 1) % 2)
    Vc = V_ + 8 * (i % 4)
    Vp = V_ + 8 * ((i - 1) % 4)
    e = lambda k: f"v_exp_f32 v{Sc + k}, v{Sc + k}"
    c = lambda k: f"v_cvt_pk_bf16_f32 v{P_ + k}, v{Sc + 2 * k}, v{Sc + 2 * k + 1}"
    r = [mfma(Sn, Kn, Q_, NM),
         f"ds_read_b128 {vr(Kn, 4)}, v{AK} offset:{(i + 3) * 2048}"]
    r += ex.get("qk", [])
    r += [e(0), e(1), e(2), e(3)]
    if not first:
        r.append(mfma(O_, Vp + 4, P_ + 4))
    if i % 2 == 0:
        r.append(f"s_mov_b64 exec, s[{tVM}:{tVM + 1}]")
        for d in (2, 3):
            vb = V_ + 8 * ((i + d) % 4)
            r.append(f"ds_read_b128 {vr(vb, 4)}, v{AV} offset:{(i + d) * 2048}")
            r.append(f"ds_read_b128 {vr(vb + 4, 4)}, v{AV} offset:{(i + d) * 2048 + 512}")
        r.append("s_mov_b64 exec, -1")
    r += ex.get("pv1", [])
    if "G2" in ex:
        r += [c(0), e(4), e(5), c(1)]
        r += [ex["G1"]] + ex.get("g1", [])
        r += [e(6), e(7), e(8), c(2), c(3), e(9)]
        r += ["s_nop 0", mfma(O_, Vc, P_)]
        if i % 2 == 1: r.append("s_waitcnt lgkmcnt(0)")
        r += ex.get("pv0", [])
        r += [e(10), e(11), c(4), e(12), c(5)]
        r += [ex["G2"]] + ex.get("g2", [])
        r += [e(13), e(14), e(15), c(6), c(7)]
    else:
        r += [c(0), e(4), e(5), c(1), e(6), e(7)]
        if "G1" in ex:
            r += [ex["G1"]]
        r += ex.get("g1", [])
        r += [e(8), c(2), c(3), e(9), e(10), e(11)]
        r.append(mfma(O_, Vc, P_, "0" if first else None))
        if i % 2 == 1: r.append("s_waitcnt lgkmcnt(0)")
        r += ex.get("pv0", [])
        r += [c(4), e(12), e(13), c(5), e(14), e(15), c(6), c(7)]
    r += ex.get("end", [])
    return r


def ring_loads(r):
    b = RING + 16 * r
    return [f"buffer_load_dwordx4 {vr(b, 4)}, v{A16}, {sr(R_H0)}, s{tFH} offen sc1",
            f"buffer_load_dwordx4 {vr(b + 4, 4)}, v{A16}, {sr(R_H1)}, s{tFH} offen sc1",
            f"buffer_load_dwordx4 {vr(b + 8, 4)}, v{A16}, {sr(R_WT)}, s{tFW} offen sc1",
            f"buffer_load_dwordx4 {vr(b + 12, 4)}, v{A16}, {sr(R_WT)}, s{tFW} offen offset:1024 sc1",
            f"s_add_u32 s{tFH}, s{tFH}, 1024",
            f"s_add_u32 s{tFW}, s{tFW}, 2048"]


def gm(r, n):
    b = RING + 16 * r
    return mfma(G_ + 16 * n, b + 8 + 4 * (n & 1), b + 4 * (n >> 1))


_pl = [0]
PC = (2, 6)
PD = 7
PG = 2


def lead(p, cond=None):
    if "prio" not in OPT:
        return []
    _pl[0] += 1
    lb = f"L_pr{_pl[0]}"
    c = [f"s_cmp_lt_u32 s{sW}, 4"] if cond is None else cond
    return c + [f"s_cbranch_scc0 {lb}", f"s_setprio {p}", f"{lb}:"]


def adv(a):
    a(f"v_add_u32 v{AK}, 0x4000, v{AK}")
    a(f"v_add_u32 v{AV}, 0x4000, v{AV}")


def gen_p2(a):
    a("L_p2:")
    if ENC == 99:
        a(["s_lshr_b32 s76, s2, 3", f"s_lshl3_add_u32 s76, s76, s{sW}", "s_cmp_lg_u32 s76, 32", "s_cbranch_scc1 L_nosk",
           "s_not_b32 s76, s80", "v_mov_b32 v1, 0", "v_mov_b32 v2, s76", "s_mov_b64 exec, 1",
           f"global_atomic_umax v1, v2, s[{pDBG}:{pDBG + 1}] offset:240 sc1", "s_mov_b64 exec, -1", "L_nosk:"])
    stamp(a, 6)
    a(f"v_mov_b32 v{A16}, v{L16}")
    a(f"v_mov_b32 v{AK}, v{L16}")
    a("v_lshrrev_b32 v2, 5, v0")
    a("v_and_b32 v3, 15, v0")
    a("v_lshlrev_b32 v3, 4, v3")
    a("v_lshl_add_u32 v3, v2, 8, v3")
    a(f"v_add_u32 v{AV}, 1024, v3")
    a(f"s_mov_b32 s{tVM}, 0x0000ffff")
    a(f"s_mov_b32 s{tVM + 1}, 0x0000ffff")
    a(f"ds_read_b128 {vr(K_, 4)}, v{AK}")
    a(f"ds_read_b128 {vr(K_ + 4, 4)}, v{AK} offset:2048")
    a(f"s_mov_b64 exec, s[{tVM}:{tVM + 1}]")
    for d in range(2):
        a(f"ds_read_b128 {vr(V_ + 8 * d, 4)}, v{AV} offset:{d * 2048}")
        a(f"ds_read_b128 {vr(V_ + 8 * d + 4, 4)}, v{AV} offset:{d * 2048 + 512}")
    a("s_mov_b64 exec, -1")
    a(f"s_lshr_b32 s{T0}, s{sW}, 2")
    a(f"s_lshl1_add_u32 s{tTT}, s{tHEAD}, s{T0}")
    a(f"s_lshl_b32 s{T0}, s{tTT}, 15")
    a(f"s_lshl_b32 s{T1}, s{tQB}, 7")
    a(f"s_add_u32 s{T0}, s{T0}, s{T1}")
    a(f"s_and_b32 s{T1}, s{sW}, 3")
    a(f"s_lshl4_add_u32 s{T0}, s{T1}, s{T0}")
    a("v_and_b32 v1, 31, v0")
    a("v_lshlrev_b32 v1, 10, v1")
    a("v_lshl_add_u32 v1, v2, 6, v1")
    a(f"v_add_u32 v{AOUT}, s{T0}, v1")
    a("s_waitcnt lgkmcnt(4)")
    a(mfma(S0, K_, Q_, "0"))
    a(mfma(S1, K_ + 4, Q_, "0"))
    a(f"s_mul_i32 s{T0}, s{tHEAD}, {224 * 1024}")
    a(f"s_add_u32 s{T0}, s{T0}, {WS_H}")
    a(f"s_add_u32 s{R_H0}, s{pWS}, s{T0}")
    a(f"s_addc_u32 s{R_H0 + 1}, s{pWS + 1}, 0")
    a(f"s_add_u32 s{R_H1}, s{R_H0}, {112 * 1024}")
    a(f"s_addc_u32 s{R_H1 + 1}, s{R_H0 + 1}, 0")
    a(f"s_mul_i32 s{tFH}, s{sW}, {14 * 1024}")
    a(f"s_add_u32 s{R_H0 + 2}, s{tFH}, {14 * 1024}")
    a(f"s_mov_b32 s{R_H1 + 2}, s{R_H0 + 2}")
    a(f"s_mul_i32 s{T0}, s{tQB}, {144 * 2048}")
    a(f"s_add_u32 s{T0}, s{T0}, {WS_WT}")
    a(f"s_add_u32 s{R_WT}, s{pWS}, s{T0}")
    a(f"s_addc_u32 s{R_WT + 1}, s{pWS + 1}, 0")
    a(f"s_lshl_b32 s{tFW}, s{tFH}, 1")
    a(f"s_lshl_b32 s{R_WT + 2}, s{R_H0 + 2}, 1")
    a(f"v_max3_f32 v1, v{S0}, v{S0 + 1}, v{S0 + 2}")
    for i in range(3, 31, 2):
        a(f"v_max3_f32 v1, v1, v{S0 + i}, v{S0 + i + 1}")
    a(f"v_max_f32 v1, v1, v{S0 + 31}")
    a("v_mov_b32 v2, v1")
    a("s_nop 1")
    a("v_permlane32_swap_b32 v1, v2")
    a("v_max_f32 v1, v1, v2")
    a(f"v_sub_f32 v2, {hx(f2u(-MAXOFF))}, v1")
    a("v_mov_b32 v3, v2")
    for i in range(0, 16, 2):
        a(f"v_mov_b64 v[{NM + i}:{NM + i + 1}], v[2:3]")
    a("s_nop 1")
    a(mfma(S0, K_, Q_, NM))
    a(f"ds_read_b128 {vr(K_, 4)}, v{AK} offset:4096")
    srd(a, R_OUT, pOUT, 2097152)
    a(f"s_lshl_b32 s{T0}, s{sW}, 11")
    a(f"v_add_u32 v{AW}, s{T0}, v{A16}")
    a(f"v_add_u32 v{AW + 1}, 0x10000, v{AW}")
    a(f"v_add_u32 v{AW + 2}, 0x20000, v{AW}")
    a("s_waitcnt lgkmcnt(0)")
    a("s_nop 1")
    a(lead(2))
    stamp(a, 7)
    global NOSTAMP
    if "side" in OPT: NOSTAMP = True
    for i in range(8):
        ex = {}
        if i == 4:
            d1, d2 = (stampl(1), stampl(2)) if "p3b" in OPT else ([], [])
            ex["end"] = d1 + ["s_waitcnt vmcnt(0)", "s_barrier"] + d2 + sig_one("L_h_ns", [f"s_add_u32 s{T0}, s{sRB}, {C_H}"], True) + lead(2)
        if i == 3:
            ex["pv0"] = lead(0)
        if i >= 5:
            ex["pv1"], ex["pv0"] = kv(i - 1, A16)
        a(att_step(i, ex, first=(i == 0)))
    adv(a)
    for i in range(8):
        ex = {}
        if i == 0:
            ex["pv1"], ex["pv0"] = kv(7, A16)
            ex["qk"] = [f"v_mov_b64 v[{RING}:{RING + 1}], 0", f"v_mov_b64 v[{RING + 2}:{RING + 3}], 0"]
        if i < 4:
            ex["G1"] = mfma(G_ + 16 * i, RING, RING, "0")
        if i == 3:
            ex["pv0"] = poll_issue("L_h_np", H_MASK, 7) + lead(0)
        if i == 4:
            d1, d2 = (stampl(3), stampl(4)) if "p3b" in OPT else ([], [])
            ex["end"] = d1 + ["s_waitcnt vmcnt(0)"] + poll_check("L_ch", 16, 7, 16) + ["s_barrier"] + d2 + lead(2)
        if i in (5, 6, 7):
            l = ring_loads(i - 5)
            ex["qk"] = l[0:1]
            ex["pv1"] = l[1:3]
            ex["pv0"] = l[3:6]
        a(att_step(i, ex))
    stamp(a, 8)
    a(f"s_mov_b32 s{tIT}, 5")
    a(f"s_lshr_b32 s{sG}, s{sW}, 2")
    a(f"s_lshl_b32 s{sG}, s{sG}, 4")
    a(f"s_add_u32 s{sG}, s{sG}, {PC[0]}")
    a("L_loop:")
    adv(a)
    plan = [[(0, 0)], [(0, 1), (0, 2)], [(0, 3)], [(1, 0), (1, 1)], [(1, 2)], [(1, 3), (2, 0)], [(2, 1)], [(2, 2), (2, 3)]]
    for i in range(8):
        ex = {}
        ex["G1"] = gm(*plan[i][0])
        if len(plan[i]) > 1:
            ex["G2"] = gm(*plan[i][1])
        if i == 0: ex["qk"] = ["s_waitcnt vmcnt(8)"]
        if i == PC[1]: ex["end"] = lead(0, [f"s_cmp_eq_u32 s{tIT}, s{sG}"])
        if i == 2:
            l = ring_loads(0)
            ex["g1"] = l[0:2]
            ex["pv0"] = l[2:6]
        if i == 3: ex["pv1"] = ["s_waitcnt vmcnt(8)"]
        if i == 5:
            l = ring_loads(1)
            ex["g1"] = l[0:2]
            ex["pv0"] = l[2:6] + ["s_waitcnt vmcnt(8)"]
        if i == 7:
            ex["g2"] = ring_loads(2)
        a(att_step(i, ex))
    a(f"s_sub_u32 s{tIT}, s{tIT}, 1")
    a(f"s_cmp_lg_u32 s{tIT}, 0")
    a("s_cbranch_scc1 L_loop")
    adv(a)
    a(f"s_and_b32 s{tFW}, s{sW}, 3")
    a(f"s_lshl_b32 s{tFW}, s{tFW}, 14")
    a(f"s_add_u32 s{tFW}, s{tFW}, {112 * 2048}")
    a(f"s_mov_b32 s{R_WT + 2}, {144 * 2048}")
    if "p3b" in OPT: stamp(a, 5)
    a("s_barrier")
    if "p3b" in OPT: stamp(a, 6)
    a(lead(2))

    def pw(o):
        base, off = (AW, o * 16384) if o < 4 else ((AW + 1, (o - 4) * 16384) if o < 6 else (AW + 2, (o - 6) * 16384))
        return [f"ds_write_b128 v{base}, {vr(G_ + 8 * o, 4)} offset:{off}",
                f"ds_write_b128 v{base}, {vr(G_ + 8 * o + 4, 4)} offset:{off + 1024}"]

    XV = 244
    wreg = lambda i: RING + 4 * i if i < 12 else NM + 4 * (i - 12)

    def wol(g):
        return [f"buffer_load_dwordx4 {vr(wreg(4 * g + q), 4)}, v{A16}, {sr(R_WT)}, s{tFW} offen offset:{q * 1024} sc1" for q in range(4)] + \
               [f"s_add_u32 s{tFW}, s{tFW}, 4096"]
    for i in range(8):
        ex = {}
        if i == 0: ex["pv0"] = [f"buffer_load_dwordx4 {vr(XV, 4)}, v{AOUT}, {sr(S_X)}, 0 offen"]
        if i in (1, 3, 5): ex["pv1"], ex["g1"] = wol(i // 2)[:1], wol(i // 2)[1:2]
        if i in (2, 4, 6): ex["g1"], ex["pv0"] = wol(i // 2 - 1)[2:3], wol(i // 2 - 1)[3:]
        if i == PD: ex["end"] = lead(0)
        a(att_step(i, ex))
    a("s_nop 1")
    a(mfma(O_, V_ + 24 + 4, P_ + 4))
    a(f"s_lshl_b32 s{T0}, s{tQB}, 3")
    a(f"s_add_u32 s{T0}, s{T0}, s{sW}")
    a(f"s_lshl_b32 s{T0}, s{T0}, 5")
    a(f"s_add_u32 s{T0}, s{T0}, s{tHEAD}")
    a(f"s_lshl_b32 s{T0}, s{T0}, 10")
    a(f"s_add_u32 s{T3}, s{T0}, {WS_O}")
    a(f"v_mov_b32 v2, {hx(f2u(2.0 ** 120))}")
    a(f"v_mov_b32 v3, {hx(f2u(2.0 ** -90))}")
    a("s_waitcnt lgkmcnt(0)")
    a("s_nop 3")
    stamp(a, 9)
    a(f"v_add_f32 v1, |v{O_}|, |v{O_ + 1}|")
    for i in range(2, 8):
        a(f"v_add_f32 v1, v1, |v{O_ + i}|")
    a(f"v_cmp_lt_f32 s[40:41], v{O_ + 8}, v2")
    a("v_cmp_lt_f32 s[42:43], v1, v2")
    a(f"v_cmp_le_f32 s[50:51], 0.5, v{O_ + 8}")
    a("v_cmp_le_f32 vcc, v3, v1")
    a("s_or_b64 s[50:51], s[50:51], vcc")
    a("s_and_b64 s[40:41], s[40:41], s[42:43]")
    a("s_and_b64 s[40:41], s[40:41], s[50:51]")
    a("s_cmp_eq_u64 s[40:41], -1")
    a("s_cbranch_scc0 L_fallback")
    a("L_norm:")
    a(f"v_rcp_f32 v2, v{O_ + 8}")
    a("s_nop 0")
    for i in range(8):
        a(f"v_mul_f32 v{O_ + i}, v{O_ + i}, v2")
    for i in range(4):
        a(f"v_cvt_pk_bf16_f32 v{4 + i}, v{O_ + 2 * i}, v{O_ + 2 * i + 1}")
    a(f"buffer_store_dwordx4 v[4:7], v{A16}, {sr(S_WS)}, s{T3} offen sc1")
    a(wol(3)[:4])
    for o in range(8):
        a(pw(o))
    a(f"s_lshl_b32 s{T0}, s{sW}, 14")
    a(f"s_add_u32 s{T1}, s{T0}, 0x8000")
    a(f"s_cmp_lt_u32 s{sW}, 6")
    a(f"s_cselect_b32 s{T0}, s{T0}, s{T1}")
    a(f"v_add_u32 v3, s{T0}, v{A16}")
    a("s_waitcnt vmcnt(4) lgkmcnt(0)")
    a("s_barrier")
    stamp(a, 10)
    a(f"s_cmp_lg_u32 s{sW}, 0")
    a("s_cbranch_scc1 L_o_ns")
    a(f"s_lshl_b32 s{T0}, s{tQB}, 8")
    a(f"s_add_u32 s{T0}, s{T0}, {WS_CNT + C_O * 256}")
    a("v_mov_b32 v1, 1")
    a("s_mov_b64 exec, 1")
    a(f"buffer_atomic_add v1, off, {sr(S_WS)}, s{T0} sc1")
    a("s_mov_b64 exec, -1")
    a("L_o_ns:")
    F_ = G_
    for s in range(8):
        for i in range(2):
            a(f"ds_read_b128 {vr(F_ + 8 * s + 4 * i, 4)}, v3 offset:{(s * 2 + i) * 1024}")
        if s == 6:
            a("s_waitcnt lgkmcnt(10)")
    for s in range(1, 8):
        a(f"s_waitcnt lgkmcnt({2 * (7 - s)})")
        for i in range(4):
            a(f"v_pk_add_f32 {vr(F_ + 2 * i, 2)}, {vr(F_ + 2 * i, 2)}, {vr(F_ + 8 * s + 2 * i, 2)}")
    T_ = F_ + 8
    a(f"v_mov_b32 v4, {hx(f2u(-LOG2E))}")
    for i in range(8):
        a(f"v_mul_f32 v{T_ + i}, v{F_ + i}, v4")
    for i in range(8):
        a(f"v_exp_f32 v{T_ + i}, v{T_ + i}")
    a("s_nop 0")
    for i in range(8):
        a(f"v_add_f32 v{T_ + i}, 1.0, v{T_ + i}")
    for i in range(8):
        a(f"v_rcp_f32 v{T_ + i}, v{T_ + i}")
    a("s_nop 0")
    for i in range(4):
        a(f"v_pk_mul_f32 {vr(F_ + 2 * i, 2)}, {vr(F_ + 2 * i, 2)}, {vr(T_ + 2 * i, 2)}")
    XU = G_ + 16
    for i in range(4):
        a(f"v_lshlrev_b32 v{XU + 2 * i}, 16, v{XV + i}")
        a(f"v_and_b32 v{XU + 2 * i + 1}, 0xffff0000, v{XV + i}")
    a(f"s_lshr_b32 s{T0}, s{sW}, 2")
    a(f"s_lshl_b32 s{T0}, s{T0}, 15")
    a(f"s_and_b32 s{T1}, s{sW}, 3")
    a(f"s_lshl_b32 s{T2}, s{T1}, 11")
    a(f"s_add_u32 s{T0}, s{T0}, s{T2}")
    a(f"v_add_u32 v1, s{T0}, v{A16}")
    a(f"s_lshl_b32 s{T0}, s{sW}, 13")
    a(f"v_add_u32 v3, s{T0}, v{A16}")
    a(f"s_lshl_b32 s{T0}, s{tTT}, 5")
    a(f"s_lshl_b32 s{T1}, s{T1}, 3")
    a(f"s_add_u32 s{T0}, s{T0}, s{T1}")
    a(f"s_lshl_b32 s{T0}, s{T0}, 10")
    a(f"s_add_u32 s{T2}, s{T0}, {WS_O}")
    a(f"s_add_u32 s{T3}, s{T2}, 4096")
    stamp(a, 11)
    a(f"s_cmp_lg_u32 s{sW}, 0")
    a("s_cbranch_scc1 L_o_ok")
    a(f"s_lshl_b32 s{T0}, s{sXCD}, 8")
    a(f"s_add_u32 s{T0}, s{T0}, {WS_CNT + C_O * 256}")
    a(f"s_mov_b32 s{T1}, {SPIN}")
    a("L_o_poll:")
    a(f"buffer_load_dword v4, off, {sr(S_WS)}, s{T0} sc1")
    a("s_waitcnt vmcnt(0)")
    a("v_readfirstlane_b32 s40, v4")
    a("s_cmp_ge_u32 s40, 32")
    a("s_cbranch_scc1 L_o_ok")
    a(f"s_sub_u32 s{T1}, s{T1}, 1")
    a(f"s_cmp_lg_u32 s{T1}, 0")
    a("s_cbranch_scc1 L_o_poll")
    a("L_o_ok:")
    a("s_barrier")
    stamp(a, 12)
    OF = S0
    SA = V_
    for j in range(8):
        so = T2 if j < 4 else T3
        a(f"buffer_load_dwordx4 {vr(OF + 4 * j, 4)}, v{A16}, {sr(S_WS)}, s{so} offen offset:{(j % 4) * 1024} sc1")
    for j in range(8):
        a(f"s_waitcnt vmcnt({7 - j})")
        for ap in range(2):
            a(mfma(SA + 16 * ap, wreg(2 * j + ap), OF + 4 * j, "0" if j == 0 else None))
    stamp(a, 13)
    a("s_nop 11")
    for o in range(4):
        for i in range(2):
            a(f"ds_write_b128 v1, {vr(SA + 8 * o + 4 * i, 4)} offset:{o * 8192 + i * 1024}")
    a("s_waitcnt lgkmcnt(0)")
    a("s_barrier")
    for s in range(4):
        for i in range(2):
            a(f"ds_read_b128 {vr(SA + 8 * s + 4 * i, 4)}, v3 offset:{(s * 2 + i) * 1024}")
    for s in range(1, 4):
        a(f"s_waitcnt lgkmcnt({2 * (3 - s)})")
        for i in range(4):
            a(f"v_pk_add_f32 {vr(SA + 2 * i, 2)}, {vr(SA + 2 * i, 2)}, {vr(SA + 8 * s + 2 * i, 2)}")
    for i in range(4):
        a(f"v_pk_fma_f32 {vr(XU + 2 * i, 2)}, {vr(SA + 2 * i, 2)}, {vr(F_ + 2 * i, 2)}, {vr(XU + 2 * i, 2)}")
    for i in range(4):
        a(f"v_cvt_pk_bf16_f32 v{4 + i}, v{XU + 2 * i}, v{XU + 2 * i + 1}")
    fl = " sc1" if "osc1" in OPT else (" nt" if "ont" in OPT else (" sc0 sc1" if "osc01" in OPT else ""))
    a(f"buffer_store_dwordx4 v[4:7], v{AOUT}, {sr(R_OUT)}, 0 offen{fl}")
    stamp(a, 14)
    stamp_flush(a)
    a("L_exit:")
    a("s_endpgm")
    a("L_fallback:")
    a(f"s_lshl_b32 s{T0}, s{tHEAD}, 16")
    a(f"s_add_u32 s{T0}, s{T0}, {32 << 16}")
    a(f"s_mov_b32 s{T1}, 0")
    a("v_mov_b32 v1, 0xff800000")
    a("L_fb1:")
    a(f"s_add_u32 s{T2}, s{T0}, s{T1}")
    a(f"buffer_load_dwordx4 {vr(K_, 4)}, v{A16}, {sr(S_WS)}, s{T2} offen sc1")
    a("s_waitcnt vmcnt(0)")
    a(mfma(S0, K_, Q_, "0"))
    a("s_nop 15")
    for i in range(0, 16, 2):
        a(f"v_max3_f32 v1, v1, v{S0 + i}, v{S0 + i + 1}")
    a(f"s_add_u32 s{T1}, s{T1}, 1024")
    a(f"s_cmp_lt_u32 s{T1}, 65536")
    a("s_cbranch_scc1 L_fb1")
    a("v_mov_b32 v2, v1")
    a("s_nop 1")
    a("v_permlane32_swap_b32 v1, v2")
    a("v_max_f32 v1, v1, v2")
    a("v_sub_f32 v1, 0, v1")
    for i in range(16):
        a(f"v_mov_b32 v{NM + i}, v1")
    for i in range(16):
        a(f"v_mov_b32 v{O_ + i}, 0")
    a("v_lshrrev_b32 v2, 5, v0")
    a("v_and_b32 v3, 15, v0")
    a("v_lshlrev_b32 v3, 4, v3")
    a("v_lshl_add_u32 v3, v2, 8, v3")
    a(f"s_mov_b32 s{T1}, 0")
    a("L_fb2:")
    a(f"s_add_u32 s{T2}, s{T0}, s{T1}")
    a(f"buffer_load_dwordx4 {vr(K_, 4)}, v{A16}, {sr(S_WS)}, s{T2} offen sc1")
    a(f"s_add_u32 s{T2}, s{T2}, {32 << 16}")
    a(f"s_mov_b64 exec, s[{tVM}:{tVM + 1}]")
    a(f"buffer_load_dwordx4 {vr(V_, 4)}, v3, {sr(S_WS)}, s{T2} offen sc1")
    a(f"buffer_load_dwordx4 {vr(V_ + 4, 4)}, v3, {sr(S_WS)}, s{T2} offen offset:512 sc1")
    a("s_mov_b64 exec, -1")
    a("s_waitcnt vmcnt(0)")
    a(mfma(S0, K_, Q_, NM))
    a("s_nop 15")
    for i in range(16):
        a(f"v_exp_f32 v{S0 + i}, v{S0 + i}")
    a("s_nop 0")
    for i in range(8):
        a(f"v_cvt_pk_bf16_f32 v{P_ + i}, v{S0 + 2 * i}, v{S0 + 2 * i + 1}")
    a("s_nop 1")
    a(mfma(O_, V_, P_))
    a(mfma(O_, V_ + 4, P_ + 4))
    a(f"s_add_u32 s{T1}, s{T1}, 1024")
    a(f"s_cmp_lt_u32 s{T1}, 65536")
    a("s_cbranch_scc1 L_fb2")
    a("s_nop 15")
    a("s_branch L_norm")


def main(out):
    a = Asm()
    k = NAME + "_kernel"
    hdr = ["; LN + MHA + GEGLU block, one persistent launch; generated by gen4.py (hand-scheduled gfx950 assembly)",
           "; @launch grid=(256,1,1) block=(512,1,1) lds=163840"]
    a('.amdgcn_target "amdgcn-amd-amdhsa--gfx950"')
    a(".text")
    a(f".globl {k}\n.p2align 8\n.type {k},@function\n{k}:")
    gen_p1(a)
    gen_p2(a)
    gen_side(a)
    a("L_end:")
    a('.section .rodata,"a"')
    a(".p2align 6")
    a(f".amdhsa_kernel {k}")
    a(f".amdhsa_next_free_vgpr {NVGPR}")
    a(f".amdhsa_next_free_sgpr {96 if (STAMPS or ENC is not None) else 80}")
    a(f".amdhsa_accum_offset {(NVGPR + 3) // 4 * 4}")
    a(".amdhsa_group_segment_fixed_size 0")
    a(".amdhsa_kernarg_size 80")
    a(".amdhsa_user_sgpr_count 2")
    a(".amdhsa_user_sgpr_kernarg_segment_ptr 1")
    a(".amdhsa_system_sgpr_workgroup_id_x 1")
    a(".end_amdhsa_kernel")
    open(out, "w").write("\n".join(hdr) + "\n" + a.text())


if __name__ == "__main__":
    for x in list(sys.argv):
        if x.startswith("--opt="):
            OPT = set(x[6:].split(","))
            sys.argv.remove(x)
    for x in list(sys.argv):
        if x.startswith("--enc="):
            ENC = int(x[6:])
            sys.argv.remove(x)
    for o in OPT:
        if o.startswith("sig"): SIGU = int(o[3:])
        if o.startswith("chk"): CHK = int(o[3:])
        if o.startswith("wk"): WK = int(o[2:])
        if o.startswith("vb"): VBUD = int(o[2:])
        if o.startswith("pc"): PC = (int(o[2]), int(o[3]))
        if o.startswith("pd"): PD = int(o[2])
        if o.startswith("pg"): PG = int(o[2])
    if "--cyc" in sys.argv:
        STAMPS = 2
        sys.argv.remove("--cyc")
    if "--stamps" in sys.argv:
        STAMPS = True
        sys.argv.remove("--stamps")
    main(sys.argv[1] if len(sys.argv) > 1 else f"cdna_kernels/{NAME}.s")
```

```python
import sys, struct, math

NAME = "recurrent_scan__mha_block__glu_gated_geglu__prompt"

WS_QKV = 0
WS_H = 6 << 20
WS_O = 14 << 20
WS_CNT = 16 << 20
WS_STAMP = (16 << 20) + 65536
WS_CS = (16 << 20) + 0xb0000
WS_ST = (16 << 20) + 0x80000
WS_CQ = (16 << 20) + 0xa0000
WS_RS = (16 << 20) + 0x84000
WS_CP = (19 << 20) + 0x80000
WS_WT = 17 << 20
WS_SIZE = 21 << 20
OOB = 0x7f000000

LOG2E = 1.4426950408889634
QSCALE = 0.25 * LOG2E
GC1 = -2.0 * LOG2E * math.sqrt(2.0 / math.pi)
GC2 = GC1 * 0.044715
MAXOFF = 80.0
SPIN = 0x40000

STAMPS = False
OPT = set()
NOSTAMP = False
ENC = None


def f2u(x):
    return struct.unpack("<I", struct.pack("<f", x))[0]


def hx(x):
    return "0x%08x" % (x & 0xffffffff)


class Asm:
    def __init__(self):
        self.l = []

    def __call__(self, s):
        if isinstance(s, (list, tuple)):
            for x in s:
                self(x)
            return
        for line in s.split("\n"):
            line = line.strip()
            if not line:
                continue
            if line.endswith(":") or line.startswith("."):
                self.l.append(line)
            else:
                self.l.append("    " + line)

    def text(self):
        return "\n".join(self.l) + "\n"


def vr(b, n):
    return f"v[{b}:{b + n - 1}]"


def sr(b):
    return f"s[{b}:{b + 3}]"


def mfma(d, a, b, c=None):
    cs = vr(d, 16) if c is None else (c if isinstance(c, str) else vr(c, 16))
    return f"v_mfma_f32_32x32x16_bf16 {vr(d, 16)}, {vr(a, 4)}, {vr(b, 4)}, {cs}"


def stamp(a, n):
    if ENC is not None:
        if n in (0, ENC) and not NOSTAMP:
            a("s_memrealtime s[76:77]")
            a("s_waitcnt lgkmcnt(0)")
            a(f"s_mov_b32 s{80 if n == 0 else 81}, s76")
            if n == 0:
                a("s_mov_b32 s81, s76")
        return
    if not STAMPS or (NOSTAMP and n != 15) or ("min" in OPT and n not in (0, 15)):
        return
    a("s_memtime s[76:77]" if STAMPS == 2 else "s_memrealtime s[76:77]")
    a("s_waitcnt lgkmcnt(0)")
    a(f"s_mov_b32 s{80 + n}, s76")


def stampl(n):
    t = Asm()
    stamp(t, n)
    return [x.strip() for x in t.l]


def stamp_flush(a):
    if ENC is not None:
        a("s_waitcnt vmcnt(0)")
        a("s_memrealtime s[76:77]")
        a("s_waitcnt lgkmcnt(0)")
        if ENC == 15:
            a("s_mov_b32 s81, s76")
        if ENC == 99:
            a(["v_mov_b32 v1, 0", f"global_load_dword v2, v1, s[{pDBG}:{pDBG + 1}] offset:240 sc1", "s_waitcnt vmcnt(0)",
               "v_readfirstlane_b32 s80, v2", "s_not_b32 s80, s80", "s_sub_u32 s80, s80, 100"])
        a("s_sub_u32 s81, s81, s80")
        a("s_cmp_lt_u32 s2, 32" if "encs" not in OPT else "s_cmp_ge_u32 s2, 32")
        a("s_cselect_b32 s81, 0, s81")
        a("s_mov_b32 s80, s76")
        a("L_enc:")
        a("s_memrealtime s[76:77]")
        a("s_waitcnt lgkmcnt(0)")
        a("s_sub_u32 s76, s76, s80")
        a("s_cmp_lt_u32 s76, s81")
        a("s_cbranch_scc1 L_enc")
        return
    if not STAMPS:
        return
    a("s_waitcnt vmcnt(0)")
    stamp(a, 15)
    a("v_mov_b32 v1, 0")
    for n in range(16):
        a(f"v_writelane_b32 v1, s{80 + n}, {n}")
    a("s_lshl_b32 s76, s2, 3")
    a(f"s_add_u32 s76, s76, s{sW}")
    a("s_lshl_b32 s76, s76, 6")
    a(f"s_add_u32 s76, s76, {WS_STAMP}")
    a("v_lshlrev_b32 v2, 2, v0")
    a("s_mov_b64 exec, 0xffff")
    a(f"buffer_store_dword v1, v2, {sr(S_WS)}, s76 offen")


def srd(a, s, ptr, size):
    a(f"s_mov_b32 s{s}, s{ptr}")
    a(f"s_mov_b32 s{s + 1}, s{ptr + 1}")
    a(f"s_mov_b32 s{s + 2}, {size}")
    a(f"s_mov_b32 s{s + 3}, 0x00020000")


pX, pWQKV, pWO, pG, pU, pWD, pOUT, pDBG, pWS = 56, 58, 60, 64, 66, 68, 70, 72, 74
S_T, S_X, S_W0, S_W1, S_W3, S_WS = 4, 8, 12, 16, 20, 24
R_OUT, R_H0, R_H1, R_WT = 4, 12, 16, 20
sW, sTT, sHF, sRB, sCB, sROT, sISS, sVAR = 28, 29, 30, 31, 32, 33, 34, 35
sCQ, sCG, sXROW, sLW = 36, 37, 42, 43
T0, T1, T2, T3 = 44, 45, 46, 47
sXCD, sT, sG, sKV = 49, 52, 53, 50
tHEAD, tQB, tIT, tFH, tFW, tTT = 38, 39, 33, 36, 37, 48
tVM = 54

AR, BR, CR, SL = 0, 49152, 98304, 16384
SCR = 147456
XA, VXS, VW0, WQ, WC = 4, 8, 9, 10, 12
VW1, VW3, L16, MASK, ONES, STV, POLL = 14, 15, 16, 17, 18, 20, 21
CSA = 24
WF = 32
ACF, ACQ = 64, 96
XF = 128
Q_, K_, P_, NM, S0, S1, RING = 8, 12, 20, 28, 44, 60, 76
AK, AV, A16, AOUT = 124, 125, 126, 127
G_, V_, O_, AW = 128, 192, 224, 240
NVGPR = 256
C_H, C_CS, C_O = 24, 40, 56
T4 = 63
sCF, sCNT = 51, 62


def tiny(d, a_, b_, first=False):
    return f"v_mfma_f32_4x4x4_16b_bf16 {vr(d, 4)}, {vr(a_, 2)}, {vr(b_, 2)}, {'0' if first else vr(d, 4)}"


def dma(S, ffn=True):
    sl = (S % 3) * SL
    if S < 8:
        r = [[f"s_add_u32 s{T1}, s{sROT}, {S}", f"s_and_b32 s{T1}, s{T1}, 7",
              f"s_lshl_b32 s{T0}, s{T1}, 7", f"s_add_u32 m0, s{sLW}, {AR + sl}", f"s_add_u32 s{T0}, s{T0}, s{sXROW}",
              f"buffer_load_dwordx4 v{VXS}, {sr(S_X)}, s{T0} offen lds"],
             [f"s_mul_i32 s{T1}, s{T1}, {64 * 3072}", f"s_add_u32 m0, s{sLW}, {BR + sl}", f"s_add_u32 s{T1}, s{T1}, s{sCQ}",
              f"buffer_load_dwordx4 v{VW0}, {sr(S_W0)}, s{T1} offen lds"],
             [f"s_add_u32 m0, s{sLW}, {AR + sl + 8192}", f"s_add_u32 s{T0}, s{T0}, 0x10000",
              f"buffer_load_dwordx4 v{VXS}, {sr(S_X)}, s{T0} offen lds"],
             [f"s_add_u32 m0, s{sLW}, {BR + sl + 8192 - 128}", "s_nop 0",
              f"buffer_load_dwordx4 v{VW0}, {sr(S_W0)}, s{T1} offen offset:128 lds"]]
        if ffn and S >= 2:
            r += [[f"s_add_u32 s{T4}, s{sROT}, {S - 2}", f"s_and_b32 s{T4}, s{T4}, 7", f"s_mul_i32 s{T4}, s{T4}, {64 * 3584}",
                   f"s_add_u32 m0, s{sLW}, {CR + sl}", f"s_add_u32 s{T4}, s{T4}, s{sCG}",
                   f"buffer_load_dwordx4 v{VW1}, {sr(S_W1)}, s{T4} offen lds"],
                  [f"s_add_u32 m0, s{sLW}, {CR + sl + 8192}", "s_nop 0",
                   f"buffer_load_dwordx4 v{VW3}, {sr(S_W3)}, s{T4} offen lds"]]
        return r
    if not ffn:
        return []
    r = []
    off = 128 if S > 8 else 0
    for hb, base in enumerate((BR, CR)):
        r += [[f"s_add_u32 s{T1}, s{sROT}, {(2 * (S - 9) + hb) & 7}", f"s_and_b32 s{T1}, s{T1}, 7",
               f"s_mul_i32 s{T1}, s{T1}, {64 * 3584}", f"s_add_u32 m0, s{sLW}, {base + sl - off}", f"s_add_u32 s{T1}, s{T1}, s{sCG}",
               f"buffer_load_dwordx4 v{VW1}, {sr(S_W1)}, s{T1} offen offset:{off} lds"],
              [f"s_add_u32 m0, s{sLW}, {base + sl + 8192 - off}", "s_nop 0",
               f"buffer_load_dwordx4 v{VW3}, {sr(S_W3)}, s{T1} offen offset:{off} lds"]]
    return r


def fset(k, ffn):
    return WF + 16 * (k & 1) if (ffn and k >= 8) else WF + 8 * (k & 3)


def rd1(k, nt, ffn):
    S, ks = k >> 2, k & 3
    sl = (S % 3) * SL
    F = fset(k, ffn)
    r = [f"ds_read_b128 {vr(XF + 4 * k, 4)}, v{XA + ks} offset:{sl}"]
    for t in range(nt):
        for t2 in range(2):
            r.append(f"ds_read_b64_tr_b16 {vr(F + 4 * t + 2 * t2, 2)}, v{WQ + t} offset:{sl + ks * 2048 + t2 * 512}")
    if ffn and k >= 8:
        for c in range(2):
            for t2 in range(2):
                r.append(f"ds_read_b64_tr_b16 {vr(F + 8 + 4 * c + 2 * t2, 2)}, v{WC + c} offset:{sl + ks * 2048 + t2 * 512}")
    return r


def rd2(u):
    S = 8 + (u >> 2)
    sl = (S % 3) * SL
    base = WQ if (u & 3) < 2 else WC
    F = WF + 16 * (u & 1)
    return [f"ds_read_b64_tr_b16 {vr(F + 8 * q + 4 * c + 2 * t2, 2)}, v{base + c} offset:{sl + ((2 * u + q) & 3) * 2048 + t2 * 512}"
            for q in range(2) for c in range(2) for t2 in range(2)]


def flat(L):
    return [x for at in L for x in ([at] if isinstance(at, str) else at)]


def spread(heads, first, rest):
    n = len(heads)
    pf = -(-len(first) // max(1, n - 1)) if first else 0
    res = []
    for j, hd in enumerate(heads):
        res.append(hd)
        res += flat(first[j * pf:(j + 1) * pf])
        res += flat(rest[j * len(rest) // n:(j + 1) * len(rest) // n])
    return res


def nvm(lines):
    return sum(1 for l in lines if l.startswith("buffer_") or l.startswith("global_"))


def weave(heads, fills):
    res = []
    per = -(-len(fills) // len(heads)) if fills else 0
    i = 0
    for hd in heads:
        res.append(hd)
        for at in fills[i:i + per]:
            res += [at] if isinstance(at, str) else at
        i += per
    return res


def tr_addr(dst, t_a, t_b):
    return [f"v_lshrrev_b32 v{t_a}, 5, v0", f"v_bfe_u32 v{t_b}, v0, 2, 2", f"v_lshl_add_u32 v{dst}, v{t_a}, 2, v{t_b}",
            f"v_lshlrev_b32 v{dst}, 7, v{dst}", f"v_and_b32 v{t_a}, 1, v0", f"v_lshl_add_u32 v{dst}, v{t_a}, 6, v{dst}",
            f"v_bfe_u32 v{t_a}, v0, 4, 1", f"v_lshl_add_u32 v{dst}, v{t_a}, 4, v{dst}", f"v_bfe_u32 v{t_a}, v0, 1, 1",
            f"v_lshl_add_u32 v{dst}, v{t_a}, 3, v{dst}", f"v_lshrrev_b32 v{t_b}, 1, v{t_b}", f"v_lshl_add_u32 v{dst}, v{t_b}, 5, v{dst}"]


def split3(w, src):
    return [f"v_and_b32 v{w}, v{MASK}, v{src}", f"v_sub_f32 v{w + 2}, v{src}, v{w}",
            f"v_and_b32 v{w + 1}, v{MASK}, v{w + 2}", f"v_sub_f32 v{w + 2}, v{w + 2}, v{w + 1}", f"v_mov_b32 v{w + 3}, 0"]


def poll_issue(lbl, mask_instrs, reg=POLL):
    return ([f"s_cmp_lg_u32 s{sW}, 0", f"s_cbranch_scc1 {lbl}", "v_lshlrev_b32 v1, 8, v0"] + mask_instrs +
            ["s_mov_b64 exec, s[40:41]",
             f"buffer_load_dword v{reg}, v1, {sr(S_WS)}, s{sCNT} offen sc1", "s_mov_b64 exec, -1", f"{lbl}:"])


def poll_check(lbl, thr, reg=POLL, sleep=8):
    return [f"s_cmp_lg_u32 s{sW}, 0", f"s_cbranch_scc1 {lbl}_ok",
            f"s_mov_b32 s{T3}, {SPIN}", "s_mov_b64 exec, s[40:41]", f"{lbl}_spin:",
            f"v_cmp_gt_u32 vcc, {thr}, v{reg}", "s_cmp_eq_u64 vcc, 0", f"s_cbranch_scc1 {lbl}_done",
            f"s_sleep {sleep}",
            f"buffer_load_dword v{reg}, v1, {sr(S_WS)}, s{sCNT} offen sc1", "s_waitcnt vmcnt(0)",
            f"s_sub_u32 s{T3}, s{T3}, 1", f"s_cmp_lg_u32 s{T3}, 0", f"s_cbranch_scc1 {lbl}_spin",
            f"{lbl}_done:", "s_mov_b64 exec, -1", f"{lbl}_ok:"]


QKV_MASK = [f"s_lshl_b32 s40, 0x10101, s{sXCD}", "s_mov_b32 s41, 0"]
CS_MASK = ["s_mov_b32 s40, 0", f"s_lshl_b32 s41, 0x100, s{sCF}"]
H_MASK = ["s_mov_b32 s40, 0xff000000", "s_mov_b32 s41, 0xff"]


def cs_issue(lbl, n):
    return [f"s_cmp_lg_u32 s{sW}, 0", f"s_cbranch_scc1 {lbl}", "v_lshlrev_b32 v1, 6, v0", "s_mov_b64 exec, 15",
            f"global_load_dword v{POLL}, v1, s[{pDBG}:{pDBG + 1}] offset:{4 * n} sc1", "s_mov_b64 exec, -1", f"{lbl}:"]


def cs_signal(lbl, n):
    return [f"s_cmp_lg_u32 s{sW}, 0", f"s_cbranch_scc1 {lbl}", f"s_and_b32 s{T2}, s{sRB}, 3", f"s_lshl_b32 s{T2}, s{T2}, 6",
            f"v_mov_b32 v2, s{T2}", "v_mov_b32 v3, 1", "s_mov_b64 exec, 1",
            f"global_atomic_add v2, v3, s[{pDBG}:{pDBG + 1}] offset:{4 * n} sc1", "s_mov_b64 exec, -1", f"{lbl}:"]


def cs_check(lbl, n):
    return [f"s_cmp_lg_u32 s{sW}, 0", f"s_cbranch_scc1 {lbl}_ok",
            f"s_mov_b32 s{T3}, {SPIN}", "s_mov_b64 exec, 15", f"{lbl}_spin:",
            f"v_cmp_gt_u32 vcc, 8, v{POLL}", "s_cmp_eq_u64 vcc, 0", f"s_cbranch_scc1 {lbl}_done",
            "s_sleep 8",
            f"global_load_dword v{POLL}, v1, s[{pDBG}:{pDBG + 1}] offset:{4 * n} sc1", "s_waitcnt vmcnt(0)",
            f"s_sub_u32 s{T3}, s{T3}, 1", f"s_cmp_lg_u32 s{T3}, 0", f"s_cbranch_scc1 {lbl}_spin",
            f"{lbl}_done:", "s_mov_b64 exec, -1", f"{lbl}_ok:"]


def flag_check(lbl):
    return [f"s_cmp_lg_u32 s{sW}, 0", f"s_cbranch_scc1 {lbl}",
            f"s_mov_b32 s{T3}, {SPIN}", f"{lbl}_spin:",
            f"v_readfirstlane_b32 s{T2}, v{POLL}", f"s_cmp_lg_u32 s{T2}, 0", f"s_cbranch_scc1 {lbl}",
            "s_sleep 8", "v_mov_b32 v2, 0",
            f"global_load_dword v{POLL}, v2, s[{pDBG}:{pDBG + 1}] offset:32 sc1", "s_waitcnt vmcnt(0)",
            f"s_sub_u32 s{T3}, s{T3}, 1", f"s_cmp_lg_u32 s{T3}, 0", f"s_cbranch_scc1 {lbl}_spin", f"{lbl}:"]


def sig_qkv(lbl):
    return [f"s_cmp_lg_u32 s{sW}, 0", f"s_cbranch_scc1 {lbl}",
            f"s_mul_i32 s{T2}, s{sCB}, 3", f"s_lshr_b32 s{T2}, s{T2}, 1", f"s_and_b32 s{T3}, s{sCB}, 1",
            f"v_add_u32 v2, s{T2}, v0", "v_lshlrev_b32 v2, 8, v2",
            f"v_xor_b32 v3, s{T3}, v0", "v_sub_u32 v3, 2, v3",
            "s_mov_b64 exec, 3", f"buffer_atomic_add v3, v2, {sr(S_WS)}, s{sCNT} offen sc1", "s_mov_b64 exec, -1", f"{lbl}:"]


def sig_one(lbl, idx_instrs, skip_side=False):
    c = [f"s_or_b32 s{T0}, s{sW}, s{sISS}"] if skip_side else [f"s_cmp_lg_u32 s{sW}, 0"]
    return (c + [f"s_cbranch_scc1 {lbl}"] + idx_instrs +
            [f"s_lshl_b32 s{T0}, s{T0}, 8", f"s_add_u32 s{T0}, s{T0}, s{sCNT}", "v_mov_b32 v3, 1", "s_mov_b64 exec, 1",
             f"buffer_atomic_add v3, off, {sr(S_WS)}, s{T0} sc1", "s_mov_b64 exec, -1", f"{lbl}:"])


def kv(i, r=L16):
    return [[f"s_lshl1_add_u32 m0, s{sLW}, {i * 16384}" if i else f"s_lshl_b32 m0, s{sLW}, 1",
             f"s_add_u32 s{T2}, s{sKV}, {i * 8192}",
             f"buffer_load_dwordx4 v{r}, {sr(S_WS)}, s{T2} offen sc1 lds"],
            [f"s_lshl1_add_u32 m0, s{sLW}, {i * 16384 + 1024}", f"s_add_u32 s{T2}, s{sKV}, {i * 8192 + (32 << 16)}",
             f"buffer_load_dwordx4 v{r}, {sr(S_WS)}, s{T2} offen sc1 lds"]]


def q_load():
    return [f"s_lshl_b32 s{T2}, s{tQB}, 13", f"s_add_u32 s{T2}, s{T2}, s{sKV}", f"s_sub_u32 s{T2}, s{T2}, {32 << 16}",
            f"buffer_load_dwordx4 {vr(Q_, 4)}, v{L16}, {sr(S_WS)}, s{T2} offen sc1"]


def p2_init_v():
    return ([["v_and_b32 v3, 27, v0", "v_cmp_eq_u32 vcc, 16, v3", f"v_mov_b32 v{V_ + 1}, 0x3f803f80", "v_mov_b32 v3, 0",
              f"v_cndmask_b32 v{V_}, v3, v{V_ + 1}, vcc", f"v_mov_b32 v{V_ + 1}, v{V_}"]] +
            [f"v_mov_b64 v[{V_ + i}:{V_ + i + 1}], v[{V_}:{V_ + 1}]" for i in range(2, 32, 2)])


TRA, TRD = 142, 144


def tr_setup():
    A, B, C, D = T2, T3, tVM + 1, tVM
    return [[f"s_sub_u32 s{C}, s2, 32", f"s_mul_i32 s{D}, s{sW}, 144", f"s_add_u32 s{D}, s{D}, s{C}", f"s_lshl_b32 s{D}, s{D}, 11",
             f"s_add_u32 s{D}, s{D}, {WS_WT}", f"s_cmp_lt_u32 s{C}, 144", f"s_cselect_b32 s{D}, s{D}, {OOB}",
             f"s_cmp_lt_u32 s{C}, 112", f"s_cselect_b32 s{S_T}, s{pWD}, s{pWO}",
             f"s_cselect_b32 s{S_T + 1}, s{pWD + 1}, s{pWO + 1}", f"s_mov_b32 s{S_T + 2}, 1835008",
             f"s_cselect_b32 s{S_T + 2}, s{S_T + 2}, 524288", f"s_cselect_b32 s{A}, 0, 112", f"s_mov_b32 s{S_T + 3}, 0x00020000",
             f"s_sub_u32 s{C}, s{C}, s{A}", f"s_lshl_b32 s{C}, s{C}, 14", f"s_lshl_b32 s{B}, s{sW}, 7", f"s_add_u32 s{C}, s{C}, s{B}"],
            ["v_lshrrev_b32 v2, 3, v0", "v_and_b32 v3, 2, v2", "v_and_b32 v18, 7, v0", "v_xor_b32 v18, v3, v18",
             "v_lshlrev_b32 v18, 4, v18", "v_lshl_add_u32 v18, v2, 10, v18"]]


def tr_dma():
    C = tVM + 1
    return [[f"s_lshl_b32 m0, s{sLW}, 1", f"s_add_u32 s{T3}, s{C}, 8192", f"buffer_load_dwordx4 v18, {sr(S_T)}, s{C} offen lds",
             "s_add_u32 m0, m0, 1024", "s_nop 0", f"buffer_load_dwordx4 v18, {sr(S_T)}, s{T3} offen lds"]]


def tr_rd():
    return [f"ds_read_b64_tr_b16 {vr(TRD + 4 * ap + 2 * t, 2)}, v{TRA + ap} offset:{t * 1024}" for ap in range(2) for t in range(2)]


def tr_st():
    return [f"buffer_store_dwordx4 {vr(TRD, 4)}, v{L16}, {sr(S_WS)}, s{tVM} offen sc1",
            f"buffer_store_dwordx4 {vr(TRD + 4, 4)}, v{L16}, {sr(S_WS)}, s{tVM} offen offset:1024 sc1"]


def gen_p1(a):
    global NOSTAMP
    a("s_cmp_ge_u32 s2, 256")
    a("s_cbranch_scc1 L_exit")
    stamp(a, 0)
    a(f"s_load_dwordx4 s[{pX}:{pX + 3}], s[0:1], 0")
    a(f"s_load_dwordx4 s[{pG}:{pG + 3}], s[0:1], 32")
    a(f"s_load_dwordx2 s[{pWO}:{pWO + 1}], s[0:1], 16")
    a(f"s_load_dwordx4 s[{pWD}:{pWD + 3}], s[0:1], 48")
    a(f"s_load_dwordx4 s[{pDBG}:{pDBG + 3}], s[0:1], 64")
    a("v_lshrrev_b32 v1, 6, v0")
    a("v_and_b32 v0, 63, v0")
    a(f"v_readfirstlane_b32 s{sW}, v1")
    a("s_cmp_ge_u32 s2, 32")
    a("s_cbranch_scc1 L_nocode")
    a("s_getpc_b64 s[40:41]")
    a("L_here:")
    a("v_lshlrev_b32 v2, 13, v1")
    a("v_lshl_add_u32 v2, v0, 7, v2")
    a("v_min_u32 v2, L_end-L_here-4, v2")
    a("v_mov_b32 v3, s41")
    a("v_add_co_u32 v2, vcc, s40, v2")
    a("s_nop 1")
    a("v_addc_co_u32 v3, vcc, 0, v3, vcc")
    a(f"global_load_dword v{STV}, v[2:3], off")
    a("L_nocode:")
    a(f"s_and_b32 s{sXCD}, s2, 7")
    a(f"s_lshr_b32 s{T1}, s2, 3")
    a(f"s_and_b32 s{sRB}, s{sXCD}, 3")
    a(f"s_and_b32 s{T2}, s{T1}, 3")
    a(f"s_lshl2_add_u32 s{sRB}, s{sRB}, s{T2}")
    a(f"s_lshr_b32 s{sCF}, s{sXCD}, 2")
    a(f"s_lshr_b32 s{sISS}, s{T1}, 2")
    a(f"s_lshl3_add_u32 s{sCB}, s{sCF}, s{sISS}")
    if "norot" in OPT:
        a(f"s_mov_b32 s{sROT}, 0")
    else:
        a(f"s_lshl1_add_u32 s{sROT}, s{sXCD}, s{sISS}")
    a(f"s_lshl_b32 s{sLW}, s{sW}, 10")
    a(f"s_lshl_b32 s{T2}, s{sW}, 3")
    a(f"s_lshl_b32 s{sXROW}, s{sRB}, 7")
    a(f"s_add_u32 s{sXROW}, s{sXROW}, s{T2}")
    a(f"s_lshl_b32 s{sXROW}, s{sXROW}, 10")
    a(f"s_mul_i32 s{sCQ}, s{sCB}, 3")
    a(f"s_lshr_b32 s{sCQ}, s{sCQ}, 1")
    a(f"s_lshl_b32 s{sCQ}, s{sCQ}, 7")
    a(f"s_mul_i32 s{T3}, s{T2}, 3072")
    a(f"s_add_u32 s{sCQ}, s{sCQ}, s{T3}")
    a(f"s_mul_i32 s{T3}, s{T2}, 3584")
    a(f"s_sub_u32 s{sCF}, s{sCB}, s{sCF}")
    a(f"s_sub_u32 s{sCF}, s{sCF}, 1")
    a(f"s_lshl_b32 s{sCG}, s{sCF}, 8")
    a(f"s_add_u32 s{sCG}, s{sCG}, s{T3}")
    a(f"s_cmp_eq_u32 s{sISS}, 0")
    a(f"s_cselect_b32 s{sISS}, 1, 0")
    a(f"s_cselect_b32 s{sCG}, {OOB}, s{sCG}")
    a("v_lshrrev_b32 v1, 3, v0")
    a("v_and_b32 v2, 7, v0")
    a(f"v_add_u32 v3, s{T2}, v1")
    a("v_bfe_u32 v3, v3, 1, 3")
    a("v_xor_b32 v3, v3, v2")
    a("v_lshlrev_b32 v3, 4, v3")
    a(f"v_lshl_add_u32 v{VXS}, v1, 10, v3")
    a("v_and_b32 v3, 2, v1")
    a("v_lshlrev_b32 v3, 1, v3")
    a("v_xor_b32 v3, v3, v2")
    a("v_lshlrev_b32 v3, 4, v3")
    a("v_mul_u32_u24 v4, 3072, v1")
    a(f"v_add_u32 v{VW0}, v4, v3")
    a("v_mul_u32_u24 v4, 3584, v1")
    a(f"v_add_u32 v{VW1}, v4, v3")
    a(f"v_xor_b32 v{VW3}, 32, v{VW1}")
    for r_, sz in ((S_X, 2097152), (S_W0, 1572864), (S_W1, 1835008), (S_W3, 1835008)):
        a(f"s_mov_b32 s{r_ + 2}, {sz}")
        a(f"s_mov_b32 s{r_ + 3}, 0x00020000")
    a("s_waitcnt lgkmcnt(0)")
    for r_, p_ in ((S_X, pX), (S_W0, pWQKV), (S_W1, pG), (S_W3, pU)):
        a(f"s_mov_b64 s[{r_}:{r_ + 1}], s[{p_}:{p_ + 1}]")
    a(f"s_cmp_eq_u32 s{sISS}, 1")
    a("s_cbranch_scc1 L_nod0")
    a(dma(0))
    if "tlb" in OPT:
        a("s_branch L_nod1")
    a("L_nod0:")
    if "tlb" in OPT:
        a(f"s_and_b32 s{T0}, s{sRB}, 3")
        a(f"s_lshl2_add_u32 s{T0}, s{sW}, s{T0}")
        a(f"s_sub_u32 s{T1}, s{T0}, 4")
        a(f"s_min_u32 s{T1}, s{T1}, 10")
        a(f"s_lshl_b32 s{T1}, s{T1}, 21")
        a(f"s_add_u32 s40, s{pWS}, s{T1}")
        a(f"s_addc_u32 s41, s{pWS + 1}, 0")
        for i, p_ in ((0, pG), (1, pU), (2, pWQKV), (3, pDBG), (15, pWD), (16, pWO), (17, pOUT)):
            a(f"s_cmp_eq_u32 s{T0}, {i}")
            a(f"s_cselect_b64 s[40:41], s[{p_}:{p_ + 1}], s[40:41]")
        a("v_mov_b32 v3, 0")
        a("s_mov_b64 exec, 1")
        a(f"global_load_dword v{STV}, v3, s[40:41] offset:192 sc1")
        a("s_mov_b64 exec, -1")
        a("L_nod1:")
    a(f"v_lshlrev_b32 v{L16}, 4, v0")
    a(f"s_and_b32 s{sTT}, s{sW}, 3")
    a(f"s_lshr_b32 s{sHF}, s{sW}, 2")
    a(f"s_mov_b32 s{sCNT}, {WS_CNT}")
    srd(a, S_WS, pWS, WS_SIZE)
    a(f"s_lshl2_add_u32 s{sT}, s{sRB}, s{sTT}")
    a(f"s_mul_i32 s{sG}, s{sCB}, 3")
    a(f"s_lshl1_add_u32 s{sG}, s{sHF}, s{sG}")
    a(f"s_cmp_ge_u32 s{sG}, 32")
    a(f"s_cselect_b32 s{sVAR}, 2, 0")
    a(f"s_add_u32 s{sVAR}, s{sVAR}, s{sHF}")
    a(f"s_lshl_b32 s{sG}, s{sG}, 1")
    a(f"s_lshr_b32 s{T1}, s2, 3")
    a(f"s_and_b32 s{T2}, s{T1}, 3")
    a(f"s_lshl2_add_u32 s{tHEAD}, s{sXCD}, s{T2}")
    a(f"s_lshr_b32 s{tQB}, s{T1}, 2")
    a(f"s_lshl_b32 s{sKV}, s{tHEAD}, 16")
    a(f"s_add_u32 s{sKV}, s{sKV}, s{sLW}")
    a(f"s_add_u32 s{sKV}, s{sKV}, {32 << 16}")
    t4, t6, t7 = WF, WF + 1, WF + 2
    a("v_and_b32 v1, 31, v0")
    a("v_lshrrev_b32 v2, 5, v0")
    a("v_bfe_u32 v3, v0, 1, 3")
    a("v_xor_b32 v3, v3, v2")
    a("v_lshlrev_b32 v3, 4, v3")
    a("v_lshl_add_u32 v3, v1, 7, v3")
    a(f"s_lshl_b32 s{T0}, s{sTT}, 12")
    a(f"v_add_u32 v{XA}, s{T0}, v3")
    for i in range(1, 4):
        a(f"v_xor_b32 v{XA + i}, {32 * i}, v{XA}")
    a("v_bfe_u32 v3, v0, 2, 2")
    a(f"v_lshl_add_u32 v{t4}, v2, 3, v3")
    a(f"v_lshlrev_b32 v{t4}, 7, v{t4}")
    a(f"v_and_b32 v{t7}, 3, v0")
    a(f"v_lshl_add_u32 v{t4}, v{t7}, 3, v{t4}")
    a("v_and_b32 v3, 2, v3")
    a(f"v_bfe_u32 v{t7}, v0, 4, 1")
    a(f"v_xor_b32 v3, v3, v{t7}")
    a(f"s_and_b32 s{T0}, s{sCB}, 1")
    a(f"s_lshl1_add_u32 s{T0}, s{sHF}, s{T0}")
    for t in range(2):
        a(f"s_and_b32 s{T1}, s{T0}, 1")
        a(f"s_lshl_b32 s{T1}, s{T1}, 1")
        a(f"s_lshr_b32 s{T2}, s{T0}, 1")
        a(f"s_lshl_b32 s{T2}, s{T2}, 13")
        a(f"s_add_u32 s{T2}, s{T2}, {BR}")
        a(f"v_xor_b32 v{t6}, s{T1}, v3")
        a(f"v_lshl_add_u32 v{t6}, v{t6}, 5, v{t4}")
        a(f"v_add_u32 v{WQ + t}, s{T2}, v{t6}")
        if t == 0:
            a(f"s_add_u32 s{T0}, s{T0}, 1")
    a(f"v_lshl_add_u32 v{t4}, v{t7}, 13, v{t4}")
    a(f"v_add_u32 v{t4}, {CR}, v{t4}")
    a(f"s_lshl_b32 s{T0}, s{sHF}, 1")
    a(f"v_xor_b32 v{t6}, s{T0}, v3")
    a(f"v_lshl_add_u32 v{WC}, v{t6}, 5, v{t4}")
    a(f"v_xor_b32 v{WC + 1}, 32, v{WC}")
    a(f"v_mov_b32 v{MASK}, 0xffff0000")
    a(f"v_mov_b32 v{ONES}, 0x3f80")
    a(f"s_cmp_eq_u32 s{sISS}, 1")
    a("s_cbranch_scc1 L_side1")
    a([f"s_lshl_b32 s{T0}, s{sW}, 8", f"s_or_b32 s{T0}, s2, s{T0}", f"s_cmp_lg_u32 s{T0}, 32", "s_cbranch_scc1 L_nozero",
       "v_mov_b32 v1, 0", "v_lshlrev_b32 v2, 8, v0", f"buffer_store_dword v1, v2, {sr(S_WS)}, s{sCNT} offen sc1", "L_nozero:"])
    a(dma(1))
    stamp(a, 1)
    for v in range(1, 4):
        a(f"s_cmp_eq_u32 s{sVAR}, {v}")
        a(f"s_cbranch_scc1 L_p1_{v}")
    XOP, RS = XA, 22
    CL, RU, ta, tb, tc = 224, 232, 240, 241, 242
    cs_loads = [[f"s_bitcmp1_b32 s{sRB}, 1", f"s_cselect_b32 s{S_T}, s{pU}, s{pG}", f"s_cselect_b32 s{S_T + 1}, s{pU + 1}, s{pG + 1}",
                 f"s_mov_b32 s{S_T + 2}, 1835008", f"s_mov_b32 s{S_T + 3}, 0x00020000",
                 f"s_lshr_b32 s{T2}, s{sRB}, 2", f"s_lshl3_add_u32 s{T2}, s{T2}, s{sW}", f"s_mul_i32 s{T2}, s{T2}, {16 * 3584}",
                 f"s_and_b32 s{T3}, s{sRB}, 1", f"s_lshl1_add_u32 s{T3}, s{sCF}, s{T3}", f"s_lshl_b32 s{T3}, s{T3}, 7", f"s_add_u32 s{T2}, s{T2}, s{T3}",
                 f"v_lshrrev_b32 v{ta}, 3, v0", f"v_mul_u32_u24 v{ta}, 3584, v{ta}", f"v_and_b32 v{tb}, 7, v0", f"v_lshl_add_u32 v{ta}, v{tb}, 4, v{ta}",
                 f"buffer_load_dwordx4 {vr(CL, 4)}, v{ta}, {sr(S_T)}, s{T2} offen"],
                [f"s_add_u32 s{T2}, s{T2}, {8 * 3584}", f"buffer_load_dwordx4 {vr(CL + 4, 4)}, v{ta}, {sr(S_T)}, s{T2} offen"]]
    SE, DD, RV = 244, 248, 224
    sel = [f"v_and_b32 v{tb}, 15, v0", f"v_and_b32 v{tc}, 1, v0", f"v_lshlrev_b32 v{tc}, 4, v{tc}", f"v_lshlrev_b32 v{tc}, v{tc}, v{ONES}",
           f"v_lshrrev_b32 v{tb}, 1, v{tb}"]
    for i in range(4):
        sel += [[f"v_cmp_eq_u32 vcc, {i}, v{tb}", "s_nop 1", f"v_cndmask_b32 v{SE + i}, 0, v{tc}, vcc"]]
    m16 = lambda c, b_: f"v_mfma_f32_16x16x32_bf16 {vr(DD, 4)}, {vr(SE, 4)}, {vr(b_, 4)}, {c}"
    csv = {8: sel[:5], 9: sel[5:],
           10: [f"v_and_b32 v{tb}, 15, v0", f"v_lshlrev_b32 v{tb}, 5, v{tb}", f"v_lshrrev_b32 v{tc}, 4, v0", f"v_lshl_add_u32 v{tb}, v{tc}, 4, v{tb}",
               [f"s_lshl_b32 s40, s2, 12", f"s_add_u32 s40, s40, {WS_CP}", f"s_lshl_b32 s41, s{sW}, 9", "s_add_u32 s41, s41, s40"]]}
    cs_mm = [m16("0", CL), m16(vr(DD, 4), CL + 4)]
    cs_st = ["s_mov_b32 exec_hi, 0", f"buffer_store_dwordx4 {vr(DD, 4)}, v{tb}, {sr(S_WS)}, s41 offen", "s_mov_b32 exec_hi, -1"]
    cs_l2 = lambda lb: ([f"s_cmp_lg_u32 s{sW}, 0", f"s_cbranch_scc1 {lb}"] +
                        [f"buffer_load_dwordx4 {vr(RV + 4 * i, 4)}, v{L16}, {sr(S_WS)}, s40 offen offset:{1024 * i} sc1" for i in range(4)] + [f"{lb}:"])
    cs_r2 = lambda lb: ([f"s_cmp_lg_u32 s{sW}, 0", f"s_cbranch_scc1 {lb}"] +
                        [f"v_add_f32 v{RV + i}, v{RV + i}, v{RV + 8 + i}" for i in range(8)] +
                        [f"v_add_f32 v{RV + i}, v{RV + i}, v{RV + 4 + i}" for i in range(4)] +
                        [f"v_and_b32 v{ta}, 15, v0", f"v_lshrrev_b32 v{tc}, 4, v0",
                         f"v_permlane16_swap_b32 v{RV}, v{RV + 1}", f"v_permlane16_swap_b32 v{RV + 2}, v{RV + 3}",
                         f"v_add_f32 v{RV}, v{RV}, v{RV + 1}", f"v_add_f32 v{RV + 2}, v{RV + 2}, v{RV + 3}",
                         f"v_lshl_add_u32 v{ta}, v{ta}, 2, v{tc}", f"v_lshlrev_b32 v{ta}, 2, v{ta}",
                         f"v_permlane32_swap_b32 v{RV}, v{RV + 2}", f"v_add_f32 v{RV}, v{RV}, v{RV + 2}",
                         f"s_bfe_u32 s40, s{sRB}, 0x10001", "s_mul_i32 s40, s40, 28", f"s_and_b32 s41, s{sRB}, 1", "s_add_u32 s40, s40, s41",
                         f"s_lshl1_add_u32 s40, s{sCF}, s40", f"s_lshr_b32 s41, s{sRB}, 2", "s_lshl2_add_u32 s40, s40, s41",
                         "s_lshl_b32 s40, s40, 8", f"s_add_u32 s40, s40, {WS_CS}",
                         f"buffer_store_dword v{RV}, v{ta}, {sr(S_WS)}, s40 offen sc1", f"{lb}:"])
    for var in VARS:
        hf, isv, ffn = var & 1, (var >> 1) & 1, var < 4
        nt = 2 - hf
        cnt = lambda S: len(dma(S, ffn))
        a(f"L_p1_{var}:")
        a(f"s_waitcnt vmcnt({cnt(1)})")
        a("s_barrier")
        stamp(a, 2)
        if var == 0:
            a([f"s_lshl_b32 s{T0}, s{sW}, 8", f"s_or_b32 s{T0}, s2, s{T0}", f"s_cmp_lg_u32 s{T0}, 32", "s_cbranch_scc1 L_noflag",
               "v_mov_b32 v2, 0", "v_mov_b32 v3, 1", "s_mov_b64 exec, 1",
               f"global_store_dword v2, v3, s[{pDBG}:{pDBG + 1}] offset:32 sc1", "s_mov_b64 exec, -1", "L_noflag:"])
        a(rd1(0, nt, ffn))
        a(rd1(1, nt, ffn))
        bgq = dma(2, ffn)
        held = []
        sl7 = (7 % 3) * SL
        qrd = lambda h: [f"ds_read_b64_tr_b16 {vr(WF + 16 * h + 8 * q + 4 * t + 2 * t2, 2)}, v{WQ + t} offset:{sl7 + (2 * h + q) * 2048 + t2 * 512}"
                         for q in range(2) for t in range(nt) for t2 in range(2)]
        frd = lambda h: [f"ds_read_b64_tr_b16 {vr(WF + 16 * h + 8 * q + 4 * c + 2 * t2, 2)}, v{WC + c} offset:{sl7 + (2 * h + q) * 2048 + t2 * 512}"
                         for q in range(2) for c in range(2) for t2 in range(2)]
        CK = 5 if ffn else 6
        prep = [f"v_lshlrev_b32 v2, 16, v{STV}", f"v_rcp_f32 v{RS}, v2"]
        for t in range(nt):
            w = CSA + 4 * t
            prep += [f"v_add_f32 v{w}, v{w}, v{w + 1}", f"v_add_f32 v{w + 2}, v{w + 2}, v{w + 3}", f"v_add_f32 v{w + 3}, v{w}, v{w + 2}"] + split3(w, w + 3)
        for k in range(28 if ffn else 32):
            S, ks = k >> 2, k & 3
            F = fset(k, ffn)
            x = XF + 4 * k
            c0 = "0" if k == 0 else None
            big = [mfma(ACQ + 16 * t, x, F + 4 * t, c0) if isv else mfma(ACQ + 16 * t, F + 4 * t, x, c0) for t in range(nt)]
            light = not ffn or k < 8
            if not light:
                big += [mfma(ACF + 16 * c, F + 8 + 4 * c, x - 32, "0" if k == 8 else None) for c in range(2)]
            if light and k % 2 == 0 and k < 30:
                held = big
                continue
            big, held = held + big, []
            val = []
            if ks == 3:
                n = cnt(S + 2) + ({1: 2}.get(S, 0) if ffn else 0)
                a(f"s_waitcnt vmcnt({n}) lgkmcnt(0)")
                if S == CK and not hf: a(cs_check(f"L_c1{var}", 0))
                if S < 7: a("s_barrier")
                if "p1b" in OPT: stamp(a, 4 + S)
                if ffn and S == 2:
                    big = cs_mm + big
                    bgq.append(cs_st)
                if ffn and S == 3 and not hf: bgq.append(cs_l2(f"L_l2{var}"))
                if ffn and S == 4 and not hf: bgq.append(cs_r2(f"L_r2{var}"))
                if S == 3 and not hf:
                    bgq.append([f"s_cmp_lg_u32 s{sW}, 0", f"s_cbranch_scc1 L_nofl{var}", "v_mov_b32 v2, 0",
                                f"global_load_dword v{POLL}, v2, s[{pDBG}:{pDBG + 1}] offset:32 sc1", f"L_nofl{var}:"])
                if S == CK - 1 and not hf:
                    bgq.append(flag_check(f"L_fc{var}") + cs_issue(f"L_i1{var}", 0))
                if S == 5 and ffn and not hf:
                    bgq.append(sig_one(f"L_sc{var}", [f"s_add_u32 s{T0}, s{sCF}, {C_CS}"]))
                if S == 5:
                    ad = [f"v_and_b32 v{VXS}, 31, v0", f"v_lshlrev_b32 v{VXS}, 2, v{VXS}", "v_lshrrev_b32 v3, 5, v0",
                          f"v_lshl_add_u32 v{VW0}, v3, 10, v{VXS}", f"s_lshl_b32 s{T2}, s{sT}, 7", f"s_add_u32 s{T2}, s{T2}, {WS_ST}"]
                    for t in range(nt):
                        ad += [f"s_add_u32 s{T3}, s{sG}, {2 * t}", f"s_lshr_b32 s{40 + t}, s{T3}, 2", f"s_lshl_b32 s{40 + t}, s{40 + t}, 11",
                               f"s_and_b32 s{T3}, s{T3}, 2", f"s_lshl_b32 s{T3}, s{T3}, 6", f"s_add_u32 s{40 + t}, s{40 + t}, s{T3}",
                               f"s_add_u32 s{40 + t}, s{40 + t}, {WS_CQ}"]
                    bgq.append(ad)
                if S == CK:
                    ld = [f"buffer_load_dword v{STV}, v{VXS}, {sr(S_WS)}, s{T2} offen sc1"]
                    for t in range(nt):
                        ld += [f"buffer_load_dword v{CSA + 4 * t + i}, v{VW0}, {sr(S_WS)}, s{40 + t} offen offset:{256 * i} sc1" for i in range(4)]
                    if isv:
                        ld += [f"s_lshl_b32 s{T3}, s{sW}, 8", f"s_add_u32 m0, s{T3}, {SCR}", f"s_add_u32 s{T2}, s{T2}, {WS_RS - WS_ST}",
                               f"buffer_load_dword v{VXS}, {sr(S_WS)}, s{T2} offen sc1 lds"]
                    bgq += [ld[:5], ld[5:]]
                if S == 6 and ffn:
                    if not hf: bgq.append(poll_issue(f"L_i2{var}", CS_MASK))
                    val = prep
                if S < 7: bgq += dma(S + 3, ffn)
                if S == 0 and ffn: bgq += cs_loads
                if S == 5 and isv:
                    bgq.append([f"s_lshl_b32 s{T3}, s{sW}, 8", f"s_add_u32 s{T3}, s{T3}, {SCR}",
                                "v_lshrrev_b32 v3, 5, v0", "v_lshlrev_b32 v18, 4, v3", f"v_add_u32 v18, s{T3}, v18",
                                "v_bfe_u32 v23, v0, 4, 1", "v_lshlrev_b32 v23, 16, v23", "v_lshl_add_u32 v23, v3, 8, v23",
                                "v_and_b32 v3, 15, v0", "v_lshl_add_u32 v23, v3, 4, v23"])
            elif k == 30:
                a("s_waitcnt vmcnt(0) lgkmcnt(0)")
                val = prep
            else:
                a("s_waitcnt lgkmcnt(0)")
            if k == 31:
                break
            if ffn and k in csv: val = csv[k]
            left = 4 if ks == 3 else 3 - ks
            if k == 27: left = 3
            if not ffn: left = 2 if (ks == 3 and S < 6) else 1
            if ffn and k < 7: left = 2 if ks == 3 else 1
            take = -(-len(bgq) // left)
            extra, bgq = bgq[:take], bgq[take:]
            if ffn and k >= 7:
                nxt = rd1(k + 1, nt, ffn) if k < 27 else \
                    [f"ds_read_b128 {vr(XF + 4 * (28 + j), 4)}, v{XA + j} offset:{sl7}" for j in range(4)] + qrd(0)
            else:
                nxt = [] if k == 30 else rd1(k + 1, nt, ffn) + rd1(k + 2, nt, ffn)
            body = spread(big, nxt, val + [[]] * len(extra) + extra)
            a(body)
        pre = [f"v_and_b32 v{XOP}, v{MASK}, v{STV}", f"v_mov_b32 v{XOP + 3}, 0", f"v_mov_b32 v{XOP + 1}, v{XOP}", f"v_mov_b32 v{XOP + 2}, v{XOP}"]
        corr = [mfma(ACQ + 16 * t, XOP, CSA + 4 * t) if isv else mfma(ACQ + 16 * t, CSA + 4 * t, XOP) for t in range(nt)]
        post = [f"s_lshl_b32 s{T4}, s{sG}, 16", f"s_lshl_b32 s{T2}, s{sT}, 10", f"s_add_u32 s{T4}, s{T4}, s{T2}"]

        def stores(t):
            o = ACQ + 16 * t
            if isv:
                return [[f"buffer_store_dwordx4 {vr(o, 4)}, v23, {sr(S_WS)}, s{T4} offen sc1"],
                        [f"buffer_store_dwordx4 {vr(o + 4, 4)}, v23, {sr(S_WS)}, s{T4} offen offset:512 sc1", f"s_add_u32 s{T4}, s{T4}, 0x20000"]]
            return [[f"buffer_store_dwordx4 {vr(o, 4)}, v{L16}, {sr(S_WS)}, s{T4} offen sc1", f"s_add_u32 s{T4}, s{T4}, 0x10000"],
                    [f"buffer_store_dwordx4 {vr(o + 4, 4)}, v{L16}, {sr(S_WS)}, s{T4} offen sc1", f"s_add_u32 s{T4}, s{T4}, 0x10000"]]
        if not ffn:
            assert not bgq
            stamp(a, 3)
            a(big[:1] + pre + ["s_nop 1"] + big[1:nt] + corr + post + ["s_nop 7"])
            for t in range(nt):
                ac = ACQ + 16 * t
                a(f"s_cmp_lt_u32 s{sG}, {32 - 2 * t}")
                a(f"s_cselect_b32 s{T0}, {hx(f2u(QSCALE))}, 1.0")
                a(f"v_mul_f32 v2, s{T0}, v{RS}")
                a(f"v_mul_f32 v3, s{T0}, v{RS}")
                for i in range(8):
                    a(f"v_pk_mul_f32 {vr(ac + 2 * i, 2)}, {vr(ac + 2 * i, 2)}, v[2:3]")
                for i in range(8):
                    a(f"v_cvt_pk_bf16_f32 v{ac + i}, v{ac + 2 * i}, v{ac + 2 * i + 1}")
                a(stores(t))
            stamp(a, 4)
            a("s_branch L_side")
            continue
        qm = lambda h: [mfma(ACQ + 16 * t, XF + 4 * (28 + 2 * h + q), WF + 16 * h + 8 * q + 4 * t) if isv else
                        mfma(ACQ + 16 * t, WF + 16 * h + 8 * q + 4 * t, XF + 4 * (28 + 2 * h + q)) for q in range(2) for t in range(nt)]
        fm = lambda h: [mfma(ACF + 16 * c, WF + 16 * h + 8 * q + 4 * c, XF + 4 * (20 + 2 * h + q)) for q in range(2) for c in range(2)]
        half = -(-len(bgq) // 2)
        a("s_waitcnt lgkmcnt(0)")
        a(spread(qm(0), qrd(1), pre + bgq[:half]))
        a("s_waitcnt lgkmcnt(0)")
        rsv = lambda g: [f"ds_read_b128 {vr(CSA + 4 * j, 4)}, v18 offset:{(2 * g + j) * 32}" for j in range(2)]
        a(corr + (rsv(0) if isv else []))
        a(spread(qm(1), frd(0), [f"v_subrev_u32 v{WQ + c}, {CR - BR}, v{WC + c}" for c in range(2)] + bgq[half:]))
        adr = [["v_bfe_u32 v2, v0, 4, 1", "v_mul_u32_u24 v2, 28672, v2", "v_lshrrev_b32 v3, 5, v0",
                "v_lshl_add_u32 v2, v3, 9, v2", "v_and_b32 v3, 15, v0", f"v_lshl_add_u32 v{VXS}, v3, 2, v2",
                f"s_lshl_b32 s{sVAR}, s{sCF}, 11", f"s_add_u32 s{sVAR}, s{sVAR}, {WS_CS + 128 * hf}"] + post]
        if isv:
            e1, e2 = [], []
            for t in range(nt):
                ac = ACQ + 16 * t
                e1 += [f"v_mul_f32 v{ac + i}, v{ac + i}, v{CSA + i}" for i in range(8)]
                e2 += [f"v_mul_f32 v{ac + 8 + i}, v{ac + 8 + i}, v{CSA + i}" for i in range(8)]
                e2 += [f"v_cvt_pk_bf16_f32 v{ac + i}, v{ac + 2 * i}, v{ac + 2 * i + 1}" for i in range(4, 8)]
            e1 += rsv(1)
            for t in range(nt):
                ac = ACQ + 16 * t
                e1 += [f"v_cvt_pk_bf16_f32 v{ac + i}, v{ac + 2 * i}, v{ac + 2 * i + 1}" for i in range(4)]
        else:
            e = []
            for t in range(nt):
                ac = ACQ + 16 * t
                e += [[f"s_cmp_lt_u32 s{sG}, {32 - 2 * t}", f"s_cselect_b32 s{T0}, {hx(f2u(QSCALE))}, 1.0", f"v_mul_f32 v2, s{T0}, v{RS}"]]
                e += [f"v_mul_f32 v{ac + i}, v{ac + i}, v2" for i in range(16)]
                e += [f"v_cvt_pk_bf16_f32 v{ac + i}, v{ac + 2 * i}, v{ac + 2 * i + 1}" for i in range(8)]
            e1, e2 = e[:len(e) * 5 // 8], e[len(e) * 5 // 8:]
        a("s_waitcnt lgkmcnt(0)")
        u3 = spread(fm(0), frd(1), adr + e1)
        a(u3)
        a(f"s_waitcnt vmcnt({4 + nvm(u3)}) lgkmcnt(0)")
        if not hf: a(poll_check(f"L_c2{var}", 16))
        a("s_barrier")
        stamp(a, 3)
        c0l = [[f"buffer_load_dword v{r_}, v{VXS}, {sr(S_WS)}, s{sVAR} offen offset:{(i >> 1) * 64 + (i & 1) * 256} sc1"
                for i, r_ in enumerate(C0R)]]
        a(spread(fm(1), rd2(0), c0l + e2))
        for t in range(nt):
            a(stores(t))
        if var != 3:
            a("s_branch L_pass2")
    a("L_pass2:")
    if "p1b" in OPT: NOSTAMP = True
    stamp(a, 4)
    sH = sG
    a(f"s_mul_i32 s{sH}, s{sT}, 112")
    a(f"s_lshl2_add_u32 s{T0}, s{sCF}, s{sHF}")
    a(f"s_lshl1_add_u32 s{sH}, s{T0}, s{sH}")
    a(f"s_lshl_b32 s{sH}, s{sH}, 10")
    a(f"s_add_u32 s{sH}, s{sH}, {WS_H}")
    cRS, cSD, cC2, CO, QP = 22, 23, 19, 132, 140
    q = CSA

    def gelu_plain(g, off):
        u = g + 8
        R = range(8)
        return ([f"v_mul_f32 v{g + i}, v{g + i}, v{cRS}" for i in R] + [f"v_mul_f32 v{q + i}, v{g + i}, v{g + i}" for i in R] +
                [f"v_fmaak_f32 v{q + i}, v{q + i}, v{cC2}, {hx(f2u(GC1))}" for i in R] + [f"v_mul_f32 v{q + i}, v{q + i}, v{g + i}" for i in R] +
                [f"v_exp_f32 v{q + i}, v{q + i}" for i in R] + [f"v_mul_f32 v{g + i}, v{g + i}, v{u + i}" for i in R] +
                [f"v_fma_f32 v{q + i}, v{q + i}, v{cSD}, v{cSD}" for i in R] + [f"v_rcp_f32 v{q + i}, v{q + i}" for i in R] +
                [f"v_mul_f32 v{g + i}, v{g + i}, v{q + i}" for i in R] +
                [f"v_cvt_pk_bf16_f32 v{g + i}, v{g + 2 * i}, v{g + 2 * i + 1}" for i in range(4)] +
                [f"buffer_store_dwordx4 {vr(g, 4)}, v{L16}, {sr(S_WS)}, s{sH} offen offset:{off} sc1"])
    vq = []
    wt = lambda at: sum(2 if (x.startswith("v_exp") or x.startswith("v_rcp")) else 1 for x in ([at] if isinstance(at, str) else at))
    cs_ld = lambda dst, pr: [[f"buffer_load_dword v{dst + 4 * c + i}, v{VXS}, {sr(S_WS)}, s{sVAR} offen offset:{1024 * pr + c * 64 + i * 256} sc1"
                              for c in range(2) for i in range(2)]]
    ts = tr_setup()
    d = dma(10)
    bgq, hist = [ts[0], d[0], ts[1], d[1], d[2], d[3]], []
    after = lambda key: nvm([l for l in hist[len(hist) - hist[::-1].index(key):] if "s62" not in l])
    for v in range(20):
        S, us = 8 + (v >> 2), v & 3
        F = WF + 16 * (v & 1)
        acc, k0 = (ACF, 24 + 2 * v) if v < 4 else (ACQ, 2 * (v - 4))
        big = [mfma(acc + 16 * c, F + 8 * qq + 4 * c, XF + 4 * (k0 + qq), "0" if (v == 4 and qq == 0) else None)
               for qq in range(2) for c in range(2)]
        if us == 3:
            if S == 8:
                a([f"s_cmp_eq_u32 s{sHF}, 0", "s_cbranch_scc1 L_w8", "s_waitcnt vmcnt(6)", "L_w8:", "s_waitcnt vmcnt(8) lgkmcnt(0)"])
            elif S < 12:
                a(f"s_waitcnt vmcnt({after(dma(S + 1)[-1][0]) - 1}) lgkmcnt(0)")
            elif CHK == 11:
                a(f"s_waitcnt vmcnt({after(kv(0)[1][1]) - 1}) lgkmcnt(0)")
            else:
                a("s_waitcnt lgkmcnt(0)")
            if S == CHK:
                a([f"s_cmp_lg_u32 s{sW}, 0", "s_cbranch_scc1 L_w10", f"s_waitcnt vmcnt({after('L_pq:')})", "L_w10:"])
                a(poll_check("L_cq", 32, QP, 4))
            a("s_barrier")
            if "p2b" in OPT: stamp(a, S - 2)
            if S == 8:
                bgq += tr_dma() + dma(11)
                for c in range(2):
                    w = CSA + 4 * c
                    vq += [f"v_add_f32 v{w + 3}, v{C0R[2 * c]}, v{C0R[2 * c + 1]}"] + split3(w, w + 3)
                vq += ["UNIT", mfma(ACF, CSA, XOP), mfma(ACF + 16, CSA + 4, XOP),
                       f"v_lshlrev_b32 v{cSD}, 16, v{STV}", f"v_mov_b32 v{cC2}, {hx(f2u(GC2))}", "UNIT"]
                vq += gelu_plain(ACF, 0) + gelu_plain(ACF + 16, 1024)
            if S == 9:
                bgq += [sig_qkv("L_sq")] + cs_ld(CO, 1) + dma(12)
                bgq += [tr_addr(TRA, 2, 3) + [f"s_lshl_b32 s{T2}, s{sLW}, 1", f"v_add_u32 v{TRA}, s{T2}, v{TRA}", f"v_xor_b32 v{TRA + 1}, 32, v{TRA}"]]
            if S == 10:
                bgq += [tr_rd()]
            if S == CHK - 1:
                bgq += [[]] * (2 - len(bgq)) + [poll_issue("L_pq", QKV_MASK, QP)]
            if S == 11 and CHK == 11:
                bgq += kv(0) + kv(1) + [q_load()] + kv(2)
            if S == 12:
                bgq += kv(3) if CHK == 11 else kv(0) + [q_load()] + kv(1)
                if "prio" in OPT:
                    a("s_setprio 1")
                    a(lead(2))
        else:
            a("s_waitcnt lgkmcnt(0)")
        if v == 16:
            for c in range(2):
                w = CO + 4 * c
                vq += [f"v_add_f32 v{w + 3}, v{w}, v{w + 1}"] + split3(w, w + 3) + [["s_nop 1", mfma(ACQ + 16 * c, w, XOP)]]
            vq += p2_init_v()
        left = 1 if v == 19 else (4 if us == 3 else 3 - us)
        take = -(-len(bgq) // left)
        extra, bgq = bgq[:take], bgq[take:]
        val, budget = [], (1000 if v == 19 else VBUD)
        while vq and vq[0] != "UNIT" and budget > 0:
            budget -= wt(vq[0])
            val.append(vq.pop(0))
        if vq and vq[0] == "UNIT":
            vq.pop(0)
        body = spread(big, rd2(v + 1) if v < 19 else [], val[:len(val) // 2] + extra + val[len(val) // 2:])
        hist += body
        a(body)
    assert not bgq and not vq
    if "p2b" in OPT: NOSTAMP = True
    stamp(a, 5)
    RS2, SD2 = 240, 242
    a(f"v_mov_b32 v{RS2}, v{cRS}")
    a(f"v_mov_b32 v{RS2 + 1}, v{cRS}")
    a(f"v_mov_b32 v{SD2}, v{cSD}")
    a(f"v_mov_b32 v{SD2 + 1}, v{cSD}")
    a(f"v_mov_b32 v248, v{cC2}")
    a(f"v_mov_b32 v249, v{cC2}")
    a(f"v_mov_b32 v250, {hx(f2u(GC1))}")
    a("v_mov_b32 v251, v250")
    a(f"s_add_u32 s{sH}, s{sH}, 4096")
    a("s_nop 4")
    for c in (0, 1):
        g = ACQ + 16 * c
        u = g + 8
        q = 32 + (c & 1) * 8
        o = 52 + c * 4
        for i in range(4):
            a(f"v_pk_mul_f32 {vr(g + 2 * i, 2)}, {vr(g + 2 * i, 2)}, {vr(RS2, 2)}")
        for i in range(4):
            a(f"v_pk_mul_f32 {vr(q + 2 * i, 2)}, {vr(g + 2 * i, 2)}, {vr(g + 2 * i, 2)}")
        for i in range(4):
            a(f"v_pk_fma_f32 {vr(q + 2 * i, 2)}, {vr(q + 2 * i, 2)}, v[248:249], v[250:251]")
        for i in range(4):
            a(f"v_pk_mul_f32 {vr(q + 2 * i, 2)}, {vr(q + 2 * i, 2)}, {vr(g + 2 * i, 2)}")
        for i in range(8):
            a(f"v_exp_f32 v{q + i}, v{q + i}")
        for i in range(4):
            a(f"v_pk_mul_f32 {vr(g + 2 * i, 2)}, {vr(g + 2 * i, 2)}, {vr(u + 2 * i, 2)}")
        for i in range(4):
            a(f"v_pk_fma_f32 {vr(q + 2 * i, 2)}, {vr(q + 2 * i, 2)}, {vr(SD2, 2)}, {vr(SD2, 2)}")
        for i in range(8):
            a(f"v_rcp_f32 v{q + i}, v{q + i}")
        a("s_nop 0")
        for i in range(4):
            a(f"v_pk_mul_f32 {vr(g + 2 * i, 2)}, {vr(g + 2 * i, 2)}, {vr(q + 2 * i, 2)}")
        for i in range(4):
            a(f"v_cvt_pk_bf16_f32 v{o + i}, v{g + 2 * i}, v{g + 2 * i + 1}")
        a(f"buffer_store_dwordx4 {vr(o, 4)}, v{L16}, {sr(S_WS)}, s{sH} offen offset:{(c & 1) * 1024} sc1")
        if CHK == 12:
            a(kv(2 + c))
        if c == 0:
            a(lead(0))
    a(tr_st())
    a(f"s_waitcnt vmcnt({after(q_load()[-1]) + (4 if CHK == 11 else 8)})")
    if CHK == 12:
        a("s_barrier")


VARS = (0, 4, 5, 1, 2, 3)
VBUD = 15
WK = 8
C0R = (9, 19, 21, 1)
SIGU, CHK = 7, 11


def gen_side(a):
    a("L_side:")
    global NOSTAMP
    NOSTAMP = "side" not in OPT
    a(p2_init_v())
    a("s_waitcnt vmcnt(0)")
    a("s_barrier")
    a(sig_qkv("L_sq2"))
    stamp(a, 10)
    a(sig_one("L_h_ns2", [f"s_add_u32 s{T0}, s{sRB}, {C_H}"]))
    a(poll_issue("L_pq2", QKV_MASK))
    a("s_waitcnt vmcnt(0)")
    a(poll_check("L_cq2", 32, POLL, 6))
    a("s_barrier")
    a(kv(0))
    a(q_load())
    a(kv(1))
    a("s_waitcnt vmcnt(2)")
    a("s_barrier")
    a(kv(2))
    a(kv(3))
    if "prio" in OPT:
        a("s_setprio 1")
        a(lead(2))
    a("s_branch L_p2")
    a("L_side1:")
    XW, QW, CW = 32, 64, 128
    LO, HI, ON = 18, 19, 22
    a("v_lshrrev_b32 v1, 3, v0")
    a("v_and_b32 v2, 7, v0")
    a("v_lshlrev_b32 v2, 4, v2")
    a("v_lshl_add_u32 v3, v1, 10, v2")
    a(f"s_lshl3_add_u32 s{tVM + 1}, s2, s{sW}")
    a(f"s_lshl_b32 s{T0}, s{tVM + 1}, 13")
    for q in range(8):
        a(f"buffer_load_dwordx4 {vr(XW + 4 * q, 4)}, v3, {sr(S_X)}, s{T0} offen offset:{128 * q}")
    sU = sVAR
    a(f"s_and_b32 s{sU}, s{sRB}, 3")
    a(f"s_lshl3_add_u32 s{sU}, s{sU}, s{sW}")
    a(f"s_sub_u32 s{T1}, 31, s{sU}")
    a(f"s_lshl3_add_u32 s41, s{T1}, s{sXCD}")
    a("s_lshl_b32 s41, s41, 8")
    a(f"s_add_u32 s41, s41, {WS_CQ}")
    a(f"s_lshl_b32 s{T0}, s{T1}, 7")
    a(f"s_mul_i32 s{T2}, s{sXCD}, {64 * 3072}")
    a(f"s_add_u32 s{T0}, s{T0}, s{T2}")
    a(f"s_cmp_lt_u32 s{T1}, 24")
    a(f"s_cselect_b32 s{T0}, s{T0}, {OOB}")
    a(f"s_cselect_b32 s41, s41, {OOB}")
    a("v_mul_u32_u24 v3, 3072, v1")
    a("v_add_u32 v3, v3, v2")
    for q in range(8):
        a(f"buffer_load_dwordx4 {vr(QW + 4 * q, 4)}, v3, {sr(S_W0)}, s{T0} offen")
        if q != 7:
            a(f"s_add_u32 s{T0}, s{T0}, {8 * 3072}")
    a(f"v_mov_b32 v{LO}, 0x00003f80")
    a(f"v_mov_b32 v{HI}, 0x3f800000")
    a(f"v_mov_b32 v{ON}, 0x3f803f80")
    RU = 96
    for i in range(0, 28, 2):
        a(f"v_mov_b64 v[{RU + i}:{RU + i + 1}], 0")
    a(["v_and_b32 v2, 8, v0", "v_cmp_eq_u32 vcc, 0, v2", f"v_and_b32 v{POLL}, 7, v0", f"v_lshlrev_b32 v{POLL}, 3, v{POLL}",
       "v_lshrrev_b32 v3, 4, v0", f"v_add_u32 v{POLL}, v{POLL}, v3", "v_lshrrev_b32 v2, 1, v2", f"v_add_u32 v{POLL}, v{POLL}, v2",
       f"v_lshlrev_b32 v{POLL}, 2, v{POLL}"])
    stamp(a, 8)
    m, v_ = RU + 24, RU + 25
    for q in range(8):
        a(f"s_waitcnt vmcnt({15 - q})")
        for i in range(4):
            a(f"v_dot2c_f32_bf16 v{m + 2 * (i & 1)}, v{XW + 4 * q + i}, v{ON}")
            a(f"v_dot2c_f32_bf16 v{v_ + 2 * (i & 1)}, v{XW + 4 * q + i}, v{XW + 4 * q + i}")
    a("s_nop 2")
    a(f"v_add_f32 v{m}, v{m}, v{m + 2}")
    a(f"v_add_f32 v{v_}, v{v_}, v{v_ + 2}")
    for md in ("quad_perm:[1,0,3,2]", "quad_perm:[2,3,0,1]", "row_half_mirror"):
        a("s_nop 0")
        a(f"v_add_f32_dpp v{m}, v{m}, v{m} {md} row_mask:0xf bank_mask:0xf")
        a(f"v_add_f32_dpp v{v_}, v{v_}, v{v_} {md} row_mask:0xf bank_mask:0xf")
    a([f"v_mul_f32 v{m}, {hx(f2u(-1.0 / 512))}, v{m}", f"v_mul_f32 v{v_}, {hx(f2u(1.0 / 512))}, v{v_}",
       f"v_fma_f32 v{v_}, -v{m}, v{m}, v{v_}", f"v_max_f32 v{v_}, 0, v{v_}",
       f"v_cvt_pk_bf16_f32 v{v_}, v{v_}, v{v_}", f"v_and_b32 v{v_}, v{MASK}, v{v_}",
       f"v_add_f32 v{v_}, {hx(f2u(1e-5))}, v{v_}",
       f"v_cvt_pk_bf16_f32 v{v_}, v{v_}, v{v_}", f"v_and_b32 v{v_}, v{MASK}, v{v_}",
       f"v_sqrt_f32 v{v_}, v{v_}", "v_lshlrev_b32 v1, 2, v1",
       f"v_cvt_pk_bf16_f32 v{m}, v{v_}, v{m}",
       f"v_lshlrev_b32 v{v_}, 16, v{m}", f"v_rcp_f32 v{v_}, v{v_}",
       f"s_lshl_b32 s{T0}, s{tVM + 1}, 5", f"s_add_u32 s{T0}, s{T0}, {WS_ST}", f"s_add_u32 s{T1}, s{T0}, {WS_RS - WS_ST}",
       f"s_mov_b32 exec_lo, 0x01010101", "s_mov_b32 exec_hi, 0x01010101",
       f"buffer_store_dword v{m}, v1, {sr(S_WS)}, s{T0} offen sc1",
       f"buffer_store_dword v{v_}, v1, {sr(S_WS)}, s{T1} offen sc1", "s_mov_b64 exec, -1"])

    def colsum(src, n, acc, behind):
        for q in range(n):
            a(f"s_waitcnt vmcnt({n - 1 - q + behind})")
            for i in range(4):
                a(f"v_dot2c_f32_bf16 v{acc + 2 * i}, v{src + 4 * q + i}, v{LO}")
                a(f"v_dot2c_f32_bf16 v{acc + 2 * i + 1}, v{src + 4 * q + i}, v{HI}")
        a("s_nop 2")
        for i in range(4):
            a(f"v_permlane16_swap_b32 v{acc + 2 * i}, v{acc + 2 * i + 1}")
        for i in range(4):
            a(f"v_add_f32 v{acc + 2 * i}, v{acc + 2 * i}, v{acc + 2 * i + 1}")
        a(["s_nop 1", f"v_permlane32_swap_b32 v{acc}, v{acc + 2}", f"v_permlane32_swap_b32 v{acc + 4}, v{acc + 6}",
           f"v_add_f32 v{acc}, v{acc}, v{acc + 2}", f"v_add_f32 v{acc + 4}, v{acc + 4}, v{acc + 6}", "s_nop 1",
           f"v_add_f32_dpp v{acc}, v{acc}, v{acc} row_ror:8 row_mask:0xf bank_mask:0xf",
           f"v_add_f32_dpp v{acc + 4}, v{acc + 4}, v{acc + 4} row_ror:8 row_mask:0xf bank_mask:0xf",
           f"v_cndmask_b32 v{acc + 1}, v{acc + 4}, v{acc}, vcc"])
    colsum(QW, 8, RU, 2)
    a(f"buffer_store_dword v{RU + 1}, v{POLL}, {sr(S_WS)}, s41 offen sc1")
    a(dma(0, False))
    a("s_waitcnt vmcnt(4)")
    a("s_barrier")
    a(cs_signal("L_scs0", 0))
    stamp(a, 12)
    a(dma(1, False))
    stamp(a, 9)
    a(f"s_cmp_eq_u32 s{sHF}, 0")
    a("s_cbranch_scc1 L_p1_4")
    a("s_branch L_p1_5")


def att_step(i, ex=None, first=False):
    ex = ex or {}
    Sc, Sn = (S0, S1) if i % 2 == 0 else (S1, S0)
    Kn = K_ + 4 * ((i + 1) % 2)
    Vc = V_ + 8 * (i % 4)
    Vp = V_ + 8 * ((i - 1) % 4)
    e = lambda k: f"v_exp_f32 v{Sc + k}, v{Sc + k}"
    c = lambda k: f"v_cvt_pk_bf16_f32 v{P_ + k}, v{Sc + 2 * k}, v{Sc + 2 * k + 1}"
    r = [mfma(Sn, Kn, Q_, NM),
         f"ds_read_b128 {vr(Kn, 4)}, v{AK} offset:{(i + 3) * 2048}"]
    r += ex.get("qk", [])
    r += [e(0), e(1), e(2), e(3)]
    if not first:
        r.append(mfma(O_, Vp + 4, P_ + 4))
    if i % 2 == 0:
        r.append(f"s_mov_b64 exec, s[{tVM}:{tVM + 1}]")
        for d in (2, 3):
            vb = V_ + 8 * ((i + d) % 4)
            r.append(f"ds_read_b128 {vr(vb, 4)}, v{AV} offset:{(i + d) * 2048}")
            r.append(f"ds_read_b128 {vr(vb + 4, 4)}, v{AV} offset:{(i + d) * 2048 + 512}")
        r.append("s_mov_b64 exec, -1")
    r += ex.get("pv1", [])
    if "G2" in ex:
        r += [c(0), e(4), e(5), c(1)]
        r += [ex["G1"]] + ex.get("g1", [])
        r += [e(6), e(7), e(8), c(2), c(3), e(9)]
        r += ["s_nop 0", mfma(O_, Vc, P_)]
        if i % 2 == 1: r.append("s_waitcnt lgkmcnt(0)")
        r += ex.get("pv0", [])
        r += [e(10), e(11), c(4), e(12), c(5)]
        r += [ex["G2"]] + ex.get("g2", [])
        r += [e(13), e(14), e(15), c(6), c(7)]
    else:
        r += [c(0), e(4), e(5), c(1), e(6), e(7)]
        if "G1" in ex:
            r += [ex["G1"]]
        r += ex.get("g1", [])
        r += [e(8), c(2), c(3), e(9), e(10), e(11)]
        r.append(mfma(O_, Vc, P_, "0" if first else None))
        if i % 2 == 1: r.append("s_waitcnt lgkmcnt(0)")
        r += ex.get("pv0", [])
        r += [c(4), e(12), e(13), c(5), e(14), e(15), c(6), c(7)]
    r += ex.get("end", [])
    return r


def ring_loads(r):
    b = RING + 16 * r
    return [f"buffer_load_dwordx4 {vr(b, 4)}, v{A16}, {sr(R_H0)}, s{tFH} offen sc1",
            f"buffer_load_dwordx4 {vr(b + 4, 4)}, v{A16}, {sr(R_H1)}, s{tFH} offen sc1",
            f"buffer_load_dwordx4 {vr(b + 8, 4)}, v{A16}, {sr(R_WT)}, s{tFW} offen sc1",
            f"buffer_load_dwordx4 {vr(b + 12, 4)}, v{A16}, {sr(R_WT)}, s{tFW} offen offset:1024 sc1",
            f"s_add_u32 s{tFH}, s{tFH}, 1024",
            f"s_add_u32 s{tFW}, s{tFW}, 2048"]


def gm(r, n):
    b = RING + 16 * r
    return mfma(G_ + 16 * n, b + 8 + 4 * (n & 1), b + 4 * (n >> 1))


_pl = [0]
PC = (2, 6)
PD = 7
PG = 2


def lead(p, cond=None):
    if "prio" not in OPT:
        return []
    _pl[0] += 1
    lb = f"L_pr{_pl[0]}"
    c = [f"s_cmp_lt_u32 s{sW}, 4"] if cond is None else cond
    return c + [f"s_cbranch_scc0 {lb}", f"s_setprio {p}", f"{lb}:"]


def adv(a):
    a(f"v_add_u32 v{AK}, 0x4000, v{AK}")
    a(f"v_add_u32 v{AV}, 0x4000, v{AV}")


def gen_p2(a):
    a("L_p2:")
    if ENC == 99:
        a(["s_lshr_b32 s76, s2, 3", f"s_lshl3_add_u32 s76, s76, s{sW}", "s_cmp_lg_u32 s76, 32", "s_cbranch_scc1 L_nosk",
           "s_not_b32 s76, s80", "v_mov_b32 v1, 0", "v_mov_b32 v2, s76", "s_mov_b64 exec, 1",
           f"global_atomic_umax v1, v2, s[{pDBG}:{pDBG + 1}] offset:240 sc1", "s_mov_b64 exec, -1", "L_nosk:"])
    stamp(a, 6)
    a(f"v_mov_b32 v{A16}, v{L16}")
    a(f"v_mov_b32 v{AK}, v{L16}")
    a("v_lshrrev_b32 v2, 5, v0")
    a("v_and_b32 v3, 15, v0")
    a("v_lshlrev_b32 v3, 4, v3")
    a("v_lshl_add_u32 v3, v2, 8, v3")
    a(f"v_add_u32 v{AV}, 1024, v3")
    a(f"s_mov_b32 s{tVM}, 0x0000ffff")
    a(f"s_mov_b32 s{tVM + 1}, 0x0000ffff")
    a(f"ds_read_b128 {vr(K_, 4)}, v{AK}")
    a(f"ds_read_b128 {vr(K_ + 4, 4)}, v{AK} offset:2048")
    a(f"s_mov_b64 exec, s[{tVM}:{tVM + 1}]")
    for d in range(2):
        a(f"ds_read_b128 {vr(V_ + 8 * d, 4)}, v{AV} offset:{d * 2048}")
        a(f"ds_read_b128 {vr(V_ + 8 * d + 4, 4)}, v{AV} offset:{d * 2048 + 512}")
    a("s_mov_b64 exec, -1")
    a(f"s_lshr_b32 s{T0}, s{sW}, 2")
    a(f"s_lshl1_add_u32 s{tTT}, s{tHEAD}, s{T0}")
    a(f"s_lshl_b32 s{T0}, s{tTT}, 15")
    a(f"s_lshl_b32 s{T1}, s{tQB}, 7")
    a(f"s_add_u32 s{T0}, s{T0}, s{T1}")
    a(f"s_and_b32 s{T1}, s{sW}, 3")
    a(f"s_lshl4_add_u32 s{T0}, s{T1}, s{T0}")
    a("v_and_b32 v1, 31, v0")
    a("v_lshlrev_b32 v1, 10, v1")
    a("v_lshl_add_u32 v1, v2, 6, v1")
    a(f"v_add_u32 v{AOUT}, s{T0}, v1")
    a("s_waitcnt lgkmcnt(4)")
    a(mfma(S0, K_, Q_, "0"))
    a(mfma(S1, K_ + 4, Q_, "0"))
    a(f"s_mul_i32 s{T0}, s{tHEAD}, {224 * 1024}")
    a(f"s_add_u32 s{T0}, s{T0}, {WS_H}")
    a(f"s_add_u32 s{R_H0}, s{pWS}, s{T0}")
    a(f"s_addc_u32 s{R_H0 + 1}, s{pWS + 1}, 0")
    a(f"s_add_u32 s{R_H1}, s{R_H0}, {112 * 1024}")
    a(f"s_addc_u32 s{R_H1 + 1}, s{R_H0 + 1}, 0")
    a(f"s_mul_i32 s{tFH}, s{sW}, {14 * 1024}")
    a(f"s_add_u32 s{R_H0 + 2}, s{tFH}, {14 * 1024}")
    a(f"s_mov_b32 s{R_H1 + 2}, s{R_H0 + 2}")
    a(f"s_mul_i32 s{T0}, s{tQB}, {144 * 2048}")
    a(f"s_add_u32 s{T0}, s{T0}, {WS_WT}")
    a(f"s_add_u32 s{R_WT}, s{pWS}, s{T0}")
    a(f"s_addc_u32 s{R_WT + 1}, s{pWS + 1}, 0")
    a(f"s_lshl_b32 s{tFW}, s{tFH}, 1")
    a(f"s_lshl_b32 s{R_WT + 2}, s{R_H0 + 2}, 1")
    a(f"v_max3_f32 v1, v{S0}, v{S0 + 1}, v{S0 + 2}")
    for i in range(3, 31, 2):
        a(f"v_max3_f32 v1, v1, v{S0 + i}, v{S0 + i + 1}")
    a(f"v_max_f32 v1, v1, v{S0 + 31}")
    a("v_mov_b32 v2, v1")
    a("s_nop 1")
    a("v_permlane32_swap_b32 v1, v2")
    a("v_max_f32 v1, v1, v2")
    a(f"v_sub_f32 v2, {hx(f2u(-MAXOFF))}, v1")
    a("v_mov_b32 v3, v2")
    for i in range(0, 16, 2):
        a(f"v_mov_b64 v[{NM + i}:{NM + i + 1}], v[2:3]")
    a("s_nop 1")
    a(mfma(S0, K_, Q_, NM))
    a(f"ds_read_b128 {vr(K_, 4)}, v{AK} offset:4096")
    srd(a, R_OUT, pOUT, 2097152)
    a(f"s_lshl_b32 s{T0}, s{sW}, 11")
    a(f"v_add_u32 v{AW}, s{T0}, v{A16}")
    a(f"v_add_u32 v{AW + 1}, 0x10000, v{AW}")
    a(f"v_add_u32 v{AW + 2}, 0x20000, v{AW}")
    a("s_waitcnt lgkmcnt(0)")
    a("s_nop 1")
    a(lead(2))
    stamp(a, 7)
    global NOSTAMP
    if "side" in OPT: NOSTAMP = True
    for i in range(8):
        ex = {}
        if i == 4:
            d1, d2 = (stampl(1), stampl(2)) if "p3b" in OPT else ([], [])
            ex["end"] = d1 + ["s_waitcnt vmcnt(0)", "s_barrier"] + d2 + sig_one("L_h_ns", [f"s_add_u32 s{T0}, s{sRB}, {C_H}"], True) + lead(2)
        if i == 3:
            ex["pv0"] = lead(0)
        if i >= 5:
            ex["pv1"], ex["pv0"] = kv(i - 1, A16)
        a(att_step(i, ex, first=(i == 0)))
    adv(a)
    for i in range(8):
        ex = {}
        if i == 0:
            ex["pv1"], ex["pv0"] = kv(7, A16)
            ex["qk"] = [f"v_mov_b64 v[{RING}:{RING + 1}], 0", f"v_mov_b64 v[{RING + 2}:{RING + 3}], 0"]
        if i < 4:
            ex["G1"] = mfma(G_ + 16 * i, RING, RING, "0")
        if i == 3:
            ex["pv0"] = poll_issue("L_h_np", H_MASK, 7) + lead(0)
        if i == 4:
            d1, d2 = (stampl(3), stampl(4)) if "p3b" in OPT else ([], [])
            ex["end"] = d1 + ["s_waitcnt vmcnt(0)"] + poll_check("L_ch", 16, 7, 16) + ["s_barrier"] + d2 + lead(2)
        if i in (5, 6, 7):
            l = ring_loads(i - 5)
            ex["qk"] = l[0:1]
            ex["pv1"] = l[1:3]
            ex["pv0"] = l[3:6]
        a(att_step(i, ex))
    stamp(a, 8)
    a(f"s_mov_b32 s{tIT}, 5")
    a(f"s_lshr_b32 s{sG}, s{sW}, 2")
    a(f"s_lshl_b32 s{sG}, s{sG}, 4")
    a(f"s_add_u32 s{sG}, s{sG}, {PC[0]}")
    a("L_loop:")
    adv(a)
    plan = [[(0, 0)], [(0, 1), (0, 2)], [(0, 3)], [(1, 0), (1, 1)], [(1, 2)], [(1, 3), (2, 0)], [(2, 1)], [(2, 2), (2, 3)]]
    for i in range(8):
        ex = {}
        ex["G1"] = gm(*plan[i][0])
        if len(plan[i]) > 1:
            ex["G2"] = gm(*plan[i][1])
        if i == 0: ex["qk"] = ["s_waitcnt vmcnt(8)"]
        if i == PC[1]: ex["end"] = lead(0, [f"s_cmp_eq_u32 s{tIT}, s{sG}"])
        if i == 2:
            l = ring_loads(0)
            ex["g1"] = l[0:2]
            ex["pv0"] = l[2:6]
        if i == 3: ex["pv1"] = ["s_waitcnt vmcnt(8)"]
        if i == 5:
            l = ring_loads(1)
            ex["g1"] = l[0:2]
            ex["pv0"] = l[2:6] + ["s_waitcnt vmcnt(8)"]
        if i == 7:
            ex["g2"] = ring_loads(2)
        a(att_step(i, ex))
    a(f"s_sub_u32 s{tIT}, s{tIT}, 1")
    a(f"s_cmp_lg_u32 s{tIT}, 0")
    a("s_cbranch_scc1 L_loop")
    adv(a)
    a(f"s_and_b32 s{tFW}, s{sW}, 3")
    a(f"s_lshl_b32 s{tFW}, s{tFW}, 14")
    a(f"s_add_u32 s{tFW}, s{tFW}, {112 * 2048}")
    a(f"s_mov_b32 s{R_WT + 2}, {144 * 2048}")
    if "p3b" in OPT: stamp(a, 5)
    a("s_barrier")
    if "p3b" in OPT: stamp(a, 6)
    a(lead(2))

    def pw(o):
        base, off = (AW, o * 16384) if o < 4 else ((AW + 1, (o - 4) * 16384) if o < 6 else (AW + 2, (o - 6) * 16384))
        return [f"ds_write_b128 v{base}, {vr(G_ + 8 * o, 4)} offset:{off}",
                f"ds_write_b128 v{base}, {vr(G_ + 8 * o + 4, 4)} offset:{off + 1024}"]

    XV = 244
    wreg = lambda i: RING + 4 * i if i < 12 else NM + 4 * (i - 12)

    def wol(g):
        return [f"buffer_load_dwordx4 {vr(wreg(4 * g + q), 4)}, v{A16}, {sr(R_WT)}, s{tFW} offen offset:{q * 1024} sc1" for q in range(4)] + \
               [f"s_add_u32 s{tFW}, s{tFW}, 4096"]
    for i in range(8):
        ex = {}
        if i == 0: ex["pv0"] = [f"buffer_load_dwordx4 {vr(XV, 4)}, v{AOUT}, {sr(S_X)}, 0 offen"]
        if i in (1, 3, 5): ex["pv1"], ex["g1"] = wol(i // 2)[:1], wol(i // 2)[1:2]
        if i in (2, 4, 6): ex["g1"], ex["pv0"] = wol(i // 2 - 1)[2:3], wol(i // 2 - 1)[3:]
        if i == PD: ex["end"] = lead(0)
        a(att_step(i, ex))
    a("s_nop 1")
    a(mfma(O_, V_ + 24 + 4, P_ + 4))
    a(f"s_lshl_b32 s{T0}, s{tQB}, 3")
    a(f"s_add_u32 s{T0}, s{T0}, s{sW}")
    a(f"s_lshl_b32 s{T0}, s{T0}, 5")
    a(f"s_add_u32 s{T0}, s{T0}, s{tHEAD}")
    a(f"s_lshl_b32 s{T0}, s{T0}, 10")
    a(f"s_add_u32 s{T3}, s{T0}, {WS_O}")
    a(f"v_mov_b32 v2, {hx(f2u(2.0 ** 120))}")
    a(f"v_mov_b32 v3, {hx(f2u(2.0 ** -90))}")
    a("s_waitcnt lgkmcnt(0)")
    a("s_nop 3")
    stamp(a, 9)
    a(f"v_add_f32 v1, |v{O_}|, |v{O_ + 1}|")
    for i in range(2, 8):
        a(f"v_add_f32 v1, v1, |v{O_ + i}|")
    a(f"v_cmp_lt_f32 s[40:41], v{O_ + 8}, v2")
    a("v_cmp_lt_f32 s[42:43], v1, v2")
    a(f"v_cmp_le_f32 s[50:51], 0.5, v{O_ + 8}")
    a("v_cmp_le_f32 vcc, v3, v1")
    a("s_or_b64 s[50:51], s[50:51], vcc")
    a("s_and_b64 s[40:41], s[40:41], s[42:43]")
    a("s_and_b64 s[40:41], s[40:41], s[50:51]")
    a("s_cmp_eq_u64 s[40:41], -1")
    a("s_cbranch_scc0 L_fallback")
    a("L_norm:")
    a(f"v_rcp_f32 v2, v{O_ + 8}")
    a("s_nop 0")
    for i in range(8):
        a(f"v_mul_f32 v{O_ + i}, v{O_ + i}, v2")
    for i in range(4):
        a(f"v_cvt_pk_bf16_f32 v{4 + i}, v{O_ + 2 * i}, v{O_ + 2 * i + 1}")
    a(f"buffer_store_dwordx4 v[4:7], v{A16}, {sr(S_WS)}, s{T3} offen sc1")
    a(wol(3)[:4])
    for o in range(8):
        a(pw(o))
    a(f"s_lshl_b32 s{T0}, s{sW}, 14")
    a(f"s_add_u32 s{T1}, s{T0}, 0x8000")
    a(f"s_cmp_lt_u32 s{sW}, 6")
    a(f"s_cselect_b32 s{T0}, s{T0}, s{T1}")
    a(f"v_add_u32 v3, s{T0}, v{A16}")
    a("s_waitcnt vmcnt(4) lgkmcnt(0)")
    a("s_barrier")
    stamp(a, 10)
    a(f"s_cmp_lg_u32 s{sW}, 0")
    a("s_cbranch_scc1 L_o_ns")
    a(f"s_lshl_b32 s{T0}, s{tQB}, 8")
    a(f"s_add_u32 s{T0}, s{T0}, {WS_CNT + C_O * 256}")
    a("v_mov_b32 v1, 1")
    a("s_mov_b64 exec, 1")
    a(f"buffer_atomic_add v1, off, {sr(S_WS)}, s{T0} sc1")
    a("s_mov_b64 exec, -1")
    a("L_o_ns:")
    F_ = G_
    for s in range(8):
        for i in range(2):
            a(f"ds_read_b128 {vr(F_ + 8 * s + 4 * i, 4)}, v3 offset:{(s * 2 + i) * 1024}")
        if s == 6:
            a("s_waitcnt lgkmcnt(10)")
    for s in range(1, 8):
        a(f"s_waitcnt lgkmcnt({2 * (7 - s)})")
        for i in range(4):
            a(f"v_pk_add_f32 {vr(F_ + 2 * i, 2)}, {vr(F_ + 2 * i, 2)}, {vr(F_ + 8 * s + 2 * i, 2)}")
    T_ = F_ + 8
    a(f"v_mov_b32 v4, {hx(f2u(-LOG2E))}")
    for i in range(8):
        a(f"v_mul_f32 v{T_ + i}, v{F_ + i}, v4")
    for i in range(8):
        a(f"v_exp_f32 v{T_ + i}, v{T_ + i}")
    a("s_nop 0")
    for i in range(8):
        a(f"v_add_f32 v{T_ + i}, 1.0, v{T_ + i}")
    for i in range(8):
        a(f"v_rcp_f32 v{T_ + i}, v{T_ + i}")
    a("s_nop 0")
    for i in range(4):
        a(f"v_pk_mul_f32 {vr(F_ + 2 * i, 2)}, {vr(F_ + 2 * i, 2)}, {vr(T_ + 2 * i, 2)}")
    XU = G_ + 16
    for i in range(4):
        a(f"v_lshlrev_b32 v{XU + 2 * i}, 16, v{XV + i}")
        a(f"v_and_b32 v{XU + 2 * i + 1}, 0xffff0000, v{XV + i}")
    a(f"s_lshr_b32 s{T0}, s{sW}, 2")
    a(f"s_lshl_b32 s{T0}, s{T0}, 15")
    a(f"s_and_b32 s{T1}, s{sW}, 3")
    a(f"s_lshl_b32 s{T2}, s{T1}, 11")
    a(f"s_add_u32 s{T0}, s{T0}, s{T2}")
    a(f"v_add_u32 v1, s{T0}, v{A16}")
    a(f"s_lshl_b32 s{T0}, s{sW}, 13")
    a(f"v_add_u32 v3, s{T0}, v{A16}")
    a(f"s_lshl_b32 s{T0}, s{tTT}, 5")
    a(f"s_lshl_b32 s{T1}, s{T1}, 3")
    a(f"s_add_u32 s{T0}, s{T0}, s{T1}")
    a(f"s_lshl_b32 s{T0}, s{T0}, 10")
    a(f"s_add_u32 s{T2}, s{T0}, {WS_O}")
    a(f"s_add_u32 s{T3}, s{T2}, 4096")
    stamp(a, 11)
    a(f"s_cmp_lg_u32 s{sW}, 0")
    a("s_cbranch_scc1 L_o_ok")
    a(f"s_lshl_b32 s{T0}, s{sXCD}, 8")
    a(f"s_add_u32 s{T0}, s{T0}, {WS_CNT + C_O * 256}")
    a(f"s_mov_b32 s{T1}, {SPIN}")
    a("L_o_poll:")
    a(f"buffer_load_dword v4, off, {sr(S_WS)}, s{T0} sc1")
    a("s_waitcnt vmcnt(0)")
    a("v_readfirstlane_b32 s40, v4")
    a("s_cmp_ge_u32 s40, 32")
    a("s_cbranch_scc1 L_o_ok")
    a(f"s_sub_u32 s{T1}, s{T1}, 1")
    a(f"s_cmp_lg_u32 s{T1}, 0")
    a("s_cbranch_scc1 L_o_poll")
    a("L_o_ok:")
    a("s_barrier")
    stamp(a, 12)
    OF = S0
    SA = V_
    for j in range(8):
        so = T2 if j < 4 else T3
        a(f"buffer_load_dwordx4 {vr(OF + 4 * j, 4)}, v{A16}, {sr(S_WS)}, s{so} offen offset:{(j % 4) * 1024} sc1")
    for j in range(8):
        a(f"s_waitcnt vmcnt({7 - j})")
        for ap in range(2):
            a(mfma(SA + 16 * ap, wreg(2 * j + ap), OF + 4 * j, "0" if j == 0 else None))
    stamp(a, 13)
    a("s_nop 11")
    for o in range(4):
        for i in range(2):
            a(f"ds_write_b128 v1, {vr(SA + 8 * o + 4 * i, 4)} offset:{o * 8192 + i * 1024}")
    a("s_waitcnt lgkmcnt(0)")
    a("s_barrier")
    for s in range(4):
        for i in range(2):
            a(f"ds_read_b128 {vr(SA + 8 * s + 4 * i, 4)}, v3 offset:{(s * 2 + i) * 1024}")
    for s in range(1, 4):
        a(f"s_waitcnt lgkmcnt({2 * (3 - s)})")
        for i in range(4):
            a(f"v_pk_add_f32 {vr(SA + 2 * i, 2)}, {vr(SA + 2 * i, 2)}, {vr(SA + 8 * s + 2 * i, 2)}")
    for i in range(4):
        a(f"v_pk_fma_f32 {vr(XU + 2 * i, 2)}, {vr(SA + 2 * i, 2)}, {vr(F_ + 2 * i, 2)}, {vr(XU + 2 * i, 2)}")
    for i in range(4):
        a(f"v_cvt_pk_bf16_f32 v{4 + i}, v{XU + 2 * i}, v{XU + 2 * i + 1}")
    fl = " sc1" if "osc1" in OPT else (" nt" if "ont" in OPT else (" sc0 sc1" if "osc01" in OPT else ""))
    a(f"buffer_store_dwordx4 v[4:7], v{AOUT}, {sr(R_OUT)}, 0 offen{fl}")
    stamp(a, 14)
    stamp_flush(a)
    a("L_exit:")
    a("s_endpgm")
    a("L_fallback:")
    a(f"s_lshl_b32 s{T0}, s{tHEAD}, 16")
    a(f"s_add_u32 s{T0}, s{T0}, {32 << 16}")
    a(f"s_mov_b32 s{T1}, 0")
    a("v_mov_b32 v1, 0xff800000")
    a("L_fb1:")
    a(f"s_add_u32 s{T2}, s{T0}, s{T1}")
    a(f"buffer_load_dwordx4 {vr(K_, 4)}, v{A16}, {sr(S_WS)}, s{T2} offen sc1")
    a("s_waitcnt vmcnt(0)")
    a(mfma(S0, K_, Q_, "0"))
    a("s_nop 15")
    for i in range(0, 16, 2):
        a(f"v_max3_f32 v1, v1, v{S0 + i}, v{S0 + i + 1}")
    a(f"s_add_u32 s{T1}, s{T1}, 1024")
    a(f"s_cmp_lt_u32 s{T1}, 65536")
    a("s_cbranch_scc1 L_fb1")
    a("v_mov_b32 v2, v1")
    a("s_nop 1")
    a("v_permlane32_swap_b32 v1, v2")
    a("v_max_f32 v1, v1, v2")
    a("v_sub_f32 v1, 0, v1")
    for i in range(16):
        a(f"v_mov_b32 v{NM + i}, v1")
    for i in range(16):
        a(f"v_mov_b32 v{O_ + i}, 0")
    a("v_lshrrev_b32 v2, 5, v0")
    a("v_and_b32 v3, 15, v0")
    a("v_lshlrev_b32 v3, 4, v3")
    a("v_lshl_add_u32 v3, v2, 8, v3")
    a(f"s_mov_b32 s{T1}, 0")
    a("L_fb2:")
    a(f"s_add_u32 s{T2}, s{T0}, s{T1}")
    a(f"buffer_load_dwordx4 {vr(K_, 4)}, v{A16}, {sr(S_WS)}, s{T2} offen sc1")
    a(f"s_add_u32 s{T2}, s{T2}, {32 << 16}")
    a(f"s_mov_b64 exec, s[{tVM}:{tVM + 1}]")
    a(f"buffer_load_dwordx4 {vr(V_, 4)}, v3, {sr(S_WS)}, s{T2} offen sc1")
    a(f"buffer_load_dwordx4 {vr(V_ + 4, 4)}, v3, {sr(S_WS)}, s{T2} offen offset:512 sc1")
    a("s_mov_b64 exec, -1")
    a("s_waitcnt vmcnt(0)")
    a(mfma(S0, K_, Q_, NM))
    a("s_nop 15")
    for i in range(16):
        a(f"v_exp_f32 v{S0 + i}, v{S0 + i}")
    a("s_nop 0")
    for i in range(8):
        a(f"v_cvt_pk_bf16_f32 v{P_ + i}, v{S0 + 2 * i}, v{S0 + 2 * i + 1}")
    a("s_nop 1")
    a(mfma(O_, V_, P_))
    a(mfma(O_, V_ + 4, P_ + 4))
    a(f"s_add_u32 s{T1}, s{T1}, 1024")
    a(f"s_cmp_lt_u32 s{T1}, 65536")
    a("s_cbranch_scc1 L_fb2")
    a("s_nop 15")
    a("s_branch L_norm")


def main(out):
    a = Asm()
    k = NAME + "_kernel"
    hdr = ["; LN + MHA + GEGLU block, one persistent launch; generated by gen5.py (hand-scheduled gfx950 assembly)",
           "; @launch grid=(256,1,1) block=(512,1,1) lds=163840"]
    a('.amdgcn_target "amdgcn-amd-amdhsa--gfx950"')
    a(".text")
    a(f".globl {k}\n.p2align 8\n.type {k},@function\n{k}:")
    gen_p1(a)
    gen_p2(a)
    gen_side(a)
    a("L_end:")
    a('.section .rodata,"a"')
    a(".p2align 6")
    a(f".amdhsa_kernel {k}")
    a(f".amdhsa_next_free_vgpr {NVGPR}")
    a(f".amdhsa_next_free_sgpr {96 if (STAMPS or ENC is not None) else 80}")
    a(f".amdhsa_accum_offset {(NVGPR + 3) // 4 * 4}")
    a(".amdhsa_group_segment_fixed_size 0")
    a(".amdhsa_kernarg_size 80")
    a(".amdhsa_user_sgpr_count 2")
    a(".amdhsa_user_sgpr_kernarg_segment_ptr 1")
    a(".amdhsa_system_sgpr_workgroup_id_x 1")
    a(".end_amdhsa_kernel")
    open(out, "w").write("\n".join(hdr) + "\n" + a.text())


if __name__ == "__main__":
    for x in list(sys.argv):
        if x.startswith("--opt="):
            OPT = set(x[6:].split(","))
            sys.argv.remove(x)
    for x in list(sys.argv):
        if x.startswith("--enc="):
            ENC = int(x[6:])
            sys.argv.remove(x)
    for o in OPT:
        if o.startswith("sig"): SIGU = int(o[3:])
        if o.startswith("chk"): CHK = int(o[3:])
        if o.startswith("wk"): WK = int(o[2:])
        if o.startswith("vb"): VBUD = int(o[2:])
        if o.startswith("pc"): PC = (int(o[2]), int(o[3]))
        if o.startswith("pd"): PD = int(o[2])
        if o.startswith("pg"): PG = int(o[2])
    if "--cyc" in sys.argv:
        STAMPS = 2
        sys.argv.remove("--cyc")
    if "--stamps" in sys.argv:
        STAMPS = True
        sys.argv.remove("--stamps")
    main(sys.argv[1] if len(sys.argv) > 1 else f"cdna_kernels/{NAME}.s")
```

```python
import sys, struct, math

NAME = "recurrent_scan__mha_block__glu_gated_geglu__prompt"

WS_QKV = 0
WS_H = 6 << 20
WS_O = 14 << 20
WS_CNT = 16 << 20
WS_STAMP = (16 << 20) + 65536
WS_CS = (16 << 20) + 0xb0000
WS_ST = (16 << 20) + 0x80000
WS_CQ = (16 << 20) + 0xa0000
WS_RS = (16 << 20) + 0x84000
WS_CP = (19 << 20) + 0x80000
WS_WT = 17 << 20
WS_SIZE = 21 << 20
OOB = 0x7f000000

LOG2E = 1.4426950408889634
QSCALE = 0.25 * LOG2E
GC1 = -2.0 * LOG2E * math.sqrt(2.0 / math.pi)
GC2 = GC1 * 0.044715
MAXOFF = 80.0
SPIN = 0x40000

STAMPS = False
OPT = set()
NOSTAMP = False
ENC = None


def f2u(x):
    return struct.unpack("<I", struct.pack("<f", x))[0]


def hx(x):
    return "0x%08x" % (x & 0xffffffff)


class Asm:
    def __init__(self):
        self.l = []

    def __call__(self, s):
        if isinstance(s, (list, tuple)):
            for x in s:
                self(x)
            return
        for line in s.split("\n"):
            line = line.strip()
            if not line:
                continue
            if line.endswith(":") or line.startswith("."):
                self.l.append(line)
            else:
                self.l.append("    " + line)

    def text(self):
        return "\n".join(self.l) + "\n"


def vr(b, n):
    return f"v[{b}:{b + n - 1}]"


def sr(b):
    return f"s[{b}:{b + 3}]"


def mfma(d, a, b, c=None):
    cs = vr(d, 16) if c is None else (c if isinstance(c, str) else vr(c, 16))
    return f"v_mfma_f32_32x32x16_bf16 {vr(d, 16)}, {vr(a, 4)}, {vr(b, 4)}, {cs}"


def stamp(a, n):
    if ENC is not None:
        if n in (0, ENC) and not NOSTAMP:
            a("s_memrealtime s[76:77]")
            a("s_waitcnt lgkmcnt(0)")
            a(f"s_mov_b32 s{80 if n == 0 else 81}, s76")
            if n == 0:
                a("s_mov_b32 s81, s76")
        return
    if not STAMPS or (NOSTAMP and n != 15) or ("min" in OPT and n not in (0, 15)):
        return
    a("s_memtime s[76:77]" if STAMPS == 2 else "s_memrealtime s[76:77]")
    a("s_waitcnt lgkmcnt(0)")
    a(f"s_mov_b32 s{80 + n}, s76")


def stampl(n):
    t = Asm()
    stamp(t, n)
    return [x.strip() for x in t.l]


def stamp_flush(a):
    if ENC is not None:
        a("s_waitcnt vmcnt(0)")
        a("s_memrealtime s[76:77]")
        a("s_waitcnt lgkmcnt(0)")
        if ENC == 15:
            a("s_mov_b32 s81, s76")
        if ENC == 99:
            a(["v_mov_b32 v1, 0", f"global_load_dword v2, v1, s[{pDBG}:{pDBG + 1}] offset:240 sc1", "s_waitcnt vmcnt(0)",
               "v_readfirstlane_b32 s80, v2", "s_not_b32 s80, s80", "s_sub_u32 s80, s80, 100"])
        a("s_sub_u32 s81, s81, s80")
        a("s_cmp_lt_u32 s2, 32" if "encs" not in OPT else "s_cmp_ge_u32 s2, 32")
        a("s_cselect_b32 s81, 0, s81")
        a("s_mov_b32 s80, s76")
        a("L_enc:")
        a("s_memrealtime s[76:77]")
        a("s_waitcnt lgkmcnt(0)")
        a("s_sub_u32 s76, s76, s80")
        a("s_cmp_lt_u32 s76, s81")
        a("s_cbranch_scc1 L_enc")
        return
    if not STAMPS:
        return
    a("s_waitcnt vmcnt(0)")
    stamp(a, 15)
    a("v_mov_b32 v1, 0")
    for n in range(16):
        a(f"v_writelane_b32 v1, s{80 + n}, {n}")
    a("s_lshl_b32 s76, s2, 3")
    a(f"s_add_u32 s76, s76, s{sW}")
    a("s_lshl_b32 s76, s76, 6")
    a(f"s_add_u32 s76, s76, {WS_STAMP}")
    a("v_lshlrev_b32 v2, 2, v0")
    a("s_mov_b64 exec, 0xffff")
    a(f"buffer_store_dword v1, v2, {sr(S_WS)}, s76 offen")


def srd(a, s, ptr, size):
    a(f"s_mov_b32 s{s}, s{ptr}")
    a(f"s_mov_b32 s{s + 1}, s{ptr + 1}")
    a(f"s_mov_b32 s{s + 2}, {size}")
    a(f"s_mov_b32 s{s + 3}, 0x00020000")


pX, pWQKV, pWO, pG, pU, pWD, pOUT, pDBG, pWS = 56, 58, 60, 64, 66, 68, 70, 72, 74
S_T, S_X, S_W0, S_W1, S_W3, S_WS = 4, 8, 12, 16, 20, 24
R_OUT, R_H0, R_H1, R_WT = 4, 12, 16, 20
sW, sTT, sHF, sRB, sCB, sROT, sISS, sVAR = 28, 29, 30, 31, 32, 33, 34, 35
sCQ, sCG, sXROW, sLW = 36, 37, 42, 43
T0, T1, T2, T3 = 44, 45, 46, 47
sXCD, sT, sG, sKV = 49, 52, 53, 50
tHEAD, tQB, tIT, tFH, tFW, tTT = 38, 39, 33, 36, 37, 48
tVM = 54

AR, BR, CR, SL = 0, 49152, 98304, 16384
SCR = 147456
XA, VXS, VW0, WQ, WC = 4, 8, 9, 10, 12
VW1, VW3, L16, MASK, ONES, STV, POLL = 14, 15, 16, 17, 18, 20, 21
CSA = 24
WF = 32
ACF, ACQ = 64, 96
XF = 128
Q_, K_, P_, NM, S0, S1, RING = 8, 12, 20, 28, 44, 60, 76
AK, AV, A16, AOUT = 124, 125, 126, 127
G_, V_, O_, AW = 128, 192, 224, 240
NVGPR = 256
C_H, C_CS, C_O = 24, 40, 56
T4 = 63
sCF, sCNT = 51, 62


def tiny(d, a_, b_, first=False):
    return f"v_mfma_f32_4x4x4_16b_bf16 {vr(d, 4)}, {vr(a_, 2)}, {vr(b_, 2)}, {'0' if first else vr(d, 4)}"


def dma(S, ffn=True):
    sl = (S % 3) * SL
    if S < 8:
        r = [[f"s_add_u32 s{T1}, s{sROT}, {S}", f"s_and_b32 s{T1}, s{T1}, 7",
              f"s_lshl_b32 s{T0}, s{T1}, 7", f"s_add_u32 m0, s{sLW}, {AR + sl}", f"s_add_u32 s{T0}, s{T0}, s{sXROW}",
              f"buffer_load_dwordx4 v{VXS}, {sr(S_X)}, s{T0} offen lds"],
             [f"s_mul_i32 s{T1}, s{T1}, {64 * 3072}", f"s_add_u32 m0, s{sLW}, {BR + sl}", f"s_add_u32 s{T1}, s{T1}, s{sCQ}",
              f"buffer_load_dwordx4 v{VW0}, {sr(S_W0)}, s{T1} offen lds"],
             [f"s_add_u32 m0, s{sLW}, {AR + sl + 8192}", f"s_add_u32 s{T0}, s{T0}, 0x10000",
              f"buffer_load_dwordx4 v{VXS}, {sr(S_X)}, s{T0} offen lds"],
             [f"s_add_u32 m0, s{sLW}, {BR + sl + 8192 - 128}", "s_nop 0",
              f"buffer_load_dwordx4 v{VW0}, {sr(S_W0)}, s{T1} offen offset:128 lds"]]
        if ffn and S >= 2:
            r += [[f"s_add_u32 s{T4}, s{sROT}, {S - 2}", f"s_and_b32 s{T4}, s{T4}, 7", f"s_mul_i32 s{T4}, s{T4}, {64 * 3584}",
                   f"s_add_u32 m0, s{sLW}, {CR + sl}", f"s_add_u32 s{T4}, s{T4}, s{sCG}",
                   f"buffer_load_dwordx4 v{VW1}, {sr(S_W1)}, s{T4} offen lds"],
                  [f"s_add_u32 m0, s{sLW}, {CR + sl + 8192}", "s_nop 0",
                   f"buffer_load_dwordx4 v{VW3}, {sr(S_W3)}, s{T4} offen lds"]]
        return r
    if not ffn:
        return []
    r = []
    off = 128 if S > 8 else 0
    for hb, base in enumerate((BR, CR)):
        r += [[f"s_add_u32 s{T1}, s{sROT}, {(2 * (S - 9) + hb) & 7}", f"s_and_b32 s{T1}, s{T1}, 7",
               f"s_mul_i32 s{T1}, s{T1}, {64 * 3584}", f"s_add_u32 m0, s{sLW}, {base + sl - off}", f"s_add_u32 s{T1}, s{T1}, s{sCG}",
               f"buffer_load_dwordx4 v{VW1}, {sr(S_W1)}, s{T1} offen offset:{off} lds"],
              [f"s_add_u32 m0, s{sLW}, {base + sl + 8192 - off}", "s_nop 0",
               f"buffer_load_dwordx4 v{VW3}, {sr(S_W3)}, s{T1} offen offset:{off} lds"]]
    return r


def fset(k, ffn):
    return WF + 16 * (k & 1) if (ffn and k >= 8) else WF + 8 * (k & 3)


def rd1(k, nt, ffn):
    S, ks = k >> 2, k & 3
    sl = (S % 3) * SL
    F = fset(k, ffn)
    r = [f"ds_read_b128 {vr(XF + 4 * k, 4)}, v{XA + ks} offset:{sl}"]
    for t in range(nt):
        for t2 in range(2):
            r.append(f"ds_read_b64_tr_b16 {vr(F + 4 * t + 2 * t2, 2)}, v{WQ + t} offset:{sl + ks * 2048 + t2 * 512}")
    if ffn and k >= 8:
        for c in range(2):
            for t2 in range(2):
                r.append(f"ds_read_b64_tr_b16 {vr(F + 8 + 4 * c + 2 * t2, 2)}, v{WC + c} offset:{sl + ks * 2048 + t2 * 512}")
    return r


def rd2(u):
    S = 8 + (u >> 2)
    sl = (S % 3) * SL
    base = WQ if (u & 3) < 2 else WC
    F = WF + 16 * (u & 1)
    return [f"ds_read_b64_tr_b16 {vr(F + 8 * q + 4 * c + 2 * t2, 2)}, v{base + c} offset:{sl + ((2 * u + q) & 3) * 2048 + t2 * 512}"
            for q in range(2) for c in range(2) for t2 in range(2)]


def flat(L):
    return [x for at in L for x in ([at] if isinstance(at, str) else at)]


def spread(heads, first, rest):
    n = len(heads)
    pf = -(-len(first) // max(1, n - 1)) if first else 0
    res = []
    for j, hd in enumerate(heads):
        res.append(hd)
        res += flat(first[j * pf:(j + 1) * pf])
        res += flat(rest[j * len(rest) // n:(j + 1) * len(rest) // n])
    return res


def nvm(lines):
    return sum(1 for l in lines if l.startswith("buffer_") or l.startswith("global_"))


def weave(heads, fills):
    res = []
    per = -(-len(fills) // len(heads)) if fills else 0
    i = 0
    for hd in heads:
        res.append(hd)
        for at in fills[i:i + per]:
            res += [at] if isinstance(at, str) else at
        i += per
    return res


def tr_addr(dst, t_a, t_b):
    return [f"v_lshrrev_b32 v{t_a}, 5, v0", f"v_bfe_u32 v{t_b}, v0, 2, 2", f"v_lshl_add_u32 v{dst}, v{t_a}, 2, v{t_b}",
            f"v_lshlrev_b32 v{dst}, 7, v{dst}", f"v_and_b32 v{t_a}, 1, v0", f"v_lshl_add_u32 v{dst}, v{t_a}, 6, v{dst}",
            f"v_bfe_u32 v{t_a}, v0, 4, 1", f"v_lshl_add_u32 v{dst}, v{t_a}, 4, v{dst}", f"v_bfe_u32 v{t_a}, v0, 1, 1",
            f"v_lshl_add_u32 v{dst}, v{t_a}, 3, v{dst}", f"v_lshrrev_b32 v{t_b}, 1, v{t_b}", f"v_lshl_add_u32 v{dst}, v{t_b}, 5, v{dst}"]


def split3(w, src):
    return [f"v_and_b32 v{w}, v{MASK}, v{src}", f"v_sub_f32 v{w + 2}, v{src}, v{w}",
            f"v_and_b32 v{w + 1}, v{MASK}, v{w + 2}", f"v_sub_f32 v{w + 2}, v{w + 2}, v{w + 1}", f"v_mov_b32 v{w + 3}, 0"]


def poll_issue(lbl, mask_instrs, reg=POLL):
    return ([f"s_cmp_lg_u32 s{sW}, 0", f"s_cbranch_scc1 {lbl}", "v_lshlrev_b32 v1, 8, v0"] + mask_instrs +
            ["s_mov_b64 exec, s[40:41]",
             f"buffer_load_dword v{reg}, v1, {sr(S_WS)}, s{sCNT} offen sc1", "s_mov_b64 exec, -1", f"{lbl}:"])


def poll_check(lbl, thr, reg=POLL, sleep=8):
    return [f"s_cmp_lg_u32 s{sW}, 0", f"s_cbranch_scc1 {lbl}_ok",
            f"s_mov_b32 s{T3}, {SPIN}", "s_mov_b64 exec, s[40:41]", f"{lbl}_spin:",
            f"v_cmp_gt_u32 vcc, {thr}, v{reg}", "s_cmp_eq_u64 vcc, 0", f"s_cbranch_scc1 {lbl}_done",
            f"s_sleep {sleep}",
            f"buffer_load_dword v{reg}, v1, {sr(S_WS)}, s{sCNT} offen sc1", "s_waitcnt vmcnt(0)",
            f"s_sub_u32 s{T3}, s{T3}, 1", f"s_cmp_lg_u32 s{T3}, 0", f"s_cbranch_scc1 {lbl}_spin",
            f"{lbl}_done:", "s_mov_b64 exec, -1", f"{lbl}_ok:"]


QKV_MASK = [f"s_lshl_b32 s40, 0x10101, s{sXCD}", "s_mov_b32 s41, 0"]
CS_MASK = ["s_mov_b32 s40, 0", f"s_lshl_b32 s41, 0x100, s{sCF}"]
H_MASK = ["s_mov_b32 s40, 0xff000000", "s_mov_b32 s41, 0xff"]


def cs_issue(lbl, n):
    return [f"s_cmp_lg_u32 s{sW}, 0", f"s_cbranch_scc1 {lbl}", "v_lshlrev_b32 v1, 6, v0", "s_mov_b64 exec, 15",
            f"global_load_dword v{POLL}, v1, s[{pDBG}:{pDBG + 1}] offset:{4 * n} sc1", "s_mov_b64 exec, -1", f"{lbl}:"]


def cs_signal(lbl, n):
    return [f"s_cmp_lg_u32 s{sW}, 0", f"s_cbranch_scc1 {lbl}", f"s_and_b32 s{T2}, s{sRB}, 3", f"s_lshl_b32 s{T2}, s{T2}, 6",
            f"v_mov_b32 v2, s{T2}", "v_mov_b32 v3, 1", "s_mov_b64 exec, 1",
            f"global_atomic_add v2, v3, s[{pDBG}:{pDBG + 1}] offset:{4 * n} sc1", "s_mov_b64 exec, -1", f"{lbl}:"]


def cs_check(lbl, n):
    return [f"s_cmp_lg_u32 s{sW}, 0", f"s_cbranch_scc1 {lbl}_ok",
            f"s_mov_b32 s{T3}, {SPIN}", "s_mov_b64 exec, 15", f"{lbl}_spin:",
            f"v_cmp_gt_u32 vcc, 8, v{POLL}", "s_cmp_eq_u64 vcc, 0", f"s_cbranch_scc1 {lbl}_done",
            "s_sleep 8",
            f"global_load_dword v{POLL}, v1, s[{pDBG}:{pDBG + 1}] offset:{4 * n} sc1", "s_waitcnt vmcnt(0)",
            f"s_sub_u32 s{T3}, s{T3}, 1", f"s_cmp_lg_u32 s{T3}, 0", f"s_cbranch_scc1 {lbl}_spin",
            f"{lbl}_done:", "s_mov_b64 exec, -1", f"{lbl}_ok:"]


def flag_check(lbl):
    return [f"s_cmp_lg_u32 s{sW}, 0", f"s_cbranch_scc1 {lbl}",
            f"s_mov_b32 s{T3}, {SPIN}", f"{lbl}_spin:",
            f"v_readfirstlane_b32 s{T2}, v{POLL}", f"s_cmp_lg_u32 s{T2}, 0", f"s_cbranch_scc1 {lbl}",
            "s_sleep 8", "v_mov_b32 v2, 0",
            f"global_load_dword v{POLL}, v2, s[{pDBG}:{pDBG + 1}] offset:32 sc1", "s_waitcnt vmcnt(0)",
            f"s_sub_u32 s{T3}, s{T3}, 1", f"s_cmp_lg_u32 s{T3}, 0", f"s_cbranch_scc1 {lbl}_spin", f"{lbl}:"]


def sig_qkv(lbl):
    return [f"s_cmp_lg_u32 s{sW}, 0", f"s_cbranch_scc1 {lbl}",
            f"s_mul_i32 s{T2}, s{sCB}, 3", f"s_lshr_b32 s{T2}, s{T2}, 1", f"s_and_b32 s{T3}, s{sCB}, 1",
            f"v_add_u32 v2, s{T2}, v0", "v_lshlrev_b32 v2, 8, v2",
            f"v_xor_b32 v3, s{T3}, v0", "v_sub_u32 v3, 2, v3",
            "s_mov_b64 exec, 3", f"buffer_atomic_add v3, v2, {sr(S_WS)}, s{sCNT} offen sc1", "s_mov_b64 exec, -1", f"{lbl}:"]


def sig_one(lbl, idx_instrs, skip_side=False):
    c = [f"s_or_b32 s{T0}, s{sW}, s{sISS}"] if skip_side else [f"s_cmp_lg_u32 s{sW}, 0"]
    return (c + [f"s_cbranch_scc1 {lbl}"] + idx_instrs +
            [f"s_lshl_b32 s{T0}, s{T0}, 8", f"s_add_u32 s{T0}, s{T0}, s{sCNT}", "v_mov_b32 v3, 1", "s_mov_b64 exec, 1",
             f"buffer_atomic_add v3, off, {sr(S_WS)}, s{T0} sc1", "s_mov_b64 exec, -1", f"{lbl}:"])


def kv(i, r=L16):
    return [[f"s_lshl1_add_u32 m0, s{sLW}, {i * 16384}" if i else f"s_lshl_b32 m0, s{sLW}, 1",
             f"s_add_u32 s{T2}, s{sKV}, {i * 8192}",
             f"buffer_load_dwordx4 v{r}, {sr(S_WS)}, s{T2} offen sc1 lds"],
            [f"s_lshl1_add_u32 m0, s{sLW}, {i * 16384 + 1024}", f"s_add_u32 s{T2}, s{sKV}, {i * 8192 + (32 << 16)}",
             f"buffer_load_dwordx4 v{r}, {sr(S_WS)}, s{T2} offen sc1 lds"]]


def q_load():
    return [f"s_lshl_b32 s{T2}, s{tQB}, 13", f"s_add_u32 s{T2}, s{T2}, s{sKV}", f"s_sub_u32 s{T2}, s{T2}, {32 << 16}",
            f"buffer_load_dwordx4 {vr(Q_, 4)}, v{L16}, {sr(S_WS)}, s{T2} offen sc1"]


def p2_init_v():
    return ([["v_and_b32 v3, 27, v0", "v_cmp_eq_u32 vcc, 16, v3", f"v_mov_b32 v{V_ + 1}, 0x3f803f80", "v_mov_b32 v3, 0",
              f"v_cndmask_b32 v{V_}, v3, v{V_ + 1}, vcc", f"v_mov_b32 v{V_ + 1}, v{V_}"]] +
            [f"v_mov_b64 v[{V_ + i}:{V_ + i + 1}], v[{V_}:{V_ + 1}]" for i in range(2, 32, 2)])


TRA, TRD = 142, 144


def tr_setup():
    A, B, C, D = T2, T3, tVM + 1, tVM
    return [[f"s_sub_u32 s{C}, s2, 32", f"s_mul_i32 s{D}, s{sW}, 144", f"s_add_u32 s{D}, s{D}, s{C}", f"s_lshl_b32 s{D}, s{D}, 11",
             f"s_add_u32 s{D}, s{D}, {WS_WT}", f"s_cmp_lt_u32 s{C}, 144", f"s_cselect_b32 s{D}, s{D}, {OOB}",
             f"s_cmp_lt_u32 s{C}, 112", f"s_cselect_b32 s{S_T}, s{pWD}, s{pWO}",
             f"s_cselect_b32 s{S_T + 1}, s{pWD + 1}, s{pWO + 1}", f"s_mov_b32 s{S_T + 2}, 1835008",
             f"s_cselect_b32 s{S_T + 2}, s{S_T + 2}, 524288", f"s_cselect_b32 s{A}, 0, 112", f"s_mov_b32 s{S_T + 3}, 0x00020000",
             f"s_sub_u32 s{C}, s{C}, s{A}", f"s_lshl_b32 s{C}, s{C}, 14", f"s_lshl_b32 s{B}, s{sW}, 7", f"s_add_u32 s{C}, s{C}, s{B}"],
            ["v_lshrrev_b32 v2, 3, v0", "v_and_b32 v3, 2, v2", "v_and_b32 v18, 7, v0", "v_xor_b32 v18, v3, v18",
             "v_lshlrev_b32 v18, 4, v18", "v_lshl_add_u32 v18, v2, 10, v18"]]


def tr_dma():
    C = tVM + 1
    return [[f"s_lshl_b32 m0, s{sLW}, 1", f"s_add_u32 s{T3}, s{C}, 8192", f"buffer_load_dwordx4 v18, {sr(S_T)}, s{C} offen lds",
             "s_add_u32 m0, m0, 1024", "s_nop 0", f"buffer_load_dwordx4 v18, {sr(S_T)}, s{T3} offen lds"]]


def tr_rd():
    return [f"ds_read_b64_tr_b16 {vr(TRD + 4 * ap + 2 * t, 2)}, v{TRA + ap} offset:{t * 1024}" for ap in range(2) for t in range(2)]


def tr_st():
    return [f"buffer_store_dwordx4 {vr(TRD, 4)}, v{L16}, {sr(S_WS)}, s{tVM} offen sc1",
            f"buffer_store_dwordx4 {vr(TRD + 4, 4)}, v{L16}, {sr(S_WS)}, s{tVM} offen offset:1024 sc1"]


def gen_p1(a):
    global NOSTAMP
    a("s_cmp_ge_u32 s2, 256")
    a("s_cbranch_scc1 L_exit")
    stamp(a, 0)
    a(f"s_load_dwordx4 s[{pX}:{pX + 3}], s[0:1], 0")
    a(f"s_load_dwordx4 s[{pG}:{pG + 3}], s[0:1], 32")
    a(f"s_load_dwordx2 s[{pWO}:{pWO + 1}], s[0:1], 16")
    a(f"s_load_dwordx4 s[{pWD}:{pWD + 3}], s[0:1], 48")
    a(f"s_load_dwordx4 s[{pDBG}:{pDBG + 3}], s[0:1], 64")
    a("v_lshrrev_b32 v1, 6, v0")
    a("v_and_b32 v0, 63, v0")
    a(f"v_readfirstlane_b32 s{sW}, v1")
    a("s_cmp_ge_u32 s2, 32")
    a("s_cbranch_scc1 L_nocode")
    a("s_getpc_b64 s[40:41]")
    a("L_here:")
    a("v_lshlrev_b32 v2, 13, v1")
    a("v_lshl_add_u32 v2, v0, 7, v2")
    a("v_min_u32 v2, L_end-L_here-4, v2")
    a("v_mov_b32 v3, s41")
    a("v_add_co_u32 v2, vcc, s40, v2")
    a("s_nop 1")
    a("v_addc_co_u32 v3, vcc, 0, v3, vcc")
    a(f"global_load_dword v{STV}, v[2:3], off")
    a("L_nocode:")
    a(f"s_and_b32 s{sXCD}, s2, 7")
    a(f"s_lshr_b32 s{T1}, s2, 3")
    a(f"s_and_b32 s{sRB}, s{sXCD}, 3")
    a(f"s_and_b32 s{T2}, s{T1}, 3")
    a(f"s_lshl2_add_u32 s{sRB}, s{sRB}, s{T2}")
    a(f"s_lshr_b32 s{sCF}, s{sXCD}, 2")
    a(f"s_lshr_b32 s{sISS}, s{T1}, 2")
    a(f"s_lshl3_add_u32 s{sCB}, s{sCF}, s{sISS}")
    if "norot" in OPT:
        a(f"s_mov_b32 s{sROT}, 0")
    elif "rotf" in OPT:
        a(f"s_lshl1_add_u32 s{sROT}, s{T2}, s{sISS}")
    elif "rotw" in OPT:
        a(f"s_lshl_b32 s{sROT}, s{T2}, 1")
    elif "rotx" in OPT:
        a(f"s_lshl_b32 s{sROT}, s{sXCD}, 1")
    elif "roth" in OPT:
        a(f"s_and_b32 s{sROT}, s{T2}, 1")
        a(f"s_lshl1_add_u32 s{sROT}, s{sROT}, s{sXCD}")
        a(f"s_lshl1_add_u32 s{sROT}, s{sROT}, s{sISS}")
    elif "rotj" in OPT:
        a(f"s_mov_b32 s{sROT}, s{sISS}")
    else:
        a(f"s_lshl1_add_u32 s{sROT}, s{sXCD}, s{sISS}")
    a(f"s_lshl_b32 s{sLW}, s{sW}, 10")
    a(f"s_lshl_b32 s{T2}, s{sW}, 3")
    a(f"s_lshl_b32 s{sXROW}, s{sRB}, 7")
    a(f"s_add_u32 s{sXROW}, s{sXROW}, s{T2}")
    a(f"s_lshl_b32 s{sXROW}, s{sXROW}, 10")
    a(f"s_mul_i32 s{sCQ}, s{sCB}, 3")
    a(f"s_lshr_b32 s{sCQ}, s{sCQ}, 1")
    a(f"s_lshl_b32 s{sCQ}, s{sCQ}, 7")
    a(f"s_mul_i32 s{T3}, s{T2}, 3072")
    a(f"s_add_u32 s{sCQ}, s{sCQ}, s{T3}")
    a(f"s_mul_i32 s{T3}, s{T2}, 3584")
    a(f"s_sub_u32 s{sCF}, s{sCB}, s{sCF}")
    a(f"s_sub_u32 s{sCF}, s{sCF}, 1")
    a(f"s_lshl_b32 s{sCG}, s{sCF}, 8")
    a(f"s_add_u32 s{sCG}, s{sCG}, s{T3}")
    a(f"s_cmp_eq_u32 s{sISS}, 0")
    a(f"s_cselect_b32 s{sISS}, 1, 0")
    a(f"s_cselect_b32 s{sCG}, {OOB}, s{sCG}")
    a("v_lshrrev_b32 v1, 3, v0")
    a("v_and_b32 v2, 7, v0")
    a(f"v_add_u32 v3, s{T2}, v1")
    a("v_bfe_u32 v3, v3, 1, 3")
    a("v_xor_b32 v3, v3, v2")
    a("v_lshlrev_b32 v3, 4, v3")
    a(f"v_lshl_add_u32 v{VXS}, v1, 10, v3")
    a("v_and_b32 v3, 2, v1")
    a("v_lshlrev_b32 v3, 1, v3")
    a("v_xor_b32 v3, v3, v2")
    a("v_lshlrev_b32 v3, 4, v3")
    a("v_mul_u32_u24 v4, 3072, v1")
    a(f"v_add_u32 v{VW0}, v4, v3")
    a("v_mul_u32_u24 v4, 3584, v1")
    a(f"v_add_u32 v{VW1}, v4, v3")
    a(f"v_xor_b32 v{VW3}, 32, v{VW1}")
    for r_, sz in ((S_X, 2097152), (S_W0, 1572864), (S_W1, 1835008), (S_W3, 1835008)):
        a(f"s_mov_b32 s{r_ + 2}, {sz}")
        a(f"s_mov_b32 s{r_ + 3}, 0x00020000")
    a("s_waitcnt lgkmcnt(0)")
    for r_, p_ in ((S_X, pX), (S_W0, pWQKV), (S_W1, pG), (S_W3, pU)):
        a(f"s_mov_b64 s[{r_}:{r_ + 1}], s[{p_}:{p_ + 1}]")
    a(f"s_cmp_eq_u32 s{sISS}, 1")
    a("s_cbranch_scc1 L_nod0")
    a(dma(0))
    if "tlb" in OPT:
        a("s_branch L_nod1")
    a("L_nod0:")
    if "tlb" in OPT:
        a(f"s_and_b32 s{T0}, s{sRB}, 3")
        a(f"s_lshl2_add_u32 s{T0}, s{sW}, s{T0}")
        a(f"s_sub_u32 s{T1}, s{T0}, 4")
        a(f"s_min_u32 s{T1}, s{T1}, 10")
        a(f"s_lshl_b32 s{T1}, s{T1}, 21")
        a(f"s_add_u32 s40, s{pWS}, s{T1}")
        a(f"s_addc_u32 s41, s{pWS + 1}, 0")
        for i, p_ in ((0, pG), (1, pU), (2, pWQKV), (3, pDBG), (15, pWD), (16, pWO), (17, pOUT)):
            a(f"s_cmp_eq_u32 s{T0}, {i}")
            a(f"s_cselect_b64 s[40:41], s[{p_}:{p_ + 1}], s[40:41]")
        a("v_mov_b32 v3, 0")
        a("s_mov_b64 exec, 1")
        a(f"global_load_dword v{STV}, v3, s[40:41] offset:192 sc1")
        a("s_mov_b64 exec, -1")
        a("L_nod1:")
    a(f"v_lshlrev_b32 v{L16}, 4, v0")
    a(f"s_and_b32 s{sTT}, s{sW}, 3")
    a(f"s_lshr_b32 s{sHF}, s{sW}, 2")
    a(f"s_mov_b32 s{sCNT}, {WS_CNT}")
    srd(a, S_WS, pWS, WS_SIZE)
    a(f"s_lshl2_add_u32 s{sT}, s{sRB}, s{sTT}")
    a(f"s_mul_i32 s{sG}, s{sCB}, 3")
    a(f"s_lshl1_add_u32 s{sG}, s{sHF}, s{sG}")
    a(f"s_cmp_ge_u32 s{sG}, 32")
    a(f"s_cselect_b32 s{sVAR}, 2, 0")
    a(f"s_add_u32 s{sVAR}, s{sVAR}, s{sHF}")
    a(f"s_lshl_b32 s{sG}, s{sG}, 1")
    a(f"s_lshr_b32 s{T1}, s2, 3")
    a(f"s_and_b32 s{T2}, s{T1}, 3")
    a(f"s_lshl2_add_u32 s{tHEAD}, s{sXCD}, s{T2}")
    a(f"s_lshr_b32 s{tQB}, s{T1}, 2")
    a(f"s_lshl_b32 s{sKV}, s{tHEAD}, 16")
    a(f"s_add_u32 s{sKV}, s{sKV}, s{sLW}")
    a(f"s_add_u32 s{sKV}, s{sKV}, {32 << 16}")
    t4, t6, t7 = WF, WF + 1, WF + 2
    a("v_and_b32 v1, 31, v0")
    a("v_lshrrev_b32 v2, 5, v0")
    a("v_bfe_u32 v3, v0, 1, 3")
    a("v_xor_b32 v3, v3, v2")
    a("v_lshlrev_b32 v3, 4, v3")
    a("v_lshl_add_u32 v3, v1, 7, v3")
    a(f"s_lshl_b32 s{T0}, s{sTT}, 12")
    a(f"v_add_u32 v{XA}, s{T0}, v3")
    for i in range(1, 4):
        a(f"v_xor_b32 v{XA + i}, {32 * i}, v{XA}")
    a("v_bfe_u32 v3, v0, 2, 2")
    a(f"v_lshl_add_u32 v{t4}, v2, 3, v3")
    a(f"v_lshlrev_b32 v{t4}, 7, v{t4}")
    a(f"v_and_b32 v{t7}, 3, v0")
    a(f"v_lshl_add_u32 v{t4}, v{t7}, 3, v{t4}")
    a("v_and_b32 v3, 2, v3")
    a(f"v_bfe_u32 v{t7}, v0, 4, 1")
    a(f"v_xor_b32 v3, v3, v{t7}")
    a(f"s_and_b32 s{T0}, s{sCB}, 1")
    a(f"s_lshl1_add_u32 s{T0}, s{sHF}, s{T0}")
    for t in range(2):
        a(f"s_and_b32 s{T1}, s{T0}, 1")
        a(f"s_lshl_b32 s{T1}, s{T1}, 1")
        a(f"s_lshr_b32 s{T2}, s{T0}, 1")
        a(f"s_lshl_b32 s{T2}, s{T2}, 13")
        a(f"s_add_u32 s{T2}, s{T2}, {BR}")
        a(f"v_xor_b32 v{t6}, s{T1}, v3")
        a(f"v_lshl_add_u32 v{t6}, v{t6}, 5, v{t4}")
        a(f"v_add_u32 v{WQ + t}, s{T2}, v{t6}")
        if t == 0:
            a(f"s_add_u32 s{T0}, s{T0}, 1")
    a(f"v_lshl_add_u32 v{t4}, v{t7}, 13, v{t4}")
    a(f"v_add_u32 v{t4}, {CR}, v{t4}")
    a(f"s_lshl_b32 s{T0}, s{sHF}, 1")
    a(f"v_xor_b32 v{t6}, s{T0}, v3")
    a(f"v_lshl_add_u32 v{WC}, v{t6}, 5, v{t4}")
    a(f"v_xor_b32 v{WC + 1}, 32, v{WC}")
    a(f"v_mov_b32 v{MASK}, 0xffff0000")
    a(f"v_mov_b32 v{ONES}, 0x3f80")
    a(f"s_cmp_eq_u32 s{sISS}, 1")
    a("s_cbranch_scc1 L_side1")
    a([f"s_lshl_b32 s{T0}, s{sW}, 8", f"s_or_b32 s{T0}, s2, s{T0}", f"s_cmp_lg_u32 s{T0}, 32", "s_cbranch_scc1 L_nozero",
       "v_mov_b32 v1, 0", "v_lshlrev_b32 v2, 8, v0", f"buffer_store_dword v1, v2, {sr(S_WS)}, s{sCNT} offen sc1", "L_nozero:"])
    a(dma(1))
    stamp(a, 1)
    for v in range(1, 4):
        a(f"s_cmp_eq_u32 s{sVAR}, {v}")
        a(f"s_cbranch_scc1 L_p1_{v}")
    XOP, RS = XA, 22
    CL, RU, ta, tb, tc = 224, 232, 240, 241, 242
    cs_loads = [[f"s_bitcmp1_b32 s{sRB}, 1", f"s_cselect_b32 s{S_T}, s{pU}, s{pG}", f"s_cselect_b32 s{S_T + 1}, s{pU + 1}, s{pG + 1}",
                 f"s_mov_b32 s{S_T + 2}, 1835008", f"s_mov_b32 s{S_T + 3}, 0x00020000",
                 f"s_lshr_b32 s{T2}, s{sRB}, 2", f"s_lshl3_add_u32 s{T2}, s{T2}, s{sW}", f"s_mul_i32 s{T2}, s{T2}, {16 * 3584}",
                 f"s_and_b32 s{T3}, s{sRB}, 1", f"s_lshl1_add_u32 s{T3}, s{sCF}, s{T3}", f"s_lshl_b32 s{T3}, s{T3}, 7", f"s_add_u32 s{T2}, s{T2}, s{T3}",
                 f"v_lshrrev_b32 v{ta}, 3, v0", f"v_mul_u32_u24 v{ta}, 3584, v{ta}", f"v_and_b32 v{tb}, 7, v0", f"v_lshl_add_u32 v{ta}, v{tb}, 4, v{ta}",
                 f"buffer_load_dwordx4 {vr(CL, 4)}, v{ta}, {sr(S_T)}, s{T2} offen"],
                [f"s_add_u32 s{T2}, s{T2}, {8 * 3584}", f"buffer_load_dwordx4 {vr(CL + 4, 4)}, v{ta}, {sr(S_T)}, s{T2} offen"]]
    SE, DD, RV = 244, 248, 224
    sel = [f"v_and_b32 v{tb}, 15, v0", f"v_and_b32 v{tc}, 1, v0", f"v_lshlrev_b32 v{tc}, 4, v{tc}", f"v_lshlrev_b32 v{tc}, v{tc}, v{ONES}",
           f"v_lshrrev_b32 v{tb}, 1, v{tb}"]
    for i in range(4):
        sel += [[f"v_cmp_eq_u32 vcc, {i}, v{tb}", "s_nop 1", f"v_cndmask_b32 v{SE + i}, 0, v{tc}, vcc"]]
    m16 = lambda c, b_: f"v_mfma_f32_16x16x32_bf16 {vr(DD, 4)}, {vr(SE, 4)}, {vr(b_, 4)}, {c}"
    csv = {8: sel[:5], 9: sel[5:],
           10: [f"v_and_b32 v{tb}, 15, v0", f"v_lshlrev_b32 v{tb}, 5, v{tb}", f"v_lshrrev_b32 v{tc}, 4, v0", f"v_lshl_add_u32 v{tb}, v{tc}, 4, v{tb}",
               [f"s_lshl_b32 s40, s2, 12", f"s_add_u32 s40, s40, {WS_CP}", f"s_lshl_b32 s41, s{sW}, 9", "s_add_u32 s41, s41, s40"]]}
    cs_mm = [m16("0", CL), m16(vr(DD, 4), CL + 4)]
    cs_st = ["s_mov_b32 exec_hi, 0", f"buffer_store_dwordx4 {vr(DD, 4)}, v{tb}, {sr(S_WS)}, s41 offen" + (" sc1" if "csw" in OPT else ""), "s_mov_b32 exec_hi, -1"]
    cs_l2 = lambda lb: ([f"s_cmp_lg_u32 s{sW}, 0", f"s_cbranch_scc1 {lb}"] +
                        [f"buffer_load_dwordx4 {vr(RV + 4 * i, 4)}, v{L16}, {sr(S_WS)}, s40 offen offset:{1024 * i} sc1" for i in range(4)] + [f"{lb}:"])
    cs_r2 = lambda lb: ([f"s_cmp_lg_u32 s{sW}, 0", f"s_cbranch_scc1 {lb}"] +
                        [f"v_add_f32 v{RV + i}, v{RV + i}, v{RV + 8 + i}" for i in range(8)] +
                        [f"v_add_f32 v{RV + i}, v{RV + i}, v{RV + 4 + i}" for i in range(4)] +
                        [f"v_and_b32 v{ta}, 15, v0", f"v_lshrrev_b32 v{tc}, 4, v0",
                         f"v_permlane16_swap_b32 v{RV}, v{RV + 1}", f"v_permlane16_swap_b32 v{RV + 2}, v{RV + 3}",
                         f"v_add_f32 v{RV}, v{RV}, v{RV + 1}", f"v_add_f32 v{RV + 2}, v{RV + 2}, v{RV + 3}",
                         f"v_lshl_add_u32 v{ta}, v{ta}, 2, v{tc}", f"v_lshlrev_b32 v{ta}, 2, v{ta}",
                         f"v_permlane32_swap_b32 v{RV}, v{RV + 2}", f"v_add_f32 v{RV}, v{RV}, v{RV + 2}",
                         f"s_bfe_u32 s40, s{sRB}, 0x10001", "s_mul_i32 s40, s40, 28", f"s_and_b32 s41, s{sRB}, 1", "s_add_u32 s40, s40, s41",
                         f"s_lshl1_add_u32 s40, s{sCF}, s40", f"s_lshr_b32 s41, s{sRB}, 2", "s_lshl2_add_u32 s40, s40, s41",
                         "s_lshl_b32 s40, s40, 8", f"s_add_u32 s40, s40, {WS_CS}",
                         f"buffer_store_dword v{RV}, v{ta}, {sr(S_WS)}, s40 offen sc1", f"{lb}:"])
    for var in VARS:
        hf, isv, ffn = var & 1, (var >> 1) & 1, var < 4
        nt = 2 - hf
        cnt = lambda S: len(dma(S, ffn))
        a(f"L_p1_{var}:")
        a(f"s_waitcnt vmcnt({cnt(1)})")
        a("s_barrier")
        stamp(a, 2)
        if var == 0:
            a([f"s_lshl_b32 s{T0}, s{sW}, 8", f"s_or_b32 s{T0}, s2, s{T0}", f"s_cmp_lg_u32 s{T0}, 32", "s_cbranch_scc1 L_noflag",
               "v_mov_b32 v2, 0", "v_mov_b32 v3, 1", "s_mov_b64 exec, 1",
               f"global_store_dword v2, v3, s[{pDBG}:{pDBG + 1}] offset:32 sc1", "s_mov_b64 exec, -1", "L_noflag:"])
        a(rd1(0, nt, ffn))
        a(rd1(1, nt, ffn))
        bgq = dma(2, ffn)
        held = []
        sl7 = (7 % 3) * SL
        qrd = lambda h: [f"ds_read_b64_tr_b16 {vr(WF + 16 * h + 8 * q + 4 * t + 2 * t2, 2)}, v{WQ + t} offset:{sl7 + (2 * h + q) * 2048 + t2 * 512}"
                         for q in range(2) for t in range(nt) for t2 in range(2)]
        frd = lambda h: [f"ds_read_b64_tr_b16 {vr(WF + 16 * h + 8 * q + 4 * c + 2 * t2, 2)}, v{WC + c} offset:{sl7 + (2 * h + q) * 2048 + t2 * 512}"
                         for q in range(2) for c in range(2) for t2 in range(2)]
        CK = 5 if ffn else 6
        prep = [f"v_lshlrev_b32 v2, 16, v{STV}", f"v_rcp_f32 v{RS}, v2"]
        for t in range(nt):
            w = CSA + 4 * t
            prep += [f"v_add_f32 v{w}, v{w}, v{w + 1}", f"v_add_f32 v{w + 2}, v{w + 2}, v{w + 3}", f"v_add_f32 v{w + 3}, v{w}, v{w + 2}"] + split3(w, w + 3)
        for k in range(28 if ffn else 32):
            S, ks = k >> 2, k & 3
            F = fset(k, ffn)
            x = XF + 4 * k
            c0 = "0" if k == 0 else None
            big = [mfma(ACQ + 16 * t, x, F + 4 * t, c0) if isv else mfma(ACQ + 16 * t, F + 4 * t, x, c0) for t in range(nt)]
            light = not ffn or k < 8
            if not light:
                big += [mfma(ACF + 16 * c, F + 8 + 4 * c, x - 32, "0" if k == 8 else None) for c in range(2)]
            if light and k % 2 == 0 and k < 30:
                held = big
                continue
            big, held = held + big, []
            val = []
            if ks == 3:
                n = cnt(S + 2) + ({1: 2}.get(S, 0) if ffn else 0)
                a(f"s_waitcnt vmcnt({n}) lgkmcnt(0)")
                if S == CK and not hf: a(cs_check(f"L_c1{var}", 0))
                if S < 7: a("s_barrier")
                if "p1b" in OPT: stamp(a, 4 + S)
                if ffn and S == 2:
                    big = cs_mm + big
                    bgq.append(cs_st)
                if ffn and S == 3 and not hf: bgq.append(cs_l2(f"L_l2{var}"))
                if ffn and S == 4 and not hf: bgq.append(cs_r2(f"L_r2{var}"))
                if S == 3 and not hf:
                    bgq.append([f"s_cmp_lg_u32 s{sW}, 0", f"s_cbranch_scc1 L_nofl{var}", "v_mov_b32 v2, 0",
                                f"global_load_dword v{POLL}, v2, s[{pDBG}:{pDBG + 1}] offset:32 sc1", f"L_nofl{var}:"])
                if S == CK - 1 and not hf:
                    bgq.append(flag_check(f"L_fc{var}") + cs_issue(f"L_i1{var}", 0))
                if S == 5 and ffn and not hf:
                    bgq.append(sig_one(f"L_sc{var}", [f"s_add_u32 s{T0}, s{sCF}, {C_CS}"]))
                if S == 5:
                    ad = [f"v_and_b32 v{VXS}, 31, v0", f"v_lshlrev_b32 v{VXS}, 2, v{VXS}", "v_lshrrev_b32 v3, 5, v0",
                          f"v_lshl_add_u32 v{VW0}, v3, 10, v{VXS}", f"s_lshl_b32 s{T2}, s{sT}, 7", f"s_add_u32 s{T2}, s{T2}, {WS_ST}"]
                    for t in range(nt):
                        ad += [f"s_add_u32 s{T3}, s{sG}, {2 * t}", f"s_lshr_b32 s{40 + t}, s{T3}, 2", f"s_lshl_b32 s{40 + t}, s{40 + t}, 11",
                               f"s_and_b32 s{T3}, s{T3}, 2", f"s_lshl_b32 s{T3}, s{T3}, 6", f"s_add_u32 s{40 + t}, s{40 + t}, s{T3}",
                               f"s_add_u32 s{40 + t}, s{40 + t}, {WS_CQ}"]
                    bgq.append(ad)
                if S == CK:
                    ld = [f"buffer_load_dword v{STV}, v{VXS}, {sr(S_WS)}, s{T2} offen sc1"]
                    for t in range(nt):
                        ld += [f"buffer_load_dword v{CSA + 4 * t + i}, v{VW0}, {sr(S_WS)}, s{40 + t} offen offset:{256 * i} sc1" for i in range(4)]
                    if isv:
                        ld += [f"s_lshl_b32 s{T3}, s{sW}, 8", f"s_add_u32 m0, s{T3}, {SCR}", f"s_add_u32 s{T2}, s{T2}, {WS_RS - WS_ST}",
                               f"buffer_load_dword v{VXS}, {sr(S_WS)}, s{T2} offen sc1 lds"]
                    bgq += [ld[:5], ld[5:]]
                if S == 6 and ffn:
                    if not hf: bgq.append(poll_issue(f"L_i2{var}", CS_MASK))
                    val = prep
                if S < 7: bgq += dma(S + 3, ffn)
                if S == 0 and ffn: bgq += cs_loads
                if S == 5 and isv:
                    bgq.append([f"s_lshl_b32 s{T3}, s{sW}, 8", f"s_add_u32 s{T3}, s{T3}, {SCR}",
                                "v_lshrrev_b32 v3, 5, v0", "v_lshlrev_b32 v18, 4, v3", f"v_add_u32 v18, s{T3}, v18",
                                "v_bfe_u32 v23, v0, 4, 1", "v_lshlrev_b32 v23, 16, v23", "v_lshl_add_u32 v23, v3, 8, v23",
                                "v_and_b32 v3, 15, v0", "v_lshl_add_u32 v23, v3, 4, v23"])
            elif k == 30:
                a("s_waitcnt vmcnt(0) lgkmcnt(0)")
                val = prep
            else:
                a("s_waitcnt lgkmcnt(0)")
            if k == 31:
                break
            if ffn and k in csv: val = csv[k]
            left = 4 if ks == 3 else 3 - ks
            if k == 27: left = 3
            if not ffn: left = 2 if (ks == 3 and S < 6) else 1
            if ffn and k < 7: left = 2 if ks == 3 else 1
            take = -(-len(bgq) // left)
            extra, bgq = bgq[:take], bgq[take:]
            if ffn and k >= 7:
                nxt = rd1(k + 1, nt, ffn) if k < 27 else \
                    [f"ds_read_b128 {vr(XF + 4 * (28 + j), 4)}, v{XA + j} offset:{sl7}" for j in range(4)] + qrd(0)
            else:
                nxt = [] if k == 30 else rd1(k + 1, nt, ffn) + rd1(k + 2, nt, ffn)
            body = spread(big, nxt, val + [[]] * len(extra) + extra)
            a(body)
        pre = [f"v_and_b32 v{XOP}, v{MASK}, v{STV}", f"v_mov_b32 v{XOP + 3}, 0", f"v_mov_b32 v{XOP + 1}, v{XOP}", f"v_mov_b32 v{XOP + 2}, v{XOP}"]
        corr = [mfma(ACQ + 16 * t, XOP, CSA + 4 * t) if isv else mfma(ACQ + 16 * t, CSA + 4 * t, XOP) for t in range(nt)]
        post = [f"s_lshl_b32 s{T4}, s{sG}, 16", f"s_lshl_b32 s{T2}, s{sT}, 10", f"s_add_u32 s{T4}, s{T4}, s{T2}"]

        def stores(t):
            o = ACQ + 16 * t
            if isv:
                return [[f"buffer_store_dwordx4 {vr(o, 4)}, v23, {sr(S_WS)}, s{T4} offen sc1"],
                        [f"buffer_store_dwordx4 {vr(o + 4, 4)}, v23, {sr(S_WS)}, s{T4} offen offset:512 sc1", f"s_add_u32 s{T4}, s{T4}, 0x20000"]]
            return [[f"buffer_store_dwordx4 {vr(o, 4)}, v{L16}, {sr(S_WS)}, s{T4} offen sc1", f"s_add_u32 s{T4}, s{T4}, 0x10000"],
                    [f"buffer_store_dwordx4 {vr(o + 4, 4)}, v{L16}, {sr(S_WS)}, s{T4} offen sc1", f"s_add_u32 s{T4}, s{T4}, 0x10000"]]
        if not ffn:
            assert not bgq
            stamp(a, 3)
            a(big[:1] + pre + ["s_nop 1"] + big[1:nt] + corr + post + ["s_nop 7"])
            for t in range(nt):
                ac = ACQ + 16 * t
                a(f"s_cmp_lt_u32 s{sG}, {32 - 2 * t}")
                a(f"s_cselect_b32 s{T0}, {hx(f2u(QSCALE))}, 1.0")
                a(f"v_mul_f32 v2, s{T0}, v{RS}")
                a(f"v_mul_f32 v3, s{T0}, v{RS}")
                for i in range(8):
                    a(f"v_pk_mul_f32 {vr(ac + 2 * i, 2)}, {vr(ac + 2 * i, 2)}, v[2:3]")
                for i in range(8):
                    a(f"v_cvt_pk_bf16_f32 v{ac + i}, v{ac + 2 * i}, v{ac + 2 * i + 1}")
                a(stores(t))
            stamp(a, 4)
            a("s_branch L_side")
            continue
        qm = lambda h: [mfma(ACQ + 16 * t, XF + 4 * (28 + 2 * h + q), WF + 16 * h + 8 * q + 4 * t) if isv else
                        mfma(ACQ + 16 * t, WF + 16 * h + 8 * q + 4 * t, XF + 4 * (28 + 2 * h + q)) for q in range(2) for t in range(nt)]
        fm = lambda h: [mfma(ACF + 16 * c, WF + 16 * h + 8 * q + 4 * c, XF + 4 * (20 + 2 * h + q)) for q in range(2) for c in range(2)]
        half = -(-len(bgq) // 2)
        a("s_waitcnt lgkmcnt(0)")
        a(spread(qm(0), qrd(1), pre + bgq[:half]))
        a("s_waitcnt lgkmcnt(0)")
        rsv = lambda g: [f"ds_read_b128 {vr(CSA + 4 * j, 4)}, v18 offset:{(2 * g + j) * 32}" for j in range(2)]
        a(corr + (rsv(0) if isv else []))
        a(spread(qm(1), frd(0), [f"v_subrev_u32 v{WQ + c}, {CR - BR}, v{WC + c}" for c in range(2)] + bgq[half:]))
        adr = [["v_bfe_u32 v2, v0, 4, 1", "v_mul_u32_u24 v2, 28672, v2", "v_lshrrev_b32 v3, 5, v0",
                "v_lshl_add_u32 v2, v3, 9, v2", "v_and_b32 v3, 15, v0", f"v_lshl_add_u32 v{VXS}, v3, 2, v2",
                f"s_lshl_b32 s{sVAR}, s{sCF}, 11", f"s_add_u32 s{sVAR}, s{sVAR}, {WS_CS + 128 * hf}"] + post]
        if isv:
            e1, e2 = [], []
            for t in range(nt):
                ac = ACQ + 16 * t
                e1 += [f"v_mul_f32 v{ac + i}, v{ac + i}, v{CSA + i}" for i in range(8)]
                e2 += [f"v_mul_f32 v{ac + 8 + i}, v{ac + 8 + i}, v{CSA + i}" for i in range(8)]
                e2 += [f"v_cvt_pk_bf16_f32 v{ac + i}, v{ac + 2 * i}, v{ac + 2 * i + 1}" for i in range(4, 8)]
            e1 += rsv(1)
            for t in range(nt):
                ac = ACQ + 16 * t
                e1 += [f"v_cvt_pk_bf16_f32 v{ac + i}, v{ac + 2 * i}, v{ac + 2 * i + 1}" for i in range(4)]
        else:
            e = []
            for t in range(nt):
                ac = ACQ + 16 * t
                e += [[f"s_cmp_lt_u32 s{sG}, {32 - 2 * t}", f"s_cselect_b32 s{T0}, {hx(f2u(QSCALE))}, 1.0", f"v_mul_f32 v2, s{T0}, v{RS}"]]
                e += [f"v_mul_f32 v{ac + i}, v{ac + i}, v2" for i in range(16)]
                e += [f"v_cvt_pk_bf16_f32 v{ac + i}, v{ac + 2 * i}, v{ac + 2 * i + 1}" for i in range(8)]
            e1, e2 = e[:len(e) * 5 // 8], e[len(e) * 5 // 8:]
        a("s_waitcnt lgkmcnt(0)")
        u3 = spread(fm(0), frd(1), adr + e1)
        a(u3)
        a(f"s_waitcnt vmcnt({4 + nvm(u3)}) lgkmcnt(0)")
        if not hf: a(poll_check(f"L_c2{var}", 16))
        a("s_barrier")
        stamp(a, 3)
        c0l = [[f"buffer_load_dword v{r_}, v{VXS}, {sr(S_WS)}, s{sVAR} offen offset:{(i >> 1) * 64 + (i & 1) * 256} sc1"
                for i, r_ in enumerate(C0R)]]
        a(spread(fm(1), rd2(0), c0l + e2))
        for t in range(nt):
            a(stores(t))
        if var != 3:
            a("s_branch L_pass2")
    a("L_pass2:")
    if "p1b" in OPT: NOSTAMP = True
    stamp(a, 4)
    sH = sG
    a(f"s_mul_i32 s{sH}, s{sT}, 112")
    a(f"s_lshl2_add_u32 s{T0}, s{sCF}, s{sHF}")
    a(f"s_lshl1_add_u32 s{sH}, s{T0}, s{sH}")
    a(f"s_lshl_b32 s{sH}, s{sH}, 10")
    a(f"s_add_u32 s{sH}, s{sH}, {WS_H}")
    cRS, cSD, cC2, CO, QP = 22, 23, 19, 132, 140
    q = CSA

    def gelu_plain(g, off):
        u = g + 8
        R = range(8)
        return ([f"v_mul_f32 v{g + i}, v{g + i}, v{cRS}" for i in R] + [f"v_mul_f32 v{q + i}, v{g + i}, v{g + i}" for i in R] +
                [f"v_fmaak_f32 v{q + i}, v{q + i}, v{cC2}, {hx(f2u(GC1))}" for i in R] + [f"v_mul_f32 v{q + i}, v{q + i}, v{g + i}" for i in R] +
                [f"v_exp_f32 v{q + i}, v{q + i}" for i in R] + [f"v_mul_f32 v{g + i}, v{g + i}, v{u + i}" for i in R] +
                [f"v_fma_f32 v{q + i}, v{q + i}, v{cSD}, v{cSD}" for i in R] + [f"v_rcp_f32 v{q + i}, v{q + i}" for i in R] +
                [f"v_mul_f32 v{g + i}, v{g + i}, v{q + i}" for i in R] +
                [f"v_cvt_pk_bf16_f32 v{g + i}, v{g + 2 * i}, v{g + 2 * i + 1}" for i in range(4)] +
                [f"buffer_store_dwordx4 {vr(g, 4)}, v{L16}, {sr(S_WS)}, s{sH} offen offset:{off} sc1"])
    vq = []
    wt = lambda at: sum(2 if (x.startswith("v_exp") or x.startswith("v_rcp")) else 1 for x in ([at] if isinstance(at, str) else at))
    cs_ld = lambda dst, pr: [[f"buffer_load_dword v{dst + 4 * c + i}, v{VXS}, {sr(S_WS)}, s{sVAR} offen offset:{1024 * pr + c * 64 + i * 256} sc1"
                              for c in range(2) for i in range(2)]]
    ts = tr_setup()
    d = dma(10)
    bgq, hist = [ts[0], d[0], ts[1], d[1], d[2], d[3]], []
    after = lambda key: nvm([l for l in hist[len(hist) - hist[::-1].index(key):] if "s62" not in l])
    for v in range(20):
        S, us = 8 + (v >> 2), v & 3
        F = WF + 16 * (v & 1)
        acc, k0 = (ACF, 24 + 2 * v) if v < 4 else (ACQ, 2 * (v - 4))
        big = [mfma(acc + 16 * c, F + 8 * qq + 4 * c, XF + 4 * (k0 + qq), "0" if (v == 4 and qq == 0) else None)
               for qq in range(2) for c in range(2)]
        if us == 3:
            if S == 8:
                a([f"s_cmp_eq_u32 s{sHF}, 0", "s_cbranch_scc1 L_w8", "s_waitcnt vmcnt(6)", "L_w8:", "s_waitcnt vmcnt(8) lgkmcnt(0)"])
            elif S < 12:
                a(f"s_waitcnt vmcnt({after(dma(S + 1)[-1][0]) - 1}) lgkmcnt(0)")
            elif CHK == 11:
                a(f"s_waitcnt vmcnt({after(kv(0)[1][1]) - 1}) lgkmcnt(0)")
            else:
                a("s_waitcnt lgkmcnt(0)")
            if S == CHK:
                a([f"s_cmp_lg_u32 s{sW}, 0", "s_cbranch_scc1 L_w10", f"s_waitcnt vmcnt({after('L_pq:')})", "L_w10:"])
                a(poll_check("L_cq", 32, QP, 4))
            a("s_barrier")
            if "p2b" in OPT: stamp(a, S - 2)
            if S == 8:
                bgq += tr_dma() + dma(11)
                for c in range(2):
                    w = CSA + 4 * c
                    vq += [f"v_add_f32 v{w + 3}, v{C0R[2 * c]}, v{C0R[2 * c + 1]}"] + split3(w, w + 3)
                vq += ["UNIT", mfma(ACF, CSA, XOP), mfma(ACF + 16, CSA + 4, XOP),
                       f"v_lshlrev_b32 v{cSD}, 16, v{STV}", f"v_mov_b32 v{cC2}, {hx(f2u(GC2))}", "UNIT"]
                vq += gelu_plain(ACF, 0) + gelu_plain(ACF + 16, 1024)
            if S == 9:
                bgq += [sig_qkv("L_sq")] + cs_ld(CO, 1) + dma(12)
                bgq += [tr_addr(TRA, 2, 3) + [f"s_lshl_b32 s{T2}, s{sLW}, 1", f"v_add_u32 v{TRA}, s{T2}, v{TRA}", f"v_xor_b32 v{TRA + 1}, 32, v{TRA}"]]
            if S == 10:
                bgq += [tr_rd()]
            if S == CHK - 1:
                bgq += [[]] * (2 - len(bgq)) + [poll_issue("L_pq", QKV_MASK, QP)]
            if S == 11 and CHK == 11:
                bgq += kv(0) + kv(1) + [q_load()] + kv(2)
            if S == 12:
                bgq += kv(3) if CHK == 11 else kv(0) + [q_load()] + kv(1)
                if "prio" in OPT:
                    a("s_setprio 1")
                    a(lead(2))
        else:
            a("s_waitcnt lgkmcnt(0)")
        if v == 16:
            for c in range(2):
                w = CO + 4 * c
                vq += [f"v_add_f32 v{w + 3}, v{w}, v{w + 1}"] + split3(w, w + 3) + [["s_nop 1", mfma(ACQ + 16 * c, w, XOP)]]
            vq += p2_init_v()
        left = 1 if v == 19 else (4 if us == 3 else 3 - us)
        take = -(-len(bgq) // left)
        extra, bgq = bgq[:take], bgq[take:]
        val, budget = [], (1000 if v == 19 else VBUD)
        while vq and vq[0] != "UNIT" and budget > 0:
            budget -= wt(vq[0])
            val.append(vq.pop(0))
        if vq and vq[0] == "UNIT":
            vq.pop(0)
        body = spread(big, rd2(v + 1) if v < 19 else [], val[:len(val) // 2] + extra + val[len(val) // 2:])
        hist += body
        a(body)
    assert not bgq and not vq
    if "p2b" in OPT: NOSTAMP = True
    stamp(a, 5)
    RS2, SD2 = 240, 242
    a(f"v_mov_b32 v{RS2}, v{cRS}")
    a(f"v_mov_b32 v{RS2 + 1}, v{cRS}")
    a(f"v_mov_b32 v{SD2}, v{cSD}")
    a(f"v_mov_b32 v{SD2 + 1}, v{cSD}")
    a(f"v_mov_b32 v248, v{cC2}")
    a(f"v_mov_b32 v249, v{cC2}")
    a(f"v_mov_b32 v250, {hx(f2u(GC1))}")
    a("v_mov_b32 v251, v250")
    a(f"s_add_u32 s{sH}, s{sH}, 4096")
    a("s_nop 4")
    for c in (0, 1):
        g = ACQ + 16 * c
        u = g + 8
        q = 32 + (c & 1) * 8
        o = 52 + c * 4
        for i in range(4):
            a(f"v_pk_mul_f32 {vr(g + 2 * i, 2)}, {vr(g + 2 * i, 2)}, {vr(RS2, 2)}")
        for i in range(4):
            a(f"v_pk_mul_f32 {vr(q + 2 * i, 2)}, {vr(g + 2 * i, 2)}, {vr(g + 2 * i, 2)}")
        for i in range(4):
            a(f"v_pk_fma_f32 {vr(q + 2 * i, 2)}, {vr(q + 2 * i, 2)}, v[248:249], v[250:251]")
        for i in range(4):
            a(f"v_pk_mul_f32 {vr(q + 2 * i, 2)}, {vr(q + 2 * i, 2)}, {vr(g + 2 * i, 2)}")
        for i in range(8):
            a(f"v_exp_f32 v{q + i}, v{q + i}")
        for i in range(4):
            a(f"v_pk_mul_f32 {vr(g + 2 * i, 2)}, {vr(g + 2 * i, 2)}, {vr(u + 2 * i, 2)}")
        for i in range(4):
            a(f"v_pk_fma_f32 {vr(q + 2 * i, 2)}, {vr(q + 2 * i, 2)}, {vr(SD2, 2)}, {vr(SD2, 2)}")
        for i in range(8):
            a(f"v_rcp_f32 v{q + i}, v{q + i}")
        a("s_nop 0")
        for i in range(4):
            a(f"v_pk_mul_f32 {vr(g + 2 * i, 2)}, {vr(g + 2 * i, 2)}, {vr(q + 2 * i, 2)}")
        for i in range(4):
            a(f"v_cvt_pk_bf16_f32 v{o + i}, v{g + 2 * i}, v{g + 2 * i + 1}")
        a(f"buffer_store_dwordx4 {vr(o, 4)}, v{L16}, {sr(S_WS)}, s{sH} offen offset:{(c & 1) * 1024} sc1")
        if CHK == 12:
            a(kv(2 + c))
        if c == 0:
            a(lead(0))
    a(tr_st())
    a(f"s_waitcnt vmcnt({after(q_load()[-1]) + (4 if CHK == 11 else 8)})")
    if CHK == 12:
        a("s_barrier")


VARS = (0, 4, 5, 1, 2, 3)
VBUD = 15
WK = 8
C0R = (9, 19, 21, 1)
SIGU, CHK = 7, 11


def gen_side(a):
    a("L_side:")
    global NOSTAMP
    NOSTAMP = "side" not in OPT
    a(p2_init_v())
    a("s_waitcnt vmcnt(0)")
    a("s_barrier")
    a(sig_qkv("L_sq2"))
    stamp(a, 10)
    a(sig_one("L_h_ns2", [f"s_add_u32 s{T0}, s{sRB}, {C_H}"]))
    a(poll_issue("L_pq2", QKV_MASK))
    a("s_waitcnt vmcnt(0)")
    a(poll_check("L_cq2", 32, POLL, 6))
    a("s_barrier")
    a(kv(0))
    a(q_load())
    a(kv(1))
    a("s_waitcnt vmcnt(2)")
    a("s_barrier")
    a(kv(2))
    a(kv(3))
    if "prio" in OPT:
        a("s_setprio 1")
        a(lead(2))
    a("s_branch L_p2")
    a("L_side1:")
    XW, QW, CW = 32, 64, 128
    LO, HI, ON = 18, 19, 22
    a("v_lshrrev_b32 v1, 3, v0")
    a("v_and_b32 v2, 7, v0")
    a("v_lshlrev_b32 v2, 4, v2")
    a("v_lshl_add_u32 v3, v1, 10, v2")
    a(f"s_lshl3_add_u32 s{tVM + 1}, s2, s{sW}")
    a(f"s_lshl_b32 s{T0}, s{tVM + 1}, 13")
    for q in range(8):
        a(f"buffer_load_dwordx4 {vr(XW + 4 * q, 4)}, v3, {sr(S_X)}, s{T0} offen offset:{128 * q}")
    sU = sVAR
    a(f"s_and_b32 s{sU}, s{sRB}, 3")
    a(f"s_lshl3_add_u32 s{sU}, s{sU}, s{sW}")
    a(f"s_sub_u32 s{T1}, 31, s{sU}")
    a(f"s_lshl3_add_u32 s41, s{T1}, s{sXCD}")
    a("s_lshl_b32 s41, s41, 8")
    a(f"s_add_u32 s41, s41, {WS_CQ}")
    a(f"s_lshl_b32 s{T0}, s{T1}, 7")
    a(f"s_mul_i32 s{T2}, s{sXCD}, {64 * 3072}")
    a(f"s_add_u32 s{T0}, s{T0}, s{T2}")
    a(f"s_cmp_lt_u32 s{T1}, 24")
    a(f"s_cselect_b32 s{T0}, s{T0}, {OOB}")
    a(f"s_cselect_b32 s41, s41, {OOB}")
    a("v_mul_u32_u24 v3, 3072, v1")
    a("v_add_u32 v3, v3, v2")
    for q in range(8):
        a(f"buffer_load_dwordx4 {vr(QW + 4 * q, 4)}, v3, {sr(S_W0)}, s{T0} offen")
        if q != 7:
            a(f"s_add_u32 s{T0}, s{T0}, {8 * 3072}")
    a(f"v_mov_b32 v{LO}, 0x00003f80")
    a(f"v_mov_b32 v{HI}, 0x3f800000")
    a(f"v_mov_b32 v{ON}, 0x3f803f80")
    RU = 96
    for i in range(0, 28, 2):
        a(f"v_mov_b64 v[{RU + i}:{RU + i + 1}], 0")
    a(["v_and_b32 v2, 8, v0", "v_cmp_eq_u32 vcc, 0, v2", f"v_and_b32 v{POLL}, 7, v0", f"v_lshlrev_b32 v{POLL}, 3, v{POLL}",
       "v_lshrrev_b32 v3, 4, v0", f"v_add_u32 v{POLL}, v{POLL}, v3", "v_lshrrev_b32 v2, 1, v2", f"v_add_u32 v{POLL}, v{POLL}, v2",
       f"v_lshlrev_b32 v{POLL}, 2, v{POLL}"])
    stamp(a, 8)
    m, v_ = RU + 24, RU + 25
    for q in range(8):
        a(f"s_waitcnt vmcnt({15 - q})")
        for i in range(4):
            a(f"v_dot2c_f32_bf16 v{m + 2 * (i & 1)}, v{XW + 4 * q + i}, v{ON}")
            a(f"v_dot2c_f32_bf16 v{v_ + 2 * (i & 1)}, v{XW + 4 * q + i}, v{XW + 4 * q + i}")
    a("s_nop 2")
    a(f"v_add_f32 v{m}, v{m}, v{m + 2}")
    a(f"v_add_f32 v{v_}, v{v_}, v{v_ + 2}")
    for md in ("quad_perm:[1,0,3,2]", "quad_perm:[2,3,0,1]", "row_half_mirror"):
        a("s_nop 0")
        a(f"v_add_f32_dpp v{m}, v{m}, v{m} {md} row_mask:0xf bank_mask:0xf")
        a(f"v_add_f32_dpp v{v_}, v{v_}, v{v_} {md} row_mask:0xf bank_mask:0xf")
    a([f"v_mul_f32 v{m}, {hx(f2u(-1.0 / 512))}, v{m}", f"v_mul_f32 v{v_}, {hx(f2u(1.0 / 512))}, v{v_}",
       f"v_fma_f32 v{v_}, -v{m}, v{m}, v{v_}", f"v_max_f32 v{v_}, 0, v{v_}",
       f"v_cvt_pk_bf16_f32 v{v_}, v{v_}, v{v_}", f"v_and_b32 v{v_}, v{MASK}, v{v_}",
       f"v_add_f32 v{v_}, {hx(f2u(1e-5))}, v{v_}",
       f"v_cvt_pk_bf16_f32 v{v_}, v{v_}, v{v_}", f"v_and_b32 v{v_}, v{MASK}, v{v_}",
       f"v_sqrt_f32 v{v_}, v{v_}", "v_lshlrev_b32 v1, 2, v1",
       f"v_cvt_pk_bf16_f32 v{m}, v{v_}, v{m}",
       f"v_lshlrev_b32 v{v_}, 16, v{m}", f"v_rcp_f32 v{v_}, v{v_}",
       f"s_lshl_b32 s{T0}, s{tVM + 1}, 5", f"s_add_u32 s{T0}, s{T0}, {WS_ST}", f"s_add_u32 s{T1}, s{T0}, {WS_RS - WS_ST}",
       f"s_mov_b32 exec_lo, 0x01010101", "s_mov_b32 exec_hi, 0x01010101",
       f"buffer_store_dword v{m}, v1, {sr(S_WS)}, s{T0} offen sc1",
       f"buffer_store_dword v{v_}, v1, {sr(S_WS)}, s{T1} offen sc1", "s_mov_b64 exec, -1"])

    def colsum(src, n, acc, behind):
        for q in range(n):
            a(f"s_waitcnt vmcnt({n - 1 - q + behind})")
            for i in range(4):
                a(f"v_dot2c_f32_bf16 v{acc + 2 * i}, v{src + 4 * q + i}, v{LO}")
                a(f"v_dot2c_f32_bf16 v{acc + 2 * i + 1}, v{src + 4 * q + i}, v{HI}")
        a("s_nop 2")
        for i in range(4):
            a(f"v_permlane16_swap_b32 v{acc + 2 * i}, v{acc + 2 * i + 1}")
        for i in range(4):
            a(f"v_add_f32 v{acc + 2 * i}, v{acc + 2 * i}, v{acc + 2 * i + 1}")
        a(["s_nop 1", f"v_permlane32_swap_b32 v{acc}, v{acc + 2}", f"v_permlane32_swap_b32 v{acc + 4}, v{acc + 6}",
           f"v_add_f32 v{acc}, v{acc}, v{acc + 2}", f"v_add_f32 v{acc + 4}, v{acc + 4}, v{acc + 6}", "s_nop 1",
           f"v_add_f32_dpp v{acc}, v{acc}, v{acc} row_ror:8 row_mask:0xf bank_mask:0xf",
           f"v_add_f32_dpp v{acc + 4}, v{acc + 4}, v{acc + 4} row_ror:8 row_mask:0xf bank_mask:0xf",
           f"v_cndmask_b32 v{acc + 1}, v{acc + 4}, v{acc}, vcc"])
    colsum(QW, 8, RU, 2)
    a(f"buffer_store_dword v{RU + 1}, v{POLL}, {sr(S_WS)}, s41 offen sc1")
    a(dma(0, False))
    a("s_waitcnt vmcnt(4)")
    a("s_barrier")
    a(cs_signal("L_scs0", 0))
    stamp(a, 12)
    a(dma(1, False))
    stamp(a, 9)
    a(f"s_cmp_eq_u32 s{sHF}, 0")
    a("s_cbranch_scc1 L_p1_4")
    a("s_branch L_p1_5")


def att_step(i, ex=None, first=False):
    ex = ex or {}
    Sc, Sn = (S0, S1) if i % 2 == 0 else (S1, S0)
    Kn = K_ + 4 * ((i + 1) % 2)
    Vc = V_ + 8 * (i % 4)
    Vp = V_ + 8 * ((i - 1) % 4)
    e = lambda k: f"v_exp_f32 v{Sc + k}, v{Sc + k}"
    c = lambda k: f"v_cvt_pk_bf16_f32 v{P_ + k}, v{Sc + 2 * k}, v{Sc + 2 * k + 1}"
    r = [mfma(Sn, Kn, Q_, NM),
         f"ds_read_b128 {vr(Kn, 4)}, v{AK} offset:{(i + 3) * 2048}"]
    r += ex.get("qk", [])
    r += [e(0), e(1), e(2), e(3)]
    if not first:
        r.append(mfma(O_, Vp + 4, P_ + 4))
    if i % 2 == 0:
        r.append(f"s_mov_b64 exec, s[{tVM}:{tVM + 1}]")
        for d in (2, 3):
            vb = V_ + 8 * ((i + d) % 4)
            r.append(f"ds_read_b128 {vr(vb, 4)}, v{AV} offset:{(i + d) * 2048}")
            r.append(f"ds_read_b128 {vr(vb + 4, 4)}, v{AV} offset:{(i + d) * 2048 + 512}")
        r.append("s_mov_b64 exec, -1")
    r += ex.get("pv1", [])
    if "G2" in ex:
        r += [c(0), e(4), e(5), c(1)]
        r += [ex["G1"]] + ex.get("g1", [])
        r += [e(6), e(7), e(8), c(2), c(3), e(9)]
        r += ["s_nop 0", mfma(O_, Vc, P_)]
        if i % 2 == 1: r.append("s_waitcnt lgkmcnt(0)")
        r += ex.get("pv0", [])
        r += [e(10), e(11), c(4), e(12), c(5)]
        r += [ex["G2"]] + ex.get("g2", [])
        r += [e(13), e(14), e(15), c(6), c(7)]
    else:
        r += [c(0), e(4), e(5), c(1), e(6), e(7)]
        if "G1" in ex:
            r += [ex["G1"]]
        r += ex.get("g1", [])
        r += [e(8), c(2), c(3), e(9), e(10), e(11)]
        r.append(mfma(O_, Vc, P_, "0" if first else None))
        if i % 2 == 1: r.append("s_waitcnt lgkmcnt(0)")
        r += ex.get("pv0", [])
        r += [c(4), e(12), e(13), c(5), e(14), e(15), c(6), c(7)]
    r += ex.get("end", [])
    return r


def ring_loads(r):
    b = RING + 16 * r
    return [f"buffer_load_dwordx4 {vr(b, 4)}, v{A16}, {sr(R_H0)}, s{tFH} offen sc1",
            f"buffer_load_dwordx4 {vr(b + 4, 4)}, v{A16}, {sr(R_H1)}, s{tFH} offen sc1",
            f"buffer_load_dwordx4 {vr(b + 8, 4)}, v{A16}, {sr(R_WT)}, s{tFW} offen sc1",
            f"buffer_load_dwordx4 {vr(b + 12, 4)}, v{A16}, {sr(R_WT)}, s{tFW} offen offset:1024 sc1",
            f"s_add_u32 s{tFH}, s{tFH}, 1024",
            f"s_add_u32 s{tFW}, s{tFW}, 2048"]


def gm(r, n):
    b = RING + 16 * r
    return mfma(G_ + 16 * n, b + 8 + 4 * (n & 1), b + 4 * (n >> 1))


_pl = [0]
PC = (2, 6)
PD = 7
PG = 2


def lead(p, cond=None):
    if "prio" not in OPT:
        return []
    _pl[0] += 1
    lb = f"L_pr{_pl[0]}"
    c = [f"s_cmp_lt_u32 s{sW}, 4"] if cond is None else cond
    return c + [f"s_cbranch_scc0 {lb}", f"s_setprio {p}", f"{lb}:"]


def adv(a):
    a(f"v_add_u32 v{AK}, 0x4000, v{AK}")
    a(f"v_add_u32 v{AV}, 0x4000, v{AV}")


def gen_p2(a):
    a("L_p2:")
    if ENC == 99:
        a(["s_lshr_b32 s76, s2, 3", f"s_lshl3_add_u32 s76, s76, s{sW}", "s_cmp_lg_u32 s76, 32", "s_cbranch_scc1 L_nosk",
           "s_not_b32 s76, s80", "v_mov_b32 v1, 0", "v_mov_b32 v2, s76", "s_mov_b64 exec, 1",
           f"global_atomic_umax v1, v2, s[{pDBG}:{pDBG + 1}] offset:240 sc1", "s_mov_b64 exec, -1", "L_nosk:"])
    stamp(a, 6)
    a(f"v_mov_b32 v{A16}, v{L16}")
    a(f"v_mov_b32 v{AK}, v{L16}")
    a("v_lshrrev_b32 v2, 5, v0")
    a("v_and_b32 v3, 15, v0")
    a("v_lshlrev_b32 v3, 4, v3")
    a("v_lshl_add_u32 v3, v2, 8, v3")
    a(f"v_add_u32 v{AV}, 1024, v3")
    a(f"s_mov_b32 s{tVM}, 0x0000ffff")
    a(f"s_mov_b32 s{tVM + 1}, 0x0000ffff")
    a(f"ds_read_b128 {vr(K_, 4)}, v{AK}")
    a(f"ds_read_b128 {vr(K_ + 4, 4)}, v{AK} offset:2048")
    a(f"s_mov_b64 exec, s[{tVM}:{tVM + 1}]")
    for d in range(2):
        a(f"ds_read_b128 {vr(V_ + 8 * d, 4)}, v{AV} offset:{d * 2048}")
        a(f"ds_read_b128 {vr(V_ + 8 * d + 4, 4)}, v{AV} offset:{d * 2048 + 512}")
    a("s_mov_b64 exec, -1")
    a(f"s_lshr_b32 s{T0}, s{sW}, 2")
    a(f"s_lshl1_add_u32 s{tTT}, s{tHEAD}, s{T0}")
    a(f"s_lshl_b32 s{T0}, s{tTT}, 15")
    a(f"s_lshl_b32 s{T1}, s{tQB}, 7")
    a(f"s_add_u32 s{T0}, s{T0}, s{T1}")
    a(f"s_and_b32 s{T1}, s{sW}, 3")
    if "coal" in OPT:
        a(f"s_lshl_b32 s{T1}, s{T1}, 13")
        a(f"s_add_u32 s{T0}, s{T0}, s{T1}")
        a("v_lshrrev_b32 v1, 3, v0")
        a("v_lshlrev_b32 v1, 10, v1")
        a("v_and_b32 v2, 7, v0")
        a("v_lshl_add_u32 v1, v2, 4, v1")
    else:
        a(f"s_lshl4_add_u32 s{T0}, s{T1}, s{T0}")
        a("v_and_b32 v1, 31, v0")
        a("v_lshlrev_b32 v1, 10, v1")
        a("v_lshl_add_u32 v1, v2, 6, v1")
    a(f"v_add_u32 v{AOUT}, s{T0}, v1")
    a("s_waitcnt lgkmcnt(4)")
    a(mfma(S0, K_, Q_, "0"))
    a(mfma(S1, K_ + 4, Q_, "0"))
    a(f"s_mul_i32 s{T0}, s{tHEAD}, {224 * 1024}")
    a(f"s_add_u32 s{T0}, s{T0}, {WS_H}")
    a(f"s_add_u32 s{R_H0}, s{pWS}, s{T0}")
    a(f"s_addc_u32 s{R_H0 + 1}, s{pWS + 1}, 0")
    a(f"s_add_u32 s{R_H1}, s{R_H0}, {112 * 1024}")
    a(f"s_addc_u32 s{R_H1 + 1}, s{R_H0 + 1}, 0")
    a(f"s_mul_i32 s{tFH}, s{sW}, {14 * 1024}")
    a(f"s_add_u32 s{R_H0 + 2}, s{tFH}, {14 * 1024}")
    a(f"s_mov_b32 s{R_H1 + 2}, s{R_H0 + 2}")
    a(f"s_mul_i32 s{T0}, s{tQB}, {144 * 2048}")
    a(f"s_add_u32 s{T0}, s{T0}, {WS_WT}")
    a(f"s_add_u32 s{R_WT}, s{pWS}, s{T0}")
    a(f"s_addc_u32 s{R_WT + 1}, s{pWS + 1}, 0")
    a(f"s_lshl_b32 s{tFW}, s{tFH}, 1")
    a(f"s_lshl_b32 s{R_WT + 2}, s{R_H0 + 2}, 1")
    a(f"v_max3_f32 v1, v{S0}, v{S0 + 1}, v{S0 + 2}")
    for i in range(3, 31, 2):
        a(f"v_max3_f32 v1, v1, v{S0 + i}, v{S0 + i + 1}")
    a(f"v_max_f32 v1, v1, v{S0 + 31}")
    a("v_mov_b32 v2, v1")
    a("s_nop 1")
    a("v_permlane32_swap_b32 v1, v2")
    a("v_max_f32 v1, v1, v2")
    a(f"v_sub_f32 v2, {hx(f2u(-MAXOFF))}, v1")
    a("v_mov_b32 v3, v2")
    for i in range(0, 16, 2):
        a(f"v_mov_b64 v[{NM + i}:{NM + i + 1}], v[2:3]")
    a("s_nop 1")
    a(mfma(S0, K_, Q_, NM))
    a(f"ds_read_b128 {vr(K_, 4)}, v{AK} offset:4096")
    srd(a, R_OUT, pOUT, 2097152)
    a(f"s_lshl_b32 s{T0}, s{sW}, 11")
    a(f"v_add_u32 v{AW}, s{T0}, v{A16}")
    a(f"v_add_u32 v{AW + 1}, 0x10000, v{AW}")
    a(f"v_add_u32 v{AW + 2}, 0x20000, v{AW}")
    a("s_waitcnt lgkmcnt(0)")
    a("s_nop 1")
    a(lead(2))
    stamp(a, 7)
    global NOSTAMP
    if "side" in OPT: NOSTAMP = True
    for i in range(8):
        ex = {}
        if i == 4:
            d1, d2 = (stampl(1), stampl(2)) if "p3b" in OPT else ([], [])
            ex["end"] = d1 + ["s_waitcnt vmcnt(0)", "s_barrier"] + d2 + sig_one("L_h_ns", [f"s_add_u32 s{T0}, s{sRB}, {C_H}"], True) + lead(2)
        if i == 3:
            ex["pv0"] = lead(0)
        if i >= 5:
            ex["pv1"], ex["pv0"] = kv(i - 1, A16)
        a(att_step(i, ex, first=(i == 0)))
    adv(a)
    for i in range(8):
        ex = {}
        if i == 0:
            ex["pv1"], ex["pv0"] = kv(7, A16)
            ex["qk"] = [f"v_mov_b64 v[{RING}:{RING + 1}], 0", f"v_mov_b64 v[{RING + 2}:{RING + 3}], 0"]
        if i < 4:
            ex["G1"] = mfma(G_ + 16 * i, RING, RING, "0")
        if i == 3:
            ex["pv0"] = poll_issue("L_h_np", H_MASK, 7) + lead(0)
        if i == 4:
            d1, d2 = (stampl(3), stampl(4)) if "p3b" in OPT else ([], [])
            ex["end"] = d1 + ["s_waitcnt vmcnt(0)"] + poll_check("L_ch", 16, 7, 16) + ["s_barrier"] + d2 + lead(2)
        if i in (5, 6, 7):
            l = ring_loads(i - 5)
            ex["qk"] = l[0:1]
            ex["pv1"] = l[1:3]
            ex["pv0"] = l[3:6]
        a(att_step(i, ex))
    stamp(a, 8)
    a(f"s_mov_b32 s{tIT}, 5")
    a(f"s_lshr_b32 s{sG}, s{sW}, 2")
    a(f"s_lshl_b32 s{sG}, s{sG}, 4")
    a(f"s_add_u32 s{sG}, s{sG}, {PC[0]}")
    a("L_loop:")
    adv(a)
    plan = [[(0, 0)], [(0, 1), (0, 2)], [(0, 3)], [(1, 0), (1, 1)], [(1, 2)], [(1, 3), (2, 0)], [(2, 1)], [(2, 2), (2, 3)]]
    for i in range(8):
        ex = {}
        ex["G1"] = gm(*plan[i][0])
        if len(plan[i]) > 1:
            ex["G2"] = gm(*plan[i][1])
        if i == 0: ex["qk"] = ["s_waitcnt vmcnt(8)"]
        if i == PC[1]: ex["end"] = lead(0, [f"s_cmp_eq_u32 s{tIT}, s{sG}"])
        if i == 2:
            l = ring_loads(0)
            ex["g1"] = l[0:2]
            ex["pv0"] = l[2:6]
        if i == 3: ex["pv1"] = ["s_waitcnt vmcnt(8)"]
        if i == 5:
            l = ring_loads(1)
            ex["g1"] = l[0:2]
            ex["pv0"] = l[2:6] + ["s_waitcnt vmcnt(8)"]
        if i == 7:
            ex["g2"] = ring_loads(2)
        a(att_step(i, ex))
    a(f"s_sub_u32 s{tIT}, s{tIT}, 1")
    a(f"s_cmp_lg_u32 s{tIT}, 0")
    a("s_cbranch_scc1 L_loop")
    adv(a)
    a(f"s_and_b32 s{tFW}, s{sW}, 3")
    a(f"s_lshl_b32 s{tFW}, s{tFW}, 14")
    a(f"s_add_u32 s{tFW}, s{tFW}, {112 * 2048}")
    a(f"s_mov_b32 s{R_WT + 2}, {144 * 2048}")
    if "p3b" in OPT: stamp(a, 5)
    a("s_barrier")
    if "p3b" in OPT: stamp(a, 6)
    a(lead(2))

    def pw(o):
        base, off = (AW, o * 16384) if o < 4 else ((AW + 1, (o - 4) * 16384) if o < 6 else (AW + 2, (o - 6) * 16384))
        if "coal" in OPT:
            base, off = (AW, o * 16448) if o < 4 else ((AW + 1, o * 16448 - 65536) if o < 7 else (AW + 2, 192))
        return [f"ds_write_b128 v{base}, {vr(G_ + 8 * o, 4)} offset:{off}",
                f"ds_write_b128 v{base}, {vr(G_ + 8 * o + 4, 4)} offset:{off + 1024}"]

    XV = 244
    wreg = lambda i: RING + 4 * i if i < 12 else NM + 4 * (i - 12)

    def wol(g):
        return [f"buffer_load_dwordx4 {vr(wreg(4 * g + q), 4)}, v{A16}, {sr(R_WT)}, s{tFW} offen offset:{q * 1024} sc1" for q in range(4)] + \
               [f"s_add_u32 s{tFW}, s{tFW}, 4096"]
    for i in range(8):
        ex = {}
        if i == 0: ex["pv0"] = [f"buffer_load_dwordx4 {vr(XV, 4)}, v{AOUT}, {sr(S_X)}, 0 offen"]
        if i in (1, 3, 5): ex["pv1"], ex["g1"] = wol(i // 2)[:1], wol(i // 2)[1:2]
        if i in (2, 4, 6): ex["g1"], ex["pv0"] = wol(i // 2 - 1)[2:3], wol(i // 2 - 1)[3:]
        if i == PD: ex["end"] = lead(0)
        a(att_step(i, ex))
    a("s_nop 1")
    a(mfma(O_, V_ + 24 + 4, P_ + 4))
    a(f"s_lshl_b32 s{T0}, s{tQB}, 3")
    a(f"s_add_u32 s{T0}, s{T0}, s{sW}")
    a(f"s_lshl_b32 s{T0}, s{T0}, 5")
    a(f"s_add_u32 s{T0}, s{T0}, s{tHEAD}")
    a(f"s_lshl_b32 s{T0}, s{T0}, 10")
    a(f"s_add_u32 s{T3}, s{T0}, {WS_O}")
    a(f"v_mov_b32 v2, {hx(f2u(2.0 ** 120))}")
    a(f"v_mov_b32 v3, {hx(f2u(2.0 ** -(MAXOFF + 8)))}")
    a("s_waitcnt lgkmcnt(0)")
    a("s_nop 3")
    stamp(a, 9)
    a(f"v_add_f32 v1, |v{O_}|, |v{O_ + 1}|")
    for i in range(2, 8):
        a(f"v_add_f32 v1, v1, |v{O_ + i}|")
    a(f"v_cmp_lt_f32 s[40:41], v{O_ + 8}, v2")
    a("v_cmp_lt_f32 s[42:43], v1, v2")
    a(f"v_cmp_le_f32 s[50:51], 0.5, v{O_ + 8}")
    a("v_cmp_le_f32 vcc, v3, v1")
    a("s_or_b64 s[50:51], s[50:51], vcc")
    a("s_and_b64 s[40:41], s[40:41], s[42:43]")
    a("s_and_b64 s[40:41], s[40:41], s[50:51]")
    a("s_cmp_eq_u64 s[40:41], -1")
    a("s_cbranch_scc0 L_fallback")
    a("L_norm:")
    a(f"v_rcp_f32 v2, v{O_ + 8}")
    a("s_nop 0")
    for i in range(8):
        a(f"v_mul_f32 v{O_ + i}, v{O_ + i}, v2")
    for i in range(4):
        a(f"v_cvt_pk_bf16_f32 v{4 + i}, v{O_ + 2 * i}, v{O_ + 2 * i + 1}")
    a(f"buffer_store_dwordx4 v[4:7], v{A16}, {sr(S_WS)}, s{T3} offen sc1")
    a(wol(3)[:4])
    for o in range(8):
        a(pw(o))
    if "coal" in OPT:
        a(f"s_and_b32 s{T0}, s{sW}, 4")
        a(f"s_and_b32 s{T1}, s{sW}, 3")
        a(f"s_lshl_b32 s{T1}, s{T1}, 7")
        a("v_and_b32 v1, 3, v0")
        a(f"v_add_u32 v1, s{T0}, v1")
        a("v_bfe_u32 v2, v0, 2, 1")
        a("v_lshrrev_b32 v3, 3, v0")
        a("v_lshl_add_u32 v2, v2, 5, v3")
        a("v_lshlrev_b32 v2, 4, v2")
        a(f"v_add_u32 v2, s{T1}, v2")
        a("v_cmp_eq_u32 vcc, 7, v1")
        a("v_mul_u32_u24 v3, 16448, v1")
        a(f"v_mul_u32_u24 v1, 8256, v1")
        a(f"v_add_u32 v{AK}, v1, v2")
        a(f"v_mov_b32 v1, {131072 + 192}")
        a("v_cndmask_b32 v3, v3, v1, vcc")
        a("v_add_u32 v3, v3, v2")
    else:
        a(f"s_lshl_b32 s{T0}, s{sW}, 14")
        a(f"s_add_u32 s{T1}, s{T0}, 0x8000")
        a(f"s_cmp_lt_u32 s{sW}, 6")
        a(f"s_cselect_b32 s{T0}, s{T0}, s{T1}")
        a(f"v_add_u32 v3, s{T0}, v{A16}")
    a("s_waitcnt vmcnt(4) lgkmcnt(0)")
    a("s_barrier")
    stamp(a, 10)
    a(f"s_cmp_lg_u32 s{sW}, 0")
    a("s_cbranch_scc1 L_o_ns")
    a(f"s_lshl_b32 s{T0}, s{tQB}, 8")
    a(f"s_add_u32 s{T0}, s{T0}, {WS_CNT + C_O * 256}")
    a("v_mov_b32 v1, 1")
    a("s_mov_b64 exec, 1")
    a(f"buffer_atomic_add v1, off, {sr(S_WS)}, s{T0} sc1")
    a("s_mov_b64 exec, -1")
    a("L_o_ns:")
    F_ = G_
    for s in range(8):
        for i in range(2):
            a(f"ds_read_b128 {vr(F_ + 8 * s + 4 * i, 4)}, v3 offset:{(s * 2 + i) * 1024}")
        if s == 6:
            a("s_waitcnt lgkmcnt(10)")
    for s in range(1, 8):
        a(f"s_waitcnt lgkmcnt({2 * (7 - s)})")
        for i in range(4):
            a(f"v_pk_add_f32 {vr(F_ + 2 * i, 2)}, {vr(F_ + 2 * i, 2)}, {vr(F_ + 8 * s + 2 * i, 2)}")
    T_ = F_ + 8
    a(f"v_mov_b32 v4, {hx(f2u(-LOG2E))}")
    for i in range(8):
        a(f"v_mul_f32 v{T_ + i}, v{F_ + i}, v4")
    for i in range(8):
        a(f"v_exp_f32 v{T_ + i}, v{T_ + i}")
    a("s_nop 0")
    for i in range(8):
        a(f"v_add_f32 v{T_ + i}, 1.0, v{T_ + i}")
    for i in range(8):
        a(f"v_rcp_f32 v{T_ + i}, v{T_ + i}")
    a("s_nop 0")
    for i in range(4):
        a(f"v_pk_mul_f32 {vr(F_ + 2 * i, 2)}, {vr(F_ + 2 * i, 2)}, {vr(T_ + 2 * i, 2)}")
    XU = G_ + 16
    for i in range(4):
        a(f"v_lshlrev_b32 v{XU + 2 * i}, 16, v{XV + i}")
        a(f"v_and_b32 v{XU + 2 * i + 1}, 0xffff0000, v{XV + i}")
    a(f"s_lshr_b32 s{T0}, s{sW}, 2")
    a(f"s_mul_i32 s{T0}, s{T0}, {4 * 8256 if 'coal' in OPT else 32768}")
    a(f"s_and_b32 s{T1}, s{sW}, 3")
    a(f"s_lshl_b32 s{T2}, s{T1}, 11")
    a(f"s_add_u32 s{T0}, s{T0}, s{T2}")
    a(f"v_add_u32 v1, s{T0}, v{A16}")
    if "coal" in OPT:
        a(f"v_mov_b32 v3, v{AK}")
    else:
        a(f"s_lshl_b32 s{T0}, s{sW}, 13")
        a(f"v_add_u32 v3, s{T0}, v{A16}")
    a(f"s_lshl_b32 s{T0}, s{tTT}, 5")
    a(f"s_lshl_b32 s{T1}, s{T1}, 3")
    a(f"s_add_u32 s{T0}, s{T0}, s{T1}")
    a(f"s_lshl_b32 s{T0}, s{T0}, 10")
    a(f"s_add_u32 s{T2}, s{T0}, {WS_O}")
    a(f"s_add_u32 s{T3}, s{T2}, 4096")
    stamp(a, 11)
    a(f"s_cmp_lg_u32 s{sW}, 0")
    a("s_cbranch_scc1 L_o_ok")
    a(f"s_lshl_b32 s{T0}, s{sXCD}, 8")
    a(f"s_add_u32 s{T0}, s{T0}, {WS_CNT + C_O * 256}")
    a(f"s_mov_b32 s{T1}, {SPIN}")
    a("L_o_poll:")
    a(f"buffer_load_dword v4, off, {sr(S_WS)}, s{T0} sc1")
    a("s_waitcnt vmcnt(0)")
    a("v_readfirstlane_b32 s40, v4")
    a("s_cmp_ge_u32 s40, 32")
    a("s_cbranch_scc1 L_o_ok")
    a(f"s_sub_u32 s{T1}, s{T1}, 1")
    a(f"s_cmp_lg_u32 s{T1}, 0")
    a("s_cbranch_scc1 L_o_poll")
    a("L_o_ok:")
    a("s_barrier")
    stamp(a, 12)
    OF = S0
    SA = V_
    for j in range(8):
        so = T2 if j < 4 else T3
        a(f"buffer_load_dwordx4 {vr(OF + 4 * j, 4)}, v{A16}, {sr(S_WS)}, s{so} offen offset:{(j % 4) * 1024} sc1")
    for j in range(8):
        a(f"s_waitcnt vmcnt({7 - j})")
        for ap in range(2):
            a(mfma(SA + 16 * ap, wreg(2 * j + ap), OF + 4 * j, "0" if j == 0 else None))
    stamp(a, 13)
    a("s_nop 11")
    for o in range(4):
        for i in range(2):
            a(f"ds_write_b128 v1, {vr(SA + 8 * o + 4 * i, 4)} offset:{o * (8256 if 'coal' in OPT else 8192) + i * 1024}")
    a("s_waitcnt lgkmcnt(0)")
    a("s_barrier")
    for s in range(4):
        for i in range(2):
            a(f"ds_read_b128 {vr(SA + 8 * s + 4 * i, 4)}, v3 offset:{(s * 2 + i) * 1024}")
    for s in range(1, 4):
        a(f"s_waitcnt lgkmcnt({2 * (3 - s)})")
        for i in range(4):
            a(f"v_pk_add_f32 {vr(SA + 2 * i, 2)}, {vr(SA + 2 * i, 2)}, {vr(SA + 8 * s + 2 * i, 2)}")
    for i in range(4):
        a(f"v_pk_fma_f32 {vr(XU + 2 * i, 2)}, {vr(SA + 2 * i, 2)}, {vr(F_ + 2 * i, 2)}, {vr(XU + 2 * i, 2)}")
    for i in range(4):
        a(f"v_cvt_pk_bf16_f32 v{4 + i}, v{XU + 2 * i}, v{XU + 2 * i + 1}")
    fl = " sc1" if "osc1" in OPT else (" nt" if "ont" in OPT else (" sc0 sc1" if "osc01" in OPT else ""))
    a(f"buffer_store_dwordx4 v[4:7], v{AOUT}, {sr(R_OUT)}, 0 offen{fl}")
    stamp(a, 14)
    stamp_flush(a)
    a("L_exit:")
    a("s_endpgm")
    a("L_fallback:")
    a(f"s_lshl_b32 s{T0}, s{tHEAD}, 16")
    a(f"s_add_u32 s{T0}, s{T0}, {32 << 16}")
    a(f"s_mov_b32 s{T1}, 0")
    a("v_mov_b32 v1, 0xff800000")
    a("L_fb1:")
    a(f"s_add_u32 s{T2}, s{T0}, s{T1}")
    a(f"buffer_load_dwordx4 {vr(K_, 4)}, v{A16}, {sr(S_WS)}, s{T2} offen sc1")
    a("s_waitcnt vmcnt(0)")
    a(mfma(S0, K_, Q_, "0"))
    a("s_nop 15")
    for i in range(0, 16, 2):
        a(f"v_max3_f32 v1, v1, v{S0 + i}, v{S0 + i + 1}")
    a(f"s_add_u32 s{T1}, s{T1}, 1024")
    a(f"s_cmp_lt_u32 s{T1}, 65536")
    a("s_cbranch_scc1 L_fb1")
    a("v_mov_b32 v2, v1")
    a("s_nop 1")
    a("v_permlane32_swap_b32 v1, v2")
    a("v_max_f32 v1, v1, v2")
    a("v_sub_f32 v1, 0, v1")
    for i in range(16):
        a(f"v_mov_b32 v{NM + i}, v1")
    for i in range(16):
        a(f"v_mov_b32 v{O_ + i}, 0")
    a("v_lshrrev_b32 v2, 5, v0")
    a("v_and_b32 v3, 15, v0")
    a("v_lshlrev_b32 v3, 4, v3")
    a("v_lshl_add_u32 v3, v2, 8, v3")
    a(f"s_mov_b32 s{T1}, 0")
    a("L_fb2:")
    a(f"s_add_u32 s{T2}, s{T0}, s{T1}")
    a(f"buffer_load_dwordx4 {vr(K_, 4)}, v{A16}, {sr(S_WS)}, s{T2} offen sc1")
    a(f"s_add_u32 s{T2}, s{T2}, {32 << 16}")
    a(f"s_mov_b64 exec, s[{tVM}:{tVM + 1}]")
    a(f"buffer_load_dwordx4 {vr(V_, 4)}, v3, {sr(S_WS)}, s{T2} offen sc1")
    a(f"buffer_load_dwordx4 {vr(V_ + 4, 4)}, v3, {sr(S_WS)}, s{T2} offen offset:512 sc1")
    a("s_mov_b64 exec, -1")
    a("s_waitcnt vmcnt(0)")
    a(mfma(S0, K_, Q_, NM))
    a("s_nop 15")
    for i in range(16):
        a(f"v_exp_f32 v{S0 + i}, v{S0 + i}")
    a("s_nop 0")
    for i in range(8):
        a(f"v_cvt_pk_bf16_f32 v{P_ + i}, v{S0 + 2 * i}, v{S0 + 2 * i + 1}")
    a("s_nop 1")
    a(mfma(O_, V_, P_))
    a(mfma(O_, V_ + 4, P_ + 4))
    a(f"s_add_u32 s{T1}, s{T1}, 1024")
    a(f"s_cmp_lt_u32 s{T1}, 65536")
    a("s_cbranch_scc1 L_fb2")
    a("s_nop 15")
    a("s_branch L_norm")


def main(out):
    a = Asm()
    k = NAME + "_kernel"
    hdr = ["; LN + MHA + GEGLU block, one persistent launch; generated by gen5.py (hand-scheduled gfx950 assembly)",
           "; @launch grid=(256,1,1) block=(512,1,1) lds=163840"]
    a('.amdgcn_target "amdgcn-amd-amdhsa--gfx950"')
    a(".text")
    a(f".globl {k}\n.p2align 8\n.type {k},@function\n{k}:")
    gen_p1(a)
    gen_p2(a)
    gen_side(a)
    a("L_end:")
    a('.section .rodata,"a"')
    a(".p2align 6")
    a(f".amdhsa_kernel {k}")
    a(f".amdhsa_next_free_vgpr {NVGPR}")
    a(f".amdhsa_next_free_sgpr {96 if (STAMPS or ENC is not None) else 80}")
    a(f".amdhsa_accum_offset {(NVGPR + 3) // 4 * 4}")
    a(".amdhsa_group_segment_fixed_size 0")
    a(".amdhsa_kernarg_size 80")
    a(".amdhsa_user_sgpr_count 2")
    a(".amdhsa_user_sgpr_kernarg_segment_ptr 1")
    a(".amdhsa_system_sgpr_workgroup_id_x 1")
    a(".end_amdhsa_kernel")
    open(out, "w").write("\n".join(hdr) + "\n" + a.text())


if __name__ == "__main__":
    for x in list(sys.argv):
        if x.startswith("--opt="):
            OPT = set(x[6:].split(","))
            sys.argv.remove(x)
    for x in list(sys.argv):
        if x.startswith("--enc="):
            ENC = int(x[6:])
            sys.argv.remove(x)
    for o in OPT:
        if o.startswith("sig"): SIGU = int(o[3:])
        if o.startswith("chk"): CHK = int(o[3:])
        if o.startswith("wk"): WK = int(o[2:])
        if o.startswith("mo"): MAXOFF = float(o[2:])
        if o.startswith("vb"): VBUD = int(o[2:])
        if o.startswith("pc"): PC = (int(o[2]), int(o[3]))
        if o.startswith("pd"): PD = int(o[2])
        if o.startswith("pg"): PG = int(o[2])
    if "--cyc" in sys.argv:
        STAMPS = 2
        sys.argv.remove("--cyc")
    if "--stamps" in sys.argv:
        STAMPS = True
        sys.argv.remove("--stamps")
    main(sys.argv[1] if len(sys.argv) > 1 else f"cdna_kernels/{NAME}.s")
```

```python
import sys, struct, math

NAME = "recurrent_scan__mha_block__glu_gated_geglu__prompt"

WS_QKV = 0
WS_H = 6 << 20
WS_O = 14 << 20
WS_CNT = 16 << 20
WS_STAMP = (16 << 20) + 65536
WS_CS = (16 << 20) + 0xb0000
WS_ST = (16 << 20) + 0x80000
WS_CQ = (16 << 20) + 0xa0000
WS_RS = (16 << 20) + 0x84000
WS_CP = (19 << 20) + 0x80000
WS_WT = 17 << 20
WS_SIZE = 21 << 20
OOB = 0x7f000000

LOG2E = 1.4426950408889634
QSCALE = 0.25 * LOG2E
GC1 = -2.0 * LOG2E * math.sqrt(2.0 / math.pi)
GC2 = GC1 * 0.044715
MAXOFF = 100.0
SPIN = 0x40000

STAMPS = False
OPT = set()
NOSTAMP = False
ENC = None


def f2u(x):
    return struct.unpack("<I", struct.pack("<f", x))[0]


def hx(x):
    return "0x%08x" % (x & 0xffffffff)


class Asm:
    def __init__(self):
        self.l = []

    def __call__(self, s):
        if isinstance(s, (list, tuple)):
            for x in s:
                self(x)
            return
        for line in s.split("\n"):
            line = line.strip()
            if not line:
                continue
            if line.endswith(":") or line.startswith("."):
                self.l.append(line)
            else:
                self.l.append("    " + line)

    def text(self):
        return "\n".join(self.l) + "\n"


def vr(b, n):
    return f"v[{b}:{b + n - 1}]"


def sr(b):
    return f"s[{b}:{b + 3}]"


def mfma(d, a, b, c=None):
    cs = vr(d, 16) if c is None else (c if isinstance(c, str) else vr(c, 16))
    return f"v_mfma_f32_32x32x16_bf16 {vr(d, 16)}, {vr(a, 4)}, {vr(b, 4)}, {cs}"


def stamp(a, n):
    if ENC is not None:
        if n in (0, ENC) and not NOSTAMP:
            a("s_memrealtime s[76:77]")
            a("s_waitcnt lgkmcnt(0)")
            a(f"s_mov_b32 s{80 if n == 0 else 81}, s76")
            if n == 0:
                a("s_mov_b32 s81, s76")
        return
    if not STAMPS or (NOSTAMP and n != 15) or ("min" in OPT and n not in (0, 15)):
        return
    a("s_memtime s[76:77]" if STAMPS == 2 else "s_memrealtime s[76:77]")
    a("s_waitcnt lgkmcnt(0)")
    a(f"s_mov_b32 s{80 + n}, s76")


def stampl(n):
    t = Asm()
    stamp(t, n)
    return [x.strip() for x in t.l]


def stamp_flush(a):
    if ENC is not None:
        a("s_waitcnt vmcnt(0)")
        a("s_memrealtime s[76:77]")
        a("s_waitcnt lgkmcnt(0)")
        if ENC == 15:
            a("s_mov_b32 s81, s76")
        if ENC == 99:
            a(["v_mov_b32 v1, 0", f"global_load_dword v2, v1, s[{pDBG}:{pDBG + 1}] offset:240 sc1", "s_waitcnt vmcnt(0)",
               "v_readfirstlane_b32 s80, v2", "s_not_b32 s80, s80", "s_sub_u32 s80, s80, 100"])
        a("s_sub_u32 s81, s81, s80")
        a("s_cmp_lt_u32 s2, 32" if "encs" not in OPT else "s_cmp_ge_u32 s2, 32")
        a("s_cselect_b32 s81, 0, s81")
        a("s_mov_b32 s80, s76")
        a("L_enc:")
        a("s_memrealtime s[76:77]")
        a("s_waitcnt lgkmcnt(0)")
        a("s_sub_u32 s76, s76, s80")
        a("s_cmp_lt_u32 s76, s81")
        a("s_cbranch_scc1 L_enc")
        return
    if not STAMPS:
        return
    a("s_waitcnt vmcnt(0)")
    stamp(a, 15)
    a("v_mov_b32 v1, 0")
    for n in range(16):
        a(f"v_writelane_b32 v1, s{80 + n}, {n}")
    a("s_lshl_b32 s76, s2, 3")
    a(f"s_add_u32 s76, s76, s{sW}")
    a("s_lshl_b32 s76, s76, 6")
    a(f"s_add_u32 s76, s76, {WS_STAMP}")
    a("v_lshlrev_b32 v2, 2, v0")
    a("s_mov_b64 exec, 0xffff")
    a(f"buffer_store_dword v1, v2, {sr(S_WS)}, s76 offen")


def srd(a, s, ptr, size):
    a(f"s_mov_b32 s{s}, s{ptr}")
    a(f"s_mov_b32 s{s + 1}, s{ptr + 1}")
    a(f"s_mov_b32 s{s + 2}, {size}")
    a(f"s_mov_b32 s{s + 3}, 0x00020000")


pX, pWQKV, pWO, pG, pU, pWD, pOUT, pDBG, pWS = 56, 58, 60, 64, 66, 68, 70, 72, 74
S_T, S_X, S_W0, S_W1, S_W3, S_WS = 4, 8, 12, 16, 20, 24
R_OUT, R_H0, R_H1, R_WT = 4, 12, 16, 20
sW, sTT, sHF, sRB, sCB, sROT, sISS, sVAR = 28, 29, 30, 31, 32, 33, 34, 35
sCQ, sCG, sXROW, sLW = 36, 37, 42, 43
T0, T1, T2, T3 = 44, 45, 46, 47
sXCD, sT, sG, sKV = 49, 52, 53, 50
tHEAD, tQB, tIT, tFH, tFW, tTT = 38, 39, 33, 36, 37, 48
tVM = 54

AR, BR, CR, SL = 0, 49152, 98304, 16384
SCR = 147456
XA, VXS, VW0, WQ, WC = 4, 8, 9, 10, 12
VW1, VW3, L16, MASK, ONES, STV, POLL = 14, 15, 16, 17, 18, 20, 21
CSA = 24
WF = 32
ACF, ACQ = 64, 96
XF = 128
Q_, K_, P_, NM, S0, S1, RING = 8, 12, 20, 28, 44, 60, 76
AK, AV, A16, AOUT = 124, 125, 126, 127
G_, V_, O_, AW = 128, 192, 224, 240
NVGPR = 256
C_H, C_CS, C_O = 24, 40, 56
T4 = 63
sCF, sCNT = 51, 62


def tiny(d, a_, b_, first=False):
    return f"v_mfma_f32_4x4x4_16b_bf16 {vr(d, 4)}, {vr(a_, 2)}, {vr(b_, 2)}, {'0' if first else vr(d, 4)}"


def dma(S, ffn=True):
    sl = (S % 3) * SL
    if S < 8:
        r = [[f"s_add_u32 s{T1}, s{sROT}, {S}", f"s_and_b32 s{T1}, s{T1}, 7",
              f"s_lshl_b32 s{T0}, s{T1}, 7", f"s_add_u32 m0, s{sLW}, {AR + sl}", f"s_add_u32 s{T0}, s{T0}, s{sXROW}",
              f"buffer_load_dwordx4 v{VXS}, {sr(S_X)}, s{T0} offen lds"],
             [f"s_mul_i32 s{T1}, s{T1}, {64 * 3072}", f"s_add_u32 m0, s{sLW}, {BR + sl}", f"s_add_u32 s{T1}, s{T1}, s{sCQ}",
              f"buffer_load_dwordx4 v{VW0}, {sr(S_W0)}, s{T1} offen lds"],
             [f"s_add_u32 m0, s{sLW}, {AR + sl + 8192}", f"s_add_u32 s{T0}, s{T0}, 0x10000",
              f"buffer_load_dwordx4 v{VXS}, {sr(S_X)}, s{T0} offen lds"],
             [f"s_add_u32 m0, s{sLW}, {BR + sl + 8192 - 128}", "s_nop 0",
              f"buffer_load_dwordx4 v{VW0}, {sr(S_W0)}, s{T1} offen offset:128 lds"]]
        if ffn and S >= 2:
            r += [[f"s_add_u32 s{T4}, s{sROT}, {S - 2}", f"s_and_b32 s{T4}, s{T4}, 7", f"s_mul_i32 s{T4}, s{T4}, {64 * 3584}",
                   f"s_add_u32 m0, s{sLW}, {CR + sl}", f"s_add_u32 s{T4}, s{T4}, s{sCG}",
                   f"buffer_load_dwordx4 v{VW1}, {sr(S_W1)}, s{T4} offen lds"],
                  [f"s_add_u32 m0, s{sLW}, {CR + sl + 8192}", "s_nop 0",
                   f"buffer_load_dwordx4 v{VW3}, {sr(S_W3)}, s{T4} offen lds"]]
        return r
    if not ffn:
        return []
    r = []
    off = 128 if S > 8 else 0
    for hb, base in enumerate((BR, CR)):
        r += [[f"s_add_u32 s{T1}, s{sROT}, {(2 * (S - 9) + hb) & 7}", f"s_and_b32 s{T1}, s{T1}, 7",
               f"s_mul_i32 s{T1}, s{T1}, {64 * 3584}", f"s_add_u32 m0, s{sLW}, {base + sl - off}", f"s_add_u32 s{T1}, s{T1}, s{sCG}",
               f"buffer_load_dwordx4 v{VW1}, {sr(S_W1)}, s{T1} offen offset:{off} lds"],
              [f"s_add_u32 m0, s{sLW}, {base + sl + 8192 - off}", "s_nop 0",
               f"buffer_load_dwordx4 v{VW3}, {sr(S_W3)}, s{T1} offen offset:{off} lds"]]
    return r


def fset(k, ffn):
    return WF + 16 * (k & 1) if (ffn and k >= 8) else WF + 8 * (k & 3)


def rd1(k, nt, ffn):
    S, ks = k >> 2, k & 3
    sl = (S % 3) * SL
    F = fset(k, ffn)
    r = [f"ds_read_b128 {vr(XF + 4 * k, 4)}, v{XA + ks} offset:{sl}"]
    for t in range(nt):
        for t2 in range(2):
            r.append(f"ds_read_b64_tr_b16 {vr(F + 4 * t + 2 * t2, 2)}, v{WQ + t} offset:{sl + ks * 2048 + t2 * 512}")
    if ffn and k >= 8:
        for c in range(2):
            for t2 in range(2):
                r.append(f"ds_read_b64_tr_b16 {vr(F + 8 + 4 * c + 2 * t2, 2)}, v{WC + c} offset:{sl + ks * 2048 + t2 * 512}")
    return r


def rd2(u):
    S = 8 + (u >> 2)
    sl = (S % 3) * SL
    base = WQ if (u & 3) < 2 else WC
    F = WF + 16 * (u & 1)
    return [f"ds_read_b64_tr_b16 {vr(F + 8 * q + 4 * c + 2 * t2, 2)}, v{base + c} offset:{sl + ((2 * u + q) & 3) * 2048 + t2 * 512}"
            for q in range(2) for c in range(2) for t2 in range(2)]


def flat(L):
    return [x for at in L for x in ([at] if isinstance(at, str) else at)]


def spread(heads, first, rest):
    n = len(heads)
    pf = -(-len(first) // max(1, n - 1)) if first else 0
    res = []
    for j, hd in enumerate(heads):
        res.append(hd)
        res += flat(first[j * pf:(j + 1) * pf])
        res += flat(rest[j * len(rest) // n:(j + 1) * len(rest) // n])
    return res


def nvm(lines):
    return sum(1 for l in lines if l.startswith("buffer_") or l.startswith("global_"))


def weave(heads, fills):
    res = []
    per = -(-len(fills) // len(heads)) if fills else 0
    i = 0
    for hd in heads:
        res.append(hd)
        for at in fills[i:i + per]:
            res += [at] if isinstance(at, str) else at
        i += per
    return res


def tr_addr(dst, t_a, t_b):
    return [f"v_lshrrev_b32 v{t_a}, 5, v0", f"v_bfe_u32 v{t_b}, v0, 2, 2", f"v_lshl_add_u32 v{dst}, v{t_a}, 2, v{t_b}",
            f"v_lshlrev_b32 v{dst}, 7, v{dst}", f"v_and_b32 v{t_a}, 1, v0", f"v_lshl_add_u32 v{dst}, v{t_a}, 6, v{dst}",
            f"v_bfe_u32 v{t_a}, v0, 4, 1", f"v_lshl_add_u32 v{dst}, v{t_a}, 4, v{dst}", f"v_bfe_u32 v{t_a}, v0, 1, 1",
            f"v_lshl_add_u32 v{dst}, v{t_a}, 3, v{dst}", f"v_lshrrev_b32 v{t_b}, 1, v{t_b}", f"v_lshl_add_u32 v{dst}, v{t_b}, 5, v{dst}"]


def split3(w, src):
    return [f"v_and_b32 v{w}, v{MASK}, v{src}", f"v_sub_f32 v{w + 2}, v{src}, v{w}",
            f"v_and_b32 v{w + 1}, v{MASK}, v{w + 2}", f"v_sub_f32 v{w + 2}, v{w + 2}, v{w + 1}", f"v_mov_b32 v{w + 3}, 0"]


def poll_issue(lbl, mask_instrs, reg=POLL):
    return ([f"s_cmp_lg_u32 s{sW}, 0", f"s_cbranch_scc1 {lbl}", "v_lshlrev_b32 v1, 8, v0"] + mask_instrs +
            ["s_mov_b64 exec, s[40:41]",
             f"buffer_load_dword v{reg}, v1, {sr(S_WS)}, s{sCNT} offen sc1", "s_mov_b64 exec, -1", f"{lbl}:"])


def poll_check(lbl, thr, reg=POLL, sleep=8):
    return [f"s_cmp_lg_u32 s{sW}, 0", f"s_cbranch_scc1 {lbl}_ok",
            f"s_mov_b32 s{T3}, {SPIN}", "s_mov_b64 exec, s[40:41]", f"{lbl}_spin:",
            f"v_cmp_gt_u32 vcc, {thr}, v{reg}", "s_cmp_eq_u64 vcc, 0", f"s_cbranch_scc1 {lbl}_done",
            f"s_sleep {sleep}",
            f"buffer_load_dword v{reg}, v1, {sr(S_WS)}, s{sCNT} offen sc1", "s_waitcnt vmcnt(0)",
            f"s_sub_u32 s{T3}, s{T3}, 1", f"s_cmp_lg_u32 s{T3}, 0", f"s_cbranch_scc1 {lbl}_spin",
            f"{lbl}_done:", "s_mov_b64 exec, -1", f"{lbl}_ok:"]


QKV_MASK = [f"s_lshl_b32 s40, 0x10101, s{sXCD}", "s_mov_b32 s41, 0"]
CS_MASK = ["s_mov_b32 s40, 0", f"s_lshl_b32 s41, 0x100, s{sCF}"]
H_MASK = ["s_mov_b32 s40, 0xff000000", "s_mov_b32 s41, 0xff"]


def cs_issue(lbl, n):
    return [f"s_cmp_lg_u32 s{sW}, 0", f"s_cbranch_scc1 {lbl}", "v_lshlrev_b32 v1, 6, v0", "s_mov_b64 exec, 15",
            f"global_load_dword v{POLL}, v1, s[{pDBG}:{pDBG + 1}] offset:{4 * n} sc1", "s_mov_b64 exec, -1", f"{lbl}:"]


def cs_signal(lbl, n):
    return [f"s_cmp_lg_u32 s{sW}, 0", f"s_cbranch_scc1 {lbl}", f"s_and_b32 s{T2}, s{sRB}, 3", f"s_lshl_b32 s{T2}, s{T2}, 6",
            f"v_mov_b32 v2, s{T2}", "v_mov_b32 v3, 1", "s_mov_b64 exec, 1",
            f"global_atomic_add v2, v3, s[{pDBG}:{pDBG + 1}] offset:{4 * n} sc1", "s_mov_b64 exec, -1", f"{lbl}:"]


def cs_check(lbl, n):
    return [f"s_cmp_lg_u32 s{sW}, 0", f"s_cbranch_scc1 {lbl}_ok",
            f"s_mov_b32 s{T3}, {SPIN}", "s_mov_b64 exec, 15", f"{lbl}_spin:",
            f"v_cmp_gt_u32 vcc, 8, v{POLL}", "s_cmp_eq_u64 vcc, 0", f"s_cbranch_scc1 {lbl}_done",
            "s_sleep 8",
            f"global_load_dword v{POLL}, v1, s[{pDBG}:{pDBG + 1}] offset:{4 * n} sc1", "s_waitcnt vmcnt(0)",
            f"s_sub_u32 s{T3}, s{T3}, 1", f"s_cmp_lg_u32 s{T3}, 0", f"s_cbranch_scc1 {lbl}_spin",
            f"{lbl}_done:", "s_mov_b64 exec, -1", f"{lbl}_ok:"]


def flag_check(lbl):
    return [f"s_cmp_lg_u32 s{sW}, 0", f"s_cbranch_scc1 {lbl}",
            f"s_mov_b32 s{T3}, {SPIN}", f"{lbl}_spin:",
            f"v_readfirstlane_b32 s{T2}, v{POLL}", f"s_cmp_lg_u32 s{T2}, 0", f"s_cbranch_scc1 {lbl}",
            "s_sleep 8", "v_mov_b32 v2, 0",
            f"global_load_dword v{POLL}, v2, s[{pDBG}:{pDBG + 1}] offset:32 sc1", "s_waitcnt vmcnt(0)",
            f"s_sub_u32 s{T3}, s{T3}, 1", f"s_cmp_lg_u32 s{T3}, 0", f"s_cbranch_scc1 {lbl}_spin", f"{lbl}:"]


def sig_qkv(lbl):
    return [f"s_cmp_lg_u32 s{sW}, 0", f"s_cbranch_scc1 {lbl}",
            f"s_mul_i32 s{T2}, s{sCB}, 3", f"s_lshr_b32 s{T2}, s{T2}, 1", f"s_and_b32 s{T3}, s{sCB}, 1",
            f"v_add_u32 v2, s{T2}, v0", "v_lshlrev_b32 v2, 8, v2",
            f"v_xor_b32 v3, s{T3}, v0", "v_sub_u32 v3, 2, v3",
            "s_mov_b64 exec, 3", f"buffer_atomic_add v3, v2, {sr(S_WS)}, s{sCNT} offen sc1", "s_mov_b64 exec, -1", f"{lbl}:"]


def sig_one(lbl, idx_instrs, skip_side=False):
    c = [f"s_or_b32 s{T0}, s{sW}, s{sISS}"] if skip_side else [f"s_cmp_lg_u32 s{sW}, 0"]
    return (c + [f"s_cbranch_scc1 {lbl}"] + idx_instrs +
            [f"s_lshl_b32 s{T0}, s{T0}, 8", f"s_add_u32 s{T0}, s{T0}, s{sCNT}", "v_mov_b32 v3, 1", "s_mov_b64 exec, 1",
             f"buffer_atomic_add v3, off, {sr(S_WS)}, s{T0} sc1", "s_mov_b64 exec, -1", f"{lbl}:"])


def kv(i, r=L16):
    return [[f"s_lshl1_add_u32 m0, s{sLW}, {i * 16384}" if i else f"s_lshl_b32 m0, s{sLW}, 1",
             f"s_add_u32 s{T2}, s{sKV}, {i * 8192}",
             f"buffer_load_dwordx4 v{r}, {sr(S_WS)}, s{T2} offen sc1 lds"],
            [f"s_lshl1_add_u32 m0, s{sLW}, {i * 16384 + 1024}", f"s_add_u32 s{T2}, s{sKV}, {i * 8192 + (32 << 16)}",
             f"buffer_load_dwordx4 v{r}, {sr(S_WS)}, s{T2} offen sc1 lds"]]


def q_load():
    return [f"s_lshl_b32 s{T2}, s{tQB}, 13", f"s_add_u32 s{T2}, s{T2}, s{sKV}", f"s_sub_u32 s{T2}, s{T2}, {32 << 16}",
            f"buffer_load_dwordx4 {vr(Q_, 4)}, v{L16}, {sr(S_WS)}, s{T2} offen sc1"]


def p2_init_v():
    return ([["v_and_b32 v3, 27, v0", "v_cmp_eq_u32 vcc, 16, v3", f"v_mov_b32 v{V_ + 1}, 0x3f803f80", "v_mov_b32 v3, 0",
              f"v_cndmask_b32 v{V_}, v3, v{V_ + 1}, vcc", f"v_mov_b32 v{V_ + 1}, v{V_}"]] +
            [f"v_mov_b64 v[{V_ + i}:{V_ + i + 1}], v[{V_}:{V_ + 1}]" for i in range(2, 32, 2)])


TRA, TRD = 142, 144


def tr_setup():
    A, B, C, D = T2, T3, tVM + 1, tVM
    return [[f"s_sub_u32 s{C}, s2, 32", f"s_mul_i32 s{D}, s{sW}, 144", f"s_add_u32 s{D}, s{D}, s{C}", f"s_lshl_b32 s{D}, s{D}, 11",
             f"s_add_u32 s{D}, s{D}, {WS_WT}", f"s_cmp_lt_u32 s{C}, 144", f"s_cselect_b32 s{D}, s{D}, {OOB}",
             f"s_cmp_lt_u32 s{C}, 112", f"s_cselect_b32 s{S_T}, s{pWD}, s{pWO}",
             f"s_cselect_b32 s{S_T + 1}, s{pWD + 1}, s{pWO + 1}", f"s_mov_b32 s{S_T + 2}, 1835008",
             f"s_cselect_b32 s{S_T + 2}, s{S_T + 2}, 524288", f"s_cselect_b32 s{A}, 0, 112", f"s_mov_b32 s{S_T + 3}, 0x00020000",
             f"s_sub_u32 s{C}, s{C}, s{A}", f"s_lshl_b32 s{C}, s{C}, 14", f"s_lshl_b32 s{B}, s{sW}, 7", f"s_add_u32 s{C}, s{C}, s{B}"],
            ["v_lshrrev_b32 v2, 3, v0", "v_and_b32 v3, 2, v2", "v_and_b32 v18, 7, v0", "v_xor_b32 v18, v3, v18",
             "v_lshlrev_b32 v18, 4, v18", "v_lshl_add_u32 v18, v2, 10, v18"]]


def tr_dma():
    C = tVM + 1
    return [[f"s_lshl_b32 m0, s{sLW}, 1", f"s_add_u32 s{T3}, s{C}, 8192", f"buffer_load_dwordx4 v18, {sr(S_T)}, s{C} offen lds",
             "s_add_u32 m0, m0, 1024", "s_nop 0", f"buffer_load_dwordx4 v18, {sr(S_T)}, s{T3} offen lds"]]


def tr_rd():
    return [f"ds_read_b64_tr_b16 {vr(TRD + 4 * ap + 2 * t, 2)}, v{TRA + ap} offset:{t * 1024}" for ap in range(2) for t in range(2)]


def tr_st():
    return [f"buffer_store_dwordx4 {vr(TRD, 4)}, v{L16}, {sr(S_WS)}, s{tVM} offen sc1",
            f"buffer_store_dwordx4 {vr(TRD + 4, 4)}, v{L16}, {sr(S_WS)}, s{tVM} offen offset:1024 sc1"]


def gen_p1(a):
    global NOSTAMP
    a("s_cmp_ge_u32 s2, 256")
    a("s_cbranch_scc1 L_exit")
    stamp(a, 0)
    a(f"s_load_dwordx4 s[{pX}:{pX + 3}], s[0:1], 0")
    a(f"s_load_dwordx4 s[{pG}:{pG + 3}], s[0:1], 32")
    a(f"s_load_dwordx2 s[{pWO}:{pWO + 1}], s[0:1], 16")
    a(f"s_load_dwordx4 s[{pWD}:{pWD + 3}], s[0:1], 48")
    a(f"s_load_dwordx4 s[{pDBG}:{pDBG + 3}], s[0:1], 64")
    a("v_lshrrev_b32 v1, 6, v0")
    a("v_and_b32 v0, 63, v0")
    a(f"v_readfirstlane_b32 s{sW}, v1")
    a("s_cmp_ge_u32 s2, 32")
    a("s_cbranch_scc1 L_nocode")
    a("s_getpc_b64 s[40:41]")
    a("L_here:")
    a("v_lshlrev_b32 v2, 13, v1")
    a("v_lshl_add_u32 v2, v0, 7, v2")
    a("v_min_u32 v2, L_end-L_here-4, v2")
    a("v_mov_b32 v3, s41")
    a("v_add_co_u32 v2, vcc, s40, v2")
    a("s_nop 1")
    a("v_addc_co_u32 v3, vcc, 0, v3, vcc")
    a(f"global_load_dword v{STV}, v[2:3], off")
    a("L_nocode:")
    a(f"s_and_b32 s{sXCD}, s2, 7")
    a(f"s_lshr_b32 s{T1}, s2, 3")
    a(f"s_and_b32 s{sRB}, s{sXCD}, 3")
    a(f"s_and_b32 s{T2}, s{T1}, 3")
    a(f"s_lshl2_add_u32 s{sRB}, s{sRB}, s{T2}")
    a(f"s_lshr_b32 s{sCF}, s{sXCD}, 2")
    a(f"s_lshr_b32 s{sISS}, s{T1}, 2")
    a(f"s_lshl3_add_u32 s{sCB}, s{sCF}, s{sISS}")
    a(f"s_lshl1_add_u32 s{sROT}, s{sXCD}, s{sISS}")
    a(f"s_lshl_b32 s{sLW}, s{sW}, 10")
    a(f"s_lshl_b32 s{T2}, s{sW}, 3")
    a(f"s_lshl_b32 s{sXROW}, s{sRB}, 7")
    a(f"s_add_u32 s{sXROW}, s{sXROW}, s{T2}")
    a(f"s_lshl_b32 s{sXROW}, s{sXROW}, 10")
    a(f"s_mul_i32 s{sCQ}, s{sCB}, 3")
    a(f"s_lshr_b32 s{sCQ}, s{sCQ}, 1")
    a(f"s_lshl_b32 s{sCQ}, s{sCQ}, 7")
    a(f"s_mul_i32 s{T3}, s{T2}, 3072")
    a(f"s_add_u32 s{sCQ}, s{sCQ}, s{T3}")
    a(f"s_mul_i32 s{T3}, s{T2}, 3584")
    a(f"s_sub_u32 s{sCF}, s{sCB}, s{sCF}")
    a(f"s_sub_u32 s{sCF}, s{sCF}, 1")
    a(f"s_lshl_b32 s{sCG}, s{sCF}, 8")
    a(f"s_add_u32 s{sCG}, s{sCG}, s{T3}")
    a(f"s_cmp_eq_u32 s{sISS}, 0")
    a(f"s_cselect_b32 s{sISS}, 1, 0")
    a(f"s_cselect_b32 s{sCG}, {OOB}, s{sCG}")
    a("v_lshrrev_b32 v1, 3, v0")
    a("v_and_b32 v2, 7, v0")
    a(f"v_add_u32 v3, s{T2}, v1")
    a("v_bfe_u32 v3, v3, 1, 3")
    a("v_xor_b32 v3, v3, v2")
    a("v_lshlrev_b32 v3, 4, v3")
    a(f"v_lshl_add_u32 v{VXS}, v1, 10, v3")
    a("v_and_b32 v3, 2, v1")
    a("v_lshlrev_b32 v3, 1, v3")
    a("v_xor_b32 v3, v3, v2")
    a("v_lshlrev_b32 v3, 4, v3")
    a("v_mul_u32_u24 v4, 3072, v1")
    a(f"v_add_u32 v{VW0}, v4, v3")
    a("v_mul_u32_u24 v4, 3584, v1")
    a(f"v_add_u32 v{VW1}, v4, v3")
    a(f"v_xor_b32 v{VW3}, 32, v{VW1}")
    for r_, sz in ((S_X, 2097152), (S_W0, 1572864), (S_W1, 1835008), (S_W3, 1835008)):
        a(f"s_mov_b32 s{r_ + 2}, {sz}")
        a(f"s_mov_b32 s{r_ + 3}, 0x00020000")
    a("s_waitcnt lgkmcnt(0)")
    for r_, p_ in ((S_X, pX), (S_W0, pWQKV), (S_W1, pG), (S_W3, pU)):
        a(f"s_mov_b64 s[{r_}:{r_ + 1}], s[{p_}:{p_ + 1}]")
    a(f"s_cmp_eq_u32 s{sISS}, 1")
    a("s_cbranch_scc1 L_nod0")
    a(dma(0))
    if "tlb" in OPT:
        a("s_branch L_nod1")
    a("L_nod0:")
    if "tlb" in OPT:
        a(f"s_and_b32 s{T0}, s{sRB}, 3")
        a(f"s_lshl2_add_u32 s{T0}, s{sW}, s{T0}")
        a(f"s_sub_u32 s{T1}, s{T0}, 4")
        a(f"s_min_u32 s{T1}, s{T1}, 10")
        a(f"s_lshl_b32 s{T1}, s{T1}, 21")
        a(f"s_add_u32 s40, s{pWS}, s{T1}")
        a(f"s_addc_u32 s41, s{pWS + 1}, 0")
        for i, p_ in ((0, pG), (1, pU), (2, pWQKV), (3, pDBG), (15, pWD), (16, pWO), (17, pOUT)):
            a(f"s_cmp_eq_u32 s{T0}, {i}")
            a(f"s_cselect_b64 s[40:41], s[{p_}:{p_ + 1}], s[40:41]")
        a("v_mov_b32 v3, 0")
        a("s_mov_b64 exec, 1")
        a(f"global_load_dword v{STV}, v3, s[40:41] offset:192 sc1")
        a("s_mov_b64 exec, -1")
        a("L_nod1:")
    a(f"v_lshlrev_b32 v{L16}, 4, v0")
    a(f"s_and_b32 s{sTT}, s{sW}, 3")
    a(f"s_lshr_b32 s{sHF}, s{sW}, 2")
    a(f"s_mov_b32 s{sCNT}, {WS_CNT}")
    srd(a, S_WS, pWS, WS_SIZE)
    a(f"s_lshl2_add_u32 s{sT}, s{sRB}, s{sTT}")
    a(f"s_mul_i32 s{sG}, s{sCB}, 3")
    a(f"s_lshl1_add_u32 s{sG}, s{sHF}, s{sG}")
    a(f"s_cmp_ge_u32 s{sG}, 32")
    a(f"s_cselect_b32 s{sVAR}, 2, 0")
    a(f"s_add_u32 s{sVAR}, s{sVAR}, s{sHF}")
    a(f"s_lshl_b32 s{sG}, s{sG}, 1")
    a(f"s_lshr_b32 s{T1}, s2, 3")
    a(f"s_and_b32 s{T2}, s{T1}, 3")
    a(f"s_lshl2_add_u32 s{tHEAD}, s{sXCD}, s{T2}")
    a(f"s_lshr_b32 s{tQB}, s{T1}, 2")
    a(f"s_lshl_b32 s{sKV}, s{tHEAD}, 16")
    a(f"s_add_u32 s{sKV}, s{sKV}, s{sLW}")
    a(f"s_add_u32 s{sKV}, s{sKV}, {32 << 16}")
    t4, t6, t7 = WF, WF + 1, WF + 2
    a("v_and_b32 v1, 31, v0")
    a("v_lshrrev_b32 v2, 5, v0")
    a("v_bfe_u32 v3, v0, 1, 3")
    a("v_xor_b32 v3, v3, v2")
    a("v_lshlrev_b32 v3, 4, v3")
    a("v_lshl_add_u32 v3, v1, 7, v3")
    a(f"s_lshl_b32 s{T0}, s{sTT}, 12")
    a(f"v_add_u32 v{XA}, s{T0}, v3")
    for i in range(1, 4):
        a(f"v_xor_b32 v{XA + i}, {32 * i}, v{XA}")
    a("v_bfe_u32 v3, v0, 2, 2")
    a(f"v_lshl_add_u32 v{t4}, v2, 3, v3")
    a(f"v_lshlrev_b32 v{t4}, 7, v{t4}")
    a(f"v_and_b32 v{t7}, 3, v0")
    a(f"v_lshl_add_u32 v{t4}, v{t7}, 3, v{t4}")
    a("v_and_b32 v3, 2, v3")
    a(f"v_bfe_u32 v{t7}, v0, 4, 1")
    a(f"v_xor_b32 v3, v3, v{t7}")
    a(f"s_and_b32 s{T0}, s{sCB}, 1")
    a(f"s_lshl1_add_u32 s{T0}, s{sHF}, s{T0}")
    for t in range(2):
        a(f"s_and_b32 s{T1}, s{T0}, 1")
        a(f"s_lshl_b32 s{T1}, s{T1}, 1")
        a(f"s_lshr_b32 s{T2}, s{T0}, 1")
        a(f"s_lshl_b32 s{T2}, s{T2}, 13")
        a(f"s_add_u32 s{T2}, s{T2}, {BR}")
        a(f"v_xor_b32 v{t6}, s{T1}, v3")
        a(f"v_lshl_add_u32 v{t6}, v{t6}, 5, v{t4}")
        a(f"v_add_u32 v{WQ + t}, s{T2}, v{t6}")
        if t == 0:
            a(f"s_add_u32 s{T0}, s{T0}, 1")
    a(f"v_lshl_add_u32 v{t4}, v{t7}, 13, v{t4}")
    a(f"v_add_u32 v{t4}, {CR}, v{t4}")
    a(f"s_lshl_b32 s{T0}, s{sHF}, 1")
    a(f"v_xor_b32 v{t6}, s{T0}, v3")
    a(f"v_lshl_add_u32 v{WC}, v{t6}, 5, v{t4}")
    a(f"v_xor_b32 v{WC + 1}, 32, v{WC}")
    a(f"v_mov_b32 v{MASK}, 0xffff0000")
    a(f"v_mov_b32 v{ONES}, 0x3f80")
    a(f"s_cmp_eq_u32 s{sISS}, 1")
    a("s_cbranch_scc1 L_side1")
    a([f"s_lshl_b32 s{T0}, s{sW}, 8", f"s_or_b32 s{T0}, s2, s{T0}", f"s_cmp_lg_u32 s{T0}, 32", "s_cbranch_scc1 L_nozero",
       "v_mov_b32 v1, 0", "v_lshlrev_b32 v2, 8, v0", f"buffer_store_dword v1, v2, {sr(S_WS)}, s{sCNT} offen sc1",
       "v_add_u32 v2, 0x4000, v2", f"buffer_store_dword v1, v2, {sr(S_WS)}, s{sCNT} offen sc1"] +
      ([f"buffer_store_dword v1, v2, {sr(S_WS)}, s{sCNT} offen offset:128 sc1", "v_add_u32 v2, 0x4000, v2",
        f"buffer_store_dword v1, v2, {sr(S_WS)}, s{sCNT} offen sc1",
        f"buffer_store_dword v1, v2, {sr(S_WS)}, s{sCNT} offen offset:128 sc1"] if "rep" in OPT else []) + ["L_nozero:"])
    a(dma(1))
    stamp(a, 1)
    for v in range(1, 4):
        a(f"s_cmp_eq_u32 s{sVAR}, {v}")
        a(f"s_cbranch_scc1 L_p1_{v}")
    XOP, RS = XA, 22
    CL, RU, ta, tb, tc = 224, 232, 240, 241, 242
    cs_loads = [[f"s_bitcmp1_b32 s{sRB}, 1", f"s_cselect_b32 s{S_T}, s{pU}, s{pG}", f"s_cselect_b32 s{S_T + 1}, s{pU + 1}, s{pG + 1}",
                 f"s_mov_b32 s{S_T + 2}, 1835008", f"s_mov_b32 s{S_T + 3}, 0x00020000",
                 f"s_add_u32 s{T2}, s{sROT}, {CSO}", f"s_lshl2_add_u32 s{T2}, s{T2}, s{sW}", f"s_and_b32 s{T2}, s{T2}, 31",
                 f"s_mul_i32 s{T2}, s{T2}, {16 * 3584}",
                 f"s_and_b32 s{T3}, s{sRB}, 1", f"s_lshl1_add_u32 s{T3}, s{sCF}, s{T3}", f"s_lshl_b32 s{T3}, s{T3}, 7", f"s_add_u32 s{T2}, s{T2}, s{T3}",
                 f"v_lshrrev_b32 v{ta}, 3, v0", f"v_mul_u32_u24 v{ta}, 3584, v{ta}", f"v_and_b32 v{tb}, 7, v0", f"v_lshl_add_u32 v{ta}, v{tb}, 4, v{ta}",
                 f"buffer_load_dwordx4 {vr(CL, 4)}, v{ta}, {sr(S_T)}, s{T2} offen"],
                [f"s_add_u32 s{T2}, s{T2}, {8 * 3584}", f"buffer_load_dwordx4 {vr(CL + 4, 4)}, v{ta}, {sr(S_T)}, s{T2} offen"]]
    SE, DD, RV = 244, 248, 224
    sel = [f"v_and_b32 v{tb}, 15, v0", f"v_and_b32 v{tc}, 1, v0", f"v_lshlrev_b32 v{tc}, 4, v{tc}", f"v_lshlrev_b32 v{tc}, v{tc}, v{ONES}",
           f"v_lshrrev_b32 v{tb}, 1, v{tb}"]
    for i in range(4):
        sel += [[f"v_cmp_eq_u32 vcc, {i}, v{tb}", "s_nop 1", f"v_cndmask_b32 v{SE + i}, 0, v{tc}, vcc"]]
    m16 = lambda c, b_: f"v_mfma_f32_16x16x32_bf16 {vr(DD, 4)}, {vr(SE, 4)}, {vr(b_, 4)}, {c}"
    csv = {8: sel[:5], 9: sel[5:],
           10: [f"v_and_b32 v{tb}, 15, v0", f"v_lshlrev_b32 v{tb}, 5, v{tb}", f"v_lshrrev_b32 v{tc}, 4, v0", f"v_lshl_add_u32 v{tb}, v{tc}, 4, v{tb}",
               [f"s_lshl_b32 s40, s2, 12", f"s_add_u32 s40, s40, {WS_CP}", f"s_lshl_b32 s41, s{sW}, 9", "s_add_u32 s41, s41, s40"]]}
    cs_mm = [m16("0", CL), m16(vr(DD, 4), CL + 4)]
    cs_st = ["s_mov_b32 exec_hi, 0", f"buffer_store_dwordx4 {vr(DD, 4)}, v{tb}, {sr(S_WS)}, s41 offen" + (" sc1" if "csw" in OPT else ""), "s_mov_b32 exec_hi, -1"]
    cs_l2 = lambda lb: ([f"s_cmp_lg_u32 s{sW}, 0", f"s_cbranch_scc1 {lb}"] +
                        [f"buffer_load_dwordx4 {vr(RV + 4 * i, 4)}, v{L16}, {sr(S_WS)}, s40 offen offset:{1024 * i} sc1" for i in range(4)] + [f"{lb}:"])
    cs_r2 = lambda lb: ([f"s_cmp_lg_u32 s{sW}, 0", f"s_cbranch_scc1 {lb}"] +
                        [f"v_add_f32 v{RV + i}, v{RV + i}, v{RV + 8 + i}" for i in range(8)] +
                        [f"v_add_f32 v{RV + i}, v{RV + i}, v{RV + 4 + i}" for i in range(4)] +
                        [f"v_and_b32 v{ta}, 15, v0", f"v_lshrrev_b32 v{tc}, 4, v0",
                         f"v_permlane16_swap_b32 v{RV}, v{RV + 1}", f"v_permlane16_swap_b32 v{RV + 2}, v{RV + 3}",
                         f"v_add_f32 v{RV}, v{RV}, v{RV + 1}", f"v_add_f32 v{RV + 2}, v{RV + 2}, v{RV + 3}",
                         f"v_lshl_add_u32 v{ta}, v{ta}, 2, v{tc}", f"v_lshlrev_b32 v{ta}, 2, v{ta}",
                         f"v_permlane32_swap_b32 v{RV}, v{RV + 2}", f"v_add_f32 v{RV}, v{RV}, v{RV + 2}",
                         f"s_bfe_u32 s40, s{sRB}, 0x10001", "s_mul_i32 s40, s40, 28", f"s_and_b32 s41, s{sRB}, 1", "s_add_u32 s40, s40, s41",
                         f"s_lshl1_add_u32 s40, s{sCF}, s40", f"s_lshr_b32 s41, s{sRB}, 2", "s_lshl2_add_u32 s40, s40, s41",
                         "s_lshl_b32 s40, s40, 8", f"s_add_u32 s40, s40, {WS_CS}",
                         f"buffer_store_dword v{RV}, v{ta}, {sr(S_WS)}, s40 offen sc1", f"{lb}:"])
    for var in VARS:
        hf, isv, ffn = var & 1, (var >> 1) & 1, var < 4
        nt = 2 - hf
        cnt = lambda S: len(dma(S, ffn))
        a(f"L_p1_{var}:")
        a(f"s_waitcnt vmcnt({cnt(1)})")
        a("s_barrier")
        stamp(a, 2)
        if var == 0:
            a([f"s_lshl_b32 s{T0}, s{sW}, 8", f"s_or_b32 s{T0}, s2, s{T0}", f"s_cmp_lg_u32 s{T0}, 32", "s_cbranch_scc1 L_noflag",
               "v_mov_b32 v2, 0", "v_mov_b32 v3, 1", "s_mov_b64 exec, 1",
               f"global_store_dword v2, v3, s[{pDBG}:{pDBG + 1}] offset:32 sc1", "s_mov_b64 exec, -1", "L_noflag:"])
        a(rd1(0, nt, ffn))
        a(rd1(1, nt, ffn))
        bgq = dma(2, ffn)
        held = []
        sl7 = (7 % 3) * SL
        qrd = lambda h: [f"ds_read_b64_tr_b16 {vr(WF + 16 * h + 8 * q + 4 * t + 2 * t2, 2)}, v{WQ + t} offset:{sl7 + (2 * h + q) * 2048 + t2 * 512}"
                         for q in range(2) for t in range(nt) for t2 in range(2)]
        frd = lambda h: [f"ds_read_b64_tr_b16 {vr(WF + 16 * h + 8 * q + 4 * c + 2 * t2, 2)}, v{WC + c} offset:{sl7 + (2 * h + q) * 2048 + t2 * 512}"
                         for q in range(2) for c in range(2) for t2 in range(2)]
        CK = 5 if ffn else 6
        prep = [f"v_lshlrev_b32 v2, 16, v{STV}", f"v_rcp_f32 v{RS}, v2"]
        for t in range(nt):
            w = CSA + 4 * t
            prep += [f"v_add_f32 v{w}, v{w}, v{w + 1}", f"v_add_f32 v{w + 2}, v{w + 2}, v{w + 3}", f"v_add_f32 v{w + 3}, v{w}, v{w + 2}"] + split3(w, w + 3)
        for k in range(28 if ffn else 32):
            S, ks = k >> 2, k & 3
            F = fset(k, ffn)
            x = XF + 4 * k
            c0 = "0" if k == 0 else None
            big = [mfma(ACQ + 16 * t, x, F + 4 * t, c0) if isv else mfma(ACQ + 16 * t, F + 4 * t, x, c0) for t in range(nt)]
            light = not ffn or k < 8
            if not light:
                big += [mfma(ACF + 16 * c, F + 8 + 4 * c, x - 32, "0" if k == 8 else None) for c in range(2)]
            if light and k % 2 == 0 and k < 30:
                held = big
                continue
            big, held = held + big, []
            val = []
            if ks == 3:
                n = cnt(S + 2) + ({1: 2}.get(S, 0) if ffn else 0)
                a(f"s_waitcnt vmcnt({n}) lgkmcnt(0)")
                if S == CK and not hf: a(cs_check(f"L_c1{var}", 0))
                if S < 7: a("s_barrier")
                if "p1b" in OPT: stamp(a, 4 + S)
                if ffn and S == 2:
                    big = cs_mm + big
                    bgq.append(cs_st)
                if ffn and S == 3 and not hf: bgq.append(cs_l2(f"L_l2{var}"))
                if ffn and S == 4 and not hf: bgq.append(cs_r2(f"L_r2{var}"))
                if S == 3 and not hf:
                    bgq.append([f"s_cmp_lg_u32 s{sW}, 0", f"s_cbranch_scc1 L_nofl{var}", "v_mov_b32 v2, 0",
                                f"global_load_dword v{POLL}, v2, s[{pDBG}:{pDBG + 1}] offset:32 sc1", f"L_nofl{var}:"])
                if S == CK - 1 and not hf:
                    bgq.append(flag_check(f"L_fc{var}") + cs_issue(f"L_i1{var}", 0))
                if S == 5 and ffn and not hf:
                    bgq.append(sig_one(f"L_sc{var}", [f"s_add_u32 s{T0}, s{sCF}, {C_CS}"]))
                if S == 5:
                    ad = [f"v_and_b32 v{VXS}, 31, v0", f"v_lshlrev_b32 v{VXS}, 2, v{VXS}", "v_lshrrev_b32 v3, 5, v0",
                          f"v_lshl_add_u32 v{VW0}, v3, 10, v{VXS}", f"s_lshl_b32 s{T2}, s{sT}, 7", f"s_add_u32 s{T2}, s{T2}, {WS_ST}"]
                    for t in range(nt):
                        ad += [f"s_add_u32 s{T3}, s{sG}, {2 * t}", f"s_lshr_b32 s{40 + t}, s{T3}, 2", f"s_lshl_b32 s{40 + t}, s{40 + t}, 11",
                               f"s_and_b32 s{T3}, s{T3}, 2", f"s_lshl_b32 s{T3}, s{T3}, 6", f"s_add_u32 s{40 + t}, s{40 + t}, s{T3}",
                               f"s_add_u32 s{40 + t}, s{40 + t}, {WS_CQ}"]
                    bgq.append(ad)
                if S == CK:
                    ld = [f"buffer_load_dword v{STV}, v{VXS}, {sr(S_WS)}, s{T2} offen sc1"]
                    for t in range(nt):
                        ld += [f"buffer_load_dword v{CSA + 4 * t + i}, v{VW0}, {sr(S_WS)}, s{40 + t} offen offset:{256 * i} sc1" for i in range(4)]
                    if isv:
                        ld += [f"s_lshl_b32 s{T3}, s{sW}, 8", f"s_add_u32 m0, s{T3}, {SCR}", f"s_add_u32 s{T2}, s{T2}, {WS_RS - WS_ST}",
                               f"buffer_load_dword v{VXS}, {sr(S_WS)}, s{T2} offen sc1 lds"]
                    bgq += [ld[:5], ld[5:]]
                if S == 6 and ffn:
                    if not hf: bgq.append(poll_issue(f"L_i2{var}", CS_MASK))
                    val = prep
                if S < 7: bgq += dma(S + 3, ffn)
                if S == 0 and ffn: bgq += cs_loads
                if S == 5 and isv:
                    bgq.append([f"s_lshl_b32 s{T3}, s{sW}, 8", f"s_add_u32 s{T3}, s{T3}, {SCR}",
                                "v_lshrrev_b32 v3, 5, v0", "v_lshlrev_b32 v18, 4, v3", f"v_add_u32 v18, s{T3}, v18",
                                "v_bfe_u32 v23, v0, 4, 1", "v_lshlrev_b32 v23, 16, v23", "v_lshl_add_u32 v23, v3, 8, v23",
                                "v_and_b32 v3, 15, v0", "v_lshl_add_u32 v23, v3, 4, v23"])
            elif k == 30:
                a("s_waitcnt vmcnt(0) lgkmcnt(0)")
                val = prep
            else:
                a("s_waitcnt lgkmcnt(0)")
            if k == 31:
                break
            if ffn and k in csv: val = csv[k]
            left = 4 if ks == 3 else 3 - ks
            if k == 27: left = 3
            if not ffn: left = 2 if (ks == 3 and S < 6) else 1
            if ffn and k < 7: left = 2 if ks == 3 else 1
            take = -(-len(bgq) // left)
            extra, bgq = bgq[:take], bgq[take:]
            if ffn and k >= 7:
                nxt = rd1(k + 1, nt, ffn) if k < 27 else \
                    [f"ds_read_b128 {vr(XF + 4 * (28 + j), 4)}, v{XA + j} offset:{sl7}" for j in range(4)] + qrd(0)
            else:
                nxt = [] if k == 30 else rd1(k + 1, nt, ffn) + rd1(k + 2, nt, ffn)
            body = spread(big, nxt, val + [[]] * len(extra) + extra)
            a(body)
        pre = [f"v_and_b32 v{XOP}, v{MASK}, v{STV}", f"v_mov_b32 v{XOP + 3}, 0", f"v_mov_b32 v{XOP + 1}, v{XOP}", f"v_mov_b32 v{XOP + 2}, v{XOP}"]
        corr = [mfma(ACQ + 16 * t, XOP, CSA + 4 * t) if isv else mfma(ACQ + 16 * t, CSA + 4 * t, XOP) for t in range(nt)]
        post = [f"s_lshl_b32 s{T4}, s{sG}, 16", f"s_lshl_b32 s{T2}, s{sT}, 10", f"s_add_u32 s{T4}, s{T4}, s{T2}"]

        def stores(t):
            o = ACQ + 16 * t
            if isv:
                return [[f"buffer_store_dwordx4 {vr(o, 4)}, v23, {sr(S_WS)}, s{T4} offen sc1"],
                        [f"buffer_store_dwordx4 {vr(o + 4, 4)}, v23, {sr(S_WS)}, s{T4} offen offset:512 sc1", f"s_add_u32 s{T4}, s{T4}, 0x20000"]]
            return [[f"buffer_store_dwordx4 {vr(o, 4)}, v{L16}, {sr(S_WS)}, s{T4} offen sc1", f"s_add_u32 s{T4}, s{T4}, 0x10000"],
                    [f"buffer_store_dwordx4 {vr(o + 4, 4)}, v{L16}, {sr(S_WS)}, s{T4} offen sc1", f"s_add_u32 s{T4}, s{T4}, 0x10000"]]
        if not ffn:
            assert not bgq
            stamp(a, 3)
            a(big[:1] + pre + ["s_nop 1"] + big[1:nt] + corr + post + ["s_nop 7"])
            for t in range(nt):
                ac = ACQ + 16 * t
                a(f"s_cmp_lt_u32 s{sG}, {32 - 2 * t}")
                a(f"s_cselect_b32 s{T0}, {hx(f2u(QSCALE))}, 1.0")
                a(f"v_mul_f32 v2, s{T0}, v{RS}")
                a(f"v_mul_f32 v3, s{T0}, v{RS}")
                for i in range(8):
                    a(f"v_pk_mul_f32 {vr(ac + 2 * i, 2)}, {vr(ac + 2 * i, 2)}, v[2:3]")
                for i in range(8):
                    a(f"v_cvt_pk_bf16_f32 v{ac + i}, v{ac + 2 * i}, v{ac + 2 * i + 1}")
                a(stores(t))
            stamp(a, 4)
            a("s_branch L_side")
            continue
        qm = lambda h: [mfma(ACQ + 16 * t, XF + 4 * (28 + 2 * h + q), WF + 16 * h + 8 * q + 4 * t) if isv else
                        mfma(ACQ + 16 * t, WF + 16 * h + 8 * q + 4 * t, XF + 4 * (28 + 2 * h + q)) for q in range(2) for t in range(nt)]
        fm = lambda h: [mfma(ACF + 16 * c, WF + 16 * h + 8 * q + 4 * c, XF + 4 * (20 + 2 * h + q)) for q in range(2) for c in range(2)]
        half = -(-len(bgq) // 2)
        a("s_waitcnt lgkmcnt(0)")
        a(spread(qm(0), qrd(1), pre + bgq[:half]))
        a("s_waitcnt lgkmcnt(0)")
        rsv = lambda g: [f"ds_read_b128 {vr(CSA + 4 * j, 4)}, v18 offset:{(2 * g + j) * 32}" for j in range(2)]
        a(corr + (rsv(0) if isv else []))
        a(spread(qm(1), frd(0), [f"v_subrev_u32 v{WQ + c}, {CR - BR}, v{WC + c}" for c in range(2)] + bgq[half:]))
        adr = [["v_bfe_u32 v2, v0, 4, 1", "v_mul_u32_u24 v2, 28672, v2", "v_lshrrev_b32 v3, 5, v0",
                "v_lshl_add_u32 v2, v3, 9, v2", "v_and_b32 v3, 15, v0", f"v_lshl_add_u32 v{VXS}, v3, 2, v2",
                f"s_lshl_b32 s{sVAR}, s{sCF}, 11", f"s_add_u32 s{sVAR}, s{sVAR}, {WS_CS + 128 * hf}"] + post]
        if isv:
            e1, e2 = [], []
            for t in range(nt):
                ac = ACQ + 16 * t
                e1 += [f"v_mul_f32 v{ac + i}, v{ac + i}, v{CSA + i}" for i in range(8)]
                e2 += [f"v_mul_f32 v{ac + 8 + i}, v{ac + 8 + i}, v{CSA + i}" for i in range(8)]
                e2 += [f"v_cvt_pk_bf16_f32 v{ac + i}, v{ac + 2 * i}, v{ac + 2 * i + 1}" for i in range(4, 8)]
            e1 += rsv(1)
            for t in range(nt):
                ac = ACQ + 16 * t
                e1 += [f"v_cvt_pk_bf16_f32 v{ac + i}, v{ac + 2 * i}, v{ac + 2 * i + 1}" for i in range(4)]
        else:
            e = []
            for t in range(nt):
                ac = ACQ + 16 * t
                e += [[f"s_cmp_lt_u32 s{sG}, {32 - 2 * t}", f"s_cselect_b32 s{T0}, {hx(f2u(QSCALE))}, 1.0", f"v_mul_f32 v2, s{T0}, v{RS}"]]
                e += [f"v_mul_f32 v{ac + i}, v{ac + i}, v2" for i in range(16)]
                e += [f"v_cvt_pk_bf16_f32 v{ac + i}, v{ac + 2 * i}, v{ac + 2 * i + 1}" for i in range(8)]
            e1, e2 = e[:len(e) * 5 // 8], e[len(e) * 5 // 8:]
        a("s_waitcnt lgkmcnt(0)")
        u3 = spread(fm(0), frd(1), adr + e1)
        a(u3)
        a(f"s_waitcnt vmcnt({4 + nvm(u3)}) lgkmcnt(0)")
        if not hf: a(poll_check(f"L_c2{var}", 16))
        a("s_barrier")
        stamp(a, 3)
        c0l = [[f"buffer_load_dword v{r_}, v{VXS}, {sr(S_WS)}, s{sVAR} offen offset:{(i >> 1) * 64 + (i & 1) * 256} sc1"
                for i, r_ in enumerate(C0R)]]
        a(spread(fm(1), rd2(0), c0l + e2))
        for t in range(nt):
            a(stores(t))
        if var != 3:
            a("s_branch L_pass2")
    a("L_pass2:")
    if "p1b" in OPT: NOSTAMP = True
    stamp(a, 4)
    sH = sG
    a(f"s_mul_i32 s{sH}, s{sT}, 112")
    a(f"s_lshl2_add_u32 s{T0}, s{sCF}, s{sHF}")
    a(f"s_lshl1_add_u32 s{sH}, s{T0}, s{sH}")
    a(f"s_lshl_b32 s{sH}, s{sH}, 10")
    a(f"s_add_u32 s{sH}, s{sH}, {WS_H}")
    cRS, cSD, cC2, CO, QP = 22, 23, 19, 132, 140
    q = CSA

    def gelu_plain(g, off):
        u = g + 8
        R = range(8)
        return ([f"v_mul_f32 v{g + i}, v{g + i}, v{cRS}" for i in R] + [f"v_mul_f32 v{q + i}, v{g + i}, v{g + i}" for i in R] +
                [f"v_fmaak_f32 v{q + i}, v{q + i}, v{cC2}, {hx(f2u(GC1))}" for i in R] + [f"v_mul_f32 v{q + i}, v{q + i}, v{g + i}" for i in R] +
                [f"v_exp_f32 v{q + i}, v{q + i}" for i in R] + [f"v_mul_f32 v{g + i}, v{g + i}, v{u + i}" for i in R] +
                [f"v_fma_f32 v{q + i}, v{q + i}, v{cSD}, v{cSD}" for i in R] + [f"v_rcp_f32 v{q + i}, v{q + i}" for i in R] +
                [f"v_mul_f32 v{g + i}, v{g + i}, v{q + i}" for i in R] +
                [f"v_cvt_pk_bf16_f32 v{g + i}, v{g + 2 * i}, v{g + 2 * i + 1}" for i in range(4)] +
                [f"buffer_store_dwordx4 {vr(g, 4)}, v{L16}, {sr(S_WS)}, s{sH} offen offset:{off} sc1"])
    vq = []
    wt = lambda at: sum(2 if (x.startswith("v_exp") or x.startswith("v_rcp")) else 1 for x in ([at] if isinstance(at, str) else at))
    cs_ld = lambda dst, pr: [[f"buffer_load_dword v{dst + 4 * c + i}, v{VXS}, {sr(S_WS)}, s{sVAR} offen offset:{1024 * pr + c * 64 + i * 256} sc1"
                              for c in range(2) for i in range(2)]]
    ts = tr_setup()
    d = dma(10)
    bgq, hist = [ts[0], d[0], ts[1], d[1], d[2], d[3]], []
    after = lambda key: nvm([l for l in hist[len(hist) - hist[::-1].index(key):] if "s62" not in l])
    for v in range(20):
        S, us = 8 + (v >> 2), v & 3
        F = WF + 16 * (v & 1)
        acc, k0 = (ACF, 24 + 2 * v) if v < 4 else (ACQ, 2 * (v - 4))
        big = [mfma(acc + 16 * c, F + 8 * qq + 4 * c, XF + 4 * (k0 + qq), "0" if (v == 4 and qq == 0) else None)
               for qq in range(2) for c in range(2)]
        if us == 3:
            if S == 8:
                a([f"s_cmp_eq_u32 s{sHF}, 0", "s_cbranch_scc1 L_w8", "s_waitcnt vmcnt(6)", "L_w8:", "s_waitcnt vmcnt(8) lgkmcnt(0)"])
            elif S < 12:
                a(f"s_waitcnt vmcnt({after(dma(S + 1)[-1][0]) - 1}) lgkmcnt(0)")
            elif CHK == 11:
                a(f"s_waitcnt vmcnt({after(kv(0)[1][1]) - 1}) lgkmcnt(0)")
            else:
                a("s_waitcnt lgkmcnt(0)")
            if S == CHK:
                a([f"s_cmp_lg_u32 s{sW}, 0", "s_cbranch_scc1 L_w10", f"s_waitcnt vmcnt({after('L_pq:')})", "L_w10:"])
                a(poll_check("L_cq", 32, QP, 4))
            a("s_barrier")
            if "p2b" in OPT: stamp(a, S - 2)
            if S == 8:
                bgq += tr_dma() + dma(11)
                for c in range(2):
                    w = CSA + 4 * c
                    vq += [f"v_add_f32 v{w + 3}, v{C0R[2 * c]}, v{C0R[2 * c + 1]}"] + split3(w, w + 3)
                vq += ["UNIT", mfma(ACF, CSA, XOP), mfma(ACF + 16, CSA + 4, XOP),
                       f"v_lshlrev_b32 v{cSD}, 16, v{STV}", f"v_mov_b32 v{cC2}, {hx(f2u(GC2))}", "UNIT"]
                vq += gelu_plain(ACF, 0) + gelu_plain(ACF + 16, 1024)
            if S == 9:
                bgq += [sig_qkv("L_sq")] + cs_ld(CO, 1) + dma(12)
                bgq += [tr_addr(TRA, 2, 3) + [f"s_lshl_b32 s{T2}, s{sLW}, 1", f"v_add_u32 v{TRA}, s{T2}, v{TRA}", f"v_xor_b32 v{TRA + 1}, 32, v{TRA}"]]
            if S == 10:
                bgq += [tr_rd()]
            if S == CHK - 1:
                bgq += [[]] * (2 - len(bgq)) + [poll_issue("L_pq", QKV_MASK, QP)]
            if S == 11 and CHK == 11:
                bgq += kv(0) + kv(1) + [q_load()] + kv(2)
            if S == 12:
                bgq += kv(3) if CHK == 11 else kv(0) + [q_load()] + kv(1)
                if "prio" in OPT:
                    a("s_setprio 1")
                    a(lead(2))
        else:
            a("s_waitcnt lgkmcnt(0)")
        if v == 16:
            for c in range(2):
                w = CO + 4 * c
                vq += [f"v_add_f32 v{w + 3}, v{w}, v{w + 1}"] + split3(w, w + 3) + [["s_nop 1", mfma(ACQ + 16 * c, w, XOP)]]
            vq += p2_init_v()
        left = 1 if v == 19 else (4 if us == 3 else 3 - us)
        take = -(-len(bgq) // left)
        extra, bgq = bgq[:take], bgq[take:]
        val, budget = [], (1000 if v == 19 else VBUD)
        while vq and vq[0] != "UNIT" and budget > 0:
            budget -= wt(vq[0])
            val.append(vq.pop(0))
        if vq and vq[0] == "UNIT":
            vq.pop(0)
        body = spread(big, rd2(v + 1) if v < 19 else [], val[:len(val) // 2] + extra + val[len(val) // 2:])
        hist += body
        a(body)
    assert not bgq and not vq
    if "p2b" in OPT: NOSTAMP = True
    stamp(a, 5)
    RS2, SD2 = 240, 242
    a(f"v_mov_b32 v{RS2}, v{cRS}")
    a(f"v_mov_b32 v{RS2 + 1}, v{cRS}")
    a(f"v_mov_b32 v{SD2}, v{cSD}")
    a(f"v_mov_b32 v{SD2 + 1}, v{cSD}")
    a(f"v_mov_b32 v248, v{cC2}")
    a(f"v_mov_b32 v249, v{cC2}")
    a(f"v_mov_b32 v250, {hx(f2u(GC1))}")
    a("v_mov_b32 v251, v250")
    a(f"s_add_u32 s{sH}, s{sH}, 4096")
    a("s_nop 4")
    for c in (0, 1):
        g = ACQ + 16 * c
        u = g + 8
        q = 32 + (c & 1) * 8
        o = 52 + c * 4
        for i in range(4):
            a(f"v_pk_mul_f32 {vr(g + 2 * i, 2)}, {vr(g + 2 * i, 2)}, {vr(RS2, 2)}")
        for i in range(4):
            a(f"v_pk_mul_f32 {vr(q + 2 * i, 2)}, {vr(g + 2 * i, 2)}, {vr(g + 2 * i, 2)}")
        for i in range(4):
            a(f"v_pk_fma_f32 {vr(q + 2 * i, 2)}, {vr(q + 2 * i, 2)}, v[248:249], v[250:251]")
        for i in range(4):
            a(f"v_pk_mul_f32 {vr(q + 2 * i, 2)}, {vr(q + 2 * i, 2)}, {vr(g + 2 * i, 2)}")
        for i in range(8):
            a(f"v_exp_f32 v{q + i}, v{q + i}")
        for i in range(4):
            a(f"v_pk_mul_f32 {vr(g + 2 * i, 2)}, {vr(g + 2 * i, 2)}, {vr(u + 2 * i, 2)}")
        for i in range(4):
            a(f"v_pk_fma_f32 {vr(q + 2 * i, 2)}, {vr(q + 2 * i, 2)}, {vr(SD2, 2)}, {vr(SD2, 2)}")
        for i in range(8):
            a(f"v_rcp_f32 v{q + i}, v{q + i}")
        a("s_nop 0")
        for i in range(4):
            a(f"v_pk_mul_f32 {vr(g + 2 * i, 2)}, {vr(g + 2 * i, 2)}, {vr(q + 2 * i, 2)}")
        for i in range(4):
            a(f"v_cvt_pk_bf16_f32 v{o + i}, v{g + 2 * i}, v{g + 2 * i + 1}")
        a(f"buffer_store_dwordx4 {vr(o, 4)}, v{L16}, {sr(S_WS)}, s{sH} offen offset:{(c & 1) * 1024} sc1")
        if CHK == 12:
            a(kv(2 + c))
        if c == 0:
            a(lead(0))
    a(tr_st())
    a(f"s_waitcnt vmcnt({after(q_load()[-1]) + (4 if CHK == 11 else 8)})")
    if CHK == 12:
        a("s_barrier")


VARS = (0, 4, 5, 1, 2, 3)
VBUD = 15
OSL = 2
CSO = 2
WK = 8
C0R = (9, 19, 21, 1)
SIGU, CHK = 7, 11


def gen_side(a):
    a("L_side:")
    global NOSTAMP
    NOSTAMP = "side" not in OPT
    a(p2_init_v())
    a("s_waitcnt vmcnt(0)")
    a("s_barrier")
    a(sig_qkv("L_sq2"))
    stamp(a, 10)
    a(sig_one("L_h_ns2", [f"s_add_u32 s{T0}, s{sRB}, {C_H}"]))
    a(poll_issue("L_pq2", QKV_MASK))
    a("s_waitcnt vmcnt(0)")
    a(poll_check("L_cq2", 32, POLL, 6))
    a("s_barrier")
    a(kv(0))
    a(q_load())
    a(kv(1))
    a("s_waitcnt vmcnt(2)")
    a("s_barrier")
    a(kv(2))
    a(kv(3))
    if "prio" in OPT:
        a("s_setprio 1")
        a(lead(2))
    a("s_branch L_p2")
    a("L_side1:")
    XW, QW, CW = 32, 64, 128
    LO, HI, ON = 18, 19, 22
    a("v_lshrrev_b32 v1, 3, v0")
    a("v_and_b32 v2, 7, v0")
    a("v_lshlrev_b32 v2, 4, v2")
    a("v_lshl_add_u32 v3, v1, 10, v2")
    a(f"s_lshl3_add_u32 s{tVM + 1}, s2, s{sW}")
    a(f"s_lshl_b32 s{T0}, s{tVM + 1}, 13")
    for q in range(8):
        a(f"buffer_load_dwordx4 {vr(XW + 4 * q, 4)}, v3, {sr(S_X)}, s{T0} offen offset:{128 * q}")
    sU = sVAR
    a(f"s_and_b32 s{sU}, s{sRB}, 3")
    a(f"s_lshl3_add_u32 s{sU}, s{sU}, s{sW}")
    a(f"s_sub_u32 s{T1}, 31, s{sU}")
    a(f"s_lshl3_add_u32 s41, s{T1}, s{sXCD}")
    a("s_lshl_b32 s41, s41, 8")
    a(f"s_add_u32 s41, s41, {WS_CQ}")
    a(f"s_lshl_b32 s{T0}, s{T1}, 7")
    a(f"s_mul_i32 s{T2}, s{sXCD}, {64 * 3072}")
    a(f"s_add_u32 s{T0}, s{T0}, s{T2}")
    a(f"s_cmp_lt_u32 s{T1}, 24")
    a(f"s_cselect_b32 s{T0}, s{T0}, {OOB}")
    a(f"s_cselect_b32 s41, s41, {OOB}")
    a("v_mul_u32_u24 v3, 3072, v1")
    a("v_add_u32 v3, v3, v2")
    for q in range(8):
        a(f"buffer_load_dwordx4 {vr(QW + 4 * q, 4)}, v3, {sr(S_W0)}, s{T0} offen")
        if q != 7:
            a(f"s_add_u32 s{T0}, s{T0}, {8 * 3072}")
    a(f"v_mov_b32 v{LO}, 0x00003f80")
    a(f"v_mov_b32 v{HI}, 0x3f800000")
    a(f"v_mov_b32 v{ON}, 0x3f803f80")
    RU = 96
    for i in range(0, 28, 2):
        a(f"v_mov_b64 v[{RU + i}:{RU + i + 1}], 0")
    a(["v_and_b32 v2, 8, v0", "v_cmp_eq_u32 vcc, 0, v2", f"v_and_b32 v{POLL}, 7, v0", f"v_lshlrev_b32 v{POLL}, 3, v{POLL}",
       "v_lshrrev_b32 v3, 4, v0", f"v_add_u32 v{POLL}, v{POLL}, v3", "v_lshrrev_b32 v2, 1, v2", f"v_add_u32 v{POLL}, v{POLL}, v2",
       f"v_lshlrev_b32 v{POLL}, 2, v{POLL}"])
    stamp(a, 8)
    m, v_ = RU + 24, RU + 25
    for q in range(8):
        a(f"s_waitcnt vmcnt({15 - q})")
        for i in range(4):
            a(f"v_dot2c_f32_bf16 v{m + 2 * (i & 1)}, v{XW + 4 * q + i}, v{ON}")
            a(f"v_dot2c_f32_bf16 v{v_ + 2 * (i & 1)}, v{XW + 4 * q + i}, v{XW + 4 * q + i}")
    a("s_nop 2")
    a(f"v_add_f32 v{m}, v{m}, v{m + 2}")
    a(f"v_add_f32 v{v_}, v{v_}, v{v_ + 2}")
    for md in ("quad_perm:[1,0,3,2]", "quad_perm:[2,3,0,1]", "row_half_mirror"):
        a("s_nop 0")
        a(f"v_add_f32_dpp v{m}, v{m}, v{m} {md} row_mask:0xf bank_mask:0xf")
        a(f"v_add_f32_dpp v{v_}, v{v_}, v{v_} {md} row_mask:0xf bank_mask:0xf")
    a([f"v_mul_f32 v{m}, {hx(f2u(-1.0 / 512))}, v{m}", f"v_mul_f32 v{v_}, {hx(f2u(1.0 / 512))}, v{v_}",
       f"v_fma_f32 v{v_}, -v{m}, v{m}, v{v_}", f"v_max_f32 v{v_}, 0, v{v_}",
       f"v_cvt_pk_bf16_f32 v{v_}, v{v_}, v{v_}", f"v_and_b32 v{v_}, v{MASK}, v{v_}",
       f"v_add_f32 v{v_}, {hx(f2u(1e-5))}, v{v_}",
       f"v_cvt_pk_bf16_f32 v{v_}, v{v_}, v{v_}", f"v_and_b32 v{v_}, v{MASK}, v{v_}",
       f"v_sqrt_f32 v{v_}, v{v_}", "v_lshlrev_b32 v1, 2, v1",
       f"v_cvt_pk_bf16_f32 v{m}, v{v_}, v{m}",
       f"v_lshlrev_b32 v{v_}, 16, v{m}", f"v_rcp_f32 v{v_}, v{v_}",
       f"s_lshl_b32 s{T0}, s{tVM + 1}, 5", f"s_add_u32 s{T0}, s{T0}, {WS_ST}", f"s_add_u32 s{T1}, s{T0}, {WS_RS - WS_ST}",
       f"s_mov_b32 exec_lo, 0x01010101", "s_mov_b32 exec_hi, 0x01010101",
       f"buffer_store_dword v{m}, v1, {sr(S_WS)}, s{T0} offen sc1",
       f"buffer_store_dword v{v_}, v1, {sr(S_WS)}, s{T1} offen sc1", "s_mov_b64 exec, -1"])

    def colsum(src, n, acc, behind):
        for q in range(n):
            a(f"s_waitcnt vmcnt({n - 1 - q + behind})")
            for i in range(4):
                a(f"v_dot2c_f32_bf16 v{acc + 2 * i}, v{src + 4 * q + i}, v{LO}")
                a(f"v_dot2c_f32_bf16 v{acc + 2 * i + 1}, v{src + 4 * q + i}, v{HI}")
        a("s_nop 2")
        for i in range(4):
            a(f"v_permlane16_swap_b32 v{acc + 2 * i}, v{acc + 2 * i + 1}")
        for i in range(4):
            a(f"v_add_f32 v{acc + 2 * i}, v{acc + 2 * i}, v{acc + 2 * i + 1}")
        a(["s_nop 1", f"v_permlane32_swap_b32 v{acc}, v{acc + 2}", f"v_permlane32_swap_b32 v{acc + 4}, v{acc + 6}",
           f"v_add_f32 v{acc}, v{acc}, v{acc + 2}", f"v_add_f32 v{acc + 4}, v{acc + 4}, v{acc + 6}", "s_nop 1",
           f"v_add_f32_dpp v{acc}, v{acc}, v{acc} row_ror:8 row_mask:0xf bank_mask:0xf",
           f"v_add_f32_dpp v{acc + 4}, v{acc + 4}, v{acc + 4} row_ror:8 row_mask:0xf bank_mask:0xf",
           f"v_cndmask_b32 v{acc + 1}, v{acc + 4}, v{acc}, vcc"])
    colsum(QW, 8, RU, 2)
    a(f"buffer_store_dword v{RU + 1}, v{POLL}, {sr(S_WS)}, s41 offen sc1")
    a(dma(0, False))
    a("s_waitcnt vmcnt(4)")
    a("s_barrier")
    a(cs_signal("L_scs0", 0))
    stamp(a, 12)
    a(dma(1, False))
    stamp(a, 9)
    a(f"s_cmp_eq_u32 s{sHF}, 0")
    a("s_cbranch_scc1 L_p1_4")
    a("s_branch L_p1_5")


def att_step(i, ex=None, first=False):
    ex = ex or {}
    Sc, Sn = (S0, S1) if i % 2 == 0 else (S1, S0)
    Kn = K_ + 4 * ((i + 1) % 2)
    Vc = V_ + 8 * (i % 4)
    Vp = V_ + 8 * ((i - 1) % 4)
    e = lambda k: f"v_exp_f32 v{Sc + k}, v{Sc + k}"
    c = lambda k: f"v_cvt_pk_bf16_f32 v{P_ + k}, v{Sc + 2 * k}, v{Sc + 2 * k + 1}"
    r = [mfma(Sn, Kn, Q_, NM),
         f"ds_read_b128 {vr(Kn, 4)}, v{AK} offset:{(i + 3) * 2048}"]
    r += ex.get("qk", [])
    r += [e(0), e(1), e(2), e(3)]
    if not first:
        r.append(mfma(O_, Vp + 4, P_ + 4))
    if i % 2 == 0:
        r.append(f"s_mov_b64 exec, s[{tVM}:{tVM + 1}]")
        for d in (2, 3):
            vb = V_ + 8 * ((i + d) % 4)
            r.append(f"ds_read_b128 {vr(vb, 4)}, v{AV} offset:{(i + d) * 2048}")
            r.append(f"ds_read_b128 {vr(vb + 4, 4)}, v{AV} offset:{(i + d) * 2048 + 512}")
        r.append("s_mov_b64 exec, -1")
    r += ex.get("pv1", [])
    if "G2" in ex:
        r += [c(0), e(4), e(5), c(1)]
        r += [ex["G1"]] + ex.get("g1", [])
        r += [e(6), e(7), e(8), c(2), c(3), e(9)]
        r += ["s_nop 0", mfma(O_, Vc, P_)]
        if i % 2 == 1: r.append("s_waitcnt lgkmcnt(0)")
        r += ex.get("pv0", [])
        r += [e(10), e(11), c(4), e(12), c(5)]
        r += [ex["G2"]] + ex.get("g2", [])
        r += [e(13), e(14), e(15), c(6), c(7)]
    else:
        r += [c(0), e(4), e(5), c(1), e(6), e(7)]
        if "G1" in ex:
            r += [ex["G1"]]
        r += ex.get("g1", [])
        r += [e(8), c(2), c(3), e(9), e(10), e(11)]
        r += ex.get("prepv0", [])
        r.append(mfma(O_, Vc, P_, "0" if first else None))
        if i % 2 == 1: r.append("s_waitcnt lgkmcnt(0)")
        r += ex.get("pv0", [])
        r += [c(4), e(12), e(13), c(5), e(14), e(15), c(6), c(7)]
    r += ex.get("end", [])
    return r


def ring_loads(r):
    b = RING + 16 * r
    return [f"buffer_load_dwordx4 {vr(b, 4)}, v{A16}, {sr(R_H0)}, s{tFH} offen sc1",
            f"buffer_load_dwordx4 {vr(b + 4, 4)}, v{A16}, {sr(R_H1)}, s{tFH} offen sc1",
            f"buffer_load_dwordx4 {vr(b + 8, 4)}, v{A16}, {sr(R_WT)}, s{tFW} offen sc1",
            f"buffer_load_dwordx4 {vr(b + 12, 4)}, v{A16}, {sr(R_WT)}, s{tFW} offen offset:1024 sc1",
            f"s_add_u32 s{tFH}, s{tFH}, 1024",
            f"s_add_u32 s{tFW}, s{tFW}, 2048"]


def gm(r, n):
    b = RING + 16 * r
    return mfma(G_ + 16 * n, b + 8 + 4 * (n & 1), b + 4 * (n >> 1))


_pl = [0]
PC = (2, 6)
PD = 7
PG = 2


def lead(p, cond=None):
    if "prio" not in OPT:
        return []
    _pl[0] += 1
    lb = f"L_pr{_pl[0]}"
    c = [f"s_cmp_lt_u32 s{sW}, 4"] if cond is None else cond
    return c + [f"s_cbranch_scc0 {lb}", f"s_setprio {p}", f"{lb}:"]


def recentre(ex, i, at):
    if i == at:
        ex["prepv0"] = [f"v_frexp_exp_i32_f32 v4, v{O_ + 8}"]
        ex["end"] = [f"v_add_u32 v4, {int(MAXOFF) - 1}, v4", "v_max_i32 v4, 0, v4", "v_cvt_f32_i32 v2, v4", f"v_sub_f32 v2, v{NM}, v2",
                     "v_sub_u32 v4, 0, v4", "v_mov_b32 v3, v2"] + [f"v_mov_b64 v[{NM + j}:{NM + j + 1}], v[2:3]" for j in range(0, 16, 2)] + \
                    ["s_nop 1"] + ex.get("end", [])
    if i == at + 2:
        ex["prepv0"] = [f"v_ldexp_f32 v{O_ + j}, v{O_ + j}, v4" for j in range(9)] + ["s_nop 1"]


def adv(a):
    a(f"v_add_u32 v{AK}, 0x4000, v{AK}")
    a(f"v_add_u32 v{AV}, 0x4000, v{AV}")


def gen_p2(a):
    a("L_p2:")
    if ENC == 99:
        a(["s_lshr_b32 s76, s2, 3", f"s_lshl3_add_u32 s76, s76, s{sW}", "s_cmp_lg_u32 s76, 32", "s_cbranch_scc1 L_nosk",
           "s_not_b32 s76, s80", "v_mov_b32 v1, 0", "v_mov_b32 v2, s76", "s_mov_b64 exec, 1",
           f"global_atomic_umax v1, v2, s[{pDBG}:{pDBG + 1}] offset:240 sc1", "s_mov_b64 exec, -1", "L_nosk:"])
    stamp(a, 6)
    a(f"v_mov_b32 v{A16}, v{L16}")
    a(f"v_mov_b32 v{AK}, v{L16}")
    a("v_lshrrev_b32 v2, 5, v0")
    a("v_and_b32 v3, 15, v0")
    a("v_lshlrev_b32 v3, 4, v3")
    a("v_lshl_add_u32 v3, v2, 8, v3")
    a(f"v_add_u32 v{AV}, 1024, v3")
    a(f"s_mov_b32 s{tVM}, 0x0000ffff")
    a(f"s_mov_b32 s{tVM + 1}, 0x0000ffff")
    a(f"ds_read_b128 {vr(K_, 4)}, v{AK}")
    a(f"ds_read_b128 {vr(K_ + 4, 4)}, v{AK} offset:2048")
    a(f"s_mov_b64 exec, s[{tVM}:{tVM + 1}]")
    for d in range(2):
        a(f"ds_read_b128 {vr(V_ + 8 * d, 4)}, v{AV} offset:{d * 2048}")
        a(f"ds_read_b128 {vr(V_ + 8 * d + 4, 4)}, v{AV} offset:{d * 2048 + 512}")
    a("s_mov_b64 exec, -1")
    a(f"s_lshr_b32 s{T0}, s{sW}, 2")
    a(f"s_lshl1_add_u32 s{tTT}, s{tHEAD}, s{T0}")
    a(f"s_lshl_b32 s{T0}, s{tTT}, 15")
    a(f"s_lshl_b32 s{T1}, s{tQB}, 7")
    a(f"s_add_u32 s{T0}, s{T0}, s{T1}")
    a(f"s_and_b32 s{T1}, s{sW}, 3")
    if "coal" in OPT:
        a(f"s_lshl_b32 s{T1}, s{T1}, 13")
        a(f"s_add_u32 s{T0}, s{T0}, s{T1}")
        a("v_lshrrev_b32 v1, 3, v0")
        a("v_lshlrev_b32 v1, 10, v1")
        a("v_and_b32 v2, 7, v0")
        a("v_lshl_add_u32 v1, v2, 4, v1")
    else:
        a(f"s_lshl4_add_u32 s{T0}, s{T1}, s{T0}")
        a("v_and_b32 v1, 31, v0")
        a("v_lshlrev_b32 v1, 10, v1")
        a("v_lshl_add_u32 v1, v2, 6, v1")
    a(f"v_add_u32 v{AOUT}, s{T0}, v1")
    a("s_waitcnt lgkmcnt(4)")
    a(mfma(S0, K_, Q_, "0"))
    a(mfma(S1, K_ + 4, Q_, "0"))
    a(f"s_mul_i32 s{T0}, s{tHEAD}, {224 * 1024}")
    a(f"s_add_u32 s{T0}, s{T0}, {WS_H}")
    a(f"s_add_u32 s{R_H0}, s{pWS}, s{T0}")
    a(f"s_addc_u32 s{R_H0 + 1}, s{pWS + 1}, 0")
    a(f"s_add_u32 s{R_H1}, s{R_H0}, {112 * 1024}")
    a(f"s_addc_u32 s{R_H1 + 1}, s{R_H0 + 1}, 0")
    a(f"s_mul_i32 s{tFH}, s{sW}, {14 * 1024}")
    a(f"s_add_u32 s{R_H0 + 2}, s{tFH}, {14 * 1024}")
    a(f"s_mov_b32 s{R_H1 + 2}, s{R_H0 + 2}")
    a(f"s_mul_i32 s{T0}, s{tQB}, {144 * 2048}")
    a(f"s_add_u32 s{T0}, s{T0}, {WS_WT}")
    a(f"s_add_u32 s{R_WT}, s{pWS}, s{T0}")
    a(f"s_addc_u32 s{R_WT + 1}, s{pWS + 1}, 0")
    a(f"s_lshl_b32 s{tFW}, s{tFH}, 1")
    a(f"s_lshl_b32 s{R_WT + 2}, s{R_H0 + 2}, 1")
    a(f"v_max3_f32 v1, v{S0}, v{S0 + 1}, v{S0 + 2}")
    for i in range(3, 31, 2):
        a(f"v_max3_f32 v1, v1, v{S0 + i}, v{S0 + i + 1}")
    a(f"v_max_f32 v1, v1, v{S0 + 31}")
    a("v_mov_b32 v2, v1")
    a("s_nop 1")
    a("v_permlane32_swap_b32 v1, v2")
    a("v_max_f32 v1, v1, v2")
    a("v_floor_f32 v1, v1")
    a(f"v_sub_f32 v2, {hx(f2u(-MAXOFF))}, v1")
    a("v_mov_b32 v3, v2")
    for i in range(0, 16, 2):
        a(f"v_mov_b64 v[{NM + i}:{NM + i + 1}], v[2:3]")
    a("s_nop 1")
    a(mfma(S0, K_, Q_, NM))
    a(f"ds_read_b128 {vr(K_, 4)}, v{AK} offset:4096")
    srd(a, R_OUT, pOUT, 2097152)
    a(f"s_lshl_b32 s{T0}, s{sW}, 11")
    a(f"v_add_u32 v{AW}, s{T0}, v{A16}")
    a(f"v_add_u32 v{AW + 1}, 0x10000, v{AW}")
    a(f"v_add_u32 v{AW + 2}, 0x20000, v{AW}")
    a("s_waitcnt lgkmcnt(0)")
    a("s_nop 1")
    a(lead(2))
    stamp(a, 7)
    global NOSTAMP
    if "side" in OPT: NOSTAMP = True
    for i in range(8):
        ex = {}
        if i == 4:
            d1, d2 = (stampl(1), stampl(2)) if "p3b" in OPT else ([], [])
            ex["end"] = d1 + ["s_waitcnt vmcnt(0)", "s_barrier"] + d2 + sig_one("L_h_ns", [f"s_add_u32 s{T0}, s{sRB}, {C_H}"], True) + lead(2)
        if i == 3:
            ex["pv0"] = lead(0)
        if i >= 5:
            ex["pv1"], ex["pv0"] = kv(i - 1, A16)
        if "rc0" in OPT: recentre(ex, i, 5)
        a(att_step(i, ex, first=(i == 0)))
    adv(a)
    for i in range(8):
        ex = {}
        if i == 0:
            ex["pv1"], ex["pv0"] = kv(7, A16)
            ex["qk"] = [f"v_mov_b64 v[{RING}:{RING + 1}], 0", f"v_mov_b64 v[{RING + 2}:{RING + 3}], 0"]
        if i < 4:
            ex["G1"] = mfma(G_ + 16 * i, RING, RING, "0")
        if i == 3:
            ex["pv0"] = poll_issue("L_h_np", H_MASK, 7) + lead(0)
        if i == 4:
            d1, d2 = (stampl(3), stampl(4)) if "p3b" in OPT else ([], [])
            ex["end"] = d1 + ["s_waitcnt vmcnt(0)"] + poll_check("L_ch", 16, 7, 16) + ["s_barrier"] + d2 + lead(2)
        if i in (5, 6, 7):
            l = ring_loads(i - 5)
            ex["qk"] = l[0:1]
            ex["pv1"] = l[1:3]
            ex["pv0"] = l[3:6]
        if "rc1" in OPT: recentre(ex, i, 5)
        if "rc2" in OPT: recentre(ex, i, 0)
        a(att_step(i, ex))
    stamp(a, 8)
    a(f"s_mov_b32 s{tIT}, 5")
    a(f"s_lshr_b32 s{sG}, s{sW}, 2")
    a(f"s_lshl_b32 s{sG}, s{sG}, 4")
    a(f"s_add_u32 s{sG}, s{sG}, {PC[0]}")
    a("L_loop:")
    adv(a)
    plan = [[(0, 0)], [(0, 1), (0, 2)], [(0, 3)], [(1, 0), (1, 1)], [(1, 2)], [(1, 3), (2, 0)], [(2, 1)], [(2, 2), (2, 3)]]
    for i in range(8):
        ex = {}
        ex["G1"] = gm(*plan[i][0])
        if len(plan[i]) > 1:
            ex["G2"] = gm(*plan[i][1])
        if i == 0: ex["qk"] = ["s_waitcnt vmcnt(8)"]
        if i == PC[1]: ex["end"] = lead(0, [f"s_cmp_eq_u32 s{tIT}, s{sG}"])
        if i == 2:
            l = ring_loads(0)
            ex["g1"] = l[0:2]
            ex["pv0"] = l[2:6]
        if i == 3: ex["pv1"] = ["s_waitcnt vmcnt(8)"]
        if i == 5:
            l = ring_loads(1)
            ex["g1"] = l[0:2]
            ex["pv0"] = l[2:6] + ["s_waitcnt vmcnt(8)"]
        if i == 7:
            ex["g2"] = ring_loads(2)
        a(att_step(i, ex))
    a(f"s_sub_u32 s{tIT}, s{tIT}, 1")
    a(f"s_cmp_lg_u32 s{tIT}, 0")
    a("s_cbranch_scc1 L_loop")
    adv(a)
    a(f"s_and_b32 s{tFW}, s{sW}, 3")
    a(f"s_lshl_b32 s{tFW}, s{tFW}, 14")
    a(f"s_add_u32 s{tFW}, s{tFW}, {112 * 2048}")
    a(f"s_mov_b32 s{R_WT + 2}, {144 * 2048}")
    if "p3b" in OPT: stamp(a, 5)
    a("s_barrier")
    if "p3b" in OPT: stamp(a, 6)
    a(lead(2))

    def pw(o):
        base, off = (AW, o * 16384) if o < 4 else ((AW + 1, (o - 4) * 16384) if o < 6 else (AW + 2, (o - 6) * 16384))
        if "coal" in OPT:
            base, off = (AW, o * 16448) if o < 4 else ((AW + 1, o * 16448 - 65536) if o < 7 else (AW + 2, 192))
        return [f"ds_write_b128 v{base}, {vr(G_ + 8 * o, 4)} offset:{off}",
                f"ds_write_b128 v{base}, {vr(G_ + 8 * o + 4, 4)} offset:{off + 1024}"]

    XV = 244
    wreg = lambda i: RING + 4 * i if i < 12 else NM + 4 * (i - 12)

    def wol(g):
        return [f"buffer_load_dwordx4 {vr(wreg(4 * g + q), 4)}, v{A16}, {sr(R_WT)}, s{tFW} offen offset:{q * 1024} sc1" for q in range(4)] + \
               [f"s_add_u32 s{tFW}, s{tFW}, 4096"]
    for i in range(8):
        ex = {}
        if i == 0: ex["pv0"] = [f"buffer_load_dwordx4 {vr(XV, 4)}, v{AOUT}, {sr(S_X)}, 0 offen"]
        if i in (1, 3, 5): ex["pv1"], ex["g1"] = wol(i // 2)[:1], wol(i // 2)[1:2]
        if i in (2, 4, 6): ex["g1"], ex["pv0"] = wol(i // 2 - 1)[2:3], wol(i // 2 - 1)[3:]
        if i == PD: ex["end"] = lead(0)
        a(att_step(i, ex))
    a("s_nop 1")
    a(mfma(O_, V_ + 24 + 4, P_ + 4))
    a(f"s_lshl_b32 s{T0}, s{tQB}, 3")
    a(f"s_add_u32 s{T0}, s{T0}, s{sW}")
    a(f"s_lshl_b32 s{T0}, s{T0}, 5")
    a(f"s_add_u32 s{T0}, s{T0}, s{tHEAD}")
    a(f"s_lshl_b32 s{T0}, s{T0}, 10")
    a(f"s_add_u32 s{T3}, s{T0}, {WS_O}")
    a(f"v_mov_b32 v2, {hx(f2u(2.0 ** 120))}")
    a(f"v_mov_b32 v3, {hx(f2u(2.0 ** -(MAXOFF + 4)))}")
    a("s_waitcnt lgkmcnt(0)")
    a("s_nop 3")
    stamp(a, 9)
    a(f"v_add_f32 v1, |v{O_}|, |v{O_ + 1}|")
    for i in range(2, 8):
        a(f"v_add_f32 v1, v1, |v{O_ + i}|")
    a(f"v_cmp_lt_f32 s[40:41], v{O_ + 8}, v2")
    a("v_cmp_lt_f32 s[42:43], v1, v2")
    a(f"v_cmp_le_f32 s[50:51], 0.5, v{O_ + 8}")
    a("v_cmp_le_f32 vcc, v3, v1")
    a("s_or_b64 s[50:51], s[50:51], vcc")
    a("s_and_b64 s[40:41], s[40:41], s[42:43]")
    a("s_and_b64 s[40:41], s[40:41], s[50:51]")
    a("s_cmp_eq_u64 s[40:41], -1")
    a("s_cbranch_scc0 L_fallback")
    a("L_norm:")
    a(f"v_rcp_f32 v2, v{O_ + 8}")
    a("s_nop 0")
    for i in range(8):
        a(f"v_mul_f32 v{O_ + i}, v{O_ + i}, v2")
    for i in range(4):
        a(f"v_cvt_pk_bf16_f32 v{4 + i}, v{O_ + 2 * i}, v{O_ + 2 * i + 1}")
    a(f"buffer_store_dwordx4 v[4:7], v{A16}, {sr(S_WS)}, s{T3} offen sc1")
    a(wol(3)[:4])
    for o in range(8):
        a(pw(o))
    if "coal" in OPT:
        a(f"s_and_b32 s{T0}, s{sW}, 4")
        a(f"s_and_b32 s{T1}, s{sW}, 3")
        a(f"s_lshl_b32 s{T1}, s{T1}, 7")
        a("v_and_b32 v1, 3, v0")
        a(f"v_add_u32 v1, s{T0}, v1")
        a("v_bfe_u32 v2, v0, 2, 1")
        a("v_lshrrev_b32 v3, 3, v0")
        a("v_lshl_add_u32 v2, v2, 5, v3")
        a("v_lshlrev_b32 v2, 4, v2")
        a(f"v_add_u32 v2, s{T1}, v2")
        a("v_cmp_eq_u32 vcc, 7, v1")
        a("v_mul_u32_u24 v3, 16448, v1")
        a(f"v_mul_u32_u24 v1, 8256, v1")
        a(f"v_add_u32 v{AK}, v1, v2")
        a(f"v_mov_b32 v1, {131072 + 192}")
        a("v_cndmask_b32 v3, v3, v1, vcc")
        a("v_add_u32 v3, v3, v2")
    else:
        a(f"s_lshl_b32 s{T0}, s{sW}, 14")
        a(f"s_add_u32 s{T1}, s{T0}, 0x8000")
        a(f"s_cmp_lt_u32 s{sW}, 6")
        a(f"s_cselect_b32 s{T0}, s{T0}, s{T1}")
        a(f"v_add_u32 v3, s{T0}, v{A16}")
    a("s_waitcnt vmcnt(4) lgkmcnt(0)")
    a("s_barrier")
    if "tp" in OPT: a(lead(2))
    stamp(a, 10)
    a(f"s_cmp_lg_u32 s{sW}, 0")
    a("s_cbranch_scc1 L_o_ns")
    if "ok4" in OPT:
        a(f"s_lshr_b32 s{T0}, s{sXCD}, 1")
        a(f"s_lshl2_add_u32 s{T0}, s{tQB}, s{T0}")
        a(f"s_lshl_b32 s{T0}, s{T0}, 8")
    else:
        a(f"s_lshl_b32 s{T0}, s{tQB}, 8")
    if "rep" in OPT:
        a(f"s_lshl2_add_u32 s{T0}, s{T0}, {WS_CNT + 0x4000}")
        a("v_mov_b32 v1, 1")
        a("v_lshlrev_b32 v2, 7, v0")
        a("s_mov_b64 exec, 255")
        a(f"buffer_atomic_add v1, v2, {sr(S_WS)}, s{T0} offen sc1")
    else:
        a(f"s_add_u32 s{T0}, s{T0}, {WS_CNT + C_O * 256}")
        a("v_mov_b32 v1, 1")
        a("s_mov_b64 exec, 1")
        a(f"buffer_atomic_add v1, off, {sr(S_WS)}, s{T0} sc1")
    a("s_mov_b64 exec, -1")
    a("L_o_ns:")
    if "ok4" in OPT:
        a(f"s_and_b32 s42, s{sW}, 3")
        a(f"s_lshl2_add_u32 s42, s{sXCD}, s42")
        if "rep" in OPT:
            a(f"s_lshl3_add_u32 s42, s42, s{tQB}")
            a(f"s_lshl_b32 s42, s42, 7")
            a(f"s_add_u32 s42, s42, {WS_CNT + 0x4000}")
        else:
            a(f"s_lshl_b32 s42, s42, 8")
            a(f"s_add_u32 s42, s42, {WS_CNT + C_O * 256}")
        if "oe" in OPT:
            a(f"buffer_load_dword v5, off, {sr(S_WS)}, s42 sc1")
    F_ = G_
    for s in range(8):
        for i in range(2):
            a(f"ds_read_b128 {vr(F_ + 8 * s + 4 * i, 4)}, v3 offset:{(s * 2 + i) * 1024}")
        if s == 6:
            a("s_waitcnt lgkmcnt(10)")
    for s in range(1, 8):
        a(f"s_waitcnt lgkmcnt({2 * (7 - s)})")
        for i in range(4):
            a(f"v_pk_add_f32 {vr(F_ + 2 * i, 2)}, {vr(F_ + 2 * i, 2)}, {vr(F_ + 8 * s + 2 * i, 2)}")
    if "ok4" in OPT:
        a("s_barrier")
        if "oe" not in OPT:
            a(f"buffer_load_dword v5, off, {sr(S_WS)}, s42 sc1")
    def silu_block():
        T_ = F_ + 8
        a(f"v_mov_b32 v4, {hx(f2u(-LOG2E))}")
        for i in range(8):
            a(f"v_mul_f32 v{T_ + i}, v{F_ + i}, v4")
        for i in range(8):
            a(f"v_exp_f32 v{T_ + i}, v{T_ + i}")
        a("s_nop 0")
        for i in range(8):
            a(f"v_add_f32 v{T_ + i}, 1.0, v{T_ + i}")
        for i in range(8):
            a(f"v_rcp_f32 v{T_ + i}, v{T_ + i}")
        a("s_nop 0")
        for i in range(8):
            a(f"v_mul_f32 v{F_ + i}, v{F_ + i}, v{T_ + i}")
        XU = G_ + 16
        for i in range(4):
            a(f"v_lshlrev_b32 v{XU + 2 * i}, 16, v{XV + i}")
            a(f"v_and_b32 v{XU + 2 * i + 1}, 0xffff0000, v{XV + i}")
    XU = G_ + 16
    if "sl" not in OPT:
        silu_block()
    a(f"s_lshr_b32 s{T0}, s{sW}, 2")
    a(f"s_mul_i32 s{T0}, s{T0}, {4 * 8256 if 'coal' in OPT else 32768}")
    a(f"s_and_b32 s{T1}, s{sW}, 3")
    a(f"s_lshl_b32 s{T2}, s{T1}, 11")
    a(f"s_add_u32 s{T0}, s{T0}, s{T2}")
    a(f"v_add_u32 v1, s{T0}, v{A16}")
    if "coal" in OPT:
        a(f"v_mov_b32 v3, v{AK}")
    else:
        a(f"s_lshl_b32 s{T0}, s{sW}, 13")
        a(f"v_add_u32 v3, s{T0}, v{A16}")
    a(f"s_lshl_b32 s{T0}, s{tTT}, 5")
    a(f"s_lshl_b32 s{T1}, s{T1}, 3")
    a(f"s_add_u32 s{T0}, s{T0}, s{T1}")
    a(f"s_lshl_b32 s{T0}, s{T0}, 10")
    a(f"s_add_u32 s{T2}, s{T0}, {WS_O}")
    a(f"s_add_u32 s{T3}, s{T2}, 4096")
    stamp(a, 11)
    if "ok4" in OPT:
        a(f"s_mov_b32 s{T1}, {SPIN}")
        a("L_o_poll:")
        a("s_waitcnt vmcnt(0)")
        a("v_readfirstlane_b32 s40, v5")
        a("s_cmp_ge_u32 s40, 8")
        a("s_cbranch_scc1 L_o_ok")
        a(f"s_sleep {OSL}")
        a(f"buffer_load_dword v5, off, {sr(S_WS)}, s42 sc1")
        a(f"s_sub_u32 s{T1}, s{T1}, 1")
        a(f"s_cmp_lg_u32 s{T1}, 0")
        a("s_cbranch_scc1 L_o_poll")
        a("L_o_ok:")
    else:
        a(f"s_cmp_lg_u32 s{sW}, 0")
        a("s_cbranch_scc1 L_o_ok")
        a(f"s_lshl_b32 s{T0}, s{sXCD}, 8")
        a(f"s_add_u32 s{T0}, s{T0}, {WS_CNT + C_O * 256}")
        a(f"s_mov_b32 s{T1}, {SPIN}")
        a("L_o_poll:")
        a(f"buffer_load_dword v4, off, {sr(S_WS)}, s{T0} sc1")
        a("s_waitcnt vmcnt(0)")
        a("v_readfirstlane_b32 s40, v4")
        a("s_cmp_ge_u32 s40, 32")
        a("s_cbranch_scc1 L_o_ok")
        a(f"s_sub_u32 s{T1}, s{T1}, 1")
        a(f"s_cmp_lg_u32 s{T1}, 0")
        a("s_cbranch_scc1 L_o_poll")
        a("L_o_ok:")
        a("s_barrier")
    stamp(a, 12)
    OF = S0
    SA = V_
    for j in range(8):
        so = T2 if j < 4 else T3
        a(f"buffer_load_dwordx4 {vr(OF + 4 * j, 4)}, v{A16}, {sr(S_WS)}, s{so} offen offset:{(j % 4) * 1024} sc1")
    if "sl" in OPT:
        silu_block()
    for j in range(8):
        a(f"s_waitcnt vmcnt({7 - j})")
        for ap in range(2):
            a(mfma(SA + 16 * ap, wreg(2 * j + ap), OF + 4 * j, "0" if j == 0 else None))
    stamp(a, 13)
    a("s_nop 11")
    for o in range(4):
        for i in range(2):
            a(f"ds_write_b128 v1, {vr(SA + 8 * o + 4 * i, 4)} offset:{o * (8256 if 'coal' in OPT else 8192) + i * 1024}")
    a("s_waitcnt lgkmcnt(0)")
    a("s_barrier")
    for s in range(4):
        for i in range(2):
            a(f"ds_read_b128 {vr(SA + 8 * s + 4 * i, 4)}, v3 offset:{(s * 2 + i) * 1024}")
    for s in range(1, 4):
        a(f"s_waitcnt lgkmcnt({2 * (3 - s)})")
        for i in range(4):
            a(f"v_pk_add_f32 {vr(SA + 2 * i, 2)}, {vr(SA + 2 * i, 2)}, {vr(SA + 8 * s + 2 * i, 2)}")
    for i in range(4):
        a(f"v_pk_fma_f32 {vr(XU + 2 * i, 2)}, {vr(SA + 2 * i, 2)}, {vr(F_ + 2 * i, 2)}, {vr(XU + 2 * i, 2)}")
    for i in range(4):
        a(f"v_cvt_pk_bf16_f32 v{4 + i}, v{XU + 2 * i}, v{XU + 2 * i + 1}")
    fl = " sc1" if "osc1" in OPT else (" nt" if "ont" in OPT else (" sc0 sc1" if "osc01" in OPT else ""))
    a(f"buffer_store_dwordx4 v[4:7], v{AOUT}, {sr(R_OUT)}, 0 offen{fl}")
    stamp(a, 14)
    stamp_flush(a)
    a("L_exit:")
    a("s_endpgm")
    a("L_fallback:")
    a(f"s_lshl_b32 s{T0}, s{tHEAD}, 16")
    a(f"s_add_u32 s{T0}, s{T0}, {32 << 16}")
    a(f"s_mov_b32 s{T1}, 0")
    a("v_mov_b32 v1, 0xff800000")
    a("L_fb1:")
    a(f"s_add_u32 s{T2}, s{T0}, s{T1}")
    a(f"buffer_load_dwordx4 {vr(K_, 4)}, v{A16}, {sr(S_WS)}, s{T2} offen sc1")
    a("s_waitcnt vmcnt(0)")
    a(mfma(S0, K_, Q_, "0"))
    a("s_nop 15")
    for i in range(0, 16, 2):
        a(f"v_max3_f32 v1, v1, v{S0 + i}, v{S0 + i + 1}")
    a(f"s_add_u32 s{T1}, s{T1}, 1024")
    a(f"s_cmp_lt_u32 s{T1}, 65536")
    a("s_cbranch_scc1 L_fb1")
    a("v_mov_b32 v2, v1")
    a("s_nop 1")
    a("v_permlane32_swap_b32 v1, v2")
    a("v_max_f32 v1, v1, v2")
    a("v_sub_f32 v1, 0, v1")
    for i in range(16):
        a(f"v_mov_b32 v{NM + i}, v1")
    for i in range(16):
        a(f"v_mov_b32 v{O_ + i}, 0")
    a("v_lshrrev_b32 v2, 5, v0")
    a("v_and_b32 v3, 15, v0")
    a("v_lshlrev_b32 v3, 4, v3")
    a("v_lshl_add_u32 v3, v2, 8, v3")
    a(f"s_mov_b32 s{T1}, 0")
    a("L_fb2:")
    a(f"s_add_u32 s{T2}, s{T0}, s{T1}")
    a(f"buffer_load_dwordx4 {vr(K_, 4)}, v{A16}, {sr(S_WS)}, s{T2} offen sc1")
    a(f"s_add_u32 s{T2}, s{T2}, {32 << 16}")
    a(f"s_mov_b64 exec, s[{tVM}:{tVM + 1}]")
    a(f"buffer_load_dwordx4 {vr(V_, 4)}, v3, {sr(S_WS)}, s{T2} offen sc1")
    a(f"buffer_load_dwordx4 {vr(V_ + 4, 4)}, v3, {sr(S_WS)}, s{T2} offen offset:512 sc1")
    a("s_mov_b64 exec, -1")
    a("s_waitcnt vmcnt(0)")
    a(mfma(S0, K_, Q_, NM))
    a("s_nop 15")
    for i in range(16):
        a(f"v_exp_f32 v{S0 + i}, v{S0 + i}")
    a("s_nop 0")
    for i in range(8):
        a(f"v_cvt_pk_bf16_f32 v{P_ + i}, v{S0 + 2 * i}, v{S0 + 2 * i + 1}")
    a("s_nop 1")
    a(mfma(O_, V_, P_))
    a(mfma(O_, V_ + 4, P_ + 4))
    a(f"s_add_u32 s{T1}, s{T1}, 1024")
    a(f"s_cmp_lt_u32 s{T1}, 65536")
    a("s_cbranch_scc1 L_fb2")
    a("s_nop 15")
    a("s_branch L_norm")


def main(out):
    a = Asm()
    k = NAME + "_kernel"
    hdr = ["; LN + MHA + GEGLU block, one persistent launch; generated by gen5.py (hand-scheduled gfx950 assembly)",
           "; @launch grid=(256,1,1) block=(512,1,1) lds=163840"]
    a('.amdgcn_target "amdgcn-amd-amdhsa--gfx950"')
    a(".text")
    a(f".globl {k}\n.p2align 8\n.type {k},@function\n{k}:")
    gen_p1(a)
    gen_p2(a)
    gen_side(a)
    a("L_end:")
    a('.section .rodata,"a"')
    a(".p2align 6")
    a(f".amdhsa_kernel {k}")
    a(f".amdhsa_next_free_vgpr {NVGPR}")
    a(f".amdhsa_next_free_sgpr {96 if (STAMPS or ENC is not None) else 80}")
    a(f".amdhsa_accum_offset {(NVGPR + 3) // 4 * 4}")
    a(".amdhsa_group_segment_fixed_size 0")
    a(".amdhsa_kernarg_size 80")
    a(".amdhsa_user_sgpr_count 2")
    a(".amdhsa_user_sgpr_kernarg_segment_ptr 1")
    a(".amdhsa_system_sgpr_workgroup_id_x 1")
    a(".end_amdhsa_kernel")
    open(out, "w").write("\n".join(hdr) + "\n" + a.text())


if __name__ == "__main__":
    for x in list(sys.argv):
        if x.startswith("--opt="):
            OPT = set(x[6:].split(","))
            sys.argv.remove(x)
    for x in list(sys.argv):
        if x.startswith("--enc="):
            ENC = int(x[6:])
            sys.argv.remove(x)
    for o in OPT:
        if o.startswith("sig"): SIGU = int(o[3:])
        if o.startswith("chk"): CHK = int(o[3:])
        if o.startswith("wk"): WK = int(o[2:])
        if o.startswith("mo"): MAXOFF = float(o[2:])
        if o.startswith("cso"): CSO = int(o[3:])
        if o.startswith("osl"): OSL = int(o[3:])
        if o.startswith("vb"): VBUD = int(o[2:])
        if o.startswith("pc"): PC = (int(o[2]), int(o[3]))
        if o.startswith("pd"): PD = int(o[2])
        if o.startswith("pg"): PG = int(o[2])
    if "--cyc" in sys.argv:
        STAMPS = 2
        sys.argv.remove("--cyc")
    if "--stamps" in sys.argv:
        STAMPS = True
        sys.argv.remove("--stamps")
    main(sys.argv[1] if len(sys.argv) > 1 else f"cdna_kernels/{NAME}.s")
```

```python
import sys, struct, math

NAME = "recurrent_scan__mha_block__glu_gated_geglu__prompt"

WS_QKV = 0
WS_H = 6 << 20
WS_O = 14 << 20
WS_CNT = 16 << 20
WS_STAMP = (16 << 20) + 65536
WS_CS = (16 << 20) + 0xb0000
WS_ST = (16 << 20) + 0x80000
WS_CQ = (16 << 20) + 0xa0000
WS_RS = (16 << 20) + 0x84000
WS_CP = (19 << 20) + 0x80000
WS_WT = 17 << 20
WS_SIZE = 21 << 20
OOB = 0x7f000000

LOG2E = 1.4426950408889634
QSCALE = 0.25 * LOG2E
GC1 = -2.0 * LOG2E * math.sqrt(2.0 / math.pi)
GC2 = GC1 * 0.044715
MAXOFF = 100.0
SPIN = 0x40000

STAMPS = False
OPT = set()
NOSTAMP = False
ENC = None


def f2u(x):
    return struct.unpack("<I", struct.pack("<f", x))[0]


def hx(x):
    return "0x%08x" % (x & 0xffffffff)


class Asm:
    def __init__(self):
        self.l = []

    def __call__(self, s):
        if isinstance(s, (list, tuple)):
            for x in s:
                self(x)
            return
        for line in s.split("\n"):
            line = line.strip()
            if not line:
                continue
            if line.endswith(":") or line.startswith("."):
                self.l.append(line)
            else:
                self.l.append("    " + line)

    def text(self):
        return "\n".join(self.l) + "\n"


def vr(b, n):
    return f"v[{b}:{b + n - 1}]"


def sr(b):
    return f"s[{b}:{b + 3}]"


def mfma(d, a, b, c=None):
    cs = vr(d, 16) if c is None else (c if isinstance(c, str) else vr(c, 16))
    return f"v_mfma_f32_32x32x16_bf16 {vr(d, 16)}, {vr(a, 4)}, {vr(b, 4)}, {cs}"


def stamp(a, n):
    if ENC is not None:
        if n in (0, ENC) and not NOSTAMP:
            a("s_memrealtime s[76:77]")
            a("s_waitcnt lgkmcnt(0)")
            a(f"s_mov_b32 s{80 if n == 0 else 81}, s76")
            if n == 0:
                a("s_mov_b32 s81, s76")
        return
    if not STAMPS or (NOSTAMP and n != 15) or ("min" in OPT and n not in (0, 15)):
        return
    a("s_memtime s[76:77]" if STAMPS == 2 else "s_memrealtime s[76:77]")
    a("s_waitcnt lgkmcnt(0)")
    a(f"s_mov_b32 s{80 + n}, s76")


def stampl(n):
    t = Asm()
    stamp(t, n)
    return [x.strip() for x in t.l]


def stamp_flush(a):
    if ENC is not None:
        a("s_waitcnt vmcnt(0)")
        a("s_memrealtime s[76:77]")
        a("s_waitcnt lgkmcnt(0)")
        if ENC == 15:
            a("s_mov_b32 s81, s76")
        if ENC == 99:
            a(["v_mov_b32 v1, 0", f"global_load_dword v2, v1, s[{pDBG}:{pDBG + 1}] offset:240 sc1", "s_waitcnt vmcnt(0)",
               "v_readfirstlane_b32 s80, v2", "s_not_b32 s80, s80", "s_sub_u32 s80, s80, 100"])
        a("s_sub_u32 s81, s81, s80")
        a("s_cmp_lt_u32 s2, 32" if "encs" not in OPT else "s_cmp_ge_u32 s2, 32")
        a("s_cselect_b32 s81, 0, s81")
        a("s_mov_b32 s80, s76")
        a("L_enc:")
        a("s_memrealtime s[76:77]")
        a("s_waitcnt lgkmcnt(0)")
        a("s_sub_u32 s76, s76, s80")
        a("s_cmp_lt_u32 s76, s81")
        a("s_cbranch_scc1 L_enc")
        return
    if not STAMPS:
        return
    a("s_waitcnt vmcnt(0)")
    stamp(a, 15)
    a("v_mov_b32 v1, 0")
    for n in range(16):
        a(f"v_writelane_b32 v1, s{80 + n}, {n}")
    a("s_lshl_b32 s76, s2, 3")
    a(f"s_add_u32 s76, s76, s{sW}")
    a("s_lshl_b32 s76, s76, 6")
    a(f"s_add_u32 s76, s76, {WS_STAMP}")
    a("v_lshlrev_b32 v2, 2, v0")
    a("s_mov_b64 exec, 0xffff")
    a(f"buffer_store_dword v1, v2, {sr(S_WS)}, s76 offen")


def srd(a, s, ptr, size):
    a(f"s_mov_b32 s{s}, s{ptr}")
    a(f"s_mov_b32 s{s + 1}, s{ptr + 1}")
    a(f"s_mov_b32 s{s + 2}, {size}")
    a(f"s_mov_b32 s{s + 3}, 0x00020000")


pX, pWQKV, pWO, pG, pU, pWD, pOUT, pDBG, pWS = 56, 58, 60, 64, 66, 68, 70, 72, 74
S_T, S_X, S_W0, S_W1, S_W3, S_WS = 4, 8, 12, 16, 20, 24
R_OUT, R_H0, R_H1, R_WT = 4, 12, 16, 20
sW, sTT, sHF, sRB, sCB, sROT, sISS, sVAR = 28, 29, 30, 31, 32, 33, 34, 35
sCQ, sCG, sXROW, sLW = 36, 37, 42, 43
T0, T1, T2, T3 = 44, 45, 46, 47
sXCD, sT, sG, sKV = 49, 52, 53, 50
tHEAD, tQB, tIT, tFH, tFW, tTT = 38, 39, 33, 36, 37, 48
tVM = 54

AR, BR, CR, SL = 0, 49152, 98304, 16384
SCR = 147456
XA, VXS, VW0, WQ, WC = 4, 8, 9, 10, 12
VW1, VW3, L16, MASK, ONES, STV, POLL = 14, 15, 16, 17, 18, 20, 21
CSA = 24
WF = 32
ACF, ACQ = 64, 96
XF = 128
Q_, K_, P_, NM, S0, S1, RING = 8, 12, 20, 28, 44, 60, 76
AK, AV, A16, AOUT = 124, 125, 126, 127
G_, V_, O_, AW = 128, 192, 224, 240
NVGPR = 256
C_H, C_CS, C_O = 24, 40, 56
T4 = 63
sQT = 78
sCF, sCNT = 51, 62


def tiny(d, a_, b_, first=False):
    return f"v_mfma_f32_4x4x4_16b_bf16 {vr(d, 4)}, {vr(a_, 2)}, {vr(b_, 2)}, {'0' if first else vr(d, 4)}"


def dma(S, ffn=True):
    sl = (S % 3) * SL
    if S < 8:
        r = [[f"s_add_u32 s{T1}, s{sROT}, {S}", f"s_and_b32 s{T1}, s{T1}, 7",
              f"s_lshl_b32 s{T0}, s{T1}, 7", f"s_add_u32 m0, s{sLW}, {AR + sl}", f"s_add_u32 s{T0}, s{T0}, s{sXROW}",
              f"buffer_load_dwordx4 v{VXS}, {sr(S_X)}, s{T0} offen lds"],
             [f"s_mul_i32 s{T1}, s{T1}, {64 * 3072}", f"s_add_u32 m0, s{sLW}, {BR + sl}", f"s_add_u32 s{T1}, s{T1}, s{sCQ}",
              f"buffer_load_dwordx4 v{VW0}, {sr(S_W0)}, s{T1} offen lds"],
             [f"s_add_u32 m0, s{sLW}, {AR + sl + 8192}", f"s_add_u32 s{T0}, s{T0}, 0x10000",
              f"buffer_load_dwordx4 v{VXS}, {sr(S_X)}, s{T0} offen lds"],
             [f"s_add_u32 m0, s{sLW}, {BR + sl + 8192 - 128}", "s_nop 0",
              f"buffer_load_dwordx4 v{VW0}, {sr(S_W0)}, s{T1} offen offset:128 lds"]]
        if ffn and S >= 2:
            r += [[f"s_add_u32 s{T4}, s{sROT}, {S - 2}", f"s_and_b32 s{T4}, s{T4}, 7", f"s_mul_i32 s{T4}, s{T4}, {64 * 3584}",
                   f"s_add_u32 m0, s{sLW}, {CR + sl}", f"s_add_u32 s{T4}, s{T4}, s{sCG}",
                   f"buffer_load_dwordx4 v{VW1}, {sr(S_W1)}, s{T4} offen lds"],
                  [f"s_add_u32 m0, s{sLW}, {CR + sl + 8192}", "s_nop 0",
                   f"buffer_load_dwordx4 v{VW3}, {sr(S_W3)}, s{T4} offen lds"]]
        return r
    if not ffn:
        return []
    r = []
    off = 128 if S > 8 else 0
    for hb, base in enumerate((BR, CR)):
        r += [[f"s_add_u32 s{T1}, s{sROT}, {(2 * (S - 9) + hb) & 7}", f"s_and_b32 s{T1}, s{T1}, 7",
               f"s_mul_i32 s{T1}, s{T1}, {64 * 3584}", f"s_add_u32 m0, s{sLW}, {base + sl - off}", f"s_add_u32 s{T1}, s{T1}, s{sCG}",
               f"buffer_load_dwordx4 v{VW1}, {sr(S_W1)}, s{T1} offen offset:{off} lds"],
              [f"s_add_u32 m0, s{sLW}, {base + sl + 8192 - off}", "s_nop 0",
               f"buffer_load_dwordx4 v{VW3}, {sr(S_W3)}, s{T1} offen offset:{off} lds"]]
    return r


def fset(k, ffn):
    return WF + 16 * (k & 1) if (ffn and k >= 8) else WF + 8 * (k & 3)


def rd1(k, nt, ffn):
    S, ks = k >> 2, k & 3
    sl = (S % 3) * SL
    F = fset(k, ffn)
    r = [f"ds_read_b128 {vr(XF + 4 * k, 4)}, v{XA + ks} offset:{sl}"]
    for t in range(nt):
        for t2 in range(2):
            r.append(f"ds_read_b64_tr_b16 {vr(F + 4 * t + 2 * t2, 2)}, v{WQ + t} offset:{sl + ks * 2048 + t2 * 512}")
    if ffn and k >= 8:
        for c in range(2):
            for t2 in range(2):
                r.append(f"ds_read_b64_tr_b16 {vr(F + 8 + 4 * c + 2 * t2, 2)}, v{WC + c} offset:{sl + ks * 2048 + t2 * 512}")
    return r


def rd2(u):
    S = 8 + (u >> 2)
    sl = (S % 3) * SL
    base = WQ if (u & 3) < 2 else WC
    F = WF + 16 * (u & 1)
    return [f"ds_read_b64_tr_b16 {vr(F + 8 * q + 4 * c + 2 * t2, 2)}, v{base + c} offset:{sl + ((2 * u + q) & 3) * 2048 + t2 * 512}"
            for q in range(2) for c in range(2) for t2 in range(2)]


def flat(L):
    return [x for at in L for x in ([at] if isinstance(at, str) else at)]


def spread(heads, first, rest):
    n = len(heads)
    pf = -(-len(first) // max(1, n - 1)) if first else 0
    res = []
    for j, hd in enumerate(heads):
        res.append(hd)
        res += flat(first[j * pf:(j + 1) * pf])
        res += flat(rest[j * len(rest) // n:(j + 1) * len(rest) // n])
    return res


def nvm(lines):
    return sum(1 for l in lines if l.startswith("buffer_") or l.startswith("global_"))


def weave(heads, fills):
    res = []
    per = -(-len(fills) // len(heads)) if fills else 0
    i = 0
    for hd in heads:
        res.append(hd)
        for at in fills[i:i + per]:
            res += [at] if isinstance(at, str) else at
        i += per
    return res


def tr_addr(dst, t_a, t_b):
    return [f"v_lshrrev_b32 v{t_a}, 5, v0", f"v_bfe_u32 v{t_b}, v0, 2, 2", f"v_lshl_add_u32 v{dst}, v{t_a}, 2, v{t_b}",
            f"v_lshlrev_b32 v{dst}, 7, v{dst}", f"v_and_b32 v{t_a}, 1, v0", f"v_lshl_add_u32 v{dst}, v{t_a}, 6, v{dst}",
            f"v_bfe_u32 v{t_a}, v0, 4, 1", f"v_lshl_add_u32 v{dst}, v{t_a}, 4, v{dst}", f"v_bfe_u32 v{t_a}, v0, 1, 1",
            f"v_lshl_add_u32 v{dst}, v{t_a}, 3, v{dst}", f"v_lshrrev_b32 v{t_b}, 1, v{t_b}", f"v_lshl_add_u32 v{dst}, v{t_b}, 5, v{dst}"]


def split3(w, src):
    return [f"v_and_b32 v{w}, v{MASK}, v{src}", f"v_sub_f32 v{w + 2}, v{src}, v{w}",
            f"v_and_b32 v{w + 1}, v{MASK}, v{w + 2}", f"v_sub_f32 v{w + 2}, v{w + 2}, v{w + 1}", f"v_mov_b32 v{w + 3}, 0"]


def poll_issue(lbl, mask_instrs, reg=POLL):
    return ([f"s_cmp_lg_u32 s{sW}, 0", f"s_cbranch_scc1 {lbl}", "v_lshlrev_b32 v1, 8, v0"] + mask_instrs +
            ["s_mov_b64 exec, s[40:41]",
             f"buffer_load_dword v{reg}, v1, {sr(S_WS)}, s{sCNT} offen sc1", "s_mov_b64 exec, -1", f"{lbl}:"])


def poll_check(lbl, thr, reg=POLL, sleep=8):
    return [f"s_cmp_lg_u32 s{sW}, 0", f"s_cbranch_scc1 {lbl}_ok",
            f"s_mov_b32 s{T3}, {SPIN}", "s_mov_b64 exec, s[40:41]", f"{lbl}_spin:",
            f"v_cmp_gt_u32 vcc, {thr}, v{reg}", "s_cmp_eq_u64 vcc, 0", f"s_cbranch_scc1 {lbl}_done",
            f"s_sleep {sleep}",
            f"buffer_load_dword v{reg}, v1, {sr(S_WS)}, s{sCNT} offen sc1", "s_waitcnt vmcnt(0)",
            f"s_sub_u32 s{T3}, s{T3}, 1", f"s_cmp_lg_u32 s{T3}, 0", f"s_cbranch_scc1 {lbl}_spin",
            f"{lbl}_done:", "s_mov_b64 exec, -1", f"{lbl}_ok:"]


QKV_MASK = [f"s_lshl_b32 s40, 0x10101, s{sXCD}", "s_mov_b32 s41, 0"]
CS_MASK = ["s_mov_b32 s40, 0", f"s_lshl_b32 s41, 0x100, s{sCF}"]
H_MASK = ["s_mov_b32 s40, 0xff000000", "s_mov_b32 s41, 0xff"]


def cs_issue(lbl, n):
    return [f"s_cmp_lg_u32 s{sW}, 0", f"s_cbranch_scc1 {lbl}", "v_lshlrev_b32 v1, 6, v0", "s_mov_b64 exec, 15",
            f"global_load_dword v{POLL}, v1, s[{pDBG}:{pDBG + 1}] offset:{4 * n} sc1", "s_mov_b64 exec, -1", f"{lbl}:"]


def cs_signal(lbl, n):
    return [f"s_cmp_lg_u32 s{sW}, 0", f"s_cbranch_scc1 {lbl}", f"s_and_b32 s{T2}, s{sRB}, 3", f"s_lshl_b32 s{T2}, s{T2}, 6",
            f"v_mov_b32 v2, s{T2}", "v_mov_b32 v3, 1", "s_mov_b64 exec, 1",
            f"global_atomic_add v2, v3, s[{pDBG}:{pDBG + 1}] offset:{4 * n} sc1", "s_mov_b64 exec, -1", f"{lbl}:"]


def cs_check(lbl, n):
    return [f"s_cmp_lg_u32 s{sW}, 0", f"s_cbranch_scc1 {lbl}_ok",
            f"s_mov_b32 s{T3}, {SPIN}", "s_mov_b64 exec, 15", f"{lbl}_spin:",
            f"v_cmp_gt_u32 vcc, 8, v{POLL}", "s_cmp_eq_u64 vcc, 0", f"s_cbranch_scc1 {lbl}_done",
            "s_sleep 8",
            f"global_load_dword v{POLL}, v1, s[{pDBG}:{pDBG + 1}] offset:{4 * n} sc1", "s_waitcnt vmcnt(0)",
            f"s_sub_u32 s{T3}, s{T3}, 1", f"s_cmp_lg_u32 s{T3}, 0", f"s_cbranch_scc1 {lbl}_spin",
            f"{lbl}_done:", "s_mov_b64 exec, -1", f"{lbl}_ok:"]


def flag_check(lbl):
    return [f"s_cmp_lg_u32 s{sW}, 0", f"s_cbranch_scc1 {lbl}",
            f"s_mov_b32 s{T3}, {SPIN}", f"{lbl}_spin:",
            f"v_readfirstlane_b32 s{T2}, v{POLL}", f"s_cmp_lg_u32 s{T2}, 0", f"s_cbranch_scc1 {lbl}",
            "s_sleep 8", "v_mov_b32 v2, 0",
            f"global_load_dword v{POLL}, v2, s[{pDBG}:{pDBG + 1}] offset:32 sc1", "s_waitcnt vmcnt(0)",
            f"s_sub_u32 s{T3}, s{T3}, 1", f"s_cmp_lg_u32 s{T3}, 0", f"s_cbranch_scc1 {lbl}_spin", f"{lbl}:"]


def sig_qkv(lbl):
    return [f"s_cmp_lg_u32 s{sW}, 0", f"s_cbranch_scc1 {lbl}",
            f"s_mul_i32 s{T2}, s{sCB}, 3", f"s_lshr_b32 s{T2}, s{T2}, 1", f"s_and_b32 s{T3}, s{sCB}, 1",
            f"v_add_u32 v2, s{T2}, v0", "v_lshlrev_b32 v2, 8, v2",
            f"v_xor_b32 v3, s{T3}, v0", "v_sub_u32 v3, 2, v3",
            "s_mov_b64 exec, 3", f"buffer_atomic_add v3, v2, {sr(S_WS)}, s{sCNT} offen sc1", "s_mov_b64 exec, -1", f"{lbl}:"]


def sig_one(lbl, idx_instrs, skip_side=False):
    c = [f"s_or_b32 s{T0}, s{sW}, s{sISS}"] if skip_side else [f"s_cmp_lg_u32 s{sW}, 0"]
    return (c + [f"s_cbranch_scc1 {lbl}"] + idx_instrs +
            [f"s_lshl_b32 s{T0}, s{T0}, 8", f"s_add_u32 s{T0}, s{T0}, s{sCNT}", "v_mov_b32 v3, 1", "s_mov_b64 exec, 1",
             f"buffer_atomic_add v3, off, {sr(S_WS)}, s{T0} sc1", "s_mov_b64 exec, -1", f"{lbl}:"])


def kv(i, r=L16):
    return [[f"s_lshl1_add_u32 m0, s{sLW}, {i * 16384}" if i else f"s_lshl_b32 m0, s{sLW}, 1",
             f"s_add_u32 s{T2}, s{sKV}, {i * 8192}",
             f"buffer_load_dwordx4 v{r}, {sr(S_WS)}, s{T2} offen sc1 lds"],
            [f"s_lshl1_add_u32 m0, s{sLW}, {i * 16384 + 1024}", f"s_add_u32 s{T2}, s{sKV}, {i * 8192 + (32 << 16)}",
             f"buffer_load_dwordx4 v{r}, {sr(S_WS)}, s{T2} offen sc1 lds"]]


def q_load():
    return [f"s_lshl_b32 s{T2}, s{tHEAD}, 6", f"s_add_u32 s{T2}, s{T2}, s{sQT}", f"s_lshl_b32 s{T2}, s{T2}, 10",
            f"buffer_load_dwordx4 {vr(Q_, 4)}, v{L16}, {sr(S_WS)}, s{T2} offen sc1"]


def sent_store(r, l):
    if "sen" not in OPT:
        return []
    return [f"s_lshl_b32 s{T0}, s{sQT}, 5", f"s_add_u32 s{T0}, s{T0}, s{tHEAD}", f"s_lshl_b32 s{T0}, s{T0}, 10", f"s_add_u32 s{T0}, s{T0}, {WS_O}",
            f"v_mov_b64 v[{r}:{r + 1}], -1", f"v_mov_b64 v[{r + 2}:{r + 3}], -1",
            f"buffer_store_dwordx4 {vr(r, 4)}, v{l}, {sr(S_WS)}, s{T0} offen sc1"]


def p2_init_v():
    return ([["v_and_b32 v3, 27, v0", "v_cmp_eq_u32 vcc, 16, v3", f"v_mov_b32 v{V_ + 1}, 0x3f803f80", "v_mov_b32 v3, 0",
              f"v_cndmask_b32 v{V_}, v3, v{V_ + 1}, vcc", f"v_mov_b32 v{V_ + 1}, v{V_}"]] +
            [f"v_mov_b64 v[{V_ + i}:{V_ + i + 1}], v[{V_}:{V_ + 1}]" for i in range(2, 32, 2)])


TRA, TRD = 142, 144


def tr_setup():
    A, B, C, D = T2, T3, tVM + 1, tVM
    return [[f"s_sub_u32 s{C}, s2, 32", f"s_mul_i32 s{D}, s{sW}, 144", f"s_add_u32 s{D}, s{D}, s{C}", f"s_lshl_b32 s{D}, s{D}, 11",
             f"s_add_u32 s{D}, s{D}, {WS_WT}", f"s_cmp_lt_u32 s{C}, 144", f"s_cselect_b32 s{D}, s{D}, {OOB}",
             f"s_cmp_lt_u32 s{C}, 112", f"s_cselect_b32 s{S_T}, s{pWD}, s{pWO}",
             f"s_cselect_b32 s{S_T + 1}, s{pWD + 1}, s{pWO + 1}", f"s_mov_b32 s{S_T + 2}, 1835008",
             f"s_cselect_b32 s{S_T + 2}, s{S_T + 2}, 524288", f"s_cselect_b32 s{A}, 0, 112", f"s_mov_b32 s{S_T + 3}, 0x00020000",
             f"s_sub_u32 s{C}, s{C}, s{A}", f"s_lshl_b32 s{C}, s{C}, 14", f"s_lshl_b32 s{B}, s{sW}, 7", f"s_add_u32 s{C}, s{C}, s{B}"],
            ["v_lshrrev_b32 v2, 3, v0", "v_and_b32 v3, 2, v2", "v_and_b32 v18, 7, v0", "v_xor_b32 v18, v3, v18",
             "v_lshlrev_b32 v18, 4, v18", "v_lshl_add_u32 v18, v2, 10, v18"]]


def tr_dma():
    C = tVM + 1
    return [[f"s_lshl_b32 m0, s{sLW}, 1", f"s_add_u32 s{T3}, s{C}, 8192", f"buffer_load_dwordx4 v18, {sr(S_T)}, s{C} offen lds",
             "s_add_u32 m0, m0, 1024", "s_nop 0", f"buffer_load_dwordx4 v18, {sr(S_T)}, s{T3} offen lds"]]


def tr_rd():
    return [f"ds_read_b64_tr_b16 {vr(TRD + 4 * ap + 2 * t, 2)}, v{TRA + ap} offset:{t * 1024}" for ap in range(2) for t in range(2)]


def tr_st():
    return [f"buffer_store_dwordx4 {vr(TRD, 4)}, v{L16}, {sr(S_WS)}, s{tVM} offen sc1",
            f"buffer_store_dwordx4 {vr(TRD + 4, 4)}, v{L16}, {sr(S_WS)}, s{tVM} offen offset:1024 sc1"]


def gen_p1(a):
    global NOSTAMP
    a("s_cmp_ge_u32 s2, 256")
    a("s_cbranch_scc1 L_exit")
    stamp(a, 0)
    a(f"s_load_dwordx4 s[{pX}:{pX + 3}], s[0:1], 0")
    a(f"s_load_dwordx4 s[{pG}:{pG + 3}], s[0:1], 32")
    a(f"s_load_dwordx2 s[{pWO}:{pWO + 1}], s[0:1], 16")
    a(f"s_load_dwordx4 s[{pWD}:{pWD + 3}], s[0:1], 48")
    a(f"s_load_dwordx4 s[{pDBG}:{pDBG + 3}], s[0:1], 64")
    a("v_lshrrev_b32 v1, 6, v0")
    a("v_and_b32 v0, 63, v0")
    a(f"v_readfirstlane_b32 s{sW}, v1")
    a("s_cmp_ge_u32 s2, 32")
    a("s_cbranch_scc1 L_nocode")
    a("s_getpc_b64 s[40:41]")
    a("L_here:")
    a("v_lshlrev_b32 v2, 13, v1")
    a("v_lshl_add_u32 v2, v0, 7, v2")
    a("v_min_u32 v2, L_end-L_here-4, v2")
    a("v_mov_b32 v3, s41")
    a("v_add_co_u32 v2, vcc, s40, v2")
    a("s_nop 1")
    a("v_addc_co_u32 v3, vcc, 0, v3, vcc")
    a(f"global_load_dword v{STV}, v[2:3], off")
    a("L_nocode:")
    a(f"s_and_b32 s{sXCD}, s2, 7")
    a(f"s_lshr_b32 s{T1}, s2, 3")
    a(f"s_and_b32 s{sRB}, s{sXCD}, 3")
    a(f"s_and_b32 s{T2}, s{T1}, 3")
    a(f"s_lshl2_add_u32 s{sRB}, s{sRB}, s{T2}")
    a(f"s_lshr_b32 s{sCF}, s{sXCD}, 2")
    a(f"s_lshr_b32 s{sISS}, s{T1}, 2")
    a(f"s_lshl3_add_u32 s{sCB}, s{sCF}, s{sISS}")
    a(f"s_lshl1_add_u32 s{sROT}, s{sXCD}, s{sISS}")
    a(f"s_lshl_b32 s{sLW}, s{sW}, 10")
    a(f"s_lshl_b32 s{T2}, s{sW}, 3")
    a(f"s_lshl_b32 s{sXROW}, s{sRB}, 7")
    a(f"s_add_u32 s{sXROW}, s{sXROW}, s{T2}")
    a(f"s_lshl_b32 s{sXROW}, s{sXROW}, 10")
    a(f"s_mul_i32 s{sCQ}, s{sCB}, 3")
    a(f"s_lshr_b32 s{sCQ}, s{sCQ}, 1")
    a(f"s_lshl_b32 s{sCQ}, s{sCQ}, 7")
    a(f"s_mul_i32 s{T3}, s{T2}, 3072")
    a(f"s_add_u32 s{sCQ}, s{sCQ}, s{T3}")
    a(f"s_mul_i32 s{T3}, s{T2}, 3584")
    a(f"s_sub_u32 s{sCF}, s{sCB}, s{sCF}")
    a(f"s_sub_u32 s{sCF}, s{sCF}, 1")
    a(f"s_lshl_b32 s{sCG}, s{sCF}, 8")
    a(f"s_add_u32 s{sCG}, s{sCG}, s{T3}")
    a(f"s_cmp_eq_u32 s{sISS}, 0")
    a(f"s_cselect_b32 s{sISS}, 1, 0")
    a(f"s_cselect_b32 s{sCG}, {OOB}, s{sCG}")
    a("v_lshrrev_b32 v1, 3, v0")
    a("v_and_b32 v2, 7, v0")
    a(f"v_add_u32 v3, s{T2}, v1")
    a("v_bfe_u32 v3, v3, 1, 3")
    a("v_xor_b32 v3, v3, v2")
    a("v_lshlrev_b32 v3, 4, v3")
    a(f"v_lshl_add_u32 v{VXS}, v1, 10, v3")
    a("v_and_b32 v3, 2, v1")
    a("v_lshlrev_b32 v3, 1, v3")
    a("v_xor_b32 v3, v3, v2")
    a("v_lshlrev_b32 v3, 4, v3")
    a("v_mul_u32_u24 v4, 3072, v1")
    a(f"v_add_u32 v{VW0}, v4, v3")
    a("v_mul_u32_u24 v4, 3584, v1")
    a(f"v_add_u32 v{VW1}, v4, v3")
    a(f"v_xor_b32 v{VW3}, 32, v{VW1}")
    for r_, sz in ((S_X, 2097152), (S_W0, 1572864), (S_W1, 1835008), (S_W3, 1835008)):
        a(f"s_mov_b32 s{r_ + 2}, {sz}")
        a(f"s_mov_b32 s{r_ + 3}, 0x00020000")
    a("s_waitcnt lgkmcnt(0)")
    for r_, p_ in ((S_X, pX), (S_W0, pWQKV), (S_W1, pG), (S_W3, pU)):
        a(f"s_mov_b64 s[{r_}:{r_ + 1}], s[{p_}:{p_ + 1}]")
    a(f"s_cmp_eq_u32 s{sISS}, 1")
    a("s_cbranch_scc1 L_nod0")
    a(dma(0))
    if "tlb" in OPT:
        a("s_branch L_nod1")
    a("L_nod0:")
    if "tlb" in OPT:
        a(f"s_and_b32 s{T0}, s{sRB}, 3")
        a(f"s_lshl2_add_u32 s{T0}, s{sW}, s{T0}")
        a(f"s_sub_u32 s{T1}, s{T0}, 4")
        a(f"s_min_u32 s{T1}, s{T1}, 10")
        a(f"s_lshl_b32 s{T1}, s{T1}, 21")
        a(f"s_add_u32 s40, s{pWS}, s{T1}")
        a(f"s_addc_u32 s41, s{pWS + 1}, 0")
        for i, p_ in ((0, pG), (1, pU), (2, pWQKV), (3, pDBG), (15, pWD), (16, pWO), (17, pOUT)):
            a(f"s_cmp_eq_u32 s{T0}, {i}")
            a(f"s_cselect_b64 s[40:41], s[{p_}:{p_ + 1}], s[40:41]")
        a("v_mov_b32 v3, 0")
        a("s_mov_b64 exec, 1")
        a(f"global_load_dword v{STV}, v3, s[40:41] offset:192 sc1")
        a("s_mov_b64 exec, -1")
        a("L_nod1:")
    a(f"v_lshlrev_b32 v{L16}, 4, v0")
    a(f"s_and_b32 s{sTT}, s{sW}, 3")
    a(f"s_lshr_b32 s{sHF}, s{sW}, 2")
    a(f"s_mov_b32 s{sCNT}, {WS_CNT}")
    srd(a, S_WS, pWS, WS_SIZE)
    a(f"s_lshl2_add_u32 s{sT}, s{sRB}, s{sTT}")
    a(f"s_mul_i32 s{sG}, s{sCB}, 3")
    a(f"s_lshl1_add_u32 s{sG}, s{sHF}, s{sG}")
    a(f"s_cmp_ge_u32 s{sG}, 32")
    a(f"s_cselect_b32 s{sVAR}, 2, 0")
    a(f"s_add_u32 s{sVAR}, s{sVAR}, s{sHF}")
    a(f"s_lshl_b32 s{sG}, s{sG}, 1")
    a(f"s_lshr_b32 s{T1}, s2, 3")
    a(f"s_and_b32 s{T2}, s{T1}, 3")
    a(f"s_lshl2_add_u32 s{tHEAD}, s{sXCD}, s{T2}")
    a(f"s_lshr_b32 s{tQB}, s{T1}, 2")
    if "pws" in OPT:
        a(f"s_lshl1_add_u32 s{sQT}, s{sTT}, s{sHF}")
        a(f"s_lshl3_add_u32 s{sQT}, s{tQB}, s{sQT}")
    else:
        a(f"s_lshl3_add_u32 s{sQT}, s{tQB}, s{sW}")
    a(f"s_lshl_b32 s{sKV}, s{tHEAD}, 16")
    a(f"s_add_u32 s{sKV}, s{sKV}, s{sLW}")
    a(f"s_add_u32 s{sKV}, s{sKV}, {32 << 16}")
    t4, t6, t7 = WF, WF + 1, WF + 2
    a("v_and_b32 v1, 31, v0")
    a("v_lshrrev_b32 v2, 5, v0")
    a("v_bfe_u32 v3, v0, 1, 3")
    a("v_xor_b32 v3, v3, v2")
    a("v_lshlrev_b32 v3, 4, v3")
    a("v_lshl_add_u32 v3, v1, 7, v3")
    a(f"s_lshl_b32 s{T0}, s{sTT}, 12")
    a(f"v_add_u32 v{XA}, s{T0}, v3")
    for i in range(1, 4):
        a(f"v_xor_b32 v{XA + i}, {32 * i}, v{XA}")
    a("v_bfe_u32 v3, v0, 2, 2")
    a(f"v_lshl_add_u32 v{t4}, v2, 3, v3")
    a(f"v_lshlrev_b32 v{t4}, 7, v{t4}")
    a(f"v_and_b32 v{t7}, 3, v0")
    a(f"v_lshl_add_u32 v{t4}, v{t7}, 3, v{t4}")
    a("v_and_b32 v3, 2, v3")
    a(f"v_bfe_u32 v{t7}, v0, 4, 1")
    a(f"v_xor_b32 v3, v3, v{t7}")
    a(f"s_and_b32 s{T0}, s{sCB}, 1")
    a(f"s_lshl1_add_u32 s{T0}, s{sHF}, s{T0}")
    for t in range(2):
        a(f"s_and_b32 s{T1}, s{T0}, 1")
        a(f"s_lshl_b32 s{T1}, s{T1}, 1")
        a(f"s_lshr_b32 s{T2}, s{T0}, 1")
        a(f"s_lshl_b32 s{T2}, s{T2}, 13")
        a(f"s_add_u32 s{T2}, s{T2}, {BR}")
        a(f"v_xor_b32 v{t6}, s{T1}, v3")
        a(f"v_lshl_add_u32 v{t6}, v{t6}, 5, v{t4}")
        a(f"v_add_u32 v{WQ + t}, s{T2}, v{t6}")
        if t == 0:
            a(f"s_add_u32 s{T0}, s{T0}, 1")
    a(f"v_lshl_add_u32 v{t4}, v{t7}, 13, v{t4}")
    a(f"v_add_u32 v{t4}, {CR}, v{t4}")
    a(f"s_lshl_b32 s{T0}, s{sHF}, 1")
    a(f"v_xor_b32 v{t6}, s{T0}, v3")
    a(f"v_lshl_add_u32 v{WC}, v{t6}, 5, v{t4}")
    a(f"v_xor_b32 v{WC + 1}, 32, v{WC}")
    a(f"v_mov_b32 v{MASK}, 0xffff0000")
    a(f"v_mov_b32 v{ONES}, 0x3f80")
    a(f"s_cmp_eq_u32 s{sISS}, 1")
    a("s_cbranch_scc1 L_side1")
    a([f"s_lshl_b32 s{T0}, s{sW}, 8", f"s_or_b32 s{T0}, s2, s{T0}", f"s_cmp_lg_u32 s{T0}, 32", "s_cbranch_scc1 L_nozero",
       "v_mov_b32 v1, 0", "v_lshlrev_b32 v2, 8, v0", f"buffer_store_dword v1, v2, {sr(S_WS)}, s{sCNT} offen sc1",
       "v_add_u32 v2, 0x4000, v2", f"buffer_store_dword v1, v2, {sr(S_WS)}, s{sCNT} offen sc1"] +
      ([f"buffer_store_dword v1, v2, {sr(S_WS)}, s{sCNT} offen offset:128 sc1", "v_add_u32 v2, 0x4000, v2",
        f"buffer_store_dword v1, v2, {sr(S_WS)}, s{sCNT} offen sc1",
        f"buffer_store_dword v1, v2, {sr(S_WS)}, s{sCNT} offen offset:128 sc1"] if ("rep" in OPT or "pws" in OPT) else []) + ["L_nozero:"])
    a(dma(1))
    stamp(a, 1)
    for v in range(1, 4):
        a(f"s_cmp_eq_u32 s{sVAR}, {v}")
        a(f"s_cbranch_scc1 L_p1_{v}")
    XOP, RS = XA, 22
    CL, RU, ta, tb, tc = 224, 232, 240, 241, 242
    cs_loads = [[f"s_bitcmp1_b32 s{sRB}, 1", f"s_cselect_b32 s{S_T}, s{pU}, s{pG}", f"s_cselect_b32 s{S_T + 1}, s{pU + 1}, s{pG + 1}",
                 f"s_mov_b32 s{S_T + 2}, 1835008", f"s_mov_b32 s{S_T + 3}, 0x00020000",
                 f"s_add_u32 s{T2}, s{sROT}, {CSO}", f"s_lshl2_add_u32 s{T2}, s{T2}, s{sW}", f"s_and_b32 s{T2}, s{T2}, 31",
                 f"s_mul_i32 s{T2}, s{T2}, {16 * 3584}",
                 f"s_and_b32 s{T3}, s{sRB}, 1", f"s_lshl1_add_u32 s{T3}, s{sCF}, s{T3}", f"s_lshl_b32 s{T3}, s{T3}, 7", f"s_add_u32 s{T2}, s{T2}, s{T3}",
                 f"v_lshrrev_b32 v{ta}, 3, v0", f"v_mul_u32_u24 v{ta}, 3584, v{ta}", f"v_and_b32 v{tb}, 7, v0", f"v_lshl_add_u32 v{ta}, v{tb}, 4, v{ta}",
                 f"buffer_load_dwordx4 {vr(CL, 4)}, v{ta}, {sr(S_T)}, s{T2} offen"],
                [f"s_add_u32 s{T2}, s{T2}, {8 * 3584}", f"buffer_load_dwordx4 {vr(CL + 4, 4)}, v{ta}, {sr(S_T)}, s{T2} offen"]]
    SE, DD, RV = 244, 248, 224
    sel = [f"v_and_b32 v{tb}, 15, v0", f"v_and_b32 v{tc}, 1, v0", f"v_lshlrev_b32 v{tc}, 4, v{tc}", f"v_lshlrev_b32 v{tc}, v{tc}, v{ONES}",
           f"v_lshrrev_b32 v{tb}, 1, v{tb}"]
    for i in range(4):
        sel += [[f"v_cmp_eq_u32 vcc, {i}, v{tb}", "s_nop 1", f"v_cndmask_b32 v{SE + i}, 0, v{tc}, vcc"]]
    m16 = lambda c, b_: f"v_mfma_f32_16x16x32_bf16 {vr(DD, 4)}, {vr(SE, 4)}, {vr(b_, 4)}, {c}"
    csv = {8: sel[:5], 9: sel[5:],
           10: [f"v_and_b32 v{tb}, 15, v0", f"v_lshlrev_b32 v{tb}, 5, v{tb}", f"v_lshrrev_b32 v{tc}, 4, v0", f"v_lshl_add_u32 v{tb}, v{tc}, 4, v{tb}",
               [f"s_lshl_b32 s40, s2, 12", f"s_add_u32 s40, s40, {WS_CP}", f"s_lshl_b32 s41, s{sW}, 9", "s_add_u32 s41, s41, s40"]]}
    cs_mm = [m16("0", CL), m16(vr(DD, 4), CL + 4)]
    cs_st = ["s_mov_b32 exec_hi, 0", f"buffer_store_dwordx4 {vr(DD, 4)}, v{tb}, {sr(S_WS)}, s41 offen" + (" sc1" if "csw" in OPT else ""), "s_mov_b32 exec_hi, -1"]
    cs_l2 = lambda lb: ([f"s_cmp_lg_u32 s{sW}, 0", f"s_cbranch_scc1 {lb}"] +
                        [f"buffer_load_dwordx4 {vr(RV + 4 * i, 4)}, v{L16}, {sr(S_WS)}, s40 offen offset:{1024 * i} sc1" for i in range(4)] + [f"{lb}:"])
    cs_r2 = lambda lb: ([f"s_cmp_lg_u32 s{sW}, 0", f"s_cbranch_scc1 {lb}"] +
                        [f"v_add_f32 v{RV + i}, v{RV + i}, v{RV + 8 + i}" for i in range(8)] +
                        [f"v_add_f32 v{RV + i}, v{RV + i}, v{RV + 4 + i}" for i in range(4)] +
                        [f"v_and_b32 v{ta}, 15, v0", f"v_lshrrev_b32 v{tc}, 4, v0",
                         f"v_permlane16_swap_b32 v{RV}, v{RV + 1}", f"v_permlane16_swap_b32 v{RV + 2}, v{RV + 3}",
                         f"v_add_f32 v{RV}, v{RV}, v{RV + 1}", f"v_add_f32 v{RV + 2}, v{RV + 2}, v{RV + 3}",
                         f"v_lshl_add_u32 v{ta}, v{ta}, 2, v{tc}", f"v_lshlrev_b32 v{ta}, 2, v{ta}",
                         f"v_permlane32_swap_b32 v{RV}, v{RV + 2}", f"v_add_f32 v{RV}, v{RV}, v{RV + 2}",
                         f"s_bfe_u32 s40, s{sRB}, 0x10001", "s_mul_i32 s40, s40, 28", f"s_and_b32 s41, s{sRB}, 1", "s_add_u32 s40, s40, s41",
                         f"s_lshl1_add_u32 s40, s{sCF}, s40", f"s_lshr_b32 s41, s{sRB}, 2", "s_lshl2_add_u32 s40, s40, s41",
                         "s_lshl_b32 s40, s40, 8", f"s_add_u32 s40, s40, {WS_CS}",
                         f"buffer_store_dword v{RV}, v{ta}, {sr(S_WS)}, s40 offen sc1", f"{lb}:"])
    for var in VARS:
        hf, isv, ffn = var & 1, (var >> 1) & 1, var < 4
        nt = 2 - hf
        cnt = lambda S: len(dma(S, ffn))
        a(f"L_p1_{var}:")
        if ffn and "cse" in OPT:
            a(cs_loads)
        a(f"s_waitcnt vmcnt({cnt(1) + (2 if (ffn and 'cse' in OPT) else 0)})")
        a("s_barrier")
        stamp(a, 2)
        if var == 0:
            a([f"s_lshl_b32 s{T0}, s{sW}, 8", f"s_or_b32 s{T0}, s2, s{T0}", f"s_cmp_lg_u32 s{T0}, 32", "s_cbranch_scc1 L_noflag",
               "v_mov_b32 v2, 0", "v_mov_b32 v3, 1", "s_mov_b64 exec, 1",
               f"global_store_dword v2, v3, s[{pDBG}:{pDBG + 1}] offset:32 sc1", "s_mov_b64 exec, -1", "L_noflag:"])
        a(rd1(0, nt, ffn))
        a(rd1(1, nt, ffn))
        bgq = dma(2, ffn)
        if ffn and "cs1" in OPT:
            bgq = cs_loads + bgq
        held = []
        sl7 = (7 % 3) * SL
        qrd = lambda h: [f"ds_read_b64_tr_b16 {vr(WF + 16 * h + 8 * q + 4 * t + 2 * t2, 2)}, v{WQ + t} offset:{sl7 + (2 * h + q) * 2048 + t2 * 512}"
                         for q in range(2) for t in range(nt) for t2 in range(2)]
        frd = lambda h: [f"ds_read_b64_tr_b16 {vr(WF + 16 * h + 8 * q + 4 * c + 2 * t2, 2)}, v{WC + c} offset:{sl7 + (2 * h + q) * 2048 + t2 * 512}"
                         for q in range(2) for c in range(2) for t2 in range(2)]
        CK = 5 if ffn else 6
        prep = [f"v_lshlrev_b32 v2, 16, v{STV}", f"v_rcp_f32 v{RS}, v2"]
        for t in range(nt):
            w = CSA + 4 * t
            prep += [f"v_add_f32 v{w}, v{w}, v{w + 1}", f"v_add_f32 v{w + 2}, v{w + 2}, v{w + 3}", f"v_add_f32 v{w + 3}, v{w}, v{w + 2}"] + split3(w, w + 3)
        for k in range(28 if ffn else 32):
            S, ks = k >> 2, k & 3
            F = fset(k, ffn)
            x = XF + 4 * k
            c0 = "0" if k == 0 else None
            big = [mfma(ACQ + 16 * t, x, F + 4 * t, c0) if isv else mfma(ACQ + 16 * t, F + 4 * t, x, c0) for t in range(nt)]
            light = not ffn or k < 8
            if not light:
                big += [mfma(ACF + 16 * c, F + 8 + 4 * c, x - 32, "0" if k == 8 else None) for c in range(2)]
            if light and k % 2 == 0 and k < 30:
                held = big
                continue
            big, held = held + big, []
            val = []
            if ks == 3:
                n = cnt(S + 2) + ({(0 if ('cse' in OPT or 'cs1' in OPT) else 1): 2}.get(S, 0) if ffn else 0)
                a(f"s_waitcnt vmcnt({n}) lgkmcnt(0)")
                if S == CK and not hf: a(cs_check(f"L_c1{var}", 0))
                if S < 7: a("s_barrier")
                if "p1b" in OPT: stamp(a, 4 + S)
                if ffn and S == 2:
                    big = cs_mm + big
                    bgq.append(cs_st)
                if ffn and S == 3 and not hf: bgq.append(cs_l2(f"L_l2{var}"))
                if ffn and S == 4 and not hf: bgq.append(cs_r2(f"L_r2{var}"))
                if S == 3 and not hf:
                    bgq.append([f"s_cmp_lg_u32 s{sW}, 0", f"s_cbranch_scc1 L_nofl{var}", "v_mov_b32 v2, 0",
                                f"global_load_dword v{POLL}, v2, s[{pDBG}:{pDBG + 1}] offset:32 sc1", f"L_nofl{var}:"])
                if S == CK - 1 and not hf:
                    bgq.append(flag_check(f"L_fc{var}") + cs_issue(f"L_i1{var}", 0))
                if S == 5 and ffn and not hf:
                    bgq.append(sig_one(f"L_sc{var}", [f"s_add_u32 s{T0}, s{sCF}, {C_CS}"]))
                if S == 5:
                    ad = [f"v_and_b32 v{VXS}, 31, v0", f"v_lshlrev_b32 v{VXS}, 2, v{VXS}", "v_lshrrev_b32 v3, 5, v0",
                          f"v_lshl_add_u32 v{VW0}, v3, 10, v{VXS}", f"s_lshl_b32 s{T2}, s{sT}, 7", f"s_add_u32 s{T2}, s{T2}, {WS_ST}"]
                    for t in range(nt):
                        ad += [f"s_add_u32 s{T3}, s{sG}, {2 * t}", f"s_lshr_b32 s{40 + t}, s{T3}, 2", f"s_lshl_b32 s{40 + t}, s{40 + t}, 11",
                               f"s_and_b32 s{T3}, s{T3}, 2", f"s_lshl_b32 s{T3}, s{T3}, 6", f"s_add_u32 s{40 + t}, s{40 + t}, s{T3}",
                               f"s_add_u32 s{40 + t}, s{40 + t}, {WS_CQ}"]
                    bgq.append(ad)
                if S == CK:
                    ld = [f"buffer_load_dword v{STV}, v{VXS}, {sr(S_WS)}, s{T2} offen sc1"]
                    for t in range(nt):
                        ld += [f"buffer_load_dword v{CSA + 4 * t + i}, v{VW0}, {sr(S_WS)}, s{40 + t} offen offset:{256 * i} sc1" for i in range(4)]
                    if isv:
                        ld += [f"s_lshl_b32 s{T3}, s{sW}, 8", f"s_add_u32 m0, s{T3}, {SCR}", f"s_add_u32 s{T2}, s{T2}, {WS_RS - WS_ST}",
                               f"buffer_load_dword v{VXS}, {sr(S_WS)}, s{T2} offen sc1 lds"]
                    bgq += [ld[:5], ld[5:]]
                if S == 6 and ffn:
                    if not hf: bgq.append(poll_issue(f"L_i2{var}", CS_MASK))
                    val = prep
                if S < 7: bgq += dma(S + 3, ffn)
                if S == 0 and ffn and "cse" not in OPT and "cs1" not in OPT: bgq += cs_loads
                if S == 5 and isv:
                    bgq.append([f"s_lshl_b32 s{T3}, s{sW}, 8", f"s_add_u32 s{T3}, s{T3}, {SCR}",
                                "v_lshrrev_b32 v3, 5, v0", "v_lshlrev_b32 v18, 4, v3", f"v_add_u32 v18, s{T3}, v18",
                                "v_bfe_u32 v23, v0, 4, 1", "v_lshlrev_b32 v23, 16, v23", "v_lshl_add_u32 v23, v3, 8, v23",
                                "v_and_b32 v3, 15, v0", "v_lshl_add_u32 v23, v3, 4, v23"])
            elif k == 30:
                a("s_waitcnt vmcnt(0) lgkmcnt(0)")
                val = prep
            else:
                a("s_waitcnt lgkmcnt(0)")
            if k == 31:
                break
            if ffn and k in csv: val = csv[k]
            left = 4 if ks == 3 else 3 - ks
            if k == 27: left = 3
            if not ffn: left = 2 if (ks == 3 and S < 6) else 1
            if ffn and k < 7: left = 2 if ks == 3 else 1
            take = -(-len(bgq) // left)
            extra, bgq = bgq[:take], bgq[take:]
            if ffn and k >= 7:
                nxt = rd1(k + 1, nt, ffn) if k < 27 else \
                    [f"ds_read_b128 {vr(XF + 4 * (28 + j), 4)}, v{XA + j} offset:{sl7}" for j in range(4)] + qrd(0)
            else:
                nxt = [] if k == 30 else rd1(k + 1, nt, ffn) + rd1(k + 2, nt, ffn)
            body = spread(big, nxt, val + [[]] * len(extra) + extra)
            a(body)
        pre = [f"v_and_b32 v{XOP}, v{MASK}, v{STV}", f"v_mov_b32 v{XOP + 3}, 0", f"v_mov_b32 v{XOP + 1}, v{XOP}", f"v_mov_b32 v{XOP + 2}, v{XOP}"]
        corr = [mfma(ACQ + 16 * t, XOP, CSA + 4 * t) if isv else mfma(ACQ + 16 * t, CSA + 4 * t, XOP) for t in range(nt)]
        post = [f"s_lshl_b32 s{T4}, s{sG}, 16", f"s_lshl_b32 s{T2}, s{sT}, 10", f"s_add_u32 s{T4}, s{T4}, s{T2}"]

        def stores(t):
            o = ACQ + 16 * t
            if isv:
                return [[f"buffer_store_dwordx4 {vr(o, 4)}, v23, {sr(S_WS)}, s{T4} offen sc1"],
                        [f"buffer_store_dwordx4 {vr(o + 4, 4)}, v23, {sr(S_WS)}, s{T4} offen offset:512 sc1", f"s_add_u32 s{T4}, s{T4}, 0x20000"]]
            return [[f"buffer_store_dwordx4 {vr(o, 4)}, v{L16}, {sr(S_WS)}, s{T4} offen sc1", f"s_add_u32 s{T4}, s{T4}, 0x10000"],
                    [f"buffer_store_dwordx4 {vr(o + 4, 4)}, v{L16}, {sr(S_WS)}, s{T4} offen sc1", f"s_add_u32 s{T4}, s{T4}, 0x10000"]]
        if not ffn:
            assert not bgq
            stamp(a, 3)
            a(big[:1] + pre + ["s_nop 1"] + big[1:nt] + corr + post + ["s_nop 7"])
            for t in range(nt):
                ac = ACQ + 16 * t
                a(f"s_cmp_lt_u32 s{sG}, {32 - 2 * t}")
                a(f"s_cselect_b32 s{T0}, {hx(f2u(QSCALE))}, 1.0")
                a(f"v_mul_f32 v2, s{T0}, v{RS}")
                a(f"v_mul_f32 v3, s{T0}, v{RS}")
                for i in range(8):
                    a(f"v_pk_mul_f32 {vr(ac + 2 * i, 2)}, {vr(ac + 2 * i, 2)}, v[2:3]")
                for i in range(8):
                    a(f"v_cvt_pk_bf16_f32 v{ac + i}, v{ac + 2 * i}, v{ac + 2 * i + 1}")
                a(stores(t))
            stamp(a, 4)
            a("s_branch L_side")
            continue
        qm = lambda h: [mfma(ACQ + 16 * t, XF + 4 * (28 + 2 * h + q), WF + 16 * h + 8 * q + 4 * t) if isv else
                        mfma(ACQ + 16 * t, WF + 16 * h + 8 * q + 4 * t, XF + 4 * (28 + 2 * h + q)) for q in range(2) for t in range(nt)]
        fm = lambda h: [mfma(ACF + 16 * c, WF + 16 * h + 8 * q + 4 * c, XF + 4 * (20 + 2 * h + q)) for q in range(2) for c in range(2)]
        half = -(-len(bgq) // 2)
        a("s_waitcnt lgkmcnt(0)")
        a(spread(qm(0), qrd(1), pre + bgq[:half]))
        a("s_waitcnt lgkmcnt(0)")
        rsv = lambda g: [f"ds_read_b128 {vr(CSA + 4 * j, 4)}, v18 offset:{(2 * g + j) * 32}" for j in range(2)]
        a(corr + (rsv(0) if isv else []))
        a(spread(qm(1), frd(0), [f"v_subrev_u32 v{WQ + c}, {CR - BR}, v{WC + c}" for c in range(2)] + bgq[half:]))
        adr = [["v_bfe_u32 v2, v0, 4, 1", "v_mul_u32_u24 v2, 28672, v2", "v_lshrrev_b32 v3, 5, v0",
                "v_lshl_add_u32 v2, v3, 9, v2", "v_and_b32 v3, 15, v0", f"v_lshl_add_u32 v{VXS}, v3, 2, v2",
                f"s_lshl_b32 s{sVAR}, s{sCF}, 11", f"s_add_u32 s{sVAR}, s{sVAR}, {WS_CS + 128 * hf}"] + post]
        if isv:
            e1, e2 = [], []
            for t in range(nt):
                ac = ACQ + 16 * t
                e1 += [f"v_mul_f32 v{ac + i}, v{ac + i}, v{CSA + i}" for i in range(8)]
                e2 += [f"v_mul_f32 v{ac + 8 + i}, v{ac + 8 + i}, v{CSA + i}" for i in range(8)]
                e2 += [f"v_cvt_pk_bf16_f32 v{ac + i}, v{ac + 2 * i}, v{ac + 2 * i + 1}" for i in range(4, 8)]
            e1 += rsv(1)
            for t in range(nt):
                ac = ACQ + 16 * t
                e1 += [f"v_cvt_pk_bf16_f32 v{ac + i}, v{ac + 2 * i}, v{ac + 2 * i + 1}" for i in range(4)]
        else:
            e = []
            for t in range(nt):
                ac = ACQ + 16 * t
                e += [[f"s_cmp_lt_u32 s{sG}, {32 - 2 * t}", f"s_cselect_b32 s{T0}, {hx(f2u(QSCALE))}, 1.0", f"v_mul_f32 v2, s{T0}, v{RS}"]]
                e += [f"v_mul_f32 v{ac + i}, v{ac + i}, v2" for i in range(16)]
                e += [f"v_cvt_pk_bf16_f32 v{ac + i}, v{ac + 2 * i}, v{ac + 2 * i + 1}" for i in range(8)]
            e1, e2 = e[:len(e) * 5 // 8], e[len(e) * 5 // 8:]
        a("s_waitcnt lgkmcnt(0)")
        u3 = spread(fm(0), frd(1), adr + e1)
        a(u3)
        a(f"s_waitcnt vmcnt({4 + nvm(u3)}) lgkmcnt(0)")
        if not hf: a(poll_check(f"L_c2{var}", 16))
        a("s_barrier")
        stamp(a, 3)
        c0l = [[f"buffer_load_dword v{r_}, v{VXS}, {sr(S_WS)}, s{sVAR} offen offset:{(i >> 1) * 64 + (i & 1) * 256} sc1"
                for i, r_ in enumerate(C0R)]]
        a(spread(fm(1), rd2(0), c0l + e2))
        for t in range(nt):
            a(stores(t))
        if var != 3:
            a("s_branch L_pass2")
    a("L_pass2:")
    if "p1b" in OPT: NOSTAMP = True
    stamp(a, 4)
    sH = sG
    a(f"s_mul_i32 s{sH}, s{sT}, 112")
    a(f"s_lshl2_add_u32 s{T0}, s{sCF}, s{sHF}")
    a(f"s_lshl1_add_u32 s{sH}, s{T0}, s{sH}")
    a(f"s_lshl_b32 s{sH}, s{sH}, 10")
    a(f"s_add_u32 s{sH}, s{sH}, {WS_H}")
    cRS, cSD, cC2, CO, QP = 22, 23, 19, 132, 140
    q = CSA

    def gelu_plain(g, off):
        u = g + 8
        R = range(8)
        return ([f"v_mul_f32 v{g + i}, v{g + i}, v{cRS}" for i in R] + [f"v_mul_f32 v{q + i}, v{g + i}, v{g + i}" for i in R] +
                [f"v_fmaak_f32 v{q + i}, v{q + i}, v{cC2}, {hx(f2u(GC1))}" for i in R] + [f"v_mul_f32 v{q + i}, v{q + i}, v{g + i}" for i in R] +
                [f"v_exp_f32 v{q + i}, v{q + i}" for i in R] + [f"v_mul_f32 v{g + i}, v{g + i}, v{u + i}" for i in R] +
                [f"v_fma_f32 v{q + i}, v{q + i}, v{cSD}, v{cSD}" for i in R] + [f"v_rcp_f32 v{q + i}, v{q + i}" for i in R] +
                [f"v_mul_f32 v{g + i}, v{g + i}, v{q + i}" for i in R] +
                [f"v_cvt_pk_bf16_f32 v{g + i}, v{g + 2 * i}, v{g + 2 * i + 1}" for i in range(4)] +
                [f"buffer_store_dwordx4 {vr(g, 4)}, v{L16}, {sr(S_WS)}, s{sH} offen offset:{off} sc1"])
    vq = []
    wt = lambda at: sum(2 if (x.startswith("v_exp") or x.startswith("v_rcp")) else 1 for x in ([at] if isinstance(at, str) else at))
    cs_ld = lambda dst, pr: [[f"buffer_load_dword v{dst + 4 * c + i}, v{VXS}, {sr(S_WS)}, s{sVAR} offen offset:{1024 * pr + c * 64 + i * 256} sc1"
                              for c in range(2) for i in range(2)]]
    ts = tr_setup()
    d = dma(10)
    bgq, hist = [ts[0], d[0], ts[1], d[1], d[2], d[3]], []
    after = lambda key: nvm([l for l in hist[len(hist) - hist[::-1].index(key):] if "s62" not in l])
    for v in range(20):
        S, us = 8 + (v >> 2), v & 3
        F = WF + 16 * (v & 1)
        acc, k0 = (ACF, 24 + 2 * v) if v < 4 else (ACQ, 2 * (v - 4))
        big = [mfma(acc + 16 * c, F + 8 * qq + 4 * c, XF + 4 * (k0 + qq), "0" if (v == 4 and qq == 0) else None)
               for qq in range(2) for c in range(2)]
        if us == 3:
            if S == 8:
                a([f"s_cmp_eq_u32 s{sHF}, 0", "s_cbranch_scc1 L_w8", "s_waitcnt vmcnt(6)", "L_w8:", "s_waitcnt vmcnt(8) lgkmcnt(0)"])
            elif S < 12:
                a(f"s_waitcnt vmcnt({after(dma(S + 1)[-1][0]) - 1}) lgkmcnt(0)")
            elif CHK == 11:
                a(f"s_waitcnt vmcnt({after(kv(0)[1][1]) - 1}) lgkmcnt(0)")
            else:
                a("s_waitcnt lgkmcnt(0)")
            if S == CHK:
                a([f"s_cmp_lg_u32 s{sW}, 0", "s_cbranch_scc1 L_w10", f"s_waitcnt vmcnt({after('L_pq:')})", "L_w10:"])
                a(poll_check("L_cq", 32, QP, 4))
            a("s_barrier")
            if "p2b" in OPT: stamp(a, S - 2)
            if S == 8:
                bgq += tr_dma() + dma(11)
                for c in range(2):
                    w = CSA + 4 * c
                    vq += [f"v_add_f32 v{w + 3}, v{C0R[2 * c]}, v{C0R[2 * c + 1]}"] + split3(w, w + 3)
                vq += ["UNIT", mfma(ACF, CSA, XOP), mfma(ACF + 16, CSA + 4, XOP),
                       f"v_lshlrev_b32 v{cSD}, 16, v{STV}", f"v_mov_b32 v{cC2}, {hx(f2u(GC2))}", "UNIT"]
                vq += (gelu_plain(ACF, 0) if NBG > 0 else []) + (gelu_plain(ACF + 16, 1024) if NBG > 1 else [])
            if S == 9:
                bgq += [sig_qkv("L_sq")] + cs_ld(CO, 1) + dma(12)
                bgq += [tr_addr(TRA, 2, 3) + [f"s_lshl_b32 s{T2}, s{sLW}, 1", f"v_add_u32 v{TRA}, s{T2}, v{TRA}", f"v_xor_b32 v{TRA + 1}, 32, v{TRA}"]]
            if S == 10:
                bgq += [tr_rd()]
            if S == CHK - 1:
                bgq += [[]] * (2 - len(bgq)) + [poll_issue("L_pq", QKV_MASK, QP)]
            if S == 11 and CHK == 11:
                bgq += kv(0) + kv(1) + [q_load()] + kv(2)
            if S == 12:
                bgq += kv(3) if CHK == 11 else kv(0) + [q_load()] + kv(1)
                if "prio" in OPT:
                    a("s_setprio 1")
                    a(lead(2))
        else:
            a("s_waitcnt lgkmcnt(0)")
        if v == 16:
            for c in range(2):
                w = CO + 4 * c
                vq += [f"v_add_f32 v{w + 3}, v{w}, v{w + 1}"] + split3(w, w + 3) + [["s_nop 1", mfma(ACQ + 16 * c, w, XOP)]]
            vq += p2_init_v()
        left = 1 if v == 19 else (4 if us == 3 else 3 - us)
        take = -(-len(bgq) // left)
        extra, bgq = bgq[:take], bgq[take:]
        val, budget = [], (1000 if v == 19 else VBUD)
        while vq and vq[0] != "UNIT" and budget > 0:
            budget -= wt(vq[0])
            val.append(vq.pop(0))
        if vq and vq[0] == "UNIT":
            vq.pop(0)
        body = spread(big, rd2(v + 1) if v < 19 else [], val[:len(val) // 2] + extra + val[len(val) // 2:])
        hist += body
        a(body)
    assert not bgq and not vq
    if "p2b" in OPT: NOSTAMP = True
    stamp(a, 5)
    RS2, SD2 = 240, 242
    a(f"v_mov_b32 v{RS2}, v{cRS}")
    a(f"v_mov_b32 v{RS2 + 1}, v{cRS}")
    a(f"v_mov_b32 v{SD2}, v{cSD}")
    a(f"v_mov_b32 v{SD2 + 1}, v{cSD}")
    a(f"v_mov_b32 v248, v{cC2}")
    a(f"v_mov_b32 v249, v{cC2}")
    a(f"v_mov_b32 v250, {hx(f2u(GC1))}")
    a("v_mov_b32 v251, v250")
    a("s_nop 5")
    for c in range(NBG - 2, 2):
        g = ACQ + 16 * c
        u = g + 8
        q = 32 + (c & 1) * 8
        o = 56 + c * 4
        if c == 0:
            a(f"s_add_u32 s{sH}, s{sH}, 4096")
        for i in range(4):
            a(f"v_pk_mul_f32 {vr(g + 2 * i, 2)}, {vr(g + 2 * i, 2)}, {vr(RS2, 2)}")
        for i in range(4):
            a(f"v_pk_mul_f32 {vr(q + 2 * i, 2)}, {vr(g + 2 * i, 2)}, {vr(g + 2 * i, 2)}")
        for i in range(4):
            a(f"v_pk_fma_f32 {vr(q + 2 * i, 2)}, {vr(q + 2 * i, 2)}, v[248:249], v[250:251]")
        for i in range(4):
            a(f"v_pk_mul_f32 {vr(q + 2 * i, 2)}, {vr(q + 2 * i, 2)}, {vr(g + 2 * i, 2)}")
        for i in range(8):
            a(f"v_exp_f32 v{q + i}, v{q + i}")
        for i in range(4):
            a(f"v_pk_mul_f32 {vr(g + 2 * i, 2)}, {vr(g + 2 * i, 2)}, {vr(u + 2 * i, 2)}")
        for i in range(4):
            a(f"v_pk_fma_f32 {vr(q + 2 * i, 2)}, {vr(q + 2 * i, 2)}, {vr(SD2, 2)}, {vr(SD2, 2)}")
        for i in range(8):
            a(f"v_rcp_f32 v{q + i}, v{q + i}")
        a("s_nop 0")
        for i in range(4):
            a(f"v_pk_mul_f32 {vr(g + 2 * i, 2)}, {vr(g + 2 * i, 2)}, {vr(q + 2 * i, 2)}")
        for i in range(4):
            a(f"v_cvt_pk_bf16_f32 v{o + i}, v{g + 2 * i}, v{g + 2 * i + 1}")
        a(f"buffer_store_dwordx4 {vr(o, 4)}, v{L16}, {sr(S_WS)}, s{sH} offen offset:{(c & 1) * 1024} sc1")
        if CHK == 12 and c >= 0:
            a(kv(2 + c))
        if c == 0:
            a(lead(0))
    a(tr_st())
    a(sent_store(152, L16))
    a(f"s_waitcnt vmcnt({after(q_load()[-1]) + (4 if CHK == 11 else 8) + 2 - NBG + (1 if 'sen' in OPT else 0)})")
    if CHK == 12:
        a("s_barrier")


VARS = (0, 4, 5, 1, 2, 3)
VBUD = 15
NBG = 2
OSL = 2
CSO = 2
WK = 8
C0R = (9, 19, 21, 1)
SIGU, CHK = 7, 11


def gen_side(a):
    a("L_side:")
    global NOSTAMP
    NOSTAMP = "side" not in OPT
    a(p2_init_v())
    a(sent_store(152, L16))
    a("s_waitcnt vmcnt(0)")
    a("s_barrier")
    a(sig_qkv("L_sq2"))
    stamp(a, 10)
    a(sig_one("L_h_ns2", [f"s_add_u32 s{T0}, s{sRB}, {C_H}"]))
    a(poll_issue("L_pq2", QKV_MASK))
    a("s_waitcnt vmcnt(0)")
    a(poll_check("L_cq2", 32, POLL, 6))
    a("s_barrier")
    a(kv(0))
    a(q_load())
    a(kv(1))
    a("s_waitcnt vmcnt(2)")
    a("s_barrier")
    a(kv(2))
    a(kv(3))
    if "prio" in OPT:
        a("s_setprio 1")
        a(lead(2))
    a("s_branch L_p2")
    a("L_side1:")
    XW, QW, CW = 32, 64, 128
    LO, HI, ON = 18, 19, 22
    a("v_lshrrev_b32 v1, 3, v0")
    a("v_and_b32 v2, 7, v0")
    a("v_lshlrev_b32 v2, 4, v2")
    a("v_lshl_add_u32 v3, v1, 10, v2")
    a(f"s_lshl3_add_u32 s{tVM + 1}, s2, s{sW}")
    a(f"s_lshl_b32 s{T0}, s{tVM + 1}, 13")
    for q in range(8):
        a(f"buffer_load_dwordx4 {vr(XW + 4 * q, 4)}, v3, {sr(S_X)}, s{T0} offen offset:{128 * q}")
    sU = sVAR
    a(f"s_and_b32 s{sU}, s{sRB}, 3")
    a(f"s_lshl3_add_u32 s{sU}, s{sU}, s{sW}")
    a(f"s_sub_u32 s{T1}, 31, s{sU}")
    a(f"s_lshl3_add_u32 s41, s{T1}, s{sXCD}")
    a("s_lshl_b32 s41, s41, 8")
    a(f"s_add_u32 s41, s41, {WS_CQ}")
    a(f"s_lshl_b32 s{T0}, s{T1}, 7")
    a(f"s_mul_i32 s{T2}, s{sXCD}, {64 * 3072}")
    a(f"s_add_u32 s{T0}, s{T0}, s{T2}")
    a(f"s_cmp_lt_u32 s{T1}, 24")
    a(f"s_cselect_b32 s{T0}, s{T0}, {OOB}")
    a(f"s_cselect_b32 s41, s41, {OOB}")
    a("v_mul_u32_u24 v3, 3072, v1")
    a("v_add_u32 v3, v3, v2")
    for q in range(8):
        a(f"buffer_load_dwordx4 {vr(QW + 4 * q, 4)}, v3, {sr(S_W0)}, s{T0} offen")
        if q != 7:
            a(f"s_add_u32 s{T0}, s{T0}, {8 * 3072}")
    a(f"v_mov_b32 v{LO}, 0x00003f80")
    a(f"v_mov_b32 v{HI}, 0x3f800000")
    a(f"v_mov_b32 v{ON}, 0x3f803f80")
    RU = 96
    for i in range(0, 28, 2):
        a(f"v_mov_b64 v[{RU + i}:{RU + i + 1}], 0")
    a(["v_and_b32 v2, 8, v0", "v_cmp_eq_u32 vcc, 0, v2", f"v_and_b32 v{POLL}, 7, v0", f"v_lshlrev_b32 v{POLL}, 3, v{POLL}",
       "v_lshrrev_b32 v3, 4, v0", f"v_add_u32 v{POLL}, v{POLL}, v3", "v_lshrrev_b32 v2, 1, v2", f"v_add_u32 v{POLL}, v{POLL}, v2",
       f"v_lshlrev_b32 v{POLL}, 2, v{POLL}"])
    stamp(a, 8)
    m, v_ = RU + 24, RU + 25
    for q in range(8):
        a(f"s_waitcnt vmcnt({15 - q})")
        for i in range(4):
            a(f"v_dot2c_f32_bf16 v{m + 2 * (i & 1)}, v{XW + 4 * q + i}, v{ON}")
            a(f"v_dot2c_f32_bf16 v{v_ + 2 * (i & 1)}, v{XW + 4 * q + i}, v{XW + 4 * q + i}")
    a("s_nop 2")
    a(f"v_add_f32 v{m}, v{m}, v{m + 2}")
    a(f"v_add_f32 v{v_}, v{v_}, v{v_ + 2}")
    for md in ("quad_perm:[1,0,3,2]", "quad_perm:[2,3,0,1]", "row_half_mirror"):
        a("s_nop 0")
        a(f"v_add_f32_dpp v{m}, v{m}, v{m} {md} row_mask:0xf bank_mask:0xf")
        a(f"v_add_f32_dpp v{v_}, v{v_}, v{v_} {md} row_mask:0xf bank_mask:0xf")
    a([f"v_mul_f32 v{m}, {hx(f2u(-1.0 / 512))}, v{m}", f"v_mul_f32 v{v_}, {hx(f2u(1.0 / 512))}, v{v_}",
       f"v_fma_f32 v{v_}, -v{m}, v{m}, v{v_}", f"v_max_f32 v{v_}, 0, v{v_}",
       f"v_cvt_pk_bf16_f32 v{v_}, v{v_}, v{v_}", f"v_and_b32 v{v_}, v{MASK}, v{v_}",
       f"v_add_f32 v{v_}, {hx(f2u(1e-5))}, v{v_}",
       f"v_cvt_pk_bf16_f32 v{v_}, v{v_}, v{v_}", f"v_and_b32 v{v_}, v{MASK}, v{v_}",
       f"v_sqrt_f32 v{v_}, v{v_}", "v_lshlrev_b32 v1, 2, v1",
       f"v_cvt_pk_bf16_f32 v{m}, v{v_}, v{m}",
       f"v_lshlrev_b32 v{v_}, 16, v{m}", f"v_rcp_f32 v{v_}, v{v_}",
       f"s_lshl_b32 s{T0}, s{tVM + 1}, 5", f"s_add_u32 s{T0}, s{T0}, {WS_ST}", f"s_add_u32 s{T1}, s{T0}, {WS_RS - WS_ST}",
       f"s_mov_b32 exec_lo, 0x01010101", "s_mov_b32 exec_hi, 0x01010101",
       f"buffer_store_dword v{m}, v1, {sr(S_WS)}, s{T0} offen sc1",
       f"buffer_store_dword v{v_}, v1, {sr(S_WS)}, s{T1} offen sc1", "s_mov_b64 exec, -1"])

    def colsum(src, n, acc, behind):
        for q in range(n):
            a(f"s_waitcnt vmcnt({n - 1 - q + behind})")
            for i in range(4):
                a(f"v_dot2c_f32_bf16 v{acc + 2 * i}, v{src + 4 * q + i}, v{LO}")
                a(f"v_dot2c_f32_bf16 v{acc + 2 * i + 1}, v{src + 4 * q + i}, v{HI}")
        a("s_nop 2")
        for i in range(4):
            a(f"v_permlane16_swap_b32 v{acc + 2 * i}, v{acc + 2 * i + 1}")
        for i in range(4):
            a(f"v_add_f32 v{acc + 2 * i}, v{acc + 2 * i}, v{acc + 2 * i + 1}")
        a(["s_nop 1", f"v_permlane32_swap_b32 v{acc}, v{acc + 2}", f"v_permlane32_swap_b32 v{acc + 4}, v{acc + 6}",
           f"v_add_f32 v{acc}, v{acc}, v{acc + 2}", f"v_add_f32 v{acc + 4}, v{acc + 4}, v{acc + 6}", "s_nop 1",
           f"v_add_f32_dpp v{acc}, v{acc}, v{acc} row_ror:8 row_mask:0xf bank_mask:0xf",
           f"v_add_f32_dpp v{acc + 4}, v{acc + 4}, v{acc + 4} row_ror:8 row_mask:0xf bank_mask:0xf",
           f"v_cndmask_b32 v{acc + 1}, v{acc + 4}, v{acc}, vcc"])
    colsum(QW, 8, RU, 2)
    a(f"buffer_store_dword v{RU + 1}, v{POLL}, {sr(S_WS)}, s41 offen sc1")
    a(dma(0, False))
    a("s_waitcnt vmcnt(4)")
    a("s_barrier")
    a(cs_signal("L_scs0", 0))
    stamp(a, 12)
    a(dma(1, False))
    stamp(a, 9)
    a(f"s_cmp_eq_u32 s{sHF}, 0")
    a("s_cbranch_scc1 L_p1_4")
    a("s_branch L_p1_5")


def att_step(i, ex=None, first=False):
    ex = ex or {}
    Sc, Sn = (S0, S1) if i % 2 == 0 else (S1, S0)
    Kn = K_ + 4 * ((i + 1) % 2)
    Vc = V_ + 8 * (i % 4)
    Vp = V_ + 8 * ((i - 1) % 4)
    e = lambda k: f"v_exp_f32 v{Sc + k}, v{Sc + k}"
    c = lambda k: f"v_cvt_pk_bf16_f32 v{P_ + k}, v{Sc + 2 * k}, v{Sc + 2 * k + 1}"
    r = [mfma(Sn, Kn, Q_, NM),
         f"ds_read_b128 {vr(Kn, 4)}, v{AK} offset:{(i + 3) * 2048}"]
    r += ex.get("qk", [])
    r += [e(0), e(1), e(2), e(3)]
    if not first:
        r.append(mfma(O_, Vp + 4, P_ + 4))
    if i % 2 == 0:
        r.append(f"s_mov_b64 exec, s[{tVM}:{tVM + 1}]")
        for d in (2, 3):
            vb = V_ + 8 * ((i + d) % 4)
            r.append(f"ds_read_b128 {vr(vb, 4)}, v{AV} offset:{(i + d) * 2048}")
            r.append(f"ds_read_b128 {vr(vb + 4, 4)}, v{AV} offset:{(i + d) * 2048 + 512}")
        r.append("s_mov_b64 exec, -1")
    r += ex.get("pv1", [])
    if "G2" in ex:
        r += [c(0), e(4), e(5), c(1)]
        r += [ex["G1"]] + ex.get("g1", [])
        r += [e(6), e(7), e(8), c(2), c(3), e(9)]
        r += ["s_nop 0", mfma(O_, Vc, P_)]
        if i % 2 == 1: r.append("s_waitcnt lgkmcnt(0)")
        r += ex.get("pv0", [])
        r += [e(10), e(11), c(4), e(12), c(5)]
        r += [ex["G2"]] + ex.get("g2", [])
        r += [e(13), e(14), e(15), c(6), c(7)]
    else:
        r += [c(0), e(4), e(5), c(1), e(6), e(7)]
        if "G1" in ex:
            r += [ex["G1"]]
        r += ex.get("g1", [])
        r += [e(8), c(2), c(3), e(9), e(10), e(11)]
        r += ex.get("prepv0", [])
        r.append(mfma(O_, Vc, P_, "0" if first else None))
        if i % 2 == 1: r.append("s_waitcnt lgkmcnt(0)")
        r += ex.get("pv0", [])
        r += [c(4), e(12), e(13), c(5), e(14), e(15), c(6), c(7)]
    r += ex.get("end", [])
    return r


def ring_loads(r):
    b = RING + 16 * r
    return [f"buffer_load_dwordx4 {vr(b, 4)}, v{A16}, {sr(R_H0)}, s{tFH} offen sc1",
            f"buffer_load_dwordx4 {vr(b + 4, 4)}, v{A16}, {sr(R_H1)}, s{tFH} offen sc1",
            f"buffer_load_dwordx4 {vr(b + 8, 4)}, v{A16}, {sr(R_WT)}, s{tFW} offen sc1",
            f"buffer_load_dwordx4 {vr(b + 12, 4)}, v{A16}, {sr(R_WT)}, s{tFW} offen offset:1024 sc1",
            f"s_add_u32 s{tFH}, s{tFH}, 1024",
            f"s_add_u32 s{tFW}, s{tFW}, 2048"]


def gm(r, n):
    b = RING + 16 * r
    return mfma(G_ + 16 * n, b + 8 + 4 * (n & 1), b + 4 * (n >> 1))


_pl = [0]
PC = (2, 6)
PD = 7
PG = 2


def lead(p, cond=None):
    if "prio" not in OPT:
        return []
    _pl[0] += 1
    lb = f"L_pr{_pl[0]}"
    c = [f"s_cmp_lt_u32 s{sW}, 4"] if cond is None else cond
    return c + [f"s_cbranch_scc0 {lb}", f"s_setprio {p}", f"{lb}:"]


def recentre(ex, i, at):
    if i == at:
        ex["prepv0"] = [f"v_frexp_exp_i32_f32 v4, v{O_ + 8}"]
        ex["end"] = [f"v_add_u32 v4, {int(MAXOFF) - 1}, v4", "v_max_i32 v4, 0, v4", "v_cvt_f32_i32 v2, v4", f"v_sub_f32 v2, v{NM}, v2",
                     "v_sub_u32 v4, 0, v4", "v_mov_b32 v3, v2"] + [f"v_mov_b64 v[{NM + j}:{NM + j + 1}], v[2:3]" for j in range(0, 16, 2)] + \
                    ["s_nop 1"] + ex.get("end", [])
    if i == at + 2:
        ex["prepv0"] = [f"v_ldexp_f32 v{O_ + j}, v{O_ + j}, v4" for j in range(9)] + ["s_nop 1"]


def adv(a):
    a(f"v_add_u32 v{AK}, 0x4000, v{AK}")
    a(f"v_add_u32 v{AV}, 0x4000, v{AV}")


def gen_p2(a):
    a("L_p2:")
    if ENC == 99:
        a(["s_lshr_b32 s76, s2, 3", f"s_lshl3_add_u32 s76, s76, s{sW}", "s_cmp_lg_u32 s76, 32", "s_cbranch_scc1 L_nosk",
           "s_not_b32 s76, s80", "v_mov_b32 v1, 0", "v_mov_b32 v2, s76", "s_mov_b64 exec, 1",
           f"global_atomic_umax v1, v2, s[{pDBG}:{pDBG + 1}] offset:240 sc1", "s_mov_b64 exec, -1", "L_nosk:"])
    stamp(a, 6)
    a(f"v_mov_b32 v{A16}, v{L16}")
    a(f"v_mov_b32 v{AK}, v{L16}")
    a("v_lshrrev_b32 v2, 5, v0")
    a("v_and_b32 v3, 15, v0")
    a("v_lshlrev_b32 v3, 4, v3")
    a("v_lshl_add_u32 v3, v2, 8, v3")
    a(f"v_add_u32 v{AV}, 1024, v3")
    a(f"s_mov_b32 s{tVM}, 0x0000ffff")
    a(f"s_mov_b32 s{tVM + 1}, 0x0000ffff")
    a(f"ds_read_b128 {vr(K_, 4)}, v{AK}")
    a(f"ds_read_b128 {vr(K_ + 4, 4)}, v{AK} offset:2048")
    a(f"s_mov_b64 exec, s[{tVM}:{tVM + 1}]")
    for d in range(2):
        a(f"ds_read_b128 {vr(V_ + 8 * d, 4)}, v{AV} offset:{d * 2048}")
        a(f"ds_read_b128 {vr(V_ + 8 * d + 4, 4)}, v{AV} offset:{d * 2048 + 512}")
    a("s_mov_b64 exec, -1")
    a(f"s_lshr_b32 s{T0}, s{sW}, 2")
    a(f"s_lshl1_add_u32 s{tTT}, s{tHEAD}, s{T0}")
    a(f"s_lshl_b32 s{T0}, s{tTT}, 15")
    a(f"s_lshl_b32 s{T1}, s{tQB}, 7")
    a(f"s_add_u32 s{T0}, s{T0}, s{T1}")
    a(f"s_and_b32 s{T1}, s{sW}, 3")
    if "coal" in OPT:
        a(f"s_lshl_b32 s{T1}, s{T1}, 13")
        a(f"s_add_u32 s{T0}, s{T0}, s{T1}")
        a("v_lshrrev_b32 v1, 3, v0")
        a("v_lshlrev_b32 v1, 10, v1")
        a("v_and_b32 v2, 7, v0")
        a("v_lshl_add_u32 v1, v2, 4, v1")
    else:
        a(f"s_lshl4_add_u32 s{T0}, s{T1}, s{T0}")
        a("v_and_b32 v1, 31, v0")
        a("v_lshlrev_b32 v1, 10, v1")
        a("v_lshl_add_u32 v1, v2, 6, v1")
    a(f"v_add_u32 v{AOUT}, s{T0}, v1")
    a("s_waitcnt lgkmcnt(4)")
    a(mfma(S0, K_, Q_, "0"))
    a(mfma(S1, K_ + 4, Q_, "0"))
    a(f"s_mul_i32 s{T0}, s{tHEAD}, {224 * 1024}")
    a(f"s_add_u32 s{T0}, s{T0}, {WS_H}")
    a(f"s_add_u32 s{R_H0}, s{pWS}, s{T0}")
    a(f"s_addc_u32 s{R_H0 + 1}, s{pWS + 1}, 0")
    a(f"s_add_u32 s{R_H1}, s{R_H0}, {112 * 1024}")
    a(f"s_addc_u32 s{R_H1 + 1}, s{R_H0 + 1}, 0")
    a(f"s_mul_i32 s{tFH}, s{sW}, {14 * 1024}")
    a(f"s_add_u32 s{R_H0 + 2}, s{tFH}, {14 * 1024}")
    a(f"s_mov_b32 s{R_H1 + 2}, s{R_H0 + 2}")
    a(f"s_mul_i32 s{T0}, s{tQB}, {144 * 2048}")
    a(f"s_add_u32 s{T0}, s{T0}, {WS_WT}")
    a(f"s_add_u32 s{R_WT}, s{pWS}, s{T0}")
    a(f"s_addc_u32 s{R_WT + 1}, s{pWS + 1}, 0")
    a(f"s_lshl_b32 s{tFW}, s{tFH}, 1")
    a(f"s_lshl_b32 s{R_WT + 2}, s{R_H0 + 2}, 1")
    a(f"v_max3_f32 v1, v{S0}, v{S0 + 1}, v{S0 + 2}")
    for i in range(3, 31, 2):
        a(f"v_max3_f32 v1, v1, v{S0 + i}, v{S0 + i + 1}")
    a(f"v_max_f32 v1, v1, v{S0 + 31}")
    a("v_mov_b32 v2, v1")
    a("s_nop 1")
    a("v_permlane32_swap_b32 v1, v2")
    a("v_max_f32 v1, v1, v2")
    a("v_floor_f32 v1, v1")
    a(f"v_sub_f32 v2, {hx(f2u(-MAXOFF))}, v1")
    a("v_mov_b32 v3, v2")
    for i in range(0, 16, 2):
        a(f"v_mov_b64 v[{NM + i}:{NM + i + 1}], v[2:3]")
    a("s_nop 1")
    a(mfma(S0, K_, Q_, NM))
    a(f"ds_read_b128 {vr(K_, 4)}, v{AK} offset:4096")
    srd(a, R_OUT, pOUT, 2097152)
    a(f"s_lshl_b32 s{T0}, s{sW}, 11")
    a(f"v_add_u32 v{AW}, s{T0}, v{A16}")
    a(f"v_add_u32 v{AW + 1}, 0x10000, v{AW}")
    a(f"v_add_u32 v{AW + 2}, 0x20000, v{AW}")
    a("s_waitcnt lgkmcnt(0)")
    a("s_nop 1")
    a(lead(2))
    stamp(a, 7)
    global NOSTAMP
    if "side" in OPT: NOSTAMP = True
    for i in range(8):
        ex = {}
        if i == 4:
            d1, d2 = (stampl(1), stampl(2)) if "p3b" in OPT else ([], [])
            ex["end"] = d1 + ["s_waitcnt vmcnt(0)", "s_barrier"] + d2 + sig_one("L_h_ns", [f"s_add_u32 s{T0}, s{sRB}, {C_H}"], True) + lead(2)
        if i == 3:
            ex["pv0"] = lead(0)
        if i >= 5:
            ex["pv1"], ex["pv0"] = kv(i - 1, A16)
        if "rc0" in OPT: recentre(ex, i, 5)
        a(att_step(i, ex, first=(i == 0)))
    adv(a)
    for i in range(8):
        ex = {}
        if i == 0:
            ex["pv1"], ex["pv0"] = kv(7, A16)
            ex["qk"] = [f"v_mov_b64 v[{RING}:{RING + 1}], 0", f"v_mov_b64 v[{RING + 2}:{RING + 3}], 0"]
        if i < 4:
            ex["G1"] = mfma(G_ + 16 * i, RING, RING, "0")
        if i == 3:
            ex["pv0"] = poll_issue("L_h_np", H_MASK, 7) + lead(0)
        if i == 4:
            d1, d2 = (stampl(3), stampl(4)) if "p3b" in OPT else ([], [])
            ex["end"] = d1 + ["s_waitcnt vmcnt(0)"] + poll_check("L_ch", 16, 7, 16) + ["s_barrier"] + d2 + lead(2)
        if i in (5, 6, 7):
            l = ring_loads(i - 5)
            ex["qk"] = l[0:1]
            ex["pv1"] = l[1:3]
            ex["pv0"] = l[3:6]
        if "rc1" in OPT: recentre(ex, i, 5)
        if "rc2" in OPT: recentre(ex, i, 0)
        a(att_step(i, ex))
    stamp(a, 8)
    a(f"s_mov_b32 s{tIT}, 5")
    a(f"s_lshr_b32 s{sG}, s{sW}, 2")
    a(f"s_lshl_b32 s{sG}, s{sG}, 4")
    a(f"s_add_u32 s{sG}, s{sG}, {PC[0]}")
    a("L_loop:")
    adv(a)
    plan = [[(0, 0)], [(0, 1), (0, 2)], [(0, 3)], [(1, 0), (1, 1)], [(1, 2)], [(1, 3), (2, 0)], [(2, 1)], [(2, 2), (2, 3)]]
    for i in range(8):
        ex = {}
        ex["G1"] = gm(*plan[i][0])
        if len(plan[i]) > 1:
            ex["G2"] = gm(*plan[i][1])
        if i == 0: ex["qk"] = ["s_waitcnt vmcnt(8)"]
        if i == PC[1]: ex["end"] = lead(0, [f"s_cmp_eq_u32 s{tIT}, s{sG}"])
        if i == 2:
            l = ring_loads(0)
            ex["g1"] = l[0:2]
            ex["pv0"] = l[2:6]
        if i == 3: ex["pv1"] = ["s_waitcnt vmcnt(8)"]
        if i == 5:
            l = ring_loads(1)
            ex["g1"] = l[0:2]
            ex["pv0"] = l[2:6] + ["s_waitcnt vmcnt(8)"]
        if i == 7:
            ex["g2"] = ring_loads(2)
        a(att_step(i, ex))
    a(f"s_sub_u32 s{tIT}, s{tIT}, 1")
    a(f"s_cmp_lg_u32 s{tIT}, 0")
    a("s_cbranch_scc1 L_loop")
    adv(a)
    a(f"s_and_b32 s{tFW}, s{sW}, 3")
    a(f"s_lshl_b32 s{tFW}, s{tFW}, 14")
    a(f"s_add_u32 s{tFW}, s{tFW}, {112 * 2048}")
    a(f"s_mov_b32 s{R_WT + 2}, {144 * 2048}")
    if "p3b" in OPT: stamp(a, 5)
    a("s_barrier")
    if "p3b" in OPT: stamp(a, 6)
    a(lead(2))

    def pw(o):
        base, off = (AW, o * 16384) if o < 4 else ((AW + 1, (o - 4) * 16384) if o < 6 else (AW + 2, (o - 6) * 16384))
        if "coal" in OPT:
            base, off = (AW, o * 16448) if o < 4 else ((AW + 1, o * 16448 - 65536) if o < 7 else (AW + 2, 192))
        return [f"ds_write_b128 v{base}, {vr(G_ + 8 * o, 4)} offset:{off}",
                f"ds_write_b128 v{base}, {vr(G_ + 8 * o + 4, 4)} offset:{off + 1024}"]

    XV = 244
    wreg = lambda i: RING + 4 * i if i < 12 else NM + 4 * (i - 12)

    def wol(g):
        return [f"buffer_load_dwordx4 {vr(wreg(4 * g + q), 4)}, v{A16}, {sr(R_WT)}, s{tFW} offen offset:{q * 1024} sc1" for q in range(4)] + \
               [f"s_add_u32 s{tFW}, s{tFW}, 4096"]
    for i in range(8):
        ex = {}
        if i == 0: ex["pv0"] = [f"buffer_load_dwordx4 {vr(XV, 4)}, v{AOUT}, {sr(S_X)}, 0 offen"]
        if i in (1, 3, 5): ex["pv1"], ex["g1"] = wol(i // 2)[:1], wol(i // 2)[1:2]
        if i in (2, 4, 6): ex["g1"], ex["pv0"] = wol(i // 2 - 1)[2:3], wol(i // 2 - 1)[3:]
        if i == PD: ex["end"] = lead(0)
        a(att_step(i, ex))
    a("s_nop 1")
    a(mfma(O_, V_ + 24 + 4, P_ + 4))
    a("s_nop 1")
    a(f"s_lshl_b32 s{T0}, s{sQT}, 5")
    a(f"s_add_u32 s{T0}, s{T0}, s{tHEAD}")
    a(f"s_lshl_b32 s{T0}, s{T0}, 10")
    a(f"s_add_u32 s{T3}, s{T0}, {WS_O}")
    a(f"v_mov_b32 v2, {hx(f2u(2.0 ** 120))}")
    a(f"v_mov_b32 v3, {hx(f2u(2.0 ** -(MAXOFF + 4)))}")
    a("s_waitcnt lgkmcnt(0)")
    a("s_nop 3")
    stamp(a, 9)
    a(f"v_add_f32 v1, |v{O_}|, |v{O_ + 1}|")
    for i in range(2, 8):
        a(f"v_add_f32 v1, v1, |v{O_ + i}|")
    a(f"v_cmp_lt_f32 s[40:41], v{O_ + 8}, v2")
    a("v_cmp_lt_f32 s[42:43], v1, v2")
    a(f"v_cmp_le_f32 s[50:51], 0.5, v{O_ + 8}")
    a("v_cmp_le_f32 vcc, v3, v1")
    a("s_or_b64 s[50:51], s[50:51], vcc")
    a("s_and_b64 s[40:41], s[40:41], s[42:43]")
    a("s_and_b64 s[40:41], s[40:41], s[50:51]")
    a("s_cmp_eq_u64 s[40:41], -1")
    a("s_cbranch_scc0 L_fallback")
    a("L_norm:")
    a(f"v_rcp_f32 v2, v{O_ + 8}")
    a("s_nop 0")
    for i in range(8):
        a(f"v_mul_f32 v{O_ + i}, v{O_ + i}, v2")
    for i in range(4):
        a(f"v_cvt_pk_bf16_f32 v{4 + i}, v{O_ + 2 * i}, v{O_ + 2 * i + 1}")
    if "sen" in OPT:
        for i in range(4):
            a(f"v_min_u32 v{4 + i}, -2, v{4 + i}")
    a(f"buffer_store_dwordx4 v[4:7], v{A16}, {sr(S_WS)}, s{T3} offen sc1")
    a(wol(3)[:4])
    LP, LA = K_, K_ + 1
    lpoll = ["s_mov_b64 exec, 255", f"buffer_load_dword v{LP}, v{LA}, {sr(S_WS)}, s42 offen offset:1020 sc1", "s_mov_b64 exec, -1"]
    oloads = [f"buffer_load_dwordx4 {vr(S0 + 4 * j, 4)}, v{A16}, {sr(S_WS)}, s{42 if j < 4 else 41} offen offset:{(j % 4) * 1024} sc1" for j in range(8)]
    if "sen" in OPT:
        a(f"s_and_b32 s42, s{sW}, 3")
        a(f"s_lshl2_add_u32 s42, s{tTT}, s42")
        a(f"s_lshl_b32 s42, s42, 13")
        a(f"s_add_u32 s42, s42, {WS_O}")
        a("s_add_u32 s41, s42, 4096")
        a(f"v_lshlrev_b32 v{LA}, 10, v0")
        a(f"v_mov_b32 v{LP}, 0")
        a("s_mov_b32 s40, 0")
        if "try" in OPT:
            a(lpoll)
    for o in range(8):
        a(pw(o))
    if "coal" in OPT:
        a(f"s_and_b32 s{T0}, s{sW}, 4")
        a(f"s_and_b32 s{T1}, s{sW}, 3")
        a(f"s_lshl_b32 s{T1}, s{T1}, 7")
        a("v_and_b32 v1, 3, v0")
        a(f"v_add_u32 v1, s{T0}, v1")
        a("v_bfe_u32 v2, v0, 2, 1")
        a("v_lshrrev_b32 v3, 3, v0")
        a("v_lshl_add_u32 v2, v2, 5, v3")
        a("v_lshlrev_b32 v2, 4, v2")
        a(f"v_add_u32 v2, s{T1}, v2")
        a("v_cmp_eq_u32 vcc, 7, v1")
        a("v_mul_u32_u24 v3, 16448, v1")
        a(f"v_mul_u32_u24 v1, 8256, v1")
        a(f"v_add_u32 v{AK}, v1, v2")
        a(f"v_mov_b32 v1, {131072 + 192}")
        a("v_cndmask_b32 v3, v3, v1, vcc")
        a("v_add_u32 v3, v3, v2")
    else:
        a(f"s_lshl_b32 s{T0}, s{sW}, 14")
        a(f"s_add_u32 s{T1}, s{T0}, 0x8000")
        a(f"s_cmp_lt_u32 s{sW}, 6")
        a(f"s_cselect_b32 s{T0}, s{T0}, s{T1}")
        a(f"v_add_u32 v3, s{T0}, v{A16}")
    if "sen" in OPT:
        if "try" in OPT:
            a(["s_waitcnt vmcnt(0)", f"v_cmp_eq_u32 vcc, -1, v{LP}", "s_cmp_eq_u64 vcc, 0", "s_cbranch_scc0 L_t1", "s_mov_b32 s40, 1"] + oloads + ["L_t1:"])
        a("s_waitcnt lgkmcnt(0)")
        a("s_barrier")
        stamp(a, 10)
        a(["s_cmp_lg_u32 s40, 0", "s_cbranch_scc1 L_t2"] + lpoll + ["L_t2:"])
    elif "pws" in OPT:
        a(f"s_lshr_b32 s{T0}, s{sXCD}, 1")
        a(f"s_lshl2_add_u32 s{T0}, s{sQT}, s{T0}")
        a(f"s_lshl_b32 s{T0}, s{T0}, 7")
        a(f"s_add_u32 s{T0}, s{T0}, {WS_CNT + 0x4000}")
        a("v_mov_b32 v1, 1")
        a(f"s_and_b32 s42, s{sW}, 3")
        a(f"s_lshl2_add_u32 s42, s{tTT}, s42")
        a(f"s_lshl_b32 s42, s42, 7")
        a(f"s_add_u32 s42, s42, {WS_CNT + 0x4000}")
        a("s_waitcnt vmcnt(4)")
        a("s_mov_b64 exec, 1")
        a(f"buffer_atomic_add v1, off, {sr(S_WS)}, s{T0} sc1")
        a("s_mov_b64 exec, -1")
        a("s_waitcnt lgkmcnt(0)")
        a("s_barrier")
        if "tp" in OPT: a(lead(2))
        stamp(a, 10)
        if "oe" in OPT:
            a(f"buffer_load_dword v5, off, {sr(S_WS)}, s42 sc1")
    else:
        a("s_waitcnt vmcnt(4) lgkmcnt(0)")
        a("s_barrier")
        if "tp" in OPT: a(lead(2))
        stamp(a, 10)
        a(f"s_cmp_lg_u32 s{sW}, 0")
        a("s_cbranch_scc1 L_o_ns")
        if "ok4" in OPT:
            a(f"s_lshr_b32 s{T0}, s{sXCD}, 1")
            a(f"s_lshl2_add_u32 s{T0}, s{tQB}, s{T0}")
            a(f"s_lshl_b32 s{T0}, s{T0}, 8")
        else:
            a(f"s_lshl_b32 s{T0}, s{tQB}, 8")
        if "rep" in OPT:
            a(f"s_lshl2_add_u32 s{T0}, s{T0}, {WS_CNT + 0x4000}")
            a("v_mov_b32 v1, 1")
            a("v_lshlrev_b32 v2, 7, v0")
            a("s_mov_b64 exec, 255")
            a(f"buffer_atomic_add v1, v2, {sr(S_WS)}, s{T0} offen sc1")
        else:
            a(f"s_add_u32 s{T0}, s{T0}, {WS_CNT + C_O * 256}")
            a("v_mov_b32 v1, 1")
            a("s_mov_b64 exec, 1")
            a(f"buffer_atomic_add v1, off, {sr(S_WS)}, s{T0} sc1")
        a("s_mov_b64 exec, -1")
        a("L_o_ns:")
        if "ok4" in OPT:
            a(f"s_and_b32 s42, s{sW}, 3")
            a(f"s_lshl2_add_u32 s42, s{sXCD}, s42")
            if "rep" in OPT:
                a(f"s_lshl3_add_u32 s42, s42, s{tQB}")
                a(f"s_lshl_b32 s42, s42, 7")
                a(f"s_add_u32 s42, s42, {WS_CNT + 0x4000}")
            else:
                a(f"s_lshl_b32 s42, s42, 8")
                a(f"s_add_u32 s42, s42, {WS_CNT + C_O * 256}")
            if "oe" in OPT:
                a(f"buffer_load_dword v5, off, {sr(S_WS)}, s42 sc1")
    F_ = G_
    for s in range(8):
        for i in range(2):
            a(f"ds_read_b128 {vr(F_ + 8 * s + 4 * i, 4)}, v3 offset:{(s * 2 + i) * 1024}")
        if s == 6:
            a("s_waitcnt lgkmcnt(10)")
    for s in range(1, 8):
        a(f"s_waitcnt lgkmcnt({2 * (7 - s)})")
        for i in range(4):
            a(f"v_pk_add_f32 {vr(F_ + 2 * i, 2)}, {vr(F_ + 2 * i, 2)}, {vr(F_ + 8 * s + 2 * i, 2)}")
    if "ok4" in OPT:
        a("s_barrier")
        if "oe" not in OPT:
            a([] if "sen" in OPT else f"buffer_load_dword v5, off, {sr(S_WS)}, s42 sc1")
    def silu_block():
        T_ = F_ + 8
        a(f"v_mov_b32 v4, {hx(f2u(-LOG2E))}")
        for i in range(8):
            a(f"v_mul_f32 v{T_ + i}, v{F_ + i}, v4")
        for i in range(8):
            a(f"v_exp_f32 v{T_ + i}, v{T_ + i}")
        a("s_nop 0")
        for i in range(8):
            a(f"v_add_f32 v{T_ + i}, 1.0, v{T_ + i}")
        for i in range(8):
            a(f"v_rcp_f32 v{T_ + i}, v{T_ + i}")
        a("s_nop 0")
        for i in range(8):
            a(f"v_mul_f32 v{F_ + i}, v{F_ + i}, v{T_ + i}")
        XU = G_ + 16
        for i in range(4):
            a(f"v_lshlrev_b32 v{XU + 2 * i}, 16, v{XV + i}")
            a(f"v_and_b32 v{XU + 2 * i + 1}, 0xffff0000, v{XV + i}")
    XU = G_ + 16
    if "sl" not in OPT:
        silu_block()
    a(f"s_lshr_b32 s{T0}, s{sW}, 2")
    a(f"s_mul_i32 s{T0}, s{T0}, {4 * 8256 if 'coal' in OPT else 32768}")
    a(f"s_and_b32 s{T1}, s{sW}, 3")
    a(f"s_lshl_b32 s{T2}, s{T1}, 11")
    a(f"s_add_u32 s{T0}, s{T0}, s{T2}")
    a(f"v_add_u32 v1, s{T0}, v{A16}")
    if "coal" in OPT:
        a(f"v_mov_b32 v3, v{AK}")
    else:
        a(f"s_lshl_b32 s{T0}, s{sW}, 13")
        a(f"v_add_u32 v3, s{T0}, v{A16}")
    a(f"s_lshl_b32 s{T0}, s{tTT}, 5")
    a(f"s_lshl_b32 s{T1}, s{T1}, 3")
    a(f"s_add_u32 s{T0}, s{T0}, s{T1}")
    a(f"s_lshl_b32 s{T0}, s{T0}, 10")
    a(f"s_add_u32 s{T2}, s{T0}, {WS_O}")
    a(f"s_add_u32 s{T3}, s{T2}, 4096")
    stamp(a, 11)
    if "sen" in OPT:
        a("s_mov_b32 s43, 0")
        a(f"s_mov_b32 s{T1}, {SPIN}")
        a(["s_cmp_lg_u32 s40, 0", "s_cbranch_scc1 L_o_ld"])
        a("L_o_poll:")
        a("s_waitcnt vmcnt(0)")
        a(f"v_cmp_eq_u32 vcc, -1, v{LP}")
        a("s_cmp_eq_u64 vcc, 0")
        a("s_cbranch_scc1 L_o_ok")
        a(f"s_sleep {OSL}")
        a(lpoll)
        a(f"s_sub_u32 s{T1}, s{T1}, 1")
        a(f"s_cmp_lg_u32 s{T1}, 0")
        a("s_cbranch_scc1 L_o_poll")
        a("L_o_ok:")
    elif "ok4" in OPT:
        a(f"s_mov_b32 s{T1}, {SPIN}")
        a("L_o_poll:")
        a("s_waitcnt vmcnt(0)")
        a("v_readfirstlane_b32 s40, v5")
        a("s_cmp_ge_u32 s40, 8")
        a("s_cbranch_scc1 L_o_ok")
        a(f"s_sleep {OSL}")
        a(f"buffer_load_dword v5, off, {sr(S_WS)}, s42 sc1")
        a(f"s_sub_u32 s{T1}, s{T1}, 1")
        a(f"s_cmp_lg_u32 s{T1}, 0")
        a("s_cbranch_scc1 L_o_poll")
        a("L_o_ok:")
    else:
        a(f"s_cmp_lg_u32 s{sW}, 0")
        a("s_cbranch_scc1 L_o_ok")
        a(f"s_lshl_b32 s{T0}, s{sXCD}, 8")
        a(f"s_add_u32 s{T0}, s{T0}, {WS_CNT + C_O * 256}")
        a(f"s_mov_b32 s{T1}, {SPIN}")
        a("L_o_poll:")
        a(f"buffer_load_dword v4, off, {sr(S_WS)}, s{T0} sc1")
        a("s_waitcnt vmcnt(0)")
        a("v_readfirstlane_b32 s40, v4")
        a("s_cmp_ge_u32 s40, 32")
        a("s_cbranch_scc1 L_o_ok")
        a(f"s_sub_u32 s{T1}, s{T1}, 1")
        a(f"s_cmp_lg_u32 s{T1}, 0")
        a("s_cbranch_scc1 L_o_poll")
        a("L_o_ok:")
        a("s_barrier")
    stamp(a, 12)
    OF = S0
    SA = V_
    for j in range(8):
        so = T2 if j < 4 else T3
        a(f"buffer_load_dwordx4 {vr(OF + 4 * j, 4)}, v{A16}, {sr(S_WS)}, s{so} offen offset:{(j % 4) * 1024} sc1")
    if "sen" in OPT:
        a("L_o_ld:")
    if "sl" in OPT:
        if "sen" in OPT:
            a(["s_cmp_lg_u32 s43, 0", "s_cbranch_scc1 L_nosilu", "s_mov_b32 s43, 1"])
        silu_block()
        if "sen" in OPT:
            a("L_nosilu:")
    for j in range(8):
        a(f"s_waitcnt vmcnt({7 - j})")
        for ap in range(2):
            a(mfma(SA + 16 * ap, wreg(2 * j + ap), OF + 4 * j, "0" if j == 0 else None))
            if "sen" in OPT:
                f = OF + 4 * j + 2 * ap
                a(f"v_max3_u32 v5, v{f}, v{f + 1}, v{f if (j == 0 and ap == 0) else 5}")
    if "sen" in OPT:
        a("v_cmp_eq_u32 vcc, -1, v5")
        a(f"s_sub_u32 s{T1}, s{T1}, 1")
        a("s_cselect_b64 vcc, 0, vcc")
        a("s_cmp_eq_u64 vcc, 0")
        a("s_cbranch_scc0 L_o_ok")
    stamp(a, 13)
    a("s_nop 11")
    for o in range(4):
        for i in range(2):
            a(f"ds_write_b128 v1, {vr(SA + 8 * o + 4 * i, 4)} offset:{o * (8256 if 'coal' in OPT else 8192) + i * 1024}")
    a("s_waitcnt lgkmcnt(0)")
    a("s_barrier")
    for s in range(4):
        for i in range(2):
            a(f"ds_read_b128 {vr(SA + 8 * s + 4 * i, 4)}, v3 offset:{(s * 2 + i) * 1024}")
    for s in range(1, 4):
        a(f"s_waitcnt lgkmcnt({2 * (3 - s)})")
        for i in range(4):
            a(f"v_pk_add_f32 {vr(SA + 2 * i, 2)}, {vr(SA + 2 * i, 2)}, {vr(SA + 8 * s + 2 * i, 2)}")
    for i in range(4):
        a(f"v_pk_fma_f32 {vr(XU + 2 * i, 2)}, {vr(SA + 2 * i, 2)}, {vr(F_ + 2 * i, 2)}, {vr(XU + 2 * i, 2)}")
    for i in range(4):
        a(f"v_cvt_pk_bf16_f32 v{4 + i}, v{XU + 2 * i}, v{XU + 2 * i + 1}")
    fl = " sc1" if "osc1" in OPT else (" nt" if "ont" in OPT else (" sc0 sc1" if "osc01" in OPT else ""))
    a(f"buffer_store_dwordx4 v[4:7], v{AOUT}, {sr(R_OUT)}, 0 offen{fl}")
    stamp(a, 14)
    stamp_flush(a)
    a("L_exit:")
    a("s_endpgm")
    a("L_fallback:")
    a(f"s_lshl_b32 s{T0}, s{tHEAD}, 16")
    a(f"s_add_u32 s{T0}, s{T0}, {32 << 16}")
    a(f"s_mov_b32 s{T1}, 0")
    a("v_mov_b32 v1, 0xff800000")
    a("L_fb1:")
    a(f"s_add_u32 s{T2}, s{T0}, s{T1}")
    a(f"buffer_load_dwordx4 {vr(K_, 4)}, v{A16}, {sr(S_WS)}, s{T2} offen sc1")
    a("s_waitcnt vmcnt(0)")
    a(mfma(S0, K_, Q_, "0"))
    a("s_nop 15")
    for i in range(0, 16, 2):
        a(f"v_max3_f32 v1, v1, v{S0 + i}, v{S0 + i + 1}")
    a(f"s_add_u32 s{T1}, s{T1}, 1024")
    a(f"s_cmp_lt_u32 s{T1}, 65536")
    a("s_cbranch_scc1 L_fb1")
    a("v_mov_b32 v2, v1")
    a("s_nop 1")
    a("v_permlane32_swap_b32 v1, v2")
    a("v_max_f32 v1, v1, v2")
    a("v_sub_f32 v1, 0, v1")
    for i in range(16):
        a(f"v_mov_b32 v{NM + i}, v1")
    for i in range(16):
        a(f"v_mov_b32 v{O_ + i}, 0")
    a("v_lshrrev_b32 v2, 5, v0")
    a("v_and_b32 v3, 15, v0")
    a("v_lshlrev_b32 v3, 4, v3")
    a("v_lshl_add_u32 v3, v2, 8, v3")
    a(f"s_mov_b32 s{T1}, 0")
    a("L_fb2:")
    a(f"s_add_u32 s{T2}, s{T0}, s{T1}")
    a(f"buffer_load_dwordx4 {vr(K_, 4)}, v{A16}, {sr(S_WS)}, s{T2} offen sc1")
    a(f"s_add_u32 s{T2}, s{T2}, {32 << 16}")
    a(f"s_mov_b64 exec, s[{tVM}:{tVM + 1}]")
    a(f"buffer_load_dwordx4 {vr(V_, 4)}, v3, {sr(S_WS)}, s{T2} offen sc1")
    a(f"buffer_load_dwordx4 {vr(V_ + 4, 4)}, v3, {sr(S_WS)}, s{T2} offen offset:512 sc1")
    a("s_mov_b64 exec, -1")
    a("s_waitcnt vmcnt(0)")
    a(mfma(S0, K_, Q_, NM))
    a("s_nop 15")
    for i in range(16):
        a(f"v_exp_f32 v{S0 + i}, v{S0 + i}")
    a("s_nop 0")
    for i in range(8):
        a(f"v_cvt_pk_bf16_f32 v{P_ + i}, v{S0 + 2 * i}, v{S0 + 2 * i + 1}")
    a("s_nop 1")
    a(mfma(O_, V_, P_))
    a(mfma(O_, V_ + 4, P_ + 4))
    a(f"s_add_u32 s{T1}, s{T1}, 1024")
    a(f"s_cmp_lt_u32 s{T1}, 65536")
    a("s_cbranch_scc1 L_fb2")
    a("s_nop 15")
    a("s_branch L_norm")


def main(out):
    a = Asm()
    k = NAME + "_kernel"
    hdr = ["; LN + MHA + GEGLU block, one persistent launch; generated by gen5.py (hand-scheduled gfx950 assembly)",
           "; @launch grid=(256,1,1) block=(512,1,1) lds=163840"]
    a('.amdgcn_target "amdgcn-amd-amdhsa--gfx950"')
    a(".text")
    a(f".globl {k}\n.p2align 8\n.type {k},@function\n{k}:")
    gen_p1(a)
    gen_p2(a)
    gen_side(a)
    a("L_end:")
    a('.section .rodata,"a"')
    a(".p2align 6")
    a(f".amdhsa_kernel {k}")
    a(f".amdhsa_next_free_vgpr {NVGPR}")
    a(f".amdhsa_next_free_sgpr {96 if (STAMPS or ENC is not None) else 80}")
    a(f".amdhsa_accum_offset {(NVGPR + 3) // 4 * 4}")
    a(".amdhsa_group_segment_fixed_size 0")
    a(".amdhsa_kernarg_size 80")
    a(".amdhsa_user_sgpr_count 2")
    a(".amdhsa_user_sgpr_kernarg_segment_ptr 1")
    a(".amdhsa_system_sgpr_workgroup_id_x 1")
    a(".end_amdhsa_kernel")
    open(out, "w").write("\n".join(hdr) + "\n" + a.text())


if __name__ == "__main__":
    for x in list(sys.argv):
        if x.startswith("--opt="):
            OPT = set(x[6:].split(","))
            sys.argv.remove(x)
    for x in list(sys.argv):
        if x.startswith("--enc="):
            ENC = int(x[6:])
            sys.argv.remove(x)
    for o in OPT:
        if o.startswith("sig"): SIGU = int(o[3:])
        if o.startswith("chk"): CHK = int(o[3:])
        if o.startswith("wk"): WK = int(o[2:])
        if o.startswith("mo"): MAXOFF = float(o[2:])
        if o.startswith("cso"): CSO = int(o[3:])
        if o.startswith("osl"): OSL = int(o[3:])
        if o.startswith("nbg"): NBG = int(o[3:])
        if o.startswith("vb"): VBUD = int(o[2:])
        if o.startswith("pc"): PC = (int(o[2]), int(o[3]))
        if o.startswith("pd"): PD = int(o[2])
        if o.startswith("pg"): PG = int(o[2])
    if "--cyc" in sys.argv:
        STAMPS = 2
        sys.argv.remove("--cyc")
    if "--stamps" in sys.argv:
        STAMPS = True
        sys.argv.remove("--stamps")
    main(sys.argv[1] if len(sys.argv) > 1 else f"cdna_kernels/{NAME}.s")
```

```python
import sys, struct, math

NAME = "recurrent_scan__mha_block__glu_gated_geglu__prompt"

WS_QKV = 0
WS_H = 6 << 20
WS_O = 14 << 20
WS_CNT = 16 << 20
WS_STAMP = (16 << 20) + 65536
WS_CS = (16 << 20) + 0xb0000
WS_ST = (16 << 20) + 0x80000
WS_CQ = (16 << 20) + 0xa0000
WS_RS = (16 << 20) + 0x84000
WS_CP = (19 << 20) + 0x80000
WS_WT = 17 << 20
WS_SIZE = 21 << 20
OOB = 0x7f000000

LOG2E = 1.4426950408889634
QSCALE = 0.25 * LOG2E
GC1 = -2.0 * LOG2E * math.sqrt(2.0 / math.pi)
GC2 = GC1 * 0.044715
MAXOFF = 100.0
SPIN = 0x40000

STAMPS = False
OPT = set()
NOSTAMP = False
ENC = None


def f2u(x):
    return struct.unpack("<I", struct.pack("<f", x))[0]


def hx(x):
    return "0x%08x" % (x & 0xffffffff)


class Asm:
    def __init__(self):
        self.l = []

    def __call__(self, s):
        if isinstance(s, (list, tuple)):
            for x in s:
                self(x)
            return
        for line in s.split("\n"):
            line = line.strip()
            if not line:
                continue
            if line.endswith(":") or line.startswith("."):
                self.l.append(line)
            else:
                self.l.append("    " + line)

    def text(self):
        return "\n".join(self.l) + "\n"


def vr(b, n):
    return f"v[{b}:{b + n - 1}]"


def sr(b):
    return f"s[{b}:{b + 3}]"


def mfma(d, a, b, c=None):
    cs = vr(d, 16) if c is None else (c if isinstance(c, str) else vr(c, 16))
    return f"v_mfma_f32_32x32x16_bf16 {vr(d, 16)}, {vr(a, 4)}, {vr(b, 4)}, {cs}"


def stamp(a, n):
    if ENC is not None:
        if n in (0, ENC) and not NOSTAMP:
            a("s_memrealtime s[76:77]")
            a("s_waitcnt lgkmcnt(0)")
            a(f"s_mov_b32 s{80 if n == 0 else 81}, s76")
            if n == 0:
                a("s_mov_b32 s81, s76")
        return
    if not STAMPS or (NOSTAMP and n != 15) or ("min" in OPT and n not in (0, 15)):
        return
    a("s_memtime s[76:77]" if STAMPS == 2 else "s_memrealtime s[76:77]")
    a("s_waitcnt lgkmcnt(0)")
    a(f"s_mov_b32 s{80 + n}, s76")


def stampl(n):
    t = Asm()
    stamp(t, n)
    return [x.strip() for x in t.l]


def stamp_flush(a):
    if ENC is not None:
        a("s_waitcnt vmcnt(0)")
        a("s_memrealtime s[76:77]")
        a("s_waitcnt lgkmcnt(0)")
        if ENC == 15:
            a("s_mov_b32 s81, s76")
        if ENC == 99:
            a(["v_mov_b32 v1, 0", f"global_load_dword v2, v1, s[{pDBG}:{pDBG + 1}] offset:240 sc1", "s_waitcnt vmcnt(0)",
               "v_readfirstlane_b32 s80, v2", "s_not_b32 s80, s80", "s_sub_u32 s80, s80, 100"])
        a("s_sub_u32 s81, s81, s80")
        a("s_cmp_lt_u32 s2, 32" if "encs" not in OPT else "s_cmp_ge_u32 s2, 32")
        a("s_cselect_b32 s81, 0, s81")
        a("s_mov_b32 s80, s76")
        a("L_enc:")
        a("s_memrealtime s[76:77]")
        a("s_waitcnt lgkmcnt(0)")
        a("s_sub_u32 s76, s76, s80")
        a("s_cmp_lt_u32 s76, s81")
        a("s_cbranch_scc1 L_enc")
        return
    if not STAMPS:
        return
    a("s_waitcnt vmcnt(0)")
    stamp(a, 15)
    a("v_mov_b32 v1, 0")
    for n in range(16):
        a(f"v_writelane_b32 v1, s{80 + n}, {n}")
    a("s_lshl_b32 s76, s2, 3")
    a(f"s_add_u32 s76, s76, s{sW}")
    a("s_lshl_b32 s76, s76, 6")
    a(f"s_add_u32 s76, s76, {WS_STAMP}")
    a("v_lshlrev_b32 v2, 2, v0")
    a("s_mov_b64 exec, 0xffff")
    a(f"buffer_store_dword v1, v2, {sr(S_WS)}, s76 offen")


def srd(a, s, ptr, size):
    a(f"s_mov_b32 s{s}, s{ptr}")
    a(f"s_mov_b32 s{s + 1}, s{ptr + 1}")
    a(f"s_mov_b32 s{s + 2}, {size}")
    a(f"s_mov_b32 s{s + 3}, 0x00020000")


pX, pWQKV, pWO, pG, pU, pWD, pOUT, pDBG, pWS = 56, 58, 60, 64, 66, 68, 70, 72, 74
S_T, S_X, S_W0, S_W1, S_W3, S_WS = 4, 8, 12, 16, 20, 24
R_OUT, R_H0, R_H1, R_WT = 4, 12, 16, 20
sW, sTT, sHF, sRB, sCB, sROT, sISS, sVAR = 28, 29, 30, 31, 32, 33, 34, 35
sCQ, sCG, sXROW, sLW = 36, 37, 42, 43
T0, T1, T2, T3 = 44, 45, 46, 47
sXCD, sT, sG, sKV = 49, 52, 53, 50
tHEAD, tQB, tIT, tFH, tFW, tTT = 38, 39, 33, 36, 37, 48
tVM = 54

AR, BR, CR, SL = 0, 49152, 98304, 16384
SCR = 147456
XA, VXS, VW0, WQ, WC = 4, 8, 9, 10, 12
VW1, VW3, L16, MASK, ONES, STV, POLL = 14, 15, 16, 17, 18, 20, 21
CSA = 24
WF = 32
ACF, ACQ = 64, 96
XF = 128
Q_, K_, P_, NM, S0, S1, RING = 8, 12, 20, 28, 44, 60, 76
AK, AV, A16, AOUT = 124, 125, 126, 127
G_, V_, O_, AW = 128, 192, 224, 240
NVGPR = 256
C_H, C_CS, C_O = 24, 40, 56
T4 = 63
sQT = 78
sCF, sCNT = 51, 62


def tiny(d, a_, b_, first=False):
    return f"v_mfma_f32_4x4x4_16b_bf16 {vr(d, 4)}, {vr(a_, 2)}, {vr(b_, 2)}, {'0' if first else vr(d, 4)}"


def dma(S, ffn=True):
    sl = (S % 3) * SL
    if S < 8:
        r = [[f"s_add_u32 s{T1}, s{sROT}, {S}", f"s_and_b32 s{T1}, s{T1}, 7",
              f"s_lshl_b32 s{T0}, s{T1}, 7", f"s_add_u32 m0, s{sLW}, {AR + sl}", f"s_add_u32 s{T0}, s{T0}, s{sXROW}",
              f"buffer_load_dwordx4 v{VXS}, {sr(S_X)}, s{T0} offen lds"],
             [f"s_mul_i32 s{T1}, s{T1}, {64 * 3072}", f"s_add_u32 m0, s{sLW}, {BR + sl}", f"s_add_u32 s{T1}, s{T1}, s{sCQ}",
              f"buffer_load_dwordx4 v{VW0}, {sr(S_W0)}, s{T1} offen lds"],
             [f"s_add_u32 m0, s{sLW}, {AR + sl + 8192}", f"s_add_u32 s{T0}, s{T0}, 0x10000",
              f"buffer_load_dwordx4 v{VXS}, {sr(S_X)}, s{T0} offen lds"],
             [f"s_add_u32 m0, s{sLW}, {BR + sl + 8192 - 128}", "s_nop 0",
              f"buffer_load_dwordx4 v{VW0}, {sr(S_W0)}, s{T1} offen offset:128 lds"]]
        if ffn and S >= 2:
            r += [[f"s_add_u32 s{T4}, s{sROT}, {S - 2}", f"s_and_b32 s{T4}, s{T4}, 7", f"s_mul_i32 s{T4}, s{T4}, {64 * 3584}",
                   f"s_add_u32 m0, s{sLW}, {CR + sl}", f"s_add_u32 s{T4}, s{T4}, s{sCG}",
                   f"buffer_load_dwordx4 v{VW1}, {sr(S_W1)}, s{T4} offen lds"],
                  [f"s_add_u32 m0, s{sLW}, {CR + sl + 8192}", "s_nop 0",
                   f"buffer_load_dwordx4 v{VW3}, {sr(S_W3)}, s{T4} offen lds"]]
        return r
    if not ffn:
        return []
    r = []
    off = 128 if S > 8 else 0
    for hb, base in enumerate((BR, CR)):
        r += [[f"s_add_u32 s{T1}, s{sROT}, {(2 * (S - 9) + hb) & 7}", f"s_and_b32 s{T1}, s{T1}, 7",
               f"s_mul_i32 s{T1}, s{T1}, {64 * 3584}", f"s_add_u32 m0, s{sLW}, {base + sl - off}", f"s_add_u32 s{T1}, s{T1}, s{sCG}",
               f"buffer_load_dwordx4 v{VW1}, {sr(S_W1)}, s{T1} offen offset:{off} lds"],
              [f"s_add_u32 m0, s{sLW}, {base + sl + 8192 - off}", "s_nop 0",
               f"buffer_load_dwordx4 v{VW3}, {sr(S_W3)}, s{T1} offen offset:{off} lds"]]
    return r


def fset(k, ffn):
    return WF + 16 * (k & 1) if (ffn and k >= 8) else WF + 8 * (k & 3)


def rd1(k, nt, ffn):
    S, ks = k >> 2, k & 3
    sl = (S % 3) * SL
    F = fset(k, ffn)
    r = [f"ds_read_b128 {vr(XF + 4 * k, 4)}, v{XA + ks} offset:{sl}"]
    for t in range(nt):
        for t2 in range(2):
            r.append(f"ds_read_b64_tr_b16 {vr(F + 4 * t + 2 * t2, 2)}, v{WQ + t} offset:{sl + ks * 2048 + t2 * 512}")
    if ffn and k >= 8:
        for c in range(2):
            for t2 in range(2):
                r.append(f"ds_read_b64_tr_b16 {vr(F + 8 + 4 * c + 2 * t2, 2)}, v{WC + c} offset:{sl + ks * 2048 + t2 * 512}")
    return r


def rd2(u):
    S = 8 + (u >> 2)
    sl = (S % 3) * SL
    base = WQ if (u & 3) < 2 else WC
    F = WF + 16 * (u & 1)
    return [f"ds_read_b64_tr_b16 {vr(F + 8 * q + 4 * c + 2 * t2, 2)}, v{base + c} offset:{sl + ((2 * u + q) & 3) * 2048 + t2 * 512}"
            for q in range(2) for c in range(2) for t2 in range(2)]


def flat(L):
    return [x for at in L for x in ([at] if isinstance(at, str) else at)]


def spread(heads, first, rest):
    n = len(heads)
    pf = -(-len(first) // max(1, n - 1)) if first else 0
    res = []
    for j, hd in enumerate(heads):
        res.append(hd)
        res += flat(first[j * pf:(j + 1) * pf])
        res += flat(rest[j * len(rest) // n:(j + 1) * len(rest) // n])
    return res


def nvm(lines):
    return sum(1 for l in lines if l.startswith("buffer_") or l.startswith("global_"))


def weave(heads, fills):
    res = []
    per = -(-len(fills) // len(heads)) if fills else 0
    i = 0
    for hd in heads:
        res.append(hd)
        for at in fills[i:i + per]:
            res += [at] if isinstance(at, str) else at
        i += per
    return res


def tr_addr(dst, t_a, t_b):
    return [f"v_lshrrev_b32 v{t_a}, 5, v0", f"v_bfe_u32 v{t_b}, v0, 2, 2", f"v_lshl_add_u32 v{dst}, v{t_a}, 2, v{t_b}",
            f"v_lshlrev_b32 v{dst}, 7, v{dst}", f"v_and_b32 v{t_a}, 1, v0", f"v_lshl_add_u32 v{dst}, v{t_a}, 6, v{dst}",
            f"v_bfe_u32 v{t_a}, v0, 4, 1", f"v_lshl_add_u32 v{dst}, v{t_a}, 4, v{dst}", f"v_bfe_u32 v{t_a}, v0, 1, 1",
            f"v_lshl_add_u32 v{dst}, v{t_a}, 3, v{dst}", f"v_lshrrev_b32 v{t_b}, 1, v{t_b}", f"v_lshl_add_u32 v{dst}, v{t_b}, 5, v{dst}"]


def split3(w, src):
    return [f"v_and_b32 v{w}, v{MASK}, v{src}", f"v_sub_f32 v{w + 2}, v{src}, v{w}",
            f"v_and_b32 v{w + 1}, v{MASK}, v{w + 2}", f"v_sub_f32 v{w + 2}, v{w + 2}, v{w + 1}", f"v_mov_b32 v{w + 3}, 0"]


def poll_issue(lbl, mask_instrs, reg=POLL):
    return ([f"s_cmp_lg_u32 s{sW}, 0", f"s_cbranch_scc1 {lbl}", "v_lshlrev_b32 v1, 8, v0"] + mask_instrs +
            ["s_mov_b64 exec, s[40:41]",
             f"buffer_load_dword v{reg}, v1, {sr(S_WS)}, s{sCNT} offen sc1", "s_mov_b64 exec, -1", f"{lbl}:"])


def poll_check(lbl, thr, reg=POLL, sleep=8):
    return [f"s_cmp_lg_u32 s{sW}, 0", f"s_cbranch_scc1 {lbl}_ok",
            f"s_mov_b32 s{T3}, {SPIN}", "s_mov_b64 exec, s[40:41]", f"{lbl}_spin:",
            f"v_cmp_gt_u32 vcc, {thr}, v{reg}", "s_cmp_eq_u64 vcc, 0", f"s_cbranch_scc1 {lbl}_done",
            f"s_sleep {sleep}",
            f"buffer_load_dword v{reg}, v1, {sr(S_WS)}, s{sCNT} offen sc1", "s_waitcnt vmcnt(0)",
            f"s_sub_u32 s{T3}, s{T3}, 1", f"s_cmp_lg_u32 s{T3}, 0", f"s_cbranch_scc1 {lbl}_spin",
            f"{lbl}_done:", "s_mov_b64 exec, -1", f"{lbl}_ok:"]


QKV_MASK = [f"s_lshl_b32 s40, 0x10101, s{sXCD}", "s_mov_b32 s41, 0"]
CS_MASK = ["s_mov_b32 s40, 0", f"s_lshl_b32 s41, 0x100, s{sCF}"]
H_MASK = ["s_mov_b32 s40, 0xff000000", "s_mov_b32 s41, 0xff"]


def cs_issue(lbl, n):
    return [f"s_cmp_lg_u32 s{sW}, 0", f"s_cbranch_scc1 {lbl}", "v_lshlrev_b32 v1, 6, v0", "s_mov_b64 exec, 15",
            f"global_load_dword v{POLL}, v1, s[{pDBG}:{pDBG + 1}] offset:{4 * n} sc1", "s_mov_b64 exec, -1", f"{lbl}:"]


def cs_signal(lbl, n):
    return [f"s_cmp_lg_u32 s{sW}, 0", f"s_cbranch_scc1 {lbl}", f"s_and_b32 s{T2}, s{sRB}, 3", f"s_lshl_b32 s{T2}, s{T2}, 6",
            f"v_mov_b32 v2, s{T2}", "v_mov_b32 v3, 1", "s_mov_b64 exec, 1",
            f"global_atomic_add v2, v3, s[{pDBG}:{pDBG + 1}] offset:{4 * n} sc1", "s_mov_b64 exec, -1", f"{lbl}:"]


def cs_check(lbl, n):
    return [f"s_cmp_lg_u32 s{sW}, 0", f"s_cbranch_scc1 {lbl}_ok",
            f"s_mov_b32 s{T3}, {SPIN}", "s_mov_b64 exec, 15", f"{lbl}_spin:",
            f"v_cmp_gt_u32 vcc, 8, v{POLL}", "s_cmp_eq_u64 vcc, 0", f"s_cbranch_scc1 {lbl}_done",
            "s_sleep 8",
            f"global_load_dword v{POLL}, v1, s[{pDBG}:{pDBG + 1}] offset:{4 * n} sc1", "s_waitcnt vmcnt(0)",
            f"s_sub_u32 s{T3}, s{T3}, 1", f"s_cmp_lg_u32 s{T3}, 0", f"s_cbranch_scc1 {lbl}_spin",
            f"{lbl}_done:", "s_mov_b64 exec, -1", f"{lbl}_ok:"]


def flag_check(lbl):
    return [f"s_cmp_lg_u32 s{sW}, 0", f"s_cbranch_scc1 {lbl}",
            f"s_mov_b32 s{T3}, {SPIN}", f"{lbl}_spin:",
            f"v_readfirstlane_b32 s{T2}, v{POLL}", f"s_cmp_lg_u32 s{T2}, 0", f"s_cbranch_scc1 {lbl}",
            "s_sleep 8", "v_mov_b32 v2, 0",
            f"global_load_dword v{POLL}, v2, s[{pDBG}:{pDBG + 1}] offset:32 sc1", "s_waitcnt vmcnt(0)",
            f"s_sub_u32 s{T3}, s{T3}, 1", f"s_cmp_lg_u32 s{T3}, 0", f"s_cbranch_scc1 {lbl}_spin", f"{lbl}:"]


def sig_qkv(lbl):
    return [f"s_cmp_lg_u32 s{sW}, 0", f"s_cbranch_scc1 {lbl}",
            f"s_mul_i32 s{T2}, s{sCB}, 3", f"s_lshr_b32 s{T2}, s{T2}, 1", f"s_and_b32 s{T3}, s{sCB}, 1",
            f"v_add_u32 v2, s{T2}, v0", "v_lshlrev_b32 v2, 8, v2",
            f"v_xor_b32 v3, s{T3}, v0", "v_sub_u32 v3, 2, v3",
            "s_mov_b64 exec, 3", f"buffer_atomic_add v3, v2, {sr(S_WS)}, s{sCNT} offen sc1", "s_mov_b64 exec, -1", f"{lbl}:"]


def sig_one(lbl, idx_instrs, skip_side=False):
    c = [f"s_or_b32 s{T0}, s{sW}, s{sISS}"] if skip_side else [f"s_cmp_lg_u32 s{sW}, 0"]
    return (c + [f"s_cbranch_scc1 {lbl}"] + idx_instrs +
            [f"s_lshl_b32 s{T0}, s{T0}, 8", f"s_add_u32 s{T0}, s{T0}, s{sCNT}", "v_mov_b32 v3, 1", "s_mov_b64 exec, 1",
             f"buffer_atomic_add v3, off, {sr(S_WS)}, s{T0} sc1", "s_mov_b64 exec, -1", f"{lbl}:"])


def kv(i, r=L16):
    return [[f"s_lshl1_add_u32 m0, s{sLW}, {i * 16384}" if i else f"s_lshl_b32 m0, s{sLW}, 1",
             f"s_add_u32 s{T2}, s{sKV}, {i * 8192}",
             f"buffer_load_dwordx4 v{r}, {sr(S_WS)}, s{T2} offen sc1 lds"],
            [f"s_lshl1_add_u32 m0, s{sLW}, {i * 16384 + 1024}", f"s_add_u32 s{T2}, s{sKV}, {i * 8192 + (32 << 16)}",
             f"buffer_load_dwordx4 v{r}, {sr(S_WS)}, s{T2} offen sc1 lds"]]


def q_load():
    return [f"s_lshl_b32 s{T2}, s{tHEAD}, 6", f"s_add_u32 s{T2}, s{T2}, s{sQT}", f"s_lshl_b32 s{T2}, s{T2}, 10",
            f"buffer_load_dwordx4 {vr(Q_, 4)}, v{L16}, {sr(S_WS)}, s{T2} offen sc1"]


def sent_store(r, l):
    if "sen" not in OPT:
        return []
    return [f"s_lshl_b32 s{T0}, s{sQT}, 5", f"s_add_u32 s{T0}, s{T0}, s{tHEAD}", f"s_lshl_b32 s{T0}, s{T0}, 10", f"s_add_u32 s{T0}, s{T0}, {WS_O}",
            f"v_mov_b64 v[{r}:{r + 1}], -1", f"v_mov_b64 v[{r + 2}:{r + 3}], -1",
            f"buffer_store_dwordx4 {vr(r, 4)}, v{l}, {sr(S_WS)}, s{T0} offen sc1"]


def p2_init_v():
    return ([["v_and_b32 v3, 27, v0", "v_cmp_eq_u32 vcc, 16, v3", f"v_mov_b32 v{V_ + 1}, 0x3f803f80", "v_mov_b32 v3, 0",
              f"v_cndmask_b32 v{V_}, v3, v{V_ + 1}, vcc", f"v_mov_b32 v{V_ + 1}, v{V_}"]] +
            [f"v_mov_b64 v[{V_ + i}:{V_ + i + 1}], v[{V_}:{V_ + 1}]" for i in range(2, 32, 2)])


TRA, TRD = 142, 144


def tr_setup():
    A, B, C, D = T2, T3, tVM + 1, tVM
    return [[f"s_sub_u32 s{C}, s2, 32", f"s_mul_i32 s{D}, s{sW}, 144", f"s_add_u32 s{D}, s{D}, s{C}", f"s_lshl_b32 s{D}, s{D}, 11",
             f"s_add_u32 s{D}, s{D}, {WS_WT}", f"s_cmp_lt_u32 s{C}, 144", f"s_cselect_b32 s{D}, s{D}, {OOB}",
             f"s_cmp_lt_u32 s{C}, 112", f"s_cselect_b32 s{S_T}, s{pWD}, s{pWO}",
             f"s_cselect_b32 s{S_T + 1}, s{pWD + 1}, s{pWO + 1}", f"s_mov_b32 s{S_T + 2}, 1835008",
             f"s_cselect_b32 s{S_T + 2}, s{S_T + 2}, 524288", f"s_cselect_b32 s{A}, 0, 112", f"s_mov_b32 s{S_T + 3}, 0x00020000",
             f"s_sub_u32 s{C}, s{C}, s{A}", f"s_lshl_b32 s{C}, s{C}, 14", f"s_lshl_b32 s{B}, s{sW}, 7", f"s_add_u32 s{C}, s{C}, s{B}"],
            ["v_lshrrev_b32 v2, 3, v0", "v_and_b32 v3, 2, v2", "v_and_b32 v18, 7, v0", "v_xor_b32 v18, v3, v18",
             "v_lshlrev_b32 v18, 4, v18", "v_lshl_add_u32 v18, v2, 10, v18"]]


def tr_dma():
    C = tVM + 1
    return [[f"s_lshl_b32 m0, s{sLW}, 1", f"s_add_u32 s{T3}, s{C}, 8192", f"buffer_load_dwordx4 v18, {sr(S_T)}, s{C} offen lds",
             "s_add_u32 m0, m0, 1024", "s_nop 0", f"buffer_load_dwordx4 v18, {sr(S_T)}, s{T3} offen lds"]]


def tr_rd():
    return [f"ds_read_b64_tr_b16 {vr(TRD + 4 * ap + 2 * t, 2)}, v{TRA + ap} offset:{t * 1024}" for ap in range(2) for t in range(2)]


def tr_st():
    return [f"buffer_store_dwordx4 {vr(TRD, 4)}, v{L16}, {sr(S_WS)}, s{tVM} offen sc1",
            f"buffer_store_dwordx4 {vr(TRD + 4, 4)}, v{L16}, {sr(S_WS)}, s{tVM} offen offset:1024 sc1"]


def gen_p1(a):
    global NOSTAMP
    a("s_cmp_ge_u32 s2, 256")
    a("s_cbranch_scc1 L_exit")
    stamp(a, 0)
    a(f"s_load_dwordx4 s[{pX}:{pX + 3}], s[0:1], 0")
    a(f"s_load_dwordx4 s[{pG}:{pG + 3}], s[0:1], 32")
    a(f"s_load_dwordx2 s[{pWO}:{pWO + 1}], s[0:1], 16")
    a(f"s_load_dwordx4 s[{pWD}:{pWD + 3}], s[0:1], 48")
    a(f"s_load_dwordx4 s[{pDBG}:{pDBG + 3}], s[0:1], 64")
    a("v_lshrrev_b32 v1, 6, v0")
    a("v_and_b32 v0, 63, v0")
    a(f"v_readfirstlane_b32 s{sW}, v1")
    a("s_cmp_ge_u32 s2, 32")
    a("s_cbranch_scc1 L_nocode")
    a("s_getpc_b64 s[40:41]")
    a("L_here:")
    a("v_lshlrev_b32 v2, 13, v1")
    a("v_lshl_add_u32 v2, v0, 7, v2")
    a("v_min_u32 v2, L_end-L_here-4, v2")
    a("v_mov_b32 v3, s41")
    a("v_add_co_u32 v2, vcc, s40, v2")
    a("s_nop 1")
    a("v_addc_co_u32 v3, vcc, 0, v3, vcc")
    a(f"global_load_dword v{STV}, v[2:3], off")
    a("L_nocode:")
    a(f"s_and_b32 s{sXCD}, s2, 7")
    a(f"s_lshr_b32 s{T1}, s2, 3")
    a(f"s_and_b32 s{sRB}, s{sXCD}, 3")
    a(f"s_and_b32 s{T2}, s{T1}, 3")
    a(f"s_lshl2_add_u32 s{sRB}, s{sRB}, s{T2}")
    a(f"s_lshr_b32 s{sCF}, s{sXCD}, 2")
    a(f"s_lshr_b32 s{sISS}, s{T1}, 2")
    a(f"s_lshl3_add_u32 s{sCB}, s{sCF}, s{sISS}")
    a(f"s_lshl1_add_u32 s{sROT}, s{sXCD}, s{sISS}")
    a(f"s_lshl_b32 s{sLW}, s{sW}, 10")
    a(f"s_lshl_b32 s{T2}, s{sW}, 3")
    a(f"s_lshl_b32 s{sXROW}, s{sRB}, 7")
    a(f"s_add_u32 s{sXROW}, s{sXROW}, s{T2}")
    a(f"s_lshl_b32 s{sXROW}, s{sXROW}, 10")
    a(f"s_mul_i32 s{sCQ}, s{sCB}, 3")
    a(f"s_lshr_b32 s{sCQ}, s{sCQ}, 1")
    a(f"s_lshl_b32 s{sCQ}, s{sCQ}, 7")
    a(f"s_mul_i32 s{T3}, s{T2}, 3072")
    a(f"s_add_u32 s{sCQ}, s{sCQ}, s{T3}")
    a(f"s_mul_i32 s{T3}, s{T2}, 3584")
    a(f"s_sub_u32 s{sCF}, s{sCB}, s{sCF}")
    a(f"s_sub_u32 s{sCF}, s{sCF}, 1")
    a(f"s_lshl_b32 s{sCG}, s{sCF}, 8")
    a(f"s_add_u32 s{sCG}, s{sCG}, s{T3}")
    a(f"s_cmp_eq_u32 s{sISS}, 0")
    a(f"s_cselect_b32 s{sISS}, 1, 0")
    a(f"s_cselect_b32 s{sCG}, {OOB}, s{sCG}")
    a("v_lshrrev_b32 v1, 3, v0")
    a("v_and_b32 v2, 7, v0")
    a(f"v_add_u32 v3, s{T2}, v1")
    a("v_bfe_u32 v3, v3, 1, 3")
    a("v_xor_b32 v3, v3, v2")
    a("v_lshlrev_b32 v3, 4, v3")
    a(f"v_lshl_add_u32 v{VXS}, v1, 10, v3")
    a("v_and_b32 v3, 2, v1")
    a("v_lshlrev_b32 v3, 1, v3")
    a("v_xor_b32 v3, v3, v2")
    a("v_lshlrev_b32 v3, 4, v3")
    a("v_mul_u32_u24 v4, 3072, v1")
    a(f"v_add_u32 v{VW0}, v4, v3")
    a("v_mul_u32_u24 v4, 3584, v1")
    a(f"v_add_u32 v{VW1}, v4, v3")
    a(f"v_xor_b32 v{VW3}, 32, v{VW1}")
    for r_, sz in ((S_X, 2097152), (S_W0, 1572864), (S_W1, 1835008), (S_W3, 1835008)):
        a(f"s_mov_b32 s{r_ + 2}, {sz}")
        a(f"s_mov_b32 s{r_ + 3}, 0x00020000")
    a("s_waitcnt lgkmcnt(0)")
    for r_, p_ in ((S_X, pX), (S_W0, pWQKV), (S_W1, pG), (S_W3, pU)):
        a(f"s_mov_b64 s[{r_}:{r_ + 1}], s[{p_}:{p_ + 1}]")
    a(f"s_cmp_eq_u32 s{sISS}, 1")
    a("s_cbranch_scc1 L_nod0")
    a(dma(0))
    if "tlb" in OPT:
        a("s_branch L_nod1")
    a("L_nod0:")
    if "tlb" in OPT:
        a(f"s_and_b32 s{T0}, s{sRB}, 3")
        a(f"s_lshl2_add_u32 s{T0}, s{sW}, s{T0}")
        a(f"s_sub_u32 s{T1}, s{T0}, 4")
        a(f"s_min_u32 s{T1}, s{T1}, 10")
        a(f"s_lshl_b32 s{T1}, s{T1}, 21")
        a(f"s_add_u32 s40, s{pWS}, s{T1}")
        a(f"s_addc_u32 s41, s{pWS + 1}, 0")
        for i, p_ in ((0, pG), (1, pU), (2, pWQKV), (3, pDBG), (15, pWD), (16, pWO), (17, pOUT)):
            a(f"s_cmp_eq_u32 s{T0}, {i}")
            a(f"s_cselect_b64 s[40:41], s[{p_}:{p_ + 1}], s[40:41]")
        a("v_mov_b32 v3, 0")
        a("s_mov_b64 exec, 1")
        a(f"global_load_dword v{STV}, v3, s[40:41] offset:192 sc1")
        a("s_mov_b64 exec, -1")
        a("L_nod1:")
    a(f"v_lshlrev_b32 v{L16}, 4, v0")
    a(f"s_and_b32 s{sTT}, s{sW}, 3")
    a(f"s_lshr_b32 s{sHF}, s{sW}, 2")
    a(f"s_mov_b32 s{sCNT}, {WS_CNT}")
    srd(a, S_WS, pWS, WS_SIZE)
    a(f"s_lshl2_add_u32 s{sT}, s{sRB}, s{sTT}")
    a(f"s_mul_i32 s{sG}, s{sCB}, 3")
    a(f"s_lshl1_add_u32 s{sG}, s{sHF}, s{sG}")
    a(f"s_cmp_ge_u32 s{sG}, 32")
    a(f"s_cselect_b32 s{sVAR}, 2, 0")
    a(f"s_add_u32 s{sVAR}, s{sVAR}, s{sHF}")
    a(f"s_lshl_b32 s{sG}, s{sG}, 1")
    a(f"s_lshr_b32 s{T1}, s2, 3")
    a(f"s_and_b32 s{T2}, s{T1}, 3")
    a(f"s_lshl2_add_u32 s{tHEAD}, s{sXCD}, s{T2}")
    a(f"s_lshr_b32 s{tQB}, s{T1}, 2")
    if "pws" in OPT:
        a(f"s_lshl1_add_u32 s{sQT}, s{sTT}, s{sHF}")
        a(f"s_lshl3_add_u32 s{sQT}, s{tQB}, s{sQT}")
    else:
        a(f"s_lshl3_add_u32 s{sQT}, s{tQB}, s{sW}")
    a(f"s_lshl_b32 s{sKV}, s{tHEAD}, 16")
    a(f"s_add_u32 s{sKV}, s{sKV}, s{sLW}")
    a(f"s_add_u32 s{sKV}, s{sKV}, {32 << 16}")
    t4, t6, t7 = WF, WF + 1, WF + 2
    a("v_and_b32 v1, 31, v0")
    a("v_lshrrev_b32 v2, 5, v0")
    a("v_bfe_u32 v3, v0, 1, 3")
    a("v_xor_b32 v3, v3, v2")
    a("v_lshlrev_b32 v3, 4, v3")
    a("v_lshl_add_u32 v3, v1, 7, v3")
    a(f"s_lshl_b32 s{T0}, s{sTT}, 12")
    a(f"v_add_u32 v{XA}, s{T0}, v3")
    for i in range(1, 4):
        a(f"v_xor_b32 v{XA + i}, {32 * i}, v{XA}")
    a("v_bfe_u32 v3, v0, 2, 2")
    a(f"v_lshl_add_u32 v{t4}, v2, 3, v3")
    a(f"v_lshlrev_b32 v{t4}, 7, v{t4}")
    a(f"v_and_b32 v{t7}, 3, v0")
    a(f"v_lshl_add_u32 v{t4}, v{t7}, 3, v{t4}")
    a("v_and_b32 v3, 2, v3")
    a(f"v_bfe_u32 v{t7}, v0, 4, 1")
    a(f"v_xor_b32 v3, v3, v{t7}")
    a(f"s_and_b32 s{T0}, s{sCB}, 1")
    a(f"s_lshl1_add_u32 s{T0}, s{sHF}, s{T0}")
    for t in range(2):
        a(f"s_and_b32 s{T1}, s{T0}, 1")
        a(f"s_lshl_b32 s{T1}, s{T1}, 1")
        a(f"s_lshr_b32 s{T2}, s{T0}, 1")
        a(f"s_lshl_b32 s{T2}, s{T2}, 13")
        a(f"s_add_u32 s{T2}, s{T2}, {BR}")
        a(f"v_xor_b32 v{t6}, s{T1}, v3")
        a(f"v_lshl_add_u32 v{t6}, v{t6}, 5, v{t4}")
        a(f"v_add_u32 v{WQ + t}, s{T2}, v{t6}")
        if t == 0:
            a(f"s_add_u32 s{T0}, s{T0}, 1")
    a(f"v_lshl_add_u32 v{t4}, v{t7}, 13, v{t4}")
    a(f"v_add_u32 v{t4}, {CR}, v{t4}")
    a(f"s_lshl_b32 s{T0}, s{sHF}, 1")
    a(f"v_xor_b32 v{t6}, s{T0}, v3")
    a(f"v_lshl_add_u32 v{WC}, v{t6}, 5, v{t4}")
    a(f"v_xor_b32 v{WC + 1}, 32, v{WC}")
    a(f"v_mov_b32 v{MASK}, 0xffff0000")
    a(f"v_mov_b32 v{ONES}, 0x3f80")
    a(f"s_cmp_eq_u32 s{sISS}, 1")
    a("s_cbranch_scc1 L_side1")
    a([f"s_lshl_b32 s{T0}, s{sW}, 8", f"s_or_b32 s{T0}, s2, s{T0}", f"s_cmp_lg_u32 s{T0}, 32", "s_cbranch_scc1 L_nozero",
       "v_mov_b32 v1, 0", "v_lshlrev_b32 v2, 8, v0", f"buffer_store_dword v1, v2, {sr(S_WS)}, s{sCNT} offen sc1",
       "v_add_u32 v2, 0x4000, v2", f"buffer_store_dword v1, v2, {sr(S_WS)}, s{sCNT} offen sc1"] +
      ([f"buffer_store_dword v1, v2, {sr(S_WS)}, s{sCNT} offen offset:128 sc1", "v_add_u32 v2, 0x4000, v2",
        f"buffer_store_dword v1, v2, {sr(S_WS)}, s{sCNT} offen sc1",
        f"buffer_store_dword v1, v2, {sr(S_WS)}, s{sCNT} offen offset:128 sc1"] if ("rep" in OPT or "pws" in OPT) else []) + ["L_nozero:"])
    a(dma(1))
    stamp(a, 1)
    for v in range(1, 4):
        a(f"s_cmp_eq_u32 s{sVAR}, {v}")
        a(f"s_cbranch_scc1 L_p1_{v}")
    XOP, RS = XA, 22
    CL, RU, ta, tb, tc = 224, 232, 240, 241, 242
    cs_loads = [[f"s_bitcmp1_b32 s{sRB}, 1", f"s_cselect_b32 s{S_T}, s{pU}, s{pG}", f"s_cselect_b32 s{S_T + 1}, s{pU + 1}, s{pG + 1}",
                 f"s_mov_b32 s{S_T + 2}, 1835008", f"s_mov_b32 s{S_T + 3}, 0x00020000",
                 f"s_add_u32 s{T2}, s{sROT}, {CSO}", f"s_lshl2_add_u32 s{T2}, s{T2}, s{sW}", f"s_and_b32 s{T2}, s{T2}, 31",
                 f"s_mul_i32 s{T2}, s{T2}, {16 * 3584}",
                 f"s_and_b32 s{T3}, s{sRB}, 1", f"s_lshl1_add_u32 s{T3}, s{sCF}, s{T3}", f"s_lshl_b32 s{T3}, s{T3}, 7", f"s_add_u32 s{T2}, s{T2}, s{T3}",
                 f"v_lshrrev_b32 v{ta}, 3, v0", f"v_mul_u32_u24 v{ta}, 3584, v{ta}", f"v_and_b32 v{tb}, 7, v0", f"v_lshl_add_u32 v{ta}, v{tb}, 4, v{ta}",
                 f"buffer_load_dwordx4 {vr(CL, 4)}, v{ta}, {sr(S_T)}, s{T2} offen"],
                [f"s_add_u32 s{T2}, s{T2}, {8 * 3584}", f"buffer_load_dwordx4 {vr(CL + 4, 4)}, v{ta}, {sr(S_T)}, s{T2} offen"]]
    SE, DD, RV = 244, 248, 224
    sel = [f"v_and_b32 v{tb}, 15, v0", f"v_and_b32 v{tc}, 1, v0", f"v_lshlrev_b32 v{tc}, 4, v{tc}", f"v_lshlrev_b32 v{tc}, v{tc}, v{ONES}",
           f"v_lshrrev_b32 v{tb}, 1, v{tb}"]
    for i in range(4):
        sel += [[f"v_cmp_eq_u32 vcc, {i}, v{tb}", "s_nop 1", f"v_cndmask_b32 v{SE + i}, 0, v{tc}, vcc"]]
    m16 = lambda c, b_: f"v_mfma_f32_16x16x32_bf16 {vr(DD, 4)}, {vr(SE, 4)}, {vr(b_, 4)}, {c}"
    csv = {8: sel[:5], 9: sel[5:],
           10: [f"v_and_b32 v{tb}, 15, v0", f"v_lshlrev_b32 v{tb}, 5, v{tb}", f"v_lshrrev_b32 v{tc}, 4, v0", f"v_lshl_add_u32 v{tb}, v{tc}, 4, v{tb}",
               [f"s_lshl_b32 s40, s2, 12", f"s_add_u32 s40, s40, {WS_CP}", f"s_lshl_b32 s41, s{sW}, 9", "s_add_u32 s41, s41, s40"]]}
    cs_mm = [m16("0", CL), m16(vr(DD, 4), CL + 4)]
    cs_st = ["s_mov_b32 exec_hi, 0", f"buffer_store_dwordx4 {vr(DD, 4)}, v{tb}, {sr(S_WS)}, s41 offen" + (" sc1" if "csw" in OPT else ""), "s_mov_b32 exec_hi, -1"]
    cs_l2 = lambda lb: ([f"s_cmp_lg_u32 s{sW}, 0", f"s_cbranch_scc1 {lb}"] +
                        [f"buffer_load_dwordx4 {vr(RV + 4 * i, 4)}, v{L16}, {sr(S_WS)}, s40 offen offset:{1024 * i} sc1" for i in range(4)] + [f"{lb}:"])
    cs_r2 = lambda lb: ([f"s_cmp_lg_u32 s{sW}, 0", f"s_cbranch_scc1 {lb}"] +
                        [f"v_add_f32 v{RV + i}, v{RV + i}, v{RV + 8 + i}" for i in range(8)] +
                        [f"v_add_f32 v{RV + i}, v{RV + i}, v{RV + 4 + i}" for i in range(4)] +
                        [f"v_and_b32 v{ta}, 15, v0", f"v_lshrrev_b32 v{tc}, 4, v0",
                         f"v_permlane16_swap_b32 v{RV}, v{RV + 1}", f"v_permlane16_swap_b32 v{RV + 2}, v{RV + 3}",
                         f"v_add_f32 v{RV}, v{RV}, v{RV + 1}", f"v_add_f32 v{RV + 2}, v{RV + 2}, v{RV + 3}",
                         f"v_lshl_add_u32 v{ta}, v{ta}, 2, v{tc}", f"v_lshlrev_b32 v{ta}, 2, v{ta}",
                         f"v_permlane32_swap_b32 v{RV}, v{RV + 2}", f"v_add_f32 v{RV}, v{RV}, v{RV + 2}",
                         f"s_bfe_u32 s40, s{sRB}, 0x10001", "s_mul_i32 s40, s40, 28", f"s_and_b32 s41, s{sRB}, 1", "s_add_u32 s40, s40, s41",
                         f"s_lshl1_add_u32 s40, s{sCF}, s40", f"s_lshr_b32 s41, s{sRB}, 2", "s_lshl2_add_u32 s40, s40, s41",
                         "s_lshl_b32 s40, s40, 8", f"s_add_u32 s40, s40, {WS_CS}",
                         f"buffer_store_dword v{RV}, v{ta}, {sr(S_WS)}, s40 offen sc1", f"{lb}:"])
    for var in VARS:
        hf, isv, ffn = var & 1, (var >> 1) & 1, var < 4
        nt = 2 - hf
        cnt = lambda S: len(dma(S, ffn))
        a(f"L_p1_{var}:")
        if ffn and "cse" in OPT:
            a(cs_loads)
        a(f"s_waitcnt vmcnt({cnt(1) + (2 if (ffn and 'cse' in OPT) else 0)})")
        a("s_barrier")
        stamp(a, 2)
        if var == 0:
            a([f"s_lshl_b32 s{T0}, s{sW}, 8", f"s_or_b32 s{T0}, s2, s{T0}", f"s_cmp_lg_u32 s{T0}, 32", "s_cbranch_scc1 L_noflag",
               "v_mov_b32 v2, 0", "v_mov_b32 v3, 1", "s_mov_b64 exec, 1",
               f"global_store_dword v2, v3, s[{pDBG}:{pDBG + 1}] offset:32 sc1", "s_mov_b64 exec, -1", "L_noflag:"])
        a(rd1(0, nt, ffn))
        a(rd1(1, nt, ffn))
        bgq = dma(2, ffn)
        if ffn and "cs1" in OPT:
            bgq = cs_loads + bgq
        held = []
        sl7 = (7 % 3) * SL
        qrd = lambda h: [f"ds_read_b64_tr_b16 {vr(WF + 16 * h + 8 * q + 4 * t + 2 * t2, 2)}, v{WQ + t} offset:{sl7 + (2 * h + q) * 2048 + t2 * 512}"
                         for q in range(2) for t in range(nt) for t2 in range(2)]
        frd = lambda h: [f"ds_read_b64_tr_b16 {vr(WF + 16 * h + 8 * q + 4 * c + 2 * t2, 2)}, v{WC + c} offset:{sl7 + (2 * h + q) * 2048 + t2 * 512}"
                         for q in range(2) for c in range(2) for t2 in range(2)]
        CK = 5 if ffn else 6
        prep = [f"v_lshlrev_b32 v2, 16, v{STV}", f"v_rcp_f32 v{RS}, v2"]
        for t in range(nt):
            w = CSA + 4 * t
            prep += [f"v_add_f32 v{w}, v{w}, v{w + 1}", f"v_add_f32 v{w + 2}, v{w + 2}, v{w + 3}", f"v_add_f32 v{w + 3}, v{w}, v{w + 2}"] + split3(w, w + 3)
        for k in range(28 if ffn else 32):
            S, ks = k >> 2, k & 3
            F = fset(k, ffn)
            x = XF + 4 * k
            c0 = "0" if k == 0 else None
            big = [mfma(ACQ + 16 * t, x, F + 4 * t, c0) if isv else mfma(ACQ + 16 * t, F + 4 * t, x, c0) for t in range(nt)]
            light = not ffn or k < 8
            if not light:
                big += [mfma(ACF + 16 * c, F + 8 + 4 * c, x - 32, "0" if k == 8 else None) for c in range(2)]
            if light and k % 2 == 0 and k < 30:
                held = big
                continue
            big, held = held + big, []
            val = []
            if ks == 3:
                n = cnt(S + 2) + ({(0 if ('cse' in OPT or 'cs1' in OPT) else 1): 2}.get(S, 0) if ffn else 0)
                a(f"s_waitcnt vmcnt({n}) lgkmcnt(0)")
                if S == CK and not hf: a(cs_check(f"L_c1{var}", 0))
                if S < 7: a("s_barrier")
                if "p1b" in OPT: stamp(a, 4 + S)
                if ffn and S == 2:
                    big = cs_mm + big
                    bgq.append(cs_st)
                if ffn and S == 3 and not hf: bgq.append(cs_l2(f"L_l2{var}"))
                if ffn and S == 4 and not hf: bgq.append(cs_r2(f"L_r2{var}"))
                if S == 3 and not hf:
                    bgq.append([f"s_cmp_lg_u32 s{sW}, 0", f"s_cbranch_scc1 L_nofl{var}", "v_mov_b32 v2, 0",
                                f"global_load_dword v{POLL}, v2, s[{pDBG}:{pDBG + 1}] offset:32 sc1", f"L_nofl{var}:"])
                if S == CK - 1 and not hf:
                    bgq.append(flag_check(f"L_fc{var}") + cs_issue(f"L_i1{var}", 0))
                if S == 5 and ffn and not hf:
                    bgq.append(sig_one(f"L_sc{var}", [f"s_add_u32 s{T0}, s{sCF}, {C_CS}"]))
                if S == 5:
                    ad = [f"v_and_b32 v{VXS}, 31, v0", f"v_lshlrev_b32 v{VXS}, 2, v{VXS}", "v_lshrrev_b32 v3, 5, v0",
                          f"v_lshl_add_u32 v{VW0}, v3, 10, v{VXS}", f"s_lshl_b32 s{T2}, s{sT}, 7", f"s_add_u32 s{T2}, s{T2}, {WS_ST}"]
                    for t in range(nt):
                        ad += [f"s_add_u32 s{T3}, s{sG}, {2 * t}", f"s_lshr_b32 s{40 + t}, s{T3}, 2", f"s_lshl_b32 s{40 + t}, s{40 + t}, 11",
                               f"s_and_b32 s{T3}, s{T3}, 2", f"s_lshl_b32 s{T3}, s{T3}, 6", f"s_add_u32 s{40 + t}, s{40 + t}, s{T3}",
                               f"s_add_u32 s{40 + t}, s{40 + t}, {WS_CQ}"]
                    bgq.append(ad)
                if S == CK:
                    ld = [f"buffer_load_dword v{STV}, v{VXS}, {sr(S_WS)}, s{T2} offen sc1"]
                    for t in range(nt):
                        ld += [f"buffer_load_dword v{CSA + 4 * t + i}, v{VW0}, {sr(S_WS)}, s{40 + t} offen offset:{256 * i} sc1" for i in range(4)]
                    if isv:
                        ld += [f"s_lshl_b32 s{T3}, s{sW}, 8", f"s_add_u32 m0, s{T3}, {SCR}", f"s_add_u32 s{T2}, s{T2}, {WS_RS - WS_ST}",
                               f"buffer_load_dword v{VXS}, {sr(S_WS)}, s{T2} offen sc1 lds"]
                    bgq += [ld[:5], ld[5:]]
                if S == 6 and ffn:
                    if not hf: bgq.append(poll_issue(f"L_i2{var}", CS_MASK))
                    val = prep
                if S < 7: bgq += dma(S + 3, ffn)
                if S == 0 and ffn and "cse" not in OPT and "cs1" not in OPT: bgq += cs_loads
                if S == 5 and isv:
                    bgq.append([f"s_lshl_b32 s{T3}, s{sW}, 8", f"s_add_u32 s{T3}, s{T3}, {SCR}",
                                "v_lshrrev_b32 v3, 5, v0", "v_lshlrev_b32 v18, 4, v3", f"v_add_u32 v18, s{T3}, v18",
                                "v_bfe_u32 v23, v0, 4, 1", "v_lshlrev_b32 v23, 16, v23", "v_lshl_add_u32 v23, v3, 8, v23",
                                "v_and_b32 v3, 15, v0", "v_lshl_add_u32 v23, v3, 4, v23"])
            elif k == 30:
                a("s_waitcnt vmcnt(0) lgkmcnt(0)")
                val = prep
            else:
                a("s_waitcnt lgkmcnt(0)")
            if k == 31:
                break
            if ffn and k in csv: val = csv[k]
            left = 4 if ks == 3 else 3 - ks
            if k == 27: left = 3
            if not ffn: left = 2 if (ks == 3 and S < 6) else 1
            if ffn and k < 7: left = 2 if ks == 3 else 1
            take = -(-len(bgq) // left)
            extra, bgq = bgq[:take], bgq[take:]
            if ffn and k >= 7:
                nxt = rd1(k + 1, nt, ffn) if k < 27 else \
                    [f"ds_read_b128 {vr(XF + 4 * (28 + j), 4)}, v{XA + j} offset:{sl7}" for j in range(4)] + qrd(0)
            else:
                nxt = [] if k == 30 else rd1(k + 1, nt, ffn) + rd1(k + 2, nt, ffn)
            body = spread(big, nxt, val + [[]] * len(extra) + extra)
            a(body)
        pre = [f"v_and_b32 v{XOP}, v{MASK}, v{STV}", f"v_mov_b32 v{XOP + 3}, 0", f"v_mov_b32 v{XOP + 1}, v{XOP}", f"v_mov_b32 v{XOP + 2}, v{XOP}"]
        corr = [mfma(ACQ + 16 * t, XOP, CSA + 4 * t) if isv else mfma(ACQ + 16 * t, CSA + 4 * t, XOP) for t in range(nt)]
        post = [f"s_lshl_b32 s{T4}, s{sG}, 16", f"s_lshl_b32 s{T2}, s{sT}, 10", f"s_add_u32 s{T4}, s{T4}, s{T2}"]

        def stores(t):
            o = ACQ + 16 * t
            if isv:
                return [[f"buffer_store_dwordx4 {vr(o, 4)}, v23, {sr(S_WS)}, s{T4} offen sc1"],
                        [f"buffer_store_dwordx4 {vr(o + 4, 4)}, v23, {sr(S_WS)}, s{T4} offen offset:512 sc1", f"s_add_u32 s{T4}, s{T4}, 0x20000"]]
            return [[f"buffer_store_dwordx4 {vr(o, 4)}, v{L16}, {sr(S_WS)}, s{T4} offen sc1", f"s_add_u32 s{T4}, s{T4}, 0x10000"],
                    [f"buffer_store_dwordx4 {vr(o + 4, 4)}, v{L16}, {sr(S_WS)}, s{T4} offen sc1", f"s_add_u32 s{T4}, s{T4}, 0x10000"]]
        if not ffn:
            assert not bgq
            stamp(a, 3)
            a(big[:1] + pre + ["s_nop 1"] + big[1:nt] + corr + post + ["s_nop 7"])
            for t in range(nt):
                ac = ACQ + 16 * t
                a(f"s_cmp_lt_u32 s{sG}, {32 - 2 * t}")
                a(f"s_cselect_b32 s{T0}, {hx(f2u(QSCALE))}, 1.0")
                a(f"v_mul_f32 v2, s{T0}, v{RS}")
                a(f"v_mul_f32 v3, s{T0}, v{RS}")
                for i in range(8):
                    a(f"v_pk_mul_f32 {vr(ac + 2 * i, 2)}, {vr(ac + 2 * i, 2)}, v[2:3]")
                for i in range(8):
                    a(f"v_cvt_pk_bf16_f32 v{ac + i}, v{ac + 2 * i}, v{ac + 2 * i + 1}")
                a(stores(t))
            stamp(a, 4)
            a("s_branch L_side")
            continue
        qm = lambda h: [mfma(ACQ + 16 * t, XF + 4 * (28 + 2 * h + q), WF + 16 * h + 8 * q + 4 * t) if isv else
                        mfma(ACQ + 16 * t, WF + 16 * h + 8 * q + 4 * t, XF + 4 * (28 + 2 * h + q)) for q in range(2) for t in range(nt)]
        fm = lambda h: [mfma(ACF + 16 * c, WF + 16 * h + 8 * q + 4 * c, XF + 4 * (20 + 2 * h + q)) for q in range(2) for c in range(2)]
        half = -(-len(bgq) // 2)
        a("s_waitcnt lgkmcnt(0)")
        a(spread(qm(0), qrd(1), pre + bgq[:half]))
        a("s_waitcnt lgkmcnt(0)")
        rsv = lambda g: [f"ds_read_b128 {vr(CSA + 4 * j, 4)}, v18 offset:{(2 * g + j) * 32}" for j in range(2)]
        a(corr + (rsv(0) if isv else []))
        a(spread(qm(1), frd(0), [f"v_subrev_u32 v{WQ + c}, {CR - BR}, v{WC + c}" for c in range(2)] + bgq[half:]))
        adr = [["v_bfe_u32 v2, v0, 4, 1", "v_mul_u32_u24 v2, 28672, v2", "v_lshrrev_b32 v3, 5, v0",
                "v_lshl_add_u32 v2, v3, 9, v2", "v_and_b32 v3, 15, v0", f"v_lshl_add_u32 v{VXS}, v3, 2, v2",
                f"s_lshl_b32 s{sVAR}, s{sCF}, 11", f"s_add_u32 s{sVAR}, s{sVAR}, {WS_CS + 128 * hf}"] + post]
        if isv:
            e1, e2 = [], []
            for t in range(nt):
                ac = ACQ + 16 * t
                e1 += [f"v_mul_f32 v{ac + i}, v{ac + i}, v{CSA + i}" for i in range(8)]
                e2 += [f"v_mul_f32 v{ac + 8 + i}, v{ac + 8 + i}, v{CSA + i}" for i in range(8)]
                e2 += [f"v_cvt_pk_bf16_f32 v{ac + i}, v{ac + 2 * i}, v{ac + 2 * i + 1}" for i in range(4, 8)]
            e1 += rsv(1)
            for t in range(nt):
                ac = ACQ + 16 * t
                e1 += [f"v_cvt_pk_bf16_f32 v{ac + i}, v{ac + 2 * i}, v{ac + 2 * i + 1}" for i in range(4)]
        else:
            e = []
            for t in range(nt):
                ac = ACQ + 16 * t
                e += [[f"s_cmp_lt_u32 s{sG}, {32 - 2 * t}", f"s_cselect_b32 s{T0}, {hx(f2u(QSCALE))}, 1.0", f"v_mul_f32 v2, s{T0}, v{RS}"]]
                e += [f"v_mul_f32 v{ac + i}, v{ac + i}, v2" for i in range(16)]
                e += [f"v_cvt_pk_bf16_f32 v{ac + i}, v{ac + 2 * i}, v{ac + 2 * i + 1}" for i in range(8)]
            e1, e2 = e[:len(e) * 5 // 8], e[len(e) * 5 // 8:]
        a("s_waitcnt lgkmcnt(0)")
        u3 = spread(fm(0), frd(1), adr + e1)
        a(u3)
        a(f"s_waitcnt vmcnt({4 + nvm(u3)}) lgkmcnt(0)")
        if not hf: a(poll_check(f"L_c2{var}", 16))
        a("s_barrier")
        stamp(a, 3)
        c0l = [[f"buffer_load_dword v{r_}, v{VXS}, {sr(S_WS)}, s{sVAR} offen offset:{(i >> 1) * 64 + (i & 1) * 256} sc1"
                for i, r_ in enumerate(C0R)]]
        a(spread(fm(1), rd2(0), c0l + e2))
        for t in range(nt):
            a(stores(t))
        if var != 3:
            a("s_branch L_pass2")
    a("L_pass2:")
    if "p1b" in OPT: NOSTAMP = True
    stamp(a, 4)
    sH = sG
    a(f"s_mul_i32 s{sH}, s{sT}, 112")
    a(f"s_lshl2_add_u32 s{T0}, s{sCF}, s{sHF}")
    a(f"s_lshl1_add_u32 s{sH}, s{T0}, s{sH}")
    a(f"s_lshl_b32 s{sH}, s{sH}, 10")
    a(f"s_add_u32 s{sH}, s{sH}, {WS_H}")
    cRS, cSD, cC2, CO, QP = 22, 23, 19, 132, 140
    q = CSA

    def gelu_plain(g, off):
        u = g + 8
        R = range(8)
        return ([f"v_mul_f32 v{g + i}, v{g + i}, v{cRS}" for i in R] + [f"v_mul_f32 v{q + i}, v{g + i}, v{g + i}" for i in R] +
                [f"v_fmaak_f32 v{q + i}, v{q + i}, v{cC2}, {hx(f2u(GC1))}" for i in R] + [f"v_mul_f32 v{q + i}, v{q + i}, v{g + i}" for i in R] +
                [f"v_exp_f32 v{q + i}, v{q + i}" for i in R] + [f"v_mul_f32 v{g + i}, v{g + i}, v{u + i}" for i in R] +
                [f"v_fma_f32 v{q + i}, v{q + i}, v{cSD}, v{cSD}" for i in R] + [f"v_rcp_f32 v{q + i}, v{q + i}" for i in R] +
                [f"v_mul_f32 v{g + i}, v{g + i}, v{q + i}" for i in R] +
                [f"v_cvt_pk_bf16_f32 v{g + i}, v{g + 2 * i}, v{g + 2 * i + 1}" for i in range(4)] +
                [f"buffer_store_dwordx4 {vr(g, 4)}, v{L16}, {sr(S_WS)}, s{sH} offen offset:{off} sc1"])
    vq = []
    wt = lambda at: sum(2 if (x.startswith("v_exp") or x.startswith("v_rcp")) else 1 for x in ([at] if isinstance(at, str) else at))
    cs_ld = lambda dst, pr: [[f"buffer_load_dword v{dst + 4 * c + i}, v{VXS}, {sr(S_WS)}, s{sVAR} offen offset:{1024 * pr + c * 64 + i * 256} sc1"
                              for c in range(2) for i in range(2)]]
    ts = tr_setup()
    d = dma(10)
    bgq, hist = [ts[0], d[0], ts[1], d[1], d[2], d[3]], []
    after = lambda key: nvm([l for l in hist[len(hist) - hist[::-1].index(key):] if "s62" not in l])
    for v in range(20):
        S, us = 8 + (v >> 2), v & 3
        F = WF + 16 * (v & 1)
        acc, k0 = (ACF, 24 + 2 * v) if v < 4 else (ACQ, 2 * (v - 4))
        big = [mfma(acc + 16 * c, F + 8 * qq + 4 * c, XF + 4 * (k0 + qq), "0" if (v == 4 and qq == 0) else None)
               for qq in range(2) for c in range(2)]
        if us == 3:
            if S == 8:
                a([f"s_cmp_eq_u32 s{sHF}, 0", "s_cbranch_scc1 L_w8", "s_waitcnt vmcnt(6)", "L_w8:", "s_waitcnt vmcnt(8) lgkmcnt(0)"])
            elif S < 12:
                a(f"s_waitcnt vmcnt({after(dma(S + 1)[-1][0]) - 1}) lgkmcnt(0)")
            elif CHK == 11:
                a(f"s_waitcnt vmcnt({after(kv(0)[1][1]) - 1}) lgkmcnt(0)")
            else:
                a("s_waitcnt lgkmcnt(0)")
            if S == CHK:
                a([f"s_cmp_lg_u32 s{sW}, 0", "s_cbranch_scc1 L_w10", f"s_waitcnt vmcnt({after('L_pq:')})", "L_w10:"])
                a(poll_check("L_cq", 32, QP, 4))
            a("s_barrier")
            if "p2b" in OPT: stamp(a, S - 2)
            if S == 8:
                bgq += tr_dma() + dma(11)
                for c in range(2):
                    w = CSA + 4 * c
                    vq += [f"v_add_f32 v{w + 3}, v{C0R[2 * c]}, v{C0R[2 * c + 1]}"] + split3(w, w + 3)
                vq += ["UNIT", mfma(ACF, CSA, XOP), mfma(ACF + 16, CSA + 4, XOP),
                       f"v_lshlrev_b32 v{cSD}, 16, v{STV}", f"v_mov_b32 v{cC2}, {hx(f2u(GC2))}", "UNIT"]
                vq += (gelu_plain(ACF, 0) if NBG > 0 else []) + (gelu_plain(ACF + 16, 1024) if NBG > 1 else [])
            if S == 9:
                bgq += [sig_qkv("L_sq")] + cs_ld(CO, 1) + dma(12)
                bgq += [tr_addr(TRA, 2, 3) + [f"s_lshl_b32 s{T2}, s{sLW}, 1", f"v_add_u32 v{TRA}, s{T2}, v{TRA}", f"v_xor_b32 v{TRA + 1}, 32, v{TRA}"]]
            if S == 10:
                bgq += [tr_rd()]
            if S == CHK - 1:
                bgq += [[]] * (2 - len(bgq)) + [poll_issue("L_pq", QKV_MASK, QP)]
            if S == 11 and CHK == 11:
                bgq += kv(0) + kv(1) + [q_load()] + kv(2)
            if S == 12:
                bgq += kv(3) if CHK == 11 else kv(0) + [q_load()] + kv(1)
                if "prio" in OPT:
                    a("s_setprio 1")
                    a(lead(2))
        else:
            a("s_waitcnt lgkmcnt(0)")
        if v == 16:
            for c in range(2):
                w = CO + 4 * c
                vq += [f"v_add_f32 v{w + 3}, v{w}, v{w + 1}"] + split3(w, w + 3) + [["s_nop 1", mfma(ACQ + 16 * c, w, XOP)]]
            vq += p2_init_v()
        left = 1 if v == 19 else (4 if us == 3 else 3 - us)
        take = -(-len(bgq) // left)
        extra, bgq = bgq[:take], bgq[take:]
        val, budget = [], (1000 if v == 19 else VBUD)
        while vq and vq[0] != "UNIT" and budget > 0:
            budget -= wt(vq[0])
            val.append(vq.pop(0))
        if vq and vq[0] == "UNIT":
            vq.pop(0)
        body = spread(big, rd2(v + 1) if v < 19 else [], val[:len(val) // 2] + extra + val[len(val) // 2:])
        hist += body
        a(body)
    assert not bgq and not vq
    if "p2b" in OPT: NOSTAMP = True
    stamp(a, 5)
    RS2, SD2 = 240, 242
    a(f"v_mov_b32 v{RS2}, v{cRS}")
    a(f"v_mov_b32 v{RS2 + 1}, v{cRS}")
    a(f"v_mov_b32 v{SD2}, v{cSD}")
    a(f"v_mov_b32 v{SD2 + 1}, v{cSD}")
    a(f"v_mov_b32 v248, v{cC2}")
    a(f"v_mov_b32 v249, v{cC2}")
    a(f"v_mov_b32 v250, {hx(f2u(GC1))}")
    a("v_mov_b32 v251, v250")
    a("s_nop 5")
    for c in range(NBG - 2, 2):
        g = ACQ + 16 * c
        u = g + 8
        q = 32 + (c & 1) * 8
        o = 56 + c * 4
        if c == 0:
            a(f"s_add_u32 s{sH}, s{sH}, 4096")
        for i in range(4):
            a(f"v_pk_mul_f32 {vr(g + 2 * i, 2)}, {vr(g + 2 * i, 2)}, {vr(RS2, 2)}")
        for i in range(4):
            a(f"v_pk_mul_f32 {vr(q + 2 * i, 2)}, {vr(g + 2 * i, 2)}, {vr(g + 2 * i, 2)}")
        for i in range(4):
            a(f"v_pk_fma_f32 {vr(q + 2 * i, 2)}, {vr(q + 2 * i, 2)}, v[248:249], v[250:251]")
        for i in range(4):
            a(f"v_pk_mul_f32 {vr(q + 2 * i, 2)}, {vr(q + 2 * i, 2)}, {vr(g + 2 * i, 2)}")
        for i in range(8):
            a(f"v_exp_f32 v{q + i}, v{q + i}")
        for i in range(4):
            a(f"v_pk_mul_f32 {vr(g + 2 * i, 2)}, {vr(g + 2 * i, 2)}, {vr(u + 2 * i, 2)}")
        for i in range(4):
            a(f"v_pk_fma_f32 {vr(q + 2 * i, 2)}, {vr(q + 2 * i, 2)}, {vr(SD2, 2)}, {vr(SD2, 2)}")
        for i in range(8):
            a(f"v_rcp_f32 v{q + i}, v{q + i}")
        a("s_nop 0")
        for i in range(4):
            a(f"v_pk_mul_f32 {vr(g + 2 * i, 2)}, {vr(g + 2 * i, 2)}, {vr(q + 2 * i, 2)}")
        for i in range(4):
            a(f"v_cvt_pk_bf16_f32 v{o + i}, v{g + 2 * i}, v{g + 2 * i + 1}")
        a(f"buffer_store_dwordx4 {vr(o, 4)}, v{L16}, {sr(S_WS)}, s{sH} offen offset:{(c & 1) * 1024} sc1")
        if CHK == 12 and c >= 0:
            a(kv(2 + c))
        if c == 0:
            a(lead(0))
    a(tr_st())
    a(sent_store(152, L16))
    a(f"s_waitcnt vmcnt({after(q_load()[-1]) + (4 if CHK == 11 else 8) + 2 - NBG + (1 if 'sen' in OPT else 0)})")
    if CHK == 12:
        a("s_barrier")


VARS = (0, 4, 5, 1, 2, 3)
VBUD = 15
NBG = 2
OSL = 2
CSO = 2
WK = 8
C0R = (9, 19, 21, 1)
SIGU, CHK = 7, 11


def gen_side(a):
    a("L_side:")
    global NOSTAMP
    NOSTAMP = "side" not in OPT
    a(p2_init_v())
    a(sent_store(152, L16))
    a("s_waitcnt vmcnt(0)")
    a("s_barrier")
    a(sig_qkv("L_sq2"))
    stamp(a, 10)
    a(sig_one("L_h_ns2", [f"s_add_u32 s{T0}, s{sRB}, {C_H}"]))
    a(poll_issue("L_pq2", QKV_MASK))
    a("s_waitcnt vmcnt(0)")
    a(poll_check("L_cq2", 32, POLL, 6))
    a("s_barrier")
    a(kv(0))
    a(q_load())
    a(kv(1))
    a("s_waitcnt vmcnt(2)")
    a("s_barrier")
    a(kv(2))
    a(kv(3))
    if "prio" in OPT:
        a("s_setprio 1")
        a(lead(2))
    a("s_branch L_p2")
    a("L_side1:")
    XW, QW, CW = 32, 64, 128
    LO, HI, ON = 18, 19, 22
    a("v_lshrrev_b32 v1, 3, v0")
    a("v_and_b32 v2, 7, v0")
    a("v_lshlrev_b32 v2, 4, v2")
    a("v_lshl_add_u32 v3, v1, 10, v2")
    a(f"s_lshl3_add_u32 s{tVM + 1}, s2, s{sW}")
    a(f"s_lshl_b32 s{T0}, s{tVM + 1}, 13")
    for q in range(8):
        a(f"buffer_load_dwordx4 {vr(XW + 4 * q, 4)}, v3, {sr(S_X)}, s{T0} offen offset:{128 * q}")
    sU = sVAR
    a(f"s_and_b32 s{sU}, s{sRB}, 3")
    a(f"s_lshl3_add_u32 s{sU}, s{sU}, s{sW}")
    a(f"s_sub_u32 s{T1}, 31, s{sU}")
    a(f"s_lshl3_add_u32 s41, s{T1}, s{sXCD}")
    a("s_lshl_b32 s41, s41, 8")
    a(f"s_add_u32 s41, s41, {WS_CQ}")
    a(f"s_lshl_b32 s{T0}, s{T1}, 7")
    a(f"s_mul_i32 s{T2}, s{sXCD}, {64 * 3072}")
    a(f"s_add_u32 s{T0}, s{T0}, s{T2}")
    a(f"s_cmp_lt_u32 s{T1}, 24")
    a(f"s_cselect_b32 s{T0}, s{T0}, {OOB}")
    a(f"s_cselect_b32 s41, s41, {OOB}")
    a("v_mul_u32_u24 v3, 3072, v1")
    a("v_add_u32 v3, v3, v2")
    for q in range(8):
        a(f"buffer_load_dwordx4 {vr(QW + 4 * q, 4)}, v3, {sr(S_W0)}, s{T0} offen")
        if q != 7:
            a(f"s_add_u32 s{T0}, s{T0}, {8 * 3072}")
    a(f"v_mov_b32 v{LO}, 0x00003f80")
    a(f"v_mov_b32 v{HI}, 0x3f800000")
    a(f"v_mov_b32 v{ON}, 0x3f803f80")
    RU = 96
    for i in range(0, 28, 2):
        a(f"v_mov_b64 v[{RU + i}:{RU + i + 1}], 0")
    a(["v_and_b32 v2, 8, v0", "v_cmp_eq_u32 vcc, 0, v2", f"v_and_b32 v{POLL}, 7, v0", f"v_lshlrev_b32 v{POLL}, 3, v{POLL}",
       "v_lshrrev_b32 v3, 4, v0", f"v_add_u32 v{POLL}, v{POLL}, v3", "v_lshrrev_b32 v2, 1, v2", f"v_add_u32 v{POLL}, v{POLL}, v2",
       f"v_lshlrev_b32 v{POLL}, 2, v{POLL}"])
    stamp(a, 8)
    m, v_ = RU + 24, RU + 25
    for q in range(8):
        a(f"s_waitcnt vmcnt({15 - q})")
        for i in range(4):
            a(f"v_dot2c_f32_bf16 v{m + 2 * (i & 1)}, v{XW + 4 * q + i}, v{ON}")
            a(f"v_dot2c_f32_bf16 v{v_ + 2 * (i & 1)}, v{XW + 4 * q + i}, v{XW + 4 * q + i}")
    a("s_nop 2")
    a(f"v_add_f32 v{m}, v{m}, v{m + 2}")
    a(f"v_add_f32 v{v_}, v{v_}, v{v_ + 2}")
    for md in ("quad_perm:[1,0,3,2]", "quad_perm:[2,3,0,1]", "row_half_mirror"):
        a("s_nop 0")
        a(f"v_add_f32_dpp v{m}, v{m}, v{m} {md} row_mask:0xf bank_mask:0xf")
        a(f"v_add_f32_dpp v{v_}, v{v_}, v{v_} {md} row_mask:0xf bank_mask:0xf")
    a([f"v_mul_f32 v{m}, {hx(f2u(-1.0 / 512))}, v{m}", f"v_mul_f32 v{v_}, {hx(f2u(1.0 / 512))}, v{v_}",
       f"v_fma_f32 v{v_}, -v{m}, v{m}, v{v_}", f"v_max_f32 v{v_}, 0, v{v_}",
       f"v_cvt_pk_bf16_f32 v{v_}, v{v_}, v{v_}", f"v_and_b32 v{v_}, v{MASK}, v{v_}",
       f"v_add_f32 v{v_}, {hx(f2u(1e-5))}, v{v_}",
       f"v_cvt_pk_bf16_f32 v{v_}, v{v_}, v{v_}", f"v_and_b32 v{v_}, v{MASK}, v{v_}",
       f"v_sqrt_f32 v{v_}, v{v_}", "v_lshlrev_b32 v1, 2, v1",
       f"v_cvt_pk_bf16_f32 v{m}, v{v_}, v{m}",
       f"v_lshlrev_b32 v{v_}, 16, v{m}", f"v_rcp_f32 v{v_}, v{v_}",
       f"s_lshl_b32 s{T0}, s{tVM + 1}, 5", f"s_add_u32 s{T0}, s{T0}, {WS_ST}", f"s_add_u32 s{T1}, s{T0}, {WS_RS - WS_ST}",
       f"s_mov_b32 exec_lo, 0x01010101", "s_mov_b32 exec_hi, 0x01010101",
       f"buffer_store_dword v{m}, v1, {sr(S_WS)}, s{T0} offen sc1",
       f"buffer_store_dword v{v_}, v1, {sr(S_WS)}, s{T1} offen sc1", "s_mov_b64 exec, -1"])

    def colsum(src, n, acc, behind):
        for q in range(n):
            a(f"s_waitcnt vmcnt({n - 1 - q + behind})")
            for i in range(4):
                a(f"v_dot2c_f32_bf16 v{acc + 2 * i}, v{src + 4 * q + i}, v{LO}")
                a(f"v_dot2c_f32_bf16 v{acc + 2 * i + 1}, v{src + 4 * q + i}, v{HI}")
        a("s_nop 2")
        for i in range(4):
            a(f"v_permlane16_swap_b32 v{acc + 2 * i}, v{acc + 2 * i + 1}")
        for i in range(4):
            a(f"v_add_f32 v{acc + 2 * i}, v{acc + 2 * i}, v{acc + 2 * i + 1}")
        a(["s_nop 1", f"v_permlane32_swap_b32 v{acc}, v{acc + 2}", f"v_permlane32_swap_b32 v{acc + 4}, v{acc + 6}",
           f"v_add_f32 v{acc}, v{acc}, v{acc + 2}", f"v_add_f32 v{acc + 4}, v{acc + 4}, v{acc + 6}", "s_nop 1",
           f"v_add_f32_dpp v{acc}, v{acc}, v{acc} row_ror:8 row_mask:0xf bank_mask:0xf",
           f"v_add_f32_dpp v{acc + 4}, v{acc + 4}, v{acc + 4} row_ror:8 row_mask:0xf bank_mask:0xf",
           f"v_cndmask_b32 v{acc + 1}, v{acc + 4}, v{acc}, vcc"])
    colsum(QW, 8, RU, 2)
    a(f"buffer_store_dword v{RU + 1}, v{POLL}, {sr(S_WS)}, s41 offen sc1")
    a(dma(0, False))
    a("s_waitcnt vmcnt(4)")
    a("s_barrier")
    a(cs_signal("L_scs0", 0))
    stamp(a, 12)
    a(dma(1, False))
    stamp(a, 9)
    a(f"s_cmp_eq_u32 s{sHF}, 0")
    a("s_cbranch_scc1 L_p1_4")
    a("s_branch L_p1_5")


def att_step(i, ex=None, first=False):
    ex = ex or {}
    Sc, Sn = (S0, S1) if i % 2 == 0 else (S1, S0)
    Kn = K_ + 4 * ((i + 1) % 2)
    Vc = V_ + 8 * (i % 4)
    Vp = V_ + 8 * ((i - 1) % 4)
    e = lambda k: f"v_exp_f32 v{Sc + k}, v{Sc + k}"
    c = lambda k: f"v_cvt_pk_bf16_f32 v{P_ + k}, v{Sc + 2 * k}, v{Sc + 2 * k + 1}"
    r = [mfma(Sn, Kn, Q_, NM),
         f"ds_read_b128 {vr(Kn, 4)}, v{AK} offset:{(i + 3) * 2048}"]
    r += ex.get("qk", [])
    r += [e(0), e(1), e(2), e(3)]
    if not first:
        r.append(mfma(O_, Vp + 4, P_ + 4))
    if i % 2 == 0:
        r.append(f"s_mov_b64 exec, s[{tVM}:{tVM + 1}]")
        for d in (2, 3):
            vb = V_ + 8 * ((i + d) % 4)
            r.append(f"ds_read_b128 {vr(vb, 4)}, v{AV} offset:{(i + d) * 2048}")
            r.append(f"ds_read_b128 {vr(vb + 4, 4)}, v{AV} offset:{(i + d) * 2048 + 512}")
        r.append("s_mov_b64 exec, -1")
    r += ex.get("pv1", [])
    if "G2" in ex:
        r += [c(0), e(4), e(5), c(1)]
        r += [ex["G1"]] + ex.get("g1", [])
        r += [e(6), e(7), e(8), c(2), c(3), e(9)]
        r += ["s_nop 0", mfma(O_, Vc, P_)]
        if i % 2 == 1: r.append("s_waitcnt lgkmcnt(0)")
        r += ex.get("pv0", [])
        r += [e(10), e(11), c(4), e(12), c(5)]
        r += [ex["G2"]] + ex.get("g2", [])
        r += [e(13), e(14), e(15), c(6), c(7)]
    else:
        r += [c(0), e(4), e(5), c(1), e(6), e(7)]
        if "G1" in ex:
            r += [ex["G1"]]
        r += ex.get("g1", [])
        r += [e(8), c(2), c(3), e(9), e(10), e(11)]
        r += ex.get("prepv0", [])
        r.append(mfma(O_, Vc, P_, "0" if first else None))
        if i % 2 == 1: r.append("s_waitcnt lgkmcnt(0)")
        r += ex.get("pv0", [])
        r += [c(4), e(12), e(13), c(5), e(14), e(15), c(6), c(7)]
    r += ex.get("end", [])
    return r


def ring_loads(r):
    b = RING + 16 * r
    return [f"buffer_load_dwordx4 {vr(b, 4)}, v{A16}, {sr(R_H0)}, s{tFH} offen sc1",
            f"buffer_load_dwordx4 {vr(b + 4, 4)}, v{A16}, {sr(R_H1)}, s{tFH} offen sc1",
            f"buffer_load_dwordx4 {vr(b + 8, 4)}, v{A16}, {sr(R_WT)}, s{tFW} offen sc1",
            f"buffer_load_dwordx4 {vr(b + 12, 4)}, v{A16}, {sr(R_WT)}, s{tFW} offen offset:1024 sc1",
            f"s_add_u32 s{tFH}, s{tFH}, 1024",
            f"s_add_u32 s{tFW}, s{tFW}, 2048"]


def gm(r, n):
    b = RING + 16 * r
    return mfma(G_ + 16 * n, b + 8 + 4 * (n & 1), b + 4 * (n >> 1))


_pl = [0]
PC = (2, 6)
PD = 7
PG = 2


def lead(p, cond=None):
    if "prio" not in OPT:
        return []
    _pl[0] += 1
    lb = f"L_pr{_pl[0]}"
    c = [f"s_cmp_lt_u32 s{sW}, 4"] if cond is None else cond
    return c + [f"s_cbranch_scc0 {lb}", f"s_setprio {p}", f"{lb}:"]


def recentre(ex, i, at):
    if i == at:
        ex["prepv0"] = [f"v_frexp_exp_i32_f32 v4, v{O_ + 8}"]
        ex["end"] = [f"v_add_u32 v4, {int(MAXOFF) - 1}, v4", "v_max_i32 v4, 0, v4", "v_cvt_f32_i32 v2, v4", f"v_sub_f32 v2, v{NM}, v2",
                     "v_sub_u32 v4, 0, v4", "v_mov_b32 v3, v2"] + [f"v_mov_b64 v[{NM + j}:{NM + j + 1}], v[2:3]" for j in range(0, 16, 2)] + \
                    ["s_nop 1"] + ex.get("end", [])
    if i == at + 2:
        ex["prepv0"] = [f"v_ldexp_f32 v{O_ + j}, v{O_ + j}, v4" for j in range(9)] + ["s_nop 1"]


def adv(a):
    a(f"v_add_u32 v{AK}, 0x4000, v{AK}")
    a(f"v_add_u32 v{AV}, 0x4000, v{AV}")


def gen_p2(a):
    a("L_p2:")
    if ENC == 99:
        a(["s_lshr_b32 s76, s2, 3", f"s_lshl3_add_u32 s76, s76, s{sW}", "s_cmp_lg_u32 s76, 32", "s_cbranch_scc1 L_nosk",
           "s_not_b32 s76, s80", "v_mov_b32 v1, 0", "v_mov_b32 v2, s76", "s_mov_b64 exec, 1",
           f"global_atomic_umax v1, v2, s[{pDBG}:{pDBG + 1}] offset:240 sc1", "s_mov_b64 exec, -1", "L_nosk:"])
    stamp(a, 6)
    a(f"v_mov_b32 v{A16}, v{L16}")
    a(f"v_mov_b32 v{AK}, v{L16}")
    a("v_lshrrev_b32 v2, 5, v0")
    a("v_and_b32 v3, 15, v0")
    a("v_lshlrev_b32 v3, 4, v3")
    a("v_lshl_add_u32 v3, v2, 8, v3")
    a(f"v_add_u32 v{AV}, 1024, v3")
    a(f"s_mov_b32 s{tVM}, 0x0000ffff")
    a(f"s_mov_b32 s{tVM + 1}, 0x0000ffff")
    a(f"ds_read_b128 {vr(K_, 4)}, v{AK}")
    a(f"ds_read_b128 {vr(K_ + 4, 4)}, v{AK} offset:2048")
    a(f"s_mov_b64 exec, s[{tVM}:{tVM + 1}]")
    for d in range(2):
        a(f"ds_read_b128 {vr(V_ + 8 * d, 4)}, v{AV} offset:{d * 2048}")
        a(f"ds_read_b128 {vr(V_ + 8 * d + 4, 4)}, v{AV} offset:{d * 2048 + 512}")
    a("s_mov_b64 exec, -1")
    a(f"s_lshr_b32 s{T0}, s{sW}, 2")
    a(f"s_lshl1_add_u32 s{tTT}, s{tHEAD}, s{T0}")
    a(f"s_lshl_b32 s{T0}, s{tTT}, 15")
    a(f"s_lshl_b32 s{T1}, s{tQB}, 7")
    a(f"s_add_u32 s{T0}, s{T0}, s{T1}")
    a(f"s_and_b32 s{T1}, s{sW}, 3")
    if "coal" in OPT:
        a(f"s_lshl_b32 s{T1}, s{T1}, 13")
        a(f"s_add_u32 s{T0}, s{T0}, s{T1}")
        a("v_lshrrev_b32 v1, 3, v0")
        a("v_lshlrev_b32 v1, 10, v1")
        a("v_and_b32 v2, 7, v0")
        a("v_lshl_add_u32 v1, v2, 4, v1")
    else:
        a(f"s_lshl4_add_u32 s{T0}, s{T1}, s{T0}")
        a("v_and_b32 v1, 31, v0")
        a("v_lshlrev_b32 v1, 10, v1")
        a("v_lshl_add_u32 v1, v2, 6, v1")
    a(f"v_add_u32 v{AOUT}, s{T0}, v1")
    a("s_waitcnt lgkmcnt(4)")
    a(mfma(S0, K_, Q_, "0"))
    a(mfma(S1, K_ + 4, Q_, "0"))
    a(f"s_mul_i32 s{T0}, s{tHEAD}, {224 * 1024}")
    a(f"s_add_u32 s{T0}, s{T0}, {WS_H}")
    a(f"s_add_u32 s{R_H0}, s{pWS}, s{T0}")
    a(f"s_addc_u32 s{R_H0 + 1}, s{pWS + 1}, 0")
    a(f"s_add_u32 s{R_H1}, s{R_H0}, {112 * 1024}")
    a(f"s_addc_u32 s{R_H1 + 1}, s{R_H0 + 1}, 0")
    a(f"s_mul_i32 s{tFH}, s{sW}, {14 * 1024}")
    a(f"s_add_u32 s{R_H0 + 2}, s{tFH}, {14 * 1024}")
    a(f"s_mov_b32 s{R_H1 + 2}, s{R_H0 + 2}")
    a(f"s_mul_i32 s{T0}, s{tQB}, {144 * 2048}")
    a(f"s_add_u32 s{T0}, s{T0}, {WS_WT}")
    a(f"s_add_u32 s{R_WT}, s{pWS}, s{T0}")
    a(f"s_addc_u32 s{R_WT + 1}, s{pWS + 1}, 0")
    a(f"s_lshl_b32 s{tFW}, s{tFH}, 1")
    a(f"s_lshl_b32 s{R_WT + 2}, s{R_H0 + 2}, 1")
    a(f"v_max3_f32 v1, v{S0}, v{S0 + 1}, v{S0 + 2}")
    for i in range(3, 31, 2):
        a(f"v_max3_f32 v1, v1, v{S0 + i}, v{S0 + i + 1}")
    a(f"v_max_f32 v1, v1, v{S0 + 31}")
    a("v_mov_b32 v2, v1")
    a("s_nop 1")
    a("v_permlane32_swap_b32 v1, v2")
    a("v_max_f32 v1, v1, v2")
    a("v_floor_f32 v1, v1")
    a(f"v_sub_f32 v2, {hx(f2u(-MAXOFF))}, v1")
    a("v_mov_b32 v3, v2")
    for i in range(0, 16, 2):
        a(f"v_mov_b64 v[{NM + i}:{NM + i + 1}], v[2:3]")
    a("s_nop 1")
    a(mfma(S0, K_, Q_, NM))
    a(f"ds_read_b128 {vr(K_, 4)}, v{AK} offset:4096")
    srd(a, R_OUT, pOUT, 2097152)
    a(f"s_lshl_b32 s{T0}, s{sW}, 11")
    a(f"v_add_u32 v{AW}, s{T0}, v{A16}")
    a(f"v_add_u32 v{AW + 1}, 0x10000, v{AW}")
    a(f"v_add_u32 v{AW + 2}, 0x20000, v{AW}")
    a("s_waitcnt lgkmcnt(0)")
    a("s_nop 1")
    a(lead(2))
    stamp(a, 7)
    global NOSTAMP
    if "side" in OPT: NOSTAMP = True
    for i in range(8):
        ex = {}
        if i == 4:
            d1, d2 = (stampl(1), stampl(2)) if "p3b" in OPT else ([], [])
            ex["end"] = d1 + ["s_waitcnt vmcnt(0)", "s_barrier"] + d2 + sig_one("L_h_ns", [f"s_add_u32 s{T0}, s{sRB}, {C_H}"], True) + lead(2)
        if i == 3:
            ex["pv0"] = lead(0)
        if i >= 5:
            ex["pv1"], ex["pv0"] = kv(i - 1, A16)
        if "rc0" in OPT: recentre(ex, i, 5)
        a(att_step(i, ex, first=(i == 0)))
    adv(a)
    for i in range(8):
        ex = {}
        if i == 0:
            ex["pv1"], ex["pv0"] = kv(7, A16)
            ex["qk"] = [f"v_mov_b64 v[{RING}:{RING + 1}], 0", f"v_mov_b64 v[{RING + 2}:{RING + 3}], 0"]
        if i == 1 and "pt" in OPT:
            ex["pv1"] = [f"buffer_load_dword v5, v{AOUT}, {sr(R_OUT)}, 0 offen sc1"]
            ex["pv0"] = [f"s_lshl_b32 s{T0}, s{sQT}, 5", f"s_add_u32 s{T0}, s{T0}, s{tHEAD}", f"s_lshl_b32 s{T0}, s{T0}, 10",
                         f"s_add_u32 s{T0}, s{T0}, {WS_O}", f"buffer_load_dword v5, v{A16}, {sr(S_WS)}, s{T0} offen sc1"]
        if i < 4:
            ex["G1"] = mfma(G_ + 16 * i, RING, RING, "0")
        if i == 3:
            ex["pv0"] = poll_issue("L_h_np", H_MASK, 7) + lead(0)
        if i == 4:
            d1, d2 = (stampl(3), stampl(4)) if "p3b" in OPT else ([], [])
            ex["end"] = d1 + ["s_waitcnt vmcnt(0)"] + poll_check("L_ch", 16, 7, 16) + ["s_barrier"] + d2 + lead(2)
        if i in (5, 6, 7):
            l = ring_loads(i - 5)
            ex["qk"] = l[0:1]
            ex["pv1"] = l[1:3]
            ex["pv0"] = l[3:6]
        if "rc1" in OPT: recentre(ex, i, 5)
        if "rc2" in OPT: recentre(ex, i, 0)
        a(att_step(i, ex))
    stamp(a, 8)
    a(f"s_mov_b32 s{tIT}, 5")
    a(f"s_lshr_b32 s{sG}, s{sW}, 2")
    a(f"s_lshl_b32 s{sG}, s{sG}, 4")
    a(f"s_add_u32 s{sG}, s{sG}, {PC[0]}")
    a("L_loop:")
    adv(a)
    plan = [[(0, 0)], [(0, 1), (0, 2)], [(0, 3)], [(1, 0), (1, 1)], [(1, 2)], [(1, 3), (2, 0)], [(2, 1)], [(2, 2), (2, 3)]]
    for i in range(8):
        ex = {}
        ex["G1"] = gm(*plan[i][0])
        if len(plan[i]) > 1:
            ex["G2"] = gm(*plan[i][1])
        if i == 0: ex["qk"] = ["s_waitcnt vmcnt(8)"]
        if i == PC[1]: ex["end"] = lead(0, [f"s_cmp_eq_u32 s{tIT}, s{sG}"])
        if i == 2:
            l = ring_loads(0)
            ex["g1"] = l[0:2]
            ex["pv0"] = l[2:6]
        if i == 3: ex["pv1"] = ["s_waitcnt vmcnt(8)"]
        if i == 5:
            l = ring_loads(1)
            ex["g1"] = l[0:2]
            ex["pv0"] = l[2:6] + ["s_waitcnt vmcnt(8)"]
        if i == 7:
            ex["g2"] = ring_loads(2)
        a(att_step(i, ex))
    a(f"s_sub_u32 s{tIT}, s{tIT}, 1")
    a(f"s_cmp_lg_u32 s{tIT}, 0")
    a("s_cbranch_scc1 L_loop")
    adv(a)
    a(f"s_and_b32 s{tFW}, s{sW}, 3")
    a(f"s_lshl_b32 s{tFW}, s{tFW}, 14")
    a(f"s_add_u32 s{tFW}, s{tFW}, {112 * 2048}")
    a(f"s_mov_b32 s{R_WT + 2}, {144 * 2048}")
    if "p3b" in OPT: stamp(a, 5)
    a("s_barrier")
    if "p3b" in OPT: stamp(a, 6)
    a(lead(2))

    def pw(o):
        base, off = (AW, o * 16384) if o < 4 else ((AW + 1, (o - 4) * 16384) if o < 6 else (AW + 2, (o - 6) * 16384))
        if "coal" in OPT:
            base, off = (AW, o * 16448) if o < 4 else ((AW + 1, o * 16448 - 65536) if o < 7 else (AW + 2, 192))
        return [f"ds_write_b128 v{base}, {vr(G_ + 8 * o, 4)} offset:{off}",
                f"ds_write_b128 v{base}, {vr(G_ + 8 * o + 4, 4)} offset:{off + 1024}"]

    XV = 244
    wreg = lambda i: RING + 4 * i if i < 12 else NM + 4 * (i - 12)

    def wol(g):
        return [f"buffer_load_dwordx4 {vr(wreg(4 * g + q), 4)}, v{A16}, {sr(R_WT)}, s{tFW} offen offset:{q * 1024} sc1" for q in range(4)] + \
               [f"s_add_u32 s{tFW}, s{tFW}, 4096"]
    for i in range(8):
        ex = {}
        if i == 0: ex["pv0"] = [f"buffer_load_dwordx4 {vr(XV, 4)}, v{AOUT}, {sr(S_X)}, 0 offen"]
        if i in (1, 3, 5): ex["pv1"], ex["g1"] = wol(i // 2)[:1], wol(i // 2)[1:2]
        if i in (2, 4, 6): ex["g1"], ex["pv0"] = wol(i // 2 - 1)[2:3], wol(i // 2 - 1)[3:]
        if i == PD: ex["end"] = lead(0)
        a(att_step(i, ex))
    a("s_nop 1")
    a(mfma(O_, V_ + 24 + 4, P_ + 4))
    a("s_nop 1")
    a(f"s_lshl_b32 s{T0}, s{sQT}, 5")
    a(f"s_add_u32 s{T0}, s{T0}, s{tHEAD}")
    a(f"s_lshl_b32 s{T0}, s{T0}, 10")
    a(f"s_add_u32 s{T3}, s{T0}, {WS_O}")
    a(f"v_mov_b32 v2, {hx(f2u(2.0 ** 120))}")
    a(f"v_mov_b32 v3, {hx(f2u(2.0 ** -(MAXOFF + 4)))}")
    a("s_waitcnt lgkmcnt(0)")
    a("s_nop 3")
    stamp(a, 9)
    a(f"v_add_f32 v1, |v{O_}|, |v{O_ + 1}|")
    for i in range(2, 8):
        a(f"v_add_f32 v1, v1, |v{O_ + i}|")
    a(f"v_cmp_lt_f32 s[40:41], v{O_ + 8}, v2")
    a("v_cmp_lt_f32 s[42:43], v1, v2")
    a(f"v_cmp_le_f32 s[50:51], 0.5, v{O_ + 8}")
    a("v_cmp_le_f32 vcc, v3, v1")
    a("s_or_b64 s[50:51], s[50:51], vcc")
    a("s_and_b64 s[40:41], s[40:41], s[42:43]")
    a("s_and_b64 s[40:41], s[40:41], s[50:51]")
    a("s_cmp_eq_u64 s[40:41], -1")
    a("s_cbranch_scc0 L_fallback")
    a("L_norm:")
    a(f"v_rcp_f32 v2, v{O_ + 8}")
    a("s_nop 0")
    for i in range(8):
        a(f"v_mul_f32 v{O_ + i}, v{O_ + i}, v2")
    for i in range(4):
        a(f"v_cvt_pk_bf16_f32 v{4 + i}, v{O_ + 2 * i}, v{O_ + 2 * i + 1}")
    if "sen" in OPT:
        for i in range(4):
            a(f"v_min_u32 v{4 + i}, -2, v{4 + i}")
    a(f"buffer_store_dwordx4 v[4:7], v{A16}, {sr(S_WS)}, s{T3} offen sc1")
    a(wol(3)[:4])
    LP, LA = K_, K_ + 1
    lpoll = ["s_mov_b64 exec, 255", f"buffer_load_dword v{LP}, v{LA}, {sr(S_WS)}, s42 offen offset:1020 sc1", "s_mov_b64 exec, -1"]
    oloads = [f"buffer_load_dwordx4 {vr(S0 + 4 * j, 4)}, v{A16}, {sr(S_WS)}, s{42 if j < 4 else 41} offen offset:{(j % 4) * 1024} sc1" for j in range(8)]
    if "sen" in OPT:
        a(f"s_and_b32 s42, s{sW}, 3")
        a(f"s_lshl2_add_u32 s42, s{tTT}, s42")
        a(f"s_lshl_b32 s42, s42, 13")
        a(f"s_add_u32 s42, s42, {WS_O}")
        a("s_add_u32 s41, s42, 4096")
        a(f"v_lshlrev_b32 v{LA}, 10, v0")
        a(f"v_mov_b32 v{LP}, 0")
        a("s_mov_b32 s40, 0")
        if "try" in OPT:
            a(lpoll)
    for o in range(8):
        a(pw(o))
    if "coal" in OPT:
        a(f"s_and_b32 s{T0}, s{sW}, 4")
        a(f"s_and_b32 s{T1}, s{sW}, 3")
        a(f"s_lshl_b32 s{T1}, s{T1}, 7")
        a("v_and_b32 v1, 3, v0")
        a(f"v_add_u32 v1, s{T0}, v1")
        a("v_bfe_u32 v2, v0, 2, 1")
        a("v_lshrrev_b32 v3, 3, v0")
        a("v_lshl_add_u32 v2, v2, 5, v3")
        a("v_lshlrev_b32 v2, 4, v2")
        a(f"v_add_u32 v2, s{T1}, v2")
        a("v_cmp_eq_u32 vcc, 7, v1")
        a("v_mul_u32_u24 v3, 16448, v1")
        a(f"v_mul_u32_u24 v1, 8256, v1")
        a(f"v_add_u32 v{AK}, v1, v2")
        a(f"v_mov_b32 v1, {131072 + 192}")
        a("v_cndmask_b32 v3, v3, v1, vcc")
        a("v_add_u32 v3, v3, v2")
    else:
        a(f"s_lshl_b32 s{T0}, s{sW}, 14")
        a(f"s_add_u32 s{T1}, s{T0}, 0x8000")
        a(f"s_cmp_lt_u32 s{sW}, 6")
        a(f"s_cselect_b32 s{T0}, s{T0}, s{T1}")
        a(f"v_add_u32 v3, s{T0}, v{A16}")
    if "sen" in OPT:
        if "try" in OPT:
            a(["s_waitcnt vmcnt(0)", f"v_cmp_eq_u32 vcc, -1, v{LP}", "s_cmp_eq_u64 vcc, 0", "s_cbranch_scc0 L_t1", "s_mov_b32 s40, 1"] + oloads + ["L_t1:"])
        a("s_waitcnt lgkmcnt(0)")
        a("s_barrier")
        stamp(a, 10)
        a(["s_cmp_lg_u32 s40, 0", "s_cbranch_scc1 L_t2"] + lpoll + ["L_t2:"])
    elif "pws" in OPT:
        a(f"s_lshr_b32 s{T0}, s{sXCD}, 1")
        a(f"s_lshl2_add_u32 s{T0}, s{sQT}, s{T0}")
        a(f"s_lshl_b32 s{T0}, s{T0}, 7")
        a(f"s_add_u32 s{T0}, s{T0}, {WS_CNT + 0x4000}")
        a("v_mov_b32 v1, 1")
        a(f"s_and_b32 s42, s{sW}, 3")
        a(f"s_lshl2_add_u32 s42, s{tTT}, s42")
        a(f"s_lshl_b32 s42, s42, 7")
        a(f"s_add_u32 s42, s42, {WS_CNT + 0x4000}")
        a("s_waitcnt vmcnt(4)")
        a("s_mov_b64 exec, 1")
        a(f"buffer_atomic_add v1, off, {sr(S_WS)}, s{T0} sc1")
        a("s_mov_b64 exec, -1")
        a("s_waitcnt lgkmcnt(0)")
        a("s_barrier")
        if "tp" in OPT: a(lead(2))
        stamp(a, 10)
        if "oe" in OPT:
            a(f"buffer_load_dword v5, off, {sr(S_WS)}, s42 sc1")
    else:
        a("s_waitcnt vmcnt(4) lgkmcnt(0)")
        a("s_barrier")
        if "tp" in OPT: a(lead(2))
        stamp(a, 10)
        a(f"s_cmp_lg_u32 s{sW}, 0")
        a("s_cbranch_scc1 L_o_ns")
        if "ok4" in OPT:
            a(f"s_lshr_b32 s{T0}, s{sXCD}, 1")
            a(f"s_lshl2_add_u32 s{T0}, s{tQB}, s{T0}")
            a(f"s_lshl_b32 s{T0}, s{T0}, 8")
        else:
            a(f"s_lshl_b32 s{T0}, s{tQB}, 8")
        if "rep" in OPT:
            a(f"s_lshl2_add_u32 s{T0}, s{T0}, {WS_CNT + 0x4000}")
            a("v_mov_b32 v1, 1")
            a("v_lshlrev_b32 v2, 7, v0")
            a("s_mov_b64 exec, 255")
            a(f"buffer_atomic_add v1, v2, {sr(S_WS)}, s{T0} offen sc1")
        else:
            a(f"s_add_u32 s{T0}, s{T0}, {WS_CNT + C_O * 256}")
            a("v_mov_b32 v1, 1")
            a("s_mov_b64 exec, 1")
            a(f"buffer_atomic_add v1, off, {sr(S_WS)}, s{T0} sc1")
        a("s_mov_b64 exec, -1")
        a("L_o_ns:")
        if "ok4" in OPT:
            a(f"s_and_b32 s42, s{sW}, 3")
            a(f"s_lshl2_add_u32 s42, s{sXCD}, s42")
            if "rep" in OPT:
                a(f"s_lshl3_add_u32 s42, s42, s{tQB}")
                a(f"s_lshl_b32 s42, s42, 7")
                a(f"s_add_u32 s42, s42, {WS_CNT + 0x4000}")
            else:
                a(f"s_lshl_b32 s42, s42, 8")
                a(f"s_add_u32 s42, s42, {WS_CNT + C_O * 256}")
            if "oe" in OPT:
                a(f"buffer_load_dword v5, off, {sr(S_WS)}, s42 sc1")
    F_ = G_
    for s in range(8):
        for i in range(2):
            a(f"ds_read_b128 {vr(F_ + 8 * s + 4 * i, 4)}, v3 offset:{(s * 2 + i) * 1024}")
        if s == 6:
            a("s_waitcnt lgkmcnt(10)")
    for s in range(1, 8):
        a(f"s_waitcnt lgkmcnt({2 * (7 - s)})")
        for i in range(4):
            a(f"v_pk_add_f32 {vr(F_ + 2 * i, 2)}, {vr(F_ + 2 * i, 2)}, {vr(F_ + 8 * s + 2 * i, 2)}")
    if "ok4" in OPT:
        a("s_barrier")
        if "oe" not in OPT:
            a([] if "sen" in OPT else f"buffer_load_dword v5, off, {sr(S_WS)}, s42 sc1")
    def silu_block():
        T_ = F_ + 8
        a(f"v_mov_b32 v4, {hx(f2u(-LOG2E))}")
        for i in range(8):
            a(f"v_mul_f32 v{T_ + i}, v{F_ + i}, v4")
        for i in range(8):
            a(f"v_exp_f32 v{T_ + i}, v{T_ + i}")
        a("s_nop 0")
        for i in range(8):
            a(f"v_add_f32 v{T_ + i}, 1.0, v{T_ + i}")
        for i in range(8):
            a(f"v_rcp_f32 v{T_ + i}, v{T_ + i}")
        a("s_nop 0")
        for i in range(8):
            a(f"v_mul_f32 v{F_ + i}, v{F_ + i}, v{T_ + i}")
        XU = G_ + 16
        for i in range(4):
            a(f"v_lshlrev_b32 v{XU + 2 * i}, 16, v{XV + i}")
            a(f"v_and_b32 v{XU + 2 * i + 1}, 0xffff0000, v{XV + i}")
    XU = G_ + 16
    if "sl" not in OPT:
        silu_block()
    a(f"s_lshr_b32 s{T0}, s{sW}, 2")
    a(f"s_mul_i32 s{T0}, s{T0}, {4 * 8256 if 'coal' in OPT else 32768}")
    a(f"s_and_b32 s{T1}, s{sW}, 3")
    a(f"s_lshl_b32 s{T2}, s{T1}, 11")
    a(f"s_add_u32 s{T0}, s{T0}, s{T2}")
    a(f"v_add_u32 v1, s{T0}, v{A16}")
    if "coal" in OPT:
        a(f"v_mov_b32 v3, v{AK}")
    else:
        a(f"s_lshl_b32 s{T0}, s{sW}, 13")
        a(f"v_add_u32 v3, s{T0}, v{A16}")
    a(f"s_lshl_b32 s{T0}, s{tTT}, 5")
    a(f"s_lshl_b32 s{T1}, s{T1}, 3")
    a(f"s_add_u32 s{T0}, s{T0}, s{T1}")
    a(f"s_lshl_b32 s{T0}, s{T0}, 10")
    a(f"s_add_u32 s{T2}, s{T0}, {WS_O}")
    a(f"s_add_u32 s{T3}, s{T2}, 4096")
    stamp(a, 11)
    if "sen" in OPT:
        a("s_mov_b32 s43, 0")
        a(f"s_mov_b32 s{T1}, {SPIN}")
        a(["s_cmp_lg_u32 s40, 0", "s_cbranch_scc1 L_o_ld"])
        a("L_o_poll:")
        a("s_waitcnt vmcnt(0)")
        a(f"v_cmp_eq_u32 vcc, -1, v{LP}")
        a("s_cmp_eq_u64 vcc, 0")
        a("s_cbranch_scc1 L_o_ok")
        a(f"s_sleep {OSL}")
        a(lpoll)
        a(f"s_sub_u32 s{T1}, s{T1}, 1")
        a(f"s_cmp_lg_u32 s{T1}, 0")
        a("s_cbranch_scc1 L_o_poll")
        a("L_o_ok:")
    elif "ok4" in OPT:
        a(f"s_mov_b32 s{T1}, {SPIN}")
        a("L_o_poll:")
        a("s_waitcnt vmcnt(0)")
        a("v_readfirstlane_b32 s40, v5")
        a("s_cmp_ge_u32 s40, 8")
        a("s_cbranch_scc1 L_o_ok")
        a(f"s_sleep {OSL}")
        a(f"buffer_load_dword v5, off, {sr(S_WS)}, s42 sc1")
        a(f"s_sub_u32 s{T1}, s{T1}, 1")
        a(f"s_cmp_lg_u32 s{T1}, 0")
        a("s_cbranch_scc1 L_o_poll")
        a("L_o_ok:")
    else:
        a(f"s_cmp_lg_u32 s{sW}, 0")
        a("s_cbranch_scc1 L_o_ok")
        a(f"s_lshl_b32 s{T0}, s{sXCD}, 8")
        a(f"s_add_u32 s{T0}, s{T0}, {WS_CNT + C_O * 256}")
        a(f"s_mov_b32 s{T1}, {SPIN}")
        a("L_o_poll:")
        a(f"buffer_load_dword v4, off, {sr(S_WS)}, s{T0} sc1")
        a("s_waitcnt vmcnt(0)")
        a("v_readfirstlane_b32 s40, v4")
        a("s_cmp_ge_u32 s40, 32")
        a("s_cbranch_scc1 L_o_ok")
        a(f"s_sub_u32 s{T1}, s{T1}, 1")
        a(f"s_cmp_lg_u32 s{T1}, 0")
        a("s_cbranch_scc1 L_o_poll")
        a("L_o_ok:")
        a("s_barrier")
    stamp(a, 12)
    OF = S0
    SA = V_
    for j in range(8):
        so = T2 if j < 4 else T3
        a(f"buffer_load_dwordx4 {vr(OF + 4 * j, 4)}, v{A16}, {sr(S_WS)}, s{so} offen offset:{(j % 4) * 1024} sc1")
    if "sen" in OPT:
        a("L_o_ld:")
    if "sl" in OPT:
        if "sen" in OPT:
            a(["s_cmp_lg_u32 s43, 0", "s_cbranch_scc1 L_nosilu", "s_mov_b32 s43, 1"])
        silu_block()
        if "sen" in OPT:
            a("L_nosilu:")
    for j in range(8):
        a(f"s_waitcnt vmcnt({7 - j})")
        for ap in range(2):
            a(mfma(SA + 16 * ap, wreg(2 * j + ap), OF + 4 * j, "0" if j == 0 else None))
            if "sen" in OPT:
                f = OF + 4 * j + 2 * ap
                a(f"v_max3_u32 v5, v{f}, v{f + 1}, v{f if (j == 0 and ap == 0) else 5}")
    if "sen" in OPT:
        a("v_cmp_eq_u32 vcc, -1, v5")
        a(f"s_sub_u32 s{T1}, s{T1}, 1")
        a("s_cselect_b64 vcc, 0, vcc")
        a("s_cmp_eq_u64 vcc, 0")
        a("s_cbranch_scc0 L_o_ok")
    stamp(a, 13)
    a("s_nop 11")
    for o in range(4):
        for i in range(2):
            a(f"ds_write_b128 v1, {vr(SA + 8 * o + 4 * i, 4)} offset:{o * (8256 if 'coal' in OPT else 8192) + i * 1024}")
    a("s_waitcnt lgkmcnt(0)")
    a("s_barrier")
    for s in range(4):
        for i in range(2):
            a(f"ds_read_b128 {vr(SA + 8 * s + 4 * i, 4)}, v3 offset:{(s * 2 + i) * 1024}")
    for s in range(1, 4):
        a(f"s_waitcnt lgkmcnt({2 * (3 - s)})")
        for i in range(4):
            a(f"v_pk_add_f32 {vr(SA + 2 * i, 2)}, {vr(SA + 2 * i, 2)}, {vr(SA + 8 * s + 2 * i, 2)}")
    for i in range(4):
        a(f"v_pk_fma_f32 {vr(XU + 2 * i, 2)}, {vr(SA + 2 * i, 2)}, {vr(F_ + 2 * i, 2)}, {vr(XU + 2 * i, 2)}")
    for i in range(4):
        a(f"v_cvt_pk_bf16_f32 v{4 + i}, v{XU + 2 * i}, v{XU + 2 * i + 1}")
    fl = " sc1" if "osc1" in OPT else (" nt" if "ont" in OPT else (" sc0 sc1" if "osc01" in OPT else ""))
    a(f"buffer_store_dwordx4 v[4:7], v{AOUT}, {sr(R_OUT)}, 0 offen{fl}")
    stamp(a, 14)
    stamp_flush(a)
    a("L_exit:")
    a("s_endpgm")
    a("L_fallback:")
    a(f"s_lshl_b32 s{T0}, s{tHEAD}, 16")
    a(f"s_add_u32 s{T0}, s{T0}, {32 << 16}")
    a(f"s_mov_b32 s{T1}, 0")
    a("v_mov_b32 v1, 0xff800000")
    a("L_fb1:")
    a(f"s_add_u32 s{T2}, s{T0}, s{T1}")
    a(f"buffer_load_dwordx4 {vr(K_, 4)}, v{A16}, {sr(S_WS)}, s{T2} offen sc1")
    a("s_waitcnt vmcnt(0)")
    a(mfma(S0, K_, Q_, "0"))
    a("s_nop 15")
    for i in range(0, 16, 2):
        a(f"v_max3_f32 v1, v1, v{S0 + i}, v{S0 + i + 1}")
    a(f"s_add_u32 s{T1}, s{T1}, 1024")
    a(f"s_cmp_lt_u32 s{T1}, 65536")
    a("s_cbranch_scc1 L_fb1")
    a("v_mov_b32 v2, v1")
    a("s_nop 1")
    a("v_permlane32_swap_b32 v1, v2")
    a("v_max_f32 v1, v1, v2")
    a("v_sub_f32 v1, 0, v1")
    for i in range(16):
        a(f"v_mov_b32 v{NM + i}, v1")
    for i in range(16):
        a(f"v_mov_b32 v{O_ + i}, 0")
    a("v_lshrrev_b32 v2, 5, v0")
    a("v_and_b32 v3, 15, v0")
    a("v_lshlrev_b32 v3, 4, v3")
    a("v_lshl_add_u32 v3, v2, 8, v3")
    a(f"s_mov_b32 s{T1}, 0")
    a("L_fb2:")
    a(f"s_add_u32 s{T2}, s{T0}, s{T1}")
    a(f"buffer_load_dwordx4 {vr(K_, 4)}, v{A16}, {sr(S_WS)}, s{T2} offen sc1")
    a(f"s_add_u32 s{T2}, s{T2}, {32 << 16}")
    a(f"s_mov_b64 exec, s[{tVM}:{tVM + 1}]")
    a(f"buffer_load_dwordx4 {vr(V_, 4)}, v3, {sr(S_WS)}, s{T2} offen sc1")
    a(f"buffer_load_dwordx4 {vr(V_ + 4, 4)}, v3, {sr(S_WS)}, s{T2} offen offset:512 sc1")
    a("s_mov_b64 exec, -1")
    a("s_waitcnt vmcnt(0)")
    a(mfma(S0, K_, Q_, NM))
    a("s_nop 15")
    for i in range(16):
        a(f"v_exp_f32 v{S0 + i}, v{S0 + i}")
    a("s_nop 0")
    for i in range(8):
        a(f"v_cvt_pk_bf16_f32 v{P_ + i}, v{S0 + 2 * i}, v{S0 + 2 * i + 1}")
    a("s_nop 1")
    a(mfma(O_, V_, P_))
    a(mfma(O_, V_ + 4, P_ + 4))
    a(f"s_add_u32 s{T1}, s{T1}, 1024")
    a(f"s_cmp_lt_u32 s{T1}, 65536")
    a("s_cbranch_scc1 L_fb2")
    a("s_nop 15")
    a("s_branch L_norm")


def main(out):
    a = Asm()
    k = NAME + "_kernel"
    hdr = ["; LN + MHA + GEGLU block, one persistent launch; generated by gen5.py (hand-scheduled gfx950 assembly)",
           "; @launch grid=(256,1,1) block=(512,1,1) lds=163840"]
    a('.amdgcn_target "amdgcn-amd-amdhsa--gfx950"')
    a(".text")
    a(f".globl {k}\n.p2align 8\n.type {k},@function\n{k}:")
    gen_p1(a)
    gen_p2(a)
    gen_side(a)
    a("L_end:")
    a('.section .rodata,"a"')
    a(".p2align 6")
    a(f".amdhsa_kernel {k}")
    a(f".amdhsa_next_free_vgpr {NVGPR}")
    a(f".amdhsa_next_free_sgpr {96 if (STAMPS or ENC is not None) else 80}")
    a(f".amdhsa_accum_offset {(NVGPR + 3) // 4 * 4}")
    a(".amdhsa_group_segment_fixed_size 0")
    a(".amdhsa_kernarg_size 80")
    a(".amdhsa_user_sgpr_count 2")
    a(".amdhsa_user_sgpr_kernarg_segment_ptr 1")
    a(".amdhsa_system_sgpr_workgroup_id_x 1")
    a(".end_amdhsa_kernel")
    open(out, "w").write("\n".join(hdr) + "\n" + a.text())


if __name__ == "__main__":
    for x in list(sys.argv):
        if x.startswith("--opt="):
            OPT = set(x[6:].split(","))
            sys.argv.remove(x)
    for x in list(sys.argv):
        if x.startswith("--enc="):
            ENC = int(x[6:])
            sys.argv.remove(x)
    for o in OPT:
        if o.startswith("sig"): SIGU = int(o[3:])
        if o.startswith("chk"): CHK = int(o[3:])
        if o.startswith("wk"): WK = int(o[2:])
        if o.startswith("mo"): MAXOFF = float(o[2:])
        if o.startswith("cso"): CSO = int(o[3:])
        if o.startswith("osl"): OSL = int(o[3:])
        if o.startswith("nbg"): NBG = int(o[3:])
        if o.startswith("vb"): VBUD = int(o[2:])
        if o.startswith("pc"): PC = (int(o[2]), int(o[3]))
        if o.startswith("pd"): PD = int(o[2])
        if o.startswith("pg"): PG = int(o[2])
    if "--cyc" in sys.argv:
        STAMPS = 2
        sys.argv.remove("--cyc")
    if "--stamps" in sys.argv:
        STAMPS = True
        sys.argv.remove("--stamps")
    main(sys.argv[1] if len(sys.argv) > 1 else f"cdna_kernels/{NAME}.s")
```

```python
import sys, struct, math

NAME = "recurrent_scan__mha_block__glu_gated_geglu__prompt"

WS_QKV = 0
WS_H = 6 << 20
WS_O = 14 << 20
WS_CNT = 16 << 20
WS_STAMP = (16 << 20) + 65536
WS_CS = (16 << 20) + 0xb0000
WS_ST = (16 << 20) + 0x80000
WS_CQ = (16 << 20) + 0xa0000
WS_RS = (16 << 20) + 0x84000
WS_CP = (19 << 20) + 0x80000
WS_WT = 17 << 20
WS_SIZE = 21 << 20
OOB = 0x7f000000

LOG2E = 1.4426950408889634
QSCALE = 0.25 * LOG2E
GC1 = -2.0 * LOG2E * math.sqrt(2.0 / math.pi)
GC2 = GC1 * 0.044715
MAXOFF = 100.0
SPIN = 0x40000

STAMPS = False
OPT = set()
NOSTAMP = False
ENC = None


def f2u(x):
    return struct.unpack("<I", struct.pack("<f", x))[0]


def hx(x):
    return "0x%08x" % (x & 0xffffffff)


class Asm:
    def __init__(self):
        self.l = []

    def __call__(self, s):
        if isinstance(s, (list, tuple)):
            for x in s:
                self(x)
            return
        for line in s.split("\n"):
            line = line.strip()
            if not line:
                continue
            if line.endswith(":") or line.startswith("."):
                self.l.append(line)
            else:
                self.l.append("    " + line)

    def text(self):
        return "\n".join(self.l) + "\n"


def vr(b, n):
    return f"v[{b}:{b + n - 1}]"


def sr(b):
    return f"s[{b}:{b + 3}]"


def mfma(d, a, b, c=None):
    cs = vr(d, 16) if c is None else (c if isinstance(c, str) else vr(c, 16))
    return f"v_mfma_f32_32x32x16_bf16 {vr(d, 16)}, {vr(a, 4)}, {vr(b, 4)}, {cs}"


def stamp(a, n):
    if ENC is not None:
        if n in (0, ENC) and not NOSTAMP:
            a("s_memrealtime s[76:77]")
            a("s_waitcnt lgkmcnt(0)")
            a(f"s_mov_b32 s{80 if n == 0 else 81}, s76")
            if n == 0:
                a("s_mov_b32 s81, s76")
        return
    if not STAMPS or (NOSTAMP and n != 15) or ("min" in OPT and n not in (0, 15)):
        return
    a("s_memtime s[76:77]" if STAMPS == 2 else "s_memrealtime s[76:77]")
    a("s_waitcnt lgkmcnt(0)")
    a(f"s_mov_b32 s{80 + n}, s76")


def stampl(n):
    t = Asm()
    stamp(t, n)
    return [x.strip() for x in t.l]


def stamp_flush(a):
    if ENC is not None:
        a("s_waitcnt vmcnt(0)")
        a("s_memrealtime s[76:77]")
        a("s_waitcnt lgkmcnt(0)")
        if ENC == 15:
            a("s_mov_b32 s81, s76")
        if ENC == 99:
            a(["v_mov_b32 v1, 0", f"global_load_dword v2, v1, s[{pDBG}:{pDBG + 1}] offset:240 sc1", "s_waitcnt vmcnt(0)",
               "v_readfirstlane_b32 s80, v2", "s_not_b32 s80, s80", "s_sub_u32 s80, s80, 100"])
        a("s_sub_u32 s81, s81, s80")
        a("s_cmp_lt_u32 s2, 32" if "encs" not in OPT else "s_cmp_ge_u32 s2, 32")
        a("s_cselect_b32 s81, 0, s81")
        a("s_mov_b32 s80, s76")
        a("L_enc:")
        a("s_memrealtime s[76:77]")
        a("s_waitcnt lgkmcnt(0)")
        a("s_sub_u32 s76, s76, s80")
        a("s_cmp_lt_u32 s76, s81")
        a("s_cbranch_scc1 L_enc")
        return
    if not STAMPS:
        return
    a("s_waitcnt vmcnt(0)")
    stamp(a, 15)
    a("v_mov_b32 v1, 0")
    for n in range(16):
        a(f"v_writelane_b32 v1, s{80 + n}, {n}")
    a("s_lshl_b32 s76, s2, 3")
    a(f"s_add_u32 s76, s76, s{sW}")
    a("s_lshl_b32 s76, s76, 6")
    a(f"s_add_u32 s76, s76, {WS_STAMP}")
    a("v_lshlrev_b32 v2, 2, v0")
    a("s_mov_b64 exec, 0xffff")
    a(f"buffer_store_dword v1, v2, {sr(S_WS)}, s76 offen")


def srd(a, s, ptr, size):
    a(f"s_mov_b32 s{s}, s{ptr}")
    a(f"s_mov_b32 s{s + 1}, s{ptr + 1}")
    a(f"s_mov_b32 s{s + 2}, {size}")
    a(f"s_mov_b32 s{s + 3}, 0x00020000")


pX, pWQKV, pWO, pG, pU, pWD, pOUT, pDBG, pWS = 56, 58, 60, 64, 66, 68, 70, 72, 74
S_T, S_X, S_W0, S_W1, S_W3, S_WS = 4, 8, 12, 16, 20, 24
R_OUT, R_H0, R_H1, R_WT = 4, 12, 16, 20
sW, sTT, sHF, sRB, sCB, sROT, sISS, sVAR = 28, 29, 30, 31, 32, 33, 34, 35
sCQ, sCG, sXROW, sLW = 36, 37, 42, 43
T0, T1, T2, T3 = 44, 45, 46, 47
sXCD, sT, sG, sKV = 49, 52, 53, 50
tHEAD, tQB, tIT, tFH, tFW, tTT = 38, 39, 33, 36, 37, 48
tVM = 54

AR, BR, CR, SL = 0, 49152, 98304, 16384
SCR = 147456
XA, VXS, VW0, WQ, WC = 4, 8, 9, 10, 12
VW1, VW3, L16, MASK, ONES, STV, POLL = 14, 15, 16, 17, 18, 20, 21
CSA = 24
WF = 32
ACF, ACQ = 64, 96
XF = 128
Q_, K_, P_, NM, S0, S1, RING = 8, 12, 20, 28, 44, 60, 76
AK, AV, A16, AOUT = 124, 125, 126, 127
G_, V_, O_, AW = 128, 192, 224, 240
NVGPR = 256
C_H, C_CS, C_O = 24, 40, 56
T4 = 63
sQT = 78
sCF, sCNT = 51, 62


def tiny(d, a_, b_, first=False):
    return f"v_mfma_f32_4x4x4_16b_bf16 {vr(d, 4)}, {vr(a_, 2)}, {vr(b_, 2)}, {'0' if first else vr(d, 4)}"


def dma(S, ffn=True):
    sl = (S % 3) * SL
    if S < 8:
        r = [[f"s_add_u32 s{T1}, s{sROT}, {S}", f"s_and_b32 s{T1}, s{T1}, 7",
              f"s_lshl_b32 s{T0}, s{T1}, 7", f"s_add_u32 m0, s{sLW}, {AR + sl}", f"s_add_u32 s{T0}, s{T0}, s{sXROW}",
              f"buffer_load_dwordx4 v{VXS}, {sr(S_X)}, s{T0} offen lds"],
             [f"s_mul_i32 s{T1}, s{T1}, {64 * 3072}", f"s_add_u32 m0, s{sLW}, {BR + sl}", f"s_add_u32 s{T1}, s{T1}, s{sCQ}",
              f"buffer_load_dwordx4 v{VW0}, {sr(S_W0)}, s{T1} offen lds"],
             [f"s_add_u32 m0, s{sLW}, {AR + sl + 8192}", f"s_add_u32 s{T0}, s{T0}, 0x10000",
              f"buffer_load_dwordx4 v{VXS}, {sr(S_X)}, s{T0} offen lds"],
             [f"s_add_u32 m0, s{sLW}, {BR + sl + 8192 - 128}", "s_nop 0",
              f"buffer_load_dwordx4 v{VW0}, {sr(S_W0)}, s{T1} offen offset:128 lds"]]
        if ffn and S >= 2:
            r += [[f"s_add_u32 s{T4}, s{sROT}, {S - 2}", f"s_and_b32 s{T4}, s{T4}, 7", f"s_mul_i32 s{T4}, s{T4}, {64 * 3584}",
                   f"s_add_u32 m0, s{sLW}, {CR + sl}", f"s_add_u32 s{T4}, s{T4}, s{sCG}",
                   f"buffer_load_dwordx4 v{VW1}, {sr(S_W1)}, s{T4} offen lds"],
                  [f"s_add_u32 m0, s{sLW}, {CR + sl + 8192}", "s_nop 0",
                   f"buffer_load_dwordx4 v{VW3}, {sr(S_W3)}, s{T4} offen lds"]]
        return r
    if not ffn:
        return []
    r = []
    off = 128 if S > 8 else 0
    for hb, base in enumerate((BR, CR)):
        r += [[f"s_add_u32 s{T1}, s{sROT}, {(2 * (S - 9) + hb) & 7}", f"s_and_b32 s{T1}, s{T1}, 7",
               f"s_mul_i32 s{T1}, s{T1}, {64 * 3584}", f"s_add_u32 m0, s{sLW}, {base + sl - off}", f"s_add_u32 s{T1}, s{T1}, s{sCG}",
               f"buffer_load_dwordx4 v{VW1}, {sr(S_W1)}, s{T1} offen offset:{off} lds"],
              [f"s_add_u32 m0, s{sLW}, {base + sl + 8192 - off}", "s_nop 0",
               f"buffer_load_dwordx4 v{VW3}, {sr(S_W3)}, s{T1} offen offset:{off} lds"]]
    return r


def fset(k, ffn):
    return WF + 16 * (k & 1) if (ffn and k >= 8) else WF + 8 * (k & 3)


def rd1(k, nt, ffn):
    S, ks = k >> 2, k & 3
    sl = (S % 3) * SL
    F = fset(k, ffn)
    r = [f"ds_read_b128 {vr(XF + 4 * k, 4)}, v{XA + ks} offset:{sl}"]
    for t in range(nt):
        for t2 in range(2):
            r.append(f"ds_read_b64_tr_b16 {vr(F + 4 * t + 2 * t2, 2)}, v{WQ + t} offset:{sl + ks * 2048 + t2 * 512}")
    if ffn and k >= 8:
        for c in range(2):
            for t2 in range(2):
                r.append(f"ds_read_b64_tr_b16 {vr(F + 8 + 4 * c + 2 * t2, 2)}, v{WC + c} offset:{sl + ks * 2048 + t2 * 512}")
    return r


def rd2(u):
    S = 8 + (u >> 2)
    sl = (S % 3) * SL
    base = WQ if (u & 3) < 2 else WC
    F = WF + 16 * (u & 1)
    return [f"ds_read_b64_tr_b16 {vr(F + 8 * q + 4 * c + 2 * t2, 2)}, v{base + c} offset:{sl + ((2 * u + q) & 3) * 2048 + t2 * 512}"
            for q in range(2) for c in range(2) for t2 in range(2)]


def flat(L):
    return [x for at in L for x in ([at] if isinstance(at, str) else at)]


def spread(heads, first, rest):
    n = len(heads)
    pf = -(-len(first) // max(1, n - 1)) if first else 0
    res = []
    for j, hd in enumerate(heads):
        res.append(hd)
        res += flat(first[j * pf:(j + 1) * pf])
        res += flat(rest[j * len(rest) // n:(j + 1) * len(rest) // n])
    return res


def nvm(lines):
    return sum(1 for l in lines if l.startswith("buffer_") or l.startswith("global_"))


def weave(heads, fills):
    res = []
    per = -(-len(fills) // len(heads)) if fills else 0
    i = 0
    for hd in heads:
        res.append(hd)
        for at in fills[i:i + per]:
            res += [at] if isinstance(at, str) else at
        i += per
    return res


def tr_addr(dst, t_a, t_b):
    return [f"v_lshrrev_b32 v{t_a}, 5, v0", f"v_bfe_u32 v{t_b}, v0, 2, 2", f"v_lshl_add_u32 v{dst}, v{t_a}, 2, v{t_b}",
            f"v_lshlrev_b32 v{dst}, 7, v{dst}", f"v_and_b32 v{t_a}, 1, v0", f"v_lshl_add_u32 v{dst}, v{t_a}, 6, v{dst}",
            f"v_bfe_u32 v{t_a}, v0, 4, 1", f"v_lshl_add_u32 v{dst}, v{t_a}, 4, v{dst}", f"v_bfe_u32 v{t_a}, v0, 1, 1",
            f"v_lshl_add_u32 v{dst}, v{t_a}, 3, v{dst}", f"v_lshrrev_b32 v{t_b}, 1, v{t_b}", f"v_lshl_add_u32 v{dst}, v{t_b}, 5, v{dst}"]


def split3(w, src):
    return [f"v_and_b32 v{w}, v{MASK}, v{src}", f"v_sub_f32 v{w + 2}, v{src}, v{w}",
            f"v_and_b32 v{w + 1}, v{MASK}, v{w + 2}", f"v_sub_f32 v{w + 2}, v{w + 2}, v{w + 1}", f"v_mov_b32 v{w + 3}, 0"]


def poll_issue(lbl, mask_instrs, reg=POLL):
    return ([f"s_cmp_lg_u32 s{sW}, 0", f"s_cbranch_scc1 {lbl}", "v_lshlrev_b32 v1, 8, v0"] + mask_instrs +
            ["s_mov_b64 exec, s[40:41]",
             f"buffer_load_dword v{reg}, v1, {sr(S_WS)}, s{sCNT} offen sc1", "s_mov_b64 exec, -1", f"{lbl}:"])


def poll_check(lbl, thr, reg=POLL, sleep=8):
    return [f"s_cmp_lg_u32 s{sW}, 0", f"s_cbranch_scc1 {lbl}_ok",
            f"s_mov_b32 s{T3}, {SPIN}", "s_mov_b64 exec, s[40:41]", f"{lbl}_spin:",
            f"v_cmp_gt_u32 vcc, {thr}, v{reg}", "s_cmp_eq_u64 vcc, 0", f"s_cbranch_scc1 {lbl}_done",
            f"s_sleep {sleep}",
            f"buffer_load_dword v{reg}, v1, {sr(S_WS)}, s{sCNT} offen sc1", "s_waitcnt vmcnt(0)",
            f"s_sub_u32 s{T3}, s{T3}, 1", f"s_cmp_lg_u32 s{T3}, 0", f"s_cbranch_scc1 {lbl}_spin",
            f"{lbl}_done:", "s_mov_b64 exec, -1", f"{lbl}_ok:"]


QKV_MASK = [f"s_lshl_b32 s40, 0x10101, s{sXCD}", "s_mov_b32 s41, 0"]
CS_MASK = ["s_mov_b32 s40, 0", f"s_lshl_b32 s41, 0x100, s{sCF}"]
H_MASK = ["s_mov_b32 s40, 0xff000000", "s_mov_b32 s41, 0xff"]


def cs_issue(lbl, n):
    return [f"s_cmp_lg_u32 s{sW}, 0", f"s_cbranch_scc1 {lbl}", "v_lshlrev_b32 v1, 6, v0", "s_mov_b64 exec, 15",
            f"global_load_dword v{POLL}, v1, s[{pDBG}:{pDBG + 1}] offset:{4 * n} sc1", "s_mov_b64 exec, -1", f"{lbl}:"]


def cs_signal(lbl, n):
    return [f"s_cmp_lg_u32 s{sW}, 0", f"s_cbranch_scc1 {lbl}", f"s_and_b32 s{T2}, s{sRB}, 3", f"s_lshl_b32 s{T2}, s{T2}, 6",
            f"v_mov_b32 v2, s{T2}", "v_mov_b32 v3, 1", "s_mov_b64 exec, 1",
            f"global_atomic_add v2, v3, s[{pDBG}:{pDBG + 1}] offset:{4 * n} sc1", "s_mov_b64 exec, -1", f"{lbl}:"]


def cs_check(lbl, n):
    return [f"s_cmp_lg_u32 s{sW}, 0", f"s_cbranch_scc1 {lbl}_ok",
            f"s_mov_b32 s{T3}, {SPIN}", "s_mov_b64 exec, 15", f"{lbl}_spin:",
            f"v_cmp_gt_u32 vcc, 8, v{POLL}", "s_cmp_eq_u64 vcc, 0", f"s_cbranch_scc1 {lbl}_done",
            "s_sleep 8",
            f"global_load_dword v{POLL}, v1, s[{pDBG}:{pDBG + 1}] offset:{4 * n} sc1", "s_waitcnt vmcnt(0)",
            f"s_sub_u32 s{T3}, s{T3}, 1", f"s_cmp_lg_u32 s{T3}, 0", f"s_cbranch_scc1 {lbl}_spin",
            f"{lbl}_done:", "s_mov_b64 exec, -1", f"{lbl}_ok:"]


def flag_check(lbl):
    return [f"s_cmp_lg_u32 s{sW}, 0", f"s_cbranch_scc1 {lbl}",
            f"s_mov_b32 s{T3}, {SPIN}", f"{lbl}_spin:",
            f"v_readfirstlane_b32 s{T2}, v{POLL}", f"s_cmp_lg_u32 s{T2}, 0", f"s_cbranch_scc1 {lbl}",
            "s_sleep 8", "v_mov_b32 v2, 0",
            f"global_load_dword v{POLL}, v2, s[{pDBG}:{pDBG + 1}] offset:32 sc1", "s_waitcnt vmcnt(0)",
            f"s_sub_u32 s{T3}, s{T3}, 1", f"s_cmp_lg_u32 s{T3}, 0", f"s_cbranch_scc1 {lbl}_spin", f"{lbl}:"]


def sig_qkv(lbl):
    return [f"s_cmp_lg_u32 s{sW}, 0", f"s_cbranch_scc1 {lbl}",
            f"s_mul_i32 s{T2}, s{sCB}, 3", f"s_lshr_b32 s{T2}, s{T2}, 1", f"s_and_b32 s{T3}, s{sCB}, 1",
            f"v_add_u32 v2, s{T2}, v0", "v_lshlrev_b32 v2, 8, v2",
            f"v_xor_b32 v3, s{T3}, v0", "v_sub_u32 v3, 2, v3",
            "s_mov_b64 exec, 3", f"buffer_atomic_add v3, v2, {sr(S_WS)}, s{sCNT} offen sc1", "s_mov_b64 exec, -1", f"{lbl}:"]


def sig_one(lbl, idx_instrs, skip_side=False):
    c = [f"s_or_b32 s{T0}, s{sW}, s{sISS}"] if skip_side else [f"s_cmp_lg_u32 s{sW}, 0"]
    return (c + [f"s_cbranch_scc1 {lbl}"] + idx_instrs +
            [f"s_lshl_b32 s{T0}, s{T0}, 8", f"s_add_u32 s{T0}, s{T0}, s{sCNT}", "v_mov_b32 v3, 1", "s_mov_b64 exec, 1",
             f"buffer_atomic_add v3, off, {sr(S_WS)}, s{T0} sc1", "s_mov_b64 exec, -1", f"{lbl}:"])


def kv(i, r=L16):
    return [[f"s_lshl1_add_u32 m0, s{sLW}, {i * 16384}" if i else f"s_lshl_b32 m0, s{sLW}, 1",
             f"s_add_u32 s{T2}, s{sKV}, {i * 8192}",
             f"buffer_load_dwordx4 v{r}, {sr(S_WS)}, s{T2} offen sc1 lds"],
            [f"s_lshl1_add_u32 m0, s{sLW}, {i * 16384 + 1024}", f"s_add_u32 s{T2}, s{sKV}, {i * 8192 + (32 << 16)}",
             f"buffer_load_dwordx4 v{r}, {sr(S_WS)}, s{T2} offen sc1 lds"]]


def q_load():
    return [f"s_lshl_b32 s{T2}, s{tHEAD}, 6", f"s_add_u32 s{T2}, s{T2}, s{sQT}", f"s_lshl_b32 s{T2}, s{T2}, 10",
            f"buffer_load_dwordx4 {vr(Q_, 4)}, v{L16}, {sr(S_WS)}, s{T2} offen sc1"]


def p2_init_v():
    return ([["v_and_b32 v3, 27, v0", "v_cmp_eq_u32 vcc, 16, v3", f"v_mov_b32 v{V_ + 1}, 0x3f803f80", "v_mov_b32 v3, 0",
              f"v_cndmask_b32 v{V_}, v3, v{V_ + 1}, vcc", f"v_mov_b32 v{V_ + 1}, v{V_}"]] +
            [f"v_mov_b64 v[{V_ + i}:{V_ + i + 1}], v[{V_}:{V_ + 1}]" for i in range(2, 32, 2)])


TRA, TRD = 142, 144


def tr_setup():
    A, B, C, D = T2, T3, tVM + 1, tVM
    return [[f"s_sub_u32 s{C}, s2, 32", f"s_mul_i32 s{D}, s{sW}, 144", f"s_add_u32 s{D}, s{D}, s{C}", f"s_lshl_b32 s{D}, s{D}, 11",
             f"s_add_u32 s{D}, s{D}, {WS_WT}", f"s_cmp_lt_u32 s{C}, 144", f"s_cselect_b32 s{D}, s{D}, {OOB}",
             f"s_cmp_lt_u32 s{C}, 112", f"s_cselect_b32 s{S_T}, s{pWD}, s{pWO}",
             f"s_cselect_b32 s{S_T + 1}, s{pWD + 1}, s{pWO + 1}", f"s_mov_b32 s{S_T + 2}, 1835008",
             f"s_cselect_b32 s{S_T + 2}, s{S_T + 2}, 524288", f"s_cselect_b32 s{A}, 0, 112", f"s_mov_b32 s{S_T + 3}, 0x00020000",
             f"s_sub_u32 s{C}, s{C}, s{A}", f"s_lshl_b32 s{C}, s{C}, 14", f"s_lshl_b32 s{B}, s{sW}, 7", f"s_add_u32 s{C}, s{C}, s{B}"],
            ["v_lshrrev_b32 v2, 3, v0", "v_and_b32 v3, 2, v2", "v_and_b32 v18, 7, v0", "v_xor_b32 v18, v3, v18",
             "v_lshlrev_b32 v18, 4, v18", "v_lshl_add_u32 v18, v2, 10, v18"]]


def tr_dma():
    C = tVM + 1
    return [[f"s_lshl_b32 m0, s{sLW}, 1", f"s_add_u32 s{T3}, s{C}, 8192", f"buffer_load_dwordx4 v18, {sr(S_T)}, s{C} offen lds",
             "s_add_u32 m0, m0, 1024", "s_nop 0", f"buffer_load_dwordx4 v18, {sr(S_T)}, s{T3} offen lds"]]


def tr_rd():
    return [f"ds_read_b64_tr_b16 {vr(TRD + 4 * ap + 2 * t, 2)}, v{TRA + ap} offset:{t * 1024}" for ap in range(2) for t in range(2)]


def tr_st():
    return [f"buffer_store_dwordx4 {vr(TRD, 4)}, v{L16}, {sr(S_WS)}, s{tVM} offen sc1",
            f"buffer_store_dwordx4 {vr(TRD + 4, 4)}, v{L16}, {sr(S_WS)}, s{tVM} offen offset:1024 sc1"]


def gen_p1(a):
    global NOSTAMP
    a("s_cmp_ge_u32 s2, 256")
    a("s_cbranch_scc1 L_exit")
    stamp(a, 0)
    a(f"s_load_dwordx4 s[{pX}:{pX + 3}], s[0:1], 0")
    a(f"s_load_dwordx4 s[{pG}:{pG + 3}], s[0:1], 32")
    a(f"s_load_dwordx2 s[{pWO}:{pWO + 1}], s[0:1], 16")
    a(f"s_load_dwordx4 s[{pWD}:{pWD + 3}], s[0:1], 48")
    a(f"s_load_dwordx4 s[{pDBG}:{pDBG + 3}], s[0:1], 64")
    a("v_lshrrev_b32 v1, 6, v0")
    a("v_and_b32 v0, 63, v0")
    a(f"v_readfirstlane_b32 s{sW}, v1")
    a("s_cmp_ge_u32 s2, 32")
    a("s_cbranch_scc1 L_nocode")
    a("s_getpc_b64 s[40:41]")
    a("L_here:")
    a("v_lshlrev_b32 v2, 13, v1")
    a("v_lshl_add_u32 v2, v0, 7, v2")
    a("v_min_u32 v2, L_end-L_here-4, v2")
    a("v_mov_b32 v3, s41")
    a("v_add_co_u32 v2, vcc, s40, v2")
    a("s_nop 1")
    a("v_addc_co_u32 v3, vcc, 0, v3, vcc")
    a(f"global_load_dword v{STV}, v[2:3], off")
    a("L_nocode:")
    a(f"s_and_b32 s{sXCD}, s2, 7")
    a(f"s_lshr_b32 s{T1}, s2, 3")
    a(f"s_and_b32 s{sRB}, s{sXCD}, 3")
    a(f"s_and_b32 s{T2}, s{T1}, 3")
    a(f"s_lshl2_add_u32 s{sRB}, s{sRB}, s{T2}")
    a(f"s_lshr_b32 s{sCF}, s{sXCD}, 2")
    a(f"s_lshr_b32 s{sISS}, s{T1}, 2")
    a(f"s_lshl3_add_u32 s{sCB}, s{sCF}, s{sISS}")
    a(f"s_lshl1_add_u32 s{sROT}, s{sXCD}, s{sISS}")
    a(f"s_lshl_b32 s{sLW}, s{sW}, 10")
    a(f"s_lshl_b32 s{T2}, s{sW}, 3")
    a(f"s_lshl_b32 s{sXROW}, s{sRB}, 7")
    a(f"s_add_u32 s{sXROW}, s{sXROW}, s{T2}")
    a(f"s_lshl_b32 s{sXROW}, s{sXROW}, 10")
    a(f"s_mul_i32 s{sCQ}, s{sCB}, 3")
    a(f"s_lshr_b32 s{sCQ}, s{sCQ}, 1")
    a(f"s_lshl_b32 s{sCQ}, s{sCQ}, 7")
    a(f"s_mul_i32 s{T3}, s{T2}, 3072")
    a(f"s_add_u32 s{sCQ}, s{sCQ}, s{T3}")
    a(f"s_mul_i32 s{T3}, s{T2}, 3584")
    a(f"s_sub_u32 s{sCF}, s{sCB}, s{sCF}")
    a(f"s_sub_u32 s{sCF}, s{sCF}, 1")
    a(f"s_lshl_b32 s{sCG}, s{sCF}, 8")
    a(f"s_add_u32 s{sCG}, s{sCG}, s{T3}")
    a(f"s_cmp_eq_u32 s{sISS}, 0")
    a(f"s_cselect_b32 s{sISS}, 1, 0")
    a(f"s_cselect_b32 s{sCG}, {OOB}, s{sCG}")
    a("v_lshrrev_b32 v1, 3, v0")
    a("v_and_b32 v2, 7, v0")
    a(f"v_add_u32 v3, s{T2}, v1")
    a("v_bfe_u32 v3, v3, 1, 3")
    a("v_xor_b32 v3, v3, v2")
    a("v_lshlrev_b32 v3, 4, v3")
    a(f"v_lshl_add_u32 v{VXS}, v1, 10, v3")
    a("v_and_b32 v3, 2, v1")
    a("v_lshlrev_b32 v3, 1, v3")
    a("v_xor_b32 v3, v3, v2")
    a("v_lshlrev_b32 v3, 4, v3")
    a("v_mul_u32_u24 v4, 3072, v1")
    a(f"v_add_u32 v{VW0}, v4, v3")
    a("v_mul_u32_u24 v4, 3584, v1")
    a(f"v_add_u32 v{VW1}, v4, v3")
    a(f"v_xor_b32 v{VW3}, 32, v{VW1}")
    for r_, sz in ((S_X, 2097152), (S_W0, 1572864), (S_W1, 1835008), (S_W3, 1835008)):
        a(f"s_mov_b32 s{r_ + 2}, {sz}")
        a(f"s_mov_b32 s{r_ + 3}, 0x00020000")
    a("s_waitcnt lgkmcnt(0)")
    for r_, p_ in ((S_X, pX), (S_W0, pWQKV), (S_W1, pG), (S_W3, pU)):
        a(f"s_mov_b64 s[{r_}:{r_ + 1}], s[{p_}:{p_ + 1}]")
    a(f"s_cmp_eq_u32 s{sISS}, 1")
    a("s_cbranch_scc1 L_nod0")
    a(dma(0))
    if "tlb" in OPT:
        a("s_branch L_nod1")
    a("L_nod0:")
    if "tlb" in OPT:
        a(f"s_and_b32 s{T0}, s{sRB}, 3")
        a(f"s_lshl2_add_u32 s{T0}, s{sW}, s{T0}")
        a(f"s_sub_u32 s{T1}, s{T0}, 4")
        a(f"s_min_u32 s{T1}, s{T1}, 10")
        a(f"s_lshl_b32 s{T1}, s{T1}, 21")
        a(f"s_add_u32 s40, s{pWS}, s{T1}")
        a(f"s_addc_u32 s41, s{pWS + 1}, 0")
        for i, p_ in ((0, pG), (1, pU), (2, pWQKV), (3, pDBG), (15, pWD), (16, pWO), (17, pOUT)):
            a(f"s_cmp_eq_u32 s{T0}, {i}")
            a(f"s_cselect_b64 s[40:41], s[{p_}:{p_ + 1}], s[40:41]")
        a("v_mov_b32 v3, 0")
        a("s_mov_b64 exec, 1")
        a(f"global_load_dword v{STV}, v3, s[40:41] offset:192 sc1")
        a("s_mov_b64 exec, -1")
        a("L_nod1:")
    a(f"v_lshlrev_b32 v{L16}, 4, v0")
    a(f"s_and_b32 s{sTT}, s{sW}, 3")
    a(f"s_lshr_b32 s{sHF}, s{sW}, 2")
    a(f"s_mov_b32 s{sCNT}, {WS_CNT}")
    srd(a, S_WS, pWS, WS_SIZE)
    a(f"s_lshl2_add_u32 s{sT}, s{sRB}, s{sTT}")
    a(f"s_mul_i32 s{sG}, s{sCB}, 3")
    a(f"s_lshl1_add_u32 s{sG}, s{sHF}, s{sG}")
    a(f"s_cmp_ge_u32 s{sG}, 32")
    a(f"s_cselect_b32 s{sVAR}, 2, 0")
    a(f"s_add_u32 s{sVAR}, s{sVAR}, s{sHF}")
    a(f"s_lshl_b32 s{sG}, s{sG}, 1")
    a(f"s_lshr_b32 s{T1}, s2, 3")
    a(f"s_and_b32 s{T2}, s{T1}, 3")
    a(f"s_lshl2_add_u32 s{tHEAD}, s{sXCD}, s{T2}")
    a(f"s_lshr_b32 s{tQB}, s{T1}, 2")
    if "pws" in OPT:
        a(f"s_lshl1_add_u32 s{sQT}, s{sTT}, s{sHF}")
        a(f"s_lshl3_add_u32 s{sQT}, s{tQB}, s{sQT}")
    else:
        a(f"s_lshl3_add_u32 s{sQT}, s{tQB}, s{sW}")
    a(f"s_lshl_b32 s{sKV}, s{tHEAD}, 16")
    a(f"s_add_u32 s{sKV}, s{sKV}, s{sLW}")
    a(f"s_add_u32 s{sKV}, s{sKV}, {32 << 16}")
    t4, t6, t7 = WF, WF + 1, WF + 2
    a("v_and_b32 v1, 31, v0")
    a("v_lshrrev_b32 v2, 5, v0")
    a("v_bfe_u32 v3, v0, 1, 3")
    a("v_xor_b32 v3, v3, v2")
    a("v_lshlrev_b32 v3, 4, v3")
    a("v_lshl_add_u32 v3, v1, 7, v3")
    a(f"s_lshl_b32 s{T0}, s{sTT}, 12")
    a(f"v_add_u32 v{XA}, s{T0}, v3")
    for i in range(1, 4):
        a(f"v_xor_b32 v{XA + i}, {32 * i}, v{XA}")
    a("v_bfe_u32 v3, v0, 2, 2")
    a(f"v_lshl_add_u32 v{t4}, v2, 3, v3")
    a(f"v_lshlrev_b32 v{t4}, 7, v{t4}")
    a(f"v_and_b32 v{t7}, 3, v0")
    a(f"v_lshl_add_u32 v{t4}, v{t7}, 3, v{t4}")
    a("v_and_b32 v3, 2, v3")
    a(f"v_bfe_u32 v{t7}, v0, 4, 1")
    a(f"v_xor_b32 v3, v3, v{t7}")
    a(f"s_and_b32 s{T0}, s{sCB}, 1")
    a(f"s_lshl1_add_u32 s{T0}, s{sHF}, s{T0}")
    for t in range(2):
        a(f"s_and_b32 s{T1}, s{T0}, 1")
        a(f"s_lshl_b32 s{T1}, s{T1}, 1")
        a(f"s_lshr_b32 s{T2}, s{T0}, 1")
        a(f"s_lshl_b32 s{T2}, s{T2}, 13")
        a(f"s_add_u32 s{T2}, s{T2}, {BR}")
        a(f"v_xor_b32 v{t6}, s{T1}, v3")
        a(f"v_lshl_add_u32 v{t6}, v{t6}, 5, v{t4}")
        a(f"v_add_u32 v{WQ + t}, s{T2}, v{t6}")
        if t == 0:
            a(f"s_add_u32 s{T0}, s{T0}, 1")
    a(f"v_lshl_add_u32 v{t4}, v{t7}, 13, v{t4}")
    a(f"v_add_u32 v{t4}, {CR}, v{t4}")
    a(f"s_lshl_b32 s{T0}, s{sHF}, 1")
    a(f"v_xor_b32 v{t6}, s{T0}, v3")
    a(f"v_lshl_add_u32 v{WC}, v{t6}, 5, v{t4}")
    a(f"v_xor_b32 v{WC + 1}, 32, v{WC}")
    a(f"v_mov_b32 v{MASK}, 0xffff0000")
    a(f"v_mov_b32 v{ONES}, 0x3f80")
    a(f"s_cmp_eq_u32 s{sISS}, 1")
    a("s_cbranch_scc1 L_side1")
    a([f"s_lshl_b32 s{T0}, s{sW}, 8", f"s_or_b32 s{T0}, s2, s{T0}", f"s_cmp_lg_u32 s{T0}, 32", "s_cbranch_scc1 L_nozero",
       "v_mov_b32 v1, 0", "v_lshlrev_b32 v2, 8, v0", f"buffer_store_dword v1, v2, {sr(S_WS)}, s{sCNT} offen sc1",
       "v_add_u32 v2, 0x4000, v2", f"buffer_store_dword v1, v2, {sr(S_WS)}, s{sCNT} offen sc1"] +
      ([f"buffer_store_dword v1, v2, {sr(S_WS)}, s{sCNT} offen offset:128 sc1", "v_add_u32 v2, 0x4000, v2",
        f"buffer_store_dword v1, v2, {sr(S_WS)}, s{sCNT} offen sc1",
        f"buffer_store_dword v1, v2, {sr(S_WS)}, s{sCNT} offen offset:128 sc1"] if ("rep" in OPT or "pws" in OPT) else []) + ["L_nozero:"])
    a(dma(1))
    stamp(a, 1)
    for v in range(1, 4):
        a(f"s_cmp_eq_u32 s{sVAR}, {v}")
        a(f"s_cbranch_scc1 L_p1_{v}")
    XOP, RS = XA, 22
    CL, RU, ta, tb, tc = 224, 232, 240, 241, 242
    cs_loads = [[f"s_bitcmp1_b32 s{sRB}, 1", f"s_cselect_b32 s{S_T}, s{pU}, s{pG}", f"s_cselect_b32 s{S_T + 1}, s{pU + 1}, s{pG + 1}",
                 f"s_mov_b32 s{S_T + 2}, 1835008", f"s_mov_b32 s{S_T + 3}, 0x00020000",
                 f"s_add_u32 s{T2}, s{sROT}, {CSO}", f"s_lshl2_add_u32 s{T2}, s{T2}, s{sW}", f"s_and_b32 s{T2}, s{T2}, 31",
                 f"s_mul_i32 s{T2}, s{T2}, {16 * 3584}",
                 f"s_and_b32 s{T3}, s{sRB}, 1", f"s_lshl1_add_u32 s{T3}, s{sCF}, s{T3}", f"s_lshl_b32 s{T3}, s{T3}, 7", f"s_add_u32 s{T2}, s{T2}, s{T3}",
                 f"v_lshrrev_b32 v{ta}, 3, v0", f"v_mul_u32_u24 v{ta}, 3584, v{ta}", f"v_and_b32 v{tb}, 7, v0", f"v_lshl_add_u32 v{ta}, v{tb}, 4, v{ta}",
                 f"buffer_load_dwordx4 {vr(CL, 4)}, v{ta}, {sr(S_T)}, s{T2} offen"],
                [f"s_add_u32 s{T2}, s{T2}, {8 * 3584}", f"buffer_load_dwordx4 {vr(CL + 4, 4)}, v{ta}, {sr(S_T)}, s{T2} offen"]]
    SE, DD, RV = 244, 248, 224
    sel = [f"v_and_b32 v{tb}, 15, v0", f"v_and_b32 v{tc}, 1, v0", f"v_lshlrev_b32 v{tc}, 4, v{tc}", f"v_lshlrev_b32 v{tc}, v{tc}, v{ONES}",
           f"v_lshrrev_b32 v{tb}, 1, v{tb}"]
    for i in range(4):
        sel += [[f"v_cmp_eq_u32 vcc, {i}, v{tb}", "s_nop 1", f"v_cndmask_b32 v{SE + i}, 0, v{tc}, vcc"]]
    m16 = lambda c, b_: f"v_mfma_f32_16x16x32_bf16 {vr(DD, 4)}, {vr(SE, 4)}, {vr(b_, 4)}, {c}"
    csv = {8: sel[:5], 9: sel[5:],
           10: [f"v_and_b32 v{tb}, 15, v0", f"v_lshlrev_b32 v{tb}, 5, v{tb}", f"v_lshrrev_b32 v{tc}, 4, v0", f"v_lshl_add_u32 v{tb}, v{tc}, 4, v{tb}",
               [f"s_lshl_b32 s40, s2, 12", f"s_add_u32 s40, s40, {WS_CP}", f"s_lshl_b32 s41, s{sW}, 9", "s_add_u32 s41, s41, s40"]]}
    cs_mm = [m16("0", CL), m16(vr(DD, 4), CL + 4)]
    cs_st = ["s_mov_b32 exec_hi, 0", f"buffer_store_dwordx4 {vr(DD, 4)}, v{tb}, {sr(S_WS)}, s41 offen" + (" sc1" if "csw" in OPT else ""), "s_mov_b32 exec_hi, -1"]
    cs_l2 = lambda lb: ([f"s_cmp_lg_u32 s{sW}, 0", f"s_cbranch_scc1 {lb}"] +
                        [f"buffer_load_dwordx4 {vr(RV + 4 * i, 4)}, v{L16}, {sr(S_WS)}, s40 offen offset:{1024 * i} sc1" for i in range(4)] + [f"{lb}:"])
    cs_r2 = lambda lb: ([f"s_cmp_lg_u32 s{sW}, 0", f"s_cbranch_scc1 {lb}"] +
                        [f"v_add_f32 v{RV + i}, v{RV + i}, v{RV + 8 + i}" for i in range(8)] +
                        [f"v_add_f32 v{RV + i}, v{RV + i}, v{RV + 4 + i}" for i in range(4)] +
                        [f"v_and_b32 v{ta}, 15, v0", f"v_lshrrev_b32 v{tc}, 4, v0",
                         f"v_permlane16_swap_b32 v{RV}, v{RV + 1}", f"v_permlane16_swap_b32 v{RV + 2}, v{RV + 3}",
                         f"v_add_f32 v{RV}, v{RV}, v{RV + 1}", f"v_add_f32 v{RV + 2}, v{RV + 2}, v{RV + 3}",
                         f"v_lshl_add_u32 v{ta}, v{ta}, 2, v{tc}", f"v_lshlrev_b32 v{ta}, 2, v{ta}",
                         f"v_permlane32_swap_b32 v{RV}, v{RV + 2}", f"v_add_f32 v{RV}, v{RV}, v{RV + 2}",
                         f"s_bfe_u32 s40, s{sRB}, 0x10001", "s_mul_i32 s40, s40, 28", f"s_and_b32 s41, s{sRB}, 1", "s_add_u32 s40, s40, s41",
                         f"s_lshl1_add_u32 s40, s{sCF}, s40", f"s_lshr_b32 s41, s{sRB}, 2", "s_lshl2_add_u32 s40, s40, s41",
                         "s_lshl_b32 s40, s40, 8", f"s_add_u32 s40, s40, {WS_CS}",
                         f"buffer_store_dword v{RV}, v{ta}, {sr(S_WS)}, s40 offen sc1", f"{lb}:"])
    for var in VARS:
        hf, isv, ffn = var & 1, (var >> 1) & 1, var < 4
        nt = 2 - hf
        cnt = lambda S: len(dma(S, ffn))
        a(f"L_p1_{var}:")
        if ffn and "cse" in OPT:
            a(cs_loads)
        a(f"s_waitcnt vmcnt({cnt(1) + (2 if (ffn and 'cse' in OPT) else 0)})")
        a("s_barrier")
        stamp(a, 2)
        if var == 0:
            a([f"s_lshl_b32 s{T0}, s{sW}, 8", f"s_or_b32 s{T0}, s2, s{T0}", f"s_cmp_lg_u32 s{T0}, 32", "s_cbranch_scc1 L_noflag",
               "v_mov_b32 v2, 0", "v_mov_b32 v3, 1", "s_mov_b64 exec, 1",
               f"global_store_dword v2, v3, s[{pDBG}:{pDBG + 1}] offset:32 sc1", "s_mov_b64 exec, -1", "L_noflag:"])
        a(rd1(0, nt, ffn))
        a(rd1(1, nt, ffn))
        bgq = dma(2, ffn)
        if ffn and "cs1" in OPT:
            bgq = cs_loads + bgq
        held = []
        sl7 = (7 % 3) * SL
        qrd = lambda h: [f"ds_read_b64_tr_b16 {vr(WF + 16 * h + 8 * q + 4 * t + 2 * t2, 2)}, v{WQ + t} offset:{sl7 + (2 * h + q) * 2048 + t2 * 512}"
                         for q in range(2) for t in range(nt) for t2 in range(2)]
        frd = lambda h: [f"ds_read_b64_tr_b16 {vr(WF + 16 * h + 8 * q + 4 * c + 2 * t2, 2)}, v{WC + c} offset:{sl7 + (2 * h + q) * 2048 + t2 * 512}"
                         for q in range(2) for c in range(2) for t2 in range(2)]
        CK = 5 if ffn else 6
        prep = [f"v_lshlrev_b32 v2, 16, v{STV}", f"v_rcp_f32 v{RS}, v2"]
        for t in range(nt):
            w = CSA + 4 * t
            prep += [f"v_add_f32 v{w}, v{w}, v{w + 1}", f"v_add_f32 v{w + 2}, v{w + 2}, v{w + 3}", f"v_add_f32 v{w + 3}, v{w}, v{w + 2}"] + split3(w, w + 3)
        for k in range(28 if ffn else 32):
            S, ks = k >> 2, k & 3
            F = fset(k, ffn)
            x = XF + 4 * k
            c0 = "0" if k == 0 else None
            big = [mfma(ACQ + 16 * t, x, F + 4 * t, c0) if isv else mfma(ACQ + 16 * t, F + 4 * t, x, c0) for t in range(nt)]
            light = not ffn or k < 8
            if not light:
                big += [mfma(ACF + 16 * c, F + 8 + 4 * c, x - 32, "0" if k == 8 else None) for c in range(2)]
            if light and k % 2 == 0 and k < 30:
                held = big
                continue
            big, held = held + big, []
            val = []
            if ks == 3:
                n = cnt(S + 2) + ({(0 if ('cse' in OPT or 'cs1' in OPT) else 1): 2}.get(S, 0) if ffn else 0)
                a(f"s_waitcnt vmcnt({n}) lgkmcnt(0)")
                if S == CK and not hf: a(cs_check(f"L_c1{var}", 0))
                if S < 7: a("s_barrier")
                if "p1b" in OPT: stamp(a, 4 + S)
                if ffn and S == 2:
                    big = cs_mm + big
                    bgq.append(cs_st)
                if ffn and S == 3 and not hf: bgq.append(cs_l2(f"L_l2{var}"))
                if ffn and S == 4 and not hf: bgq.append(cs_r2(f"L_r2{var}"))
                if S == 3 and not hf:
                    bgq.append([f"s_cmp_lg_u32 s{sW}, 0", f"s_cbranch_scc1 L_nofl{var}", "v_mov_b32 v2, 0",
                                f"global_load_dword v{POLL}, v2, s[{pDBG}:{pDBG + 1}] offset:32 sc1", f"L_nofl{var}:"])
                if S == CK - 1 and not hf:
                    bgq.append(flag_check(f"L_fc{var}") + cs_issue(f"L_i1{var}", 0))
                if S == 5 and ffn and not hf:
                    bgq.append(sig_one(f"L_sc{var}", [f"s_add_u32 s{T0}, s{sCF}, {C_CS}"]))
                if S == 5:
                    ad = [f"v_and_b32 v{VXS}, 31, v0", f"v_lshlrev_b32 v{VXS}, 2, v{VXS}", "v_lshrrev_b32 v3, 5, v0",
                          f"v_lshl_add_u32 v{VW0}, v3, 10, v{VXS}", f"s_lshl_b32 s{T2}, s{sT}, 7", f"s_add_u32 s{T2}, s{T2}, {WS_ST}"]
                    for t in range(nt):
                        ad += [f"s_add_u32 s{T3}, s{sG}, {2 * t}", f"s_lshr_b32 s{40 + t}, s{T3}, 2", f"s_lshl_b32 s{40 + t}, s{40 + t}, 11",
                               f"s_and_b32 s{T3}, s{T3}, 2", f"s_lshl_b32 s{T3}, s{T3}, 6", f"s_add_u32 s{40 + t}, s{40 + t}, s{T3}",
                               f"s_add_u32 s{40 + t}, s{40 + t}, {WS_CQ}"]
                    bgq.append(ad)
                if S == CK:
                    ld = [f"buffer_load_dword v{STV}, v{VXS}, {sr(S_WS)}, s{T2} offen sc1"]
                    for t in range(nt):
                        ld += [f"buffer_load_dword v{CSA + 4 * t + i}, v{VW0}, {sr(S_WS)}, s{40 + t} offen offset:{256 * i} sc1" for i in range(4)]
                    if isv:
                        ld += [f"s_lshl_b32 s{T3}, s{sW}, 8", f"s_add_u32 m0, s{T3}, {SCR}", f"s_add_u32 s{T2}, s{T2}, {WS_RS - WS_ST}",
                               f"buffer_load_dword v{VXS}, {sr(S_WS)}, s{T2} offen sc1 lds"]
                    bgq += [ld[:5], ld[5:]]
                if S == 6 and ffn:
                    if not hf: bgq.append(poll_issue(f"L_i2{var}", CS_MASK))
                    val = prep
                if S < 7: bgq += dma(S + 3, ffn)
                if S == 0 and ffn and "cse" not in OPT and "cs1" not in OPT: bgq += cs_loads
                if S == 5 and isv:
                    bgq.append([f"s_lshl_b32 s{T3}, s{sW}, 8", f"s_add_u32 s{T3}, s{T3}, {SCR}",
                                "v_lshrrev_b32 v3, 5, v0", "v_lshlrev_b32 v18, 4, v3", f"v_add_u32 v18, s{T3}, v18",
                                "v_bfe_u32 v23, v0, 4, 1", "v_lshlrev_b32 v23, 16, v23", "v_lshl_add_u32 v23, v3, 8, v23",
                                "v_and_b32 v3, 15, v0", "v_lshl_add_u32 v23, v3, 4, v23"])
            elif k == 30:
                a("s_waitcnt vmcnt(0) lgkmcnt(0)")
                val = prep
            else:
                a("s_waitcnt lgkmcnt(0)")
            if k == 31:
                break
            if ffn and k in csv: val = csv[k]
            left = 4 if ks == 3 else 3 - ks
            if k == 27: left = 3
            if not ffn: left = 2 if (ks == 3 and S < 6) else 1
            if ffn and k < 7: left = 2 if ks == 3 else 1
            take = -(-len(bgq) // left)
            extra, bgq = bgq[:take], bgq[take:]
            if ffn and k >= 7:
                nxt = rd1(k + 1, nt, ffn) if k < 27 else \
                    [f"ds_read_b128 {vr(XF + 4 * (28 + j), 4)}, v{XA + j} offset:{sl7}" for j in range(4)] + qrd(0)
            else:
                nxt = [] if k == 30 else rd1(k + 1, nt, ffn) + rd1(k + 2, nt, ffn)
            body = spread(big, nxt, val + [[]] * len(extra) + extra)
            a(body)
        pre = [f"v_and_b32 v{XOP}, v{MASK}, v{STV}", f"v_mov_b32 v{XOP + 3}, 0", f"v_mov_b32 v{XOP + 1}, v{XOP}", f"v_mov_b32 v{XOP + 2}, v{XOP}"]
        corr = [mfma(ACQ + 16 * t, XOP, CSA + 4 * t) if isv else mfma(ACQ + 16 * t, CSA + 4 * t, XOP) for t in range(nt)]
        post = [f"s_lshl_b32 s{T4}, s{sG}, 16", f"s_lshl_b32 s{T2}, s{sT}, 10", f"s_add_u32 s{T4}, s{T4}, s{T2}"]

        def stores(t):
            o = ACQ + 16 * t
            if isv:
                return [[f"buffer_store_dwordx4 {vr(o, 4)}, v23, {sr(S_WS)}, s{T4} offen sc1"],
                        [f"buffer_store_dwordx4 {vr(o + 4, 4)}, v23, {sr(S_WS)}, s{T4} offen offset:512 sc1", f"s_add_u32 s{T4}, s{T4}, 0x20000"]]
            return [[f"buffer_store_dwordx4 {vr(o, 4)}, v{L16}, {sr(S_WS)}, s{T4} offen sc1", f"s_add_u32 s{T4}, s{T4}, 0x10000"],
                    [f"buffer_store_dwordx4 {vr(o + 4, 4)}, v{L16}, {sr(S_WS)}, s{T4} offen sc1", f"s_add_u32 s{T4}, s{T4}, 0x10000"]]
        if not ffn:
            assert not bgq
            stamp(a, 3)
            a(big[:1] + pre + ["s_nop 1"] + big[1:nt] + corr + post + ["s_nop 7"])
            for t in range(nt):
                ac = ACQ + 16 * t
                a(f"s_cmp_lt_u32 s{sG}, {32 - 2 * t}")
                a(f"s_cselect_b32 s{T0}, {hx(f2u(QSCALE))}, 1.0")
                a(f"v_mul_f32 v2, s{T0}, v{RS}")
                a(f"v_mul_f32 v3, s{T0}, v{RS}")
                for i in range(8):
                    a(f"v_pk_mul_f32 {vr(ac + 2 * i, 2)}, {vr(ac + 2 * i, 2)}, v[2:3]")
                for i in range(8):
                    a(f"v_cvt_pk_bf16_f32 v{ac + i}, v{ac + 2 * i}, v{ac + 2 * i + 1}")
                a(stores(t))
            stamp(a, 4)
            a("s_branch L_side")
            continue
        qm = lambda h: [mfma(ACQ + 16 * t, XF + 4 * (28 + 2 * h + q), WF + 16 * h + 8 * q + 4 * t) if isv else
                        mfma(ACQ + 16 * t, WF + 16 * h + 8 * q + 4 * t, XF + 4 * (28 + 2 * h + q)) for q in range(2) for t in range(nt)]
        fm = lambda h: [mfma(ACF + 16 * c, WF + 16 * h + 8 * q + 4 * c, XF + 4 * (20 + 2 * h + q)) for q in range(2) for c in range(2)]
        half = -(-len(bgq) // 2)
        a("s_waitcnt lgkmcnt(0)")
        a(spread(qm(0), qrd(1), pre + bgq[:half]))
        a("s_waitcnt lgkmcnt(0)")
        rsv = lambda g: [f"ds_read_b128 {vr(CSA + 4 * j, 4)}, v18 offset:{(2 * g + j) * 32}" for j in range(2)]
        a(corr + (rsv(0) if isv else []))
        a(spread(qm(1), frd(0), [f"v_subrev_u32 v{WQ + c}, {CR - BR}, v{WC + c}" for c in range(2)] + bgq[half:]))
        adr = [["v_bfe_u32 v2, v0, 4, 1", "v_mul_u32_u24 v2, 28672, v2", "v_lshrrev_b32 v3, 5, v0",
                "v_lshl_add_u32 v2, v3, 9, v2", "v_and_b32 v3, 15, v0", f"v_lshl_add_u32 v{VXS}, v3, 2, v2",
                f"s_lshl_b32 s{sVAR}, s{sCF}, 11", f"s_add_u32 s{sVAR}, s{sVAR}, {WS_CS + 128 * hf}"] + post]
        if isv:
            e1, e2 = [], []
            for t in range(nt):
                ac = ACQ + 16 * t
                e1 += [f"v_mul_f32 v{ac + i}, v{ac + i}, v{CSA + i}" for i in range(8)]
                e2 += [f"v_mul_f32 v{ac + 8 + i}, v{ac + 8 + i}, v{CSA + i}" for i in range(8)]
                e2 += [f"v_cvt_pk_bf16_f32 v{ac + i}, v{ac + 2 * i}, v{ac + 2 * i + 1}" for i in range(4, 8)]
            e1 += rsv(1)
            for t in range(nt):
                ac = ACQ + 16 * t
                e1 += [f"v_cvt_pk_bf16_f32 v{ac + i}, v{ac + 2 * i}, v{ac + 2 * i + 1}" for i in range(4)]
        else:
            e = []
            for t in range(nt):
                ac = ACQ + 16 * t
                e += [[f"s_cmp_lt_u32 s{sG}, {32 - 2 * t}", f"s_cselect_b32 s{T0}, {hx(f2u(QSCALE))}, 1.0", f"v_mul_f32 v2, s{T0}, v{RS}"]]
                e += [f"v_mul_f32 v{ac + i}, v{ac + i}, v2" for i in range(16)]
                e += [f"v_cvt_pk_bf16_f32 v{ac + i}, v{ac + 2 * i}, v{ac + 2 * i + 1}" for i in range(8)]
            e1, e2 = e[:len(e) * 5 // 8], e[len(e) * 5 // 8:]
        a("s_waitcnt lgkmcnt(0)")
        u3 = spread(fm(0), frd(1), adr + e1)
        a(u3)
        a(f"s_waitcnt vmcnt({4 + nvm(u3)}) lgkmcnt(0)")
        if not hf: a(poll_check(f"L_c2{var}", 16))
        a("s_barrier")
        stamp(a, 3)
        c0l = [[f"buffer_load_dword v{r_}, v{VXS}, {sr(S_WS)}, s{sVAR} offen offset:{(i >> 1) * 64 + (i & 1) * 256} sc1"
                for i, r_ in enumerate(C0R)]]
        a(spread(fm(1), rd2(0), c0l + e2))
        for t in range(nt):
            a(stores(t))
        if var != 3:
            a("s_branch L_pass2")
    a("L_pass2:")
    if "p1b" in OPT: NOSTAMP = True
    stamp(a, 4)
    sH = sG
    a(f"s_mul_i32 s{sH}, s{sT}, 112")
    a(f"s_lshl2_add_u32 s{T0}, s{sCF}, s{sHF}")
    a(f"s_lshl1_add_u32 s{sH}, s{T0}, s{sH}")
    a(f"s_lshl_b32 s{sH}, s{sH}, 10")
    a(f"s_add_u32 s{sH}, s{sH}, {WS_H}")
    cRS, cSD, cC2, CO, QP = 22, 23, 19, 132, 140
    q = CSA

    def gelu_plain(g, off):
        u = g + 8
        R = range(8)
        return ([f"v_mul_f32 v{g + i}, v{g + i}, v{cRS}" for i in R] + [f"v_mul_f32 v{q + i}, v{g + i}, v{g + i}" for i in R] +
                [f"v_fmaak_f32 v{q + i}, v{q + i}, v{cC2}, {hx(f2u(GC1))}" for i in R] + [f"v_mul_f32 v{q + i}, v{q + i}, v{g + i}" for i in R] +
                [f"v_exp_f32 v{q + i}, v{q + i}" for i in R] + [f"v_mul_f32 v{g + i}, v{g + i}, v{u + i}" for i in R] +
                [f"v_fma_f32 v{q + i}, v{q + i}, v{cSD}, v{cSD}" for i in R] + [f"v_rcp_f32 v{q + i}, v{q + i}" for i in R] +
                [f"v_mul_f32 v{g + i}, v{g + i}, v{q + i}" for i in R] +
                [f"v_cvt_pk_bf16_f32 v{g + i}, v{g + 2 * i}, v{g + 2 * i + 1}" for i in range(4)] +
                [f"buffer_store_dwordx4 {vr(g, 4)}, v{L16}, {sr(S_WS)}, s{sH} offen offset:{off} sc1"])
    vq = []
    wt = lambda at: sum(2 if (x.startswith("v_exp") or x.startswith("v_rcp")) else 1 for x in ([at] if isinstance(at, str) else at))
    cs_ld = lambda dst, pr: [[f"buffer_load_dword v{dst + 4 * c + i}, v{VXS}, {sr(S_WS)}, s{sVAR} offen offset:{1024 * pr + c * 64 + i * 256} sc1"
                              for c in range(2) for i in range(2)]]
    ts = tr_setup()
    d = dma(10)
    bgq, hist = [ts[0], d[0], ts[1], d[1], d[2], d[3]], []
    after = lambda key: nvm([l for l in hist[len(hist) - hist[::-1].index(key):] if "s62" not in l])
    for v in range(20):
        S, us = 8 + (v >> 2), v & 3
        F = WF + 16 * (v & 1)
        acc, k0 = (ACF, 24 + 2 * v) if v < 4 else (ACQ, 2 * (v - 4))
        big = [mfma(acc + 16 * c, F + 8 * qq + 4 * c, XF + 4 * (k0 + qq), "0" if (v == 4 and qq == 0) else None)
               for qq in range(2) for c in range(2)]
        if us == 3:
            if S == 8:
                a([f"s_cmp_eq_u32 s{sHF}, 0", "s_cbranch_scc1 L_w8", "s_waitcnt vmcnt(6)", "L_w8:", "s_waitcnt vmcnt(8) lgkmcnt(0)"])
            elif S < 12:
                a(f"s_waitcnt vmcnt({after(dma(S + 1)[-1][0]) - 1}) lgkmcnt(0)")
            elif CHK == 11:
                a(f"s_waitcnt vmcnt({after(kv(0)[1][1]) - 1}) lgkmcnt(0)")
            else:
                a("s_waitcnt lgkmcnt(0)")
            if S == CHK:
                a([f"s_cmp_lg_u32 s{sW}, 0", "s_cbranch_scc1 L_w10", f"s_waitcnt vmcnt({after('L_pq:')})", "L_w10:"])
                a(poll_check("L_cq", 32, QP, 4))
            a("s_barrier")
            if "p2b" in OPT: stamp(a, S - 2)
            if S == 8:
                bgq += tr_dma() + dma(11)
                for c in range(2):
                    w = CSA + 4 * c
                    vq += [f"v_add_f32 v{w + 3}, v{C0R[2 * c]}, v{C0R[2 * c + 1]}"] + split3(w, w + 3)
                vq += ["UNIT", mfma(ACF, CSA, XOP), mfma(ACF + 16, CSA + 4, XOP),
                       f"v_lshlrev_b32 v{cSD}, 16, v{STV}", f"v_mov_b32 v{cC2}, {hx(f2u(GC2))}", "UNIT"]
                vq += (gelu_plain(ACF, 0) if NBG > 0 else []) + (gelu_plain(ACF + 16, 1024) if NBG > 1 else [])
            if S == 9:
                bgq += [sig_qkv("L_sq")] + cs_ld(CO, 1) + dma(12)
                bgq += [tr_addr(TRA, 2, 3) + [f"s_lshl_b32 s{T2}, s{sLW}, 1", f"v_add_u32 v{TRA}, s{T2}, v{TRA}", f"v_xor_b32 v{TRA + 1}, 32, v{TRA}"]]
            if S == 10:
                bgq += [tr_rd()]
            if S == CHK - 1:
                bgq += [[]] * (2 - len(bgq)) + [poll_issue("L_pq", QKV_MASK, QP)]
            if S == 11 and CHK == 11:
                bgq += kv(0) + kv(1) + [q_load()] + kv(2)
            if S == 12:
                bgq += kv(3) if CHK == 11 else kv(0) + [q_load()] + kv(1)
                if "prio" in OPT:
                    a("s_setprio 1")
                    a(lead(2))
        else:
            a("s_waitcnt lgkmcnt(0)")
        if v == 16:
            for c in range(2):
                w = CO + 4 * c
                vq += [f"v_add_f32 v{w + 3}, v{w}, v{w + 1}"] + split3(w, w + 3) + [["s_nop 1", mfma(ACQ + 16 * c, w, XOP)]]
            vq += p2_init_v()
        left = 1 if v == 19 else (4 if us == 3 else 3 - us)
        take = -(-len(bgq) // left)
        extra, bgq = bgq[:take], bgq[take:]
        val, budget = [], (1000 if v == 19 else VBUD)
        while vq and vq[0] != "UNIT" and budget > 0:
            budget -= wt(vq[0])
            val.append(vq.pop(0))
        if vq and vq[0] == "UNIT":
            vq.pop(0)
        body = spread(big, rd2(v + 1) if v < 19 else [], val[:len(val) // 2] + extra + val[len(val) // 2:])
        hist += body
        a(body)
    assert not bgq and not vq
    if "p2b" in OPT: NOSTAMP = True
    stamp(a, 5)
    RS2, SD2 = 240, 242
    a(f"v_mov_b32 v{RS2}, v{cRS}")
    a(f"v_mov_b32 v{RS2 + 1}, v{cRS}")
    a(f"v_mov_b32 v{SD2}, v{cSD}")
    a(f"v_mov_b32 v{SD2 + 1}, v{cSD}")
    a(f"v_mov_b32 v248, v{cC2}")
    a(f"v_mov_b32 v249, v{cC2}")
    a(f"v_mov_b32 v250, {hx(f2u(GC1))}")
    a("v_mov_b32 v251, v250")
    a("s_nop 5")
    for c in range(NBG - 2, 2):
        g = ACQ + 16 * c
        u = g + 8
        q = 32 + (c & 1) * 8
        o = 56 + c * 4
        if c == 0:
            a(f"s_add_u32 s{sH}, s{sH}, 4096")
        for i in range(4):
            a(f"v_pk_mul_f32 {vr(g + 2 * i, 2)}, {vr(g + 2 * i, 2)}, {vr(RS2, 2)}")
        for i in range(4):
            a(f"v_pk_mul_f32 {vr(q + 2 * i, 2)}, {vr(g + 2 * i, 2)}, {vr(g + 2 * i, 2)}")
        for i in range(4):
            a(f"v_pk_fma_f32 {vr(q + 2 * i, 2)}, {vr(q + 2 * i, 2)}, v[248:249], v[250:251]")
        for i in range(4):
            a(f"v_pk_mul_f32 {vr(q + 2 * i, 2)}, {vr(q + 2 * i, 2)}, {vr(g + 2 * i, 2)}")
        for i in range(8):
            a(f"v_exp_f32 v{q + i}, v{q + i}")
        for i in range(4):
            a(f"v_pk_mul_f32 {vr(g + 2 * i, 2)}, {vr(g + 2 * i, 2)}, {vr(u + 2 * i, 2)}")
        for i in range(4):
            a(f"v_pk_fma_f32 {vr(q + 2 * i, 2)}, {vr(q + 2 * i, 2)}, {vr(SD2, 2)}, {vr(SD2, 2)}")
        for i in range(8):
            a(f"v_rcp_f32 v{q + i}, v{q + i}")
        a("s_nop 0")
        for i in range(4):
            a(f"v_pk_mul_f32 {vr(g + 2 * i, 2)}, {vr(g + 2 * i, 2)}, {vr(q + 2 * i, 2)}")
        for i in range(4):
            a(f"v_cvt_pk_bf16_f32 v{o + i}, v{g + 2 * i}, v{g + 2 * i + 1}")
        a(f"buffer_store_dwordx4 {vr(o, 4)}, v{L16}, {sr(S_WS)}, s{sH} offen offset:{(c & 1) * 1024} sc1")
        if CHK == 12 and c >= 0:
            a(kv(2 + c))
        if c == 0:
            a(lead(0))
    a(tr_st())
    a(f"s_waitcnt vmcnt({after(q_load()[-1]) + (4 if CHK == 11 else 8) + 2 - NBG})")
    if CHK == 12:
        a("s_barrier")


VARS = (0, 4, 5, 1, 2, 3)
VBUD = 15
NBG = 2
OSL = 2
CSO = 2
WK = 8
C0R = (9, 19, 21, 1)
SIGU, CHK = 7, 11


def gen_side(a):
    a("L_side:")
    global NOSTAMP
    NOSTAMP = "side" not in OPT
    a(p2_init_v())
    a("s_waitcnt vmcnt(0)")
    a("s_barrier")
    a(sig_qkv("L_sq2"))
    stamp(a, 10)
    a(sig_one("L_h_ns2", [f"s_add_u32 s{T0}, s{sRB}, {C_H}"]))
    a(poll_issue("L_pq2", QKV_MASK))
    a("s_waitcnt vmcnt(0)")
    a(poll_check("L_cq2", 32, POLL, 6))
    a("s_barrier")
    a(kv(0))
    a(q_load())
    a(kv(1))
    a("s_waitcnt vmcnt(2)")
    a("s_barrier")
    a(kv(2))
    a(kv(3))
    if "prio" in OPT:
        a("s_setprio 1")
        a(lead(2))
    a("s_branch L_p2")
    a("L_side1:")
    XW, QW, CW = 32, 64, 128
    LO, HI, ON = 18, 19, 22
    a("v_lshrrev_b32 v1, 3, v0")
    a("v_and_b32 v2, 7, v0")
    a("v_lshlrev_b32 v2, 4, v2")
    a("v_lshl_add_u32 v3, v1, 10, v2")
    a(f"s_lshl3_add_u32 s{tVM + 1}, s2, s{sW}")
    a(f"s_lshl_b32 s{T0}, s{tVM + 1}, 13")
    for q in range(8):
        a(f"buffer_load_dwordx4 {vr(XW + 4 * q, 4)}, v3, {sr(S_X)}, s{T0} offen offset:{128 * q}")
    sU = sVAR
    a(f"s_and_b32 s{sU}, s{sRB}, 3")
    a(f"s_lshl3_add_u32 s{sU}, s{sU}, s{sW}")
    a(f"s_sub_u32 s{T1}, 31, s{sU}")
    a(f"s_lshl3_add_u32 s41, s{T1}, s{sXCD}")
    a("s_lshl_b32 s41, s41, 8")
    a(f"s_add_u32 s41, s41, {WS_CQ}")
    a(f"s_lshl_b32 s{T0}, s{T1}, 7")
    a(f"s_mul_i32 s{T2}, s{sXCD}, {64 * 3072}")
    a(f"s_add_u32 s{T0}, s{T0}, s{T2}")
    a(f"s_cmp_lt_u32 s{T1}, 24")
    a(f"s_cselect_b32 s{T0}, s{T0}, {OOB}")
    a(f"s_cselect_b32 s41, s41, {OOB}")
    a("v_mul_u32_u24 v3, 3072, v1")
    a("v_add_u32 v3, v3, v2")
    for q in range(8):
        a(f"buffer_load_dwordx4 {vr(QW + 4 * q, 4)}, v3, {sr(S_W0)}, s{T0} offen")
        if q != 7:
            a(f"s_add_u32 s{T0}, s{T0}, {8 * 3072}")
    a(f"v_mov_b32 v{LO}, 0x00003f80")
    a(f"v_mov_b32 v{HI}, 0x3f800000")
    a(f"v_mov_b32 v{ON}, 0x3f803f80")
    RU = 96
    for i in range(0, 28, 2):
        a(f"v_mov_b64 v[{RU + i}:{RU + i + 1}], 0")
    a(["v_and_b32 v2, 8, v0", "v_cmp_eq_u32 vcc, 0, v2", f"v_and_b32 v{POLL}, 7, v0", f"v_lshlrev_b32 v{POLL}, 3, v{POLL}",
       "v_lshrrev_b32 v3, 4, v0", f"v_add_u32 v{POLL}, v{POLL}, v3", "v_lshrrev_b32 v2, 1, v2", f"v_add_u32 v{POLL}, v{POLL}, v2",
       f"v_lshlrev_b32 v{POLL}, 2, v{POLL}"])
    stamp(a, 8)
    m, v_ = RU + 24, RU + 25
    for q in range(8):
        a(f"s_waitcnt vmcnt({15 - q})")
        for i in range(4):
            a(f"v_dot2c_f32_bf16 v{m + 2 * (i & 1)}, v{XW + 4 * q + i}, v{ON}")
            a(f"v_dot2c_f32_bf16 v{v_ + 2 * (i & 1)}, v{XW + 4 * q + i}, v{XW + 4 * q + i}")
    a("s_nop 2")
    a(f"v_add_f32 v{m}, v{m}, v{m + 2}")
    a(f"v_add_f32 v{v_}, v{v_}, v{v_ + 2}")
    for md in ("quad_perm:[1,0,3,2]", "quad_perm:[2,3,0,1]", "row_half_mirror"):
        a("s_nop 0")
        a(f"v_add_f32_dpp v{m}, v{m}, v{m} {md} row_mask:0xf bank_mask:0xf")
        a(f"v_add_f32_dpp v{v_}, v{v_}, v{v_} {md} row_mask:0xf bank_mask:0xf")
    a([f"v_mul_f32 v{m}, {hx(f2u(-1.0 / 512))}, v{m}", f"v_mul_f32 v{v_}, {hx(f2u(1.0 / 512))}, v{v_}",
       f"v_fma_f32 v{v_}, -v{m}, v{m}, v{v_}", f"v_max_f32 v{v_}, 0, v{v_}",
       f"v_cvt_pk_bf16_f32 v{v_}, v{v_}, v{v_}", f"v_and_b32 v{v_}, v{MASK}, v{v_}",
       f"v_add_f32 v{v_}, {hx(f2u(1e-5))}, v{v_}",
       f"v_cvt_pk_bf16_f32 v{v_}, v{v_}, v{v_}", f"v_and_b32 v{v_}, v{MASK}, v{v_}",
       f"v_sqrt_f32 v{v_}, v{v_}", "v_lshlrev_b32 v1, 2, v1",
       f"v_cvt_pk_bf16_f32 v{m}, v{v_}, v{m}",
       f"v_lshlrev_b32 v{v_}, 16, v{m}", f"v_rcp_f32 v{v_}, v{v_}",
       f"s_lshl_b32 s{T0}, s{tVM + 1}, 5", f"s_add_u32 s{T0}, s{T0}, {WS_ST}", f"s_add_u32 s{T1}, s{T0}, {WS_RS - WS_ST}",
       f"s_mov_b32 exec_lo, 0x01010101", "s_mov_b32 exec_hi, 0x01010101",
       f"buffer_store_dword v{m}, v1, {sr(S_WS)}, s{T0} offen sc1",
       f"buffer_store_dword v{v_}, v1, {sr(S_WS)}, s{T1} offen sc1", "s_mov_b64 exec, -1"])

    def colsum(src, n, acc, behind):
        for q in range(n):
            a(f"s_waitcnt vmcnt({n - 1 - q + behind})")
            for i in range(4):
                a(f"v_dot2c_f32_bf16 v{acc + 2 * i}, v{src + 4 * q + i}, v{LO}")
                a(f"v_dot2c_f32_bf16 v{acc + 2 * i + 1}, v{src + 4 * q + i}, v{HI}")
        a("s_nop 2")
        for i in range(4):
            a(f"v_permlane16_swap_b32 v{acc + 2 * i}, v{acc + 2 * i + 1}")
        for i in range(4):
            a(f"v_add_f32 v{acc + 2 * i}, v{acc + 2 * i}, v{acc + 2 * i + 1}")
        a(["s_nop 1", f"v_permlane32_swap_b32 v{acc}, v{acc + 2}", f"v_permlane32_swap_b32 v{acc + 4}, v{acc + 6}",
           f"v_add_f32 v{acc}, v{acc}, v{acc + 2}", f"v_add_f32 v{acc + 4}, v{acc + 4}, v{acc + 6}", "s_nop 1",
           f"v_add_f32_dpp v{acc}, v{acc}, v{acc} row_ror:8 row_mask:0xf bank_mask:0xf",
           f"v_add_f32_dpp v{acc + 4}, v{acc + 4}, v{acc + 4} row_ror:8 row_mask:0xf bank_mask:0xf",
           f"v_cndmask_b32 v{acc + 1}, v{acc + 4}, v{acc}, vcc"])
    colsum(QW, 8, RU, 2)
    a(f"buffer_store_dword v{RU + 1}, v{POLL}, {sr(S_WS)}, s41 offen sc1")
    a(dma(0, False))
    a("s_waitcnt vmcnt(4)")
    a("s_barrier")
    a(cs_signal("L_scs0", 0))
    stamp(a, 12)
    a(dma(1, False))
    stamp(a, 9)
    a(f"s_cmp_eq_u32 s{sHF}, 0")
    a("s_cbranch_scc1 L_p1_4")
    a("s_branch L_p1_5")


def att_step(i, ex=None, first=False):
    ex = ex or {}
    Sc, Sn = (S0, S1) if i % 2 == 0 else (S1, S0)
    Kn = K_ + 4 * ((i + 1) % 2)
    Vc = V_ + 8 * (i % 4)
    Vp = V_ + 8 * ((i - 1) % 4)
    e = lambda k: f"v_exp_f32 v{Sc + k}, v{Sc + k}"
    c = lambda k: f"v_cvt_pk_bf16_f32 v{P_ + k}, v{Sc + 2 * k}, v{Sc + 2 * k + 1}"
    r = [mfma(Sn, Kn, Q_, NM),
         f"ds_read_b128 {vr(Kn, 4)}, v{AK} offset:{(i + 3) * 2048}"]
    r += ex.get("qk", [])
    r += [e(0), e(1), e(2), e(3)]
    if not first:
        r.append(mfma(O_, Vp + 4, P_ + 4))
    if i % 2 == 0:
        r.append(f"s_mov_b64 exec, s[{tVM}:{tVM + 1}]")
        for d in (2, 3):
            vb = V_ + 8 * ((i + d) % 4)
            r.append(f"ds_read_b128 {vr(vb, 4)}, v{AV} offset:{(i + d) * 2048}")
            r.append(f"ds_read_b128 {vr(vb + 4, 4)}, v{AV} offset:{(i + d) * 2048 + 512}")
        r.append("s_mov_b64 exec, -1")
    r += ex.get("pv1", [])
    if "G2" in ex:
        r += [c(0), e(4), e(5), c(1)]
        r += [ex["G1"]] + ex.get("g1", [])
        r += [e(6), e(7), e(8), c(2), c(3), e(9)]
        r += ["s_nop 0", mfma(O_, Vc, P_)]
        if i % 2 == 1: r.append("s_waitcnt lgkmcnt(0)")
        r += ex.get("pv0", [])
        r += [e(10), e(11), c(4), e(12), c(5)]
        r += [ex["G2"]] + ex.get("g2", [])
        r += [e(13), e(14), e(15), c(6), c(7)]
    else:
        r += [c(0), e(4), e(5), c(1), e(6), e(7)]
        if "G1" in ex:
            r += [ex["G1"]]
        r += ex.get("g1", [])
        r += [e(8), c(2), c(3), e(9), e(10), e(11)]
        r += ex.get("prepv0", [])
        r.append(mfma(O_, Vc, P_, "0" if first else None))
        if i % 2 == 1: r.append("s_waitcnt lgkmcnt(0)")
        r += ex.get("pv0", [])
        r += [c(4), e(12), e(13), c(5), e(14), e(15), c(6), c(7)]
    r += ex.get("end", [])
    return r


def ring_loads(r):
    b = RING + 16 * r
    return [f"buffer_load_dwordx4 {vr(b, 4)}, v{A16}, {sr(R_H0)}, s{tFH} offen sc1",
            f"buffer_load_dwordx4 {vr(b + 4, 4)}, v{A16}, {sr(R_H1)}, s{tFH} offen sc1",
            f"buffer_load_dwordx4 {vr(b + 8, 4)}, v{A16}, {sr(R_WT)}, s{tFW} offen sc1",
            f"buffer_load_dwordx4 {vr(b + 12, 4)}, v{A16}, {sr(R_WT)}, s{tFW} offen offset:1024 sc1",
            f"s_add_u32 s{tFH}, s{tFH}, 1024",
            f"s_add_u32 s{tFW}, s{tFW}, 2048"]


def gm(r, n):
    b = RING + 16 * r
    return mfma(G_ + 16 * n, b + 8 + 4 * (n & 1), b + 4 * (n >> 1))


_pl = [0]
PC = (2, 6)
PD = 7
PG = 2


def lead(p, cond=None):
    if "prio" not in OPT:
        return []
    _pl[0] += 1
    lb = f"L_pr{_pl[0]}"
    c = [f"s_cmp_lt_u32 s{sW}, 4"] if cond is None else cond
    return c + [f"s_cbranch_scc0 {lb}", f"s_setprio {p}", f"{lb}:"]


def recentre(ex, i, at):
    if i == at:
        ex["prepv0"] = [f"v_frexp_exp_i32_f32 v4, v{O_ + 8}"]
        ex["end"] = [f"v_add_u32 v4, {int(MAXOFF) - 1}, v4", "v_max_i32 v4, 0, v4", "v_cvt_f32_i32 v2, v4", f"v_sub_f32 v2, v{NM}, v2",
                     "v_sub_u32 v4, 0, v4", "v_mov_b32 v3, v2"] + [f"v_mov_b64 v[{NM + j}:{NM + j + 1}], v[2:3]" for j in range(0, 16, 2)] + \
                    ["s_nop 1"] + ex.get("end", [])
    if i == at + 2:
        ex["prepv0"] = [f"v_ldexp_f32 v{O_ + j}, v{O_ + j}, v4" for j in range(9)] + ["s_nop 1"]


def adv(a):
    a(f"v_add_u32 v{AK}, 0x4000, v{AK}")
    a(f"v_add_u32 v{AV}, 0x4000, v{AV}")


def gen_p2(a):
    a("L_p2:")
    if ENC == 99:
        a(["s_lshr_b32 s76, s2, 3", f"s_lshl3_add_u32 s76, s76, s{sW}", "s_cmp_lg_u32 s76, 32", "s_cbranch_scc1 L_nosk",
           "s_not_b32 s76, s80", "v_mov_b32 v1, 0", "v_mov_b32 v2, s76", "s_mov_b64 exec, 1",
           f"global_atomic_umax v1, v2, s[{pDBG}:{pDBG + 1}] offset:240 sc1", "s_mov_b64 exec, -1", "L_nosk:"])
    stamp(a, 6)
    a(f"v_mov_b32 v{A16}, v{L16}")
    a(f"v_mov_b32 v{AK}, v{L16}")
    a("v_lshrrev_b32 v2, 5, v0")
    a("v_and_b32 v3, 15, v0")
    a("v_lshlrev_b32 v3, 4, v3")
    a("v_lshl_add_u32 v3, v2, 8, v3")
    a(f"v_add_u32 v{AV}, 1024, v3")
    a(f"s_mov_b32 s{tVM}, 0x0000ffff")
    a(f"s_mov_b32 s{tVM + 1}, 0x0000ffff")
    a(f"ds_read_b128 {vr(K_, 4)}, v{AK}")
    a(f"ds_read_b128 {vr(K_ + 4, 4)}, v{AK} offset:2048")
    a(f"s_mov_b64 exec, s[{tVM}:{tVM + 1}]")
    for d in range(2):
        a(f"ds_read_b128 {vr(V_ + 8 * d, 4)}, v{AV} offset:{d * 2048}")
        a(f"ds_read_b128 {vr(V_ + 8 * d + 4, 4)}, v{AV} offset:{d * 2048 + 512}")
    a("s_mov_b64 exec, -1")
    a(f"s_lshr_b32 s{T0}, s{sW}, 2")
    a(f"s_lshl1_add_u32 s{tTT}, s{tHEAD}, s{T0}")
    a(f"s_lshl_b32 s{T0}, s{tTT}, 15")
    a(f"s_lshl_b32 s{T1}, s{tQB}, 7")
    a(f"s_add_u32 s{T0}, s{T0}, s{T1}")
    a(f"s_and_b32 s{T1}, s{sW}, 3")
    if "coal" in OPT:
        a(f"s_lshl_b32 s{T1}, s{T1}, 13")
        a(f"s_add_u32 s{T0}, s{T0}, s{T1}")
        a("v_lshrrev_b32 v1, 3, v0")
        a("v_lshlrev_b32 v1, 10, v1")
        a("v_and_b32 v2, 7, v0")
        a("v_lshl_add_u32 v1, v2, 4, v1")
    else:
        a(f"s_lshl4_add_u32 s{T0}, s{T1}, s{T0}")
        a("v_and_b32 v1, 31, v0")
        a("v_lshlrev_b32 v1, 10, v1")
        a("v_lshl_add_u32 v1, v2, 6, v1")
    a(f"v_add_u32 v{AOUT}, s{T0}, v1")
    a("s_waitcnt lgkmcnt(4)")
    a(mfma(S0, K_, Q_, "0"))
    a(mfma(S1, K_ + 4, Q_, "0"))
    a(f"s_mul_i32 s{T0}, s{tHEAD}, {224 * 1024}")
    a(f"s_add_u32 s{T0}, s{T0}, {WS_H}")
    a(f"s_add_u32 s{R_H0}, s{pWS}, s{T0}")
    a(f"s_addc_u32 s{R_H0 + 1}, s{pWS + 1}, 0")
    a(f"s_add_u32 s{R_H1}, s{R_H0}, {112 * 1024}")
    a(f"s_addc_u32 s{R_H1 + 1}, s{R_H0 + 1}, 0")
    a(f"s_mul_i32 s{tFH}, s{sW}, {14 * 1024}")
    a(f"s_add_u32 s{R_H0 + 2}, s{tFH}, {14 * 1024}")
    a(f"s_mov_b32 s{R_H1 + 2}, s{R_H0 + 2}")
    a(f"s_mul_i32 s{T0}, s{tQB}, {144 * 2048}")
    a(f"s_add_u32 s{T0}, s{T0}, {WS_WT}")
    a(f"s_add_u32 s{R_WT}, s{pWS}, s{T0}")
    a(f"s_addc_u32 s{R_WT + 1}, s{pWS + 1}, 0")
    a(f"s_lshl_b32 s{tFW}, s{tFH}, 1")
    a(f"s_lshl_b32 s{R_WT + 2}, s{R_H0 + 2}, 1")
    a(f"v_max3_f32 v1, v{S0}, v{S0 + 1}, v{S0 + 2}")
    for i in range(3, 31, 2):
        a(f"v_max3_f32 v1, v1, v{S0 + i}, v{S0 + i + 1}")
    a(f"v_max_f32 v1, v1, v{S0 + 31}")
    a("v_mov_b32 v2, v1")
    a("s_nop 1")
    a("v_permlane32_swap_b32 v1, v2")
    a("v_max_f32 v1, v1, v2")
    a("v_floor_f32 v1, v1")
    a(f"v_sub_f32 v2, {hx(f2u(-MAXOFF))}, v1")
    a("v_mov_b32 v3, v2")
    for i in range(0, 16, 2):
        a(f"v_mov_b64 v[{NM + i}:{NM + i + 1}], v[2:3]")
    a("s_nop 1")
    a(mfma(S0, K_, Q_, NM))
    a(f"ds_read_b128 {vr(K_, 4)}, v{AK} offset:4096")
    srd(a, R_OUT, pOUT, 2097152)
    a(f"s_lshl_b32 s{T0}, s{sW}, 11")
    a(f"v_add_u32 v{AW}, s{T0}, v{A16}")
    a(f"v_add_u32 v{AW + 1}, 0x10000, v{AW}")
    a(f"v_add_u32 v{AW + 2}, 0x20000, v{AW}")
    a("s_waitcnt lgkmcnt(0)")
    a("s_nop 1")
    a(lead(2))
    stamp(a, 7)
    global NOSTAMP
    if "side" in OPT: NOSTAMP = True
    for i in range(8):
        ex = {}
        if i == 4:
            d1, d2 = (stampl(1), stampl(2)) if "p3b" in OPT else ([], [])
            ex["end"] = d1 + ["s_waitcnt vmcnt(0)", "s_barrier"] + d2 + sig_one("L_h_ns", [f"s_add_u32 s{T0}, s{sRB}, {C_H}"], True) + lead(2)
        if i == 3:
            ex["pv0"] = lead(0)
        if i >= 5:
            ex["pv1"], ex["pv0"] = kv(i - 1, A16)
        if "rc0" in OPT: recentre(ex, i, 5)
        a(att_step(i, ex, first=(i == 0)))
    adv(a)
    for i in range(8):
        ex = {}
        if i == 0:
            ex["pv1"], ex["pv0"] = kv(7, A16)
            ex["qk"] = [f"v_mov_b64 v[{RING}:{RING + 1}], 0", f"v_mov_b64 v[{RING + 2}:{RING + 3}], 0"]
        if i < 4:
            ex["G1"] = mfma(G_ + 16 * i, RING, RING, "0")
        if i == 3:
            ex["pv0"] = poll_issue("L_h_np", H_MASK, 7) + lead(0)
        if i == 4:
            d1, d2 = (stampl(3), stampl(4)) if "p3b" in OPT else ([], [])
            ex["end"] = d1 + ["s_waitcnt vmcnt(0)"] + poll_check("L_ch", 16, 7, 16) + ["s_barrier"] + d2 + lead(2)
        if i in (5, 6, 7):
            l = ring_loads(i - 5)
            ex["qk"] = l[0:1]
            ex["pv1"] = l[1:3]
            ex["pv0"] = l[3:6]
        if "rc1" in OPT: recentre(ex, i, 5)
        if "rc2" in OPT: recentre(ex, i, 0)
        a(att_step(i, ex))
    stamp(a, 8)
    a(f"s_mov_b32 s{tIT}, 5")
    a(f"s_lshr_b32 s{sG}, s{sW}, 2")
    a(f"s_lshl_b32 s{sG}, s{sG}, 4")
    a(f"s_add_u32 s{sG}, s{sG}, {PC[0]}")
    a("L_loop:")
    adv(a)
    plan = [[(0, 0)], [(0, 1), (0, 2)], [(0, 3)], [(1, 0), (1, 1)], [(1, 2)], [(1, 3), (2, 0)], [(2, 1)], [(2, 2), (2, 3)]]
    for i in range(8):
        ex = {}
        ex["G1"] = gm(*plan[i][0])
        if len(plan[i]) > 1:
            ex["G2"] = gm(*plan[i][1])
        if i == 0: ex["qk"] = ["s_waitcnt vmcnt(8)"]
        if i == PC[1]: ex["end"] = lead(0, [f"s_cmp_eq_u32 s{tIT}, s{sG}"])
        if i == 2:
            l = ring_loads(0)
            ex["g1"] = l[0:2]
            ex["pv0"] = l[2:6]
        if i == 3: ex["pv1"] = ["s_waitcnt vmcnt(8)"]
        if i == 5:
            l = ring_loads(1)
            ex["g1"] = l[0:2]
            ex["pv0"] = l[2:6] + ["s_waitcnt vmcnt(8)"]
        if i == 7:
            ex["g2"] = ring_loads(2)
        a(att_step(i, ex))
    a(f"s_sub_u32 s{tIT}, s{tIT}, 1")
    a(f"s_cmp_lg_u32 s{tIT}, 0")
    a("s_cbranch_scc1 L_loop")
    adv(a)
    a(f"s_and_b32 s{tFW}, s{sW}, 3")
    a(f"s_lshl_b32 s{tFW}, s{tFW}, 14")
    a(f"s_add_u32 s{tFW}, s{tFW}, {112 * 2048}")
    a(f"s_mov_b32 s{R_WT + 2}, {144 * 2048}")
    if "p3b" in OPT: stamp(a, 5)
    a("s_barrier")
    if "p3b" in OPT: stamp(a, 6)
    a(lead(2))

    def pw(o):
        base, off = (AW, o * 16384) if o < 4 else ((AW + 1, (o - 4) * 16384) if o < 6 else (AW + 2, (o - 6) * 16384))
        if "coal" in OPT:
            base, off = (AW, o * 16448) if o < 4 else ((AW + 1, o * 16448 - 65536) if o < 7 else (AW + 2, 192))
        return [f"ds_write_b128 v{base}, {vr(G_ + 8 * o, 4)} offset:{off}",
                f"ds_write_b128 v{base}, {vr(G_ + 8 * o + 4, 4)} offset:{off + 1024}"]

    XV = 244
    wreg = lambda i: RING + 4 * i if i < 12 else NM + 4 * (i - 12)

    def wol(g):
        return [f"buffer_load_dwordx4 {vr(wreg(4 * g + q), 4)}, v{A16}, {sr(R_WT)}, s{tFW} offen offset:{q * 1024} sc1" for q in range(4)] + \
               [f"s_add_u32 s{tFW}, s{tFW}, 4096"]
    for i in range(8):
        ex = {}
        if i == 0: ex["pv0"] = [f"buffer_load_dwordx4 {vr(XV, 4)}, v{AOUT}, {sr(S_X)}, 0 offen"]
        if i in (1, 3, 5): ex["pv1"], ex["g1"] = wol(i // 2)[:1], wol(i // 2)[1:2]
        if i in (2, 4, 6): ex["g1"], ex["pv0"] = wol(i // 2 - 1)[2:3], wol(i // 2 - 1)[3:]
        if i == PD: ex["end"] = lead(0)
        a(att_step(i, ex))
    a("s_nop 1")
    a(mfma(O_, V_ + 24 + 4, P_ + 4))
    a("s_nop 1")
    a(f"s_lshl_b32 s{T0}, s{sQT}, 5")
    a(f"s_add_u32 s{T0}, s{T0}, s{tHEAD}")
    a(f"s_lshl_b32 s{T0}, s{T0}, 10")
    a(f"s_add_u32 s{T3}, s{T0}, {WS_O}")
    a(f"v_mov_b32 v2, {hx(f2u(2.0 ** 120))}")
    a(f"v_mov_b32 v3, {hx(f2u(2.0 ** -(MAXOFF + 4)))}")
    a("s_waitcnt lgkmcnt(0)")
    a("s_nop 3")
    stamp(a, 9)
    a(f"v_add_f32 v1, |v{O_}|, |v{O_ + 1}|")
    for i in range(2, 8):
        a(f"v_add_f32 v1, v1, |v{O_ + i}|")
    a(f"v_cmp_lt_f32 s[40:41], v{O_ + 8}, v2")
    a("v_cmp_lt_f32 s[42:43], v1, v2")
    a(f"v_cmp_le_f32 s[50:51], 0.5, v{O_ + 8}")
    a("v_cmp_le_f32 vcc, v3, v1")
    a("s_or_b64 s[50:51], s[50:51], vcc")
    a("s_and_b64 s[40:41], s[40:41], s[42:43]")
    a("s_and_b64 s[40:41], s[40:41], s[50:51]")
    a("s_cmp_eq_u64 s[40:41], -1")
    a("s_cbranch_scc0 L_fallback")
    a("L_norm:")
    a(f"v_rcp_f32 v2, v{O_ + 8}")
    a("s_nop 0")
    for i in range(8):
        a(f"v_mul_f32 v{O_ + i}, v{O_ + i}, v2")
    for i in range(4):
        a(f"v_cvt_pk_bf16_f32 v{4 + i}, v{O_ + 2 * i}, v{O_ + 2 * i + 1}")
    a(f"buffer_store_dwordx4 v[4:7], v{A16}, {sr(S_WS)}, s{T3} offen sc1")
    a(wol(3)[:4])
    for o in range(8):
        a(pw(o))
    if "coal" in OPT:
        a(f"s_and_b32 s{T0}, s{sW}, 4")
        a(f"s_and_b32 s{T1}, s{sW}, 3")
        a(f"s_lshl_b32 s{T1}, s{T1}, 7")
        a("v_and_b32 v1, 3, v0")
        a(f"v_add_u32 v1, s{T0}, v1")
        a("v_bfe_u32 v2, v0, 2, 1")
        a("v_lshrrev_b32 v3, 3, v0")
        a("v_lshl_add_u32 v2, v2, 5, v3")
        a("v_lshlrev_b32 v2, 4, v2")
        a(f"v_add_u32 v2, s{T1}, v2")
        a("v_cmp_eq_u32 vcc, 7, v1")
        a("v_mul_u32_u24 v3, 16448, v1")
        a(f"v_mul_u32_u24 v1, 8256, v1")
        a(f"v_add_u32 v{AK}, v1, v2")
        a(f"v_mov_b32 v1, {131072 + 192}")
        a("v_cndmask_b32 v3, v3, v1, vcc")
        a("v_add_u32 v3, v3, v2")
    else:
        a(f"s_lshl_b32 s{T0}, s{sW}, 14")
        a(f"s_add_u32 s{T1}, s{T0}, 0x8000")
        a(f"s_cmp_lt_u32 s{sW}, 6")
        a(f"s_cselect_b32 s{T0}, s{T0}, s{T1}")
        a(f"v_add_u32 v3, s{T0}, v{A16}")
    if "pws" in OPT:
        a(f"s_lshr_b32 s{T0}, s{sXCD}, 1")
        a(f"s_lshl2_add_u32 s{T0}, s{sQT}, s{T0}")
        a(f"s_lshl_b32 s{T0}, s{T0}, 7")
        a(f"s_add_u32 s{T0}, s{T0}, {WS_CNT + 0x4000}")
        a("v_mov_b32 v1, 1")
        a(f"s_and_b32 s42, s{sW}, 3")
        a(f"s_lshl2_add_u32 s42, s{tTT}, s42")
        a(f"s_lshl_b32 s42, s42, 7")
        a(f"s_add_u32 s42, s42, {WS_CNT + 0x4000}")
        a("s_waitcnt vmcnt(4)")
        a("s_mov_b64 exec, 1")
        a(f"buffer_atomic_add v1, off, {sr(S_WS)}, s{T0} sc1")
        a("s_mov_b64 exec, -1")
        a("s_waitcnt lgkmcnt(0)")
        a("s_barrier")
        if "tp" in OPT: a(lead(2))
        stamp(a, 10)
        if "oe" in OPT:
            a(f"buffer_load_dword v5, off, {sr(S_WS)}, s42 sc1")
    else:
        a("s_waitcnt vmcnt(4) lgkmcnt(0)")
        a("s_barrier")
        if "tp" in OPT: a(lead(2))
        stamp(a, 10)
        a(f"s_cmp_lg_u32 s{sW}, 0")
        a("s_cbranch_scc1 L_o_ns")
        if "ok4" in OPT:
            a(f"s_lshr_b32 s{T0}, s{sXCD}, 1")
            a(f"s_lshl2_add_u32 s{T0}, s{tQB}, s{T0}")
            a(f"s_lshl_b32 s{T0}, s{T0}, 8")
        else:
            a(f"s_lshl_b32 s{T0}, s{tQB}, 8")
        if "rep" in OPT:
            a(f"s_lshl2_add_u32 s{T0}, s{T0}, {WS_CNT + 0x4000}")
            a("v_mov_b32 v1, 1")
            a("v_lshlrev_b32 v2, 7, v0")
            a("s_mov_b64 exec, 255")
            a(f"buffer_atomic_add v1, v2, {sr(S_WS)}, s{T0} offen sc1")
        else:
            a(f"s_add_u32 s{T0}, s{T0}, {WS_CNT + C_O * 256}")
            a("v_mov_b32 v1, 1")
            a("s_mov_b64 exec, 1")
            a(f"buffer_atomic_add v1, off, {sr(S_WS)}, s{T0} sc1")
        a("s_mov_b64 exec, -1")
        a("L_o_ns:")
        if "ok4" in OPT:
            a(f"s_and_b32 s42, s{sW}, 3")
            a(f"s_lshl2_add_u32 s42, s{sXCD}, s42")
            if "rep" in OPT:
                a(f"s_lshl3_add_u32 s42, s42, s{tQB}")
                a(f"s_lshl_b32 s42, s42, 7")
                a(f"s_add_u32 s42, s42, {WS_CNT + 0x4000}")
            else:
                a(f"s_lshl_b32 s42, s42, 8")
                a(f"s_add_u32 s42, s42, {WS_CNT + C_O * 256}")
            if "oe" in OPT:
                a(f"buffer_load_dword v5, off, {sr(S_WS)}, s42 sc1")
    F_ = G_
    for s in range(8):
        for i in range(2):
            a(f"ds_read_b128 {vr(F_ + 8 * s + 4 * i, 4)}, v3 offset:{(s * 2 + i) * 1024}")
        if s == 6:
            a("s_waitcnt lgkmcnt(10)")
    for s in range(1, 8):
        a(f"s_waitcnt lgkmcnt({2 * (7 - s)})")
        for i in range(4):
            a(f"v_pk_add_f32 {vr(F_ + 2 * i, 2)}, {vr(F_ + 2 * i, 2)}, {vr(F_ + 8 * s + 2 * i, 2)}")
    if "ok4" in OPT:
        a("s_barrier")
        if "oe" not in OPT:
            a(f"buffer_load_dword v5, off, {sr(S_WS)}, s42 sc1")
    def silu_block():
        T_ = F_ + 8
        a(f"v_mov_b32 v4, {hx(f2u(-LOG2E))}")
        for i in range(8):
            a(f"v_mul_f32 v{T_ + i}, v{F_ + i}, v4")
        for i in range(8):
            a(f"v_exp_f32 v{T_ + i}, v{T_ + i}")
        a("s_nop 0")
        for i in range(8):
            a(f"v_add_f32 v{T_ + i}, 1.0, v{T_ + i}")
        for i in range(8):
            a(f"v_rcp_f32 v{T_ + i}, v{T_ + i}")
        a("s_nop 0")
        for i in range(8):
            a(f"v_mul_f32 v{F_ + i}, v{F_ + i}, v{T_ + i}")
        XU = G_ + 16
        for i in range(4):
            a(f"v_lshlrev_b32 v{XU + 2 * i}, 16, v{XV + i}")
            a(f"v_and_b32 v{XU + 2 * i + 1}, 0xffff0000, v{XV + i}")
    XU = G_ + 16
    if "sl" not in OPT:
        silu_block()
    a(f"s_lshr_b32 s{T0}, s{sW}, 2")
    a(f"s_mul_i32 s{T0}, s{T0}, {4 * 8256 if 'coal' in OPT else 32768}")
    a(f"s_and_b32 s{T1}, s{sW}, 3")
    a(f"s_lshl_b32 s{T2}, s{T1}, 11")
    a(f"s_add_u32 s{T0}, s{T0}, s{T2}")
    a(f"v_add_u32 v1, s{T0}, v{A16}")
    if "coal" in OPT:
        a(f"v_mov_b32 v3, v{AK}")
    else:
        a(f"s_lshl_b32 s{T0}, s{sW}, 13")
        a(f"v_add_u32 v3, s{T0}, v{A16}")
    a(f"s_lshl_b32 s{T0}, s{tTT}, 5")
    a(f"s_lshl_b32 s{T1}, s{T1}, 3")
    a(f"s_add_u32 s{T0}, s{T0}, s{T1}")
    a(f"s_lshl_b32 s{T0}, s{T0}, 10")
    a(f"s_add_u32 s{T2}, s{T0}, {WS_O}")
    a(f"s_add_u32 s{T3}, s{T2}, 4096")
    stamp(a, 11)
    if "ok4" in OPT:
        a(f"s_mov_b32 s{T1}, {SPIN}")
        a("L_o_poll:")
        a("s_waitcnt vmcnt(0)")
        a("v_readfirstlane_b32 s40, v5")
        a("s_cmp_ge_u32 s40, 8")
        a("s_cbranch_scc1 L_o_ok")
        a(f"s_sleep {OSL}")
        a(f"buffer_load_dword v5, off, {sr(S_WS)}, s42 sc1")
        a(f"s_sub_u32 s{T1}, s{T1}, 1")
        a(f"s_cmp_lg_u32 s{T1}, 0")
        a("s_cbranch_scc1 L_o_poll")
        a("L_o_ok:")
    else:
        a(f"s_cmp_lg_u32 s{sW}, 0")
        a("s_cbranch_scc1 L_o_ok")
        a(f"s_lshl_b32 s{T0}, s{sXCD}, 8")
        a(f"s_add_u32 s{T0}, s{T0}, {WS_CNT + C_O * 256}")
        a(f"s_mov_b32 s{T1}, {SPIN}")
        a("L_o_poll:")
        a(f"buffer_load_dword v4, off, {sr(S_WS)}, s{T0} sc1")
        a("s_waitcnt vmcnt(0)")
        a("v_readfirstlane_b32 s40, v4")
        a("s_cmp_ge_u32 s40, 32")
        a("s_cbranch_scc1 L_o_ok")
        a(f"s_sub_u32 s{T1}, s{T1}, 1")
        a(f"s_cmp_lg_u32 s{T1}, 0")
        a("s_cbranch_scc1 L_o_poll")
        a("L_o_ok:")
        a("s_barrier")
    stamp(a, 12)
    OF = S0
    SA = V_
    for j in range(8):
        so = T2 if j < 4 else T3
        a(f"buffer_load_dwordx4 {vr(OF + 4 * j, 4)}, v{A16}, {sr(S_WS)}, s{so} offen offset:{(j % 4) * 1024} sc1")
    if "sl" in OPT:
        silu_block()
    for j in range(8):
        a(f"s_waitcnt vmcnt({7 - j})")
        for ap in range(2):
            a(mfma(SA + 16 * ap, wreg(2 * j + ap), OF + 4 * j, "0" if j == 0 else None))
    stamp(a, 13)
    a("s_nop 11")
    for o in range(4):
        for i in range(2):
            a(f"ds_write_b128 v1, {vr(SA + 8 * o + 4 * i, 4)} offset:{o * (8256 if 'coal' in OPT else 8192) + i * 1024}")
    a("s_waitcnt lgkmcnt(0)")
    a("s_barrier")
    for s in range(4):
        for i in range(2):
            a(f"ds_read_b128 {vr(SA + 8 * s + 4 * i, 4)}, v3 offset:{(s * 2 + i) * 1024}")
    for s in range(1, 4):
        a(f"s_waitcnt lgkmcnt({2 * (3 - s)})")
        for i in range(4):
            a(f"v_pk_add_f32 {vr(SA + 2 * i, 2)}, {vr(SA + 2 * i, 2)}, {vr(SA + 8 * s + 2 * i, 2)}")
    for i in range(4):
        a(f"v_pk_fma_f32 {vr(XU + 2 * i, 2)}, {vr(SA + 2 * i, 2)}, {vr(F_ + 2 * i, 2)}, {vr(XU + 2 * i, 2)}")
    for i in range(4):
        a(f"v_cvt_pk_bf16_f32 v{4 + i}, v{XU + 2 * i}, v{XU + 2 * i + 1}")
    fl = " sc1" if "osc1" in OPT else (" nt" if "ont" in OPT else (" sc0 sc1" if "osc01" in OPT else ""))
    a(f"buffer_store_dwordx4 v[4:7], v{AOUT}, {sr(R_OUT)}, 0 offen{fl}")
    stamp(a, 14)
    stamp_flush(a)
    a("L_exit:")
    a("s_endpgm")
    a("L_fallback:")
    a(f"s_lshl_b32 s{T0}, s{tHEAD}, 16")
    a(f"s_add_u32 s{T0}, s{T0}, {32 << 16}")
    a(f"s_mov_b32 s{T1}, 0")
    a("v_mov_b32 v1, 0xff800000")
    a("L_fb1:")
    a(f"s_add_u32 s{T2}, s{T0}, s{T1}")
    a(f"buffer_load_dwordx4 {vr(K_, 4)}, v{A16}, {sr(S_WS)}, s{T2} offen sc1")
    a("s_waitcnt vmcnt(0)")
    a(mfma(S0, K_, Q_, "0"))
    a("s_nop 15")
    for i in range(0, 16, 2):
        a(f"v_max3_f32 v1, v1, v{S0 + i}, v{S0 + i + 1}")
    a(f"s_add_u32 s{T1}, s{T1}, 1024")
    a(f"s_cmp_lt_u32 s{T1}, 65536")
    a("s_cbranch_scc1 L_fb1")
    a("v_mov_b32 v2, v1")
    a("s_nop 1")
    a("v_permlane32_swap_b32 v1, v2")
    a("v_max_f32 v1, v1, v2")
    a("v_sub_f32 v1, 0, v1")
    for i in range(16):
        a(f"v_mov_b32 v{NM + i}, v1")
    for i in range(16):
        a(f"v_mov_b32 v{O_ + i}, 0")
    a("v_lshrrev_b32 v2, 5, v0")
    a("v_and_b32 v3, 15, v0")
    a("v_lshlrev_b32 v3, 4, v3")
    a("v_lshl_add_u32 v3, v2, 8, v3")
    a(f"s_mov_b32 s{T1}, 0")
    a("L_fb2:")
    a(f"s_add_u32 s{T2}, s{T0}, s{T1}")
    a(f"buffer_load_dwordx4 {vr(K_, 4)}, v{A16}, {sr(S_WS)}, s{T2} offen sc1")
    a(f"s_add_u32 s{T2}, s{T2}, {32 << 16}")
    a(f"s_mov_b64 exec, s[{tVM}:{tVM + 1}]")
    a(f"buffer_load_dwordx4 {vr(V_, 4)}, v3, {sr(S_WS)}, s{T2} offen sc1")
    a(f"buffer_load_dwordx4 {vr(V_ + 4, 4)}, v3, {sr(S_WS)}, s{T2} offen offset:512 sc1")
    a("s_mov_b64 exec, -1")
    a("s_waitcnt vmcnt(0)")
    a(mfma(S0, K_, Q_, NM))
    a("s_nop 15")
    for i in range(16):
        a(f"v_exp_f32 v{S0 + i}, v{S0 + i}")
    a("s_nop 0")
    for i in range(8):
        a(f"v_cvt_pk_bf16_f32 v{P_ + i}, v{S0 + 2 * i}, v{S0 + 2 * i + 1}")
    a("s_nop 1")
    a(mfma(O_, V_, P_))
    a(mfma(O_, V_ + 4, P_ + 4))
    a(f"s_add_u32 s{T1}, s{T1}, 1024")
    a(f"s_cmp_lt_u32 s{T1}, 65536")
    a("s_cbranch_scc1 L_fb2")
    a("s_nop 15")
    a("s_branch L_norm")


def main(out):
    a = Asm()
    k = NAME + "_kernel"
    hdr = ["; LN + MHA + GEGLU block, one persistent launch; generated by gen5.py (hand-scheduled gfx950 assembly)",
           "; @launch grid=(256,1,1) block=(512,1,1) lds=163840"]
    a('.amdgcn_target "amdgcn-amd-amdhsa--gfx950"')
    a(".text")
    a(f".globl {k}\n.p2align 8\n.type {k},@function\n{k}:")
    gen_p1(a)
    gen_p2(a)
    gen_side(a)
    a("L_end:")
    a('.section .rodata,"a"')
    a(".p2align 6")
    a(f".amdhsa_kernel {k}")
    a(f".amdhsa_next_free_vgpr {NVGPR}")
    a(f".amdhsa_next_free_sgpr {96 if (STAMPS or ENC is not None) else 80}")
    a(f".amdhsa_accum_offset {(NVGPR + 3) // 4 * 4}")
    a(".amdhsa_group_segment_fixed_size 0")
    a(".amdhsa_kernarg_size 80")
    a(".amdhsa_user_sgpr_count 2")
    a(".amdhsa_user_sgpr_kernarg_segment_ptr 1")
    a(".amdhsa_system_sgpr_workgroup_id_x 1")
    a(".end_amdhsa_kernel")
    open(out, "w").write("\n".join(hdr) + "\n" + a.text())


if __name__ == "__main__":
    for x in list(sys.argv):
        if x.startswith("--opt="):
            OPT = set(x[6:].split(","))
            sys.argv.remove(x)
    for x in list(sys.argv):
        if x.startswith("--enc="):
            ENC = int(x[6:])
            sys.argv.remove(x)
    for o in OPT:
        if o.startswith("sig"): SIGU = int(o[3:])
        if o.startswith("chk"): CHK = int(o[3:])
        if o.startswith("wk"): WK = int(o[2:])
        if o.startswith("mo"): MAXOFF = float(o[2:])
        if o.startswith("cso"): CSO = int(o[3:])
        if o.startswith("osl"): OSL = int(o[3:])
        if o.startswith("nbg"): NBG = int(o[3:])
        if o.startswith("vb"): VBUD = int(o[2:])
        if o.startswith("pc"): PC = (int(o[2]), int(o[3]))
        if o.startswith("pd"): PD = int(o[2])
        if o.startswith("pg"): PG = int(o[2])
    if "--cyc" in sys.argv:
        STAMPS = 2
        sys.argv.remove("--cyc")
    if "--stamps" in sys.argv:
        STAMPS = True
        sys.argv.remove("--stamps")
    main(sys.argv[1] if len(sys.argv) > 1 else f"cdna_kernels/{NAME}.s")
```

```python
import sys, struct, math

NAME = "recurrent_scan__mha_block__glu_gated_geglu__prompt"

WS_QKV = 0
WS_H = 6 << 20
WS_O = 14 << 20
WS_CNT = 16 << 20
WS_STAMP = (16 << 20) + 65536
WS_CS = (16 << 20) + 0xb0000
WS_ST = (16 << 20) + 0x80000
WS_CQ = (16 << 20) + 0xa0000
WS_RS = (16 << 20) + 0x84000
WS_CP = (19 << 20) + 0x80000
WS_WT = 17 << 20
WS_SIZE = 21 << 20
OOB = 0x7f000000

LOG2E = 1.4426950408889634
QSCALE = 0.25 * LOG2E
GC1 = -2.0 * LOG2E * math.sqrt(2.0 / math.pi)
GC2 = GC1 * 0.044715
MAXOFF = 100.0
SPIN = 0x40000

STAMPS = False
OPT = set()
NOSTAMP = False
ENC = None


def f2u(x):
    return struct.unpack("<I", struct.pack("<f", x))[0]


def hx(x):
    return "0x%08x" % (x & 0xffffffff)


class Asm:
    def __init__(self):
        self.l = []

    def __call__(self, s):
        if isinstance(s, (list, tuple)):
            for x in s:
                self(x)
            return
        for line in s.split("\n"):
            line = line.strip()
            if not line:
                continue
            if line.endswith(":") or line.startswith("."):
                self.l.append(line)
            else:
                self.l.append("    " + line)

    def text(self):
        return "\n".join(self.l) + "\n"


def vr(b, n):
    return f"v[{b}:{b + n - 1}]"


def sr(b):
    return f"s[{b}:{b + 3}]"


def mfma(d, a, b, c=None):
    cs = vr(d, 16) if c is None else (c if isinstance(c, str) else vr(c, 16))
    return f"v_mfma_f32_32x32x16_bf16 {vr(d, 16)}, {vr(a, 4)}, {vr(b, 4)}, {cs}"


def stamp(a, n):
    if ENC is not None:
        if n in (0, ENC) and not NOSTAMP:
            a("s_memrealtime s[76:77]")
            a("s_waitcnt lgkmcnt(0)")
            a(f"s_mov_b32 s{80 if n == 0 else 81}, s76")
            if n == 0:
                a("s_mov_b32 s81, s76")
        return
    if not STAMPS or (NOSTAMP and n != 15) or ("min" in OPT and n not in (0, 15)):
        return
    a("s_memtime s[76:77]" if STAMPS == 2 else "s_memrealtime s[76:77]")
    a("s_waitcnt lgkmcnt(0)")
    a(f"s_mov_b32 s{80 + n}, s76")


def stampl(n):
    t = Asm()
    stamp(t, n)
    return [x.strip() for x in t.l]


def stamp_flush(a):
    if ENC is not None:
        a("s_waitcnt vmcnt(0)")
        a("s_memrealtime s[76:77]")
        a("s_waitcnt lgkmcnt(0)")
        if ENC == 15:
            a("s_mov_b32 s81, s76")
        if ENC == 99:
            a(["v_mov_b32 v1, 0", f"global_load_dword v2, v1, s[{pDBG}:{pDBG + 1}] offset:240 sc1", "s_waitcnt vmcnt(0)",
               "v_readfirstlane_b32 s80, v2", "s_not_b32 s80, s80", "s_sub_u32 s80, s80, 100"])
        a("s_sub_u32 s81, s81, s80")
        a("s_cmp_lt_u32 s2, 32" if "encs" not in OPT else "s_cmp_ge_u32 s2, 32")
        a("s_cselect_b32 s81, 0, s81")
        a("s_mov_b32 s80, s76")
        a("L_enc:")
        a("s_memrealtime s[76:77]")
        a("s_waitcnt lgkmcnt(0)")
        a("s_sub_u32 s76, s76, s80")
        a("s_cmp_lt_u32 s76, s81")
        a("s_cbranch_scc1 L_enc")
        return
    if not STAMPS:
        return
    a("s_waitcnt vmcnt(0)")
    stamp(a, 15)
    a("v_mov_b32 v1, 0")
    for n in range(16):
        a(f"v_writelane_b32 v1, s{80 + n}, {n}")
    a("s_lshl_b32 s76, s2, 3")
    a(f"s_add_u32 s76, s76, s{sW}")
    a("s_lshl_b32 s76, s76, 6")
    a(f"s_add_u32 s76, s76, {WS_STAMP}")
    a("v_lshlrev_b32 v2, 2, v0")
    a("s_mov_b64 exec, 0xffff")
    a(f"buffer_store_dword v1, v2, {sr(S_WS)}, s76 offen")


def srd(a, s, ptr, size):
    a(f"s_mov_b32 s{s}, s{ptr}")
    a(f"s_mov_b32 s{s + 1}, s{ptr + 1}")
    a(f"s_mov_b32 s{s + 2}, {size}")
    a(f"s_mov_b32 s{s + 3}, 0x00020000")


pX, pWQKV, pWO, pG, pU, pWD, pOUT, pDBG, pWS = 56, 58, 60, 64, 66, 68, 70, 72, 74
S_T, S_X, S_W0, S_W1, S_W3, S_WS = 4, 8, 12, 16, 20, 24
R_OUT, R_H0, R_H1, R_WT = 4, 12, 16, 20
sW, sTT, sHF, sRB, sCB, sROT, sISS, sVAR = 28, 29, 30, 31, 32, 33, 34, 35
sCQ, sCG, sXROW, sLW = 36, 37, 42, 43
T0, T1, T2, T3 = 44, 45, 46, 47
sXCD, sT, sG, sKV = 49, 52, 53, 50
tHEAD, tQB, tIT, tFH, tFW, tTT = 38, 39, 33, 36, 37, 48
tVM = 54

AR, BR, CR, SL = 0, 49152, 98304, 16384
SCR = 147456
XA, VXS, VW0, WQ, WC = 4, 8, 9, 10, 12
VW1, VW3, L16, MASK, ONES, STV, POLL = 14, 15, 16, 17, 18, 20, 21
CSA = 24
WF = 32
ACF, ACQ = 64, 96
XF = 128
Q_, K_, P_, NM, S0, S1, RING = 8, 12, 20, 28, 44, 60, 76
AK, AV, A16, AOUT = 124, 125, 126, 127
G_, V_, O_, AW = 128, 192, 224, 240
NVGPR = 256
C_H, C_CS, C_O = 24, 40, 56
T4 = 63
sQT = 78
sCF, sCNT = 51, 62


def tiny(d, a_, b_, first=False):
    return f"v_mfma_f32_4x4x4_16b_bf16 {vr(d, 4)}, {vr(a_, 2)}, {vr(b_, 2)}, {'0' if first else vr(d, 4)}"


def dma(S, ffn=True):
    sl = (S % 3) * SL
    if S < 8:
        r = [[f"s_add_u32 s{T1}, s{sROT}, {S}", f"s_and_b32 s{T1}, s{T1}, 7",
              f"s_lshl_b32 s{T0}, s{T1}, 7", f"s_add_u32 m0, s{sLW}, {AR + sl}", f"s_add_u32 s{T0}, s{T0}, s{sXROW}",
              f"buffer_load_dwordx4 v{VXS}, {sr(S_X)}, s{T0} offen lds"],
             [f"s_mul_i32 s{T1}, s{T1}, {64 * 3072}", f"s_add_u32 m0, s{sLW}, {BR + sl}", f"s_add_u32 s{T1}, s{T1}, s{sCQ}",
              f"buffer_load_dwordx4 v{VW0}, {sr(S_W0)}, s{T1} offen lds"],
             [f"s_add_u32 m0, s{sLW}, {AR + sl + 8192}", f"s_add_u32 s{T0}, s{T0}, 0x10000",
              f"buffer_load_dwordx4 v{VXS}, {sr(S_X)}, s{T0} offen lds"],
             [f"s_add_u32 m0, s{sLW}, {BR + sl + 8192 - 128}", "s_nop 0",
              f"buffer_load_dwordx4 v{VW0}, {sr(S_W0)}, s{T1} offen offset:128 lds"]]
        if ffn and S >= 2:
            r += [[f"s_add_u32 s{T4}, s{sROT}, {S - 2}", f"s_and_b32 s{T4}, s{T4}, 7", f"s_mul_i32 s{T4}, s{T4}, {64 * 3584}",
                   f"s_add_u32 m0, s{sLW}, {CR + sl}", f"s_add_u32 s{T4}, s{T4}, s{sCG}",
                   f"buffer_load_dwordx4 v{VW1}, {sr(S_W1)}, s{T4} offen lds"],
                  [f"s_add_u32 m0, s{sLW}, {CR + sl + 8192}", "s_nop 0",
                   f"buffer_load_dwordx4 v{VW3}, {sr(S_W3)}, s{T4} offen lds"]]
        return r
    if not ffn:
        return []
    r = []
    off = 128 if S > 8 else 0
    for hb, base in enumerate((BR, CR)):
        r += [[f"s_add_u32 s{T1}, s{sROT}, {(2 * (S - 9) + hb) & 7}", f"s_and_b32 s{T1}, s{T1}, 7",
               f"s_mul_i32 s{T1}, s{T1}, {64 * 3584}", f"s_add_u32 m0, s{sLW}, {base + sl - off}", f"s_add_u32 s{T1}, s{T1}, s{sCG}",
               f"buffer_load_dwordx4 v{VW1}, {sr(S_W1)}, s{T1} offen offset:{off} lds"],
              [f"s_add_u32 m0, s{sLW}, {base + sl + 8192 - off}", "s_nop 0",
               f"buffer_load_dwordx4 v{VW3}, {sr(S_W3)}, s{T1} offen offset:{off} lds"]]
    return r


def fset(k, ffn):
    return WF + 16 * (k & 1) if (ffn and k >= 8) else WF + 8 * (k & 3)


def rd1(k, nt, ffn):
    S, ks = k >> 2, k & 3
    sl = (S % 3) * SL
    F = fset(k, ffn)
    r = [f"ds_read_b128 {vr(XF + 4 * k, 4)}, v{XA + ks} offset:{sl}"]
    for t in range(nt):
        for t2 in range(2):
            r.append(f"ds_read_b64_tr_b16 {vr(F + 4 * t + 2 * t2, 2)}, v{WQ + t} offset:{sl + ks * 2048 + t2 * 512}")
    if ffn and k >= 8:
        for c in range(2):
            for t2 in range(2):
                r.append(f"ds_read_b64_tr_b16 {vr(F + 8 + 4 * c + 2 * t2, 2)}, v{WC + c} offset:{sl + ks * 2048 + t2 * 512}")
    return r


def rd2(u):
    S = 8 + (u >> 2)
    sl = (S % 3) * SL
    base = WQ if (u & 3) < 2 else WC
    F = WF + 16 * (u & 1)
    return [f"ds_read_b64_tr_b16 {vr(F + 8 * q + 4 * c + 2 * t2, 2)}, v{base + c} offset:{sl + ((2 * u + q) & 3) * 2048 + t2 * 512}"
            for q in range(2) for c in range(2) for t2 in range(2)]


def flat(L):
    return [x for at in L for x in ([at] if isinstance(at, str) else at)]


def spread(heads, first, rest):
    n = len(heads)
    pf = -(-len(first) // max(1, n - 1)) if first else 0
    res = []
    for j, hd in enumerate(heads):
        res.append(hd)
        res += flat(first[j * pf:(j + 1) * pf])
        res += flat(rest[j * len(rest) // n:(j + 1) * len(rest) // n])
    return res


def nvm(lines):
    return sum(1 for l in lines if l.startswith("buffer_") or l.startswith("global_"))


def weave(heads, fills):
    res = []
    per = -(-len(fills) // len(heads)) if fills else 0
    i = 0
    for hd in heads:
        res.append(hd)
        for at in fills[i:i + per]:
            res += [at] if isinstance(at, str) else at
        i += per
    return res


def tr_addr(dst, t_a, t_b):
    return [f"v_lshrrev_b32 v{t_a}, 5, v0", f"v_bfe_u32 v{t_b}, v0, 2, 2", f"v_lshl_add_u32 v{dst}, v{t_a}, 2, v{t_b}",
            f"v_lshlrev_b32 v{dst}, 7, v{dst}", f"v_and_b32 v{t_a}, 1, v0", f"v_lshl_add_u32 v{dst}, v{t_a}, 6, v{dst}",
            f"v_bfe_u32 v{t_a}, v0, 4, 1", f"v_lshl_add_u32 v{dst}, v{t_a}, 4, v{dst}", f"v_bfe_u32 v{t_a}, v0, 1, 1",
            f"v_lshl_add_u32 v{dst}, v{t_a}, 3, v{dst}", f"v_lshrrev_b32 v{t_b}, 1, v{t_b}", f"v_lshl_add_u32 v{dst}, v{t_b}, 5, v{dst}"]


def split3(w, src):
    return [f"v_and_b32 v{w}, v{MASK}, v{src}", f"v_sub_f32 v{w + 2}, v{src}, v{w}",
            f"v_and_b32 v{w + 1}, v{MASK}, v{w + 2}", f"v_sub_f32 v{w + 2}, v{w + 2}, v{w + 1}", f"v_mov_b32 v{w + 3}, 0"]


def poll_issue(lbl, mask_instrs, reg=POLL):
    return ([f"s_cmp_lg_u32 s{sW}, 0", f"s_cbranch_scc1 {lbl}", "v_lshlrev_b32 v1, 8, v0"] + mask_instrs +
            ["s_mov_b64 exec, s[40:41]",
             f"buffer_load_dword v{reg}, v1, {sr(S_WS)}, s{sCNT} offen sc1", "s_mov_b64 exec, -1", f"{lbl}:"])


def poll_check(lbl, thr, reg=POLL, sleep=8):
    return [f"s_cmp_lg_u32 s{sW}, 0", f"s_cbranch_scc1 {lbl}_ok",
            f"s_mov_b32 s{T3}, {SPIN}", "s_mov_b64 exec, s[40:41]", f"{lbl}_spin:",
            f"v_cmp_gt_u32 vcc, {thr}, v{reg}", "s_cmp_eq_u64 vcc, 0", f"s_cbranch_scc1 {lbl}_done",
            f"s_sleep {sleep}",
            f"buffer_load_dword v{reg}, v1, {sr(S_WS)}, s{sCNT} offen sc1", "s_waitcnt vmcnt(0)",
            f"s_sub_u32 s{T3}, s{T3}, 1", f"s_cmp_lg_u32 s{T3}, 0", f"s_cbranch_scc1 {lbl}_spin",
            f"{lbl}_done:", "s_mov_b64 exec, -1", f"{lbl}_ok:"]


QKV_MASK = [f"s_lshl_b32 s40, 0x10101, s{sXCD}", "s_mov_b32 s41, 0"]
CS_MASK = ["s_mov_b32 s40, 0", f"s_lshl_b32 s41, 0x100, s{sCF}"]
H_MASK = ["s_mov_b32 s40, 0xff000000", "s_mov_b32 s41, 0xff"]


def cs_issue(lbl, n):
    return [f"s_cmp_lg_u32 s{sW}, 0", f"s_cbranch_scc1 {lbl}", "v_lshlrev_b32 v1, 6, v0", "s_mov_b64 exec, 15",
            f"global_load_dword v{POLL}, v1, s[{pDBG}:{pDBG + 1}] offset:{4 * n} sc1", "s_mov_b64 exec, -1", f"{lbl}:"]


def cs_signal(lbl, n):
    return [f"s_cmp_lg_u32 s{sW}, 0", f"s_cbranch_scc1 {lbl}", f"s_and_b32 s{T2}, s{sRB}, 3", f"s_lshl_b32 s{T2}, s{T2}, 6",
            f"v_mov_b32 v2, s{T2}", "v_mov_b32 v3, 1", "s_mov_b64 exec, 1",
            f"global_atomic_add v2, v3, s[{pDBG}:{pDBG + 1}] offset:{4 * n} sc1", "s_mov_b64 exec, -1", f"{lbl}:"]


def cs_check(lbl, n):
    return [f"s_cmp_lg_u32 s{sW}, 0", f"s_cbranch_scc1 {lbl}_ok",
            f"s_mov_b32 s{T3}, {SPIN}", "s_mov_b64 exec, 15", f"{lbl}_spin:",
            f"v_cmp_gt_u32 vcc, 8, v{POLL}", "s_cmp_eq_u64 vcc, 0", f"s_cbranch_scc1 {lbl}_done",
            "s_sleep 8",
            f"global_load_dword v{POLL}, v1, s[{pDBG}:{pDBG + 1}] offset:{4 * n} sc1", "s_waitcnt vmcnt(0)",
            f"s_sub_u32 s{T3}, s{T3}, 1", f"s_cmp_lg_u32 s{T3}, 0", f"s_cbranch_scc1 {lbl}_spin",
            f"{lbl}_done:", "s_mov_b64 exec, -1", f"{lbl}_ok:"]


def sig_qkv(lbl):
    return [f"s_cmp_lg_u32 s{sW}, 0", f"s_cbranch_scc1 {lbl}",
            f"s_mul_i32 s{T2}, s{sCB}, 3", f"s_lshr_b32 s{T2}, s{T2}, 1", f"s_and_b32 s{T3}, s{sCB}, 1",
            f"v_add_u32 v2, s{T2}, v0", "v_lshlrev_b32 v2, 8, v2",
            f"v_xor_b32 v3, s{T3}, v0", "v_sub_u32 v3, 2, v3",
            "s_mov_b64 exec, 3", f"buffer_atomic_add v3, v2, {sr(S_WS)}, s{sCNT} offen sc1", "s_mov_b64 exec, -1", f"{lbl}:"]


def sig_one(lbl, idx_instrs, skip_side=False):
    c = [f"s_or_b32 s{T0}, s{sW}, s{sISS}"] if skip_side else [f"s_cmp_lg_u32 s{sW}, 0"]
    return (c + [f"s_cbranch_scc1 {lbl}"] + idx_instrs +
            [f"s_lshl_b32 s{T0}, s{T0}, 8", f"s_add_u32 s{T0}, s{T0}, s{sCNT}", "v_mov_b32 v3, 1", "s_mov_b64 exec, 1",
             f"buffer_atomic_add v3, off, {sr(S_WS)}, s{T0} sc1", "s_mov_b64 exec, -1", f"{lbl}:"])


def kv(i, r=L16):
    return [[f"s_lshl1_add_u32 m0, s{sLW}, {i * 16384}" if i else f"s_lshl_b32 m0, s{sLW}, 1",
             f"s_add_u32 s{T2}, s{sKV}, {i * 8192}",
             f"buffer_load_dwordx4 v{r}, {sr(S_WS)}, s{T2} offen sc1 lds"],
            [f"s_lshl1_add_u32 m0, s{sLW}, {i * 16384 + 1024}", f"s_add_u32 s{T2}, s{sKV}, {i * 8192 + (32 << 16)}",
             f"buffer_load_dwordx4 v{r}, {sr(S_WS)}, s{T2} offen sc1 lds"]]


def q_load():
    return [f"s_lshl_b32 s{T2}, s{tHEAD}, 6", f"s_add_u32 s{T2}, s{T2}, s{sQT}", f"s_lshl_b32 s{T2}, s{T2}, 10",
            f"buffer_load_dwordx4 {vr(Q_, 4)}, v{L16}, {sr(S_WS)}, s{T2} offen sc1"]


def p2_init_v():
    return ([["v_and_b32 v3, 27, v0", "v_cmp_eq_u32 vcc, 16, v3", f"v_mov_b32 v{V_ + 1}, 0x3f803f80", "v_mov_b32 v3, 0",
              f"v_cndmask_b32 v{V_}, v3, v{V_ + 1}, vcc", f"v_mov_b32 v{V_ + 1}, v{V_}"]] +
            [f"v_mov_b64 v[{V_ + i}:{V_ + i + 1}], v[{V_}:{V_ + 1}]" for i in range(2, 32, 2)])


TRA, TRD = 142, 144


def tr_setup():
    A, B, C, D = T2, T3, tVM + 1, tVM
    return [[f"s_sub_u32 s{C}, s2, 32", f"s_mul_i32 s{D}, s{sW}, 144", f"s_add_u32 s{D}, s{D}, s{C}", f"s_lshl_b32 s{D}, s{D}, 11",
             f"s_add_u32 s{D}, s{D}, {WS_WT}", f"s_cmp_lt_u32 s{C}, 144", f"s_cselect_b32 s{D}, s{D}, {OOB}",
             f"s_cmp_lt_u32 s{C}, 112", f"s_cselect_b32 s{S_T}, s{pWD}, s{pWO}",
             f"s_cselect_b32 s{S_T + 1}, s{pWD + 1}, s{pWO + 1}", f"s_mov_b32 s{S_T + 2}, 1835008",
             f"s_cselect_b32 s{S_T + 2}, s{S_T + 2}, 524288", f"s_cselect_b32 s{A}, 0, 112", f"s_mov_b32 s{S_T + 3}, 0x00020000",
             f"s_sub_u32 s{C}, s{C}, s{A}", f"s_lshl_b32 s{C}, s{C}, 14", f"s_lshl_b32 s{B}, s{sW}, 7", f"s_add_u32 s{C}, s{C}, s{B}"],
            ["v_lshrrev_b32 v2, 3, v0", "v_and_b32 v3, 2, v2", "v_and_b32 v18, 7, v0", "v_xor_b32 v18, v3, v18",
             "v_lshlrev_b32 v18, 4, v18", "v_lshl_add_u32 v18, v2, 10, v18"]]


def tr_dma():
    C = tVM + 1
    return [[f"s_lshl_b32 m0, s{sLW}, 1", f"s_add_u32 s{T3}, s{C}, 8192", f"buffer_load_dwordx4 v18, {sr(S_T)}, s{C} offen lds",
             "s_add_u32 m0, m0, 1024", "s_nop 0", f"buffer_load_dwordx4 v18, {sr(S_T)}, s{T3} offen lds"]]


def tr_rd():
    return [f"ds_read_b64_tr_b16 {vr(TRD + 4 * ap + 2 * t, 2)}, v{TRA + ap} offset:{t * 1024}" for ap in range(2) for t in range(2)]


def tr_st():
    return [f"buffer_store_dwordx4 {vr(TRD, 4)}, v{L16}, {sr(S_WS)}, s{tVM} offen sc1",
            f"buffer_store_dwordx4 {vr(TRD + 4, 4)}, v{L16}, {sr(S_WS)}, s{tVM} offen offset:1024 sc1"]


def gen_p1(a):
    global NOSTAMP
    a("s_cmp_ge_u32 s2, 256")
    a("s_cbranch_scc1 L_exit")
    stamp(a, 0)
    a(f"s_load_dwordx4 s[{pX}:{pX + 3}], s[0:1], 0")
    a(f"s_load_dwordx4 s[{pG}:{pG + 3}], s[0:1], 32")
    a(f"s_load_dwordx2 s[{pWO}:{pWO + 1}], s[0:1], 16")
    a(f"s_load_dwordx4 s[{pWD}:{pWD + 3}], s[0:1], 48")
    a(f"s_load_dwordx4 s[{pDBG}:{pDBG + 3}], s[0:1], 64")
    a("v_lshrrev_b32 v1, 6, v0")
    a("v_and_b32 v0, 63, v0")
    a(f"v_readfirstlane_b32 s{sW}, v1")
    a("s_cmp_ge_u32 s2, 32")
    a("s_cbranch_scc1 L_nocode")
    a("s_getpc_b64 s[40:41]")
    a("L_here:")
    a("v_lshlrev_b32 v2, 13, v1")
    a("v_lshl_add_u32 v2, v0, 7, v2")
    a("v_min_u32 v2, L_end-L_here-4, v2")
    a("v_mov_b32 v3, s41")
    a("v_add_co_u32 v2, vcc, s40, v2")
    a("s_nop 1")
    a("v_addc_co_u32 v3, vcc, 0, v3, vcc")
    a(f"global_load_dword v{STV}, v[2:3], off")
    a("L_nocode:")
    a(f"s_and_b32 s{sXCD}, s2, 7")
    a(f"s_lshr_b32 s{T1}, s2, 3")
    a(f"s_and_b32 s{sRB}, s{sXCD}, 3")
    a(f"s_and_b32 s{T2}, s{T1}, 3")
    a(f"s_lshl2_add_u32 s{sRB}, s{sRB}, s{T2}")
    a(f"s_lshr_b32 s{sCF}, s{sXCD}, 2")
    a(f"s_lshr_b32 s{sISS}, s{T1}, 2")
    a(f"s_lshl3_add_u32 s{sCB}, s{sCF}, s{sISS}")
    a(f"s_lshl1_add_u32 s{sROT}, s{sXCD}, s{sISS}")
    a(f"s_lshl_b32 s{sLW}, s{sW}, 10")
    a(f"s_lshl_b32 s{T2}, s{sW}, 3")
    a(f"s_lshl_b32 s{sXROW}, s{sRB}, 7")
    a(f"s_add_u32 s{sXROW}, s{sXROW}, s{T2}")
    a(f"s_lshl_b32 s{sXROW}, s{sXROW}, 10")
    a(f"s_mul_i32 s{sCQ}, s{sCB}, 3")
    a(f"s_lshr_b32 s{sCQ}, s{sCQ}, 1")
    a(f"s_lshl_b32 s{sCQ}, s{sCQ}, 7")
    a(f"s_mul_i32 s{T3}, s{T2}, 3072")
    a(f"s_add_u32 s{sCQ}, s{sCQ}, s{T3}")
    a(f"s_mul_i32 s{T3}, s{T2}, 3584")
    a(f"s_sub_u32 s{sCF}, s{sCB}, s{sCF}")
    a(f"s_sub_u32 s{sCF}, s{sCF}, 1")
    a(f"s_lshl_b32 s{sCG}, s{sCF}, 8")
    a(f"s_add_u32 s{sCG}, s{sCG}, s{T3}")
    a(f"s_cmp_eq_u32 s{sISS}, 0")
    a(f"s_cselect_b32 s{sISS}, 1, 0")
    a(f"s_cselect_b32 s{sCG}, {OOB}, s{sCG}")
    a("v_lshrrev_b32 v1, 3, v0")
    a("v_and_b32 v2, 7, v0")
    a(f"v_add_u32 v3, s{T2}, v1")
    a("v_bfe_u32 v3, v3, 1, 3")
    a("v_xor_b32 v3, v3, v2")
    a("v_lshlrev_b32 v3, 4, v3")
    a(f"v_lshl_add_u32 v{VXS}, v1, 10, v3")
    a("v_and_b32 v3, 2, v1")
    a("v_lshlrev_b32 v3, 1, v3")
    a("v_xor_b32 v3, v3, v2")
    a("v_lshlrev_b32 v3, 4, v3")
    a("v_mul_u32_u24 v4, 3072, v1")
    a(f"v_add_u32 v{VW0}, v4, v3")
    a("v_mul_u32_u24 v4, 3584, v1")
    a(f"v_add_u32 v{VW1}, v4, v3")
    a(f"v_xor_b32 v{VW3}, 32, v{VW1}")
    for r_, sz in ((S_X, 2097152), (S_W0, 1572864), (S_W1, 1835008), (S_W3, 1835008)):
        a(f"s_mov_b32 s{r_ + 2}, {sz}")
        a(f"s_mov_b32 s{r_ + 3}, 0x00020000")
    a("s_waitcnt lgkmcnt(0)")
    for r_, p_ in ((S_X, pX), (S_W0, pWQKV), (S_W1, pG), (S_W3, pU)):
        a(f"s_mov_b64 s[{r_}:{r_ + 1}], s[{p_}:{p_ + 1}]")
    a(f"s_cmp_eq_u32 s{sISS}, 1")
    a("s_cbranch_scc1 L_nod0")
    a(dma(0))
    if "tlb" in OPT:
        a("s_branch L_nod1")
    a("L_nod0:")
    if "tlb" in OPT:
        a(f"s_and_b32 s{T0}, s{sRB}, 3")
        a(f"s_lshl2_add_u32 s{T0}, s{sW}, s{T0}")
        a(f"s_sub_u32 s{T1}, s{T0}, 4")
        a(f"s_min_u32 s{T1}, s{T1}, 10")
        a(f"s_lshl_b32 s{T1}, s{T1}, 21")
        a(f"s_add_u32 s40, s{pWS}, s{T1}")
        a(f"s_addc_u32 s41, s{pWS + 1}, 0")
        for i, p_ in ((0, pG), (1, pU), (2, pWQKV), (3, pDBG), (15, pWD), (16, pWO), (17, pOUT)):
            a(f"s_cmp_eq_u32 s{T0}, {i}")
            a(f"s_cselect_b64 s[40:41], s[{p_}:{p_ + 1}], s[40:41]")
        a("v_mov_b32 v3, 0")
        a("s_mov_b64 exec, 1")
        a(f"global_load_dword v{STV}, v3, s[40:41] offset:192 sc1")
        a("s_mov_b64 exec, -1")
        a("L_nod1:")
    a(f"v_lshlrev_b32 v{L16}, 4, v0")
    a(f"s_and_b32 s{sTT}, s{sW}, 3")
    a(f"s_lshr_b32 s{sHF}, s{sW}, 2")
    a(f"s_mov_b32 s{sCNT}, {WS_CNT}")
    srd(a, S_WS, pWS, WS_SIZE)
    a(f"s_lshl2_add_u32 s{sT}, s{sRB}, s{sTT}")
    a(f"s_mul_i32 s{sG}, s{sCB}, 3")
    a(f"s_lshl1_add_u32 s{sG}, s{sHF}, s{sG}")
    a(f"s_cmp_ge_u32 s{sG}, 32")
    a(f"s_cselect_b32 s{sVAR}, 2, 0")
    a(f"s_add_u32 s{sVAR}, s{sVAR}, s{sHF}")
    a(f"s_lshl_b32 s{sG}, s{sG}, 1")
    a(f"s_lshr_b32 s{T1}, s2, 3")
    a(f"s_and_b32 s{T2}, s{T1}, 3")
    a(f"s_lshl2_add_u32 s{tHEAD}, s{sXCD}, s{T2}")
    a(f"s_lshr_b32 s{tQB}, s{T1}, 2")
    if "pws" in OPT:
        a(f"s_lshl1_add_u32 s{sQT}, s{sTT}, s{sHF}")
        a(f"s_lshl3_add_u32 s{sQT}, s{tQB}, s{sQT}")
    else:
        a(f"s_lshl3_add_u32 s{sQT}, s{tQB}, s{sW}")
    a(f"s_lshl_b32 s{sKV}, s{tHEAD}, 16")
    a(f"s_add_u32 s{sKV}, s{sKV}, s{sLW}")
    a(f"s_add_u32 s{sKV}, s{sKV}, {32 << 16}")
    t4, t6, t7 = WF, WF + 1, WF + 2
    a("v_and_b32 v1, 31, v0")
    a("v_lshrrev_b32 v2, 5, v0")
    a("v_bfe_u32 v3, v0, 1, 3")
    a("v_xor_b32 v3, v3, v2")
    a("v_lshlrev_b32 v3, 4, v3")
    a("v_lshl_add_u32 v3, v1, 7, v3")
    a(f"s_lshl_b32 s{T0}, s{sTT}, 12")
    a(f"v_add_u32 v{XA}, s{T0}, v3")
    for i in range(1, 4):
        a(f"v_xor_b32 v{XA + i}, {32 * i}, v{XA}")
    a("v_bfe_u32 v3, v0, 2, 2")
    a(f"v_lshl_add_u32 v{t4}, v2, 3, v3")
    a(f"v_lshlrev_b32 v{t4}, 7, v{t4}")
    a(f"v_and_b32 v{t7}, 3, v0")
    a(f"v_lshl_add_u32 v{t4}, v{t7}, 3, v{t4}")
    a("v_and_b32 v3, 2, v3")
    a(f"v_bfe_u32 v{t7}, v0, 4, 1")
    a(f"v_xor_b32 v3, v3, v{t7}")
    a(f"s_and_b32 s{T0}, s{sCB}, 1")
    a(f"s_lshl1_add_u32 s{T0}, s{sHF}, s{T0}")
    for t in range(2):
        a(f"s_and_b32 s{T1}, s{T0}, 1")
        a(f"s_lshl_b32 s{T1}, s{T1}, 1")
        a(f"s_lshr_b32 s{T2}, s{T0}, 1")
        a(f"s_lshl_b32 s{T2}, s{T2}, 13")
        a(f"s_add_u32 s{T2}, s{T2}, {BR}")
        a(f"v_xor_b32 v{t6}, s{T1}, v3")
        a(f"v_lshl_add_u32 v{t6}, v{t6}, 5, v{t4}")
        a(f"v_add_u32 v{WQ + t}, s{T2}, v{t6}")
        if t == 0:
            a(f"s_add_u32 s{T0}, s{T0}, 1")
    a(f"v_lshl_add_u32 v{t4}, v{t7}, 13, v{t4}")
    a(f"v_add_u32 v{t4}, {CR}, v{t4}")
    a(f"s_lshl_b32 s{T0}, s{sHF}, 1")
    a(f"v_xor_b32 v{t6}, s{T0}, v3")
    a(f"v_lshl_add_u32 v{WC}, v{t6}, 5, v{t4}")
    a(f"v_xor_b32 v{WC + 1}, 32, v{WC}")
    a(f"v_mov_b32 v{MASK}, 0xffff0000")
    a(f"v_mov_b32 v{ONES}, 0x3f80")
    a(f"s_cmp_eq_u32 s{sISS}, 1")
    a("s_cbranch_scc1 L_side1")
    a(dma(1))
    stamp(a, 1)
    for v in range(1, 4):
        a(f"s_cmp_eq_u32 s{sVAR}, {v}")
        a(f"s_cbranch_scc1 L_p1_{v}")
    XOP, RS = XA, 22
    CL, RU, ta, tb, tc = 224, 232, 240, 241, 242
    cs_loads = [[f"s_bitcmp1_b32 s{sRB}, 1", f"s_cselect_b32 s{S_T}, s{pU}, s{pG}", f"s_cselect_b32 s{S_T + 1}, s{pU + 1}, s{pG + 1}",
                 f"s_mov_b32 s{S_T + 2}, 1835008", f"s_mov_b32 s{S_T + 3}, 0x00020000",
                 f"s_add_u32 s{T2}, s{sROT}, {CSO}", f"s_lshl2_add_u32 s{T2}, s{T2}, s{sW}", f"s_and_b32 s{T2}, s{T2}, 31",
                 f"s_mul_i32 s{T2}, s{T2}, {16 * 3584}",
                 f"s_and_b32 s{T3}, s{sRB}, 1", f"s_lshl1_add_u32 s{T3}, s{sCF}, s{T3}", f"s_lshl_b32 s{T3}, s{T3}, 7", f"s_add_u32 s{T2}, s{T2}, s{T3}",
                 f"v_lshrrev_b32 v{ta}, 3, v0", f"v_mul_u32_u24 v{ta}, 3584, v{ta}", f"v_and_b32 v{tb}, 7, v0", f"v_lshl_add_u32 v{ta}, v{tb}, 4, v{ta}",
                 f"buffer_load_dwordx4 {vr(CL, 4)}, v{ta}, {sr(S_T)}, s{T2} offen"],
                [f"s_add_u32 s{T2}, s{T2}, {8 * 3584}", f"buffer_load_dwordx4 {vr(CL + 4, 4)}, v{ta}, {sr(S_T)}, s{T2} offen"]]
    SE, DD, RV = 244, 248, 224
    sel = [f"v_and_b32 v{tb}, 15, v0", f"v_and_b32 v{tc}, 1, v0", f"v_lshlrev_b32 v{tc}, 4, v{tc}", f"v_lshlrev_b32 v{tc}, v{tc}, v{ONES}",
           f"v_lshrrev_b32 v{tb}, 1, v{tb}"]
    for i in range(4):
        sel += [[f"v_cmp_eq_u32 vcc, {i}, v{tb}", "s_nop 1", f"v_cndmask_b32 v{SE + i}, 0, v{tc}, vcc"]]
    m16 = lambda c, b_: f"v_mfma_f32_16x16x32_bf16 {vr(DD, 4)}, {vr(SE, 4)}, {vr(b_, 4)}, {c}"
    csv = {8: sel[:5], 9: sel[5:],
           10: [f"v_and_b32 v{tb}, 15, v0", f"v_lshlrev_b32 v{tb}, 5, v{tb}", f"v_lshrrev_b32 v{tc}, 4, v0", f"v_lshl_add_u32 v{tb}, v{tc}, 4, v{tb}",
               [f"s_lshl_b32 s40, s2, 12", f"s_add_u32 s40, s40, {WS_CP}", f"s_lshl_b32 s41, s{sW}, 9", "s_add_u32 s41, s41, s40"]]}
    cs_mm = [m16("0", CL), m16(vr(DD, 4), CL + 4)]
    cs_st = ["s_mov_b32 exec_hi, 0", f"buffer_store_dwordx4 {vr(DD, 4)}, v{tb}, {sr(S_WS)}, s41 offen" + (" sc1" if "csw" in OPT else ""), "s_mov_b32 exec_hi, -1"]
    cs_l2 = lambda lb: ([f"s_cmp_lg_u32 s{sW}, 0", f"s_cbranch_scc1 {lb}"] +
                        [f"buffer_load_dwordx4 {vr(RV + 4 * i, 4)}, v{L16}, {sr(S_WS)}, s40 offen offset:{1024 * i} sc1" for i in range(4)] + [f"{lb}:"])
    cs_r2 = lambda lb: ([f"s_cmp_lg_u32 s{sW}, 0", f"s_cbranch_scc1 {lb}"] +
                        [f"v_add_f32 v{RV + i}, v{RV + i}, v{RV + 8 + i}" for i in range(8)] +
                        [f"v_add_f32 v{RV + i}, v{RV + i}, v{RV + 4 + i}" for i in range(4)] +
                        [f"v_and_b32 v{ta}, 15, v0", f"v_lshrrev_b32 v{tc}, 4, v0",
                         f"v_permlane16_swap_b32 v{RV}, v{RV + 1}", f"v_permlane16_swap_b32 v{RV + 2}, v{RV + 3}",
                         f"v_add_f32 v{RV}, v{RV}, v{RV + 1}", f"v_add_f32 v{RV + 2}, v{RV + 2}, v{RV + 3}",
                         f"v_lshl_add_u32 v{ta}, v{ta}, 2, v{tc}", f"v_lshlrev_b32 v{ta}, 2, v{ta}",
                         f"v_permlane32_swap_b32 v{RV}, v{RV + 2}", f"v_add_f32 v{RV}, v{RV}, v{RV + 2}",
                         f"s_bfe_u32 s40, s{sRB}, 0x10001", "s_mul_i32 s40, s40, 28", f"s_and_b32 s41, s{sRB}, 1", "s_add_u32 s40, s40, s41",
                         f"s_lshl1_add_u32 s40, s{sCF}, s40", f"s_lshr_b32 s41, s{sRB}, 2", "s_lshl2_add_u32 s40, s40, s41",
                         "s_lshl_b32 s40, s40, 8", f"s_add_u32 s40, s40, {WS_CS}",
                         f"buffer_store_dword v{RV}, v{ta}, {sr(S_WS)}, s40 offen sc1", f"{lb}:"])
    for var in VARS:
        hf, isv, ffn = var & 1, (var >> 1) & 1, var < 4
        nt = 2 - hf
        cnt = lambda S: len(dma(S, ffn))
        a(f"L_p1_{var}:")
        if ffn and "cse" in OPT:
            a(cs_loads)
        a(f"s_waitcnt vmcnt({cnt(1) + (2 if (ffn and 'cse' in OPT) else 0)})")
        a("s_barrier")
        stamp(a, 2)
        a(rd1(0, nt, ffn))
        a(rd1(1, nt, ffn))
        bgq = dma(2, ffn)
        if ffn and "cs1" in OPT:
            bgq = cs_loads + bgq
        held = []
        sl7 = (7 % 3) * SL
        qrd = lambda h: [f"ds_read_b64_tr_b16 {vr(WF + 16 * h + 8 * q + 4 * t + 2 * t2, 2)}, v{WQ + t} offset:{sl7 + (2 * h + q) * 2048 + t2 * 512}"
                         for q in range(2) for t in range(nt) for t2 in range(2)]
        frd = lambda h: [f"ds_read_b64_tr_b16 {vr(WF + 16 * h + 8 * q + 4 * c + 2 * t2, 2)}, v{WC + c} offset:{sl7 + (2 * h + q) * 2048 + t2 * 512}"
                         for q in range(2) for c in range(2) for t2 in range(2)]
        CK = 5 if ffn else 6
        prep = [f"v_lshlrev_b32 v2, 16, v{STV}", f"v_rcp_f32 v{RS}, v2"]
        for t in range(nt):
            w = CSA + 4 * t
            prep += [f"v_add_f32 v{w}, v{w}, v{w + 1}", f"v_add_f32 v{w + 2}, v{w + 2}, v{w + 3}", f"v_add_f32 v{w + 3}, v{w}, v{w + 2}"] + split3(w, w + 3)
        for k in range(28 if ffn else 32):
            S, ks = k >> 2, k & 3
            F = fset(k, ffn)
            x = XF + 4 * k
            c0 = "0" if k == 0 else None
            big = [mfma(ACQ + 16 * t, x, F + 4 * t, c0) if isv else mfma(ACQ + 16 * t, F + 4 * t, x, c0) for t in range(nt)]
            light = not ffn or k < 8
            if not light:
                big += [mfma(ACF + 16 * c, F + 8 + 4 * c, x - 32, "0" if k == 8 else None) for c in range(2)]
            if light and k % 2 == 0 and k < 30:
                held = big
                continue
            big, held = held + big, []
            val = []
            if ks == 3:
                n = cnt(S + 2) + ({(0 if ('cse' in OPT or 'cs1' in OPT) else 1): 2}.get(S, 0) if ffn else 0)
                a(f"s_waitcnt vmcnt({n}) lgkmcnt(0)")
                if S == CK and not hf: a(cs_check(f"L_c1{var}", 0))
                if S < 7: a("s_barrier")
                if "p1b" in OPT: stamp(a, 4 + S)
                if ffn and S == 2:
                    big = cs_mm + big
                    bgq.append(cs_st)
                if ffn and S == 3 and not hf: bgq.append(cs_l2(f"L_l2{var}"))
                if ffn and S == 4 and not hf: bgq.append(cs_r2(f"L_r2{var}"))
                if S == CK - 1 and not hf:
                    bgq.append(cs_issue(f"L_i1{var}", 0))
                if S == 5 and ffn and not hf:
                    bgq.append(sig_one(f"L_sc{var}", [f"s_add_u32 s{T0}, s{sCF}, {C_CS}"]))
                if S == 5:
                    ad = [f"v_and_b32 v{VXS}, 31, v0", f"v_lshlrev_b32 v{VXS}, 2, v{VXS}", "v_lshrrev_b32 v3, 5, v0",
                          f"v_lshl_add_u32 v{VW0}, v3, 10, v{VXS}", f"s_lshl_b32 s{T2}, s{sT}, 7", f"s_add_u32 s{T2}, s{T2}, {WS_ST}"]
                    for t in range(nt):
                        ad += [f"s_add_u32 s{T3}, s{sG}, {2 * t}", f"s_lshr_b32 s{40 + t}, s{T3}, 2", f"s_lshl_b32 s{40 + t}, s{40 + t}, 11",
                               f"s_and_b32 s{T3}, s{T3}, 2", f"s_lshl_b32 s{T3}, s{T3}, 6", f"s_add_u32 s{40 + t}, s{40 + t}, s{T3}",
                               f"s_add_u32 s{40 + t}, s{40 + t}, {WS_CQ}"]
                    bgq.append(ad)
                if S == CK:
                    ld = [f"buffer_load_dword v{STV}, v{VXS}, {sr(S_WS)}, s{T2} offen sc1"]
                    for t in range(nt):
                        ld += [f"buffer_load_dword v{CSA + 4 * t + i}, v{VW0}, {sr(S_WS)}, s{40 + t} offen offset:{256 * i} sc1" for i in range(4)]
                    if isv:
                        ld += [f"s_lshl_b32 s{T3}, s{sW}, 8", f"s_add_u32 m0, s{T3}, {SCR}", f"s_add_u32 s{T2}, s{T2}, {WS_RS - WS_ST}",
                               f"buffer_load_dword v{VXS}, {sr(S_WS)}, s{T2} offen sc1 lds"]
                    bgq += [ld[:5], ld[5:]]
                if S == 6 and ffn:
                    if not hf: bgq.append(poll_issue(f"L_i2{var}", CS_MASK))
                    val = prep
                if S < 7: bgq += dma(S + 3, ffn)
                if S == 0 and ffn and "cse" not in OPT and "cs1" not in OPT: bgq += cs_loads
                if S == 5 and isv:
                    bgq.append([f"s_lshl_b32 s{T3}, s{sW}, 8", f"s_add_u32 s{T3}, s{T3}, {SCR}",
                                "v_lshrrev_b32 v3, 5, v0", "v_lshlrev_b32 v18, 4, v3", f"v_add_u32 v18, s{T3}, v18",
                                "v_bfe_u32 v23, v0, 4, 1", "v_lshlrev_b32 v23, 16, v23", "v_lshl_add_u32 v23, v3, 8, v23",
                                "v_and_b32 v3, 15, v0", "v_lshl_add_u32 v23, v3, 4, v23"])
            elif k == 30:
                a("s_waitcnt vmcnt(0) lgkmcnt(0)")
                val = prep
            else:
                a("s_waitcnt lgkmcnt(0)")
            if k == 31:
                break
            if ffn and k in csv: val = csv[k]
            left = 4 if ks == 3 else 3 - ks
            if k == 27: left = 3
            if not ffn: left = 2 if (ks == 3 and S < 6) else 1
            if ffn and k < 7: left = 2 if ks == 3 else 1
            take = -(-len(bgq) // left)
            extra, bgq = bgq[:take], bgq[take:]
            if ffn and k >= 7:
                nxt = rd1(k + 1, nt, ffn) if k < 27 else \
                    [f"ds_read_b128 {vr(XF + 4 * (28 + j), 4)}, v{XA + j} offset:{sl7}" for j in range(4)] + qrd(0)
            else:
                nxt = [] if k == 30 else rd1(k + 1, nt, ffn) + rd1(k + 2, nt, ffn)
            body = spread(big, nxt, val + [[]] * len(extra) + extra)
            a(body)
        pre = [f"v_and_b32 v{XOP}, v{MASK}, v{STV}", f"v_mov_b32 v{XOP + 3}, 0", f"v_mov_b32 v{XOP + 1}, v{XOP}", f"v_mov_b32 v{XOP + 2}, v{XOP}"]
        corr = [mfma(ACQ + 16 * t, XOP, CSA + 4 * t) if isv else mfma(ACQ + 16 * t, CSA + 4 * t, XOP) for t in range(nt)]
        post = [f"s_lshl_b32 s{T4}, s{sG}, 16", f"s_lshl_b32 s{T2}, s{sT}, 10", f"s_add_u32 s{T4}, s{T4}, s{T2}"]

        def stores(t):
            o = ACQ + 16 * t
            if isv:
                return [[f"buffer_store_dwordx4 {vr(o, 4)}, v23, {sr(S_WS)}, s{T4} offen sc1"],
                        [f"buffer_store_dwordx4 {vr(o + 4, 4)}, v23, {sr(S_WS)}, s{T4} offen offset:512 sc1", f"s_add_u32 s{T4}, s{T4}, 0x20000"]]
            return [[f"buffer_store_dwordx4 {vr(o, 4)}, v{L16}, {sr(S_WS)}, s{T4} offen sc1", f"s_add_u32 s{T4}, s{T4}, 0x10000"],
                    [f"buffer_store_dwordx4 {vr(o + 4, 4)}, v{L16}, {sr(S_WS)}, s{T4} offen sc1", f"s_add_u32 s{T4}, s{T4}, 0x10000"]]
        if not ffn:
            assert not bgq
            stamp(a, 3)
            a(big[:1] + pre + ["s_nop 1"] + big[1:nt] + corr + post + ["s_nop 7"])
            for t in range(nt):
                ac = ACQ + 16 * t
                a(f"s_cmp_lt_u32 s{sG}, {32 - 2 * t}")
                a(f"s_cselect_b32 s{T0}, {hx(f2u(QSCALE))}, 1.0")
                a(f"v_mul_f32 v2, s{T0}, v{RS}")
                a(f"v_mul_f32 v3, s{T0}, v{RS}")
                for i in range(8):
                    a(f"v_pk_mul_f32 {vr(ac + 2 * i, 2)}, {vr(ac + 2 * i, 2)}, v[2:3]")
                for i in range(8):
                    a(f"v_cvt_pk_bf16_f32 v{ac + i}, v{ac + 2 * i}, v{ac + 2 * i + 1}")
                a(stores(t))
            stamp(a, 4)
            a("s_branch L_side")
            continue
        qm = lambda h: [mfma(ACQ + 16 * t, XF + 4 * (28 + 2 * h + q), WF + 16 * h + 8 * q + 4 * t) if isv else
                        mfma(ACQ + 16 * t, WF + 16 * h + 8 * q + 4 * t, XF + 4 * (28 + 2 * h + q)) for q in range(2) for t in range(nt)]
        fm = lambda h: [mfma(ACF + 16 * c, WF + 16 * h + 8 * q + 4 * c, XF + 4 * (20 + 2 * h + q)) for q in range(2) for c in range(2)]
        half = -(-len(bgq) // 2)
        a("s_waitcnt lgkmcnt(0)")
        a(spread(qm(0), qrd(1), pre + bgq[:half]))
        a("s_waitcnt lgkmcnt(0)")
        rsv = lambda g: [f"ds_read_b128 {vr(CSA + 4 * j, 4)}, v18 offset:{(2 * g + j) * 32}" for j in range(2)]
        a(corr + (rsv(0) if isv else []))
        a(spread(qm(1), frd(0), [f"v_subrev_u32 v{WQ + c}, {CR - BR}, v{WC + c}" for c in range(2)] + bgq[half:]))
        adr = [["v_bfe_u32 v2, v0, 4, 1", "v_mul_u32_u24 v2, 28672, v2", "v_lshrrev_b32 v3, 5, v0",
                "v_lshl_add_u32 v2, v3, 9, v2", "v_and_b32 v3, 15, v0", f"v_lshl_add_u32 v{VXS}, v3, 2, v2",
                f"s_lshl_b32 s{sVAR}, s{sCF}, 11", f"s_add_u32 s{sVAR}, s{sVAR}, {WS_CS + 128 * hf}"] + post]
        if isv:
            e1, e2 = [], []
            for t in range(nt):
                ac = ACQ + 16 * t
                e1 += [f"v_mul_f32 v{ac + i}, v{ac + i}, v{CSA + i}" for i in range(8)]
                e2 += [f"v_mul_f32 v{ac + 8 + i}, v{ac + 8 + i}, v{CSA + i}" for i in range(8)]
                e2 += [f"v_cvt_pk_bf16_f32 v{ac + i}, v{ac + 2 * i}, v{ac + 2 * i + 1}" for i in range(4, 8)]
            e1 += rsv(1)
            for t in range(nt):
                ac = ACQ + 16 * t
                e1 += [f"v_cvt_pk_bf16_f32 v{ac + i}, v{ac + 2 * i}, v{ac + 2 * i + 1}" for i in range(4)]
        else:
            e = []
            for t in range(nt):
                ac = ACQ + 16 * t
                e += [[f"s_cmp_lt_u32 s{sG}, {32 - 2 * t}", f"s_cselect_b32 s{T0}, {hx(f2u(QSCALE))}, 1.0", f"v_mul_f32 v2, s{T0}, v{RS}"]]
                e += [f"v_mul_f32 v{ac + i}, v{ac + i}, v2" for i in range(16)]
                e += [f"v_cvt_pk_bf16_f32 v{ac + i}, v{ac + 2 * i}, v{ac + 2 * i + 1}" for i in range(8)]
            e1, e2 = e[:len(e) * 5 // 8], e[len(e) * 5 // 8:]
        a("s_waitcnt lgkmcnt(0)")
        u3 = spread(fm(0), frd(1), adr + e1)
        a(u3)
        a(f"s_waitcnt vmcnt({4 + nvm(u3)}) lgkmcnt(0)")
        if not hf: a(poll_check(f"L_c2{var}", 16))
        a("s_barrier")
        stamp(a, 3)
        c0l = [[f"buffer_load_dword v{r_}, v{VXS}, {sr(S_WS)}, s{sVAR} offen offset:{(i >> 1) * 64 + (i & 1) * 256} sc1"
                for i, r_ in enumerate(C0R)]]
        a(spread(fm(1), rd2(0), c0l + e2))
        for t in range(nt):
            a(stores(t))
        if var != 3:
            a("s_branch L_pass2")
    a("L_pass2:")
    if "p1b" in OPT: NOSTAMP = True
    stamp(a, 4)
    sH = sG
    a(f"s_mul_i32 s{sH}, s{sT}, 112")
    a(f"s_lshl2_add_u32 s{T0}, s{sCF}, s{sHF}")
    a(f"s_lshl1_add_u32 s{sH}, s{T0}, s{sH}")
    a(f"s_lshl_b32 s{sH}, s{sH}, 10")
    a(f"s_add_u32 s{sH}, s{sH}, {WS_H}")
    cRS, cSD, cC2, CO, QP = 22, 23, 19, 132, 140
    q = CSA

    def gelu_plain(g, off):
        u = g + 8
        R = range(8)
        return ([f"v_mul_f32 v{g + i}, v{g + i}, v{cRS}" for i in R] + [f"v_mul_f32 v{q + i}, v{g + i}, v{g + i}" for i in R] +
                [f"v_fmaak_f32 v{q + i}, v{q + i}, v{cC2}, {hx(f2u(GC1))}" for i in R] + [f"v_mul_f32 v{q + i}, v{q + i}, v{g + i}" for i in R] +
                [f"v_exp_f32 v{q + i}, v{q + i}" for i in R] + [f"v_mul_f32 v{g + i}, v{g + i}, v{u + i}" for i in R] +
                [f"v_fma_f32 v{q + i}, v{q + i}, v{cSD}, v{cSD}" for i in R] + [f"v_rcp_f32 v{q + i}, v{q + i}" for i in R] +
                [f"v_mul_f32 v{g + i}, v{g + i}, v{q + i}" for i in R] +
                [f"v_cvt_pk_bf16_f32 v{g + i}, v{g + 2 * i}, v{g + 2 * i + 1}" for i in range(4)] +
                [f"buffer_store_dwordx4 {vr(g, 4)}, v{L16}, {sr(S_WS)}, s{sH} offen offset:{off} sc1"])
    vq = []
    wt = lambda at: sum(2 if (x.startswith("v_exp") or x.startswith("v_rcp")) else 1 for x in ([at] if isinstance(at, str) else at))
    cs_ld = lambda dst, pr: [[f"buffer_load_dword v{dst + 4 * c + i}, v{VXS}, {sr(S_WS)}, s{sVAR} offen offset:{1024 * pr + c * 64 + i * 256} sc1"
                              for c in range(2) for i in range(2)]]
    ts = tr_setup()
    d = dma(10)
    bgq, hist = [ts[0], d[0], ts[1], d[1], d[2], d[3]], []
    after = lambda key: nvm([l for l in hist[len(hist) - hist[::-1].index(key):] if "s62" not in l])
    for v in range(20):
        S, us = 8 + (v >> 2), v & 3
        F = WF + 16 * (v & 1)
        acc, k0 = (ACF, 24 + 2 * v) if v < 4 else (ACQ, 2 * (v - 4))
        big = [mfma(acc + 16 * c, F + 8 * qq + 4 * c, XF + 4 * (k0 + qq), "0" if (v == 4 and qq == 0) else None)
               for qq in range(2) for c in range(2)]
        if us == 3:
            if S == 8:
                a([f"s_cmp_eq_u32 s{sHF}, 0", "s_cbranch_scc1 L_w8", "s_waitcnt vmcnt(6)", "L_w8:", "s_waitcnt vmcnt(8) lgkmcnt(0)"])
            elif S < 12:
                a(f"s_waitcnt vmcnt({after(dma(S + 1)[-1][0]) - 1}) lgkmcnt(0)")
            elif CHK == 11:
                a(f"s_waitcnt vmcnt({after(kv(0)[1][1]) - 1}) lgkmcnt(0)")
            else:
                a("s_waitcnt lgkmcnt(0)")
            if S == CHK:
                a([f"s_cmp_lg_u32 s{sW}, 0", "s_cbranch_scc1 L_w10", f"s_waitcnt vmcnt({after('L_pq:')})", "L_w10:"])
                a(poll_check("L_cq", 32, QP, 4))
            a("s_barrier")
            if "p2b" in OPT: stamp(a, S - 2)
            if S == 8:
                bgq += tr_dma() + dma(11)
                for c in range(2):
                    w = CSA + 4 * c
                    vq += [f"v_add_f32 v{w + 3}, v{C0R[2 * c]}, v{C0R[2 * c + 1]}"] + split3(w, w + 3)
                vq += ["UNIT", mfma(ACF, CSA, XOP), mfma(ACF + 16, CSA + 4, XOP),
                       f"v_lshlrev_b32 v{cSD}, 16, v{STV}", f"v_mov_b32 v{cC2}, {hx(f2u(GC2))}", "UNIT"]
                vq += (gelu_plain(ACF, 0) if NBG > 0 else []) + (gelu_plain(ACF + 16, 1024) if NBG > 1 else [])
            if S == 9:
                bgq += [sig_qkv("L_sq")] + cs_ld(CO, 1) + dma(12)
                bgq += [tr_addr(TRA, 2, 3) + [f"s_lshl_b32 s{T2}, s{sLW}, 1", f"v_add_u32 v{TRA}, s{T2}, v{TRA}", f"v_xor_b32 v{TRA + 1}, 32, v{TRA}"]]
            if S == 10:
                bgq += [tr_rd()]
            if S == CHK - 1:
                bgq += [[]] * (2 - len(bgq)) + [poll_issue("L_pq", QKV_MASK, QP)]
            if S == 11 and CHK == 11:
                bgq += kv(0) + kv(1) + [q_load()] + kv(2)
            if S == 12:
                bgq += kv(3) if CHK == 11 else kv(0) + [q_load()] + kv(1)
                if "prio" in OPT:
                    a("s_setprio 1")
                    a(lead(2))
        else:
            a("s_waitcnt lgkmcnt(0)")
        if v == 16:
            for c in range(2):
                w = CO + 4 * c
                vq += [f"v_add_f32 v{w + 3}, v{w}, v{w + 1}"] + split3(w, w + 3) + [["s_nop 1", mfma(ACQ + 16 * c, w, XOP)]]
            vq += p2_init_v()
        left = 1 if v == 19 else (4 if us == 3 else 3 - us)
        take = -(-len(bgq) // left)
        extra, bgq = bgq[:take], bgq[take:]
        val, budget = [], (1000 if v == 19 else VBUD)
        while vq and vq[0] != "UNIT" and budget > 0:
            budget -= wt(vq[0])
            val.append(vq.pop(0))
        if vq and vq[0] == "UNIT":
            vq.pop(0)
        body = spread(big, rd2(v + 1) if v < 19 else [], val[:len(val) // 2] + extra + val[len(val) // 2:])
        hist += body
        a(body)
    assert not bgq and not vq
    if "p2b" in OPT: NOSTAMP = True
    stamp(a, 5)
    RS2, SD2 = 240, 242
    a(f"v_mov_b32 v{RS2}, v{cRS}")
    a(f"v_mov_b32 v{RS2 + 1}, v{cRS}")
    a(f"v_mov_b32 v{SD2}, v{cSD}")
    a(f"v_mov_b32 v{SD2 + 1}, v{cSD}")
    a(f"v_mov_b32 v248, v{cC2}")
    a(f"v_mov_b32 v249, v{cC2}")
    a(f"v_mov_b32 v250, {hx(f2u(GC1))}")
    a("v_mov_b32 v251, v250")
    a("s_nop 5")
    for c in range(NBG - 2, 2):
        g = ACQ + 16 * c
        u = g + 8
        q = 32 + (c & 1) * 8
        o = 56 + c * 4
        if c == 0:
            a(f"s_add_u32 s{sH}, s{sH}, 4096")
        for i in range(4):
            a(f"v_pk_mul_f32 {vr(g + 2 * i, 2)}, {vr(g + 2 * i, 2)}, {vr(RS2, 2)}")
        for i in range(4):
            a(f"v_pk_mul_f32 {vr(q + 2 * i, 2)}, {vr(g + 2 * i, 2)}, {vr(g + 2 * i, 2)}")
        for i in range(4):
            a(f"v_pk_fma_f32 {vr(q + 2 * i, 2)}, {vr(q + 2 * i, 2)}, v[248:249], v[250:251]")
        for i in range(4):
            a(f"v_pk_mul_f32 {vr(q + 2 * i, 2)}, {vr(q + 2 * i, 2)}, {vr(g + 2 * i, 2)}")
        for i in range(8):
            a(f"v_exp_f32 v{q + i}, v{q + i}")
        for i in range(4):
            a(f"v_pk_mul_f32 {vr(g + 2 * i, 2)}, {vr(g + 2 * i, 2)}, {vr(u + 2 * i, 2)}")
        for i in range(4):
            a(f"v_pk_fma_f32 {vr(q + 2 * i, 2)}, {vr(q + 2 * i, 2)}, {vr(SD2, 2)}, {vr(SD2, 2)}")
        for i in range(8):
            a(f"v_rcp_f32 v{q + i}, v{q + i}")
        a("s_nop 0")
        for i in range(4):
            a(f"v_pk_mul_f32 {vr(g + 2 * i, 2)}, {vr(g + 2 * i, 2)}, {vr(q + 2 * i, 2)}")
        for i in range(4):
            a(f"v_cvt_pk_bf16_f32 v{o + i}, v{g + 2 * i}, v{g + 2 * i + 1}")
        a(f"buffer_store_dwordx4 {vr(o, 4)}, v{L16}, {sr(S_WS)}, s{sH} offen offset:{(c & 1) * 1024} sc1")
        if CHK == 12 and c >= 0:
            a(kv(2 + c))
        if c == 0:
            a(lead(0))
    a(tr_st())
    a(f"s_waitcnt vmcnt({after(q_load()[-1]) + (4 if CHK == 11 else 8) + 2 - NBG})")
    if CHK == 12:
        a("s_barrier")


VARS = (0, 4, 5, 1, 2, 3)
VBUD = 15
NBG = 2
OSL = 2
CSO = 2
WK = 8
C0R = (9, 19, 21, 1)
SIGU, CHK = 7, 11


def gen_side(a):
    a("L_side:")
    global NOSTAMP
    NOSTAMP = "side" not in OPT
    a(p2_init_v())
    a("s_waitcnt vmcnt(0)")
    a("s_barrier")
    a(sig_qkv("L_sq2"))
    stamp(a, 10)
    a(sig_one("L_h_ns2", [f"s_add_u32 s{T0}, s{sRB}, {C_H}"]))
    a(poll_issue("L_pq2", QKV_MASK))
    a("s_waitcnt vmcnt(0)")
    a(poll_check("L_cq2", 32, POLL, 6))
    a("s_barrier")
    a(kv(0))
    a(q_load())
    a(kv(1))
    a("s_waitcnt vmcnt(2)")
    a("s_barrier")
    a(kv(2))
    a(kv(3))
    if "prio" in OPT:
        a("s_setprio 1")
        a(lead(2))
    a("s_branch L_p2")
    a("L_side1:")
    a([f"s_cmp_lg_u32 s{sW}, 7", "s_cbranch_scc1 L_nozero", f"s_mul_i32 s{T0}, s2, 1536", f"s_add_u32 s{T0}, s{T0}, s{sCNT}",
       "v_mov_b32 v1, 0", "v_lshlrev_b32 v2, 7, v0", "s_mov_b64 exec, 0xfff",
       f"buffer_store_dword v1, v2, {sr(S_WS)}, s{T0} offen sc1", "s_mov_b64 exec, -1", "L_nozero:"])
    XW, QW, CW = 32, 64, 128
    LO, HI, ON = 18, 19, 22
    a("v_lshrrev_b32 v1, 3, v0")
    a("v_and_b32 v2, 7, v0")
    a("v_lshlrev_b32 v2, 4, v2")
    a("v_lshl_add_u32 v3, v1, 10, v2")
    a(f"s_lshl3_add_u32 s{tVM + 1}, s2, s{sW}")
    a(f"s_lshl_b32 s{T0}, s{tVM + 1}, 13")
    for q in range(8):
        a(f"buffer_load_dwordx4 {vr(XW + 4 * q, 4)}, v3, {sr(S_X)}, s{T0} offen offset:{128 * q}")
    sU = sVAR
    a(f"s_and_b32 s{sU}, s{sRB}, 3")
    a(f"s_lshl3_add_u32 s{sU}, s{sU}, s{sW}")
    a(f"s_sub_u32 s{T1}, 31, s{sU}")
    a(f"s_lshl3_add_u32 s41, s{T1}, s{sXCD}")
    a("s_lshl_b32 s41, s41, 8")
    a(f"s_add_u32 s41, s41, {WS_CQ}")
    a(f"s_lshl_b32 s{T0}, s{T1}, 7")
    a(f"s_mul_i32 s{T2}, s{sXCD}, {64 * 3072}")
    a(f"s_add_u32 s{T0}, s{T0}, s{T2}")
    a(f"s_cmp_lt_u32 s{T1}, 24")
    a(f"s_cselect_b32 s{T0}, s{T0}, {OOB}")
    a(f"s_cselect_b32 s41, s41, {OOB}")
    a("v_mul_u32_u24 v3, 3072, v1")
    a("v_add_u32 v3, v3, v2")
    for q in range(8):
        a(f"buffer_load_dwordx4 {vr(QW + 4 * q, 4)}, v3, {sr(S_W0)}, s{T0} offen")
        if q != 7:
            a(f"s_add_u32 s{T0}, s{T0}, {8 * 3072}")
    a(f"v_mov_b32 v{LO}, 0x00003f80")
    a(f"v_mov_b32 v{HI}, 0x3f800000")
    a(f"v_mov_b32 v{ON}, 0x3f803f80")
    RU = 96
    for i in range(0, 28, 2):
        a(f"v_mov_b64 v[{RU + i}:{RU + i + 1}], 0")
    a(["v_and_b32 v2, 8, v0", "v_cmp_eq_u32 vcc, 0, v2", f"v_and_b32 v{POLL}, 7, v0", f"v_lshlrev_b32 v{POLL}, 3, v{POLL}",
       "v_lshrrev_b32 v3, 4, v0", f"v_add_u32 v{POLL}, v{POLL}, v3", "v_lshrrev_b32 v2, 1, v2", f"v_add_u32 v{POLL}, v{POLL}, v2",
       f"v_lshlrev_b32 v{POLL}, 2, v{POLL}"])
    stamp(a, 8)
    m, v_ = RU + 24, RU + 25
    for q in range(8):
        a(f"s_waitcnt vmcnt({15 - q})")
        for i in range(4):
            a(f"v_dot2c_f32_bf16 v{m + 2 * (i & 1)}, v{XW + 4 * q + i}, v{ON}")
            a(f"v_dot2c_f32_bf16 v{v_ + 2 * (i & 1)}, v{XW + 4 * q + i}, v{XW + 4 * q + i}")
    a("s_nop 2")
    a(f"v_add_f32 v{m}, v{m}, v{m + 2}")
    a(f"v_add_f32 v{v_}, v{v_}, v{v_ + 2}")
    for md in ("quad_perm:[1,0,3,2]", "quad_perm:[2,3,0,1]", "row_half_mirror"):
        a("s_nop 0")
        a(f"v_add_f32_dpp v{m}, v{m}, v{m} {md} row_mask:0xf bank_mask:0xf")
        a(f"v_add_f32_dpp v{v_}, v{v_}, v{v_} {md} row_mask:0xf bank_mask:0xf")
    a([f"v_mul_f32 v{m}, {hx(f2u(-1.0 / 512))}, v{m}", f"v_mul_f32 v{v_}, {hx(f2u(1.0 / 512))}, v{v_}",
       f"v_fma_f32 v{v_}, -v{m}, v{m}, v{v_}", f"v_max_f32 v{v_}, 0, v{v_}",
       f"v_cvt_pk_bf16_f32 v{v_}, v{v_}, v{v_}", f"v_and_b32 v{v_}, v{MASK}, v{v_}",
       f"v_add_f32 v{v_}, {hx(f2u(1e-5))}, v{v_}",
       f"v_cvt_pk_bf16_f32 v{v_}, v{v_}, v{v_}", f"v_and_b32 v{v_}, v{MASK}, v{v_}",
       f"v_sqrt_f32 v{v_}, v{v_}", "v_lshlrev_b32 v1, 2, v1",
       f"v_cvt_pk_bf16_f32 v{m}, v{v_}, v{m}",
       f"v_lshlrev_b32 v{v_}, 16, v{m}", f"v_rcp_f32 v{v_}, v{v_}",
       f"s_lshl_b32 s{T0}, s{tVM + 1}, 5", f"s_add_u32 s{T0}, s{T0}, {WS_ST}", f"s_add_u32 s{T1}, s{T0}, {WS_RS - WS_ST}",
       f"s_mov_b32 exec_lo, 0x01010101", "s_mov_b32 exec_hi, 0x01010101",
       f"buffer_store_dword v{m}, v1, {sr(S_WS)}, s{T0} offen sc1",
       f"buffer_store_dword v{v_}, v1, {sr(S_WS)}, s{T1} offen sc1", "s_mov_b64 exec, -1"])

    def colsum(src, n, acc, behind):
        for q in range(n):
            a(f"s_waitcnt vmcnt({n - 1 - q + behind})")
            for i in range(4):
                a(f"v_dot2c_f32_bf16 v{acc + 2 * i}, v{src + 4 * q + i}, v{LO}")
                a(f"v_dot2c_f32_bf16 v{acc + 2 * i + 1}, v{src + 4 * q + i}, v{HI}")
        a("s_nop 2")
        for i in range(4):
            a(f"v_permlane16_swap_b32 v{acc + 2 * i}, v{acc + 2 * i + 1}")
        for i in range(4):
            a(f"v_add_f32 v{acc + 2 * i}, v{acc + 2 * i}, v{acc + 2 * i + 1}")
        a(["s_nop 1", f"v_permlane32_swap_b32 v{acc}, v{acc + 2}", f"v_permlane32_swap_b32 v{acc + 4}, v{acc + 6}",
           f"v_add_f32 v{acc}, v{acc}, v{acc + 2}", f"v_add_f32 v{acc + 4}, v{acc + 4}, v{acc + 6}", "s_nop 1",
           f"v_add_f32_dpp v{acc}, v{acc}, v{acc} row_ror:8 row_mask:0xf bank_mask:0xf",
           f"v_add_f32_dpp v{acc + 4}, v{acc + 4}, v{acc + 4} row_ror:8 row_mask:0xf bank_mask:0xf",
           f"v_cndmask_b32 v{acc + 1}, v{acc + 4}, v{acc}, vcc"])
    colsum(QW, 8, RU, 2)
    a(f"buffer_store_dword v{RU + 1}, v{POLL}, {sr(S_WS)}, s41 offen sc1")
    a(dma(0, False))
    a("s_waitcnt vmcnt(4)")
    a("s_barrier")
    a(cs_signal("L_scs0", 0))
    stamp(a, 12)
    a(dma(1, False))
    stamp(a, 9)
    a(f"s_cmp_eq_u32 s{sHF}, 0")
    a("s_cbranch_scc1 L_p1_4")
    a("s_branch L_p1_5")


def att_step(i, ex=None, first=False):
    ex = ex or {}
    Sc, Sn = (S0, S1) if i % 2 == 0 else (S1, S0)
    Kn = K_ + 4 * ((i + 1) % 2)
    Vc = V_ + 8 * (i % 4)
    Vp = V_ + 8 * ((i - 1) % 4)
    e = lambda k: f"v_exp_f32 v{Sc + k}, v{Sc + k}"
    c = lambda k: f"v_cvt_pk_bf16_f32 v{P_ + k}, v{Sc + 2 * k}, v{Sc + 2 * k + 1}"
    r = [mfma(Sn, Kn, Q_, NM),
         f"ds_read_b128 {vr(Kn, 4)}, v{AK} offset:{(i + 3) * 2048}"]
    r += ex.get("qk", [])
    r += [e(0), e(1), e(2), e(3)]
    if not first:
        r.append(mfma(O_, Vp + 4, P_ + 4))
    if i % 2 == 0:
        r.append(f"s_mov_b64 exec, s[{tVM}:{tVM + 1}]")
        for d in (2, 3):
            vb = V_ + 8 * ((i + d) % 4)
            r.append(f"ds_read_b128 {vr(vb, 4)}, v{AV} offset:{(i + d) * 2048}")
            r.append(f"ds_read_b128 {vr(vb + 4, 4)}, v{AV} offset:{(i + d) * 2048 + 512}")
        r.append("s_mov_b64 exec, -1")
    r += ex.get("pv1", [])
    if "G2" in ex:
        r += [c(0), e(4), e(5), c(1)]
        r += [ex["G1"]] + ex.get("g1", [])
        r += [e(6), e(7), e(8), c(2), c(3), e(9)]
        r += ["s_nop 0", mfma(O_, Vc, P_)]
        if i % 2 == 1: r.append("s_waitcnt lgkmcnt(0)")
        r += ex.get("pv0", [])
        r += [e(10), e(11), c(4), e(12), c(5)]
        r += [ex["G2"]] + ex.get("g2", [])
        r += [e(13), e(14), e(15), c(6), c(7)]
    else:
        r += [c(0), e(4), e(5), c(1), e(6), e(7)]
        if "G1" in ex:
            r += [ex["G1"]]
        r += ex.get("g1", [])
        r += [e(8), c(2), c(3), e(9), e(10), e(11)]
        r += ex.get("prepv0", [])
        r.append(mfma(O_, Vc, P_, "0" if first else None))
        if i % 2 == 1: r.append("s_waitcnt lgkmcnt(0)")
        r += ex.get("pv0", [])
        r += [c(4), e(12), e(13), c(5), e(14), e(15), c(6), c(7)]
    r += ex.get("end", [])
    return r


def ring_loads(r):
    b = RING + 16 * r
    return [f"buffer_load_dwordx4 {vr(b, 4)}, v{A16}, {sr(R_H0)}, s{tFH} offen sc1",
            f"buffer_load_dwordx4 {vr(b + 4, 4)}, v{A16}, {sr(R_H1)}, s{tFH} offen sc1",
            f"buffer_load_dwordx4 {vr(b + 8, 4)}, v{A16}, {sr(R_WT)}, s{tFW} offen sc1",
            f"buffer_load_dwordx4 {vr(b + 12, 4)}, v{A16}, {sr(R_WT)}, s{tFW} offen offset:1024 sc1",
            f"s_add_u32 s{tFH}, s{tFH}, 1024",
            f"s_add_u32 s{tFW}, s{tFW}, 2048"]


def gm(r, n):
    b = RING + 16 * r
    return mfma(G_ + 16 * n, b + 8 + 4 * (n & 1), b + 4 * (n >> 1))


_pl = [0]
PC = (2, 6)
PD = 7
PG = 2


def lead(p, cond=None):
    if "prio" not in OPT:
        return []
    _pl[0] += 1
    lb = f"L_pr{_pl[0]}"
    c = [f"s_cmp_lt_u32 s{sW}, 4"] if cond is None else cond
    return c + [f"s_cbranch_scc0 {lb}", f"s_setprio {p}", f"{lb}:"]


def recentre(ex, i, at):
    if i == at:
        ex["prepv0"] = [f"v_frexp_exp_i32_f32 v4, v{O_ + 8}"]
        ex["end"] = [f"v_add_u32 v4, {int(MAXOFF) - 1}, v4", "v_max_i32 v4, 0, v4", "v_cvt_f32_i32 v2, v4", f"v_sub_f32 v2, v{NM}, v2",
                     "v_sub_u32 v4, 0, v4", "v_mov_b32 v3, v2"] + [f"v_mov_b64 v[{NM + j}:{NM + j + 1}], v[2:3]" for j in range(0, 16, 2)] + \
                    ["s_nop 1"] + ex.get("end", [])
    if i == at + 2:
        ex["prepv0"] = [f"v_ldexp_f32 v{O_ + j}, v{O_ + j}, v4" for j in range(9)] + ["s_nop 1"]


def adv(a):
    a(f"v_add_u32 v{AK}, 0x4000, v{AK}")
    a(f"v_add_u32 v{AV}, 0x4000, v{AV}")


def gen_p2(a):
    a("L_p2:")
    if ENC == 99:
        a(["s_lshr_b32 s76, s2, 3", f"s_lshl3_add_u32 s76, s76, s{sW}", "s_cmp_lg_u32 s76, 32", "s_cbranch_scc1 L_nosk",
           "s_not_b32 s76, s80", "v_mov_b32 v1, 0", "v_mov_b32 v2, s76", "s_mov_b64 exec, 1",
           f"global_atomic_umax v1, v2, s[{pDBG}:{pDBG + 1}] offset:240 sc1", "s_mov_b64 exec, -1", "L_nosk:"])
    stamp(a, 6)
    a(f"v_mov_b32 v{A16}, v{L16}")
    a(f"v_mov_b32 v{AK}, v{L16}")
    a("v_lshrrev_b32 v2, 5, v0")
    a("v_and_b32 v3, 15, v0")
    a("v_lshlrev_b32 v3, 4, v3")
    a("v_lshl_add_u32 v3, v2, 8, v3")
    a(f"v_add_u32 v{AV}, 1024, v3")
    a(f"s_mov_b32 s{tVM}, 0x0000ffff")
    a(f"s_mov_b32 s{tVM + 1}, 0x0000ffff")
    a(f"ds_read_b128 {vr(K_, 4)}, v{AK}")
    a(f"ds_read_b128 {vr(K_ + 4, 4)}, v{AK} offset:2048")
    a(f"s_mov_b64 exec, s[{tVM}:{tVM + 1}]")
    for d in range(2):
        a(f"ds_read_b128 {vr(V_ + 8 * d, 4)}, v{AV} offset:{d * 2048}")
        a(f"ds_read_b128 {vr(V_ + 8 * d + 4, 4)}, v{AV} offset:{d * 2048 + 512}")
    a("s_mov_b64 exec, -1")
    a(f"s_lshr_b32 s{T0}, s{sW}, 2")
    a(f"s_lshl1_add_u32 s{tTT}, s{tHEAD}, s{T0}")
    a(f"s_lshl_b32 s{T0}, s{tTT}, 15")
    a(f"s_lshl_b32 s{T1}, s{tQB}, 7")
    a(f"s_add_u32 s{T0}, s{T0}, s{T1}")
    a(f"s_and_b32 s{T1}, s{sW}, 3")
    if "coal" in OPT:
        a(f"s_lshl_b32 s{T1}, s{T1}, 13")
        a(f"s_add_u32 s{T0}, s{T0}, s{T1}")
        a("v_lshrrev_b32 v1, 3, v0")
        a("v_lshlrev_b32 v1, 10, v1")
        a("v_and_b32 v2, 7, v0")
        a("v_lshl_add_u32 v1, v2, 4, v1")
    else:
        a(f"s_lshl4_add_u32 s{T0}, s{T1}, s{T0}")
        a("v_and_b32 v1, 31, v0")
        a("v_lshlrev_b32 v1, 10, v1")
        a("v_lshl_add_u32 v1, v2, 6, v1")
    a(f"v_add_u32 v{AOUT}, s{T0}, v1")
    a("s_waitcnt lgkmcnt(4)")
    a(mfma(S0, K_, Q_, "0"))
    a(mfma(S1, K_ + 4, Q_, "0"))
    a(f"s_mul_i32 s{T0}, s{tHEAD}, {224 * 1024}")
    a(f"s_add_u32 s{T0}, s{T0}, {WS_H}")
    a(f"s_add_u32 s{R_H0}, s{pWS}, s{T0}")
    a(f"s_addc_u32 s{R_H0 + 1}, s{pWS + 1}, 0")
    a(f"s_add_u32 s{R_H1}, s{R_H0}, {112 * 1024}")
    a(f"s_addc_u32 s{R_H1 + 1}, s{R_H0 + 1}, 0")
    a(f"s_mul_i32 s{tFH}, s{sW}, {14 * 1024}")
    a(f"s_add_u32 s{R_H0 + 2}, s{tFH}, {14 * 1024}")
    a(f"s_mov_b32 s{R_H1 + 2}, s{R_H0 + 2}")
    a(f"s_mul_i32 s{T0}, s{tQB}, {144 * 2048}")
    a(f"s_add_u32 s{T0}, s{T0}, {WS_WT}")
    a(f"s_add_u32 s{R_WT}, s{pWS}, s{T0}")
    a(f"s_addc_u32 s{R_WT + 1}, s{pWS + 1}, 0")
    a(f"s_lshl_b32 s{tFW}, s{tFH}, 1")
    a(f"s_lshl_b32 s{R_WT + 2}, s{R_H0 + 2}, 1")
    a(f"v_max3_f32 v1, v{S0}, v{S0 + 1}, v{S0 + 2}")
    for i in range(3, 31, 2):
        a(f"v_max3_f32 v1, v1, v{S0 + i}, v{S0 + i + 1}")
    a(f"v_max_f32 v1, v1, v{S0 + 31}")
    a("v_mov_b32 v2, v1")
    a("s_nop 1")
    a("v_permlane32_swap_b32 v1, v2")
    a("v_max_f32 v1, v1, v2")
    a("v_floor_f32 v1, v1")
    a(f"v_sub_f32 v2, {hx(f2u(-MAXOFF))}, v1")
    a("v_mov_b32 v3, v2")
    for i in range(0, 16, 2):
        a(f"v_mov_b64 v[{NM + i}:{NM + i + 1}], v[2:3]")
    a("s_nop 1")
    a(mfma(S0, K_, Q_, NM))
    a(f"ds_read_b128 {vr(K_, 4)}, v{AK} offset:4096")
    srd(a, R_OUT, pOUT, 2097152)
    a(f"s_lshl_b32 s{T0}, s{sW}, 11")
    a(f"v_add_u32 v{AW}, s{T0}, v{A16}")
    a(f"v_add_u32 v{AW + 1}, 0x10000, v{AW}")
    a(f"v_add_u32 v{AW + 2}, 0x20000, v{AW}")
    a("s_waitcnt lgkmcnt(0)")
    a("s_nop 1")
    a(lead(2))
    stamp(a, 7)
    global NOSTAMP
    if "side" in OPT: NOSTAMP = True
    for i in range(8):
        ex = {}
        if i == 4:
            d1, d2 = (stampl(1), stampl(2)) if "p3b" in OPT else ([], [])
            ex["end"] = d1 + ["s_waitcnt vmcnt(0)", "s_barrier"] + d2 + sig_one("L_h_ns", [f"s_add_u32 s{T0}, s{sRB}, {C_H}"], True) + lead(2)
        if i == 3:
            ex["pv0"] = lead(0)
        if i >= 5:
            ex["pv1"], ex["pv0"] = kv(i - 1, A16)
        if "rc0" in OPT: recentre(ex, i, 5)
        a(att_step(i, ex, first=(i == 0)))
    adv(a)
    for i in range(8):
        ex = {}
        if i == 0:
            ex["pv1"], ex["pv0"] = kv(7, A16)
            ex["qk"] = [f"v_mov_b64 v[{RING}:{RING + 1}], 0", f"v_mov_b64 v[{RING + 2}:{RING + 3}], 0"]
        if i < 4:
            ex["G1"] = mfma(G_ + 16 * i, RING, RING, "0")
        if i == 3:
            ex["pv0"] = poll_issue("L_h_np", H_MASK, 7) + lead(0)
        if i == 4:
            d1, d2 = (stampl(3), stampl(4)) if "p3b" in OPT else ([], [])
            ex["end"] = d1 + ["s_waitcnt vmcnt(0)"] + poll_check("L_ch", 16, 7, 16) + ["s_barrier"] + d2 + lead(2)
        if i in (5, 6, 7):
            l = ring_loads(i - 5)
            ex["qk"] = l[0:1]
            ex["pv1"] = l[1:3]
            ex["pv0"] = l[3:6]
        if "rc1" in OPT: recentre(ex, i, 5)
        if "rc2" in OPT: recentre(ex, i, 0)
        a(att_step(i, ex))
    stamp(a, 8)
    a(f"s_mov_b32 s{tIT}, 5")
    a(f"s_lshr_b32 s{sG}, s{sW}, 2")
    a(f"s_lshl_b32 s{sG}, s{sG}, 4")
    a(f"s_add_u32 s{sG}, s{sG}, {PC[0]}")
    a("L_loop:")
    adv(a)
    plan = [[(0, 0)], [(0, 1), (0, 2)], [(0, 3)], [(1, 0), (1, 1)], [(1, 2)], [(1, 3), (2, 0)], [(2, 1)], [(2, 2), (2, 3)]]
    for i in range(8):
        ex = {}
        ex["G1"] = gm(*plan[i][0])
        if len(plan[i]) > 1:
            ex["G2"] = gm(*plan[i][1])
        if i == 0: ex["qk"] = ["s_waitcnt vmcnt(8)"]
        if i == PC[1]: ex["end"] = lead(0, [f"s_cmp_eq_u32 s{tIT}, s{sG}"])
        if i == 2:
            l = ring_loads(0)
            ex["g1"] = l[0:2]
            ex["pv0"] = l[2:6]
        if i == 3: ex["pv1"] = ["s_waitcnt vmcnt(8)"]
        if i == 5:
            l = ring_loads(1)
            ex["g1"] = l[0:2]
            ex["pv0"] = l[2:6] + ["s_waitcnt vmcnt(8)"]
        if i == 7:
            ex["g2"] = ring_loads(2)
        a(att_step(i, ex))
    a(f"s_sub_u32 s{tIT}, s{tIT}, 1")
    a(f"s_cmp_lg_u32 s{tIT}, 0")
    a("s_cbranch_scc1 L_loop")
    adv(a)
    a(f"s_and_b32 s{tFW}, s{sW}, 3")
    a(f"s_lshl_b32 s{tFW}, s{tFW}, 14")
    a(f"s_add_u32 s{tFW}, s{tFW}, {112 * 2048}")
    a(f"s_mov_b32 s{R_WT + 2}, {144 * 2048}")
    if "p3b" in OPT: stamp(a, 5)
    a("s_barrier")
    if "p3b" in OPT: stamp(a, 6)
    a(lead(2))

    def pw(o):
        base, off = (AW, o * 16384) if o < 4 else ((AW + 1, (o - 4) * 16384) if o < 6 else (AW + 2, (o - 6) * 16384))
        if "coal" in OPT:
            base, off = (AW, o * 16448) if o < 4 else ((AW + 1, o * 16448 - 65536) if o < 7 else (AW + 2, 192))
        return [f"ds_write_b128 v{base}, {vr(G_ + 8 * o, 4)} offset:{off}",
                f"ds_write_b128 v{base}, {vr(G_ + 8 * o + 4, 4)} offset:{off + 1024}"]

    XV = 244
    wreg = lambda i: RING + 4 * i if i < 12 else NM + 4 * (i - 12)

    def wol(g):
        return [f"buffer_load_dwordx4 {vr(wreg(4 * g + q), 4)}, v{A16}, {sr(R_WT)}, s{tFW} offen offset:{q * 1024} sc1" for q in range(4)] + \
               [f"s_add_u32 s{tFW}, s{tFW}, 4096"]
    for i in range(8):
        ex = {}
        if i == 0: ex["pv0"] = [f"buffer_load_dwordx4 {vr(XV, 4)}, v{AOUT}, {sr(S_X)}, 0 offen"]
        if i in (1, 3, 5): ex["pv1"], ex["g1"] = wol(i // 2)[:1], wol(i // 2)[1:2]
        if i in (2, 4, 6): ex["g1"], ex["pv0"] = wol(i // 2 - 1)[2:3], wol(i // 2 - 1)[3:]
        if i == PD: ex["end"] = lead(0)
        a(att_step(i, ex))
    a("s_nop 1")
    a(mfma(O_, V_ + 24 + 4, P_ + 4))
    a("s_nop 1")
    a(f"s_lshl_b32 s{T0}, s{sQT}, 5")
    a(f"s_add_u32 s{T0}, s{T0}, s{tHEAD}")
    a(f"s_lshl_b32 s{T0}, s{T0}, 10")
    a(f"s_add_u32 s{T3}, s{T0}, {WS_O}")
    a(f"v_mov_b32 v2, {hx(f2u(2.0 ** 120))}")
    a(f"v_mov_b32 v3, {hx(f2u(2.0 ** -(MAXOFF + 4)))}")
    a("s_waitcnt lgkmcnt(0)")
    a("s_nop 3")
    stamp(a, 9)
    a(f"v_add_f32 v1, |v{O_}|, |v{O_ + 1}|")
    for i in range(2, 8):
        a(f"v_add_f32 v1, v1, |v{O_ + i}|")
    a(f"v_cmp_lt_f32 s[40:41], v{O_ + 8}, v2")
    a("v_cmp_lt_f32 s[42:43], v1, v2")
    a(f"v_cmp_le_f32 s[50:51], 0.5, v{O_ + 8}")
    a("v_cmp_le_f32 vcc, v3, v1")
    a("s_or_b64 s[50:51], s[50:51], vcc")
    a("s_and_b64 s[40:41], s[40:41], s[42:43]")
    a("s_and_b64 s[40:41], s[40:41], s[50:51]")
    a("s_cmp_eq_u64 s[40:41], -1")
    a("s_cbranch_scc0 L_fallback")
    a("L_norm:")
    a(f"v_rcp_f32 v2, v{O_ + 8}")
    a("s_nop 0")
    for i in range(8):
        a(f"v_mul_f32 v{O_ + i}, v{O_ + i}, v2")
    for i in range(4):
        a(f"v_cvt_pk_bf16_f32 v{4 + i}, v{O_ + 2 * i}, v{O_ + 2 * i + 1}")
    a(f"buffer_store_dwordx4 v[4:7], v{A16}, {sr(S_WS)}, s{T3} offen sc1")
    a(wol(3)[:4])
    for o in range(8):
        a(pw(o))
    if "coal" in OPT:
        a(f"s_and_b32 s{T0}, s{sW}, 4")
        a(f"s_and_b32 s{T1}, s{sW}, 3")
        a(f"s_lshl_b32 s{T1}, s{T1}, 7")
        a("v_and_b32 v1, 3, v0")
        a(f"v_add_u32 v1, s{T0}, v1")
        a("v_bfe_u32 v2, v0, 2, 1")
        a("v_lshrrev_b32 v3, 3, v0")
        a("v_lshl_add_u32 v2, v2, 5, v3")
        a("v_lshlrev_b32 v2, 4, v2")
        a(f"v_add_u32 v2, s{T1}, v2")
        a("v_cmp_eq_u32 vcc, 7, v1")
        a("v_mul_u32_u24 v3, 16448, v1")
        a(f"v_mul_u32_u24 v1, 8256, v1")
        a(f"v_add_u32 v{AK}, v1, v2")
        a(f"v_mov_b32 v1, {131072 + 192}")
        a("v_cndmask_b32 v3, v3, v1, vcc")
        a("v_add_u32 v3, v3, v2")
    else:
        a(f"s_lshl_b32 s{T0}, s{sW}, 14")
        a(f"s_add_u32 s{T1}, s{T0}, 0x8000")
        a(f"s_cmp_lt_u32 s{sW}, 6")
        a(f"s_cselect_b32 s{T0}, s{T0}, s{T1}")
        a(f"v_add_u32 v3, s{T0}, v{A16}")
    if "pws" in OPT:
        a(f"s_lshr_b32 s{T0}, s{sXCD}, 1")
        a(f"s_lshl2_add_u32 s{T0}, s{sQT}, s{T0}")
        a(f"s_lshl_b32 s{T0}, s{T0}, 7")
        a(f"s_add_u32 s{T0}, s{T0}, {WS_CNT + 0x4000}")
        a("v_mov_b32 v1, 1")
        a(f"s_and_b32 s42, s{sW}, 3")
        a(f"s_lshl2_add_u32 s42, s{tTT}, s42")
        a(f"s_lshl_b32 s42, s42, 7")
        a(f"s_add_u32 s42, s42, {WS_CNT + 0x4000}")
        a("s_waitcnt vmcnt(4)")
        a("s_mov_b64 exec, 1")
        a(f"buffer_atomic_add v1, off, {sr(S_WS)}, s{T0} sc1")
        a("s_mov_b64 exec, -1")
        a("s_waitcnt lgkmcnt(0)")
        a("s_barrier")
        if "tp" in OPT: a(lead(2))
        stamp(a, 10)
        if "oe" in OPT:
            a(f"buffer_load_dword v5, off, {sr(S_WS)}, s42 sc1")
    else:
        a("s_waitcnt vmcnt(4) lgkmcnt(0)")
        a("s_barrier")
        if "tp" in OPT: a(lead(2))
        stamp(a, 10)
        a(f"s_cmp_lg_u32 s{sW}, 0")
        a("s_cbranch_scc1 L_o_ns")
        if "ok4" in OPT:
            a(f"s_lshr_b32 s{T0}, s{sXCD}, 1")
            a(f"s_lshl2_add_u32 s{T0}, s{tQB}, s{T0}")
            a(f"s_lshl_b32 s{T0}, s{T0}, 8")
        else:
            a(f"s_lshl_b32 s{T0}, s{tQB}, 8")
        if "rep" in OPT:
            a(f"s_lshl2_add_u32 s{T0}, s{T0}, {WS_CNT + 0x4000}")
            a("v_mov_b32 v1, 1")
            a("v_lshlrev_b32 v2, 7, v0")
            a("s_mov_b64 exec, 255")
            a(f"buffer_atomic_add v1, v2, {sr(S_WS)}, s{T0} offen sc1")
        else:
            a(f"s_add_u32 s{T0}, s{T0}, {WS_CNT + C_O * 256}")
            a("v_mov_b32 v1, 1")
            a("s_mov_b64 exec, 1")
            a(f"buffer_atomic_add v1, off, {sr(S_WS)}, s{T0} sc1")
        a("s_mov_b64 exec, -1")
        a("L_o_ns:")
        if "ok4" in OPT:
            a(f"s_and_b32 s42, s{sW}, 3")
            a(f"s_lshl2_add_u32 s42, s{sXCD}, s42")
            if "rep" in OPT:
                a(f"s_lshl3_add_u32 s42, s42, s{tQB}")
                a(f"s_lshl_b32 s42, s42, 7")
                a(f"s_add_u32 s42, s42, {WS_CNT + 0x4000}")
            else:
                a(f"s_lshl_b32 s42, s42, 8")
                a(f"s_add_u32 s42, s42, {WS_CNT + C_O * 256}")
            if "oe" in OPT:
                a(f"buffer_load_dword v5, off, {sr(S_WS)}, s42 sc1")
    F_ = G_
    for s in range(8):
        for i in range(2):
            a(f"ds_read_b128 {vr(F_ + 8 * s + 4 * i, 4)}, v3 offset:{(s * 2 + i) * 1024}")
        if s == 6:
            a("s_waitcnt lgkmcnt(10)")
    for s in range(1, 8):
        a(f"s_waitcnt lgkmcnt({2 * (7 - s)})")
        for i in range(4):
            a(f"v_pk_add_f32 {vr(F_ + 2 * i, 2)}, {vr(F_ + 2 * i, 2)}, {vr(F_ + 8 * s + 2 * i, 2)}")
    if "ok4" in OPT:
        a("s_barrier")
        if "oe" not in OPT:
            a(f"buffer_load_dword v5, off, {sr(S_WS)}, s42 sc1")
    def silu_block():
        T_ = F_ + 8
        a(f"v_mov_b32 v4, {hx(f2u(-LOG2E))}")
        for i in range(8):
            a(f"v_mul_f32 v{T_ + i}, v{F_ + i}, v4")
        for i in range(8):
            a(f"v_exp_f32 v{T_ + i}, v{T_ + i}")
        a("s_nop 0")
        for i in range(8):
            a(f"v_add_f32 v{T_ + i}, 1.0, v{T_ + i}")
        for i in range(8):
            a(f"v_rcp_f32 v{T_ + i}, v{T_ + i}")
        a("s_nop 0")
        for i in range(8):
            a(f"v_mul_f32 v{F_ + i}, v{F_ + i}, v{T_ + i}")
        XU = G_ + 16
        for i in range(4):
            a(f"v_lshlrev_b32 v{XU + 2 * i}, 16, v{XV + i}")
            a(f"v_and_b32 v{XU + 2 * i + 1}, 0xffff0000, v{XV + i}")
    XU = G_ + 16
    if "sl" not in OPT:
        silu_block()
    a(f"s_lshr_b32 s{T0}, s{sW}, 2")
    a(f"s_mul_i32 s{T0}, s{T0}, {4 * 8256 if 'coal' in OPT else 32768}")
    a(f"s_and_b32 s{T1}, s{sW}, 3")
    a(f"s_lshl_b32 s{T2}, s{T1}, 11")
    a(f"s_add_u32 s{T0}, s{T0}, s{T2}")
    a(f"v_add_u32 v1, s{T0}, v{A16}")
    if "coal" in OPT:
        a(f"v_mov_b32 v3, v{AK}")
    else:
        a(f"s_lshl_b32 s{T0}, s{sW}, 13")
        a(f"v_add_u32 v3, s{T0}, v{A16}")
    a(f"s_lshl_b32 s{T0}, s{tTT}, 5")
    a(f"s_lshl_b32 s{T1}, s{T1}, 3")
    a(f"s_add_u32 s{T0}, s{T0}, s{T1}")
    a(f"s_lshl_b32 s{T0}, s{T0}, 10")
    a(f"s_add_u32 s{T2}, s{T0}, {WS_O}")
    a(f"s_add_u32 s{T3}, s{T2}, 4096")
    stamp(a, 11)
    if "ok4" in OPT:
        a(f"s_mov_b32 s{T1}, {SPIN}")
        a("L_o_poll:")
        a("s_waitcnt vmcnt(0)")
        a("v_readfirstlane_b32 s40, v5")
        a("s_cmp_ge_u32 s40, 8")
        a("s_cbranch_scc1 L_o_ok")
        a(f"s_sleep {OSL}")
        a(f"buffer_load_dword v5, off, {sr(S_WS)}, s42 sc1")
        a(f"s_sub_u32 s{T1}, s{T1}, 1")
        a(f"s_cmp_lg_u32 s{T1}, 0")
        a("s_cbranch_scc1 L_o_poll")
        a("L_o_ok:")
    else:
        a(f"s_cmp_lg_u32 s{sW}, 0")
        a("s_cbranch_scc1 L_o_ok")
        a(f"s_lshl_b32 s{T0}, s{sXCD}, 8")
        a(f"s_add_u32 s{T0}, s{T0}, {WS_CNT + C_O * 256}")
        a(f"s_mov_b32 s{T1}, {SPIN}")
        a("L_o_poll:")
        a(f"buffer_load_dword v4, off, {sr(S_WS)}, s{T0} sc1")
        a("s_waitcnt vmcnt(0)")
        a("v_readfirstlane_b32 s40, v4")
        a("s_cmp_ge_u32 s40, 32")
        a("s_cbranch_scc1 L_o_ok")
        a(f"s_sub_u32 s{T1}, s{T1}, 1")
        a(f"s_cmp_lg_u32 s{T1}, 0")
        a("s_cbranch_scc1 L_o_poll")
        a("L_o_ok:")
        a("s_barrier")
    stamp(a, 12)
    OF = S0
    SA = V_
    for j in range(8):
        so = T2 if j < 4 else T3
        a(f"buffer_load_dwordx4 {vr(OF + 4 * j, 4)}, v{A16}, {sr(S_WS)}, s{so} offen offset:{(j % 4) * 1024} sc1")
    if "sl" in OPT:
        silu_block()
    for j in range(8):
        a(f"s_waitcnt vmcnt({7 - j})")
        for ap in range(2):
            a(mfma(SA + 16 * ap, wreg(2 * j + ap), OF + 4 * j, "0" if j == 0 else None))
    stamp(a, 13)
    a("s_nop 11")
    for o in range(4):
        for i in range(2):
            a(f"ds_write_b128 v1, {vr(SA + 8 * o + 4 * i, 4)} offset:{o * (8256 if 'coal' in OPT else 8192) + i * 1024}")
    a("s_waitcnt lgkmcnt(0)")
    a("s_barrier")
    for s in range(4):
        for i in range(2):
            a(f"ds_read_b128 {vr(SA + 8 * s + 4 * i, 4)}, v3 offset:{(s * 2 + i) * 1024}")
    for s in range(1, 4):
        a(f"s_waitcnt lgkmcnt({2 * (3 - s)})")
        for i in range(4):
            a(f"v_pk_add_f32 {vr(SA + 2 * i, 2)}, {vr(SA + 2 * i, 2)}, {vr(SA + 8 * s + 2 * i, 2)}")
    for i in range(4):
        a(f"v_pk_fma_f32 {vr(XU + 2 * i, 2)}, {vr(SA + 2 * i, 2)}, {vr(F_ + 2 * i, 2)}, {vr(XU + 2 * i, 2)}")
    for i in range(4):
        a(f"v_cvt_pk_bf16_f32 v{4 + i}, v{XU + 2 * i}, v{XU + 2 * i + 1}")
    fl = " sc1" if "osc1" in OPT else (" nt" if "ont" in OPT else (" sc0 sc1" if "osc01" in OPT else ""))
    a(f"buffer_store_dwordx4 v[4:7], v{AOUT}, {sr(R_OUT)}, 0 offen{fl}")
    stamp(a, 14)
    stamp_flush(a)
    a("L_exit:")
    a("s_endpgm")
    a("L_fallback:")
    a(f"s_lshl_b32 s{T0}, s{tHEAD}, 16")
    a(f"s_add_u32 s{T0}, s{T0}, {32 << 16}")
    a(f"s_mov_b32 s{T1}, 0")
    a("v_mov_b32 v1, 0xff800000")
    a("L_fb1:")
    a(f"s_add_u32 s{T2}, s{T0}, s{T1}")
    a(f"buffer_load_dwordx4 {vr(K_, 4)}, v{A16}, {sr(S_WS)}, s{T2} offen sc1")
    a("s_waitcnt vmcnt(0)")
    a(mfma(S0, K_, Q_, "0"))
    a("s_nop 15")
    for i in range(0, 16, 2):
        a(f"v_max3_f32 v1, v1, v{S0 + i}, v{S0 + i + 1}")
    a(f"s_add_u32 s{T1}, s{T1}, 1024")
    a(f"s_cmp_lt_u32 s{T1}, 65536")
    a("s_cbranch_scc1 L_fb1")
    a("v_mov_b32 v2, v1")
    a("s_nop 1")
    a("v_permlane32_swap_b32 v1, v2")
    a("v_max_f32 v1, v1, v2")
    a("v_sub_f32 v1, 0, v1")
    for i in range(16):
        a(f"v_mov_b32 v{NM + i}, v1")
    for i in range(16):
        a(f"v_mov_b32 v{O_ + i}, 0")
    a("v_lshrrev_b32 v2, 5, v0")
    a("v_and_b32 v3, 15, v0")
    a("v_lshlrev_b32 v3, 4, v3")
    a("v_lshl_add_u32 v3, v2, 8, v3")
    a(f"s_mov_b32 s{T1}, 0")
    a("L_fb2:")
    a(f"s_add_u32 s{T2}, s{T0}, s{T1}")
    a(f"buffer_load_dwordx4 {vr(K_, 4)}, v{A16}, {sr(S_WS)}, s{T2} offen sc1")
    a(f"s_add_u32 s{T2}, s{T2}, {32 << 16}")
    a(f"s_mov_b64 exec, s[{tVM}:{tVM + 1}]")
    a(f"buffer_load_dwordx4 {vr(V_, 4)}, v3, {sr(S_WS)}, s{T2} offen sc1")
    a(f"buffer_load_dwordx4 {vr(V_ + 4, 4)}, v3, {sr(S_WS)}, s{T2} offen offset:512 sc1")
    a("s_mov_b64 exec, -1")
    a("s_waitcnt vmcnt(0)")
    a(mfma(S0, K_, Q_, NM))
    a("s_nop 15")
    for i in range(16):
        a(f"v_exp_f32 v{S0 + i}, v{S0 + i}")
    a("s_nop 0")
    for i in range(8):
        a(f"v_cvt_pk_bf16_f32 v{P_ + i}, v{S0 + 2 * i}, v{S0 + 2 * i + 1}")
    a("s_nop 1")
    a(mfma(O_, V_, P_))
    a(mfma(O_, V_ + 4, P_ + 4))
    a(f"s_add_u32 s{T1}, s{T1}, 1024")
    a(f"s_cmp_lt_u32 s{T1}, 65536")
    a("s_cbranch_scc1 L_fb2")
    a("s_nop 15")
    a("s_branch L_norm")


def main(out):
    a = Asm()
    k = NAME + "_kernel"
    hdr = ["; LN + MHA + GEGLU block, one persistent launch; generated by gen5.py (hand-scheduled gfx950 assembly)",
           "; @launch grid=(256,1,1) block=(512,1,1) lds=163840"]
    a('.amdgcn_target "amdgcn-amd-amdhsa--gfx950"')
    a(".text")
    a(f".globl {k}\n.p2align 8\n.type {k},@function\n{k}:")
    gen_p1(a)
    gen_p2(a)
    gen_side(a)
    a("L_end:")
    a('.section .rodata,"a"')
    a(".p2align 6")
    a(f".amdhsa_kernel {k}")
    a(f".amdhsa_next_free_vgpr {NVGPR}")
    a(f".amdhsa_next_free_sgpr {96 if (STAMPS or ENC is not None) else 80}")
    a(f".amdhsa_accum_offset {(NVGPR + 3) // 4 * 4}")
    a(".amdhsa_group_segment_fixed_size 0")
    a(".amdhsa_kernarg_size 80")
    a(".amdhsa_user_sgpr_count 2")
    a(".amdhsa_user_sgpr_kernarg_segment_ptr 1")
    a(".amdhsa_system_sgpr_workgroup_id_x 1")
    a(".end_amdhsa_kernel")
    open(out, "w").write("\n".join(hdr) + "\n" + a.text())


if __name__ == "__main__":
    for x in list(sys.argv):
        if x.startswith("--opt="):
            OPT = set(x[6:].split(","))
            sys.argv.remove(x)
    for x in list(sys.argv):
        if x.startswith("--enc="):
            ENC = int(x[6:])
            sys.argv.remove(x)
    for o in OPT:
        if o.startswith("sig"): SIGU = int(o[3:])
        if o.startswith("chk"): CHK = int(o[3:])
        if o.startswith("wk"): WK = int(o[2:])
        if o.startswith("mo"): MAXOFF = float(o[2:])
        if o.startswith("cso"): CSO = int(o[3:])
        if o.startswith("osl"): OSL = int(o[3:])
        if o.startswith("nbg"): NBG = int(o[3:])
        if o.startswith("vb"): VBUD = int(o[2:])
        if o.startswith("pc"): PC = (int(o[2]), int(o[3]))
        if o.startswith("pd"): PD = int(o[2])
        if o.startswith("pg"): PG = int(o[2])
    if "--cyc" in sys.argv:
        STAMPS = 2
        sys.argv.remove("--cyc")
    if "--stamps" in sys.argv:
        STAMPS = True
        sys.argv.remove("--stamps")
    main(sys.argv[1] if len(sys.argv) > 1 else f"cdna_kernels/{NAME}.s")
```

```python
import sys, struct, math

NAME = "recurrent_scan__mha_block__glu_gated_geglu__prompt"

WS_QKV = 0
WS_H = 6 << 20
WS_O = 14 << 20
WS_CNT = 16 << 20
WS_STAMP = (16 << 20) + 65536
WS_CS = (16 << 20) + 0xb0000
WS_ST = (16 << 20) + 0x80000
WS_CQ = (16 << 20) + 0xa0000
WS_RS = (16 << 20) + 0x84000
WS_CP = (19 << 20) + 0x80000
WS_WT = 17 << 20
WS_SIZE = 21 << 20
OOB = 0x7f000000

LOG2E = 1.4426950408889634
QSCALE = 0.25 * LOG2E
GC1 = -2.0 * LOG2E * math.sqrt(2.0 / math.pi)
GC2 = GC1 * 0.044715
MAXOFF = 100.0
SPIN = 0x40000

STAMPS = False
OPT = set()
NOSTAMP = False
ENC = None


def f2u(x):
    return struct.unpack("<I", struct.pack("<f", x))[0]


def hx(x):
    return "0x%08x" % (x & 0xffffffff)


class Asm:
    def __init__(self):
        self.l = []

    def __call__(self, s):
        if isinstance(s, (list, tuple)):
            for x in s:
                self(x)
            return
        for line in s.split("\n"):
            line = line.strip()
            if not line:
                continue
            if line.endswith(":") or line.startswith("."):
                self.l.append(line)
            else:
                self.l.append("    " + line)

    def text(self):
        return "\n".join(self.l) + "\n"


def vr(b, n):
    return f"v[{b}:{b + n - 1}]"


def sr(b):
    return f"s[{b}:{b + 3}]"


def mfma(d, a, b, c=None):
    cs = vr(d, 16) if c is None else (c if isinstance(c, str) else vr(c, 16))
    return f"v_mfma_f32_32x32x16_bf16 {vr(d, 16)}, {vr(a, 4)}, {vr(b, 4)}, {cs}"


def stamp(a, n):
    if ENC is not None:
        if n in (0, ENC) and not NOSTAMP:
            a("s_memrealtime s[76:77]")
            a("s_waitcnt lgkmcnt(0)")
            a(f"s_mov_b32 s{80 if n == 0 else 81}, s76")
            if n == 0:
                a("s_mov_b32 s81, s76")
        return
    if not STAMPS or (NOSTAMP and n != 15) or ("min" in OPT and n not in (0, 15)):
        return
    a("s_memtime s[76:77]" if STAMPS == 2 else "s_memrealtime s[76:77]")
    a("s_waitcnt lgkmcnt(0)")
    a(f"s_mov_b32 s{80 + n}, s76")


def stampl(n):
    t = Asm()
    stamp(t, n)
    return [x.strip() for x in t.l]


def stamp_flush(a):
    if ENC is not None:
        a("s_waitcnt vmcnt(0)")
        a("s_memrealtime s[76:77]")
        a("s_waitcnt lgkmcnt(0)")
        if ENC == 15:
            a("s_mov_b32 s81, s76")
        if ENC == 99:
            a(["v_mov_b32 v1, 0", f"global_load_dword v2, v1, s[{pDBG}:{pDBG + 1}] offset:240 sc1", "s_waitcnt vmcnt(0)",
               "v_readfirstlane_b32 s80, v2", "s_not_b32 s80, s80", "s_sub_u32 s80, s80, 100"])
        a("s_sub_u32 s81, s81, s80")
        a("s_cmp_lt_u32 s2, 32" if "encs" not in OPT else "s_cmp_ge_u32 s2, 32")
        a("s_cselect_b32 s81, 0, s81")
        a("s_mov_b32 s80, s76")
        a("L_enc:")
        a("s_memrealtime s[76:77]")
        a("s_waitcnt lgkmcnt(0)")
        a("s_sub_u32 s76, s76, s80")
        a("s_cmp_lt_u32 s76, s81")
        a("s_cbranch_scc1 L_enc")
        return
    if not STAMPS:
        return
    a("s_waitcnt vmcnt(0)")
    stamp(a, 15)
    a("v_mov_b32 v1, 0")
    for n in range(16):
        a(f"v_writelane_b32 v1, s{80 + n}, {n}")
    a("s_lshl_b32 s76, s2, 3")
    a(f"s_add_u32 s76, s76, s{sW}")
    a("s_lshl_b32 s76, s76, 6")
    a(f"s_add_u32 s76, s76, {WS_STAMP}")
    a("v_lshlrev_b32 v2, 2, v0")
    a("s_mov_b64 exec, 0xffff")
    a(f"buffer_store_dword v1, v2, {sr(S_WS)}, s76 offen")


def srd(a, s, ptr, size):
    a(f"s_mov_b32 s{s}, s{ptr}")
    a(f"s_mov_b32 s{s + 1}, s{ptr + 1}")
    a(f"s_mov_b32 s{s + 2}, {size}")
    a(f"s_mov_b32 s{s + 3}, 0x00020000")


pX, pWQKV, pWO, pG, pU, pWD, pOUT, pDBG, pWS = 56, 58, 60, 64, 66, 68, 70, 72, 74
S_T, S_X, S_W0, S_W1, S_W3, S_WS = 4, 8, 12, 16, 20, 24
R_OUT, R_H0, R_H1, R_WT = 4, 12, 16, 20
sW, sTT, sHF, sRB, sCB, sROT, sISS, sVAR = 28, 29, 30, 31, 32, 33, 34, 35
sCQ, sCG, sXROW, sLW = 36, 37, 42, 43
T0, T1, T2, T3 = 44, 45, 46, 47
sXCD, sT, sG, sKV = 49, 52, 53, 50
tHEAD, tQB, tIT, tFH, tFW, tTT = 38, 39, 33, 36, 37, 48
tVM = 54

AR, BR, CR, SL = 0, 49152, 98304, 16384
SCR = 147456
XA, VXS, VW0, WQ, WC = 4, 8, 9, 10, 12
VW1, VW3, L16, MASK, ONES, STV, POLL = 14, 15, 16, 17, 18, 20, 21
CSA = 24
WF = 32
ACF, ACQ = 64, 96
XF = 128
Q_, K_, P_, NM, S0, S1, RING = 8, 12, 20, 28, 44, 60, 76
AK, AV, A16, AOUT = 124, 125, 126, 127
G_, V_, O_, AW = 128, 192, 224, 240
NVGPR = 256
C_H, C_CS, C_O = 24, 40, 56
T4 = 63
sQT = 78
sCF, sCNT = 51, 62


def tiny(d, a_, b_, first=False):
    return f"v_mfma_f32_4x4x4_16b_bf16 {vr(d, 4)}, {vr(a_, 2)}, {vr(b_, 2)}, {'0' if first else vr(d, 4)}"


def dma(S, ffn=True):
    sl = (S % 3) * SL
    if S < 8:
        r = [[f"s_add_u32 s{T1}, s{sROT}, {S}", f"s_and_b32 s{T1}, s{T1}, 7",
              f"s_lshl_b32 s{T0}, s{T1}, 7", f"s_add_u32 m0, s{sLW}, {AR + sl}", f"s_add_u32 s{T0}, s{T0}, s{sXROW}",
              f"buffer_load_dwordx4 v{VXS}, {sr(S_X)}, s{T0} offen lds"],
             [f"s_mul_i32 s{T1}, s{T1}, {64 * 3072}", f"s_add_u32 m0, s{sLW}, {BR + sl}", f"s_add_u32 s{T1}, s{T1}, s{sCQ}",
              f"buffer_load_dwordx4 v{VW0}, {sr(S_W0)}, s{T1} offen lds"],
             [f"s_add_u32 m0, s{sLW}, {AR + sl + 8192}", f"s_add_u32 s{T0}, s{T0}, 0x10000",
              f"buffer_load_dwordx4 v{VXS}, {sr(S_X)}, s{T0} offen lds"],
             [f"s_add_u32 m0, s{sLW}, {BR + sl + 8192 - 128}", "s_nop 0",
              f"buffer_load_dwordx4 v{VW0}, {sr(S_W0)}, s{T1} offen offset:128 lds"]]
        if ffn and S >= 2:
            r += [[f"s_add_u32 s{T4}, s{sROT}, {S - 2}", f"s_and_b32 s{T4}, s{T4}, 7", f"s_mul_i32 s{T4}, s{T4}, {64 * 3584}",
                   f"s_add_u32 m0, s{sLW}, {CR + sl}", f"s_add_u32 s{T4}, s{T4}, s{sCG}",
                   f"buffer_load_dwordx4 v{VW1}, {sr(S_W1)}, s{T4} offen lds"],
                  [f"s_add_u32 m0, s{sLW}, {CR + sl + 8192}", "s_nop 0",
                   f"buffer_load_dwordx4 v{VW3}, {sr(S_W3)}, s{T4} offen lds"]]
        return r
    if not ffn:
        return []
    r = []
    off = 128 if S > 8 else 0
    for hb, base in enumerate((BR, CR)):
        r += [[f"s_add_u32 s{T1}, s{sROT}, {(2 * (S - 9) + hb) & 7}", f"s_and_b32 s{T1}, s{T1}, 7",
               f"s_mul_i32 s{T1}, s{T1}, {64 * 3584}", f"s_add_u32 m0, s{sLW}, {base + sl - off}", f"s_add_u32 s{T1}, s{T1}, s{sCG}",
               f"buffer_load_dwordx4 v{VW1}, {sr(S_W1)}, s{T1} offen offset:{off} lds"],
              [f"s_add_u32 m0, s{sLW}, {base + sl + 8192 - off}", "s_nop 0",
               f"buffer_load_dwordx4 v{VW3}, {sr(S_W3)}, s{T1} offen offset:{off} lds"]]
    return r


def fset(k, ffn):
    return WF + 16 * (k & 1) if (ffn and k >= 8) else WF + 8 * (k & 3)


def rd1(k, nt, ffn):
    S, ks = k >> 2, k & 3
    sl = (S % 3) * SL
    F = fset(k, ffn)
    r = [f"ds_read_b128 {vr(XF + 4 * k, 4)}, v{XA + ks} offset:{sl}"]
    for t in range(nt):
        for t2 in range(2):
            r.append(f"ds_read_b64_tr_b16 {vr(F + 4 * t + 2 * t2, 2)}, v{WQ + t} offset:{sl + ks * 2048 + t2 * 512}")
    if ffn and k >= 8:
        for c in range(2):
            for t2 in range(2):
                r.append(f"ds_read_b64_tr_b16 {vr(F + 8 + 4 * c + 2 * t2, 2)}, v{WC + c} offset:{sl + ks * 2048 + t2 * 512}")
    return r


def rd2(u):
    S = 8 + (u >> 2)
    sl = (S % 3) * SL
    base = WQ if (u & 3) < 2 else WC
    F = WF + 16 * (u & 1)
    return [f"ds_read_b64_tr_b16 {vr(F + 8 * q + 4 * c + 2 * t2, 2)}, v{base + c} offset:{sl + ((2 * u + q) & 3) * 2048 + t2 * 512}"
            for q in range(2) for c in range(2) for t2 in range(2)]


def flat(L):
    return [x for at in L for x in ([at] if isinstance(at, str) else at)]


def spread(heads, first, rest):
    n = len(heads)
    pf = -(-len(first) // max(1, n - 1)) if first else 0
    res = []
    for j, hd in enumerate(heads):
        res.append(hd)
        res += flat(first[j * pf:(j + 1) * pf])
        res += flat(rest[j * len(rest) // n:(j + 1) * len(rest) // n])
    return res


def nvm(lines):
    return sum(1 for l in lines if l.startswith("buffer_") or l.startswith("global_"))


def weave(heads, fills):
    res = []
    per = -(-len(fills) // len(heads)) if fills else 0
    i = 0
    for hd in heads:
        res.append(hd)
        for at in fills[i:i + per]:
            res += [at] if isinstance(at, str) else at
        i += per
    return res


def tr_addr(dst, t_a, t_b):
    return [f"v_lshrrev_b32 v{t_a}, 5, v0", f"v_bfe_u32 v{t_b}, v0, 2, 2", f"v_lshl_add_u32 v{dst}, v{t_a}, 2, v{t_b}",
            f"v_lshlrev_b32 v{dst}, 7, v{dst}", f"v_and_b32 v{t_a}, 1, v0", f"v_lshl_add_u32 v{dst}, v{t_a}, 6, v{dst}",
            f"v_bfe_u32 v{t_a}, v0, 4, 1", f"v_lshl_add_u32 v{dst}, v{t_a}, 4, v{dst}", f"v_bfe_u32 v{t_a}, v0, 1, 1",
            f"v_lshl_add_u32 v{dst}, v{t_a}, 3, v{dst}", f"v_lshrrev_b32 v{t_b}, 1, v{t_b}", f"v_lshl_add_u32 v{dst}, v{t_b}, 5, v{dst}"]


def split3(w, src):
    return [f"v_and_b32 v{w}, v{MASK}, v{src}", f"v_sub_f32 v{w + 2}, v{src}, v{w}",
            f"v_and_b32 v{w + 1}, v{MASK}, v{w + 2}", f"v_sub_f32 v{w + 2}, v{w + 2}, v{w + 1}", f"v_mov_b32 v{w + 3}, 0"]


def poll_issue(lbl, mask_instrs, reg=POLL):
    return ([f"s_cmp_lg_u32 s{sW}, 0", f"s_cbranch_scc1 {lbl}", "v_lshlrev_b32 v1, 8, v0"] + mask_instrs +
            ["s_mov_b64 exec, s[40:41]",
             f"buffer_load_dword v{reg}, v1, {sr(S_WS)}, s{sCNT} offen sc1", "s_mov_b64 exec, -1", f"{lbl}:"])


def poll_check(lbl, thr, reg=POLL, sleep=8):
    return [f"s_cmp_lg_u32 s{sW}, 0", f"s_cbranch_scc1 {lbl}_ok",
            f"s_mov_b32 s{T3}, {SPIN}", "s_mov_b64 exec, s[40:41]", f"{lbl}_spin:",
            f"v_cmp_gt_u32 vcc, {thr}, v{reg}", "s_cmp_eq_u64 vcc, 0", f"s_cbranch_scc1 {lbl}_done",
            f"s_sleep {sleep}",
            f"buffer_load_dword v{reg}, v1, {sr(S_WS)}, s{sCNT} offen sc1", "s_waitcnt vmcnt(0)",
            f"s_sub_u32 s{T3}, s{T3}, 1", f"s_cmp_lg_u32 s{T3}, 0", f"s_cbranch_scc1 {lbl}_spin",
            f"{lbl}_done:", "s_mov_b64 exec, -1", f"{lbl}_ok:"]


QKV_MASK = [f"s_lshl_b32 s40, 0x10101, s{sXCD}", "s_mov_b32 s41, 0"]
CS_MASK = ["s_mov_b32 s40, 0", f"s_lshl_b32 s41, 0x100, s{sCF}"]
H_MASK = ["s_mov_b32 s40, 0xff000000", "s_mov_b32 s41, 0xff"]


def cs_issue(lbl, n):
    return [f"s_cmp_lg_u32 s{sW}, 0", f"s_cbranch_scc1 {lbl}", "v_lshlrev_b32 v1, 6, v0", "s_mov_b64 exec, 15",
            f"global_load_dword v{POLL}, v1, s[{pDBG}:{pDBG + 1}] offset:{4 * n} sc1", "s_mov_b64 exec, -1", f"{lbl}:"]


def cs_signal(lbl, n):
    return [f"s_cmp_lg_u32 s{sW}, 0", f"s_cbranch_scc1 {lbl}", f"s_and_b32 s{T2}, s{sRB}, 3", f"s_lshl_b32 s{T2}, s{T2}, 6",
            f"v_mov_b32 v2, s{T2}", "v_mov_b32 v3, 1", "s_mov_b64 exec, 1",
            f"global_atomic_add v2, v3, s[{pDBG}:{pDBG + 1}] offset:{4 * n} sc1", "s_mov_b64 exec, -1", f"{lbl}:"]


def cs_check(lbl, n):
    return [f"s_cmp_lg_u32 s{sW}, 0", f"s_cbranch_scc1 {lbl}_ok",
            f"s_mov_b32 s{T3}, {SPIN}", "s_mov_b64 exec, 15", f"{lbl}_spin:",
            f"v_cmp_gt_u32 vcc, 8, v{POLL}", "s_cmp_eq_u64 vcc, 0", f"s_cbranch_scc1 {lbl}_done",
            "s_sleep 8",
            f"global_load_dword v{POLL}, v1, s[{pDBG}:{pDBG + 1}] offset:{4 * n} sc1", "s_waitcnt vmcnt(0)",
            f"s_sub_u32 s{T3}, s{T3}, 1", f"s_cmp_lg_u32 s{T3}, 0", f"s_cbranch_scc1 {lbl}_spin",
            f"{lbl}_done:", "s_mov_b64 exec, -1", f"{lbl}_ok:"]


def sig_qkv(lbl):
    return [f"s_cmp_lg_u32 s{sW}, 0", f"s_cbranch_scc1 {lbl}",
            f"s_mul_i32 s{T2}, s{sCB}, 3", f"s_lshr_b32 s{T2}, s{T2}, 1", f"s_and_b32 s{T3}, s{sCB}, 1",
            f"v_add_u32 v2, s{T2}, v0", "v_lshlrev_b32 v2, 8, v2",
            f"v_xor_b32 v3, s{T3}, v0", "v_sub_u32 v3, 2, v3",
            "s_mov_b64 exec, 3", f"buffer_atomic_add v3, v2, {sr(S_WS)}, s{sCNT} offen sc1", "s_mov_b64 exec, -1", f"{lbl}:"]


def sig_one(lbl, idx_instrs, skip_side=False):
    c = [f"s_or_b32 s{T0}, s{sW}, s{sISS}"] if skip_side else [f"s_cmp_lg_u32 s{sW}, 0"]
    return (c + [f"s_cbranch_scc1 {lbl}"] + idx_instrs +
            [f"s_lshl_b32 s{T0}, s{T0}, 8", f"s_add_u32 s{T0}, s{T0}, s{sCNT}", "v_mov_b32 v3, 1", "s_mov_b64 exec, 1",
             f"buffer_atomic_add v3, off, {sr(S_WS)}, s{T0} sc1", "s_mov_b64 exec, -1", f"{lbl}:"])


def kv(i, r=L16):
    return [[f"s_lshl1_add_u32 m0, s{sLW}, {i * 16384}" if i else f"s_lshl_b32 m0, s{sLW}, 1",
             f"s_add_u32 s{T2}, s{sKV}, {i * 8192}",
             f"buffer_load_dwordx4 v{r}, {sr(S_WS)}, s{T2} offen sc1 lds"],
            [f"s_lshl1_add_u32 m0, s{sLW}, {i * 16384 + 1024}", f"s_add_u32 s{T2}, s{sKV}, {i * 8192 + (32 << 16)}",
             f"buffer_load_dwordx4 v{r}, {sr(S_WS)}, s{T2} offen sc1 lds"]]


def q_load():
    return [f"s_lshl_b32 s{T2}, s{tHEAD}, 6", f"s_add_u32 s{T2}, s{T2}, s{sQT}", f"s_lshl_b32 s{T2}, s{T2}, 10",
            f"buffer_load_dwordx4 {vr(Q_, 4)}, v{L16}, {sr(S_WS)}, s{T2} offen sc1"]


def p2_init_v():
    return ([["v_and_b32 v3, 27, v0", "v_cmp_eq_u32 vcc, 16, v3", f"v_mov_b32 v{V_ + 1}, 0x3f803f80", "v_mov_b32 v3, 0",
              f"v_cndmask_b32 v{V_}, v3, v{V_ + 1}, vcc", f"v_mov_b32 v{V_ + 1}, v{V_}"]] +
            [f"v_mov_b64 v[{V_ + i}:{V_ + i + 1}], v[{V_}:{V_ + 1}]" for i in range(2, 32, 2)])


TRA, TRD = 142, 144


def tr_setup():
    A, B, C, D = T2, T3, tVM + 1, tVM
    return [[f"s_sub_u32 s{C}, s2, 32", f"s_mul_i32 s{D}, s{sW}, 144", f"s_add_u32 s{D}, s{D}, s{C}", f"s_lshl_b32 s{D}, s{D}, 11",
             f"s_add_u32 s{D}, s{D}, {WS_WT}", f"s_cmp_lt_u32 s{C}, 144", f"s_cselect_b32 s{D}, s{D}, {OOB}",
             f"s_cmp_lt_u32 s{C}, 112", f"s_cselect_b32 s{S_T}, s{pWD}, s{pWO}",
             f"s_cselect_b32 s{S_T + 1}, s{pWD + 1}, s{pWO + 1}", f"s_mov_b32 s{S_T + 2}, 1835008",
             f"s_cselect_b32 s{S_T + 2}, s{S_T + 2}, 524288", f"s_cselect_b32 s{A}, 0, 112", f"s_mov_b32 s{S_T + 3}, 0x00020000",
             f"s_sub_u32 s{C}, s{C}, s{A}", f"s_lshl_b32 s{C}, s{C}, 14", f"s_lshl_b32 s{B}, s{sW}, 7", f"s_add_u32 s{C}, s{C}, s{B}"],
            ["v_lshrrev_b32 v2, 3, v0", "v_and_b32 v3, 2, v2", "v_and_b32 v18, 7, v0", "v_xor_b32 v18, v3, v18",
             "v_lshlrev_b32 v18, 4, v18", "v_lshl_add_u32 v18, v2, 10, v18"]]


def tr_dma():
    C = tVM + 1
    return [[f"s_lshl1_add_u32 m0, s{sLW}, {SCR}", f"s_add_u32 s{T3}, s{C}, 8192", f"buffer_load_dwordx4 v18, {sr(S_T)}, s{C} offen lds",
             "s_add_u32 m0, m0, 1024", "s_nop 0", f"buffer_load_dwordx4 v18, {sr(S_T)}, s{T3} offen lds"]]


def tr_rd():
    return [f"ds_read_b64_tr_b16 {vr(TRD + 4 * ap + 2 * t, 2)}, v{TRA + ap} offset:{t * 1024}" for ap in range(2) for t in range(2)]


def tr_st():
    return [f"buffer_store_dwordx4 {vr(TRD, 4)}, v{L16}, {sr(S_WS)}, s{tVM} offen sc1",
            f"buffer_store_dwordx4 {vr(TRD + 4, 4)}, v{L16}, {sr(S_WS)}, s{tVM} offen offset:1024 sc1"]


def gen_p1(a):
    global NOSTAMP
    a("s_cmp_ge_u32 s2, 256")
    a("s_cbranch_scc1 L_exit")
    stamp(a, 0)
    a(f"s_load_dwordx4 s[{pX}:{pX + 3}], s[0:1], 0")
    a(f"s_load_dwordx4 s[{pG}:{pG + 3}], s[0:1], 32")
    a(f"s_load_dwordx2 s[{pWO}:{pWO + 1}], s[0:1], 16")
    a(f"s_load_dwordx4 s[{pWD}:{pWD + 3}], s[0:1], 48")
    a(f"s_load_dwordx4 s[{pDBG}:{pDBG + 3}], s[0:1], 64")
    a("v_lshrrev_b32 v1, 6, v0")
    a("v_and_b32 v0, 63, v0")
    a(f"v_readfirstlane_b32 s{sW}, v1")
    a("s_cmp_ge_u32 s2, 32")
    a("s_cbranch_scc1 L_nocode")
    a("s_getpc_b64 s[40:41]")
    a("L_here:")
    a("v_lshlrev_b32 v2, 13, v1")
    a("v_lshl_add_u32 v2, v0, 7, v2")
    a("v_min_u32 v2, L_end-L_here-4, v2")
    a("v_mov_b32 v3, s41")
    a("v_add_co_u32 v2, vcc, s40, v2")
    a("s_nop 1")
    a("v_addc_co_u32 v3, vcc, 0, v3, vcc")
    a(f"global_load_dword v{STV}, v[2:3], off")
    a("L_nocode:")
    a(f"s_and_b32 s{sXCD}, s2, 7")
    a(f"s_lshr_b32 s{T1}, s2, 3")
    a(f"s_and_b32 s{sRB}, s{sXCD}, 3")
    a(f"s_and_b32 s{T2}, s{T1}, 3")
    a(f"s_lshl2_add_u32 s{sRB}, s{sRB}, s{T2}")
    a(f"s_lshr_b32 s{sCF}, s{sXCD}, 2")
    a(f"s_lshr_b32 s{sISS}, s{T1}, 2")
    a(f"s_lshl3_add_u32 s{sCB}, s{sCF}, s{sISS}")
    a(f"s_lshl1_add_u32 s{sROT}, s{sXCD}, s{sISS}")
    a(f"s_lshl_b32 s{sLW}, s{sW}, 10")
    a(f"s_lshl_b32 s{T2}, s{sW}, 3")
    a(f"s_lshl_b32 s{sXROW}, s{sRB}, 7")
    a(f"s_add_u32 s{sXROW}, s{sXROW}, s{T2}")
    a(f"s_lshl_b32 s{sXROW}, s{sXROW}, 10")
    a(f"s_mul_i32 s{sCQ}, s{sCB}, 3")
    a(f"s_lshr_b32 s{sCQ}, s{sCQ}, 1")
    a(f"s_lshl_b32 s{sCQ}, s{sCQ}, 7")
    a(f"s_mul_i32 s{T3}, s{T2}, 3072")
    a(f"s_add_u32 s{sCQ}, s{sCQ}, s{T3}")
    a(f"s_mul_i32 s{T3}, s{T2}, 3584")
    a(f"s_sub_u32 s{sCF}, s{sCB}, s{sCF}")
    a(f"s_sub_u32 s{sCF}, s{sCF}, 1")
    a(f"s_lshl_b32 s{sCG}, s{sCF}, 8")
    a(f"s_add_u32 s{sCG}, s{sCG}, s{T3}")
    a(f"s_cmp_eq_u32 s{sISS}, 0")
    a(f"s_cselect_b32 s{sISS}, 1, 0")
    a(f"s_cselect_b32 s{sCG}, {OOB}, s{sCG}")
    a("v_lshrrev_b32 v1, 3, v0")
    a("v_and_b32 v2, 7, v0")
    a(f"v_add_u32 v3, s{T2}, v1")
    a("v_bfe_u32 v3, v3, 1, 3")
    a("v_xor_b32 v3, v3, v2")
    a("v_lshlrev_b32 v3, 4, v3")
    a(f"v_lshl_add_u32 v{VXS}, v1, 10, v3")
    a("v_and_b32 v3, 2, v1")
    a("v_lshlrev_b32 v3, 1, v3")
    a("v_xor_b32 v3, v3, v2")
    a("v_lshlrev_b32 v3, 4, v3")
    a("v_mul_u32_u24 v4, 3072, v1")
    a(f"v_add_u32 v{VW0}, v4, v3")
    a("v_mul_u32_u24 v4, 3584, v1")
    a(f"v_add_u32 v{VW1}, v4, v3")
    a(f"v_xor_b32 v{VW3}, 32, v{VW1}")
    for r_, sz in ((S_X, 2097152), (S_W0, 1572864), (S_W1, 1835008), (S_W3, 1835008)):
        a(f"s_mov_b32 s{r_ + 2}, {sz}")
        a(f"s_mov_b32 s{r_ + 3}, 0x00020000")
    a("s_waitcnt lgkmcnt(0)")
    for r_, p_ in ((S_X, pX), (S_W0, pWQKV), (S_W1, pG), (S_W3, pU)):
        a(f"s_mov_b64 s[{r_}:{r_ + 1}], s[{p_}:{p_ + 1}]")
    a(f"s_cmp_eq_u32 s{sISS}, 1")
    a("s_cbranch_scc1 L_nod0")
    a(dma(0))
    if "tlb" in OPT:
        a("s_branch L_nod1")
    a("L_nod0:")
    if "tlb" in OPT:
        a(f"s_and_b32 s{T0}, s{sRB}, 3")
        a(f"s_lshl2_add_u32 s{T0}, s{sW}, s{T0}")
        a(f"s_sub_u32 s{T1}, s{T0}, 4")
        a(f"s_min_u32 s{T1}, s{T1}, 10")
        a(f"s_lshl_b32 s{T1}, s{T1}, 21")
        a(f"s_add_u32 s40, s{pWS}, s{T1}")
        a(f"s_addc_u32 s41, s{pWS + 1}, 0")
        for i, p_ in ((0, pG), (1, pU), (2, pWQKV), (3, pDBG), (15, pWD), (16, pWO), (17, pOUT)):
            a(f"s_cmp_eq_u32 s{T0}, {i}")
            a(f"s_cselect_b64 s[40:41], s[{p_}:{p_ + 1}], s[40:41]")
        a("v_mov_b32 v3, 0")
        a("s_mov_b64 exec, 1")
        a(f"global_load_dword v{STV}, v3, s[40:41] offset:192 sc1")
        a("s_mov_b64 exec, -1")
        a("L_nod1:")
    a(f"v_lshlrev_b32 v{L16}, 4, v0")
    a(f"s_and_b32 s{sTT}, s{sW}, 3")
    a(f"s_lshr_b32 s{sHF}, s{sW}, 2")
    a(f"s_mov_b32 s{sCNT}, {WS_CNT}")
    srd(a, S_WS, pWS, WS_SIZE)
    a(f"s_lshl2_add_u32 s{sT}, s{sRB}, s{sTT}")
    a(f"s_mul_i32 s{sG}, s{sCB}, 3")
    a(f"s_lshl1_add_u32 s{sG}, s{sHF}, s{sG}")
    a(f"s_cmp_ge_u32 s{sG}, 32")
    a(f"s_cselect_b32 s{sVAR}, 2, 0")
    a(f"s_add_u32 s{sVAR}, s{sVAR}, s{sHF}")
    a(f"s_lshl_b32 s{sG}, s{sG}, 1")
    a(f"s_lshr_b32 s{T1}, s2, 3")
    a(f"s_and_b32 s{T2}, s{T1}, 3")
    a(f"s_lshl2_add_u32 s{tHEAD}, s{sXCD}, s{T2}")
    a(f"s_lshr_b32 s{tQB}, s{T1}, 2")
    if "pws" in OPT:
        a(f"s_lshl1_add_u32 s{sQT}, s{sTT}, s{sHF}")
        a(f"s_lshl3_add_u32 s{sQT}, s{tQB}, s{sQT}")
    else:
        a(f"s_lshl3_add_u32 s{sQT}, s{tQB}, s{sW}")
    a(f"s_lshl_b32 s{sKV}, s{tHEAD}, 16")
    a(f"s_add_u32 s{sKV}, s{sKV}, s{sLW}")
    a(f"s_add_u32 s{sKV}, s{sKV}, {32 << 16}")
    t4, t6, t7 = WF, WF + 1, WF + 2
    a("v_and_b32 v1, 31, v0")
    a("v_lshrrev_b32 v2, 5, v0")
    a("v_bfe_u32 v3, v0, 1, 3")
    a("v_xor_b32 v3, v3, v2")
    a("v_lshlrev_b32 v3, 4, v3")
    a("v_lshl_add_u32 v3, v1, 7, v3")
    a(f"s_lshl_b32 s{T0}, s{sTT}, 12")
    a(f"v_add_u32 v{XA}, s{T0}, v3")
    for i in range(1, 4):
        a(f"v_xor_b32 v{XA + i}, {32 * i}, v{XA}")
    a("v_bfe_u32 v3, v0, 2, 2")
    a(f"v_lshl_add_u32 v{t4}, v2, 3, v3")
    a(f"v_lshlrev_b32 v{t4}, 7, v{t4}")
    a(f"v_and_b32 v{t7}, 3, v0")
    a(f"v_lshl_add_u32 v{t4}, v{t7}, 3, v{t4}")
    a("v_and_b32 v3, 2, v3")
    a(f"v_bfe_u32 v{t7}, v0, 4, 1")
    a(f"v_xor_b32 v3, v3, v{t7}")
    a(f"s_and_b32 s{T0}, s{sCB}, 1")
    a(f"s_lshl1_add_u32 s{T0}, s{sHF}, s{T0}")
    for t in range(2):
        a(f"s_and_b32 s{T1}, s{T0}, 1")
        a(f"s_lshl_b32 s{T1}, s{T1}, 1")
        a(f"s_lshr_b32 s{T2}, s{T0}, 1")
        a(f"s_lshl_b32 s{T2}, s{T2}, 13")
        a(f"s_add_u32 s{T2}, s{T2}, {BR}")
        a(f"v_xor_b32 v{t6}, s{T1}, v3")
        a(f"v_lshl_add_u32 v{t6}, v{t6}, 5, v{t4}")
        a(f"v_add_u32 v{WQ + t}, s{T2}, v{t6}")
        if t == 0:
            a(f"s_add_u32 s{T0}, s{T0}, 1")
    a(f"v_lshl_add_u32 v{t4}, v{t7}, 13, v{t4}")
    a(f"v_add_u32 v{t4}, {CR}, v{t4}")
    a(f"s_lshl_b32 s{T0}, s{sHF}, 1")
    a(f"v_xor_b32 v{t6}, s{T0}, v3")
    a(f"v_lshl_add_u32 v{WC}, v{t6}, 5, v{t4}")
    a(f"v_xor_b32 v{WC + 1}, 32, v{WC}")
    a(f"v_mov_b32 v{MASK}, 0xffff0000")
    a(f"v_mov_b32 v{ONES}, 0x3f80")
    a(f"s_cmp_eq_u32 s{sISS}, 1")
    a("s_cbranch_scc1 L_side1")
    a(dma(1))
    stamp(a, 1)
    for v in range(1, 4):
        a(f"s_cmp_eq_u32 s{sVAR}, {v}")
        a(f"s_cbranch_scc1 L_p1_{v}")
    XOP, RS = XA, 22
    CL, RU, ta, tb, tc = 224, 232, 240, 241, 242
    cs_loads = [[f"s_bitcmp1_b32 s{sRB}, 1", f"s_cselect_b32 s{S_T}, s{pU}, s{pG}", f"s_cselect_b32 s{S_T + 1}, s{pU + 1}, s{pG + 1}",
                 f"s_mov_b32 s{S_T + 2}, 1835008", f"s_mov_b32 s{S_T + 3}, 0x00020000",
                 f"s_add_u32 s{T2}, s{sROT}, {CSO}", f"s_lshl2_add_u32 s{T2}, s{T2}, s{sW}", f"s_and_b32 s{T2}, s{T2}, 31",
                 f"s_mul_i32 s{T2}, s{T2}, {16 * 3584}",
                 f"s_and_b32 s{T3}, s{sRB}, 1", f"s_lshl1_add_u32 s{T3}, s{sCF}, s{T3}", f"s_lshl_b32 s{T3}, s{T3}, 7", f"s_add_u32 s{T2}, s{T2}, s{T3}",
                 f"v_lshrrev_b32 v{ta}, 3, v0", f"v_mul_u32_u24 v{ta}, 3584, v{ta}", f"v_and_b32 v{tb}, 7, v0", f"v_lshl_add_u32 v{ta}, v{tb}, 4, v{ta}",
                 f"buffer_load_dwordx4 {vr(CL, 4)}, v{ta}, {sr(S_T)}, s{T2} offen"],
                [f"s_add_u32 s{T2}, s{T2}, {8 * 3584}", f"buffer_load_dwordx4 {vr(CL + 4, 4)}, v{ta}, {sr(S_T)}, s{T2} offen"]]
    SE, DD, RV = 244, 248, 224
    sel = [f"v_and_b32 v{tb}, 15, v0", f"v_and_b32 v{tc}, 1, v0", f"v_lshlrev_b32 v{tc}, 4, v{tc}", f"v_lshlrev_b32 v{tc}, v{tc}, v{ONES}",
           f"v_lshrrev_b32 v{tb}, 1, v{tb}"]
    for i in range(4):
        sel += [[f"v_cmp_eq_u32 vcc, {i}, v{tb}", "s_nop 1", f"v_cndmask_b32 v{SE + i}, 0, v{tc}, vcc"]]
    m16 = lambda c, b_: f"v_mfma_f32_16x16x32_bf16 {vr(DD, 4)}, {vr(SE, 4)}, {vr(b_, 4)}, {c}"
    csv = {8: sel[:5], 9: sel[5:],
           10: [f"v_and_b32 v{tb}, 15, v0", f"v_lshlrev_b32 v{tb}, 5, v{tb}", f"v_lshrrev_b32 v{tc}, 4, v0", f"v_lshl_add_u32 v{tb}, v{tc}, 4, v{tb}",
               [f"s_lshl_b32 s40, s2, 12", f"s_add_u32 s40, s40, {WS_CP}", f"s_lshl_b32 s41, s{sW}, 9", "s_add_u32 s41, s41, s40"]]}
    cs_mm = [m16("0", CL), m16(vr(DD, 4), CL + 4)]
    cs_st = ["s_mov_b32 exec_hi, 0", f"buffer_store_dwordx4 {vr(DD, 4)}, v{tb}, {sr(S_WS)}, s41 offen" + (" sc1" if "csw" in OPT else ""), "s_mov_b32 exec_hi, -1"]
    cs_l2 = lambda lb: ([f"s_cmp_lg_u32 s{sW}, 0", f"s_cbranch_scc1 {lb}"] +
                        [f"buffer_load_dwordx4 {vr(RV + 4 * i, 4)}, v{L16}, {sr(S_WS)}, s40 offen offset:{1024 * i} sc1" for i in range(4)] + [f"{lb}:"])
    cs_r2 = lambda lb: ([f"s_cmp_lg_u32 s{sW}, 0", f"s_cbranch_scc1 {lb}"] +
                        [f"v_add_f32 v{RV + i}, v{RV + i}, v{RV + 8 + i}" for i in range(8)] +
                        [f"v_add_f32 v{RV + i}, v{RV + i}, v{RV + 4 + i}" for i in range(4)] +
                        [f"v_and_b32 v{ta}, 15, v0", f"v_lshrrev_b32 v{tc}, 4, v0",
                         f"v_permlane16_swap_b32 v{RV}, v{RV + 1}", f"v_permlane16_swap_b32 v{RV + 2}, v{RV + 3}",
                         f"v_add_f32 v{RV}, v{RV}, v{RV + 1}", f"v_add_f32 v{RV + 2}, v{RV + 2}, v{RV + 3}",
                         f"v_lshl_add_u32 v{ta}, v{ta}, 2, v{tc}", f"v_lshlrev_b32 v{ta}, 2, v{ta}",
                         f"v_permlane32_swap_b32 v{RV}, v{RV + 2}", f"v_add_f32 v{RV}, v{RV}, v{RV + 2}",
                         f"s_bfe_u32 s40, s{sRB}, 0x10001", "s_mul_i32 s40, s40, 28", f"s_and_b32 s41, s{sRB}, 1", "s_add_u32 s40, s40, s41",
                         f"s_lshl1_add_u32 s40, s{sCF}, s40", f"s_lshr_b32 s41, s{sRB}, 2", "s_lshl2_add_u32 s40, s40, s41",
                         "s_lshl_b32 s40, s40, 8", f"s_add_u32 s40, s40, {WS_CS}",
                         f"buffer_store_dword v{RV}, v{ta}, {sr(S_WS)}, s40 offen sc1", f"{lb}:"])
    for var in VARS:
        hf, isv, ffn = var & 1, (var >> 1) & 1, var < 4
        nt = 2 - hf
        cnt = lambda S: len(dma(S, ffn))
        a(f"L_p1_{var}:")
        if ffn and "cse" in OPT:
            a(cs_loads)
        a(f"s_waitcnt vmcnt({cnt(1) + (2 if (ffn and 'cse' in OPT) else 0)})")
        a("s_barrier")
        stamp(a, 2)
        a(rd1(0, nt, ffn))
        a(rd1(1, nt, ffn))
        bgq = dma(2, ffn)
        if ffn and "cs1" in OPT:
            bgq = cs_loads + bgq
        held = []
        sl7 = (7 % 3) * SL
        qrd = lambda h: [f"ds_read_b64_tr_b16 {vr(WF + 16 * h + 8 * q + 4 * t + 2 * t2, 2)}, v{WQ + t} offset:{sl7 + (2 * h + q) * 2048 + t2 * 512}"
                         for q in range(2) for t in range(nt) for t2 in range(2)]
        frd = lambda h: [f"ds_read_b64_tr_b16 {vr(WF + 16 * h + 8 * q + 4 * c + 2 * t2, 2)}, v{WC + c} offset:{sl7 + (2 * h + q) * 2048 + t2 * 512}"
                         for q in range(2) for c in range(2) for t2 in range(2)]
        CK = 5 if ffn else 6
        prep = [f"v_lshlrev_b32 v2, 16, v{STV}", f"v_rcp_f32 v{RS}, v2"]
        for t in range(nt):
            w = CSA + 4 * t
            prep += [f"v_add_f32 v{w}, v{w}, v{w + 1}", f"v_add_f32 v{w + 2}, v{w + 2}, v{w + 3}", f"v_add_f32 v{w + 3}, v{w}, v{w + 2}"] + split3(w, w + 3)
        for k in range(28 if ffn else 32):
            S, ks = k >> 2, k & 3
            F = fset(k, ffn)
            x = XF + 4 * k
            c0 = "0" if k == 0 else None
            big = [mfma(ACQ + 16 * t, x, F + 4 * t, c0) if isv else mfma(ACQ + 16 * t, F + 4 * t, x, c0) for t in range(nt)]
            light = not ffn or k < 8
            if not light:
                big += [mfma(ACF + 16 * c, F + 8 + 4 * c, x - 32, "0" if k == 8 else None) for c in range(2)]
            if light and k % 2 == 0 and k < 30:
                held = big
                continue
            big, held = held + big, []
            val = []
            if ks == 3:
                n = cnt(S + 2) + ({(0 if ('cse' in OPT or 'cs1' in OPT) else 1): 2}.get(S, 0) if ffn else 0)
                a(f"s_waitcnt vmcnt({n}) lgkmcnt(0)")
                if S == CK and not hf: a(cs_check(f"L_c1{var}", 0))
                if S < 7: a("s_barrier")
                if "p1b" in OPT: stamp(a, 4 + S)
                if ffn and S == 2:
                    big = cs_mm + big
                    bgq.append(cs_st)
                if ffn and S == 3 and not hf: bgq.append(cs_l2(f"L_l2{var}"))
                if ffn and S == 4 and not hf: bgq.append(cs_r2(f"L_r2{var}"))
                if S == CK - 1 and not hf:
                    bgq.append(cs_issue(f"L_i1{var}", 0))
                if S == 5 and ffn and not hf:
                    bgq.append(sig_one(f"L_sc{var}", [f"s_add_u32 s{T0}, s{sCF}, {C_CS}"]))
                if S == 5:
                    ad = [f"v_and_b32 v{VXS}, 31, v0", f"v_lshlrev_b32 v{VXS}, 2, v{VXS}", "v_lshrrev_b32 v3, 5, v0",
                          f"v_lshl_add_u32 v{VW0}, v3, 10, v{VXS}", f"s_lshl_b32 s{T2}, s{sT}, 7", f"s_add_u32 s{T2}, s{T2}, {WS_ST}"]
                    for t in range(nt):
                        ad += [f"s_add_u32 s{T3}, s{sG}, {2 * t}", f"s_lshr_b32 s{40 + t}, s{T3}, 2", f"s_lshl_b32 s{40 + t}, s{40 + t}, 11",
                               f"s_and_b32 s{T3}, s{T3}, 2", f"s_lshl_b32 s{T3}, s{T3}, 6", f"s_add_u32 s{40 + t}, s{40 + t}, s{T3}",
                               f"s_add_u32 s{40 + t}, s{40 + t}, {WS_CQ}"]
                    bgq.append(ad)
                if S == CK:
                    ld = [f"buffer_load_dword v{STV}, v{VXS}, {sr(S_WS)}, s{T2} offen sc1"]
                    for t in range(nt):
                        ld += [f"buffer_load_dword v{CSA + 4 * t + i}, v{VW0}, {sr(S_WS)}, s{40 + t} offen offset:{256 * i} sc1" for i in range(4)]
                    if isv:
                        ld += [f"s_lshl_b32 s{T3}, s{sW}, 8", f"s_add_u32 m0, s{T3}, {SCR}", f"s_add_u32 s{T2}, s{T2}, {WS_RS - WS_ST}",
                               f"buffer_load_dword v{VXS}, {sr(S_WS)}, s{T2} offen sc1 lds"]
                    bgq += [ld[:5], ld[5:]]
                if S == 6 and ffn:
                    if not hf: bgq.append(poll_issue(f"L_i2{var}", CS_MASK))
                    val = prep
                if S < 7: bgq += dma(S + 3, ffn)
                if S == 0 and ffn and "cse" not in OPT and "cs1" not in OPT: bgq += cs_loads
                if S == 5 and isv:
                    bgq.append([f"s_lshl_b32 s{T3}, s{sW}, 8", f"s_add_u32 s{T3}, s{T3}, {SCR}",
                                "v_lshrrev_b32 v3, 5, v0", "v_lshlrev_b32 v18, 4, v3", f"v_add_u32 v18, s{T3}, v18",
                                "v_bfe_u32 v23, v0, 4, 1", "v_lshlrev_b32 v23, 16, v23", "v_lshl_add_u32 v23, v3, 8, v23",
                                "v_and_b32 v3, 15, v0", "v_lshl_add_u32 v23, v3, 4, v23"])
            elif k == 30:
                a("s_waitcnt vmcnt(0) lgkmcnt(0)")
                val = prep
            else:
                a("s_waitcnt lgkmcnt(0)")
            if k == 31:
                break
            if ffn and k in csv: val = csv[k]
            left = 4 if ks == 3 else 3 - ks
            if k == 27: left = 3
            if not ffn: left = 2 if (ks == 3 and S < 6) else 1
            if ffn and k < 7: left = 2 if ks == 3 else 1
            take = -(-len(bgq) // left)
            extra, bgq = bgq[:take], bgq[take:]
            if ffn and k >= 7:
                nxt = rd1(k + 1, nt, ffn) if k < 27 else \
                    [f"ds_read_b128 {vr(XF + 4 * (28 + j), 4)}, v{XA + j} offset:{sl7}" for j in range(4)] + qrd(0)
            else:
                nxt = [] if k == 30 else rd1(k + 1, nt, ffn) + rd1(k + 2, nt, ffn)
            body = spread(big, nxt, val + [[]] * len(extra) + extra)
            a(body)
        pre = [f"v_and_b32 v{XOP}, v{MASK}, v{STV}", f"v_mov_b32 v{XOP + 3}, 0", f"v_mov_b32 v{XOP + 1}, v{XOP}", f"v_mov_b32 v{XOP + 2}, v{XOP}"]
        corr = [mfma(ACQ + 16 * t, XOP, CSA + 4 * t) if isv else mfma(ACQ + 16 * t, CSA + 4 * t, XOP) for t in range(nt)]
        post = [f"s_lshl_b32 s{T4}, s{sG}, 16", f"s_lshl_b32 s{T2}, s{sT}, 10", f"s_add_u32 s{T4}, s{T4}, s{T2}"]

        def stores(t):
            o = ACQ + 16 * t
            if isv:
                return [[f"buffer_store_dwordx4 {vr(o, 4)}, v23, {sr(S_WS)}, s{T4} offen sc1"],
                        [f"buffer_store_dwordx4 {vr(o + 4, 4)}, v23, {sr(S_WS)}, s{T4} offen offset:512 sc1", f"s_add_u32 s{T4}, s{T4}, 0x20000"]]
            return [[f"buffer_store_dwordx4 {vr(o, 4)}, v{L16}, {sr(S_WS)}, s{T4} offen sc1", f"s_add_u32 s{T4}, s{T4}, 0x10000"],
                    [f"buffer_store_dwordx4 {vr(o + 4, 4)}, v{L16}, {sr(S_WS)}, s{T4} offen sc1", f"s_add_u32 s{T4}, s{T4}, 0x10000"]]
        if not ffn:
            assert not bgq
            stamp(a, 3)
            a(big[:1] + pre + ["s_nop 1"] + big[1:nt] + corr + post + ["s_nop 7"])
            for t in range(nt):
                ac = ACQ + 16 * t
                a(f"s_cmp_lt_u32 s{sG}, {32 - 2 * t}")
                a(f"s_cselect_b32 s{T0}, {hx(f2u(QSCALE))}, 1.0")
                a(f"v_mul_f32 v2, s{T0}, v{RS}")
                a(f"v_mul_f32 v3, s{T0}, v{RS}")
                for i in range(8):
                    a(f"v_pk_mul_f32 {vr(ac + 2 * i, 2)}, {vr(ac + 2 * i, 2)}, v[2:3]")
                for i in range(8):
                    a(f"v_cvt_pk_bf16_f32 v{ac + i}, v{ac + 2 * i}, v{ac + 2 * i + 1}")
                a(stores(t))
            stamp(a, 4)
            a("s_branch L_side")
            continue
        qm = lambda h: [mfma(ACQ + 16 * t, XF + 4 * (28 + 2 * h + q), WF + 16 * h + 8 * q + 4 * t) if isv else
                        mfma(ACQ + 16 * t, WF + 16 * h + 8 * q + 4 * t, XF + 4 * (28 + 2 * h + q)) for q in range(2) for t in range(nt)]
        fm = lambda h: [mfma(ACF + 16 * c, WF + 16 * h + 8 * q + 4 * c, XF + 4 * (20 + 2 * h + q)) for q in range(2) for c in range(2)]
        half = -(-len(bgq) // 2)
        a("s_waitcnt lgkmcnt(0)")
        a(spread(qm(0), qrd(1), pre + bgq[:half]))
        a("s_waitcnt lgkmcnt(0)")
        rsv = lambda g: [f"ds_read_b128 {vr(CSA + 4 * j, 4)}, v18 offset:{(2 * g + j) * 32}" for j in range(2)]
        a(corr + (rsv(0) if isv else []))
        a(spread(qm(1), frd(0), [f"v_subrev_u32 v{WQ + c}, {CR - BR}, v{WC + c}" for c in range(2)] + bgq[half:]))
        adr = [["v_bfe_u32 v2, v0, 4, 1", "v_mul_u32_u24 v2, 28672, v2", "v_lshrrev_b32 v3, 5, v0",
                "v_lshl_add_u32 v2, v3, 9, v2", "v_and_b32 v3, 15, v0", f"v_lshl_add_u32 v{VXS}, v3, 2, v2",
                f"s_lshl_b32 s{sVAR}, s{sCF}, 11", f"s_add_u32 s{sVAR}, s{sVAR}, {WS_CS + 128 * hf}"] + post]
        if isv:
            e1, e2 = [], []
            for t in range(nt):
                ac = ACQ + 16 * t
                e1 += [f"v_mul_f32 v{ac + i}, v{ac + i}, v{CSA + i}" for i in range(8)]
                e2 += [f"v_mul_f32 v{ac + 8 + i}, v{ac + 8 + i}, v{CSA + i}" for i in range(8)]
                e2 += [f"v_cvt_pk_bf16_f32 v{ac + i}, v{ac + 2 * i}, v{ac + 2 * i + 1}" for i in range(4, 8)]
            e1 += rsv(1)
            for t in range(nt):
                ac = ACQ + 16 * t
                e1 += [f"v_cvt_pk_bf16_f32 v{ac + i}, v{ac + 2 * i}, v{ac + 2 * i + 1}" for i in range(4)]
        else:
            e = []
            for t in range(nt):
                ac = ACQ + 16 * t
                e += [[f"s_cmp_lt_u32 s{sG}, {32 - 2 * t}", f"s_cselect_b32 s{T0}, {hx(f2u(QSCALE))}, 1.0", f"v_mul_f32 v2, s{T0}, v{RS}"]]
                e += [f"v_mul_f32 v{ac + i}, v{ac + i}, v2" for i in range(16)]
                e += [f"v_cvt_pk_bf16_f32 v{ac + i}, v{ac + 2 * i}, v{ac + 2 * i + 1}" for i in range(8)]
            e1, e2 = e[:len(e) * 5 // 8], e[len(e) * 5 // 8:]
        a("s_waitcnt lgkmcnt(0)")
        u3 = spread(fm(0), frd(1), adr + e1)
        a(u3)
        a(f"s_waitcnt vmcnt({4 + nvm(u3)}) lgkmcnt(0)")
        if not hf: a(poll_check(f"L_c2{var}", 16))
        a("s_barrier")
        stamp(a, 3)
        c0l = [[f"buffer_load_dword v{r_}, v{VXS}, {sr(S_WS)}, s{sVAR} offen offset:{(i >> 1) * 64 + (i & 1) * 256} sc1"
                for i, r_ in enumerate(C0R)]]
        a(spread(fm(1), rd2(0), c0l + e2))
        for t in range(nt):
            a(stores(t))
        if var != 3:
            a("s_branch L_pass2")
    a("L_pass2:")
    if "p1b" in OPT: NOSTAMP = True
    stamp(a, 4)
    sH = sG
    a(f"s_mul_i32 s{sH}, s{sT}, 112")
    a(f"s_lshl2_add_u32 s{T0}, s{sCF}, s{sHF}")
    a(f"s_lshl1_add_u32 s{sH}, s{T0}, s{sH}")
    a(f"s_lshl_b32 s{sH}, s{sH}, 10")
    a(f"s_add_u32 s{sH}, s{sH}, {WS_H}")
    cRS, cSD, cC2, CO, QP = 22, 23, 19, 132, 140
    q = CSA

    def gelu_plain(g, off):
        u = g + 8
        R = range(8)
        return ([f"v_mul_f32 v{g + i}, v{g + i}, v{cRS}" for i in R] + [f"v_mul_f32 v{q + i}, v{g + i}, v{g + i}" for i in R] +
                [f"v_fmaak_f32 v{q + i}, v{q + i}, v{cC2}, {hx(f2u(GC1))}" for i in R] + [f"v_mul_f32 v{q + i}, v{q + i}, v{g + i}" for i in R] +
                [f"v_exp_f32 v{q + i}, v{q + i}" for i in R] + [f"v_mul_f32 v{g + i}, v{g + i}, v{u + i}" for i in R] +
                [f"v_fma_f32 v{q + i}, v{q + i}, v{cSD}, v{cSD}" for i in R] + [f"v_rcp_f32 v{q + i}, v{q + i}" for i in R] +
                [f"v_mul_f32 v{g + i}, v{g + i}, v{q + i}" for i in R] +
                [f"v_cvt_pk_bf16_f32 v{g + i}, v{g + 2 * i}, v{g + 2 * i + 1}" for i in range(4)] +
                [f"buffer_store_dwordx4 {vr(g, 4)}, v{L16}, {sr(S_WS)}, s{sH} offen offset:{off} sc1"])
    vq = []
    wt = lambda at: sum(2 if (x.startswith("v_exp") or x.startswith("v_rcp")) else 1 for x in ([at] if isinstance(at, str) else at))
    cs_ld = lambda dst, pr: [[f"buffer_load_dword v{dst + 4 * c + i}, v{VXS}, {sr(S_WS)}, s{sVAR} offen offset:{1024 * pr + c * 64 + i * 256} sc1"
                              for c in range(2) for i in range(2)]]
    ts = tr_setup()
    d = dma(10)
    bgq, hist = [ts[0], d[0], ts[1], d[1], d[2], d[3]], []
    after = lambda key: nvm([l for l in hist[len(hist) - hist[::-1].index(key):] if "s62" not in l])
    for v in range(20):
        S, us = 8 + (v >> 2), v & 3
        F = WF + 16 * (v & 1)
        acc, k0 = (ACF, 24 + 2 * v) if v < 4 else (ACQ, 2 * (v - 4))
        big = [mfma(acc + 16 * c, F + 8 * qq + 4 * c, XF + 4 * (k0 + qq), "0" if (v == 4 and qq == 0) else None)
               for qq in range(2) for c in range(2)]
        if us == 3:
            if S == 8:
                a([f"s_cmp_eq_u32 s{sHF}, 0", "s_cbranch_scc1 L_w8", "s_waitcnt vmcnt(6)", "L_w8:", "s_waitcnt vmcnt(8) lgkmcnt(0)"])
            elif S < 12:
                a(f"s_waitcnt vmcnt({after(dma(S + 1)[-1][0]) - 1}) lgkmcnt(0)")
            elif CHK == 11:
                a(f"s_waitcnt vmcnt({after(kv(0)[1][1]) - 1}) lgkmcnt(0)")
            else:
                a("s_waitcnt lgkmcnt(0)")
            if S == CHK:
                a([f"s_cmp_lg_u32 s{sW}, 0", "s_cbranch_scc1 L_w10", f"s_waitcnt vmcnt({after('L_pq:')})", "L_w10:"])
                a(poll_check("L_cq", 32, QP, 4))
            a("s_barrier")
            if "p2b" in OPT: stamp(a, S - 2)
            if S == 8:
                bgq += dma(11)
                for c in range(2):
                    w = CSA + 4 * c
                    vq += [f"v_add_f32 v{w + 3}, v{C0R[2 * c]}, v{C0R[2 * c + 1]}"] + split3(w, w + 3)
                vq += ["UNIT", mfma(ACF, CSA, XOP), mfma(ACF + 16, CSA + 4, XOP),
                       f"v_lshlrev_b32 v{cSD}, 16, v{STV}", f"v_mov_b32 v{cC2}, {hx(f2u(GC2))}", "UNIT"]
                vq += (gelu_plain(ACF, 0) if NBG > 0 else []) + (gelu_plain(ACF + 16, 1024) if NBG > 1 else [])
            if S == 9:
                bgq += [sig_qkv("L_sq")] + cs_ld(CO, 1) + dma(12) + tr_dma()
            if S == 10:
                bgq += [tr_addr(TRA, 2, 3) + [f"s_lshl1_add_u32 s{T2}, s{sLW}, {SCR}", f"v_add_u32 v{TRA}, s{T2}, v{TRA}", f"v_xor_b32 v{TRA + 1}, 32, v{TRA}"]]
            if S == 12:
                assert CHK == 11
                bgq += [tr_rd()]
            if S == CHK - 1:
                bgq += [[]] * (2 - len(bgq)) + [poll_issue("L_pq", QKV_MASK, QP)]
            if S == 11 and CHK == 11:
                bgq += kv(0) + kv(1) + [q_load()] + kv(2)
            if S == 12:
                bgq += kv(3) if CHK == 11 else kv(0) + [q_load()] + kv(1)
                if "prio" in OPT:
                    a("s_setprio 1")
                    a(lead(2))
        else:
            a("s_waitcnt lgkmcnt(0)")
        if v == 16:
            for c in range(2):
                w = CO + 4 * c
                vq += [f"v_add_f32 v{w + 3}, v{w}, v{w + 1}"] + split3(w, w + 3) + [["s_nop 1", mfma(ACQ + 16 * c, w, XOP)]]
            vq += p2_init_v()
        left = 1 if v == 19 else (4 if us == 3 else 3 - us)
        take = -(-len(bgq) // left)
        extra, bgq = bgq[:take], bgq[take:]
        val, budget = [], (1000 if v == 19 else VBUD)
        while vq and vq[0] != "UNIT" and budget > 0:
            budget -= wt(vq[0])
            val.append(vq.pop(0))
        if vq and vq[0] == "UNIT":
            vq.pop(0)
        body = spread(big, rd2(v + 1) if v < 19 else [], val[:len(val) // 2] + extra + val[len(val) // 2:])
        hist += body
        a(body)
    assert not bgq and not vq
    if "p2b" in OPT: NOSTAMP = True
    stamp(a, 5)
    RS2, SD2 = 240, 242
    a(f"v_mov_b32 v{RS2}, v{cRS}")
    a(f"v_mov_b32 v{RS2 + 1}, v{cRS}")
    a(f"v_mov_b32 v{SD2}, v{cSD}")
    a(f"v_mov_b32 v{SD2 + 1}, v{cSD}")
    a(f"v_mov_b32 v248, v{cC2}")
    a(f"v_mov_b32 v249, v{cC2}")
    a(f"v_mov_b32 v250, {hx(f2u(GC1))}")
    a("v_mov_b32 v251, v250")
    a("s_nop 5")
    for c in range(NBG - 2, 2):
        g = ACQ + 16 * c
        u = g + 8
        q = 32 + (c & 1) * 8
        o = 56 + c * 4
        if c == 0:
            a(f"s_add_u32 s{sH}, s{sH}, 4096")
        for i in range(4):
            a(f"v_pk_mul_f32 {vr(g + 2 * i, 2)}, {vr(g + 2 * i, 2)}, {vr(RS2, 2)}")
        for i in range(4):
            a(f"v_pk_mul_f32 {vr(q + 2 * i, 2)}, {vr(g + 2 * i, 2)}, {vr(g + 2 * i, 2)}")
        for i in range(4):
            a(f"v_pk_fma_f32 {vr(q + 2 * i, 2)}, {vr(q + 2 * i, 2)}, v[248:249], v[250:251]")
        for i in range(4):
            a(f"v_pk_mul_f32 {vr(q + 2 * i, 2)}, {vr(q + 2 * i, 2)}, {vr(g + 2 * i, 2)}")
        for i in range(8):
            a(f"v_exp_f32 v{q + i}, v{q + i}")
        for i in range(4):
            a(f"v_pk_mul_f32 {vr(g + 2 * i, 2)}, {vr(g + 2 * i, 2)}, {vr(u + 2 * i, 2)}")
        for i in range(4):
            a(f"v_pk_fma_f32 {vr(q + 2 * i, 2)}, {vr(q + 2 * i, 2)}, {vr(SD2, 2)}, {vr(SD2, 2)}")
        for i in range(8):
            a(f"v_rcp_f32 v{q + i}, v{q + i}")
        a("s_nop 0")
        for i in range(4):
            a(f"v_pk_mul_f32 {vr(g + 2 * i, 2)}, {vr(g + 2 * i, 2)}, {vr(q + 2 * i, 2)}")
        for i in range(4):
            a(f"v_cvt_pk_bf16_f32 v{o + i}, v{g + 2 * i}, v{g + 2 * i + 1}")
        a(f"buffer_store_dwordx4 {vr(o, 4)}, v{L16}, {sr(S_WS)}, s{sH} offen offset:{(c & 1) * 1024} sc1")
        if CHK == 12 and c >= 0:
            a(kv(2 + c))
        if c == 0:
            a(lead(0))
    a("s_waitcnt lgkmcnt(0)")
    a(tr_st())
    a(f"s_waitcnt vmcnt({after(q_load()[-1]) + (4 if CHK == 11 else 8) + 2 - NBG})")
    if CHK == 12:
        a("s_barrier")


VARS = (0, 4, 5, 1, 2, 3)
VBUD = 15
NBG = 2
OSL = 2
CSO = 2
WK = 8
C0R = (9, 19, 21, 1)
SIGU, CHK = 7, 11


def gen_side(a):
    a("L_side:")
    global NOSTAMP
    NOSTAMP = "side" not in OPT
    a(p2_init_v())
    a("s_waitcnt vmcnt(0)")
    a("s_barrier")
    a(sig_qkv("L_sq2"))
    stamp(a, 10)
    a(sig_one("L_h_ns2", [f"s_add_u32 s{T0}, s{sRB}, {C_H}"]))
    a(poll_issue("L_pq2", QKV_MASK))
    a("s_waitcnt vmcnt(0)")
    a(poll_check("L_cq2", 32, POLL, 6))
    a("s_barrier")
    a(kv(0))
    a(q_load())
    a(kv(1))
    a("s_waitcnt vmcnt(2)")
    a("s_barrier")
    a(kv(2))
    a(kv(3))
    if "prio" in OPT:
        a("s_setprio 1")
        a(lead(2))
    a("s_branch L_p2")
    a("L_side1:")
    a([f"s_cmp_lg_u32 s{sW}, 7", "s_cbranch_scc1 L_nozero", f"s_mul_i32 s{T0}, s2, 1536", f"s_add_u32 s{T0}, s{T0}, s{sCNT}",
       "v_mov_b32 v1, 0", "v_lshlrev_b32 v2, 7, v0", "s_mov_b64 exec, 0xfff",
       f"buffer_store_dword v1, v2, {sr(S_WS)}, s{T0} offen sc1", "s_mov_b64 exec, -1", "L_nozero:"])
    XW, QW, CW = 32, 64, 128
    LO, HI, ON = 18, 19, 22
    a("v_lshrrev_b32 v1, 3, v0")
    a("v_and_b32 v2, 7, v0")
    a("v_lshlrev_b32 v2, 4, v2")
    a("v_lshl_add_u32 v3, v1, 10, v2")
    a(f"s_lshl3_add_u32 s{tVM + 1}, s2, s{sW}")
    a(f"s_lshl_b32 s{T0}, s{tVM + 1}, 13")
    for q in range(8):
        a(f"buffer_load_dwordx4 {vr(XW + 4 * q, 4)}, v3, {sr(S_X)}, s{T0} offen offset:{128 * q}")
    sU = sVAR
    a(f"s_and_b32 s{sU}, s{sRB}, 3")
    a(f"s_lshl3_add_u32 s{sU}, s{sU}, s{sW}")
    a(f"s_sub_u32 s{T1}, 31, s{sU}")
    a(f"s_lshl3_add_u32 s41, s{T1}, s{sXCD}")
    a("s_lshl_b32 s41, s41, 8")
    a(f"s_add_u32 s41, s41, {WS_CQ}")
    a(f"s_lshl_b32 s{T0}, s{T1}, 7")
    a(f"s_mul_i32 s{T2}, s{sXCD}, {64 * 3072}")
    a(f"s_add_u32 s{T0}, s{T0}, s{T2}")
    a(f"s_cmp_lt_u32 s{T1}, 24")
    a(f"s_cselect_b32 s{T0}, s{T0}, {OOB}")
    a(f"s_cselect_b32 s41, s41, {OOB}")
    a("v_mul_u32_u24 v3, 3072, v1")
    a("v_add_u32 v3, v3, v2")
    for q in range(8):
        a(f"buffer_load_dwordx4 {vr(QW + 4 * q, 4)}, v3, {sr(S_W0)}, s{T0} offen")
        if q != 7:
            a(f"s_add_u32 s{T0}, s{T0}, {8 * 3072}")
    a(f"v_mov_b32 v{LO}, 0x00003f80")
    a(f"v_mov_b32 v{HI}, 0x3f800000")
    a(f"v_mov_b32 v{ON}, 0x3f803f80")
    RU = 96
    for i in range(0, 28, 2):
        a(f"v_mov_b64 v[{RU + i}:{RU + i + 1}], 0")
    a(["v_and_b32 v2, 8, v0", "v_cmp_eq_u32 vcc, 0, v2", f"v_and_b32 v{POLL}, 7, v0", f"v_lshlrev_b32 v{POLL}, 3, v{POLL}",
       "v_lshrrev_b32 v3, 4, v0", f"v_add_u32 v{POLL}, v{POLL}, v3", "v_lshrrev_b32 v2, 1, v2", f"v_add_u32 v{POLL}, v{POLL}, v2",
       f"v_lshlrev_b32 v{POLL}, 2, v{POLL}"])
    stamp(a, 8)
    m, v_ = RU + 24, RU + 25
    for q in range(8):
        a(f"s_waitcnt vmcnt({15 - q})")
        for i in range(4):
            a(f"v_dot2c_f32_bf16 v{m + 2 * (i & 1)}, v{XW + 4 * q + i}, v{ON}")
            a(f"v_dot2c_f32_bf16 v{v_ + 2 * (i & 1)}, v{XW + 4 * q + i}, v{XW + 4 * q + i}")
    a("s_nop 2")
    a(f"v_add_f32 v{m}, v{m}, v{m + 2}")
    a(f"v_add_f32 v{v_}, v{v_}, v{v_ + 2}")
    for md in ("quad_perm:[1,0,3,2]", "quad_perm:[2,3,0,1]", "row_half_mirror"):
        a("s_nop 0")
        a(f"v_add_f32_dpp v{m}, v{m}, v{m} {md} row_mask:0xf bank_mask:0xf")
        a(f"v_add_f32_dpp v{v_}, v{v_}, v{v_} {md} row_mask:0xf bank_mask:0xf")
    a([f"v_mul_f32 v{m}, {hx(f2u(-1.0 / 512))}, v{m}", f"v_mul_f32 v{v_}, {hx(f2u(1.0 / 512))}, v{v_}",
       f"v_fma_f32 v{v_}, -v{m}, v{m}, v{v_}", f"v_max_f32 v{v_}, 0, v{v_}",
       f"v_cvt_pk_bf16_f32 v{v_}, v{v_}, v{v_}", f"v_and_b32 v{v_}, v{MASK}, v{v_}",
       f"v_add_f32 v{v_}, {hx(f2u(1e-5))}, v{v_}",
       f"v_cvt_pk_bf16_f32 v{v_}, v{v_}, v{v_}", f"v_and_b32 v{v_}, v{MASK}, v{v_}",
       f"v_sqrt_f32 v{v_}, v{v_}", "v_lshlrev_b32 v1, 2, v1",
       f"v_cvt_pk_bf16_f32 v{m}, v{v_}, v{m}",
       f"v_lshlrev_b32 v{v_}, 16, v{m}", f"v_rcp_f32 v{v_}, v{v_}",
       f"s_lshl_b32 s{T0}, s{tVM + 1}, 5", f"s_add_u32 s{T0}, s{T0}, {WS_ST}", f"s_add_u32 s{T1}, s{T0}, {WS_RS - WS_ST}",
       f"s_mov_b32 exec_lo, 0x01010101", "s_mov_b32 exec_hi, 0x01010101",
       f"buffer_store_dword v{m}, v1, {sr(S_WS)}, s{T0} offen sc1",
       f"buffer_store_dword v{v_}, v1, {sr(S_WS)}, s{T1} offen sc1", "s_mov_b64 exec, -1"])

    def colsum(src, n, acc, behind):
        for q in range(n):
            a(f"s_waitcnt vmcnt({n - 1 - q + behind})")
            for i in range(4):
                a(f"v_dot2c_f32_bf16 v{acc + 2 * i}, v{src + 4 * q + i}, v{LO}")
                a(f"v_dot2c_f32_bf16 v{acc + 2 * i + 1}, v{src + 4 * q + i}, v{HI}")
        a("s_nop 2")
        for i in range(4):
            a(f"v_permlane16_swap_b32 v{acc + 2 * i}, v{acc + 2 * i + 1}")
        for i in range(4):
            a(f"v_add_f32 v{acc + 2 * i}, v{acc + 2 * i}, v{acc + 2 * i + 1}")
        a(["s_nop 1", f"v_permlane32_swap_b32 v{acc}, v{acc + 2}", f"v_permlane32_swap_b32 v{acc + 4}, v{acc + 6}",
           f"v_add_f32 v{acc}, v{acc}, v{acc + 2}", f"v_add_f32 v{acc + 4}, v{acc + 4}, v{acc + 6}", "s_nop 1",
           f"v_add_f32_dpp v{acc}, v{acc}, v{acc} row_ror:8 row_mask:0xf bank_mask:0xf",
           f"v_add_f32_dpp v{acc + 4}, v{acc + 4}, v{acc + 4} row_ror:8 row_mask:0xf bank_mask:0xf",
           f"v_cndmask_b32 v{acc + 1}, v{acc + 4}, v{acc}, vcc"])
    colsum(QW, 8, RU, 2)
    a(f"buffer_store_dword v{RU + 1}, v{POLL}, {sr(S_WS)}, s41 offen sc1")
    a(dma(0, False))
    a("s_waitcnt vmcnt(4)")
    a("s_barrier")
    a(cs_signal("L_scs0", 0))
    stamp(a, 12)
    a(dma(1, False))
    stamp(a, 9)
    a(f"s_cmp_eq_u32 s{sHF}, 0")
    a("s_cbranch_scc1 L_p1_4")
    a("s_branch L_p1_5")


def att_step(i, ex=None, first=False):
    ex = ex or {}
    Sc, Sn = (S0, S1) if i % 2 == 0 else (S1, S0)
    Kn = K_ + 4 * ((i + 1) % 2)
    Vc = V_ + 8 * (i % 4)
    Vp = V_ + 8 * ((i - 1) % 4)
    e = lambda k: f"v_exp_f32 v{Sc + k}, v{Sc + k}"
    c = lambda k: f"v_cvt_pk_bf16_f32 v{P_ + k}, v{Sc + 2 * k}, v{Sc + 2 * k + 1}"
    r = [mfma(Sn, Kn, Q_, NM),
         f"ds_read_b128 {vr(Kn, 4)}, v{AK} offset:{(i + 3) * 2048}"]
    r += ex.get("qk", [])
    r += [e(0), e(1), e(2), e(3)]
    if not first:
        r.append(mfma(O_, Vp + 4, P_ + 4))
    if i % 2 == 0:
        r.append(f"s_mov_b64 exec, s[{tVM}:{tVM + 1}]")
        for d in (2, 3):
            vb = V_ + 8 * ((i + d) % 4)
            r.append(f"ds_read_b128 {vr(vb, 4)}, v{AV} offset:{(i + d) * 2048}")
            r.append(f"ds_read_b128 {vr(vb + 4, 4)}, v{AV} offset:{(i + d) * 2048 + 512}")
        r.append("s_mov_b64 exec, -1")
    r += ex.get("pv1", [])
    if "G2" in ex:
        r += [c(0), e(4), e(5), c(1)]
        r += [ex["G1"]] + ex.get("g1", [])
        r += [e(6), e(7), e(8), c(2), c(3), e(9)]
        r += ["s_nop 0", mfma(O_, Vc, P_)]
        if i % 2 == 1: r.append("s_waitcnt lgkmcnt(0)")
        r += ex.get("pv0", [])
        r += [e(10), e(11), c(4), e(12), c(5)]
        r += [ex["G2"]] + ex.get("g2", [])
        r += [e(13), e(14), e(15), c(6), c(7)]
    else:
        r += [c(0), e(4), e(5), c(1), e(6), e(7)]
        if "G1" in ex:
            r += [ex["G1"]]
        r += ex.get("g1", [])
        r += [e(8), c(2), c(3), e(9), e(10), e(11)]
        r += ex.get("prepv0", [])
        r.append(mfma(O_, Vc, P_, "0" if first else None))
        if i % 2 == 1: r.append("s_waitcnt lgkmcnt(0)")
        r += ex.get("pv0", [])
        r += [c(4), e(12), e(13), c(5), e(14), e(15), c(6), c(7)]
    r += ex.get("end", [])
    return r


def ring_loads(r):
    b = RING + 16 * r
    return [f"buffer_load_dwordx4 {vr(b, 4)}, v{A16}, {sr(R_H0)}, s{tFH} offen sc1",
            f"buffer_load_dwordx4 {vr(b + 4, 4)}, v{A16}, {sr(R_H1)}, s{tFH} offen sc1",
            f"buffer_load_dwordx4 {vr(b + 8, 4)}, v{A16}, {sr(R_WT)}, s{tFW} offen sc1",
            f"buffer_load_dwordx4 {vr(b + 12, 4)}, v{A16}, {sr(R_WT)}, s{tFW} offen offset:1024 sc1",
            f"s_add_u32 s{tFH}, s{tFH}, 1024",
            f"s_add_u32 s{tFW}, s{tFW}, 2048"]


def gm(r, n):
    b = RING + 16 * r
    return mfma(G_ + 16 * n, b + 8 + 4 * (n & 1), b + 4 * (n >> 1))


_pl = [0]
PC = (2, 6)
PD = 7
PG = 2


def lead(p, cond=None):
    if "prio" not in OPT:
        return []
    _pl[0] += 1
    lb = f"L_pr{_pl[0]}"
    c = [f"s_cmp_lt_u32 s{sW}, 4"] if cond is None else cond
    return c + [f"s_cbranch_scc0 {lb}", f"s_setprio {p}", f"{lb}:"]


def recentre(ex, i, at):
    if i == at:
        ex["prepv0"] = [f"v_frexp_exp_i32_f32 v4, v{O_ + 8}"]
        ex["end"] = [f"v_add_u32 v4, {int(MAXOFF) - 1}, v4", "v_max_i32 v4, 0, v4", "v_cvt_f32_i32 v2, v4", f"v_sub_f32 v2, v{NM}, v2",
                     "v_sub_u32 v4, 0, v4", "v_mov_b32 v3, v2"] + [f"v_mov_b64 v[{NM + j}:{NM + j + 1}], v[2:3]" for j in range(0, 16, 2)] + \
                    ["s_nop 1"] + ex.get("end", [])
    if i == at + 2:
        ex["prepv0"] = [f"v_ldexp_f32 v{O_ + j}, v{O_ + j}, v4" for j in range(9)] + ["s_nop 1"]


def adv(a):
    a(f"v_add_u32 v{AK}, 0x4000, v{AK}")
    a(f"v_add_u32 v{AV}, 0x4000, v{AV}")


def gen_p2(a):
    a("L_p2:")
    if ENC == 99:
        a(["s_lshr_b32 s76, s2, 3", f"s_lshl3_add_u32 s76, s76, s{sW}", "s_cmp_lg_u32 s76, 32", "s_cbranch_scc1 L_nosk",
           "s_not_b32 s76, s80", "v_mov_b32 v1, 0", "v_mov_b32 v2, s76", "s_mov_b64 exec, 1",
           f"global_atomic_umax v1, v2, s[{pDBG}:{pDBG + 1}] offset:240 sc1", "s_mov_b64 exec, -1", "L_nosk:"])
    stamp(a, 6)
    a(f"v_mov_b32 v{A16}, v{L16}")
    a(f"v_mov_b32 v{AK}, v{L16}")
    a("v_lshrrev_b32 v2, 5, v0")
    a("v_and_b32 v3, 15, v0")
    a("v_lshlrev_b32 v3, 4, v3")
    a("v_lshl_add_u32 v3, v2, 8, v3")
    a(f"v_add_u32 v{AV}, 1024, v3")
    a(f"s_mov_b32 s{tVM}, 0x0000ffff")
    a(f"s_mov_b32 s{tVM + 1}, 0x0000ffff")
    a(f"ds_read_b128 {vr(K_, 4)}, v{AK}")
    a(f"ds_read_b128 {vr(K_ + 4, 4)}, v{AK} offset:2048")
    a(f"s_mov_b64 exec, s[{tVM}:{tVM + 1}]")
    for d in range(2):
        a(f"ds_read_b128 {vr(V_ + 8 * d, 4)}, v{AV} offset:{d * 2048}")
        a(f"ds_read_b128 {vr(V_ + 8 * d + 4, 4)}, v{AV} offset:{d * 2048 + 512}")
    a("s_mov_b64 exec, -1")
    a(f"s_lshr_b32 s{T0}, s{sW}, 2")
    a(f"s_lshl1_add_u32 s{tTT}, s{tHEAD}, s{T0}")
    a(f"s_lshl_b32 s{T0}, s{tTT}, 15")
    a(f"s_lshl_b32 s{T1}, s{tQB}, 7")
    a(f"s_add_u32 s{T0}, s{T0}, s{T1}")
    a(f"s_and_b32 s{T1}, s{sW}, 3")
    if "coal" in OPT:
        a(f"s_lshl_b32 s{T1}, s{T1}, 13")
        a(f"s_add_u32 s{T0}, s{T0}, s{T1}")
        a("v_lshrrev_b32 v1, 3, v0")
        a("v_lshlrev_b32 v1, 10, v1")
        a("v_and_b32 v2, 7, v0")
        a("v_lshl_add_u32 v1, v2, 4, v1")
    else:
        a(f"s_lshl4_add_u32 s{T0}, s{T1}, s{T0}")
        a("v_and_b32 v1, 31, v0")
        a("v_lshlrev_b32 v1, 10, v1")
        a("v_lshl_add_u32 v1, v2, 6, v1")
    a(f"v_add_u32 v{AOUT}, s{T0}, v1")
    a("s_waitcnt lgkmcnt(4)")
    a(mfma(S0, K_, Q_, "0"))
    a(mfma(S1, K_ + 4, Q_, "0"))
    a(f"s_mul_i32 s{T0}, s{tHEAD}, {224 * 1024}")
    a(f"s_add_u32 s{T0}, s{T0}, {WS_H}")
    a(f"s_add_u32 s{R_H0}, s{pWS}, s{T0}")
    a(f"s_addc_u32 s{R_H0 + 1}, s{pWS + 1}, 0")
    a(f"s_add_u32 s{R_H1}, s{R_H0}, {112 * 1024}")
    a(f"s_addc_u32 s{R_H1 + 1}, s{R_H0 + 1}, 0")
    a(f"s_mul_i32 s{tFH}, s{sW}, {14 * 1024}")
    a(f"s_add_u32 s{R_H0 + 2}, s{tFH}, {14 * 1024}")
    a(f"s_mov_b32 s{R_H1 + 2}, s{R_H0 + 2}")
    a(f"s_mul_i32 s{T0}, s{tQB}, {144 * 2048}")
    a(f"s_add_u32 s{T0}, s{T0}, {WS_WT}")
    a(f"s_add_u32 s{R_WT}, s{pWS}, s{T0}")
    a(f"s_addc_u32 s{R_WT + 1}, s{pWS + 1}, 0")
    a(f"s_lshl_b32 s{tFW}, s{tFH}, 1")
    a(f"s_lshl_b32 s{R_WT + 2}, s{R_H0 + 2}, 1")
    a(f"v_max3_f32 v1, v{S0}, v{S0 + 1}, v{S0 + 2}")
    for i in range(3, 31, 2):
        a(f"v_max3_f32 v1, v1, v{S0 + i}, v{S0 + i + 1}")
    a(f"v_max_f32 v1, v1, v{S0 + 31}")
    a("v_mov_b32 v2, v1")
    a("s_nop 1")
    a("v_permlane32_swap_b32 v1, v2")
    a("v_max_f32 v1, v1, v2")
    a("v_floor_f32 v1, v1")
    a(f"v_sub_f32 v2, {hx(f2u(-MAXOFF))}, v1")
    a("v_mov_b32 v3, v2")
    for i in range(0, 16, 2):
        a(f"v_mov_b64 v[{NM + i}:{NM + i + 1}], v[2:3]")
    a("s_nop 1")
    a(mfma(S0, K_, Q_, NM))
    a(f"ds_read_b128 {vr(K_, 4)}, v{AK} offset:4096")
    srd(a, R_OUT, pOUT, 2097152)
    a(f"s_lshl_b32 s{T0}, s{sW}, 11")
    a(f"v_add_u32 v{AW}, s{T0}, v{A16}")
    a(f"v_add_u32 v{AW + 1}, 0x10000, v{AW}")
    a(f"v_add_u32 v{AW + 2}, 0x20000, v{AW}")
    a("s_waitcnt lgkmcnt(0)")
    a("s_nop 1")
    a(lead(2))
    stamp(a, 7)
    global NOSTAMP
    if "side" in OPT: NOSTAMP = True
    for i in range(8):
        ex = {}
        if i == 4:
            d1, d2 = (stampl(1), stampl(2)) if "p3b" in OPT else ([], [])
            ex["end"] = d1 + ["s_waitcnt vmcnt(0)", "s_barrier"] + d2 + sig_one("L_h_ns", [f"s_add_u32 s{T0}, s{sRB}, {C_H}"], True) + lead(2)
        if i == 3:
            ex["pv0"] = lead(0)
        if i >= 5:
            ex["pv1"], ex["pv0"] = kv(i - 1, A16)
        if "rc0" in OPT: recentre(ex, i, 5)
        a(att_step(i, ex, first=(i == 0)))
    adv(a)
    for i in range(8):
        ex = {}
        if i == 0:
            ex["pv1"], ex["pv0"] = kv(7, A16)
            ex["qk"] = [f"v_mov_b64 v[{RING}:{RING + 1}], 0", f"v_mov_b64 v[{RING + 2}:{RING + 3}], 0"]
        if i < 4:
            ex["G1"] = mfma(G_ + 16 * i, RING, RING, "0")
        if i == 3:
            ex["pv0"] = poll_issue("L_h_np", H_MASK, 7) + lead(0)
        if i == 4:
            d1, d2 = (stampl(3), stampl(4)) if "p3b" in OPT else ([], [])
            ex["end"] = d1 + ["s_waitcnt vmcnt(0)"] + poll_check("L_ch", 16, 7, 16) + ["s_barrier"] + d2 + lead(2)
        if i in (5, 6, 7):
            l = ring_loads(i - 5)
            ex["qk"] = l[0:1]
            ex["pv1"] = l[1:3]
            ex["pv0"] = l[3:6]
        if "rc1" in OPT: recentre(ex, i, 5)
        if "rc2" in OPT: recentre(ex, i, 0)
        a(att_step(i, ex))
    stamp(a, 8)
    a(f"s_mov_b32 s{tIT}, 5")
    a(f"s_lshr_b32 s{sG}, s{sW}, 2")
    a(f"s_lshl_b32 s{sG}, s{sG}, 4")
    a(f"s_add_u32 s{sG}, s{sG}, {PC[0]}")
    a("L_loop:")
    adv(a)
    plan = [[(0, 0)], [(0, 1), (0, 2)], [(0, 3)], [(1, 0), (1, 1)], [(1, 2)], [(1, 3), (2, 0)], [(2, 1)], [(2, 2), (2, 3)]]
    for i in range(8):
        ex = {}
        ex["G1"] = gm(*plan[i][0])
        if len(plan[i]) > 1:
            ex["G2"] = gm(*plan[i][1])
        if i == 0: ex["qk"] = ["s_waitcnt vmcnt(8)"]
        if i == PC[1]: ex["end"] = lead(0, [f"s_cmp_eq_u32 s{tIT}, s{sG}"])
        if i == 2:
            l = ring_loads(0)
            ex["g1"] = l[0:2]
            ex["pv0"] = l[2:6]
        if i == 3: ex["pv1"] = ["s_waitcnt vmcnt(8)"]
        if i == 5:
            l = ring_loads(1)
            ex["g1"] = l[0:2]
            ex["pv0"] = l[2:6] + ["s_waitcnt vmcnt(8)"]
        if i == 7:
            ex["g2"] = ring_loads(2)
        a(att_step(i, ex))
    a(f"s_sub_u32 s{tIT}, s{tIT}, 1")
    a(f"s_cmp_lg_u32 s{tIT}, 0")
    a("s_cbranch_scc1 L_loop")
    adv(a)
    a(f"s_and_b32 s{tFW}, s{sW}, 3")
    a(f"s_lshl_b32 s{tFW}, s{tFW}, 14")
    a(f"s_add_u32 s{tFW}, s{tFW}, {112 * 2048}")
    a(f"s_mov_b32 s{R_WT + 2}, {144 * 2048}")
    if "p3b" in OPT: stamp(a, 5)
    a("s_barrier")
    if "p3b" in OPT: stamp(a, 6)
    a(lead(2))

    def pw(o):
        base, off = (AW, o * 16384) if o < 4 else ((AW + 1, (o - 4) * 16384) if o < 6 else (AW + 2, (o - 6) * 16384))
        if "coal" in OPT:
            base, off = (AW, o * 16448) if o < 4 else ((AW + 1, o * 16448 - 65536) if o < 7 else (AW + 2, 192))
        return [f"ds_write_b128 v{base}, {vr(G_ + 8 * o, 4)} offset:{off}",
                f"ds_write_b128 v{base}, {vr(G_ + 8 * o + 4, 4)} offset:{off + 1024}"]

    XV = 244
    wreg = lambda i: RING + 4 * i if i < 12 else NM + 4 * (i - 12)

    def wol(g):
        return [f"buffer_load_dwordx4 {vr(wreg(4 * g + q), 4)}, v{A16}, {sr(R_WT)}, s{tFW} offen offset:{q * 1024} sc1" for q in range(4)] + \
               [f"s_add_u32 s{tFW}, s{tFW}, 4096"]
    for i in range(8):
        ex = {}
        if i == 0: ex["pv0"] = [f"buffer_load_dwordx4 {vr(XV, 4)}, v{AOUT}, {sr(S_X)}, 0 offen"]
        if i in (1, 3, 5): ex["pv1"], ex["g1"] = wol(i // 2)[:1], wol(i // 2)[1:2]
        if i in (2, 4, 6): ex["g1"], ex["pv0"] = wol(i // 2 - 1)[2:3], wol(i // 2 - 1)[3:]
        if i == PD: ex["end"] = lead(0)
        a(att_step(i, ex))
    a("s_nop 1")
    a(mfma(O_, V_ + 24 + 4, P_ + 4))
    a("s_nop 1")
    a(f"s_lshl_b32 s{T0}, s{sQT}, 5")
    a(f"s_add_u32 s{T0}, s{T0}, s{tHEAD}")
    a(f"s_lshl_b32 s{T0}, s{T0}, 10")
    a(f"s_add_u32 s{T3}, s{T0}, {WS_O}")
    a(f"v_mov_b32 v2, {hx(f2u(2.0 ** 120))}")
    a(f"v_mov_b32 v3, {hx(f2u(2.0 ** -(MAXOFF + 4)))}")
    a("s_waitcnt lgkmcnt(0)")
    a("s_nop 3")
    stamp(a, 9)
    a(f"v_add_f32 v1, |v{O_}|, |v{O_ + 1}|")
    for i in range(2, 8):
        a(f"v_add_f32 v1, v1, |v{O_ + i}|")
    a(f"v_cmp_lt_f32 s[40:41], v{O_ + 8}, v2")
    a("v_cmp_lt_f32 s[42:43], v1, v2")
    a(f"v_cmp_le_f32 s[50:51], 0.5, v{O_ + 8}")
    a("v_cmp_le_f32 vcc, v3, v1")
    a("s_or_b64 s[50:51], s[50:51], vcc")
    a("s_and_b64 s[40:41], s[40:41], s[42:43]")
    a("s_and_b64 s[40:41], s[40:41], s[50:51]")
    a("s_cmp_eq_u64 s[40:41], -1")
    a("s_cbranch_scc0 L_fallback")
    a("L_norm:")
    a(f"v_rcp_f32 v2, v{O_ + 8}")
    a("s_nop 0")
    for i in range(8):
        a(f"v_mul_f32 v{O_ + i}, v{O_ + i}, v2")
    for i in range(4):
        a(f"v_cvt_pk_bf16_f32 v{4 + i}, v{O_ + 2 * i}, v{O_ + 2 * i + 1}")
    a(f"buffer_store_dwordx4 v[4:7], v{A16}, {sr(S_WS)}, s{T3} offen sc1")
    a(wol(3)[:4])
    for o in range(8):
        a(pw(o))
    if "coal" in OPT:
        a(f"s_and_b32 s{T0}, s{sW}, 4")
        a(f"s_and_b32 s{T1}, s{sW}, 3")
        a(f"s_lshl_b32 s{T1}, s{T1}, 7")
        a("v_and_b32 v1, 3, v0")
        a(f"v_add_u32 v1, s{T0}, v1")
        a("v_bfe_u32 v2, v0, 2, 1")
        a("v_lshrrev_b32 v3, 3, v0")
        a("v_lshl_add_u32 v2, v2, 5, v3")
        a("v_lshlrev_b32 v2, 4, v2")
        a(f"v_add_u32 v2, s{T1}, v2")
        a("v_cmp_eq_u32 vcc, 7, v1")
        a("v_mul_u32_u24 v3, 16448, v1")
        a(f"v_mul_u32_u24 v1, 8256, v1")
        a(f"v_add_u32 v{AK}, v1, v2")
        a(f"v_mov_b32 v1, {131072 + 192}")
        a("v_cndmask_b32 v3, v3, v1, vcc")
        a("v_add_u32 v3, v3, v2")
    else:
        a(f"s_lshl_b32 s{T0}, s{sW}, 14")
        a(f"s_add_u32 s{T1}, s{T0}, 0x8000")
        a(f"s_cmp_lt_u32 s{sW}, 6")
        a(f"s_cselect_b32 s{T0}, s{T0}, s{T1}")
        a(f"v_add_u32 v3, s{T0}, v{A16}")
    if "pws" in OPT:
        a(f"s_lshr_b32 s{T0}, s{sXCD}, 1")
        a(f"s_lshl2_add_u32 s{T0}, s{sQT}, s{T0}")
        a(f"s_lshl_b32 s{T0}, s{T0}, 7")
        a(f"s_add_u32 s{T0}, s{T0}, {WS_CNT + 0x4000}")
        a("v_mov_b32 v1, 1")
        a(f"s_and_b32 s42, s{sW}, 3")
        a(f"s_lshl2_add_u32 s42, s{tTT}, s42")
        a(f"s_lshl_b32 s42, s42, 7")
        a(f"s_add_u32 s42, s42, {WS_CNT + 0x4000}")
        a("s_waitcnt vmcnt(4)")
        a("s_mov_b64 exec, 1")
        a(f"buffer_atomic_add v1, off, {sr(S_WS)}, s{T0} sc1")
        a("s_mov_b64 exec, -1")
        a("s_waitcnt lgkmcnt(0)")
        a("s_barrier")
        if "tp" in OPT: a(lead(2))
        stamp(a, 10)
        if "oe" in OPT:
            a(f"buffer_load_dword v5, off, {sr(S_WS)}, s42 sc1")
    else:
        a("s_waitcnt vmcnt(4) lgkmcnt(0)")
        a("s_barrier")
        if "tp" in OPT: a(lead(2))
        stamp(a, 10)
        a(f"s_cmp_lg_u32 s{sW}, 0")
        a("s_cbranch_scc1 L_o_ns")
        if "ok4" in OPT:
            a(f"s_lshr_b32 s{T0}, s{sXCD}, 1")
            a(f"s_lshl2_add_u32 s{T0}, s{tQB}, s{T0}")
            a(f"s_lshl_b32 s{T0}, s{T0}, 8")
        else:
            a(f"s_lshl_b32 s{T0}, s{tQB}, 8")
        if "rep" in OPT:
            a(f"s_lshl2_add_u32 s{T0}, s{T0}, {WS_CNT + 0x4000}")
            a("v_mov_b32 v1, 1")
            a("v_lshlrev_b32 v2, 7, v0")
            a("s_mov_b64 exec, 255")
            a(f"buffer_atomic_add v1, v2, {sr(S_WS)}, s{T0} offen sc1")
        else:
            a(f"s_add_u32 s{T0}, s{T0}, {WS_CNT + C_O * 256}")
            a("v_mov_b32 v1, 1")
            a("s_mov_b64 exec, 1")
            a(f"buffer_atomic_add v1, off, {sr(S_WS)}, s{T0} sc1")
        a("s_mov_b64 exec, -1")
        a("L_o_ns:")
        if "ok4" in OPT:
            a(f"s_and_b32 s42, s{sW}, 3")
            a(f"s_lshl2_add_u32 s42, s{sXCD}, s42")
            if "rep" in OPT:
                a(f"s_lshl3_add_u32 s42, s42, s{tQB}")
                a(f"s_lshl_b32 s42, s42, 7")
                a(f"s_add_u32 s42, s42, {WS_CNT + 0x4000}")
            else:
                a(f"s_lshl_b32 s42, s42, 8")
                a(f"s_add_u32 s42, s42, {WS_CNT + C_O * 256}")
            if "oe" in OPT:
                a(f"buffer_load_dword v5, off, {sr(S_WS)}, s42 sc1")
    F_ = G_
    for s in range(8):
        for i in range(2):
            a(f"ds_read_b128 {vr(F_ + 8 * s + 4 * i, 4)}, v3 offset:{(s * 2 + i) * 1024}")
        if s == 6:
            a("s_waitcnt lgkmcnt(10)")
    for s in range(1, 8):
        a(f"s_waitcnt lgkmcnt({2 * (7 - s)})")
        for i in range(4):
            a(f"v_pk_add_f32 {vr(F_ + 2 * i, 2)}, {vr(F_ + 2 * i, 2)}, {vr(F_ + 8 * s + 2 * i, 2)}")
    if "ok4" in OPT:
        a("s_barrier")
        if "oe" not in OPT:
            a(f"buffer_load_dword v5, off, {sr(S_WS)}, s42 sc1")
    def silu_block():
        T_ = F_ + 8
        a(f"v_mov_b32 v4, {hx(f2u(-LOG2E))}")
        for i in range(8):
            a(f"v_mul_f32 v{T_ + i}, v{F_ + i}, v4")
        for i in range(8):
            a(f"v_exp_f32 v{T_ + i}, v{T_ + i}")
        a("s_nop 0")
        for i in range(8):
            a(f"v_add_f32 v{T_ + i}, 1.0, v{T_ + i}")
        for i in range(8):
            a(f"v_rcp_f32 v{T_ + i}, v{T_ + i}")
        a("s_nop 0")
        for i in range(8):
            a(f"v_mul_f32 v{F_ + i}, v{F_ + i}, v{T_ + i}")
        XU = G_ + 16
        for i in range(4):
            a(f"v_lshlrev_b32 v{XU + 2 * i}, 16, v{XV + i}")
            a(f"v_and_b32 v{XU + 2 * i + 1}, 0xffff0000, v{XV + i}")
    XU = G_ + 16
    if "sl" not in OPT:
        silu_block()
    a(f"s_lshr_b32 s{T0}, s{sW}, 2")
    a(f"s_mul_i32 s{T0}, s{T0}, {4 * 8256 if 'coal' in OPT else 32768}")
    a(f"s_and_b32 s{T1}, s{sW}, 3")
    a(f"s_lshl_b32 s{T2}, s{T1}, 11")
    a(f"s_add_u32 s{T0}, s{T0}, s{T2}")
    a(f"v_add_u32 v1, s{T0}, v{A16}")
    if "coal" in OPT:
        a(f"v_mov_b32 v3, v{AK}")
    else:
        a(f"s_lshl_b32 s{T0}, s{sW}, 13")
        a(f"v_add_u32 v3, s{T0}, v{A16}")
    a(f"s_lshl_b32 s{T0}, s{tTT}, 5")
    a(f"s_lshl_b32 s{T1}, s{T1}, 3")
    a(f"s_add_u32 s{T0}, s{T0}, s{T1}")
    a(f"s_lshl_b32 s{T0}, s{T0}, 10")
    a(f"s_add_u32 s{T2}, s{T0}, {WS_O}")
    a(f"s_add_u32 s{T3}, s{T2}, 4096")
    stamp(a, 11)
    if "ok4" in OPT:
        a(f"s_mov_b32 s{T1}, {SPIN}")
        a("L_o_poll:")
        a("s_waitcnt vmcnt(0)")
        a("v_readfirstlane_b32 s40, v5")
        a("s_cmp_ge_u32 s40, 8")
        a("s_cbranch_scc1 L_o_ok")
        a(f"s_sleep {OSL}")
        a(f"buffer_load_dword v5, off, {sr(S_WS)}, s42 sc1")
        a(f"s_sub_u32 s{T1}, s{T1}, 1")
        a(f"s_cmp_lg_u32 s{T1}, 0")
        a("s_cbranch_scc1 L_o_poll")
        a("L_o_ok:")
    else:
        a(f"s_cmp_lg_u32 s{sW}, 0")
        a("s_cbranch_scc1 L_o_ok")
        a(f"s_lshl_b32 s{T0}, s{sXCD}, 8")
        a(f"s_add_u32 s{T0}, s{T0}, {WS_CNT + C_O * 256}")
        a(f"s_mov_b32 s{T1}, {SPIN}")
        a("L_o_poll:")
        a(f"buffer_load_dword v4, off, {sr(S_WS)}, s{T0} sc1")
        a("s_waitcnt vmcnt(0)")
        a("v_readfirstlane_b32 s40, v4")
        a("s_cmp_ge_u32 s40, 32")
        a("s_cbranch_scc1 L_o_ok")
        a(f"s_sub_u32 s{T1}, s{T1}, 1")
        a(f"s_cmp_lg_u32 s{T1}, 0")
        a("s_cbranch_scc1 L_o_poll")
        a("L_o_ok:")
        a("s_barrier")
    stamp(a, 12)
    OF = S0
    SA = V_
    for j in range(8):
        so = T2 if j < 4 else T3
        a(f"buffer_load_dwordx4 {vr(OF + 4 * j, 4)}, v{A16}, {sr(S_WS)}, s{so} offen offset:{(j % 4) * 1024} sc1")
    if "sl" in OPT:
        silu_block()
    for j in range(8):
        a(f"s_waitcnt vmcnt({7 - j})")
        for ap in range(2):
            a(mfma(SA + 16 * ap, wreg(2 * j + ap), OF + 4 * j, "0" if j == 0 else None))
    stamp(a, 13)
    a("s_nop 11")
    for o in range(4):
        for i in range(2):
            a(f"ds_write_b128 v1, {vr(SA + 8 * o + 4 * i, 4)} offset:{o * (8256 if 'coal' in OPT else 8192) + i * 1024}")
    a("s_waitcnt lgkmcnt(0)")
    a("s_barrier")
    for s in range(4):
        for i in range(2):
            a(f"ds_read_b128 {vr(SA + 8 * s + 4 * i, 4)}, v3 offset:{(s * 2 + i) * 1024}")
    for s in range(1, 4):
        a(f"s_waitcnt lgkmcnt({2 * (3 - s)})")
        for i in range(4):
            a(f"v_pk_add_f32 {vr(SA + 2 * i, 2)}, {vr(SA + 2 * i, 2)}, {vr(SA + 8 * s + 2 * i, 2)}")
    for i in range(4):
        a(f"v_pk_fma_f32 {vr(XU + 2 * i, 2)}, {vr(SA + 2 * i, 2)}, {vr(F_ + 2 * i, 2)}, {vr(XU + 2 * i, 2)}")
    for i in range(4):
        a(f"v_cvt_pk_bf16_f32 v{4 + i}, v{XU + 2 * i}, v{XU + 2 * i + 1}")
    fl = " sc1" if "osc1" in OPT else (" nt" if "ont" in OPT else (" sc0 sc1" if "osc01" in OPT else ""))
    a(f"buffer_store_dwordx4 v[4:7], v{AOUT}, {sr(R_OUT)}, 0 offen{fl}")
    stamp(a, 14)
    stamp_flush(a)
    a("L_exit:")
    a("s_endpgm")
    a("L_fallback:")
    a(f"s_lshl_b32 s{T0}, s{tHEAD}, 16")
    a(f"s_add_u32 s{T0}, s{T0}, {32 << 16}")
    a(f"s_mov_b32 s{T1}, 0")
    a("v_mov_b32 v1, 0xff800000")
    a("L_fb1:")
    a(f"s_add_u32 s{T2}, s{T0}, s{T1}")
    a(f"buffer_load_dwordx4 {vr(K_, 4)}, v{A16}, {sr(S_WS)}, s{T2} offen sc1")
    a("s_waitcnt vmcnt(0)")
    a(mfma(S0, K_, Q_, "0"))
    a("s_nop 15")
    for i in range(0, 16, 2):
        a(f"v_max3_f32 v1, v1, v{S0 + i}, v{S0 + i + 1}")
    a(f"s_add_u32 s{T1}, s{T1}, 1024")
    a(f"s_cmp_lt_u32 s{T1}, 65536")
    a("s_cbranch_scc1 L_fb1")
    a("v_mov_b32 v2, v1")
    a("s_nop 1")
    a("v_permlane32_swap_b32 v1, v2")
    a("v_max_f32 v1, v1, v2")
    a("v_sub_f32 v1, 0, v1")
    for i in range(16):
        a(f"v_mov_b32 v{NM + i}, v1")
    for i in range(16):
        a(f"v_mov_b32 v{O_ + i}, 0")
    a("v_lshrrev_b32 v2, 5, v0")
    a("v_and_b32 v3, 15, v0")
    a("v_lshlrev_b32 v3, 4, v3")
    a("v_lshl_add_u32 v3, v2, 8, v3")
    a(f"s_mov_b32 s{T1}, 0")
    a("L_fb2:")
    a(f"s_add_u32 s{T2}, s{T0}, s{T1}")
    a(f"buffer_load_dwordx4 {vr(K_, 4)}, v{A16}, {sr(S_WS)}, s{T2} offen sc1")
    a(f"s_add_u32 s{T2}, s{T2}, {32 << 16}")
    a(f"s_mov_b64 exec, s[{tVM}:{tVM + 1}]")
    a(f"buffer_load_dwordx4 {vr(V_, 4)}, v3, {sr(S_WS)}, s{T2} offen sc1")
    a(f"buffer_load_dwordx4 {vr(V_ + 4, 4)}, v3, {sr(S_WS)}, s{T2} offen offset:512 sc1")
    a("s_mov_b64 exec, -1")
    a("s_waitcnt vmcnt(0)")
    a(mfma(S0, K_, Q_, NM))
    a("s_nop 15")
    for i in range(16):
        a(f"v_exp_f32 v{S0 + i}, v{S0 + i}")
    a("s_nop 0")
    for i in range(8):
        a(f"v_cvt_pk_bf16_f32 v{P_ + i}, v{S0 + 2 * i}, v{S0 + 2 * i + 1}")
    a("s_nop 1")
    a(mfma(O_, V_, P_))
    a(mfma(O_, V_ + 4, P_ + 4))
    a(f"s_add_u32 s{T1}, s{T1}, 1024")
    a(f"s_cmp_lt_u32 s{T1}, 65536")
    a("s_cbranch_scc1 L_fb2")
    a("s_nop 15")
    a("s_branch L_norm")


def main(out):
    a = Asm()
    k = NAME + "_kernel"
    hdr = ["; LN + MHA + GEGLU block, one persistent launch; generated by gen5.py (hand-scheduled gfx950 assembly)",
           "; @launch grid=(256,1,1) block=(512,1,1) lds=163840"]
    a('.amdgcn_target "amdgcn-amd-amdhsa--gfx950"')
    a(".text")
    a(f".globl {k}\n.p2align 8\n.type {k},@function\n{k}:")
    gen_p1(a)
    gen_p2(a)
    gen_side(a)
    a("L_end:")
    a('.section .rodata,"a"')
    a(".p2align 6")
    a(f".amdhsa_kernel {k}")
    a(f".amdhsa_next_free_vgpr {NVGPR}")
    a(f".amdhsa_next_free_sgpr {96 if (STAMPS or ENC is not None) else 80}")
    a(f".amdhsa_accum_offset {(NVGPR + 3) // 4 * 4}")
    a(".amdhsa_group_segment_fixed_size 0")
    a(".amdhsa_kernarg_size 80")
    a(".amdhsa_user_sgpr_count 2")
    a(".amdhsa_user_sgpr_kernarg_segment_ptr 1")
    a(".amdhsa_system_sgpr_workgroup_id_x 1")
    a(".end_amdhsa_kernel")
    open(out, "w").write("\n".join(hdr) + "\n" + a.text())


if __name__ == "__main__":
    for x in list(sys.argv):
        if x.startswith("--opt="):
            OPT = set(x[6:].split(","))
            sys.argv.remove(x)
    for x in list(sys.argv):
        if x.startswith("--enc="):
            ENC = int(x[6:])
            sys.argv.remove(x)
    for o in OPT:
        if o.startswith("sig"): SIGU = int(o[3:])
        if o.startswith("chk"): CHK = int(o[3:])
        if o.startswith("wk"): WK = int(o[2:])
        if o.startswith("mo"): MAXOFF = float(o[2:])
        if o.startswith("cso"): CSO = int(o[3:])
        if o.startswith("osl"): OSL = int(o[3:])
        if o.startswith("nbg"): NBG = int(o[3:])
        if o.startswith("vb"): VBUD = int(o[2:])
        if o.startswith("pc"): PC = (int(o[2]), int(o[3]))
        if o.startswith("pd"): PD = int(o[2])
        if o.startswith("pg"): PG = int(o[2])
    if "--cyc" in sys.argv:
        STAMPS = 2
        sys.argv.remove("--cyc")
    if "--stamps" in sys.argv:
        STAMPS = True
        sys.argv.remove("--stamps")
    main(sys.argv[1] if len(sys.argv) > 1 else f"cdna_kernels/{NAME}.s")
```

```python
import sys, struct, math

NAME = "recurrent_scan__mha_block__glu_gated_geglu__prompt"

WS_QKV = 0
WS_H = 6 << 20
WS_O = 14 << 20
WS_CNT = 16 << 20
WS_STAMP = (16 << 20) + 65536
WS_CS = (16 << 20) + 0xb0000
WS_ST = (16 << 20) + 0x80000
WS_CQ = (16 << 20) + 0xa0000
WS_RS = (16 << 20) + 0x84000
WS_CP = (19 << 20) + 0x80000
WS_WT = 17 << 20
WS_SIZE = 21 << 20
OOB = 0x7f000000

LOG2E = 1.4426950408889634
QSCALE = 0.25 * LOG2E
GC1 = -2.0 * LOG2E * math.sqrt(2.0 / math.pi)
GC2 = GC1 * 0.044715
MAXOFF = 100.0
SPIN = 0x40000

STAMPS = False
OPT = set()
NOSTAMP = False
ENC = None


def f2u(x):
    return struct.unpack("<I", struct.pack("<f", x))[0]


def hx(x):
    return "0x%08x" % (x & 0xffffffff)


class Asm:
    def __init__(self):
        self.l = []

    def __call__(self, s):
        if isinstance(s, (list, tuple)):
            for x in s:
                self(x)
            return
        for line in s.split("\n"):
            line = line.strip()
            if not line:
                continue
            if line.endswith(":") or line.startswith("."):
                self.l.append(line)
            else:
                self.l.append("    " + line)

    def text(self):
        return "\n".join(self.l) + "\n"


def vr(b, n):
    return f"v[{b}:{b + n - 1}]"


def sr(b):
    return f"s[{b}:{b + 3}]"


def mfma(d, a, b, c=None):
    cs = vr(d, 16) if c is None else (c if isinstance(c, str) else vr(c, 16))
    return f"v_mfma_f32_32x32x16_bf16 {vr(d, 16)}, {vr(a, 4)}, {vr(b, 4)}, {cs}"


def stamp(a, n):
    if ENC is not None:
        if n in (0, ENC) and not NOSTAMP:
            a("s_memrealtime s[76:77]")
            a("s_waitcnt lgkmcnt(0)")
            a(f"s_mov_b32 s{80 if n == 0 else 81}, s76")
            if n == 0:
                a("s_mov_b32 s81, s76")
        return
    if not STAMPS or (NOSTAMP and n != 15) or ("min" in OPT and n not in (0, 15)):
        return
    a("s_memtime s[76:77]" if STAMPS == 2 else "s_memrealtime s[76:77]")
    a("s_waitcnt lgkmcnt(0)")
    a(f"s_mov_b32 s{80 + n}, s76")


def stampl(n):
    t = Asm()
    stamp(t, n)
    return [x.strip() for x in t.l]


def stamp_flush(a):
    if ENC is not None:
        a("s_waitcnt vmcnt(0)")
        a("s_memrealtime s[76:77]")
        a("s_waitcnt lgkmcnt(0)")
        if ENC == 15:
            a("s_mov_b32 s81, s76")
        if ENC == 99:
            a(["v_mov_b32 v1, 0", f"global_load_dword v2, v1, s[{pDBG}:{pDBG + 1}] offset:240 sc1", "s_waitcnt vmcnt(0)",
               "v_readfirstlane_b32 s80, v2", "s_not_b32 s80, s80", "s_sub_u32 s80, s80, 100"])
        a("s_sub_u32 s81, s81, s80")
        a("s_cmp_lt_u32 s2, 32" if "encs" not in OPT else "s_cmp_ge_u32 s2, 32")
        a("s_cselect_b32 s81, 0, s81")
        a("s_mov_b32 s80, s76")
        a("L_enc:")
        a("s_memrealtime s[76:77]")
        a("s_waitcnt lgkmcnt(0)")
        a("s_sub_u32 s76, s76, s80")
        a("s_cmp_lt_u32 s76, s81")
        a("s_cbranch_scc1 L_enc")
        return
    if not STAMPS:
        return
    a("s_waitcnt vmcnt(0)")
    stamp(a, 15)
    a("v_mov_b32 v1, 0")
    for n in range(16):
        a(f"v_writelane_b32 v1, s{80 + n}, {n}")
    a("s_lshl_b32 s76, s2, 3")
    a(f"s_add_u32 s76, s76, s{sW}")
    a("s_lshl_b32 s76, s76, 6")
    a(f"s_add_u32 s76, s76, {WS_STAMP}")
    a("v_lshlrev_b32 v2, 2, v0")
    a("s_mov_b64 exec, 0xffff")
    a(f"buffer_store_dword v1, v2, {sr(S_WS)}, s76 offen")


def srd(a, s, ptr, size):
    a(f"s_mov_b32 s{s}, s{ptr}")
    a(f"s_mov_b32 s{s + 1}, s{ptr + 1}")
    a(f"s_mov_b32 s{s + 2}, {size}")
    a(f"s_mov_b32 s{s + 3}, 0x00020000")


pX, pWQKV, pWO, pG, pU, pWD, pOUT, pDBG, pWS = 56, 58, 60, 64, 66, 68, 70, 72, 74
S_T, S_X, S_W0, S_W1, S_W3, S_WS = 4, 8, 12, 16, 20, 24
R_OUT, R_H0, R_H1, R_WT = 4, 12, 16, 20
sW, sTT, sHF, sRB, sCB, sROT, sISS, sVAR = 28, 29, 30, 31, 32, 33, 34, 35
sCQ, sCG, sXROW, sLW = 36, 37, 42, 43
T0, T1, T2, T3 = 44, 45, 46, 47
sXCD, sT, sG, sKV = 49, 52, 53, 50
tHEAD, tQB, tIT, tFH, tFW, tTT = 38, 39, 33, 36, 37, 48
tVM = 54

AR, BR, CR, SL = 0, 49152, 98304, 16384
SCR = 147456
XA, VXS, VW0, WQ, WC = 4, 8, 9, 10, 12
VW1, VW3, L16, MASK, ONES, STV, POLL = 14, 15, 16, 17, 18, 20, 21
CSA = 24
WF = 32
ACF, ACQ = 64, 96
XF = 128
Q_, K_, P_, NM, S0, S1, RING = 8, 12, 20, 28, 44, 60, 76
AK, AV, A16, AOUT = 124, 125, 126, 127
G_, V_, O_, AW = 128, 192, 224, 240
NVGPR = 256
C_H, C_CS, C_O = 24, 40, 56
T4 = 63
sQT = 78
sCF, sCNT = 51, 62


def tiny(d, a_, b_, first=False):
    return f"v_mfma_f32_4x4x4_16b_bf16 {vr(d, 4)}, {vr(a_, 2)}, {vr(b_, 2)}, {'0' if first else vr(d, 4)}"


def dma(S, ffn=True):
    sl = (S % 3) * SL
    if S < 8:
        r = [[f"s_add_u32 s{T1}, s{sROT}, {S}", f"s_and_b32 s{T1}, s{T1}, 7",
              f"s_lshl_b32 s{T0}, s{T1}, 7", f"s_add_u32 m0, s{sLW}, {AR + sl}", f"s_add_u32 s{T0}, s{T0}, s{sXROW}",
              f"buffer_load_dwordx4 v{VXS}, {sr(S_X)}, s{T0} offen lds"],
             [f"s_mul_i32 s{T1}, s{T1}, {64 * 3072}", f"s_add_u32 m0, s{sLW}, {BR + sl}", f"s_add_u32 s{T1}, s{T1}, s{sCQ}",
              f"buffer_load_dwordx4 v{VW0}, {sr(S_W0)}, s{T1} offen lds"],
             [f"s_add_u32 m0, s{sLW}, {AR + sl + 8192}", f"s_add_u32 s{T0}, s{T0}, 0x10000",
              f"buffer_load_dwordx4 v{VXS}, {sr(S_X)}, s{T0} offen lds"],
             [f"s_add_u32 m0, s{sLW}, {BR + sl + 8192 - 128}", "s_nop 0",
              f"buffer_load_dwordx4 v{VW0}, {sr(S_W0)}, s{T1} offen offset:128 lds"]]
        if ffn and S >= 2:
            r += [[f"s_add_u32 s{T4}, s{sROT}, {S - 2}", f"s_and_b32 s{T4}, s{T4}, 7", f"s_mul_i32 s{T4}, s{T4}, {64 * 3584}",
                   f"s_add_u32 m0, s{sLW}, {CR + sl}", f"s_add_u32 s{T4}, s{T4}, s{sCG}",
                   f"buffer_load_dwordx4 v{VW1}, {sr(S_W1)}, s{T4} offen lds"],
                  [f"s_add_u32 m0, s{sLW}, {CR + sl + 8192}", "s_nop 0",
                   f"buffer_load_dwordx4 v{VW3}, {sr(S_W3)}, s{T4} offen lds"]]
        return r
    if not ffn:
        return []
    r = []
    off = 128 if S > 8 else 0
    for hb, base in enumerate((BR, CR)):
        r += [[f"s_add_u32 s{T1}, s{sROT}, {(2 * (S - 9) + hb) & 7}", f"s_and_b32 s{T1}, s{T1}, 7",
               f"s_mul_i32 s{T1}, s{T1}, {64 * 3584}", f"s_add_u32 m0, s{sLW}, {base + sl - off}", f"s_add_u32 s{T1}, s{T1}, s{sCG}",
               f"buffer_load_dwordx4 v{VW1}, {sr(S_W1)}, s{T1} offen offset:{off} lds"],
              [f"s_add_u32 m0, s{sLW}, {base + sl + 8192 - off}", "s_nop 0",
               f"buffer_load_dwordx4 v{VW3}, {sr(S_W3)}, s{T1} offen offset:{off} lds"]]
    return r


def fset(k, ffn):
    return WF + 16 * (k & 1) if (ffn and k >= 8) else WF + 8 * (k & 3)


def rd1(k, nt, ffn):
    S, ks = k >> 2, k & 3
    sl = (S % 3) * SL
    F = fset(k, ffn)
    r = [f"ds_read_b128 {vr(XF + 4 * k, 4)}, v{XA + ks} offset:{sl}"]
    for t in range(nt):
        for t2 in range(2):
            r.append(f"ds_read_b64_tr_b16 {vr(F + 4 * t + 2 * t2, 2)}, v{WQ + t} offset:{sl + ks * 2048 + t2 * 512}")
    if ffn and k >= 8:
        for c in range(2):
            for t2 in range(2):
                r.append(f"ds_read_b64_tr_b16 {vr(F + 8 + 4 * c + 2 * t2, 2)}, v{WC + c} offset:{sl + ks * 2048 + t2 * 512}")
    return r


def rd2(u):
    S = 8 + (u >> 2)
    sl = (S % 3) * SL
    base = WQ if (u & 3) < 2 else WC
    F = WF + 16 * (u & 1)
    return [f"ds_read_b64_tr_b16 {vr(F + 8 * q + 4 * c + 2 * t2, 2)}, v{base + c} offset:{sl + ((2 * u + q) & 3) * 2048 + t2 * 512}"
            for q in range(2) for c in range(2) for t2 in range(2)]


def flat(L):
    return [x for at in L for x in ([at] if isinstance(at, str) else at)]


def spread(heads, first, rest):
    n = len(heads)
    pf = -(-len(first) // max(1, n - 1)) if first else 0
    res = []
    for j, hd in enumerate(heads):
        res.append(hd)
        res += flat(first[j * pf:(j + 1) * pf])
        res += flat(rest[j * len(rest) // n:(j + 1) * len(rest) // n])
    return res


def nvm(lines):
    return sum(1 for l in lines if l.startswith("buffer_") or l.startswith("global_"))


def weave(heads, fills):
    res = []
    per = -(-len(fills) // len(heads)) if fills else 0
    i = 0
    for hd in heads:
        res.append(hd)
        for at in fills[i:i + per]:
            res += [at] if isinstance(at, str) else at
        i += per
    return res


def tr_addr(dst, t_a, t_b):
    return [f"v_lshrrev_b32 v{t_a}, 5, v0", f"v_bfe_u32 v{t_b}, v0, 2, 2", f"v_lshl_add_u32 v{dst}, v{t_a}, 2, v{t_b}",
            f"v_lshlrev_b32 v{dst}, 7, v{dst}", f"v_and_b32 v{t_a}, 1, v0", f"v_lshl_add_u32 v{dst}, v{t_a}, 6, v{dst}",
            f"v_bfe_u32 v{t_a}, v0, 4, 1", f"v_lshl_add_u32 v{dst}, v{t_a}, 4, v{dst}", f"v_bfe_u32 v{t_a}, v0, 1, 1",
            f"v_lshl_add_u32 v{dst}, v{t_a}, 3, v{dst}", f"v_lshrrev_b32 v{t_b}, 1, v{t_b}", f"v_lshl_add_u32 v{dst}, v{t_b}, 5, v{dst}"]


def split3(w, src):
    return [f"v_and_b32 v{w}, v{MASK}, v{src}", f"v_sub_f32 v{w + 2}, v{src}, v{w}",
            f"v_and_b32 v{w + 1}, v{MASK}, v{w + 2}", f"v_sub_f32 v{w + 2}, v{w + 2}, v{w + 1}", f"v_mov_b32 v{w + 3}, 0"]


def poll_issue(lbl, mask_instrs, reg=POLL):
    return ([f"s_cmp_lg_u32 s{sW}, 0", f"s_cbranch_scc1 {lbl}", "v_lshlrev_b32 v1, 8, v0"] + mask_instrs +
            ["s_mov_b64 exec, s[40:41]",
             f"buffer_load_dword v{reg}, v1, {sr(S_WS)}, s{sCNT} offen sc1", "s_mov_b64 exec, -1", f"{lbl}:"])


def poll_check(lbl, thr, reg=POLL, sleep=8):
    return [f"s_cmp_lg_u32 s{sW}, 0", f"s_cbranch_scc1 {lbl}_ok",
            f"s_mov_b32 s{T3}, {SPIN}", "s_mov_b64 exec, s[40:41]", f"{lbl}_spin:",
            f"v_cmp_gt_u32 vcc, {thr}, v{reg}", "s_cmp_eq_u64 vcc, 0", f"s_cbranch_scc1 {lbl}_done",
            f"s_sleep {sleep}",
            f"buffer_load_dword v{reg}, v1, {sr(S_WS)}, s{sCNT} offen sc1", "s_waitcnt vmcnt(0)",
            f"s_sub_u32 s{T3}, s{T3}, 1", f"s_cmp_lg_u32 s{T3}, 0", f"s_cbranch_scc1 {lbl}_spin",
            f"{lbl}_done:", "s_mov_b64 exec, -1", f"{lbl}_ok:"]


QKV_MASK = [f"s_lshl_b32 s40, 0x10101, s{sXCD}", "s_mov_b32 s41, 0"]
CS_MASK = ["s_mov_b32 s40, 0", f"s_lshl_b32 s41, 0x100, s{sCF}"]
H_MASK = ["s_mov_b32 s40, 0xff000000", "s_mov_b32 s41, 0xff"]


def cs_issue(lbl, n):
    return [f"s_cmp_lg_u32 s{sW}, 0", f"s_cbranch_scc1 {lbl}", "v_lshlrev_b32 v1, 6, v0", "s_mov_b64 exec, 15",
            f"global_load_dword v{POLL}, v1, s[{pDBG}:{pDBG + 1}] offset:{4 * n} sc1", "s_mov_b64 exec, -1", f"{lbl}:"]


def cs_signal(lbl, n):
    return [f"s_cmp_lg_u32 s{sW}, 0", f"s_cbranch_scc1 {lbl}", f"s_and_b32 s{T2}, s{sRB}, 3", f"s_lshl_b32 s{T2}, s{T2}, 6",
            f"v_mov_b32 v2, s{T2}", "v_mov_b32 v3, 1", "s_mov_b64 exec, 1",
            f"global_atomic_add v2, v3, s[{pDBG}:{pDBG + 1}] offset:{4 * n} sc1", "s_mov_b64 exec, -1", f"{lbl}:"]


def cs_check(lbl, n):
    return [f"s_cmp_lg_u32 s{sW}, 0", f"s_cbranch_scc1 {lbl}_ok",
            f"s_mov_b32 s{T3}, {SPIN}", "s_mov_b64 exec, 15", f"{lbl}_spin:",
            f"v_cmp_gt_u32 vcc, 8, v{POLL}", "s_cmp_eq_u64 vcc, 0", f"s_cbranch_scc1 {lbl}_done",
            "s_sleep 8",
            f"global_load_dword v{POLL}, v1, s[{pDBG}:{pDBG + 1}] offset:{4 * n} sc1", "s_waitcnt vmcnt(0)",
            f"s_sub_u32 s{T3}, s{T3}, 1", f"s_cmp_lg_u32 s{T3}, 0", f"s_cbranch_scc1 {lbl}_spin",
            f"{lbl}_done:", "s_mov_b64 exec, -1", f"{lbl}_ok:"]


def sig_qkv(lbl):
    return [f"s_cmp_lg_u32 s{sW}, 0", f"s_cbranch_scc1 {lbl}",
            f"s_mul_i32 s{T2}, s{sCB}, 3", f"s_lshr_b32 s{T2}, s{T2}, 1", f"s_and_b32 s{T3}, s{sCB}, 1",
            f"v_add_u32 v2, s{T2}, v0", "v_lshlrev_b32 v2, 8, v2",
            f"v_xor_b32 v3, s{T3}, v0", "v_sub_u32 v3, 2, v3",
            "s_mov_b64 exec, 3", f"buffer_atomic_add v3, v2, {sr(S_WS)}, s{sCNT} offen sc1", "s_mov_b64 exec, -1", f"{lbl}:"]


def sig_one(lbl, idx_instrs, skip_side=False):
    c = [f"s_or_b32 s{T0}, s{sW}, s{sISS}"] if skip_side else [f"s_cmp_lg_u32 s{sW}, 0"]
    return (c + [f"s_cbranch_scc1 {lbl}"] + idx_instrs +
            [f"s_lshl_b32 s{T0}, s{T0}, 8", f"s_add_u32 s{T0}, s{T0}, s{sCNT}", "v_mov_b32 v3, 1", "s_mov_b64 exec, 1",
             f"buffer_atomic_add v3, off, {sr(S_WS)}, s{T0} sc1", "s_mov_b64 exec, -1", f"{lbl}:"])


def kv(i, r=L16):
    return [[f"s_lshl1_add_u32 m0, s{sLW}, {i * 16384}" if i else f"s_lshl_b32 m0, s{sLW}, 1",
             f"s_add_u32 s{T2}, s{sKV}, {i * 8192}",
             f"buffer_load_dwordx4 v{r}, {sr(S_WS)}, s{T2} offen sc1 lds"],
            [f"s_lshl1_add_u32 m0, s{sLW}, {i * 16384 + 1024}", f"s_add_u32 s{T2}, s{sKV}, {i * 8192 + (32 << 16)}",
             f"buffer_load_dwordx4 v{r}, {sr(S_WS)}, s{T2} offen sc1 lds"]]


def q_load():
    return [f"s_lshl_b32 s{T2}, s{tHEAD}, 6", f"s_add_u32 s{T2}, s{T2}, s{sQT}", f"s_lshl_b32 s{T2}, s{T2}, 10",
            f"buffer_load_dwordx4 {vr(Q_, 4)}, v{L16}, {sr(S_WS)}, s{T2} offen sc1"]


def p2_init_v():
    return ([["v_and_b32 v3, 27, v0", "v_cmp_eq_u32 vcc, 16, v3", f"v_mov_b32 v{V_ + 1}, 0x3f803f80", "v_mov_b32 v3, 0",
              f"v_cndmask_b32 v{V_}, v3, v{V_ + 1}, vcc", f"v_mov_b32 v{V_ + 1}, v{V_}"]] +
            [f"v_mov_b64 v[{V_ + i}:{V_ + i + 1}], v[{V_}:{V_ + 1}]" for i in range(2, 32, 2)])


TRA, TRD = 142, 144


def tr_setup():
    A, B, C, D = T2, T3, tVM + 1, tVM
    return [[f"s_sub_u32 s{C}, s2, 32", f"s_mul_i32 s{D}, s{sW}, 144", f"s_add_u32 s{D}, s{D}, s{C}", f"s_lshl_b32 s{D}, s{D}, 11",
             f"s_add_u32 s{D}, s{D}, {WS_WT}", f"s_cmp_lt_u32 s{C}, 144", f"s_cselect_b32 s{D}, s{D}, {OOB}",
             f"s_cmp_lt_u32 s{C}, 112", f"s_cselect_b32 s{S_T}, s{pWD}, s{pWO}",
             f"s_cselect_b32 s{S_T + 1}, s{pWD + 1}, s{pWO + 1}", f"s_mov_b32 s{S_T + 2}, 1835008",
             f"s_cselect_b32 s{S_T + 2}, s{S_T + 2}, 524288", f"s_cselect_b32 s{A}, 0, 112", f"s_mov_b32 s{S_T + 3}, 0x00020000",
             f"s_sub_u32 s{C}, s{C}, s{A}", f"s_lshl_b32 s{C}, s{C}, 14", f"s_lshl_b32 s{B}, s{sW}, 7", f"s_add_u32 s{C}, s{C}, s{B}"],
            ["v_lshrrev_b32 v2, 3, v0", "v_and_b32 v3, 2, v2", "v_and_b32 v18, 7, v0", "v_xor_b32 v18, v3, v18",
             "v_lshlrev_b32 v18, 4, v18", "v_lshl_add_u32 v18, v2, 10, v18"]]


def tr_dma():
    C = tVM + 1
    return [[f"s_lshl_b32 m0, s{sLW}, 1", f"s_add_u32 s{T3}, s{C}, 8192", f"buffer_load_dwordx4 v18, {sr(S_T)}, s{C} offen lds",
             "s_add_u32 m0, m0, 1024", "s_nop 0", f"buffer_load_dwordx4 v18, {sr(S_T)}, s{T3} offen lds"]]


def tr_rd():
    return [f"ds_read_b64_tr_b16 {vr(TRD + 4 * ap + 2 * t, 2)}, v{TRA + ap} offset:{t * 1024}" for ap in range(2) for t in range(2)]


def tr_st():
    return [f"buffer_store_dwordx4 {vr(TRD, 4)}, v{L16}, {sr(S_WS)}, s{tVM} offen sc1",
            f"buffer_store_dwordx4 {vr(TRD + 4, 4)}, v{L16}, {sr(S_WS)}, s{tVM} offen offset:1024 sc1"]


def gen_p1(a):
    global NOSTAMP
    a("s_cmp_ge_u32 s2, 256")
    a("s_cbranch_scc1 L_exit")
    stamp(a, 0)
    a(f"s_load_dwordx4 s[{pX}:{pX + 3}], s[0:1], 0")
    a(f"s_load_dwordx4 s[{pG}:{pG + 3}], s[0:1], 32")
    a(f"s_load_dwordx2 s[{pWO}:{pWO + 1}], s[0:1], 16")
    a(f"s_load_dwordx4 s[{pWD}:{pWD + 3}], s[0:1], 48")
    a(f"s_load_dwordx4 s[{pDBG}:{pDBG + 3}], s[0:1], 64")
    a("v_lshrrev_b32 v1, 6, v0")
    a("v_and_b32 v0, 63, v0")
    a(f"v_readfirstlane_b32 s{sW}, v1")
    a("s_cmp_ge_u32 s2, 32")
    a("s_cbranch_scc1 L_nocode")
    a("s_getpc_b64 s[40:41]")
    a("L_here:")
    a("v_lshlrev_b32 v2, 13, v1")
    a("v_lshl_add_u32 v2, v0, 7, v2")
    a("v_min_u32 v2, L_end-L_here-4, v2")
    a("v_mov_b32 v3, s41")
    a("v_add_co_u32 v2, vcc, s40, v2")
    a("s_nop 1")
    a("v_addc_co_u32 v3, vcc, 0, v3, vcc")
    a(f"global_load_dword v{STV}, v[2:3], off")
    a("L_nocode:")
    a(f"s_and_b32 s{sXCD}, s2, 7")
    a(f"s_lshr_b32 s{T1}, s2, 3")
    a(f"s_and_b32 s{sRB}, s{sXCD}, 3")
    a(f"s_and_b32 s{T2}, s{T1}, 3")
    a(f"s_lshl2_add_u32 s{sRB}, s{sRB}, s{T2}")
    a(f"s_lshr_b32 s{sCF}, s{sXCD}, 2")
    a(f"s_lshr_b32 s{sISS}, s{T1}, 2")
    a(f"s_lshl3_add_u32 s{sCB}, s{sCF}, s{sISS}")
    a(f"s_lshl1_add_u32 s{sROT}, s{sXCD}, s{sISS}")
    a(f"s_lshl_b32 s{sLW}, s{sW}, 10")
    a(f"s_lshl_b32 s{T2}, s{sW}, 3")
    a(f"s_lshl_b32 s{sXROW}, s{sRB}, 7")
    a(f"s_add_u32 s{sXROW}, s{sXROW}, s{T2}")
    a(f"s_lshl_b32 s{sXROW}, s{sXROW}, 10")
    a(f"s_mul_i32 s{sCQ}, s{sCB}, 3")
    a(f"s_lshr_b32 s{sCQ}, s{sCQ}, 1")
    a(f"s_lshl_b32 s{sCQ}, s{sCQ}, 7")
    a(f"s_mul_i32 s{T3}, s{T2}, 3072")
    a(f"s_add_u32 s{sCQ}, s{sCQ}, s{T3}")
    a(f"s_mul_i32 s{T3}, s{T2}, 3584")
    a(f"s_sub_u32 s{sCF}, s{sCB}, s{sCF}")
    a(f"s_sub_u32 s{sCF}, s{sCF}, 1")
    a(f"s_lshl_b32 s{sCG}, s{sCF}, 8")
    a(f"s_add_u32 s{sCG}, s{sCG}, s{T3}")
    a(f"s_cmp_eq_u32 s{sISS}, 0")
    a(f"s_cselect_b32 s{sISS}, 1, 0")
    a(f"s_cselect_b32 s{sCG}, {OOB}, s{sCG}")
    a("v_lshrrev_b32 v1, 3, v0")
    a("v_and_b32 v2, 7, v0")
    a(f"v_add_u32 v3, s{T2}, v1")
    a("v_bfe_u32 v3, v3, 1, 3")
    a("v_xor_b32 v3, v3, v2")
    a("v_lshlrev_b32 v3, 4, v3")
    a(f"v_lshl_add_u32 v{VXS}, v1, 10, v3")
    a("v_and_b32 v3, 2, v1")
    a("v_lshlrev_b32 v3, 1, v3")
    a("v_xor_b32 v3, v3, v2")
    a("v_lshlrev_b32 v3, 4, v3")
    a("v_mul_u32_u24 v4, 3072, v1")
    a(f"v_add_u32 v{VW0}, v4, v3")
    a("v_mul_u32_u24 v4, 3584, v1")
    a(f"v_add_u32 v{VW1}, v4, v3")
    a(f"v_xor_b32 v{VW3}, 32, v{VW1}")
    for r_, sz in ((S_X, 2097152), (S_W0, 1572864), (S_W1, 1835008), (S_W3, 1835008)):
        a(f"s_mov_b32 s{r_ + 2}, {sz}")
        a(f"s_mov_b32 s{r_ + 3}, 0x00020000")
    a("s_waitcnt lgkmcnt(0)")
    for r_, p_ in ((S_X, pX), (S_W0, pWQKV), (S_W1, pG), (S_W3, pU)):
        a(f"s_mov_b64 s[{r_}:{r_ + 1}], s[{p_}:{p_ + 1}]")
    a(f"s_cmp_eq_u32 s{sISS}, 1")
    a("s_cbranch_scc1 L_nod0")
    a(dma(0))
    if "tlb" in OPT:
        a("s_branch L_nod1")
    a("L_nod0:")
    if "tlb" in OPT:
        a(f"s_and_b32 s{T0}, s{sRB}, 3")
        a(f"s_lshl2_add_u32 s{T0}, s{sW}, s{T0}")
        a(f"s_sub_u32 s{T1}, s{T0}, 4")
        a(f"s_min_u32 s{T1}, s{T1}, 10")
        a(f"s_lshl_b32 s{T1}, s{T1}, 21")
        a(f"s_add_u32 s40, s{pWS}, s{T1}")
        a(f"s_addc_u32 s41, s{pWS + 1}, 0")
        for i, p_ in ((0, pG), (1, pU), (2, pWQKV), (3, pDBG), (15, pWD), (16, pWO), (17, pOUT)):
            a(f"s_cmp_eq_u32 s{T0}, {i}")
            a(f"s_cselect_b64 s[40:41], s[{p_}:{p_ + 1}], s[40:41]")
        a("v_mov_b32 v3, 0")
        a("s_mov_b64 exec, 1")
        a(f"global_load_dword v{STV}, v3, s[40:41] offset:192 sc1")
        a("s_mov_b64 exec, -1")
        a("L_nod1:")
    a(f"v_lshlrev_b32 v{L16}, 4, v0")
    a(f"s_and_b32 s{sTT}, s{sW}, 3")
    a(f"s_lshr_b32 s{sHF}, s{sW}, 2")
    a(f"s_mov_b32 s{sCNT}, {WS_CNT}")
    srd(a, S_WS, pWS, WS_SIZE)
    a(f"s_lshl2_add_u32 s{sT}, s{sRB}, s{sTT}")
    a(f"s_mul_i32 s{sG}, s{sCB}, 3")
    a(f"s_lshl1_add_u32 s{sG}, s{sHF}, s{sG}")
    a(f"s_cmp_ge_u32 s{sG}, 32")
    a(f"s_cselect_b32 s{sVAR}, 2, 0")
    a(f"s_add_u32 s{sVAR}, s{sVAR}, s{sHF}")
    a(f"s_lshl_b32 s{sG}, s{sG}, 1")
    a(f"s_lshr_b32 s{T1}, s2, 3")
    a(f"s_and_b32 s{T2}, s{T1}, 3")
    a(f"s_lshl2_add_u32 s{tHEAD}, s{sXCD}, s{T2}")
    a(f"s_lshr_b32 s{tQB}, s{T1}, 2")
    if "pws" in OPT:
        a(f"s_lshl1_add_u32 s{sQT}, s{sTT}, s{sHF}")
        a(f"s_lshl3_add_u32 s{sQT}, s{tQB}, s{sQT}")
    else:
        a(f"s_lshl3_add_u32 s{sQT}, s{tQB}, s{sW}")
    a(f"s_lshl_b32 s{sKV}, s{tHEAD}, 16")
    a(f"s_add_u32 s{sKV}, s{sKV}, s{sLW}")
    a(f"s_add_u32 s{sKV}, s{sKV}, {32 << 16}")
    t4, t6, t7 = WF, WF + 1, WF + 2
    a("v_and_b32 v1, 31, v0")
    a("v_lshrrev_b32 v2, 5, v0")
    a("v_bfe_u32 v3, v0, 1, 3")
    a("v_xor_b32 v3, v3, v2")
    a("v_lshlrev_b32 v3, 4, v3")
    a("v_lshl_add_u32 v3, v1, 7, v3")
    a(f"s_lshl_b32 s{T0}, s{sTT}, 12")
    a(f"v_add_u32 v{XA}, s{T0}, v3")
    for i in range(1, 4):
        a(f"v_xor_b32 v{XA + i}, {32 * i}, v{XA}")
    a("v_bfe_u32 v3, v0, 2, 2")
    a(f"v_lshl_add_u32 v{t4}, v2, 3, v3")
    a(f"v_lshlrev_b32 v{t4}, 7, v{t4}")
    a(f"v_and_b32 v{t7}, 3, v0")
    a(f"v_lshl_add_u32 v{t4}, v{t7}, 3, v{t4}")
    a("v_and_b32 v3, 2, v3")
    a(f"v_bfe_u32 v{t7}, v0, 4, 1")
    a(f"v_xor_b32 v3, v3, v{t7}")
    a(f"s_and_b32 s{T0}, s{sCB}, 1")
    a(f"s_lshl1_add_u32 s{T0}, s{sHF}, s{T0}")
    for t in range(2):
        a(f"s_and_b32 s{T1}, s{T0}, 1")
        a(f"s_lshl_b32 s{T1}, s{T1}, 1")
        a(f"s_lshr_b32 s{T2}, s{T0}, 1")
        a(f"s_lshl_b32 s{T2}, s{T2}, 13")
        a(f"s_add_u32 s{T2}, s{T2}, {BR}")
        a(f"v_xor_b32 v{t6}, s{T1}, v3")
        a(f"v_lshl_add_u32 v{t6}, v{t6}, 5, v{t4}")
        a(f"v_add_u32 v{WQ + t}, s{T2}, v{t6}")
        if t == 0:
            a(f"s_add_u32 s{T0}, s{T0}, 1")
    a(f"v_lshl_add_u32 v{t4}, v{t7}, 13, v{t4}")
    a(f"v_add_u32 v{t4}, {CR}, v{t4}")
    a(f"s_lshl_b32 s{T0}, s{sHF}, 1")
    a(f"v_xor_b32 v{t6}, s{T0}, v3")
    a(f"v_lshl_add_u32 v{WC}, v{t6}, 5, v{t4}")
    a(f"v_xor_b32 v{WC + 1}, 32, v{WC}")
    a(f"v_mov_b32 v{MASK}, 0xffff0000")
    a(f"v_mov_b32 v{ONES}, 0x3f80")
    a(f"s_cmp_eq_u32 s{sISS}, 1")
    a("s_cbranch_scc1 L_side1")
    a(dma(1))
    stamp(a, 1)
    for v in range(1, 4):
        a(f"s_cmp_eq_u32 s{sVAR}, {v}")
        a(f"s_cbranch_scc1 L_p1_{v}")
    XOP, RS = XA, 22
    CL, RU, ta, tb, tc = 224, 232, 240, 241, 242
    cs_loads = [[f"s_bitcmp1_b32 s{sRB}, 1", f"s_cselect_b32 s{S_T}, s{pU}, s{pG}", f"s_cselect_b32 s{S_T + 1}, s{pU + 1}, s{pG + 1}",
                 f"s_mov_b32 s{S_T + 2}, 1835008", f"s_mov_b32 s{S_T + 3}, 0x00020000",
                 f"s_add_u32 s{T2}, s{sROT}, {CSO}", f"s_lshl2_add_u32 s{T2}, s{T2}, s{sW}", f"s_and_b32 s{T2}, s{T2}, 31",
                 f"s_mul_i32 s{T2}, s{T2}, {16 * 3584}",
                 f"s_and_b32 s{T3}, s{sRB}, 1", f"s_lshl1_add_u32 s{T3}, s{sCF}, s{T3}", f"s_lshl_b32 s{T3}, s{T3}, 7", f"s_add_u32 s{T2}, s{T2}, s{T3}",
                 f"v_lshrrev_b32 v{ta}, 3, v0", f"v_mul_u32_u24 v{ta}, 3584, v{ta}", f"v_and_b32 v{tb}, 7, v0", f"v_lshl_add_u32 v{ta}, v{tb}, 4, v{ta}",
                 f"buffer_load_dwordx4 {vr(CL, 4)}, v{ta}, {sr(S_T)}, s{T2} offen"],
                [f"s_add_u32 s{T2}, s{T2}, {8 * 3584}", f"buffer_load_dwordx4 {vr(CL + 4, 4)}, v{ta}, {sr(S_T)}, s{T2} offen"]]
    SE, DD, RV = 244, 248, 224
    sel = [f"v_and_b32 v{tb}, 15, v0", f"v_and_b32 v{tc}, 1, v0", f"v_lshlrev_b32 v{tc}, 4, v{tc}", f"v_lshlrev_b32 v{tc}, v{tc}, v{ONES}",
           f"v_lshrrev_b32 v{tb}, 1, v{tb}"]
    for i in range(4):
        sel += [[f"v_cmp_eq_u32 vcc, {i}, v{tb}", "s_nop 1", f"v_cndmask_b32 v{SE + i}, 0, v{tc}, vcc"]]
    m16 = lambda c, b_: f"v_mfma_f32_16x16x32_bf16 {vr(DD, 4)}, {vr(SE, 4)}, {vr(b_, 4)}, {c}"
    csv = {8: sel[:5], 9: sel[5:],
           10: [f"v_and_b32 v{tb}, 15, v0", f"v_lshlrev_b32 v{tb}, 5, v{tb}", f"v_lshrrev_b32 v{tc}, 4, v0", f"v_lshl_add_u32 v{tb}, v{tc}, 4, v{tb}",
               [f"s_lshl_b32 s40, s2, 12", f"s_add_u32 s40, s40, {WS_CP}", f"s_lshl_b32 s41, s{sW}, 9", "s_add_u32 s41, s41, s40"]]}
    cs_mm = [m16("0", CL), m16(vr(DD, 4), CL + 4)]
    cs_st = ["s_mov_b32 exec_hi, 0", f"buffer_store_dwordx4 {vr(DD, 4)}, v{tb}, {sr(S_WS)}, s41 offen" + (" sc1" if "csw" in OPT else ""), "s_mov_b32 exec_hi, -1"]
    cs_l2 = lambda lb: ([f"s_cmp_lg_u32 s{sW}, 0", f"s_cbranch_scc1 {lb}"] +
                        [f"buffer_load_dwordx4 {vr(RV + 4 * i, 4)}, v{L16}, {sr(S_WS)}, s40 offen offset:{1024 * i} sc1" for i in range(4)] + [f"{lb}:"])
    cs_r2 = lambda lb: ([f"s_cmp_lg_u32 s{sW}, 0", f"s_cbranch_scc1 {lb}"] +
                        [f"v_add_f32 v{RV + i}, v{RV + i}, v{RV + 8 + i}" for i in range(8)] +
                        [f"v_add_f32 v{RV + i}, v{RV + i}, v{RV + 4 + i}" for i in range(4)] +
                        [f"v_and_b32 v{ta}, 15, v0", f"v_lshrrev_b32 v{tc}, 4, v0",
                         f"v_permlane16_swap_b32 v{RV}, v{RV + 1}", f"v_permlane16_swap_b32 v{RV + 2}, v{RV + 3}",
                         f"v_add_f32 v{RV}, v{RV}, v{RV + 1}", f"v_add_f32 v{RV + 2}, v{RV + 2}, v{RV + 3}",
                         f"v_lshl_add_u32 v{ta}, v{ta}, 2, v{tc}", f"v_lshlrev_b32 v{ta}, 2, v{ta}",
                         f"v_permlane32_swap_b32 v{RV}, v{RV + 2}", f"v_add_f32 v{RV}, v{RV}, v{RV + 2}",
                         f"s_bfe_u32 s40, s{sRB}, 0x10001", "s_mul_i32 s40, s40, 28", f"s_and_b32 s41, s{sRB}, 1", "s_add_u32 s40, s40, s41",
                         f"s_lshl1_add_u32 s40, s{sCF}, s40", f"s_lshr_b32 s41, s{sRB}, 2", "s_lshl2_add_u32 s40, s40, s41",
                         "s_lshl_b32 s40, s40, 8", f"s_add_u32 s40, s40, {WS_CS}",
                         f"buffer_store_dword v{RV}, v{ta}, {sr(S_WS)}, s40 offen sc1", f"{lb}:"])
    for var in VARS:
        hf, isv, ffn = var & 1, (var >> 1) & 1, var < 4
        nt = 2 - hf
        cnt = lambda S: len(dma(S, ffn))
        a(f"L_p1_{var}:")
        if ffn and "cse" in OPT:
            a(cs_loads)
        a(f"s_waitcnt vmcnt({cnt(1) + (2 if (ffn and 'cse' in OPT) else 0)})")
        a("s_barrier")
        stamp(a, 2)
        a(rd1(0, nt, ffn))
        a(rd1(1, nt, ffn))
        bgq = dma(2, ffn)
        if ffn and "cs1" in OPT:
            bgq = cs_loads + bgq
        held = []
        sl7 = (7 % 3) * SL
        qrd = lambda h: [f"ds_read_b64_tr_b16 {vr(WF + 16 * h + 8 * q + 4 * t + 2 * t2, 2)}, v{WQ + t} offset:{sl7 + (2 * h + q) * 2048 + t2 * 512}"
                         for q in range(2) for t in range(nt) for t2 in range(2)]
        frd = lambda h: [f"ds_read_b64_tr_b16 {vr(WF + 16 * h + 8 * q + 4 * c + 2 * t2, 2)}, v{WC + c} offset:{sl7 + (2 * h + q) * 2048 + t2 * 512}"
                         for q in range(2) for c in range(2) for t2 in range(2)]
        CK = 5 if ffn else 6
        prep = [f"v_lshlrev_b32 v2, 16, v{STV}", f"v_rcp_f32 v{RS}, v2"]
        for t in range(nt):
            w = CSA + 4 * t
            prep += [f"v_add_f32 v{w}, v{w}, v{w + 1}", f"v_add_f32 v{w + 2}, v{w + 2}, v{w + 3}", f"v_add_f32 v{w + 3}, v{w}, v{w + 2}"] + split3(w, w + 3)
        for k in range(28 if ffn else 32):
            S, ks = k >> 2, k & 3
            F = fset(k, ffn)
            x = XF + 4 * k
            c0 = "0" if k == 0 else None
            big = [mfma(ACQ + 16 * t, x, F + 4 * t, c0) if isv else mfma(ACQ + 16 * t, F + 4 * t, x, c0) for t in range(nt)]
            light = not ffn or k < 8
            if not light:
                big += [mfma(ACF + 16 * c, F + 8 + 4 * c, x - 32, "0" if k == 8 else None) for c in range(2)]
            if light and k % 2 == 0 and k < 30:
                held = big
                continue
            big, held = held + big, []
            val = []
            if ks == 3:
                n = cnt(S + 2) + ({(0 if ('cse' in OPT or 'cs1' in OPT) else 1): 2}.get(S, 0) if ffn else 0)
                a(f"s_waitcnt vmcnt({n}) lgkmcnt(0)")
                if S == CK and not hf: a(cs_check(f"L_c1{var}", 0))
                if S < 7: a("s_barrier")
                if "p1b" in OPT: stamp(a, 4 + S)
                if ffn and S == 2:
                    big = cs_mm + big
                    bgq.append(cs_st)
                if ffn and S == 3 and not hf: bgq.append(cs_l2(f"L_l2{var}"))
                if ffn and S == 4 and not hf: bgq.append(cs_r2(f"L_r2{var}"))
                if S == CK - 1 and not hf:
                    bgq.append(cs_issue(f"L_i1{var}", 0))
                if S == 5 and ffn and not hf:
                    bgq.append(sig_one(f"L_sc{var}", [f"s_add_u32 s{T0}, s{sCF}, {C_CS}"]))
                if S == 5:
                    ad = [f"v_and_b32 v{VXS}, 31, v0", f"v_lshlrev_b32 v{VXS}, 2, v{VXS}", "v_lshrrev_b32 v3, 5, v0",
                          f"v_lshl_add_u32 v{VW0}, v3, 10, v{VXS}", f"s_lshl_b32 s{T2}, s{sT}, 7", f"s_add_u32 s{T2}, s{T2}, {WS_ST}"]
                    for t in range(nt):
                        ad += [f"s_add_u32 s{T3}, s{sG}, {2 * t}", f"s_lshr_b32 s{40 + t}, s{T3}, 2", f"s_lshl_b32 s{40 + t}, s{40 + t}, 11",
                               f"s_and_b32 s{T3}, s{T3}, 2", f"s_lshl_b32 s{T3}, s{T3}, 6", f"s_add_u32 s{40 + t}, s{40 + t}, s{T3}",
                               f"s_add_u32 s{40 + t}, s{40 + t}, {WS_CQ}"]
                    bgq.append(ad)
                if S == CK:
                    ld = [f"buffer_load_dword v{STV}, v{VXS}, {sr(S_WS)}, s{T2} offen sc1"]
                    for t in range(nt):
                        ld += [f"buffer_load_dword v{CSA + 4 * t + i}, v{VW0}, {sr(S_WS)}, s{40 + t} offen offset:{256 * i} sc1" for i in range(4)]
                    if isv:
                        ld += [f"s_lshl_b32 s{T3}, s{sW}, 8", f"s_add_u32 m0, s{T3}, {SCR}", f"s_add_u32 s{T2}, s{T2}, {WS_RS - WS_ST}",
                               f"buffer_load_dword v{VXS}, {sr(S_WS)}, s{T2} offen sc1 lds"]
                    bgq += [ld[:5], ld[5:]]
                if S == 6 and ffn:
                    if not hf: bgq.append(poll_issue(f"L_i2{var}", CS_MASK))
                    val = prep
                if S < 7: bgq += dma(S + 3, ffn)
                if S == 0 and ffn and "cse" not in OPT and "cs1" not in OPT: bgq += cs_loads
                if S == 5 and isv:
                    bgq.append([f"s_lshl_b32 s{T3}, s{sW}, 8", f"s_add_u32 s{T3}, s{T3}, {SCR}",
                                "v_lshrrev_b32 v3, 5, v0", "v_lshlrev_b32 v18, 4, v3", f"v_add_u32 v18, s{T3}, v18",
                                "v_bfe_u32 v23, v0, 4, 1", "v_lshlrev_b32 v23, 16, v23", "v_lshl_add_u32 v23, v3, 8, v23",
                                "v_and_b32 v3, 15, v0", "v_lshl_add_u32 v23, v3, 4, v23"])
            elif k == 30:
                a("s_waitcnt vmcnt(0) lgkmcnt(0)")
                val = prep
            else:
                a("s_waitcnt lgkmcnt(0)")
            if k == 31:
                break
            if ffn and k in csv: val = csv[k]
            left = 4 if ks == 3 else 3 - ks
            if k == 27: left = 3
            if not ffn: left = 2 if (ks == 3 and S < 6) else 1
            if ffn and k < 7: left = 2 if ks == 3 else 1
            take = -(-len(bgq) // left)
            extra, bgq = bgq[:take], bgq[take:]
            if ffn and k >= 7:
                nxt = rd1(k + 1, nt, ffn) if k < 27 else \
                    [f"ds_read_b128 {vr(XF + 4 * (28 + j), 4)}, v{XA + j} offset:{sl7}" for j in range(4)] + qrd(0)
            else:
                nxt = [] if k == 30 else rd1(k + 1, nt, ffn) + rd1(k + 2, nt, ffn)
            body = spread(big, nxt, val + [[]] * len(extra) + extra)
            a(body)
        pre = [f"v_and_b32 v{XOP}, v{MASK}, v{STV}", f"v_mov_b32 v{XOP + 3}, 0", f"v_mov_b32 v{XOP + 1}, v{XOP}", f"v_mov_b32 v{XOP + 2}, v{XOP}"]
        corr = [mfma(ACQ + 16 * t, XOP, CSA + 4 * t) if isv else mfma(ACQ + 16 * t, CSA + 4 * t, XOP) for t in range(nt)]
        post = [f"s_lshl_b32 s{T4}, s{sG}, 16", f"s_lshl_b32 s{T2}, s{sT}, 10", f"s_add_u32 s{T4}, s{T4}, s{T2}"]

        def stores(t):
            o = ACQ + 16 * t
            if isv:
                return [[f"buffer_store_dwordx4 {vr(o, 4)}, v23, {sr(S_WS)}, s{T4} offen sc1"],
                        [f"buffer_store_dwordx4 {vr(o + 4, 4)}, v23, {sr(S_WS)}, s{T4} offen offset:512 sc1", f"s_add_u32 s{T4}, s{T4}, 0x20000"]]
            return [[f"buffer_store_dwordx4 {vr(o, 4)}, v{L16}, {sr(S_WS)}, s{T4} offen sc1", f"s_add_u32 s{T4}, s{T4}, 0x10000"],
                    [f"buffer_store_dwordx4 {vr(o + 4, 4)}, v{L16}, {sr(S_WS)}, s{T4} offen sc1", f"s_add_u32 s{T4}, s{T4}, 0x10000"]]
        if not ffn:
            assert not bgq
            stamp(a, 3)
            a(big[:1] + pre + ["s_nop 1"] + big[1:nt] + corr + post + ["s_nop 7"])
            for t in range(nt):
                ac = ACQ + 16 * t
                a(f"s_cmp_lt_u32 s{sG}, {32 - 2 * t}")
                a(f"s_cselect_b32 s{T0}, {hx(f2u(QSCALE))}, 1.0")
                a(f"v_mul_f32 v2, s{T0}, v{RS}")
                a(f"v_mul_f32 v3, s{T0}, v{RS}")
                for i in range(8):
                    a(f"v_pk_mul_f32 {vr(ac + 2 * i, 2)}, {vr(ac + 2 * i, 2)}, v[2:3]")
                for i in range(8):
                    a(f"v_cvt_pk_bf16_f32 v{ac + i}, v{ac + 2 * i}, v{ac + 2 * i + 1}")
                a(stores(t))
            stamp(a, 4)
            a("s_branch L_side")
            continue
        qm = lambda h: [mfma(ACQ + 16 * t, XF + 4 * (28 + 2 * h + q), WF + 16 * h + 8 * q + 4 * t) if isv else
                        mfma(ACQ + 16 * t, WF + 16 * h + 8 * q + 4 * t, XF + 4 * (28 + 2 * h + q)) for q in range(2) for t in range(nt)]
        fm = lambda h: [mfma(ACF + 16 * c, WF + 16 * h + 8 * q + 4 * c, XF + 4 * (20 + 2 * h + q)) for q in range(2) for c in range(2)]
        half = -(-len(bgq) // 2)
        a("s_waitcnt lgkmcnt(0)")
        a(spread(qm(0), qrd(1), pre + bgq[:half]))
        a("s_waitcnt lgkmcnt(0)")
        rsv = lambda g: [f"ds_read_b128 {vr(CSA + 4 * j, 4)}, v18 offset:{(2 * g + j) * 32}" for j in range(2)]
        a(corr + (rsv(0) if isv else []))
        a(spread(qm(1), frd(0), [f"v_subrev_u32 v{WQ + c}, {CR - BR}, v{WC + c}" for c in range(2)] + bgq[half:]))
        adr = [["v_bfe_u32 v2, v0, 4, 1", "v_mul_u32_u24 v2, 28672, v2", "v_lshrrev_b32 v3, 5, v0",
                "v_lshl_add_u32 v2, v3, 9, v2", "v_and_b32 v3, 15, v0", f"v_lshl_add_u32 v{VXS}, v3, 2, v2",
                f"s_lshl_b32 s{sVAR}, s{sCF}, 11", f"s_add_u32 s{sVAR}, s{sVAR}, {WS_CS + 128 * hf}"] + post]
        if isv:
            e1, e2 = [], []
            for t in range(nt):
                ac = ACQ + 16 * t
                e1 += [f"v_mul_f32 v{ac + i}, v{ac + i}, v{CSA + i}" for i in range(8)]
                e2 += [f"v_mul_f32 v{ac + 8 + i}, v{ac + 8 + i}, v{CSA + i}" for i in range(8)]
                e2 += [f"v_cvt_pk_bf16_f32 v{ac + i}, v{ac + 2 * i}, v{ac + 2 * i + 1}" for i in range(4, 8)]
            e1 += rsv(1)
            for t in range(nt):
                ac = ACQ + 16 * t
                e1 += [f"v_cvt_pk_bf16_f32 v{ac + i}, v{ac + 2 * i}, v{ac + 2 * i + 1}" for i in range(4)]
        else:
            e = []
            for t in range(nt):
                ac = ACQ + 16 * t
                e += [[f"s_cmp_lt_u32 s{sG}, {32 - 2 * t}", f"s_cselect_b32 s{T0}, {hx(f2u(QSCALE))}, 1.0", f"v_mul_f32 v2, s{T0}, v{RS}"]]
                e += [f"v_mul_f32 v{ac + i}, v{ac + i}, v2" for i in range(16)]
                e += [f"v_cvt_pk_bf16_f32 v{ac + i}, v{ac + 2 * i}, v{ac + 2 * i + 1}" for i in range(8)]
            e1, e2 = e[:len(e) * 5 // 8], e[len(e) * 5 // 8:]
        a("s_waitcnt lgkmcnt(0)")
        u3 = spread(fm(0), frd(1), adr + e1)
        a(u3)
        a(f"s_waitcnt vmcnt({4 + nvm(u3)}) lgkmcnt(0)")
        if not hf: a(poll_check(f"L_c2{var}", 16))
        a("s_barrier")
        stamp(a, 3)
        c0l = [[f"buffer_load_dword v{r_}, v{VXS}, {sr(S_WS)}, s{sVAR} offen offset:{(i >> 1) * 64 + (i & 1) * 256} sc1"
                for i, r_ in enumerate(C0R)]]
        a(spread(fm(1), rd2(0), c0l + e2))
        for t in range(nt):
            a(stores(t))
        if var != 3:
            a("s_branch L_pass2")
    a("L_pass2:")
    if "p1b" in OPT: NOSTAMP = True
    stamp(a, 4)
    sH = sG
    a(f"s_mul_i32 s{sH}, s{sT}, 112")
    a(f"s_lshl2_add_u32 s{T0}, s{sCF}, s{sHF}")
    a(f"s_lshl1_add_u32 s{sH}, s{T0}, s{sH}")
    a(f"s_lshl_b32 s{sH}, s{sH}, 10")
    a(f"s_add_u32 s{sH}, s{sH}, {WS_H}")
    cRS, cSD, cC2, CO, QP = 22, 23, 19, 132, 140
    q = CSA

    def gelu_plain(g, off):
        u = g + 8
        R = range(8)
        return ([f"v_mul_f32 v{g + i}, v{g + i}, v{cRS}" for i in R] + [f"v_mul_f32 v{q + i}, v{g + i}, v{g + i}" for i in R] +
                [f"v_fmaak_f32 v{q + i}, v{q + i}, v{cC2}, {hx(f2u(GC1))}" for i in R] + [f"v_mul_f32 v{q + i}, v{q + i}, v{g + i}" for i in R] +
                [f"v_exp_f32 v{q + i}, v{q + i}" for i in R] + [f"v_mul_f32 v{g + i}, v{g + i}, v{u + i}" for i in R] +
                [f"v_fma_f32 v{q + i}, v{q + i}, v{cSD}, v{cSD}" for i in R] + [f"v_rcp_f32 v{q + i}, v{q + i}" for i in R] +
                [f"v_mul_f32 v{g + i}, v{g + i}, v{q + i}" for i in R] +
                [f"v_cvt_pk_bf16_f32 v{g + i}, v{g + 2 * i}, v{g + 2 * i + 1}" for i in range(4)] +
                [f"buffer_store_dwordx4 {vr(g, 4)}, v{L16}, {sr(S_WS)}, s{sH} offen offset:{off} sc1"])
    vq = []
    wt = lambda at: sum(2 if (x.startswith("v_exp") or x.startswith("v_rcp")) else 1 for x in ([at] if isinstance(at, str) else at))
    cs_ld = lambda dst, pr: [[f"buffer_load_dword v{dst + 4 * c + i}, v{VXS}, {sr(S_WS)}, s{sVAR} offen offset:{1024 * pr + c * 64 + i * 256} sc1"
                              for c in range(2) for i in range(2)]]
    ts = tr_setup()
    d = dma(10)
    bgq, hist = [ts[0], d[0], ts[1], d[1], d[2], d[3]], []
    after = lambda key: nvm([l for l in hist[len(hist) - hist[::-1].index(key):] if "s62" not in l])
    for v in range(20):
        S, us = 8 + (v >> 2), v & 3
        F = WF + 16 * (v & 1)
        acc, k0 = (ACF, 24 + 2 * v) if v < 4 else (ACQ, 2 * (v - 4))
        big = [mfma(acc + 16 * c, F + 8 * qq + 4 * c, XF + 4 * (k0 + qq), "0" if (v == 4 and qq == 0) else None)
               for qq in range(2) for c in range(2)]
        if us == 3:
            if S == 8:
                a([f"s_cmp_eq_u32 s{sHF}, 0", "s_cbranch_scc1 L_w8", "s_waitcnt vmcnt(6)", "L_w8:", "s_waitcnt vmcnt(8) lgkmcnt(0)"])
            elif S < 12:
                a(f"s_waitcnt vmcnt({after(dma(S + 1)[-1][0]) - 1}) lgkmcnt(0)")
            elif CHK == 11:
                a(f"s_waitcnt vmcnt({after(kv(0)[1][1]) - 1}) lgkmcnt(0)")
            else:
                a("s_waitcnt lgkmcnt(0)")
            if S == CHK:
                a([f"s_cmp_lg_u32 s{sW}, 0", "s_cbranch_scc1 L_w10", f"s_waitcnt vmcnt({after('L_pq:')})", "L_w10:"])
                a(poll_check("L_cq", 32, QP, 4))
            a("s_barrier")
            if "p2b" in OPT: stamp(a, S - 2)
            if S == 8:
                bgq += tr_dma() + dma(11)
                for c in range(2):
                    w = CSA + 4 * c
                    vq += [f"v_add_f32 v{w + 3}, v{C0R[2 * c]}, v{C0R[2 * c + 1]}"] + split3(w, w + 3)
                vq += ["UNIT", mfma(ACF, CSA, XOP), mfma(ACF + 16, CSA + 4, XOP),
                       f"v_lshlrev_b32 v{cSD}, 16, v{STV}", f"v_mov_b32 v{cC2}, {hx(f2u(GC2))}", "UNIT"]
                vq += (gelu_plain(ACF, 0) if NBG > 0 else []) + (gelu_plain(ACF + 16, 1024) if NBG > 1 else [])
            if S == 9:
                bgq += [sig_qkv("L_sq")] + cs_ld(CO, 1) + dma(12)
                bgq += [tr_addr(TRA, 2, 3) + [f"s_lshl_b32 s{T2}, s{sLW}, 1", f"v_add_u32 v{TRA}, s{T2}, v{TRA}", f"v_xor_b32 v{TRA + 1}, 32, v{TRA}"]]
            if S == 10:
                bgq += [tr_rd()]
            if S == CHK - 1:
                bgq += [[]] * (2 - len(bgq)) + [poll_issue("L_pq", QKV_MASK, QP)]
            if S == 11 and CHK == 11:
                bgq += kv(0) + kv(1) + [q_load()] + kv(2)
            if S == 12:
                bgq += kv(3) if CHK == 11 else kv(0) + [q_load()] + kv(1)
                if "prio" in OPT:
                    a("s_setprio 1")
                    a(lead(2))
        else:
            a("s_waitcnt lgkmcnt(0)")
        if v == 16:
            for c in range(2):
                w = CO + 4 * c
                vq += [f"v_add_f32 v{w + 3}, v{w}, v{w + 1}"] + split3(w, w + 3) + [["s_nop 1", mfma(ACQ + 16 * c, w, XOP)]]
            vq += p2_init_v()
        left = 1 if v == 19 else (4 if us == 3 else 3 - us)
        take = -(-len(bgq) // left)
        extra, bgq = bgq[:take], bgq[take:]
        val, budget = [], (1000 if v == 19 else VBUD)
        while vq and vq[0] != "UNIT" and budget > 0:
            budget -= wt(vq[0])
            val.append(vq.pop(0))
        if vq and vq[0] == "UNIT":
            vq.pop(0)
        body = spread(big, rd2(v + 1) if v < 19 else [], val[:len(val) // 2] + extra + val[len(val) // 2:])
        hist += body
        a(body)
    assert not bgq and not vq
    if "p2b" in OPT: NOSTAMP = True
    stamp(a, 5)
    RS2, SD2 = 240, 242
    a(f"v_mov_b32 v{RS2}, v{cRS}")
    a(f"v_mov_b32 v{RS2 + 1}, v{cRS}")
    a(f"v_mov_b32 v{SD2}, v{cSD}")
    a(f"v_mov_b32 v{SD2 + 1}, v{cSD}")
    a(f"v_mov_b32 v248, v{cC2}")
    a(f"v_mov_b32 v249, v{cC2}")
    a(f"v_mov_b32 v250, {hx(f2u(GC1))}")
    a("v_mov_b32 v251, v250")
    a("s_nop 5")
    for c in range(NBG - 2, 2):
        g = ACQ + 16 * c
        u = g + 8
        q = 32 + (c & 1) * 8
        o = 56 + c * 4
        if c == 0:
            a(f"s_add_u32 s{sH}, s{sH}, 4096")
        for i in range(4):
            a(f"v_pk_mul_f32 {vr(g + 2 * i, 2)}, {vr(g + 2 * i, 2)}, {vr(RS2, 2)}")
        for i in range(4):
            a(f"v_pk_mul_f32 {vr(q + 2 * i, 2)}, {vr(g + 2 * i, 2)}, {vr(g + 2 * i, 2)}")
        for i in range(4):
            a(f"v_pk_fma_f32 {vr(q + 2 * i, 2)}, {vr(q + 2 * i, 2)}, v[248:249], v[250:251]")
        for i in range(4):
            a(f"v_pk_mul_f32 {vr(q + 2 * i, 2)}, {vr(q + 2 * i, 2)}, {vr(g + 2 * i, 2)}")
        for i in range(8):
            a(f"v_exp_f32 v{q + i}, v{q + i}")
        for i in range(4):
            a(f"v_pk_mul_f32 {vr(g + 2 * i, 2)}, {vr(g + 2 * i, 2)}, {vr(u + 2 * i, 2)}")
        for i in range(4):
            a(f"v_pk_fma_f32 {vr(q + 2 * i, 2)}, {vr(q + 2 * i, 2)}, {vr(SD2, 2)}, {vr(SD2, 2)}")
        for i in range(8):
            a(f"v_rcp_f32 v{q + i}, v{q + i}")
        a("s_nop 0")
        for i in range(4):
            a(f"v_pk_mul_f32 {vr(g + 2 * i, 2)}, {vr(g + 2 * i, 2)}, {vr(q + 2 * i, 2)}")
        for i in range(4):
            a(f"v_cvt_pk_bf16_f32 v{o + i}, v{g + 2 * i}, v{g + 2 * i + 1}")
        a(f"buffer_store_dwordx4 {vr(o, 4)}, v{L16}, {sr(S_WS)}, s{sH} offen offset:{(c & 1) * 1024} sc1")
        if CHK == 12 and c >= 0:
            a(kv(2 + c))
        if c == 0:
            a(lead(0))
    a(tr_st())
    a(f"s_waitcnt vmcnt({after(q_load()[-1]) + (4 if CHK == 11 else 8) + 2 - NBG})")
    if CHK == 12:
        a("s_barrier")


VARS = (0, 4, 5, 1, 2, 3)
VBUD = 15
NBG = 2
OSL = 2
CSO = 2
WK = 8
C0R = (9, 19, 21, 1)
SIGU, CHK = 7, 11


def gen_side(a):
    a("L_side:")
    global NOSTAMP
    NOSTAMP = "side" not in OPT
    a(p2_init_v())
    a("s_waitcnt vmcnt(0)")
    a("s_barrier")
    a(sig_qkv("L_sq2"))
    stamp(a, 10)
    a(sig_one("L_h_ns2", [f"s_add_u32 s{T0}, s{sRB}, {C_H}"]))
    a(poll_issue("L_pq2", QKV_MASK))
    a("s_waitcnt vmcnt(0)")
    a(poll_check("L_cq2", 32, POLL, 6))
    a("s_barrier")
    a(kv(0))
    a(q_load())
    a(kv(1))
    a("s_waitcnt vmcnt(2)")
    a("s_barrier")
    a(kv(2))
    a(kv(3))
    if "prio" in OPT:
        a("s_setprio 1")
        a(lead(2))
    a("s_branch L_p2")
    a("L_side1:")
    a([f"s_cmp_lg_u32 s{sW}, 7", "s_cbranch_scc1 L_nozero", f"s_mul_i32 s{T0}, s2, 1536", f"s_add_u32 s{T0}, s{T0}, s{sCNT}",
       "v_mov_b32 v1, 0", "v_lshlrev_b32 v2, 7, v0", "s_mov_b64 exec, 0xfff",
       f"buffer_store_dword v1, v2, {sr(S_WS)}, s{T0} offen sc1", "s_mov_b64 exec, -1", "L_nozero:"])
    XW, QW, CW = 32, 64, 128
    LO, HI, ON = 18, 19, 22
    a("v_lshrrev_b32 v1, 3, v0")
    a("v_and_b32 v2, 7, v0")
    a("v_lshlrev_b32 v2, 4, v2")
    a("v_lshl_add_u32 v3, v1, 10, v2")
    a(f"s_lshl3_add_u32 s{tVM + 1}, s2, s{sW}")
    a(f"s_lshl_b32 s{T0}, s{tVM + 1}, 13")
    for q in range(8):
        a(f"buffer_load_dwordx4 {vr(XW + 4 * q, 4)}, v3, {sr(S_X)}, s{T0} offen offset:{128 * q}")
    sU = sVAR
    a(f"s_and_b32 s{sU}, s{sRB}, 3")
    a(f"s_lshl3_add_u32 s{sU}, s{sU}, s{sW}")
    a(f"s_sub_u32 s{T1}, 31, s{sU}")
    a(f"s_lshl3_add_u32 s41, s{T1}, s{sXCD}")
    a("s_lshl_b32 s41, s41, 8")
    a(f"s_add_u32 s41, s41, {WS_CQ}")
    a(f"s_lshl_b32 s{T0}, s{T1}, 7")
    a(f"s_mul_i32 s{T2}, s{sXCD}, {64 * 3072}")
    a(f"s_add_u32 s{T0}, s{T0}, s{T2}")
    a(f"s_cmp_lt_u32 s{T1}, 24")
    a(f"s_cselect_b32 s{T0}, s{T0}, {OOB}")
    a(f"s_cselect_b32 s41, s41, {OOB}")
    a("v_mul_u32_u24 v3, 3072, v1")
    a("v_add_u32 v3, v3, v2")
    for q in range(8):
        a(f"buffer_load_dwordx4 {vr(QW + 4 * q, 4)}, v3, {sr(S_W0)}, s{T0} offen")
        if q != 7:
            a(f"s_add_u32 s{T0}, s{T0}, {8 * 3072}")
    a(f"v_mov_b32 v{LO}, 0x00003f80")
    a(f"v_mov_b32 v{HI}, 0x3f800000")
    a(f"v_mov_b32 v{ON}, 0x3f803f80")
    RU = 96
    for i in range(0, 28, 2):
        a(f"v_mov_b64 v[{RU + i}:{RU + i + 1}], 0")
    a(["v_and_b32 v2, 8, v0", "v_cmp_eq_u32 vcc, 0, v2", f"v_and_b32 v{POLL}, 7, v0", f"v_lshlrev_b32 v{POLL}, 3, v{POLL}",
       "v_lshrrev_b32 v3, 4, v0", f"v_add_u32 v{POLL}, v{POLL}, v3", "v_lshrrev_b32 v2, 1, v2", f"v_add_u32 v{POLL}, v{POLL}, v2",
       f"v_lshlrev_b32 v{POLL}, 2, v{POLL}"])
    stamp(a, 8)
    m, v_ = RU + 24, RU + 25
    for q in range(8):
        a(f"s_waitcnt vmcnt({15 - q})")
        for i in range(4):
            a(f"v_dot2c_f32_bf16 v{m + 2 * (i & 1)}, v{XW + 4 * q + i}, v{ON}")
            a(f"v_dot2c_f32_bf16 v{v_ + 2 * (i & 1)}, v{XW + 4 * q + i}, v{XW + 4 * q + i}")
    a("s_nop 2")
    a(f"v_add_f32 v{m}, v{m}, v{m + 2}")
    a(f"v_add_f32 v{v_}, v{v_}, v{v_ + 2}")
    for md in ("quad_perm:[1,0,3,2]", "quad_perm:[2,3,0,1]", "row_half_mirror"):
        a("s_nop 0")
        a(f"v_add_f32_dpp v{m}, v{m}, v{m} {md} row_mask:0xf bank_mask:0xf")
        a(f"v_add_f32_dpp v{v_}, v{v_}, v{v_} {md} row_mask:0xf bank_mask:0xf")
    a([f"v_mul_f32 v{m}, {hx(f2u(-1.0 / 512))}, v{m}", f"v_mul_f32 v{v_}, {hx(f2u(1.0 / 512))}, v{v_}",
       f"v_fma_f32 v{v_}, -v{m}, v{m}, v{v_}", f"v_max_f32 v{v_}, 0, v{v_}",
       f"v_cvt_pk_bf16_f32 v{v_}, v{v_}, v{v_}", f"v_and_b32 v{v_}, v{MASK}, v{v_}",
       f"v_add_f32 v{v_}, {hx(f2u(1e-5))}, v{v_}",
       f"v_cvt_pk_bf16_f32 v{v_}, v{v_}, v{v_}", f"v_and_b32 v{v_}, v{MASK}, v{v_}",
       f"v_sqrt_f32 v{v_}, v{v_}", "v_lshlrev_b32 v1, 2, v1",
       f"v_cvt_pk_bf16_f32 v{m}, v{v_}, v{m}",
       f"v_lshlrev_b32 v{v_}, 16, v{m}", f"v_rcp_f32 v{v_}, v{v_}",
       f"s_lshl_b32 s{T0}, s{tVM + 1}, 5", f"s_add_u32 s{T0}, s{T0}, {WS_ST}", f"s_add_u32 s{T1}, s{T0}, {WS_RS - WS_ST}",
       f"s_mov_b32 exec_lo, 0x01010101", "s_mov_b32 exec_hi, 0x01010101",
       f"buffer_store_dword v{m}, v1, {sr(S_WS)}, s{T0} offen sc1",
       f"buffer_store_dword v{v_}, v1, {sr(S_WS)}, s{T1} offen sc1", "s_mov_b64 exec, -1"])

    def colsum(src, n, acc, behind):
        for q in range(n):
            a(f"s_waitcnt vmcnt({n - 1 - q + behind})")
            for i in range(4):
                a(f"v_dot2c_f32_bf16 v{acc + 2 * i}, v{src + 4 * q + i}, v{LO}")
                a(f"v_dot2c_f32_bf16 v{acc + 2 * i + 1}, v{src + 4 * q + i}, v{HI}")
        a("s_nop 2")
        for i in range(4):
            a(f"v_permlane16_swap_b32 v{acc + 2 * i}, v{acc + 2 * i + 1}")
        for i in range(4):
            a(f"v_add_f32 v{acc + 2 * i}, v{acc + 2 * i}, v{acc + 2 * i + 1}")
        a(["s_nop 1", f"v_permlane32_swap_b32 v{acc}, v{acc + 2}", f"v_permlane32_swap_b32 v{acc + 4}, v{acc + 6}",
           f"v_add_f32 v{acc}, v{acc}, v{acc + 2}", f"v_add_f32 v{acc + 4}, v{acc + 4}, v{acc + 6}", "s_nop 1",
           f"v_add_f32_dpp v{acc}, v{acc}, v{acc} row_ror:8 row_mask:0xf bank_mask:0xf",
           f"v_add_f32_dpp v{acc + 4}, v{acc + 4}, v{acc + 4} row_ror:8 row_mask:0xf bank_mask:0xf",
           f"v_cndmask_b32 v{acc + 1}, v{acc + 4}, v{acc}, vcc"])
    colsum(QW, 8, RU, 2)
    a(f"buffer_store_dword v{RU + 1}, v{POLL}, {sr(S_WS)}, s41 offen sc1")
    a(dma(0, False))
    a("s_waitcnt vmcnt(4)")
    a("s_barrier")
    a(cs_signal("L_scs0", 0))
    stamp(a, 12)
    a(dma(1, False))
    stamp(a, 9)
    a(f"s_cmp_eq_u32 s{sHF}, 0")
    a("s_cbranch_scc1 L_p1_4")
    a("s_branch L_p1_5")


def att_step(i, ex=None, first=False):
    ex = ex or {}
    Sc, Sn = (S0, S1) if i % 2 == 0 else (S1, S0)
    Kn = K_ + 4 * ((i + 1) % 2)
    Vc = V_ + 8 * (i % 4)
    Vp = V_ + 8 * ((i - 1) % 4)
    e = lambda k: f"v_exp_f32 v{Sc + k}, v{Sc + k}"
    c = lambda k: f"v_cvt_pk_bf16_f32 v{P_ + k}, v{Sc + 2 * k}, v{Sc + 2 * k + 1}"
    r = [mfma(Sn, Kn, Q_, NM),
         f"ds_read_b128 {vr(Kn, 4)}, v{AK} offset:{(i + 3) * 2048}"]
    r += ex.get("qk", [])
    r += [e(0), e(1), e(2), e(3)]
    if not first:
        r.append(mfma(O_, Vp + 4, P_ + 4))
    if i % 2 == 0:
        r.append(f"s_mov_b64 exec, s[{tVM}:{tVM + 1}]")
        for d in (2, 3):
            vb = V_ + 8 * ((i + d) % 4)
            r.append(f"ds_read_b128 {vr(vb, 4)}, v{AV} offset:{(i + d) * 2048}")
            r.append(f"ds_read_b128 {vr(vb + 4, 4)}, v{AV} offset:{(i + d) * 2048 + 512}")
        r.append("s_mov_b64 exec, -1")
    r += ex.get("pv1", [])
    if "G2" in ex:
        r += [c(0), e(4), e(5), c(1)]
        r += [ex["G1"]] + ex.get("g1", [])
        r += [e(6), e(7), e(8), c(2), c(3), e(9)]
        r += ["s_nop 0", mfma(O_, Vc, P_)]
        if i % 2 == 1: r.append("s_waitcnt lgkmcnt(0)")
        r += ex.get("pv0", [])
        r += [e(10), e(11), c(4), e(12), c(5)]
        r += [ex["G2"]] + ex.get("g2", [])
        r += [e(13), e(14), e(15), c(6), c(7)]
    else:
        r += [c(0), e(4), e(5), c(1), e(6), e(7)]
        if "G1" in ex:
            r += [ex["G1"]]
        r += ex.get("g1", [])
        r += [e(8), c(2), c(3), e(9), e(10), e(11)]
        r += ex.get("prepv0", [])
        r.append(mfma(O_, Vc, P_, "0" if first else None))
        if i % 2 == 1: r.append("s_waitcnt lgkmcnt(0)")
        r += ex.get("pv0", [])
        r += [c(4), e(12), e(13), c(5), e(14), e(15), c(6), c(7)]
    r += ex.get("end", [])
    return r


def ring_loads(r):
    b = RING + 16 * r
    return [f"buffer_load_dwordx4 {vr(b, 4)}, v{A16}, {sr(R_H0)}, s{tFH} offen sc1",
            f"buffer_load_dwordx4 {vr(b + 4, 4)}, v{A16}, {sr(R_H1)}, s{tFH} offen sc1",
            f"buffer_load_dwordx4 {vr(b + 8, 4)}, v{A16}, {sr(R_WT)}, s{tFW} offen sc1",
            f"buffer_load_dwordx4 {vr(b + 12, 4)}, v{A16}, {sr(R_WT)}, s{tFW} offen offset:1024 sc1",
            f"s_add_u32 s{tFH}, s{tFH}, 1024",
            f"s_add_u32 s{tFW}, s{tFW}, 2048"]


def gm(r, n):
    b = RING + 16 * r
    return mfma(G_ + 16 * n, b + 8 + 4 * (n & 1), b + 4 * (n >> 1))


_pl = [0]
PC = (2, 6)
PD = 7
PG = 2


def lead(p, cond=None):
    if "prio" not in OPT:
        return []
    _pl[0] += 1
    lb = f"L_pr{_pl[0]}"
    c = [f"s_cmp_lt_u32 s{sW}, 4"] if cond is None else cond
    return c + [f"s_cbranch_scc0 {lb}", f"s_setprio {p}", f"{lb}:"]


def recentre(ex, i, at):
    if i == at:
        ex["prepv0"] = [f"v_frexp_exp_i32_f32 v4, v{O_ + 8}"]
        ex["end"] = [f"v_add_u32 v4, {int(MAXOFF) - 1}, v4", "v_max_i32 v4, 0, v4", "v_cvt_f32_i32 v2, v4", f"v_sub_f32 v2, v{NM}, v2",
                     "v_sub_u32 v4, 0, v4", "v_mov_b32 v3, v2"] + [f"v_mov_b64 v[{NM + j}:{NM + j + 1}], v[2:3]" for j in range(0, 16, 2)] + \
                    ["s_nop 1"] + ex.get("end", [])
    if i == at + 2:
        ex["prepv0"] = [f"v_ldexp_f32 v{O_ + j}, v{O_ + j}, v4" for j in range(9)] + ["s_nop 1"]


def adv(a):
    a(f"v_add_u32 v{AK}, 0x4000, v{AK}")
    a(f"v_add_u32 v{AV}, 0x4000, v{AV}")


def gen_p2(a):
    a("L_p2:")
    if ENC == 99:
        a(["s_lshr_b32 s76, s2, 3", f"s_lshl3_add_u32 s76, s76, s{sW}", "s_cmp_lg_u32 s76, 32", "s_cbranch_scc1 L_nosk",
           "s_not_b32 s76, s80", "v_mov_b32 v1, 0", "v_mov_b32 v2, s76", "s_mov_b64 exec, 1",
           f"global_atomic_umax v1, v2, s[{pDBG}:{pDBG + 1}] offset:240 sc1", "s_mov_b64 exec, -1", "L_nosk:"])
    stamp(a, 6)
    a(f"v_mov_b32 v{A16}, v{L16}")
    a(f"v_mov_b32 v{AK}, v{L16}")
    a("v_lshrrev_b32 v2, 5, v0")
    a("v_and_b32 v3, 15, v0")
    a("v_lshlrev_b32 v3, 4, v3")
    a("v_lshl_add_u32 v3, v2, 8, v3")
    a(f"v_add_u32 v{AV}, 1024, v3")
    a(f"s_mov_b32 s{tVM}, 0x0000ffff")
    a(f"s_mov_b32 s{tVM + 1}, 0x0000ffff")
    a(f"ds_read_b128 {vr(K_, 4)}, v{AK}")
    a(f"ds_read_b128 {vr(K_ + 4, 4)}, v{AK} offset:2048")
    a(f"s_mov_b64 exec, s[{tVM}:{tVM + 1}]")
    for d in range(2):
        a(f"ds_read_b128 {vr(V_ + 8 * d, 4)}, v{AV} offset:{d * 2048}")
        a(f"ds_read_b128 {vr(V_ + 8 * d + 4, 4)}, v{AV} offset:{d * 2048 + 512}")
    a("s_mov_b64 exec, -1")
    a(f"s_lshr_b32 s{T0}, s{sW}, 2")
    a(f"s_lshl1_add_u32 s{tTT}, s{tHEAD}, s{T0}")
    a(f"s_lshl_b32 s{T0}, s{tTT}, 15")
    a(f"s_lshl_b32 s{T1}, s{tQB}, 7")
    a(f"s_add_u32 s{T0}, s{T0}, s{T1}")
    a(f"s_and_b32 s{T1}, s{sW}, 3")
    if "coal" in OPT:
        a(f"s_lshl_b32 s{T1}, s{T1}, 13")
        a(f"s_add_u32 s{T0}, s{T0}, s{T1}")
        a("v_lshrrev_b32 v1, 3, v0")
        a("v_lshlrev_b32 v1, 10, v1")
        a("v_and_b32 v2, 7, v0")
        a("v_lshl_add_u32 v1, v2, 4, v1")
    else:
        a(f"s_lshl4_add_u32 s{T0}, s{T1}, s{T0}")
        a("v_and_b32 v1, 31, v0")
        a("v_lshlrev_b32 v1, 10, v1")
        a("v_lshl_add_u32 v1, v2, 6, v1")
    a(f"v_add_u32 v{AOUT}, s{T0}, v1")
    a("s_waitcnt lgkmcnt(4)")
    a(mfma(S0, K_, Q_, "0"))
    a(mfma(S1, K_ + 4, Q_, "0"))
    a(f"s_mul_i32 s{T0}, s{tHEAD}, {224 * 1024}")
    a(f"s_add_u32 s{T0}, s{T0}, {WS_H}")
    a(f"s_add_u32 s{R_H0}, s{pWS}, s{T0}")
    a(f"s_addc_u32 s{R_H0 + 1}, s{pWS + 1}, 0")
    a(f"s_add_u32 s{R_H1}, s{R_H0}, {112 * 1024}")
    a(f"s_addc_u32 s{R_H1 + 1}, s{R_H0 + 1}, 0")
    a(f"s_mul_i32 s{tFH}, s{sW}, {14 * 1024}")
    a(f"s_add_u32 s{R_H0 + 2}, s{tFH}, {14 * 1024}")
    a(f"s_mov_b32 s{R_H1 + 2}, s{R_H0 + 2}")
    a(f"s_mul_i32 s{T0}, s{tQB}, {144 * 2048}")
    a(f"s_add_u32 s{T0}, s{T0}, {WS_WT}")
    a(f"s_add_u32 s{R_WT}, s{pWS}, s{T0}")
    a(f"s_addc_u32 s{R_WT + 1}, s{pWS + 1}, 0")
    a(f"s_lshl_b32 s{tFW}, s{tFH}, 1")
    a(f"s_lshl_b32 s{R_WT + 2}, s{R_H0 + 2}, 1")
    a(f"v_max3_f32 v1, v{S0}, v{S0 + 1}, v{S0 + 2}")
    for i in range(3, 31, 2):
        a(f"v_max3_f32 v1, v1, v{S0 + i}, v{S0 + i + 1}")
    a(f"v_max_f32 v1, v1, v{S0 + 31}")
    a("v_mov_b32 v2, v1")
    a("s_nop 1")
    a("v_permlane32_swap_b32 v1, v2")
    a("v_max_f32 v1, v1, v2")
    a("v_floor_f32 v1, v1")
    a(f"v_sub_f32 v2, {hx(f2u(-MAXOFF))}, v1")
    a("v_mov_b32 v3, v2")
    for i in range(0, 16, 2):
        a(f"v_mov_b64 v[{NM + i}:{NM + i + 1}], v[2:3]")
    a("s_nop 1")
    a(mfma(S0, K_, Q_, NM))
    a(f"ds_read_b128 {vr(K_, 4)}, v{AK} offset:4096")
    srd(a, R_OUT, pOUT, 2097152)
    a(f"s_lshl_b32 s{T0}, s{sW}, 11")
    a(f"v_add_u32 v{AW}, s{T0}, v{A16}")
    a(f"v_add_u32 v{AW + 1}, 0x10000, v{AW}")
    a(f"v_add_u32 v{AW + 2}, 0x20000, v{AW}")
    a("s_waitcnt lgkmcnt(0)")
    a("s_nop 1")
    a(lead(2))
    stamp(a, 7)
    global NOSTAMP
    if "side" in OPT: NOSTAMP = True
    for i in range(8):
        ex = {}
        if i == 4:
            d1, d2 = (stampl(1), stampl(2)) if "p3b" in OPT else ([], [])
            ex["end"] = d1 + ["s_waitcnt vmcnt(0)", "s_barrier"] + d2 + sig_one("L_h_ns", [f"s_add_u32 s{T0}, s{sRB}, {C_H}"], True) + lead(2)
        if i == 3:
            ex["pv0"] = lead(0)
        if i >= 5:
            ex["pv1"], ex["pv0"] = kv(i - 1, A16)
        if "rc0" in OPT: recentre(ex, i, 5)
        a(att_step(i, ex, first=(i == 0)))
    adv(a)
    for i in range(8):
        ex = {}
        if i == 0:
            ex["pv1"], ex["pv0"] = kv(7, A16)
            ex["qk"] = [f"v_mov_b64 v[{RING}:{RING + 1}], 0", f"v_mov_b64 v[{RING + 2}:{RING + 3}], 0"]
        if i < 4:
            ex["G1"] = mfma(G_ + 16 * i, RING, RING, "0")
        if i == 3:
            ex["pv0"] = poll_issue("L_h_np", H_MASK, 7) + lead(0)
        if i == 4:
            d1, d2 = (stampl(3), stampl(4)) if "p3b" in OPT else ([], [])
            ex["end"] = d1 + ["s_waitcnt vmcnt(0)"] + poll_check("L_ch", 16, 7, 16) + ["s_barrier"] + d2 + lead(2)
        if i in (5, 6, 7):
            l = ring_loads(i - 5)
            ex["qk"] = l[0:1]
            ex["pv1"] = l[1:3]
            ex["pv0"] = l[3:6]
        if "rc1" in OPT: recentre(ex, i, 5)
        if "rc2" in OPT: recentre(ex, i, 0)
        a(att_step(i, ex))
    stamp(a, 8)
    a(f"s_mov_b32 s{tIT}, 5")
    a(f"s_lshr_b32 s{sG}, s{sW}, 2")
    a(f"s_lshl_b32 s{sG}, s{sG}, 4")
    a(f"s_add_u32 s{sG}, s{sG}, {PC[0]}")
    a("L_loop:")
    adv(a)
    plan = [[(0, 0)], [(0, 1), (0, 2)], [(0, 3)], [(1, 0), (1, 1)], [(1, 2)], [(1, 3), (2, 0)], [(2, 1)], [(2, 2), (2, 3)]]
    for i in range(8):
        ex = {}
        ex["G1"] = gm(*plan[i][0])
        if len(plan[i]) > 1:
            ex["G2"] = gm(*plan[i][1])
        if i == 0: ex["qk"] = ["s_waitcnt vmcnt(8)"]
        if i == PC[1]: ex["end"] = lead(0, [f"s_cmp_eq_u32 s{tIT}, s{sG}"])
        if i == 2:
            l = ring_loads(0)
            ex["g1"] = l[0:2]
            ex["pv0"] = l[2:6]
        if i == 3: ex["pv1"] = ["s_waitcnt vmcnt(8)"]
        if i == 5:
            l = ring_loads(1)
            ex["g1"] = l[0:2]
            ex["pv0"] = l[2:6] + ["s_waitcnt vmcnt(8)"]
        if i == 7:
            ex["g2"] = ring_loads(2)
        a(att_step(i, ex))
    a(f"s_sub_u32 s{tIT}, s{tIT}, 1")
    a(f"s_cmp_lg_u32 s{tIT}, 0")
    a("s_cbranch_scc1 L_loop")
    adv(a)
    a(f"s_and_b32 s{tFW}, s{sW}, 3")
    a(f"s_lshl_b32 s{tFW}, s{tFW}, 14")
    a(f"s_add_u32 s{tFW}, s{tFW}, {112 * 2048}")
    a(f"s_mov_b32 s{R_WT + 2}, {144 * 2048}")
    if "p3b" in OPT: stamp(a, 5)
    a("s_barrier")
    if "p3b" in OPT: stamp(a, 6)
    a(lead(2))

    def pw(o):
        base, off = (AW, o * 16384) if o < 4 else ((AW + 1, (o - 4) * 16384) if o < 6 else (AW + 2, (o - 6) * 16384))
        if "coal" in OPT:
            base, off = (AW, o * 16448) if o < 4 else ((AW + 1, o * 16448 - 65536) if o < 7 else (AW + 2, 192))
        return [f"ds_write_b128 v{base}, {vr(G_ + 8 * o, 4)} offset:{off}",
                f"ds_write_b128 v{base}, {vr(G_ + 8 * o + 4, 4)} offset:{off + 1024}"]

    XV = 244
    wreg = lambda i: RING + 4 * i if i < 12 else NM + 4 * (i - 12)

    def wol(g):
        return [f"buffer_load_dwordx4 {vr(wreg(4 * g + q), 4)}, v{A16}, {sr(R_WT)}, s{tFW} offen offset:{q * 1024} sc1" for q in range(4)] + \
               [f"s_add_u32 s{tFW}, s{tFW}, 4096"]
    for i in range(8):
        ex = {}
        if i == 0: ex["pv0"] = [f"buffer_load_dwordx4 {vr(XV, 4)}, v{AOUT}, {sr(S_X)}, 0 offen"]
        if i in (1, 3, 5): ex["pv1"], ex["g1"] = wol(i // 2)[:1], wol(i // 2)[1:2]
        if i in (2, 4, 6): ex["g1"], ex["pv0"] = wol(i // 2 - 1)[2:3], wol(i // 2 - 1)[3:]
        if i == PD: ex["end"] = lead(0)
        a(att_step(i, ex))
    a("s_nop 1")
    a(mfma(O_, V_ + 24 + 4, P_ + 4))
    a("s_nop 1")
    a(f"s_lshl_b32 s{T0}, s{sQT}, 5")
    a(f"s_add_u32 s{T0}, s{T0}, s{tHEAD}")
    a(f"s_lshl_b32 s{T0}, s{T0}, 10")
    a(f"s_add_u32 s{T3}, s{T0}, {WS_O}")
    a(f"v_mov_b32 v2, {hx(f2u(2.0 ** 120))}")
    a(f"v_mov_b32 v3, {hx(f2u(2.0 ** -(MAXOFF + 4)))}")
    a("s_waitcnt lgkmcnt(0)")
    a("s_nop 3")
    stamp(a, 9)
    a(f"v_add_f32 v1, |v{O_}|, |v{O_ + 1}|")
    for i in range(2, 8):
        a(f"v_add_f32 v1, v1, |v{O_ + i}|")
    a(f"v_cmp_lt_f32 s[40:41], v{O_ + 8}, v2")
    a("v_cmp_lt_f32 s[42:43], v1, v2")
    a(f"v_cmp_le_f32 s[50:51], 0.5, v{O_ + 8}")
    a("v_cmp_le_f32 vcc, v3, v1")
    a("s_or_b64 s[50:51], s[50:51], vcc")
    a("s_and_b64 s[40:41], s[40:41], s[42:43]")
    a("s_and_b64 s[40:41], s[40:41], s[50:51]")
    a("s_cmp_eq_u64 s[40:41], -1")
    a("s_cbranch_scc0 L_fallback")
    a("L_norm:")
    a(f"v_rcp_f32 v2, v{O_ + 8}")
    a("s_nop 0")
    for i in range(8):
        a(f"v_mul_f32 v{O_ + i}, v{O_ + i}, v2")
    for i in range(4):
        a(f"v_cvt_pk_bf16_f32 v{4 + i}, v{O_ + 2 * i}, v{O_ + 2 * i + 1}")
    a(f"buffer_store_dwordx4 v[4:7], v{A16}, {sr(S_WS)}, s{T3} offen sc1")
    a(wol(3)[:4])
    for o in range(8):
        a(pw(o))
    if "coal" in OPT:
        a(f"s_and_b32 s{T0}, s{sW}, 4")
        a(f"s_and_b32 s{T1}, s{sW}, 3")
        a(f"s_lshl_b32 s{T1}, s{T1}, 7")
        a("v_and_b32 v1, 3, v0")
        a(f"v_add_u32 v1, s{T0}, v1")
        a("v_bfe_u32 v2, v0, 2, 1")
        a("v_lshrrev_b32 v3, 3, v0")
        a("v_lshl_add_u32 v2, v2, 5, v3")
        a("v_lshlrev_b32 v2, 4, v2")
        a(f"v_add_u32 v2, s{T1}, v2")
        a("v_cmp_eq_u32 vcc, 7, v1")
        a("v_mul_u32_u24 v3, 16448, v1")
        a(f"v_mul_u32_u24 v1, 8256, v1")
        a(f"v_add_u32 v{AK}, v1, v2")
        a(f"v_mov_b32 v1, {131072 + 192}")
        a("v_cndmask_b32 v3, v3, v1, vcc")
        a("v_add_u32 v3, v3, v2")
    else:
        a(f"s_lshl_b32 s{T0}, s{sW}, 14")
        a(f"s_add_u32 s{T1}, s{T0}, 0x8000")
        a(f"s_cmp_lt_u32 s{sW}, 6")
        a(f"s_cselect_b32 s{T0}, s{T0}, s{T1}")
        a(f"v_add_u32 v3, s{T0}, v{A16}")
    if "pws" in OPT:
        a(f"s_lshr_b32 s{T0}, s{sXCD}, 1")
        a(f"s_lshl2_add_u32 s{T0}, s{sQT}, s{T0}")
        a(f"s_lshl_b32 s{T0}, s{T0}, 7")
        a(f"s_add_u32 s{T0}, s{T0}, {WS_CNT + 0x4000}")
        a("v_mov_b32 v1, 1")
        a(f"s_and_b32 s42, s{sW}, 3")
        a(f"s_lshl2_add_u32 s42, s{tTT}, s42")
        a(f"s_lshl_b32 s42, s42, 7")
        a(f"s_add_u32 s42, s42, {WS_CNT + 0x4000}")
        a("s_waitcnt vmcnt(4)")
        a("s_mov_b64 exec, 1")
        a(f"buffer_atomic_add v1, off, {sr(S_WS)}, s{T0} sc1")
        a("s_mov_b64 exec, -1")
        a("s_waitcnt lgkmcnt(0)")
        a("s_barrier")
        if "tp" in OPT: a(lead(2))
        stamp(a, 10)
        if "oe" in OPT:
            a(f"buffer_load_dword v5, off, {sr(S_WS)}, s42 sc1")
    else:
        a("s_waitcnt vmcnt(4) lgkmcnt(0)")
        a("s_barrier")
        if "tp" in OPT: a(lead(2))
        stamp(a, 10)
        a(f"s_cmp_lg_u32 s{sW}, 0")
        a("s_cbranch_scc1 L_o_ns")
        if "ok4" in OPT:
            a(f"s_lshr_b32 s{T0}, s{sXCD}, 1")
            a(f"s_lshl2_add_u32 s{T0}, s{tQB}, s{T0}")
            a(f"s_lshl_b32 s{T0}, s{T0}, 8")
        else:
            a(f"s_lshl_b32 s{T0}, s{tQB}, 8")
        if "rep" in OPT:
            a(f"s_lshl2_add_u32 s{T0}, s{T0}, {WS_CNT + 0x4000}")
            a("v_mov_b32 v1, 1")
            a("v_lshlrev_b32 v2, 7, v0")
            a("s_mov_b64 exec, 255")
            a(f"buffer_atomic_add v1, v2, {sr(S_WS)}, s{T0} offen sc1")
        else:
            a(f"s_add_u32 s{T0}, s{T0}, {WS_CNT + C_O * 256}")
            a("v_mov_b32 v1, 1")
            a("s_mov_b64 exec, 1")
            a(f"buffer_atomic_add v1, off, {sr(S_WS)}, s{T0} sc1")
        a("s_mov_b64 exec, -1")
        a("L_o_ns:")
        if "ok4" in OPT:
            a(f"s_and_b32 s42, s{sW}, 3")
            a(f"s_lshl2_add_u32 s42, s{sXCD}, s42")
            if "rep" in OPT:
                a(f"s_lshl3_add_u32 s42, s42, s{tQB}")
                a(f"s_lshl_b32 s42, s42, 7")
                a(f"s_add_u32 s42, s42, {WS_CNT + 0x4000}")
            else:
                a(f"s_lshl_b32 s42, s42, 8")
                a(f"s_add_u32 s42, s42, {WS_CNT + C_O * 256}")
            if "oe" in OPT:
                a(f"buffer_load_dword v5, off, {sr(S_WS)}, s42 sc1")
    F_ = G_
    for s in range(8):
        for i in range(2):
            a(f"ds_read_b128 {vr(F_ + 8 * s + 4 * i, 4)}, v3 offset:{(s * 2 + i) * 1024}")
        if s == 6:
            a("s_waitcnt lgkmcnt(10)")
    for s in range(1, 8):
        a(f"s_waitcnt lgkmcnt({2 * (7 - s)})")
        for i in range(4):
            a(f"v_pk_add_f32 {vr(F_ + 2 * i, 2)}, {vr(F_ + 2 * i, 2)}, {vr(F_ + 8 * s + 2 * i, 2)}")
    if "ok4" in OPT:
        a("s_barrier")
        if "oe" not in OPT:
            a(f"buffer_load_dword v5, off, {sr(S_WS)}, s42 sc1")
    def silu_block():
        T_ = F_ + 8
        a(f"v_mov_b32 v4, {hx(f2u(-LOG2E))}")
        for i in range(8):
            a(f"v_mul_f32 v{T_ + i}, v{F_ + i}, v4")
        for i in range(8):
            a(f"v_exp_f32 v{T_ + i}, v{T_ + i}")
        a("s_nop 0")
        for i in range(8):
            a(f"v_add_f32 v{T_ + i}, 1.0, v{T_ + i}")
        for i in range(8):
            a(f"v_rcp_f32 v{T_ + i}, v{T_ + i}")
        a("s_nop 0")
        for i in range(8):
            a(f"v_mul_f32 v{F_ + i}, v{F_ + i}, v{T_ + i}")
        XU = G_ + 16
        for i in range(4):
            a(f"v_lshlrev_b32 v{XU + 2 * i}, 16, v{XV + i}")
            a(f"v_and_b32 v{XU + 2 * i + 1}, 0xffff0000, v{XV + i}")
    XU = G_ + 16
    if "sl" not in OPT:
        silu_block()
    a(f"s_lshr_b32 s{T0}, s{sW}, 2")
    a(f"s_mul_i32 s{T0}, s{T0}, {4 * 8256 if 'coal' in OPT else 32768}")
    a(f"s_and_b32 s{T1}, s{sW}, 3")
    a(f"s_lshl_b32 s{T2}, s{T1}, 11")
    a(f"s_add_u32 s{T0}, s{T0}, s{T2}")
    a(f"v_add_u32 v1, s{T0}, v{A16}")
    if "coal" in OPT:
        a(f"v_mov_b32 v3, v{AK}")
    else:
        a(f"s_lshl_b32 s{T0}, s{sW}, 13")
        a(f"v_add_u32 v3, s{T0}, v{A16}")
    a(f"s_lshl_b32 s{T0}, s{tTT}, 5")
    a(f"s_lshl_b32 s{T1}, s{T1}, 3")
    a(f"s_add_u32 s{T0}, s{T0}, s{T1}")
    a(f"s_lshl_b32 s{T0}, s{T0}, 10")
    a(f"s_add_u32 s{T2}, s{T0}, {WS_O}")
    a(f"s_add_u32 s{T3}, s{T2}, 4096")
    stamp(a, 11)
    if "ok4" in OPT:
        a(f"s_mov_b32 s{T1}, {SPIN}")
        a("L_o_poll:")
        a("s_waitcnt vmcnt(0)")
        a("v_readfirstlane_b32 s40, v5")
        a("s_cmp_ge_u32 s40, 8")
        a("s_cbranch_scc1 L_o_ok")
        a(f"s_sleep {OSL}")
        a(f"buffer_load_dword v5, off, {sr(S_WS)}, s42 sc1")
        a(f"s_sub_u32 s{T1}, s{T1}, 1")
        a(f"s_cmp_lg_u32 s{T1}, 0")
        a("s_cbranch_scc1 L_o_poll")
        a("L_o_ok:")
    else:
        a(f"s_cmp_lg_u32 s{sW}, 0")
        a("s_cbranch_scc1 L_o_ok")
        a(f"s_lshl_b32 s{T0}, s{sXCD}, 8")
        a(f"s_add_u32 s{T0}, s{T0}, {WS_CNT + C_O * 256}")
        a(f"s_mov_b32 s{T1}, {SPIN}")
        a("L_o_poll:")
        a(f"buffer_load_dword v4, off, {sr(S_WS)}, s{T0} sc1")
        a("s_waitcnt vmcnt(0)")
        a("v_readfirstlane_b32 s40, v4")
        a("s_cmp_ge_u32 s40, 32")
        a("s_cbranch_scc1 L_o_ok")
        a(f"s_sub_u32 s{T1}, s{T1}, 1")
        a(f"s_cmp_lg_u32 s{T1}, 0")
        a("s_cbranch_scc1 L_o_poll")
        a("L_o_ok:")
        a("s_barrier")
    stamp(a, 12)
    OF = S0
    SA = V_
    for j in range(8):
        so = T2 if j < 4 else T3
        a(f"buffer_load_dwordx4 {vr(OF + 4 * j, 4)}, v{A16}, {sr(S_WS)}, s{so} offen offset:{(j % 4) * 1024} sc1")
    if "sl" in OPT:
        silu_block()
    for j in range(8):
        a(f"s_waitcnt vmcnt({7 - j})")
        for ap in range(2):
            a(mfma(SA + 16 * ap, wreg(2 * j + ap), OF + 4 * j, "0" if j == 0 else None))
    stamp(a, 13)
    a("s_nop 11")
    for o in range(4):
        for i in range(2):
            a(f"ds_write_b128 v1, {vr(SA + 8 * o + 4 * i, 4)} offset:{o * (8256 if 'coal' in OPT else 8192) + i * 1024}")
    a("s_waitcnt lgkmcnt(0)")
    a("s_barrier")
    for s in range(4):
        for i in range(2):
            a(f"ds_read_b128 {vr(SA + 8 * s + 4 * i, 4)}, v3 offset:{(s * 2 + i) * 1024}")
    for s in range(1, 4):
        a(f"s_waitcnt lgkmcnt({2 * (3 - s)})")
        for i in range(4):
            a(f"v_pk_add_f32 {vr(SA + 2 * i, 2)}, {vr(SA + 2 * i, 2)}, {vr(SA + 8 * s + 2 * i, 2)}")
    for i in range(4):
        a(f"v_pk_fma_f32 {vr(XU + 2 * i, 2)}, {vr(SA + 2 * i, 2)}, {vr(F_ + 2 * i, 2)}, {vr(XU + 2 * i, 2)}")
    for i in range(4):
        a(f"v_cvt_pk_bf16_f32 v{4 + i}, v{XU + 2 * i}, v{XU + 2 * i + 1}")
    fl = " sc1" if "osc1" in OPT else (" nt" if "ont" in OPT else (" sc0 sc1" if "osc01" in OPT else ""))
    a(f"buffer_store_dwordx4 v[4:7], v{AOUT}, {sr(R_OUT)}, 0 offen{fl}")
    stamp(a, 14)
    stamp_flush(a)
    a("L_exit:")
    a("s_endpgm")
    a("L_fallback:")
    a(f"s_lshl_b32 s{T0}, s{tHEAD}, 16")
    a(f"s_add_u32 s{T0}, s{T0}, {32 << 16}")
    a(f"s_mov_b32 s{T1}, 0")
    a("v_mov_b32 v1, 0xff800000")
    a("L_fb1:")
    a(f"s_add_u32 s{T2}, s{T0}, s{T1}")
    a(f"buffer_load_dwordx4 {vr(K_, 4)}, v{A16}, {sr(S_WS)}, s{T2} offen sc1")
    a("s_waitcnt vmcnt(0)")
    a(mfma(S0, K_, Q_, "0"))
    a("s_nop 15")
    for i in range(0, 16, 2):
        a(f"v_max3_f32 v1, v1, v{S0 + i}, v{S0 + i + 1}")
    a(f"s_add_u32 s{T1}, s{T1}, 1024")
    a(f"s_cmp_lt_u32 s{T1}, 65536")
    a("s_cbranch_scc1 L_fb1")
    a("v_mov_b32 v2, v1")
    a("s_nop 1")
    a("v_permlane32_swap_b32 v1, v2")
    a("v_max_f32 v1, v1, v2")
    a("v_sub_f32 v1, 0, v1")
    for i in range(16):
        a(f"v_mov_b32 v{NM + i}, v1")
    for i in range(16):
        a(f"v_mov_b32 v{O_ + i}, 0")
    a("v_lshrrev_b32 v2, 5, v0")
    a("v_and_b32 v3, 15, v0")
    a("v_lshlrev_b32 v3, 4, v3")
    a("v_lshl_add_u32 v3, v2, 8, v3")
    a(f"s_mov_b32 s{T1}, 0")
    a("L_fb2:")
    a(f"s_add_u32 s{T2}, s{T0}, s{T1}")
    a(f"buffer_load_dwordx4 {vr(K_, 4)}, v{A16}, {sr(S_WS)}, s{T2} offen sc1")
    a(f"s_add_u32 s{T2}, s{T2}, {32 << 16}")
    a(f"s_mov_b64 exec, s[{tVM}:{tVM + 1}]")
    a(f"buffer_load_dwordx4 {vr(V_, 4)}, v3, {sr(S_WS)}, s{T2} offen sc1")
    a(f"buffer_load_dwordx4 {vr(V_ + 4, 4)}, v3, {sr(S_WS)}, s{T2} offen offset:512 sc1")
    a("s_mov_b64 exec, -1")
    a("s_waitcnt vmcnt(0)")
    a(mfma(S0, K_, Q_, NM))
    a("s_nop 15")
    for i in range(16):
        a(f"v_exp_f32 v{S0 + i}, v{S0 + i}")
    a("s_nop 0")
    for i in range(8):
        a(f"v_cvt_pk_bf16_f32 v{P_ + i}, v{S0 + 2 * i}, v{S0 + 2 * i + 1}")
    a("s_nop 1")
    a(mfma(O_, V_, P_))
    a(mfma(O_, V_ + 4, P_ + 4))
    a(f"s_add_u32 s{T1}, s{T1}, 1024")
    a(f"s_cmp_lt_u32 s{T1}, 65536")
    a("s_cbranch_scc1 L_fb2")
    a("s_nop 15")
    a("s_branch L_norm")


def main(out):
    a = Asm()
    k = NAME + "_kernel"
    hdr = ["; out = x + (MHA(LN x) @ wo) * silu(GEGLU-FFN(LN x)) in one persistent launch: 256 workgroups x 8 waves, one per CU.",
           "; Written with a generator script (own scheduling, no compiler output).",
           ";  phase 1: x @ [wqkv | w_gate | w_up] with LDS-DMA rings; LayerNorm folded in as (acc - mean*colsum(W)) / sd;",
           ";           workgroups 0..31 publish the row statistics, the others GEGLU tiles; results go to d_ws in MFMA fragment order",
           ";  phase 2: flash attention per (head, 256 queries) with K/V resident in LDS; the softmax reference is the max of the",
           ";           first 64 keys plus an offset, checked at the end (overflow / underflow) with a true-max fallback;",
           ";           the down projection runs inside the attention loop",
           ";  phase 3: output projection and the final combine",
           ";  hand-offs: write-through stores + counters (d_debug, and d_ws lines zeroed inside the launch); every spin is bounded",
           "; kernarg: 0 x, 8 wqkv, 16 wo, 24 (unused), 32 w_gate, 40 w_up, 48 w_down, 56 out, 64 debug, 72 ws",
           "; @launch grid=(256,1,1) block=(512,1,1) lds=163840"]
    a('.amdgcn_target "amdgcn-amd-amdhsa--gfx950"')
    a(".text")
    a(f".globl {k}\n.p2align 8\n.type {k},@function\n{k}:")
    gen_p1(a)
    gen_p2(a)
    gen_side(a)
    a("L_end:")
    a('.section .rodata,"a"')
    a(".p2align 6")
    a(f".amdhsa_kernel {k}")
    a(f".amdhsa_next_free_vgpr {NVGPR}")
    a(f".amdhsa_next_free_sgpr {96 if (STAMPS or ENC is not None) else 80}")
    a(f".amdhsa_accum_offset {(NVGPR + 3) // 4 * 4}")
    a(".amdhsa_group_segment_fixed_size 0")
    a(".amdhsa_kernarg_size 80")
    a(".amdhsa_user_sgpr_count 2")
    a(".amdhsa_user_sgpr_kernarg_segment_ptr 1")
    a(".amdhsa_system_sgpr_workgroup_id_x 1")
    a(".end_amdhsa_kernel")
    open(out, "w").write("\n".join(hdr) + "\n" + a.text())


if __name__ == "__main__":
    for x in list(sys.argv):
        if x.startswith("--opt="):
            OPT = set(x[6:].split(","))
            sys.argv.remove(x)
    for x in list(sys.argv):
        if x.startswith("--enc="):
            ENC = int(x[6:])
            sys.argv.remove(x)
    for o in OPT:
        if o.startswith("sig"): SIGU = int(o[3:])
        if o.startswith("chk"): CHK = int(o[3:])
        if o.startswith("wk"): WK = int(o[2:])
        if o.startswith("mo"): MAXOFF = float(o[2:])
        if o.startswith("cso"): CSO = int(o[3:])
        if o.startswith("osl"): OSL = int(o[3:])
        if o.startswith("nbg"): NBG = int(o[3:])
        if o.startswith("vb"): VBUD = int(o[2:])
        if o.startswith("pc"): PC = (int(o[2]), int(o[3]))
        if o.startswith("pd"): PD = int(o[2])
        if o.startswith("pg"): PG = int(o[2])
    if "--cyc" in sys.argv:
        STAMPS = 2
        sys.argv.remove("--cyc")
    if "--stamps" in sys.argv:
        STAMPS = True
        sys.argv.remove("--stamps")
    main(sys.argv[1] if len(sys.argv) > 1 else f"cdna_kernels/{NAME}.s")
```
